```python
import torch

def _softmax(x, axis=-1):
    return torch.softmax(x, dim=axis)

def _gelu(x):
    return torch.nn.functional.gelu(x, approximate='tanh')

def _silu(x):
    return torch.nn.functional.silu(x)

def _sigmoid(x):
    return torch.sigmoid(x)

def _layernorm(x, axis=-1, eps=1e-05):
    m = x.mean(dim=axis, keepdim=True)
    v = x.var(dim=axis, keepdim=True, unbiased=False)
    return (x - m) / torch.sqrt(v + eps)

def _scatter_add(tgt, idx, src, axis=0):
    return tgt.clone().index_add_(axis, idx, src)

def _segment_sum(src, seg, n):
    out = torch.zeros((n,) + src.shape[1:], dtype=src.dtype)
    return out.index_add_(0, seg, src)

def _pad(x, pw):
    flat = tuple((v for pair in reversed(pw) for v in pair))
    return torch.nn.functional.pad(x, flat)
kernel_name = 'concat_heads__ssm_conv_s4d__memory_aug_recurrent_mem_tr__prompt'

def setup_inputs():

    _w = lambda a: (lambda t: t.to(torch.bfloat16) if t.is_floating_point() else t)(torch.as_tensor(a))

    def _A_setup():
        Bsz, L, D, N = (1, 2048, 448, 256)
        return {'u': _w((lambda *s: torch.randn(*s, dtype=torch.bfloat16) * 0.05)(Bsz, L, D)), 'log_A_real': _w((lambda *s: torch.randn(*s, dtype=torch.bfloat16) * 6.4)(D, N) * 0.5), 'A_imag': _w((lambda *s: torch.randn(*s, dtype=torch.bfloat16) * 0.05)(D, N) * 3.14), 'C_real': _w((lambda *s: torch.randn(*s, dtype=torch.bfloat16) * 0.2)(D, N) / N ** 0.5), 'C_imag': _w((lambda *s: torch.randn(*s, dtype=torch.bfloat16) * 0.2)(D, N) / N ** 0.5), 'log_dt': _w((lambda *s: torch.randn(*s, dtype=torch.bfloat16) * 0.05)(D) * 0.5 - 4.0), 'D_skip': _w((lambda *s: torch.randn(*s, dtype=torch.bfloat16) * 0.05)(D))}
    _A_in = _A_setup()

    def _B_setup():
        B, S, Dm = (1, 2048, 448)
        H, Dh = (16, 256)
        M, seg = (8, 32)
        seg = min(seg, S)
        S = S // seg * seg
        return {'x': _w((lambda *s: torch.randn(*s, dtype=torch.bfloat16) * 0.05)(B, S, Dm)), 'mem0': _w((lambda *s: torch.randn(*s, dtype=torch.bfloat16) * 0.4)(B, M, Dm)), 'Wq': _w((lambda *s: torch.randn(*s, dtype=torch.bfloat16) * 6.4)(Dm, H, Dh) * Dm ** (-0.5)), 'Wk': _w((lambda *s: torch.randn(*s, dtype=torch.bfloat16) * 6.4)(Dm, H, Dh) * Dm ** (-0.5)), 'Wv': _w((lambda *s: torch.randn(*s, dtype=torch.bfloat16) * 0.4)(Dm, H, Dh) * Dm ** (-0.5)), 'Wo': _w((lambda *s: torch.randn(*s, dtype=torch.bfloat16) * 0.4)(H, Dh, Dm) * (H * Dh) ** (-0.5)), 'seg_len': seg}
    _B_in = _B_setup()
    return {'A_u': _A_in['u'], 'A_log_A_real': _A_in['log_A_real'], 'A_A_imag': _A_in['A_imag'], 'A_C_real': _A_in['C_real'], 'A_C_imag': _A_in['C_imag'], 'A_log_dt': _A_in['log_dt'], 'A_D_skip': _A_in['D_skip'], 'B_x': _B_in['x'], 'B_mem0': _B_in['mem0'], 'B_Wq': _B_in['Wq'], 'B_Wk': _B_in['Wk'], 'B_Wv': _B_in['Wv'], 'B_Wo': _B_in['Wo'], 'B_seg_len': _B_in['seg_len']}

def reference(A_u, A_log_A_real, A_A_imag, A_C_real, A_C_imag, A_log_dt, A_D_skip, B_x, B_mem0, B_Wq, B_Wk, B_Wv, B_Wo, B_seg_len):

    def _A_ref(u, log_A_real, A_imag, C_real, C_imag, log_dt, D_skip):
        L = u.shape[1]
        dt = torch.exp(log_dt)
        A = -torch.exp(log_A_real) + 1j * A_imag
        C = (C_real + 1j * C_imag) * dt[:, None]
        pos = (lambda x, dt: x.to(dt))(torch.arange(L), log_dt.dtype)
        P = torch.exp((A * dt[:, None])[:, :, None] * pos[None, None, :])
        K = 2.0 * torch.einsum('dn,dnl->dl', C, P).real
        L2 = 2 * L
        u_t = (lambda x, *d: x.permute(*d))(u, 0, 2, 1)
        Kf = (lambda x, *a, **k: torch.fft.rfft(x.float(), *a, **k))(K, L2)
        Uf = (lambda x, *a, **k: torch.fft.rfft(x.float(), *a, **k))(u_t, L2)
        y = (lambda x, *a, **k: torch.fft.irfft(x, *a, **k).to(torch.bfloat16))(Uf * Kf[None, :, :], L2)[:, :, :L]
        y = (lambda x, *d: x.permute(*d))(y, 0, 2, 1)
        return y + u * D_skip[None, None, :]

    def _B_ref(x, mem0, Wq, Wk, Wv, Wo, seg_len):
        B, S, Dm = x.shape
        H, Dh = (Wq.shape[1], Wq.shape[2])
        M = mem0.shape[1]
        scale = Dh ** (-0.5)
        n_seg = S // seg_len
        L = M + seg_len
        idx = torch.arange(L)
        mask = (idx[:, None] < M) | (idx[:, None] >= idx[None, :])
        mem = mem0
        outs = []
        for s in range(n_seg):
            xs = x[:, s * seg_len:(s + 1) * seg_len, :].clone()
            h = torch.concatenate([mem, xs], axis=1)
            q = torch.einsum('btd,dhe->bhte', h, Wq)
            k = torch.einsum('btd,dhe->bhte', h, Wk)
            v = torch.einsum('btd,dhe->bhte', h, Wv)
            scores = torch.einsum('bhqe,bhke->bhqk', q, k) * scale
            scores = torch.where(mask[None, None], scores, -1000000000.0)
            p = _softmax(scores, axis=-1)
            o = torch.einsum('bhqk,bhke->bhqe', p, v)
            o = torch.einsum('bhte,hed->btd', o, Wo)
            mem = o[:, :M, :].clone()
            outs.append(o[:, M:, :])
        return torch.concatenate(outs, axis=1)
    a = _A_ref(A_u, A_log_A_real, A_A_imag, A_C_real, A_C_imag, A_log_dt, A_D_skip)
    b = _B_ref(B_x, B_mem0, B_Wq, B_Wk, B_Wv, B_Wo, B_seg_len)
    return torch.concatenate([a, b], axis=-1)
```

```python
import re
_REG = re.compile(r'^(-?)(?:abs\()?([vas])(?:(\d+)|\[(\d+):(\d+)\])\)?$')
TRANS = ('v_exp_f32','v_log_f32','v_rcp_f32','v_rsq_f32','v_sqrt_f32','v_sin_f32','v_cos_f32','v_rcp_iflag_f32')
def regs_of(op):
    op = op.strip()
    if op == 'vcc': return {('s', 106), ('s', 107)}
    if op == 'vcc_lo': return {('s', 106)}
    if op == 'vcc_hi': return {('s', 107)}
    if op == 'exec': return {('s', 126), ('s', 127)}
    if op == 'm0': return {('s', 124)}
    m = _REG.match(op)
    if not m: return set()
    k = m.group(2)
    if m.group(3) is not None: return {(k, int(m.group(3)))}
    return {(k, i) for i in range(int(m.group(4)), int(m.group(5)) + 1)}
def split_ops(s):
    ops, depth, cur = [], 0, ''
    for ch in s:
        if ch in '[(': depth += 1
        if ch in '])': depth -= 1
        if ch == ',' and depth == 0:
            ops.append(cur.strip()); cur = ''
        else: cur += ch
    if cur.strip(): ops.append(cur.strip())
    return ops
def mfma_passes(mn):
    if '16x16x4_f32' in mn: return 8
    if '32x32x2_f32' in mn: return 16
    if '32x32' in mn: return 8
    if '16x16' in mn: return 4
    if '4x4' in mn: return 2
    raise ValueError(mn)
class Ins:
    __slots__ = ('mn','kind','w','r','rA','rC','passes','ws','dpp','sgemm','storedata')
class Asm:
    def __init__(self):
        self.lines = []; self.hist = []; self.nlabel = 0; self.count = 0
    def raw(self, s): self.lines.append(s)
    def comment(self, s): self.lines.append('  ; ' + s)
    def label(self, l):
        self.lines.append(l + ':')
    def newlabel(self, p='L'):
        self.nlabel += 1; return f'{p}_{self.nlabel}'
    def flush(self, n=None):
        need = 0; dist = 0
        for p in reversed(self.hist):
            if p.kind == 'mfma': need = max(need, self._xdl(p) - dist)
            elif p.kind in ('valu',): need = max(need, 5 - dist if any(k == 's' for k, _ in p.w) else 2 - dist)
            dist += p.ws
            if dist > 24: break
        self.nop(need)
    def nop(self, n):
        while n > 0:
            k = min(n, 16)
            self.lines.append(f'  s_nop {k-1}'); self.count += 1
            i = Ins(); i.mn = 's_nop'; i.kind = 'salu'; i.w = set(); i.r = set(); i.rA = set(); i.rC = set(); i.passes = 0; i.ws = k; i.dpp = False; i.sgemm = False; i.storedata = set()
            self.hist.append(i); n -= k
    @staticmethod
    def _xdl(p):
        if p.sgemm: return {2: 4, 4: 6, 8: 10, 16: 18}[p.passes]
        return {2: 5, 4: 8, 8: 12, 16: 20}[p.passes]
    def parse(self, s):
        s = s.split(';')[0].strip()
        parts = s.split(None, 1)
        mn = parts[0]; rest = parts[1] if len(parts) > 1 else ''
        i = Ins(); i.mn = mn; i.w = set(); i.r = set(); i.rA = set(); i.rC = set(); i.passes = 0; i.ws = 1; i.sgemm = False; i.storedata = set()
        i.dpp = ('_dpp' in mn) or ('quad_perm' in rest) or ('row_' in rest)
        ops = split_ops(rest)
        if ops:
            last = ops[-1].split()
            ops[-1] = last[0] if last else ''
            mods = ' '.join(last[1:])
        else: mods = ''
        R = [regs_of(o) for o in ops]
        if mn.startswith('v_mfma') or mn.startswith('v_smfmac'):
            i.kind = 'mfma'; i.passes = mfma_passes(mn); i.sgemm = mn.endswith('_f32') and ('x4_f32' in mn or 'x2_f32' in mn or 'x1_' in mn)
            i.w = R[0]
            if mn.startswith('v_smfmac'):
                i.rA = R[1] | R[2] | R[3]; i.rC = R[0]
            else:
                i.rA = R[1] | R[2]; i.rC = R[3]
            i.r = i.rA | i.rC
        elif mn.startswith('v_'):
            i.kind = 'valu'
            if mn.startswith('v_cmp'):
                i.w = R[0]; i.r = set().union(*R[1:])
            elif mn.startswith('v_permlane') and 'swap' in mn:
                i.w = R[0] | R[1]; i.r = R[0] | R[1]
            elif mn.startswith(('v_add_co','v_sub_co','v_addc_co','v_subb_co','v_mad_u64','v_div_scale')):
                i.w = R[0] | R[1]; i.r = set().union(*R[2:])
            else:
                i.w = R[0]; i.r = set().union(*R[1:]) if len(R) > 1 else set()
                if mn.startswith(('v_fmac','v_pk_fmac','v_dot2c','v_writelane')) or i.dpp: i.r |= R[0]
                if mn.startswith('v_cndmask') and len(ops) == 3: i.r |= regs_of('vcc')
        elif mn.startswith(('buffer_','global_','flat_')):
            i.kind = 'vmem'
            if mn.startswith(('buffer_inv','buffer_wbl2')): pass
            elif 'load' in mn and ('lds' in mods.split() or 'load_lds' in mn):
                i.r = set().union(*R) | regs_of('m0'); i.kind = 'vmem_lds'
            elif 'load' in mn:
                i.w = R[0]; i.r = set().union(*R[1:])
            elif 'atomic' in mn:
                i.r = set().union(*R)
                if 'sc0' in mods.split(): i.w = R[0] if mn.startswith('buffer') else R[0]
            else:
                i.r = set().union(*R)
                if 'x4' in mn or 'x3' in mn: i.storedata = R[0] if mn.startswith('buffer') else R[1]
        elif mn.startswith('ds_'):
            i.kind = 'ds'
            if 'read' in mn or 'permute' in mn or 'swizzle' in mn or '_rtn' in mn:
                i.w = R[0]; i.r = set().union(*R[1:])
            else: i.r = set().union(*R)
        else:
            i.kind = 'salu'
            if mn.startswith(('s_cmp','s_cbranch','s_branch','s_waitcnt','s_barrier','s_nop','s_sleep','s_setprio','s_endpgm','s_bitcmp')):
                i.r = set().union(*R) if R else set()
                if mn == 's_nop': i.ws = int(ops[0], 0) + 1
            else:
                i.w = R[0] if R else set(); i.r = set().union(*R[1:]) if len(R) > 1 else set()
                if 'saveexec' in mn: i.w |= regs_of('exec')
        return i
    def need(self, c):
        need = 0
        H = self.hist[-30:]
        n = len(H)
        for pi in range(n - 1, -1, -1):
            p = H[pi]
            req = self.req(p, c)
            if req <= 0: continue
            d = 0; lastm = (0, p.passes) if p.kind == 'mfma' else None
            prev = p
            for q in H[pi + 1:] + [c]:
                d = d + prev.ws
                if q.kind == 'mfma' and lastm is not None:
                    d = max(d, lastm[0] + lastm[1] - 1)
                if q.kind == 'mfma': lastm = (d, q.passes)
                prev = q
            need = max(need, req - (d - 1))
        return need
    def req(self, p, c):
        req = 0
        if p.kind == 'mfma':
            x = self._xdl(p)
            if c.kind == 'mfma':
                if p.w & c.rA: req = max(req, x)
                if p.w & c.rC:
                    if p.w == c.rC and p.passes == c.passes and p.sgemm == c.sgemm: req = max(req, 2 if p.passes == 2 else 0)
                    else: req = max(req, {2: 4, 4: 6, 8: 10, 16: 18}[p.passes])
                elif p.w & c.w: req = max(req, x)
            else:
                if p.w & (c.r | c.w): req = max(req, x)
                if c.kind == 'valu' and (p.rC & c.w) and not p.sgemm: req = max(req, {2: 1, 4: 3, 8: 7, 16: 15}[p.passes])
        elif p.kind == 'valu':
            vw = {x for x in p.w if x[0] != 's'}; sw = {x for x in p.w if x[0] == 's'}
            if c.kind == 'mfma' and (vw & c.r): req = max(req, 2)
            if c.kind == 'valu':
                if c.dpp and (vw & c.r): req = max(req, 2)
                if c.mn.startswith('v_permlane') and (vw & c.r): req = max(req, 2)
                if c.mn.startswith(('v_readlane','v_readfirstlane')) and (vw & c.r): req = max(req, 1)
                if p.mn.replace('_e32','').replace('_e64','') in TRANS and (vw & c.r): req = max(req, 1)
                if sw & c.r:
                    req = max(req, 4 if c.mn.startswith(('v_readlane','v_writelane')) else 2)
            if c.kind.startswith('vmem') and (sw & c.r): req = max(req, 5)
            if p.mn.replace('_e32','').replace('_e64','') in TRANS and c.kind in ('vmem','ds','mfma') and (vw & c.r): req = max(req, 2 if c.kind == 'mfma' else 1)
        elif p.kind == 'vmem':
            if p.storedata & c.w: req = max(req, 2)
        elif p.kind == 'salu':
            if c.kind == 'vmem_lds' and (('s', 124) in p.w): req = max(req, 1)
        return req
    def __call__(self, s):
        for line in s.split('\n'):
            line = line.strip()
            if not line: continue
            if line.endswith(':'): self.label(line[:-1]); continue
            c = self.parse(line)
            n = self.need(c)
            if n > 0: self.nop(n)
            self.lines.append('  ' + line); self.count += 1
            self.hist.append(c)
            if len(self.hist) > 64: self.hist = self.hist[-40:]
    def text(self): return '\n'.join(self.lines) + '\n'
def vr(b, n=1, k='v'):
    return f'{k}{b}' if n == 1 else f'{k}[{b}:{b+n-1}]'
def ureg(idx, n):
    if idx >= 256: return vr(idx - 256, n, 'a')
    assert idx + n <= 256
    return vr(idx, n, 'v')
def kernel_header(name):
    return f'.globl {name}\n.p2align 8\n.type {name},@function\n{name}:'
def kernel_desc(name, vgpr=512, accum=256, sgpr=102):
    return f""".p2align 6
.amdhsa_kernel {name}
  .amdhsa_next_free_vgpr {vgpr}
  .amdhsa_next_free_sgpr {sgpr}
  .amdhsa_accum_offset {accum}
  .amdhsa_group_segment_fixed_size 0
  .amdhsa_kernarg_size 136
  .amdhsa_user_sgpr_count 2
  .amdhsa_user_sgpr_kernarg_segment_ptr 1
  .amdhsa_system_sgpr_workgroup_id_x 1
.end_amdhsa_kernel"""

def code_prefetch(a, start, end, maxbytes, vt=10, nthreads=256):
    lbl = a.newlabel('pf_' + start)
    a.raw(f'  s_getpc_b64 s[98:99]')
    a.raw(f'{lbl}:')
    a.raw(f'  s_sub_u32 s98, s98, {lbl}-{start}')
    a.raw(f'  s_subb_u32 s99, s99, 0')
    a(f'v_lshlrev_b32 v{vt}, 7, v0')
    for k in range((maxbytes + nthreads * 128 - 1) // (nthreads * 128)):
        a.raw(f'  v_min_u32 v{vt+1}, {end}-{start}-4, v{vt}')
        a(f'global_load_dword v{vt+2}, v{vt+1}, s[98:99]')
        a(f'v_add_u32 v{vt}, {nthreads*128}, v{vt}')

def code_prefetch_shared(a, start, end, vt=10):
    lbl = a.newlabel('pf_' + start)
    a.raw(f'  s_getpc_b64 s[98:99]')
    a.raw(f'{lbl}:')
    a.raw(f'  s_sub_u32 s98, s98, {lbl}-{start}')
    a.raw(f'  s_subb_u32 s99, s99, 0')
    a('s_lshr_b32 s20, s2, 3')
    a(f'v_lshl_add_u32 v{vt}, v0, 5, s20')
    a(f'v_lshlrev_b32 v{vt}, 7, v{vt}')
    a.raw(f'  v_min_u32 v{vt}, {end}-{start}-4, v{vt}')
    a('v_cmp_gt_u32 vcc, 32, v0')
    a('s_and_saveexec_b64 s[22:23], vcc')
    a(f's_cbranch_execz {lbl}_n')
    a(f'global_load_dword v{vt+2}, v{vt}, s[98:99]')
    a.label(f'{lbl}_n')
    a('s_mov_b64 exec, -1')
```

```python
from asmlib import *
from layout import *

SRD = 's[8:11]'; DBG = 's[12:15]'
SPIN_LIMIT = 400000
SLOW_LIMIT = 50000
NSTEPS = 64
STAMPS = False
STAMP_STEP = 32
STAMP_CYC = 0
STEPLOG = 0
STAMP_OFF = 100 * 1024 * 1024
POLL_DEPTH = 3
POLL_GAP = 0
SC_SLEEP = 0
M_GAP = 4
SC_DELAY = 0
F1_POS = 1
F2_POS = 4
VA_DELAY = 0
VO_POS = 1
P_GAP = 5
ZFILL = 1
SC_ALLPOLL = 0
FOLDW = 1
NANCHK = 1
VO_PRE0 = 0
VO_PRE = 16
VO_SLEEP = 0
F1_WAVE = 2
RB1_DELAY = 0
EC_M = 0
EC_P = 0
DIAG = 0
T2SRV = 1
SLOW_FIRST = 0
B2_POS = 0
M_ROT = 0
CODE_PF = 1
PUB_EARLY = 0
HLP_SLEEP = 0
MERGE = 0
A_TGT = 28
B_TGT = 64
SELF_POISON = 0
X_PRELOAD = 0
VO_NT = 0
FIN_SLEEP = 0
VM_BURST = 0
PUBLISH = 1
VM_EVERY = 2
PUB_FIRST = 1
VO_EARLY = 0
FLAG_SLEEP = 0
SYNC = 0
XCD_SEL = 0
NOBULK = 0
VAL_TOUCH = 0
SC_TOUCH = 0
TOUCH_POS = 2
TOUCH_AHEAD = 2
DMA_DELAY = 0
PLAIN_M = 1
SELF = 0
R1 = 16
R2 = 32
PD_S = 5
PG_S = 8
PD_V = 5
PG_V = 8
PD_H = 3
PG_H = 0
VST = 0
VSM = 1
NPP = 10
VZ = 3
NPRE = 3
LPOS = 1
PLAIN_P = 1
D = 'row_mask:0xf bank_mask:0xf'
XSEG_B = 28 * KB

def stamp(a, k):
    if STAMPS: a(f'{"s_memtime" if STAMP_CYC else "s_memrealtime"} s[{40+2*k}:{41+2*k}]')
def stamp_flush(a, path, n, lbl, t=118):
    if not STAMPS: return
    a(f's_cmp_lg_u32 s19, {STAMP_STEP}')
    a(f's_cbranch_scc1 {lbl}')
    a('s_waitcnt lgkmcnt(0)')
    a(f's_lshl_b32 s22, s17, 9')
    a(f's_add_u32 s22, s22, {STAMP_OFF + path * 64}')
    a(f'v_mov_b32 v{t}, 0')
    for k in range(n):
        a(f'v_mov_b32 v{t+1}, s{40+2*k}')
        a(f'buffer_store_dword v{t+1}, v{t}, {SRD}, s22 offen offset:{4*k}')
    a.label(lbl)

EVLOG = 0
EV_OFF = 101 * 1024 * 1024
def evlog(a, tag, t=36):
    if not EVLOG: return
    a('s_memrealtime s[98:99]')
    a('s_waitcnt lgkmcnt(0)')
    a(f'v_mov_b32 v{t}, {tag}')
    a(f'v_mov_b32 v{t+1}, s98')
    a('s_mov_b64 exec, 1')
    a(f'buffer_store_dwordx2 v[{t}:{t+1}], off, {SRD}, s100')
    a('s_mov_b64 exec, -1')
    a('s_add_u32 s100, s100, 8')

def exec_lo(a, R):
    if R == 32: a('s_mov_b32 exec_hi, 0')
    else: a(f's_mov_b64 exec, {(1 << R) - 1}')

def spin(a, back, abort):
    a('s_add_u32 s30, s30, 1')
    a(f's_cmp_lt_u32 s30, {SPIN_LIMIT}')
    a(f's_cbranch_scc1 {back}')
    a(f's_branch {abort}')

def flagpoll(a, vaddr, sbase, regs, lbl, abort, Dp=None, gap=None):
    Dp = Dp or POLL_DEPTH
    gap = POLL_GAP if gap is None else gap
    for i in range(Dp):
        a(f'buffer_load_dword v{regs+i}, v{vaddr}, {SRD}, {sbase} offen sc1')
        if i < Dp - 1: a.nop(gap)
    a.label(lbl + '_l')
    for i in range(Dp):
        a(f's_waitcnt vmcnt({Dp-1})')
        a(f'v_cmp_eq_u32 vcc, -1, v{regs+i}')
        a(f's_cbranch_vccz {lbl}_d')
        a(f'buffer_load_dword v{regs+i}, v{vaddr}, {SRD}, {sbase} offen sc1')
    spin(a, lbl + '_l', abort)
    a.label(lbl + '_d')

def load_M(a, M, gap=0, k0=0):
    for ks in range(k0, 7):
        so = 's20' if ks < 4 else 's23'
        a(f'buffer_load_dwordx4 v[{M+4*ks}:{M+4*ks+3}], v2, {SRD}, {so} offen offset:{(ks & 3) * 1024} sc1')
        if gap and ks < 3: a.nop(gap)

def load_units(a, units, base, tmp_s='s22'):
    cur = None; n = 0
    for off, reg in units:
        for hb in range(2):
            o = off + hb * 1024
            blk = o // 4096 * 4096
            if blk != cur:
                a(f's_add_u32 {tmp_s}, {base}, {blk}'); cur = blk
            a(f'buffer_load_dwordx4 {ureg(reg + 4 * hb, 4)}, v2, {SRD}, {tmp_s} offen offset:{o - blk}' + (' sc1' if MERGE else ''))
            n += 1
            if n % 32 == 0: a('s_waitcnt vmcnt(24)')

def wreg(ti, ks):
    u = ti * 7 + ks
    return 256 + 8 * u if u < 32 else 120 + 8 * (u - 32)

def lane_consts(a):
    a('v_and_b32 v1, 63, v0')
    a('v_lshlrev_b32 v2, 4, v1')
    a('v_lshrrev_b32 v116, 4, v1')
    a('v_and_b32 v117, 15, v1')
    a('v_mov_b32 v3, 0x4444')
    a('v_mov_b32 v118, 0xeeee')
    a('v_cmp_lt_u32 vcc, 7, v117')
    a('v_cndmask_b32 v3, v3, v118, vcc')

def step_bases(a):
    a('s_add_u32 s23, s20, 4096')
    a(f's_add_u32 s21, s20, {EXCH_B}')

class Checker:
    def __init__(self, a, acc): self.a = a; self.acc = acc; self.q = []; self.first = True
    def add(self, r, n=4): self.q += list(range(r, r + n))
    def emit(self, k=1):
        for _ in range(k):
            if self.first and len(self.q) >= 3:
                x, y, z = self.q[:3]; self.q = self.q[3:]
                self.a(f'v_max3_u32 v{self.acc}, v{x}, v{y}, v{z}'); self.first = False
            elif len(self.q) >= 2:
                x, y = self.q[:2]; self.q = self.q[2:]
                self.a(f'v_max3_u32 v{self.acc}, v{self.acc}, v{x}, v{y}')
            elif len(self.q) == 1:
                self.a(f'v_max_u32 v{self.acc}, v{self.acc}, v{self.q[0]}'); self.q = []
    def drain(self):
        while self.q: self.emit()

XP = 2 * XSEG_B
MP = XP + 8 * KB
def score_tiles(w):
    return [(w, 0), (w, 1), (w, 2), (w, 3), (4 + (w >> 1), 2 * (w & 1)), (4 + (w >> 1), 2 * (w & 1) + 1), (6, w)]

def x_dma(a, w):
    a(f's_add_u32 m0, s25, {7*w*1024}')
    for f in range(7):
        if f == 4:
            a(f's_add_u32 m0, s25, {7*w*1024 + 4096}')
            a('s_add_u32 s22, s24, 4096')
        a(f'buffer_load_dwordx4 v2, {SRD}, {"s24" if f < 4 else "s22"} offen offset:{(f & 3) * 1024}' + (' sc1' if MERGE else '') + ' lds')

def gen_score(a, w, st, tag):
    L = lambda n: f'{tag}_sc{w}_{n}'
    ABORT = f'{tag}_abort'
    M = 8; ACC = 36; AOP = 64; TR = 68; BOP6 = 76; BOPB = 80; BOPA = 60; SACC = 84; SX = 88
    XS = [96, 104, [12, 16, 8, 8][w], 52, 36]
    ka, kb = w, 4 + (w >> 1)
    half6, piece6, pieceP = w & 1, w >> 1, w & 1
    def S(ti, ks):
        return f'v_smfmac_f32_16x16x64_bf16 v[{ACC+4*ti}:{ACC+4*ti+3}], v[{M+4*ks}:{M+4*ks+3}], {ureg(wreg(ti, ks), 8)}, v3'
    def cvt(dst, src):
        return [f'v_cvt_pk_bf16_f32 v{dst}, v{src}, v{src+1}', f'v_cvt_pk_bf16_f32 v{dst+1}, v{src+2}, v{src+3}']
    def T(dst): return f'v_mfma_f32_16x16x32_bf16 v[{dst}:{dst+3}], v[{AOP}:{AOP+3}], v[4:7], 0'
    def xrd(buf, kap, tt):
        off = (tt * 14 + 2 * kap) * 1024
        return [f'ds_read_b128 v[{XS[buf]}:{XS[buf]+3}], v116 offset:{off}', f'ds_read_b128 v[{XS[buf]+4}:{XS[buf]+7}], v116 offset:{off+1024}']
    def Smm(kap, b, first=False):
        c = '0' if first else f'v[{SACC}:{SACC+3}]'
        return f'v_mfma_f32_16x16x32_bf16 v[{SACC}:{SACC+3}], v[{M+4*kap}:{M+4*kap+3}], v[{b}:{b+3}], {c}'
    def Sx(tt, b, buf):
        return f'v_smfmac_f32_16x16x64_bf16 v[{SX+4*tt}:{SX+4*tt+3}], v[{b}:{b+3}], v[{XS[buf]}:{XS[buf]+7}], v3'
    ZR = list(range(ACC, ACC + 28)) + list(range(SX, SX + 8)) + [AOP + 2 - 2 * half6, AOP + 3 - 2 * half6]
    def zero(lo=0, hi=99):
        for r in ZR[lo:hi]: a(f'v_mov_b32 v{r}, 0')
    o1 = [(k + w) % 4 for k in range(4)] if M_ROT else [0, 1, 2, 3]
    o2 = [4 + (k + w) % 3 for k in range(3)] if M_ROT else [4, 5, 6]
    def ml(ks, first=False):
        a(f'buffer_load_dwordx4 v[{M+4*ks}:{M+4*ks+3}], v2, {SRD}, {"s20" if ks < 4 else "s23"} offen offset:{(ks & 3) * 1024}' + ('' if first and PLAIN_M and st == '' else ' sc1'))
    a.label(L('loop'))
    step_bases(a)
    zero(3 * M_GAP if ZFILL else 0)
    a('s_mov_b32 s30, 0')
    if NANCHK: a('s_mov_b32 s62, 0')
    if SC_ALLPOLL:
        a('s_waitcnt vmcnt(0)')
        a('s_barrier')
        if SC_SLEEP: a(f's_sleep {SC_SLEEP}')
        flagpoll(a, 117, 's20', TR, L('fp'), ABORT)
        stamp(a, 0)
    else:
        if w == 0:
            if SC_SLEEP: a(f's_sleep {SC_SLEEP}')
            flagpoll(a, 0, 's20', TR, L('fp'), ABORT, PD_S, PG_S)
            if SC_DELAY: a.nop(SC_DELAY)
            ml(o1[0], True)
            a('s_barrier')
            stamp(a, 0)
            a(f's_branch {L("ld1")}')
        else:
            a('s_waitcnt vmcnt(0)')
            stamp(a, 7)
            a('s_barrier')
            stamp(a, 0)
    a.label(L('ld'))
    ml(o1[0], NANCHK)
    if w == 0: a.label(L('ld1'))
    order = o1 + o2
    for i, ks in enumerate(order[1:NPRE]):
        if i < 3:
            if ZFILL: zero(i * M_GAP, (i + 1) * M_GAP)
            else: a.nop(M_GAP)
        ml(ks, NANCHK)
    if ZFILL and NPRE < 4: zero((NPRE - 1) * M_GAP, 3 * M_GAP)
    if NANCHK and NPRE == 7: a.label(L('ld2'))
    for x in xrd(0, 6, 0) + xrd(1, 6, 1): a(x)
    ck = Checker(a, 118)
    issued = NPRE
    late = order[NPRE:]
    for i, ks in enumerate(o1):
        a(f's_waitcnt vmcnt({issued-1-i})')
        if i < EC_M:
            a.label(L(f'e{i}'))
            r = M + 4 * ks
            a(f'v_max3_u32 v{TR}, v{r}, v{r+1}, v{r+2}')
            a(f'v_max_u32 v{TR}, v{TR}, v{r+3}')
            a(f'v_cmp_eq_u32 vcc, -1, v{TR}')
            a(f's_cbranch_vccnz {L(f"er{i}")}')
        elif not NANCHK: ck.add(M + 4 * ks)
        if i == 0: stamp(a, 1)
        for ti in range(7):
            a(S(ti, ks))
            if ti in (1, 3): ck.emit()
            if late and ti in ((LPOS, LPOS + 3) if LPOS < 4 else (LPOS - 4,)):
                ml(late.pop(0), NANCHK); issued += 1
    assert not late
    a('s_waitcnt vmcnt(0)')
    if NPRE < 7: a.label(L('ph2'))
    stamp(a, 2)
    for k in (4, 5, 6):
        if not NANCHK: ck.add(M + 4 * k)
    seq = []
    for ti in (6, 4, 5, 0, 1, 2, 3):
        for ks in (4, 5, 6): seq.append([S(ti, ks), []])
    def side(i, ops): seq[i][1] += ops
    CK = 'CK'
    for i in range(6): side(i, [CK])
    side(0, xrd(2, kb, 0))
    if SC_TOUCH: side(TOUCH_POS, [f'buffer_load_dword v119, v117, {SRD}, s35 offen sc1'])
    if not VAL_TOUCH and ((w == 1 and not SELF_POISON) or (w == 2 and not X_PRELOAD)): side(TOUCH_POS - 1, [f'buffer_load_dword v119, v0, {SRD}, {"s20" if w == 1 else "s24"} offen sc1'])
    c6 = cvt(AOP + 2 * half6, ACC + 24)
    side(5, c6[:1]); side(6, c6[1:] + ['v_cmp_eq_u32 vcc, -1, v118'])
    seq.insert(8, [T(TR), []])
    side(9, [f's_cbranch_vccnz {L("retry")}'])
    cb6 = cvt(BOP6 + 2 * piece6, TR)
    side(11, cb6[:1]); side(12, cb6[1:])
    c4, c5 = cvt(AOP, ACC + 16), cvt(AOP + 2, ACC + 20)
    side(9, c4[:1]); side(10, c4[1:]); side(12, c5[:1]); side(13, c5[1:])
    seq.insert(15, [T(TR + 4), xrd(3, kb, 1)])
    c0, c1 = cvt(AOP, ACC), cvt(AOP + 2, ACC + 4)
    side(16, c0[:1]); side(17, c0[1:])
    cbb = cvt(BOPB + 2 * pieceP, TR + 4)
    side(18, cbb[:1]); side(19, cbb[1:] + c1[:1]); side(20, c1[1:])
    seq.insert(22, [T(TR), xrd(4, ka, 0)])
    c2, c3 = cvt(AOP, ACC + 8), cvt(AOP + 2, ACC + 12)
    side(23, ['s_waitcnt lgkmcnt(4)'] + c2[:1])
    seq.append([Smm(6, BOP6, True), c2[1:]])
    seq.append([Sx(0, BOP6, 0), xrd(0, ka, 1)])
    ca0 = cvt(BOPA, TR)
    seq.append([Sx(1, BOP6, 1), c3])
    seq.append([Smm(kb, BOPB), ca0[:1]])
    seq.append([T(TR + 4), ca0[1:] + ['s_waitcnt lgkmcnt(4)']])
    seq.append([Sx(0, BOPB, 2), []])
    seq.append([Sx(1, BOPB, 3), ['s_waitcnt lgkmcnt(0)'] + cvt(BOPA + 2, TR + 4)])
    if FOLDW:
        seq.append([Smm(ka, BOPA), []])
        seq.append([Sx(0, BOPA, 4), []])
        seq.append([Sx(1, BOPA, 0), []])
    else:
        seq.append([Sx(0, BOPA, 4), []])
        seq.append([Sx(1, BOPA, 0), []])
        seq.append([Smm(ka, BOPA), []])
    for m, ops in seq:
        a(m)
        for o in ops:
            if o == CK: ck.emit()
            elif NANCHK and (o.startswith('v_cmp') or o.startswith('s_cbranch')): pass
            else:
                if o.startswith('v_cmp'): ck.drain()
                a(o)
    if FOLDW:
        a('s_mov_b64 exec, s[26:27]')
        a(f'ds_write_b128 v113, v[{SACC}:{SACC+3}]')
        a('s_mov_b64 exec, -1')
        a(f'v_cmp_u_f32 vcc, v{SX}, v{SX+1}')
        for r in range(4): a(f'v_permlane32_swap_b32 v{SX+r}, v{SX+4+r}')
        for r in range(4): a(f'v_add_f32 v{SX+r}, v{SX+r}, v{SX+4+r}')
        a(f'ds_write_b128 v112, v[{SX}:{SX+3}]')
    else:
        a(f'ds_write_b128 v112, v[{SX}:{SX+3}]')
        if NANCHK: a(f'v_cmp_u_f32 vcc, v{SX}, v{SX+1}')
        a(f'ds_write_b128 v112, v[{SX+4}:{SX+7}] offset:256')
        a('s_mov_b64 exec, s[26:27]')
        a(f'ds_write_b128 v113, v[{SACC}:{SACC+3}]')
        a('s_mov_b64 exec, -1')
    if NANCHK:
        a(f's_cbranch_vccnz {L("retry")}')
        a.label(L('cont'))
    stamp(a, 3)
    a('s_waitcnt lgkmcnt(0)')
    a('s_barrier')
    stamp(a, 4)
    t = ACC
    for k in range(2 if FOLDW else 4): a(f'ds_read_b64 v[{t+2*k}:{t+2*k+1}], v114 offset:{k*1024}')
    a(f'ds_read2_b32 v[{t+8}:{t+9}], v115 offset0:0 offset1:64')
    if w == F1_WAVE: a(f'v_lshl_add_u32 v{t+20}, v2, 3, s36')
    a('s_waitcnt lgkmcnt(0)')
    def f1(pos):
        if w == F1_WAVE and pos == F1_POS:
            exec_lo(a, R1)
            a(f'buffer_store_dword v2, v{t+20}, {SRD}, s20 offen {st}')
            a('s_mov_b64 exec, -1')
    f1(0)
    stamp(a, 5)
    sm, sx = t + 8, t
    a(f'v_add_f32 v{sm}, v{t+8}, v{t+9}')
    a(f'v_add_f32 v{t}, v{t}, v{t+2}')
    a(f'v_add_f32 v{t+1}, v{t+1}, v{t+3}')
    a(f'v_add_f32_dpp v{sm}, v{sm}, v{sm} row_ror:8 {D}')
    if FOLDW:
        a(f'v_mov_b32 v{t+9}, v{sm}')
        a(f'v_permlane32_swap_b32 v{t}, v{t+1}')
        a(f'v_add_f32 v{sx}, v{t}, v{t+1}')
        a(f'v_permlane16_swap_b32 v{sm}, v{t+9}')
        a(f'v_add_f32 v{sm}, v{sm}, v{t+9}')
    else:
        a(f'v_add_f32 v{t+4}, v{t+4}, v{t+6}')
        a(f'v_add_f32 v{t+5}, v{t+5}, v{t+7}')
        a(f'v_mov_b32 v{t+9}, v{sm}')
        a(f'v_add_f32 v{t}, v{t}, v{t+4}')
        a(f'v_add_f32 v{t+1}, v{t+1}, v{t+5}')
        a(f'v_permlane16_swap_b32 v{sm}, v{t+9}')
        a(f'v_add_f32 v{sm}, v{sm}, v{t+9}')
        a(f'v_permlane32_swap_b32 v{t}, v{t+1}')
        a(f'v_add_f32 v{sx}, v{t}, v{t+1}')
    mx = t + 2
    a(f'v_max_f32 v{mx}, v{sx}, v{sm}')
    f1(1)
    a(f'v_max_f32_dpp v{mx}, v{mx}, v{mx} quad_perm:[1,0,3,2] {D}')
    a(f'v_max_f32_dpp v{mx}, v{mx}, v{mx} quad_perm:[2,3,0,1] {D}')
    a(f'v_max_f32_dpp v{mx}, v{mx}, v{mx} row_half_mirror {D}')
    a(f'v_max_f32_dpp v{mx}, v{mx}, v{mx} row_mirror {D}')
    a(f'v_mov_b32 v{t+3}, v{mx}')
    a(f'v_permlane16_swap_b32 v{mx}, v{t+3}')
    a(f'v_max_f32 v{mx}, v{mx}, v{t+3}')
    f1(2)
    a(f'v_sub_f32 v{sx}, v{sx}, v{mx}')
    a(f'v_sub_f32 v{sm}, v{sm}, v{mx}')
    a(f'v_exp_f32 v{sx}, v{sx}')
    a(f'v_exp_f32 v{sm}, v{sm}')
    l = t + 3; u = t + 4; v = t + 5; lo = t + 6; hi = t + 7
    a(f'v_fma_f32 v{l}, v{sm}, s37, v{sx}')
    a(f'v_cndmask_b32 v{u}, v{sm}, v{sx}, s[38:39]')
    a(f'v_cndmask_b32 v{v}, v{sx}, v{sm}, s[38:39]')
    a(f'v_add_f32_dpp v{l}, v{l}, v{l} quad_perm:[1,0,3,2] {D}')
    a(f'v_mov_b32_dpp v{t+10}, v{v} quad_perm:[1,0,3,2] {D}')
    a(f'v_add_f32_dpp v{l}, v{l}, v{l} quad_perm:[2,3,0,1] {D}')
    a(f'v_cndmask_b32 v{lo}, v{t+10}, v{u}, s[38:39]')
    a(f'v_cndmask_b32 v{hi}, v{u}, v{t+10}, s[38:39]')
    f1(3)
    a(f'v_add_f32_dpp v{l}, v{l}, v{l} row_half_mirror {D}')
    a(f'v_add_f32_dpp v{l}, v{l}, v{l} row_mirror {D}')
    a(f'v_mov_b32 v{t+11}, v{l}')
    a(f'v_permlane16_swap_b32 v{l}, v{t+11}')
    a(f'v_add_f32 v{l}, v{l}, v{t+11}')
    f1(4)
    a(f'v_rcp_f32 v{l}, v{l}')
    a(f'v_mul_f32 v{lo}, v{lo}, v{l}')
    a(f'v_mul_f32 v{hi}, v{hi}, v{l}')
    a(f'v_cvt_pk_bf16_f32 v{lo}, v{lo}, v{hi}')
    a(f'v_min_u32 v{lo}, -2, v{lo}')
    a('s_mov_b64 exec, s[28:29]')
    a(f'buffer_store_dword v{lo}, v1, {SRD}, s20 offen {st}')
    a('s_mov_b64 exec, -1')
    f1(5)
    stamp(a, 6)
    a('s_barrier')
    if DMA_DELAY: a.nop(DMA_DELAY)
    if not NOBULK: a(f's_add_u32 s24, s24, {XSEG_B}')
    if not NOBULK: a(f's_add_u32 s35, s35, {GSH_B}')
    a(f's_xor_b32 s25, s25, {XSEG_B}')
    x_dma(a, w)
    a(f'v_xor_b32 v116, {XSEG_B}, v116')
    stamp_flush(a, w, 8, L('sf'))
    if STEPLOG and w in (1, 3):
        a('s_memtime s[40:41]' if w == 1 else 's_memrealtime s[40:41]')
        a('s_lshl_b32 s22, s17, 8')
        a('s_lshl_b32 s42, s19, 2')
        a('s_add_u32 s22, s22, s42')
        a(f's_add_u32 s22, s22, {STAMP_OFF + (4096 if w == 3 else 0)}')
        a('v_mov_b32 v118, 0')
        a('s_waitcnt lgkmcnt(0)')
        a('v_mov_b32 v119, s40')
        a(f'buffer_store_dword v119, v118, {SRD}, s22 offen')
    a('s_add_u32 s19, s19, 1')
    a('s_mov_b32 s20, s21')
    a(f's_cmp_lt_u32 s19, {NSTEPS-1}')
    a.flush()
    a(f's_cbranch_scc1 {L("loop")}')
    a(f's_branch {tag}_done')
    for i in range(EC_M):
        a.label(L(f'er{i}'))
        ml(o1[i])
        a('s_waitcnt vmcnt(0)')
        a('s_add_u32 s31, s31, 0x100')
        spin(a, L(f'e{i}'), ABORT)
    a.label(L('retry'))
    if NANCHK:
        a('s_cmp_lg_u32 s62, 0')
        a(f's_cbranch_scc1 {L("cont")}')
        a('s_waitcnt vmcnt(0) lgkmcnt(0)')
        a.label(L('rv'))
        for ks in range(7): ml(ks)
        a('s_waitcnt vmcnt(0)')
        ck2 = Checker(a, 118)
        ck2.add(M, 28); ck2.drain()
        a('v_cmp_eq_u32 vcc, -1, v118')
        a(f's_cbranch_vccz {L("rk")}')
        spin(a, L('rv'), ABORT)
        a.label(L('rk'))
        a('s_mov_b32 s62, 1')
        zero()
        a('s_add_u32 s31, s31, 1')
        if NPRE == 7: a(f's_branch {L("ld2")}')
        else:
            for x in xrd(0, 6, 0) + xrd(1, 6, 1): a(x)
            for ks in o1:
                for ti in range(7): a(S(ti, ks))
            a(f's_branch {L("ph2")}')
    else:
        a('s_waitcnt vmcnt(0) lgkmcnt(0)')
        a.nop(10)
        zero()
        a('s_add_u32 s31, s31, 1')
        spin(a, L('ld'), ABORT)

def init_score(a, w):
    AOP = 64
    a(f's_mul_i32 s31, s17, {CUW_B}')
    a(f's_add_u32 s31, s31, {WF_A}')
    units = [((kap * 4 + q) * TILE_B + ks * UNIT, wreg(ti, ks)) for ti, (kap, q) in enumerate(score_tiles(w)) for ks in range(7) if not SELF or ti in (4, 5)]
    load_units(a, units, 's31')
    a(f's_mov_b32 s24, {XF_OFF + 7*w*1024}')
    a('s_mov_b32 s25, 0')
    x_dma(a, w)
    a('v_and_b32 v64, 7, v117')
    a('v_and_b32 v65, 1, v116')
    a('v_lshlrev_b32 v65, 2, v65')
    a('v_sub_u32 v64, v64, v65')
    a('v_lshrrev_b32 v65, 3, v117')
    a('v_lshl_add_u32 v66, v65, 2, v64')
    a('v_cmp_gt_u32 vcc, 4, v64')
    a('v_mov_b32 v67, 99')
    a('v_cndmask_b32 v66, v67, v66, vcc')
    a('v_mov_b32 v68, 0x3f80')
    a('v_mov_b32 v69, 0x3f800000')
    for d in range(4):
        a(f'v_mov_b32 v{4+d}, 0')
        a(f'v_cmp_eq_u32 vcc, {2*d}, v66')
        a(f'v_cndmask_b32 v{4+d}, v{4+d}, v68, vcc')
        a(f'v_cmp_eq_u32 vcc, {2*d+1}, v66')
        a(f'v_cndmask_b32 v{4+d}, v{4+d}, v69, vcc')
    a('v_lshrrev_b32 v64, 1, v116')
    a('v_lshrrev_b32 v65, 3, v117')
    a('v_cmp_eq_u32 s[26:27], v64, v65')
    a('v_and_b32 v66, 1, v116')
    a(f'v_add_u32 v64, {2*w}, v64')
    if FOLDW:
        a('v_lshrrev_b32 v67, 1, v116')
        a('v_lshlrev_b32 v67, 8, v67')
    else: a('v_lshlrev_b32 v67, 10, v64')
    a('v_lshl_add_u32 v67, v66, 9, v67')
    a('v_lshl_add_u32 v67, v117, 4, v67')
    a(f'v_add_u32 v112, {XP + (w*1024 if FOLDW else 0)}, v67')
    a('v_and_b32 v68, 7, v117')
    a('v_lshlrev_b32 v67, 8, v64')
    a('v_lshl_add_u32 v67, v68, 5, v67')
    a('v_lshl_add_u32 v67, v66, 4, v67')
    a(f'v_add_u32 v113, {MP}, v67')
    a('v_lshrrev_b32 v64, 5, v1')
    a('v_and_b32 v65, 31, v1')
    a('v_lshrrev_b32 v66, 3, v65')
    a('v_and_b32 v67, 7, v65')
    a('v_and_b32 v68, 3, v67')
    a('v_lshl_add_u32 v68, v66, 2, v68')
    a('v_lshrrev_b32 v69, 2, v67')
    a('v_lshl_add_u32 v68, v69, 4, v68')
    a(f'v_lshlrev_b32 v69, {11 if FOLDW else 12}, v64')
    a('v_lshl_add_u32 v69, v68, 4, v69')
    a(f'v_add_u32 v114, {XP + (w >> 1) * 512 + 2 * (w & 1) * 4}, v69')
    a(f'v_add_u32 v70, {2*w}, v64')
    a('v_lshlrev_b32 v69, 9, v66')
    a('v_lshl_add_u32 v69, v70, 5, v69')
    a('v_lshl_add_u32 v69, v67, 2, v69')
    a(f'v_add_u32 v115, {MP}, v69')
    a('v_and_b32 v71, 1, v1')
    a('v_cmp_eq_u32 s[38:39], 0, v71')
    a('v_cmp_gt_u32 vcc, 8, v65')
    a('s_or_b64 s[28:29], s[38:39], vcc')
    a('v_lshrrev_b32 v72, 1, v67')
    a('v_lshlrev_b32 v72, 2, v72')
    a('v_lshl_add_u32 v72, v70, 4, v72')
    a('s_lshl_b32 s22, s17, 9')
    a(f's_add_u32 s22, s22, {PX}')
    a('v_lshl_add_u32 v73, v66, 7, v72')
    a('v_add_u32 v73, s22, v73')
    a('s_lshl_b32 s22, s17, 7')
    a(f's_add_u32 s22, s22, {PM}')
    a('v_add_u32 v74, s22, v72')
    if VSM:
        a('v_bfe_u32 v72, v65, 1, 1')
        a('v_lshlrev_b32 v72, 7, v72')
        a('v_lshl_add_u32 v72, v70, 4, v72')
        a('v_bfe_u32 v73, v65, 2, 2')
        a('v_lshl_add_u32 v72, v73, 2, v72')
        a('v_lshrrev_b32 v73, 4, v65')
        a('v_lshl_add_u32 v73, v73, 8, v72')
        a('s_lshl_b32 s22, s17, 9')
        a(f's_add_u32 s22, s22, {PX}')
        a('v_add_u32 v73, s22, v73')
        a('s_lshr_b32 s22, s17, 1')
        a('s_lshl_b32 s22, s22, 8')
        a('s_and_b32 s34, s17, 1')
        a('s_lshl_b32 s34, s34, 3')
        a('s_add_u32 s22, s22, s34')
        a(f's_add_u32 s22, s22, {PM}')
        a('v_add_u32 v74, s22, v72')
    a('v_lshlrev_b32 v0, 2, v65')
    a(f's_and_b32 s22, s17, {R2-1}')
    a('s_lshl_b32 s22, s22, 7')
    a(f's_add_u32 s22, s22, {F2}')
    a(f'v_add_u32 v0, s22, v0')
    a('v_cndmask_b32 v1, v74, v73, s[38:39]')
    a('s_lshl_b32 s36, s17, 2')
    a(f's_add_u32 s36, s36, {F1}')
    a('s_mov_b32 s37, 0x3e800000')
    for r in range(64, 112): a(f'v_mov_b32 v{r}, 0')
    a('v_mov_b32 v116, v2')
    a('v_lshrrev_b32 v117, 4, v2')
    a('v_min_u32 v117, 55, v117')
    a('v_lshlrev_b32 v117, 7, v117')
    if w in (1, 2):
        nl = 13 if w == 1 else 14
        a('v_lshrrev_b32 v0, 4, v2')
        a(f'v_min_u32 v0, {nl-1}, v0')
        a(f's_mul_i32 s22, s17, {nl}')
        a('v_add_u32 v0, s22, v0')
        a('v_lshlrev_b32 v0, 7, v0')
        a(f'v_add_u32 v0, {2*EXCH_B if w == 1 else 2*XSEG_B - 7*w*1024}, v0')
        for k in (1, 2):
            a(f's_mov_b32 s22, {EXCH_OFF - k*EXCH_B if w == 1 else XF_OFF + 7*w*1024 - k*XSEG_B}')
            a(f'buffer_load_dword v119, v0, {SRD}, s22 offen sc1')
    if X_PRELOAD:
        a(f's_mul_i32 s22, s17, {4*XSEG_B}')
        a(f's_add_u32 s22, s22, {XF_OFF + w*XSEG_B}')
        for k in range(4):
            a(f'buffer_load_dword v119, v117, {SRD}, s22 offen')
            a(f's_add_u32 s22, s22, {56*128}')
    if SC_ALLPOLL:
        a('v_lshrrev_b32 v117, 4, v2')
        a('v_and_b32 v117, 31, v117')
        a('v_lshlrev_b32 v117, 2, v117')
        a(f'v_add_u32 v117, {F2}, v117')
    a(f's_mul_i32 s35, s17, {64*GSH_B}')
    a(f's_add_u32 s35, s35, {VO_OFF + TOUCH_AHEAD*GSH_B + w*56*128}')

YL = 0; ML = 8 * KB; WL = 16 * KB
def vtiles(w): return (6 * w, 6, 6) if w < 2 else (12 + 8 * (w - 2), 8, 7)
def vwreg(w, ti, ks):
    u = ti * 7 + ks
    return 256 + 8 * u if u < 32 else (176 if w < 2 else 120) + 8 * (u - 32)

def vo_wait(a, L, ABORT, t):
    a(f'v_mov_b32 v{t}, 0')
    a.label(L('vow'))
    a(f'buffer_load_dword v{t+1}, v{t}, {SRD}, s35 offen sc1')
    a('s_waitcnt vmcnt(0)')
    a(f'v_readfirstlane_b32 s22, v{t+1}')
    a('s_cmp_eq_u32 s22, 56')
    a(f's_cbranch_scc1 {L("vod")}')
    a('s_sleep 2')
    spin(a, L('vow'), ABORT)
    a.label(L('vod'))
    a('s_add_u32 s35, s35, 2048')

def gen_value(a, w, st, tag):
    L = lambda n: f'{tag}_va{w}_{n}'
    ABORT = f'{tag}_abort'
    fin = w < 2
    t0, ntile, nreg = vtiles(w)
    M = 8; ACC = 36
    YA = 60 if fin else 112
    CK = 63
    def S(ti, ks, b=None):
        return f'v_smfmac_f32_16x16x64_bf16 v[{ACC+4*ti}:{ACC+4*ti+3}], v[{M+4*ks}:{M+4*ks+3}], {b or ureg(vwreg(w, ti, ks), 8)}, v3'
    def fold(p):
        A_ = ACC + 8 * p; B_ = A_ + 4
        o = [f'v_permlane32_swap_b32 v{A_+r}, v{B_+r}' for r in range(4)]
        o += [f'v_add_f32 v{A_+r}, v{A_+r}, v{B_+r}' for r in range(4)]
        o += [f'v_cvt_pk_bf16_f32 v{B_}, v{A_}, v{A_+1}', f'v_cvt_pk_bf16_f32 v{B_+1}, v{A_+2}, v{A_+3}', f'ds_write_b64 v{YA+p}, v[{B_}:{B_+1}]']
        return o
    def run(seq):
        last = {}
        for i, (ti, m, pre) in enumerate(seq): last[ti] = i
        pend = []; delay = 0
        for i, (ti, m, pre) in enumerate(seq):
            for x in pre: a(x)
            a(m)
            if delay: delay -= 1
            elif pend:
                a(pend.pop(0))
                if len(pend) > 12: a(pend.pop(0))
            p = ti // 2
            if i == max(last[2 * p], last[2 * p + 1]):
                pend += fold(p)
                if not delay: delay = 3
        for x in pend: a(x)
    a.label(L('loop'))
    step_bases(a)
    if not fin:
        for r in range(ACC, ACC + 4 * ntile): a(f'v_mov_b32 v{r}, 0')
    a('s_mov_b32 s30, 0')
    if fin:
        YT = 64; VOR = 80; LO = 156; HI = 160; PL = 164
        pr = lambda c: 8 + 4 * c if c < 7 else 144 + 4 * (c - 7)
        if SYNC:
            a('s_and_b32 s22, s19, 7')
            a('s_cmp_lg_u32 s22, 0')
            a(f's_cbranch_scc1 {L("vok")}')
            vo_wait(a, L, ABORT, PL)
            a.label(L('vok'))
        if T2SRV:
            a(f's_cmp_eq_u32 s19, {NSTEPS-1}')
            a(f's_cbranch_scc1 {tag}_done')
        def vol(lo, hi):
            for h in range(lo, hi):
                if h % 2 == 0: a(f's_add_u32 s22, s25, {h*1792}')
                a(f'buffer_load_dwordx4 v[{VOR+4*h}:{VOR+4*h+3}], v6, {SRD}, s22 offen offset:{(h & 1)*1792} sc1')
        vol(0, VO_PRE0)
        if not SLOW_FIRST: a('s_barrier')
        stamp(a, 0)
        if VO_SLEEP: a(f's_sleep {VO_SLEEP}')
        vol(VO_PRE0, VO_PRE)
        a('s_barrier')
        stamp(a, 1)
        for ks in range(7): a(f'ds_read_b128 v[{M+4*ks}:{M+4*ks+3}], v2 offset:{ML + ks*1024}')
        vol(VO_PRE, 16)
        a('s_waitcnt lgkmcnt(0)')
        run([(ti, S(ti, ks), []) for ti in range(ntile) for ks in range(7)])
        stamp(a, 2)
        a(f's_cmp_eq_u32 s19, {NSTEPS-1}')
        a(f's_cbranch_scc1 {L("last")}')
        a(f's_add_u32 s22, s20, {PX}')
        a(f's_add_u32 s34, s20, {PX + 4096}')
        a(f's_add_u32 s36, s20, {PM}')
        a('s_mov_b32 s37, 0')
        if STAMPS:
            a('s_waitcnt vmcnt(0)')
            stamp(a, 7)
        if VSM and B2_POS < 0:
            a('s_waitcnt lgkmcnt(0)')
            for r in range(ACC, ACC + 4 * ntile): a(f'v_mov_b32 v{r}, 0')
            a('s_barrier')
            for k in range(4): a(f'ds_read_b128 v[{YT+4*k}:{YT+4*k+3}], v2 offset:{YL + w*4096 + k*1024}')
            stamp(a, 3)
        if FIN_SLEEP: a(f's_sleep {FIN_SLEEP}')
        flagpoll(a, 4, 's20', PL, L('fw'), ABORT, PD_V, PG_V)
        stamp(a, 4)
        a('s_waitcnt lgkmcnt(0)')
        if VSM:
            pl = PLAIN_P and st == ''
            def pld(c, sc):
                so = ('s22', 's34', 's36')[c // 4]
                a(f'buffer_load_dwordx4 v[{pr(c)}:{pr(c)+3}], v2, {SRD}, {so} offen offset:{(c & 3)*1024}' + (' sc1' if sc else ''))
            def psm(c):
                B_ = VOR + 8 * c if c < 8 else YT + 8 * (c - 8)
                a(f'v_smfmac_f32_16x16x64_bf16 v[{LO}:{LO+3}], v[{pr(c)}:{pr(c)+3}], v[{B_}:{B_+7}], v3')
            zr = list(range(ACC, ACC + 4 * ntile)) if B2_POS >= 0 else []
            for c in range(NPP):
                pld(c, not pl)
                for _ in range(VZ):
                    if zr: a(f'v_mov_b32 v{zr.pop(0)}, 0')
            issued = NPP; nst = 0; q = list(range(NPP))
            if VST: stamp(a, 7)
            for c in range(10):
                if c == B2_POS:
                    a('s_barrier')
                    for k in range(4): a(f'ds_read_b128 v[{YT+4*k}:{YT+4*k+3}], v2 offset:{YL + w*4096 + k*1024}')
                    stamp(a, 3)
                a(f's_waitcnt vmcnt({len(q) - 1 - q.index(c)})' + (' lgkmcnt(0)' if c == 8 else ''))
                if c == 0: stamp(a, 5)
                if VST and c in (3, 6, 9): stamp(a, c // 3)
                psm(c)
                if c == F2_POS:
                    q.append('f')
                    exec_lo(a, R2)
                    a(f'buffer_store_dword v2, v7, {SRD}, s21 offen {st}')
                    a('s_mov_b64 exec, -1')
                    nst = 1
                if issued < 10:
                    pld(issued, not pl); q.append(issued); issued += 1
                for _ in range(2):
                    if zr: a(f'v_mov_b32 v{zr.pop(0)}, 0')
            a.label(L('ep'))
            while zr: a(f'v_mov_b32 v{zr.pop(0)}, 0')
            a(f'v_permlane32_swap_b32 v{LO}, v{LO+2}')
            a(f'v_permlane32_swap_b32 v{LO+1}, v{LO+3}')
            a(f'v_add_f32 v{HI}, v{LO}, v{LO+2}')
            a(f'v_add_f32 v{HI+1}, v{LO+1}, v{LO+3}')
            a(f'v_mov_b32 v{LO}, 0')
            a(f'v_mov_b32_dpp v{HI+2}, v{HI} row_ror:8 {D}')
            a(f'v_cmp_u_f32 vcc, v{HI}, v{HI+1}')
            a(f'v_mov_b32_dpp v{HI}, v{HI+1} row_ror:8 row_mask:0xf bank_mask:0xc')
            a(f'v_mov_b32 v{LO+1}, 0')
            a(f'v_mov_b32_dpp v{HI+1}, v{HI+2} quad_perm:[0,1,2,3] row_mask:0xf bank_mask:0x3')
            a(f'v_mov_b32 v{LO+2}, 0')
            a(f'v_cvt_pk_bf16_f32 v{HI}, v{HI}, v{HI+1}')
            a(f'v_mov_b32 v{LO+3}, 0')
            a(f'v_min_u32 v{HI}, -2, v{HI}')
            a(f's_cbranch_vccnz {L("rp")}')
            a.label(L('pc'))
            if w == 1: a('s_mov_b64 exec, s[26:27]')
            a(f'buffer_store_dword v{HI}, v1, {SRD}, s21 offen {st}')
        else:
            pl = PLAIN_P and st == ''
            if not pl: a.label(L('lp'))
            for c in range(10):
                so = ('s22', 's34', 's36')[c // 4]
                a(f'buffer_load_dwordx4 v[{pr(c)}:{pr(c)+3}], v5, {SRD}, {so} offen offset:{(c & 3)*1024}' + ('' if pl else ' sc1'))
                for r in range(ACC + 4 * c, min(ACC + 4 * c + 4, ACC + 4 * ntile)): a(f'v_mov_b32 v{r}, 0')
            if pl: a.label(L('lp'))
            ck = Checker(a, CK)
            nst = 0
            for c in range(10):
                if c == B2_POS:
                    a('s_cmp_lg_u32 s37, 0')
                    a(f's_cbranch_scc1 {L("nb2")}')
                    a('s_waitcnt lgkmcnt(0)')
                    a('s_barrier')
                    for k in range(4): a(f'ds_read_b128 v[{YT+4*k}:{YT+4*k+3}], v2 offset:{YL + w*4096 + k*1024}')
                    a.label(L('nb2'))
                    stamp(a, 3)
                a(f's_waitcnt vmcnt({9-c+nst})' + (' lgkmcnt(0)' if c == 8 else ''))
                if c < EC_P:
                    a.label(L(f'e{c}'))
                    r = pr(c)
                    a(f'v_max3_u32 v{PL}, v{r}, v{r+1}, v{r+2}')
                    a(f'v_max_u32 v{PL}, v{PL}, v{r+3}')
                    a(f'v_cmp_eq_u32 vcc, -1, v{PL}')
                    a(f's_cbranch_vccnz {L(f"er{c}")}')
                if c == 0: stamp(a, 5)
                if c == F2_POS:
                    exec_lo(a, R2)
                    a(f'buffer_store_dword v2, v7, {SRD}, s21 offen {st}')
                    a('s_mov_b64 exec, -1')
                    nst = 1
                if c >= EC_P: ck.add(pr(c))
                B_ = f'v[{pr(c)}:{pr(c)+3}]'
                for hi, acc in ((1, HI), (0, LO)):
                    A_ = VOR + 4 * (2 * c + hi) if c < 8 else YT + 4 * (2 * (c - 8) + hi)
                    a(f'v_mfma_f32_16x16x32_bf16 v[{acc}:{acc+3}], v[{A_}:{A_+3}], {B_}, ' + ('0' if c == 0 else f'v[{acc}:{acc+3}]'))
                    ck.emit()
            ck.drain()
            a(f'v_cmp_eq_u32 vcc, -1, v{CK}')
            for r in range(4): a(f'v_add_f32_dpp v{LO+r}, v{HI+r}, v{LO+r} row_ror:8 {D}')
            a(f's_cbranch_vccnz {L("rp")}')
            a(f'v_cvt_pk_bf16_f32 v{HI}, v{LO}, v{LO+1}')
            a(f'v_cvt_pk_bf16_f32 v{HI+1}, v{LO+2}, v{LO+3}')
            a(f'v_min_u32 v{HI}, -2, v{HI}')
            a(f'v_min_u32 v{HI+1}, -2, v{HI+1}')
            a('s_mov_b64 exec, s[26:27]')
            a(f'buffer_store_dwordx2 v[{HI}:{HI+1}], v1, {SRD}, s21 offen {st}')
        if T2SRV:
            a(f's_cmp_lg_u32 s19, {NSTEPS-2}')
            a(f's_cbranch_scc1 {L("nl")}')
            a(f's_mov_b32 s22, {MEMG_OFF + (NSTEPS-1)*7*KB}')
            if VSM: a(f'buffer_store_dword v{HI}, v1, {SRD}, s22 offen sc1')
            else: a(f'buffer_store_dwordx2 v[{HI}:{HI+1}], v1, {SRD}, s22 offen sc1')
            a('s_mov_b64 exec, -1')
            a(f's_branch {tag}_done')
            a.label(L('nl'))
        a('s_mov_b64 exec, -1')
        if SLOW_FIRST: a('s_barrier')
        stamp(a, 6)
        if not NOBULK: a(f's_add_u32 s25, s25, {GSH_B}')
        stamp_flush(a, 4 + w, 8, L('sf'), PL)
    else:
        STG = [76, 84, 92]; TP = 100
        TPS = [100, 104, 108, 4]
        t2st = [[f'buffer_store_dwordx4 v[{TPS[k]}:{TPS[k]+3}], v2, {SRD}, s24 offen offset:{k*1024} sc1'] for k in range(4)]
        t2st[-1].append(f's_add_u32 s24, s24, {8*KB}')
        t2fl = ['s_mov_b64 exec, 1', f'buffer_store_dword v117, v2, {SRD}, s34 offen sc1', 's_mov_b64 exec, -1', 's_add_u32 s34, s34, 8']
        def emit(gs):
            for g_ in gs:
                for x in g_: a(x)
        myks = [0, 1, 2, 3] if w == 2 else [4, 5, 6]
        oth = [k for k in range(7) if k not in myks]
        def mload():
            for ks in myks:
                a(f'buffer_load_dwordx4 v[{M+4*ks}:{M+4*ks+3}], v2, {SRD}, {"s20" if ks < 4 else "s23"} offen offset:{(ks & 3) * 1024} sc1')
        if HLP_SLEEP: a(f's_sleep {HLP_SLEEP}')
        flagpoll(a, 119, 's20', 76, L('fp'), ABORT, PD_H, PG_H)
        stamp(a, 0)
        mload()
        if PUBLISH and PUB_EARLY == 1: emit([t2fl] + t2st)
        if not SLOW_FIRST: a('s_barrier')
        if PUBLISH and PUB_EARLY == 2: emit([t2fl] + t2st)
        if PUBLISH and PUB_EARLY:
            a('s_waitcnt vmcnt(5)')
            a(f's_branch {L("ld2")}')
        a.label(L('ld'))
        a('s_waitcnt vmcnt(0)')
        if PUBLISH and PUB_EARLY: a.label(L('ld2'))
        ck = Checker(a, 84)
        for ks in myks: ck.add(M + 4 * ks)
        ck.drain()
        a('v_cmp_eq_u32 vcc, -1, v84')
        for ks in myks: a(f'ds_write_b128 v2, v[{M+4*ks}:{M+4*ks+3}] offset:{ML + ks*1024}')
        a(f's_cbranch_vccnz {L("retry")}')
        a('s_waitcnt lgkmcnt(0)')
        a('s_barrier')
        stamp(a, 1)
        for ks in oth: a(f'ds_read_b128 v[{M+4*ks}:{M+4*ks+3}], v2 offset:{ML + ks*1024}')
        if w == 2: a(f'ds_read_b128 v[92:95], v0')
        if VAL_TOUCH:
            a(f'buffer_load_dword v99, v118, {SRD}, {"s20" if w == 2 else "s39"} offen sc1')
            a(f's_add_u32 s39, s39, {XSEG_B}')
        if SELF_POISON:
            for r in range(76, 80): a(f'v_mov_b32 v{r}, -1')
            a('s_add_u32 s22, s21, s38')
            if w == 3: a('s_mov_b64 exec, 0x1f')
            a(f'buffer_store_dwordx4 v[76:79], v2, {SRD}, s22 offen {st}')
            if w == 3: a('s_mov_b64 exec, -1')
        if PUBLISH and not PUB_EARLY and not SLOW_FIRST and not T2SRV: emit([t2fl] + t2st)
        a('s_waitcnt lgkmcnt(0)')
        mg = ['s_mov_b64 exec, s[26:27]', f'buffer_store_dwordx4 v[92:95], v2, {SRD}, s36 offen sc1', 's_mov_b64 exec, -1', f's_add_u32 s36, s36, {7*KB}']
        if w == 2 and PUBLISH:
            if SLOW_FIRST:
                a(f's_cmp_lg_u32 s19, {NSTEPS-1}')
                a(f's_cbranch_scc1 {L("nmg")}')
            emit([mg])
            if SLOW_FIRST: a.label(L('nmg'))
        if T2SRV:
            a(f's_cmp_eq_u32 s19, {NSTEPS-1}')
            a(f's_cbranch_scc1 {tag}_done')
        lu = [(7, ks) for ks in range(7)]
        ru = [(t_, ks) for t_ in (6, 0, 1, 2, 3, 4, 5) for ks in range(7)]
        def wr(j):
            t_, ks = lu[j]; b = STG[j % 3]; off = (t_ - 7) * TILE_B + ks * UNIT
            return [f'ds_read_b128 v[{b}:{b+3}], v1 offset:{off}', f'ds_read_b128 v[{b+4}:{b+7}], v1 offset:{off+1024}']
        seq = []
        for j, (t_, ks) in enumerate(lu):
            pre = (wr(0) + wr(1) if j == 0 else []) + (wr(j + 2) if j + 2 < len(lu) else [])
            for k in range(2):
                r_ = ru.pop(0); seq.append((r_[0], S(*r_), pre if k == 0 else []))
            b = STG[j % 3]
            seq.append((t_, S(t_, ks, f'v[{b}:{b+7}]'), [f's_waitcnt lgkmcnt({2 * min(2, len(lu) - 1 - j)})']))
        for r_ in ru: seq.append((r_[0], S(*r_), []))
        run(seq)
        stamp(a, 2)
        a('s_waitcnt lgkmcnt(0)')
        a('s_barrier')
        for k in range(4):
            q = 2 * (w - 2) + (k >> 1); tp = k & 1
            if not T2SRV: a(f'ds_read_b128 v[{TPS[k]}:{TPS[k]+3}], v2 offset:{YL + tp*4096 + q*1024}')
        a(f's_cmp_eq_u32 s19, {NSTEPS-2 if T2SRV else NSTEPS-1}')
        a(f's_cbranch_scc1 {tag + "_done" if T2SRV else L("last")}')
        if SLOW_FIRST:
            if w == 2: a(f'ds_read_b128 v[92:95], v0')
            a('s_waitcnt vmcnt(0) lgkmcnt(0)')
            a('s_barrier')
            if PUBLISH: emit([t2fl] + t2st + ([mg] if w == 2 else []))
        else:
            a('s_waitcnt vmcnt(0) lgkmcnt(0)')
        stamp(a, 3)
        stamp_flush(a, 4 + w, 4, L('sf'), 76)
    a('s_add_u32 s19, s19, 1')
    a('s_mov_b32 s20, s21')
    a.flush()
    a(f's_branch {L("loop")}')
    if fin:
        a.label(L('last'))
        a('s_waitcnt lgkmcnt(0)')
        a('s_barrier')
        a(f's_branch {tag}_done')
        for c in range(EC_P):
            a.label(L(f'er{c}'))
            so = ('s22', 's34', 's36')[c // 4]
            a(f'buffer_load_dwordx4 v[{pr(c)}:{pr(c)+3}], v5, {SRD}, {so} offen offset:{(c & 3)*1024} sc1')
            a('s_waitcnt vmcnt(0)')
            a('s_add_u32 s31, s31, 0x1000000')
            spin(a, L(f'e{c}'), ABORT)
        a.label(L('rp'))
        if VSM:
            a('s_cmp_lg_u32 s37, 0')
            a(f's_cbranch_scc1 {L("pc")}')
            a.label(L('rv'))
            for c in range(10): pld(c, True)
            a('s_waitcnt vmcnt(0)')
            ck2 = Checker(a, CK)
            for c in range(10): ck2.add(pr(c))
            ck2.drain()
            a(f'v_cmp_eq_u32 vcc, -1, v{CK}')
            a(f's_cbranch_vccz {L("rk")}')
            spin(a, L('rv'), ABORT)
            a.label(L('rk'))
            a('s_mov_b32 s37, 1')
            a('s_add_u32 s31, s31, 0x10000')
            for c in range(10): psm(c)
            a.flush()
            a(f's_branch {L("ep")}')
            return
        a.nop(8)
        if PLAIN_P and st == '':
            for c in range(10):
                so = ('s22', 's34', 's36')[c // 4]
                a(f'buffer_load_dwordx4 v[{pr(c)}:{pr(c)+3}], v5, {SRD}, {so} offen offset:{(c & 3)*1024} sc1')
        a('s_mov_b32 s37, 1')
        a('s_add_u32 s31, s31, 0x10000')
        spin(a, L('lp'), ABORT)
    else:
        a.label(L('retry'))
        a('s_waitcnt lgkmcnt(0)')
        mload()
        a('s_add_u32 s31, s31, 1')
        spin(a, L('ld'), ABORT)
        a.label(L('last'))
        a('s_waitcnt lgkmcnt(0)')
        emit(t2st)
        a('s_waitcnt vmcnt(0)')
        emit([t2fl, t2fl])
        a(f's_branch {tag}_done')

def init_value(a, w, p):
    fin = w < 2
    t0, ntile, nreg = vtiles(w)
    YA = 60 if fin else 112
    a(f's_mul_i32 s31, s17, {CUW_B}')
    a(f's_add_u32 s31, s31, {WF_B}')
    units = [((t0 + ti) * TILE_B + ks * UNIT, vwreg(w, ti, ks)) for ti in range(nreg) for ks in range(7)]
    load_units(a, units, 's31')
    if fin:
        th = vtiles(w + 2)[0] + 7
        for f in range(14):
            if f % 4 == 0:
                a(f's_mov_b32 m0, {WL + 3*w*TILE_B + f*1024}')
                a(f's_add_u32 s22, s31, {th*TILE_B + f*1024}')
            a(f'buffer_load_dwordx4 v2, {SRD}, s22 offen offset:{(f & 3)*1024}' + (' sc1' if MERGE else '') + ' lds')
            if f % 16 == 15: a('s_waitcnt vmcnt(24)')
    a('v_mov_b32 v72, v116')
    a('v_mov_b32 v73, v117')
    a('v_lshrrev_b32 v65, 1, v72')
    a('v_and_b32 v66, 1, v72')
    for pp in range(ntile // 2):
        a(f'v_add_u32 v67, {t0 + 2*pp}, v65')
        a('v_lshl_add_u32 v67, v67, 4, v73')
        a('v_mul_u32_u24 v68, 2341, v67')
        a('v_lshrrev_b32 v68, 16, v68')
        a('v_mul_u32_u24 v69, 28, v68')
        a('v_sub_u32 v69, v67, v69')
        a('v_lshrrev_b32 v70, 4, v69')
        a('v_and_b32 v69, 15, v69')
        if VSM:
            a('v_and_b32 v71, 1, v69')
            a('v_lshrrev_b32 v69, 1, v69')
            a('v_lshl_add_u32 v69, v71, 3, v69')
        a('v_lshlrev_b32 v71, 12, v70')
        a('v_lshl_add_u32 v71, v68, 8, v71')
        a('v_lshl_add_u32 v71, v69, 4, v71')
        a(f'v_lshl_add_u32 v{YA+pp}, v66, 3, v71')
    if fin:
        a('v_and_b32 v0, 31, v1')
        a('v_lshlrev_b32 v0, 2, v0')
        a(f'v_add_u32 v0, {F2}, v0')
        a('v_lshlrev_b32 v4, 2, v73')
        if R1 == 32:
            a('s_lshl_b32 s22, s17, 1')
            a(f's_add_u32 s22, s22, {w}')
        else: a(f's_and_b32 s22, s17, {R1-1}')
        a('s_lshl_b32 s22, s22, 7')
        a(f's_add_u32 s22, s22, {F1}')
        a(f'v_add_u32 v4, s22, v4')
        a('v_and_b32 v64, 7, v73')
        a('v_lshlrev_b32 v5, 4, v64')
        a('v_lshl_add_u32 v5, v72, 7, v5')
        a('v_lshrrev_b32 v65, 3, v73')
        a('v_lshl_add_u32 v5, v65, 9, v5')
        a('s_lshl_b32 s22, s17, 3')
        a(f's_add_u32 s22, s22, {F2 + 4*w}')
        a('v_lshl_add_u32 v7, v2, 3, s22')
        a(f'v_add_u32 v65, {16*w}, v73')
        a('v_min_u32 v65, 27, v65')
        a('v_mad_u32_u24 v65, v72, 28, v65')
        a('v_lshlrev_b32 v6, 4, v65')
        a('s_lshr_b32 s22, s17, 1')
        a('s_mul_i32 s22, s22, 7')
        a('s_and_b32 s34, s17, 1')
        a('s_lshl_b32 s35, s34, 2')
        a('v_add_u32 v70, s35, v72')
        a('v_mov_b32 v71, s34')
        a(f'v_mov_b32 v69, {w}')
        a('v_cmp_eq_u32 vcc, 3, v72')
        a('v_cndmask_b32 v70, v70, v72, vcc')
        a('v_cndmask_b32 v69, v69, v71, vcc')
        a('v_add_u32 v70, s22, v70')
        a('v_lshrrev_b32 v68, 1, v70')
        a('v_lshlrev_b32 v68, 8, v68')
        a('v_lshl_add_u32 v68, v69, 7, v68')
        a('v_and_b32 v69, 1, v70')
        a('v_lshl_add_u32 v68, v69, 3, v68')
        a('v_lshl_add_u32 v1, v64, 4, v68')
        a('v_cmp_gt_u32 s[26:27], 8, v73')
        if w == 1:
            a('v_cmp_gt_u32 vcc, 3, v72')
            a('s_and_b64 s[26:27], s[26:27], vcc')
        if VSM:
            a('v_lshrrev_b32 v65, 3, v73')
            a('v_lshl_add_u32 v66, v64, 1, v65')
            a(f'v_add_u32 v66, {16*w}, v66')
            a('v_min_u32 v66, 27, v66')
            a('v_mad_u32_u24 v66, v72, 28, v66')
            a('v_lshlrev_b32 v6, 4, v66')
            a('s_mul_i32 s22, s17, 28')
            a(f's_add_u32 s22, s22, {16*w}')
            a('v_lshl_add_u32 v70, v64, 1, s22')
            a('v_lshrrev_b32 v68, 4, v70')
            a('v_lshlrev_b32 v68, 8, v68')
            a('v_bfe_u32 v69, v70, 1, 1')
            a('v_lshl_add_u32 v68, v69, 7, v68')
            a('v_bfe_u32 v69, v70, 2, 2')
            a('v_lshl_add_u32 v68, v69, 2, v68')
            a('v_and_b32 v69, 1, v72')
            a('v_lshl_add_u32 v65, v69, 2, v65')
            a('v_lshrrev_b32 v69, 1, v72')
            a('v_lshl_add_u32 v65, v69, 1, v65')
            a('v_lshl_add_u32 v1, v65, 4, v68')
            a('v_cmp_gt_u32 s[26:27], 6, v64')
            for r in range(156, 160): a(f'v_mov_b32 v{r}, 0')
            for k in range(4): a(f'ds_write_b128 v2, v[156:159] offset:{YL + w*4096 + k*1024}')
        a(f's_mul_i32 s22, s17, {64*GSH_B}')
        a(f's_add_u32 s25, s22, {VO_OFF}')
        a('s_lshl_b32 s35, s17, 7')
        a(f's_add_u32 s35, s35, {CNT_OFF + VOC}')
    else:
        a(f's_mul_i32 s24, s17, {65*8*KB}')
        a(f's_add_u32 s24, s24, {T2_OFF + (w-2)*4096 + (8*KB if SLOW_FIRST else 0)}')
        a('s_mul_i32 s34, s17, 640')
        a(f's_add_u32 s34, s34, {CNT_OFF + T2F + 4*(w-2) + (8 if SLOW_FIRST else 0)}')
        a('s_mul_i32 s36, s17, 448')
        a('v_add_u32 v0, s36, v2')
        a(f'v_add_u32 v0, {ML}, v0')
        a(f's_add_u32 s36, s36, {MEMG_OFF}')
        a('v_cmp_gt_u32 s[26:27], 28, v1')
        a('v_and_b32 v119, 31, v1')
        a('v_lshlrev_b32 v119, 2, v119')
        a('s_add_u32 s22, s17, 16')
        a(f's_and_b32 s22, s22, {R2-1}')
        a('s_lshl_b32 s22, s22, 7')
        a(f's_add_u32 s22, s22, {F2}')
        a(f'v_add_u32 v119, s22, v119')
        nl = 13 if w == 2 else 14
        a(f'v_min_u32 v118, {nl-1}, v1')
        a(f's_mul_i32 s22, s17, {nl}')
        a('v_add_u32 v118, s22, v118')
        a('v_lshlrev_b32 v118, 7, v118')
        a(f'v_add_u32 v118, {2*EXCH_B if w == 2 else 2*XSEG_B}, v118')
        a(f's_mov_b32 s39, {XF_OFF}')
        a(f'v_add_u32 v1, {WL + 3*(w-2)*TILE_B}, v2')
        a('v_mov_b32 v117, 1')
        a('s_mul_i32 s38, s17, 1104')
        a(f's_add_u32 s38, s38, {EXCH_B + (w-2)*1024}')

def dbg_wait(a, P, t, abort):
    a('s_mov_b32 s30, 0')
    a.label(P)
    a(f'buffer_load_dword v{t+2}, v{t}, {DBG}, 0 offen sc1')
    a('s_waitcnt vmcnt(0)')
    a(f'v_cmp_ne_u32 vcc, v{t+2}, v{t+1}')
    a(f's_cbranch_vccz {P}_ok')
    a('s_sleep 4')
    a('s_add_u32 s30, s30, 1')
    a(f's_cmp_lt_u32 s30, {SLOW_LIMIT}')
    a(f's_cbranch_scc1 {P}')
    a(f's_branch {abort}')
    a.label(P + '_ok')

def dep_regs(a, cg_s, t, lane='v1'):
    a(f's_and_b32 s20, {cg_s}, 15')
    a('s_lshr_b32 s21, s20, 1')
    a('s_mul_i32 s21, s21, 56')
    a('s_add_u32 s22, s21, 55')
    a('s_lshr_b32 s21, s21, 6')
    a('s_lshr_b32 s22, s22, 6')
    a('s_add_u32 s21, s21, 24')
    a('s_add_u32 s22, s22, 24')
    a('s_add_u32 s20, s20, 8')
    a(f's_cmp_lt_u32 {cg_s}, 16')
    a('s_cselect_b32 s21, s20, s21')
    a('s_cselect_b32 s22, s20, s22')
    a(f's_cselect_b32 s20, {A_TGT}, {B_TGT}')
    a('s_lshl_b32 s21, s21, 2')
    a('s_lshl_b32 s22, s22, 2')
    a(f'v_mov_b32 v{t}, 124')
    a(f'v_mov_b32 v{t+1}, 128')
    a(f'v_writelane_b32 v{t}, s21, 0')
    a(f'v_writelane_b32 v{t}, s22, 1')
    a(f'v_writelane_b32 v{t+1}, s20, 0')
    a(f'v_writelane_b32 v{t+1}, s20, 1')

def xprep_loop(a, P):
    import prep
    a.label(f'{P}_l')
    a('s_waitcnt vmcnt(0) lgkmcnt(0)')
    a('v_mov_b32 v4, 1')
    a('v_mov_b32 v5, 20')
    wg_atomic(a, f'{P}_el', 's3')
    a('s_cmp_ge_u32 s3, 32')
    a(f's_cbranch_scc1 {P}_d')
    prep.xprep_item(a, P, 's3', st='sc1', signal=DBG)
    a(f's_branch {P}_l')
    a.label(f'{P}_d')

def wg_atomic(a, P, dst):
    a('v_mov_b32 v6, 160000')
    a('s_barrier')
    a('s_cmp_lg_u32 s16, 0')
    a(f's_cbranch_scc1 {P}1')
    a('s_mov_b64 exec, 1')
    a(f'buffer_atomic_add v4, v5, {DBG}, 0 offen sc0')
    a('s_waitcnt vmcnt(0)')
    a('ds_write_b32 v6, v4')
    a('s_waitcnt lgkmcnt(0)')
    a('s_mov_b64 exec, -1')
    a.label(f'{P}1')
    a('s_barrier')
    a('ds_read_b32 v4, v6')
    a('s_waitcnt lgkmcnt(0)')
    a(f'v_readfirstlane_b32 {dst}, v4')

def staff_check(a, okl, mode):
    a('s_mov_b32 s30, 0')
    a('v_mov_b32 v36, 0')
    a.label('ch_chk')
    a(f'buffer_load_dword v37, v36, {DBG}, 0 offen sc1')
    a('s_waitcnt vmcnt(0)')
    a('v_readfirstlane_b32 s22, v37')
    a('s_and_b32 s22, s22, 0xffff')
    a('s_cmp_ge_u32 s22, 32')
    a('s_cbranch_scc1 ch_go_end')
    a('s_sleep 16')
    a('s_add_u32 s30, s30, 1')
    a('s_cmp_lt_u32 s30, 64')
    a('s_cbranch_scc1 ch_chk')
    a.label('ch_go_end')
    a('v_mov_b32 v6, 160016')
    a('v_mov_b32 v4, s22')
    a('s_cmp_lg_u32 s16, 0')
    a('s_cbranch_scc1 ch_dec')
    a('ds_write_b32 v6, v4')
    a('s_waitcnt lgkmcnt(0)')
    a.label('ch_dec')
    a('s_barrier')
    a('ds_read_b32 v4, v6')
    a('s_waitcnt lgkmcnt(0)')
    a('v_readfirstlane_b32 s22, v4')
    a('s_cmp_ge_u32 s22, 32')
    a(f's_cbranch_scc1 {okl}')
    a('v_mov_b32 v4, 0x10001')
    a(f's_mov_b32 s18, {mode}')
    a('s_branch ch_take')

def worker_s4d(a):
    import s4d
    s4d.s4d_setup(a)
    a.label('wk_loop')
    a('v_mov_b32 v4, 1')
    a('v_mov_b32 v5, 4')
    wg_atomic(a, 'wk_el', 's3')
    a('v_and_b32 v4, 15, v1')
    a('s_cmp_ge_u32 s3, 112')
    a('s_cbranch_scc1 wk_done')
    s4d.s4d_item(a, 'wk', 's3')
    a('s_branch wk_loop')
    a.label('wk_done')

def poll_eq(a, P, srd, soff, target, sleep=4):
    a('v_mov_b32 v8, 0')
    a('s_mov_b32 s30, 0')
    a.label(P)
    a(f'buffer_load_dword v9, v8, {srd}, {soff} offen sc1')
    a('s_waitcnt vmcnt(0)')
    a(f'v_cmp_ne_u32 vcc, {target}, v9')
    a(f's_cbranch_vccz {P}_ok')
    a(f's_sleep {sleep}')
    a('s_add_u32 s30, s30, 1')
    a(f's_cmp_lt_u32 s30, {SLOW_LIMIT}')
    a(f's_cbranch_scc1 {P}')
    a('s_branch cA_abort')
    a.label(P + '_ok')
def flag_wait(a, P):
    a('s_cmp_lg_u32 s97, 0')
    a(f's_cbranch_scc1 {P}_sk')
    a('s_movk_i32 s20, 128')
    poll_eq(a, P, DBG, 's20', 1)
    a('s_mov_b32 s97, 1')
    a.label(P + '_sk')
def ac_wait(a, P):
    a('s_lshl_b32 s20, s17, 7')
    a(f's_add_u32 s20, s20, {CNT_OFF + AC}')
    poll_eq(a, P, SRD, 's20', 7, sleep=6)

def worker_all(a):
    import s4d, gemm, tok, prep
    JS = DBG if MERGE else SRD
    JO = 64 if MERGE else CNT_OFF + JOBC
    NA = 112 if MERGE == 1 else 0
    NJ = 1104 + NA
    tok.PEEK = JS
    a('s_load_dwordx2 s[36:37], s[0:1], 112')
    a('s_waitcnt lgkmcnt(0)')
    a(f's_mov_b32 s92, s36\ns_and_b32 s93, s37, 0xffff\ns_mov_b32 s94, {2048*896*2}\ns_mov_b32 s95, 0x20000')
    def ask():
        lb = a.newlabel('ask')
        a('s_cmp_lg_u32 s16, 0')
        a(f's_cbranch_scc1 {lb}')
        a('v_mov_b32 v250, 1')
        a(f'v_mov_b32 v251, {JO}')
        a('s_mov_b64 exec, 1')
        a(f'buffer_atomic_add v250, v251, {JS}, 0 offen sc0')
        a('s_mov_b64 exec, -1')
        a.label(lb)
    a('s_mov_b32 s96, 0')
    if MERGE:
        a('s_cmp_lg_u32 s101, -1')
        a('s_mov_b32 s3, s101')
        a('s_mov_b32 s101, -1')
        a('s_cbranch_scc1 wk_have')
    ask()
    a('s_branch wk_next')
    a.label('wk_loop')
    a('s_waitcnt vmcnt(0) lgkmcnt(0)')
    a('s_cmp_eq_u32 s96, 1')
    a('s_cbranch_scc1 wk_ask')
    a('s_mov_b32 s96, 1')
    staff_check(a, 'wk_ask', 0)
    a.label('wk_ask')
    a('v_readfirstlane_b32 s22, v250')
    a(f's_cmp_ge_u32 s22, {NJ}')
    a('s_cbranch_scc1 wk_next')
    ask()
    a.label('wk_next')
    evlog(a, 9005)
    a('v_mov_b32 v6, 160000')
    a('s_waitcnt vmcnt(0)')
    a('s_barrier')
    a('s_cmp_lg_u32 s16, 0')
    a('s_cbranch_scc1 wk_n1')
    a('s_mov_b64 exec, 1')
    a('ds_write_b32 v6, v250')
    a('s_mov_b64 exec, -1')
    a('s_waitcnt lgkmcnt(0)')
    a.label('wk_n1')
    a('s_barrier')
    a('ds_read_b32 v4, v6')
    a('s_waitcnt lgkmcnt(0)')
    a('v_readfirstlane_b32 s3, v4')
    a.label('wk_have')
    evlog(a, 's3')
    a(f's_cmp_ge_u32 s3, {NJ}')
    a('s_cbranch_scc1 wk_done')
    a('v_mov_b32 v250, 0')
    a(f'v_mov_b32 v251, {JO}')
    a('v_and_b32 v1, 63, v0')
    a('v_lshlrev_b32 v2, 4, v1')
    a('v_lshrrev_b32 v3, 4, v1')
    a('v_and_b32 v4, 15, v1')
    if MERGE == 3: flag_wait(a, 'wk_fw')
    if MERGE == 1:
        a('s_cmp_ge_u32 s3, 112')
        a('s_cbranch_scc1 wk_np')
        prep.prep_item(a, 'wpa', 's3', st='sc1', mode='A')
        flag_wait(a, 'wk_fa')
        a('s_waitcnt vmcnt(0)')
        a('s_barrier')
        a('v_mov_b32 v250, 0')
        a('s_cmp_lg_u32 s16, 0')
        a('s_cbranch_scc1 wk_loop')
        a('s_lshl_b32 s20, s17, 7')
        a(f's_add_u32 s20, s20, {CNT_OFF + AC}')
        a('v_mov_b32 v5, 1')
        a('v_mov_b32 v6, 0')
        a('s_mov_b64 exec, 1')
        a(f'buffer_atomic_add v5, v6, {SRD}, s20 offen')
        a('s_mov_b64 exec, -1')
        a('s_branch wk_loop')
        a.label('wk_np')
        a('s_sub_u32 s3, s3, 112')
        flag_wait(a, 'wk_fw')
    a('s_cmp_ge_u32 s3, 592')
    a('s_cbranch_scc1 wk_tok')
    a('s_cmp_ge_u32 s3, 480')
    a('s_cbranch_scc1 wk_s4d')
    a('s_cmp_ge_u32 s3, 256')
    a('s_cbranch_scc1 wk_full')
    a('s_cmp_ge_u32 s3, 224')
    a('s_cbranch_scc1 wk_srv')
    a('s_cmp_ge_u32 s3, 112')
    a('s_cselect_b32 s18, 1, 0')
    a('s_cselect_b32 s20, 112, 0')
    a('s_sub_u32 s20, s3, s20')
    a('s_and_b32 s17, s20, 15')
    a('s_add_u32 s17, s17, 16')
    a('s_lshr_b32 s34, s20, 4')
    a('s_lshl_b32 s34, s34, 1')
    a('s_add_u32 s35, s34, 2')
    if RB1_DELAY:
        a('s_cmp_eq_u32 s18, 0')
        a('s_cbranch_scc1 wk_gemm')
        for _ in range(RB1_DELAY): a('s_sleep 127')
    a('s_branch wk_gemm')
    a.label('wk_full')
    a('s_sub_u32 s20, s3, 224')
    a('s_and_b32 s17, s20, 15')
    a('s_lshr_b32 s18, s20, 4')
    a('s_cmp_lt_u32 s18, 8')
    a('s_cselect_b32 s21, 16, 0')
    a('s_add_u32 s17, s17, s21')
    a('s_and_b32 s18, s18, 7')
    a('s_mov_b32 s34, 0\ns_mov_b32 s35, 14')
    a.label('wk_gemm')
    if MERGE == 1:
        a('s_cmp_ge_u32 s17, 16')
        a('s_cbranch_scc1 wk_g2')
        ac_wait(a, 'wk_aw')
        a.label('wk_g2')
        evlog(a, 9006)
    gemm.gemm_body(a, 'wg', 's18', 's17', st='sc1', signal=True, ld='sc1' if MERGE else '')
    a('s_branch wk_loop')
    a.label('wk_srv')
    import t2srv
    a('s_and_b32 s18, s3, 15')
    a('s_lshr_b32 s19, s3, 4')
    a('s_and_b32 s19, s19, 1')
    t2srv.t2srv_body(a, 'ws', 's18', 's19', 'cA_abort', ld='sc1' if MERGE else '')
    a('v_mov_b32 v250, 0')
    a('s_branch wk_loop')
    a.label('wk_s4d')
    a('s_sub_u32 s3, s3, 480')
    s4d.s4d_setup(a)
    s4d.s4d_item(a, 'wk', 's3')
    a('s_branch wk_loop')
    a.label('wk_tok')
    a('s_sub_u32 s3, s3, 592')
    a('s_cmp_ge_u32 s3, 512')
    a('s_cbranch_scc1 wk_done')
    a('s_lshr_b32 s17, s3, 3')
    a('s_and_b32 s18, s3, 3')
    a('s_bitcmp1_b32 s3, 2')
    a('s_cbranch_scc1 wk_toko')
    tok.tokp_body(a, 's17', 's18', ld='sc1', st='sc1', sync='wp', ldx='sc1' if MERGE else '')
    a('s_branch wk_loop')
    a.label('wk_toko')
    tok.toko_body(a, 's17', 's18', ld='sc1', sync='wo', OUT='s[92:95]')
    a('s_branch wk_loop')
    a.label('wp_abort')
    a.label('wo_abort')
    a('s_branch cA_abort')
    a.label('wk_done')

def role_tail(a, late=None):
    lane_consts(a)
    a('s_mov_b32 s19, 0')
    a(f's_mov_b32 s20, {EXCH_OFF}')
    if STAMPS: a('s_mov_b32 s63, s17')
    a('s_lshr_b32 s22, s17, 4')
    a('s_lshl_b32 s22, s22, 2')
    a('s_add_u32 s22, s22, s16')
    a('s_and_b32 s17, s17, 15')
    for p in range(8):
        a(f's_cmp_eq_u32 s22, {p}')
        a(f's_cbranch_scc1 ch_init{p}')
    a('s_branch ch_end')
    for p in range(8):
        a.label(f'ch_init{p}')
        if p < 4: init_score(a, p)
        else: init_value(a, p - 4, p)
        if late: late(p)
        a('s_mov_b32 s30, 0')
        a('v_mov_b32 v36, 0')
        a.label(f'ch_md{p}')
        a(f'buffer_load_dword v37, v36, {DBG}, 0 offen sc1')
        a('s_waitcnt vmcnt(0)')
        a('v_readfirstlane_b32 s22, v37')
        a('s_and_b32 s31, s22, 0xffff')
        a('s_cmp_ge_u32 s31, 32')
        a(f's_cbranch_scc1 ch_go{p}')
        a('s_sleep 2')
        a('s_add_u32 s30, s30, 1')
        a(f's_cmp_lt_u32 s30, {SLOW_LIMIT}')
        a(f's_cbranch_scc1 ch_md{p}')
        a('s_branch ch_end')
        a.label(f'ch_go{p}')
        evlog(a, 9003)
        if DIAG: a('s_memtime s[32:33]')
        a('s_mov_b32 s31, 0')
        if p in (4, 5):
            for r in range(36, 60): a(f'v_mov_b32 v{r}, 0')
        a('s_lshr_b32 s22, s22, 16')
        a('s_cmp_lg_u32 s22, 0')
        role = 'sc' if p < 4 else 'va'
        a(f's_cbranch_scc1 cB_{role}{p & 3}_loop')
        a(f's_branch cA_{role}{p & 3}_loop')
    for tag, st in (('cA', ''), ('cB', 'sc1')):
        for w in range(4): gen_score(a, w, st, tag)
        for w in range(4): gen_value(a, w, st, tag)
        a.label(f'{tag}_abort')
        a('v_mov_b32 v4, 0xdead')
        a('v_mov_b32 v5, 16')
        a(f'buffer_store_dword v4, v5, {DBG}, 0 offen')
        a('s_branch ch_end')
        a.label(f'{tag}_done')
        evlog(a, 9004)
        if STAMPS and STAMP_CYC:
            a('s_cmp_lg_u32 s16, 0')
            a('s_cbranch_scc1 ch_end')
            a('s_lshl_b32 s22, s63, 10')
            a(f's_add_u32 s22, s22, {STAMP_OFF + 65536}')
            a('s_mov_b32 s30, 0')
            a('s_mov_b64 exec, 1')
            a.label(f'{tag}_cal')
            a('s_memtime s[40:41]')
            a('s_memrealtime s[42:43]')
            a('s_waitcnt lgkmcnt(0)')
            a('v_mov_b32 v4, s40')
            a('v_mov_b32 v5, s42')
            a(f'buffer_store_dwordx2 v[4:5], off, {SRD}, s22')
            a('s_add_u32 s22, s22, 8')
            a('s_add_u32 s30, s30, 1')
            a('s_cmp_lt_u32 s30, 128')
            a(f's_cbranch_scc1 {tag}_cal')
        if DIAG:
            a('s_memtime s[60:61]')
            a('s_waitcnt lgkmcnt(0)')
            a('s_sub_u32 s60, s60, s32')
            a('v_mov_b32 v4, s60')
            a('v_mov_b32 v5, 8')
            a(f'buffer_store_dword v4, v5, {DBG}, 0 offen')
            a('v_mov_b32 v4, s31')
            a('v_mov_b32 v5, 12')
            a('s_mov_b64 exec, 1')
            a(f'buffer_atomic_add v4, v5, {DBG}, 0 offen')
        a('s_branch ch_end')

def gen_chain_kernel(name='chain_kernel', worker=worker_s4d):
    a = Asm()
    a.raw(kernel_header(name))
    a('s_cmp_ge_u32 s2, 256')
    a('s_cbranch_scc1 ch_end')
    a('s_load_dwordx2 s[4:5], s[0:1], 120')
    a('s_load_dwordx2 s[6:7], s[0:1], 128')
    if CODE_PF: code_prefetch(a, name, 'ch_end', 130000, 60)
    a('s_getreg_b32 s3, hwreg(HW_REG_XCC_ID)')
    a('s_and_b32 s3, s3, 15')
    a('v_lshrrev_b32 v1, 6, v0')
    a('v_readfirstlane_b32 s16, v1')
    a('s_waitcnt lgkmcnt(0)')
    a('s_mov_b32 s8, s6\ns_and_b32 s9, s7, 0xffff\ns_mov_b32 s10, 0x10000000\ns_mov_b32 s11, 0x20000')
    a('s_mov_b32 s12, s4\ns_and_b32 s13, s5, 0xffff\ns_mov_b32 s14, 256\ns_mov_b32 s15, 0x20000')
    if EVLOG:
        a('s_lshl_b32 s100, s2, 2')
        a('s_add_u32 s100, s100, s16')
        a('s_lshl_b32 s100, s100, 8')
        a(f's_add_u32 s100, s100, {EV_OFF}')
    evlog(a, 9000)
    if MERGE:
        import prep
        a('s_mov_b32 s97, 0')
        a('s_mov_b32 s91, s3')
        a('v_and_b32 v1, 63, v0')
        a('v_lshlrev_b32 v2, 4, v1')
        a('v_lshrrev_b32 v3, 4, v1')
        a('v_and_b32 v4, 15, v1')
        a('s_cmp_lg_u32 s16, 0')
        a('s_cbranch_scc1 m_a1')
        a(f's_cmp_eq_u32 s3, {XCD_SEL}')
        a('s_cselect_b32 s20, 0, 64')
        a('v_accvgpr_write_b32 a255, 1')
        a('s_mov_b64 exec, 1')
        a(f'buffer_atomic_add a255, v2, {DBG}, s20 offen sc0')
        a('s_mov_b64 exec, -1')
        a.label('m_a1')
        prep.xall_pre(a, 's2')
        a('s_cmp_ge_u32 s2, 224')
        a('s_cbranch_scc1 m_w')
        prep.prep_item(a, 'mpb', 's2', st='sc1', mode='Bhalf' if MERGE == 1 else 'mix', defer=(MERGE == 3))
        a('s_branch m_e')
        a.label('m_w')
        a('s_waitcnt vmcnt(0)')
        a.label('m_e')
        prep.xall_post(a, 'mpx', 's2', 'sc1', wait=False)
        a('v_mov_b32 v6, 160000')
        a('s_waitcnt vmcnt(0) lgkmcnt(0)')
        a('s_barrier')
        a('s_cmp_lg_u32 s16, 0')
        a('s_cbranch_scc1 m_b1')
        a('v_mov_b32 v4, 1')
        a('v_mov_b32 v5, 96')
        a('v_accvgpr_read_b32 v7, a255')
        a('s_mov_b64 exec, 1')
        a(f'buffer_atomic_add v4, v5, {DBG}, 0 offen sc0')
        a('ds_write_b32 v6, v7')
        a('s_waitcnt lgkmcnt(0)')
        a('s_mov_b64 exec, -1')
        a.label('m_b1')
        a('s_barrier')
        a('ds_read_b32 v7, v6')
        a('s_cmp_lg_u32 s16, 0')
        a('s_cbranch_scc1 m_b2')
        a('s_waitcnt vmcnt(0)')
        a('v_readfirstlane_b32 s20, v4')
        a('s_cmp_lg_u32 s20, 255')
        a('s_cbranch_scc1 m_b2')
        a('v_mov_b32 v4, 1')
        a('v_mov_b32 v5, 128')
        a('s_mov_b64 exec, 1')
        a(f'buffer_store_dword v4, v5, {DBG}, 0 offen sc1')
        a('s_mov_b64 exec, -1')
        a.label('m_b2')
        a('s_waitcnt lgkmcnt(0)')
        a('v_readfirstlane_b32 s101, v7')
        evlog(a, 9001)
        a(f's_cmp_lg_u32 s91, {XCD_SEL}')
        a('s_cbranch_scc1 ch_worker')
        a('s_and_b32 s17, s101, 0xffff')
        a('s_mov_b32 s101, -1')
        a('s_cmp_lt_u32 s17, 32')
        a('s_cbranch_scc1 ch_role')
        a('s_branch ch_worker')
    else:
        a(f's_cmp_lg_u32 s3, {XCD_SEL}')
        a('s_cbranch_scc1 ch_worker')
    a('v_mov_b32 v4, 1')
    a('s_mov_b32 s18, 0')
    a.label('ch_take')
    a('v_mov_b32 v5, 0')
    wg_atomic(a, 'ch_el', 's17')
    a('s_and_b32 s17, s17, 0xffff')
    a('s_cmp_lt_u32 s17, 32')
    a('s_cbranch_scc1 ch_role')
    a('s_cmp_eq_u32 s18, 0')
    a('s_cbranch_scc1 ch_worker')
    a('s_branch ch_end')
    a.label('ch_role')
    if MERGE:
        flag_wait(a, 'ch_fw')
        if MERGE == 1:
            a('s_cmp_ge_u32 s17, 16')
            a('s_cbranch_scc1 ch_r2')
            ac_wait(a, 'ch_aw')
            a.label('ch_r2')
        evlog(a, 9002)
    role_tail(a)
    a.label('ch_worker')
    if worker: worker(a)
    if worker is not worker_all: staff_check(a, 'ch_end', 1)
    a.label('ch_end')
    a('s_endpgm')
    return a

if __name__ == '__main__':
    import sys
    for x in sys.argv[2:]:
        if x == 'stamps': STAMPS = True
        elif '=' in x:
            k, v = x.split('='); globals()[k] = int(v)
    a = gen_chain_kernel()
    out = ['; @launch kernel=chain_kernel grid=(256,1,1) block=(256,1,1) lds=163840',
           '.amdgcn_target "amdgcn-amd-amdhsa--gfx950"', '.text', a.text(), '.section .rodata,"a"', kernel_desc('chain_kernel')]
    open(sys.argv[1], 'w').write('\n'.join(out) + '\n')
    print('instructions', a.count)
```

```python
from asmlib import *
from layout import *
WS = 's[8:11]'
PB = 28 * KB

def gemm_xpre(a, rb_s, NT=4, va=5):
    a(f's_lshl_b32 s20, {rb_s}, 2')
    a('s_add_u32 s20, s20, s16')
    a(f's_mul_i32 s21, s20, {16*896*NT}')
    a(f'v_mul_u32_u24 v{va}, 896, v4')
    a(f'v_lshl_add_u32 v{va}, v3, 4, v{va}')
    for j in range(NT):
        if j: a(f's_add_u32 s21, s21, {16*896}')
        for kk in range(14):
            f = 14 * j + kk
            a(f'buffer_load_dwordx4 a[{4*f}:{4*f+3}], v{va}, s[52:55], s21 offen offset:{kk*64}')

def gemm_body(a, P, rb_s, cg_s, st='', signal=False, ld='', xpre=None, NT=4):
    a(f's_lshl_b32 s20, {rb_s}, {4 if NT == 4 else 3}')
    a(f's_lshl_b32 s21, s16, {2 if NT == 4 else 1}')
    a('s_add_u32 s20, s20, s21')
    a(f's_mul_i32 s21, s20, {14*KB}')
    a(f's_add_u32 s21, s21, {XF_OFF}')
    if xpre:
        a(f's_cmp_lg_u32 {xpre}, 0')
        a(f's_cbranch_scc1 {P}_xp')
    for f in range(14 * NT):
        if f % 4 == 0: a(f's_add_u32 s22, s21, {f*1024}')
        a(f'buffer_load_dwordx4 a[{4*f}:{4*f+3}], v2, {WS}, s22 offen offset:{(f & 3)*1024} {ld}')
    if xpre: a.label(f'{P}_xp')
    a('s_waitcnt vmcnt(40)')
    a(f's_mul_i32 s23, {cg_s}, {CUW_B}')
    a('s_and_b32 s22, s16, 1')
    a('s_mul_i32 s22, s22, 7168')
    a('s_add_u32 s23, s23, s22')
    a(f's_add_u32 s23, s23, {WF_A}')
    a('s_lshr_b32 s22, s16, 1')
    a(f's_mul_i32 s22, s22, {TILE_B}')
    a('s_add_u32 s23, s23, s22')
    a('s_mul_i32 s27, s16, 7168')
    a('s_lshr_b32 s28, s20, 1')
    if NT == 4:
        a(f's_cmp_lt_u32 {cg_s}, 16')
        a(f's_cbranch_scc0 {P}_vo')
    for path in (('f', 'vo') if NT == 4 else ('vo',)):
        isF = path == 'f'
        L = lambda n: f'{P}_{path}_{n}'
        if not isF: a.label(f'{P}_vo')
        if isF: a('s_add_u32 s23, s23, s22')
        def dma(jreg, bufreg):
            if isF:
                a(f's_lshr_b32 s24, {jreg}, 1')
                a('s_lshl_b32 s24, s24, 2')
                a(f's_and_b32 s25, {jreg}, 1')
                a('s_add_u32 s24, s24, s25')
            else:
                a(f's_lshl_b32 s24, {jreg}, 1')
            a(f's_mul_i32 s24, s24, {TILE_B}')
            a('s_add_u32 s24, s24, s23')
            a(f's_cmp_lt_u32 {jreg}, s35')
            a('s_cselect_b32 s24, s24, 0x10000000')
            a(f's_add_u32 m0, {bufreg}, s27')
            for f in range(7):
                if f == 4:
                    a('s_add_u32 m0, m0, 4096')
                    a('s_add_u32 s24, s24, 4096')
                a(f'buffer_load_dwordx4 v2, {WS}, s24 offen offset:{(f & 3)*1024} {ld} lds')
        if isF:
            a('s_lshl_b32 s29, s28, 4')
            a(f's_add_u32 s29, s29, {cg_s}')
            a(f's_mul_i32 s29, s29, {GSH_B}')
            a(f's_add_u32 s29, s29, {F_OFF}')
        else:
            a(f's_sub_u32 s29, {cg_s}, 16')
            a('s_lshl_b32 s29, s29, 6')
            a('s_add_u32 s29, s29, s28')
            a(f's_mul_i32 s29, s29, {GSH_B}')
            a(f's_add_u32 s29, s29, {VO_OFF}')
            a('v_mul_u32_u24 v6, 28, v3')
        a('s_mov_b32 s31, 0')
        dma('s34', 's31')
        a('s_add_u32 s30, s34, 1'); a(f's_mov_b32 s31, {PB}')
        dma('s30', 's31')
        a('s_mov_b32 s19, s34')
        a('s_mov_b32 s32, 0')
        a(f's_mov_b32 s33, {2*PB}')
        a('s_waitcnt vmcnt(7)')
        a(f's_branch {L("in")}')
        a.label(L('loop'))
        a(f's_waitcnt vmcnt({7 + NT})')
        a.label(L('in'))
        a('s_barrier')
        a('s_add_u32 s30, s19, 2')
        dma('s30', 's33')
        a('v_add_u32 v5, s32, v2')
        FR = 8; NF = 8; ACC = 40
        order = [(kk, tau) for kk in range(14) for tau in range(2)]
        def rd(i):
            kk, tau = order[i]; r = FR + 4 * (i % NF)
            a(f'ds_read_b128 v[{r}:{r+3}], v5 offset:{(tau*14 + kk)*1024}')
        PF = 6
        for i in range(PF): rd(i)
        for i, (kk, tau) in enumerate(order):
            if i + PF < 28: rd(i + PF)
            a(f's_waitcnt lgkmcnt({min(PF, 27 - i)})')
            r = FR + 4 * (i % NF)
            for j in range(NT):
                d = ACC + 16 * tau + 4 * j; x = (j * 14 + kk) * 4
                c = '0' if kk == 0 else f'v[{d}:{d+3}]'
                if isF: a(f'v_mfma_f32_16x16x32_bf16 v[{d}:{d+3}], v[{r}:{r+3}], a[{x}:{x+3}], {c}')
                else: a(f'v_mfma_f32_16x16x32_bf16 v[{d}:{d+3}], a[{x}:{x+3}], v[{r}:{r+3}], {c}')
        O = 72
        if isF:
            a('s_lshl_b32 s24, s19, 10')
            a('s_add_u32 s24, s24, s29')
            for j in range(4):
                o = O + 4 * j
                for tau in range(2):
                    d = ACC + 16 * tau + 4 * j
                    a(f'v_cvt_pk_bf16_f32 v{o+2*tau}, v{d}, v{d+1}')
                    a(f'v_cvt_pk_bf16_f32 v{o+2*tau+1}, v{d+2}, v{d+3}')
                a(f's_add_u32 s25, s24, {(j >> 1) * 16 * GSH_B + (j & 1) * 14 * 1024}')
                a(f'buffer_store_dwordx4 v[{o}:{o+3}], v2, {WS}, s25 offen {st}')
        else:
            a(f's_add_u32 s25, s29, {GSH_B}')
            for tau in range(2):
                a('s_lshl_b32 s24, s19, 5')
                a(f's_add_u32 s24, s24, {16*tau}')
                a('v_add_u32 v88, s24, v4')
                a('v_mul_u32_u24 v89, 2341, v88')
                a('v_lshrrev_b32 v89, 16, v89')
                a('v_mul_u32_u24 v89, 84, v89')
                a('v_add3_u32 v88, v88, v89, v6')
                a(f'v_lshlrev_b32 v{90+tau}, 4, v88')
                for sg in range(NT // 2):
                    o = O + 8 * tau + 4 * sg
                    for t in range(2):
                        d = ACC + 16 * tau + 4 * (2 * sg + t)
                        a(f'v_cvt_pk_bf16_f32 v{o+2*t}, v{d}, v{d+1}')
                        a(f'v_cvt_pk_bf16_f32 v{o+2*t+1}, v{d+2}, v{d+3}')
                    a(f'buffer_store_dwordx4 v[{o}:{o+3}], v{90+tau}, {WS}, {"s25" if sg else "s29"} offen {st}')
        a('s_mov_b32 s33, s32')
        a(f's_add_u32 s32, s32, {PB}')
        a(f's_cmp_eq_u32 s32, {3*PB}')
        a('s_cselect_b32 s32, 0, s32')
        a('s_add_u32 s19, s19, 1')
        a('s_cmp_lt_u32 s19, s35')
        a(f's_cbranch_scc1 {L("loop")}')
        a(f's_branch {P}_done')
    a.label(f'{P}_done')
    if signal:
        if NT == 4: a(f's_lshl_b32 s20, {rb_s}, 4')
        else:
            a(f's_lshr_b32 s20, {rb_s}, 1')
            a('s_lshl_b32 s20, s20, 4')
        a(f's_and_b32 s21, {cg_s}, 15')
        a('s_add_u32 s20, s20, s21')
        a('s_lshl_b32 s20, s20, 7')
        a(f's_cmp_lt_u32 {cg_s}, 16')
        a(f's_cselect_b32 s21, {FC}, {VOC}')
        a('s_add_u32 s20, s20, s21')
        a(f's_add_u32 s20, s20, {CNT_OFF}')
        a('s_sub_u32 s21, s35, s34')
        if NT == 2: a('s_lshr_b32 s21, s21, 1')
        a('v_mov_b32 v5, s21')
        a('v_mov_b32 v6, 0')
        a('s_waitcnt vmcnt(0)')
        a('s_mov_b64 exec, 1')
        a(f'buffer_atomic_add v5, v6, {WS}, s20 offen')
        a('s_mov_b64 exec, -1')

def gen_gemm(name='gemm_kernel'):
    a = Asm(); a.raw(kernel_header(name))
    a('s_cmp_ge_u32 s2, 256')
    a('s_cbranch_scc1 gm_end')
    a('s_load_dwordx2 s[6:7], s[0:1], 128')
    a('v_lshrrev_b32 v1, 6, v0')
    a('v_readfirstlane_b32 s16, v1')
    a('v_and_b32 v1, 63, v0')
    a('v_lshlrev_b32 v2, 4, v1')
    a('v_lshrrev_b32 v3, 4, v1')
    a('v_and_b32 v4, 15, v1')
    a('s_waitcnt lgkmcnt(0)')
    a('s_mov_b32 s8, s6\ns_and_b32 s9, s7, 0xffff\ns_mov_b32 s10, 0x10000000\ns_mov_b32 s11, 0x20000')
    a('s_and_b32 s17, s2, 7')
    a('s_lshl_b32 s17, s17, 2')
    a('s_lshr_b32 s18, s2, 6')
    a('s_add_u32 s17, s17, s18')
    a('s_lshr_b32 s18, s2, 3')
    a('s_and_b32 s18, s18, 7')
    a('s_mov_b32 s34, 0\ns_mov_b32 s35, 14')
    gemm_body(a, 'gm', 's18', 's17')
    a.label('gm_end')
    a('s_endpgm')
    return a

if __name__ == '__main__':
    import sys
    a = gen_gemm()
    out = ['; @launch kernel=gemm_kernel grid=(256,1,1) block=(256,1,1) lds=86016',
           '.amdgcn_target "amdgcn-amd-amdhsa--gfx950"', '.text', a.text(), '.section .rodata,"a"', kernel_desc('gemm_kernel', 352, 128)]
    open(sys.argv[1], 'w').write('\n'.join(out) + '\n')
    print('instructions', a.count)
```

```python
import numpy as np
KB = 1024
UNIT = 2048
TILE_B = 7 * UNIT
CUW_B = 28 * TILE_B
WF_A = 0
WF_B = WF_A + 16 * CUW_B
G_OFF = WF_B + 16 * CUW_B
GSH_B = 28 * KB
VO_OFF = G_OFF + 64 * 16 * GSH_B
XF_OFF = VO_OFF + 64 * 16 * GSH_B
XM_OFF = XF_OFF + 128 * 14 * KB
EXCH_OFF = XM_OFF + 128 * 14 * KB
EXCH_B = 25 * KB
MEMX = 0
PM = 7 * KB
PX = 9 * KB
F1 = 17 * KB
F2 = 21 * KB
EXCH_END = EXCH_OFF + 66 * EXCH_B
T2_OFF = (EXCH_END + 4095) // 4096 * 4096
PT_OFF = T2_OFF + 65 * 16 * 8 * KB
PT_B = 20 * KB
KS_OFF = PT_OFF + 128 * PT_B
MEMG_OFF = KS_OFF
CNT_OFF = MEMG_OFF + 64 * 7 * KB
VOC = 2 * KB; FC = 18 * KB; PTC = 34 * KB; T2F = 42 * KB; AC = 58 * KB; JOBC = 58 * KB; S4Q = 58 * KB; CNT_B = 60 * KB
BF_R = 9
BF_OFF = (CNT_OFF + CNT_B + 4095) // 4096 * 4096
IF_OFF = BF_OFF + 2048
AF_OFF = BF_OFF + 16 * 2048
A3_OFF = AF_OFF + 2048
I2_OFF = A3_OFF + 2048
YS_OFF = 86 * KB * KB
S4C = S4Q + 7 * 128
F_OFF = G_OFF
POISON = 0xFFFFFFFF

def memcol(ks, gA, half, s):
    return 64 * ks + 16 * gA + 4 * (s >> 1) + 2 * half + (s & 1)
def acol(kappa, q, n):
    g, r = n >> 2, n & 3
    return memcol(kappa, g, q & 1, 4 * (q >> 1) + r)
def vcol(v, cl):
    return 28 * v + cl
def tokslot(g, s):
    return (4 * g + s) if s < 4 else (16 + 4 * g + s - 4)

def f2bf_bits(f):
    u = np.ascontiguousarray(f, dtype=np.float32).view(np.uint32)
    return ((u + 0x7FFF + ((u >> 16) & 1)) >> 16).astype(np.uint16)

def build_wfrag(W, ncols):
    out = np.zeros((28, 7, 2, 64, 8), np.uint16)
    lane = np.arange(64); g = lane >> 4; n = lane & 15
    for t in range(28):
        cols = np.asarray(ncols[t])[n]
        for ks in range(7):
            for hb in range(2):
                k = 64 * ks + 32 * hb + 8 * g[:, None] + np.arange(8)[None, :]
                out[t, ks, hb] = W[k, cols[:, None]]
    return out
def build_WFA(ATb):
    ncols = [[acol(t >> 2, t & 3, n) for n in range(16)] for t in range(28)]
    return np.stack([build_wfrag(ATb[h], ncols) for h in range(16)])
def build_WFB(Bb):
    Ball = np.concatenate([Bb[h] for h in range(16)], 1)
    res = []
    for v in range(16):
        ncols = [[((16 * t + n) // 28) * 448 + vcol(v, (16 * t + n) % 28) for n in range(16)] for t in range(28)]
        res.append(build_wfrag(Ball, ncols))
    return np.stack(res)
_Xcols = np.array([[[[memcol(ks, g, half, s) for s in range(8)] for g in range(4)] for half in range(2)] for ks in range(7)])
def build_M_order(rows):
    R = rows.shape[0] // 16
    r3 = rows.reshape(R, 16, 448)
    o = r3[:, :, _Xcols]
    return np.ascontiguousarray(o.transpose(0, 2, 3, 4, 1, 5)).reshape(R, 7, 2, 64, 8)
def build_G(Gb):
    o = np.stack([build_M_order(Gb[h]) for h in range(16)])
    o = o.reshape(16, 64, 2, 7, 2, 64, 8).transpose(1, 0, 2, 3, 4, 5, 6)
    return np.ascontiguousarray(o)
def build_VO(VOb):
    ts = np.array([[tokslot(g, s) for s in range(8)] for g in range(4)])
    vc = np.array([[vcol(v, cl) for cl in range(28)] for v in range(16)])
    V = VOb.reshape(16, 64, 32, 448)
    o = V[:, :, ts, :]
    o = o[..., vc]
    return np.ascontiguousarray(o.transpose(4, 1, 0, 2, 5, 3))
def build_xfrag(xb):
    x4 = xb.reshape(128, 16, 14, 4, 8)
    return np.ascontiguousarray(x4.transpose(0, 2, 3, 1, 4)).reshape(128, 14, 64, 8)
def build_memx(memb):
    o = memb[:, _Xcols]
    return np.ascontiguousarray(o.transpose(1, 3, 2, 0, 4)).reshape(7, 64, 8)
def decode_memx(mx):
    o = mx.reshape(7, 4, 2, 8, 8)
    res = np.zeros((8, 448), np.uint16)
    for ks in range(7):
        for g in range(4):
            for half in range(2):
                res[:, _Xcols[ks, half, g]] = o[ks, g, half]
    return res
if __name__ == "__main__":
    print("EXCH_OFF", EXCH_OFF, "END", EXCH_END, EXCH_END / 2**20)
    assert sorted(vcol(v, cl) for v in range(16) for cl in range(28)) == list(range(448))
    assert sorted(acol(k, q, n) for k in range(7) for q in range(4) for n in range(16)) == list(range(448))
    m = np.arange(8 * 448).reshape(8, 448).astype(np.uint16)
    assert (decode_memx(build_memx(m)) == m).all()
    print("T2_OFF", T2_OFF, "PT_OFF", PT_OFF, "KS_OFF", KS_OFF, KS_OFF / 2**20)
```

```python
from asmlib import *
from layout import *
import chain as C, start as S, prep, gemm, tok, s4d, t2srv
from chain import SRD, DBG, evlog
BC = 160000
JOBQ = 64; FQ = 72; NON = 128
def mask_off(a, dst, cls):
    a(f's_and_b32 s71, {cls}, 4')
    a(f's_and_b32 {dst}, {cls}, 3')
    a(f's_lshl_b32 {dst}, {dst}, 6')
    a(f's_add_u32 {dst}, {dst}, s71')
MASK0 = 32
SCRAMBLE = 0
XPRE = 0
EVMID = 0
STEAL_AT = 64
Q_SRV = 112; Q_A = Q_SRV + 32; Q_VH = Q_A + 80; Q_VF = Q_VH + 64; Q_S4 = Q_VF + 64; Q_F = Q_S4 + 112; Q_TOK = Q_F + 128; Q_END = Q_TOK + 512

def kargs(a):
    a('s_load_dwordx8 s[36:43], s[0:1], 56')
    a('s_load_dwordx4 s[44:47], s[0:1], 88')
def lanes(a):
    a('v_and_b32 v1, 63, v0')
    a('v_lshlrev_b32 v2, 4, v1')
    a('v_lshrrev_b32 v3, 4, v1')
    a('v_and_b32 v4, 15, v1')
def w0(a, fn):
    l = a.newlabel('w0')
    a('s_cmp_lg_u32 s16, 0')
    a(f's_cbranch_scc1 {l}')
    fn()
    a.label(l)
def bcast(a, regs, dsts, t=250):
    a(f'v_mov_b32 v{t}, {BC}')
    a('s_add_u32 s101, s101, 1')
    def wr():
        for i, r in enumerate(regs): a(f'ds_write_b32 v{t}, v{r} offset:{4*i}')
        a('s_waitcnt lgkmcnt(0)')
        a(f'v_mov_b32 v{regs[0]}, s101')
        a(f'ds_write_b32 v{t}, v{regs[0]} offset:16')
        a('s_waitcnt lgkmcnt(0)')
    a('s_barrier')
    a('s_mov_b64 exec, 1')
    w0(a, wr)
    a('s_mov_b64 exec, -1')
    a('s_barrier')
    for i, r in enumerate(regs): a(f'ds_read_b32 v{r}, v{t} offset:{4*i}')
    a(f'ds_read_b32 v{t}, v{t} offset:16')
    a('s_waitcnt lgkmcnt(0)')
    for r, d in zip(regs, dsts): a(f'v_readfirstlane_b32 {d}, v{r}')
    a(f'v_cmp_ne_u32 vcc, s101, v{t}')
    a('s_cbranch_vccnz ch_end')

def claim_issue(a, P, r=242):
    a('s_cmp_lg_u32 s66, 0')
    a(f's_cbranch_scc1 {P}_ci')
    def at():
        a('s_lshr_b32 s70, s3, 5')
        mask_off(a, 's70', 's70')
        a('s_lshl_b32 s71, 1, s3')
        a(f'v_mov_b32 v{r}, s71')
        a(f'v_mov_b32 v{r+1}, {MASK0}')
        a('s_mov_b64 exec, 1')
        a(f'buffer_atomic_or v{r}, v{r+1}, {DBG}, s70 offen sc0')
        a(f'buffer_load_dwordx2 v[{r+2}:{r+3}], v{r+1}, {DBG}, 0 offen offset:{NON-MASK0} sc1')
        a('s_mov_b64 exec, -1')
    w0(a, at)
    a.label(f'{P}_ci')

def set_nonce(a, r):
    a(f'v_mov_b32 v{r+1}, {NON}')
    a(f'v_mov_b32 v{r+2}, s64\nv_mov_b32 v{r+3}, s65\nv_mov_b32 v{r+4}, 0\nv_mov_b32 v{r+5}, 0')
    a('s_mov_b64 exec, 1')
    a(f'buffer_atomic_cmpswap_x2 v[{r+2}:{r+5}], v{r+1}, {DBG}, 0 offen sc0')
    a('s_mov_b64 exec, -1')

def confirm(a, P, n, r=242):
    a('s_cmp_lg_u32 s66, 0')
    a(f's_cbranch_scc1 {P}_cf')
    def w():
        a(f's_waitcnt vmcnt({n})')
        a(f'v_readfirstlane_b32 s70, v{r+2}')
        a('s_cmp_lg_u32 s70, 0')
        a(f's_cbranch_scc1 {P}_nz')
        set_nonce(a, r)
        a('s_waitcnt vmcnt(0)')
        a(f'v_readfirstlane_b32 s70, v{r+2}')
        a('s_cmp_lg_u32 s70, 0')
        a(f's_cbranch_scc1 {P}_nz')
        a(f'v_mov_b32 v{r+2}, s64\nv_mov_b32 v{r+3}, s65')
        a.label(f'{P}_nz')
    w0(a, w)
    bcast(a, [r, r + 2, r + 3], ['s70', 's64', 's65'], t=r + 1)
    a('s_mov_b32 s66, 1')
    a('s_bitcmp1_b32 s70, s3')
    a('s_cbranch_scc1 m_reclaim')
    a.label(f'{P}_cf')

def claim_loop(a, P, lo_class, ncls):
    a('s_mov_b32 s21, 0')
    a('s_mov_b64 exec, 1')
    a.label(f'{P}_l')
    a('s_cmp_lg_u32 s70, -1')
    a(f's_cbranch_scc1 {P}_t')
    a('s_add_u32 s20, s20, 1')
    a('s_cmp_lt_u32 s20, 8')
    a(f's_cselect_b32 s20, s20, {lo_class}')
    a('s_mov_b32 s70, 0')
    a('s_mov_b32 s3, -1')
    a('s_add_u32 s21, s21, 1')
    a(f's_cmp_ge_u32 s21, {ncls}')
    a(f's_cbranch_scc1 {P}_d')
    a.label(f'{P}_t')
    a('s_ff0_i32_b32 s22, s70')
    a('s_lshl_b32 s23, 1, s22')
    mask_off(a, 's3', 's20')
    a('v_mov_b32 v242, s23')
    a(f'v_mov_b32 v243, {MASK0}')
    a(f'buffer_atomic_or v242, v243, {DBG}, s3 offen sc0')
    a('s_waitcnt vmcnt(0)')
    a('v_readfirstlane_b32 s70, v242')
    a('s_lshl_b32 s3, s20, 5')
    a('s_add_u32 s3, s3, s22')
    a('s_bitcmp1_b32 s70, s22')
    a(f's_cbranch_scc1 {P}_l')
    a.label(f'{P}_d')
    a('s_mov_b64 exec, -1')
    a('v_mov_b32 v242, s3')

def allflags(a, P, rep_s, t=24, limit=None, sleep=4, on_spin=None):
    a(f's_lshl_b32 s22, {rep_s}, 11')
    a(f's_add_u32 s22, s22, {IF_OFF}')
    a(f'v_add_u32 v{t}, 1024, v2')
    a(f'v_min_u32 v{t}, {1792-16}, v{t}')
    S.flag_poll(a, P, t + 4, [(2, 's22'), (t, 's22')], 'cA_abort', limit or C.SLOW_LIMIT, sleep, on_spin)

def ask(a):
    def f():
        a('v_mov_b32 v250, 1')
        a(f'v_mov_b32 v251, {JOBQ}')
        a('s_mov_b64 exec, 1')
        a(f'buffer_atomic_add v250, v251, {DBG}, 0 offen sc0')
        a('s_mov_b64 exec, -1')
    w0(a, f)

def worker(a):
    tok.PEEK = DBG
    a.label('m_bjob')
    lanes(a)
    a('s_sub_u32 s18, s3, 32')
    vq = S.VQ()
    S.bjob_issue(a, vq)
    evlog(a, 9008)
    claim_issue(a, 'bj', 44)
    def cf():
        confirm(a, 'bj', 0, 44)
        evlog(a, 9001)
    S.bjob_run(a, 'bj', vq, cf, lambda: evlog(a, 9002))
    evlog(a, 9007)
    a('s_cmp_lg_u32 s69, 0')
    a('s_cbranch_scc1 wk_first')
    a('s_and_b32 s76, s18, 1')
    if XPRE: gemm.gemm_xpre(a, 's76', 2, 50)
    def f():
        a('v_mov_b32 v242, 1')
        a(f'v_mov_b32 v45, {FQ}')
        a('s_lshl_b32 s20, s76, 2')
        a('s_mov_b64 exec, 1')
        a(f'buffer_atomic_add v242, v45, {DBG}, s20 offen sc0')
        a('s_mov_b64 exec, -1')
        a('s_waitcnt vmcnt(0)')
    w0(a, f)
    bcast(a, [242], ['s68'])
    a.label('wk_tick')
    a('s_mov_b32 s69, 1')
    a.label('wk_first')
    a('s_load_dwordx2 s[20:21], s[0:1], 112')
    a('s_waitcnt lgkmcnt(0)')
    a(f's_mov_b32 s92, s20\ns_and_b32 s93, s21, 0xffff\ns_mov_b32 s94, {2048*896*2}\ns_mov_b32 s95, 0x20000')
    def poll():
        def spin():
            a(f's_and_b32 s20, s30, {STEAL_AT-1}')
            a('s_cbranch_scc1 wk_ns')
            a('s_mov_b32 s20, 1\ns_mov_b32 s70, 0')
            claim_loop(a, 'wk_st', 1, 7)
            a('s_cmp_lg_u32 s3, -1')
            a('s_cbranch_scc1 wk_pd')
            a('s_add_u32 s20, s67, 1')
            a(f's_lshl_b32 s22, s20, 11')
            a(f's_add_u32 s22, s22, {IF_OFF}')
            a.label('wk_ns')
        a('s_add_u32 s20, s67, 1')
        allflags(a, 'wk_af', 's20', sleep=8, on_spin=spin)
        a('v_mov_b32 v242, -1')
        a.label('wk_pd')
    w0(a, poll)
    bcast(a, [242], ['s3'])
    a('s_cmp_lg_u32 s3, -1')
    a('s_cbranch_scc0 wk_go')
    a('s_waitcnt vmcnt(0)')
    a('s_branch m_bjob')
    a.label('wk_go')
    evlog(a, 9006)
    a('s_mov_b32 s96, 0')
    a(f's_mov_b32 s97, {1 if XPRE else 0}')
    a('v_mov_b32 v250, 0')
    a.label('wk_fine')
    a('s_cmp_ge_u32 s68, 112')
    a('s_cbranch_scc1 wk_loop')
    evlog(a, 8999)
    lanes(a)
    a('s_and_b32 s17, s68, 15')
    a('s_add_u32 s17, s17, 16')
    a('s_lshr_b32 s34, s68, 4')
    a('s_lshl_b32 s34, s34, 1')
    a('s_add_u32 s35, s34, 2')
    gemm.gemm_body(a, 'wf', 's76', 's17', st='sc1', signal=True, ld='sc1', xpre='s97', NT=2)
    a.label('wk_loop')
    a('s_waitcnt vmcnt(0) lgkmcnt(0)')
    a('s_mov_b32 s97, 0')
    a('s_cmp_eq_u32 s96, 1')
    a('s_cbranch_scc1 wk_ask')
    def left():
        a(f'v_mov_b32 v243, {FQ}')
        a(f'buffer_load_dwordx2 v[244:245], v243, {DBG}, 0 offen sc1')
        a(f'buffer_load_dword v246, off, {DBG}, 0 offset:{MASK0} sc1')
        a('s_waitcnt vmcnt(0)')
        a('v_readfirstlane_b32 s20, v244')
        a('v_readfirstlane_b32 s21, v245')
        a('s_cmp_lt_u32 s20, 112')
        a('s_cselect_b32 s22, 0, 1')
        a('s_min_u32 s20, s20, s21')
        a('v_mov_b32 v244, -1')
        a('v_mov_b32 v245, s22')
        a('s_cmp_ge_u32 s20, 112')
        a('s_cbranch_scc1 lf_d')
        a('s_lshl_b32 s22, s22, 2')
        a('v_mov_b32 v244, 1')
        a('s_mov_b64 exec, 1')
        a(f'buffer_atomic_add v244, v243, {DBG}, s22 offen sc0')
        a('s_mov_b64 exec, -1')
        a('s_waitcnt vmcnt(0)')
        a.label('lf_d')
    w0(a, left)
    bcast(a, [244, 245, 246], ['s68', 's76', 's70'], t=243)
    a('s_cmp_lg_u32 s68, -1')
    a('s_cbranch_scc1 wk_fine')
    a('s_mov_b32 s96, 1')
    a('s_cmp_eq_u32 s70, -1')
    a('s_cbranch_scc1 wk_ask')
    def staff():
        a('s_mov_b32 s30, 0')
        a(f'v_mov_b32 v243, {MASK0}')
        a.label('sf_l')
        a(f'buffer_load_dword v242, v243, {DBG}, 0 offen sc1')
        a('s_waitcnt vmcnt(0)')
        a('v_readfirstlane_b32 s70, v242')
        a('s_cmp_eq_u32 s70, -1')
        a('s_cbranch_scc1 sf_d')
        a('s_sleep 16')
        a('s_add_u32 s30, s30, 1')
        a('s_cmp_lt_u32 s30, 64')
        a('s_cbranch_scc1 sf_l')
        a('s_mov_b32 s20, 0')
        claim_loop(a, 'sf_c', 0, 1)
        a.label('sf_d')
    w0(a, staff)
    bcast(a, [242], ['s3'], t=243)
    a('s_cmp_eq_u32 s3, -1')
    a('s_cbranch_scc1 wk_ask')
    kargs(a)
    a(f'v_mov_b32 v243, {NON}')
    a(f'buffer_load_dwordx2 v[244:245], v243, {DBG}, 0 offen sc1')
    a('s_getreg_b32 s67, hwreg(HW_REG_XCC_ID)')
    a('s_and_b32 s67, s67, 7')
    a('s_mov_b32 s66, 1')
    a('s_waitcnt vmcnt(0) lgkmcnt(0)')
    a('v_readfirstlane_b32 s64, v244')
    a('v_readfirstlane_b32 s65, v245')
    a('s_branch m_start')
    a.label('wk_ask')
    a('v_readfirstlane_b32 s22, v250')
    a(f's_cmp_ge_u32 s22, {Q_END}')
    a('s_cbranch_scc1 wk_next')
    ask(a)
    a.label('wk_next')
    evlog(a, 9005)
    a('s_waitcnt vmcnt(0)')
    bcast(a, [250], ['s3'], t=6)
    a.label('wk_have')
    evlog(a, 's3')
    a(f's_cmp_ge_u32 s3, {Q_END}')
    a('s_cbranch_scc1 ch_end')
    a('v_mov_b32 v250, 0')
    a(f'v_mov_b32 v251, {JOBQ}')
    lanes(a)
    for lim, lab in ((Q_TOK, 'wk_tok'), (Q_F, 'wk_f'), (Q_S4, 'wk_s4d'), (Q_VF, 'wk_vf'), (Q_VH, 'wk_vh'), (Q_A, 'wk_a'), (Q_SRV, 'wk_srv')):
        a(f's_cmp_ge_u32 s3, {lim}')
        a(f's_cbranch_scc1 {lab}')
    a('s_mov_b32 s18, 1')
    a('s_and_b32 s17, s3, 15')
    a('s_add_u32 s17, s17, 16')
    a('s_lshr_b32 s34, s3, 4')
    a('s_lshl_b32 s34, s34, 1')
    a('s_add_u32 s35, s34, 2')
    a('s_branch wk_gemm')
    a.label('wk_vh')
    a(f's_sub_u32 s20, s3, {Q_VH}')
    a('s_and_b32 s17, s20, 15')
    a('s_add_u32 s17, s17, 16')
    a('s_lshr_b32 s18, s20, 5')
    a('s_add_u32 s18, s18, 2')
    a('s_bitcmp1_b32 s20, 4')
    a('s_cselect_b32 s34, 7, 0')
    a('s_add_u32 s35, s34, 7')
    a('s_branch wk_gemm')
    a.label('wk_vf')
    a(f's_sub_u32 s20, s3, {Q_VF}')
    a('s_and_b32 s17, s20, 15')
    a('s_add_u32 s17, s17, 16')
    a('s_lshr_b32 s18, s20, 4')
    a('s_add_u32 s18, s18, 4')
    a('s_mov_b32 s34, 0\ns_mov_b32 s35, 14')
    a('s_branch wk_gemm')
    a.label('wk_f')
    a(f's_sub_u32 s20, s3, {Q_F}')
    a('s_and_b32 s17, s20, 15')
    a('s_lshr_b32 s18, s20, 4')
    a('s_mov_b32 s34, 0\ns_mov_b32 s35, 14')
    a('s_lshl_b32 s20, s17, 7')
    a(f's_add_u32 s20, s20, {CNT_OFF + AC}')
    C.poll_eq(a, 'wk_aw', SRD, 's20', 24, sleep=6)
    a.label('wk_gemm')
    gemm.gemm_body(a, 'wg', 's18', 's17', st='sc1', signal=True, ld='sc1')
    a('s_branch wk_loop')
    a.label('wk_a')
    a('s_barrier')
    a(f's_sub_u32 s3, s3, {Q_A}')
    prep.PF2 = 0
    prep.prep_item(a, 'wpa', 's3', st='sc1', mode='A5')
    acount(a)
    a('v_mov_b32 v250, 0')
    a('s_branch wk_loop')
    a.label('wk_srv')
    a(f's_sub_u32 s3, s3, {Q_SRV}')
    a('s_and_b32 s18, s3, 15')
    a('s_lshr_b32 s19, s3, 4')
    a('s_and_b32 s19, s19, 1')
    t2srv.t2srv_body(a, 'ws', 's18', 's19', 'cA_abort', ld='sc1')
    a('v_mov_b32 v250, 0')
    a('s_branch wk_loop')
    a.label('wk_s4d')
    a(f's_sub_u32 s3, s3, {Q_S4}')
    s4d.s4d_setup(a)
    s4d.s4d_item(a, 'wk', 's3')
    a('s_branch wk_loop')
    a.label('wk_tok')
    a(f's_sub_u32 s3, s3, {Q_TOK}')
    a('s_lshr_b32 s17, s3, 3')
    a('s_and_b32 s18, s3, 3')
    a('s_bitcmp1_b32 s3, 2')
    a('s_cbranch_scc1 wk_toko')
    tok.tokp_body(a, 's17', 's18', ld='sc1', st='sc1', sync='wp', ldx='sc1')
    a('s_branch wk_loop')
    a.label('wk_toko')
    tok.toko_body(a, 's17', 's18', ld='sc1', sync='wo', OUT='s[92:95]')
    a('s_branch wk_loop')
    a.label('wp_abort')
    a.label('wo_abort')
    a('s_branch cA_abort')

def acount(a, t=24):
    a('s_lshl_b32 s22, s17, 7')
    a(f's_add_u32 s22, s22, {CNT_OFF + AC}')
    a(f'v_mov_b32 v{t}, 1')
    a(f'v_mov_b32 v{t+1}, 0')
    a('s_waitcnt vmcnt(0)')
    a('s_mov_b64 exec, 1')
    a(f'buffer_atomic_add v{t}, v{t+1}, {SRD}, s22 offen')
    a('s_mov_b64 exec, -1')

def staffed(a):
    def f():
        a(f's_cmp_eq_u32 s67, {C.XCD_SEL}')
        a('s_cselect_b32 s20, 1, 0x10001')
        a('v_mov_b32 v242, s20')
        a('v_mov_b32 v243, 0')
        a('s_mov_b64 exec, 1')
        a(f'buffer_atomic_add v242, v243, {DBG}, 0 offen')
        a('s_mov_b64 exec, -1')
    w0(a, f)

def gen(name='main_kernel'):
    C.SYNC = 1; C.MERGE = 2; C.SELF = 1
    a = Asm()
    a.raw(kernel_header(name))
    a('s_cmp_ge_u32 s2, 256')
    a('s_cbranch_scc1 ch_end')
    a('s_load_dwordx4 s[4:7], s[0:1], 120')
    kargs(a)
    a('s_memrealtime s[64:65]')
    if C.CODE_PF == 1: code_prefetch_shared(a, name, 'ch_end', 60)
    if C.CODE_PF == 2: code_prefetch(a, name, 'ch_end', 160000, 60)
    a('s_getreg_b32 s67, hwreg(HW_REG_XCC_ID)')
    a('s_and_b32 s67, s67, 7')
    a('v_lshrrev_b32 v1, 6, v0')
    a('v_readfirstlane_b32 s16, v1')
    a('s_mov_b32 s66, 0\ns_mov_b32 s69, 0\ns_mov_b32 s101, 0x5eed0000')
    a(f's_sub_u32 s20, s67, {C.XCD_SEL}')
    a('s_lshr_b32 s21, s2, 3')
    if SCRAMBLE: a('s_add_u32 s20, s20, s21')
    if SCRAMBLE == 2: a('s_lshr_b32 s21, s21, 2')
    a('s_and_b32 s20, s20, 7')
    a('s_lshl_b32 s3, s20, 5')
    a('s_add_u32 s3, s3, s21')
    a('s_waitcnt lgkmcnt(0)')
    a('s_mov_b32 s8, s6\ns_and_b32 s9, s7, 0xffff\ns_mov_b32 s10, 0x10000000\ns_mov_b32 s11, 0x20000')
    a('s_mov_b32 s12, s4\ns_and_b32 s13, s5, 0xffff\ns_mov_b32 s14, 256\ns_mov_b32 s15, 0x20000')
    a('s_or_b32 s64, s64, 1')
    a('s_cmp_lg_u32 s2, 9')
    a('s_cbranch_scc1 m_np')
    w0(a, lambda: set_nonce(a, 242))
    a.label('m_np')
    if C.EVLOG:
        a('s_lshl_b32 s100, s2, 2')
        a('s_add_u32 s100, s100, s16')
        a('s_lshl_b32 s100, s100, 8')
        a(f's_add_u32 s100, s100, {C.EV_OFF}')
    evlog(a, 9000)
    a.label('m_start')
    a('s_cmp_ge_u32 s3, 32')
    a('s_cbranch_scc1 m_bjob')
    C.lane_consts(a)
    a('s_and_b32 s17, s3, 15')
    a('s_cmp_ge_u32 s3, 16')
    a('s_cbranch_scc1 m_val')
    ac = S.AComp(a, S.score_rows(a), S.SC_FRAGS)
    ac.issue()
    evlog(a, 9008, 40)
    claim_issue(a, 'sc')
    n0 = len(ac.vq.q); ac.vq.add('claim', 0)
    ac.fetch()
    confirm(a, 'sc', len(ac.vq.q))
    staffed(a)
    evlog(a, 9001)
    tl = [0, 1, 2, 3, 6]
    ac.run(lambda t, p, tau: ('reg', C.wreg(tl[t], p >> 1) + 4 * (p & 1) + 2 * tau), (lambda p: evlog(a, 9100 + p, 118)) if EVMID else None)
    evlog(a, 9002)
    a('s_lshl_b32 s22, s17, 7')
    a(f's_add_u32 s22, s22, {AF_OFF}')
    a('v_and_b32 v24, 16, v2')
    S.flag_poll(a, 'sc_aw', 28, [(24, 's22')], 'cA_abort', C.SLOW_LIMIT, 2)
    allflags(a, 'sc_bw', '0')
    a('s_barrier')
    a('s_branch m_role')
    a.label('m_val')
    ac = S.AComp(a, S.value_rows(a), S.VA_FRAGS)
    ac.issue()
    evlog(a, 9008, 40)
    claim_issue(a, 'va')
    ac.fetch()
    confirm(a, 'va', 16)
    staffed(a)
    evlog(a, 9001)
    a(f's_mul_i32 s28, s17, {CUW_B}')
    a(f's_mul_i32 s29, s16, {2*TILE_B}')
    a('s_add_u32 s28, s28, s29')
    a(f's_add_u32 s28, s28, {WF_A + 16*TILE_B}')
    def vd(t, p, tau):
        o = 64 + 8 * (p & 1) + 4 * t
        return ('st', (o + 2 * tau, [f's_add_u32 s29, s28, {t*TILE_B + p*1024}', f'buffer_store_dwordx4 v[{o}:{o+3}], v2, {SRD}, s29 offen sc1']))
    ac.run(vd, (lambda p: evlog(a, 9100 + p, 118)) if EVMID else None)
    a('s_lshl_b32 s22, s17, 7')
    a('s_lshl_b32 s23, s16, 3')
    a('s_add_u32 s22, s22, s23')
    a(f's_add_u32 s22, s22, {AF_OFF}')
    a('s_waitcnt vmcnt(0)')
    S.flag_store(a, 's22', 1, 0)
    evlog(a, 9002)
    a('s_mul_i32 s22, s17, 28')
    a('s_add_u32 s23, s22, 27')
    a('s_lshr_b32 s22, s22, 6')
    a('s_lshr_b32 s23, s23, 6')
    a('s_sub_u32 s23, s23, s22')
    a('s_lshl_b32 s23, s23, 8')
    a('s_add_u32 s23, s23, 0xf0')
    a('v_and_b32 v24, s23, v2')
    a('s_lshl_b32 s22, s22, 8')
    a(f's_add_u32 s22, s22, {BF_OFF}')
    S.flag_poll(a, 'va_bw', 28, [(24, 's22')], 'cA_abort', C.SLOW_LIMIT, 2)
    a('s_barrier')
    a.label('m_role')
    evlog(a, 9006)
    a('s_mov_b32 s17, s3')
    def late(p):
        if p >= 4:
            allflags(a, f'va_iw{p}', '0', t=36, sleep=2)
            acount(a, 36)
    C.role_tail(a, late)
    a.label('m_reclaim')
    a('s_waitcnt vmcnt(0)')
    a('s_lshr_b32 s20, s3, 5')
    w0(a, lambda: claim_loop(a, 'rc', 0, 9))
    bcast(a, [242], ['s3'])
    a('s_cmp_lg_u32 s3, -1')
    a('s_cbranch_scc1 m_start')
    lanes(a)
    a('s_mov_b32 s68, 112')
    a('s_branch wk_tick')
    worker(a)
    a.label('ch_end')
    a('s_endpgm')
    return a
```

```python
from asmlib import *
from layout import *
import struct
WS = 's[8:11]'
def f32bits(x): return struct.unpack('<I', struct.pack('<f', x))[0]
SIGMA = f32bits(1.4426950408889634 / 16.0)
W_BYTES = 448 * 4096 * 2
PST = ''
PF2 = 1
XALL = 0
PEV = 0
PEV_OFF = 102 * 1024 * 1024
def pev(a, k, lvl=1):
    if not PEV: return
    if PEV == 2 and 3 <= k <= 6 and lvl == 1: return
    if PEV == 1 and lvl == 2: return
    a(f's_memrealtime s[{70+2*k}:{71+2*k}]')
def pev_flush(a):
    if not PEV: return
    a('s_waitcnt vmcnt(0)')
    pev(a, 7)
    a('s_lshl_b32 s68, s2, 2')
    a('s_add_u32 s68, s68, s16')
    a('s_lshl_b32 s68, s68, 5')
    a(f's_add_u32 s68, s68, {PEV_OFF}')
    a('s_waitcnt lgkmcnt(0)')
    a('s_mov_b64 exec, 1')
    for k in range(8):
        a(f'v_mov_b32 v5, s{70+2*k}')
        a(f'buffer_store_dword v5, off, {WS}, s68 offset:{4*k}')

def srd(a, d, lo, hi, nbytes):
    a(f's_mov_b32 s{d}, s{lo}')
    a(f's_and_b32 s{d+1}, s{hi}, 0xffff')
    a(f's_mov_b32 s{d+2}, {nbytes}')
    a(f's_mov_b32 s{d+3}, 0x20000')

def prep_item(a, P, item_s, st='', signal=None, mode='mix', mid=None, defer=False):
    a('s_load_dwordx4 s[40:43], s[0:1], 72')
    a('s_load_dwordx4 s[44:47], s[0:1], 88')
    a('s_mov_b32 s28, s16')
    if mode == 'A5':
        a(f's_and_b32 s17, {item_s}, 15')
        a(f's_lshr_b32 s18, {item_s}, 4')
        a('s_cmp_eq_u32 s18, 4')
        a('s_cselect_b32 s18, 6, s18')
        a('s_mov_b32 s19, 0')
        mode = 'A'
    elif mode == 'A':
        a(f's_mul_i32 s17, {item_s}, 147')
        a('s_lshr_b32 s17, s17, 10')
        a('s_mul_i32 s23, s17, 7')
        a(f's_sub_u32 s18, {item_s}, s23')
        a('s_mov_b32 s19, 0')
    else:
        a(f's_and_b32 s20, {item_s}, 7')
        a(f's_lshr_b32 s21, {item_s}, 3')
        a('s_mul_i32 s22, s21, 37')
        a('s_lshr_b32 s22, s22, 8')
        a('s_mul_i32 s23, s22, 7')
        a('s_sub_u32 s18, s21, s23')
        a('s_lshl_b32 s20, s20, 2')
        a('s_add_u32 s20, s20, s22')
        if mode == 'mix':
            a('s_lshr_b32 s19, s20, 4')
            a('s_and_b32 s17, s20, 15')
        else:
            a('s_mov_b32 s19, 1')
            a('s_lshr_b32 s17, s20, 1')
            a('s_and_b32 s20, s20, 1')
            a('s_lshl_b32 s20, s20, 3')
            a('s_add_u32 s28, s28, s20')
    a('s_waitcnt lgkmcnt(0)')
    a('s_cmp_eq_u32 s19, 0')
    a('s_cselect_b32 s52, s40, s44')
    a('s_cselect_b32 s53, s41, s45')
    a('s_cselect_b32 s54, s42, s46')
    a('s_cselect_b32 s55, s43, s47')
    a(f's_cselect_b32 s24, {SIGMA}, 1.0')
    srd(a, 60, 52, 53, W_BYTES)
    srd(a, 56, 54, 55, W_BYTES)
    SA = 's[60:63]'; SB = 's[56:59]'
    BST = 128
    def touch(row0, nlines, dst, vt):
        per = (nlines + 6) // 7
        a(f's_mul_i32 s20, s18, {per}')
        a(f'v_mov_b32 v{vt+1}, {per-1}')
        a(f'v_min_u32 v{vt}, v0, v{vt+1}')
        a(f'v_add_u32 v{vt}, s20, v{vt}')
        a(f'v_mov_b32 v{vt+1}, {nlines-1}')
        a(f'v_min_u32 v{vt}, v{vt}, v{vt+1}')
        a(f'v_lshrrev_b32 v{vt+1}, 2, v{vt}')
        a(f'v_and_b32 v{vt}, 3, v{vt}')
        a(f'v_lshlrev_b32 v{vt}, 7, v{vt}')
        a(f'v_lshl_add_u32 v{vt}, v{vt+1}, 13, v{vt}')
        a('s_lshl_b32 s20, s17, 9')
        if row0: a(f's_add_u32 s20, s20, {row0*8192}')
        a(f'buffer_load_dword v{dst}, v{vt}, {SA}, s20 offen')
    pev(a, 4, 2)
    if PF2 == 1: touch(0, 1792, 203, 5)
    pev(a, 5, 2)
    if PF2 == 2: touch(0, 1024, 203, 5)
    a('v_lshrrev_b32 v5, 5, v1')
    a('v_and_b32 v6, 31, v1')
    for i in range(16):
        a(f'v_add_u32 v7, {2*i}, v5')
        a('v_and_b32 v8, 3, v7')
        a(f'v_or_b32 v8, {((2*i) >> 3) << 2}, v8')
        a('v_xor_b32 v8, v6, v8')
        a('v_lshlrev_b32 v8, 4, v8')
        a(f'v_lshl_add_u32 v{16+i}, v7, 13, v8')
    a('s_lshl_b32 s25, s16, 15')
    a('s_add_u32 s25, s25, 32768')
    a('s_lshl_b32 s26, s17, 9')
    def dma_pair(pexpr_s, buf):
        a(f's_min_u32 s27, {pexpr_s}, 13')
        a('s_lshl_b32 s27, s27, 18')
        a('s_add_u32 s27, s27, s26')
        for i in range(16):
            a(f's_add_u32 m0, s25, {buf*16384 + i*1024}')
            a(f'buffer_load_dwordx4 v{16+i}, {SA}, s27 offen lds')
    def two():
        dma_pair('s28', 0)
        a('s_add_u32 s29, s28, 4')
        dma_pair('s29', 1)
    if mode == 'mix':
        a('s_cmp_eq_u32 s19, 0')
        a(f's_cbranch_scc0 {P}_pr_stB')
    if mode != 'Bhalf':
        a('s_lshl_b32 s27, s18, 19')
        a('s_add_u32 s27, s27, s26')
        a('s_lshl_b32 s29, s16, 4')
        for i in range(8):
            a(f'v_add_u32 v7, {2*i}, v5')
            a('v_xor_b32 v8, v6, v7')
            a('v_lshlrev_b32 v8, 4, v8')
            a('v_add_u32 v7, s29, v7')
            a('v_lshl_add_u32 v8, v7, 13, v8')
            a('s_lshl_b32 s30, s16, 13')
            a(f's_add_u32 m0, s30, {i*1024}')
            a(f'buffer_load_dwordx4 v8, {SB}, s27 offen lds')
        if PF2:
            pev(a, 6, 2)
            a('s_waitcnt vmcnt(0)')
            pev(a, 1)
            a('s_barrier')
            two()
            if PF2 == 2: touch(256, 768, 95, 92)
        else:
            two()
            a('s_waitcnt vmcnt(32)')
            a('s_barrier')
        for q in range(4):
            a('v_lshrrev_b32 v7, 2, v4')
            a('v_lshlrev_b32 v7, 4, v7')
            a('v_and_b32 v8, 2, v4')
            a('v_lshl_add_u32 v7, v8, 1, v7')
            a('v_and_b32 v8, 1, v4')
            a('v_add_u32 v7, v7, v8')
            a(f'v_add_u32 v7, {8*(q>>1) + 2*(q&1)}, v7')
            a('v_and_b32 v9, 15, v7')
            for k3 in range(4):
                a(f'v_or_b32 v10, {k3*4}, v3')
                a('v_xor_b32 v10, v10, v9')
                a('v_lshlrev_b32 v10, 4, v10')
                a('v_lshl_add_u32 v10, v7, 9, v10')
                for kh in range(2):
                    r = BST + (q * 8 + kh * 4 + k3) * 4
                    a(f'ds_read_b128 v[{r}:{r+3}], v10 offset:{kh*256}')
            a('s_waitcnt lgkmcnt(0)')
            a(f's_mul_i32 s30, s17, {CUW_B}')
            a(f's_mul_i32 s31, s18, {4*TILE_B}')
            a('s_add_u32 s30, s30, s31')
            a(f's_add_u32 s30, s30, {WF_A + q*TILE_B}')
            a(f'v_add_u32 v{12+q}, s30, v2')
        if mode == 'mix': a(f's_branch {P}_pr_main')
    if mode != 'A':
        a.label(f'{P}_pr_stB')
        a('s_mul_i32 s27, s17, 229376')
        a('s_lshl_b32 s30, s18, 7')
        a('s_add_u32 s27, s27, s30')
        a('v_lshrrev_b32 v7, 3, v1')
        a('v_and_b32 v8, 7, v1')
        a('s_lshl_b32 s29, s16, 6')
        a('v_add_u32 v7, s29, v7')
        a('v_mul_u32_u24 v7, 896, v7')
        a('v_lshl_add_u32 v7, v8, 4, v7')
        for i in range(8):
            a('s_lshl_b32 s30, s16, 13')
            a(f's_add_u32 m0, s30, {i*1024}')
            a(f's_add_u32 s31, s27, {i*8*896}')
            a(f'buffer_load_dwordx4 v7, {SB}, s31 offen lds')
        if PF2:
            pev(a, 6, 2)
            a('s_waitcnt vmcnt(0)')
            pev(a, 1)
            a('s_barrier')
            two()
            if PF2 == 2: touch(256, 768, 95, 92)
        else:
            two()
            a('s_waitcnt vmcnt(32)')
            a('s_barrier')
        a('v_lshrrev_b32 v7, 2, v4')
        a('v_lshl_add_u32 v7, v3, 3, v7')
        a('v_lshlrev_b32 v7, 7, v7')
        a('v_and_b32 v8, 3, v4')
        a('v_lshl_add_u32 v7, v8, 3, v7')
        for q in range(4):
            for kk in range(8):
                r = BST + (q * 8 + kk) * 4
                for hf in range(2):
                    a(f'ds_read_b64_tr_b16 v[{r+2*hf}:{r+2*hf+1}], v7 offset:{(32*kk + 4*hf)*128 + q*32}')
                if kk == 3 or kk == 7: a('s_waitcnt lgkmcnt(0)')
            a('s_lshl_b32 s30, s18, 6')
            a(f's_add_u32 s30, s30, {16*q}')
            a('v_add_u32 v8, s30, v4')
            a('v_lshrrev_b32 v9, 3, v8')
            a('v_mul_u32_u24 v10, 37, v9')
            a('v_lshrrev_b32 v10, 8, v10')
            a('v_mul_u32_u24 v11, 7, v10')
            a('v_sub_u32 v9, v9, v11')
            a('v_bfe_u32 v11, v8, 1, 1')
            a('v_bfe_u32 v32, v8, 2, 1')
            a('v_and_b32 v33, 1, v8')
            a('v_lshl_add_u32 v32, v32, 1, v33')
            a('v_lshrrev_b32 v33, 2, v9')
            a('v_and_b32 v34, 3, v9')
            a('v_mov_b32 v35, 0')
            a('v_cmp_eq_u32 vcc, 3, v9')
            a('v_cndmask_b32 v33, v33, v11, vcc')
            a('v_cndmask_b32 v11, v11, v35, vcc')
            a('v_lshl_add_u32 v10, v10, 1, v33')
            a('v_lshl_add_u32 v32, v34, 2, v32')
            a('v_lshl_add_u32 v32, v11, 4, v32')
            a('s_mul_i32 s30, s17, 28')
            a('v_add_u32 v32, s30, v32')
            a('v_lshrrev_b32 v33, 4, v32')
            a('v_and_b32 v32, 15, v32')
            a(f's_mov_b32 s30, {CUW_B}')
            a('v_mul_lo_u32 v10, v10, s30')
            a(f'v_mul_u32_u24 v33, {TILE_B}, v33')
            a('v_add_u32 v10, v10, v33')
            a('v_lshl_add_u32 v10, v3, 8, v10')
            a('v_lshl_add_u32 v10, v32, 4, v10')
            a(f'v_add_u32 v{12+q}, {WF_B}, v10')
    a.label(f'{P}_pr_main')
    pev(a, 2)
    a('v_lshrrev_b32 v7, 2, v4')
    a('v_lshlrev_b32 v7, 3, v7')
    a('v_and_b32 v8, 3, v4')
    a('v_add_u32 v7, v7, v8')
    for k3 in range(4):
        a(f'v_or_b32 v10, {k3*4}, v3')
        a('v_xor_b32 v10, v10, v4')
        a('v_lshlrev_b32 v10, 4, v10')
        a('v_lshl_add_u32 v10, v7, 9, v10')
        a(f'v_add_u32 v{32+k3}, s25, v10')
    FR = 36
    ACC = 96
    FRS = [36, 64]
    NIT = 2 if mode == 'Bhalf' else 4
    for it in range(NIT):
        buf = it & 1
        a(f's_waitcnt vmcnt({([16, 16, 16, 0] if defer else [16, 20, 24, 4] if NIT == 4 else [16, 4])[it] + (1 if PF2 == 2 and it < 2 else 0)}) lgkmcnt(0)')
        pev(a, 3 + it)
        for tau in range(2):
            for kk in range(8):
                r = 36 + 4 * kk
                a(f'ds_read_b128 v[{r}:{r+3}], v{32 + (kk & 3)} offset:{buf*16384 + tau*2048 + (kk >> 2)*256}')
            for kk in range(8):
                a(f's_waitcnt lgkmcnt({7-kk})')
                if tau == 1 and kk == 7 and it < 2 and NIT == 4:
                    a('s_add_u32 s29, s28, 8')
                    dma_pair('s29', buf)
                for q in range(4):
                    d = ACC + 16 * tau + 4 * q; b = BST + (q * 8 + kk) * 4
                    c = '0' if kk == 0 else f'v[{d}:{d+3}]'
                    a(f'v_mfma_f32_16x16x32_bf16 v[{d}:{d+3}], v[{36+4*kk}:{39+4*kk}], v[{b}:{b+3}], {c}')
        a('s_lshl_b32 s30, s28, 10')
        for q in range(4):
            o = 68 + 4 * q
            for tau in range(2):
                d = ACC + 16 * tau + 4 * q
                for r in range(4): a(f'v_mul_f32 v{d+r}, s24, v{d+r}')
                a(f'v_cvt_pk_bf16_f32 v{o+2*tau}, v{d}, v{d+1}')
                a(f'v_cvt_pk_bf16_f32 v{o+2*tau+1}, v{d+2}, v{d+3}')
            if defer and it < NIT - 1:
                for r in range(4): a(f'v_accvgpr_write_b32 a{16 + 16*it + 4*q + r}, v{o+r}')
            else:
                a(f'buffer_store_dwordx4 v[{o}:{o+3}], v{12+q}, {WS}, s30 offen {st}')
        a('s_add_u32 s28, s28, 4')
        if it == NIT - 2:
            a('s_cmp_lt_u32 s28, 14')
            a(f's_cbranch_scc0 {P}_wend')
    a.label(f'{P}_wend')
    if defer:
        assert NIT == 4
        for it in range(3):
            a(f's_lshl_b32 s30, s16, 10')
            if it: a(f's_add_u32 s30, s30, {it*4096}')
            for q in range(4):
                r = 16 + 16 * it + 4 * q
                a(f'buffer_store_dwordx4 a[{r}:{r+3}], v{12+q}, {WS}, s30 offen {st}')
    if mid: mid()
    if signal:
        a('s_add_u32 s20, s17, 8')
        a('s_add_u32 s21, s18, 24')
        a('s_cmp_eq_u32 s19, 0')
        a('s_cselect_b32 s20, s20, s21')
        a('s_lshl_b32 s20, s20, 2')
        a('v_mov_b32 v5, 1')
        a('v_mov_b32 v6, 0')
        a('s_waitcnt vmcnt(0)')
        a('s_mov_b64 exec, 1')
        a(f'buffer_atomic_add v5, v6, {signal}, s20 offen')
        a('s_mov_b64 exec, -1')

def xprep_item(a, P, item_s, st='', signal=None):
    a('s_load_dwordx4 s[48:51], s[0:1], 56')
    a('s_waitcnt lgkmcnt(0)')
    srd(a, 60, 48, 49, 2048 * 448 * 2)
    srd(a, 56, 50, 51, 8 * 448 * 2)
    a(f's_lshl_b32 s20, {item_s}, 8')
    a('v_add_u32 v5, s20, v0')
    a('s_mov_b32 s21, 0x924925')
    M28 = (1 << 24) // 28 + 1
    assert all((i * M28) >> 24 == i // 28 for i in range(57344))
    a(f's_mov_b32 s21, {M28}')
    def fills():
        NCH = 66 * EXCH_B // 16
        a(f's_mov_b32 s23, {EXCH_OFF}')
        for k in range((NCH - 448 + 8191) // 8192):
            a(f'v_add_u32 v6, {448 + 8192*k}, v5')
            a(f'v_subrev_u32 v7, {F2//16}, v6')
            a('v_mov_b32 v48, -1')
            a('v_mov_b32 v9, 0')
            a('v_cmp_gt_u32 vcc, 0x100, v7')
            a('v_cndmask_b32 v48, v48, v9, vcc')
            a('v_mov_b32 v49, v48\nv_mov_b32 v50, v48\nv_mov_b32 v51, v48')
            a('v_lshlrev_b32 v8, 4, v6')
            a(f'v_mov_b32 v7, {NCH}')
            a('v_cmp_lt_u32 vcc, v6, v7')
            a('s_and_saveexec_b64 s[30:31], vcc')
            a(f's_cbranch_execz {P}_np{k}')
            a(f'buffer_store_dwordx4 v[48:51], v8, {WS}, s23 offen {st}')
            a.label(f'{P}_np{k}')
            a('s_mov_b64 exec, -1')
            a.nop(2)
        N1 = 64 * 7 * KB // 16; N2 = N1 + CNT_B // 16
        a(f's_mov_b32 s23, {MEMG_OFF}')
        for k in range((N2 - 448 + 8191) // 8192):
            a(f'v_add_u32 v6, {448 + 8192*k}, v5')
            a('v_mov_b32 v48, -1')
            a('v_mov_b32 v9, 0')
            a(f'v_mov_b32 v7, {N1}')
            a('v_cmp_ge_u32 vcc, v6, v7')
            a('v_cndmask_b32 v48, v48, v9, vcc')
            a('v_mov_b32 v49, v48\nv_mov_b32 v50, v48\nv_mov_b32 v51, v48')
            a('v_lshlrev_b32 v8, 4, v6')
            a(f'v_mov_b32 v7, {N2}')
            a('v_cmp_lt_u32 vcc, v6, v7')
            a('s_and_saveexec_b64 s[30:31], vcc')
            a(f's_cbranch_execz {P}_nq{k}')
            a(f'buffer_store_dwordx4 v[48:51], v8, {WS}, s23 offen {st}')
            a.label(f'{P}_nq{k}')
            a('s_mov_b64 exec, -1')
            a.nop(2)
    def ld(src, k):
        base = 64 + 8 * k
        a('v_lshlrev_b32 v9, 5, v6')
        a(f'buffer_load_dwordx4 v[{base}:{base+3}], v9, {src}, 0 offen')
        a(f'buffer_load_dwordx4 v[{base+4}:{base+7}], v9, {src}, 0 offen offset:16')
    def item(src, isx, k, wait):
        base = 64 + 8 * k; pb = 16 + 8 * (k & 3)
        a('v_mul_hi_u32 v7, v6, s22')
        a('v_mul_u32_u24 v8, 28, v7')
        a('v_sub_u32 v8, v6, v8')
        a('v_lshrrev_b32 v10, 4, v7')
        a('v_and_b32 v11, 15, v7')
        a('v_lshrrev_b32 v12, 2, v8')
        a('v_and_b32 v13, 3, v8')
        if isx:
            a('v_lshrrev_b32 v14, 1, v8')
            a('v_mad_u32_u24 v14, v10, 14, v14')
            a('v_lshlrev_b32 v14, 10, v14')
            a('v_and_b32 v15, 1, v8')
            a('v_lshl_add_u32 v14, v15, 9, v14')
            a('v_lshl_add_u32 v14, v11, 4, v14')
            a('v_mad_u32_u24 v15, v10, 7, v12')
            a('v_lshlrev_b32 v15, 11, v15')
            a('v_lshl_add_u32 v15, v13, 8, v15')
            a('v_lshl_add_u32 v15, v11, 4, v15')
        else:
            a('v_lshlrev_b32 v15, 10, v12')
            a('v_lshl_add_u32 v15, v13, 8, v15')
            a('v_lshl_add_u32 v15, v11, 4, v15')
        if wait: a('s_waitcnt vmcnt(0)')
        for j in range(4):
            a(f'v_mov_b32 v{pb+j}, v{base+2*j}')
            a(f'v_mov_b32 v{pb+4+j}, v{base+2*j+1}')
        if isx:
            a(f's_mov_b32 s23, {XF_OFF}')
            a(f'buffer_store_dwordx4 v[{base}:{base+3}], v14, {WS}, s23 offen {st}')
            a(f'buffer_store_dwordx4 v[{base+4}:{base+7}], v14, {WS}, s23 offen offset:256 {st}')
            a(f's_mov_b32 s23, {XM_OFF}')
            a(f'buffer_store_dwordx4 v[{pb}:{pb+3}], v15, {WS}, s23 offen {st}')
            a(f'buffer_store_dwordx4 v[{pb+4}:{pb+7}], v15, {WS}, s23 offen offset:1024 {st}')
        else:
            a(f's_mov_b32 s23, {EXCH_OFF}')
            a(f'buffer_store_dwordx4 v[{pb}:{pb+3}], v15, {WS}, s23 offen {st}')
            a(f'buffer_store_dwordx4 v[{pb+4}:{pb+7}], v15, {WS}, s23 offen offset:128 {st}')
            a(f's_mov_b32 s23, {MEMG_OFF}')
            a(f'buffer_store_dwordx4 v[{pb}:{pb+3}], v15, {WS}, s23 offen {st}')
            a(f'buffer_store_dwordx4 v[{pb+4}:{pb+7}], v15, {WS}, s23 offen offset:128 {st}')
    a(f's_mov_b32 s22, {M28 << 8}')
    for k in range(7):
        a(f'v_add_u32 v6, {8192*k}, v5') if k else a('v_mov_b32 v6, v5')
        ld('s[60:63]', k)
    a('v_mov_b32 v6, v5')
    ld('s[56:59]', 7)
    fills()
    for k in range(7):
        a(f'v_add_u32 v6, {8192*k}, v5') if k else a('v_mov_b32 v6, v5')
        item('s[60:63]', True, k, k == 0)
    a('v_mov_b32 v6, v5')
    a('v_mov_b32 v7, 224')
    a('v_cmp_lt_u32 vcc, v5, v7')
    a('s_and_saveexec_b64 s[30:31], vcc')
    a(f's_cbranch_execz {P}_nomem')
    item('s[56:59]', False, 7, False)
    a.label(f'{P}_nomem')
    a('s_mov_b64 exec, -1')
    if signal:
        a('v_mov_b32 v5, 1')
        a('v_mov_b32 v6, 124')
        a('s_waitcnt vmcnt(0)')
        a('s_mov_b64 exec, 1')
        a(f'buffer_atomic_add v5, v6, {signal}, 0 offen')
        a('s_mov_b64 exec, -1')

def gen_prep(name='prep_kernel'):
    a = Asm(); a.raw(kernel_header(name))
    a('s_cmp_ge_u32 s2, 256')
    a('s_cbranch_scc1 pr_end')
    pev(a, 0)
    a('s_load_dwordx2 s[6:7], s[0:1], 128')
    code_prefetch(a, name, 'pr_end', 20000, 200)
    a('v_lshrrev_b32 v1, 6, v0')
    a('v_readfirstlane_b32 s16, v1')
    a('v_and_b32 v1, 63, v0')
    a('v_lshlrev_b32 v2, 4, v1')
    a('v_lshrrev_b32 v3, 4, v1')
    a('v_and_b32 v4, 15, v1')
    a('s_waitcnt lgkmcnt(0)')
    pev(a, 3, 2)
    srd(a, 8, 6, 7, 0x10000000)
    if XALL:
        xall_pre(a, 's2')
        a('s_cmp_ge_u32 s2, 224')
        a('s_cbranch_scc1 pr_x')
        prep_item(a, 'pw', 's2', st=PST, mid=lambda: xall_post(a, 'pxa', 's2', PST))
        a('s_branch pr_end')
        a.label('pr_x')
        xall_post(a, 'px', 's2', PST)
    else:
        a('s_cmp_ge_u32 s2, 224')
        a('s_cbranch_scc1 pr_x')
        prep_item(a, 'pw', 's2', st=PST)
        pev_flush(a)
        a('s_branch pr_end')
        a.label('pr_x')
        a('s_sub_u32 s3, s2, 224')
        xprep_item(a, 'px', 's3', st=PST)
        pev_flush(a)
    a.label('pr_end')
    a('s_endpgm')
    return a

def xall_pre(a, wg_s):
    a('s_load_dwordx4 s[48:51], s[0:1], 56')
    a(f's_and_b32 s20, {wg_s}, 1')
    a('s_mul_i32 s20, s20, 224')
    a('v_add_u32 v5, s20, v0')
    a('v_lshrrev_b32 v6, 4, v5')
    a('v_and_b32 v7, 15, v5')
    a('v_mul_u32_u24 v7, 896, v7')
    a('v_lshl_add_u32 v7, v6, 5, v7')
    a(f's_lshr_b32 s20, {wg_s}, 1')
    a(f's_mul_i32 s20, s20, {16*896}')
    a('v_lshrrev_b32 v8, 3, v0')
    a('v_and_b32 v9, 7, v0')
    a('v_mul_u32_u24 v9, 896, v9')
    a('v_lshl_add_u32 v9, v8, 5, v9')
    a('s_waitcnt lgkmcnt(0)')
    srd(a, 60, 48, 49, 2048 * 448 * 2)
    srd(a, 56, 50, 51, 8 * 448 * 2)
    a('buffer_load_dwordx4 a[0:3], v7, s[60:63], s20 offen')
    a('buffer_load_dwordx4 a[4:7], v7, s[60:63], s20 offen offset:16')
    a('buffer_load_dwordx4 a[8:11], v9, s[56:59], 0 offen')
    a('buffer_load_dwordx4 a[12:15], v9, s[56:59], 0 offen offset:16')

def xall_post(a, P, wg_s, st, wait=True):
    a(f's_and_b32 s20, {wg_s}, 1')
    a('s_mul_i32 s20, s20, 224')
    a('v_add_u32 v5, s20, v0')
    a('v_lshrrev_b32 v6, 4, v5')
    a('v_and_b32 v7, 15, v5')
    a('v_lshlrev_b32 v14, 9, v6')
    a('v_lshl_add_u32 v14, v7, 4, v14')
    a('v_lshrrev_b32 v8, 2, v6')
    a('v_lshlrev_b32 v15, 11, v8')
    a('v_and_b32 v8, 3, v6')
    a('v_lshl_add_u32 v15, v8, 8, v15')
    a('v_lshl_add_u32 v15, v7, 4, v15')
    a(f's_lshr_b32 s20, {wg_s}, 1')
    a(f's_mul_i32 s20, s20, {14*KB}')
    a(f's_add_u32 s21, s20, {XM_OFF}')
    a(f's_add_u32 s20, s20, {XF_OFF}')
    if wait: a('s_waitcnt vmcnt(0)')
    for j in range(4):
        a(f'v_accvgpr_read_b32 v{16+j}, a{2*j}')
        a(f'v_accvgpr_read_b32 v{20+j}, a{2*j+1}')
        a(f'v_accvgpr_read_b32 v{24+j}, a{8+2*j}')
        a(f'v_accvgpr_read_b32 v{28+j}, a{8+2*j+1}')
    a('v_mov_b32 v9, 224')
    a('v_cmp_lt_u32 vcc, v0, v9')
    a('s_and_saveexec_b64 s[30:31], vcc')
    a(f'buffer_store_dwordx4 a[0:3], v14, {WS}, s20 offen {st}')
    a(f'buffer_store_dwordx4 a[4:7], v14, {WS}, s20 offen offset:256 {st}')
    a(f'buffer_store_dwordx4 v[16:19], v15, {WS}, s21 offen {st}')
    a(f'buffer_store_dwordx4 v[20:23], v15, {WS}, s21 offen offset:1024 {st}')
    a(f's_cmp_lg_u32 {wg_s}, 255')
    a(f's_cbranch_scc1 {P}_nm')
    a('v_lshrrev_b32 v6, 3, v0')
    a('v_and_b32 v7, 7, v0')
    a('v_lshlrev_b32 v15, 8, v6')
    a('v_lshl_add_u32 v15, v7, 4, v15')
    for base in (EXCH_OFF, MEMG_OFF):
        a(f's_mov_b32 s20, {base}')
        a(f'buffer_store_dwordx4 v[24:27], v15, {WS}, s20 offen {st}')
        a(f'buffer_store_dwordx4 v[28:31], v15, {WS}, s20 offen offset:128 {st}')
    a.label(f'{P}_nm')
    a('s_mov_b64 exec, -1')
    a(f's_lshl_b32 s20, {wg_s}, 8')
    a('v_add_u32 v5, s20, v0')
    k = 0
    for base, n, zlo, zn in ((EXCH_OFF, 66 * EXCH_B // 16, F2 // 16, 256), (MEMG_OFF, (64 * 7 * KB + CNT_B) // 16, 64 * 7 * KB // 16, 1 << 20)):
        a(f's_mov_b32 s23, {base}')
        for j in range((n - 448 + 65535) // 65536):
            r = 32 + 4 * k
            a(f'v_add_u32 v6, {448 + 65536*j}, v5')
            a(f'v_subrev_u32 v7, {zlo}, v6')
            a(f'v_mov_b32 v{r}, -1')
            a('v_mov_b32 v9, 0')
            a(f'v_mov_b32 v8, {zn}')
            a('v_cmp_gt_u32 vcc, v8, v7')
            a(f'v_cndmask_b32 v{r}, v{r}, v9, vcc')
            for q in range(1, 4): a(f'v_mov_b32 v{r+q}, v{r}')
            a('v_lshlrev_b32 v8, 4, v6')
            a(f'v_mov_b32 v7, {n}')
            a('v_cmp_lt_u32 vcc, v6, v7')
            a('s_and_saveexec_b64 s[30:31], vcc')
            a(f's_cbranch_execz {P}_f{k}')
            a(f'buffer_store_dwordx4 v[{r}:{r+3}], v8, {WS}, s23 offen {st}')
            a.label(f'{P}_f{k}')
            a('s_mov_b64 exec, -1')
            k += 1
```

```python
from asmlib import *
from layout import *
import struct, math
def f32bits(x): return struct.unpack('<I', struct.pack('<f', x))[0]
LOG2E = f32bits(1.4426950408889634)
INV2PI = f32bits(1.0 / (2 * math.pi))
WV = 24 * KB
U_O = 512
CE_O = 4608; CO_O = CE_O + 4224
KT_O = CO_O + 4224
PR_O = KT_O + 5 * KB + 64
assert PR_O + 4096 <= WV

def srd(a, d, lo, nbytes):
    a(f's_mov_b32 s{d}, s{lo}')
    a(f's_and_b32 s{d+1}, s{lo+1}, 0xffff')
    a(f's_mov_b32 s{d+2}, {nbytes}')
    a(f's_mov_b32 s{d+3}, 0x20000')

def rne_bf16(a, r, t):
    a(f'v_cvt_pk_bf16_f32 v{t}, v{r}, v{r}')
    a(f'v_and_b32 v{r}, 0xffff0000, v{t}')

def s4d_setup(a):
    a('s_load_dwordx8 s[40:47], s[0:1], 0')
    a('s_load_dwordx4 s[48:51], s[0:1], 32')
    a('s_load_dwordx2 s[52:53], s[0:1], 48')
    a('s_load_dwordx2 s[54:55], s[0:1], 112')
    a('v_lshrrev_b32 v1, 6, v0')
    a('v_readfirstlane_b32 s16, v1')
    a('v_and_b32 v1, 63, v0')
    a('v_lshrrev_b32 v3, 4, v1')
    a('v_and_b32 v4, 15, v1')
    a(f's_mul_i32 s17, s16, {WV}')
    a('s_waitcnt lgkmcnt(0)')
    srd(a, 60, 40, 2048 * 448 * 2)
    for i in range(4): srd(a, 64 + 4 * i, 42 + 2 * i, 448 * 256 * 2)
    srd(a, 80, 50, 896); srd(a, 84, 52, 896); srd(a, 92, 54, 2048 * 896 * 2)
    a('v_lshlrev_b32 v5, 5, v1')
    a('v_sub_u32 v5, 2047, v5')
    a(f's_add_u32 s18, s17, {KT_O}')
    for k in range(33):
        a(f'v_subrev_u32 v6, {k}, v5')
        a('v_max_i32 v7, 0, v6')
        a('v_cvt_f32_u32 v7, v7')
        rne_bf16(a, 7, 8)
        a('v_lshrrev_b32 v8, 23, v7')
        a('v_subrev_u32 v8, 134, v8')
        a('v_max_i32 v8, 0, v8')
        a('v_cvt_u32_f32 v7, v7')
        a('v_lshrrev_b32 v7, v8, v7')
        a('v_lshl_add_u32 v7, v8, 8, v7')
        if k == 32:
            a('v_mov_b32 v8, 1280')
            a('v_cmp_gt_i32 vcc, 0, v6')
            a('v_cndmask_b32 v7, v7, v8, vcc')
        a(f'v_lshl_add_u32 v{200+k}, v7, 2, s18')
    a('v_mov_b32 v8, 0\nv_mov_b32 v9, 0')
    a('v_lshlrev_b32 v5, 3, v1')
    a('v_add_u32 v5, s17, v5')
    a('ds_write_b64 v5, v[8:9]')
    a('v_and_b32 v6, 15, v1')
    a('v_lshlrev_b32 v6, 3, v6')
    a('v_add_u32 v6, s17, v6')
    a(f'ds_write_b64 v6, v[8:9] offset:{CE_O + 4096}')
    a(f'ds_write_b64 v6, v[8:9] offset:{CO_O + 4096}')
    a('v_mov_b32 v6, s17')
    a(f'ds_write_b64 v6, v[8:9] offset:{KT_O + 5*KB}')

def s4d_item(a, P, item_s):
    L = lambda n: f'{P}_{n}'
    a(f's_lshl_b32 s19, {item_s}, 2')
    a('s_add_u32 s20, s19, s16')
    a(f's_lshl_b32 s21, {item_s}, 3')
    a('v_mul_u32_u24 v5, 3584, v0')
    for grp in range(2):
        a(f's_add_u32 s22, s21, {grp*1024*896}')
        for r in range(4):
            b = 8 + 8 * grp + 2 * r
            a(f'buffer_load_dwordx2 v[{b}:{b+1}], v5, s[60:63], s22 offen offset:{r*896}')
    a('s_lshl_b32 s22, s20, 9')
    a('v_lshlrev_b32 v6, 3, v1')
    for i in range(4):
        a(f'buffer_load_dwordx2 v[{24+2*i}:{25+2*i}], v6, s[{64+4*i}:{67+4*i}], s22 offen')
    a('s_lshl_b32 s22, s20, 1')
    a('v_mov_b32 v7, 0')
    a('buffer_load_ushort v32, v7, s[80:83], s22 offen')
    a('buffer_load_ushort v33, v7, s[84:87], s22 offen')
    a('s_mov_b32 s24, 0x05040100\ns_mov_b32 s25, 0x07060302')
    a('s_barrier')
    a('s_waitcnt vmcnt(6)')
    a('v_lshlrev_b32 v6, 3, v0')
    for grp in range(2):
        b = 8 + 8 * grp
        for ch in range(4):
            sel = 's24' if ch % 2 == 0 else 's25'; dw = ch >> 1
            a(f'v_perm_b32 v34, v{b+2+dw}, v{b+dw}, {sel}')
            a(f'v_perm_b32 v35, v{b+6+dw}, v{b+4+dw}, {sel}')
            a(f'v_add_u32 v36, {ch*WV + U_O + grp*2048}, v6')
            a('ds_write_b64 v36, v[34:35]')
    a('s_waitcnt vmcnt(0)')
    a(f's_mov_b32 s26, {LOG2E}\ns_mov_b32 s27, {INV2PI}')
    a('v_lshlrev_b32 v32, 16, v32')
    a('v_lshlrev_b32 v33, 16, v33')
    a('v_mul_f32 v32, s26, v32')
    a('v_exp_f32 v32, v32')
    rne_bf16(a, 32, 34)
    a('v_lshlrev_b32 v37, 6, v1')
    a(f'v_add_u32 v37, s17, v37')
    for m in range(4):
        def unpack(dst, base):
            src = base + (m >> 1)
            if m & 1: a(f'v_and_b32 v{dst}, 0xffff0000, v{src}')
            else: a(f'v_lshlrev_b32 v{dst}, 16, v{src}')
        unpack(40, 24); unpack(41, 26); unpack(42, 28); unpack(43, 30)
        a('v_mul_f32 v40, s26, v40')
        a('v_exp_f32 v40, v40')
        rne_bf16(a, 40, 34)
        a('v_mul_f32 v40, v40, v32')
        a('v_mul_f32 v40, s26, v40')
        a('v_sub_f32 v40, 0, v40')
        a('v_mul_f32 v41, v41, v32')
        a('v_mul_f32 v41, s27, v41')
        a('v_mul_f32 v42, v42, v32')
        a('v_mul_f32 v43, v43, v32')
        a('v_add_f32 v42, v42, v42')
        a('v_add_f32 v43, v43, v43')
        a(f'ds_write_b128 v37, v[40:43] offset:{PR_O + 16*m}')
    a('v_cvt_f32_u32 v44, v4')
    a('v_mul_f32 v45, 16.0, v44') if False else (a('v_lshlrev_b32 v45, 4, v4'), a('v_cvt_f32_u32 v45, v45'))
    a('v_lshlrev_b32 v46, 4, v3')
    a(f'v_add_u32 v46, s17, v46')
    DK = 48
    for r in range(DK, DK + 20): a(f'v_mov_b32 v{r}, 0')
    a('s_mov_b32 s28, 0')
    a('s_waitcnt lgkmcnt(0)')
    a(f'ds_read_b128 v[68:71], v46 offset:{PR_O}')
    a.label(L('kl'))
    a('s_waitcnt lgkmcnt(0)')
    for r in range(4): a(f'v_mov_b32 v{72+r}, v{68+r}')
    a('v_add_u32 v46, 64, v46')
    a(f'ds_read_b128 v[68:71], v46 offset:{PR_O}')
    A2, BR, CR, CI = 72, 73, 74, 75
    Er, Ei, Yr, Yi = 76, 77, 78, 79
    for (pr, pi, pos) in ((Er, Ei, 45), (Yr, Yi, 44)):
        a(f'v_mul_f32 v80, v{A2}, v{pos}')
        a(f'v_mul_f32 v81, v{BR}, v{pos}')
        a('v_exp_f32 v80, v80')
        a('v_fract_f32 v81, v81')
        a(f'v_cos_f32 v{pr}, v81')
        a(f'v_sin_f32 v{pi}, v81')
        a(f'v_mul_f32 v{pr}, v{pr}, v80')
        a(f'v_mul_f32 v{pi}, v{pi}, v80')
    for rho in range(5):
        xr, xi = 82 + 2 * (rho & 1), 83 + 2 * (rho & 1)
        d = DK + 4 * rho
        a(f'v_mul_f32 v{xr}, v{CR}, v{Er}')
        if rho < 4: a(f'v_mul_f32 v{xi}, v{CR}, v{Ei}')
        a(f'v_fma_f32 v{xr}, -v{CI}, v{Ei}, v{xr}')
        if rho < 4: a(f'v_fma_f32 v{xi}, -v{CI}, v{Er}, -v{xi}')
        if rho < 4:
            nEr, nEi = (86, 87) if Er == 76 else (76, 77)
            a(f'v_mul_f32 v{nEr}, v{Er}, v{Er}')
            a(f'v_mul_f32 v{nEi}, v{Er}, v{Ei}')
            a(f'v_fma_f32 v{nEr}, -v{Ei}, v{Ei}, v{nEr}')
            a(f'v_add_f32 v{nEi}, v{nEi}, v{nEi}')
        a(f'v_mfma_f32_16x16x4_f32 v[{d}:{d+3}], v{xr}, v{Yr}, v[{d}:{d+3}]')
        if rho < 3:
            nYr, nYi = (88, 89) if Yr == 78 else (78, 79)
            a(f'v_mul_f32 v{nYr}, v{Yr}, v{Yr}')
            a(f'v_mul_f32 v{nYi}, v{Yr}, v{Yi}')
            a(f'v_fma_f32 v{nYr}, -v{Yi}, v{Yi}, v{nYr}')
            a(f'v_add_f32 v{nYi}, v{nYi}, v{nYi}')
        if rho < 4:
            a(f'v_mfma_f32_16x16x4_f32 v[{d}:{d+3}], v{xi}, v{Yi}, v[{d}:{d+3}]')
            Er, Ei = nEr, nEi
        if rho < 3: Yr, Yi = nYr, nYi
    a('s_add_u32 s28, s28, 1')
    a('s_cmp_lt_u32 s28, 64')
    a(f's_cbranch_scc1 {L("kl")}')
    a.nop(20)
    a('v_lshlrev_b32 v46, 8, v3')
    a('v_lshl_add_u32 v46, v4, 2, v46')
    a('v_add_u32 v46, s17, v46')
    for rho in range(5):
        for r in range(4):
            a(f'ds_write_b32 v46, v{DK+4*rho+r} offset:{KT_O + rho*1024 + r*64}')
        a('s_waitcnt lgkmcnt(8)')
    a('s_waitcnt lgkmcnt(0)')
    G0 = 48
    for k in range(33):
        a(f'ds_read_b32 v{G0+k}, v{200+k}')
        if k % 8 == 7: a('s_waitcnt lgkmcnt(4)')
    a('s_waitcnt lgkmcnt(0)')
    a('v_lshlrev_b32 v46, 6, v1')
    a('v_add_u32 v46, s17, v46')
    for c in range(4):
        for k in range(4):
            i = 8 * c + 2 * k
            a(f'v_cvt_pk_bf16_f32 v{84+k}, v{G0+i}, v{G0+i+1}')
            a(f'v_cvt_pk_bf16_f32 v{88+k}, v{G0+i+1}, v{G0+i+2}')
        a(f'ds_write_b128 v46, v[84:87] offset:{CE_O + 16*c}')
        a(f'ds_write_b128 v46, v[88:91] offset:{CO_O + 16*c}')
        a('s_waitcnt lgkmcnt(0)')
    a('s_barrier')
    a('v_lshrrev_b32 v47, 1, v3')
    a('v_sub_u32 v46, v4, v47')
    a('v_add_u32 v46, 1, v46')
    a('v_lshlrev_b32 v46, 5, v46')
    a('v_and_b32 v48, 1, v3')
    a('v_lshl_add_u32 v46, v48, 4, v46')
    a('v_add_u32 v46, s17, v46')
    for f in range(64):
        a(f'ds_read_b128 a[{4*f}:{4*f+3}], v46 offset:{U_O + (2*f - 15)*32}')
        if f % 8 == 7: a('s_waitcnt lgkmcnt(4)')
    a('v_lshlrev_b32 v49, 4, v47')
    a('v_add_u32 v49, v49, v4')
    a('v_sub_u32 v49, 2047, v49')
    a('v_lshl_add_u32 v49, v48, 3, v49')
    a('v_and_b32 v50, 1, v49')
    a('v_lshrrev_b32 v49, 1, v49')
    a('v_lshlrev_b32 v49, 2, v49')
    a(f'v_mul_u32_u24 v50, {CO_O - CE_O}, v50')
    a('v_add3_u32 v49, v49, v50, s17')
    a(f'v_add_u32 v49, {CE_O}, v49')
    NB = 5
    for b in range(NB): a(f'v_subrev_u32 v{52+b}, {64*(15*b+14)}, v49')
    Y = 60; AF = 92; NA = 4
    def ard(Dd):
        b, o = divmod(Dd, 15); off = (14 - o) * 16; r = AF + 4 * (Dd % NA)
        a(f'ds_read2_b32 v[{r}:{r+1}], v{52+b} offset0:{off} offset1:{off+1}')
        a(f'ds_read2_b32 v[{r+2}:{r+3}], v{52+b} offset0:{off+2} offset1:{off+3}')
    a('s_waitcnt lgkmcnt(0)')
    for Dd in range(3): ard(Dd)
    for Dd in range(64):
        if Dd + 3 < 64: ard(Dd + 3)
        a(f's_waitcnt lgkmcnt({2*min(3, 63-Dd)})')
        r = AF + 4 * (Dd % NA)
        for n0 in range(8):
            phi = 16 * n0 - 2 * Dd
            if phi < -14: continue
            f = (phi + 14) // 2; d = Y + 4 * n0
            c = '0' if Dd == 0 else f'v[{d}:{d+3}]'
            a(f'v_mfma_f32_16x16x32_bf16 v[{d}:{d+3}], v[{r}:{r+3}], a[{4*f}:{4*f+3}], {c}')
    a('v_lshlrev_b32 v46, 5, v4')
    a('v_lshl_add_u32 v46, v3, 3, v46')
    a('v_add_u32 v46, s17, v46')
    for n0 in range(8): a(f'ds_read_b64 v[{108+2*n0}:{109+2*n0}], v46 offset:{U_O + n0*512}')
    a('s_waitcnt lgkmcnt(0)')
    for n0 in range(8):
        d = Y + 4 * n0; ub = 108 + 2 * n0
        a(f'v_lshlrev_b32 v124, 16, v{ub}')
        a(f'v_and_b32 v125, 0xffff0000, v{ub}')
        a(f'v_lshlrev_b32 v126, 16, v{ub+1}')
        a(f'v_and_b32 v127, 0xffff0000, v{ub+1}')
        for r in range(4): a(f'v_mul_f32 v{124+r}, v{124+r}, v33')
        a('v_cvt_pk_bf16_f32 v128, v124, v125')
        a('v_cvt_pk_bf16_f32 v129, v126, v127')
        a(f'v_cvt_pk_bf16_f32 v130, v{d}, v{d+1}')
        a(f'v_cvt_pk_bf16_f32 v131, v{d+2}, v{d+3}')
        for k in range(2):
            a(f'v_lshlrev_b32 v{124+2*k}, 16, v{128+k}')
            a(f'v_and_b32 v{125+2*k}, 0xffff0000, v{128+k}')
            a(f'v_lshlrev_b32 v{132+2*k}, 16, v{130+k}')
            a(f'v_and_b32 v{133+2*k}, 0xffff0000, v{130+k}')
        for r in range(4): a(f'v_add_f32 v{124+r}, v{124+r}, v{132+r}')
        a(f'v_cvt_pk_bf16_f32 v{ub}, v124, v125')
        a(f'v_cvt_pk_bf16_f32 v{ub+1}, v126, v127')
        a(f'ds_write_b64 v46, v[{ub}:{ub+1}] offset:{U_O + n0*512}')
    a('s_waitcnt lgkmcnt(0)')
    a('s_barrier')
    a('v_lshlrev_b32 v6, 3, v0')
    a('v_mul_u32_u24 v5, 7168, v0')
    for grp in range(2):
        for ch in range(4):
            a(f'v_add_u32 v36, {ch*WV + U_O + grp*2048}, v6')
            a(f'ds_read_b64 v[{8+2*ch}:{9+2*ch}], v36')
        a('s_waitcnt lgkmcnt(0)')
        a(f's_add_u32 s22, s21, {grp*1024*1792}')
        a(f's_add_u32 s23, s22, 3584')
        for r in range(4):
            sel = 's24' if r % 2 == 0 else 's25'; dw = r >> 1
            o = 16 + 8 * grp + 2 * r
            a(f'v_perm_b32 v{o}, v{10+dw}, v{8+dw}, {sel}')
            a(f'v_perm_b32 v{o+1}, v{14+dw}, v{12+dw}, {sel}')
            a(f'buffer_store_dwordx2 v[{o}:{o+1}], v5, s[92:95], {"s22" if r < 2 else "s23"} offen offset:{(r & 1)*1792}')

def gen_s4d(name='s4d_kernel'):
    a = Asm(); a.raw(kernel_header(name))
    a('s_cmp_ge_u32 s2, 112')
    a('s_cbranch_scc1 s4_end')
    s4d_setup(a)
    a('s_mov_b32 s3, s2')
    s4d_item(a, 's4', 's3')
    a.label('s4_end')
    a('s_endpgm')
    return a
def kernels():
    return {'s4d': lambda: (gen_s4d(), 's4d_kernel', f'grid=(112,1,1) block=(256,1,1) lds={4*WV}', (512, 256))}
```

```python
from asmlib import *
from layout import *
import prep
WS = 's[8:11]'
SIGMA = prep.SIGMA
W_BYTES = prep.W_BYTES
NR = 8
NONCE = 's[64:65]'
PF_S = 3
PF_V = 7

def srd(a, d, lo, nbytes): prep.srd(a, d, lo, lo + 1, nbytes)

class VQ:
    def __init__(self): self.q = []
    def add(self, tag, n=1): self.q += [tag] * n
    def wait(self, tag):
        last = max(i for i, t in enumerate(self.q) if t == tag)
        n = len(self.q) - 1 - last
        self.q = self.q[last + 1:]
        return n

class AComp:
    def __init__(self, a, rows, frags):
        self.a = a; self.rows = rows; self.frags = frags; self.T = len(rows); self.vq = VQ()
        T = self.T
        self.stage = [(1 + 2 * (t % 4), 2 + 2 * (t % 4)) for t in range(T)]
        used = sorted({x for st in self.stage for x in st})
        self.free = [x for x in range(9) if x not in used]
        self.slot = {}; self.nxt = 0
    def dma_ops(self):
        p = self.nxt; self.nxt += 1; sl = self.free.pop(0); self.slot[p] = sl
        o = [f's_add_u32 s22, s27, {p << 18}']
        for i in range(4):
            o.append(f's_add_u32 m0, s25, {sl*16384 + i*1024}')
            o.append(f'buffer_load_dwordx4 v{4+i}, s[56:59], s22 offen lds')
        self.vq.add(('p', p), 4)
        return o
    def refill(self, maxn=99):
        while self.free and self.nxt < 14 and maxn:
            for x in self.dma_ops(): self.a(x)
            maxn -= 1
    def stage_dma(self, t):
        a = self.a
        self.rows[t]()
        a('s_lshl_b32 s23, s22, 13')
        a('s_add_u32 s23, s23, s26')
        for i in range(8):
            a(f's_add_u32 s22, s23, {(16*(i >> 1) + 4*(i & 1)) << 13}')
            a(f's_add_u32 m0, s25, {self.stage[t][i >> 2]*16384 + (i & 3)*1024}')
            a(f'buffer_load_dwordx4 v{28+i}, s[60:63], s22 offen lds')
        self.vq.add(('k', t), 8)
    def issue(self):
        a = self.a
        srd(a, 56, 40, W_BYTES); srd(a, 60, 42, W_BYTES)
        a('v_lshrrev_b32 v24, 5, v1')
        a('v_and_b32 v25, 31, v1')
        a('s_lshl_b32 s20, s16, 2')
        a('s_lshl_b32 s21, s16, 16')
        a('s_lshl_b32 s26, s17, 9')
        a('s_add_u32 s27, s26, s21')
        a('s_lshl_b32 s25, s16, 12')
        a('v_xor_b32 v26, v25, v24')
        a('v_lshlrev_b32 v26, 4, v26')
        a('v_lshl_add_u32 v28, v24, 13, v26')
        for i in range(1, 8): a(f'v_xor_b32 v{28+i}, {32*i}, v28')
        self.stage_dma(0)
        for i in range(4):
            a(f'v_add_u32 v26, {2*i}, v24')
            a('v_and_b32 v27, 3, v26')
            a('v_or_b32 v27, s20, v27')
            a('v_xor_b32 v27, v25, v27')
            a('v_lshlrev_b32 v27, 4, v27')
            a(f'v_lshl_add_u32 v{4+i}, v26, 13, v27')
        for t in range(1, min(4, self.T)): self.stage_dma(t)
        self.refill()
        a('v_lshrrev_b32 v24, 2, v117')
        a('v_lshlrev_b32 v24, 3, v24')
        a('v_and_b32 v25, 3, v117')
        a('v_add_u32 v24, v24, v25')
        a('v_lshrrev_b32 v26, 3, v117')
        a('v_lshlrev_b32 v26, 14, v26')
        a('v_and_b32 v27, 7, v117')
        a('v_lshl_add_u32 v26, v27, 9, v26')
        a('v_add_u32 v26, s25, v26')
        for k3 in range(4):
            a(f'v_or_b32 v25, {k3*4}, v116')
            a('v_xor_b32 v25, v25, v117')
            a('v_lshlrev_b32 v25, 4, v25')
            a(f'v_lshl_add_u32 v{8+k3}, v24, 9, v25')
            a(f'v_add_u32 v{36+k3}, v26, v25')
        a(f's_mov_b32 s24, {SIGMA}')
    def fetch(self):
        a = self.a; cur = 0
        for t in range(self.T):
            base = self.stage[t][0] * 16384
            for k3 in range(4):
                if base != cur: a(f'v_add_u32 v{36+k3}, {(base - cur) & 0xffffffff}, v{36+k3}')
            cur = base
            a(f's_waitcnt vmcnt({self.vq.wait(("k", t))})')
            for kk in range(8):
                a(f'ds_read_b128 {ureg(self.frags[8*t+kk], 4)}, v{36 + (kk & 3)} offset:{(kk >> 2)*256}')
            a('s_waitcnt lgkmcnt(0)')
            if t + 4 < self.T: self.stage_dma(t + 4)
            else:
                self.free += list(self.stage[t]); self.refill()
    def run(self, dest, mid=None):
        a = self.a; T = self.T; vq = self.vq; frags = self.frags
        ACC = 28
        RING, PF = (12, PF_S) if T > 2 else (192, PF_V)
        NG = PF + 1
        steps = [(p, tau, kk) for p in range(14) for tau in range(2) for kk in range(8)]
        hi = [0] * 4
        def rd(i):
            p, tau, kk = steps[i]; r = RING + 4 * (i % NG); b = self.slot[p]
            if hi[kk & 3] != b >> 2:
                a(f'v_xor_b32 v{8 + (kk & 3)}, {(hi[kk & 3] ^ (b >> 2)) << 16}, v{8 + (kk & 3)}'); hi[kk & 3] = b >> 2
            a(f'ds_read_b128 v[{r}:{r+3}], v{8 + (kk & 3)} offset:{(b & 3)*16384 + tau*2048 + (kk >> 2)*256}')
        def sync(p):
            if ('p', p) in vq.q: a(f's_waitcnt vmcnt({vq.wait(("p", p))})')
            a('s_barrier')
        sync(0)
        side = []
        for i in range(PF): rd(i)
        ntmp = 0
        for i, (p, tau, kk) in enumerate(steps):
            if tau == 1 and kk == 0 and p < 13:
                assert not any('buffer' in x for x in side), 'backlog'
                sync(p + 1)
                if p >= 1:
                    self.free.append(self.slot[p - 1]); self.refill()
                if mid: mid(p)
            if i + PF < len(steps): rd(i + PF)
            a(f's_waitcnt lgkmcnt({min(PF, len(steps) - 1 - i)})')
            r = RING + 4 * (i % NG)
            for t in range(T):
                d = ACC + 4 * (T * tau + t)
                c = '0' if kk == 0 else f'v[{d}:{d+3}]'
                a(f'v_mfma_f32_16x16x32_bf16 v[{d}:{d+3}], v[{r}:{r+3}], {ureg(frags[8*t+kk], 4)}, {c}')
                if kk * T + t >= 2:
                    for _ in range(1 if T > 2 else 2):
                        if side:
                            x = side.pop(0); a(x)
                            if 'buffer_store' in x: vq.add('st')
            if kk == 7:
                assert not side, (len(side), p, tau)
                for t in range(T):
                    d = ACC + 4 * (T * tau + t)
                    kind, o = dest(t, p, tau)
                    side += [f'v_mul_f32 v{d+k}, s24, v{d+k}' for k in range(4)]
                    if kind == 'reg' and o >= 256:
                        for k in range(2):
                            tm = d + 2 * k
                            side += [f'v_cvt_pk_bf16_f32 v{tm}, v{d+2*k}, v{d+2*k+1}', f'v_accvgpr_write_b32 a{o-256+k}, v{tm}']
                    else:
                        oo = o if kind == 'reg' else o[0]
                        side += [f'v_cvt_pk_bf16_f32 v{oo+k}, v{d+2*k}, v{d+2*k+1}' for k in range(2)]
                        if kind == 'st' and tau == 1: side += o[1]
        for x in side: a(x)

SC_FRAGS = list(range(68, 116, 4)) + list(range(120, 200, 4)) + list(range(256 + 224, 512, 4))
def score_rows(a):
    def f(q): return lambda: (a('s_lshl_b32 s22, s16, 6'), a(f's_add_u32 s22, s22, {8*(q>>1) + 2*(q&1)}'))
    def f6():
        a('s_lshr_b32 s22, s16, 1'); a('s_lshl_b32 s22, s22, 3')
        a('s_and_b32 s23, s16, 1'); a('s_lshl_b32 s23, s23, 1')
        a('s_add_u32 s22, s22, s23'); a('s_add_u32 s22, s22, 384')
    return [f(0), f(1), f(2), f(3), f6]
VA_FRAGS = list(range(128, 192, 4))
def value_rows(a):
    def f(j):
        def g():
            a('s_lshr_b32 s22, s16, 1'); a('s_lshl_b32 s22, s22, 6')
            a('s_and_b32 s23, s16, 1'); a('s_lshl_b32 s23, s23, 3')
            a('s_add_u32 s22, s22, s23'); a(f's_add_u32 s22, s22, {256 + 2*j}')
        return g
    return [f(0), f(1)]

def flag_store(a, soff_s, R, stride):
    a(f'v_mul_u32_u24 v26, {stride}, v1')
    a('v_mov_b32 v24, s64\nv_mov_b32 v25, s65')
    a(f's_mov_b64 exec, {(1 << R) - 1}')
    a(f'buffer_store_dwordx2 v[24:25], v26, {WS}, {soff_s} offen sc1')
    a('s_mov_b64 exec, -1')

def flag_poll(a, P, t, loads, abort, limit, sleep=4, on_spin=None):
    a('s_mov_b32 s30, 0')
    a.label(P)
    for i, (va, so) in enumerate(loads):
        a(f'buffer_load_dwordx4 v[{t+4*i}:{t+4*i+3}], v{va}, {WS}, {so} offen sc1')
    a('s_waitcnt vmcnt(0)')
    for i in range(2 * len(loads)):
        a(f'v_cmp_ne_u64 vcc, {NONCE}, v[{t+2*i}:{t+2*i+1}]')
        a(f's_cbranch_vccnz {P}_no')
    a(f's_branch {P}_ok')
    a.label(P + '_no')
    a(f's_sleep {sleep}')
    a('s_add_u32 s30, s30, 1')
    if on_spin: on_spin()
    a(f's_cmp_lt_u32 s30, {limit}')
    a(f's_cbranch_scc1 {P}')
    a(f's_branch {abort}')
    a.label(P + '_ok')

def bjob_issue(a, vq):
    srd(a, 60, 44, W_BYTES); srd(a, 56, 46, W_BYTES)
    a('s_mul_i32 s17, s18, 4682')
    a('s_lshr_b32 s17, s17, 16')
    assert all((i * 4682) >> 16 == i // 14 for i in range(224))
    a('s_mul_i32 s20, s17, 14')
    a('s_sub_u32 s19, s18, s20')
    a('s_cmp_ge_u32 s19, 7')
    a('s_cselect_b32 s31, 7, 0')
    a('s_sub_u32 s19, s19, s31')
    a('s_mul_i32 s27, s17, 229376')
    a('s_lshl_b32 s30, s19, 7')
    a('s_add_u32 s27, s27, s30')
    a('v_lshrrev_b32 v7, 3, v1')
    a('v_and_b32 v8, 7, v1')
    a('s_lshl_b32 s29, s16, 6')
    a('v_add_u32 v7, s29, v7')
    a('v_mul_u32_u24 v7, 896, v7')
    a('v_lshl_add_u32 v7, v8, 4, v7')
    a('s_lshl_b32 s30, s16, 13')
    for i in range(8):
        a(f's_add_u32 m0, s30, {i*1024}')
        a(f's_add_u32 s22, s27, {i*8*896}')
        a(f'buffer_load_dwordx4 v7, s[56:59], s22 offen lds')
    vq.add('stat', 8)
    a('v_lshrrev_b32 v5, 5, v1')
    a('v_and_b32 v6, 31, v1')
    a('s_lshl_b32 s25, s16, 15')
    a('s_add_u32 s25, s25, 32768')
    a('s_lshl_b32 s26, s17, 9')
    for k, sp in ((0, 's28'), (4, 's29')):
        a(f's_add_u32 {sp}, s19, s16')
        if k: a(f's_add_u32 {sp}, {sp}, {k}')
        a(f's_cmp_ge_u32 {sp}, 7')
        a('s_cselect_b32 s20, 7, 0')
        a(f's_sub_u32 {sp}, {sp}, s20')
        a(f's_add_u32 {sp}, {sp}, s31')
    a('s_lshl_b32 s32, s28, 18\ns_add_u32 s32, s32, s26')
    a('s_lshl_b32 s33, s29, 18\ns_add_u32 s33, s33, s26')
    for i in range(16):
        if i % 4 == 0:
            a(f's_add_u32 s20, s16, {i >> 2}')
            a('s_and_b32 s20, s20, 3')
            a('s_lshl_b32 s21, s20, 2')
            a('s_lshl_b32 s23, s20, 3')
            a('s_lshl_b32 s20, s20, 12')
            a(f's_add_u32 s{48 + (i >> 2)}, s20, s25')
        a(f'v_add_u32 v7, {2*(i & 3)}, v5')
        a('v_and_b32 v8, 3, v7')
        a('v_or_b32 v8, s21, v8')
        a('v_xor_b32 v8, v6, v8')
        a('v_lshlrev_b32 v8, 4, v8')
        a('v_add_u32 v7, s23, v7')
        a(f'v_lshl_add_u32 v{16+i}, v7, 13, v8')
        a(f's_add_u32 m0, s{48 + (i >> 2)}, {(i & 3)*1024}')
        a(f'buffer_load_dwordx4 v{16+i}, s[60:63], s32 offen lds')
    vq.add('p0', 16)
    a('s_cmp_eq_u32 s16, 3')
    a('s_cbranch_scc1 bj_np1')
    for i in range(16):
        a(f's_add_u32 m0, s{48 + (i >> 2)}, {16384 + (i & 3)*1024}')
        a(f'buffer_load_dwordx4 v{16+i}, s[60:63], s33 offen lds')
    vq.add('p1', 16)
    a.label('bj_np1')

def bjob_x(a, vq):
    srd(a, 52, 36, 2048 * 448 * 2)
    a('s_lshl_b32 s20, s18, 8')
    a('v_add_u32 v95, s20, v0')
    M448 = (1 << 32) // 448 + 1
    assert all((u * M448) >> 32 == u // 448 for u in range(57344))
    a(f's_mov_b32 s21, {M448}')
    a('v_mul_hi_u32 v6, v95, s21')
    a('v_mul_u32_u24 v7, 448, v6')
    a('v_sub_u32 v7, v95, v7')
    a('v_lshrrev_b32 v8, 4, v7')
    a('v_and_b32 v7, 15, v7')
    a('v_lshl_add_u32 v9, v6, 4, v7')
    a('v_mul_u32_u24 v9, 896, v9')
    a('v_lshl_add_u32 v9, v8, 5, v9')
    a('buffer_load_dwordx4 v[84:87], v9, s[52:55], 0 offen')
    a('buffer_load_dwordx4 v[88:91], v9, s[52:55], 0 offen offset:16')
    vq.add('x', 2)
    a(f'v_mul_u32_u24 v6, {14*KB}, v6')
    a('v_lshl_add_u32 v6, v7, 4, v6')
    a('v_lshl_add_u32 v92, v8, 9, v6')
    a('v_lshrrev_b32 v7, 2, v8')
    a('v_lshl_add_u32 v6, v7, 11, v6')
    a('v_and_b32 v7, 3, v8')
    a('v_lshl_add_u32 v93, v7, 8, v6')
    srd(a, 72, 38, 8 * 448 * 2)
    a('v_min_u32 v6, 223, v0')
    a('v_lshrrev_b32 v7, 3, v6')
    a('v_and_b32 v6, 7, v6')
    a('v_mul_u32_u24 v9, 896, v6')
    a('v_lshl_add_u32 v9, v7, 5, v9')
    a('buffer_load_dwordx4 v[44:47], v9, s[72:75], 0 offen')
    a('buffer_load_dwordx4 v[48:51], v9, s[72:75], 0 offen offset:16')
    vq.add('x', 2)
    a('v_lshlrev_b32 v7, 8, v7')
    a('v_lshl_add_u32 v94, v6, 4, v7')

def wait3(a, n, extra=''):
    l = a.newlabel('w3')
    a(f's_waitcnt vmcnt({n}){extra}')
    a('s_cmp_lg_u32 s16, 3')
    a(f's_cbranch_scc1 {l}')
    a(f's_waitcnt vmcnt({n-16})')
    a.label(l)

def _fills(a, vq):
    k = 0
    for base, n, zlo, zn in ((EXCH_OFF, 66 * EXCH_B // 16, F2 // 16, 256), (MEMG_OFF, (64 * 7 * KB + CNT_B) // 16, 64 * 7 * KB // 16, 1 << 20)):
        a(f's_mov_b32 s23, {base}')
        for j in range((n - 448 + 57343) // 57344):
            r = 52 + 4 * k
            a(f'v_add_u32 v6, {448 + 57344*j}, v95')
            a(f'v_subrev_u32 v7, {zlo}, v6')
            a(f'v_mov_b32 v{r}, -1')
            a('v_mov_b32 v9, 0')
            a(f'v_cmp_gt_u32 vcc, {zn}, v7')
            a(f'v_cndmask_b32 v{r}, v{r}, v9, vcc')
            for q in range(1, 4): a(f'v_mov_b32 v{r+q}, v{r}')
            a('v_lshlrev_b32 v8, 4, v6')
            a('v_mov_b32 v9, 0x10000000')
            a(f'v_cmp_lt_u32 vcc, {n-1}, v6')
            a('v_cndmask_b32 v8, v8, v9, vcc')
            a(f'buffer_store_dwordx4 v[{r}:{r+3}], v8, {WS}, s23 offen sc1')
            vq.add('fill'); k += 1

def bjob_run(a, P, vq, confirm, mid=None):
    BST = 128
    def fills():
        _fills(a, vq)
    for q in range(4):
        a('s_lshl_b32 s30, s19, 6')
        a(f's_add_u32 s30, s30, {16*q}')
        a('v_add_u32 v8, s30, v4')
        a('v_mul_u32_u24 v10, 2341, v8')
        a('v_lshrrev_b32 v10, 16, v10')
        a('v_mul_u32_u24 v11, 28, v10')
        a('v_sub_u32 v32, v8, v11')
        a('s_mul_i32 s30, s17, 28')
        a('v_add_u32 v32, s30, v32')
        a('v_lshrrev_b32 v33, 4, v32')
        a('v_and_b32 v32, 15, v32')
        a(f's_mov_b32 s30, {CUW_B}')
        a('v_mul_lo_u32 v10, v10, s30')
        a(f'v_mul_u32_u24 v33, {TILE_B}, v33')
        a('v_add_u32 v10, v10, v33')
        a('v_lshl_add_u32 v10, v3, 8, v10')
        a('v_lshl_add_u32 v10, v32, 4, v10')
        a(f'v_add_u32 v{12+q}, {WF_B}, v10')
    a('v_lshrrev_b32 v7, 2, v4')
    a('v_lshlrev_b32 v7, 3, v7')
    a('v_and_b32 v8, 3, v4')
    a('v_add_u32 v7, v7, v8')
    for k3 in range(4):
        a(f'v_or_b32 v10, {k3*4}, v3')
        a('v_xor_b32 v10, v10, v4')
        a('v_lshlrev_b32 v10, 4, v10')
        a('v_lshl_add_u32 v10, v7, 9, v10')
        a(f'v_add_u32 v{32+k3}, s25, v10')
    a('v_lshrrev_b32 v7, 2, v4')
    a('v_lshl_add_u32 v7, v3, 3, v7')
    a('v_lshlrev_b32 v7, 7, v7')
    a('v_and_b32 v8, 3, v4')
    a('v_lshl_add_u32 v7, v8, 3, v7')
    wait3(a, vq.wait("stat"))
    a('s_barrier')
    for q in range(4):
        for kk in range(8):
            r = BST + (q * 8 + kk) * 4
            for hf in range(2):
                a(f'ds_read_b64_tr_b16 v[{r+2*hf}:{r+2*hf+1}], v7 offset:{(32*kk + 4*hf)*128 + q*32}')
            if kk & 3 == 3: a('s_waitcnt lgkmcnt(6)')
    ACC = 96; FR = 52
    for it in range(2):
        if it == 1:
            a('s_cmp_eq_u32 s16, 3')
            a(f's_cbranch_scc1 {P}_w3')
        if it == 0: wait3(a, vq.wait('p0'), ' lgkmcnt(0)')
        else: a(f's_waitcnt vmcnt({vq.wait("p1")})')
        def rd(i): a(f'ds_read_b128 v[{FR+4*(i&3)}:{FR+4*(i&3)+3}], v{32 + (i & 3)} offset:{it*16384 + (i >> 3)*2048 + ((i & 7) >> 2)*256}')
        for i in range(3): rd(i)
        for i in range(16):
            tau, kk = i >> 3, i & 7
            if i + 3 < 16: rd(i + 3)
            a(f's_waitcnt lgkmcnt({min(3, 15 - i)})')
            for q in range(4):
                d = ACC + 16 * tau + 4 * q; b = BST + (q * 8 + kk) * 4
                c = '0' if kk == 0 else f'v[{d}:{d+3}]'
                a(f'v_mfma_f32_16x16x32_bf16 v[{d}:{d+3}], v[{FR+4*(i&3)}:{FR+4*(i&3)+3}], v[{b}:{b+3}], {c}')
        if it == 0:
            confirm()
            bjob_x(a, vq)
        a(f's_lshl_b32 s30, {"s29" if it else "s28"}, 10')
        for q in range(4):
            o = 68 + 4 * q
            for tau in range(2):
                d = ACC + 16 * tau + 4 * q
                a(f'v_cvt_pk_bf16_f32 v{o+2*tau}, v{d}, v{d+1}')
                a(f'v_cvt_pk_bf16_f32 v{o+2*tau+1}, v{d+2}, v{d+3}')
            a(f'buffer_store_dwordx4 v[{o}:{o+3}], v{12+q}, {WS}, s30 offen sc1')
            vq.add('st')
    a.label(f'{P}_w3')
    a('s_lshl_b32 s28, s19, 8')
    a('s_lshl_b32 s21, s17, 4')
    a('s_add_u32 s28, s28, s21')
    a('s_cmp_lg_u32 s31, 0')
    a('s_cselect_b32 s21, 8, 0')
    a('s_add_u32 s28, s28, s21')
    a(f's_add_u32 s28, s28, {BF_OFF}')
    a('s_waitcnt vmcnt(0)')
    a('s_barrier')
    a('s_cmp_lg_u32 s16, 0')
    a(f's_cbranch_scc1 {P}_nf')
    flag_store(a, 's28', 1, 0)
    a.label(f'{P}_nf')
    if mid: mid()
    for j in range(4):
        a(f'v_mov_b32 v{16+j}, v{84+2*j}')
        a(f'v_mov_b32 v{20+j}, v{85+2*j}')
        a(f'v_min_u32 v{24+j}, -2, v{44+2*j}')
        a(f'v_min_u32 v{28+j}, -2, v{45+2*j}')
    a(f's_mov_b32 s20, {XF_OFF}\ns_mov_b32 s21, {XM_OFF}')
    a(f'buffer_store_dwordx4 v[84:87], v92, {WS}, s20 offen sc1')
    a(f'buffer_store_dwordx4 v[88:91], v92, {WS}, s20 offen offset:256 sc1')
    a(f'buffer_store_dwordx4 v[16:19], v93, {WS}, s21 offen sc1')
    a(f'buffer_store_dwordx4 v[20:23], v93, {WS}, s21 offen offset:1024 sc1')
    vq.add('st', 4)
    a('s_cmp_lg_u32 s18, 0')
    a(f's_cbranch_scc1 {P}_nm')
    a(f's_mov_b32 s20, {EXCH_OFF}\ns_mov_b32 s21, {MEMG_OFF}')
    for sb in ('s20', 's21'):
        a(f'buffer_store_dwordx4 v[24:27], v94, {WS}, {sb} offen sc1')
        a(f'buffer_store_dwordx4 v[28:31], v94, {WS}, {sb} offen offset:128 sc1')
    a.label(f'{P}_nm')
    fills()
    a(f's_add_u32 s28, s28, {IF_OFF - BF_OFF}')
    a('s_waitcnt vmcnt(0)')
    a('s_barrier')
    a('s_cmp_lg_u32 s16, 0')
    a(f's_cbranch_scc1 {P}_ni')
    flag_store(a, 's28', BF_R, 2048)
    a.label(f'{P}_ni')
```

```python
from asmlib import *
from layout import *
import tok
WS = 's[8:11]'
def wreg(ti, ks):
    u = ti * 7 + ks
    return 256 + 8 * u if u < 32 else 120 + 8 * (u - 32)
def t2srv_body(a, P, v_s, par_s, abort, ld=''):
    M = 8; ACC = 36; YT = 64; YA = 72
    a(f's_mul_i32 s20, {v_s}, {CUW_B}')
    a(f's_mul_i32 s21, s16, {7*TILE_B}')
    a('s_add_u32 s20, s20, s21')
    a(f's_add_u32 s20, s20, {WF_B}')
    for f in range(98):
        if f % 4 == 0: a(f's_add_u32 s22, s20, {f*1024}')
        r = wreg(0, f // 2) + 4 * (f & 1)
        a(f'buffer_load_dwordx4 {ureg(r, 4)}, v2, {WS}, s22 offen offset:{(f & 3)*1024} {ld}')
        if f % 32 == 31: a('s_waitcnt vmcnt(24)')
    a('v_mov_b32 v5, 0x4444')
    a('v_mov_b32 v6, 0xeeee')
    a('v_cmp_lt_u32 vcc, 7, v4')
    a('v_cndmask_b32 v5, v5, v6, vcc')
    a('s_lshl_b32 s23, s16, 11')
    a('v_lshrrev_b32 v80, 1, v3')
    a('v_and_b32 v81, 1, v3')
    for p in range(4):
        if p < 3: a(f'v_add_u32 v82, {2*p}, v80')
        else: a('v_mov_b32 v82, 6')
        a('v_lshl_add_u32 v82, v82, 4, v4')
        a('v_mul_u32_u24 v83, 2341, v82')
        a('v_lshrrev_b32 v83, 16, v83')
        a('v_mul_u32_u24 v84, 28, v83')
        a('v_sub_u32 v84, v82, v84')
        a('v_lshrrev_b32 v85, 4, v84')
        a('v_and_b32 v84, 15, v84')
        a('v_lshlrev_b32 v86, 10, v85')
        a('v_lshl_add_u32 v86, v83, 8, v86')
        a('v_lshl_add_u32 v86, v84, 4, v86')
        a('v_lshl_add_u32 v86, v81, 3, v86')
        a(f'v_add_u32 v{YA+p}, s23, v86')
    a('v_add_u32 v76, s23, v2')
    a(f's_mul_i32 s27, {v_s}, 448')
    a('v_mov_b32 v77, s27')
    a('v_mov_b32 v78, 1')
    a(f's_mov_b32 s17, {par_s}')
    a(f's_mul_i32 s24, {par_s}, {7*KB}')
    a(f's_add_u32 s24, s24, {MEMG_OFF}')
    a(f's_mul_i32 s25, {v_s}, 65')
    a(f's_add_u32 s25, s25, {par_s}')
    a('s_lshl_b32 s25, s25, 13')
    a('s_add_u32 s25, s25, s23')
    a(f's_add_u32 s25, s25, {T2_OFF + 8*KB}')
    a(f's_lshl_b32 s26, {v_s}, 6')
    a(f's_add_u32 s26, s26, {par_s}')
    a('s_lshl_b32 s26, s26, 4')
    a('s_lshl_b32 s27, s16, 2')
    a('s_add_u32 s26, s26, s27')
    a(f's_add_u32 s26, s26, {CNT_OFF + T2F}')
    a.label(f'{P}_loop')
    for r in range(ACC, ACC + 28): a(f'v_mov_b32 v{r}, 0')
    a('s_mov_b32 s30, 0')
    a(f's_branch {P}_fl')
    a.label(f'{P}_pm')
    a(f'buffer_load_dword v79, v77, {WS}, s24 offen sc1')
    a('s_waitcnt vmcnt(0)')
    a('v_cmp_eq_u32 vcc, -1, v79')
    a(f's_cbranch_vccnz {P}_pr')
    a.label(f'{P}_fl')
    a('s_add_u32 s22, s24, 4096')
    for ks in range(7):
        a(f'buffer_load_dwordx4 v[{M+4*ks}:{M+4*ks+3}], v2, {WS}, {"s24" if ks < 4 else "s22"} offen offset:{(ks & 3)*1024} sc1')
    a('s_waitcnt vmcnt(0)')
    a(f'v_max_u32 v79, v{M}, v{M+1}')
    for r in range(M + 2, M + 28, 2): a(f'v_max3_u32 v79, v79, v{r}, v{r+1}')
    a('v_cmp_eq_u32 vcc, -1, v79')
    a(f's_cbranch_vccz {P}_pk')
    a.label(f'{P}_pr')
    a('s_sleep 6')
    a('s_add_u32 s30, s30, 1')
    a(f's_cmp_lt_u32 s30, {tok.WAIT_LIMIT}')
    a(f's_cbranch_scc1 {P}_pm')
    a(f's_branch {abort}')
    a.label(f'{P}_pk')
    for ti in range(7):
        for ks in range(7):
            a(f'v_smfmac_f32_16x16x64_bf16 v[{ACC+4*ti}:{ACC+4*ti+3}], v[{M+4*ks}:{M+4*ks+3}], {ureg(wreg(ti, ks), 8)}, v5')
    for p in range(4):
        A_ = ACC + 8 * p; B_ = A_ + 4 if p < 3 else YT
        if p == 3:
            for r in range(4): a(f'v_mov_b32 v{B_+r}, v{A_+r}')
        for r in range(4): a(f'v_permlane32_swap_b32 v{A_+r}, v{B_+r}')
        for r in range(4): a(f'v_add_f32 v{A_+r}, v{A_+r}, v{B_+r}')
        a(f'v_cvt_pk_bf16_f32 v{B_}, v{A_}, v{A_+1}')
        a(f'v_cvt_pk_bf16_f32 v{B_+1}, v{A_+2}, v{A_+3}')
        a(f'ds_write_b64 v{YA+p}, v[{B_}:{B_+1}]')
    a('s_waitcnt lgkmcnt(0)')
    a(f'ds_read_b128 v[{YT}:{YT+3}], v76')
    a(f'ds_read_b128 v[{YT+4}:{YT+7}], v76 offset:1024')
    a('s_waitcnt lgkmcnt(0)')
    a(f'buffer_store_dwordx4 v[{YT}:{YT+3}], v2, {WS}, s25 offen sc1')
    a(f'buffer_store_dwordx4 v[{YT+4}:{YT+7}], v2, {WS}, s25 offen offset:1024 sc1')
    a('s_waitcnt vmcnt(0)')
    a('s_mov_b64 exec, 1')
    a(f'buffer_store_dword v78, v2, {WS}, s26 offen sc1')
    a('s_mov_b64 exec, -1')
    a(f's_add_u32 s24, s24, {14*KB}')
    a(f's_add_u32 s25, s25, {16*KB}')
    a('s_add_u32 s26, s26, 32')
    a('s_add_u32 s17, s17, 2')
    a('s_cmp_lt_u32 s17, 64')
    a(f's_cbranch_scc1 {P}_loop')
```

```python
from asmlib import *
from layout import *
WS = 's[8:11]'
PEEK = WS
def common(a, endl):
    a('s_cmp_ge_u32 s2, 256')
    a(f's_cbranch_scc1 {endl}')
    a('s_load_dwordx2 s[6:7], s[0:1], 128')
    a('s_load_dwordx2 s[4:5], s[0:1], 112')
    a('v_lshrrev_b32 v1, 6, v0')
    a('v_readfirstlane_b32 s16, v1')
    a('v_and_b32 v1, 63, v0')
    a('v_lshlrev_b32 v2, 4, v1')
    a('v_lshrrev_b32 v3, 4, v1')
    a('v_and_b32 v4, 15, v1')
    a('s_waitcnt lgkmcnt(0)')
    a('s_mov_b32 s8, s6\ns_and_b32 s9, s7, 0xffff\ns_mov_b32 s10, 0x10000000\ns_mov_b32 s11, 0x20000')
    a(f's_mov_b32 s12, s4\ns_and_b32 s13, s5, 0xffff\ns_mov_b32 s14, {2048*896*2}\ns_mov_b32 s15, 0x20000')

WAIT_LIMIT = 30000
SLEEP = 4
LONG = 127
NEAR = 56
FULLPOLL = 64
def backoff(a, P, sleep):
    a(f's_sleep {sleep}')
    a(f's_cmp_ge_u32 s17, {NEAR}')
    a(f's_cbranch_scc1 {P}_bo')
    a(f's_sleep {LONG}')
    a.label(P + '_bo')
def wait_eq(a, P, soff, target, abort, sleep=None, four=False):
    sleep = sleep or SLEEP
    if four: a('v_lshlrev_b32 v60, 2, v3')
    else: a('v_mov_b32 v60, 0')
    a('s_mov_b32 s30, 0')
    a.label(P)
    a(f'buffer_load_dword v61, v60, {WS}, {soff} offen sc1')
    a('s_waitcnt vmcnt(0)')
    a(f'v_cmp_ne_u32 vcc, {target}, v61')
    a(f's_cbranch_vccz {P}_ok')
    backoff(a, P, sleep)
    a('s_add_u32 s30, s30, 1')
    a(f's_cmp_lt_u32 s30, {WAIT_LIMIT}')
    a(f's_cbranch_scc1 {P}')
    a(f's_branch {abort}')
    a.label(P + '_ok')

def load_lin(a, base_s, n, areg, flags=''):
    for f in range(n):
        if f % 4 == 0: a(f's_add_u32 s22, {base_s}, {f*1024}')
        a(f'buffer_load_dwordx4 a[{areg+4*f}:{areg+4*f+3}], v2, {WS}, s22 offen offset:{(f & 3)*1024} {flags}')

def tokp_body(a, seg_s, hq_s, ld='', st='', sync=None, ldx=''):
    a(f's_lshl_b32 s20, {hq_s}, 2')
    a('s_add_u32 s20, s20, s16')
    a(f's_lshl_b32 s21, {seg_s}, 4')
    a('s_add_u32 s21, s21, s20')
    a(f's_mul_i32 s21, s21, {GSH_B}')
    a(f's_add_u32 s21, s21, {F_OFF}')
    a(f's_mul_i32 s23, {seg_s}, {28*KB}')
    a(f's_add_u32 s23, s23, {XM_OFF}')
    FA, XA, MA = 0, 112, 224
    if sync:
        a(f's_mul_i32 s24, {seg_s}, {7*KB}')
        a(f's_add_u32 s24, s24, {MEMG_OFF}')
        a(f's_lshr_b32 s25, {seg_s}, 3')
        a('s_lshl_b32 s25, s25, 4')
        a('s_add_u32 s25, s25, s20')
        a('s_lshl_b32 s25, s25, 7')
        a(f's_add_u32 s25, s25, {CNT_OFF + FC}')
        wait_eq(a, sync + '_wf', 's25', 56, sync + '_abort')
    else:
        a(f's_mul_i32 s24, {seg_s}, {EXCH_B}')
        a(f's_add_u32 s24, s24, {EXCH_OFF}')
    load_lin(a, 's21', 28, FA, ld)
    load_lin(a, 's23', 28, XA, ldx)
    if not sync: load_lin(a, 's24', 7, MA, ld)
    AX = {(0, 0): 8, (0, 1): 12, (1, 1): 16}
    AM = {(0, 0): 20, (1, 0): 24, (0, 1): 28, (1, 1): 32}
    for r in range(4):
        a(f'v_lshl_add_u32 v5, v3, 2, {r}')
        a(f'v_cmp_le_u32 s[{40+2*r}:{41+2*r}], v5, v4')
    a('v_cmp_gt_u32 s[48:49], 2, v3')
    a('v_mov_b32 v6, 0xff800000')
    a('s_waitcnt vmcnt(0)' if sync else 's_waitcnt vmcnt(7)')
    for f in range(14):
        for (tk, tt), d in AX.items():
            c = '0' if f == 0 else f'v[{d}:{d+3}]'
            xa = XA + 4 * (tk * 14 + f); fa = FA + 4 * (tt * 14 + f)
            a(f'v_mfma_f32_16x16x32_bf16 v[{d}:{d+3}], a[{xa}:{xa+3}], a[{fa}:{fa+3}], {c}')
    MV = 64
    if sync:
        a('s_mul_i32 s22, s20, 448')
        a('v_mov_b32 v62, s22')
        a('s_mov_b32 s30, 0')
        a.label(sync + '_pm')
        a(f's_cmp_ge_u32 s17, {FULLPOLL}')
        a(f's_cbranch_scc1 {sync}_pf')
        a(f'buffer_load_dword v61, v62, {WS}, s24 offen sc1')
        a('s_waitcnt vmcnt(0)')
        a('v_cmp_eq_u32 vcc, -1, v61')
        a(f's_cbranch_vccnz {sync}_pr')
        a.label(sync + '_pf')
        a('s_add_u32 s22, s24, 4096')
        for ks in range(7):
            a(f'buffer_load_dwordx4 v[{MV+4*ks}:{MV+4*ks+3}], v2, {WS}, {"s24" if ks < 4 else "s22"} offen offset:{(ks & 3)*1024} sc1')
        a('s_waitcnt vmcnt(0)')
        a(f'v_max_u32 v61, v{MV}, v{MV+1}')
        for r in range(MV + 2, MV + 28, 2): a(f'v_max3_u32 v61, v61, v{r}, v{r+1}')
        a('v_cmp_eq_u32 vcc, -1, v61')
        a(f's_cbranch_vccz {sync}_pk')
        a.label(sync + '_pr')
        backoff(a, sync + '_pm', SLEEP)
        a('s_add_u32 s30, s30, 1')
        a(f's_cmp_lt_u32 s30, {WAIT_LIMIT}')
        a(f's_cbranch_scc1 {sync}_pm')
        a(f's_branch {sync}_abort')
        a.label(sync + '_pk')
        a(f'buffer_load_dword v250, v251, {PEEK}, 0 offen sc1')
    else:
        a('s_waitcnt vmcnt(0)')
    for ks in range(7):
        for (half, tt), d in AM.items():
            c = '0' if ks == 0 else f'v[{d}:{d+3}]'
            fa = FA + 4 * (tt * 14 + ks * 2 + half)
            mop = f'v[{MV+4*ks}:{MV+4*ks+3}]' if sync else f'a[{MA+4*ks}:{MA+4*ks+3}]'
            a(f'v_mfma_f32_16x16x32_bf16 v[{d}:{d+3}], {mop}, a[{fa}:{fa+3}], {c}')
    a(f's_lshl_b32 s25, {seg_s}, 1')
    a(f's_mul_i32 s25, s25, {PT_B}')
    a(f's_add_u32 s25, s25, {PT_OFF}')
    a('s_lshl_b32 s26, s20, 10')
    a('s_add_u32 s26, s26, s25')
    a(f's_lshl_b32 s27, {hq_s}, 10')
    a('s_add_u32 s27, s27, s25')
    a('s_lshr_b32 s28, s16, 1')
    a('s_lshl_b32 s28, s28, 3')
    a('s_add_u32 s27, s27, s28')
    a(f's_add_u32 s27, s27, {16*KB}')
    a('s_and_b32 s28, s16, 1')
    a('s_cmp_eq_u32 s28, 0')
    a('s_cselect_b32 s50, -1, 0')
    a('s_cselect_b32 s51, 0, -1')
    for tt in range(2):
        xs = []
        for (tk, t2), d in AX.items():
            if t2 != tt: continue
            for r in range(4):
                if tk == tt: a(f'v_cndmask_b32 v{d+r}, v6, v{d+r}, s[{40+2*r}:{41+2*r}]')
                xs.append(d + r)
        z, t = AM[(0, tt)], AM[(1, tt)]
        for r in range(4): a(f'v_cndmask_b32 v{z+r}, v{t+r}, v{z+r}, s[48:49]')
        for r in range(4): a(f'v_mov_b32 v{t+r}, v{z+r}')
        for r in range(4): a(f'v_permlane32_swap_b32 v{z+r}, v{t+r}')
        for r in range(4): a(f'v_add_f32 v{z+r}, v{z+r}, v{t+r}')
        ms = [z + r for r in range(4)]
        al = xs + ms
        mx = 40
        a(f'v_max3_f32 v{mx}, v{al[0]}, v{al[1]}, v{al[2]}')
        rest = al[3:]
        while len(rest) >= 2:
            a(f'v_max3_f32 v{mx}, v{mx}, v{rest[0]}, v{rest[1]}'); rest = rest[2:]
        if rest: a(f'v_max_f32 v{mx}, v{mx}, v{rest[0]}')
        for sw in ('16', '32'):
            a(f'v_mov_b32 v41, v{mx}')
            a(f'v_permlane{sw}_swap_b32 v{mx}, v41')
            a(f'v_max_f32 v{mx}, v{mx}, v41')
        for r in al: a(f'v_sub_f32 v{r}, v{r}, v{mx}')
        for r in al: a(f'v_exp_f32 v{r}, v{r}')
        a(f'v_add_f32 v42, v{ms[0]}, v{ms[1]}')
        a(f'v_add_f32 v43, v{ms[2]}, v{ms[3]}')
        a('v_add_f32 v42, v42, v43')
        a('v_mul_f32 v42, 0.5, v42')
        for r in xs: a(f'v_add_f32 v42, v42, v{r}')
        for sw in ('16', '32'):
            a('v_mov_b32 v41, v42')
            a(f'v_permlane{sw}_swap_b32 v42, v41')
            a('v_add_f32 v42, v42, v41')
        a('v_rcp_f32 v42, v42')
        for r in al: a(f'v_mul_f32 v{r}, v{r}, v42')
        o = 44 + 8 * tt
        for k in range(len(xs) // 2): a(f'v_cvt_pk_bf16_f32 v{o+k}, v{xs[2*k]}, v{xs[2*k+1]}')
        if tt == 0:
            a(f'v_mov_b32 v{o+2}, 0'); a(f'v_mov_b32 v{o+3}, 0')
        a(f'v_cvt_pk_bf16_f32 v{o+4}, v{ms[0]}, v{ms[1]}')
        a(f'v_cvt_pk_bf16_f32 v{o+5}, v{ms[2]}, v{ms[3]}')
        a(f'buffer_store_dwordx4 v[{o}:{o+3}], v2, {WS}, s26 offen {st}')
        a('s_mov_b64 exec, s[50:51]')
        a(f'buffer_store_dwordx2 v[{o+4}:{o+5}], v2, {WS}, s27 offen {st}')
        a('s_mov_b64 exec, -1')
        if tt == 0:
            a(f's_add_u32 s26, s26, {PT_B}')
            a(f's_add_u32 s27, s27, {PT_B}')
    if sync:
        a(f's_lshl_b32 s25, {seg_s}, 7')
        a(f's_add_u32 s25, s25, {CNT_OFF + PTC}')
        a('v_mov_b32 v5, 1')
        a('v_mov_b32 v6, 0')
        a('s_waitcnt vmcnt(0)')
        a('s_mov_b64 exec, 1')
        a(f'buffer_atomic_add v5, v6, {WS}, s25 offen')
        a('s_mov_b64 exec, -1')

def toko_body(a, seg_s, vq_s, ld='', sync=None, OUT='s[12:15]'):
    a(f's_lshl_b32 s20, {vq_s}, 2')
    a('s_add_u32 s20, s20, s16')
    a('s_mul_i32 s24, s20, 65')
    a(f's_add_u32 s24, s24, {seg_s}')
    a('s_lshl_b32 s24, s24, 13')
    a(f's_add_u32 s24, s24, {T2_OFF + 8*KB}')
    a('s_lshl_b32 s21, s20, 6')
    a(f's_add_u32 s21, s21, {seg_s}')
    a(f's_mul_i32 s21, s21, {GSH_B}')
    a(f's_add_u32 s21, s21, {VO_OFF}')
    a(f's_lshl_b32 s25, {seg_s}, 1')
    a(f's_mul_i32 s25, s25, {PT_B}')
    a(f's_add_u32 s25, s25, {PT_OFF}')
    a('v_mul_u32_u24 v7, 28, v3')
    a('v_add_u32 v5, v7, v4')
    a('v_lshlrev_b32 v5, 4, v5')
    a('v_add_u32 v6, 16, v4')
    a('v_min_u32 v6, 27, v6')
    a('v_add_u32 v6, v7, v6')
    a('v_lshlrev_b32 v6, 4, v6')
    a('v_lshrrev_b32 v8, 1, v3')
    a('v_lshl_add_u32 v8, v8, 4, v4')
    a('v_lshlrev_b32 v8, 4, v8')
    a('v_and_b32 v9, 1, v3')
    a('v_lshl_add_u32 v7, v9, 3, v8')
    VA, PA = 0, 128
    T2R, PMR = 28, 64
    if sync:
        a(f's_lshr_b32 s26, {seg_s}, 3')
        a('s_lshl_b32 s26, s26, 4')
        a('s_add_u32 s26, s26, s20')
        a('s_lshl_b32 s26, s26, 7')
        a(f's_add_u32 s26, s26, {CNT_OFF + VOC}')
        wait_eq(a, sync + '_wv', 's26', 56, sync + '_abort')
    for h in range(16):
        if h % 2 == 0: a(f's_add_u32 s22, s21, {h*1792}')
        for t in range(2):
            r = VA + 8 * h + 4 * t
            a(f'buffer_load_dwordx4 a[{r}:{r+3}], v{5+t}, {WS}, s22 offen offset:{(h & 1)*1792} {ld}')
    if sync:
        a('s_lshl_b32 s26, s20, 6')
        a(f's_add_u32 s26, s26, {seg_s}')
        a('s_lshl_b32 s26, s26, 4')
        a(f's_add_u32 s26, s26, {CNT_OFF + T2F}')
        wait_eq(a, sync + '_wt', 's26', 1, sync + '_abort', four=True)
    for hq in range(4):
        if hq % 2 == 0: a(f's_add_u32 s22, s24, {hq*2048}')
        for t in range(2):
            r = T2R + 8 * hq + 4 * t
            for pc in range(2):
                a(f'buffer_load_dwordx2 v[{r+2*pc}:{r+2*pc+1}], v7, {WS}, s22 offen offset:{(hq & 1)*2048 + t*1024 + pc*512} {ld}')
    if sync:
        a(f's_lshl_b32 s26, {seg_s}, 7')
        a(f's_add_u32 s26, s26, {CNT_OFF + PTC}')
        wait_eq(a, sync + '_wp', 's26', 16, sync + '_abort', sleep=2)
        a(f'buffer_load_dword v250, v251, {PEEK}, 0 offen sc1')
    else:
        a('s_waitcnt vmcnt(16)')
    for h in range(16):
        if h % 4 == 0:
            a(f's_add_u32 s26, s25, {h*1024}')
            a(f's_add_u32 s27, s25, {PT_B + h*1024}')
        for tt in range(2):
            r = PA + 8 * h + 4 * tt
            a(f'buffer_load_dwordx4 a[{r}:{r+3}], v2, {WS}, s{26+tt} offen offset:{(h & 3)*1024} {ld}')
    a(f's_add_u32 s26, s25, {16*KB}')
    a(f's_add_u32 s27, s25, {PT_B + 16*KB}')
    for hq in range(4):
        for tt in range(2):
            r = PMR + 8 * hq + 4 * tt
            a(f'buffer_load_dwordx4 v[{r}:{r+3}], v2, {WS}, s{26+tt} offen offset:{hq*1024} {ld}')
    ACC = 12
    def mm(A_, B_, t, tt, first):
        d = ACC + 8 * t + 4 * tt
        a(f'v_mfma_f32_16x16x32_bf16 v[{d}:{d+3}], {A_}, {B_}, ' + ('0' if first else f'v[{d}:{d+3}]'))
    for h in range(16):
        a(f's_waitcnt vmcnt({(15 - h) * 2 + 8})')
        for t in range(2):
            for tt in range(2):
                mm(f'a[{VA+8*h+4*t}:{VA+8*h+4*t+3}]', f'a[{PA+8*h+4*tt}:{PA+8*h+4*tt+3}]', t, tt, h == 0)
    a('s_waitcnt vmcnt(0)')
    for hq in range(4):
        for t in range(2):
            for tt in range(2):
                mm(f'v[{T2R+8*hq+4*t}:{T2R+8*hq+4*t+3}]', f'v[{PMR+8*hq+4*tt}:{PMR+8*hq+4*tt+3}]', t, tt, False)
    a('v_mul_u32_u24 v8, 1792, v4')
    a('v_lshl_add_u32 v8, v3, 3, v8')
    a(f's_mul_i32 s26, {seg_s}, {32*1792}')
    a('s_mul_i32 s22, s20, 56')
    a('s_add_u32 s26, s26, s22')
    a('s_add_u32 s26, s26, 896')
    a(f's_add_u32 s27, s26, {16*1792}')
    for t in range(2):
        for tt in range(2):
            d = ACC + 8 * t + 4 * tt; o = 96 + 4 * t + 2 * tt
            a(f'v_cvt_pk_bf16_f32 v{o}, v{d}, v{d+1}')
            a(f'v_cvt_pk_bf16_f32 v{o+1}, v{d+2}, v{d+3}')
        if t: a('s_mov_b32 exec_hi, 0xffff')
        for tt in range(2):
            o = 96 + 4 * t + 2 * tt
            a(f'buffer_store_dwordx2 v[{o}:{o+1}], v8, {OUT}, s{26+tt} offen offset:{32*t}')
    a('s_mov_b64 exec, -1')

def gen_tok(which):
    name = f'tok{which}_kernel'
    a = Asm(); a.raw(kernel_header(name))
    common(a, f't{which}_end')
    a('s_lshr_b32 s17, s2, 2')
    a('s_and_b32 s18, s2, 3')
    if which == 'p': tokp_body(a, 's17', 's18')
    else: toko_body(a, 's17', 's18')
    a.label(f't{which}_end')
    a('s_endpgm')
    return a
```

```python
import sys
from asmlib import *
import prep, gemm, chain, tok, main2, start, s4d, t2srv
import os
HDR = open(os.path.join(os.path.dirname(os.path.abspath(__file__)), 'hdr.txt')).read()
def build(path, parts):
    K = {
     'prep': lambda: (prep.gen_prep(), 'prep_kernel', 'grid=(256,1,1) block=(256,1,1) lds=163840', (272, 256)),
     'gemm': lambda: (gemm.gen_gemm(), 'gemm_kernel', 'grid=(256,1,1) block=(256,1,1) lds=86016', (352, 128)),
     'chain': lambda: (chain.gen_chain_kernel(), 'chain_kernel', 'grid=(256,1,1) block=(256,1,1) lds=163840', (512, 256)),
     'main': lambda: (setattr(chain, 'SYNC', 1), chain.gen_chain_kernel('main_kernel', chain.worker_all))[1:] + ('main_kernel', 'grid=(256,1,1) block=(256,1,1) lds=163840', (512, 256)),
     'all': lambda: (setattr(chain, 'SYNC', 1), setattr(chain, 'MERGE', chain.MERGE or 1), chain.gen_chain_kernel('main_kernel', chain.worker_all))[2:] + ('main_kernel', 'grid=(256,1,1) block=(256,1,1) lds=163840', (512, 256)),
     'one': lambda: (main2.gen(), 'main_kernel', 'grid=(256,1,1) block=(256,1,1) lds=163840', (512, 256)),
     'tokp': lambda: (tok.gen_tok('p'), 'tokp_kernel', 'grid=(256,1,1) block=(256,1,1) lds=0', (384, 128)),
     'toko': lambda: (tok.gen_tok('o'), 'toko_kernel', 'grid=(256,1,1) block=(256,1,1) lds=0', (384, 128)),
    }
    try:
        import s4d
        K.update(s4d.kernels())
    except ImportError: pass
    ks = [K[p]() for p in parts]
    out = [HDR.rstrip('\n')]
    for a, n, l, _ in ks: out.append(f'; @launch kernel={n} {l}')
    out += ['.amdgcn_target "amdgcn-amd-amdhsa--gfx950"', '.text']
    for a, n, l, _ in ks: out.append(a.text())
    out.append('.section .rodata,"a"')
    for a, n, l, (v, ac) in ks: out.append(kernel_desc(n, v, ac))
    open(path, 'w').write('\n'.join(out) + '\n')
    print('instructions', sum(a.count for a, *_ in ks))
if __name__ == '__main__':
    for x in sys.argv[3:]:
        k, v = x.split('=')
        m = [m for m in (chain, prep, main2, start, tok, gemm, s4d, t2srv) if hasattr(m, k)][0]
        setattr(m, k, int(v))
    build(sys.argv[1], sys.argv[2].split(','))
```

```python
from asmlib import *
from layout import *

SRD = 's[8:11]'; DBG = 's[12:15]'
SPIN_LIMIT = 400000
SLOW_LIMIT = 50000
NSTEPS = 64
STAMPS = False
STAMP_STEP = 32
STAMP_CYC = 0
STEPLOG = 0
STAMP_OFF = 100 * 1024 * 1024
POLL_DEPTH = 3
POLL_GAP = 0
SC_SLEEP = 0
M_GAP = 4
SC_DELAY = 0
F1_POS = 1
F2_POS = 4
VA_DELAY = 0
VO_POS = 1
P_GAP = 5
ZFILL = 1
SC_ALLPOLL = 0
FOLDW = 1
NANCHK = 1
VO_PRE0 = 0
VO_PRE = 16
VO_SLEEP = 0
F1_WAVE = 2
RB1_DELAY = 0
EC_M = 0
EC_P = 0
DIAG = 0
T2SRV = 1
SLOW_FIRST = 0
B2_POS = 0
M_ROT = 0
CODE_PF = 1
PUB_EARLY = 0
HLP_SLEEP = 0
MERGE = 0
A_TGT = 28
B_TGT = 64
SELF_POISON = 0
X_PRELOAD = 0
VO_NT = 0
FIN_SLEEP = 0
VM_BURST = 0
PUBLISH = 1
VM_EVERY = 2
PUB_FIRST = 1
VO_EARLY = 0
FLAG_SLEEP = 0
SYNC = 0
XCD_SEL = 0
NOBULK = 0
VAL_TOUCH = 0
SC_TOUCH = 0
TOUCH_POS = 2
TOUCH_AHEAD = 2
DMA_DELAY = 0
PLAIN_M = 1
SELF = 0
BDEP = None
R1 = 16
R2 = 32
PD_S = 5
PG_S = 8
PD_V = 5
PG_V = 8
PD_H = 3
PG_H = 0
VST = 0
VSM = 1
NPP = 10
VZ = 3
NPRE = 3
LPOS = 1
PLAIN_P = 1
D = 'row_mask:0xf bank_mask:0xf'
XSEG_B = 28 * KB

def stamp(a, k):
    if STAMPS: a(f'{"s_memtime" if STAMP_CYC else "s_memrealtime"} s[{40+2*k}:{41+2*k}]')
def stamp_flush(a, path, n, lbl, t=118):
    if not STAMPS: return
    a(f's_cmp_lg_u32 s19, {STAMP_STEP}')
    a(f's_cbranch_scc1 {lbl}')
    a('s_waitcnt lgkmcnt(0)')
    a(f's_lshl_b32 s22, s17, 9')
    a(f's_add_u32 s22, s22, {STAMP_OFF + path * 64}')
    a(f'v_mov_b32 v{t}, 0')
    for k in range(n):
        a(f'v_mov_b32 v{t+1}, s{40+2*k}')
        a(f'buffer_store_dword v{t+1}, v{t}, {SRD}, s22 offen offset:{4*k}')
    a.label(lbl)

EVLOG = 0
EV_OFF = 101 * 1024 * 1024
def evlog(a, tag, t=36):
    if not EVLOG: return
    a('s_memrealtime s[98:99]')
    a('s_waitcnt lgkmcnt(0)')
    a(f'v_mov_b32 v{t}, {tag}')
    a(f'v_mov_b32 v{t+1}, s98')
    a('s_mov_b64 exec, 1')
    a(f'buffer_store_dwordx2 v[{t}:{t+1}], off, {SRD}, s100')
    a('s_mov_b64 exec, -1')
    a('s_add_u32 s100, s100, 8')

def exec_lo(a, R):
    if R == 32: a('s_mov_b32 exec_hi, 0')
    else: a(f's_mov_b64 exec, {(1 << R) - 1}')

def spin(a, back, abort):
    a('s_add_u32 s30, s30, 1')
    a(f's_cmp_lt_u32 s30, {SPIN_LIMIT}')
    a(f's_cbranch_scc1 {back}')
    a(f's_branch {abort}')

def flagpoll(a, vaddr, sbase, regs, lbl, abort, Dp=None, gap=None):
    Dp = Dp or POLL_DEPTH
    gap = POLL_GAP if gap is None else gap
    for i in range(Dp):
        a(f'buffer_load_dword v{regs+i}, v{vaddr}, {SRD}, {sbase} offen sc1')
        if i < Dp - 1: a.nop(gap)
    a.label(lbl + '_l')
    for i in range(Dp):
        a(f's_waitcnt vmcnt({Dp-1})')
        a(f'v_cmp_eq_u32 vcc, -1, v{regs+i}')
        a(f's_cbranch_vccz {lbl}_d')
        a(f'buffer_load_dword v{regs+i}, v{vaddr}, {SRD}, {sbase} offen sc1')
    spin(a, lbl + '_l', abort)
    a.label(lbl + '_d')

def load_M(a, M, gap=0, k0=0):
    for ks in range(k0, 7):
        so = 's20' if ks < 4 else 's23'
        a(f'buffer_load_dwordx4 v[{M+4*ks}:{M+4*ks+3}], v2, {SRD}, {so} offen offset:{(ks & 3) * 1024} sc1')
        if gap and ks < 3: a.nop(gap)

def load_units(a, units, base, tmp_s='s22'):
    cur = None; n = 0
    for off, reg in units:
        for hb in range(2):
            o = off + hb * 1024
            blk = o // 4096 * 4096
            if blk != cur:
                a(f's_add_u32 {tmp_s}, {base}, {blk}'); cur = blk
            a(f'buffer_load_dwordx4 {ureg(reg + 4 * hb, 4)}, v2, {SRD}, {tmp_s} offen offset:{o - blk}' + (' sc1' if MERGE else ''))
            n += 1
            if n % 32 == 0: a('s_waitcnt vmcnt(24)')

def wreg(ti, ks):
    u = ti * 7 + ks
    return 256 + 8 * u if u < 32 else 120 + 8 * (u - 32)

def lane_consts(a):
    a('v_and_b32 v1, 63, v0')
    a('v_lshlrev_b32 v2, 4, v1')
    a('v_lshrrev_b32 v116, 4, v1')
    a('v_and_b32 v117, 15, v1')
    a('v_mov_b32 v3, 0x4444')
    a('v_mov_b32 v118, 0xeeee')
    a('v_cmp_lt_u32 vcc, 7, v117')
    a('v_cndmask_b32 v3, v3, v118, vcc')

def step_bases(a):
    a('s_add_u32 s23, s20, 4096')
    a(f's_add_u32 s21, s20, {EXCH_B}')

class Checker:
    def __init__(self, a, acc): self.a = a; self.acc = acc; self.q = []; self.first = True
    def add(self, r, n=4): self.q += list(range(r, r + n))
    def emit(self, k=1):
        for _ in range(k):
            if self.first and len(self.q) >= 3:
                x, y, z = self.q[:3]; self.q = self.q[3:]
                self.a(f'v_max3_u32 v{self.acc}, v{x}, v{y}, v{z}'); self.first = False
            elif len(self.q) >= 2:
                x, y = self.q[:2]; self.q = self.q[2:]
                self.a(f'v_max3_u32 v{self.acc}, v{self.acc}, v{x}, v{y}')
            elif len(self.q) == 1:
                self.a(f'v_max_u32 v{self.acc}, v{self.acc}, v{self.q[0]}'); self.q = []
    def drain(self):
        while self.q: self.emit()

XP = 2 * XSEG_B
MP = XP + 8 * KB
def score_tiles(w):
    return [(w, 0), (w, 1), (w, 2), (w, 3), (4 + (w >> 1), 2 * (w & 1)), (4 + (w >> 1), 2 * (w & 1) + 1), (6, w)]

def x_dma(a, w):
    a(f's_add_u32 m0, s25, {7*w*1024}')
    for f in range(7):
        if f == 4:
            a(f's_add_u32 m0, s25, {7*w*1024 + 4096}')
            a('s_add_u32 s22, s24, 4096')
        a(f'buffer_load_dwordx4 v2, {SRD}, {"s24" if f < 4 else "s22"} offen offset:{(f & 3) * 1024}' + (' sc1' if MERGE else '') + ' lds')

def gen_score(a, w, st, tag):
    L = lambda n: f'{tag}_sc{w}_{n}'
    ABORT = f'{tag}_abort'
    M = 8; ACC = 36; AOP = 64; TR = 68; BOP6 = 76; BOPB = 80; BOPA = 60; SACC = 84; SX = 88
    XS = [96, 104, [12, 16, 8, 8][w], 52, 36]
    ka, kb = w, 4 + (w >> 1)
    half6, piece6, pieceP = w & 1, w >> 1, w & 1
    def S(ti, ks):
        return f'v_smfmac_f32_16x16x64_bf16 v[{ACC+4*ti}:{ACC+4*ti+3}], v[{M+4*ks}:{M+4*ks+3}], {ureg(wreg(ti, ks), 8)}, v3'
    def cvt(dst, src):
        return [f'v_cvt_pk_bf16_f32 v{dst}, v{src}, v{src+1}', f'v_cvt_pk_bf16_f32 v{dst+1}, v{src+2}, v{src+3}']
    def T(dst): return f'v_mfma_f32_16x16x32_bf16 v[{dst}:{dst+3}], v[{AOP}:{AOP+3}], v[4:7], 0'
    def xrd(buf, kap, tt):
        off = (tt * 14 + 2 * kap) * 1024
        return [f'ds_read_b128 v[{XS[buf]}:{XS[buf]+3}], v116 offset:{off}', f'ds_read_b128 v[{XS[buf]+4}:{XS[buf]+7}], v116 offset:{off+1024}']
    def Smm(kap, b, first=False):
        c = '0' if first else f'v[{SACC}:{SACC+3}]'
        return f'v_mfma_f32_16x16x32_bf16 v[{SACC}:{SACC+3}], v[{M+4*kap}:{M+4*kap+3}], v[{b}:{b+3}], {c}'
    def Sx(tt, b, buf):
        return f'v_smfmac_f32_16x16x64_bf16 v[{SX+4*tt}:{SX+4*tt+3}], v[{b}:{b+3}], v[{XS[buf]}:{XS[buf]+7}], v3'
    ZR = list(range(ACC, ACC + 28)) + list(range(SX, SX + 8)) + [AOP + 2 - 2 * half6, AOP + 3 - 2 * half6]
    def zero(lo=0, hi=99):
        for r in ZR[lo:hi]: a(f'v_mov_b32 v{r}, 0')
    o1 = [(k + w) % 4 for k in range(4)] if M_ROT else [0, 1, 2, 3]
    o2 = [4 + (k + w) % 3 for k in range(3)] if M_ROT else [4, 5, 6]
    def ml(ks, first=False):
        a(f'buffer_load_dwordx4 v[{M+4*ks}:{M+4*ks+3}], v2, {SRD}, {"s20" if ks < 4 else "s23"} offen offset:{(ks & 3) * 1024}' + ('' if first and PLAIN_M and st == '' else ' sc1'))
    a.label(L('loop'))
    step_bases(a)
    zero(3 * M_GAP if ZFILL else 0)
    a('s_mov_b32 s30, 0')
    if NANCHK: a('s_mov_b32 s62, 0')
    if SC_ALLPOLL:
        a('s_waitcnt vmcnt(0)')
        a('s_barrier')
        if SC_SLEEP: a(f's_sleep {SC_SLEEP}')
        flagpoll(a, 117, 's20', TR, L('fp'), ABORT)
        stamp(a, 0)
    else:
        if w == 0:
            if SC_SLEEP: a(f's_sleep {SC_SLEEP}')
            flagpoll(a, 0, 's20', TR, L('fp'), ABORT, PD_S, PG_S)
            if SC_DELAY: a.nop(SC_DELAY)
            ml(o1[0], True)
            a('s_barrier')
            stamp(a, 0)
            a(f's_branch {L("ld1")}')
        else:
            a('s_waitcnt vmcnt(0)')
            stamp(a, 7)
            a('s_barrier')
            stamp(a, 0)
    a.label(L('ld'))
    ml(o1[0], NANCHK)
    if w == 0: a.label(L('ld1'))
    order = o1 + o2
    for i, ks in enumerate(order[1:NPRE]):
        if i < 3:
            if ZFILL: zero(i * M_GAP, (i + 1) * M_GAP)
            else: a.nop(M_GAP)
        ml(ks, NANCHK)
    if ZFILL and NPRE < 4: zero((NPRE - 1) * M_GAP, 3 * M_GAP)
    if NANCHK and NPRE == 7: a.label(L('ld2'))
    for x in xrd(0, 6, 0) + xrd(1, 6, 1): a(x)
    ck = Checker(a, 118)
    issued = NPRE
    late = order[NPRE:]
    for i, ks in enumerate(o1):
        a(f's_waitcnt vmcnt({issued-1-i})')
        if i < EC_M:
            a.label(L(f'e{i}'))
            r = M + 4 * ks
            a(f'v_max3_u32 v{TR}, v{r}, v{r+1}, v{r+2}')
            a(f'v_max_u32 v{TR}, v{TR}, v{r+3}')
            a(f'v_cmp_eq_u32 vcc, -1, v{TR}')
            a(f's_cbranch_vccnz {L(f"er{i}")}')
        elif not NANCHK: ck.add(M + 4 * ks)
        if i == 0: stamp(a, 1)
        for ti in range(7):
            a(S(ti, ks))
            if ti in (1, 3): ck.emit()
            if late and ti in ((LPOS, LPOS + 3) if LPOS < 4 else (LPOS - 4,)):
                ml(late.pop(0), NANCHK); issued += 1
    assert not late
    a('s_waitcnt vmcnt(0)')
    if NPRE < 7: a.label(L('ph2'))
    stamp(a, 2)
    for k in (4, 5, 6):
        if not NANCHK: ck.add(M + 4 * k)
    seq = []
    for ti in (6, 4, 5, 0, 1, 2, 3):
        for ks in (4, 5, 6): seq.append([S(ti, ks), []])
    def side(i, ops): seq[i][1] += ops
    CK = 'CK'
    for i in range(6): side(i, [CK])
    side(0, xrd(2, kb, 0))
    if SC_TOUCH: side(TOUCH_POS, [f'buffer_load_dword v119, v117, {SRD}, s35 offen sc1'])
    if not VAL_TOUCH and ((w == 1 and not SELF_POISON) or (w == 2 and not X_PRELOAD)): side(TOUCH_POS - 1, [f'buffer_load_dword v119, v0, {SRD}, {"s20" if w == 1 else "s24"} offen sc1'])
    c6 = cvt(AOP + 2 * half6, ACC + 24)
    side(5, c6[:1]); side(6, c6[1:] + ['v_cmp_eq_u32 vcc, -1, v118'])
    seq.insert(8, [T(TR), []])
    side(9, [f's_cbranch_vccnz {L("retry")}'])
    cb6 = cvt(BOP6 + 2 * piece6, TR)
    side(11, cb6[:1]); side(12, cb6[1:])
    c4, c5 = cvt(AOP, ACC + 16), cvt(AOP + 2, ACC + 20)
    side(9, c4[:1]); side(10, c4[1:]); side(12, c5[:1]); side(13, c5[1:])
    seq.insert(15, [T(TR + 4), xrd(3, kb, 1)])
    c0, c1 = cvt(AOP, ACC), cvt(AOP + 2, ACC + 4)
    side(16, c0[:1]); side(17, c0[1:])
    cbb = cvt(BOPB + 2 * pieceP, TR + 4)
    side(18, cbb[:1]); side(19, cbb[1:] + c1[:1]); side(20, c1[1:])
    seq.insert(22, [T(TR), xrd(4, ka, 0)])
    c2, c3 = cvt(AOP, ACC + 8), cvt(AOP + 2, ACC + 12)
    side(23, ['s_waitcnt lgkmcnt(4)'] + c2[:1])
    seq.append([Smm(6, BOP6, True), c2[1:]])
    seq.append([Sx(0, BOP6, 0), xrd(0, ka, 1)])
    ca0 = cvt(BOPA, TR)
    seq.append([Sx(1, BOP6, 1), c3])
    seq.append([Smm(kb, BOPB), ca0[:1]])
    seq.append([T(TR + 4), ca0[1:] + ['s_waitcnt lgkmcnt(4)']])
    seq.append([Sx(0, BOPB, 2), []])
    seq.append([Sx(1, BOPB, 3), ['s_waitcnt lgkmcnt(0)'] + cvt(BOPA + 2, TR + 4)])
    if FOLDW:
        seq.append([Smm(ka, BOPA), []])
        seq.append([Sx(0, BOPA, 4), []])
        seq.append([Sx(1, BOPA, 0), []])
    else:
        seq.append([Sx(0, BOPA, 4), []])
        seq.append([Sx(1, BOPA, 0), []])
        seq.append([Smm(ka, BOPA), []])
    for m, ops in seq:
        a(m)
        for o in ops:
            if o == CK: ck.emit()
            elif NANCHK and (o.startswith('v_cmp') or o.startswith('s_cbranch')): pass
            else:
                if o.startswith('v_cmp'): ck.drain()
                a(o)
    if FOLDW:
        a('s_mov_b64 exec, s[26:27]')
        a(f'ds_write_b128 v113, v[{SACC}:{SACC+3}]')
        a('s_mov_b64 exec, -1')
        a(f'v_cmp_u_f32 vcc, v{SX}, v{SX+1}')
        for r in range(4): a(f'v_permlane32_swap_b32 v{SX+r}, v{SX+4+r}')
        for r in range(4): a(f'v_add_f32 v{SX+r}, v{SX+r}, v{SX+4+r}')
        a(f'ds_write_b128 v112, v[{SX}:{SX+3}]')
    else:
        a(f'ds_write_b128 v112, v[{SX}:{SX+3}]')
        if NANCHK: a(f'v_cmp_u_f32 vcc, v{SX}, v{SX+1}')
        a(f'ds_write_b128 v112, v[{SX+4}:{SX+7}] offset:256')
        a('s_mov_b64 exec, s[26:27]')
        a(f'ds_write_b128 v113, v[{SACC}:{SACC+3}]')
        a('s_mov_b64 exec, -1')
    if NANCHK:
        a(f's_cbranch_vccnz {L("retry")}')
        a.label(L('cont'))
    stamp(a, 3)
    a('s_waitcnt lgkmcnt(0)')
    a('s_barrier')
    stamp(a, 4)
    t = ACC
    for k in range(2 if FOLDW else 4): a(f'ds_read_b64 v[{t+2*k}:{t+2*k+1}], v114 offset:{k*1024}')
    a(f'ds_read2_b32 v[{t+8}:{t+9}], v115 offset0:0 offset1:64')
    if w == F1_WAVE: a(f'v_lshl_add_u32 v{t+20}, v2, 3, s36')
    a('s_waitcnt lgkmcnt(0)')
    def f1(pos):
        if w == F1_WAVE and pos == F1_POS:
            exec_lo(a, R1)
            a(f'buffer_store_dword v2, v{t+20}, {SRD}, s20 offen {st}')
            a('s_mov_b64 exec, -1')
    f1(0)
    stamp(a, 5)
    sm, sx = t + 8, t
    a(f'v_add_f32 v{sm}, v{t+8}, v{t+9}')
    a(f'v_add_f32 v{t}, v{t}, v{t+2}')
    a(f'v_add_f32 v{t+1}, v{t+1}, v{t+3}')
    a(f'v_add_f32_dpp v{sm}, v{sm}, v{sm} row_ror:8 {D}')
    if FOLDW:
        a(f'v_mov_b32 v{t+9}, v{sm}')
        a(f'v_permlane32_swap_b32 v{t}, v{t+1}')
        a(f'v_add_f32 v{sx}, v{t}, v{t+1}')
        a(f'v_permlane16_swap_b32 v{sm}, v{t+9}')
        a(f'v_add_f32 v{sm}, v{sm}, v{t+9}')
    else:
        a(f'v_add_f32 v{t+4}, v{t+4}, v{t+6}')
        a(f'v_add_f32 v{t+5}, v{t+5}, v{t+7}')
        a(f'v_mov_b32 v{t+9}, v{sm}')
        a(f'v_add_f32 v{t}, v{t}, v{t+4}')
        a(f'v_add_f32 v{t+1}, v{t+1}, v{t+5}')
        a(f'v_permlane16_swap_b32 v{sm}, v{t+9}')
        a(f'v_add_f32 v{sm}, v{sm}, v{t+9}')
        a(f'v_permlane32_swap_b32 v{t}, v{t+1}')
        a(f'v_add_f32 v{sx}, v{t}, v{t+1}')
    mx = t + 2
    a(f'v_max_f32 v{mx}, v{sx}, v{sm}')
    f1(1)
    a(f'v_max_f32_dpp v{mx}, v{mx}, v{mx} quad_perm:[1,0,3,2] {D}')
    a(f'v_max_f32_dpp v{mx}, v{mx}, v{mx} quad_perm:[2,3,0,1] {D}')
    a(f'v_max_f32_dpp v{mx}, v{mx}, v{mx} row_half_mirror {D}')
    a(f'v_max_f32_dpp v{mx}, v{mx}, v{mx} row_mirror {D}')
    a(f'v_mov_b32 v{t+3}, v{mx}')
    a(f'v_permlane16_swap_b32 v{mx}, v{t+3}')
    a(f'v_max_f32 v{mx}, v{mx}, v{t+3}')
    f1(2)
    a(f'v_sub_f32 v{sx}, v{sx}, v{mx}')
    a(f'v_sub_f32 v{sm}, v{sm}, v{mx}')
    a(f'v_exp_f32 v{sx}, v{sx}')
    a(f'v_exp_f32 v{sm}, v{sm}')
    l = t + 3; u = t + 4; v = t + 5; lo = t + 6; hi = t + 7
    a(f'v_fma_f32 v{l}, v{sm}, s37, v{sx}')
    a(f'v_cndmask_b32 v{u}, v{sm}, v{sx}, s[38:39]')
    a(f'v_cndmask_b32 v{v}, v{sx}, v{sm}, s[38:39]')
    a(f'v_add_f32_dpp v{l}, v{l}, v{l} quad_perm:[1,0,3,2] {D}')
    a(f'v_mov_b32_dpp v{t+10}, v{v} quad_perm:[1,0,3,2] {D}')
    a(f'v_add_f32_dpp v{l}, v{l}, v{l} quad_perm:[2,3,0,1] {D}')
    a(f'v_cndmask_b32 v{lo}, v{t+10}, v{u}, s[38:39]')
    a(f'v_cndmask_b32 v{hi}, v{u}, v{t+10}, s[38:39]')
    f1(3)
    a(f'v_add_f32_dpp v{l}, v{l}, v{l} row_half_mirror {D}')
    a(f'v_add_f32_dpp v{l}, v{l}, v{l} row_mirror {D}')
    a(f'v_mov_b32 v{t+11}, v{l}')
    a(f'v_permlane16_swap_b32 v{l}, v{t+11}')
    a(f'v_add_f32 v{l}, v{l}, v{t+11}')
    f1(4)
    a(f'v_rcp_f32 v{l}, v{l}')
    a(f'v_mul_f32 v{lo}, v{lo}, v{l}')
    a(f'v_mul_f32 v{hi}, v{hi}, v{l}')
    a(f'v_cvt_pk_bf16_f32 v{lo}, v{lo}, v{hi}')
    a(f'v_min_u32 v{lo}, -2, v{lo}')
    a('s_mov_b64 exec, s[28:29]')
    a(f'buffer_store_dword v{lo}, v1, {SRD}, s20 offen {st}')
    a('s_mov_b64 exec, -1')
    f1(5)
    stamp(a, 6)
    a('s_barrier')
    if DMA_DELAY: a.nop(DMA_DELAY)
    if not NOBULK: a(f's_add_u32 s24, s24, {XSEG_B}')
    if not NOBULK: a(f's_add_u32 s35, s35, {GSH_B}')
    a(f's_xor_b32 s25, s25, {XSEG_B}')
    x_dma(a, w)
    a(f'v_xor_b32 v116, {XSEG_B}, v116')
    stamp_flush(a, w, 8, L('sf'))
    if STEPLOG and w in (1, 3):
        a('s_memtime s[40:41]' if w == 1 else 's_memrealtime s[40:41]')
        a('s_lshl_b32 s22, s17, 8')
        a('s_lshl_b32 s42, s19, 2')
        a('s_add_u32 s22, s22, s42')
        a(f's_add_u32 s22, s22, {STAMP_OFF + (4096 if w == 3 else 0)}')
        a('v_mov_b32 v118, 0')
        a('s_waitcnt lgkmcnt(0)')
        a('v_mov_b32 v119, s40')
        a(f'buffer_store_dword v119, v118, {SRD}, s22 offen')
    a('s_add_u32 s19, s19, 1')
    a('s_mov_b32 s20, s21')
    a(f's_cmp_lt_u32 s19, {NSTEPS-1}')
    a.flush()
    a(f's_cbranch_scc1 {L("loop")}')
    a(f's_branch {tag}_done')
    for i in range(EC_M):
        a.label(L(f'er{i}'))
        ml(o1[i])
        a('s_waitcnt vmcnt(0)')
        a('s_add_u32 s31, s31, 0x100')
        spin(a, L(f'e{i}'), ABORT)
    a.label(L('retry'))
    if NANCHK:
        a('s_cmp_lg_u32 s62, 0')
        a(f's_cbranch_scc1 {L("cont")}')
        a('s_waitcnt vmcnt(0) lgkmcnt(0)')
        a.label(L('rv'))
        for ks in range(7): ml(ks)
        a('s_waitcnt vmcnt(0)')
        ck2 = Checker(a, 118)
        ck2.add(M, 28); ck2.drain()
        a('v_cmp_eq_u32 vcc, -1, v118')
        a(f's_cbranch_vccz {L("rk")}')
        spin(a, L('rv'), ABORT)
        a.label(L('rk'))
        a('s_mov_b32 s62, 1')
        zero()
        a('s_add_u32 s31, s31, 1')
        if NPRE == 7: a(f's_branch {L("ld2")}')
        else:
            for x in xrd(0, 6, 0) + xrd(1, 6, 1): a(x)
            for ks in o1:
                for ti in range(7): a(S(ti, ks))
            a(f's_branch {L("ph2")}')
    else:
        a('s_waitcnt vmcnt(0) lgkmcnt(0)')
        a.nop(10)
        zero()
        a('s_add_u32 s31, s31, 1')
        spin(a, L('ld'), ABORT)

def init_score(a, w):
    AOP = 64
    a(f's_mul_i32 s31, s17, {CUW_B}')
    a(f's_add_u32 s31, s31, {WF_A}')
    units = [((kap * 4 + q) * TILE_B + ks * UNIT, wreg(ti, ks)) for ti, (kap, q) in enumerate(score_tiles(w)) for ks in range(7) if not SELF or ti >= 4]
    load_units(a, units, 's31')
    a(f's_mov_b32 s24, {XF_OFF + 7*w*1024}')
    a('s_mov_b32 s25, 0')
    x_dma(a, w)
    a('v_and_b32 v64, 7, v117')
    a('v_and_b32 v65, 1, v116')
    a('v_lshlrev_b32 v65, 2, v65')
    a('v_sub_u32 v64, v64, v65')
    a('v_lshrrev_b32 v65, 3, v117')
    a('v_lshl_add_u32 v66, v65, 2, v64')
    a('v_cmp_gt_u32 vcc, 4, v64')
    a('v_mov_b32 v67, 99')
    a('v_cndmask_b32 v66, v67, v66, vcc')
    a('v_mov_b32 v68, 0x3f80')
    a('v_mov_b32 v69, 0x3f800000')
    for d in range(4):
        a(f'v_mov_b32 v{4+d}, 0')
        a(f'v_cmp_eq_u32 vcc, {2*d}, v66')
        a(f'v_cndmask_b32 v{4+d}, v{4+d}, v68, vcc')
        a(f'v_cmp_eq_u32 vcc, {2*d+1}, v66')
        a(f'v_cndmask_b32 v{4+d}, v{4+d}, v69, vcc')
    a('v_lshrrev_b32 v64, 1, v116')
    a('v_lshrrev_b32 v65, 3, v117')
    a('v_cmp_eq_u32 s[26:27], v64, v65')
    a('v_and_b32 v66, 1, v116')
    a(f'v_add_u32 v64, {2*w}, v64')
    if FOLDW:
        a('v_lshrrev_b32 v67, 1, v116')
        a('v_lshlrev_b32 v67, 8, v67')
    else: a('v_lshlrev_b32 v67, 10, v64')
    a('v_lshl_add_u32 v67, v66, 9, v67')
    a('v_lshl_add_u32 v67, v117, 4, v67')
    a(f'v_add_u32 v112, {XP + (w*1024 if FOLDW else 0)}, v67')
    a('v_and_b32 v68, 7, v117')
    a('v_lshlrev_b32 v67, 8, v64')
    a('v_lshl_add_u32 v67, v68, 5, v67')
    a('v_lshl_add_u32 v67, v66, 4, v67')
    a(f'v_add_u32 v113, {MP}, v67')
    a('v_lshrrev_b32 v64, 5, v1')
    a('v_and_b32 v65, 31, v1')
    a('v_lshrrev_b32 v66, 3, v65')
    a('v_and_b32 v67, 7, v65')
    a('v_and_b32 v68, 3, v67')
    a('v_lshl_add_u32 v68, v66, 2, v68')
    a('v_lshrrev_b32 v69, 2, v67')
    a('v_lshl_add_u32 v68, v69, 4, v68')
    a(f'v_lshlrev_b32 v69, {11 if FOLDW else 12}, v64')
    a('v_lshl_add_u32 v69, v68, 4, v69')
    a(f'v_add_u32 v114, {XP + (w >> 1) * 512 + 2 * (w & 1) * 4}, v69')
    a(f'v_add_u32 v70, {2*w}, v64')
    a('v_lshlrev_b32 v69, 9, v66')
    a('v_lshl_add_u32 v69, v70, 5, v69')
    a('v_lshl_add_u32 v69, v67, 2, v69')
    a(f'v_add_u32 v115, {MP}, v69')
    a('v_and_b32 v71, 1, v1')
    a('v_cmp_eq_u32 s[38:39], 0, v71')
    a('v_cmp_gt_u32 vcc, 8, v65')
    a('s_or_b64 s[28:29], s[38:39], vcc')
    a('v_lshrrev_b32 v72, 1, v67')
    a('v_lshlrev_b32 v72, 2, v72')
    a('v_lshl_add_u32 v72, v70, 4, v72')
    a('s_lshl_b32 s22, s17, 9')
    a(f's_add_u32 s22, s22, {PX}')
    a('v_lshl_add_u32 v73, v66, 7, v72')
    a('v_add_u32 v73, s22, v73')
    a('s_lshl_b32 s22, s17, 7')
    a(f's_add_u32 s22, s22, {PM}')
    a('v_add_u32 v74, s22, v72')
    if VSM:
        a('v_bfe_u32 v72, v65, 1, 1')
        a('v_lshlrev_b32 v72, 7, v72')
        a('v_lshl_add_u32 v72, v70, 4, v72')
        a('v_bfe_u32 v73, v65, 2, 2')
        a('v_lshl_add_u32 v72, v73, 2, v72')
        a('v_lshrrev_b32 v73, 4, v65')
        a('v_lshl_add_u32 v73, v73, 8, v72')
        a('s_lshl_b32 s22, s17, 9')
        a(f's_add_u32 s22, s22, {PX}')
        a('v_add_u32 v73, s22, v73')
        a('s_lshr_b32 s22, s17, 1')
        a('s_lshl_b32 s22, s22, 8')
        a('s_and_b32 s34, s17, 1')
        a('s_lshl_b32 s34, s34, 3')
        a('s_add_u32 s22, s22, s34')
        a(f's_add_u32 s22, s22, {PM}')
        a('v_add_u32 v74, s22, v72')
    a('v_lshlrev_b32 v0, 2, v65')
    a(f's_and_b32 s22, s17, {R2-1}')
    a('s_lshl_b32 s22, s22, 7')
    a(f's_add_u32 s22, s22, {F2}')
    a(f'v_add_u32 v0, s22, v0')
    a('v_cndmask_b32 v1, v74, v73, s[38:39]')
    a('s_lshl_b32 s36, s17, 2')
    a(f's_add_u32 s36, s36, {F1}')
    a('s_mov_b32 s37, 0x3e800000')
    for r in range(64, 112): a(f'v_mov_b32 v{r}, 0')
    a('v_mov_b32 v116, v2')
    a('v_lshrrev_b32 v117, 4, v2')
    a('v_min_u32 v117, 55, v117')
    a('v_lshlrev_b32 v117, 7, v117')
    if w in (1, 2):
        nl = 13 if w == 1 else 14
        a('v_lshrrev_b32 v0, 4, v2')
        a(f'v_min_u32 v0, {nl-1}, v0')
        a(f's_mul_i32 s22, s17, {nl}')
        a('v_add_u32 v0, s22, v0')
        a('v_lshlrev_b32 v0, 7, v0')
        a(f'v_add_u32 v0, {2*EXCH_B if w == 1 else 2*XSEG_B - 7*w*1024}, v0')
        for k in (1, 2):
            a(f's_mov_b32 s22, {EXCH_OFF - k*EXCH_B if w == 1 else XF_OFF + 7*w*1024 - k*XSEG_B}')
            a(f'buffer_load_dword v119, v0, {SRD}, s22 offen sc1')
    if X_PRELOAD:
        a(f's_mul_i32 s22, s17, {4*XSEG_B}')
        a(f's_add_u32 s22, s22, {XF_OFF + w*XSEG_B}')
        for k in range(4):
            a(f'buffer_load_dword v119, v117, {SRD}, s22 offen')
            a(f's_add_u32 s22, s22, {56*128}')
    if SC_ALLPOLL:
        a('v_lshrrev_b32 v117, 4, v2')
        a('v_and_b32 v117, 31, v117')
        a('v_lshlrev_b32 v117, 2, v117')
        a(f'v_add_u32 v117, {F2}, v117')
    a(f's_mul_i32 s35, s17, {64*GSH_B}')
    a(f's_add_u32 s35, s35, {VO_OFF + TOUCH_AHEAD*GSH_B + w*56*128}')

YL = 0; ML = 8 * KB; WL = 16 * KB
def vtiles(w): return (6 * w, 6, 6) if w < 2 else (12 + 8 * (w - 2), 8, 7)
def vwreg(w, ti, ks):
    u = ti * 7 + ks
    return 256 + 8 * u if u < 32 else (176 if w < 2 else 120) + 8 * (u - 32)

VOK = 175
def vo_wait(a, L, ABORT, t):
    a(f's_branch {L("voc")}')
    a.label(L('vow'))
    a(f'buffer_load_dword v{VOK}, off, {SRD}, s35 sc1')
    a('s_waitcnt vmcnt(0)')
    a.label(L('voc'))
    a(f'v_readfirstlane_b32 s22, v{VOK}')
    a('s_cmp_eq_u32 s22, 56')
    a(f's_cbranch_scc1 {L("vod")}')
    a('s_sleep 1')
    spin(a, L('vow'), ABORT)
    a.label(L('vod'))
    a('s_add_u32 s35, s35, 2048')
    a('s_add_u32 s38, s19, 8')
    a('s_and_b32 s38, s38, -8')
    a('s_cmp_eq_u32 s19, 0')
    a('s_cselect_b32 s38, 4, s38')

def gen_value(a, w, st, tag):
    L = lambda n: f'{tag}_va{w}_{n}'
    ABORT = f'{tag}_abort'
    fin = w < 2
    t0, ntile, nreg = vtiles(w)
    M = 8; ACC = 36
    YA = 60 if fin else 112
    CK = 63
    def S(ti, ks, b=None):
        return f'v_smfmac_f32_16x16x64_bf16 v[{ACC+4*ti}:{ACC+4*ti+3}], v[{M+4*ks}:{M+4*ks+3}], {b or ureg(vwreg(w, ti, ks), 8)}, v3'
    def fold(p):
        A_ = ACC + 8 * p; B_ = A_ + 4
        o = [f'v_permlane32_swap_b32 v{A_+r}, v{B_+r}' for r in range(4)]
        o += [f'v_add_f32 v{A_+r}, v{A_+r}, v{B_+r}' for r in range(4)]
        o += [f'v_cvt_pk_bf16_f32 v{B_}, v{A_}, v{A_+1}', f'v_cvt_pk_bf16_f32 v{B_+1}, v{A_+2}, v{A_+3}', f'ds_write_b64 v{YA+p}, v[{B_}:{B_+1}]']
        return o
    def run(seq):
        last = {}
        for i, (ti, m, pre) in enumerate(seq): last[ti] = i
        pend = []; delay = 0
        for i, (ti, m, pre) in enumerate(seq):
            for x in pre: a(x)
            a(m)
            if delay: delay -= 1
            elif pend:
                a(pend.pop(0))
                if len(pend) > 12: a(pend.pop(0))
            p = ti // 2
            if i == max(last[2 * p], last[2 * p + 1]):
                pend += fold(p)
                if not delay: delay = 3
        for x in pend: a(x)
    a.label(L('loop'))
    step_bases(a)
    if not fin:
        for r in range(ACC, ACC + 4 * ntile): a(f'v_mov_b32 v{r}, 0')
    a('s_mov_b32 s30, 0')
    if fin:
        YT = 64; VOR = 80; LO = 156; HI = 160; PL = 164
        pr = lambda c: 8 + 4 * c if c < 7 else 144 + 4 * (c - 7)
        if SYNC:
            a('s_cmp_lg_u32 s19, s38')
            a(f's_cbranch_scc1 {L("vok")}')
            vo_wait(a, L, ABORT, PL)
            a.label(L('vok'))
        if T2SRV:
            a(f's_cmp_eq_u32 s19, {NSTEPS-1}')
            a(f's_cbranch_scc1 {tag}_done')
        def vol(lo, hi):
            for h in range(lo, hi):
                if h % 2 == 0: a(f's_add_u32 s22, s25, {h*1792}')
                a(f'buffer_load_dwordx4 v[{VOR+4*h}:{VOR+4*h+3}], v6, {SRD}, s22 offen offset:{(h & 1)*1792} sc1')
        vol(0, VO_PRE0)
        if not SLOW_FIRST: a('s_barrier')
        stamp(a, 0)
        if VO_SLEEP: a(f's_sleep {VO_SLEEP}')
        vol(VO_PRE0, VO_PRE)
        if SYNC: a(f'buffer_load_dword v{VOK}, off, {SRD}, s35 sc1')
        a('s_barrier')
        stamp(a, 1)
        for ks in range(7): a(f'ds_read_b128 v[{M+4*ks}:{M+4*ks+3}], v2 offset:{ML + ks*1024}')
        vol(VO_PRE, 16)
        a('s_waitcnt lgkmcnt(0)')
        run([(ti, S(ti, ks), []) for ti in range(ntile) for ks in range(7)])
        stamp(a, 2)
        a(f's_cmp_eq_u32 s19, {NSTEPS-1}')
        a(f's_cbranch_scc1 {L("last")}')
        a(f's_add_u32 s22, s20, {PX}')
        a(f's_add_u32 s34, s20, {PX + 4096}')
        a(f's_add_u32 s36, s20, {PM}')
        a('s_mov_b32 s37, 0')
        if STAMPS:
            a('s_waitcnt vmcnt(0)')
            stamp(a, 7)
        if VSM and B2_POS < 0:
            a('s_waitcnt lgkmcnt(0)')
            for r in range(ACC, ACC + 4 * ntile): a(f'v_mov_b32 v{r}, 0')
            a('s_barrier')
            for k in range(4): a(f'ds_read_b128 v[{YT+4*k}:{YT+4*k+3}], v2 offset:{YL + w*4096 + k*1024}')
            stamp(a, 3)
        if FIN_SLEEP: a(f's_sleep {FIN_SLEEP}')
        flagpoll(a, 4, 's20', PL, L('fw'), ABORT, PD_V, PG_V)
        stamp(a, 4)
        a('s_waitcnt lgkmcnt(0)')
        if VSM:
            pl = PLAIN_P and st == ''
            def pld(c, sc):
                so = ('s22', 's34', 's36')[c // 4]
                a(f'buffer_load_dwordx4 v[{pr(c)}:{pr(c)+3}], v2, {SRD}, {so} offen offset:{(c & 3)*1024}' + (' sc1' if sc else ''))
            def psm(c):
                B_ = VOR + 8 * c if c < 8 else YT + 8 * (c - 8)
                a(f'v_smfmac_f32_16x16x64_bf16 v[{LO}:{LO+3}], v[{pr(c)}:{pr(c)+3}], v[{B_}:{B_+7}], v3')
            zr = list(range(ACC, ACC + 4 * ntile)) if B2_POS >= 0 else []
            for c in range(NPP):
                pld(c, not pl)
                for _ in range(VZ):
                    if zr: a(f'v_mov_b32 v{zr.pop(0)}, 0')
            issued = NPP; nst = 0; q = list(range(NPP))
            if VST: stamp(a, 7)
            for c in range(10):
                if c == B2_POS:
                    a('s_barrier')
                    for k in range(4): a(f'ds_read_b128 v[{YT+4*k}:{YT+4*k+3}], v2 offset:{YL + w*4096 + k*1024}')
                    stamp(a, 3)
                a(f's_waitcnt vmcnt({len(q) - 1 - q.index(c)})' + (' lgkmcnt(0)' if c == 8 else ''))
                if c == 0: stamp(a, 5)
                if VST and c in (3, 6, 9): stamp(a, c // 3)
                psm(c)
                if c == F2_POS:
                    q.append('f')
                    exec_lo(a, R2)
                    a(f'buffer_store_dword v2, v7, {SRD}, s21 offen {st}')
                    a('s_mov_b64 exec, -1')
                    nst = 1
                if issued < 10:
                    pld(issued, not pl); q.append(issued); issued += 1
                for _ in range(2):
                    if zr: a(f'v_mov_b32 v{zr.pop(0)}, 0')
            a.label(L('ep'))
            while zr: a(f'v_mov_b32 v{zr.pop(0)}, 0')
            a(f'v_permlane32_swap_b32 v{LO}, v{LO+2}')
            a(f'v_permlane32_swap_b32 v{LO+1}, v{LO+3}')
            a(f'v_add_f32 v{HI}, v{LO}, v{LO+2}')
            a(f'v_add_f32 v{HI+1}, v{LO+1}, v{LO+3}')
            a(f'v_mov_b32 v{LO}, 0')
            a(f'v_mov_b32_dpp v{HI+2}, v{HI} row_ror:8 {D}')
            a(f'v_cmp_u_f32 vcc, v{HI}, v{HI+1}')
            a(f'v_mov_b32_dpp v{HI}, v{HI+1} row_ror:8 row_mask:0xf bank_mask:0xc')
            a(f'v_mov_b32 v{LO+1}, 0')
            a(f'v_mov_b32_dpp v{HI+1}, v{HI+2} quad_perm:[0,1,2,3] row_mask:0xf bank_mask:0x3')
            a(f'v_mov_b32 v{LO+2}, 0')
            a(f'v_cvt_pk_bf16_f32 v{HI}, v{HI}, v{HI+1}')
            a(f'v_mov_b32 v{LO+3}, 0')
            a(f'v_min_u32 v{HI}, -2, v{HI}')
            a(f's_cbranch_vccnz {L("rp")}')
            a.label(L('pc'))
            if w == 1: a('s_mov_b64 exec, s[26:27]')
            a(f'buffer_store_dword v{HI}, v1, {SRD}, s21 offen {st}')
        else:
            pl = PLAIN_P and st == ''
            if not pl: a.label(L('lp'))
            for c in range(10):
                so = ('s22', 's34', 's36')[c // 4]
                a(f'buffer_load_dwordx4 v[{pr(c)}:{pr(c)+3}], v5, {SRD}, {so} offen offset:{(c & 3)*1024}' + ('' if pl else ' sc1'))
                for r in range(ACC + 4 * c, min(ACC + 4 * c + 4, ACC + 4 * ntile)): a(f'v_mov_b32 v{r}, 0')
            if pl: a.label(L('lp'))
            ck = Checker(a, CK)
            nst = 0
            for c in range(10):
                if c == B2_POS:
                    a('s_cmp_lg_u32 s37, 0')
                    a(f's_cbranch_scc1 {L("nb2")}')
                    a('s_waitcnt lgkmcnt(0)')
                    a('s_barrier')
                    for k in range(4): a(f'ds_read_b128 v[{YT+4*k}:{YT+4*k+3}], v2 offset:{YL + w*4096 + k*1024}')
                    a.label(L('nb2'))
                    stamp(a, 3)
                a(f's_waitcnt vmcnt({9-c+nst})' + (' lgkmcnt(0)' if c == 8 else ''))
                if c < EC_P:
                    a.label(L(f'e{c}'))
                    r = pr(c)
                    a(f'v_max3_u32 v{PL}, v{r}, v{r+1}, v{r+2}')
                    a(f'v_max_u32 v{PL}, v{PL}, v{r+3}')
                    a(f'v_cmp_eq_u32 vcc, -1, v{PL}')
                    a(f's_cbranch_vccnz {L(f"er{c}")}')
                if c == 0: stamp(a, 5)
                if c == F2_POS:
                    exec_lo(a, R2)
                    a(f'buffer_store_dword v2, v7, {SRD}, s21 offen {st}')
                    a('s_mov_b64 exec, -1')
                    nst = 1
                if c >= EC_P: ck.add(pr(c))
                B_ = f'v[{pr(c)}:{pr(c)+3}]'
                for hi, acc in ((1, HI), (0, LO)):
                    A_ = VOR + 4 * (2 * c + hi) if c < 8 else YT + 4 * (2 * (c - 8) + hi)
                    a(f'v_mfma_f32_16x16x32_bf16 v[{acc}:{acc+3}], v[{A_}:{A_+3}], {B_}, ' + ('0' if c == 0 else f'v[{acc}:{acc+3}]'))
                    ck.emit()
            ck.drain()
            a(f'v_cmp_eq_u32 vcc, -1, v{CK}')
            for r in range(4): a(f'v_add_f32_dpp v{LO+r}, v{HI+r}, v{LO+r} row_ror:8 {D}')
            a(f's_cbranch_vccnz {L("rp")}')
            a(f'v_cvt_pk_bf16_f32 v{HI}, v{LO}, v{LO+1}')
            a(f'v_cvt_pk_bf16_f32 v{HI+1}, v{LO+2}, v{LO+3}')
            a(f'v_min_u32 v{HI}, -2, v{HI}')
            a(f'v_min_u32 v{HI+1}, -2, v{HI+1}')
            a('s_mov_b64 exec, s[26:27]')
            a(f'buffer_store_dwordx2 v[{HI}:{HI+1}], v1, {SRD}, s21 offen {st}')
        if T2SRV:
            a(f's_cmp_lg_u32 s19, {NSTEPS-2}')
            a(f's_cbranch_scc1 {L("nl")}')
            a(f's_mov_b32 s22, {MEMG_OFF + (NSTEPS-1)*7*KB}')
            if VSM: a(f'buffer_store_dword v{HI}, v1, {SRD}, s22 offen sc1')
            else: a(f'buffer_store_dwordx2 v[{HI}:{HI+1}], v1, {SRD}, s22 offen sc1')
            a('s_mov_b64 exec, -1')
            a(f's_branch {tag}_done')
            a.label(L('nl'))
        a('s_mov_b64 exec, -1')
        if SLOW_FIRST: a('s_barrier')
        stamp(a, 6)
        if not NOBULK: a(f's_add_u32 s25, s25, {GSH_B}')
        stamp_flush(a, 4 + w, 8, L('sf'), PL)
    else:
        STG = [76, 84, 92]; TP = 100
        TPS = [100, 104, 108, 4]
        t2st = [[f'buffer_store_dwordx4 v[{TPS[k]}:{TPS[k]+3}], v2, {SRD}, s24 offen offset:{k*1024} sc1'] for k in range(4)]
        t2st[-1].append(f's_add_u32 s24, s24, {8*KB}')
        t2fl = ['s_mov_b64 exec, 1', f'buffer_store_dword v117, v2, {SRD}, s34 offen sc1', 's_mov_b64 exec, -1', 's_add_u32 s34, s34, 8']
        def emit(gs):
            for g_ in gs:
                for x in g_: a(x)
        myks = [0, 1, 2, 3] if w == 2 else [4, 5, 6]
        oth = [k for k in range(7) if k not in myks]
        def mload():
            for ks in myks:
                a(f'buffer_load_dwordx4 v[{M+4*ks}:{M+4*ks+3}], v2, {SRD}, {"s20" if ks < 4 else "s23"} offen offset:{(ks & 3) * 1024} sc1')
        if HLP_SLEEP: a(f's_sleep {HLP_SLEEP}')
        flagpoll(a, 119, 's20', 76, L('fp'), ABORT, PD_H, PG_H)
        stamp(a, 0)
        mload()
        if PUBLISH and PUB_EARLY == 1: emit([t2fl] + t2st)
        if not SLOW_FIRST: a('s_barrier')
        if PUBLISH and PUB_EARLY == 2: emit([t2fl] + t2st)
        if PUBLISH and PUB_EARLY:
            a('s_waitcnt vmcnt(5)')
            a(f's_branch {L("ld2")}')
        a.label(L('ld'))
        a('s_waitcnt vmcnt(0)')
        if PUBLISH and PUB_EARLY: a.label(L('ld2'))
        ck = Checker(a, 84)
        for ks in myks: ck.add(M + 4 * ks)
        ck.drain()
        a('v_cmp_eq_u32 vcc, -1, v84')
        for ks in myks: a(f'ds_write_b128 v2, v[{M+4*ks}:{M+4*ks+3}] offset:{ML + ks*1024}')
        a(f's_cbranch_vccnz {L("retry")}')
        a('s_waitcnt lgkmcnt(0)')
        a('s_barrier')
        stamp(a, 1)
        for ks in oth: a(f'ds_read_b128 v[{M+4*ks}:{M+4*ks+3}], v2 offset:{ML + ks*1024}')
        if w == 2: a(f'ds_read_b128 v[92:95], v0')
        if VAL_TOUCH:
            a(f'buffer_load_dword v99, v118, {SRD}, {"s20" if w == 2 else "s39"} offen sc1')
            a(f's_add_u32 s39, s39, {XSEG_B}')
        if SELF_POISON:
            for r in range(76, 80): a(f'v_mov_b32 v{r}, -1')
            a('s_add_u32 s22, s21, s38')
            if w == 3: a('s_mov_b64 exec, 0x1f')
            a(f'buffer_store_dwordx4 v[76:79], v2, {SRD}, s22 offen {st}')
            if w == 3: a('s_mov_b64 exec, -1')
        if PUBLISH and not PUB_EARLY and not SLOW_FIRST and not T2SRV: emit([t2fl] + t2st)
        a('s_waitcnt lgkmcnt(0)')
        mg = ['s_mov_b64 exec, s[26:27]', f'buffer_store_dwordx4 v[92:95], v2, {SRD}, s36 offen sc1', 's_mov_b64 exec, -1', f's_add_u32 s36, s36, {7*KB}']
        if w == 2 and PUBLISH:
            if SLOW_FIRST:
                a(f's_cmp_lg_u32 s19, {NSTEPS-1}')
                a(f's_cbranch_scc1 {L("nmg")}')
            emit([mg])
            if SLOW_FIRST: a.label(L('nmg'))
        if T2SRV:
            a(f's_cmp_eq_u32 s19, {NSTEPS-1}')
            a(f's_cbranch_scc1 {tag}_done')
        lu = [(7, ks) for ks in range(7)]
        ru = [(t_, ks) for t_ in (6, 0, 1, 2, 3, 4, 5) for ks in range(7)]
        def wr(j):
            t_, ks = lu[j]; b = STG[j % 3]; off = (t_ - 7) * TILE_B + ks * UNIT
            return [f'ds_read_b128 v[{b}:{b+3}], v1 offset:{off}', f'ds_read_b128 v[{b+4}:{b+7}], v1 offset:{off+1024}']
        seq = []
        for j, (t_, ks) in enumerate(lu):
            pre = (wr(0) + wr(1) if j == 0 else []) + (wr(j + 2) if j + 2 < len(lu) else [])
            for k in range(2):
                r_ = ru.pop(0); seq.append((r_[0], S(*r_), pre if k == 0 else []))
            b = STG[j % 3]
            seq.append((t_, S(t_, ks, f'v[{b}:{b+7}]'), [f's_waitcnt lgkmcnt({2 * min(2, len(lu) - 1 - j)})']))
        for r_ in ru: seq.append((r_[0], S(*r_), []))
        run(seq)
        stamp(a, 2)
        a('s_waitcnt lgkmcnt(0)')
        a('s_barrier')
        for k in range(4):
            q = 2 * (w - 2) + (k >> 1); tp = k & 1
            if not T2SRV: a(f'ds_read_b128 v[{TPS[k]}:{TPS[k]+3}], v2 offset:{YL + tp*4096 + q*1024}')
        a(f's_cmp_eq_u32 s19, {NSTEPS-2 if T2SRV else NSTEPS-1}')
        a(f's_cbranch_scc1 {tag + "_done" if T2SRV else L("last")}')
        if SLOW_FIRST:
            if w == 2: a(f'ds_read_b128 v[92:95], v0')
            a('s_waitcnt vmcnt(0) lgkmcnt(0)')
            a('s_barrier')
            if PUBLISH: emit([t2fl] + t2st + ([mg] if w == 2 else []))
        else:
            a('s_waitcnt vmcnt(0) lgkmcnt(0)')
        stamp(a, 3)
        stamp_flush(a, 4 + w, 4, L('sf'), 76)
    a('s_add_u32 s19, s19, 1')
    a('s_mov_b32 s20, s21')
    a.flush()
    a(f's_branch {L("loop")}')
    if fin:
        a.label(L('last'))
        a('s_waitcnt lgkmcnt(0)')
        a('s_barrier')
        a(f's_branch {tag}_done')
        for c in range(EC_P):
            a.label(L(f'er{c}'))
            so = ('s22', 's34', 's36')[c // 4]
            a(f'buffer_load_dwordx4 v[{pr(c)}:{pr(c)+3}], v5, {SRD}, {so} offen offset:{(c & 3)*1024} sc1')
            a('s_waitcnt vmcnt(0)')
            a('s_add_u32 s31, s31, 0x1000000')
            spin(a, L(f'e{c}'), ABORT)
        a.label(L('rp'))
        if VSM:
            a('s_cmp_lg_u32 s37, 0')
            a(f's_cbranch_scc1 {L("pc")}')
            a.label(L('rv'))
            for c in range(10): pld(c, True)
            a('s_waitcnt vmcnt(0)')
            ck2 = Checker(a, CK)
            for c in range(10): ck2.add(pr(c))
            ck2.drain()
            a(f'v_cmp_eq_u32 vcc, -1, v{CK}')
            a(f's_cbranch_vccz {L("rk")}')
            spin(a, L('rv'), ABORT)
            a.label(L('rk'))
            a('s_mov_b32 s37, 1')
            a('s_add_u32 s31, s31, 0x10000')
            for c in range(10): psm(c)
            a.flush()
            a(f's_branch {L("ep")}')
            return
        a.nop(8)
        if PLAIN_P and st == '':
            for c in range(10):
                so = ('s22', 's34', 's36')[c // 4]
                a(f'buffer_load_dwordx4 v[{pr(c)}:{pr(c)+3}], v5, {SRD}, {so} offen offset:{(c & 3)*1024} sc1')
        a('s_mov_b32 s37, 1')
        a('s_add_u32 s31, s31, 0x10000')
        spin(a, L('lp'), ABORT)
    else:
        a.label(L('retry'))
        a('s_waitcnt lgkmcnt(0)')
        mload()
        a('s_add_u32 s31, s31, 1')
        spin(a, L('ld'), ABORT)
        a.label(L('last'))
        a('s_waitcnt lgkmcnt(0)')
        emit(t2st)
        a('s_waitcnt vmcnt(0)')
        emit([t2fl, t2fl])
        a(f's_branch {tag}_done')

def init_value(a, w, p):
    fin = w < 2
    t0, ntile, nreg = vtiles(w)
    YA = 60 if fin else 112
    a(f's_mul_i32 s31, s17, {CUW_B}')
    a(f's_add_u32 s31, s31, {WF_B}')
    units = [((t0 + ti) * TILE_B + ks * UNIT, vwreg(w, ti, ks)) for ti in range(nreg) for ks in range(7)]
    if BDEP: BDEP(16 * t0 // 28, (16 * (t0 + nreg) - 1) // 28)
    load_units(a, units, 's31')
    if fin and BDEP: BDEP(16 * (vtiles(w + 2)[0] + 7) // 28, (16 * (vtiles(w + 2)[0] + 8) - 1) // 28)
    if fin:
        th = vtiles(w + 2)[0] + 7
        for f in range(14):
            if f % 4 == 0:
                a(f's_mov_b32 m0, {WL + 3*w*TILE_B + f*1024}')
                a(f's_add_u32 s22, s31, {th*TILE_B + f*1024}')
            a(f'buffer_load_dwordx4 v2, {SRD}, s22 offen offset:{(f & 3)*1024}' + (' sc1' if MERGE else '') + ' lds')
            if f % 16 == 15: a('s_waitcnt vmcnt(24)')
    a('v_mov_b32 v72, v116')
    a('v_mov_b32 v73, v117')
    a('v_lshrrev_b32 v65, 1, v72')
    a('v_and_b32 v66, 1, v72')
    for pp in range(ntile // 2):
        a(f'v_add_u32 v67, {t0 + 2*pp}, v65')
        a('v_lshl_add_u32 v67, v67, 4, v73')
        a('v_mul_u32_u24 v68, 2341, v67')
        a('v_lshrrev_b32 v68, 16, v68')
        a('v_mul_u32_u24 v69, 28, v68')
        a('v_sub_u32 v69, v67, v69')
        a('v_lshrrev_b32 v70, 4, v69')
        a('v_and_b32 v69, 15, v69')
        if VSM:
            a('v_and_b32 v71, 1, v69')
            a('v_lshrrev_b32 v69, 1, v69')
            a('v_lshl_add_u32 v69, v71, 3, v69')
        a('v_lshlrev_b32 v71, 12, v70')
        a('v_lshl_add_u32 v71, v68, 8, v71')
        a('v_lshl_add_u32 v71, v69, 4, v71')
        a(f'v_lshl_add_u32 v{YA+pp}, v66, 3, v71')
    if fin:
        a('v_and_b32 v0, 31, v1')
        a('v_lshlrev_b32 v0, 2, v0')
        a(f'v_add_u32 v0, {F2}, v0')
        a('v_lshlrev_b32 v4, 2, v73')
        if R1 == 32:
            a('s_lshl_b32 s22, s17, 1')
            a(f's_add_u32 s22, s22, {w}')
        else: a(f's_and_b32 s22, s17, {R1-1}')
        a('s_lshl_b32 s22, s22, 7')
        a(f's_add_u32 s22, s22, {F1}')
        a(f'v_add_u32 v4, s22, v4')
        a('v_and_b32 v64, 7, v73')
        a('v_lshlrev_b32 v5, 4, v64')
        a('v_lshl_add_u32 v5, v72, 7, v5')
        a('v_lshrrev_b32 v65, 3, v73')
        a('v_lshl_add_u32 v5, v65, 9, v5')
        a('s_lshl_b32 s22, s17, 3')
        a(f's_add_u32 s22, s22, {F2 + 4*w}')
        a('v_lshl_add_u32 v7, v2, 3, s22')
        a(f'v_add_u32 v65, {16*w}, v73')
        a('v_min_u32 v65, 27, v65')
        a('v_mad_u32_u24 v65, v72, 28, v65')
        a('v_lshlrev_b32 v6, 4, v65')
        a('s_lshr_b32 s22, s17, 1')
        a('s_mul_i32 s22, s22, 7')
        a('s_and_b32 s34, s17, 1')
        a('s_lshl_b32 s35, s34, 2')
        a('v_add_u32 v70, s35, v72')
        a('v_mov_b32 v71, s34')
        a(f'v_mov_b32 v69, {w}')
        a('v_cmp_eq_u32 vcc, 3, v72')
        a('v_cndmask_b32 v70, v70, v72, vcc')
        a('v_cndmask_b32 v69, v69, v71, vcc')
        a('v_add_u32 v70, s22, v70')
        a('v_lshrrev_b32 v68, 1, v70')
        a('v_lshlrev_b32 v68, 8, v68')
        a('v_lshl_add_u32 v68, v69, 7, v68')
        a('v_and_b32 v69, 1, v70')
        a('v_lshl_add_u32 v68, v69, 3, v68')
        a('v_lshl_add_u32 v1, v64, 4, v68')
        a('v_cmp_gt_u32 s[26:27], 8, v73')
        if w == 1:
            a('v_cmp_gt_u32 vcc, 3, v72')
            a('s_and_b64 s[26:27], s[26:27], vcc')
        if VSM:
            a('v_lshrrev_b32 v65, 3, v73')
            a('v_lshl_add_u32 v66, v64, 1, v65')
            a(f'v_add_u32 v66, {16*w}, v66')
            a('v_min_u32 v66, 27, v66')
            a('v_mad_u32_u24 v66, v72, 28, v66')
            a('v_lshlrev_b32 v6, 4, v66')
            a('s_mul_i32 s22, s17, 28')
            a(f's_add_u32 s22, s22, {16*w}')
            a('v_lshl_add_u32 v70, v64, 1, s22')
            a('v_lshrrev_b32 v68, 4, v70')
            a('v_lshlrev_b32 v68, 8, v68')
            a('v_bfe_u32 v69, v70, 1, 1')
            a('v_lshl_add_u32 v68, v69, 7, v68')
            a('v_bfe_u32 v69, v70, 2, 2')
            a('v_lshl_add_u32 v68, v69, 2, v68')
            a('v_and_b32 v69, 1, v72')
            a('v_lshl_add_u32 v65, v69, 2, v65')
            a('v_lshrrev_b32 v69, 1, v72')
            a('v_lshl_add_u32 v65, v69, 1, v65')
            a('v_lshl_add_u32 v1, v65, 4, v68')
            a('v_cmp_gt_u32 s[26:27], 6, v64')
            for r in range(156, 160): a(f'v_mov_b32 v{r}, 0')
            for k in range(4): a(f'ds_write_b128 v2, v[156:159] offset:{YL + w*4096 + k*1024}')
        a(f's_mul_i32 s22, s17, {64*GSH_B}')
        a(f's_add_u32 s25, s22, {VO_OFF}')
        a('s_lshl_b32 s35, s17, 7')
        a(f's_add_u32 s35, s35, {CNT_OFF + VOC - 2048}')
        a('s_mov_b32 s38, 0')
        a(f'v_mov_b32 v{VOK}, 0')
    else:
        a(f's_mul_i32 s24, s17, {65*8*KB}')
        a(f's_add_u32 s24, s24, {T2_OFF + (w-2)*4096 + (8*KB if SLOW_FIRST else 0)}')
        a('s_mul_i32 s34, s17, 640')
        a(f's_add_u32 s34, s34, {CNT_OFF + T2F + 4*(w-2) + (8 if SLOW_FIRST else 0)}')
        a('s_mul_i32 s36, s17, 448')
        a('v_add_u32 v0, s36, v2')
        a(f'v_add_u32 v0, {ML}, v0')
        a(f's_add_u32 s36, s36, {MEMG_OFF}')
        a('v_cmp_gt_u32 s[26:27], 28, v1')
        a('v_and_b32 v119, 31, v1')
        a('v_lshlrev_b32 v119, 2, v119')
        a('s_add_u32 s22, s17, 16')
        a(f's_and_b32 s22, s22, {R2-1}')
        a('s_lshl_b32 s22, s22, 7')
        a(f's_add_u32 s22, s22, {F2}')
        a(f'v_add_u32 v119, s22, v119')
        nl = 13 if w == 2 else 14
        a(f'v_min_u32 v118, {nl-1}, v1')
        a(f's_mul_i32 s22, s17, {nl}')
        a('v_add_u32 v118, s22, v118')
        a('v_lshlrev_b32 v118, 7, v118')
        a(f'v_add_u32 v118, {2*EXCH_B if w == 2 else 2*XSEG_B}, v118')
        a(f's_mov_b32 s39, {XF_OFF}')
        a(f'v_add_u32 v1, {WL + 3*(w-2)*TILE_B}, v2')
        a('v_mov_b32 v117, 1')
        a('s_mul_i32 s38, s17, 1104')
        a(f's_add_u32 s38, s38, {EXCH_B + (w-2)*1024}')

def dbg_wait(a, P, t, abort):
    a('s_mov_b32 s30, 0')
    a.label(P)
    a(f'buffer_load_dword v{t+2}, v{t}, {DBG}, 0 offen sc1')
    a('s_waitcnt vmcnt(0)')
    a(f'v_cmp_ne_u32 vcc, v{t+2}, v{t+1}')
    a(f's_cbranch_vccz {P}_ok')
    a('s_sleep 4')
    a('s_add_u32 s30, s30, 1')
    a(f's_cmp_lt_u32 s30, {SLOW_LIMIT}')
    a(f's_cbranch_scc1 {P}')
    a(f's_branch {abort}')
    a.label(P + '_ok')

def dep_regs(a, cg_s, t, lane='v1'):
    a(f's_and_b32 s20, {cg_s}, 15')
    a('s_lshr_b32 s21, s20, 1')
    a('s_mul_i32 s21, s21, 56')
    a('s_add_u32 s22, s21, 55')
    a('s_lshr_b32 s21, s21, 6')
    a('s_lshr_b32 s22, s22, 6')
    a('s_add_u32 s21, s21, 24')
    a('s_add_u32 s22, s22, 24')
    a('s_add_u32 s20, s20, 8')
    a(f's_cmp_lt_u32 {cg_s}, 16')
    a('s_cselect_b32 s21, s20, s21')
    a('s_cselect_b32 s22, s20, s22')
    a(f's_cselect_b32 s20, {A_TGT}, {B_TGT}')
    a('s_lshl_b32 s21, s21, 2')
    a('s_lshl_b32 s22, s22, 2')
    a(f'v_mov_b32 v{t}, 124')
    a(f'v_mov_b32 v{t+1}, 128')
    a(f'v_writelane_b32 v{t}, s21, 0')
    a(f'v_writelane_b32 v{t}, s22, 1')
    a(f'v_writelane_b32 v{t+1}, s20, 0')
    a(f'v_writelane_b32 v{t+1}, s20, 1')

def xprep_loop(a, P):
    import prep
    a.label(f'{P}_l')
    a('s_waitcnt vmcnt(0) lgkmcnt(0)')
    a('v_mov_b32 v4, 1')
    a('v_mov_b32 v5, 20')
    wg_atomic(a, f'{P}_el', 's3')
    a('s_cmp_ge_u32 s3, 32')
    a(f's_cbranch_scc1 {P}_d')
    prep.xprep_item(a, P, 's3', st='sc1', signal=DBG)
    a(f's_branch {P}_l')
    a.label(f'{P}_d')

def wg_atomic(a, P, dst):
    a('v_mov_b32 v6, 160000')
    a('s_barrier')
    a('s_cmp_lg_u32 s16, 0')
    a(f's_cbranch_scc1 {P}1')
    a('s_mov_b64 exec, 1')
    a(f'buffer_atomic_add v4, v5, {DBG}, 0 offen sc0')
    a('s_waitcnt vmcnt(0)')
    a('ds_write_b32 v6, v4')
    a('s_waitcnt lgkmcnt(0)')
    a('s_mov_b64 exec, -1')
    a.label(f'{P}1')
    a('s_barrier')
    a('ds_read_b32 v4, v6')
    a('s_waitcnt lgkmcnt(0)')
    a(f'v_readfirstlane_b32 {dst}, v4')

def staff_check(a, okl, mode):
    a('s_mov_b32 s30, 0')
    a('v_mov_b32 v36, 0')
    a.label('ch_chk')
    a(f'buffer_load_dword v37, v36, {DBG}, 0 offen sc1')
    a('s_waitcnt vmcnt(0)')
    a('v_readfirstlane_b32 s22, v37')
    a('s_and_b32 s22, s22, 0xffff')
    a('s_cmp_ge_u32 s22, 32')
    a('s_cbranch_scc1 ch_go_end')
    a('s_sleep 16')
    a('s_add_u32 s30, s30, 1')
    a('s_cmp_lt_u32 s30, 64')
    a('s_cbranch_scc1 ch_chk')
    a.label('ch_go_end')
    a('v_mov_b32 v6, 160016')
    a('v_mov_b32 v4, s22')
    a('s_cmp_lg_u32 s16, 0')
    a('s_cbranch_scc1 ch_dec')
    a('ds_write_b32 v6, v4')
    a('s_waitcnt lgkmcnt(0)')
    a.label('ch_dec')
    a('s_barrier')
    a('ds_read_b32 v4, v6')
    a('s_waitcnt lgkmcnt(0)')
    a('v_readfirstlane_b32 s22, v4')
    a('s_cmp_ge_u32 s22, 32')
    a(f's_cbranch_scc1 {okl}')
    a('v_mov_b32 v4, 0x10001')
    a(f's_mov_b32 s18, {mode}')
    a('s_branch ch_take')

def worker_s4d(a):
    import s4d
    s4d.s4d_setup(a)
    a.label('wk_loop')
    a('v_mov_b32 v4, 1')
    a('v_mov_b32 v5, 4')
    wg_atomic(a, 'wk_el', 's3')
    a('v_and_b32 v4, 15, v1')
    a('s_cmp_ge_u32 s3, 112')
    a('s_cbranch_scc1 wk_done')
    s4d.s4d_item(a, 'wk', 's3')
    a('s_branch wk_loop')
    a.label('wk_done')

def poll_eq(a, P, srd, soff, target, sleep=4):
    a('v_mov_b32 v8, 0')
    a('s_mov_b32 s30, 0')
    a.label(P)
    a(f'buffer_load_dword v9, v8, {srd}, {soff} offen sc1')
    a('s_waitcnt vmcnt(0)')
    a(f'v_cmp_ne_u32 vcc, {target}, v9')
    a(f's_cbranch_vccz {P}_ok')
    a(f's_sleep {sleep}')
    a('s_add_u32 s30, s30, 1')
    a(f's_cmp_lt_u32 s30, {SLOW_LIMIT}')
    a(f's_cbranch_scc1 {P}')
    a('s_branch cA_abort')
    a.label(P + '_ok')
def flag_wait(a, P):
    a('s_cmp_lg_u32 s97, 0')
    a(f's_cbranch_scc1 {P}_sk')
    a('s_movk_i32 s20, 128')
    poll_eq(a, P, DBG, 's20', 1)
    a('s_mov_b32 s97, 1')
    a.label(P + '_sk')
def ac_wait(a, P):
    a('s_lshl_b32 s20, s17, 7')
    a(f's_add_u32 s20, s20, {CNT_OFF + AC}')
    poll_eq(a, P, SRD, 's20', 7, sleep=6)

def worker_all(a):
    import s4d, gemm, tok, prep
    JS = DBG if MERGE else SRD
    JO = 64 if MERGE else CNT_OFF + JOBC
    NA = 112 if MERGE == 1 else 0
    NJ = 1104 + NA
    tok.PEEK = JS
    a('s_load_dwordx2 s[36:37], s[0:1], 112')
    a('s_waitcnt lgkmcnt(0)')
    a(f's_mov_b32 s92, s36\ns_and_b32 s93, s37, 0xffff\ns_mov_b32 s94, {2048*896*2}\ns_mov_b32 s95, 0x20000')
    def ask():
        lb = a.newlabel('ask')
        a('s_cmp_lg_u32 s16, 0')
        a(f's_cbranch_scc1 {lb}')
        a('v_mov_b32 v250, 1')
        a(f'v_mov_b32 v251, {JO}')
        a('s_mov_b64 exec, 1')
        a(f'buffer_atomic_add v250, v251, {JS}, 0 offen sc0')
        a('s_mov_b64 exec, -1')
        a.label(lb)
    a('s_mov_b32 s96, 0')
    if MERGE:
        a('s_cmp_lg_u32 s101, -1')
        a('s_mov_b32 s3, s101')
        a('s_mov_b32 s101, -1')
        a('s_cbranch_scc1 wk_have')
    ask()
    a('s_branch wk_next')
    a.label('wk_loop')
    a('s_waitcnt vmcnt(0) lgkmcnt(0)')
    a('s_cmp_eq_u32 s96, 1')
    a('s_cbranch_scc1 wk_ask')
    a('s_mov_b32 s96, 1')
    staff_check(a, 'wk_ask', 0)
    a.label('wk_ask')
    a('v_readfirstlane_b32 s22, v250')
    a(f's_cmp_ge_u32 s22, {NJ}')
    a('s_cbranch_scc1 wk_next')
    ask()
    a.label('wk_next')
    evlog(a, 9005)
    a('v_mov_b32 v6, 160000')
    a('s_waitcnt vmcnt(0)')
    a('s_barrier')
    a('s_cmp_lg_u32 s16, 0')
    a('s_cbranch_scc1 wk_n1')
    a('s_mov_b64 exec, 1')
    a('ds_write_b32 v6, v250')
    a('s_mov_b64 exec, -1')
    a('s_waitcnt lgkmcnt(0)')
    a.label('wk_n1')
    a('s_barrier')
    a('ds_read_b32 v4, v6')
    a('s_waitcnt lgkmcnt(0)')
    a('v_readfirstlane_b32 s3, v4')
    a.label('wk_have')
    evlog(a, 's3')
    a(f's_cmp_ge_u32 s3, {NJ}')
    a('s_cbranch_scc1 wk_done')
    a('v_mov_b32 v250, 0')
    a(f'v_mov_b32 v251, {JO}')
    a('v_and_b32 v1, 63, v0')
    a('v_lshlrev_b32 v2, 4, v1')
    a('v_lshrrev_b32 v3, 4, v1')
    a('v_and_b32 v4, 15, v1')
    if MERGE == 3: flag_wait(a, 'wk_fw')
    if MERGE == 1:
        a('s_cmp_ge_u32 s3, 112')
        a('s_cbranch_scc1 wk_np')
        prep.prep_item(a, 'wpa', 's3', st='sc1', mode='A')
        flag_wait(a, 'wk_fa')
        a('s_waitcnt vmcnt(0)')
        a('s_barrier')
        a('v_mov_b32 v250, 0')
        a('s_cmp_lg_u32 s16, 0')
        a('s_cbranch_scc1 wk_loop')
        a('s_lshl_b32 s20, s17, 7')
        a(f's_add_u32 s20, s20, {CNT_OFF + AC}')
        a('v_mov_b32 v5, 1')
        a('v_mov_b32 v6, 0')
        a('s_mov_b64 exec, 1')
        a(f'buffer_atomic_add v5, v6, {SRD}, s20 offen')
        a('s_mov_b64 exec, -1')
        a('s_branch wk_loop')
        a.label('wk_np')
        a('s_sub_u32 s3, s3, 112')
        flag_wait(a, 'wk_fw')
    a('s_cmp_ge_u32 s3, 592')
    a('s_cbranch_scc1 wk_tok')
    a('s_cmp_ge_u32 s3, 480')
    a('s_cbranch_scc1 wk_s4d')
    a('s_cmp_ge_u32 s3, 256')
    a('s_cbranch_scc1 wk_full')
    a('s_cmp_ge_u32 s3, 224')
    a('s_cbranch_scc1 wk_srv')
    a('s_cmp_ge_u32 s3, 112')
    a('s_cselect_b32 s18, 1, 0')
    a('s_cselect_b32 s20, 112, 0')
    a('s_sub_u32 s20, s3, s20')
    a('s_and_b32 s17, s20, 15')
    a('s_add_u32 s17, s17, 16')
    a('s_lshr_b32 s34, s20, 4')
    a('s_lshl_b32 s34, s34, 1')
    a('s_add_u32 s35, s34, 2')
    if RB1_DELAY:
        a('s_cmp_eq_u32 s18, 0')
        a('s_cbranch_scc1 wk_gemm')
        for _ in range(RB1_DELAY): a('s_sleep 127')
    a('s_branch wk_gemm')
    a.label('wk_full')
    a('s_sub_u32 s20, s3, 224')
    a('s_and_b32 s17, s20, 15')
    a('s_lshr_b32 s18, s20, 4')
    a('s_cmp_lt_u32 s18, 8')
    a('s_cselect_b32 s21, 16, 0')
    a('s_add_u32 s17, s17, s21')
    a('s_and_b32 s18, s18, 7')
    a('s_mov_b32 s34, 0\ns_mov_b32 s35, 14')
    a.label('wk_gemm')
    if MERGE == 1:
        a('s_cmp_ge_u32 s17, 16')
        a('s_cbranch_scc1 wk_g2')
        ac_wait(a, 'wk_aw')
        a.label('wk_g2')
        evlog(a, 9006)
    gemm.gemm_body(a, 'wg', 's18', 's17', st='sc1', signal=True, ld='sc1' if MERGE else '')
    a('s_branch wk_loop')
    a.label('wk_srv')
    import t2srv
    a('s_and_b32 s18, s3, 15')
    a('s_lshr_b32 s19, s3, 4')
    a('s_and_b32 s19, s19, 1')
    t2srv.t2srv_body(a, 'ws', 's18', 's19', 'cA_abort', ld='sc1' if MERGE else '')
    a('v_mov_b32 v250, 0')
    a('s_branch wk_loop')
    a.label('wk_s4d')
    a('s_sub_u32 s3, s3, 480')
    s4d.s4d_setup(a)
    s4d.s4d_item(a, 'wk', 's3')
    a('s_branch wk_loop')
    a.label('wk_tok')
    a('s_sub_u32 s3, s3, 592')
    a('s_cmp_ge_u32 s3, 512')
    a('s_cbranch_scc1 wk_done')
    a('s_lshr_b32 s17, s3, 3')
    a('s_and_b32 s18, s3, 3')
    a('s_bitcmp1_b32 s3, 2')
    a('s_cbranch_scc1 wk_toko')
    tok.tokp_body(a, 's17', 's18', ld='sc1', st='sc1', sync='wp', ldx='sc1' if MERGE else '')
    a('s_branch wk_loop')
    a.label('wk_toko')
    tok.toko_body(a, 's17', 's18', ld='sc1', sync='wo', OUT='s[92:95]')
    a('s_branch wk_loop')
    a.label('wp_abort')
    a.label('wo_abort')
    a('s_branch cA_abort')
    a.label('wk_done')

def role_tail(a, late=None):
    lane_consts(a)
    a('s_mov_b32 s19, 0')
    a(f's_mov_b32 s20, {EXCH_OFF}')
    if STAMPS: a('s_mov_b32 s63, s17')
    a('s_lshr_b32 s22, s17, 4')
    a('s_lshl_b32 s22, s22, 2')
    a('s_add_u32 s22, s22, s16')
    a('s_and_b32 s17, s17, 15')
    for p in range(8):
        a(f's_cmp_eq_u32 s22, {p}')
        a(f's_cbranch_scc1 ch_init{p}')
    a('s_branch ch_end')
    for p in range(8):
        a.label(f'ch_init{p}')
        if p < 4: init_score(a, p)
        else: init_value(a, p - 4, p)
        if late: late(p)
        a('s_mov_b32 s30, 0')
        a('v_mov_b32 v36, 0')
        a.label(f'ch_md{p}')
        a(f'buffer_load_dword v37, v36, {DBG}, 0 offen sc1')
        a('s_waitcnt vmcnt(0)')
        a('v_readfirstlane_b32 s22, v37')
        a('s_and_b32 s31, s22, 0xffff')
        a('s_cmp_ge_u32 s31, 32')
        a(f's_cbranch_scc1 ch_go{p}')
        a('s_sleep 2')
        a('s_add_u32 s30, s30, 1')
        a(f's_cmp_lt_u32 s30, {SLOW_LIMIT}')
        a(f's_cbranch_scc1 ch_md{p}')
        a('s_branch ch_end')
        a.label(f'ch_go{p}')
        evlog(a, 9003)
        if DIAG: a('s_memtime s[32:33]')
        a('s_mov_b32 s31, 0')
        if p in (4, 5):
            for r in range(36, 60): a(f'v_mov_b32 v{r}, 0')
        a('s_lshr_b32 s22, s22, 16')
        a('s_cmp_lg_u32 s22, 0')
        role = 'sc' if p < 4 else 'va'
        a(f's_cbranch_scc1 cB_{role}{p & 3}_loop')
        a(f's_branch cA_{role}{p & 3}_loop')
    for tag, st in (('cA', ''), ('cB', 'sc1')):
        for w in range(4): gen_score(a, w, st, tag)
        for w in range(4): gen_value(a, w, st, tag)
        a.label(f'{tag}_abort')
        a('v_mov_b32 v4, 0xdead')
        a('v_mov_b32 v5, 16')
        a(f'buffer_store_dword v4, v5, {DBG}, 0 offen')
        a('s_branch ch_end')
        a.label(f'{tag}_done')
        evlog(a, 9004)
        if STAMPS and STAMP_CYC:
            a('s_cmp_lg_u32 s16, 0')
            a('s_cbranch_scc1 ch_end')
            a('s_lshl_b32 s22, s63, 10')
            a(f's_add_u32 s22, s22, {STAMP_OFF + 65536}')
            a('s_mov_b32 s30, 0')
            a('s_mov_b64 exec, 1')
            a.label(f'{tag}_cal')
            a('s_memtime s[40:41]')
            a('s_memrealtime s[42:43]')
            a('s_waitcnt lgkmcnt(0)')
            a('v_mov_b32 v4, s40')
            a('v_mov_b32 v5, s42')
            a(f'buffer_store_dwordx2 v[4:5], off, {SRD}, s22')
            a('s_add_u32 s22, s22, 8')
            a('s_add_u32 s30, s30, 1')
            a('s_cmp_lt_u32 s30, 128')
            a(f's_cbranch_scc1 {tag}_cal')
        if DIAG:
            a('s_memtime s[60:61]')
            a('s_waitcnt lgkmcnt(0)')
            a('s_sub_u32 s60, s60, s32')
            a('v_mov_b32 v4, s60')
            a('v_mov_b32 v5, 8')
            a(f'buffer_store_dword v4, v5, {DBG}, 0 offen')
            a('v_mov_b32 v4, s31')
            a('v_mov_b32 v5, 12')
            a('s_mov_b64 exec, 1')
            a(f'buffer_atomic_add v4, v5, {DBG}, 0 offen')
        a('s_branch ch_end')

def gen_chain_kernel(name='chain_kernel', worker=worker_s4d):
    a = Asm()
    a.raw(kernel_header(name))
    a('s_cmp_ge_u32 s2, 256')
    a('s_cbranch_scc1 ch_end')
    a('s_load_dwordx2 s[4:5], s[0:1], 120')
    a('s_load_dwordx2 s[6:7], s[0:1], 128')
    if CODE_PF: code_prefetch(a, name, 'ch_end', 130000, 60)
    a('s_getreg_b32 s3, hwreg(HW_REG_XCC_ID)')
    a('s_and_b32 s3, s3, 15')
    a('v_lshrrev_b32 v1, 6, v0')
    a('v_readfirstlane_b32 s16, v1')
    a('s_waitcnt lgkmcnt(0)')
    a('s_mov_b32 s8, s6\ns_and_b32 s9, s7, 0xffff\ns_mov_b32 s10, 0x10000000\ns_mov_b32 s11, 0x20000')
    a('s_mov_b32 s12, s4\ns_and_b32 s13, s5, 0xffff\ns_mov_b32 s14, 256\ns_mov_b32 s15, 0x20000')
    if EVLOG:
        a('s_lshl_b32 s100, s2, 2')
        a('s_add_u32 s100, s100, s16')
        a('s_lshl_b32 s100, s100, 8')
        a(f's_add_u32 s100, s100, {EV_OFF}')
    evlog(a, 9000)
    if MERGE:
        import prep
        a('s_mov_b32 s97, 0')
        a('s_mov_b32 s91, s3')
        a('v_and_b32 v1, 63, v0')
        a('v_lshlrev_b32 v2, 4, v1')
        a('v_lshrrev_b32 v3, 4, v1')
        a('v_and_b32 v4, 15, v1')
        a('s_cmp_lg_u32 s16, 0')
        a('s_cbranch_scc1 m_a1')
        a(f's_cmp_eq_u32 s3, {XCD_SEL}')
        a('s_cselect_b32 s20, 0, 64')
        a('v_accvgpr_write_b32 a255, 1')
        a('s_mov_b64 exec, 1')
        a(f'buffer_atomic_add a255, v2, {DBG}, s20 offen sc0')
        a('s_mov_b64 exec, -1')
        a.label('m_a1')
        prep.xall_pre(a, 's2')
        a('s_cmp_ge_u32 s2, 224')
        a('s_cbranch_scc1 m_w')
        prep.prep_item(a, 'mpb', 's2', st='sc1', mode='Bhalf' if MERGE == 1 else 'mix', defer=(MERGE == 3))
        a('s_branch m_e')
        a.label('m_w')
        a('s_waitcnt vmcnt(0)')
        a.label('m_e')
        prep.xall_post(a, 'mpx', 's2', 'sc1', wait=False)
        a('v_mov_b32 v6, 160000')
        a('s_waitcnt vmcnt(0) lgkmcnt(0)')
        a('s_barrier')
        a('s_cmp_lg_u32 s16, 0')
        a('s_cbranch_scc1 m_b1')
        a('v_mov_b32 v4, 1')
        a('v_mov_b32 v5, 96')
        a('v_accvgpr_read_b32 v7, a255')
        a('s_mov_b64 exec, 1')
        a(f'buffer_atomic_add v4, v5, {DBG}, 0 offen sc0')
        a('ds_write_b32 v6, v7')
        a('s_waitcnt lgkmcnt(0)')
        a('s_mov_b64 exec, -1')
        a.label('m_b1')
        a('s_barrier')
        a('ds_read_b32 v7, v6')
        a('s_cmp_lg_u32 s16, 0')
        a('s_cbranch_scc1 m_b2')
        a('s_waitcnt vmcnt(0)')
        a('v_readfirstlane_b32 s20, v4')
        a('s_cmp_lg_u32 s20, 255')
        a('s_cbranch_scc1 m_b2')
        a('v_mov_b32 v4, 1')
        a('v_mov_b32 v5, 128')
        a('s_mov_b64 exec, 1')
        a(f'buffer_store_dword v4, v5, {DBG}, 0 offen sc1')
        a('s_mov_b64 exec, -1')
        a.label('m_b2')
        a('s_waitcnt lgkmcnt(0)')
        a('v_readfirstlane_b32 s101, v7')
        evlog(a, 9001)
        a(f's_cmp_lg_u32 s91, {XCD_SEL}')
        a('s_cbranch_scc1 ch_worker')
        a('s_and_b32 s17, s101, 0xffff')
        a('s_mov_b32 s101, -1')
        a('s_cmp_lt_u32 s17, 32')
        a('s_cbranch_scc1 ch_role')
        a('s_branch ch_worker')
    else:
        a(f's_cmp_lg_u32 s3, {XCD_SEL}')
        a('s_cbranch_scc1 ch_worker')
    a('v_mov_b32 v4, 1')
    a('s_mov_b32 s18, 0')
    a.label('ch_take')
    a('v_mov_b32 v5, 0')
    wg_atomic(a, 'ch_el', 's17')
    a('s_and_b32 s17, s17, 0xffff')
    a('s_cmp_lt_u32 s17, 32')
    a('s_cbranch_scc1 ch_role')
    a('s_cmp_eq_u32 s18, 0')
    a('s_cbranch_scc1 ch_worker')
    a('s_branch ch_end')
    a.label('ch_role')
    if MERGE:
        flag_wait(a, 'ch_fw')
        if MERGE == 1:
            a('s_cmp_ge_u32 s17, 16')
            a('s_cbranch_scc1 ch_r2')
            ac_wait(a, 'ch_aw')
            a.label('ch_r2')
        evlog(a, 9002)
    role_tail(a)
    a.label('ch_worker')
    if worker: worker(a)
    if worker is not worker_all: staff_check(a, 'ch_end', 1)
    a.label('ch_end')
    a('s_endpgm')
    return a

if __name__ == '__main__':
    import sys
    for x in sys.argv[2:]:
        if x == 'stamps': STAMPS = True
        elif '=' in x:
            k, v = x.split('='); globals()[k] = int(v)
    a = gen_chain_kernel()
    out = ['; @launch kernel=chain_kernel grid=(256,1,1) block=(256,1,1) lds=163840',
           '.amdgcn_target "amdgcn-amd-amdhsa--gfx950"', '.text', a.text(), '.section .rodata,"a"', kernel_desc('chain_kernel')]
    open(sys.argv[1], 'w').write('\n'.join(out) + '\n')
    print('instructions', a.count)
```

```python
from asmlib import *
from layout import *
WS = 's[8:11]'
PB = 28 * KB

def gemm_xpre(a, rb_s, NT=4, va=5):
    a(f's_lshl_b32 s20, {rb_s}, 2')
    a('s_add_u32 s20, s20, s16')
    a(f's_mul_i32 s21, s20, {16*896*NT}')
    a(f'v_mul_u32_u24 v{va}, 896, v4')
    a(f'v_lshl_add_u32 v{va}, v3, 4, v{va}')
    for j in range(NT):
        if j: a(f's_add_u32 s21, s21, {16*896}')
        for kk in range(14):
            f = 14 * j + kk
            a(f'buffer_load_dwordx4 a[{4*f}:{4*f+3}], v{va}, s[52:55], s21 offen offset:{kk*64}')

def gemm_body(a, P, rb_s, cg_s, st='', signal=False, ld='', xpre=None, NT=4):
    a(f's_lshl_b32 s20, {rb_s}, {4 if NT == 4 else 3}')
    a(f's_lshl_b32 s21, s16, {2 if NT == 4 else 1}')
    a('s_add_u32 s20, s20, s21')
    a(f's_mul_i32 s21, s20, {14*KB}')
    a(f's_add_u32 s21, s21, {XF_OFF}')
    if xpre:
        a(f's_cmp_lg_u32 {xpre}, 0')
        a(f's_cbranch_scc1 {P}_xp')
    for f in range(14 * NT):
        if f % 4 == 0: a(f's_add_u32 s22, s21, {f*1024}')
        a(f'buffer_load_dwordx4 a[{4*f}:{4*f+3}], v2, {WS}, s22 offen offset:{(f & 3)*1024} {ld}')
    if xpre: a.label(f'{P}_xp')
    a('s_waitcnt vmcnt(40)')
    a(f's_mul_i32 s23, {cg_s}, {CUW_B}')
    a('s_and_b32 s22, s16, 1')
    a('s_mul_i32 s22, s22, 7168')
    a('s_add_u32 s23, s23, s22')
    a(f's_add_u32 s23, s23, {WF_A}')
    a('s_lshr_b32 s22, s16, 1')
    a(f's_mul_i32 s22, s22, {TILE_B}')
    a('s_add_u32 s23, s23, s22')
    a('s_mul_i32 s27, s16, 7168')
    a('s_lshr_b32 s28, s20, 1')
    if NT == 4:
        a(f's_cmp_lt_u32 {cg_s}, 16')
        a(f's_cbranch_scc0 {P}_vo')
    for path in (('f', 'vo') if NT == 4 else ('vo',)):
        isF = path == 'f'
        L = lambda n: f'{P}_{path}_{n}'
        if not isF: a.label(f'{P}_vo')
        if isF: a('s_add_u32 s23, s23, s22')
        def dma(jreg, bufreg):
            if isF:
                a(f's_lshr_b32 s24, {jreg}, 1')
                a('s_lshl_b32 s24, s24, 2')
                a(f's_and_b32 s25, {jreg}, 1')
                a('s_add_u32 s24, s24, s25')
            else:
                a(f's_lshl_b32 s24, {jreg}, 1')
            a(f's_mul_i32 s24, s24, {TILE_B}')
            a('s_add_u32 s24, s24, s23')
            a(f's_cmp_lt_u32 {jreg}, s35')
            a('s_cselect_b32 s24, s24, 0x10000000')
            a(f's_add_u32 m0, {bufreg}, s27')
            for f in range(7):
                if f == 4:
                    a('s_add_u32 m0, m0, 4096')
                    a('s_add_u32 s24, s24, 4096')
                a(f'buffer_load_dwordx4 v2, {WS}, s24 offen offset:{(f & 3)*1024} {ld} lds')
        if isF:
            a('s_lshl_b32 s29, s28, 4')
            a(f's_add_u32 s29, s29, {cg_s}')
            a(f's_mul_i32 s29, s29, {GSH_B}')
            a(f's_add_u32 s29, s29, {F_OFF}')
        else:
            a(f's_sub_u32 s29, {cg_s}, 16')
            a('s_lshl_b32 s29, s29, 6')
            a('s_add_u32 s29, s29, s28')
            a(f's_mul_i32 s29, s29, {GSH_B}')
            a(f's_add_u32 s29, s29, {VO_OFF}')
            a('v_mul_u32_u24 v6, 28, v3')
        a('s_mov_b32 s31, 0')
        dma('s34', 's31')
        a('s_add_u32 s30, s34, 1'); a(f's_mov_b32 s31, {PB}')
        dma('s30', 's31')
        a('s_mov_b32 s19, s34')
        a('s_mov_b32 s32, 0')
        a(f's_mov_b32 s33, {2*PB}')
        a('s_waitcnt vmcnt(7)')
        a(f's_branch {L("in")}')
        a.label(L('loop'))
        a(f's_waitcnt vmcnt({7 + NT})')
        a.label(L('in'))
        a('s_barrier')
        a('s_add_u32 s30, s19, 2')
        dma('s30', 's33')
        a('v_add_u32 v5, s32, v2')
        FR = 8; NF = 8; ACC = 40
        order = [(kk, tau) for kk in range(14) for tau in range(2)]
        def rd(i):
            kk, tau = order[i]; r = FR + 4 * (i % NF)
            a(f'ds_read_b128 v[{r}:{r+3}], v5 offset:{(tau*14 + kk)*1024}')
        PF = 6
        for i in range(PF): rd(i)
        for i, (kk, tau) in enumerate(order):
            if i + PF < 28: rd(i + PF)
            a(f's_waitcnt lgkmcnt({min(PF, 27 - i)})')
            r = FR + 4 * (i % NF)
            for j in range(NT):
                d = ACC + 16 * tau + 4 * j; x = (j * 14 + kk) * 4
                c = '0' if kk == 0 else f'v[{d}:{d+3}]'
                if isF: a(f'v_mfma_f32_16x16x32_bf16 v[{d}:{d+3}], v[{r}:{r+3}], a[{x}:{x+3}], {c}')
                else: a(f'v_mfma_f32_16x16x32_bf16 v[{d}:{d+3}], a[{x}:{x+3}], v[{r}:{r+3}], {c}')
        O = 72
        if isF:
            a('s_lshl_b32 s24, s19, 10')
            a('s_add_u32 s24, s24, s29')
            for j in range(4):
                o = O + 4 * j
                for tau in range(2):
                    d = ACC + 16 * tau + 4 * j
                    a(f'v_cvt_pk_bf16_f32 v{o+2*tau}, v{d}, v{d+1}')
                    a(f'v_cvt_pk_bf16_f32 v{o+2*tau+1}, v{d+2}, v{d+3}')
                a(f's_add_u32 s25, s24, {(j >> 1) * 16 * GSH_B + (j & 1) * 14 * 1024}')
                a(f'buffer_store_dwordx4 v[{o}:{o+3}], v2, {WS}, s25 offen {st}')
        else:
            a(f's_add_u32 s25, s29, {GSH_B}')
            for tau in range(2):
                a('s_lshl_b32 s24, s19, 5')
                a(f's_add_u32 s24, s24, {16*tau}')
                a('v_add_u32 v88, s24, v4')
                a('v_mul_u32_u24 v89, 2341, v88')
                a('v_lshrrev_b32 v89, 16, v89')
                a('v_mul_u32_u24 v89, 84, v89')
                a('v_add3_u32 v88, v88, v89, v6')
                a(f'v_lshlrev_b32 v{90+tau}, 4, v88')
                for sg in range(NT // 2):
                    o = O + 8 * tau + 4 * sg
                    for t in range(2):
                        d = ACC + 16 * tau + 4 * (2 * sg + t)
                        a(f'v_cvt_pk_bf16_f32 v{o+2*t}, v{d}, v{d+1}')
                        a(f'v_cvt_pk_bf16_f32 v{o+2*t+1}, v{d+2}, v{d+3}')
                    a(f'buffer_store_dwordx4 v[{o}:{o+3}], v{90+tau}, {WS}, {"s25" if sg else "s29"} offen {st}')
        a('s_mov_b32 s33, s32')
        a(f's_add_u32 s32, s32, {PB}')
        a(f's_cmp_eq_u32 s32, {3*PB}')
        a('s_cselect_b32 s32, 0, s32')
        a('s_add_u32 s19, s19, 1')
        a('s_cmp_lt_u32 s19, s35')
        a(f's_cbranch_scc1 {L("loop")}')
        a(f's_branch {P}_done')
    a.label(f'{P}_done')
    if signal:
        if NT == 4: a(f's_lshl_b32 s20, {rb_s}, 4')
        else:
            a(f's_lshr_b32 s20, {rb_s}, 1')
            a('s_lshl_b32 s20, s20, 4')
        a(f's_and_b32 s21, {cg_s}, 15')
        a('s_add_u32 s20, s20, s21')
        a('s_lshl_b32 s20, s20, 7')
        a(f's_cmp_lt_u32 {cg_s}, 16')
        a(f's_cselect_b32 s21, {FC - VOC}, 0')
        a('s_add_u32 s20, s20, s21')
        a(f's_add_u32 s20, s20, {CNT_OFF + VOC}')
        a('s_sub_u32 s21, s35, s34')
        if NT == 2: a('s_lshr_b32 s21, s21, 1')
        a('v_mov_b32 v5, s21')
        a('v_mov_b32 v6, 0')
        a('s_waitcnt vmcnt(0)')
        a('s_mov_b64 exec, 1')
        if NT == 2:
            a(f's_cmp_lg_u32 {rb_s}, 0')
            a(f's_cbranch_scc1 {P}_h1')
            a('v_mov_b32 v7, 2')
            a('s_sub_u32 s21, s20, 2048')
            a(f'buffer_atomic_add v7, v6, {WS}, s21 offen')
            a.label(f'{P}_h1')
        a(f'buffer_atomic_add v5, v6, {WS}, s20 offen')
        a('s_mov_b64 exec, -1')

def gen_gemm(name='gemm_kernel'):
    a = Asm(); a.raw(kernel_header(name))
    a('s_cmp_ge_u32 s2, 256')
    a('s_cbranch_scc1 gm_end')
    a('s_load_dwordx2 s[6:7], s[0:1], 128')
    a('v_lshrrev_b32 v1, 6, v0')
    a('v_readfirstlane_b32 s16, v1')
    a('v_and_b32 v1, 63, v0')
    a('v_lshlrev_b32 v2, 4, v1')
    a('v_lshrrev_b32 v3, 4, v1')
    a('v_and_b32 v4, 15, v1')
    a('s_waitcnt lgkmcnt(0)')
    a('s_mov_b32 s8, s6\ns_and_b32 s9, s7, 0xffff\ns_mov_b32 s10, 0x10000000\ns_mov_b32 s11, 0x20000')
    a('s_and_b32 s17, s2, 7')
    a('s_lshl_b32 s17, s17, 2')
    a('s_lshr_b32 s18, s2, 6')
    a('s_add_u32 s17, s17, s18')
    a('s_lshr_b32 s18, s2, 3')
    a('s_and_b32 s18, s18, 7')
    a('s_mov_b32 s34, 0\ns_mov_b32 s35, 14')
    gemm_body(a, 'gm', 's18', 's17')
    a.label('gm_end')
    a('s_endpgm')
    return a

if __name__ == '__main__':
    import sys
    a = gen_gemm()
    out = ['; @launch kernel=gemm_kernel grid=(256,1,1) block=(256,1,1) lds=86016',
           '.amdgcn_target "amdgcn-amd-amdhsa--gfx950"', '.text', a.text(), '.section .rodata,"a"', kernel_desc('gemm_kernel', 352, 128)]
    open(sys.argv[1], 'w').write('\n'.join(out) + '\n')
    print('instructions', a.count)
```

```python
from asmlib import *
from layout import *
import chain as C, start as S, prep, gemm, tok, s4d, t2srv
from chain import SRD, DBG, evlog
BC = 160000
JOBQ = 192; NON = 128
def mask_off(a, dst, cls):
    a(f's_and_b32 s71, {cls}, 4')
    a('s_mul_i32 s71, s71, 12')
    a(f's_lshl_b32 {dst}, {cls}, 2')
    a(f's_add_u32 {dst}, {dst}, s71')
MASK0 = 32
SCRAMBLE = 0
XPRE = 0
EVMID = 0
WARM = 1
VPF = 28
A1T = 1
XL = 0
FPOS = 0
VPK = 16
STEAL_AT = 64
Q_FINE = 0; Q_V7 = Q_FINE + 224; Q_SRV = Q_V7 + 112; Q_A = Q_SRV + 32; Q_VH = Q_A + 128; Q_VF = Q_VH + 64; Q_S4 = Q_VF + 64; Q_F = Q_S4 + 112; Q_TOK = Q_F + 128; Q_END = Q_TOK + 512

def kargs(a):
    a('s_load_dwordx8 s[36:43], s[0:1], 56')
    a('s_load_dwordx4 s[44:47], s[0:1], 88')
def lanes(a):
    a('v_and_b32 v1, 63, v0')
    a('v_lshlrev_b32 v2, 4, v1')
    a('v_lshrrev_b32 v3, 4, v1')
    a('v_and_b32 v4, 15, v1')
def w0(a, fn):
    l = a.newlabel('w0')
    a('s_cmp_lg_u32 s16, 0')
    a(f's_cbranch_scc1 {l}')
    fn()
    a.label(l)
def bcast(a, regs, dsts, t=250):
    a(f'v_mov_b32 v{t}, {BC}')
    a('s_add_u32 s101, s101, 1')
    def wr():
        for i, r in enumerate(regs): a(f'ds_write_b32 v{t}, v{r} offset:{4*i}')
        a('s_waitcnt lgkmcnt(0)')
        a(f'v_mov_b32 v{regs[0]}, s101')
        a(f'ds_write_b32 v{t}, v{regs[0]} offset:16')
        a('s_waitcnt lgkmcnt(0)')
    a('s_barrier')
    a('s_mov_b64 exec, 1')
    w0(a, wr)
    a('s_mov_b64 exec, -1')
    a('s_barrier')
    for i, r in enumerate(regs): a(f'ds_read_b32 v{r}, v{t} offset:{4*i}')
    a(f'ds_read_b32 v{t}, v{t} offset:16')
    a('s_waitcnt lgkmcnt(0)')
    for r, d in zip(regs, dsts): a(f'v_readfirstlane_b32 {d}, v{r}')
    a(f'v_cmp_ne_u32 vcc, s101, v{t}')
    a('s_cbranch_vccnz ch_end')

def claim_issue(a, P, r=242):
    a('s_cmp_lg_u32 s66, 0')
    a(f's_cbranch_scc1 {P}_ci')
    def at():
        a('s_lshr_b32 s70, s3, 5')
        mask_off(a, 's70', 's70')
        a('s_lshl_b32 s71, 1, s3')
        a(f'v_mov_b32 v{r}, s71')
        a(f'v_mov_b32 v{r+1}, {MASK0}')
        a('s_mov_b64 exec, 1')
        a(f'buffer_atomic_or v{r}, v{r+1}, {DBG}, s70 offen sc0')
        a(f'buffer_load_dwordx2 v[{r+2}:{r+3}], v{r+1}, {DBG}, 0 offen offset:{NON-MASK0} sc1')
        a('s_mov_b64 exec, -1')
    w0(a, at)
    a.label(f'{P}_ci')

def set_nonce(a, r):
    a(f'v_mov_b32 v{r+1}, {NON}')
    a(f'v_mov_b32 v{r+2}, s88\nv_mov_b32 v{r+3}, s89\nv_mov_b32 v{r+4}, 0\nv_mov_b32 v{r+5}, 0')
    a('s_mov_b64 exec, 1')
    a(f'buffer_atomic_cmpswap_x2 v[{r+2}:{r+5}], v{r+1}, {DBG}, 0 offen sc0')
    a('s_mov_b64 exec, -1')

def confirm(a, P, n, r=242):
    a('s_cmp_lg_u32 s66, 0')
    a(f's_cbranch_scc1 {P}_cf')
    def w():
        a(f's_waitcnt vmcnt({n})')
        a(f'v_readfirstlane_b32 s70, v{r+2}')
        a('s_cmp_lg_u32 s70, 0')
        a(f's_cbranch_scc1 {P}_nz')
        set_nonce(a, r)
        a('s_waitcnt vmcnt(0)')
        a(f'v_readfirstlane_b32 s70, v{r+2}')
        a('s_cmp_lg_u32 s70, 0')
        a(f's_cbranch_scc1 {P}_nz')
        a(f'v_mov_b32 v{r+2}, s88\nv_mov_b32 v{r+3}, s89')
        a.label(f'{P}_nz')
    w0(a, w)
    bcast(a, [r, r + 2, r + 3], ['s70', 's88', 's89'], t=r + 1)
    a('s_mov_b32 s66, 1')
    a('s_bitcmp1_b32 s70, s3')
    a('s_cbranch_scc1 m_reclaim')
    a.label(f'{P}_cf')

def claim_loop(a, P, lo_class, ncls):
    a('s_mov_b32 s21, 0')
    a('s_mov_b64 exec, 1')
    a.label(f'{P}_l')
    a('s_cmp_lg_u32 s70, -1')
    a(f's_cbranch_scc1 {P}_t')
    a('s_add_u32 s20, s20, 1')
    a('s_cmp_lt_u32 s20, 8')
    a(f's_cselect_b32 s20, s20, {lo_class}')
    a('s_mov_b32 s70, 0')
    a('s_mov_b32 s3, -1')
    a('s_add_u32 s21, s21, 1')
    a(f's_cmp_ge_u32 s21, {ncls}')
    a(f's_cbranch_scc1 {P}_d')
    a.label(f'{P}_t')
    a('s_ff0_i32_b32 s22, s70')
    a('s_lshl_b32 s23, 1, s22')
    mask_off(a, 's3', 's20')
    a('v_mov_b32 v242, s23')
    a(f'v_mov_b32 v243, {MASK0}')
    a(f'buffer_atomic_or v242, v243, {DBG}, s3 offen sc0')
    a('s_waitcnt vmcnt(0)')
    a('v_readfirstlane_b32 s70, v242')
    a('s_lshl_b32 s3, s20, 5')
    a('s_add_u32 s3, s3, s22')
    a('s_bitcmp1_b32 s70, s22')
    a(f's_cbranch_scc1 {P}_l')
    a.label(f'{P}_d')
    a('s_mov_b64 exec, -1')
    a('v_mov_b32 v242, s3')

def allflags(a, P, rep_s, t=24, limit=None, sleep=4, on_spin=None):
    a(f's_lshl_b32 s22, {rep_s}, 11')
    a(f's_add_u32 s22, s22, {IF_OFF}')
    a(f'v_add_u32 v{t}, 1024, v2')
    a(f'v_min_u32 v{t}, {1792-16}, v{t}')
    S.flag_poll(a, P, t + 4, [(2, 's22'), (t, 's22')], 'cA_abort', limit or C.SLOW_LIMIT, sleep, on_spin)

def ask(a):
    def f():
        a('v_mov_b32 v250, 1')
        a(f'v_mov_b32 v251, {JOBQ}')
        a('s_mov_b64 exec, 1')
        a(f'buffer_atomic_add v250, v251, {DBG}, 0 offen sc0')
        a('s_mov_b64 exec, -1')
    w0(a, f)

def worker(a):
    tok.PEEK = DBG
    a.label('m_bjob')
    lanes(a)
    a('s_sub_u32 s18, s3, 32')
    vq = S.VQ()
    S.bjob_decode(a)
    S.bjob_issue(a, vq)
    def xl():
        S.bjob_x(a, vq)
        if A1T: S.a1_touch(a, vq)
    if not XL: xl()
    evlog(a, 9008, 52)
    claim_issue(a, 'bj', 44)
    def cf():
        confirm(a, 'bj', 4 + A1T if XL else 0, 44)
        evlog(a, 9001, 52)
    S.bjob_run(a, 'bj', vq, 1, cf, 's77', False, xl if XL else None)
    a(f's_add_u32 s78, s77, {IF_OFF - BF_OFF}')
    a('s_cmp_lt_u32 s19, 3')
    a('s_cbranch_scc1 bj_a1')
    S.init_stores(a, 'bi', vq)
    a('s_waitcnt vmcnt(4)')
    S._fills(a, vq)
    S.publish(a, 's77', 1)
    evlog(a, 9002, 112)
    a('s_waitcnt vmcnt(0)')
    S.publish(a, 's78', BF_R)
    evlog(a, 9007)
    a('s_branch bj_end')
    a.label('bj_a1')
    a('s_add_u32 s19, s19, 4')
    S.init_stores(a, 'bk', vq)
    S._fills(a, vq)
    a('s_barrier')
    vq = S.VQ()
    def hk():
        a('s_waitcnt vmcnt(8)')
        S.publish(a, 's77', 1, 44)
        w0(a, lambda: S.flag_store(a, 's78', BF_R, 2048, 48))
        evlog(a, 9002, 52)
    S.bjob_issue(a, vq, 0, 'ak', hk)
    a('s_mov_b32 s79, 1')
    a('s_branch aj_run')
    a.label('bj_end')
    evlog(a, 9009)
    a('s_mov_b32 s3, s68')
    a('s_cmp_lg_u32 s69, 0')
    a('s_cbranch_scc1 wk_have')
    a('v_mov_b32 v250, 0')
    a('s_branch wk_ask')
    a.label('wk_loop')
    a('s_waitcnt vmcnt(0) lgkmcnt(0)')
    a('s_cmp_eq_u32 s96, 1')
    a('s_cbranch_scc1 wk_ask')
    a('s_mov_b32 s96, 1')
    def staff():
        a('s_mov_b32 s30, 0')
        a(f'v_mov_b32 v243, {MASK0}')
        a.label('sf_l')
        a(f'buffer_load_dword v242, v243, {DBG}, 0 offen sc1')
        a('s_waitcnt vmcnt(0)')
        a('v_readfirstlane_b32 s70, v242')
        a('s_cmp_eq_u32 s70, -1')
        a('s_cbranch_scc1 sf_d')
        a('s_sleep 16')
        a('s_add_u32 s30, s30, 1')
        a('s_cmp_lt_u32 s30, 64')
        a('s_cbranch_scc1 sf_l')
        a('s_mov_b32 s20, 0')
        claim_loop(a, 'sf_c', 0, 1)
        a.label('sf_d')
    w0(a, staff)
    bcast(a, [242], ['s3'], t=243)
    a('s_cmp_eq_u32 s3, -1')
    a('s_cbranch_scc1 wk_ask')
    kargs(a)
    a('s_getreg_b32 s67, hwreg(HW_REG_XCC_ID)')
    a('s_and_b32 s67, s67, 7')
    a('s_mov_b32 s66, 1')
    a('s_waitcnt lgkmcnt(0)')
    a('s_branch m_start')
    a.label('wk_ask')
    a('v_readfirstlane_b32 s22, v250')
    a(f's_cmp_ge_u32 s22, {Q_END}')
    a('s_cbranch_scc1 wk_next')
    ask(a)
    a.label('wk_next')
    evlog(a, 9005)
    a('s_waitcnt vmcnt(0)')
    bcast(a, [250], ['s3'], t=6)
    a.label('wk_have')
    evlog(a, 's3')
    a(f's_cmp_ge_u32 s3, {Q_END}')
    a('s_cbranch_scc1 ch_end')
    a('v_mov_b32 v250, 0')
    a(f'v_mov_b32 v251, {JOBQ}')
    lanes(a)
    a('s_cmp_lg_u32 s97, 0')
    a('s_cbranch_scc1 wk_go')
    a('s_mov_b32 s68, s3\ns_mov_b32 s69, 1')
    def poll():
        def spin():
            a(f's_and_b32 s20, s30, {STEAL_AT-1}')
            a('s_cbranch_scc1 wk_ns')
            a('s_mov_b32 s20, 1\ns_mov_b32 s70, 0')
            claim_loop(a, 'wk_st', 1, 7)
            a('s_cmp_lg_u32 s3, -1')
            a('s_cbranch_scc1 wk_pd')
            a('s_add_u32 s20, s67, 1')
            a(f's_lshl_b32 s22, s20, 11')
            a(f's_add_u32 s22, s22, {IF_OFF}')
            a.label('wk_ns')
        a('s_add_u32 s20, s67, 1')
        allflags(a, 'wk_af', 's20', sleep=4, on_spin=spin)
        a('v_mov_b32 v242, -1')
        a.label('wk_pd')
    w0(a, poll)
    bcast(a, [242], ['s3'], t=243)
    a('s_cmp_lg_u32 s3, -1')
    a('s_cbranch_scc1 m_bjob')
    a('s_mov_b32 s3, s68\ns_mov_b32 s97, 1')
    evlog(a, 9006)
    a.label('wk_go')
    for lim, lab in ((Q_TOK, 'wk_tok'), (Q_F, 'wk_f'), (Q_S4, 'wk_s4d'), (Q_VF, 'wk_vf'), (Q_VH, 'wk_vh'), (Q_A, 'wk_a'), (Q_SRV, 'wk_srv'), (Q_V7, 'wk_v7')):
        a(f's_cmp_ge_u32 s3, {lim}')
        a(f's_cbranch_scc1 {lab}')
    a(f's_sub_u32 s20, s3, {Q_FINE}')
    a('s_cmp_ge_u32 s20, 112')
    a('s_cselect_b32 s18, 1, 0')
    a('s_cselect_b32 s21, 112, 0')
    a('s_sub_u32 s20, s20, s21')
    a('s_and_b32 s17, s20, 15')
    a('s_add_u32 s17, s17, 16')
    a('s_lshr_b32 s34, s20, 4')
    a('s_lshl_b32 s34, s34, 1')
    a('s_add_u32 s35, s34, 2')
    gemm.gemm_body(a, 'wf', 's18', 's17', st='sc1', signal=True, ld='sc1', NT=2)
    a('s_branch wk_loop')
    a.label('wk_v7')
    a(f's_sub_u32 s20, s3, {Q_V7}')
    a('s_mov_b32 s18, 1')
    a('s_and_b32 s17, s20, 15')
    a('s_add_u32 s17, s17, 16')
    a('s_lshr_b32 s34, s20, 4')
    a('s_lshl_b32 s34, s34, 1')
    a('s_add_u32 s35, s34, 2')
    a('s_branch wk_gemm')
    a.label('wk_vh')
    a(f's_sub_u32 s20, s3, {Q_VH}')
    a('s_and_b32 s17, s20, 15')
    a('s_add_u32 s17, s17, 16')
    a('s_lshr_b32 s18, s20, 5')
    a('s_add_u32 s18, s18, 2')
    a('s_bitcmp1_b32 s20, 4')
    a('s_cselect_b32 s34, 7, 0')
    a('s_add_u32 s35, s34, 7')
    a('s_branch wk_gemm')
    a.label('wk_vf')
    a(f's_sub_u32 s20, s3, {Q_VF}')
    a('s_and_b32 s17, s20, 15')
    a('s_add_u32 s17, s17, 16')
    a('s_lshr_b32 s18, s20, 4')
    a('s_add_u32 s18, s18, 4')
    a('s_mov_b32 s34, 0\ns_mov_b32 s35, 14')
    a('s_branch wk_gemm')
    a.label('wk_f')
    a(f's_sub_u32 s20, s3, {Q_F}')
    a('s_and_b32 s17, s20, 15')
    a('s_lshr_b32 s18, s20, 4')
    a('s_mov_b32 s34, 0\ns_mov_b32 s35, 14')
    a('s_lshl_b32 s22, s17, 7')
    a(f's_add_u32 s22, s22, {AF_OFF}')
    a('v_min_u32 v24, 96, v2')
    S.flag_poll(a, 'wk_aw', 28, [(24, 's22')], 'cA_abort', C.SLOW_LIMIT, 6)
    a.label('wk_gemm')
    gemm.gemm_body(a, 'wg', 's18', 's17', st='sc1', signal=True, ld='sc1')
    a('s_branch wk_loop')
    a.label('wk_a')
    kargs(a)
    a(f's_sub_u32 s3, s3, {Q_A}')
    a('s_and_b32 s17, s3, 15')
    a('s_lshr_b32 s19, s3, 5')
    a('s_bitcmp1_b32 s3, 4')
    a('s_cselect_b32 s31, 7, 0')
    a('s_waitcnt lgkmcnt(0)')
    vq = S.VQ()
    S.bjob_issue(a, vq, 0, 'aj')
    a('s_mov_b32 s79, 0')
    a.label('aj_run')
    S.bjob_run(a, 'aj', vq, 0)
    a('s_cmp_lg_u32 s79, 0')
    a('s_cbranch_scc1 bj_end')
    a('v_mov_b32 v250, 0')
    a('s_branch wk_loop')
    a.label('wk_srv')
    a(f's_sub_u32 s3, s3, {Q_SRV}')
    a('s_and_b32 s18, s3, 15')
    a('s_lshr_b32 s19, s3, 4')
    a('s_and_b32 s19, s19, 1')
    t2srv.t2srv_body(a, 'ws', 's18', 's19', 'cA_abort', ld='sc1')
    a('v_mov_b32 v250, 0')
    a('s_branch wk_loop')
    a.label('wk_s4d')
    a(f's_sub_u32 s3, s3, {Q_S4}')
    s4d.s4d_setup(a)
    s4d.s4d_item(a, 'wk', 's3')
    a('s_branch wk_loop')
    a.label('wk_tok')
    a(f's_sub_u32 s3, s3, {Q_TOK}')
    a('s_lshr_b32 s17, s3, 3')
    a('s_and_b32 s18, s3, 3')
    a('s_bitcmp1_b32 s3, 2')
    a('s_cbranch_scc1 wk_toko')
    tok.tokp_body(a, 's17', 's18', ld='sc1', st='sc1', sync='wp', ldx='sc1')
    a('s_branch wk_loop')
    a.label('wk_toko')
    tok.toko_body(a, 's17', 's18', ld='sc1', sync='wo', OUT='s[92:95]')
    a('s_branch wk_loop')
    a.label('wp_abort')
    a.label('wo_abort')
    a('s_branch cA_abort')

def staffed(a, r=242):
    def f():
        a(f's_cmp_eq_u32 s67, {C.XCD_SEL}')
        a('s_cselect_b32 s20, 1, 0x10001')
        a(f'v_mov_b32 v{r}, s20')
        a(f'v_mov_b32 v{r+1}, 0')
        a('s_mov_b64 exec, 1')
        a(f'buffer_atomic_add v{r}, v{r+1}, {DBG}, 0 offen')
        a('s_mov_b64 exec, -1')
    w0(a, f)

def gen(name='main_kernel'):
    C.SYNC = 1; C.MERGE = 2; C.SELF = 1
    a = Asm()
    a.raw(kernel_header(name))
    a('s_cmp_ge_u32 s2, 256')
    a('s_cbranch_scc1 ch_end')
    a('s_load_dwordx4 s[4:7], s[0:1], 120')
    a('s_load_dwordx2 s[92:93], s[0:1], 112')
    kargs(a)
    a('s_memrealtime s[88:89]')
    if C.CODE_PF == 1: code_prefetch_shared(a, name, 'ch_end', 60)
    if C.CODE_PF == 2: code_prefetch(a, name, 'ch_end', 160000, 60)
    a('s_getreg_b32 s67, hwreg(HW_REG_XCC_ID)')
    a('s_and_b32 s67, s67, 7')
    a('v_lshrrev_b32 v1, 6, v0')
    a('v_readfirstlane_b32 s16, v1')
    a('s_mov_b32 s66, 0\ns_mov_b32 s68, 0\ns_mov_b32 s69, 0\ns_mov_b32 s96, 0\ns_mov_b32 s97, 0\ns_mov_b32 s101, 0x5eed0000')
    a(f's_sub_u32 s20, s67, {C.XCD_SEL}')
    a('s_lshr_b32 s21, s2, 3')
    if SCRAMBLE: a('s_add_u32 s20, s20, s21')
    if SCRAMBLE == 2: a('s_lshr_b32 s21, s21, 2')
    a('s_and_b32 s20, s20, 7')
    a('s_lshl_b32 s3, s20, 5')
    a('s_add_u32 s3, s3, s21')
    a('s_waitcnt lgkmcnt(0)')
    a('s_mov_b32 s8, s6\ns_and_b32 s9, s7, 0xffff\ns_mov_b32 s10, 0x10000000\ns_mov_b32 s11, 0x20000')
    a('s_mov_b32 s12, s4\ns_and_b32 s13, s5, 0xffff\ns_mov_b32 s14, 256\ns_mov_b32 s15, 0x20000')
    a('s_or_b32 s88, s88, 1')
    a(f's_and_b32 s93, s93, 0xffff\ns_mov_b32 s94, {2048*896*2}\ns_mov_b32 s95, 0x20000')
    if C.EVLOG:
        a('s_lshl_b32 s100, s2, 2')
        a('s_add_u32 s100, s100, s16')
        a('s_lshl_b32 s100, s100, 8')
        a(f's_add_u32 s100, s100, {C.EV_OFF}')
    evlog(a, 9000)
    acs = S.AComp(a, 'as')
    def evm(p):
        a('s_memrealtime s[98:99]' if EVMID == 1 else 's_memtime s[98:99]')
        a(f'v_mov_b32 v96, {9100 + p}')
        a('s_mov_b64 exec, 1')
        a(f'buffer_store_dword v96, off, {SRD}, s100')
        a('s_waitcnt lgkmcnt(0)')
        a('v_mov_b32 v96, s98')
        a(f'buffer_store_dword v96, off, {SRD}, s100 offset:4')
        a('s_mov_b64 exec, -1')
        a('s_add_u32 s100, s100, 8')
    acs.mid = evm if EVMID else None
    a.label('m_start')
    a('s_cmp_ge_u32 s3, 32')
    a('s_cbranch_scc1 m_bjob')
    C.lane_consts(a)
    a('s_and_b32 s17, s3, 15')
    a('s_cmp_ge_u32 s3, 16')
    a('s_cbranch_scc1 m_val')
    acs.issue()
    evlog(a, 9008, 96)
    claim_issue(a, 'sc', 248)
    acs.setup()
    acs.fetch()
    confirm(a, 'sc', 4 * (S.APRE - 1), 248)
    staffed(a, 248)
    evlog(a, 9001, 96)
    a('s_lshl_b32 s28, s17, 7')
    a(f's_add_u32 s28, s28, {AF_OFF + 64}')
    a('v_min_u32 v113, 32, v2')
    a(f's_mov_b32 s29, {IF_OFF}')
    a('v_add_u32 v112, 1024, v2')
    a(f'v_min_u32 v112, {1792-16}, v112')
    fl = [(113, 's28'), (2, 's29'), (112, 's29')]
    def extra(p):
        if p != 13: return []
        return [[] for _ in range(FPOS)] + [[f'buffer_load_dwordx4 v[{100+4*i}:{103+4*i}], v{va}, {SRD}, {so} offen sc1'] for i, (va, so) in enumerate(fl)]
    acs.run(lambda t, p: C.wreg(t, p >> 1) + 4 * (p & 1), extra)
    evlog(a, 9002)
    S.flag_poll(a, 'sc_aw', 100, fl, 'cA_abort', C.SLOW_LIMIT, 1, issued=True)
    a('s_barrier')
    a('s_branch m_role')
    a.label('m_val')
    w0(a, lambda: set_nonce(a, 232))
    claim_issue(a, 'va')
    if VPF:
        S.srd(a, 56, 40, S.W_BYTES)
        a('v_lshrrev_b32 v24, 5, v1')
        a('v_and_b32 v25, 31, v1')
        a('v_lshlrev_b32 v25, 4, v25')
        a('v_lshl_add_u32 v24, v24, 13, v25')
        S.srd(a, 60, 42, S.W_BYTES)
        a('s_lshl_b32 s22, s17, 9')
        a('s_lshl_b32 s23, s16, 19')
        a('s_add_u32 s23, s22, s23')
        for i in range(VPK):
            a(f's_add_u32 s21, s23, {(64 - 2*VPK + 2*i) << 13}')
            a('buffer_load_dwordx4 v[28:31], v24, s[60:63], s21 offen')
        a('s_lshl_b32 s23, s16, 14')
        a('s_add_u32 s22, s22, s23')
        a('s_mov_b32 s30, 0')
        a.label('va_pf')
        a('buffer_load_dwordx4 v[28:31], v24, s[56:59], s22 offen')
        a('s_waitcnt vmcnt(40)')
        a('s_add_u32 s22, s22, 65536')
        a('s_add_u32 s30, s30, 1')
        a(f's_cmp_lt_u32 s30, {VPF}')
        a('s_cbranch_scc1 va_pf')
    evlog(a, 9008)
    confirm(a, 'va', min(VPF + VPK, 40) if VPF else 0)
    staffed(a)
    evlog(a, 9001)
    a.label('m_role')
    evlog(a, 9006)
    a('s_mov_b32 s17, s3')
    def late(p):
        if p >= 4: allflags(a, f'va_iw{p}', '0', t=36, sleep=2)
    def bdep(lo, hi):
        a('s_mul_i32 s22, s17, 28')
        a('s_add_u32 s23, s22, 27')
        a('s_lshr_b32 s22, s22, 6')
        a('s_lshr_b32 s23, s23, 6')
        a('s_sub_u32 s23, s23, s22')
        a('s_lshl_b32 s23, s23, 8')
        a('v_and_b32 v36, s23, v2')
        a(f'v_med3_u32 v37, v117, {lo}, {hi}')
        a('v_lshl_add_u32 v36, v37, 4, v36')
        a('s_lshl_b32 s22, s22, 8')
        a(f's_add_u32 s22, s22, {BF_OFF}')
        S.flag_poll(a, a.newlabel('va_bw'), 40, [(36, 's22')], 'cA_abort', C.SLOW_LIMIT, 2)
        evlog(a, 9002)
    C.BDEP = bdep
    C.role_tail(a, late)
    a.label('m_reclaim')
    a('s_waitcnt vmcnt(0)')
    a('s_lshr_b32 s20, s3, 5')
    w0(a, lambda: claim_loop(a, 'rc', 0, 9))
    bcast(a, [242], ['s3'])
    a('s_cmp_lg_u32 s3, -1')
    a('s_cbranch_scc1 m_start')
    a('v_mov_b32 v250, 0')
    a('s_branch wk_ask')
    worker(a)
    a.label('ch_end')
    a('s_endpgm')
    return a
```

```python
from asmlib import *
from layout import *
import prep
WS = 's[8:11]'
SIGMA = prep.SIGMA
W_BYTES = prep.W_BYTES
NR = 8
NONCE = 's[88:89]'
NS = 9
APRE = 4
DSP = 2
VPRE = 5
XLATE = 1
PF_S = 3
PF_V = 7

def srd(a, d, lo, nbytes): prep.srd(a, d, lo, lo + 1, nbytes)

class VQ:
    def __init__(self): self.q = []
    def add(self, tag, n=1): self.q += [tag] * n
    def wait(self, tag):
        last = max(i for i, t in enumerate(self.q) if t == tag)
        n = len(self.q) - 1 - last
        self.q = self.q[last + 1:]
        return n

class AComp:
    FR = 120
    ACC = 32
    RING = 16; PF = 3; NG = 4
    RA = 8
    SV = 100
    def __init__(self, a, P):
        self.a = a; self.P = P; self.vq = VQ(); self.nxt = 0; self.mid = None
    def dma_ops(self):
        n = self.nxt; self.nxt += 1
        o = [[f'buffer_load_dwordx4 v{4+i}, s[56:59], s22 offen offset:{i*1024} lds', ('vq', ('p', n))] for i in range(4)]
        o[0] = [f's_add_u32 s22, s27, {n << 18}', f's_add_u32 m0, s25, {(n % NS)*16384}'] + o[0]
        return o
    def dma(self):
        for g in self.dma_ops():
            for x in g:
                if isinstance(x, tuple): self.vq.add(x[1])
                else: self.a(x)
    def issue(self):
        a = self.a; SV = self.SV
        srd(a, 60, 42, W_BYTES)
        a('v_lshrrev_b32 v24, 5, v1')
        a('v_and_b32 v25, 31, v1')
        a('s_lshl_b32 s26, s17, 9')
        a('s_lshl_b32 s25, s16, 12')
        a('v_xor_b32 v26, v25, v24')
        a('v_lshlrev_b32 v26, 4, v26')
        a('v_lshl_add_u32 v26, v24, 13, v26')
        for i in range(4):
            a(f'v_xor_b32 v{SV+i}, {32*(i >> 1)}, v26')
            if i: a(f'v_add_u32 v{SV+i}, {i*(16384-1024)}, v{SV+i}')
        a('s_lshl_b32 s23, s16, 19')
        a('s_add_u32 s23, s23, s26')
        def stage(grp):
            if grp and grp % 2 == 0:
                for i in range(4): a(f'v_xor_b32 v{SV+i}, {64*((grp >> 1) ^ ((grp >> 1) - 1))}, v{SV+i}')
            a(f's_add_u32 m0, s25, {(grp + 1)*16384}')
            if grp: a(f's_add_u32 s23, s23, {8 << 13}')
            for i in range(4): a(f'buffer_load_dwordx4 v{SV+i}, s[60:63], s23 offen offset:{i*1024} lds')
            self.vq.add('k', 4)
        for grp in range(8): stage(grp)
        srd(a, 56, 40, W_BYTES)
        a('s_lshl_b32 s21, s16, 16')
        a('s_add_u32 s27, s26, s21')
        a('s_lshr_b32 s20, s16, 1')
        a('s_lshl_b32 s20, s20, 6')
        a('v_xor_b32 v26, s20, v26')
        for i in range(4):
            a(f'v_xor_b32 v{4+i}, {128*(i >> 1) + 32*(i & 1)}, v26')
            if i: a(f'v_add_u32 v{4+i}, {i*(16384-1024)}, v{4+i}')
        self.dma()
    def setup(self):
        a = self.a; SV = self.SV
        a('v_and_b32 v26, 15, v25')
        a('v_xor_b32 v27, v26, v24')
        a('v_lshlrev_b32 v27, 4, v27')
        a('v_bfe_u32 v28, v25, 2, 1')
        a('v_lshlrev_b32 v28, 4, v28')
        a('v_lshrrev_b32 v29, 3, v25')
        a('v_lshl_add_u32 v28, v29, 2, v28')
        a('v_and_b32 v29, 3, v25')
        a('v_add_u32 v28, v28, v29')
        a('v_lshl_add_u32 v28, v28, 9, v27')
        a('v_lshrrev_b32 v29, 2, v26')
        a('v_lshlrev_b32 v29, 15, v29')
        a('v_bfe_u32 v30, v26, 1, 1')
        a('v_lshl_add_u32 v29, v30, 11, v29')
        a('v_lshrrev_b32 v30, 4, v25')
        a('v_lshl_add_u32 v29, v30, 10, v29')
        a('v_and_b32 v31, 1, v26')
        a('v_lshl_add_u32 v29, v31, 9, v29')
        a('v_add_u32 v29, v29, v27')
        a('v_add_u32 v29, s25, v29')
        for k in range(8):
            a(f'v_xor_b32 v{self.RA+k}, {32*k}, v28')
            a(f'v_xor_b32 v{SV+4+k}, {32*k}, v29')
        a(f's_mov_b32 s52, {SIGMA}')
    def fetch(self):
        a = self.a
        a(f's_waitcnt vmcnt({self.vq.wait("k")})')
        for D in range(2):
            for ks in range(16):
                r = self.FR + 64 * D + 4 * ks
                a(f'ds_read_b128 v[{r}:{r+3}], v{self.SV + 4 + (ks & 7)} offset:{(1 + D)*16384 + (ks >> 3)*256}')
                if ks & 7 == 7: a('s_waitcnt lgkmcnt(4)')
        a('s_waitcnt lgkmcnt(0)')
        while self.nxt < APRE: self.dma()
    def epi(self, p, dest):
        o = []
        for D in range(2):
            b0 = self.ACC + 32 * (p & 1) + 16 * D
            for b in (b0, b0 + 8):
                for k in range(4):
                    o += [f'v_mul_f32 v{b+2*k}, s52, v{b+2*k}', f'v_mul_f32 v{b+2*k+1}, s52, v{b+2*k+1}', f'v_cvt_pk_bf16_f32 v{b+k}, v{b+2*k}, v{b+2*k+1}']
            o += [f'v_permlane16_swap_b32 v{b0+k}, v{b0+8+k}' for k in range(4)]
            for u in range(2):
                o += [f'v_accvgpr_write_b32 a{dest(2*D+u, p) - 256 + k}, v{b0+8*u+k}' for k in range(4)]
        return o
    def run(self, dest, extra=None):
        a = self.a; vq = self.vq; PF = self.PF
        hi = [0] * 8
        def rd(i):
            p, ks = i >> 4, i & 15; r = self.RING + 4 * (i % self.NG); k = ks & 7; sl = p % NS
            if hi[k] != sl >> 2:
                a(f'v_xor_b32 v{self.RA+k}, {(hi[k] ^ (sl >> 2)) << 16}, v{self.RA+k}'); hi[k] = sl >> 2
            a(f'ds_read_b128 v[{r}:{r+3}], v{self.RA+k} offset:{(sl & 3)*16384 + (ks >> 3)*256}')
        def sync(p):
            if ('p', p) in vq.q: a(f's_waitcnt vmcnt({vq.wait(("p", p))})')
            a('s_barrier')
        sync(1)
        for i in range(PF): rd(i)
        side = []; mem = []
        for i in range(14 * 16):
            p, ks = i >> 4, i & 15
            if ks == 0:
                if p & 1 and p < 13:
                    assert not mem
                    sync(p + 2)
                    if self.mid: self.mid(p)
                    while self.nxt < min(14, p + NS): mem += self.dma_ops()
                if p == 0:
                    while self.nxt < min(NS, APRE + 4): mem += self.dma_ops()
                if extra: mem += extra(p)
            if i + PF < 14 * 16: rd(i + PF)
            a(f's_waitcnt lgkmcnt({min(PF, 14 * 16 - 1 - i)})')
            r = self.RING + 4 * (i % self.NG)
            for D in range(2):
                d = self.ACC + 32 * (p & 1) + 16 * D; b = self.FR + 64 * D + 4 * ks
                a(f'v_mfma_f32_32x32x16_bf16 v[{d}:{d+15}], v[{r}:{r+3}], v[{b}:{b+3}], ' + ('0' if ks == 0 else f'v[{d}:{d+15}]'))
                if D == 0 and mem:
                    for x in mem.pop(0):
                        if isinstance(x, tuple): vq.add(x[1])
                        else: a(x)
                if ks >= 1:
                    for _ in range(3 - D):
                        if side: a(side.pop(0))
            if ks == 15:
                assert not side
                side = self.epi(p, dest)
        assert not mem
        for x in side: a(x)

def flag_store(a, soff_s, R, stride, t=24):
    a(f'v_mul_u32_u24 v{t+2}, {stride}, v1')
    a(f'v_mov_b32 v{t}, s88\nv_mov_b32 v{t+1}, s89')
    a(f's_mov_b64 exec, {(1 << R) - 1}')
    a(f'buffer_store_dwordx2 v[{t}:{t+1}], v{t+2}, {WS}, {soff_s} offen sc1')
    a('s_mov_b64 exec, -1')

def flag_poll(a, P, t, loads, abort, limit, sleep=4, on_spin=None, issued=False):
    a('s_mov_b32 s30, 0')
    if issued: a(f's_branch {P}_w')
    a.label(P)
    for i, (va, so) in enumerate(loads):
        a(f'buffer_load_dwordx4 v[{t+4*i}:{t+4*i+3}], v{va}, {WS}, {so} offen sc1')
    if issued: a.label(P + '_w')
    a('s_waitcnt vmcnt(0)')
    for i in range(2 * len(loads)):
        a(f'v_cmp_ne_u64 vcc, {NONCE}, v[{t+2*i}:{t+2*i+1}]')
        a(f's_cbranch_vccnz {P}_no')
    a(f's_branch {P}_ok')
    a.label(P + '_no')
    a(f's_sleep {sleep}')
    a('s_add_u32 s30, s30, 1')
    if on_spin: on_spin()
    a(f's_cmp_lt_u32 s30, {limit}')
    a(f's_cbranch_scc1 {P}')
    a(f's_branch {abort}')
    a.label(P + '_ok')

def bjob_decode(a):
    a('s_mul_i32 s17, s18, 4682')
    a('s_lshr_b32 s17, s17, 16')
    assert all((i * 4682) >> 16 == i // 14 for i in range(224))
    a('s_mul_i32 s20, s17, 14')
    a('s_sub_u32 s19, s18, s20')
    a('s_cmp_ge_u32 s19, 7')
    a('s_cselect_b32 s31, 7, 0')
    a('s_sub_u32 s19, s19, s31')

def bjob_issue(a, vq, mat=1, P='bj', hook=None):
    srd(a, 60, 40 + 4 * mat, W_BYTES); srd(a, 56, 42 + 4 * mat, W_BYTES)
    a('s_lshl_b32 s30, s16, 13')
    if mat:
        a('s_mul_i32 s27, s17, 229376')
        a('s_lshl_b32 s29, s19, 7')
        a('s_add_u32 s27, s27, s29')
        a('v_lshrrev_b32 v7, 3, v1')
        a('v_and_b32 v8, 7, v1')
        a('s_lshl_b32 s29, s16, 6')
        a('v_add_u32 v7, s29, v7')
        a('v_mul_u32_u24 v7, 896, v7')
        a('v_lshl_add_u32 v7, v8, 4, v7')
        for i in range(8):
            if i % 4 == 0: a(f's_add_u32 m0, s30, {i*1024}')
            a(f's_add_u32 s22, s27, {i*8*896 - (i & 3)*1024}')
            a(f'buffer_load_dwordx4 v7, s[56:59], s22 offen offset:{(i & 3)*1024} lds')
    else:
        a('s_lshl_b32 s27, s19, 19')
        a('s_lshl_b32 s29, s16, 17')
        a('s_add_u32 s27, s27, s29')
        a('s_lshl_b32 s29, s17, 9')
        a('s_add_u32 s27, s27, s29')
        a('v_lshrrev_b32 v5, 5, v1')
        a('v_and_b32 v6, 31, v1')
        a('v_xor_b32 v6, v6, v5')
        a('v_lshlrev_b32 v6, 4, v6')
        a('v_lshl_add_u32 v6, v5, 13, v6')
        for i in range(8):
            if i % 4 == 0: a(f's_add_u32 m0, s30, {i*1024}')
            a(f's_add_u32 s22, s27, {i*16384 - (i & 3)*1024}')
            a(f'v_xor_b32 v7, {32*i}, v6')
            a(f'buffer_load_dwordx4 v7, s[56:59], s22 offen offset:{(i & 3)*1024} lds')
    vq.add('stat', 8)
    if hook: hook()
    a('v_lshrrev_b32 v5, 5, v1')
    a('v_and_b32 v6, 31, v1')
    a('s_lshl_b32 s25, s16, 15')
    a('s_add_u32 s25, s25, 32768')
    a('s_lshl_b32 s26, s17, 9')
    for k, sp in ((0, 's28'), (4, 's29')):
        a(f's_add_u32 {sp}, s19, s16')
        if k: a(f's_add_u32 {sp}, {sp}, {k}')
        a(f's_cmp_ge_u32 {sp}, 7')
        a('s_cselect_b32 s20, 7, 0')
        a(f's_sub_u32 {sp}, {sp}, s20')
        a(f's_add_u32 {sp}, {sp}, s31')
    a('s_lshl_b32 s32, s28, 18\ns_add_u32 s32, s32, s26')
    a('s_lshl_b32 s33, s29, 18\ns_add_u32 s33, s33, s26')
    a('v_xor_b32 v8, v6, v5')
    a('v_lshlrev_b32 v8, 4, v8')
    a('v_lshl_add_u32 v8, v5, 13, v8')
    for i in range(4):
        a(f'v_xor_b32 v{12+i}, {32*(i & 1)}, v8')
        if i: a(f'v_add_u32 v{12+i}, {i*(16384-1024)}, v{12+i}')
    for j in range(4):
        a(f's_add_u32 s20, s16, {j}')
        a('s_and_b32 s20, s20, 3')
        a(f's_mul_i32 s21, s20, {65536 + 64}')
        a('s_lshl_b32 s20, s20, 12')
        a(f's_add_u32 s{48 + j}, s20, s25')
        a(f's_mov_b32 m0, s{48 + j}')
        for i in range(4):
            a(f'v_xor_b32 v{16+4*j+i}, s21, v{12+i}')
            a(f'buffer_load_dwordx4 v{16+4*j+i}, s[60:63], s32 offen offset:{i*1024} lds')
    vq.add('p0', 16)
    a('s_cmp_eq_u32 s16, 3')
    a(f's_cbranch_scc1 {P}_np1')
    for i in range(16):
        if i % 4 == 0: a(f's_add_u32 m0, s{48 + (i >> 2)}, 16384')
        a(f'buffer_load_dwordx4 v{16+i}, s[60:63], s33 offen offset:{(i & 3)*1024} lds')
    vq.add('p1', 16)
    a.label(f'{P}_np1')

def bjob_x(a, vq):
    srd(a, 52, 36, 2048 * 448 * 2)
    a('s_lshl_b32 s20, s18, 8')
    a('v_add_u32 v95, s20, v0')
    M448 = (1 << 32) // 448 + 1
    assert all((u * M448) >> 32 == u // 448 for u in range(57344))
    a(f's_mov_b32 s21, {M448}')
    a('v_mul_hi_u32 v6, v95, s21')
    a('v_mul_u32_u24 v7, 448, v6')
    a('v_sub_u32 v7, v95, v7')
    a('v_lshrrev_b32 v8, 4, v7')
    a('v_and_b32 v7, 15, v7')
    a('v_lshl_add_u32 v9, v6, 4, v7')
    a('v_mul_u32_u24 v9, 896, v9')
    a('v_lshl_add_u32 v9, v8, 5, v9')
    a('buffer_load_dwordx4 v[84:87], v9, s[52:55], 0 offen')
    a('buffer_load_dwordx4 v[88:91], v9, s[52:55], 0 offen offset:16')
    vq.add('x', 2)
    a(f'v_mul_u32_u24 v6, {14*KB}, v6')
    a('v_lshl_add_u32 v6, v7, 4, v6')
    a('v_lshl_add_u32 v92, v8, 9, v6')
    a('v_lshrrev_b32 v7, 2, v8')
    a('v_lshl_add_u32 v6, v7, 11, v6')
    a('v_and_b32 v7, 3, v8')
    a('v_lshl_add_u32 v93, v7, 8, v6')
    srd(a, 72, 38, 8 * 448 * 2)
    a('v_min_u32 v6, 223, v0')
    a('v_lshrrev_b32 v7, 3, v6')
    a('v_and_b32 v6, 7, v6')
    a('v_mul_u32_u24 v9, 896, v6')
    a('v_lshl_add_u32 v9, v7, 5, v9')
    a('buffer_load_dwordx4 v[36:39], v9, s[72:75], 0 offen')
    a('buffer_load_dwordx4 v[40:43], v9, s[72:75], 0 offen offset:16')
    vq.add('x', 2)
    a('v_lshlrev_b32 v7, 8, v7')
    a('v_lshl_add_u32 v94, v6, 4, v7')

def a1_touch(a, vq):
    a('s_cmp_lt_u32 s16, 2')
    a('s_cselect_b32 s20, s40, s42')
    a('s_cselect_b32 s21, s41, s43')
    srd(a, 72, 20, W_BYTES)
    a('s_add_u32 s20, s19, s31')
    a('s_lshl_b32 s21, s20, 5')
    a('s_lshl_b32 s22, s16, 4')
    a('s_add_u32 s21, s21, s22')
    a('s_mul_i32 s20, s20, 14')
    a('s_add_u32 s20, s20, 250')
    a('s_cmp_lt_u32 s16, 2')
    a('s_cselect_b32 s20, s21, s20')
    a('s_lshl_b32 s20, s20, 13')
    a('s_add_u32 s20, s20, s26')
    a('v_lshlrev_b32 v6, 13, v4')
    a('v_lshl_add_u32 v6, v3, 7, v6')
    a('buffer_load_dword v51, v6, s[72:75], s20 offen')
    vq.add('t')

def wait3(a, n, extra=''):
    l = a.newlabel('w3')
    a(f's_waitcnt vmcnt({n}){extra}')
    a('s_cmp_lg_u32 s16, 3')
    a(f's_cbranch_scc1 {l}')
    a(f's_waitcnt vmcnt({n-16})')
    a.label(l)

def _fills(a, vq):
    k = 0
    for base, n, zlo, zn in ((EXCH_OFF, 66 * EXCH_B // 16, F2 // 16, 256), (MEMG_OFF, (64 * 7 * KB + CNT_B) // 16, 64 * 7 * KB // 16, 1 << 20)):
        a(f's_mov_b32 s23, {base}')
        for j in range((n - 448 + 57343) // 57344):
            r = 52 + 4 * k
            a(f'v_add_u32 v6, {448 + 57344*j}, v95')
            a(f'v_subrev_u32 v7, {zlo}, v6')
            a(f'v_mov_b32 v{r}, -1')
            a('v_mov_b32 v9, 0')
            a(f'v_cmp_gt_u32 vcc, {zn}, v7')
            a(f'v_cndmask_b32 v{r}, v{r}, v9, vcc')
            for q in range(1, 4): a(f'v_mov_b32 v{r+q}, v{r}')
            a('v_lshlrev_b32 v8, 4, v6')
            a('v_mov_b32 v9, 0x10000000')
            a(f'v_cmp_lt_u32 vcc, {n-1}, v6')
            a('v_cndmask_b32 v8, v8, v9, vcc')
            a(f'buffer_store_dwordx4 v[{r}:{r+3}], v8, {WS}, s23 offen sc1')
            vq.add('fill'); k += 1

def bjob_run(a, P, vq, mat=1, confirm=None, fs='s28', finish=True, late=None):
    BST = 128
    for q in range(4):
        if mat:
            a('s_lshl_b32 s30, s19, 6')
            a(f's_add_u32 s30, s30, {16*q}')
            a('v_add_u32 v8, s30, v4')
            a('v_mul_u32_u24 v10, 2341, v8')
            a('v_lshrrev_b32 v10, 16, v10')
            a('v_mul_u32_u24 v11, 28, v10')
            a('v_sub_u32 v32, v8, v11')
            a('s_mul_i32 s30, s17, 28')
            a('v_add_u32 v32, s30, v32')
            a('v_lshrrev_b32 v33, 4, v32')
            a('v_and_b32 v32, 15, v32')
            a(f's_mov_b32 s30, {CUW_B}')
            a('v_mul_lo_u32 v10, v10, s30')
            a(f'v_mul_u32_u24 v33, {TILE_B}, v33')
            a('v_add_u32 v10, v10, v33')
            a('v_lshl_add_u32 v10, v3, 8, v10')
            a('v_lshl_add_u32 v10, v32, 4, v10')
            a(f'v_add_u32 v{12+q}, {WF_B}, v10')
        else:
            if q == 0:
                a(f's_mul_i32 s30, s17, {CUW_B}')
                a(f's_mul_i32 s20, s19, {4*TILE_B}')
                a('s_add_u32 s30, s30, s20')
                a('v_add_u32 v12, s30, v2')
            else: a(f'v_add_u32 v{12+q}, {q*TILE_B}, v12')
            assert WF_A == 0
    a('v_lshrrev_b32 v7, 2, v4')
    a('v_lshlrev_b32 v7, 3, v7')
    a('v_and_b32 v8, 3, v4')
    a('v_add_u32 v7, v7, v8')
    a('v_xor_b32 v10, v3, v4')
    a('v_lshlrev_b32 v10, 4, v10')
    a('v_lshl_add_u32 v10, v7, 9, v10')
    a('v_add_u32 v10, s25, v10')
    for k3 in range(4): a(f'v_xor_b32 v{32+k3}, {64*k3}, v10')
    if mat:
        a('v_lshrrev_b32 v7, 2, v4')
        a('v_lshl_add_u32 v7, v3, 3, v7')
        a('v_lshlrev_b32 v7, 7, v7')
        a('v_and_b32 v8, 3, v4')
        a('v_lshl_add_u32 v7, v8, 3, v7')
    else:
        a('v_and_b32 v8, 2, v4')
        a('v_lshlrev_b32 v8, 1, v8')
        a('v_and_b32 v9, 1, v4')
        a('v_add_u32 v8, v8, v9')
        a('v_lshrrev_b32 v7, 2, v4')
        a('v_lshl_add_u32 v7, v7, 4, v8')
        a('v_xor_b32 v8, v8, v3')
        a('v_lshlrev_b32 v8, 4, v8')
        a('v_lshl_add_u32 v7, v7, 9, v8')
        a(f's_mov_b32 s24, {SIGMA}')
    wait3(a, vq.wait("stat"))
    a('s_barrier')
    for q in range(4):
        for kk in range(8):
            r = BST + (q * 8 + kk) * 4
            if mat:
                for hf in range(2):
                    a(f'ds_read_b64_tr_b16 v[{r+2*hf}:{r+2*hf+1}], v7 offset:{(32*kk + 4*hf)*128 + q*32}')
                if kk & 3 == 3: a('s_waitcnt lgkmcnt(6)')
            else:
                ro = 8 * (q >> 1) + 2 * (q & 1)
                if kk < 4: a(f'v_xor_b32 v{8+kk}, {((4*kk) ^ ro) << 4}, v7')
                a(f'ds_read_b128 v[{r}:{r+3}], v{8 + (kk & 3)} offset:{ro*512 + (kk >> 2)*256}')
                if kk == 7: a('s_waitcnt lgkmcnt(4)')
    ACC = 96; FR = 52
    for it in range(2):
        if it == 1:
            a('s_cmp_eq_u32 s16, 3')
            a(f's_cbranch_scc1 {P}_w3')
        if it == 0: wait3(a, vq.wait('p0'), ' lgkmcnt(0)')
        else: a(f's_waitcnt vmcnt({vq.wait("p1")})')
        if it == 0 and late: late()
        def rd(i): a(f'ds_read_b128 v[{FR+4*(i&3)}:{FR+4*(i&3)+3}], v{32 + (i & 3)} offset:{it*16384 + (i >> 3)*2048 + ((i & 7) >> 2)*256}')
        for i in range(3): rd(i)
        for i in range(16):
            tau, kk = i >> 3, i & 7
            if i + 3 < 16: rd(i + 3)
            a(f's_waitcnt lgkmcnt({min(3, 15 - i)})')
            for q in range(4):
                d = ACC + 16 * tau + 4 * q; b = BST + (q * 8 + kk) * 4
                c = '0' if kk == 0 else f'v[{d}:{d+3}]'
                a(f'v_mfma_f32_16x16x32_bf16 v[{d}:{d+3}], v[{FR+4*(i&3)}:{FR+4*(i&3)+3}], v[{b}:{b+3}], {c}')
        if it == 0 and confirm: confirm()
        a(f's_lshl_b32 s30, {"s29" if it else "s28"}, 10')
        for q in range(4):
            o = 68 + 4 * q
            for tau in range(2):
                d = ACC + 16 * tau + 4 * q
                if not mat:
                    for k in range(4): a(f'v_mul_f32 v{d+k}, s24, v{d+k}')
                a(f'v_cvt_pk_bf16_f32 v{o+2*tau}, v{d}, v{d+1}')
                a(f'v_cvt_pk_bf16_f32 v{o+2*tau+1}, v{d+2}, v{d+3}')
            a(f'buffer_store_dwordx4 v[{o}:{o+3}], v{12+q}, {WS}, s30 offen sc1')
            vq.add('st')
    a.label(f'{P}_w3')
    a(f's_lshl_b32 {fs}, {"s19" if mat else "s17"}, {8 if mat else 7}')
    a(f's_lshl_b32 s21, {"s17" if mat else "s19"}, 4')
    a(f's_add_u32 {fs}, {fs}, s21')
    a('s_cmp_lg_u32 s31, 0')
    a('s_cselect_b32 s21, 8, 0')
    a(f's_add_u32 {fs}, {fs}, s21')
    a(f's_add_u32 {fs}, {fs}, {BF_OFF if mat else AF_OFF}')
    if finish:
        a('s_waitcnt vmcnt(0)')
        publish(a, fs, 1)

def publish(a, fs, R, t=24):
    l = a.newlabel('pub')
    a('s_barrier')
    a('s_cmp_lg_u32 s16, 0')
    a(f's_cbranch_scc1 {l}')
    flag_store(a, fs, R, 2048, t)
    a.label(l)

def init_stores(a, P, vq):
    a('s_waitcnt vmcnt(4)')
    for j in range(4):
        a(f'v_mov_b32 v{96+j}, v{84+2*j}')
        a(f'v_mov_b32 v{100+j}, v{85+2*j}')
        a(f'v_min_u32 v{104+j}, -2, v{36+2*j}')
        a(f'v_min_u32 v{108+j}, -2, v{37+2*j}')
    a(f's_mov_b32 s20, {XF_OFF}\ns_mov_b32 s21, {XM_OFF}')
    a(f'buffer_store_dwordx4 v[84:87], v92, {WS}, s20 offen sc1')
    a(f'buffer_store_dwordx4 v[88:91], v92, {WS}, s20 offen offset:256 sc1')
    a(f'buffer_store_dwordx4 v[96:99], v93, {WS}, s21 offen sc1')
    a(f'buffer_store_dwordx4 v[100:103], v93, {WS}, s21 offen offset:1024 sc1')
    a('s_cmp_lg_u32 s18, 0')
    a(f's_cbranch_scc1 {P}_nm')
    a(f's_mov_b32 s20, {EXCH_OFF}\ns_mov_b32 s21, {MEMG_OFF}')
    for sb in ('s20', 's21'):
        a(f'buffer_store_dwordx4 v[104:107], v94, {WS}, {sb} offen sc1')
        a(f'buffer_store_dwordx4 v[108:111], v94, {WS}, {sb} offen offset:128 sc1')
    a.label(f'{P}_nm')
```

```python
from asmlib import *
from layout import *

SRD = 's[8:11]'; DBG = 's[12:15]'
SPIN_LIMIT = 400000
SLOW_LIMIT = 50000
NSTEPS = 64
STAMPS = False
STAMP_STEP = 32
STAMP_CYC = 0
STEPLOG = 0
STAMP_OFF = 100 * 1024 * 1024
POLL_DEPTH = 3
POLL_GAP = 0
SC_SLEEP = 0
M_GAP = 4
SC_DELAY = 0
F1_POS = 11
F2_POS = 4
VA_DELAY = 0
VO_POS = 1
P_GAP = 5
ZFILL = 1
SC_ALLPOLL = 0
FOLDW = 1
NANCHK = 1
VO_PRE0 = 0
VO_PRE = 16
VO_SLEEP = 0
F1_WAVE = 2
RB1_DELAY = 0
EC_M = 0
EC_P = 0
DIAG = 0
T2SRV = 1
SLOW_FIRST = 0
B2_POS = 0
M_ROT = 0
CODE_PF = 1
PUB_EARLY = 0
HLP_SLEEP = 0
MERGE = 0
A_TGT = 28
B_TGT = 64
SELF_POISON = 0
X_PRELOAD = 0
VO_NT = 0
FIN_SLEEP = 0
VM_BURST = 0
PUBLISH = 1
VM_EVERY = 2
PUB_FIRST = 1
VO_EARLY = 0
FLAG_SLEEP = 0
SYNC = 0
XCD_SEL = 0
NOBULK = 0
VAL_TOUCH = 0
SC_TOUCH = 0
TOUCH_POS = 2
TOUCH_AHEAD = 2
DMA_DELAY = 0
PLAIN_M = 1
MRG = 1
FAST = 1
EPI2 = 1
F2ONE = 0
SELF = 0
BDEP = None
R1 = 16
R2 = 32
PD_S = 5
PG_S = 8
PD_V = 5
PG_V = 8
PD_H = 3
PG_H = 0
VST = 0
VSM = 1
NPP = 10
VZ = 3
NPRE = 3
LPOS = 1
PLAIN_P = 1
D = 'row_mask:0xf bank_mask:0xf'
XSEG_B = 28 * KB

def stamp(a, k):
    if STAMPS: a(f'{"s_memtime" if STAMP_CYC else "s_memrealtime"} s[{40+2*k}:{41+2*k}]')
def stamp_flush(a, path, n, lbl, t=118):
    if not STAMPS: return
    a(f's_cmp_lg_u32 s19, {STAMP_STEP}')
    a(f's_cbranch_scc1 {lbl}')
    a('s_waitcnt lgkmcnt(0)')
    a(f's_lshl_b32 s22, s17, 9')
    a(f's_add_u32 s22, s22, {STAMP_OFF + path * 64}')
    a(f'v_mov_b32 v{t}, 0')
    for k in range(n):
        a(f'v_mov_b32 v{t+1}, s{40+2*k}')
        a(f'buffer_store_dword v{t+1}, v{t}, {SRD}, s22 offen offset:{4*k}')
    a.label(lbl)

EVLOG = 0
EV_OFF = 101 * 1024 * 1024
def evlog(a, tag, t=36):
    if not EVLOG: return
    a('s_memrealtime s[98:99]')
    a('s_waitcnt lgkmcnt(0)')
    a(f'v_mov_b32 v{t}, {tag}')
    a(f'v_mov_b32 v{t+1}, s98')
    a('s_mov_b64 exec, 1')
    a(f'buffer_store_dwordx2 v[{t}:{t+1}], off, {SRD}, s100')
    a('s_mov_b64 exec, -1')
    a('s_add_u32 s100, s100, 8')

def exec_lo(a, R):
    if R == 32: a('s_mov_b32 exec_hi, 0')
    else: a(f's_mov_b64 exec, {(1 << R) - 1}')

def spin(a, back, abort):
    a('s_add_u32 s30, s30, 1')
    a(f's_cmp_lt_u32 s30, {SPIN_LIMIT}')
    a(f's_cbranch_scc1 {back}')
    a(f's_branch {abort}')

def flagpoll(a, vaddr, sbase, regs, lbl, abort, Dp=None, gap=None, issued=0):
    Dp = Dp or POLL_DEPTH
    gap = POLL_GAP if gap is None else gap
    for i in range(issued, Dp):
        a(f'buffer_load_dword v{regs+i}, v{vaddr}, {SRD}, {sbase} offen sc1')
        if i < Dp - 1: a.nop(gap)
    a.label(lbl + '_l')
    for i in range(Dp):
        a(f's_waitcnt vmcnt({Dp-1})')
        a(f'v_cmp_eq_u32 vcc, -1, v{regs+i}')
        a(f's_cbranch_vccz {lbl}_d')
        a(f'buffer_load_dword v{regs+i}, v{vaddr}, {SRD}, {sbase} offen sc1')
    spin(a, lbl + '_l', abort)
    a.label(lbl + '_d')

def load_M(a, M, gap=0, k0=0):
    for ks in range(k0, 7):
        so = 's20' if ks < 4 else 's23'
        a(f'buffer_load_dwordx4 v[{M+4*ks}:{M+4*ks+3}], v2, {SRD}, {so} offen offset:{(ks & 3) * 1024} sc1')
        if gap and ks < 3: a.nop(gap)

def load_units(a, units, base, tmp_s='s22'):
    cur = None; n = 0
    for off, reg in units:
        for hb in range(2):
            o = off + hb * 1024
            blk = o // 4096 * 4096
            if blk != cur:
                a(f's_add_u32 {tmp_s}, {base}, {blk}'); cur = blk
            a(f'buffer_load_dwordx4 {ureg(reg + 4 * hb, 4)}, v2, {SRD}, {tmp_s} offen offset:{o - blk}' + (' sc1' if MERGE else ''))
            n += 1
            if n % 32 == 0: a('s_waitcnt vmcnt(24)')

def wreg(ti, ks):
    u = ti * 7 + ks
    return 256 + 8 * u if u < 32 else 120 + 8 * (u - 32)

def lane_consts(a):
    a('v_and_b32 v1, 63, v0')
    a('v_lshlrev_b32 v2, 4, v1')
    a('v_lshrrev_b32 v116, 4, v1')
    a('v_and_b32 v117, 15, v1')
    a('v_mov_b32 v3, 0x4444')
    a('v_mov_b32 v118, 0xeeee')
    a('v_cmp_lt_u32 vcc, 7, v117')
    a('v_cndmask_b32 v3, v3, v118, vcc')

def step_bases(a):
    a('s_add_u32 s23, s20, 4096')
    a(f's_add_u32 s21, s20, {EXCH_B}')

class Checker:
    def __init__(self, a, acc): self.a = a; self.acc = acc; self.q = []; self.first = True
    def add(self, r, n=4): self.q += list(range(r, r + n))
    def emit(self, k=1):
        for _ in range(k):
            if self.first and len(self.q) >= 3:
                x, y, z = self.q[:3]; self.q = self.q[3:]
                self.a(f'v_max3_u32 v{self.acc}, v{x}, v{y}, v{z}'); self.first = False
            elif len(self.q) >= 2:
                x, y = self.q[:2]; self.q = self.q[2:]
                self.a(f'v_max3_u32 v{self.acc}, v{self.acc}, v{x}, v{y}')
            elif len(self.q) == 1:
                self.a(f'v_max_u32 v{self.acc}, v{self.acc}, v{self.q[0]}'); self.q = []
    def drain(self):
        while self.q: self.emit()

XP = 2 * XSEG_B
MP = XP + 8 * KB
def score_tiles(w):
    return [(w, 0), (w, 1), (w, 2), (w, 3), (4 + (w >> 1), 2 * (w & 1)), (4 + (w >> 1), 2 * (w & 1) + 1), (6, w)]

def x_dma(a, w):
    a(f's_add_u32 m0, s25, {7*w*1024}')
    for f in range(7):
        if f == 4:
            a(f's_add_u32 m0, s25, {7*w*1024 + 4096}')
            a('s_add_u32 s22, s24, 4096')
        a(f'buffer_load_dwordx4 v2, {SRD}, {"s24" if f < 4 else "s22"} offen offset:{(f & 3) * 1024}' + (' sc1' if MERGE else '') + ' lds')

def gen_score(a, w, st, tag):
    L = lambda n: f'{tag}_sc{w}_{n}'
    ABORT = f'{tag}_abort'
    M = 8; ACC = 36; AOP = 64; TR = 68; BOP6 = 76; BOPB = 80; BOPA = 60; SACC = 84; SX = 88
    XS = [96, 104, [12, 16, 8, 8][w], 52, 36]
    ka, kb = w, 4 + (w >> 1)
    half6, piece6, pieceP = w & 1, w >> 1, w & 1
    def S(ti, ks):
        return f'v_smfmac_f32_16x16x64_bf16 v[{ACC+4*ti}:{ACC+4*ti+3}], v[{M+4*ks}:{M+4*ks+3}], {ureg(wreg(ti, ks), 8)}, v3'
    def cvt(dst, src):
        return [f'v_cvt_pk_bf16_f32 v{dst}, v{src}, v{src+1}', f'v_cvt_pk_bf16_f32 v{dst+1}, v{src+2}, v{src+3}']
    def T(dst): return f'v_mfma_f32_16x16x32_bf16 v[{dst}:{dst+3}], v[{AOP}:{AOP+3}], v[4:7], 0'
    def xrd(buf, kap, tt):
        off = (tt * 14 + 2 * kap) * 1024
        return [f'ds_read_b128 v[{XS[buf]}:{XS[buf]+3}], v116 offset:{off}', f'ds_read_b128 v[{XS[buf]+4}:{XS[buf]+7}], v116 offset:{off+1024}']
    def xrd2(buf, tt):
        return [f'ds_read_b128 v[{XS[buf]}:{XS[buf]+3}], v117 offset:{tt*14*KB}', f'ds_read_b128 v[{XS[buf]+4}:{XS[buf]+7}], v117 offset:{tt*14*KB+1024}']
    xfirst = (lambda: xrd2(0, 0) + xrd2(1, 1)) if MRG else (lambda: xrd(0, 6, 0) + xrd(1, 6, 1))
    def Smm(kap, b, first=False):
        c = '0' if first else f'v[{SACC}:{SACC+3}]'
        return f'v_mfma_f32_16x16x32_bf16 v[{SACC}:{SACC+3}], v[{M+4*kap}:{M+4*kap+3}], v[{b}:{b+3}], {c}'
    def Sx(tt, b, buf):
        return f'v_smfmac_f32_16x16x64_bf16 v[{SX+4*tt}:{SX+4*tt+3}], v[{b}:{b+3}], v[{XS[buf]}:{XS[buf]+7}], v3'
    ZR = list(range(ACC, ACC + 28)) + list(range(SX, SX + 8)) + [AOP + 2 - 2 * half6, AOP + 3 - 2 * half6]
    def zero(lo=0, hi=99):
        for r in ZR[lo:hi]: a(f'v_mov_b32 v{r}, 0')
    o1 = [(k + w) % 4 for k in range(4)] if M_ROT else [0, 1, 2, 3]
    o2 = [4 + (k + w) % 3 for k in range(3)] if M_ROT else [4, 5, 6]
    def ml(ks, first=False):
        a(f'buffer_load_dwordx4 v[{M+4*ks}:{M+4*ks+3}], v2, {SRD}, {"s20" if ks < 4 else "s23"} offen offset:{(ks & 3) * 1024}' + ('' if first and PLAIN_M and st == '' else ' sc1'))
    a.label(L('loop'))
    step_bases(a)
    zero(3 * M_GAP if ZFILL else 0)
    a('s_mov_b32 s30, 0')
    if NANCHK: a('s_mov_b32 s62, 0')
    if SC_ALLPOLL:
        a('s_waitcnt vmcnt(0)')
        a('s_barrier')
        if SC_SLEEP: a(f's_sleep {SC_SLEEP}')
        flagpoll(a, 117, 's20', TR, L('fp'), ABORT)
        stamp(a, 0)
    else:
        if w == 0:
            if SC_SLEEP: a(f's_sleep {SC_SLEEP}')
            flagpoll(a, 0, 's20', TR, L('fp'), ABORT, PD_S, PG_S)
            if SC_DELAY: a.nop(SC_DELAY)
            ml(o1[0], True)
            a('s_barrier')
            stamp(a, 0)
            a(f's_branch {L("ld1")}')
        else:
            a('s_waitcnt vmcnt(0)')
            stamp(a, 7)
            a('s_barrier')
            stamp(a, 0)
    a.label(L('ld'))
    ml(o1[0], NANCHK)
    if w == 0: a.label(L('ld1'))
    order = o1 + o2
    for i, ks in enumerate(order[1:NPRE]):
        if i < 3:
            if ZFILL: zero(i * M_GAP, (i + 1) * M_GAP)
            else: a.nop(M_GAP)
        ml(ks, NANCHK)
    if ZFILL and NPRE < 4: zero((NPRE - 1) * M_GAP, 3 * M_GAP)
    if NANCHK and NPRE == 7: a.label(L('ld2'))
    for x in xfirst(): a(x)
    ck = Checker(a, 118)
    issued = NPRE
    late = order[NPRE:]
    for i, ks in enumerate(o1):
        a(f's_waitcnt vmcnt({issued-1-i})')
        if i < EC_M:
            a.label(L(f'e{i}'))
            r = M + 4 * ks
            a(f'v_max3_u32 v{TR}, v{r}, v{r+1}, v{r+2}')
            a(f'v_max_u32 v{TR}, v{TR}, v{r+3}')
            a(f'v_cmp_eq_u32 vcc, -1, v{TR}')
            a(f's_cbranch_vccnz {L(f"er{i}")}')
        elif not NANCHK: ck.add(M + 4 * ks)
        if i == 0: stamp(a, 1)
        for ti in range(7):
            a(S(ti, ks))
            if ti in (1, 3): ck.emit()
            if late and ti in ((LPOS, LPOS + 3) if LPOS < 4 else (LPOS - 4,)):
                ml(late.pop(0), NANCHK); issued += 1
    assert not late
    a('s_waitcnt vmcnt(0)')
    if NPRE < 7: a.label(L('ph2'))
    stamp(a, 2)
    for k in (4, 5, 6):
        if not NANCHK: ck.add(M + 4 * k)
    seq = []
    for ti in (6, 4, 5, 0, 1, 2, 3):
        for ks in (4, 5, 6): seq.append([S(ti, ks), []])
    def side(i, ops): seq[i][1] += ops
    CK = 'CK'
    for i in range(6): side(i, [CK])
    if MRG:
        M2 = 80
        side(0, xrd(2, ka, 0))
        if (w == 1 or w == 2): side(1, [f'buffer_load_dword v119, v0, {SRD}, {"s20" if w == 1 else "s24"} offen sc1'])
        mv = [f'v_mov_b32 v{M2+k}, v{M+4*kb+2*pieceP+k}' for k in range(2)] + [f'v_mov_b32 v{M2+2+k}, v{M+24+2*piece6+k}' for k in range(2)]
        side(2, mv[:1]); side(3, mv[1:2]); side(4, mv[2:3]); side(7, mv[3:])
        c6 = cvt(AOP + 2 * half6, ACC + 24)
        side(5, c6[:1]); side(6, c6[1:])
        seq.insert(8, [T(TR), []])
        cb6 = cvt(BOP6 + 2, TR)
        side(11, cb6[:1]); side(12, cb6[1:])
        c4, c5 = cvt(AOP, ACC + 16), cvt(AOP + 2, ACC + 20)
        side(9, c4[:1]); side(10, c4[1:]); side(12, c5[:1]); side(13, c5[1:])
        seq.insert(15, [T(TR + 4), xrd(3, ka, 1)])
        c0, c1 = cvt(AOP, ACC), cvt(AOP + 2, ACC + 4)
        side(16, c0[:1]); side(17, c0[1:])
        cbb = cvt(BOP6, TR + 4)
        side(18, cbb[:1]); side(19, cbb[1:] + c1[:1]); side(20, c1[1:])
        seq.insert(22, [T(TR), []])
        c2, c3 = cvt(AOP, ACC + 8), cvt(AOP + 2, ACC + 12)
        side(23, c2[:1])
        seq.append([f'v_mfma_f32_16x16x32_bf16 v[{SACC}:{SACC+3}], v[{M2}:{M2+3}], v[{BOP6}:{BOP6+3}], 0', c2[1:] + ['s_waitcnt lgkmcnt(0)']])
        ca0 = cvt(BOPA, TR)
        seq.append([Sx(0, BOP6, 0), ca0 + c3])
        seq.append([T(TR + 4), []])
        seq.append([Sx(1, BOP6, 1), cvt(BOPA + 2, TR + 4)])
        seq.append([Smm(ka, BOPA), []])
        seq.append([Sx(0, BOPA, 2), []])
        seq.append([Sx(1, BOPA, 3), []])
    else:
        side(0, xrd(2, kb, 0))
        if SC_TOUCH: side(TOUCH_POS, [f'buffer_load_dword v119, v117, {SRD}, s35 offen sc1'])
        if not VAL_TOUCH and ((w == 1 and not SELF_POISON) or (w == 2 and not X_PRELOAD)): side(TOUCH_POS - 1, [f'buffer_load_dword v119, v0, {SRD}, {"s20" if w == 1 else "s24"} offen sc1'])
        c6 = cvt(AOP + 2 * half6, ACC + 24)
        side(5, c6[:1]); side(6, c6[1:] + ['v_cmp_eq_u32 vcc, -1, v118'])
        seq.insert(8, [T(TR), []])
        side(9, [f's_cbranch_vccnz {L("retry")}'])
        cb6 = cvt(BOP6 + 2 * piece6, TR)
        side(11, cb6[:1]); side(12, cb6[1:])
        c4, c5 = cvt(AOP, ACC + 16), cvt(AOP + 2, ACC + 20)
        side(9, c4[:1]); side(10, c4[1:]); side(12, c5[:1]); side(13, c5[1:])
        seq.insert(15, [T(TR + 4), xrd(3, kb, 1)])
        c0, c1 = cvt(AOP, ACC), cvt(AOP + 2, ACC + 4)
        side(16, c0[:1]); side(17, c0[1:])
        cbb = cvt(BOPB + 2 * pieceP, TR + 4)
        side(18, cbb[:1]); side(19, cbb[1:] + c1[:1]); side(20, c1[1:])
        seq.insert(22, [T(TR), xrd(4, ka, 0)])
        c2, c3 = cvt(AOP, ACC + 8), cvt(AOP + 2, ACC + 12)
        side(23, ['s_waitcnt lgkmcnt(4)'] + c2[:1])
        seq.append([Smm(6, BOP6, True), c2[1:]])
        seq.append([Sx(0, BOP6, 0), xrd(0, ka, 1)])
        ca0 = cvt(BOPA, TR)
        seq.append([Sx(1, BOP6, 1), c3])
        seq.append([Smm(kb, BOPB), ca0[:1]])
        seq.append([T(TR + 4), ca0[1:] + ['s_waitcnt lgkmcnt(4)']])
        seq.append([Sx(0, BOPB, 2), []])
        seq.append([Sx(1, BOPB, 3), ['s_waitcnt lgkmcnt(0)'] + cvt(BOPA + 2, TR + 4)])
        if FOLDW:
            seq.append([Smm(ka, BOPA), []])
            seq.append([Sx(0, BOPA, 4), []])
            seq.append([Sx(1, BOPA, 0), []])
        else:
            seq.append([Sx(0, BOPA, 4), []])
            seq.append([Sx(1, BOPA, 0), []])
            seq.append([Smm(ka, BOPA), []])
    for m, ops in seq:
        a(m)
        for o in ops:
            if o == CK: ck.emit()
            elif NANCHK and (o.startswith('v_cmp') or o.startswith('s_cbranch')): pass
            else:
                if o.startswith('v_cmp'): ck.drain()
                a(o)
    if FOLDW:
        a('s_mov_b64 exec, s[26:27]')
        a(f'ds_write_b128 v113, v[{SACC}:{SACC+3}]')
        a('s_mov_b64 exec, -1')
        a(f'v_cmp_u_f32 vcc, v{SX}, v{SX+1}')
        for r in range(4): a(f'v_permlane32_swap_b32 v{SX+r}, v{SX+4+r}')
        for r in range(4): a(f'v_add_f32 v{SX+r}, v{SX+r}, v{SX+4+r}')
        a(f'ds_write_b128 v112, v[{SX}:{SX+3}]')
    else:
        a(f'ds_write_b128 v112, v[{SX}:{SX+3}]')
        if NANCHK: a(f'v_cmp_u_f32 vcc, v{SX}, v{SX+1}')
        a(f'ds_write_b128 v112, v[{SX+4}:{SX+7}] offset:256')
        a('s_mov_b64 exec, s[26:27]')
        a(f'ds_write_b128 v113, v[{SACC}:{SACC+3}]')
        a('s_mov_b64 exec, -1')
    if NANCHK:
        a(f's_cbranch_vccnz {L("retry")}')
        a.label(L('cont'))
    stamp(a, 3)
    a('s_waitcnt lgkmcnt(0)')
    a('s_barrier')
    stamp(a, 4)
    t = ACC
    for k in range(2 if FOLDW else 4): a(f'ds_read_b64 v[{t+2*k}:{t+2*k+1}], v114 offset:{k*1024}')
    a(f'ds_read2_b32 v[{t+8}:{t+9}], v115 offset0:0 offset1:64')
    if w == F1_WAVE: a(f'v_lshl_add_u32 v{t+20}, v2, 3, s36')
    def f1(pos):
        if w == F1_WAVE and pos == F1_POS:
            exec_lo(a, R1)
            a(f'buffer_store_dword v2, v{t+20}, {SRD}, s20 offen {st}')
            a('s_mov_b64 exec, -1')
    if F1_POS < 0 and w == F1_WAVE:
        a.nop(4 * (F1_POS + 4)); f1(F1_POS)
    a('s_waitcnt lgkmcnt(0)')
    f1(0)
    stamp(a, 5)
    sm, sx = t + 8, t
    a(f'v_add_f32 v{sm}, v{t+8}, v{t+9}')
    a(f'v_add_f32 v{t}, v{t}, v{t+2}')
    a(f'v_add_f32 v{t+1}, v{t+1}, v{t+3}')
    f1(10)
    a(f'v_add_f32_dpp v{sm}, v{sm}, v{sm} row_ror:8 {D}')
    if FOLDW:
        a(f'v_mov_b32 v{t+9}, v{sm}')
        f1(11)
        a(f'v_permlane32_swap_b32 v{t}, v{t+1}')
        a(f'v_add_f32 v{sx}, v{t}, v{t+1}')
        f1(12)
        a(f'v_permlane16_swap_b32 v{sm}, v{t+9}')
        a(f'v_add_f32 v{sm}, v{sm}, v{t+9}')
        f1(13)
    else:
        a(f'v_add_f32 v{t+4}, v{t+4}, v{t+6}')
        a(f'v_add_f32 v{t+5}, v{t+5}, v{t+7}')
        a(f'v_mov_b32 v{t+9}, v{sm}')
        a(f'v_add_f32 v{t}, v{t}, v{t+4}')
        a(f'v_add_f32 v{t+1}, v{t+1}, v{t+5}')
        a(f'v_permlane16_swap_b32 v{sm}, v{t+9}')
        a(f'v_add_f32 v{sm}, v{sm}, v{t+9}')
        a(f'v_permlane32_swap_b32 v{t}, v{t+1}')
        a(f'v_add_f32 v{sx}, v{t}, v{t+1}')
    if FAST:
        ex, em, ab = t + 12, t + 13, t + 14
        l = t + 3; u = t + 4; v = t + 5; lo = t + 6; hi = t + 7
        def norm(fast):
            a(f'v_fma_f32 v{l}, v{em}, s37, v{ex}')
            if fast: a(f'v_cmp_ngt_f32 vcc, s56, v{ab}')
            a(f'v_cndmask_b32 v{v}, v{ex}, v{em}, s[38:39]')
            a(f'v_add_f32_dpp v{l}, v{l}, v{l} quad_perm:[1,0,3,2] {D}')
            a(f'v_cndmask_b32 v{u}, v{em}, v{ex}, s[38:39]')
            a(f'v_mov_b32_dpp v{t+10}, v{v} quad_perm:[1,0,3,2] {D}')
            a(f'v_add_f32_dpp v{l}, v{l}, v{l} quad_perm:[2,3,0,1] {D}')
            a(f'v_cndmask_b32 v{lo}, v{t+10}, v{u}, s[38:39]')
            a(f'v_cndmask_b32 v{hi}, v{u}, v{t+10}, s[38:39]')
            a(f'v_add_f32_dpp v{l}, v{l}, v{l} row_half_mirror {D}')
            if fast: a(f's_cbranch_vccnz {L("slow")}')
            a(f'v_add_f32_dpp v{l}, v{l}, v{l} row_mirror {D}')
            a(f'v_mov_b32 v{t+11}, v{l}')
            a(f'v_permlane16_swap_b32 v{l}, v{t+11}')
            a(f'v_add_f32 v{l}, v{l}, v{t+11}')
            a(f'v_rcp_f32 v{l}, v{l}')
            a('s_mov_b64 exec, s[28:29]')
            a(f'v_mul_f32 v{lo}, v{lo}, v{l}')
            a(f'v_mul_f32 v{hi}, v{hi}, v{l}')
            a(f'v_cvt_pk_bf16_f32 v{lo}, v{lo}, v{hi}')
        a(f'v_exp_f32 v{ex}, v{sx}')
        a(f'v_exp_f32 v{em}, v{sm}')
        a(f'v_add_f32 v{ab}, abs(v{sx}), abs(v{sm})')
        f1(1)
        norm(True)
        a.label(L('pst'))
    else:
        mx = t + 2
        a(f'v_max_f32 v{mx}, v{sx}, v{sm}')
        f1(1)
        a(f'v_max_f32_dpp v{mx}, v{mx}, v{mx} quad_perm:[1,0,3,2] {D}')
        a(f'v_max_f32_dpp v{mx}, v{mx}, v{mx} quad_perm:[2,3,0,1] {D}')
        a(f'v_max_f32_dpp v{mx}, v{mx}, v{mx} row_half_mirror {D}')
        a(f'v_max_f32_dpp v{mx}, v{mx}, v{mx} row_mirror {D}')
        a(f'v_mov_b32 v{t+3}, v{mx}')
        a(f'v_permlane16_swap_b32 v{mx}, v{t+3}')
        a(f'v_max_f32 v{mx}, v{mx}, v{t+3}')
        f1(2)
        a(f'v_sub_f32 v{sx}, v{sx}, v{mx}')
        a(f'v_sub_f32 v{sm}, v{sm}, v{mx}')
        a(f'v_exp_f32 v{sx}, v{sx}')
        a(f'v_exp_f32 v{sm}, v{sm}')
        l = t + 3; u = t + 4; v = t + 5; lo = t + 6; hi = t + 7
        a(f'v_fma_f32 v{l}, v{sm}, s37, v{sx}')
        a(f'v_cndmask_b32 v{u}, v{sm}, v{sx}, s[38:39]')
        a(f'v_cndmask_b32 v{v}, v{sx}, v{sm}, s[38:39]')
        a(f'v_add_f32_dpp v{l}, v{l}, v{l} quad_perm:[1,0,3,2] {D}')
        a(f'v_mov_b32_dpp v{t+10}, v{v} quad_perm:[1,0,3,2] {D}')
        a(f'v_add_f32_dpp v{l}, v{l}, v{l} quad_perm:[2,3,0,1] {D}')
        a(f'v_cndmask_b32 v{lo}, v{t+10}, v{u}, s[38:39]')
        a(f'v_cndmask_b32 v{hi}, v{u}, v{t+10}, s[38:39]')
        f1(3)
        a(f'v_add_f32_dpp v{l}, v{l}, v{l} row_half_mirror {D}')
        a(f'v_add_f32_dpp v{l}, v{l}, v{l} row_mirror {D}')
        a(f'v_mov_b32 v{t+11}, v{l}')
        a(f'v_permlane16_swap_b32 v{l}, v{t+11}')
        a(f'v_add_f32 v{l}, v{l}, v{t+11}')
        f1(4)
        a(f'v_rcp_f32 v{l}, v{l}')
        a(f'v_mul_f32 v{lo}, v{lo}, v{l}')
        a(f'v_mul_f32 v{hi}, v{hi}, v{l}')
        a(f'v_cvt_pk_bf16_f32 v{lo}, v{lo}, v{hi}')
        a(f'v_min_u32 v{lo}, -2, v{lo}')
        a('s_mov_b64 exec, s[28:29]')
    a(f'buffer_store_dword v{lo}, v1, {SRD}, s20 offen {st}')
    a('s_mov_b64 exec, -1')
    f1(5)
    stamp(a, 6)
    a('s_barrier')
    if DMA_DELAY: a.nop(DMA_DELAY)
    if not NOBULK: a(f's_add_u32 s24, s24, {XSEG_B}')
    if not NOBULK: a(f's_add_u32 s35, s35, {GSH_B}')
    a(f's_xor_b32 s25, s25, {XSEG_B}')
    x_dma(a, w)
    a(f'v_xor_b32 v116, {XSEG_B}, v116')
    if MRG:
        a('v_add_u32 v117, s57, v117')
        a('s_sub_u32 s57, 0, s57')
    stamp_flush(a, w, 8, L('sf'))
    if STEPLOG and w in (1, 3):
        a('s_memtime s[40:41]' if w == 1 else 's_memrealtime s[40:41]')
        a('s_lshl_b32 s22, s17, 8')
        a('s_lshl_b32 s42, s19, 2')
        a('s_add_u32 s22, s22, s42')
        a(f's_add_u32 s22, s22, {STAMP_OFF + (4096 if w == 3 else 0)}')
        a('v_mov_b32 v118, 0')
        a('s_waitcnt lgkmcnt(0)')
        a('v_mov_b32 v119, s40')
        a(f'buffer_store_dword v119, v118, {SRD}, s22 offen')
    a('s_add_u32 s19, s19, 1')
    a('s_mov_b32 s20, s21')
    a(f's_cmp_lt_u32 s19, {NSTEPS-1}')
    a.flush()
    a(f's_cbranch_scc1 {L("loop")}')
    a(f's_branch {tag}_done')
    for i in range(EC_M):
        a.label(L(f'er{i}'))
        ml(o1[i])
        a('s_waitcnt vmcnt(0)')
        a('s_add_u32 s31, s31, 0x100')
        spin(a, L(f'e{i}'), ABORT)
    if FAST:
        a.label(L('slow'))
        mx = ab
        a(f'v_max_f32 v{mx}, v{sx}, v{sm}')
        for pm in ('quad_perm:[1,0,3,2]', 'quad_perm:[2,3,0,1]', 'row_half_mirror', 'row_mirror'): a(f'v_max_f32_dpp v{mx}, v{mx}, v{mx} {pm} {D}')
        a(f'v_mov_b32 v{t+11}, v{mx}')
        a(f'v_permlane16_swap_b32 v{mx}, v{t+11}')
        a(f'v_max_f32 v{mx}, v{mx}, v{t+11}')
        a(f'v_sub_f32 v{ex}, v{sx}, v{mx}')
        a(f'v_sub_f32 v{em}, v{sm}, v{mx}')
        a(f'v_exp_f32 v{ex}, v{ex}')
        a(f'v_exp_f32 v{em}, v{em}')
        a('s_add_u32 s31, s31, 0x100')
        norm(False)
        a(f'v_min_u32 v{lo}, -2, v{lo}')
        a(f's_branch {L("pst")}')
    a.label(L('retry'))
    if NANCHK:
        a('s_cmp_lg_u32 s62, 0')
        a(f's_cbranch_scc1 {L("cont")}')
        a('s_waitcnt vmcnt(0) lgkmcnt(0)')
        a.label(L('rv'))
        for ks in range(7): ml(ks)
        a('s_waitcnt vmcnt(0)')
        ck2 = Checker(a, 118)
        ck2.add(M, 28); ck2.drain()
        a('v_cmp_eq_u32 vcc, -1, v118')
        a(f's_cbranch_vccz {L("rk")}')
        spin(a, L('rv'), ABORT)
        a.label(L('rk'))
        a('s_mov_b32 s62, 1')
        zero()
        a('s_add_u32 s31, s31, 1')
        if NPRE == 7: a(f's_branch {L("ld2")}')
        else:
            for x in xfirst(): a(x)
            for ks in o1:
                for ti in range(7): a(S(ti, ks))
            a(f's_branch {L("ph2")}')
    else:
        a('s_waitcnt vmcnt(0) lgkmcnt(0)')
        a.nop(10)
        zero()
        a('s_add_u32 s31, s31, 1')
        spin(a, L('ld'), ABORT)

def init_score(a, w):
    AOP = 64
    a(f's_mul_i32 s31, s17, {CUW_B}')
    a(f's_add_u32 s31, s31, {WF_A}')
    units = [((kap * 4 + q) * TILE_B + ks * UNIT, wreg(ti, ks)) for ti, (kap, q) in enumerate(score_tiles(w)) for ks in range(7) if not SELF or ti >= 4]
    load_units(a, units, 's31')
    a(f's_mov_b32 s24, {XF_OFF + 7*w*1024}')
    a('s_mov_b32 s25, 0')
    x_dma(a, w)
    a('v_and_b32 v64, 7, v117')
    a('v_and_b32 v65, 1, v116')
    a('v_lshlrev_b32 v65, 2, v65')
    a('v_sub_u32 v64, v64, v65')
    a('v_lshrrev_b32 v65, 3, v117')
    a('v_lshl_add_u32 v66, v65, 2, v64')
    a('v_cmp_gt_u32 vcc, 4, v64')
    a('v_mov_b32 v67, 99')
    a('v_cndmask_b32 v66, v67, v66, vcc')
    a('v_mov_b32 v68, 0x3f80')
    a('v_mov_b32 v69, 0x3f800000')
    for d in range(4):
        a(f'v_mov_b32 v{4+d}, 0')
        a(f'v_cmp_eq_u32 vcc, {2*d}, v66')
        a(f'v_cndmask_b32 v{4+d}, v{4+d}, v68, vcc')
        a(f'v_cmp_eq_u32 vcc, {2*d+1}, v66')
        a(f'v_cndmask_b32 v{4+d}, v{4+d}, v69, vcc')
    a('v_lshrrev_b32 v64, 1, v116')
    a('v_lshrrev_b32 v65, 3, v117')
    a('v_cmp_eq_u32 s[26:27], v64, v65')
    a('v_and_b32 v66, 1, v116')
    a(f'v_add_u32 v64, {2*w}, v64')
    if FOLDW:
        a('v_lshrrev_b32 v67, 1, v116')
        a('v_lshlrev_b32 v67, 8, v67')
    else: a('v_lshlrev_b32 v67, 10, v64')
    a('v_lshl_add_u32 v67, v66, 9, v67')
    a('v_lshl_add_u32 v67, v117, 4, v67')
    a(f'v_add_u32 v112, {XP + (w*1024 if FOLDW else 0)}, v67')
    a('v_and_b32 v68, 7, v117')
    a('v_lshlrev_b32 v67, 8, v64')
    a('v_lshl_add_u32 v67, v68, 5, v67')
    a('v_lshl_add_u32 v67, v66, 4, v67')
    a(f'v_add_u32 v113, {MP}, v67')
    a('v_lshrrev_b32 v64, 5, v1')
    a('v_and_b32 v65, 31, v1')
    a('v_lshrrev_b32 v66, 3, v65')
    a('v_and_b32 v67, 7, v65')
    a('v_and_b32 v68, 3, v67')
    a('v_lshl_add_u32 v68, v66, 2, v68')
    a('v_lshrrev_b32 v69, 2, v67')
    a('v_lshl_add_u32 v68, v69, 4, v68')
    a(f'v_lshlrev_b32 v69, {11 if FOLDW else 12}, v64')
    a('v_lshl_add_u32 v69, v68, 4, v69')
    a(f'v_add_u32 v114, {XP + (w >> 1) * 512 + 2 * (w & 1) * 4}, v69')
    a(f'v_add_u32 v70, {2*w}, v64')
    a('v_lshlrev_b32 v69, 9, v66')
    a('v_lshl_add_u32 v69, v70, 5, v69')
    a('v_lshl_add_u32 v69, v67, 2, v69')
    a(f'v_add_u32 v115, {MP}, v69')
    a('v_and_b32 v71, 1, v1')
    a('v_cmp_eq_u32 s[38:39], 0, v71')
    a('v_cmp_gt_u32 vcc, 8, v65')
    a('s_or_b64 s[28:29], s[38:39], vcc')
    a('v_lshrrev_b32 v72, 1, v67')
    a('v_lshlrev_b32 v72, 2, v72')
    a('v_lshl_add_u32 v72, v70, 4, v72')
    a('s_lshl_b32 s22, s17, 9')
    a(f's_add_u32 s22, s22, {PX}')
    a('v_lshl_add_u32 v73, v66, 7, v72')
    a('v_add_u32 v73, s22, v73')
    a('s_lshl_b32 s22, s17, 7')
    a(f's_add_u32 s22, s22, {PM}')
    a('v_add_u32 v74, s22, v72')
    if VSM:
        a('v_bfe_u32 v72, v65, 1, 1')
        a('v_lshlrev_b32 v72, 7, v72')
        a('v_lshl_add_u32 v72, v70, 4, v72')
        a('v_bfe_u32 v73, v65, 2, 2')
        a('v_lshl_add_u32 v72, v73, 2, v72')
        a('v_lshrrev_b32 v73, 4, v65')
        a('v_lshl_add_u32 v73, v73, 8, v72')
        a('s_lshl_b32 s22, s17, 9')
        a(f's_add_u32 s22, s22, {PX}')
        a('v_add_u32 v73, s22, v73')
        a('s_lshr_b32 s22, s17, 1')
        a('s_lshl_b32 s22, s22, 8')
        a('s_and_b32 s34, s17, 1')
        a('s_lshl_b32 s34, s34, 3')
        a('s_add_u32 s22, s22, s34')
        a(f's_add_u32 s22, s22, {PM}')
        a('v_add_u32 v74, s22, v72')
    a('v_lshlrev_b32 v0, 2, v65')
    if F2ONE: a(f'v_and_b32 v0, 0x78, v0\nv_or_b32 v0, {4*(F2ONE-1)}, v0')
    a(f's_and_b32 s22, s17, {R2-1}')
    a('s_lshl_b32 s22, s22, 7')
    a(f's_add_u32 s22, s22, {F2}')
    a(f'v_add_u32 v0, s22, v0')
    a('v_cndmask_b32 v1, v74, v73, s[38:39]')
    a('s_lshl_b32 s36, s17, 2')
    a(f's_add_u32 s36, s36, {F1}')
    a('s_mov_b32 s37, 0x3e800000')
    for r in range(64, 112): a(f'v_mov_b32 v{r}, 0')
    if MRG:
        a('v_and_b32 v118, 1, v116')
        a('v_cmp_eq_u32 vcc, 0, v118')
        a(f'v_mov_b32 v118, {6*2048 + (w >> 1)*256}')
        a(f'v_mov_b32 v119, {(4 + (w >> 1))*2048 + (w & 1)*256}')
        a('v_cndmask_b32 v118, v118, v119, vcc')
        a('v_lshrrev_b32 v116, 1, v116')
        a('v_lshl_add_u32 v118, v116, 9, v118')
        a('v_lshl_add_u32 v117, v117, 4, v118')
        a(f's_mov_b32 s57, {XSEG_B}')
    a('s_mov_b32 s56, 0x42800000')
    a('v_mov_b32 v116, v2')
    if not MRG:
        a('v_lshrrev_b32 v117, 4, v2')
        a('v_min_u32 v117, 55, v117')
        a('v_lshlrev_b32 v117, 7, v117')
    if w in (1, 2):
        nl = 13 if w == 1 else 14
        a('v_lshrrev_b32 v0, 4, v2')
        a(f'v_min_u32 v0, {nl-1}, v0')
        a(f's_mul_i32 s22, s17, {nl}')
        a('v_add_u32 v0, s22, v0')
        a('v_lshlrev_b32 v0, 7, v0')
        a(f'v_add_u32 v0, {2*EXCH_B if w == 1 else 2*XSEG_B - 7*w*1024}, v0')
        for k in (1, 2):
            a(f's_mov_b32 s22, {EXCH_OFF - k*EXCH_B if w == 1 else XF_OFF + 7*w*1024 - k*XSEG_B}')
            a(f'buffer_load_dword v119, v0, {SRD}, s22 offen sc1')
    if X_PRELOAD:
        a(f's_mul_i32 s22, s17, {4*XSEG_B}')
        a(f's_add_u32 s22, s22, {XF_OFF + w*XSEG_B}')
        for k in range(4):
            a(f'buffer_load_dword v119, v117, {SRD}, s22 offen')
            a(f's_add_u32 s22, s22, {56*128}')
    if SC_ALLPOLL:
        a('v_lshrrev_b32 v117, 4, v2')
        a('v_and_b32 v117, 31, v117')
        a('v_lshlrev_b32 v117, 2, v117')
        a(f'v_add_u32 v117, {F2}, v117')
    a(f's_mul_i32 s35, s17, {64*GSH_B}')
    a(f's_add_u32 s35, s35, {VO_OFF + TOUCH_AHEAD*GSH_B + w*56*128}')

YL = 0; ML = 8 * KB; WL = 16 * KB
def vtiles(w): return (6 * w, 6, 6) if w < 2 else (12 + 8 * (w - 2), 8, 7)
def vwreg(w, ti, ks):
    u = ti * 7 + ks
    return 256 + 8 * u if u < 32 else (176 if w < 2 else 120) + 8 * (u - 32)

VOK = 175
def vo_wait(a, L, ABORT, t):
    a(f's_branch {L("voc")}')
    a.label(L('vow'))
    a(f'buffer_load_dword v{VOK}, off, {SRD}, s35 sc1')
    a('s_waitcnt vmcnt(0)')
    a.label(L('voc'))
    a(f'v_readfirstlane_b32 s22, v{VOK}')
    a('s_cmp_eq_u32 s22, 56')
    a(f's_cbranch_scc1 {L("vod")}')
    a('s_sleep 1')
    spin(a, L('vow'), ABORT)
    a.label(L('vod'))
    a('s_add_u32 s35, s35, 2048')
    a('s_add_u32 s38, s19, 8')
    a('s_and_b32 s38, s38, -8')
    a('s_cmp_eq_u32 s19, 0')
    a('s_cselect_b32 s38, 4, s38')

def gen_value(a, w, st, tag):
    L = lambda n: f'{tag}_va{w}_{n}'
    ABORT = f'{tag}_abort'
    fin = w < 2
    t0, ntile, nreg = vtiles(w)
    M = 8; ACC = 36
    YA = 60 if fin else 112
    CK = 63
    def S(ti, ks, b=None):
        return f'v_smfmac_f32_16x16x64_bf16 v[{ACC+4*ti}:{ACC+4*ti+3}], v[{M+4*ks}:{M+4*ks+3}], {b or ureg(vwreg(w, ti, ks), 8)}, v3'
    def fold(p):
        A_ = ACC + 8 * p; B_ = A_ + 4
        o = [f'v_permlane32_swap_b32 v{A_+r}, v{B_+r}' for r in range(4)]
        o += [f'v_add_f32 v{A_+r}, v{A_+r}, v{B_+r}' for r in range(4)]
        o += [f'v_cvt_pk_bf16_f32 v{B_}, v{A_}, v{A_+1}', f'v_cvt_pk_bf16_f32 v{B_+1}, v{A_+2}, v{A_+3}', f'ds_write_b64 v{YA+p}, v[{B_}:{B_+1}]']
        return o
    def run(seq):
        last = {}
        for i, (ti, m, pre) in enumerate(seq): last[ti] = i
        pend = []; delay = 0
        for i, (ti, m, pre) in enumerate(seq):
            for x in pre: a(x)
            a(m)
            if delay: delay -= 1
            elif pend:
                a(pend.pop(0))
                if len(pend) > 12: a(pend.pop(0))
            p = ti // 2
            if i == max(last[2 * p], last[2 * p + 1]):
                pend += fold(p)
                if not delay: delay = 3
        for x in pend: a(x)
    a.label(L('loop'))
    step_bases(a)
    if not fin:
        for r in range(ACC, ACC + 4 * ntile): a(f'v_mov_b32 v{r}, 0')
    a('s_mov_b32 s30, 0')
    if fin:
        YT = 64; VOR = 80; LO = 156; HI = 160; PL = 164
        pr = lambda c: 8 + 4 * c if c < 7 else 144 + 4 * (c - 7)
        if SYNC:
            a('s_cmp_lg_u32 s19, s38')
            a(f's_cbranch_scc1 {L("vok")}')
            vo_wait(a, L, ABORT, PL)
            a.label(L('vok'))
        if T2SRV:
            a(f's_cmp_eq_u32 s19, {NSTEPS-1}')
            a(f's_cbranch_scc1 {tag}_done')
        def vol(lo, hi):
            for h in range(lo, hi):
                if h % 2 == 0: a(f's_add_u32 s22, s25, {h*1792}')
                a(f'buffer_load_dwordx4 v[{VOR+4*h}:{VOR+4*h+3}], v6, {SRD}, s22 offen offset:{(h & 1)*1792} sc1')
        vol(0, VO_PRE0)
        if not SLOW_FIRST: a('s_barrier')
        stamp(a, 0)
        if VO_SLEEP: a(f's_sleep {VO_SLEEP}')
        vol(VO_PRE0, VO_PRE)
        if SYNC: a(f'buffer_load_dword v{VOK}, off, {SRD}, s35 sc1')
        a('s_barrier')
        stamp(a, 1)
        for ks in range(7): a(f'ds_read_b128 v[{M+4*ks}:{M+4*ks+3}], v2 offset:{ML + ks*1024}')
        vol(VO_PRE, 16)
        a('s_waitcnt lgkmcnt(0)')
        run([(ti, S(ti, ks), []) for ti in range(ntile) for ks in range(7)])
        stamp(a, 2)
        a(f's_cmp_eq_u32 s19, {NSTEPS-1}')
        a(f's_cbranch_scc1 {L("last")}')
        a(f's_add_u32 s22, s20, {PX}')
        a(f's_add_u32 s34, s20, {PX + 4096}')
        a(f's_add_u32 s36, s20, {PM}')
        a('s_mov_b32 s37, 0')
        for r in range(4): a(f'v_mov_b32 v{LO+r}, 0')
        if STAMPS:
            a('s_waitcnt vmcnt(0)')
            stamp(a, 7)
        if VSM and B2_POS < 0:
            a('s_waitcnt lgkmcnt(0)')
            for r in range(ACC, ACC + 4 * ntile): a(f'v_mov_b32 v{r}, 0')
            a('s_barrier')
            for k in range(4): a(f'ds_read_b128 v[{YT+4*k}:{YT+4*k+3}], v2 offset:{YL + w*4096 + k*1024}')
            stamp(a, 3)
        if FIN_SLEEP: a(f's_sleep {FIN_SLEEP}')
        flagpoll(a, 4, 's20', PL, L('fw'), ABORT, PD_V, PG_V)
        stamp(a, 4)
        a('s_waitcnt lgkmcnt(0)')
        if VSM:
            pl = PLAIN_P and st == ''
            def pld(c, sc):
                so = ('s22', 's34', 's36')[c // 4]
                a(f'buffer_load_dwordx4 v[{pr(c)}:{pr(c)+3}], v2, {SRD}, {so} offen offset:{(c & 3)*1024}' + (' sc1' if sc else ''))
            def psm(c):
                B_ = VOR + 8 * c if c < 8 else YT + 8 * (c - 8)
                a(f'v_smfmac_f32_16x16x64_bf16 v[{LO}:{LO+3}], v[{pr(c)}:{pr(c)+3}], v[{B_}:{B_+7}], v3')
            zr = list(range(ACC, ACC + 4 * ntile)) if B2_POS >= 0 else []
            for c in range(NPP):
                pld(c, not pl)
                for _ in range(VZ):
                    if zr: a(f'v_mov_b32 v{zr.pop(0)}, 0')
            issued = NPP; nst = 0; q = list(range(NPP))
            if VST: stamp(a, 7)
            for c in range(10):
                if c == B2_POS:
                    a('s_barrier')
                    for k in range(4): a(f'ds_read_b128 v[{YT+4*k}:{YT+4*k+3}], v2 offset:{YL + w*4096 + k*1024}')
                    stamp(a, 3)
                a(f's_waitcnt vmcnt({len(q) - 1 - q.index(c)})' + (' lgkmcnt(0)' if c == 8 else ''))
                if c == 0: stamp(a, 5)
                if VST and c in (3, 6, 9): stamp(a, c // 3)
                psm(c)
                if c == F2_POS and (not F2ONE or w == F2ONE - 1):
                    q.append('f')
                    exec_lo(a, R2)
                    a(f'buffer_store_dword v2, v7, {SRD}, s21 offen {st}')
                    a('s_mov_b64 exec, -1')
                    nst = 1
                if issued < 10:
                    pld(issued, not pl); q.append(issued); issued += 1
                for _ in range(2):
                    if zr: a(f'v_mov_b32 v{zr.pop(0)}, 0')
            a.label(L('ep'))
            while zr: a(f'v_mov_b32 v{zr.pop(0)}, 0')
            a(f'v_permlane32_swap_b32 v{LO}, v{LO+2}')
            a(f'v_permlane32_swap_b32 v{LO+1}, v{LO+3}')
            a(f'v_add_f32 v{HI}, v{LO}, v{LO+2}')
            a(f'v_add_f32 v{HI+1}, v{LO+1}, v{LO+3}')
            a(f'v_cmp_u_f32 vcc, v{HI}, v{HI+1}')
            a(f'v_mov_b32_dpp v{HI+2}, v{HI} row_ror:8 {D}')
            a(f'v_mov_b32_dpp v{HI}, v{HI+1} row_ror:8 row_mask:0xf bank_mask:0xc')
            a(f's_cbranch_vccnz {L("rp")}')
            a(f'v_mov_b32_dpp v{HI+1}, v{HI+2} quad_perm:[0,1,2,3] row_mask:0xf bank_mask:0x3')
            a(f'v_cvt_pk_bf16_f32 v{HI}, v{HI}, v{HI+1}')
            a.label(L('pc'))
            if w == 1: a('s_mov_b64 exec, s[26:27]')
            a(f'buffer_store_dword v{HI}, v1, {SRD}, s21 offen {st}')
        else:
            pl = PLAIN_P and st == ''
            if not pl: a.label(L('lp'))
            for c in range(10):
                so = ('s22', 's34', 's36')[c // 4]
                a(f'buffer_load_dwordx4 v[{pr(c)}:{pr(c)+3}], v5, {SRD}, {so} offen offset:{(c & 3)*1024}' + ('' if pl else ' sc1'))
                for r in range(ACC + 4 * c, min(ACC + 4 * c + 4, ACC + 4 * ntile)): a(f'v_mov_b32 v{r}, 0')
            if pl: a.label(L('lp'))
            ck = Checker(a, CK)
            nst = 0
            for c in range(10):
                if c == B2_POS:
                    a('s_cmp_lg_u32 s37, 0')
                    a(f's_cbranch_scc1 {L("nb2")}')
                    a('s_waitcnt lgkmcnt(0)')
                    a('s_barrier')
                    for k in range(4): a(f'ds_read_b128 v[{YT+4*k}:{YT+4*k+3}], v2 offset:{YL + w*4096 + k*1024}')
                    a.label(L('nb2'))
                    stamp(a, 3)
                a(f's_waitcnt vmcnt({9-c+nst})' + (' lgkmcnt(0)' if c == 8 else ''))
                if c < EC_P:
                    a.label(L(f'e{c}'))
                    r = pr(c)
                    a(f'v_max3_u32 v{PL}, v{r}, v{r+1}, v{r+2}')
                    a(f'v_max_u32 v{PL}, v{PL}, v{r+3}')
                    a(f'v_cmp_eq_u32 vcc, -1, v{PL}')
                    a(f's_cbranch_vccnz {L(f"er{c}")}')
                if c == 0: stamp(a, 5)
                if c == F2_POS:
                    exec_lo(a, R2)
                    a(f'buffer_store_dword v2, v7, {SRD}, s21 offen {st}')
                    a('s_mov_b64 exec, -1')
                    nst = 1
                if c >= EC_P: ck.add(pr(c))
                B_ = f'v[{pr(c)}:{pr(c)+3}]'
                for hi, acc in ((1, HI), (0, LO)):
                    A_ = VOR + 4 * (2 * c + hi) if c < 8 else YT + 4 * (2 * (c - 8) + hi)
                    a(f'v_mfma_f32_16x16x32_bf16 v[{acc}:{acc+3}], v[{A_}:{A_+3}], {B_}, ' + ('0' if c == 0 else f'v[{acc}:{acc+3}]'))
                    ck.emit()
            ck.drain()
            a(f'v_cmp_eq_u32 vcc, -1, v{CK}')
            for r in range(4): a(f'v_add_f32_dpp v{LO+r}, v{HI+r}, v{LO+r} row_ror:8 {D}')
            a(f's_cbranch_vccnz {L("rp")}')
            a(f'v_cvt_pk_bf16_f32 v{HI}, v{LO}, v{LO+1}')
            a(f'v_cvt_pk_bf16_f32 v{HI+1}, v{LO+2}, v{LO+3}')
            a(f'v_min_u32 v{HI}, -2, v{HI}')
            a(f'v_min_u32 v{HI+1}, -2, v{HI+1}')
            a('s_mov_b64 exec, s[26:27]')
            a(f'buffer_store_dwordx2 v[{HI}:{HI+1}], v1, {SRD}, s21 offen {st}')
        if T2SRV:
            a(f's_cmp_lg_u32 s19, {NSTEPS-2}')
            a(f's_cbranch_scc1 {L("nl")}')
            a(f's_mov_b32 s22, {MEMG_OFF + (NSTEPS-1)*7*KB}')
            if VSM: a(f'buffer_store_dword v{HI}, v1, {SRD}, s22 offen sc1')
            else: a(f'buffer_store_dwordx2 v[{HI}:{HI+1}], v1, {SRD}, s22 offen sc1')
            a('s_mov_b64 exec, -1')
            a(f's_branch {tag}_done')
            a.label(L('nl'))
        a('s_mov_b64 exec, -1')
        if SLOW_FIRST: a('s_barrier')
        stamp(a, 6)
        if not NOBULK: a(f's_add_u32 s25, s25, {GSH_B}')
        stamp_flush(a, 4 + w, 8, L('sf'), PL)
    else:
        STG = [76, 84, 92]; TP = 100
        TPS = [100, 104, 108, 4]
        t2st = [[f'buffer_store_dwordx4 v[{TPS[k]}:{TPS[k]+3}], v2, {SRD}, s24 offen offset:{k*1024} sc1'] for k in range(4)]
        t2st[-1].append(f's_add_u32 s24, s24, {8*KB}')
        t2fl = ['s_mov_b64 exec, 1', f'buffer_store_dword v117, v2, {SRD}, s34 offen sc1', 's_mov_b64 exec, -1', 's_add_u32 s34, s34, 8']
        def emit(gs):
            for g_ in gs:
                for x in g_: a(x)
        myks = [0, 1, 2, 3] if w == 2 else [4, 5, 6]
        oth = [k for k in range(7) if k not in myks]
        def mload():
            for ks in myks:
                a(f'buffer_load_dwordx4 v[{M+4*ks}:{M+4*ks+3}], v2, {SRD}, {"s20" if ks < 4 else "s23"} offen offset:{(ks & 3) * 1024} sc1')
        if HLP_SLEEP: a(f's_sleep {HLP_SLEEP}')
        flagpoll(a, 119, 's20', 76, L('fp'), ABORT, PD_H, PG_H)
        stamp(a, 0)
        mload()
        if PUBLISH and PUB_EARLY == 1: emit([t2fl] + t2st)
        if not SLOW_FIRST: a('s_barrier')
        if PUBLISH and PUB_EARLY == 2: emit([t2fl] + t2st)
        if PUBLISH and PUB_EARLY:
            a('s_waitcnt vmcnt(5)')
            a(f's_branch {L("ld2")}')
        a.label(L('ld'))
        a('s_waitcnt vmcnt(0)')
        if PUBLISH and PUB_EARLY: a.label(L('ld2'))
        ck = Checker(a, 84)
        for ks in myks: ck.add(M + 4 * ks)
        ck.drain()
        a('v_cmp_eq_u32 vcc, -1, v84')
        for ks in myks: a(f'ds_write_b128 v2, v[{M+4*ks}:{M+4*ks+3}] offset:{ML + ks*1024}')
        a(f's_cbranch_vccnz {L("retry")}')
        a('s_waitcnt lgkmcnt(0)')
        a('s_barrier')
        stamp(a, 1)
        for ks in oth: a(f'ds_read_b128 v[{M+4*ks}:{M+4*ks+3}], v2 offset:{ML + ks*1024}')
        if w == 2: a(f'ds_read_b128 v[92:95], v0')
        if VAL_TOUCH:
            a(f'buffer_load_dword v99, v118, {SRD}, {"s20" if w == 2 else "s39"} offen sc1')
            a(f's_add_u32 s39, s39, {XSEG_B}')
        if SELF_POISON:
            for r in range(76, 80): a(f'v_mov_b32 v{r}, -1')
            a('s_add_u32 s22, s21, s38')
            if w == 3: a('s_mov_b64 exec, 0x1f')
            a(f'buffer_store_dwordx4 v[76:79], v2, {SRD}, s22 offen {st}')
            if w == 3: a('s_mov_b64 exec, -1')
        if PUBLISH and not PUB_EARLY and not SLOW_FIRST and not T2SRV: emit([t2fl] + t2st)
        a('s_waitcnt lgkmcnt(0)')
        mg = ['s_mov_b64 exec, s[26:27]', f'buffer_store_dwordx4 v[92:95], v2, {SRD}, s36 offen sc1', 's_mov_b64 exec, -1', f's_add_u32 s36, s36, {7*KB}']
        if w == 2 and PUBLISH:
            if SLOW_FIRST:
                a(f's_cmp_lg_u32 s19, {NSTEPS-1}')
                a(f's_cbranch_scc1 {L("nmg")}')
            emit([mg])
            if SLOW_FIRST: a.label(L('nmg'))
        if T2SRV:
            a(f's_cmp_eq_u32 s19, {NSTEPS-1}')
            a(f's_cbranch_scc1 {tag}_done')
        lu = [(7, ks) for ks in range(7)]
        ru = [(t_, ks) for t_ in (6, 0, 1, 2, 3, 4, 5) for ks in range(7)]
        def wr(j):
            t_, ks = lu[j]; b = STG[j % 3]; off = (t_ - 7) * TILE_B + ks * UNIT
            return [f'ds_read_b128 v[{b}:{b+3}], v1 offset:{off}', f'ds_read_b128 v[{b+4}:{b+7}], v1 offset:{off+1024}']
        seq = []
        for j, (t_, ks) in enumerate(lu):
            pre = (wr(0) + wr(1) if j == 0 else []) + (wr(j + 2) if j + 2 < len(lu) else [])
            for k in range(2):
                r_ = ru.pop(0); seq.append((r_[0], S(*r_), pre if k == 0 else []))
            b = STG[j % 3]
            seq.append((t_, S(t_, ks, f'v[{b}:{b+7}]'), [f's_waitcnt lgkmcnt({2 * min(2, len(lu) - 1 - j)})']))
        for r_ in ru: seq.append((r_[0], S(*r_), []))
        run(seq)
        stamp(a, 2)
        a('s_waitcnt lgkmcnt(0)')
        a('s_barrier')
        for k in range(4):
            q = 2 * (w - 2) + (k >> 1); tp = k & 1
            if not T2SRV: a(f'ds_read_b128 v[{TPS[k]}:{TPS[k]+3}], v2 offset:{YL + tp*4096 + q*1024}')
        a(f's_cmp_eq_u32 s19, {NSTEPS-2 if T2SRV else NSTEPS-1}')
        a(f's_cbranch_scc1 {tag + "_done" if T2SRV else L("last")}')
        if SLOW_FIRST:
            if w == 2: a(f'ds_read_b128 v[92:95], v0')
            a('s_waitcnt vmcnt(0) lgkmcnt(0)')
            a('s_barrier')
            if PUBLISH: emit([t2fl] + t2st + ([mg] if w == 2 else []))
        else:
            a('s_waitcnt vmcnt(0) lgkmcnt(0)')
        stamp(a, 3)
        stamp_flush(a, 4 + w, 4, L('sf'), 76)
    a('s_add_u32 s19, s19, 1')
    a('s_mov_b32 s20, s21')
    a.flush()
    a(f's_branch {L("loop")}')
    if fin:
        a.label(L('last'))
        a('s_waitcnt lgkmcnt(0)')
        a('s_barrier')
        a(f's_branch {tag}_done')
        for c in range(EC_P):
            a.label(L(f'er{c}'))
            so = ('s22', 's34', 's36')[c // 4]
            a(f'buffer_load_dwordx4 v[{pr(c)}:{pr(c)+3}], v5, {SRD}, {so} offen offset:{(c & 3)*1024} sc1')
            a('s_waitcnt vmcnt(0)')
            a('s_add_u32 s31, s31, 0x1000000')
            spin(a, L(f'e{c}'), ABORT)
        a.label(L('rp'))
        if VSM:
            a('s_cmp_eq_u32 s37, 0')
            a(f's_cbranch_scc1 {L("rv")}')
            a(f'v_mov_b32_dpp v{HI+1}, v{HI+2} quad_perm:[0,1,2,3] row_mask:0xf bank_mask:0x3')
            a(f'v_cvt_pk_bf16_f32 v{HI}, v{HI}, v{HI+1}')
            a(f'v_min_u32 v{HI}, -2, v{HI}')
            a(f's_branch {L("pc")}')
            a.label(L('rv'))
            for c in range(10): pld(c, True)
            a('s_waitcnt vmcnt(0)')
            ck2 = Checker(a, CK)
            for c in range(10): ck2.add(pr(c))
            ck2.drain()
            a(f'v_cmp_eq_u32 vcc, -1, v{CK}')
            a(f's_cbranch_vccz {L("rk")}')
            spin(a, L('rv'), ABORT)
            a.label(L('rk'))
            a('s_mov_b32 s37, 1')
            a('s_add_u32 s31, s31, 0x10000')
            for r in range(4): a(f'v_mov_b32 v{LO+r}, 0')
            for c in range(10): psm(c)
            a.flush()
            a(f's_branch {L("ep")}')
            return
        a.nop(8)
        if PLAIN_P and st == '':
            for c in range(10):
                so = ('s22', 's34', 's36')[c // 4]
                a(f'buffer_load_dwordx4 v[{pr(c)}:{pr(c)+3}], v5, {SRD}, {so} offen offset:{(c & 3)*1024} sc1')
        a('s_mov_b32 s37, 1')
        a('s_add_u32 s31, s31, 0x10000')
        spin(a, L('lp'), ABORT)
    else:
        a.label(L('retry'))
        a('s_waitcnt lgkmcnt(0)')
        mload()
        a('s_add_u32 s31, s31, 1')
        spin(a, L('ld'), ABORT)
        a.label(L('last'))
        a('s_waitcnt lgkmcnt(0)')
        emit(t2st)
        a('s_waitcnt vmcnt(0)')
        emit([t2fl, t2fl])
        a(f's_branch {tag}_done')

def init_value(a, w, p):
    fin = w < 2
    t0, ntile, nreg = vtiles(w)
    YA = 60 if fin else 112
    a(f's_mul_i32 s31, s17, {CUW_B}')
    a(f's_add_u32 s31, s31, {WF_B}')
    units = [((t0 + ti) * TILE_B + ks * UNIT, vwreg(w, ti, ks)) for ti in range(nreg) for ks in range(7)]
    if BDEP: BDEP(16 * t0 // 28, (16 * (t0 + nreg) - 1) // 28)
    load_units(a, units, 's31')
    if fin and BDEP: BDEP(16 * (vtiles(w + 2)[0] + 7) // 28, (16 * (vtiles(w + 2)[0] + 8) - 1) // 28)
    if fin:
        th = vtiles(w + 2)[0] + 7
        for f in range(14):
            if f % 4 == 0:
                a(f's_mov_b32 m0, {WL + 3*w*TILE_B + f*1024}')
                a(f's_add_u32 s22, s31, {th*TILE_B + f*1024}')
            a(f'buffer_load_dwordx4 v2, {SRD}, s22 offen offset:{(f & 3)*1024}' + (' sc1' if MERGE else '') + ' lds')
            if f % 16 == 15: a('s_waitcnt vmcnt(24)')
    a('v_mov_b32 v72, v116')
    a('v_mov_b32 v73, v117')
    a('v_lshrrev_b32 v65, 1, v72')
    a('v_and_b32 v66, 1, v72')
    for pp in range(ntile // 2):
        a(f'v_add_u32 v67, {t0 + 2*pp}, v65')
        a('v_lshl_add_u32 v67, v67, 4, v73')
        a('v_mul_u32_u24 v68, 2341, v67')
        a('v_lshrrev_b32 v68, 16, v68')
        a('v_mul_u32_u24 v69, 28, v68')
        a('v_sub_u32 v69, v67, v69')
        a('v_lshrrev_b32 v70, 4, v69')
        a('v_and_b32 v69, 15, v69')
        if VSM:
            a('v_and_b32 v71, 1, v69')
            a('v_lshrrev_b32 v69, 1, v69')
            a('v_lshl_add_u32 v69, v71, 3, v69')
        a('v_lshlrev_b32 v71, 12, v70')
        a('v_lshl_add_u32 v71, v68, 8, v71')
        a('v_lshl_add_u32 v71, v69, 4, v71')
        a(f'v_lshl_add_u32 v{YA+pp}, v66, 3, v71')
    if fin:
        a('v_and_b32 v0, 31, v1')
        a('v_lshlrev_b32 v0, 2, v0')
        a(f'v_add_u32 v0, {F2}, v0')
        a('v_lshlrev_b32 v4, 2, v73')
        if R1 == 32:
            a('s_lshl_b32 s22, s17, 1')
            a(f's_add_u32 s22, s22, {w}')
        else: a(f's_and_b32 s22, s17, {R1-1}')
        a('s_lshl_b32 s22, s22, 7')
        a(f's_add_u32 s22, s22, {F1}')
        a(f'v_add_u32 v4, s22, v4')
        a('v_and_b32 v64, 7, v73')
        a('v_lshlrev_b32 v5, 4, v64')
        a('v_lshl_add_u32 v5, v72, 7, v5')
        a('v_lshrrev_b32 v65, 3, v73')
        a('v_lshl_add_u32 v5, v65, 9, v5')
        a('s_lshl_b32 s22, s17, 3')
        a(f's_add_u32 s22, s22, {F2 + 4*w}')
        a('v_lshl_add_u32 v7, v2, 3, s22')
        a(f'v_add_u32 v65, {16*w}, v73')
        a('v_min_u32 v65, 27, v65')
        a('v_mad_u32_u24 v65, v72, 28, v65')
        a('v_lshlrev_b32 v6, 4, v65')
        a('s_lshr_b32 s22, s17, 1')
        a('s_mul_i32 s22, s22, 7')
        a('s_and_b32 s34, s17, 1')
        a('s_lshl_b32 s35, s34, 2')
        a('v_add_u32 v70, s35, v72')
        a('v_mov_b32 v71, s34')
        a(f'v_mov_b32 v69, {w}')
        a('v_cmp_eq_u32 vcc, 3, v72')
        a('v_cndmask_b32 v70, v70, v72, vcc')
        a('v_cndmask_b32 v69, v69, v71, vcc')
        a('v_add_u32 v70, s22, v70')
        a('v_lshrrev_b32 v68, 1, v70')
        a('v_lshlrev_b32 v68, 8, v68')
        a('v_lshl_add_u32 v68, v69, 7, v68')
        a('v_and_b32 v69, 1, v70')
        a('v_lshl_add_u32 v68, v69, 3, v68')
        a('v_lshl_add_u32 v1, v64, 4, v68')
        a('v_cmp_gt_u32 s[26:27], 8, v73')
        if w == 1:
            a('v_cmp_gt_u32 vcc, 3, v72')
            a('s_and_b64 s[26:27], s[26:27], vcc')
        if VSM:
            a('v_lshrrev_b32 v65, 3, v73')
            a('v_lshl_add_u32 v66, v64, 1, v65')
            a(f'v_add_u32 v66, {16*w}, v66')
            a('v_min_u32 v66, 27, v66')
            a('v_mad_u32_u24 v66, v72, 28, v66')
            a('v_lshlrev_b32 v6, 4, v66')
            a('s_mul_i32 s22, s17, 28')
            a(f's_add_u32 s22, s22, {16*w}')
            a('v_lshl_add_u32 v70, v64, 1, s22')
            a('v_lshrrev_b32 v68, 4, v70')
            a('v_lshlrev_b32 v68, 8, v68')
            a('v_bfe_u32 v69, v70, 1, 1')
            a('v_lshl_add_u32 v68, v69, 7, v68')
            a('v_bfe_u32 v69, v70, 2, 2')
            a('v_lshl_add_u32 v68, v69, 2, v68')
            a('v_and_b32 v69, 1, v72')
            a('v_lshl_add_u32 v65, v69, 2, v65')
            a('v_lshrrev_b32 v69, 1, v72')
            a('v_lshl_add_u32 v65, v69, 1, v65')
            a('v_lshl_add_u32 v1, v65, 4, v68')
            a('v_cmp_gt_u32 s[26:27], 6, v64')
            for r in range(156, 160): a(f'v_mov_b32 v{r}, 0')
            for k in range(4): a(f'ds_write_b128 v2, v[156:159] offset:{YL + w*4096 + k*1024}')
        a(f's_mul_i32 s22, s17, {64*GSH_B}')
        a(f's_add_u32 s25, s22, {VO_OFF}')
        a('s_lshl_b32 s35, s17, 7')
        a(f's_add_u32 s35, s35, {CNT_OFF + VOC - 2048}')
        a('s_mov_b32 s38, 0')
        a(f'v_mov_b32 v{VOK}, 0')
    else:
        a(f's_mul_i32 s24, s17, {65*8*KB}')
        a(f's_add_u32 s24, s24, {T2_OFF + (w-2)*4096 + (8*KB if SLOW_FIRST else 0)}')
        a('s_mul_i32 s34, s17, 640')
        a(f's_add_u32 s34, s34, {CNT_OFF + T2F + 4*(w-2) + (8 if SLOW_FIRST else 0)}')
        a('s_mul_i32 s36, s17, 448')
        a('v_add_u32 v0, s36, v2')
        a(f'v_add_u32 v0, {ML}, v0')
        a(f's_add_u32 s36, s36, {MEMG_OFF}')
        a('v_cmp_gt_u32 s[26:27], 28, v1')
        a('v_and_b32 v119, 31, v1')
        a('v_lshlrev_b32 v119, 2, v119')
        if F2ONE: a(f'v_and_b32 v119, 0x78, v119\nv_or_b32 v119, {4*(F2ONE-1)}, v119')
        a('s_add_u32 s22, s17, 16')
        a(f's_and_b32 s22, s22, {R2-1}')
        a('s_lshl_b32 s22, s22, 7')
        a(f's_add_u32 s22, s22, {F2}')
        a(f'v_add_u32 v119, s22, v119')
        nl = 13 if w == 2 else 14
        a(f'v_min_u32 v118, {nl-1}, v1')
        a(f's_mul_i32 s22, s17, {nl}')
        a('v_add_u32 v118, s22, v118')
        a('v_lshlrev_b32 v118, 7, v118')
        a(f'v_add_u32 v118, {2*EXCH_B if w == 2 else 2*XSEG_B}, v118')
        a(f's_mov_b32 s39, {XF_OFF}')
        a(f'v_add_u32 v1, {WL + 3*(w-2)*TILE_B}, v2')
        a('v_mov_b32 v117, 1')
        a('s_mul_i32 s38, s17, 1104')
        a(f's_add_u32 s38, s38, {EXCH_B + (w-2)*1024}')

def dbg_wait(a, P, t, abort):
    a('s_mov_b32 s30, 0')
    a.label(P)
    a(f'buffer_load_dword v{t+2}, v{t}, {DBG}, 0 offen sc1')
    a('s_waitcnt vmcnt(0)')
    a(f'v_cmp_ne_u32 vcc, v{t+2}, v{t+1}')
    a(f's_cbranch_vccz {P}_ok')
    a('s_sleep 4')
    a('s_add_u32 s30, s30, 1')
    a(f's_cmp_lt_u32 s30, {SLOW_LIMIT}')
    a(f's_cbranch_scc1 {P}')
    a(f's_branch {abort}')
    a.label(P + '_ok')

def dep_regs(a, cg_s, t, lane='v1'):
    a(f's_and_b32 s20, {cg_s}, 15')
    a('s_lshr_b32 s21, s20, 1')
    a('s_mul_i32 s21, s21, 56')
    a('s_add_u32 s22, s21, 55')
    a('s_lshr_b32 s21, s21, 6')
    a('s_lshr_b32 s22, s22, 6')
    a('s_add_u32 s21, s21, 24')
    a('s_add_u32 s22, s22, 24')
    a('s_add_u32 s20, s20, 8')
    a(f's_cmp_lt_u32 {cg_s}, 16')
    a('s_cselect_b32 s21, s20, s21')
    a('s_cselect_b32 s22, s20, s22')
    a(f's_cselect_b32 s20, {A_TGT}, {B_TGT}')
    a('s_lshl_b32 s21, s21, 2')
    a('s_lshl_b32 s22, s22, 2')
    a(f'v_mov_b32 v{t}, 124')
    a(f'v_mov_b32 v{t+1}, 128')
    a(f'v_writelane_b32 v{t}, s21, 0')
    a(f'v_writelane_b32 v{t}, s22, 1')
    a(f'v_writelane_b32 v{t+1}, s20, 0')
    a(f'v_writelane_b32 v{t+1}, s20, 1')

def xprep_loop(a, P):
    import prep
    a.label(f'{P}_l')
    a('s_waitcnt vmcnt(0) lgkmcnt(0)')
    a('v_mov_b32 v4, 1')
    a('v_mov_b32 v5, 20')
    wg_atomic(a, f'{P}_el', 's3')
    a('s_cmp_ge_u32 s3, 32')
    a(f's_cbranch_scc1 {P}_d')
    prep.xprep_item(a, P, 's3', st='sc1', signal=DBG)
    a(f's_branch {P}_l')
    a.label(f'{P}_d')

def wg_atomic(a, P, dst):
    a('v_mov_b32 v6, 160000')
    a('s_barrier')
    a('s_cmp_lg_u32 s16, 0')
    a(f's_cbranch_scc1 {P}1')
    a('s_mov_b64 exec, 1')
    a(f'buffer_atomic_add v4, v5, {DBG}, 0 offen sc0')
    a('s_waitcnt vmcnt(0)')
    a('ds_write_b32 v6, v4')
    a('s_waitcnt lgkmcnt(0)')
    a('s_mov_b64 exec, -1')
    a.label(f'{P}1')
    a('s_barrier')
    a('ds_read_b32 v4, v6')
    a('s_waitcnt lgkmcnt(0)')
    a(f'v_readfirstlane_b32 {dst}, v4')

def staff_check(a, okl, mode):
    a('s_mov_b32 s30, 0')
    a('v_mov_b32 v36, 0')
    a.label('ch_chk')
    a(f'buffer_load_dword v37, v36, {DBG}, 0 offen sc1')
    a('s_waitcnt vmcnt(0)')
    a('v_readfirstlane_b32 s22, v37')
    a('s_and_b32 s22, s22, 0xffff')
    a('s_cmp_ge_u32 s22, 32')
    a('s_cbranch_scc1 ch_go_end')
    a('s_sleep 16')
    a('s_add_u32 s30, s30, 1')
    a('s_cmp_lt_u32 s30, 64')
    a('s_cbranch_scc1 ch_chk')
    a.label('ch_go_end')
    a('v_mov_b32 v6, 160016')
    a('v_mov_b32 v4, s22')
    a('s_cmp_lg_u32 s16, 0')
    a('s_cbranch_scc1 ch_dec')
    a('ds_write_b32 v6, v4')
    a('s_waitcnt lgkmcnt(0)')
    a.label('ch_dec')
    a('s_barrier')
    a('ds_read_b32 v4, v6')
    a('s_waitcnt lgkmcnt(0)')
    a('v_readfirstlane_b32 s22, v4')
    a('s_cmp_ge_u32 s22, 32')
    a(f's_cbranch_scc1 {okl}')
    a('v_mov_b32 v4, 0x10001')
    a(f's_mov_b32 s18, {mode}')
    a('s_branch ch_take')

def worker_s4d(a):
    import s4d
    s4d.s4d_setup(a)
    a.label('wk_loop')
    a('v_mov_b32 v4, 1')
    a('v_mov_b32 v5, 4')
    wg_atomic(a, 'wk_el', 's3')
    a('v_and_b32 v4, 15, v1')
    a('s_cmp_ge_u32 s3, 112')
    a('s_cbranch_scc1 wk_done')
    s4d.s4d_item(a, 'wk', 's3')
    a('s_branch wk_loop')
    a.label('wk_done')

def poll_eq(a, P, srd, soff, target, sleep=4):
    a('v_mov_b32 v8, 0')
    a('s_mov_b32 s30, 0')
    a.label(P)
    a(f'buffer_load_dword v9, v8, {srd}, {soff} offen sc1')
    a('s_waitcnt vmcnt(0)')
    a(f'v_cmp_ne_u32 vcc, {target}, v9')
    a(f's_cbranch_vccz {P}_ok')
    a(f's_sleep {sleep}')
    a('s_add_u32 s30, s30, 1')
    a(f's_cmp_lt_u32 s30, {SLOW_LIMIT}')
    a(f's_cbranch_scc1 {P}')
    a('s_branch cA_abort')
    a.label(P + '_ok')
def flag_wait(a, P):
    a('s_cmp_lg_u32 s97, 0')
    a(f's_cbranch_scc1 {P}_sk')
    a('s_movk_i32 s20, 128')
    poll_eq(a, P, DBG, 's20', 1)
    a('s_mov_b32 s97, 1')
    a.label(P + '_sk')
def ac_wait(a, P):
    a('s_lshl_b32 s20, s17, 7')
    a(f's_add_u32 s20, s20, {CNT_OFF + AC}')
    poll_eq(a, P, SRD, 's20', 7, sleep=6)

def worker_all(a):
    import s4d, gemm, tok, prep
    JS = DBG if MERGE else SRD
    JO = 64 if MERGE else CNT_OFF + JOBC
    NA = 112 if MERGE == 1 else 0
    NJ = 1104 + NA
    tok.PEEK = JS
    a('s_load_dwordx2 s[36:37], s[0:1], 112')
    a('s_waitcnt lgkmcnt(0)')
    a(f's_mov_b32 s92, s36\ns_and_b32 s93, s37, 0xffff\ns_mov_b32 s94, {2048*896*2}\ns_mov_b32 s95, 0x20000')
    def ask():
        lb = a.newlabel('ask')
        a('s_cmp_lg_u32 s16, 0')
        a(f's_cbranch_scc1 {lb}')
        a('v_mov_b32 v250, 1')
        a(f'v_mov_b32 v251, {JO}')
        a('s_mov_b64 exec, 1')
        a(f'buffer_atomic_add v250, v251, {JS}, 0 offen sc0')
        a('s_mov_b64 exec, -1')
        a.label(lb)
    a('s_mov_b32 s96, 0')
    if MERGE:
        a('s_cmp_lg_u32 s101, -1')
        a('s_mov_b32 s3, s101')
        a('s_mov_b32 s101, -1')
        a('s_cbranch_scc1 wk_have')
    ask()
    a('s_branch wk_next')
    a.label('wk_loop')
    a('s_waitcnt vmcnt(0) lgkmcnt(0)')
    a('s_cmp_eq_u32 s96, 1')
    a('s_cbranch_scc1 wk_ask')
    a('s_mov_b32 s96, 1')
    staff_check(a, 'wk_ask', 0)
    a.label('wk_ask')
    a('v_readfirstlane_b32 s22, v250')
    a(f's_cmp_ge_u32 s22, {NJ}')
    a('s_cbranch_scc1 wk_next')
    ask()
    a.label('wk_next')
    evlog(a, 9005)
    a('v_mov_b32 v6, 160000')
    a('s_waitcnt vmcnt(0)')
    a('s_barrier')
    a('s_cmp_lg_u32 s16, 0')
    a('s_cbranch_scc1 wk_n1')
    a('s_mov_b64 exec, 1')
    a('ds_write_b32 v6, v250')
    a('s_mov_b64 exec, -1')
    a('s_waitcnt lgkmcnt(0)')
    a.label('wk_n1')
    a('s_barrier')
    a('ds_read_b32 v4, v6')
    a('s_waitcnt lgkmcnt(0)')
    a('v_readfirstlane_b32 s3, v4')
    a.label('wk_have')
    evlog(a, 's3')
    a(f's_cmp_ge_u32 s3, {NJ}')
    a('s_cbranch_scc1 wk_done')
    a('v_mov_b32 v250, 0')
    a(f'v_mov_b32 v251, {JO}')
    a('v_and_b32 v1, 63, v0')
    a('v_lshlrev_b32 v2, 4, v1')
    a('v_lshrrev_b32 v3, 4, v1')
    a('v_and_b32 v4, 15, v1')
    if MERGE == 3: flag_wait(a, 'wk_fw')
    if MERGE == 1:
        a('s_cmp_ge_u32 s3, 112')
        a('s_cbranch_scc1 wk_np')
        prep.prep_item(a, 'wpa', 's3', st='sc1', mode='A')
        flag_wait(a, 'wk_fa')
        a('s_waitcnt vmcnt(0)')
        a('s_barrier')
        a('v_mov_b32 v250, 0')
        a('s_cmp_lg_u32 s16, 0')
        a('s_cbranch_scc1 wk_loop')
        a('s_lshl_b32 s20, s17, 7')
        a(f's_add_u32 s20, s20, {CNT_OFF + AC}')
        a('v_mov_b32 v5, 1')
        a('v_mov_b32 v6, 0')
        a('s_mov_b64 exec, 1')
        a(f'buffer_atomic_add v5, v6, {SRD}, s20 offen')
        a('s_mov_b64 exec, -1')
        a('s_branch wk_loop')
        a.label('wk_np')
        a('s_sub_u32 s3, s3, 112')
        flag_wait(a, 'wk_fw')
    a('s_cmp_ge_u32 s3, 592')
    a('s_cbranch_scc1 wk_tok')
    a('s_cmp_ge_u32 s3, 480')
    a('s_cbranch_scc1 wk_s4d')
    a('s_cmp_ge_u32 s3, 256')
    a('s_cbranch_scc1 wk_full')
    a('s_cmp_ge_u32 s3, 224')
    a('s_cbranch_scc1 wk_srv')
    a('s_cmp_ge_u32 s3, 112')
    a('s_cselect_b32 s18, 1, 0')
    a('s_cselect_b32 s20, 112, 0')
    a('s_sub_u32 s20, s3, s20')
    a('s_and_b32 s17, s20, 15')
    a('s_add_u32 s17, s17, 16')
    a('s_lshr_b32 s34, s20, 4')
    a('s_lshl_b32 s34, s34, 1')
    a('s_add_u32 s35, s34, 2')
    if RB1_DELAY:
        a('s_cmp_eq_u32 s18, 0')
        a('s_cbranch_scc1 wk_gemm')
        for _ in range(RB1_DELAY): a('s_sleep 127')
    a('s_branch wk_gemm')
    a.label('wk_full')
    a('s_sub_u32 s20, s3, 224')
    a('s_and_b32 s17, s20, 15')
    a('s_lshr_b32 s18, s20, 4')
    a('s_cmp_lt_u32 s18, 8')
    a('s_cselect_b32 s21, 16, 0')
    a('s_add_u32 s17, s17, s21')
    a('s_and_b32 s18, s18, 7')
    a('s_mov_b32 s34, 0\ns_mov_b32 s35, 14')
    a.label('wk_gemm')
    if MERGE == 1:
        a('s_cmp_ge_u32 s17, 16')
        a('s_cbranch_scc1 wk_g2')
        ac_wait(a, 'wk_aw')
        a.label('wk_g2')
        evlog(a, 9006)
    gemm.gemm_body(a, 'wg', 's18', 's17', st='sc1', signal=True, ld='sc1' if MERGE else '')
    a('s_branch wk_loop')
    a.label('wk_srv')
    import t2srv
    a('s_and_b32 s18, s3, 15')
    a('s_lshr_b32 s19, s3, 4')
    a('s_and_b32 s19, s19, 1')
    t2srv.t2srv_body(a, 'ws', 's18', 's19', 'cA_abort', ld='sc1' if MERGE else '')
    a('v_mov_b32 v250, 0')
    a('s_branch wk_loop')
    a.label('wk_s4d')
    a('s_sub_u32 s3, s3, 480')
    s4d.s4d_setup(a)
    s4d.s4d_item(a, 'wk', 's3')
    a('s_branch wk_loop')
    a.label('wk_tok')
    a('s_sub_u32 s3, s3, 592')
    a('s_cmp_ge_u32 s3, 512')
    a('s_cbranch_scc1 wk_done')
    a('s_lshr_b32 s17, s3, 3')
    a('s_and_b32 s18, s3, 3')
    a('s_bitcmp1_b32 s3, 2')
    a('s_cbranch_scc1 wk_toko')
    tok.tokp_body(a, 's17', 's18', ld='sc1', st='sc1', sync='wp', ldx='sc1' if MERGE else '')
    a('s_branch wk_loop')
    a.label('wk_toko')
    tok.toko_body(a, 's17', 's18', ld='sc1', sync='wo', OUT='s[92:95]')
    a('s_branch wk_loop')
    a.label('wp_abort')
    a.label('wo_abort')
    a('s_branch cA_abort')
    a.label('wk_done')

def role_tail(a, late=None):
    lane_consts(a)
    a('s_mov_b32 s19, 0')
    a(f's_mov_b32 s20, {EXCH_OFF}')
    if STAMPS: a('s_mov_b32 s63, s17')
    a('s_lshr_b32 s22, s17, 4')
    a('s_lshl_b32 s22, s22, 2')
    a('s_add_u32 s22, s22, s16')
    a('s_and_b32 s17, s17, 15')
    for p in range(8):
        a(f's_cmp_eq_u32 s22, {p}')
        a(f's_cbranch_scc1 ch_init{p}')
    a('s_branch ch_end')
    for p in range(8):
        a.label(f'ch_init{p}')
        if p < 4: init_score(a, p)
        else: init_value(a, p - 4, p)
        if late: late(p)
        a('s_mov_b32 s30, 0')
        a('v_mov_b32 v36, 0')
        a.label(f'ch_md{p}')
        a(f'buffer_load_dword v37, v36, {DBG}, 0 offen sc1')
        a('s_waitcnt vmcnt(0)')
        a('v_readfirstlane_b32 s22, v37')
        a('s_and_b32 s31, s22, 0xffff')
        a('s_cmp_ge_u32 s31, 32')
        a(f's_cbranch_scc1 ch_go{p}')
        a('s_sleep 2')
        a('s_add_u32 s30, s30, 1')
        a(f's_cmp_lt_u32 s30, {SLOW_LIMIT}')
        a(f's_cbranch_scc1 ch_md{p}')
        a('s_branch ch_end')
        a.label(f'ch_go{p}')
        evlog(a, 9003)
        if DIAG: a('s_memtime s[32:33]')
        a('s_mov_b32 s31, 0')
        if p in (4, 5):
            for r in range(36, 60): a(f'v_mov_b32 v{r}, 0')
        a('s_lshr_b32 s22, s22, 16')
        a('s_cmp_lg_u32 s22, 0')
        role = 'sc' if p < 4 else 'va'
        a(f's_cbranch_scc1 cB_{role}{p & 3}_loop')
        a(f's_branch cA_{role}{p & 3}_loop')
    for tag, st in (('cA', ''), ('cB', 'sc1')):
        for w in range(4): gen_score(a, w, st, tag)
        for w in range(4): gen_value(a, w, st, tag)
        tag_end(a, tag)

def tag_end(a, tag):
    a.label(f'{tag}_abort')
    a('v_mov_b32 v4, 0xdead')
    a('v_mov_b32 v5, 16')
    a(f'buffer_store_dword v4, v5, {DBG}, 0 offen')
    a('s_branch ch_end')
    a.label(f'{tag}_done')
    evlog(a, 9004)
    if STAMPS and STAMP_CYC:
        a('s_cmp_lg_u32 s16, 0')
        a('s_cbranch_scc1 ch_end')
        a('s_lshl_b32 s22, s63, 10')
        a(f's_add_u32 s22, s22, {STAMP_OFF + 65536}')
        a('s_mov_b32 s30, 0')
        a('s_mov_b64 exec, 1')
        a.label(f'{tag}_cal')
        a('s_memtime s[40:41]')
        a('s_memrealtime s[42:43]')
        a('s_waitcnt lgkmcnt(0)')
        a('v_mov_b32 v4, s40')
        a('v_mov_b32 v5, s42')
        a(f'buffer_store_dwordx2 v[4:5], off, {SRD}, s22')
        a('s_add_u32 s22, s22, 8')
        a('s_add_u32 s30, s30, 1')
        a('s_cmp_lt_u32 s30, 128')
        a(f's_cbranch_scc1 {tag}_cal')
    if DIAG:
        a('s_memtime s[60:61]')
        a('s_waitcnt lgkmcnt(0)')
        a('s_sub_u32 s60, s60, s32')
        a('v_mov_b32 v4, s60')
        a('v_mov_b32 v5, 8')
        a(f'buffer_store_dword v4, v5, {DBG}, 0 offen')
        a('v_mov_b32 v4, s31')
        a('v_mov_b32 v5, 12')
        a('s_mov_b64 exec, 1')
        a(f'buffer_atomic_add v4, v5, {DBG}, 0 offen')
    a('s_branch ch_end')

def gen_chain_kernel(name='chain_kernel', worker=worker_s4d):
    a = Asm()
    a.raw(kernel_header(name))
    a('s_cmp_ge_u32 s2, 256')
    a('s_cbranch_scc1 ch_end')
    a('s_load_dwordx2 s[4:5], s[0:1], 120')
    a('s_load_dwordx2 s[6:7], s[0:1], 128')
    if CODE_PF: code_prefetch(a, name, 'ch_end', 130000, 60)
    a('s_getreg_b32 s3, hwreg(HW_REG_XCC_ID)')
    a('s_and_b32 s3, s3, 15')
    a('v_lshrrev_b32 v1, 6, v0')
    a('v_readfirstlane_b32 s16, v1')
    a('s_waitcnt lgkmcnt(0)')
    a('s_mov_b32 s8, s6\ns_and_b32 s9, s7, 0xffff\ns_mov_b32 s10, 0x10000000\ns_mov_b32 s11, 0x20000')
    a('s_mov_b32 s12, s4\ns_and_b32 s13, s5, 0xffff\ns_mov_b32 s14, 256\ns_mov_b32 s15, 0x20000')
    if EVLOG:
        a('s_lshl_b32 s100, s2, 2')
        a('s_add_u32 s100, s100, s16')
        a('s_lshl_b32 s100, s100, 8')
        a(f's_add_u32 s100, s100, {EV_OFF}')
    evlog(a, 9000)
    if MERGE:
        import prep
        a('s_mov_b32 s97, 0')
        a('s_mov_b32 s91, s3')
        a('v_and_b32 v1, 63, v0')
        a('v_lshlrev_b32 v2, 4, v1')
        a('v_lshrrev_b32 v3, 4, v1')
        a('v_and_b32 v4, 15, v1')
        a('s_cmp_lg_u32 s16, 0')
        a('s_cbranch_scc1 m_a1')
        a(f's_cmp_eq_u32 s3, {XCD_SEL}')
        a('s_cselect_b32 s20, 0, 64')
        a('v_accvgpr_write_b32 a255, 1')
        a('s_mov_b64 exec, 1')
        a(f'buffer_atomic_add a255, v2, {DBG}, s20 offen sc0')
        a('s_mov_b64 exec, -1')
        a.label('m_a1')
        prep.xall_pre(a, 's2')
        a('s_cmp_ge_u32 s2, 224')
        a('s_cbranch_scc1 m_w')
        prep.prep_item(a, 'mpb', 's2', st='sc1', mode='Bhalf' if MERGE == 1 else 'mix', defer=(MERGE == 3))
        a('s_branch m_e')
        a.label('m_w')
        a('s_waitcnt vmcnt(0)')
        a.label('m_e')
        prep.xall_post(a, 'mpx', 's2', 'sc1', wait=False)
        a('v_mov_b32 v6, 160000')
        a('s_waitcnt vmcnt(0) lgkmcnt(0)')
        a('s_barrier')
        a('s_cmp_lg_u32 s16, 0')
        a('s_cbranch_scc1 m_b1')
        a('v_mov_b32 v4, 1')
        a('v_mov_b32 v5, 96')
        a('v_accvgpr_read_b32 v7, a255')
        a('s_mov_b64 exec, 1')
        a(f'buffer_atomic_add v4, v5, {DBG}, 0 offen sc0')
        a('ds_write_b32 v6, v7')
        a('s_waitcnt lgkmcnt(0)')
        a('s_mov_b64 exec, -1')
        a.label('m_b1')
        a('s_barrier')
        a('ds_read_b32 v7, v6')
        a('s_cmp_lg_u32 s16, 0')
        a('s_cbranch_scc1 m_b2')
        a('s_waitcnt vmcnt(0)')
        a('v_readfirstlane_b32 s20, v4')
        a('s_cmp_lg_u32 s20, 255')
        a('s_cbranch_scc1 m_b2')
        a('v_mov_b32 v4, 1')
        a('v_mov_b32 v5, 128')
        a('s_mov_b64 exec, 1')
        a(f'buffer_store_dword v4, v5, {DBG}, 0 offen sc1')
        a('s_mov_b64 exec, -1')
        a.label('m_b2')
        a('s_waitcnt lgkmcnt(0)')
        a('v_readfirstlane_b32 s101, v7')
        evlog(a, 9001)
        a(f's_cmp_lg_u32 s91, {XCD_SEL}')
        a('s_cbranch_scc1 ch_worker')
        a('s_and_b32 s17, s101, 0xffff')
        a('s_mov_b32 s101, -1')
        a('s_cmp_lt_u32 s17, 32')
        a('s_cbranch_scc1 ch_role')
        a('s_branch ch_worker')
    else:
        a(f's_cmp_lg_u32 s3, {XCD_SEL}')
        a('s_cbranch_scc1 ch_worker')
    a('v_mov_b32 v4, 1')
    a('s_mov_b32 s18, 0')
    a.label('ch_take')
    a('v_mov_b32 v5, 0')
    wg_atomic(a, 'ch_el', 's17')
    a('s_and_b32 s17, s17, 0xffff')
    a('s_cmp_lt_u32 s17, 32')
    a('s_cbranch_scc1 ch_role')
    a('s_cmp_eq_u32 s18, 0')
    a('s_cbranch_scc1 ch_worker')
    a('s_branch ch_end')
    a.label('ch_role')
    if MERGE:
        flag_wait(a, 'ch_fw')
        if MERGE == 1:
            a('s_cmp_ge_u32 s17, 16')
            a('s_cbranch_scc1 ch_r2')
            ac_wait(a, 'ch_aw')
            a.label('ch_r2')
        evlog(a, 9002)
    role_tail(a)
    a.label('ch_worker')
    if worker: worker(a)
    if worker is not worker_all: staff_check(a, 'ch_end', 1)
    a.label('ch_end')
    a('s_endpgm')
    return a

if __name__ == '__main__':
    import sys
    for x in sys.argv[2:]:
        if x == 'stamps': STAMPS = True
        elif '=' in x:
            k, v = x.split('='); globals()[k] = int(v)
    a = gen_chain_kernel()
    out = ['; @launch kernel=chain_kernel grid=(256,1,1) block=(256,1,1) lds=163840',
           '.amdgcn_target "amdgcn-amd-amdhsa--gfx950"', '.text', a.text(), '.section .rodata,"a"', kernel_desc('chain_kernel')]
    open(sys.argv[1], 'w').write('\n'.join(out) + '\n')
    print('instructions', a.count)
```

```python
from asmlib import *
from layout import *
WS = 's[8:11]'
PB = 28 * KB

def gemm_xpre(a, rb_s, NT=4, va=5):
    a(f's_lshl_b32 s20, {rb_s}, 2')
    a('s_add_u32 s20, s20, s16')
    a(f's_mul_i32 s21, s20, {16*896*NT}')
    a(f'v_mul_u32_u24 v{va}, 896, v4')
    a(f'v_lshl_add_u32 v{va}, v3, 4, v{va}')
    for j in range(NT):
        if j: a(f's_add_u32 s21, s21, {16*896}')
        for kk in range(14):
            f = 14 * j + kk
            a(f'buffer_load_dwordx4 a[{4*f}:{4*f+3}], v{va}, s[52:55], s21 offen offset:{kk*64}')

def gemm_body(a, P, rb_s, cg_s, st='', signal=False, ld='', xpre=None, NT=4):
    a(f's_lshl_b32 s20, {rb_s}, {4 if NT == 4 else 3}')
    a(f's_lshl_b32 s21, s16, {2 if NT == 4 else 1}')
    a('s_add_u32 s20, s20, s21')
    a(f's_mul_i32 s21, s20, {14*KB}')
    a(f's_add_u32 s21, s21, {XF_OFF}')
    if xpre:
        a(f's_cmp_lg_u32 {xpre}, 0')
        a(f's_cbranch_scc1 {P}_xp')
    for f in range(14 * NT):
        if f % 4 == 0: a(f's_add_u32 s22, s21, {f*1024}')
        a(f'buffer_load_dwordx4 a[{4*f}:{4*f+3}], v2, {WS}, s22 offen offset:{(f & 3)*1024} {ld}')
    if xpre: a.label(f'{P}_xp')
    a('s_waitcnt vmcnt(40)')
    a(f's_mul_i32 s23, {cg_s}, {CUW_B}')
    a('s_and_b32 s22, s16, 1')
    a('s_mul_i32 s22, s22, 7168')
    a('s_add_u32 s23, s23, s22')
    a(f's_add_u32 s23, s23, {WF_A}')
    a('s_lshr_b32 s22, s16, 1')
    a(f's_mul_i32 s22, s22, {TILE_B}')
    a('s_add_u32 s23, s23, s22')
    a('s_mul_i32 s27, s16, 7168')
    a('s_lshr_b32 s28, s20, 1')
    if NT == 4:
        a(f's_cmp_lt_u32 {cg_s}, 16')
        a(f's_cbranch_scc0 {P}_vo')
    for path in (('f', 'vo') if NT == 4 else ('vo',)):
        isF = path == 'f'
        L = lambda n: f'{P}_{path}_{n}'
        if not isF: a.label(f'{P}_vo')
        if isF: a('s_add_u32 s23, s23, s22')
        def dma(jreg, bufreg):
            if isF:
                a(f's_lshr_b32 s24, {jreg}, 1')
                a('s_lshl_b32 s24, s24, 2')
                a(f's_and_b32 s25, {jreg}, 1')
                a('s_add_u32 s24, s24, s25')
            else:
                a(f's_lshl_b32 s24, {jreg}, 1')
            a(f's_mul_i32 s24, s24, {TILE_B}')
            a('s_add_u32 s24, s24, s23')
            a(f's_cmp_lt_u32 {jreg}, s35')
            a('s_cselect_b32 s24, s24, 0x10000000')
            a(f's_add_u32 m0, {bufreg}, s27')
            for f in range(7):
                if f == 4:
                    a('s_add_u32 m0, m0, 4096')
                    a('s_add_u32 s24, s24, 4096')
                a(f'buffer_load_dwordx4 v2, {WS}, s24 offen offset:{(f & 3)*1024} {ld} lds')
        if isF:
            a('s_lshl_b32 s29, s28, 4')
            a(f's_add_u32 s29, s29, {cg_s}')
            a(f's_mul_i32 s29, s29, {GSH_B}')
            a(f's_add_u32 s29, s29, {F_OFF}')
        else:
            a(f's_sub_u32 s29, {cg_s}, 16')
            a('s_lshl_b32 s29, s29, 6')
            a('s_add_u32 s29, s29, s28')
            a(f's_mul_i32 s29, s29, {GSH_B}')
            a(f's_add_u32 s29, s29, {VO_OFF}')
            a('v_mul_u32_u24 v6, 28, v3')
        a('s_mov_b32 s31, 0')
        dma('s34', 's31')
        a('s_add_u32 s30, s34, 1'); a(f's_mov_b32 s31, {PB}')
        dma('s30', 's31')
        a('s_mov_b32 s19, s34')
        a('s_mov_b32 s32, 0')
        a(f's_mov_b32 s33, {2*PB}')
        a('s_waitcnt vmcnt(7)')
        a(f's_branch {L("in")}')
        a.label(L('loop'))
        a(f's_waitcnt vmcnt({7 + NT})')
        a.label(L('in'))
        a('s_barrier')
        a('s_add_u32 s30, s19, 2')
        dma('s30', 's33')
        a('v_add_u32 v5, s32, v2')
        FR = 8; NF = 8; ACC = 40
        order = [(kk, tau) for kk in range(14) for tau in range(2)]
        def rd(i):
            kk, tau = order[i]; r = FR + 4 * (i % NF)
            a(f'ds_read_b128 v[{r}:{r+3}], v5 offset:{(tau*14 + kk)*1024}')
        PF = 6
        for i in range(PF): rd(i)
        for i, (kk, tau) in enumerate(order):
            if i + PF < 28: rd(i + PF)
            a(f's_waitcnt lgkmcnt({min(PF, 27 - i)})')
            r = FR + 4 * (i % NF)
            for j in range(NT):
                d = ACC + 16 * tau + 4 * j; x = (j * 14 + kk) * 4
                c = '0' if kk == 0 else f'v[{d}:{d+3}]'
                if isF: a(f'v_mfma_f32_16x16x32_bf16 v[{d}:{d+3}], v[{r}:{r+3}], a[{x}:{x+3}], {c}')
                else: a(f'v_mfma_f32_16x16x32_bf16 v[{d}:{d+3}], a[{x}:{x+3}], v[{r}:{r+3}], {c}')
        O = 72
        if isF:
            a('s_lshl_b32 s24, s19, 10')
            a('s_add_u32 s24, s24, s29')
            for j in range(4):
                o = O + 4 * j
                for tau in range(2):
                    d = ACC + 16 * tau + 4 * j
                    a(f'v_cvt_pk_bf16_f32 v{o+2*tau}, v{d}, v{d+1}')
                    a(f'v_cvt_pk_bf16_f32 v{o+2*tau+1}, v{d+2}, v{d+3}')
                a(f's_add_u32 s25, s24, {(j >> 1) * 16 * GSH_B + (j & 1) * 14 * 1024}')
                a(f'buffer_store_dwordx4 v[{o}:{o+3}], v2, {WS}, s25 offen {st}')
        else:
            a(f's_add_u32 s25, s29, {GSH_B}')
            for tau in range(2):
                a('s_lshl_b32 s24, s19, 5')
                a(f's_add_u32 s24, s24, {16*tau}')
                a('v_add_u32 v88, s24, v4')
                a('s_cmp_lt_u32 s19, 8')
                a('s_cselect_b32 s24, 0, 256')
                a('s_cselect_b32 s26, 0, 16')
                a('v_subrev_u32 v88, s24, v88')
                a('s_movk_i32 s24, 5462')
                a('s_cselect_b32 s24, 4096, s24')
                a('v_mul_u32_u24 v89, s24, v88')
                a('v_lshrrev_b32 v89, 16, v89')
                a('s_movk_i32 s24, 100')
                a('s_cselect_b32 s24, 96, s24')
                a('v_mul_u32_u24 v89, s24, v89')
                a('v_add_u32 v88, s26, v88')
                a('v_add3_u32 v88, v88, v89, v6')
                a(f'v_lshlrev_b32 v{90+tau}, 4, v88')
                for sg in range(NT // 2):
                    o = O + 8 * tau + 4 * sg
                    for t in range(2):
                        d = ACC + 16 * tau + 4 * (2 * sg + t)
                        a(f'v_cvt_pk_bf16_f32 v{o+2*t}, v{d}, v{d+1}')
                        a(f'v_cvt_pk_bf16_f32 v{o+2*t+1}, v{d+2}, v{d+3}')
                    a(f'buffer_store_dwordx4 v[{o}:{o+3}], v{90+tau}, {WS}, {"s25" if sg else "s29"} offen {st}')
        a('s_mov_b32 s33, s32')
        a(f's_add_u32 s32, s32, {PB}')
        a(f's_cmp_eq_u32 s32, {3*PB}')
        a('s_cselect_b32 s32, 0, s32')
        a('s_add_u32 s19, s19, 1')
        a('s_cmp_lt_u32 s19, s35')
        a(f's_cbranch_scc1 {L("loop")}')
        a(f's_branch {P}_done')
    a.label(f'{P}_done')
    if signal:
        if NT == 4: a(f's_lshl_b32 s20, {rb_s}, 4')
        else:
            a(f's_lshr_b32 s20, {rb_s}, 1')
            a('s_lshl_b32 s20, s20, 4')
        a(f's_and_b32 s21, {cg_s}, 15')
        a('s_add_u32 s20, s20, s21')
        a('s_lshl_b32 s20, s20, 7')
        a(f's_cmp_lt_u32 {cg_s}, 16')
        a(f's_cselect_b32 s21, {FC - VOC}, 0')
        a('s_add_u32 s20, s20, s21')
        a(f's_add_u32 s20, s20, {CNT_OFF + VOC}')
        a('s_sub_u32 s21, s35, s34')
        if NT == 2: a('s_lshr_b32 s21, s21, 1')
        a('v_mov_b32 v5, s21')
        a('v_mov_b32 v6, 0')
        a('s_waitcnt vmcnt(0)')
        a('s_mov_b64 exec, 1')
        if NT == 2:
            a(f's_cmp_lg_u32 {rb_s}, 0')
            a(f's_cbranch_scc1 {P}_h1')
            a('v_mov_b32 v7, 2')
            a('s_sub_u32 s21, s20, 2048')
            a(f'buffer_atomic_add v7, v6, {WS}, s21 offen')
            a.label(f'{P}_h1')
        a(f'buffer_atomic_add v5, v6, {WS}, s20 offen')
        a('s_mov_b64 exec, -1')

def gen_gemm(name='gemm_kernel'):
    a = Asm(); a.raw(kernel_header(name))
    a('s_cmp_ge_u32 s2, 256')
    a('s_cbranch_scc1 gm_end')
    a('s_load_dwordx2 s[6:7], s[0:1], 128')
    a('v_lshrrev_b32 v1, 6, v0')
    a('v_readfirstlane_b32 s16, v1')
    a('v_and_b32 v1, 63, v0')
    a('v_lshlrev_b32 v2, 4, v1')
    a('v_lshrrev_b32 v3, 4, v1')
    a('v_and_b32 v4, 15, v1')
    a('s_waitcnt lgkmcnt(0)')
    a('s_mov_b32 s8, s6\ns_and_b32 s9, s7, 0xffff\ns_mov_b32 s10, 0x10000000\ns_mov_b32 s11, 0x20000')
    a('s_and_b32 s17, s2, 7')
    a('s_lshl_b32 s17, s17, 2')
    a('s_lshr_b32 s18, s2, 6')
    a('s_add_u32 s17, s17, s18')
    a('s_lshr_b32 s18, s2, 3')
    a('s_and_b32 s18, s18, 7')
    a('s_mov_b32 s34, 0\ns_mov_b32 s35, 14')
    gemm_body(a, 'gm', 's18', 's17')
    a.label('gm_end')
    a('s_endpgm')
    return a

if __name__ == '__main__':
    import sys
    a = gen_gemm()
    out = ['; @launch kernel=gemm_kernel grid=(256,1,1) block=(256,1,1) lds=86016',
           '.amdgcn_target "amdgcn-amd-amdhsa--gfx950"', '.text', a.text(), '.section .rodata,"a"', kernel_desc('gemm_kernel', 352, 128)]
    open(sys.argv[1], 'w').write('\n'.join(out) + '\n')
    print('instructions', a.count)
```

```python
import numpy as np
KB = 1024
UNIT = 2048
TILE_B = 7 * UNIT
CUW_B = 28 * TILE_B
WF_A = 0
WF_B = WF_A + 16 * CUW_B
G_OFF = WF_B + 16 * CUW_B
GSH_B = 28 * KB
VO_OFF = G_OFF + 64 * 16 * GSH_B
XF_OFF = VO_OFF + 64 * 16 * GSH_B
XM_OFF = XF_OFF + 128 * 14 * KB
EXCH_OFF = XM_OFF + 128 * 14 * KB
EXCH_B = 25 * KB
MEMX = 0
PM = 7 * KB
PX = 9 * KB
F1 = 17 * KB
F2 = 21 * KB
EXCH_END = EXCH_OFF + 66 * EXCH_B
T2_OFF = (EXCH_END + 4095) // 4096 * 4096
PT_OFF = T2_OFF + 65 * 16 * 8 * KB
PT_B = 20 * KB
KS_OFF = PT_OFF + 128 * PT_B
SPX_B = 64 * KB; SPM_B = 16 * KB
SPX_OFF = (KS_OFF + 480 * KB + 128 * KB - 1) // (128 * KB) * (128 * KB)
SPM_OFF = SPX_OFF - 2 * SPM_B
MEMG_OFF = SPM_OFF - 64 * 7 * KB
CNT_OFF = SPX_OFF + 2 * SPX_B
VOC = 2 * KB; FC = 18 * KB; PTC = 34 * KB; T2F = 42 * KB; AC = 58 * KB; JOBC = 58 * KB; CNT_B = 58 * KB + 128
BF_R = 9
BF_OFF = (CNT_OFF + CNT_B + 4095) // 4096 * 4096
IF_OFF = BF_OFF + 2048
AF_OFF = BF_OFF + 16 * 2048
F_OFF = G_OFF
POISON = 0xFFFFFFFF

def memcol(ks, gA, half, s):
    return 64 * ks + 16 * gA + 4 * (s >> 1) + 2 * half + (s & 1)
def acol(kappa, q, n):
    g, r = n >> 2, n & 3
    return memcol(kappa, g, q & 1, 4 * (q >> 1) + r)
def vcol(v, cl):
    return 28 * v + cl
def bpack(pi):
    return (pi >> 4, pi & 15) if pi < 256 else ((pi - 256) // 12, 16 + (pi - 256) % 12)
def tokslot(g, s):
    return (4 * g + s) if s < 4 else (16 + 4 * g + s - 4)

def f2bf_bits(f):
    u = np.ascontiguousarray(f, dtype=np.float32).view(np.uint32)
    return ((u + 0x7FFF + ((u >> 16) & 1)) >> 16).astype(np.uint16)

def build_wfrag(W, ncols):
    out = np.zeros((28, 7, 2, 64, 8), np.uint16)
    lane = np.arange(64); g = lane >> 4; n = lane & 15
    for t in range(28):
        cols = np.asarray(ncols[t])[n]
        for ks in range(7):
            for hb in range(2):
                k = 64 * ks + 32 * hb + 8 * g[:, None] + np.arange(8)[None, :]
                out[t, ks, hb] = W[k, cols[:, None]]
    return out
def build_WFA(ATb):
    ncols = [[acol(t >> 2, t & 3, n) for n in range(16)] for t in range(28)]
    return np.stack([build_wfrag(ATb[h], ncols) for h in range(16)])
def build_WFB(Bb):
    Ball = np.concatenate([Bb[h] for h in range(16)], 1)
    res = []
    for v in range(16):
        ncols = [[bpack(16 * t + n)[0] * 448 + vcol(v, bpack(16 * t + n)[1]) for n in range(16)] for t in range(28)]
        res.append(build_wfrag(Ball, ncols))
    return np.stack(res)
_Xcols = np.array([[[[memcol(ks, g, half, s) for s in range(8)] for g in range(4)] for half in range(2)] for ks in range(7)])
def build_M_order(rows):
    R = rows.shape[0] // 16
    r3 = rows.reshape(R, 16, 448)
    o = r3[:, :, _Xcols]
    return np.ascontiguousarray(o.transpose(0, 2, 3, 4, 1, 5)).reshape(R, 7, 2, 64, 8)
def build_G(Gb):
    o = np.stack([build_M_order(Gb[h]) for h in range(16)])
    o = o.reshape(16, 64, 2, 7, 2, 64, 8).transpose(1, 0, 2, 3, 4, 5, 6)
    return np.ascontiguousarray(o)
def build_VO(VOb):
    ts = np.array([[tokslot(g, s) for s in range(8)] for g in range(4)])
    vc = np.array([[vcol(v, cl) for cl in range(28)] for v in range(16)])
    V = VOb.reshape(16, 64, 32, 448)
    o = V[:, :, ts, :]
    o = o[..., vc]
    return np.ascontiguousarray(o.transpose(4, 1, 0, 2, 5, 3))
def build_xfrag(xb):
    x4 = xb.reshape(128, 16, 14, 4, 8)
    return np.ascontiguousarray(x4.transpose(0, 2, 3, 1, 4)).reshape(128, 14, 64, 8)
def build_memx(memb):
    o = memb[:, _Xcols]
    return np.ascontiguousarray(o.transpose(1, 3, 2, 0, 4)).reshape(7, 64, 8)
def decode_memx(mx):
    o = mx.reshape(7, 4, 2, 8, 8)
    res = np.zeros((8, 448), np.uint16)
    for ks in range(7):
        for g in range(4):
            for half in range(2):
                res[:, _Xcols[ks, half, g]] = o[ks, g, half]
    return res
if __name__ == "__main__":
    print("EXCH_OFF", EXCH_OFF, "END", EXCH_END, EXCH_END / 2**20)
    assert sorted(vcol(v, cl) for v in range(16) for cl in range(28)) == list(range(448))
    assert sorted(acol(k, q, n) for k in range(7) for q in range(4) for n in range(16)) == list(range(448))
    m = np.arange(8 * 448).reshape(8, 448).astype(np.uint16)
    assert (decode_memx(build_memx(m)) == m).all()
    print("T2_OFF", T2_OFF, "PT_OFF", PT_OFF, "KS_OFF", KS_OFF, KS_OFF / 2**20)
```

```python
from asmlib import *
from layout import *
import prep
WS = 's[8:11]'
SIGMA = prep.SIGMA
W_BYTES = prep.W_BYTES
NR = 8
NONCE = 's[88:89]'
NS = 9
APRE = 4
DSP = 2
VPRE = 5
XLATE = 1
PF_S = 3
PF_V = 7

def srd(a, d, lo, nbytes): prep.srd(a, d, lo, lo + 1, nbytes)

class VQ:
    def __init__(self): self.q = []
    def add(self, tag, n=1): self.q += [tag] * n
    def wait(self, tag):
        last = max(i for i, t in enumerate(self.q) if t == tag)
        n = len(self.q) - 1 - last
        self.q = self.q[last + 1:]
        return n

class AComp:
    FR = 120
    ACC = 32
    RING = 16; PF = 3; NG = 4
    RA = 8
    SV = 100
    def __init__(self, a, P):
        self.a = a; self.P = P; self.vq = VQ(); self.nxt = 0; self.mid = None
    def dma_ops(self):
        n = self.nxt; self.nxt += 1
        o = [[f'buffer_load_dwordx4 v{4+i}, s[56:59], s22 offen offset:{i*1024} lds', ('vq', ('p', n))] for i in range(4)]
        o[0] = [f's_add_u32 s22, s27, {n << 18}', f's_add_u32 m0, s25, {(n % NS)*16384}'] + o[0]
        return o
    def dma(self):
        for g in self.dma_ops():
            for x in g:
                if isinstance(x, tuple): self.vq.add(x[1])
                else: self.a(x)
    def issue(self):
        a = self.a; SV = self.SV
        srd(a, 60, 42, W_BYTES)
        a('v_lshrrev_b32 v24, 5, v1')
        a('v_and_b32 v25, 31, v1')
        a('s_lshl_b32 s26, s17, 9')
        a('s_lshl_b32 s25, s16, 12')
        a('v_xor_b32 v26, v25, v24')
        a('v_lshlrev_b32 v26, 4, v26')
        a('v_lshl_add_u32 v26, v24, 13, v26')
        for i in range(4):
            a(f'v_xor_b32 v{SV+i}, {32*(i >> 1)}, v26')
            if i: a(f'v_add_u32 v{SV+i}, {i*(16384-1024)}, v{SV+i}')
        a('s_lshl_b32 s23, s16, 19')
        a('s_add_u32 s23, s23, s26')
        def stage(grp):
            if grp and grp % 2 == 0:
                for i in range(4): a(f'v_xor_b32 v{SV+i}, {64*((grp >> 1) ^ ((grp >> 1) - 1))}, v{SV+i}')
            a(f's_add_u32 m0, s25, {(grp + 1)*16384}')
            if grp: a(f's_add_u32 s23, s23, {8 << 13}')
            for i in range(4): a(f'buffer_load_dwordx4 v{SV+i}, s[60:63], s23 offen offset:{i*1024} lds')
            self.vq.add('k', 4)
        for grp in range(8): stage(grp)
        srd(a, 56, 40, W_BYTES)
        a('s_lshl_b32 s21, s16, 16')
        a('s_add_u32 s27, s26, s21')
        a('s_lshr_b32 s20, s16, 1')
        a('s_lshl_b32 s20, s20, 6')
        a('v_xor_b32 v26, s20, v26')
        for i in range(4):
            a(f'v_xor_b32 v{4+i}, {128*(i >> 1) + 32*(i & 1)}, v26')
            if i: a(f'v_add_u32 v{4+i}, {i*(16384-1024)}, v{4+i}')
        self.dma()
    def setup(self):
        a = self.a; SV = self.SV
        a('v_and_b32 v26, 15, v25')
        a('v_xor_b32 v27, v26, v24')
        a('v_lshlrev_b32 v27, 4, v27')
        a('v_bfe_u32 v28, v25, 2, 1')
        a('v_lshlrev_b32 v28, 4, v28')
        a('v_lshrrev_b32 v29, 3, v25')
        a('v_lshl_add_u32 v28, v29, 2, v28')
        a('v_and_b32 v29, 3, v25')
        a('v_add_u32 v28, v28, v29')
        a('v_lshl_add_u32 v28, v28, 9, v27')
        a('v_lshrrev_b32 v29, 2, v26')
        a('v_lshlrev_b32 v29, 15, v29')
        a('v_bfe_u32 v30, v26, 1, 1')
        a('v_lshl_add_u32 v29, v30, 11, v29')
        a('v_lshrrev_b32 v30, 4, v25')
        a('v_lshl_add_u32 v29, v30, 10, v29')
        a('v_and_b32 v31, 1, v26')
        a('v_lshl_add_u32 v29, v31, 9, v29')
        a('v_add_u32 v29, v29, v27')
        a('v_add_u32 v29, s25, v29')
        for k in range(8):
            a(f'v_xor_b32 v{self.RA+k}, {32*k}, v28')
            a(f'v_xor_b32 v{SV+4+k}, {32*k}, v29')
        a(f's_mov_b32 s52, {SIGMA}')
    def fetch(self):
        a = self.a
        a(f's_waitcnt vmcnt({self.vq.wait("k")})')
        for D in range(2):
            for ks in range(16):
                r = self.FR + 64 * D + 4 * ks
                a(f'ds_read_b128 v[{r}:{r+3}], v{self.SV + 4 + (ks & 7)} offset:{(1 + D)*16384 + (ks >> 3)*256}')
                if ks & 7 == 7: a('s_waitcnt lgkmcnt(4)')
        a('s_waitcnt lgkmcnt(0)')
        while self.nxt < APRE: self.dma()
    def epi(self, p, dest):
        o = []
        for D in range(2):
            b0 = self.ACC + 32 * (p & 1) + 16 * D
            for b in (b0, b0 + 8):
                for k in range(4):
                    o += [f'v_mul_f32 v{b+2*k}, s52, v{b+2*k}', f'v_mul_f32 v{b+2*k+1}, s52, v{b+2*k+1}', f'v_cvt_pk_bf16_f32 v{b+k}, v{b+2*k}, v{b+2*k+1}']
            o += [f'v_permlane16_swap_b32 v{b0+k}, v{b0+8+k}' for k in range(4)]
            for u in range(2):
                o += [f'v_accvgpr_write_b32 a{dest(2*D+u, p) - 256 + k}, v{b0+8*u+k}' for k in range(4)]
        return o
    def run(self, dest, extra=None):
        a = self.a; vq = self.vq; PF = self.PF
        hi = [0] * 8
        def rd(i):
            p, ks = i >> 4, i & 15; r = self.RING + 4 * (i % self.NG); k = ks & 7; sl = p % NS
            if hi[k] != sl >> 2:
                a(f'v_xor_b32 v{self.RA+k}, {(hi[k] ^ (sl >> 2)) << 16}, v{self.RA+k}'); hi[k] = sl >> 2
            a(f'ds_read_b128 v[{r}:{r+3}], v{self.RA+k} offset:{(sl & 3)*16384 + (ks >> 3)*256}')
        def sync(p):
            if ('p', p) in vq.q: a(f's_waitcnt vmcnt({vq.wait(("p", p))})')
            a('s_barrier')
        sync(1)
        for i in range(PF): rd(i)
        side = []; mem = []
        for i in range(14 * 16):
            p, ks = i >> 4, i & 15
            if ks == 0:
                if p & 1 and p < 13:
                    assert not mem
                    sync(p + 2)
                    if self.mid: self.mid(p)
                    while self.nxt < min(14, p + NS): mem += self.dma_ops()
                if p == 0:
                    while self.nxt < min(NS, APRE + 4): mem += self.dma_ops()
                if extra: mem += extra(p)
            if i + PF < 14 * 16: rd(i + PF)
            a(f's_waitcnt lgkmcnt({min(PF, 14 * 16 - 1 - i)})')
            r = self.RING + 4 * (i % self.NG)
            for D in range(2):
                d = self.ACC + 32 * (p & 1) + 16 * D; b = self.FR + 64 * D + 4 * ks
                a(f'v_mfma_f32_32x32x16_bf16 v[{d}:{d+15}], v[{r}:{r+3}], v[{b}:{b+3}], ' + ('0' if ks == 0 else f'v[{d}:{d+15}]'))
                if D == 0 and mem:
                    for x in mem.pop(0):
                        if isinstance(x, tuple): vq.add(x[1])
                        else: a(x)
                if ks >= 1:
                    for _ in range(3 - D):
                        if side: a(side.pop(0))
            if ks == 15:
                assert not side
                side = self.epi(p, dest)
        assert not mem
        for x in side: a(x)

def flag_store(a, soff_s, R, stride, t=24):
    a(f'v_mul_u32_u24 v{t+2}, {stride}, v1')
    a(f'v_mov_b32 v{t}, s88\nv_mov_b32 v{t+1}, s89')
    a(f's_mov_b64 exec, {(1 << R) - 1}')
    a(f'buffer_store_dwordx2 v[{t}:{t+1}], v{t+2}, {WS}, {soff_s} offen sc1')
    a('s_mov_b64 exec, -1')

def flag_poll(a, P, t, loads, abort, limit, sleep=4, on_spin=None, issued=False):
    a('s_mov_b32 s30, 0')
    if issued: a(f's_branch {P}_w')
    a.label(P)
    for i, (va, so) in enumerate(loads):
        a(f'buffer_load_dwordx4 v[{t+4*i}:{t+4*i+3}], v{va}, {WS}, {so} offen sc1')
    if issued: a.label(P + '_w')
    a('s_waitcnt vmcnt(0)')
    for i in range(2 * len(loads)):
        a(f'v_cmp_ne_u64 vcc, {NONCE}, v[{t+2*i}:{t+2*i+1}]')
        a(f's_cbranch_vccnz {P}_no')
    a(f's_branch {P}_ok')
    a.label(P + '_no')
    a(f's_sleep {sleep}')
    a('s_add_u32 s30, s30, 1')
    if on_spin: on_spin()
    a(f's_cmp_lt_u32 s30, {limit}')
    a(f's_cbranch_scc1 {P}')
    a(f's_branch {abort}')
    a.label(P + '_ok')

def bjob_decode(a):
    a('s_mul_i32 s17, s18, 4682')
    a('s_lshr_b32 s17, s17, 16')
    assert all((i * 4682) >> 16 == i // 14 for i in range(224))
    a('s_mul_i32 s20, s17, 14')
    a('s_sub_u32 s19, s18, s20')
    a('s_cmp_ge_u32 s19, 7')
    a('s_cselect_b32 s31, 7, 0')
    a('s_sub_u32 s19, s19, s31')

def bjob_issue(a, vq, mat=1, P='bj', hook=None):
    srd(a, 60, 40 + 4 * mat, W_BYTES); srd(a, 56, 42 + 4 * mat, W_BYTES)
    a('s_lshl_b32 s30, s16, 13')
    if mat:
        a('s_mul_i32 s27, s17, 229376')
        a('s_lshl_b32 s29, s19, 7')
        a('s_add_u32 s27, s27, s29')
        a('v_lshrrev_b32 v7, 3, v1')
        a('v_and_b32 v8, 7, v1')
        a('s_lshl_b32 s29, s16, 6')
        a('v_add_u32 v7, s29, v7')
        a('v_mul_u32_u24 v7, 896, v7')
        a('v_lshl_add_u32 v7, v8, 4, v7')
        for i in range(8):
            if i % 4 == 0: a(f's_add_u32 m0, s30, {i*1024}')
            a(f's_add_u32 s22, s27, {i*8*896 - (i & 3)*1024}')
            a(f'buffer_load_dwordx4 v7, s[56:59], s22 offen offset:{(i & 3)*1024} lds')
    else:
        a('s_lshl_b32 s27, s19, 19')
        a('s_lshl_b32 s29, s16, 17')
        a('s_add_u32 s27, s27, s29')
        a('s_lshl_b32 s29, s17, 9')
        a('s_add_u32 s27, s27, s29')
        a('v_lshrrev_b32 v5, 5, v1')
        a('v_and_b32 v6, 31, v1')
        a('v_xor_b32 v6, v6, v5')
        a('v_lshlrev_b32 v6, 4, v6')
        a('v_lshl_add_u32 v6, v5, 13, v6')
        for i in range(8):
            if i % 4 == 0: a(f's_add_u32 m0, s30, {i*1024}')
            a(f's_add_u32 s22, s27, {i*16384 - (i & 3)*1024}')
            a(f'v_xor_b32 v7, {32*i}, v6')
            a(f'buffer_load_dwordx4 v7, s[56:59], s22 offen offset:{(i & 3)*1024} lds')
    vq.add('stat', 8)
    if hook: hook()
    a('v_lshrrev_b32 v5, 5, v1')
    a('v_and_b32 v6, 31, v1')
    a('s_lshl_b32 s25, s16, 15')
    a('s_add_u32 s25, s25, 32768')
    a('s_lshl_b32 s26, s17, 9')
    for k, sp in ((0, 's28'), (4, 's29')):
        a(f's_add_u32 {sp}, s19, s16')
        if k: a(f's_add_u32 {sp}, {sp}, {k}')
        a(f's_cmp_ge_u32 {sp}, 7')
        a('s_cselect_b32 s20, 7, 0')
        a(f's_sub_u32 {sp}, {sp}, s20')
        a(f's_add_u32 {sp}, {sp}, s31')
    a('s_lshl_b32 s32, s28, 18\ns_add_u32 s32, s32, s26')
    a('s_lshl_b32 s33, s29, 18\ns_add_u32 s33, s33, s26')
    a('v_xor_b32 v8, v6, v5')
    a('v_lshlrev_b32 v8, 4, v8')
    a('v_lshl_add_u32 v8, v5, 13, v8')
    for i in range(4):
        a(f'v_xor_b32 v{12+i}, {32*(i & 1)}, v8')
        if i: a(f'v_add_u32 v{12+i}, {i*(16384-1024)}, v{12+i}')
    for j in range(4):
        a(f's_add_u32 s20, s16, {j}')
        a('s_and_b32 s20, s20, 3')
        a(f's_mul_i32 s21, s20, {65536 + 64}')
        a('s_lshl_b32 s20, s20, 12')
        a(f's_add_u32 s{48 + j}, s20, s25')
        a(f's_mov_b32 m0, s{48 + j}')
        for i in range(4):
            a(f'v_xor_b32 v{16+4*j+i}, s21, v{12+i}')
            a(f'buffer_load_dwordx4 v{16+4*j+i}, s[60:63], s32 offen offset:{i*1024} lds')
    vq.add('p0', 16)
    a('s_cmp_eq_u32 s16, 3')
    a(f's_cbranch_scc1 {P}_np1')
    for i in range(16):
        if i % 4 == 0: a(f's_add_u32 m0, s{48 + (i >> 2)}, 16384')
        a(f'buffer_load_dwordx4 v{16+i}, s[60:63], s33 offen offset:{(i & 3)*1024} lds')
    vq.add('p1', 16)
    a.label(f'{P}_np1')

def bjob_x(a, vq):
    srd(a, 52, 36, 2048 * 448 * 2)
    a('s_lshl_b32 s20, s18, 8')
    a('v_add_u32 v95, s20, v0')
    M448 = (1 << 32) // 448 + 1
    assert all((u * M448) >> 32 == u // 448 for u in range(57344))
    a(f's_mov_b32 s21, {M448}')
    a('v_mul_hi_u32 v6, v95, s21')
    a('v_mul_u32_u24 v7, 448, v6')
    a('v_sub_u32 v7, v95, v7')
    a('v_lshrrev_b32 v8, 4, v7')
    a('v_and_b32 v7, 15, v7')
    a('v_lshl_add_u32 v9, v6, 4, v7')
    a('v_mul_u32_u24 v9, 896, v9')
    a('v_lshl_add_u32 v9, v8, 5, v9')
    a('buffer_load_dwordx4 v[84:87], v9, s[52:55], 0 offen')
    a('buffer_load_dwordx4 v[88:91], v9, s[52:55], 0 offen offset:16')
    vq.add('x', 2)
    a(f'v_mul_u32_u24 v6, {14*KB}, v6')
    a('v_lshl_add_u32 v6, v7, 4, v6')
    a('v_lshl_add_u32 v92, v8, 9, v6')
    a('v_lshrrev_b32 v7, 2, v8')
    a('v_lshl_add_u32 v6, v7, 11, v6')
    a('v_and_b32 v7, 3, v8')
    a('v_lshl_add_u32 v93, v7, 8, v6')
    srd(a, 72, 38, 8 * 448 * 2)
    a('v_min_u32 v6, 223, v0')
    a('v_lshrrev_b32 v7, 3, v6')
    a('v_and_b32 v6, 7, v6')
    a('v_mul_u32_u24 v9, 896, v6')
    a('v_lshl_add_u32 v9, v7, 5, v9')
    a('buffer_load_dwordx4 v[36:39], v9, s[72:75], 0 offen')
    a('buffer_load_dwordx4 v[40:43], v9, s[72:75], 0 offen offset:16')
    vq.add('x', 2)
    a('v_lshlrev_b32 v7, 8, v7')
    a('v_lshl_add_u32 v94, v6, 4, v7')

def a1_touch(a, vq):
    a('s_cmp_lt_u32 s16, 2')
    a('s_cselect_b32 s20, s40, s42')
    a('s_cselect_b32 s21, s41, s43')
    srd(a, 72, 20, W_BYTES)
    a('s_add_u32 s20, s19, s31')
    a('s_lshl_b32 s21, s20, 5')
    a('s_lshl_b32 s22, s16, 4')
    a('s_add_u32 s21, s21, s22')
    a('s_mul_i32 s20, s20, 14')
    a('s_add_u32 s20, s20, 250')
    a('s_cmp_lt_u32 s16, 2')
    a('s_cselect_b32 s20, s21, s20')
    a('s_lshl_b32 s20, s20, 13')
    a('s_add_u32 s20, s20, s26')
    a('v_lshlrev_b32 v6, 13, v4')
    a('v_lshl_add_u32 v6, v3, 7, v6')
    a('buffer_load_dword v51, v6, s[72:75], s20 offen')
    vq.add('t')

def wait3(a, n, extra=''):
    l = a.newlabel('w3')
    a(f's_waitcnt vmcnt({n}){extra}')
    a('s_cmp_lg_u32 s16, 3')
    a(f's_cbranch_scc1 {l}')
    a(f's_waitcnt vmcnt({n-16})')
    a.label(l)

def _fills(a, vq):
    k = 0
    for base, n, zlo, zn in ((EXCH_OFF, 66 * EXCH_B // 16, F2 // 16, 256), (MEMG_OFF, (CNT_OFF + CNT_B - MEMG_OFF) // 16, (CNT_OFF - MEMG_OFF) // 16, 1 << 20)):
        a(f's_mov_b32 s23, {base}')
        for j in range((n - 448 + 57343) // 57344):
            r = 52 + 4 * k
            a(f'v_add_u32 v6, {448 + 57344*j}, v95')
            a(f'v_subrev_u32 v7, {zlo}, v6')
            a(f'v_mov_b32 v{r}, -1')
            a('v_mov_b32 v9, 0')
            a(f'v_cmp_gt_u32 vcc, {zn}, v7')
            a(f'v_cndmask_b32 v{r}, v{r}, v9, vcc')
            if base == MEMG_OFF:
                assert (SPX_OFF - MEMG_OFF) % 4096 == 0
                a('v_lshrrev_b32 v7, 1, v6')
                a('v_and_b32 v7, v7, v6')
                a('v_bfe_u32 v7, v7, 6, 1')
                a('v_mul_u32_u24 v7, v7, v6')
                a(f'v_cmp_lt_u32 vcc, {(SPX_OFF - MEMG_OFF) // 16}, v7')
                a(f'v_cndmask_b32 v{r}, v{r}, v9, vcc')
            for q in range(1, 4): a(f'v_mov_b32 v{r+q}, v{r}')
            a('v_lshlrev_b32 v8, 4, v6')
            a('v_mov_b32 v9, 0x10000000')
            a(f'v_cmp_lt_u32 vcc, {n-1}, v6')
            a('v_cndmask_b32 v8, v8, v9, vcc')
            a(f'buffer_store_dwordx4 v[{r}:{r+3}], v8, {WS}, s23 offen sc1')
            vq.add('fill'); k += 1
    assert k == 3

def bjob_run(a, P, vq, mat=1, confirm=None, fs='s28', finish=True, late=None):
    BST = 128
    for q in range(4):
        if mat:
            a('s_lshl_b32 s30, s19, 6')
            a(f's_add_u32 s30, s30, {16*q}')
            a('v_add_u32 v8, s30, v4')
            a('v_mul_u32_u24 v10, 2341, v8')
            a('v_lshrrev_b32 v10, 16, v10')
            a('v_mul_u32_u24 v11, 28, v10')
            a('v_sub_u32 v32, v8, v11')
            a('s_lshl_b32 s30, s17, 4')
            a('s_mul_i32 s20, s17, 12')
            a('s_add_u32 s20, s20, 240')
            a('v_mov_b32 v33, s30')
            a('v_mov_b32 v34, s20')
            a('v_cmp_gt_u32 vcc, 16, v32')
            a('v_cndmask_b32 v33, v34, v33, vcc')
            a('v_add_u32 v32, v33, v32')
            a('v_lshrrev_b32 v33, 4, v32')
            a('v_and_b32 v32, 15, v32')
            a(f's_mov_b32 s30, {CUW_B}')
            a('v_mul_lo_u32 v10, v10, s30')
            a(f'v_mul_u32_u24 v33, {TILE_B}, v33')
            a('v_add_u32 v10, v10, v33')
            a('v_lshl_add_u32 v10, v3, 8, v10')
            a('v_lshl_add_u32 v10, v32, 4, v10')
            a(f'v_add_u32 v{12+q}, {WF_B}, v10')
        else:
            if q == 0:
                a(f's_mul_i32 s30, s17, {CUW_B}')
                a(f's_mul_i32 s20, s19, {4*TILE_B}')
                a('s_add_u32 s30, s30, s20')
                a('v_add_u32 v12, s30, v2')
            else: a(f'v_add_u32 v{12+q}, {q*TILE_B}, v12')
            assert WF_A == 0
    a('v_lshrrev_b32 v7, 2, v4')
    a('v_lshlrev_b32 v7, 3, v7')
    a('v_and_b32 v8, 3, v4')
    a('v_add_u32 v7, v7, v8')
    a('v_xor_b32 v10, v3, v4')
    a('v_lshlrev_b32 v10, 4, v10')
    a('v_lshl_add_u32 v10, v7, 9, v10')
    a('v_add_u32 v10, s25, v10')
    for k3 in range(4): a(f'v_xor_b32 v{32+k3}, {64*k3}, v10')
    if mat:
        a('v_lshrrev_b32 v7, 2, v4')
        a('v_lshl_add_u32 v7, v3, 3, v7')
        a('v_lshlrev_b32 v7, 7, v7')
        a('v_and_b32 v8, 3, v4')
        a('v_lshl_add_u32 v7, v8, 3, v7')
    else:
        a('v_and_b32 v8, 2, v4')
        a('v_lshlrev_b32 v8, 1, v8')
        a('v_and_b32 v9, 1, v4')
        a('v_add_u32 v8, v8, v9')
        a('v_lshrrev_b32 v7, 2, v4')
        a('v_lshl_add_u32 v7, v7, 4, v8')
        a('v_xor_b32 v8, v8, v3')
        a('v_lshlrev_b32 v8, 4, v8')
        a('v_lshl_add_u32 v7, v7, 9, v8')
        a(f's_mov_b32 s24, {SIGMA}')
    wait3(a, vq.wait("stat"))
    a('s_barrier')
    for q in range(4):
        for kk in range(8):
            r = BST + (q * 8 + kk) * 4
            if mat:
                for hf in range(2):
                    a(f'ds_read_b64_tr_b16 v[{r+2*hf}:{r+2*hf+1}], v7 offset:{(32*kk + 4*hf)*128 + q*32}')
                if kk & 3 == 3: a('s_waitcnt lgkmcnt(6)')
            else:
                ro = 8 * (q >> 1) + 2 * (q & 1)
                if kk < 4: a(f'v_xor_b32 v{8+kk}, {((4*kk) ^ ro) << 4}, v7')
                a(f'ds_read_b128 v[{r}:{r+3}], v{8 + (kk & 3)} offset:{ro*512 + (kk >> 2)*256}')
                if kk == 7: a('s_waitcnt lgkmcnt(4)')
    ACC = 96; FR = 52
    for it in range(2):
        if it == 1:
            a('s_cmp_eq_u32 s16, 3')
            a(f's_cbranch_scc1 {P}_w3')
        if it == 0: wait3(a, vq.wait('p0'), ' lgkmcnt(0)')
        else: a(f's_waitcnt vmcnt({vq.wait("p1")})')
        if it == 0 and late: late()
        def rd(i): a(f'ds_read_b128 v[{FR+4*(i&3)}:{FR+4*(i&3)+3}], v{32 + (i & 3)} offset:{it*16384 + (i >> 3)*2048 + ((i & 7) >> 2)*256}')
        for i in range(3): rd(i)
        for i in range(16):
            tau, kk = i >> 3, i & 7
            if i + 3 < 16: rd(i + 3)
            a(f's_waitcnt lgkmcnt({min(3, 15 - i)})')
            for q in range(4):
                d = ACC + 16 * tau + 4 * q; b = BST + (q * 8 + kk) * 4
                c = '0' if kk == 0 else f'v[{d}:{d+3}]'
                a(f'v_mfma_f32_16x16x32_bf16 v[{d}:{d+3}], v[{FR+4*(i&3)}:{FR+4*(i&3)+3}], v[{b}:{b+3}], {c}')
        if it == 0 and confirm: confirm()
        a(f's_lshl_b32 s30, {"s29" if it else "s28"}, 10')
        for q in range(4):
            o = 68 + 4 * q
            for tau in range(2):
                d = ACC + 16 * tau + 4 * q
                if not mat:
                    for k in range(4): a(f'v_mul_f32 v{d+k}, s24, v{d+k}')
                a(f'v_cvt_pk_bf16_f32 v{o+2*tau}, v{d}, v{d+1}')
                a(f'v_cvt_pk_bf16_f32 v{o+2*tau+1}, v{d+2}, v{d+3}')
            a(f'buffer_store_dwordx4 v[{o}:{o+3}], v{12+q}, {WS}, s30 offen sc1')
            vq.add('st')
    a.label(f'{P}_w3')
    a(f's_lshl_b32 {fs}, {"s19" if mat else "s17"}, {8 if mat else 7}')
    a(f's_lshl_b32 s21, {"s17" if mat else "s19"}, 4')
    a(f's_add_u32 {fs}, {fs}, s21')
    a('s_cmp_lg_u32 s31, 0')
    a('s_cselect_b32 s21, 8, 0')
    a(f's_add_u32 {fs}, {fs}, s21')
    a(f's_add_u32 {fs}, {fs}, {BF_OFF if mat else AF_OFF}')
    if finish:
        a('s_waitcnt vmcnt(0)')
        publish(a, fs, 1)

def publish(a, fs, R, t=24):
    l = a.newlabel('pub')
    a('s_barrier')
    a('s_cmp_lg_u32 s16, 0')
    a(f's_cbranch_scc1 {l}')
    flag_store(a, fs, R, 2048, t)
    a.label(l)

def init_stores(a, P, vq):
    a('s_waitcnt vmcnt(4)')
    for j in range(4):
        a(f'v_mov_b32 v{96+j}, v{84+2*j}')
        a(f'v_mov_b32 v{100+j}, v{85+2*j}')
        a(f'v_min_u32 v{104+j}, -2, v{36+2*j}')
        a(f'v_min_u32 v{108+j}, -2, v{37+2*j}')
    a(f's_mov_b32 s20, {XF_OFF}\ns_mov_b32 s21, {XM_OFF}')
    a(f'buffer_store_dwordx4 v[84:87], v92, {WS}, s20 offen sc1')
    a(f'buffer_store_dwordx4 v[88:91], v92, {WS}, s20 offen offset:256 sc1')
    a(f'buffer_store_dwordx4 v[96:99], v93, {WS}, s21 offen sc1')
    a(f'buffer_store_dwordx4 v[100:103], v93, {WS}, s21 offen offset:1024 sc1')
    a('s_cmp_lg_u32 s18, 0')
    a(f's_cbranch_scc1 {P}_nm')
    a(f's_mov_b32 s20, {EXCH_OFF}\ns_mov_b32 s21, {MEMG_OFF}')
    for sb in ('s20', 's21'):
        a(f'buffer_store_dwordx4 v[104:107], v94, {WS}, {sb} offen sc1')
        a(f'buffer_store_dwordx4 v[108:111], v94, {WS}, {sb} offen offset:128 sc1')
    a.label(f'{P}_nm')
```

```python
from asmlib import *
from layout import *
import tok
WS = 's[8:11]'
def wreg(ti, ks):
    u = ti * 7 + ks
    return 256 + 8 * u if u < 32 else 120 + 8 * (u - 32)
def t2srv_body(a, P, v_s, par_s, abort, ld=''):
    M = 8; ACC = 36; YT = 64; YA = 72
    a(f's_mul_i32 s20, {v_s}, {CUW_B}')
    a(f's_add_u32 s20, s20, {WF_B}')
    a(f's_mul_i32 s21, s16, {3*TILE_B}')
    a('s_add_u32 s21, s21, s20')
    a(f's_mul_i32 s22, s16, {4*TILE_B}')
    a('s_add_u32 s20, s20, s22')
    for f in range(98):
        if f % 4 == 0: a(f's_add_u32 s22, s20, {f*1024}' if f < 56 else f's_add_u32 s22, s21, {16*TILE_B + (f-56)*1024}')
        r = wreg(0, f // 2) + 4 * (f & 1)
        a(f'buffer_load_dwordx4 {ureg(r, 4)}, v2, {WS}, s22 offen offset:{(f & 3)*1024} {ld}')
        if f % 32 == 31: a('s_waitcnt vmcnt(24)')
    a('v_mov_b32 v5, 0x4444')
    a('v_mov_b32 v6, 0xeeee')
    a('v_cmp_lt_u32 vcc, 7, v4')
    a('v_cndmask_b32 v5, v5, v6, vcc')
    a('s_lshl_b32 s23, s16, 11')
    a('v_lshrrev_b32 v80, 1, v3')
    a('v_and_b32 v81, 1, v3')
    for p in range(4):
        if p < 2:
            a(f'v_add_u32 v83, {2*p}, v80')
            a('v_mov_b32 v84, v4')
            a('v_mov_b32 v86, 0')
        else:
            if p == 2: a('v_lshl_add_u32 v82, v80, 4, v4')
            else: a('v_add_u32 v82, 32, v4')
            a('v_mul_u32_u24 v83, 5462, v82')
            a('v_lshrrev_b32 v83, 16, v83')
            a('v_mul_u32_u24 v84, 12, v83')
            a('v_sub_u32 v84, v82, v84')
            a('v_mov_b32 v86, 1024')
        a('v_lshl_add_u32 v86, v83, 8, v86')
        a('v_lshl_add_u32 v86, v84, 4, v86')
        a('v_lshl_add_u32 v86, v81, 3, v86')
        a(f'v_add_u32 v{YA+p}, s23, v86')
    a('v_add_u32 v76, s23, v2')
    a(f's_mul_i32 s27, {v_s}, 448')
    a('v_mov_b32 v77, s27')
    a('v_mov_b32 v78, 1')
    a(f's_mov_b32 s17, {par_s}')
    a(f's_mul_i32 s24, {par_s}, {7*KB}')
    a(f's_add_u32 s24, s24, {MEMG_OFF}')
    a(f's_mul_i32 s25, {v_s}, 65')
    a(f's_add_u32 s25, s25, {par_s}')
    a('s_lshl_b32 s25, s25, 13')
    a('s_add_u32 s25, s25, s23')
    a(f's_add_u32 s25, s25, {T2_OFF + 8*KB}')
    a(f's_lshl_b32 s26, {v_s}, 6')
    a(f's_add_u32 s26, s26, {par_s}')
    a('s_lshl_b32 s26, s26, 4')
    a('s_lshl_b32 s27, s16, 2')
    a('s_add_u32 s26, s26, s27')
    a(f's_add_u32 s26, s26, {CNT_OFF + T2F}')
    a.label(f'{P}_loop')
    for r in range(ACC, ACC + 28): a(f'v_mov_b32 v{r}, 0')
    a('s_mov_b32 s30, 0')
    a(f's_branch {P}_fl')
    a.label(f'{P}_pm')
    a(f'buffer_load_dword v79, v77, {WS}, s24 offen sc1')
    a('s_waitcnt vmcnt(0)')
    a('v_cmp_eq_u32 vcc, -1, v79')
    a(f's_cbranch_vccnz {P}_pr')
    a.label(f'{P}_fl')
    a('s_add_u32 s22, s24, 4096')
    for ks in range(7):
        a(f'buffer_load_dwordx4 v[{M+4*ks}:{M+4*ks+3}], v2, {WS}, {"s24" if ks < 4 else "s22"} offen offset:{(ks & 3)*1024} sc1')
    a('s_waitcnt vmcnt(0)')
    a(f'v_max_u32 v79, v{M}, v{M+1}')
    for r in range(M + 2, M + 28, 2): a(f'v_max3_u32 v79, v79, v{r}, v{r+1}')
    a('v_cmp_eq_u32 vcc, -1, v79')
    a(f's_cbranch_vccz {P}_pk')
    a.label(f'{P}_pr')
    a('s_sleep 6')
    a('s_add_u32 s30, s30, 1')
    a(f's_cmp_lt_u32 s30, {tok.WAIT_LIMIT}')
    a(f's_cbranch_scc1 {P}_pm')
    a(f's_branch {abort}')
    a.label(f'{P}_pk')
    for ti in range(7):
        for ks in range(7):
            a(f'v_smfmac_f32_16x16x64_bf16 v[{ACC+4*ti}:{ACC+4*ti+3}], v[{M+4*ks}:{M+4*ks+3}], {ureg(wreg(ti, ks), 8)}, v5')
    for p in range(4):
        A_ = ACC + 8 * p; B_ = A_ + 4 if p < 3 else YT
        if p == 3:
            for r in range(4): a(f'v_mov_b32 v{B_+r}, v{A_+r}')
        for r in range(4): a(f'v_permlane32_swap_b32 v{A_+r}, v{B_+r}')
        for r in range(4): a(f'v_add_f32 v{A_+r}, v{A_+r}, v{B_+r}')
        a(f'v_cvt_pk_bf16_f32 v{B_}, v{A_}, v{A_+1}')
        a(f'v_cvt_pk_bf16_f32 v{B_+1}, v{A_+2}, v{A_+3}')
        a(f'ds_write_b64 v{YA+p}, v[{B_}:{B_+1}]')
    a('s_waitcnt lgkmcnt(0)')
    a(f'ds_read_b128 v[{YT}:{YT+3}], v76')
    a(f'ds_read_b128 v[{YT+4}:{YT+7}], v76 offset:1024')
    a('s_waitcnt lgkmcnt(0)')
    a(f'buffer_store_dwordx4 v[{YT}:{YT+3}], v2, {WS}, s25 offen sc1')
    a(f'buffer_store_dwordx4 v[{YT+4}:{YT+7}], v2, {WS}, s25 offen offset:1024 sc1')
    a('s_waitcnt vmcnt(0)')
    a('s_mov_b64 exec, 1')
    a(f'buffer_store_dword v78, v2, {WS}, s26 offen sc1')
    a('s_mov_b64 exec, -1')
    a(f's_add_u32 s24, s24, {14*KB}')
    a(f's_add_u32 s25, s25, {16*KB}')
    a('s_add_u32 s26, s26, 32')
    a('s_add_u32 s17, s17, 2')
    a('s_cmp_lt_u32 s17, 64')
    a(f's_cbranch_scc1 {P}_loop')
```

```python
from asmlib import *
from layout import *
import chain as C, start as S, prep, gemm, tok, s4d, t2srv
from chain import SRD, DBG, evlog
BC = 160000
JOBQ = 192; NON = 128
def mask_off(a, dst, cls):
    a(f's_and_b32 s71, {cls}, 4')
    a('s_mul_i32 s71, s71, 12')
    a(f's_lshl_b32 {dst}, {cls}, 2')
    a(f's_add_u32 {dst}, {dst}, s71')
MASK0 = 32
SCRAMBLE = 0
XPRE = 0
EVMID = 0
WARM = 1
VPF = 28
A1T = 1
XL = 0
LATE = 0
SKIP = 0
S4X = 1
TD = 8
FPOS = 0
VPK = 16
STEAL_AT = 64
Q_FINE = 0; Q_V7 = Q_FINE + 224; Q_SRV = Q_V7 + 112; Q_A = Q_SRV + 32; Q_VH = Q_A + 128; Q_VF = Q_VH + 64; Q_F = Q_VF + 64; Q_S4 = Q_F + 128; Q_TOK = Q_S4 + 112; Q_END = Q_TOK + 512

def kargs(a):
    a('s_load_dwordx8 s[36:43], s[0:1], 56')
    a('s_load_dwordx4 s[44:47], s[0:1], 88')
def lanes(a):
    a('v_and_b32 v1, 63, v0')
    a('v_lshlrev_b32 v2, 4, v1')
    a('v_lshrrev_b32 v3, 4, v1')
    a('v_and_b32 v4, 15, v1')
def w0(a, fn):
    l = a.newlabel('w0')
    a('s_cmp_lg_u32 s16, 0')
    a(f's_cbranch_scc1 {l}')
    fn()
    a.label(l)
def bcast(a, regs, dsts, t=250):
    a(f'v_mov_b32 v{t}, {BC}')
    a('s_add_u32 s101, s101, 1')
    def wr():
        for i, r in enumerate(regs): a(f'ds_write_b32 v{t}, v{r} offset:{4*i}')
        a('s_waitcnt lgkmcnt(0)')
        a(f'v_mov_b32 v{regs[0]}, s101')
        a(f'ds_write_b32 v{t}, v{regs[0]} offset:16')
        a('s_waitcnt lgkmcnt(0)')
    a('s_barrier')
    a('s_mov_b64 exec, 1')
    w0(a, wr)
    a('s_mov_b64 exec, -1')
    a('s_barrier')
    for i, r in enumerate(regs): a(f'ds_read_b32 v{r}, v{t} offset:{4*i}')
    a(f'ds_read_b32 v{t}, v{t} offset:16')
    a('s_waitcnt lgkmcnt(0)')
    for r, d in zip(regs, dsts): a(f'v_readfirstlane_b32 {d}, v{r}')
    a(f'v_cmp_ne_u32 vcc, s101, v{t}')
    a('s_cbranch_vccnz ch_end')

def claim_issue(a, P, r=242):
    a('s_cmp_lg_u32 s66, 0')
    a(f's_cbranch_scc1 {P}_ci')
    def at():
        a('s_lshr_b32 s70, s3, 5')
        mask_off(a, 's70', 's70')
        a('s_lshl_b32 s71, 1, s3')
        a(f'v_mov_b32 v{r}, s71')
        a(f'v_mov_b32 v{r+1}, {MASK0}')
        a('s_mov_b64 exec, 1')
        a(f'buffer_atomic_or v{r}, v{r+1}, {DBG}, s70 offen sc0')
        a(f'buffer_load_dwordx2 v[{r+2}:{r+3}], v{r+1}, {DBG}, 0 offen offset:{NON-MASK0} sc1')
        a('s_mov_b64 exec, -1')
    w0(a, at)
    a.label(f'{P}_ci')

def set_nonce(a, r):
    a(f'v_mov_b32 v{r+1}, {NON}')
    a(f'v_mov_b32 v{r+2}, s88\nv_mov_b32 v{r+3}, s89\nv_mov_b32 v{r+4}, 0\nv_mov_b32 v{r+5}, 0')
    a('s_mov_b64 exec, 1')
    a(f'buffer_atomic_cmpswap_x2 v[{r+2}:{r+5}], v{r+1}, {DBG}, 0 offen sc0')
    a('s_mov_b64 exec, -1')

def confirm(a, P, n, r=242):
    a('s_cmp_lg_u32 s66, 0')
    a(f's_cbranch_scc1 {P}_cf')
    def w():
        a(f's_waitcnt vmcnt({n})')
        a(f'v_readfirstlane_b32 s70, v{r+2}')
        a('s_cmp_lg_u32 s70, 0')
        a(f's_cbranch_scc1 {P}_nz')
        set_nonce(a, r)
        a('s_waitcnt vmcnt(0)')
        a(f'v_readfirstlane_b32 s70, v{r+2}')
        a('s_cmp_lg_u32 s70, 0')
        a(f's_cbranch_scc1 {P}_nz')
        a(f'v_mov_b32 v{r+2}, s88\nv_mov_b32 v{r+3}, s89')
        a.label(f'{P}_nz')
    w0(a, w)
    bcast(a, [r, r + 2, r + 3], ['s70', 's88', 's89'], t=r + 1)
    a('s_mov_b32 s66, 1')
    a('s_bitcmp1_b32 s70, s3')
    a('s_cbranch_scc1 m_reclaim')
    a.label(f'{P}_cf')

def claim_loop(a, P, lo_class, ncls):
    a('s_mov_b32 s21, 0')
    a('s_mov_b64 exec, 1')
    a.label(f'{P}_l')
    a('s_cmp_lg_u32 s70, -1')
    a(f's_cbranch_scc1 {P}_t')
    a('s_add_u32 s20, s20, 1')
    a('s_cmp_lt_u32 s20, 8')
    a(f's_cselect_b32 s20, s20, {lo_class}')
    a('s_mov_b32 s70, 0')
    a('s_mov_b32 s3, -1')
    a('s_add_u32 s21, s21, 1')
    a(f's_cmp_ge_u32 s21, {ncls}')
    a(f's_cbranch_scc1 {P}_d')
    a.label(f'{P}_t')
    a('s_ff0_i32_b32 s22, s70')
    a('s_lshl_b32 s23, 1, s22')
    mask_off(a, 's3', 's20')
    a('v_mov_b32 v242, s23')
    a(f'v_mov_b32 v243, {MASK0}')
    a(f'buffer_atomic_or v242, v243, {DBG}, s3 offen sc0')
    a('s_waitcnt vmcnt(0)')
    a('v_readfirstlane_b32 s70, v242')
    a('s_lshl_b32 s3, s20, 5')
    a('s_add_u32 s3, s3, s22')
    a('s_bitcmp1_b32 s70, s22')
    a(f's_cbranch_scc1 {P}_l')
    a.label(f'{P}_d')
    a('s_mov_b64 exec, -1')
    a('v_mov_b32 v242, s3')

def allflags(a, P, rep_s, t=24, limit=None, sleep=4, on_spin=None):
    a(f's_lshl_b32 s22, {rep_s}, 11')
    a(f's_add_u32 s22, s22, {IF_OFF}')
    a(f'v_add_u32 v{t}, 1024, v2')
    a(f'v_min_u32 v{t}, {1792-16}, v{t}')
    S.flag_poll(a, P, t + 4, [(2, 's22'), (t, 's22')], 'cA_abort', limit or C.SLOW_LIMIT, sleep, on_spin)

def ask(a):
    def f():
        a('v_mov_b32 v250, 1')
        a(f'v_mov_b32 v251, {JOBQ}')
        a('s_mov_b64 exec, 1')
        a(f'buffer_atomic_add v250, v251, {DBG}, 0 offen sc0')
        a('s_mov_b64 exec, -1')
    w0(a, f)

def worker(a):
    tok.PEEK = DBG
    a.label('m_bjob')
    lanes(a)
    a('s_sub_u32 s18, s3, 32')
    vq = S.VQ()
    S.bjob_decode(a)
    S.bjob_issue(a, vq)
    def xl():
        S.bjob_x(a, vq)
        if A1T: S.a1_touch(a, vq)
    if not XL: xl()
    evlog(a, 9008, 52)
    claim_issue(a, 'bj', 44)
    def cf():
        confirm(a, 'bj', 4 + A1T if XL else 0, 44)
        evlog(a, 9001, 52)
    S.bjob_run(a, 'bj', vq, 1, cf, 's77', False, xl if XL else None)
    a(f's_add_u32 s78, s77, {IF_OFF - BF_OFF}')
    a('s_cmp_lt_u32 s19, 3')
    a('s_cbranch_scc1 bj_a1')
    S.init_stores(a, 'bi', vq)
    a('s_waitcnt vmcnt(4)')
    S._fills(a, vq)
    S.publish(a, 's77', 1)
    evlog(a, 9002, 112)
    a('s_waitcnt vmcnt(0)')
    S.publish(a, 's78', BF_R)
    evlog(a, 9007)
    a('s_branch bj_end')
    a.label('bj_a1')
    a('s_add_u32 s19, s19, 4')
    S.init_stores(a, 'bk', vq)
    S._fills(a, vq)
    a('s_barrier')
    vq = S.VQ()
    def hk():
        a('s_waitcnt vmcnt(8)')
        S.publish(a, 's77', 1, 44)
        w0(a, lambda: S.flag_store(a, 's78', BF_R, 2048, 48))
        evlog(a, 9002, 52)
    S.bjob_issue(a, vq, 0, 'ak', hk)
    a('s_mov_b32 s79, 1')
    a('s_branch aj_run')
    a.label('bj_end')
    evlog(a, 9009)
    a('s_mov_b32 s3, s68')
    a('s_cmp_lg_u32 s69, 0')
    a('s_cbranch_scc1 wk_have')
    a('v_mov_b32 v250, 0')
    a('s_branch wk_ask')
    a.label('wk_loop')
    a('s_waitcnt vmcnt(0) lgkmcnt(0)')
    a('s_cmp_eq_u32 s96, 1')
    a('s_cbranch_scc1 wk_ask')
    a('s_mov_b32 s96, 1')
    def staff():
        a('s_mov_b32 s30, 0')
        a(f'v_mov_b32 v243, {MASK0}')
        a.label('sf_l')
        a(f'buffer_load_dword v242, v243, {DBG}, 0 offen sc1')
        a('s_waitcnt vmcnt(0)')
        a('v_readfirstlane_b32 s70, v242')
        a('s_cmp_eq_u32 s70, -1')
        a('s_cbranch_scc1 sf_d')
        a('s_sleep 16')
        a('s_add_u32 s30, s30, 1')
        a('s_cmp_lt_u32 s30, 64')
        a('s_cbranch_scc1 sf_l')
        a('s_mov_b32 s20, 0')
        claim_loop(a, 'sf_c', 0, 1)
        a.label('sf_d')
    w0(a, staff)
    bcast(a, [242], ['s3'], t=243)
    a('s_cmp_eq_u32 s3, -1')
    a('s_cbranch_scc1 wk_ask')
    kargs(a)
    a('s_getreg_b32 s67, hwreg(HW_REG_XCC_ID)')
    a('s_and_b32 s67, s67, 7')
    a('s_mov_b32 s66, 1')
    a('s_waitcnt lgkmcnt(0)')
    a('s_branch m_start')
    a.label('wk_ask')
    a('v_readfirstlane_b32 s22, v250')
    a(f's_cmp_ge_u32 s22, {Q_END}')
    a('s_cbranch_scc1 wk_next')
    ask(a)
    a.label('wk_next')
    evlog(a, 9005)
    a('s_waitcnt vmcnt(0)')
    bcast(a, [250], ['s3'], t=6)
    a.label('wk_have')
    evlog(a, 's3')
    a(f's_cmp_ge_u32 s3, {Q_END}')
    a('s_cbranch_scc1 ch_end')
    a('v_mov_b32 v250, 0')
    a(f'v_mov_b32 v251, {JOBQ}')
    lanes(a)
    a('s_cmp_lg_u32 s97, 0')
    a('s_cbranch_scc1 wk_go')
    a('s_mov_b32 s68, s3\ns_mov_b32 s69, 1')
    def poll():
        def spin():
            a(f's_and_b32 s20, s30, {STEAL_AT-1}')
            a('s_cbranch_scc1 wk_ns')
            a('s_mov_b32 s20, 1\ns_mov_b32 s70, 0')
            claim_loop(a, 'wk_st', 1, 7)
            a('s_cmp_lg_u32 s3, -1')
            a('s_cbranch_scc1 wk_pd')
            a('s_add_u32 s20, s67, 1')
            a(f's_lshl_b32 s22, s20, 11')
            a(f's_add_u32 s22, s22, {IF_OFF}')
            a.label('wk_ns')
        a('s_add_u32 s20, s67, 1')
        allflags(a, 'wk_af', 's20', sleep=4, on_spin=spin)
        a('v_mov_b32 v242, -1')
        a.label('wk_pd')
    w0(a, poll)
    bcast(a, [242], ['s3'], t=243)
    a('s_cmp_lg_u32 s3, -1')
    a('s_cbranch_scc1 m_bjob')
    a('s_mov_b32 s3, s68\ns_mov_b32 s97, 1')
    evlog(a, 9006)
    a.label('wk_go')
    for lim, lab in ((Q_TOK, 'wk_tok'), (Q_S4, 'wk_s4d'), (Q_F, 'wk_f'), (Q_VF, 'wk_vf'), (Q_VH, 'wk_vh'), (Q_A, 'wk_a'), (Q_SRV, 'wk_srv'), (Q_V7, 'wk_v7')):
        a(f's_cmp_ge_u32 s3, {lim}')
        a(f's_cbranch_scc1 {lab}')
    a(f's_sub_u32 s20, s3, {Q_FINE}')
    a('s_cmp_ge_u32 s20, 112')
    a('s_cselect_b32 s18, 1, 0')
    a('s_cselect_b32 s21, 112, 0')
    a('s_sub_u32 s20, s20, s21')
    a('s_and_b32 s17, s20, 15')
    a('s_add_u32 s17, s17, 16')
    a('s_lshr_b32 s34, s20, 4')
    a('s_lshl_b32 s34, s34, 1')
    a('s_add_u32 s35, s34, 2')
    gemm.gemm_body(a, 'wf', 's18', 's17', st='sc1', signal=True, ld='sc1', NT=2)
    a('s_branch wk_loop')
    a.label('wk_v7')
    a(f's_sub_u32 s20, s3, {Q_V7}')
    a('s_mov_b32 s18, 1')
    a('s_and_b32 s17, s20, 15')
    a('s_add_u32 s17, s17, 16')
    a('s_lshr_b32 s34, s20, 4')
    a('s_lshl_b32 s34, s34, 1')
    a('s_add_u32 s35, s34, 2')
    a('s_branch wk_gemm')
    a.label('wk_vh')
    a(f's_sub_u32 s20, s3, {Q_VH}')
    a('s_and_b32 s17, s20, 15')
    a('s_add_u32 s17, s17, 16')
    a('s_lshr_b32 s18, s20, 5')
    a('s_add_u32 s18, s18, 2')
    a('s_bitcmp1_b32 s20, 4')
    a('s_cselect_b32 s34, 7, 0')
    a('s_add_u32 s35, s34, 7')
    a('s_branch wk_gemm')
    a.label('wk_vf')
    a(f's_sub_u32 s20, s3, {Q_VF}')
    a('s_and_b32 s17, s20, 15')
    a('s_add_u32 s17, s17, 16')
    a('s_lshr_b32 s18, s20, 4')
    a('s_add_u32 s18, s18, 4')
    a('s_mov_b32 s34, 0\ns_mov_b32 s35, 14')
    a('s_branch wk_gemm')
    a.label('wk_f')
    if SKIP & 4: a('s_branch wk_loop')
    a(f's_sub_u32 s20, s3, {Q_F}')
    a('s_and_b32 s17, s20, 15')
    a('s_lshr_b32 s18, s20, 4')
    a('s_mov_b32 s34, 0\ns_mov_b32 s35, 14')
    a('s_lshl_b32 s22, s17, 7')
    a(f's_add_u32 s22, s22, {AF_OFF}')
    a('v_min_u32 v24, 96, v2')
    S.flag_poll(a, 'wk_aw', 28, [(24, 's22')], 'cA_abort', C.SLOW_LIMIT, 6)
    a.label('wk_gemm')
    gemm.gemm_body(a, 'wg', 's18', 's17', st='sc1', signal=True, ld='sc1')
    a('s_branch wk_loop')
    a.label('wk_a')
    if SKIP & 8: a('s_branch wk_loop')
    kargs(a)
    a(f's_sub_u32 s3, s3, {Q_A}')
    a('s_and_b32 s17, s3, 15')
    a('s_lshr_b32 s19, s3, 5')
    a('s_bitcmp1_b32 s3, 4')
    a('s_cselect_b32 s31, 7, 0')
    a('s_waitcnt lgkmcnt(0)')
    vq = S.VQ()
    S.bjob_issue(a, vq, 0, 'aj')
    a('s_mov_b32 s79, 0')
    a.label('aj_run')
    S.bjob_run(a, 'aj', vq, 0)
    a('s_cmp_lg_u32 s79, 0')
    a('s_cbranch_scc1 bj_end')
    a('v_mov_b32 v250, 0')
    a('s_branch wk_loop')
    a.label('wk_srv')
    if SKIP & 16: a('s_branch ch_end')
    a(f's_sub_u32 s3, s3, {Q_SRV}')
    a('s_and_b32 s18, s3, 15')
    a('s_lshr_b32 s19, s3, 4')
    a('s_and_b32 s19, s19, 1')
    t2srv.t2srv_body(a, 'ws', 's18', 's19', 'cA_abort', ld='sc1')
    a('v_mov_b32 v250, 0')
    a('s_branch wk_loop')
    a.label('wk_s4d')
    if SKIP & 1: a('s_branch wk_loop')
    if S4X:
        def pick():
            a('s_getreg_b32 s20, hwreg(HW_REG_XCC_ID)')
            a(f's_sub_u32 s20, s20, {C.XCD_SEL + 1}')
            a('s_and_b32 s20, s20, 7')
            a('s_mov_b64 exec, 1')
            a.label('s4_l')
            a('s_cmp_ge_u32 s20, 7')
            a('s_cselect_b32 s20, 0, s20')
            a('s_lshl_b32 s21, s20, 7')
            a(f's_add_u32 s21, s21, {CNT_OFF + S4Q}')
            a('v_mov_b32 v242, 1')
            a(f'buffer_atomic_add v242, off, {SRD}, s21 sc0')
            a('s_waitcnt vmcnt(0)')
            a('v_readfirstlane_b32 s21, v242')
            a('s_lshl_b32 s22, s20, 4')
            a('s_add_u32 s20, s20, 1')
            a('s_cmp_ge_u32 s21, 16')
            a('s_cbranch_scc1 s4_l')
            a('v_add_u32 v242, s22, v242')
            a('s_mov_b64 exec, -1')
        w0(a, pick)
        bcast(a, [242], ['s3'], t=243)
    else: a(f's_sub_u32 s3, s3, {Q_S4}')
    s4d.s4d_setup(a)
    s4d.s4d_item(a, 'wk', 's3')
    a('s_branch wk_loop')
    a.label('wk_tok')
    if SKIP & 2: a('s_branch wk_loop')
    a(f's_sub_u32 s3, s3, {Q_TOK}')
    a('s_and_b32 s18, s3, 3')
    a('s_lshr_b32 s17, s3, 2')
    a(f's_cmp_lt_u32 s17, {TD}')
    a('s_cbranch_scc1 wk_tokp')
    a(f's_sub_u32 s17, s17, 64')
    a(f's_cmp_ge_i32 s17, {64 - TD}')
    a('s_cbranch_scc1 wk_toko')
    a(f's_add_u32 s20, s17, {64 - TD}')
    a('s_lshr_b32 s17, s20, 1')
    a('s_bitcmp0_b32 s20, 0')
    a('s_cbranch_scc1 wk_toko')
    a(f's_add_u32 s17, s17, {TD}')
    a.label('wk_tokp')
    tok.tokp_body(a, 's17', 's18', ld='sc1', st='sc1', sync='wp', ldx='sc1')
    a('s_branch wk_loop')
    a.label('wk_toko')
    tok.toko_body(a, 's17', 's18', ld='sc1', sync='wo', OUT='s[92:95]')
    a('v_readfirstlane_b32 s22, v250')
    a(f's_cmp_ge_u32 s22, {Q_END}')
    a('s_cbranch_scc1 ch_end')
    a('s_branch wk_loop')
    a.label('wp_abort')
    a.label('wo_abort')
    a('s_branch cA_abort')

def staffed(a, r=242):
    def f():
        a(f's_cmp_eq_u32 s67, {C.XCD_SEL}')
        a('s_cselect_b32 s20, 1, 0x10001')
        a(f'v_mov_b32 v{r}, s20')
        a(f'v_mov_b32 v{r+1}, 0')
        a('s_mov_b64 exec, 1')
        a(f'buffer_atomic_add v{r}, v{r+1}, {DBG}, 0 offen')
        a('s_mov_b64 exec, -1')
    w0(a, f)

def gen(name='main_kernel'):
    C.SYNC = 1; C.MERGE = 2; C.SELF = 1
    a = Asm()
    a.raw(kernel_header(name))
    a('s_cmp_ge_u32 s2, 256')
    a('s_cbranch_scc1 ch_end')
    a('s_load_dwordx4 s[4:7], s[0:1], 120')
    a('s_load_dwordx2 s[92:93], s[0:1], 112')
    kargs(a)
    a('s_memrealtime s[88:89]')
    if C.CODE_PF == 1: code_prefetch_shared(a, name, 'ch_end', 60)
    if C.CODE_PF == 2: code_prefetch(a, name, 'ch_end', 160000, 60)
    a('s_getreg_b32 s67, hwreg(HW_REG_XCC_ID)')
    a('s_and_b32 s67, s67, 7')
    a('v_lshrrev_b32 v1, 6, v0')
    a('v_readfirstlane_b32 s16, v1')
    a('s_mov_b32 s66, 0\ns_mov_b32 s68, 0\ns_mov_b32 s69, 0\ns_mov_b32 s96, 0\ns_mov_b32 s97, 0\ns_mov_b32 s101, 0x5eed0000')
    a(f's_sub_u32 s20, s67, {C.XCD_SEL}')
    a('s_lshr_b32 s21, s2, 3')
    if SCRAMBLE: a('s_add_u32 s20, s20, s21')
    if SCRAMBLE == 2: a('s_lshr_b32 s21, s21, 2')
    a('s_and_b32 s20, s20, 7')
    a('s_lshl_b32 s3, s20, 5')
    a('s_add_u32 s3, s3, s21')
    a('s_waitcnt lgkmcnt(0)')
    a('s_mov_b32 s8, s6\ns_and_b32 s9, s7, 0xffff\ns_mov_b32 s10, 0x10000000\ns_mov_b32 s11, 0x20000')
    a('s_mov_b32 s12, s4\ns_and_b32 s13, s5, 0xffff\ns_mov_b32 s14, 256\ns_mov_b32 s15, 0x20000')
    a('s_or_b32 s88, s88, 1')
    a(f's_and_b32 s93, s93, 0xffff\ns_mov_b32 s94, {2048*896*2}\ns_mov_b32 s95, 0x20000')
    if C.EVLOG:
        a('s_lshl_b32 s100, s2, 2')
        a('s_add_u32 s100, s100, s16')
        a('s_lshl_b32 s100, s100, 8')
        a(f's_add_u32 s100, s100, {C.EV_OFF}')
    evlog(a, 9000)
    if LATE:
        a('s_mul_i32 s20, s2, 37\ns_and_b32 s20, s20, 15\ns_cmp_lg_u32 s20, 8\ns_cbranch_scc1 m_nl')
        a('s_mov_b32 s20, 0')
        a.label('m_ll')
        a(f's_sleep 127\ns_add_u32 s20, s20, 1\ns_cmp_lt_u32 s20, {LATE}\ns_cbranch_scc1 m_ll')
        a.label('m_nl')
        a('s_mul_i32 s20, s2, 37\ns_and_b32 s20, s20, 15\ns_cmp_lg_u32 s20, 3\ns_cbranch_scc1 m_nl2')
        a('s_mov_b32 s20, 0')
        a.label('m_ll2')
        a(f's_sleep 127\ns_add_u32 s20, s20, 1\ns_cmp_lt_u32 s20, {LATE}\ns_cbranch_scc1 m_ll2')
        a.label('m_nl2')
    acs = S.AComp(a, 'as')
    def evm(p):
        a('s_memrealtime s[98:99]' if EVMID == 1 else 's_memtime s[98:99]')
        a(f'v_mov_b32 v96, {9100 + p}')
        a('s_mov_b64 exec, 1')
        a(f'buffer_store_dword v96, off, {SRD}, s100')
        a('s_waitcnt lgkmcnt(0)')
        a('v_mov_b32 v96, s98')
        a(f'buffer_store_dword v96, off, {SRD}, s100 offset:4')
        a('s_mov_b64 exec, -1')
        a('s_add_u32 s100, s100, 8')
    acs.mid = evm if EVMID else None
    a.label('m_start')
    a('s_cmp_ge_u32 s3, 32')
    a('s_cbranch_scc1 m_bjob')
    C.lane_consts(a)
    a('s_and_b32 s17, s3, 15')
    a('s_cmp_ge_u32 s3, 16')
    a('s_cbranch_scc1 m_val')
    acs.issue()
    evlog(a, 9008, 96)
    claim_issue(a, 'sc', 248)
    acs.setup()
    acs.fetch()
    confirm(a, 'sc', 4 * (S.APRE - 1), 248)
    staffed(a, 248)
    evlog(a, 9001, 96)
    a('s_lshl_b32 s28, s17, 7')
    a(f's_add_u32 s28, s28, {AF_OFF + 64}')
    a('v_min_u32 v113, 32, v2')
    a(f's_mov_b32 s29, {IF_OFF}')
    a('v_add_u32 v112, 1024, v2')
    a(f'v_min_u32 v112, {1792-16}, v112')
    fl = [(113, 's28'), (2, 's29'), (112, 's29')]
    def extra(p):
        if p != 13: return []
        return [[] for _ in range(FPOS)] + [[f'buffer_load_dwordx4 v[{100+4*i}:{103+4*i}], v{va}, {SRD}, {so} offen sc1'] for i, (va, so) in enumerate(fl)]
    acs.run(lambda t, p: C.wreg(t, p >> 1) + 4 * (p & 1), extra)
    evlog(a, 9002)
    S.flag_poll(a, 'sc_aw', 100, fl, 'cA_abort', C.SLOW_LIMIT, 1, issued=True)
    a('s_barrier')
    a('s_branch m_role')
    a.label('m_val')
    w0(a, lambda: set_nonce(a, 232))
    claim_issue(a, 'va')
    if VPF:
        S.srd(a, 56, 40, S.W_BYTES)
        a('v_lshrrev_b32 v24, 5, v1')
        a('v_and_b32 v25, 31, v1')
        a('v_lshlrev_b32 v25, 4, v25')
        a('v_lshl_add_u32 v24, v24, 13, v25')
        S.srd(a, 60, 42, S.W_BYTES)
        a('s_lshl_b32 s22, s17, 9')
        a('s_lshl_b32 s23, s16, 19')
        a('s_add_u32 s23, s22, s23')
        for i in range(VPK):
            a(f's_add_u32 s21, s23, {(64 - 2*VPK + 2*i) << 13}')
            a('buffer_load_dwordx4 v[28:31], v24, s[60:63], s21 offen')
        a('s_lshl_b32 s23, s16, 14')
        a('s_add_u32 s22, s22, s23')
        a('s_mov_b32 s30, 0')
        a.label('va_pf')
        a('buffer_load_dwordx4 v[28:31], v24, s[56:59], s22 offen')
        a('s_waitcnt vmcnt(40)')
        a('s_add_u32 s22, s22, 65536')
        a('s_add_u32 s30, s30, 1')
        a(f's_cmp_lt_u32 s30, {VPF}')
        a('s_cbranch_scc1 va_pf')
    evlog(a, 9008)
    confirm(a, 'va', min(VPF + VPK, 40) if VPF else 0)
    staffed(a)
    evlog(a, 9001)
    a.label('m_role')
    evlog(a, 9006)
    a('s_mov_b32 s17, s3')
    def late(p):
        if p >= 4: allflags(a, f'va_iw{p}', '0', t=36, sleep=2)
    def bdep(lo, hi):
        a('s_mul_i32 s22, s17, 28')
        a('s_add_u32 s23, s22, 27')
        a('s_lshr_b32 s22, s22, 6')
        a('s_lshr_b32 s23, s23, 6')
        a('s_sub_u32 s23, s23, s22')
        a('s_lshl_b32 s23, s23, 8')
        a('v_and_b32 v36, s23, v2')
        a(f'v_med3_u32 v37, v117, {lo}, {hi}')
        a('v_lshl_add_u32 v36, v37, 4, v36')
        a('s_lshl_b32 s22, s22, 8')
        a(f's_add_u32 s22, s22, {BF_OFF}')
        S.flag_poll(a, a.newlabel('va_bw'), 40, [(36, 's22')], 'cA_abort', C.SLOW_LIMIT, 2)
        evlog(a, 9002)
    C.BDEP = bdep
    C.role_tail(a, late)
    a.label('m_reclaim')
    a('s_waitcnt vmcnt(0)')
    a('s_lshr_b32 s20, s3, 5')
    w0(a, lambda: claim_loop(a, 'rc', 0, 9))
    bcast(a, [242], ['s3'])
    a('s_cmp_lg_u32 s3, -1')
    a('s_cbranch_scc1 m_start')
    a('v_mov_b32 v250, 0')
    a('s_branch wk_ask')
    worker(a)
    a.label('ch_end')
    a('s_endpgm')
    return a
```

```python
from asmlib import *
from layout import *
import struct, math
def f32bits(x): return struct.unpack('<I', struct.pack('<f', x))[0]
LOG2E = f32bits(1.4426950408889634)
INV2PI = f32bits(1.0 / (2 * math.pi))
NOST = 0
OTOUCH = 0
WV = 24 * KB
U_O = 512
CE_O = 4608; CO_O = CE_O + 4224
KT_O = CO_O + 4224
PR_O = KT_O + 5 * KB + 64
assert PR_O + 4096 <= WV

def srd(a, d, lo, nbytes):
    a(f's_mov_b32 s{d}, s{lo}')
    a(f's_and_b32 s{d+1}, s{lo+1}, 0xffff')
    a(f's_mov_b32 s{d+2}, {nbytes}')
    a(f's_mov_b32 s{d+3}, 0x20000')

def rne_bf16(a, r, t):
    a(f'v_cvt_pk_bf16_f32 v{t}, v{r}, v{r}')
    a(f'v_and_b32 v{r}, 0xffff0000, v{t}')

def s4d_setup(a):
    a('s_load_dwordx8 s[40:47], s[0:1], 0')
    a('s_load_dwordx4 s[48:51], s[0:1], 32')
    a('s_load_dwordx2 s[52:53], s[0:1], 48')
    a('s_load_dwordx2 s[54:55], s[0:1], 112')
    a('v_lshrrev_b32 v1, 6, v0')
    a('v_readfirstlane_b32 s16, v1')
    a('v_and_b32 v1, 63, v0')
    a('v_lshrrev_b32 v3, 4, v1')
    a('v_and_b32 v4, 15, v1')
    a(f's_mul_i32 s17, s16, {WV}')
    a('s_waitcnt lgkmcnt(0)')
    srd(a, 60, 40, 2048 * 448 * 2)
    for i in range(4): srd(a, 64 + 4 * i, 42 + 2 * i, 448 * 256 * 2)
    srd(a, 80, 50, 896); srd(a, 84, 52, 896); srd(a, 92, 54, 2048 * 896 * 2)
    a('v_lshlrev_b32 v5, 5, v1')
    a('v_sub_u32 v5, 2047, v5')
    a(f's_add_u32 s18, s17, {KT_O}')
    for k in range(33):
        a(f'v_subrev_u32 v6, {k}, v5')
        a('v_max_i32 v7, 0, v6')
        a('v_cvt_f32_u32 v7, v7')
        rne_bf16(a, 7, 8)
        a('v_lshrrev_b32 v8, 23, v7')
        a('v_subrev_u32 v8, 134, v8')
        a('v_max_i32 v8, 0, v8')
        a('v_cvt_u32_f32 v7, v7')
        a('v_lshrrev_b32 v7, v8, v7')
        a('v_lshl_add_u32 v7, v8, 8, v7')
        if k == 32:
            a('v_mov_b32 v8, 1280')
            a('v_cmp_gt_i32 vcc, 0, v6')
            a('v_cndmask_b32 v7, v7, v8, vcc')
        a(f'v_lshl_add_u32 v{200+k}, v7, 2, s18')
    a('v_mov_b32 v8, 0\nv_mov_b32 v9, 0')
    a('v_lshlrev_b32 v5, 3, v1')
    a('v_add_u32 v5, s17, v5')
    a('ds_write_b64 v5, v[8:9]')
    a('v_and_b32 v6, 15, v1')
    a('v_lshlrev_b32 v6, 3, v6')
    a('v_add_u32 v6, s17, v6')
    a(f'ds_write_b64 v6, v[8:9] offset:{CE_O + 4096}')
    a(f'ds_write_b64 v6, v[8:9] offset:{CO_O + 4096}')
    a('v_mov_b32 v6, s17')
    a(f'ds_write_b64 v6, v[8:9] offset:{KT_O + 5*KB}')

def s4d_item(a, P, item_s):
    L = lambda n: f'{P}_{n}'
    a(f's_lshl_b32 s19, {item_s}, 2')
    a('s_add_u32 s20, s19, s16')
    a(f's_lshl_b32 s21, {item_s}, 3')
    a('v_mul_u32_u24 v5, 3584, v0')
    a('v_mul_u32_u24 v141, 1792, v0')
    a('s_lshl_b32 s22, s20, 9')
    a('v_lshlrev_b32 v6, 3, v1')
    for i in range(4):
        a(f'buffer_load_dwordx2 v[{24+2*i}:{25+2*i}], v6, s[{64+4*i}:{67+4*i}], s22 offen')
    a('s_lshl_b32 s22, s20, 1')
    a('v_mov_b32 v7, 0')
    a('buffer_load_ushort v32, v7, s[80:83], s22 offen')
    a('buffer_load_ushort v33, v7, s[84:87], s22 offen')
    a('s_mov_b32 s24, 0x05040100\ns_mov_b32 s25, 0x07060302')
    a('s_barrier')
    a('s_waitcnt vmcnt(0)')
    a(f's_mov_b32 s26, {LOG2E}\ns_mov_b32 s27, {INV2PI}')
    a('v_lshlrev_b32 v32, 16, v32')
    a('v_lshlrev_b32 v33, 16, v33')
    a('v_mul_f32 v32, s26, v32')
    a('v_exp_f32 v32, v32')
    rne_bf16(a, 32, 34)
    a('v_lshlrev_b32 v37, 6, v1')
    a(f'v_add_u32 v37, s17, v37')
    for m in range(4):
        def unpack(dst, base):
            src = base + (m >> 1)
            if m & 1: a(f'v_and_b32 v{dst}, 0xffff0000, v{src}')
            else: a(f'v_lshlrev_b32 v{dst}, 16, v{src}')
        unpack(40, 24); unpack(41, 26); unpack(42, 28); unpack(43, 30)
        a('v_mul_f32 v40, s26, v40')
        a('v_exp_f32 v40, v40')
        rne_bf16(a, 40, 34)
        a('v_mul_f32 v40, v40, v32')
        a('v_mul_f32 v40, s26, v40')
        a('v_sub_f32 v40, 0, v40')
        a('v_mul_f32 v41, v41, v32')
        a('v_mul_f32 v41, s27, v41')
        a('v_mul_f32 v42, v42, v32')
        a('v_mul_f32 v43, v43, v32')
        a('v_add_f32 v42, v42, v42')
        a('v_add_f32 v43, v43, v43')
        a(f'ds_write_b128 v37, v[40:43] offset:{PR_O + 16*m}')
    a('v_cvt_f32_u32 v44, v4')
    a('v_mul_f32 v45, 16.0, v44') if False else (a('v_lshlrev_b32 v45, 4, v4'), a('v_cvt_f32_u32 v45, v45'))
    a('v_lshlrev_b32 v46, 4, v3')
    a(f'v_add_u32 v46, s17, v46')
    DK = 48
    for r in range(DK, DK + 20): a(f'v_mov_b32 v{r}, 0')
    a('s_waitcnt lgkmcnt(0)')
    a(f'ds_read_b128 v[68:71], v46 offset:{PR_O}')
    for k in range(8):
        grp, r = k >> 2, k & 3; b = 8 + 8 * grp + 2 * r
        a(f's_add_u32 s22, s21, {grp*1024*896}')
        a(f'buffer_load_dwordx2 v[{b}:{b+1}], v5, s[60:63], s22 offen offset:{r*896}')
        a('s_mov_b32 s28, 0')
        a(f's_call_b64 s[30:31], {L("kl")}')
        if OTOUCH:
            a(f's_add_u32 s22, s21, {k*256*1792}')
            a(f'buffer_load_dword v140, v141, s[92:95], s22 offen')
        a('s_mov_b32 s28, 0')
        a(f's_call_b64 s[30:31], {L("kl")}')
    a(f's_branch {L("kd")}')
    a.label(L('kl'))
    a('s_waitcnt lgkmcnt(0)')
    for r in range(4): a(f'v_mov_b32 v{72+r}, v{68+r}')
    a('v_add_u32 v46, 64, v46')
    a(f'ds_read_b128 v[68:71], v46 offset:{PR_O}')
    A2, BR, CR, CI = 72, 73, 74, 75
    Er, Ei, Yr, Yi = 76, 77, 78, 79
    for (pr, pi, pos) in ((Er, Ei, 45), (Yr, Yi, 44)):
        a(f'v_mul_f32 v80, v{A2}, v{pos}')
        a(f'v_mul_f32 v81, v{BR}, v{pos}')
        a('v_exp_f32 v80, v80')
        a('v_fract_f32 v81, v81')
        a(f'v_cos_f32 v{pr}, v81')
        a(f'v_sin_f32 v{pi}, v81')
        a(f'v_mul_f32 v{pr}, v{pr}, v80')
        a(f'v_mul_f32 v{pi}, v{pi}, v80')
    for rho in range(5):
        xr, xi = 82 + 2 * (rho & 1), 83 + 2 * (rho & 1)
        d = DK + 4 * rho
        a(f'v_mul_f32 v{xr}, v{CR}, v{Er}')
        if rho < 4: a(f'v_mul_f32 v{xi}, v{CR}, v{Ei}')
        a(f'v_fma_f32 v{xr}, -v{CI}, v{Ei}, v{xr}')
        if rho < 4: a(f'v_fma_f32 v{xi}, -v{CI}, v{Er}, -v{xi}')
        if rho < 4:
            nEr, nEi = (86, 87) if Er == 76 else (76, 77)
            a(f'v_mul_f32 v{nEr}, v{Er}, v{Er}')
            a(f'v_mul_f32 v{nEi}, v{Er}, v{Ei}')
            a(f'v_fma_f32 v{nEr}, -v{Ei}, v{Ei}, v{nEr}')
            a(f'v_add_f32 v{nEi}, v{nEi}, v{nEi}')
        a(f'v_mfma_f32_16x16x4_f32 v[{d}:{d+3}], v{xr}, v{Yr}, v[{d}:{d+3}]')
        if rho < 3:
            nYr, nYi = (88, 89) if Yr == 78 else (78, 79)
            a(f'v_mul_f32 v{nYr}, v{Yr}, v{Yr}')
            a(f'v_mul_f32 v{nYi}, v{Yr}, v{Yi}')
            a(f'v_fma_f32 v{nYr}, -v{Yi}, v{Yi}, v{nYr}')
            a(f'v_add_f32 v{nYi}, v{nYi}, v{nYi}')
        if rho < 4:
            a(f'v_mfma_f32_16x16x4_f32 v[{d}:{d+3}], v{xi}, v{Yi}, v[{d}:{d+3}]')
            Er, Ei = nEr, nEi
        if rho < 3: Yr, Yi = nYr, nYi
    a('s_add_u32 s28, s28, 1')
    a('s_cmp_lt_u32 s28, 4')
    a(f's_cbranch_scc1 {L("kl")}')
    a('s_setpc_b64 s[30:31]')
    a.label(L('kd'))
    a.nop(20)
    a('s_waitcnt vmcnt(0)')
    a('v_lshlrev_b32 v6, 3, v0')
    for grp in range(2):
        b = 8 + 8 * grp
        for ch in range(4):
            sel = 's24' if ch % 2 == 0 else 's25'; dw = ch >> 1
            a(f'v_perm_b32 v34, v{b+2+dw}, v{b+dw}, {sel}')
            a(f'v_perm_b32 v35, v{b+6+dw}, v{b+4+dw}, {sel}')
            a(f'v_add_u32 v36, {ch*WV + U_O + grp*2048}, v6')
            a('ds_write_b64 v36, v[34:35]')
    a('v_lshlrev_b32 v46, 8, v3')
    a('v_lshl_add_u32 v46, v4, 2, v46')
    a('v_add_u32 v46, s17, v46')
    for rho in range(5):
        for r in range(4):
            a(f'ds_write_b32 v46, v{DK+4*rho+r} offset:{KT_O + rho*1024 + r*64}')
        a('s_waitcnt lgkmcnt(8)')
    a('s_waitcnt lgkmcnt(0)')
    G0 = 48
    for k in range(33):
        a(f'ds_read_b32 v{G0+k}, v{200+k}')
        if k % 8 == 7: a('s_waitcnt lgkmcnt(4)')
    a('s_waitcnt lgkmcnt(0)')
    a('v_lshlrev_b32 v46, 6, v1')
    a('v_add_u32 v46, s17, v46')
    for c in range(4):
        for k in range(4):
            i = 8 * c + 2 * k
            a(f'v_cvt_pk_bf16_f32 v{84+k}, v{G0+i}, v{G0+i+1}')
            a(f'v_cvt_pk_bf16_f32 v{88+k}, v{G0+i+1}, v{G0+i+2}')
        a(f'ds_write_b128 v46, v[84:87] offset:{CE_O + 16*c}')
        a(f'ds_write_b128 v46, v[88:91] offset:{CO_O + 16*c}')
        a('s_waitcnt lgkmcnt(0)')
    a('s_barrier')
    a('v_lshrrev_b32 v47, 1, v3')
    a('v_sub_u32 v46, v4, v47')
    a('v_add_u32 v46, 1, v46')
    a('v_lshlrev_b32 v46, 5, v46')
    a('v_and_b32 v48, 1, v3')
    a('v_lshl_add_u32 v46, v48, 4, v46')
    a('v_add_u32 v46, s17, v46')
    for f in range(64):
        a(f'ds_read_b128 a[{4*f}:{4*f+3}], v46 offset:{U_O + (2*f - 15)*32}')
        if f % 8 == 7: a('s_waitcnt lgkmcnt(4)')
    a('v_lshlrev_b32 v49, 4, v47')
    a('v_add_u32 v49, v49, v4')
    a('v_sub_u32 v49, 2047, v49')
    a('v_lshl_add_u32 v49, v48, 3, v49')
    a('v_and_b32 v50, 1, v49')
    a('v_lshrrev_b32 v49, 1, v49')
    a('v_lshlrev_b32 v49, 2, v49')
    a(f'v_mul_u32_u24 v50, {CO_O - CE_O}, v50')
    a('v_add3_u32 v49, v49, v50, s17')
    a(f'v_add_u32 v49, {CE_O}, v49')
    NB = 5
    for b in range(NB): a(f'v_subrev_u32 v{52+b}, {64*(15*b+14)}, v49')
    Y = 60; AF = 92; NA = 4
    def ard(Dd):
        b, o = divmod(Dd, 15); off = (14 - o) * 16; r = AF + 4 * (Dd % NA)
        a(f'ds_read2_b32 v[{r}:{r+1}], v{52+b} offset0:{off} offset1:{off+1}')
        a(f'ds_read2_b32 v[{r+2}:{r+3}], v{52+b} offset0:{off+2} offset1:{off+3}')
    a('s_waitcnt lgkmcnt(0)')
    for Dd in range(3): ard(Dd)
    for Dd in range(64):
        if Dd + 3 < 64: ard(Dd + 3)
        a(f's_waitcnt lgkmcnt({2*min(3, 63-Dd)})')
        r = AF + 4 * (Dd % NA)
        for n0 in range(8):
            phi = 16 * n0 - 2 * Dd
            if phi < -14: continue
            f = (phi + 14) // 2; d = Y + 4 * n0
            c = '0' if Dd == 0 else f'v[{d}:{d+3}]'
            a(f'v_mfma_f32_16x16x32_bf16 v[{d}:{d+3}], v[{r}:{r+3}], a[{4*f}:{4*f+3}], {c}')
    a('v_lshlrev_b32 v46, 5, v4')
    a('v_lshl_add_u32 v46, v3, 3, v46')
    a('v_add_u32 v46, s17, v46')
    for n0 in range(8): a(f'ds_read_b64 v[{108+2*n0}:{109+2*n0}], v46 offset:{U_O + n0*512}')
    a('s_waitcnt lgkmcnt(0)')
    for n0 in range(8):
        d = Y + 4 * n0; ub = 108 + 2 * n0
        a(f'v_lshlrev_b32 v124, 16, v{ub}')
        a(f'v_and_b32 v125, 0xffff0000, v{ub}')
        a(f'v_lshlrev_b32 v126, 16, v{ub+1}')
        a(f'v_and_b32 v127, 0xffff0000, v{ub+1}')
        for r in range(4): a(f'v_mul_f32 v{124+r}, v{124+r}, v33')
        a('v_cvt_pk_bf16_f32 v128, v124, v125')
        a('v_cvt_pk_bf16_f32 v129, v126, v127')
        a(f'v_cvt_pk_bf16_f32 v130, v{d}, v{d+1}')
        a(f'v_cvt_pk_bf16_f32 v131, v{d+2}, v{d+3}')
        for k in range(2):
            a(f'v_lshlrev_b32 v{124+2*k}, 16, v{128+k}')
            a(f'v_and_b32 v{125+2*k}, 0xffff0000, v{128+k}')
            a(f'v_lshlrev_b32 v{132+2*k}, 16, v{130+k}')
            a(f'v_and_b32 v{133+2*k}, 0xffff0000, v{130+k}')
        for r in range(4): a(f'v_add_f32 v{124+r}, v{124+r}, v{132+r}')
        a(f'v_cvt_pk_bf16_f32 v{ub}, v124, v125')
        a(f'v_cvt_pk_bf16_f32 v{ub+1}, v126, v127')
        a(f'ds_write_b64 v46, v[{ub}:{ub+1}] offset:{U_O + n0*512}')
    a('s_waitcnt lgkmcnt(0)')
    a('s_barrier')
    a('v_lshlrev_b32 v6, 3, v0')
    a('v_mul_u32_u24 v5, 7168, v0')
    for grp in range(2):
        for ch in range(4):
            a(f'v_add_u32 v36, {ch*WV + U_O + grp*2048}, v6')
            a(f'ds_read_b64 v[{8+2*ch}:{9+2*ch}], v36')
        a('s_waitcnt lgkmcnt(0)')
        a(f's_add_u32 s22, s21, {grp*1024*1792}')
        a(f's_add_u32 s23, s22, 3584')
        for r in range(4):
            sel = 's24' if r % 2 == 0 else 's25'; dw = r >> 1
            o = 16 + 8 * grp + 2 * r
            a(f'v_perm_b32 v{o}, v{10+dw}, v{8+dw}, {sel}')
            a(f'v_perm_b32 v{o+1}, v{14+dw}, v{12+dw}, {sel}')
            if not NOST: a(f'buffer_store_dwordx2 v[{o}:{o+1}], v5, s[92:95], {"s22" if r < 2 else "s23"} offen offset:{(r & 1)*1792}')

def gen_s4d(name='s4d_kernel'):
    a = Asm(); a.raw(kernel_header(name))
    a('s_cmp_ge_u32 s2, 112')
    a('s_cbranch_scc1 s4_end')
    s4d_setup(a)
    a('s_mov_b32 s3, s2')
    s4d_item(a, 's4', 's3')
    a.label('s4_end')
    a('s_endpgm')
    return a
def kernels():
    return {'s4d': lambda: (gen_s4d(), 's4d_kernel', f'grid=(112,1,1) block=(256,1,1) lds={4*WV}', (512, 256))}
```

```python
from asmlib import *
from layout import *
import tok
WS = 's[8:11]'
LIGHT = 1
SSL = 2
SPRE = 0
def wreg(ti, ks):
    u = ti * 7 + ks
    return 256 + 8 * u if u < 32 else 120 + 8 * (u - 32)
def t2srv_body(a, P, v_s, par_s, abort, ld=''):
    M = 8; ACC = 36; YT = 64; YA = 72
    a(f's_mul_i32 s20, {v_s}, {CUW_B}')
    a(f's_mul_i32 s21, s16, {7*TILE_B}')
    a('s_add_u32 s20, s20, s21')
    a(f's_add_u32 s20, s20, {WF_B}')
    for f in range(98):
        if f % 4 == 0: a(f's_add_u32 s22, s20, {f*1024}')
        r = wreg(0, f // 2) + 4 * (f & 1)
        a(f'buffer_load_dwordx4 {ureg(r, 4)}, v2, {WS}, s22 offen offset:{(f & 3)*1024} {ld}')
        if f % 32 == 31: a('s_waitcnt vmcnt(24)')
    a('v_mov_b32 v5, 0x4444')
    a('v_mov_b32 v6, 0xeeee')
    a('v_cmp_lt_u32 vcc, 7, v4')
    a('v_cndmask_b32 v5, v5, v6, vcc')
    a('s_lshl_b32 s23, s16, 11')
    a('v_lshrrev_b32 v80, 1, v3')
    a('v_and_b32 v81, 1, v3')
    for p in range(4):
        if p < 3: a(f'v_add_u32 v82, {2*p}, v80')
        else: a('v_mov_b32 v82, 6')
        a('v_lshl_add_u32 v82, v82, 4, v4')
        a('v_mul_u32_u24 v83, 2341, v82')
        a('v_lshrrev_b32 v83, 16, v83')
        a('v_mul_u32_u24 v84, 28, v83')
        a('v_sub_u32 v84, v82, v84')
        a('v_lshrrev_b32 v85, 4, v84')
        a('v_and_b32 v84, 15, v84')
        a('v_lshlrev_b32 v86, 10, v85')
        a('v_lshl_add_u32 v86, v83, 8, v86')
        a('v_lshl_add_u32 v86, v84, 4, v86')
        a('v_lshl_add_u32 v86, v81, 3, v86')
        a(f'v_add_u32 v{YA+p}, s23, v86')
    a('v_add_u32 v76, s23, v2')
    a(f's_mul_i32 s27, {v_s}, 448')
    a('v_mov_b32 v77, s27' if not tok.ONELINE else 'v_mov_b32 v77, 0')
    a('v_mov_b32 v78, 1')
    a(f's_mov_b32 s17, {par_s}')
    a(f's_mul_i32 s24, {par_s}, {7*KB}')
    a(f's_add_u32 s24, s24, {MEMG_OFF}')
    a(f's_mul_i32 s25, {v_s}, 65')
    a(f's_add_u32 s25, s25, {par_s}')
    a('s_lshl_b32 s25, s25, 13')
    a('s_add_u32 s25, s25, s23')
    a(f's_add_u32 s25, s25, {T2_OFF + 8*KB}')
    a(f's_lshl_b32 s26, {v_s}, 6')
    a(f's_add_u32 s26, s26, {par_s}')
    a('s_lshl_b32 s26, s26, 4')
    a('s_lshl_b32 s27, s16, 2')
    a('s_add_u32 s26, s26, s27')
    a(f's_add_u32 s26, s26, {CNT_OFF + T2F}')
    a.label(f'{P}_loop')
    for r in range(ACC, ACC + 28): a(f'v_mov_b32 v{r}, 0')
    a('s_mov_b32 s30, 0')
    if SPRE:
        a('s_cmp_ge_u32 s17, 62')
        a(f's_cbranch_scc1 {P}_pm')
        a(f's_sleep {SPRE}')
    if not LIGHT: a(f's_branch {P}_fl')
    a.label(f'{P}_pm')
    tok.mpoll(a, 79, 77, 's24')
    a('s_waitcnt vmcnt(0)')
    a('v_cmp_eq_u32 vcc, -1, v79')
    a(f's_cbranch_vccnz {P}_pr')
    a.label(f'{P}_fl')
    a('s_add_u32 s22, s24, 4096')
    for ks in range(7):
        a(f'buffer_load_dwordx4 v[{M+4*ks}:{M+4*ks+3}], v2, {WS}, {"s24" if ks < 4 else "s22"} offen offset:{(ks & 3)*1024} sc1')
    a('s_waitcnt vmcnt(0)')
    a(f'v_max_u32 v79, v{M}, v{M+1}')
    for r in range(M + 2, M + 28, 2): a(f'v_max3_u32 v79, v79, v{r}, v{r+1}')
    a('v_cmp_eq_u32 vcc, -1, v79')
    a(f's_cbranch_vccz {P}_pk')
    a.label(f'{P}_pr')
    a(f's_sleep {SSL}')
    a('s_add_u32 s30, s30, 1')
    a(f's_cmp_lt_u32 s30, {tok.WAIT_LIMIT}')
    a(f's_cbranch_scc1 {P}_pm')
    a(f's_branch {abort}')
    a.label(f'{P}_pk')
    for ti in range(7):
        for ks in range(7):
            a(f'v_smfmac_f32_16x16x64_bf16 v[{ACC+4*ti}:{ACC+4*ti+3}], v[{M+4*ks}:{M+4*ks+3}], {ureg(wreg(ti, ks), 8)}, v5')
    for p in range(4):
        A_ = ACC + 8 * p; B_ = A_ + 4 if p < 3 else YT
        if p == 3:
            for r in range(4): a(f'v_mov_b32 v{B_+r}, v{A_+r}')
        for r in range(4): a(f'v_permlane32_swap_b32 v{A_+r}, v{B_+r}')
        for r in range(4): a(f'v_add_f32 v{A_+r}, v{A_+r}, v{B_+r}')
        a(f'v_cvt_pk_bf16_f32 v{B_}, v{A_}, v{A_+1}')
        a(f'v_cvt_pk_bf16_f32 v{B_+1}, v{A_+2}, v{A_+3}')
        a(f'ds_write_b64 v{YA+p}, v[{B_}:{B_+1}]')
    a('s_waitcnt lgkmcnt(0)')
    a(f'ds_read_b128 v[{YT}:{YT+3}], v76')
    a(f'ds_read_b128 v[{YT+4}:{YT+7}], v76 offset:1024')
    a('s_waitcnt lgkmcnt(0)')
    a(f'buffer_store_dwordx4 v[{YT}:{YT+3}], v2, {WS}, s25 offen sc1')
    a(f'buffer_store_dwordx4 v[{YT+4}:{YT+7}], v2, {WS}, s25 offen offset:1024 sc1')
    a('s_waitcnt vmcnt(0)')
    a('s_mov_b64 exec, 1')
    a(f'buffer_store_dword v78, v2, {WS}, s26 offen sc1')
    a('s_mov_b64 exec, -1')
    a(f's_add_u32 s24, s24, {14*KB}')
    a(f's_add_u32 s25, s25, {16*KB}')
    a('s_add_u32 s26, s26, 32')
    a('s_add_u32 s17, s17, 2')
    a('s_cmp_lt_u32 s17, 64')
    a(f's_cbranch_scc1 {P}_loop')
```

```python
from asmlib import *
from layout import *
WS = 's[8:11]'
PEEK = WS
def common(a, endl):
    a('s_cmp_ge_u32 s2, 256')
    a(f's_cbranch_scc1 {endl}')
    a('s_load_dwordx2 s[6:7], s[0:1], 128')
    a('s_load_dwordx2 s[4:5], s[0:1], 112')
    a('v_lshrrev_b32 v1, 6, v0')
    a('v_readfirstlane_b32 s16, v1')
    a('v_and_b32 v1, 63, v0')
    a('v_lshlrev_b32 v2, 4, v1')
    a('v_lshrrev_b32 v3, 4, v1')
    a('v_and_b32 v4, 15, v1')
    a('s_waitcnt lgkmcnt(0)')
    a('s_mov_b32 s8, s6\ns_and_b32 s9, s7, 0xffff\ns_mov_b32 s10, 0x10000000\ns_mov_b32 s11, 0x20000')
    a(f's_mov_b32 s12, s4\ns_and_b32 s13, s5, 0xffff\ns_mov_b32 s14, {2048*896*2}\ns_mov_b32 s15, 0x20000')

WAIT_LIMIT = 30000
SLEEP = 4
LONG = 127
NEAR = 56
FULLPOLL = 64
ONELINE = 0
PMODE = 3
def mpoll(a, dst, va, so):
    if PMODE == 0: a(f'buffer_load_dword v{dst}, v{va}, {WS}, {so} offen sc1')
    elif PMODE == 1: a(f'buffer_load_dword v{dst}, v{va}, {WS}, {so} offen sc0 sc1')
    elif PMODE == 2: a(f'buffer_load_dword v{dst}, v{va}, {WS}, {so} offen sc0 sc1 nt')
    else:
        a(f'v_mov_b32 v{dst}, 0')
        a('s_mov_b64 exec, 1')
        a(f'buffer_atomic_or v{dst}, v{va}, {WS}, {so} offen sc0')
        a('s_mov_b64 exec, -1')
def backoff(a, P, sleep):
    a(f's_sleep {sleep}')
    a(f's_cmp_ge_u32 s17, {NEAR}')
    a(f's_cbranch_scc1 {P}_bo')
    a(f's_sleep {LONG}')
    a.label(P + '_bo')
def wait_eq(a, P, soff, target, abort, sleep=None, four=False):
    sleep = sleep or SLEEP
    if four: a('v_lshlrev_b32 v60, 2, v3')
    else: a('v_mov_b32 v60, 0')
    a('s_mov_b32 s30, 0')
    a.label(P)
    a(f'buffer_load_dword v61, v60, {WS}, {soff} offen sc1')
    a('s_waitcnt vmcnt(0)')
    a(f'v_cmp_ne_u32 vcc, {target}, v61')
    a(f's_cbranch_vccz {P}_ok')
    backoff(a, P, sleep)
    a('s_add_u32 s30, s30, 1')
    a(f's_cmp_lt_u32 s30, {WAIT_LIMIT}')
    a(f's_cbranch_scc1 {P}')
    a(f's_branch {abort}')
    a.label(P + '_ok')

def load_lin(a, base_s, n, areg, flags=''):
    for f in range(n):
        if f % 4 == 0: a(f's_add_u32 s22, {base_s}, {f*1024}')
        a(f'buffer_load_dwordx4 a[{areg+4*f}:{areg+4*f+3}], v2, {WS}, s22 offen offset:{(f & 3)*1024} {flags}')

def tokp_body(a, seg_s, hq_s, ld='', st='', sync=None, ldx=''):
    a(f's_lshl_b32 s20, {hq_s}, 2')
    a('s_add_u32 s20, s20, s16')
    a(f's_lshl_b32 s21, {seg_s}, 4')
    a('s_add_u32 s21, s21, s20')
    a(f's_mul_i32 s21, s21, {GSH_B}')
    a(f's_add_u32 s21, s21, {F_OFF}')
    a(f's_mul_i32 s23, {seg_s}, {28*KB}')
    a(f's_add_u32 s23, s23, {XM_OFF}')
    FA, XA, MA = 0, 112, 224
    if sync:
        a(f's_mul_i32 s24, {seg_s}, {7*KB}')
        a(f's_add_u32 s24, s24, {MEMG_OFF}')
        a(f's_lshr_b32 s25, {seg_s}, 3')
        a('s_lshl_b32 s25, s25, 4')
        a('s_add_u32 s25, s25, s20')
        a('s_lshl_b32 s25, s25, 7')
        a(f's_add_u32 s25, s25, {CNT_OFF + FC}')
        wait_eq(a, sync + '_wf', 's25', 56, sync + '_abort')
    else:
        a(f's_mul_i32 s24, {seg_s}, {EXCH_B}')
        a(f's_add_u32 s24, s24, {EXCH_OFF}')
    load_lin(a, 's21', 28, FA, ld)
    load_lin(a, 's23', 28, XA, ldx)
    if not sync: load_lin(a, 's24', 7, MA, ld)
    AX = {(0, 0): 8, (0, 1): 12, (1, 1): 16}
    AM = {(0, 0): 20, (1, 0): 24, (0, 1): 28, (1, 1): 32}
    for r in range(4):
        a(f'v_lshl_add_u32 v5, v3, 2, {r}')
        a(f'v_cmp_le_u32 s[{40+2*r}:{41+2*r}], v5, v4')
    a('v_cmp_gt_u32 s[48:49], 2, v3')
    a('v_mov_b32 v6, 0xff800000')
    a('s_waitcnt vmcnt(0)' if sync else 's_waitcnt vmcnt(7)')
    for f in range(14):
        for (tk, tt), d in AX.items():
            c = '0' if f == 0 else f'v[{d}:{d+3}]'
            xa = XA + 4 * (tk * 14 + f); fa = FA + 4 * (tt * 14 + f)
            a(f'v_mfma_f32_16x16x32_bf16 v[{d}:{d+3}], a[{xa}:{xa+3}], a[{fa}:{fa+3}], {c}')
    MV = 64
    if sync:
        a('s_mul_i32 s22, s20, 448')
        a('v_mov_b32 v62, s22' if not ONELINE else 'v_mov_b32 v62, 0')
        a('s_mov_b32 s30, 0')
        a.label(sync + '_pm')
        a(f's_cmp_ge_u32 s17, {FULLPOLL}')
        a(f's_cbranch_scc1 {sync}_pf')
        mpoll(a, 61, 62, 's24')
        a('s_waitcnt vmcnt(0)')
        a('v_cmp_eq_u32 vcc, -1, v61')
        a(f's_cbranch_vccnz {sync}_pr')
        a.label(sync + '_pf')
        a('s_add_u32 s22, s24, 4096')
        for ks in range(7):
            a(f'buffer_load_dwordx4 v[{MV+4*ks}:{MV+4*ks+3}], v2, {WS}, {"s24" if ks < 4 else "s22"} offen offset:{(ks & 3)*1024} sc1')
        a('s_waitcnt vmcnt(0)')
        a(f'v_max_u32 v61, v{MV}, v{MV+1}')
        for r in range(MV + 2, MV + 28, 2): a(f'v_max3_u32 v61, v61, v{r}, v{r+1}')
        a('v_cmp_eq_u32 vcc, -1, v61')
        a(f's_cbranch_vccz {sync}_pk')
        a.label(sync + '_pr')
        backoff(a, sync + '_pm', SLEEP)
        a('s_add_u32 s30, s30, 1')
        a(f's_cmp_lt_u32 s30, {WAIT_LIMIT}')
        a(f's_cbranch_scc1 {sync}_pm')
        a(f's_branch {sync}_abort')
        a.label(sync + '_pk')
        a(f'buffer_load_dword v250, v251, {PEEK}, 0 offen sc1')
    else:
        a('s_waitcnt vmcnt(0)')
    for ks in range(7):
        for (half, tt), d in AM.items():
            c = '0' if ks == 0 else f'v[{d}:{d+3}]'
            fa = FA + 4 * (tt * 14 + ks * 2 + half)
            mop = f'v[{MV+4*ks}:{MV+4*ks+3}]' if sync else f'a[{MA+4*ks}:{MA+4*ks+3}]'
            a(f'v_mfma_f32_16x16x32_bf16 v[{d}:{d+3}], {mop}, a[{fa}:{fa+3}], {c}')
    a(f's_lshl_b32 s25, {seg_s}, 1')
    a(f's_mul_i32 s25, s25, {PT_B}')
    a(f's_add_u32 s25, s25, {PT_OFF}')
    a('s_lshl_b32 s26, s20, 10')
    a('s_add_u32 s26, s26, s25')
    a(f's_lshl_b32 s27, {hq_s}, 10')
    a('s_add_u32 s27, s27, s25')
    a('s_lshr_b32 s28, s16, 1')
    a('s_lshl_b32 s28, s28, 3')
    a('s_add_u32 s27, s27, s28')
    a(f's_add_u32 s27, s27, {16*KB}')
    a('s_and_b32 s28, s16, 1')
    a('s_cmp_eq_u32 s28, 0')
    a('s_cselect_b32 s50, -1, 0')
    a('s_cselect_b32 s51, 0, -1')
    for tt in range(2):
        xs = []
        for (tk, t2), d in AX.items():
            if t2 != tt: continue
            for r in range(4):
                if tk == tt: a(f'v_cndmask_b32 v{d+r}, v6, v{d+r}, s[{40+2*r}:{41+2*r}]')
                xs.append(d + r)
        z, t = AM[(0, tt)], AM[(1, tt)]
        for r in range(4): a(f'v_cndmask_b32 v{z+r}, v{t+r}, v{z+r}, s[48:49]')
        for r in range(4): a(f'v_mov_b32 v{t+r}, v{z+r}')
        for r in range(4): a(f'v_permlane32_swap_b32 v{z+r}, v{t+r}')
        for r in range(4): a(f'v_add_f32 v{z+r}, v{z+r}, v{t+r}')
        ms = [z + r for r in range(4)]
        al = xs + ms
        mx = 40
        a(f'v_max3_f32 v{mx}, v{al[0]}, v{al[1]}, v{al[2]}')
        rest = al[3:]
        while len(rest) >= 2:
            a(f'v_max3_f32 v{mx}, v{mx}, v{rest[0]}, v{rest[1]}'); rest = rest[2:]
        if rest: a(f'v_max_f32 v{mx}, v{mx}, v{rest[0]}')
        for sw in ('16', '32'):
            a(f'v_mov_b32 v41, v{mx}')
            a(f'v_permlane{sw}_swap_b32 v{mx}, v41')
            a(f'v_max_f32 v{mx}, v{mx}, v41')
        for r in al: a(f'v_sub_f32 v{r}, v{r}, v{mx}')
        for r in al: a(f'v_exp_f32 v{r}, v{r}')
        a(f'v_add_f32 v42, v{ms[0]}, v{ms[1]}')
        a(f'v_add_f32 v43, v{ms[2]}, v{ms[3]}')
        a('v_add_f32 v42, v42, v43')
        a('v_mul_f32 v42, 0.5, v42')
        for r in xs: a(f'v_add_f32 v42, v42, v{r}')
        for sw in ('16', '32'):
            a('v_mov_b32 v41, v42')
            a(f'v_permlane{sw}_swap_b32 v42, v41')
            a('v_add_f32 v42, v42, v41')
        a('v_rcp_f32 v42, v42')
        for r in al: a(f'v_mul_f32 v{r}, v{r}, v42')
        o = 44 + 8 * tt
        for k in range(len(xs) // 2): a(f'v_cvt_pk_bf16_f32 v{o+k}, v{xs[2*k]}, v{xs[2*k+1]}')
        if tt == 0:
            a(f'v_mov_b32 v{o+2}, 0'); a(f'v_mov_b32 v{o+3}, 0')
        a(f'v_cvt_pk_bf16_f32 v{o+4}, v{ms[0]}, v{ms[1]}')
        a(f'v_cvt_pk_bf16_f32 v{o+5}, v{ms[2]}, v{ms[3]}')
        a(f'buffer_store_dwordx4 v[{o}:{o+3}], v2, {WS}, s26 offen {st}')
        a('s_mov_b64 exec, s[50:51]')
        a(f'buffer_store_dwordx2 v[{o+4}:{o+5}], v2, {WS}, s27 offen {st}')
        a('s_mov_b64 exec, -1')
        if tt == 0:
            a(f's_add_u32 s26, s26, {PT_B}')
            a(f's_add_u32 s27, s27, {PT_B}')
    if sync:
        a(f's_lshl_b32 s25, {seg_s}, 7')
        a(f's_add_u32 s25, s25, {CNT_OFF + PTC}')
        a('v_mov_b32 v5, 1')
        a('v_mov_b32 v6, 0')
        a('s_waitcnt vmcnt(0)')
        a('s_mov_b64 exec, 1')
        a(f'buffer_atomic_add v5, v6, {WS}, s25 offen')
        a('s_mov_b64 exec, -1')

def toko_body(a, seg_s, vq_s, ld='', sync=None, OUT='s[12:15]'):
    a(f's_lshl_b32 s20, {vq_s}, 2')
    a('s_add_u32 s20, s20, s16')
    a('s_mul_i32 s24, s20, 65')
    a(f's_add_u32 s24, s24, {seg_s}')
    a('s_lshl_b32 s24, s24, 13')
    a(f's_add_u32 s24, s24, {T2_OFF + 8*KB}')
    a('s_lshl_b32 s21, s20, 6')
    a(f's_add_u32 s21, s21, {seg_s}')
    a(f's_mul_i32 s21, s21, {GSH_B}')
    a(f's_add_u32 s21, s21, {VO_OFF}')
    a(f's_lshl_b32 s25, {seg_s}, 1')
    a(f's_mul_i32 s25, s25, {PT_B}')
    a(f's_add_u32 s25, s25, {PT_OFF}')
    a('v_mul_u32_u24 v7, 28, v3')
    a('v_add_u32 v5, v7, v4')
    a('v_lshlrev_b32 v5, 4, v5')
    a('v_add_u32 v6, 16, v4')
    a('v_min_u32 v6, 27, v6')
    a('v_add_u32 v6, v7, v6')
    a('v_lshlrev_b32 v6, 4, v6')
    a('v_lshrrev_b32 v8, 1, v3')
    a('v_lshl_add_u32 v8, v8, 4, v4')
    a('v_lshlrev_b32 v8, 4, v8')
    a('v_and_b32 v9, 1, v3')
    a('v_lshl_add_u32 v7, v9, 3, v8')
    VA, PA = 0, 128
    T2R, PMR = 28, 64
    if sync:
        a(f's_lshr_b32 s26, {seg_s}, 3')
        a('s_lshl_b32 s26, s26, 4')
        a('s_add_u32 s26, s26, s20')
        a('s_lshl_b32 s26, s26, 7')
        a(f's_add_u32 s26, s26, {CNT_OFF + VOC}')
        wait_eq(a, sync + '_wv', 's26', 56, sync + '_abort')
    for h in range(16):
        if h % 2 == 0: a(f's_add_u32 s22, s21, {h*1792}')
        for t in range(2):
            r = VA + 8 * h + 4 * t
            a(f'buffer_load_dwordx4 a[{r}:{r+3}], v{5+t}, {WS}, s22 offen offset:{(h & 1)*1792} {ld}')
    if sync:
        a('s_lshl_b32 s26, s20, 6')
        a(f's_add_u32 s26, s26, {seg_s}')
        a('s_lshl_b32 s26, s26, 4')
        a(f's_add_u32 s26, s26, {CNT_OFF + T2F}')
        wait_eq(a, sync + '_wt', 's26', 1, sync + '_abort', four=True)
    for hq in range(4):
        if hq % 2 == 0: a(f's_add_u32 s22, s24, {hq*2048}')
        for t in range(2):
            r = T2R + 8 * hq + 4 * t
            for pc in range(2):
                a(f'buffer_load_dwordx2 v[{r+2*pc}:{r+2*pc+1}], v7, {WS}, s22 offen offset:{(hq & 1)*2048 + t*1024 + pc*512} {ld}')
    if sync:
        a(f's_lshl_b32 s26, {seg_s}, 7')
        a(f's_add_u32 s26, s26, {CNT_OFF + PTC}')
        wait_eq(a, sync + '_wp', 's26', 16, sync + '_abort', sleep=2)
        a(f'buffer_load_dword v250, v251, {PEEK}, 0 offen sc1')
    else:
        a('s_waitcnt vmcnt(16)')
    for h in range(16):
        if h % 4 == 0:
            a(f's_add_u32 s26, s25, {h*1024}')
            a(f's_add_u32 s27, s25, {PT_B + h*1024}')
        for tt in range(2):
            r = PA + 8 * h + 4 * tt
            a(f'buffer_load_dwordx4 a[{r}:{r+3}], v2, {WS}, s{26+tt} offen offset:{(h & 3)*1024} {ld}')
    a(f's_add_u32 s26, s25, {16*KB}')
    a(f's_add_u32 s27, s25, {PT_B + 16*KB}')
    for hq in range(4):
        for tt in range(2):
            r = PMR + 8 * hq + 4 * tt
            a(f'buffer_load_dwordx4 v[{r}:{r+3}], v2, {WS}, s{26+tt} offen offset:{hq*1024} {ld}')
    ACC = 12
    def mm(A_, B_, t, tt, first):
        d = ACC + 8 * t + 4 * tt
        a(f'v_mfma_f32_16x16x32_bf16 v[{d}:{d+3}], {A_}, {B_}, ' + ('0' if first else f'v[{d}:{d+3}]'))
    for h in range(16):
        a(f's_waitcnt vmcnt({(15 - h) * 2 + 8})')
        for t in range(2):
            for tt in range(2):
                mm(f'a[{VA+8*h+4*t}:{VA+8*h+4*t+3}]', f'a[{PA+8*h+4*tt}:{PA+8*h+4*tt+3}]', t, tt, h == 0)
    a('s_waitcnt vmcnt(0)')
    for hq in range(4):
        for t in range(2):
            for tt in range(2):
                mm(f'v[{T2R+8*hq+4*t}:{T2R+8*hq+4*t+3}]', f'v[{PMR+8*hq+4*tt}:{PMR+8*hq+4*tt+3}]', t, tt, False)
    a('v_mul_u32_u24 v8, 1792, v4')
    a('v_lshl_add_u32 v8, v3, 3, v8')
    a(f's_mul_i32 s26, {seg_s}, {32*1792}')
    a('s_mul_i32 s22, s20, 56')
    a('s_add_u32 s26, s26, s22')
    a('s_add_u32 s26, s26, 896')
    a(f's_add_u32 s27, s26, {16*1792}')
    for t in range(2):
        for tt in range(2):
            d = ACC + 8 * t + 4 * tt; o = 96 + 4 * t + 2 * tt
            a(f'v_cvt_pk_bf16_f32 v{o}, v{d}, v{d+1}')
            a(f'v_cvt_pk_bf16_f32 v{o+1}, v{d+2}, v{d+3}')
        if t: a('s_mov_b32 exec_hi, 0xffff')
        for tt in range(2):
            o = 96 + 4 * t + 2 * tt
            a(f'buffer_store_dwordx2 v[{o}:{o+1}], v8, {OUT}, s{26+tt} offen offset:{32*t}')
    a('s_mov_b64 exec, -1')

def gen_tok(which):
    name = f'tok{which}_kernel'
    a = Asm(); a.raw(kernel_header(name))
    common(a, f't{which}_end')
    a('s_lshr_b32 s17, s2, 2')
    a('s_and_b32 s18, s2, 3')
    if which == 'p': tokp_body(a, 's17', 's18')
    else: toko_body(a, 's17', 's18')
    a.label(f't{which}_end')
    a('s_endpgm')
    return a
```

```python
from asmlib import *
from layout import *

SRD = 's[8:11]'; DBG = 's[12:15]'
SPIN_LIMIT = 400000
SLOW_LIMIT = 50000
NSTEPS = 64
STAMPS = False
STAMP_STEP = 32
STAMP_CYC = 0
STEPLOG = 0
STAMP_OFF = 100 * 1024 * 1024
POLL_DEPTH = 3
POLL_GAP = 0
SC_SLEEP = 0
M_GAP = 4
SC_DELAY = 0
F1_POS = 10
F2_POS = 3
VA_DELAY = 0
VO_POS = 1
P_GAP = 5
ZFILL = 1
SC_ALLPOLL = 0
FOLDW = 1
NANCHK = 1
VO_PRE0 = 0
VO_PRE = 16
VO_SLEEP = 0
F1_WAVE = 2
RB1_DELAY = 0
EC_M = 0
EC_P = 0
DIAG = 0
T2SRV = 1
SLOW_FIRST = 0
B2_POS = 0
M_ROT = 0
CODE_PF = 1
PUB_EARLY = 0
HLP_SLEEP = 0
MERGE = 0
A_TGT = 28
B_TGT = 64
SELF_POISON = 0
X_PRELOAD = 0
VO_NT = 0
FIN_SLEEP = 0
VM_BURST = 0
PUBLISH = 1
VM_EVERY = 2
PUB_FIRST = 1
VO_EARLY = 0
FLAG_SLEEP = 0
SYNC = 0
XCD_SEL = 0
NOBULK = 0
VAL_TOUCH = 0
SC_TOUCH = 0
TOUCH_POS = 2
TOUCH_AHEAD = 2
DMA_DELAY = 0
PLAIN_M = 1
MRG = 1
T2DF = 0
T2DH = 0
NOT2 = 0
ECP = 3
FAST = 1
EPI2 = 1
F2ONE = 0
SELF = 0
BDEP = None
R1 = 16
R2 = 32
PD_S = 5
PG_S = 8
PD_V = 5
PG_V = 8
PD_H = 3
PG_H = 0
VST = 0
VSM = 1
NPP = 10
VZ = 3
NPRE = 3
LPOS = 1
PLAIN_P = 1
D = 'row_mask:0xf bank_mask:0xf'
XSEG_B = 28 * KB

def stamp(a, k):
    if STAMPS: a(f'{"s_memtime" if STAMP_CYC else "s_memrealtime"} s[{40+2*k}:{41+2*k}]')
def stamp_flush(a, path, n, lbl, t=118):
    if not STAMPS: return
    a(f's_cmp_lg_u32 s19, {STAMP_STEP}')
    a(f's_cbranch_scc1 {lbl}')
    a('s_waitcnt lgkmcnt(0)')
    a(f's_lshl_b32 s22, s17, 9')
    a(f's_add_u32 s22, s22, {STAMP_OFF + path * 64}')
    a(f'v_mov_b32 v{t}, 0')
    for k in range(n):
        a(f'v_mov_b32 v{t+1}, s{40+2*k}')
        a(f'buffer_store_dword v{t+1}, v{t}, {SRD}, s22 offen offset:{4*k}')
    a.label(lbl)

EVLOG = 0
EV_OFF = 101 * 1024 * 1024
def evlog(a, tag, t=36):
    if not EVLOG: return
    a('s_memrealtime s[98:99]')
    a('s_waitcnt lgkmcnt(0)')
    a(f'v_mov_b32 v{t}, {tag}')
    a(f'v_mov_b32 v{t+1}, s98')
    a('s_mov_b64 exec, 1')
    a(f'buffer_store_dwordx2 v[{t}:{t+1}], off, {SRD}, s100')
    a('s_mov_b64 exec, -1')
    a('s_add_u32 s100, s100, 8')

def exec_lo(a, R):
    if R == 32: a('s_mov_b32 exec_hi, 0')
    else: a(f's_mov_b64 exec, {(1 << R) - 1}')

def spin(a, back, abort):
    a('s_add_u32 s30, s30, 1')
    a(f's_cmp_lt_u32 s30, {SPIN_LIMIT}')
    a(f's_cbranch_scc1 {back}')
    a(f's_branch {abort}')

def flagpoll(a, vaddr, sbase, regs, lbl, abort, Dp=None, gap=None, issued=0):
    Dp = Dp or POLL_DEPTH
    gap = POLL_GAP if gap is None else gap
    for i in range(issued, Dp):
        a(f'buffer_load_dword v{regs+i}, v{vaddr}, {SRD}, {sbase} offen sc1')
        if i < Dp - 1: a.nop(gap)
    a.label(lbl + '_l')
    for i in range(Dp):
        a(f's_waitcnt vmcnt({Dp-1})')
        a(f'v_cmp_eq_u32 vcc, -1, v{regs+i}')
        a(f's_cbranch_vccz {lbl}_d')
        a(f'buffer_load_dword v{regs+i}, v{vaddr}, {SRD}, {sbase} offen sc1')
    spin(a, lbl + '_l', abort)
    a.label(lbl + '_d')

def load_M(a, M, gap=0, k0=0):
    for ks in range(k0, 7):
        so = 's20' if ks < 4 else 's23'
        a(f'buffer_load_dwordx4 v[{M+4*ks}:{M+4*ks+3}], v2, {SRD}, {so} offen offset:{(ks & 3) * 1024} sc1')
        if gap and ks < 3: a.nop(gap)

def load_units(a, units, base, tmp_s='s22'):
    cur = None; n = 0
    for off, reg in units:
        for hb in range(2):
            o = off + hb * 1024
            blk = o // 4096 * 4096
            if blk != cur:
                a(f's_add_u32 {tmp_s}, {base}, {blk}'); cur = blk
            a(f'buffer_load_dwordx4 {ureg(reg + 4 * hb, 4)}, v2, {SRD}, {tmp_s} offen offset:{o - blk}' + (' sc1' if MERGE else ''))
            n += 1
            if n % 32 == 0: a('s_waitcnt vmcnt(24)')

def wreg(ti, ks):
    u = ti * 7 + ks
    return 256 + 8 * u if u < 32 else 120 + 8 * (u - 32)

def lane_consts(a):
    a('v_and_b32 v1, 63, v0')
    a('v_lshlrev_b32 v2, 4, v1')
    a('v_lshrrev_b32 v116, 4, v1')
    a('v_and_b32 v117, 15, v1')
    a('v_mov_b32 v3, 0x4444')
    a('v_mov_b32 v118, 0xeeee')
    a('v_cmp_lt_u32 vcc, 7, v117')
    a('v_cndmask_b32 v3, v3, v118, vcc')

def step_bases(a):
    a('s_add_u32 s23, s20, 4096')
    a(f's_add_u32 s21, s20, {EXCH_B}')

class Checker:
    def __init__(self, a, acc): self.a = a; self.acc = acc; self.q = []; self.first = True
    def add(self, r, n=4): self.q += list(range(r, r + n))
    def emit(self, k=1):
        for _ in range(k):
            if self.first and len(self.q) >= 3:
                x, y, z = self.q[:3]; self.q = self.q[3:]
                self.a(f'v_max3_u32 v{self.acc}, v{x}, v{y}, v{z}'); self.first = False
            elif len(self.q) >= 2:
                x, y = self.q[:2]; self.q = self.q[2:]
                self.a(f'v_max3_u32 v{self.acc}, v{self.acc}, v{x}, v{y}')
            elif len(self.q) == 1:
                self.a(f'v_max_u32 v{self.acc}, v{self.acc}, v{self.q[0]}'); self.q = []
    def drain(self):
        while self.q: self.emit()

XP = 2 * XSEG_B
MP = XP + 8 * KB
def score_tiles(w):
    return [(w, 0), (w, 1), (w, 2), (w, 3), (4 + (w >> 1), 2 * (w & 1)), (4 + (w >> 1), 2 * (w & 1) + 1), (6, w)]

def x_dma(a, w):
    a(f's_add_u32 m0, s25, {7*w*1024}')
    for f in range(7):
        if f == 4:
            a(f's_add_u32 m0, s25, {7*w*1024 + 4096}')
            a('s_add_u32 s22, s24, 4096')
        a(f'buffer_load_dwordx4 v2, {SRD}, {"s24" if f < 4 else "s22"} offen offset:{(f & 3) * 1024}' + (' sc1' if MERGE else '') + ' lds')

def gen_score(a, w, st, tag):
    L = lambda n: f'{tag}_sc{w}_{n}'
    ABORT = f'{tag}_abort'
    M = 8; ACC = 36; AOP = 64; TR = 68; BOP6 = 76; BOPB = 80; BOPA = 60; SACC = 84; SX = 88
    XS = [96, 104, [12, 16, 8, 8][w], 52, 36]
    ka, kb = w, 4 + (w >> 1)
    half6, piece6, pieceP = w & 1, w >> 1, w & 1
    def S(ti, ks):
        return f'v_smfmac_f32_16x16x64_bf16 v[{ACC+4*ti}:{ACC+4*ti+3}], v[{M+4*ks}:{M+4*ks+3}], {ureg(wreg(ti, ks), 8)}, v3'
    def cvt(dst, src):
        return [f'v_cvt_pk_bf16_f32 v{dst}, v{src}, v{src+1}', f'v_cvt_pk_bf16_f32 v{dst+1}, v{src+2}, v{src+3}']
    def T(dst): return f'v_mfma_f32_16x16x32_bf16 v[{dst}:{dst+3}], v[{AOP}:{AOP+3}], v[4:7], 0'
    def xrd(buf, kap, tt):
        off = (tt * 14 + 2 * kap) * 1024
        return [f'ds_read_b128 v[{XS[buf]}:{XS[buf]+3}], v116 offset:{off}', f'ds_read_b128 v[{XS[buf]+4}:{XS[buf]+7}], v116 offset:{off+1024}']
    def xrd2(buf, tt):
        return [f'ds_read_b128 v[{XS[buf]}:{XS[buf]+3}], v117 offset:{tt*14*KB}', f'ds_read_b128 v[{XS[buf]+4}:{XS[buf]+7}], v117 offset:{tt*14*KB+1024}']
    xfirst = (lambda: xrd2(0, 0) + xrd2(1, 1)) if MRG else (lambda: xrd(0, 6, 0) + xrd(1, 6, 1))
    def Smm(kap, b, first=False):
        c = '0' if first else f'v[{SACC}:{SACC+3}]'
        return f'v_mfma_f32_16x16x32_bf16 v[{SACC}:{SACC+3}], v[{M+4*kap}:{M+4*kap+3}], v[{b}:{b+3}], {c}'
    def Sx(tt, b, buf):
        return f'v_smfmac_f32_16x16x64_bf16 v[{SX+4*tt}:{SX+4*tt+3}], v[{b}:{b+3}], v[{XS[buf]}:{XS[buf]+7}], v3'
    ZR = list(range(ACC, ACC + 28)) + list(range(SX, SX + 8)) + [AOP + 2 - 2 * half6, AOP + 3 - 2 * half6]
    def zero(lo=0, hi=99):
        for r in ZR[lo:hi]: a(f'v_mov_b32 v{r}, 0')
    o1 = [(k + w) % 4 for k in range(4)] if M_ROT else [0, 1, 2, 3]
    o2 = [4 + (k + w) % 3 for k in range(3)] if M_ROT else [4, 5, 6]
    def ml(ks, first=False):
        a(f'buffer_load_dwordx4 v[{M+4*ks}:{M+4*ks+3}], v2, {SRD}, {"s20" if ks < 4 else "s23"} offen offset:{(ks & 3) * 1024}' + ('' if first and PLAIN_M and st == '' else ' sc1'))
    a.label(L('loop'))
    step_bases(a)
    zero(3 * M_GAP if ZFILL else 0)
    a('s_mov_b32 s30, 0')
    if NANCHK: a('s_mov_b32 s62, 0')
    if SC_ALLPOLL:
        a('s_waitcnt vmcnt(0)')
        a('s_barrier')
        if SC_SLEEP: a(f's_sleep {SC_SLEEP}')
        flagpoll(a, 117, 's20', TR, L('fp'), ABORT)
        stamp(a, 0)
    else:
        if w == 0:
            if SC_SLEEP: a(f's_sleep {SC_SLEEP}')
            flagpoll(a, 0, 's20', TR, L('fp'), ABORT, PD_S, PG_S)
            if SC_DELAY: a.nop(SC_DELAY)
            ml(o1[0], True)
            a('s_barrier')
            stamp(a, 0)
            a(f's_branch {L("ld1")}')
        else:
            a('s_waitcnt vmcnt(0)')
            stamp(a, 7)
            a('s_barrier')
            stamp(a, 0)
    a.label(L('ld'))
    ml(o1[0], NANCHK)
    if w == 0: a.label(L('ld1'))
    order = o1 + o2
    for i, ks in enumerate(order[1:NPRE]):
        if i < 3:
            if ZFILL: zero(i * M_GAP, (i + 1) * M_GAP)
            else: a.nop(M_GAP)
        ml(ks, NANCHK)
    if ZFILL and NPRE < 4: zero((NPRE - 1) * M_GAP, 3 * M_GAP)
    if NANCHK and NPRE == 7: a.label(L('ld2'))
    for x in xfirst(): a(x)
    ck = Checker(a, 118)
    issued = NPRE
    late = order[NPRE:]
    for i, ks in enumerate(o1):
        a(f's_waitcnt vmcnt({issued-1-i})')
        if i < EC_M:
            a.label(L(f'e{i}'))
            r = M + 4 * ks
            a(f'v_max3_u32 v{TR}, v{r}, v{r+1}, v{r+2}')
            a(f'v_max_u32 v{TR}, v{TR}, v{r+3}')
            a(f'v_cmp_eq_u32 vcc, -1, v{TR}')
            a(f's_cbranch_vccnz {L(f"er{i}")}')
        elif not NANCHK: ck.add(M + 4 * ks)
        if i == 0: stamp(a, 1)
        for ti in range(7):
            a(S(ti, ks))
            if ti in (1, 3): ck.emit()
            if late and ti in ((LPOS, LPOS + 3) if LPOS < 4 else (LPOS - 4,)):
                ml(late.pop(0), NANCHK); issued += 1
    assert not late
    a('s_waitcnt vmcnt(0)')
    if NPRE < 7: a.label(L('ph2'))
    stamp(a, 2)
    for k in (4, 5, 6):
        if not NANCHK: ck.add(M + 4 * k)
    seq = []
    for ti in (6, 4, 5, 0, 1, 2, 3):
        for ks in (4, 5, 6): seq.append([S(ti, ks), []])
    def side(i, ops): seq[i][1] += ops
    CK = 'CK'
    for i in range(6): side(i, [CK])
    if MRG:
        M2 = 80
        side(0, xrd(2, ka, 0))
        if (w == 1 or w == 2): side(1, [f'buffer_load_dword v119, v0, {SRD}, {"s20" if w == 1 else "s24"} offen sc1'])
        mv = [f'v_mov_b32 v{M2+k}, v{M+4*kb+2*pieceP+k}' for k in range(2)] + [f'v_mov_b32 v{M2+2+k}, v{M+24+2*piece6+k}' for k in range(2)]
        side(2, mv[:1]); side(3, mv[1:2]); side(4, mv[2:3]); side(7, mv[3:])
        c6 = cvt(AOP + 2 * half6, ACC + 24)
        side(5, c6[:1]); side(6, c6[1:])
        seq.insert(8, [T(TR), []])
        cb6 = cvt(BOP6 + 2, TR)
        side(11, cb6[:1]); side(12, cb6[1:])
        c4, c5 = cvt(AOP, ACC + 16), cvt(AOP + 2, ACC + 20)
        side(9, c4[:1]); side(10, c4[1:]); side(12, c5[:1]); side(13, c5[1:])
        seq.insert(15, [T(TR + 4), xrd(3, ka, 1)])
        c0, c1 = cvt(AOP, ACC), cvt(AOP + 2, ACC + 4)
        side(16, c0[:1]); side(17, c0[1:])
        cbb = cvt(BOP6, TR + 4)
        side(18, cbb[:1]); side(19, cbb[1:] + c1[:1]); side(20, c1[1:])
        seq.insert(22, [T(TR), []])
        c2, c3 = cvt(AOP, ACC + 8), cvt(AOP + 2, ACC + 12)
        side(23, c2[:1])
        seq.append([f'v_mfma_f32_16x16x32_bf16 v[{SACC}:{SACC+3}], v[{M2}:{M2+3}], v[{BOP6}:{BOP6+3}], 0', c2[1:] + ['s_waitcnt lgkmcnt(0)']])
        ca0 = cvt(BOPA, TR)
        seq.append([Sx(0, BOP6, 0), ca0 + c3])
        seq.append([T(TR + 4), []])
        seq.append([Sx(1, BOP6, 1), cvt(BOPA + 2, TR + 4)])
        seq.append([Smm(ka, BOPA), []])
        seq.append([Sx(0, BOPA, 2), []])
        seq.append([Sx(1, BOPA, 3), []])
    else:
        side(0, xrd(2, kb, 0))
        if SC_TOUCH: side(TOUCH_POS, [f'buffer_load_dword v119, v117, {SRD}, s35 offen sc1'])
        if not VAL_TOUCH and ((w == 1 and not SELF_POISON) or (w == 2 and not X_PRELOAD)): side(TOUCH_POS - 1, [f'buffer_load_dword v119, v0, {SRD}, {"s20" if w == 1 else "s24"} offen sc1'])
        c6 = cvt(AOP + 2 * half6, ACC + 24)
        side(5, c6[:1]); side(6, c6[1:] + ['v_cmp_eq_u32 vcc, -1, v118'])
        seq.insert(8, [T(TR), []])
        side(9, [f's_cbranch_vccnz {L("retry")}'])
        cb6 = cvt(BOP6 + 2 * piece6, TR)
        side(11, cb6[:1]); side(12, cb6[1:])
        c4, c5 = cvt(AOP, ACC + 16), cvt(AOP + 2, ACC + 20)
        side(9, c4[:1]); side(10, c4[1:]); side(12, c5[:1]); side(13, c5[1:])
        seq.insert(15, [T(TR + 4), xrd(3, kb, 1)])
        c0, c1 = cvt(AOP, ACC), cvt(AOP + 2, ACC + 4)
        side(16, c0[:1]); side(17, c0[1:])
        cbb = cvt(BOPB + 2 * pieceP, TR + 4)
        side(18, cbb[:1]); side(19, cbb[1:] + c1[:1]); side(20, c1[1:])
        seq.insert(22, [T(TR), xrd(4, ka, 0)])
        c2, c3 = cvt(AOP, ACC + 8), cvt(AOP + 2, ACC + 12)
        side(23, ['s_waitcnt lgkmcnt(4)'] + c2[:1])
        seq.append([Smm(6, BOP6, True), c2[1:]])
        seq.append([Sx(0, BOP6, 0), xrd(0, ka, 1)])
        ca0 = cvt(BOPA, TR)
        seq.append([Sx(1, BOP6, 1), c3])
        seq.append([Smm(kb, BOPB), ca0[:1]])
        seq.append([T(TR + 4), ca0[1:] + ['s_waitcnt lgkmcnt(4)']])
        seq.append([Sx(0, BOPB, 2), []])
        seq.append([Sx(1, BOPB, 3), ['s_waitcnt lgkmcnt(0)'] + cvt(BOPA + 2, TR + 4)])
        if FOLDW:
            seq.append([Smm(ka, BOPA), []])
            seq.append([Sx(0, BOPA, 4), []])
            seq.append([Sx(1, BOPA, 0), []])
        else:
            seq.append([Sx(0, BOPA, 4), []])
            seq.append([Sx(1, BOPA, 0), []])
            seq.append([Smm(ka, BOPA), []])
    for m, ops in seq:
        a(m)
        for o in ops:
            if o == CK: ck.emit()
            elif NANCHK and (o.startswith('v_cmp') or o.startswith('s_cbranch')): pass
            else:
                if o.startswith('v_cmp'): ck.drain()
                a(o)
    if FOLDW:
        a('s_mov_b64 exec, s[26:27]')
        a(f'ds_write_b128 v113, v[{SACC}:{SACC+3}]')
        a('s_mov_b64 exec, -1')
        a(f'v_cmp_u_f32 vcc, v{SX}, v{SX+1}')
        for r in range(4): a(f'v_permlane32_swap_b32 v{SX+r}, v{SX+4+r}')
        for r in range(4): a(f'v_add_f32 v{SX+r}, v{SX+r}, v{SX+4+r}')
        a(f'ds_write_b128 v112, v[{SX}:{SX+3}]')
    else:
        a(f'ds_write_b128 v112, v[{SX}:{SX+3}]')
        if NANCHK: a(f'v_cmp_u_f32 vcc, v{SX}, v{SX+1}')
        a(f'ds_write_b128 v112, v[{SX+4}:{SX+7}] offset:256')
        a('s_mov_b64 exec, s[26:27]')
        a(f'ds_write_b128 v113, v[{SACC}:{SACC+3}]')
        a('s_mov_b64 exec, -1')
    if NANCHK:
        a(f's_cbranch_vccnz {L("retry")}')
        a.label(L('cont'))
    stamp(a, 3)
    a('s_waitcnt lgkmcnt(0)')
    a('s_barrier')
    stamp(a, 4)
    t = ACC
    for k in range(2 if FOLDW else 4): a(f'ds_read_b64 v[{t+2*k}:{t+2*k+1}], v114 offset:{k*1024}')
    a(f'ds_read2_b32 v[{t+8}:{t+9}], v115 offset0:0 offset1:64')
    if w == F1_WAVE: a(f'v_lshl_add_u32 v{t+20}, v2, 3, s36')
    def f1(pos):
        if w == F1_WAVE and pos == F1_POS:
            exec_lo(a, R1)
            a(f'buffer_store_dword v2, v{t+20}, {SRD}, s20 offen {st}')
            a('s_mov_b64 exec, -1')
    if F1_POS < 0 and w == F1_WAVE:
        a.nop(4 * (F1_POS + 4)); f1(F1_POS)
    a('s_waitcnt lgkmcnt(0)')
    f1(0)
    stamp(a, 5)
    sm, sx = t + 8, t
    a(f'v_add_f32 v{sm}, v{t+8}, v{t+9}')
    a(f'v_add_f32 v{t}, v{t}, v{t+2}')
    a(f'v_add_f32 v{t+1}, v{t+1}, v{t+3}')
    f1(10)
    a(f'v_add_f32_dpp v{sm}, v{sm}, v{sm} row_ror:8 {D}')
    if FOLDW:
        a(f'v_mov_b32 v{t+9}, v{sm}')
        f1(11)
        a(f'v_permlane32_swap_b32 v{t}, v{t+1}')
        a(f'v_add_f32 v{sx}, v{t}, v{t+1}')
        f1(12)
        a(f'v_permlane16_swap_b32 v{sm}, v{t+9}')
        a(f'v_add_f32 v{sm}, v{sm}, v{t+9}')
        f1(13)
    else:
        a(f'v_add_f32 v{t+4}, v{t+4}, v{t+6}')
        a(f'v_add_f32 v{t+5}, v{t+5}, v{t+7}')
        a(f'v_mov_b32 v{t+9}, v{sm}')
        a(f'v_add_f32 v{t}, v{t}, v{t+4}')
        a(f'v_add_f32 v{t+1}, v{t+1}, v{t+5}')
        a(f'v_permlane16_swap_b32 v{sm}, v{t+9}')
        a(f'v_add_f32 v{sm}, v{sm}, v{t+9}')
        a(f'v_permlane32_swap_b32 v{t}, v{t+1}')
        a(f'v_add_f32 v{sx}, v{t}, v{t+1}')
    if FAST:
        ex, em, ab = t + 12, t + 13, t + 14
        l = t + 3; u = t + 4; v = t + 5; lo = t + 6; hi = t + 7
        def norm(fast):
            a(f'v_fma_f32 v{l}, v{em}, s37, v{ex}')
            if fast: a(f'v_cmp_ngt_f32 vcc, s56, v{ab}')
            a(f'v_cndmask_b32 v{v}, v{ex}, v{em}, s[38:39]')
            a(f'v_add_f32_dpp v{l}, v{l}, v{l} quad_perm:[1,0,3,2] {D}')
            a(f'v_cndmask_b32 v{u}, v{em}, v{ex}, s[38:39]')
            a(f'v_mov_b32_dpp v{t+10}, v{v} quad_perm:[1,0,3,2] {D}')
            a(f'v_add_f32_dpp v{l}, v{l}, v{l} quad_perm:[2,3,0,1] {D}')
            a(f'v_cndmask_b32 v{lo}, v{t+10}, v{u}, s[38:39]')
            a(f'v_cndmask_b32 v{hi}, v{u}, v{t+10}, s[38:39]')
            a(f'v_add_f32_dpp v{l}, v{l}, v{l} row_half_mirror {D}')
            if fast: a(f's_cbranch_vccnz {L("slow")}')
            a(f'v_add_f32_dpp v{l}, v{l}, v{l} row_mirror {D}')
            a(f'v_mov_b32 v{t+11}, v{l}')
            a(f'v_permlane16_swap_b32 v{l}, v{t+11}')
            a(f'v_add_f32 v{l}, v{l}, v{t+11}')
            a(f'v_rcp_f32 v{l}, v{l}')
            a('s_mov_b64 exec, s[28:29]')
            a(f'v_mul_f32 v{lo}, v{lo}, v{l}')
            a(f'v_mul_f32 v{hi}, v{hi}, v{l}')
            a(f'v_cvt_pk_bf16_f32 v{lo}, v{lo}, v{hi}')
        a(f'v_exp_f32 v{ex}, v{sx}')
        a(f'v_exp_f32 v{em}, v{sm}')
        a(f'v_add_f32 v{ab}, abs(v{sx}), abs(v{sm})')
        f1(1)
        norm(True)
        a.label(L('pst'))
    else:
        mx = t + 2
        a(f'v_max_f32 v{mx}, v{sx}, v{sm}')
        f1(1)
        a(f'v_max_f32_dpp v{mx}, v{mx}, v{mx} quad_perm:[1,0,3,2] {D}')
        a(f'v_max_f32_dpp v{mx}, v{mx}, v{mx} quad_perm:[2,3,0,1] {D}')
        a(f'v_max_f32_dpp v{mx}, v{mx}, v{mx} row_half_mirror {D}')
        a(f'v_max_f32_dpp v{mx}, v{mx}, v{mx} row_mirror {D}')
        a(f'v_mov_b32 v{t+3}, v{mx}')
        a(f'v_permlane16_swap_b32 v{mx}, v{t+3}')
        a(f'v_max_f32 v{mx}, v{mx}, v{t+3}')
        f1(2)
        a(f'v_sub_f32 v{sx}, v{sx}, v{mx}')
        a(f'v_sub_f32 v{sm}, v{sm}, v{mx}')
        a(f'v_exp_f32 v{sx}, v{sx}')
        a(f'v_exp_f32 v{sm}, v{sm}')
        l = t + 3; u = t + 4; v = t + 5; lo = t + 6; hi = t + 7
        a(f'v_fma_f32 v{l}, v{sm}, s37, v{sx}')
        a(f'v_cndmask_b32 v{u}, v{sm}, v{sx}, s[38:39]')
        a(f'v_cndmask_b32 v{v}, v{sx}, v{sm}, s[38:39]')
        a(f'v_add_f32_dpp v{l}, v{l}, v{l} quad_perm:[1,0,3,2] {D}')
        a(f'v_mov_b32_dpp v{t+10}, v{v} quad_perm:[1,0,3,2] {D}')
        a(f'v_add_f32_dpp v{l}, v{l}, v{l} quad_perm:[2,3,0,1] {D}')
        a(f'v_cndmask_b32 v{lo}, v{t+10}, v{u}, s[38:39]')
        a(f'v_cndmask_b32 v{hi}, v{u}, v{t+10}, s[38:39]')
        f1(3)
        a(f'v_add_f32_dpp v{l}, v{l}, v{l} row_half_mirror {D}')
        a(f'v_add_f32_dpp v{l}, v{l}, v{l} row_mirror {D}')
        a(f'v_mov_b32 v{t+11}, v{l}')
        a(f'v_permlane16_swap_b32 v{l}, v{t+11}')
        a(f'v_add_f32 v{l}, v{l}, v{t+11}')
        f1(4)
        a(f'v_rcp_f32 v{l}, v{l}')
        a(f'v_mul_f32 v{lo}, v{lo}, v{l}')
        a(f'v_mul_f32 v{hi}, v{hi}, v{l}')
        a(f'v_cvt_pk_bf16_f32 v{lo}, v{lo}, v{hi}')
        a(f'v_min_u32 v{lo}, -2, v{lo}')
        a('s_mov_b64 exec, s[28:29]')
    a(f'buffer_store_dword v{lo}, v1, {SRD}, s20 offen {st}')
    a('s_mov_b64 exec, -1')
    f1(5)
    stamp(a, 6)
    a('s_barrier')
    if DMA_DELAY: a.nop(DMA_DELAY)
    if not NOBULK: a(f's_add_u32 s24, s24, {XSEG_B}')
    if not NOBULK: a(f's_add_u32 s35, s35, {GSH_B}')
    a(f's_xor_b32 s25, s25, {XSEG_B}')
    x_dma(a, w)
    a(f'v_xor_b32 v116, {XSEG_B}, v116')
    if MRG:
        a('v_add_u32 v117, s57, v117')
        a('s_sub_u32 s57, 0, s57')
    stamp_flush(a, w, 8, L('sf'))
    if STEPLOG and w in (1, 3):
        a('s_memtime s[40:41]' if w == 1 else 's_memrealtime s[40:41]')
        a('s_lshl_b32 s22, s17, 8')
        a('s_lshl_b32 s42, s19, 2')
        a('s_add_u32 s22, s22, s42')
        a(f's_add_u32 s22, s22, {STAMP_OFF + (4096 if w == 3 else 0)}')
        a('v_mov_b32 v118, 0')
        a('s_waitcnt lgkmcnt(0)')
        a('v_mov_b32 v119, s40')
        a(f'buffer_store_dword v119, v118, {SRD}, s22 offen')
    a('s_add_u32 s19, s19, 1')
    a('s_mov_b32 s20, s21')
    a(f's_cmp_lt_u32 s19, {NSTEPS-1}')
    a.flush()
    a(f's_cbranch_scc1 {L("loop")}')
    a(f's_branch {tag}_done')
    for i in range(EC_M):
        a.label(L(f'er{i}'))
        ml(o1[i])
        a('s_waitcnt vmcnt(0)')
        a('s_add_u32 s31, s31, 0x100')
        spin(a, L(f'e{i}'), ABORT)
    if FAST:
        a.label(L('slow'))
        mx = ab
        a(f'v_max_f32 v{mx}, v{sx}, v{sm}')
        for pm in ('quad_perm:[1,0,3,2]', 'quad_perm:[2,3,0,1]', 'row_half_mirror', 'row_mirror'): a(f'v_max_f32_dpp v{mx}, v{mx}, v{mx} {pm} {D}')
        a(f'v_mov_b32 v{t+11}, v{mx}')
        a(f'v_permlane16_swap_b32 v{mx}, v{t+11}')
        a(f'v_max_f32 v{mx}, v{mx}, v{t+11}')
        a(f'v_sub_f32 v{ex}, v{sx}, v{mx}')
        a(f'v_sub_f32 v{em}, v{sm}, v{mx}')
        a(f'v_exp_f32 v{ex}, v{ex}')
        a(f'v_exp_f32 v{em}, v{em}')
        a('s_add_u32 s31, s31, 0x100')
        norm(False)
        a(f'v_min_u32 v{lo}, -2, v{lo}')
        a(f's_branch {L("pst")}')
    a.label(L('retry'))
    if NANCHK:
        a('s_cmp_lg_u32 s62, 0')
        a(f's_cbranch_scc1 {L("cont")}')
        a('s_waitcnt vmcnt(0) lgkmcnt(0)')
        a.label(L('rv'))
        for ks in range(7): ml(ks)
        a('s_waitcnt vmcnt(0)')
        ck2 = Checker(a, 118)
        ck2.add(M, 28); ck2.drain()
        a('v_cmp_eq_u32 vcc, -1, v118')
        a(f's_cbranch_vccz {L("rk")}')
        spin(a, L('rv'), ABORT)
        a.label(L('rk'))
        a('s_mov_b32 s62, 1')
        zero()
        a('s_add_u32 s31, s31, 1')
        if NPRE == 7: a(f's_branch {L("ld2")}')
        else:
            for x in xfirst(): a(x)
            for ks in o1:
                for ti in range(7): a(S(ti, ks))
            a(f's_branch {L("ph2")}')
    else:
        a('s_waitcnt vmcnt(0) lgkmcnt(0)')
        a.nop(10)
        zero()
        a('s_add_u32 s31, s31, 1')
        spin(a, L('ld'), ABORT)

def init_score(a, w):
    AOP = 64
    a(f's_mul_i32 s31, s17, {CUW_B}')
    a(f's_add_u32 s31, s31, {WF_A}')
    units = [((kap * 4 + q) * TILE_B + ks * UNIT, wreg(ti, ks)) for ti, (kap, q) in enumerate(score_tiles(w)) for ks in range(7) if not SELF or ti >= 4]
    load_units(a, units, 's31')
    a(f's_mov_b32 s24, {XF_OFF + 7*w*1024}')
    a('s_mov_b32 s25, 0')
    x_dma(a, w)
    a('v_and_b32 v64, 7, v117')
    a('v_and_b32 v65, 1, v116')
    a('v_lshlrev_b32 v65, 2, v65')
    a('v_sub_u32 v64, v64, v65')
    a('v_lshrrev_b32 v65, 3, v117')
    a('v_lshl_add_u32 v66, v65, 2, v64')
    a('v_cmp_gt_u32 vcc, 4, v64')
    a('v_mov_b32 v67, 99')
    a('v_cndmask_b32 v66, v67, v66, vcc')
    a('v_mov_b32 v68, 0x3f80')
    a('v_mov_b32 v69, 0x3f800000')
    for d in range(4):
        a(f'v_mov_b32 v{4+d}, 0')
        a(f'v_cmp_eq_u32 vcc, {2*d}, v66')
        a(f'v_cndmask_b32 v{4+d}, v{4+d}, v68, vcc')
        a(f'v_cmp_eq_u32 vcc, {2*d+1}, v66')
        a(f'v_cndmask_b32 v{4+d}, v{4+d}, v69, vcc')
    a('v_lshrrev_b32 v64, 1, v116')
    a('v_lshrrev_b32 v65, 3, v117')
    a('v_cmp_eq_u32 s[26:27], v64, v65')
    a('v_and_b32 v66, 1, v116')
    a(f'v_add_u32 v64, {2*w}, v64')
    if FOLDW:
        a('v_lshrrev_b32 v67, 1, v116')
        a('v_lshlrev_b32 v67, 8, v67')
    else: a('v_lshlrev_b32 v67, 10, v64')
    a('v_lshl_add_u32 v67, v66, 9, v67')
    a('v_lshl_add_u32 v67, v117, 4, v67')
    a(f'v_add_u32 v112, {XP + (w*1024 if FOLDW else 0)}, v67')
    a('v_and_b32 v68, 7, v117')
    a('v_lshlrev_b32 v67, 8, v64')
    a('v_lshl_add_u32 v67, v68, 5, v67')
    a('v_lshl_add_u32 v67, v66, 4, v67')
    a(f'v_add_u32 v113, {MP}, v67')
    a('v_lshrrev_b32 v64, 5, v1')
    a('v_and_b32 v65, 31, v1')
    a('v_lshrrev_b32 v66, 3, v65')
    a('v_and_b32 v67, 7, v65')
    a('v_and_b32 v68, 3, v67')
    a('v_lshl_add_u32 v68, v66, 2, v68')
    a('v_lshrrev_b32 v69, 2, v67')
    a('v_lshl_add_u32 v68, v69, 4, v68')
    a(f'v_lshlrev_b32 v69, {11 if FOLDW else 12}, v64')
    a('v_lshl_add_u32 v69, v68, 4, v69')
    a(f'v_add_u32 v114, {XP + (w >> 1) * 512 + 2 * (w & 1) * 4}, v69')
    a(f'v_add_u32 v70, {2*w}, v64')
    a('v_lshlrev_b32 v69, 9, v66')
    a('v_lshl_add_u32 v69, v70, 5, v69')
    a('v_lshl_add_u32 v69, v67, 2, v69')
    a(f'v_add_u32 v115, {MP}, v69')
    a('v_and_b32 v71, 1, v1')
    a('v_cmp_eq_u32 s[38:39], 0, v71')
    a('v_cmp_gt_u32 vcc, 8, v65')
    a('s_or_b64 s[28:29], s[38:39], vcc')
    a('v_lshrrev_b32 v72, 1, v67')
    a('v_lshlrev_b32 v72, 2, v72')
    a('v_lshl_add_u32 v72, v70, 4, v72')
    a('s_lshl_b32 s22, s17, 9')
    a(f's_add_u32 s22, s22, {PX}')
    a('v_lshl_add_u32 v73, v66, 7, v72')
    a('v_add_u32 v73, s22, v73')
    a('s_lshl_b32 s22, s17, 7')
    a(f's_add_u32 s22, s22, {PM}')
    a('v_add_u32 v74, s22, v72')
    if VSM:
        a('v_bfe_u32 v72, v65, 1, 1')
        a('v_lshlrev_b32 v72, 7, v72')
        a('v_lshl_add_u32 v72, v70, 4, v72')
        a('v_bfe_u32 v73, v65, 2, 2')
        a('v_lshl_add_u32 v72, v73, 2, v72')
        a('v_lshrrev_b32 v73, 4, v65')
        a('v_lshl_add_u32 v73, v73, 8, v72')
        a('s_lshl_b32 s22, s17, 9')
        a(f's_add_u32 s22, s22, {PX}')
        a('v_add_u32 v73, s22, v73')
        a('s_lshr_b32 s22, s17, 1')
        a('s_lshl_b32 s22, s22, 8')
        a('s_and_b32 s34, s17, 1')
        a('s_lshl_b32 s34, s34, 3')
        a('s_add_u32 s22, s22, s34')
        a(f's_add_u32 s22, s22, {PM}')
        a('v_add_u32 v74, s22, v72')
    a('v_lshlrev_b32 v0, 2, v65')
    if F2ONE: a(f'v_and_b32 v0, 0x78, v0\nv_or_b32 v0, {4*(F2ONE-1)}, v0')
    a(f's_and_b32 s22, s17, {R2-1}')
    a('s_lshl_b32 s22, s22, 7')
    a(f's_add_u32 s22, s22, {F2}')
    a(f'v_add_u32 v0, s22, v0')
    a('v_cndmask_b32 v1, v74, v73, s[38:39]')
    a('s_lshl_b32 s36, s17, 2')
    a(f's_add_u32 s36, s36, {F1}')
    a('s_mov_b32 s37, 0x3e800000')
    for r in range(64, 112): a(f'v_mov_b32 v{r}, 0')
    if MRG:
        a('v_and_b32 v118, 1, v116')
        a('v_cmp_eq_u32 vcc, 0, v118')
        a(f'v_mov_b32 v118, {6*2048 + (w >> 1)*256}')
        a(f'v_mov_b32 v119, {(4 + (w >> 1))*2048 + (w & 1)*256}')
        a('v_cndmask_b32 v118, v118, v119, vcc')
        a('v_lshrrev_b32 v116, 1, v116')
        a('v_lshl_add_u32 v118, v116, 9, v118')
        a('v_lshl_add_u32 v117, v117, 4, v118')
        a(f's_mov_b32 s57, {XSEG_B}')
    a('s_mov_b32 s56, 0x42800000')
    a('v_mov_b32 v116, v2')
    if not MRG:
        a('v_lshrrev_b32 v117, 4, v2')
        a('v_min_u32 v117, 55, v117')
        a('v_lshlrev_b32 v117, 7, v117')
    if w in (1, 2):
        nl = 13 if w == 1 else 14
        a('v_lshrrev_b32 v0, 4, v2')
        a(f'v_min_u32 v0, {nl-1}, v0')
        a(f's_mul_i32 s22, s17, {nl}')
        a('v_add_u32 v0, s22, v0')
        a('v_lshlrev_b32 v0, 7, v0')
        a(f'v_add_u32 v0, {2*EXCH_B if w == 1 else 2*XSEG_B - 7*w*1024}, v0')
        for k in (1, 2):
            a(f's_mov_b32 s22, {EXCH_OFF - k*EXCH_B if w == 1 else XF_OFF + 7*w*1024 - k*XSEG_B}')
            a(f'buffer_load_dword v119, v0, {SRD}, s22 offen sc1')
    if X_PRELOAD:
        a(f's_mul_i32 s22, s17, {4*XSEG_B}')
        a(f's_add_u32 s22, s22, {XF_OFF + w*XSEG_B}')
        for k in range(4):
            a(f'buffer_load_dword v119, v117, {SRD}, s22 offen')
            a(f's_add_u32 s22, s22, {56*128}')
    if SC_ALLPOLL:
        a('v_lshrrev_b32 v117, 4, v2')
        a('v_and_b32 v117, 31, v117')
        a('v_lshlrev_b32 v117, 2, v117')
        a(f'v_add_u32 v117, {F2}, v117')
    a(f's_mul_i32 s35, s17, {64*GSH_B}')
    a(f's_add_u32 s35, s35, {VO_OFF + TOUCH_AHEAD*GSH_B + w*56*128}')

YL = 0; ML = 8 * KB; WL = 16 * KB
def vtiles(w): return (6 * w, 6, 6) if w < 2 else (12 + 8 * (w - 2), 8, 7)
def vwreg(w, ti, ks):
    u = ti * 7 + ks
    return 256 + 8 * u if u < 32 else (176 if w < 2 else 120) + 8 * (u - 32)

VOK = 175
def vo_wait(a, L, ABORT, t):
    a(f's_branch {L("voc")}')
    a.label(L('vow'))
    a(f'buffer_load_dword v{VOK}, off, {SRD}, s35 sc1')
    a('s_waitcnt vmcnt(0)')
    a.label(L('voc'))
    a(f'v_readfirstlane_b32 s22, v{VOK}')
    a('s_cmp_eq_u32 s22, 56')
    a(f's_cbranch_scc1 {L("vod")}')
    a('s_sleep 1')
    spin(a, L('vow'), ABORT)
    a.label(L('vod'))
    a('s_add_u32 s35, s35, 2048')
    a('s_add_u32 s38, s19, 8')
    a('s_and_b32 s38, s38, -8')
    a('s_cmp_eq_u32 s19, 0')
    a('s_cselect_b32 s38, 4, s38')

def gen_value(a, w, st, tag):
    L = lambda n: f'{tag}_va{w}_{n}'
    ABORT = f'{tag}_abort'
    fin = w < 2
    t0, ntile, nreg = vtiles(w)
    M = 8; ACC = 36
    YA = 60 if fin else 112
    CK = 63
    def S(ti, ks, b=None):
        if NOT2: return 's_nop 2'
        return f'v_smfmac_f32_16x16x64_bf16 v[{ACC+4*ti}:{ACC+4*ti+3}], v[{M+4*ks}:{M+4*ks+3}], {b or ureg(vwreg(w, ti, ks), 8)}, v3'
    def fold(p):
        A_ = ACC + 8 * p; B_ = A_ + 4
        o = [f'v_permlane32_swap_b32 v{A_+r}, v{B_+r}' for r in range(4)]
        o += [f'v_add_f32 v{A_+r}, v{A_+r}, v{B_+r}' for r in range(4)]
        o += [f'v_cvt_pk_bf16_f32 v{B_}, v{A_}, v{A_+1}', f'v_cvt_pk_bf16_f32 v{B_+1}, v{A_+2}, v{A_+3}', f'ds_write_b64 v{YA+p}, v[{B_}:{B_+1}]']
        return o
    def run(seq):
        last = {}
        for i, (ti, m, pre) in enumerate(seq): last[ti] = i
        pend = []; delay = 0
        for i, (ti, m, pre) in enumerate(seq):
            for x in pre: a(x)
            a(m)
            if delay: delay -= 1
            elif pend:
                a(pend.pop(0))
                if len(pend) > 12: a(pend.pop(0))
            p = ti // 2
            if i == max(last[2 * p], last[2 * p + 1]):
                pend += fold(p)
                if not delay: delay = 3
        for x in pend: a(x)
    a.label(L('loop'))
    step_bases(a)
    if not fin:
        for r in range(ACC, ACC + 4 * ntile): a(f'v_mov_b32 v{r}, 0')
    a('s_mov_b32 s30, 0')
    if fin:
        YT = 64; VOR = 80; LO = 156; HI = 160; PL = 164
        pr = lambda c: 8 + 4 * c if c < 7 else 144 + 4 * (c - 7)
        if SYNC:
            a('s_cmp_lg_u32 s19, s38')
            a(f's_cbranch_scc1 {L("vok")}')
            vo_wait(a, L, ABORT, PL)
            a.label(L('vok'))
        if T2SRV:
            a(f's_cmp_eq_u32 s19, {NSTEPS-1}')
            a(f's_cbranch_scc1 {tag}_done')
        def vol(lo, hi):
            for h in range(lo, hi):
                if h % 2 == 0: a(f's_add_u32 s22, s25, {h*1792}')
                a(f'buffer_load_dwordx4 v[{VOR+4*h}:{VOR+4*h+3}], v6, {SRD}, s22 offen offset:{(h & 1)*1792} sc1')
        vol(0, VO_PRE0)
        if not SLOW_FIRST: a('s_barrier')
        stamp(a, 0)
        if VO_SLEEP: a(f's_sleep {VO_SLEEP}')
        vol(VO_PRE0, VO_PRE)
        if SYNC: a(f'buffer_load_dword v{VOK}, off, {SRD}, s35 sc1')
        a('s_barrier')
        stamp(a, 1)
        for ks in range(7): a(f'ds_read_b128 v[{M+4*ks}:{M+4*ks+3}], v2 offset:{ML + ks*1024}')
        vol(VO_PRE, 16)
        a('s_waitcnt lgkmcnt(0)')
        if T2DF: a(f's_sleep {T2DF}')
        run([(ti, S(ti, ks), []) for ti in range(ntile) for ks in range(7)])
        stamp(a, 2)
        a(f's_cmp_eq_u32 s19, {NSTEPS-1}')
        a(f's_cbranch_scc1 {L("last")}')
        a(f's_add_u32 s22, s20, {PX}')
        a(f's_add_u32 s34, s20, {PX + 4096}')
        a(f's_add_u32 s36, s20, {PM}')
        a('s_mov_b32 s37, 0')
        for r in range(4): a(f'v_mov_b32 v{LO+r}, 0')
        if STAMPS:
            a('s_waitcnt vmcnt(0)')
            stamp(a, 7)
        if VSM and B2_POS < 0:
            a('s_waitcnt lgkmcnt(0)')
            for r in range(ACC, ACC + 4 * ntile): a(f'v_mov_b32 v{r}, 0')
            a('s_barrier')
            for k in range(4): a(f'ds_read_b128 v[{YT+4*k}:{YT+4*k+3}], v2 offset:{YL + w*4096 + k*1024}')
            stamp(a, 3)
        if FIN_SLEEP: a(f's_sleep {FIN_SLEEP}')
        flagpoll(a, 4, 's20', PL, L('fw'), ABORT, PD_V, PG_V)
        stamp(a, 4)
        a('s_waitcnt lgkmcnt(0)')
        if VSM:
            pl = PLAIN_P and st == ''
            def pld(c, sc):
                so = ('s22', 's34', 's36')[c // 4]
                a(f'buffer_load_dwordx4 v[{pr(c)}:{pr(c)+3}], v2, {SRD}, {so} offen offset:{(c & 3)*1024}' + (' sc1' if sc else ''))
            def psm(c):
                B_ = VOR + 8 * c if c < 8 else YT + 8 * (c - 8)
                a(f'v_smfmac_f32_16x16x64_bf16 v[{LO}:{LO+3}], v[{pr(c)}:{pr(c)+3}], v[{B_}:{B_+7}], v3')
            zr = list(range(ACC, ACC + 4 * ntile)) if B2_POS >= 0 else []
            for c in range(NPP):
                pld(c, not pl)
                for _ in range(VZ):
                    if zr: a(f'v_mov_b32 v{zr.pop(0)}, 0')
            issued = NPP; nst = 0; q = list(range(NPP))
            if VST: stamp(a, 7)
            for c in range(10):
                if c == B2_POS:
                    a('s_barrier')
                    for k in range(4): a(f'ds_read_b128 v[{YT+4*k}:{YT+4*k+3}], v2 offset:{YL + w*4096 + k*1024}')
                    stamp(a, 3)
                if c == 0 and ECP:
                    a.label(L('pl')); cke = Checker(a, CK)
                a(f's_waitcnt vmcnt({len(q) - 1 - q.index(c)})' + (' lgkmcnt(0)' if c == 8 else ''))
                if c == 0: stamp(a, 5)
                if VST and c in (3, 6, 9): stamp(a, c // 3)
                psm(c)
                if c < ECP:
                    cke.add(pr(c)); cke.drain()
                    if c == ECP - 1: a(f'v_cmp_eq_u32 vcc, -1, v{CK}')
                if ECP and c == F2_POS: a(f's_cbranch_vccnz {L("re")}')
                if c == F2_POS and (not F2ONE or w == F2ONE - 1):
                    q.append('f')
                    exec_lo(a, R2)
                    a(f'buffer_store_dword v2, v7, {SRD}, s21 offen {st}')
                    a('s_mov_b64 exec, -1')
                    nst = 1
                if issued < 10:
                    pld(issued, not pl); q.append(issued); issued += 1
                for _ in range(2):
                    if zr: a(f'v_mov_b32 v{zr.pop(0)}, 0')
            a.label(L('ep'))
            while zr: a(f'v_mov_b32 v{zr.pop(0)}, 0')
            a(f'v_permlane32_swap_b32 v{LO}, v{LO+2}')
            a(f'v_permlane32_swap_b32 v{LO+1}, v{LO+3}')
            a(f'v_add_f32 v{HI}, v{LO}, v{LO+2}')
            a(f'v_add_f32 v{HI+1}, v{LO+1}, v{LO+3}')
            a(f'v_cmp_u_f32 vcc, v{HI}, v{HI+1}')
            a(f'v_mov_b32_dpp v{HI+2}, v{HI} row_ror:8 {D}')
            a(f'v_mov_b32_dpp v{HI}, v{HI+1} row_ror:8 row_mask:0xf bank_mask:0xc')
            a(f's_cbranch_vccnz {L("rp")}')
            a(f'v_mov_b32_dpp v{HI+1}, v{HI+2} quad_perm:[0,1,2,3] row_mask:0xf bank_mask:0x3')
            a(f'v_cvt_pk_bf16_f32 v{HI}, v{HI}, v{HI+1}')
            a.label(L('pc'))
            if w == 1: a('s_mov_b64 exec, s[26:27]')
            a(f'buffer_store_dword v{HI}, v1, {SRD}, s21 offen {st}')
        else:
            pl = PLAIN_P and st == ''
            if not pl: a.label(L('lp'))
            for c in range(10):
                so = ('s22', 's34', 's36')[c // 4]
                a(f'buffer_load_dwordx4 v[{pr(c)}:{pr(c)+3}], v5, {SRD}, {so} offen offset:{(c & 3)*1024}' + ('' if pl else ' sc1'))
                for r in range(ACC + 4 * c, min(ACC + 4 * c + 4, ACC + 4 * ntile)): a(f'v_mov_b32 v{r}, 0')
            if pl: a.label(L('lp'))
            ck = Checker(a, CK)
            nst = 0
            for c in range(10):
                if c == B2_POS:
                    a('s_cmp_lg_u32 s37, 0')
                    a(f's_cbranch_scc1 {L("nb2")}')
                    a('s_waitcnt lgkmcnt(0)')
                    a('s_barrier')
                    for k in range(4): a(f'ds_read_b128 v[{YT+4*k}:{YT+4*k+3}], v2 offset:{YL + w*4096 + k*1024}')
                    a.label(L('nb2'))
                    stamp(a, 3)
                a(f's_waitcnt vmcnt({9-c+nst})' + (' lgkmcnt(0)' if c == 8 else ''))
                if c < EC_P:
                    a.label(L(f'e{c}'))
                    r = pr(c)
                    a(f'v_max3_u32 v{PL}, v{r}, v{r+1}, v{r+2}')
                    a(f'v_max_u32 v{PL}, v{PL}, v{r+3}')
                    a(f'v_cmp_eq_u32 vcc, -1, v{PL}')
                    a(f's_cbranch_vccnz {L(f"er{c}")}')
                if c == 0: stamp(a, 5)
                if c == F2_POS:
                    exec_lo(a, R2)
                    a(f'buffer_store_dword v2, v7, {SRD}, s21 offen {st}')
                    a('s_mov_b64 exec, -1')
                    nst = 1
                if c >= EC_P: ck.add(pr(c))
                B_ = f'v[{pr(c)}:{pr(c)+3}]'
                for hi, acc in ((1, HI), (0, LO)):
                    A_ = VOR + 4 * (2 * c + hi) if c < 8 else YT + 4 * (2 * (c - 8) + hi)
                    a(f'v_mfma_f32_16x16x32_bf16 v[{acc}:{acc+3}], v[{A_}:{A_+3}], {B_}, ' + ('0' if c == 0 else f'v[{acc}:{acc+3}]'))
                    ck.emit()
            ck.drain()
            a(f'v_cmp_eq_u32 vcc, -1, v{CK}')
            for r in range(4): a(f'v_add_f32_dpp v{LO+r}, v{HI+r}, v{LO+r} row_ror:8 {D}')
            a(f's_cbranch_vccnz {L("rp")}')
            a(f'v_cvt_pk_bf16_f32 v{HI}, v{LO}, v{LO+1}')
            a(f'v_cvt_pk_bf16_f32 v{HI+1}, v{LO+2}, v{LO+3}')
            a(f'v_min_u32 v{HI}, -2, v{HI}')
            a(f'v_min_u32 v{HI+1}, -2, v{HI+1}')
            a('s_mov_b64 exec, s[26:27]')
            a(f'buffer_store_dwordx2 v[{HI}:{HI+1}], v1, {SRD}, s21 offen {st}')
        if T2SRV:
            a(f's_cmp_lg_u32 s19, {NSTEPS-2}')
            a(f's_cbranch_scc1 {L("nl")}')
            a(f's_mov_b32 s22, {MEMG_OFF + (NSTEPS-1)*7*KB}')
            if VSM: a(f'buffer_store_dword v{HI}, v1, {SRD}, s22 offen sc1')
            else: a(f'buffer_store_dwordx2 v[{HI}:{HI+1}], v1, {SRD}, s22 offen sc1')
            a('s_mov_b64 exec, -1')
            a(f's_branch {tag}_done')
            a.label(L('nl'))
        a('s_mov_b64 exec, -1')
        if SLOW_FIRST: a('s_barrier')
        stamp(a, 6)
        if not NOBULK: a(f's_add_u32 s25, s25, {GSH_B}')
        stamp_flush(a, 4 + w, 8, L('sf'), PL)
    else:
        STG = [76, 84, 92]; TP = 100
        TPS = [100, 104, 108, 4]
        t2st = [[f'buffer_store_dwordx4 v[{TPS[k]}:{TPS[k]+3}], v2, {SRD}, s24 offen offset:{k*1024} sc1'] for k in range(4)]
        t2st[-1].append(f's_add_u32 s24, s24, {8*KB}')
        t2fl = ['s_mov_b64 exec, 1', f'buffer_store_dword v117, v2, {SRD}, s34 offen sc1', 's_mov_b64 exec, -1', 's_add_u32 s34, s34, 8']
        def emit(gs):
            for g_ in gs:
                for x in g_: a(x)
        myks = [0, 1, 2, 3] if w == 2 else [4, 5, 6]
        oth = [k for k in range(7) if k not in myks]
        def mload():
            for ks in myks:
                a(f'buffer_load_dwordx4 v[{M+4*ks}:{M+4*ks+3}], v2, {SRD}, {"s20" if ks < 4 else "s23"} offen offset:{(ks & 3) * 1024} sc1')
        if HLP_SLEEP: a(f's_sleep {HLP_SLEEP}')
        flagpoll(a, 119, 's20', 76, L('fp'), ABORT, PD_H, PG_H)
        stamp(a, 0)
        if VA_DELAY: a.nop(VA_DELAY)
        mload()
        if PUBLISH and PUB_EARLY == 1: emit([t2fl] + t2st)
        if not SLOW_FIRST: a('s_barrier')
        if PUBLISH and PUB_EARLY == 2: emit([t2fl] + t2st)
        if PUBLISH and PUB_EARLY:
            a('s_waitcnt vmcnt(5)')
            a(f's_branch {L("ld2")}')
        a.label(L('ld'))
        a('s_waitcnt vmcnt(0)')
        if PUBLISH and PUB_EARLY: a.label(L('ld2'))
        ck = Checker(a, 84)
        for ks in myks: ck.add(M + 4 * ks)
        ck.drain()
        a('v_cmp_eq_u32 vcc, -1, v84')
        for ks in myks: a(f'ds_write_b128 v2, v[{M+4*ks}:{M+4*ks+3}] offset:{ML + ks*1024}')
        a(f's_cbranch_vccnz {L("retry")}')
        a('s_waitcnt lgkmcnt(0)')
        a('s_barrier')
        stamp(a, 1)
        for ks in oth: a(f'ds_read_b128 v[{M+4*ks}:{M+4*ks+3}], v2 offset:{ML + ks*1024}')
        if w == 2: a(f'ds_read_b128 v[92:95], v0')
        if VAL_TOUCH:
            a(f'buffer_load_dword v99, v118, {SRD}, {"s20" if w == 2 else "s39"} offen sc1')
            a(f's_add_u32 s39, s39, {XSEG_B}')
        if SELF_POISON:
            for r in range(76, 80): a(f'v_mov_b32 v{r}, -1')
            a('s_add_u32 s22, s21, s38')
            if w == 3: a('s_mov_b64 exec, 0x1f')
            a(f'buffer_store_dwordx4 v[76:79], v2, {SRD}, s22 offen {st}')
            if w == 3: a('s_mov_b64 exec, -1')
        if PUBLISH and not PUB_EARLY and not SLOW_FIRST and not T2SRV: emit([t2fl] + t2st)
        a('s_waitcnt lgkmcnt(0)')
        mg = ['s_mov_b64 exec, s[26:27]', f'buffer_store_dwordx4 v[92:95], v2, {SRD}, s36 offen sc1', 's_mov_b64 exec, -1', f's_add_u32 s36, s36, {7*KB}']
        if w == 2 and PUBLISH:
            if SLOW_FIRST:
                a(f's_cmp_lg_u32 s19, {NSTEPS-1}')
                a(f's_cbranch_scc1 {L("nmg")}')
            emit([mg])
            if SLOW_FIRST: a.label(L('nmg'))
        if T2SRV:
            a(f's_cmp_eq_u32 s19, {NSTEPS-1}')
            a(f's_cbranch_scc1 {tag}_done')
        lu = [(7, ks) for ks in range(7)]
        ru = [(t_, ks) for t_ in (6, 0, 1, 2, 3, 4, 5) for ks in range(7)]
        def wr(j):
            t_, ks = lu[j]; b = STG[j % 3]; off = (t_ - 7) * TILE_B + ks * UNIT
            return [f'ds_read_b128 v[{b}:{b+3}], v1 offset:{off}', f'ds_read_b128 v[{b+4}:{b+7}], v1 offset:{off+1024}']
        seq = []
        for j, (t_, ks) in enumerate(lu):
            pre = (wr(0) + wr(1) if j == 0 else []) + (wr(j + 2) if j + 2 < len(lu) else [])
            for k in range(2):
                r_ = ru.pop(0); seq.append((r_[0], S(*r_), pre if k == 0 else []))
            b = STG[j % 3]
            seq.append((t_, S(t_, ks, f'v[{b}:{b+7}]'), [f's_waitcnt lgkmcnt({2 * min(2, len(lu) - 1 - j)})']))
        for r_ in ru: seq.append((r_[0], S(*r_), []))
        if T2DH: a(f's_sleep {T2DH}')
        run(seq)
        stamp(a, 2)
        a('s_waitcnt lgkmcnt(0)')
        a('s_barrier')
        for k in range(4):
            q = 2 * (w - 2) + (k >> 1); tp = k & 1
            if not T2SRV: a(f'ds_read_b128 v[{TPS[k]}:{TPS[k]+3}], v2 offset:{YL + tp*4096 + q*1024}')
        a(f's_cmp_eq_u32 s19, {NSTEPS-2 if T2SRV else NSTEPS-1}')
        a(f's_cbranch_scc1 {tag + "_done" if T2SRV else L("last")}')
        if SLOW_FIRST:
            if w == 2: a(f'ds_read_b128 v[92:95], v0')
            a('s_waitcnt vmcnt(0) lgkmcnt(0)')
            a('s_barrier')
            if PUBLISH: emit([t2fl] + t2st + ([mg] if w == 2 else []))
        else:
            a('s_waitcnt vmcnt(0) lgkmcnt(0)')
        stamp(a, 3)
        stamp_flush(a, 4 + w, 4, L('sf'), 76)
    a('s_add_u32 s19, s19, 1')
    a('s_mov_b32 s20, s21')
    a.flush()
    a(f's_branch {L("loop")}')
    if fin:
        a.label(L('last'))
        a('s_waitcnt lgkmcnt(0)')
        a('s_barrier')
        a(f's_branch {tag}_done')
        for c in range(EC_P):
            a.label(L(f'er{c}'))
            so = ('s22', 's34', 's36')[c // 4]
            a(f'buffer_load_dwordx4 v[{pr(c)}:{pr(c)+3}], v5, {SRD}, {so} offen offset:{(c & 3)*1024} sc1')
            a('s_waitcnt vmcnt(0)')
            a('s_add_u32 s31, s31, 0x1000000')
            spin(a, L(f'e{c}'), ABORT)
        if ECP:
            assert NPP == 10 and B2_POS == 0 and ECP <= F2_POS
            a.label(L('re'))
            for c in range(10): pld(c, True)
            a.nop(6)
            for r in range(4): a(f'v_mov_b32 v{LO+r}, 0')
            a('s_add_u32 s31, s31, 0x1000000')
            spin(a, L('pl'), ABORT)
        a.label(L('rp'))
        if VSM:
            a('s_cmp_eq_u32 s37, 0')
            a(f's_cbranch_scc1 {L("rv")}')
            a(f'v_mov_b32_dpp v{HI+1}, v{HI+2} quad_perm:[0,1,2,3] row_mask:0xf bank_mask:0x3')
            a(f'v_cvt_pk_bf16_f32 v{HI}, v{HI}, v{HI+1}')
            a(f'v_min_u32 v{HI}, -2, v{HI}')
            a(f's_branch {L("pc")}')
            a.label(L('rv'))
            for c in range(10): pld(c, True)
            a('s_waitcnt vmcnt(0)')
            ck2 = Checker(a, CK)
            for c in range(10): ck2.add(pr(c))
            ck2.drain()
            a(f'v_cmp_eq_u32 vcc, -1, v{CK}')
            a(f's_cbranch_vccz {L("rk")}')
            spin(a, L('rv'), ABORT)
            a.label(L('rk'))
            a('s_mov_b32 s37, 1')
            a('s_add_u32 s31, s31, 0x10000')
            for r in range(4): a(f'v_mov_b32 v{LO+r}, 0')
            for c in range(10): psm(c)
            a.flush()
            a(f's_branch {L("ep")}')
            return
        a.nop(8)
        if PLAIN_P and st == '':
            for c in range(10):
                so = ('s22', 's34', 's36')[c // 4]
                a(f'buffer_load_dwordx4 v[{pr(c)}:{pr(c)+3}], v5, {SRD}, {so} offen offset:{(c & 3)*1024} sc1')
        a('s_mov_b32 s37, 1')
        a('s_add_u32 s31, s31, 0x10000')
        spin(a, L('lp'), ABORT)
    else:
        a.label(L('retry'))
        a('s_waitcnt lgkmcnt(0)')
        mload()
        a('s_add_u32 s31, s31, 1')
        spin(a, L('ld'), ABORT)
        a.label(L('last'))
        a('s_waitcnt lgkmcnt(0)')
        emit(t2st)
        a('s_waitcnt vmcnt(0)')
        emit([t2fl, t2fl])
        a(f's_branch {tag}_done')

def init_value(a, w, p):
    fin = w < 2
    t0, ntile, nreg = vtiles(w)
    YA = 60 if fin else 112
    a(f's_mul_i32 s31, s17, {CUW_B}')
    a(f's_add_u32 s31, s31, {WF_B}')
    units = [((t0 + ti) * TILE_B + ks * UNIT, vwreg(w, ti, ks)) for ti in range(nreg) for ks in range(7)]
    if BDEP: BDEP(16 * t0 // 28, (16 * (t0 + nreg) - 1) // 28)
    load_units(a, units, 's31')
    if fin and BDEP: BDEP(16 * (vtiles(w + 2)[0] + 7) // 28, (16 * (vtiles(w + 2)[0] + 8) - 1) // 28)
    if fin:
        th = vtiles(w + 2)[0] + 7
        for f in range(14):
            if f % 4 == 0:
                a(f's_mov_b32 m0, {WL + 3*w*TILE_B + f*1024}')
                a(f's_add_u32 s22, s31, {th*TILE_B + f*1024}')
            a(f'buffer_load_dwordx4 v2, {SRD}, s22 offen offset:{(f & 3)*1024}' + (' sc1' if MERGE else '') + ' lds')
            if f % 16 == 15: a('s_waitcnt vmcnt(24)')
    a('v_mov_b32 v72, v116')
    a('v_mov_b32 v73, v117')
    a('v_lshrrev_b32 v65, 1, v72')
    a('v_and_b32 v66, 1, v72')
    for pp in range(ntile // 2):
        a(f'v_add_u32 v67, {t0 + 2*pp}, v65')
        a('v_lshl_add_u32 v67, v67, 4, v73')
        a('v_mul_u32_u24 v68, 2341, v67')
        a('v_lshrrev_b32 v68, 16, v68')
        a('v_mul_u32_u24 v69, 28, v68')
        a('v_sub_u32 v69, v67, v69')
        a('v_lshrrev_b32 v70, 4, v69')
        a('v_and_b32 v69, 15, v69')
        if VSM:
            a('v_and_b32 v71, 1, v69')
            a('v_lshrrev_b32 v69, 1, v69')
            a('v_lshl_add_u32 v69, v71, 3, v69')
        a('v_lshlrev_b32 v71, 12, v70')
        a('v_lshl_add_u32 v71, v68, 8, v71')
        a('v_lshl_add_u32 v71, v69, 4, v71')
        a(f'v_lshl_add_u32 v{YA+pp}, v66, 3, v71')
    if fin:
        a('v_and_b32 v0, 31, v1')
        a('v_lshlrev_b32 v0, 2, v0')
        a(f'v_add_u32 v0, {F2}, v0')
        a('v_lshlrev_b32 v4, 2, v73')
        if R1 == 32:
            a('s_lshl_b32 s22, s17, 1')
            a(f's_add_u32 s22, s22, {w}')
        else: a(f's_and_b32 s22, s17, {R1-1}')
        a('s_lshl_b32 s22, s22, 7')
        a(f's_add_u32 s22, s22, {F1}')
        a(f'v_add_u32 v4, s22, v4')
        a('v_and_b32 v64, 7, v73')
        a('v_lshlrev_b32 v5, 4, v64')
        a('v_lshl_add_u32 v5, v72, 7, v5')
        a('v_lshrrev_b32 v65, 3, v73')
        a('v_lshl_add_u32 v5, v65, 9, v5')
        a('s_lshl_b32 s22, s17, 3')
        a(f's_add_u32 s22, s22, {F2 + 4*w}')
        a('v_lshl_add_u32 v7, v2, 3, s22')
        a(f'v_add_u32 v65, {16*w}, v73')
        a('v_min_u32 v65, 27, v65')
        a('v_mad_u32_u24 v65, v72, 28, v65')
        a('v_lshlrev_b32 v6, 4, v65')
        a('s_lshr_b32 s22, s17, 1')
        a('s_mul_i32 s22, s22, 7')
        a('s_and_b32 s34, s17, 1')
        a('s_lshl_b32 s35, s34, 2')
        a('v_add_u32 v70, s35, v72')
        a('v_mov_b32 v71, s34')
        a(f'v_mov_b32 v69, {w}')
        a('v_cmp_eq_u32 vcc, 3, v72')
        a('v_cndmask_b32 v70, v70, v72, vcc')
        a('v_cndmask_b32 v69, v69, v71, vcc')
        a('v_add_u32 v70, s22, v70')
        a('v_lshrrev_b32 v68, 1, v70')
        a('v_lshlrev_b32 v68, 8, v68')
        a('v_lshl_add_u32 v68, v69, 7, v68')
        a('v_and_b32 v69, 1, v70')
        a('v_lshl_add_u32 v68, v69, 3, v68')
        a('v_lshl_add_u32 v1, v64, 4, v68')
        a('v_cmp_gt_u32 s[26:27], 8, v73')
        if w == 1:
            a('v_cmp_gt_u32 vcc, 3, v72')
            a('s_and_b64 s[26:27], s[26:27], vcc')
        if VSM:
            a('v_lshrrev_b32 v65, 3, v73')
            a('v_lshl_add_u32 v66, v64, 1, v65')
            a(f'v_add_u32 v66, {16*w}, v66')
            a('v_min_u32 v66, 27, v66')
            a('v_mad_u32_u24 v66, v72, 28, v66')
            a('v_lshlrev_b32 v6, 4, v66')
            a('s_mul_i32 s22, s17, 28')
            a(f's_add_u32 s22, s22, {16*w}')
            a('v_lshl_add_u32 v70, v64, 1, s22')
            a('v_lshrrev_b32 v68, 4, v70')
            a('v_lshlrev_b32 v68, 8, v68')
            a('v_bfe_u32 v69, v70, 1, 1')
            a('v_lshl_add_u32 v68, v69, 7, v68')
            a('v_bfe_u32 v69, v70, 2, 2')
            a('v_lshl_add_u32 v68, v69, 2, v68')
            a('v_and_b32 v69, 1, v72')
            a('v_lshl_add_u32 v65, v69, 2, v65')
            a('v_lshrrev_b32 v69, 1, v72')
            a('v_lshl_add_u32 v65, v69, 1, v65')
            a('v_lshl_add_u32 v1, v65, 4, v68')
            a('v_cmp_gt_u32 s[26:27], 6, v64')
            for r in range(156, 160): a(f'v_mov_b32 v{r}, 0')
            for k in range(4): a(f'ds_write_b128 v2, v[156:159] offset:{YL + w*4096 + k*1024}')
        a(f's_mul_i32 s22, s17, {64*GSH_B}')
        a(f's_add_u32 s25, s22, {VO_OFF}')
        a('s_lshl_b32 s35, s17, 7')
        a(f's_add_u32 s35, s35, {CNT_OFF + VOC - 2048}')
        a('s_mov_b32 s38, 0')
        a(f'v_mov_b32 v{VOK}, 0')
    else:
        a(f's_mul_i32 s24, s17, {65*8*KB}')
        a(f's_add_u32 s24, s24, {T2_OFF + (w-2)*4096 + (8*KB if SLOW_FIRST else 0)}')
        a('s_mul_i32 s34, s17, 640')
        a(f's_add_u32 s34, s34, {CNT_OFF + T2F + 4*(w-2) + (8 if SLOW_FIRST else 0)}')
        a('s_mul_i32 s36, s17, 448')
        a('v_add_u32 v0, s36, v2')
        a(f'v_add_u32 v0, {ML}, v0')
        a(f's_add_u32 s36, s36, {MEMG_OFF}')
        a('v_cmp_gt_u32 s[26:27], 28, v1')
        a('v_and_b32 v119, 31, v1')
        a('v_lshlrev_b32 v119, 2, v119')
        if F2ONE: a(f'v_and_b32 v119, 0x78, v119\nv_or_b32 v119, {4*(F2ONE-1)}, v119')
        a('s_add_u32 s22, s17, 16')
        a(f's_and_b32 s22, s22, {R2-1}')
        a('s_lshl_b32 s22, s22, 7')
        a(f's_add_u32 s22, s22, {F2}')
        a(f'v_add_u32 v119, s22, v119')
        nl = 13 if w == 2 else 14
        a(f'v_min_u32 v118, {nl-1}, v1')
        a(f's_mul_i32 s22, s17, {nl}')
        a('v_add_u32 v118, s22, v118')
        a('v_lshlrev_b32 v118, 7, v118')
        a(f'v_add_u32 v118, {2*EXCH_B if w == 2 else 2*XSEG_B}, v118')
        a(f's_mov_b32 s39, {XF_OFF}')
        a(f'v_add_u32 v1, {WL + 3*(w-2)*TILE_B}, v2')
        a('v_mov_b32 v117, 1')
        a('s_mul_i32 s38, s17, 1104')
        a(f's_add_u32 s38, s38, {EXCH_B + (w-2)*1024}')

def dbg_wait(a, P, t, abort):
    a('s_mov_b32 s30, 0')
    a.label(P)
    a(f'buffer_load_dword v{t+2}, v{t}, {DBG}, 0 offen sc1')
    a('s_waitcnt vmcnt(0)')
    a(f'v_cmp_ne_u32 vcc, v{t+2}, v{t+1}')
    a(f's_cbranch_vccz {P}_ok')
    a('s_sleep 4')
    a('s_add_u32 s30, s30, 1')
    a(f's_cmp_lt_u32 s30, {SLOW_LIMIT}')
    a(f's_cbranch_scc1 {P}')
    a(f's_branch {abort}')
    a.label(P + '_ok')

def dep_regs(a, cg_s, t, lane='v1'):
    a(f's_and_b32 s20, {cg_s}, 15')
    a('s_lshr_b32 s21, s20, 1')
    a('s_mul_i32 s21, s21, 56')
    a('s_add_u32 s22, s21, 55')
    a('s_lshr_b32 s21, s21, 6')
    a('s_lshr_b32 s22, s22, 6')
    a('s_add_u32 s21, s21, 24')
    a('s_add_u32 s22, s22, 24')
    a('s_add_u32 s20, s20, 8')
    a(f's_cmp_lt_u32 {cg_s}, 16')
    a('s_cselect_b32 s21, s20, s21')
    a('s_cselect_b32 s22, s20, s22')
    a(f's_cselect_b32 s20, {A_TGT}, {B_TGT}')
    a('s_lshl_b32 s21, s21, 2')
    a('s_lshl_b32 s22, s22, 2')
    a(f'v_mov_b32 v{t}, 124')
    a(f'v_mov_b32 v{t+1}, 128')
    a(f'v_writelane_b32 v{t}, s21, 0')
    a(f'v_writelane_b32 v{t}, s22, 1')
    a(f'v_writelane_b32 v{t+1}, s20, 0')
    a(f'v_writelane_b32 v{t+1}, s20, 1')

def xprep_loop(a, P):
    import prep
    a.label(f'{P}_l')
    a('s_waitcnt vmcnt(0) lgkmcnt(0)')
    a('v_mov_b32 v4, 1')
    a('v_mov_b32 v5, 20')
    wg_atomic(a, f'{P}_el', 's3')
    a('s_cmp_ge_u32 s3, 32')
    a(f's_cbranch_scc1 {P}_d')
    prep.xprep_item(a, P, 's3', st='sc1', signal=DBG)
    a(f's_branch {P}_l')
    a.label(f'{P}_d')

def wg_atomic(a, P, dst):
    a('v_mov_b32 v6, 160000')
    a('s_barrier')
    a('s_cmp_lg_u32 s16, 0')
    a(f's_cbranch_scc1 {P}1')
    a('s_mov_b64 exec, 1')
    a(f'buffer_atomic_add v4, v5, {DBG}, 0 offen sc0')
    a('s_waitcnt vmcnt(0)')
    a('ds_write_b32 v6, v4')
    a('s_waitcnt lgkmcnt(0)')
    a('s_mov_b64 exec, -1')
    a.label(f'{P}1')
    a('s_barrier')
    a('ds_read_b32 v4, v6')
    a('s_waitcnt lgkmcnt(0)')
    a(f'v_readfirstlane_b32 {dst}, v4')

def staff_check(a, okl, mode):
    a('s_mov_b32 s30, 0')
    a('v_mov_b32 v36, 0')
    a.label('ch_chk')
    a(f'buffer_load_dword v37, v36, {DBG}, 0 offen sc1')
    a('s_waitcnt vmcnt(0)')
    a('v_readfirstlane_b32 s22, v37')
    a('s_and_b32 s22, s22, 0xffff')
    a('s_cmp_ge_u32 s22, 32')
    a('s_cbranch_scc1 ch_go_end')
    a('s_sleep 16')
    a('s_add_u32 s30, s30, 1')
    a('s_cmp_lt_u32 s30, 64')
    a('s_cbranch_scc1 ch_chk')
    a.label('ch_go_end')
    a('v_mov_b32 v6, 160016')
    a('v_mov_b32 v4, s22')
    a('s_cmp_lg_u32 s16, 0')
    a('s_cbranch_scc1 ch_dec')
    a('ds_write_b32 v6, v4')
    a('s_waitcnt lgkmcnt(0)')
    a.label('ch_dec')
    a('s_barrier')
    a('ds_read_b32 v4, v6')
    a('s_waitcnt lgkmcnt(0)')
    a('v_readfirstlane_b32 s22, v4')
    a('s_cmp_ge_u32 s22, 32')
    a(f's_cbranch_scc1 {okl}')
    a('v_mov_b32 v4, 0x10001')
    a(f's_mov_b32 s18, {mode}')
    a('s_branch ch_take')

def worker_s4d(a):
    import s4d
    s4d.s4d_setup(a)
    a.label('wk_loop')
    a('v_mov_b32 v4, 1')
    a('v_mov_b32 v5, 4')
    wg_atomic(a, 'wk_el', 's3')
    a('v_and_b32 v4, 15, v1')
    a('s_cmp_ge_u32 s3, 112')
    a('s_cbranch_scc1 wk_done')
    s4d.s4d_item(a, 'wk', 's3')
    a('s_branch wk_loop')
    a.label('wk_done')

def poll_eq(a, P, srd, soff, target, sleep=4):
    a('v_mov_b32 v8, 0')
    a('s_mov_b32 s30, 0')
    a.label(P)
    a(f'buffer_load_dword v9, v8, {srd}, {soff} offen sc1')
    a('s_waitcnt vmcnt(0)')
    a(f'v_cmp_ne_u32 vcc, {target}, v9')
    a(f's_cbranch_vccz {P}_ok')
    a(f's_sleep {sleep}')
    a('s_add_u32 s30, s30, 1')
    a(f's_cmp_lt_u32 s30, {SLOW_LIMIT}')
    a(f's_cbranch_scc1 {P}')
    a('s_branch cA_abort')
    a.label(P + '_ok')
def flag_wait(a, P):
    a('s_cmp_lg_u32 s97, 0')
    a(f's_cbranch_scc1 {P}_sk')
    a('s_movk_i32 s20, 128')
    poll_eq(a, P, DBG, 's20', 1)
    a('s_mov_b32 s97, 1')
    a.label(P + '_sk')
def ac_wait(a, P):
    a('s_lshl_b32 s20, s17, 7')
    a(f's_add_u32 s20, s20, {CNT_OFF + AC}')
    poll_eq(a, P, SRD, 's20', 7, sleep=6)

def worker_all(a):
    import s4d, gemm, tok, prep
    JS = DBG if MERGE else SRD
    JO = 64 if MERGE else CNT_OFF + JOBC
    NA = 112 if MERGE == 1 else 0
    NJ = 1104 + NA
    tok.PEEK = JS
    a('s_load_dwordx2 s[36:37], s[0:1], 112')
    a('s_waitcnt lgkmcnt(0)')
    a(f's_mov_b32 s92, s36\ns_and_b32 s93, s37, 0xffff\ns_mov_b32 s94, {2048*896*2}\ns_mov_b32 s95, 0x20000')
    def ask():
        lb = a.newlabel('ask')
        a('s_cmp_lg_u32 s16, 0')
        a(f's_cbranch_scc1 {lb}')
        a('v_mov_b32 v250, 1')
        a(f'v_mov_b32 v251, {JO}')
        a('s_mov_b64 exec, 1')
        a(f'buffer_atomic_add v250, v251, {JS}, 0 offen sc0')
        a('s_mov_b64 exec, -1')
        a.label(lb)
    a('s_mov_b32 s96, 0')
    if MERGE:
        a('s_cmp_lg_u32 s101, -1')
        a('s_mov_b32 s3, s101')
        a('s_mov_b32 s101, -1')
        a('s_cbranch_scc1 wk_have')
    ask()
    a('s_branch wk_next')
    a.label('wk_loop')
    a('s_waitcnt vmcnt(0) lgkmcnt(0)')
    a('s_cmp_eq_u32 s96, 1')
    a('s_cbranch_scc1 wk_ask')
    a('s_mov_b32 s96, 1')
    staff_check(a, 'wk_ask', 0)
    a.label('wk_ask')
    a('v_readfirstlane_b32 s22, v250')
    a(f's_cmp_ge_u32 s22, {NJ}')
    a('s_cbranch_scc1 wk_next')
    ask()
    a.label('wk_next')
    evlog(a, 9005)
    a('v_mov_b32 v6, 160000')
    a('s_waitcnt vmcnt(0)')
    a('s_barrier')
    a('s_cmp_lg_u32 s16, 0')
    a('s_cbranch_scc1 wk_n1')
    a('s_mov_b64 exec, 1')
    a('ds_write_b32 v6, v250')
    a('s_mov_b64 exec, -1')
    a('s_waitcnt lgkmcnt(0)')
    a.label('wk_n1')
    a('s_barrier')
    a('ds_read_b32 v4, v6')
    a('s_waitcnt lgkmcnt(0)')
    a('v_readfirstlane_b32 s3, v4')
    a.label('wk_have')
    evlog(a, 's3')
    a(f's_cmp_ge_u32 s3, {NJ}')
    a('s_cbranch_scc1 wk_done')
    a('v_mov_b32 v250, 0')
    a(f'v_mov_b32 v251, {JO}')
    a('v_and_b32 v1, 63, v0')
    a('v_lshlrev_b32 v2, 4, v1')
    a('v_lshrrev_b32 v3, 4, v1')
    a('v_and_b32 v4, 15, v1')
    if MERGE == 3: flag_wait(a, 'wk_fw')
    if MERGE == 1:
        a('s_cmp_ge_u32 s3, 112')
        a('s_cbranch_scc1 wk_np')
        prep.prep_item(a, 'wpa', 's3', st='sc1', mode='A')
        flag_wait(a, 'wk_fa')
        a('s_waitcnt vmcnt(0)')
        a('s_barrier')
        a('v_mov_b32 v250, 0')
        a('s_cmp_lg_u32 s16, 0')
        a('s_cbranch_scc1 wk_loop')
        a('s_lshl_b32 s20, s17, 7')
        a(f's_add_u32 s20, s20, {CNT_OFF + AC}')
        a('v_mov_b32 v5, 1')
        a('v_mov_b32 v6, 0')
        a('s_mov_b64 exec, 1')
        a(f'buffer_atomic_add v5, v6, {SRD}, s20 offen')
        a('s_mov_b64 exec, -1')
        a('s_branch wk_loop')
        a.label('wk_np')
        a('s_sub_u32 s3, s3, 112')
        flag_wait(a, 'wk_fw')
    a('s_cmp_ge_u32 s3, 592')
    a('s_cbranch_scc1 wk_tok')
    a('s_cmp_ge_u32 s3, 480')
    a('s_cbranch_scc1 wk_s4d')
    a('s_cmp_ge_u32 s3, 256')
    a('s_cbranch_scc1 wk_full')
    a('s_cmp_ge_u32 s3, 224')
    a('s_cbranch_scc1 wk_srv')
    a('s_cmp_ge_u32 s3, 112')
    a('s_cselect_b32 s18, 1, 0')
    a('s_cselect_b32 s20, 112, 0')
    a('s_sub_u32 s20, s3, s20')
    a('s_and_b32 s17, s20, 15')
    a('s_add_u32 s17, s17, 16')
    a('s_lshr_b32 s34, s20, 4')
    a('s_lshl_b32 s34, s34, 1')
    a('s_add_u32 s35, s34, 2')
    if RB1_DELAY:
        a('s_cmp_eq_u32 s18, 0')
        a('s_cbranch_scc1 wk_gemm')
        for _ in range(RB1_DELAY): a('s_sleep 127')
    a('s_branch wk_gemm')
    a.label('wk_full')
    a('s_sub_u32 s20, s3, 224')
    a('s_and_b32 s17, s20, 15')
    a('s_lshr_b32 s18, s20, 4')
    a('s_cmp_lt_u32 s18, 8')
    a('s_cselect_b32 s21, 16, 0')
    a('s_add_u32 s17, s17, s21')
    a('s_and_b32 s18, s18, 7')
    a('s_mov_b32 s34, 0\ns_mov_b32 s35, 14')
    a.label('wk_gemm')
    if MERGE == 1:
        a('s_cmp_ge_u32 s17, 16')
        a('s_cbranch_scc1 wk_g2')
        ac_wait(a, 'wk_aw')
        a.label('wk_g2')
        evlog(a, 9006)
    gemm.gemm_body(a, 'wg', 's18', 's17', st='sc1', signal=True, ld='sc1' if MERGE else '')
    a('s_branch wk_loop')
    a.label('wk_srv')
    import t2srv
    a('s_and_b32 s18, s3, 15')
    a('s_lshr_b32 s19, s3, 4')
    a('s_and_b32 s19, s19, 1')
    t2srv.t2srv_body(a, 'ws', 's18', 's19', 'cA_abort', ld='sc1' if MERGE else '')
    a('v_mov_b32 v250, 0')
    a('s_branch wk_loop')
    a.label('wk_s4d')
    a('s_sub_u32 s3, s3, 480')
    s4d.s4d_setup(a)
    s4d.s4d_item(a, 'wk', 's3')
    a('s_branch wk_loop')
    a.label('wk_tok')
    a('s_sub_u32 s3, s3, 592')
    a('s_cmp_ge_u32 s3, 512')
    a('s_cbranch_scc1 wk_done')
    a('s_lshr_b32 s17, s3, 3')
    a('s_and_b32 s18, s3, 3')
    a('s_bitcmp1_b32 s3, 2')
    a('s_cbranch_scc1 wk_toko')
    tok.tokp_body(a, 's17', 's18', ld='sc1', st='sc1', sync='wp', ldx='sc1' if MERGE else '')
    a('s_branch wk_loop')
    a.label('wk_toko')
    tok.toko_body(a, 's17', 's18', ld='sc1', sync='wo', OUT='s[92:95]')
    a('s_branch wk_loop')
    a.label('wp_abort')
    a.label('wo_abort')
    a('s_branch cA_abort')
    a.label('wk_done')

def role_tail(a, late=None):
    lane_consts(a)
    a('s_mov_b32 s19, 0')
    a(f's_mov_b32 s20, {EXCH_OFF}')
    if STAMPS: a('s_mov_b32 s63, s17')
    a('s_lshr_b32 s22, s17, 4')
    a('s_lshl_b32 s22, s22, 2')
    a('s_add_u32 s22, s22, s16')
    a('s_and_b32 s17, s17, 15')
    for p in range(8):
        a(f's_cmp_eq_u32 s22, {p}')
        a(f's_cbranch_scc1 ch_init{p}')
    a('s_branch ch_end')
    for p in range(8):
        a.label(f'ch_init{p}')
        if p < 4: init_score(a, p)
        else: init_value(a, p - 4, p)
        if late: late(p)
        a('s_mov_b32 s30, 0')
        a('v_mov_b32 v36, 0')
        a.label(f'ch_md{p}')
        a(f'buffer_load_dword v37, v36, {DBG}, 0 offen sc1')
        a('s_waitcnt vmcnt(0)')
        a('v_readfirstlane_b32 s22, v37')
        a('s_and_b32 s31, s22, 0xffff')
        a('s_cmp_ge_u32 s31, 32')
        a(f's_cbranch_scc1 ch_go{p}')
        a('s_sleep 2')
        a('s_add_u32 s30, s30, 1')
        a(f's_cmp_lt_u32 s30, {SLOW_LIMIT}')
        a(f's_cbranch_scc1 ch_md{p}')
        a('s_branch ch_end')
        a.label(f'ch_go{p}')
        evlog(a, 9003)
        if DIAG: a('s_memtime s[32:33]')
        a('s_mov_b32 s31, 0')
        if p in (4, 5):
            for r in range(36, 60): a(f'v_mov_b32 v{r}, 0')
        a('s_lshr_b32 s22, s22, 16')
        a('s_cmp_lg_u32 s22, 0')
        role = 'sc' if p < 4 else 'va'
        a(f's_cbranch_scc1 cB_{role}{p & 3}_loop')
        a(f's_branch cA_{role}{p & 3}_loop')
    for tag, st in (('cA', ''), ('cB', 'sc1')):
        for w in range(4): gen_score(a, w, st, tag)
        for w in range(4): gen_value(a, w, st, tag)
        tag_end(a, tag)

def tag_end(a, tag):
    a.label(f'{tag}_abort')
    a('v_mov_b32 v4, 0xdead')
    a('v_mov_b32 v5, 16')
    a(f'buffer_store_dword v4, v5, {DBG}, 0 offen')
    a('s_branch ch_end')
    a.label(f'{tag}_done')
    evlog(a, 9004)
    if STAMPS and STAMP_CYC:
        a('s_cmp_lg_u32 s16, 0')
        a('s_cbranch_scc1 ch_end')
        a('s_lshl_b32 s22, s63, 10')
        a(f's_add_u32 s22, s22, {STAMP_OFF + 65536}')
        a('s_mov_b32 s30, 0')
        a('s_mov_b64 exec, 1')
        a.label(f'{tag}_cal')
        a('s_memtime s[40:41]')
        a('s_memrealtime s[42:43]')
        a('s_waitcnt lgkmcnt(0)')
        a('v_mov_b32 v4, s40')
        a('v_mov_b32 v5, s42')
        a(f'buffer_store_dwordx2 v[4:5], off, {SRD}, s22')
        a('s_add_u32 s22, s22, 8')
        a('s_add_u32 s30, s30, 1')
        a('s_cmp_lt_u32 s30, 128')
        a(f's_cbranch_scc1 {tag}_cal')
    if DIAG:
        a('s_memtime s[60:61]')
        a('s_waitcnt lgkmcnt(0)')
        a('s_sub_u32 s60, s60, s32')
        a('v_mov_b32 v4, s60')
        a('v_mov_b32 v5, 8')
        a(f'buffer_store_dword v4, v5, {DBG}, 0 offen')
        a('v_mov_b32 v4, s31')
        a('v_mov_b32 v5, 12')
        a('s_mov_b64 exec, 1')
        a(f'buffer_atomic_add v4, v5, {DBG}, 0 offen')
    a('s_branch ch_end')

def gen_chain_kernel(name='chain_kernel', worker=worker_s4d):
    a = Asm()
    a.raw(kernel_header(name))
    a('s_cmp_ge_u32 s2, 256')
    a('s_cbranch_scc1 ch_end')
    a('s_load_dwordx2 s[4:5], s[0:1], 120')
    a('s_load_dwordx2 s[6:7], s[0:1], 128')
    if CODE_PF: code_prefetch(a, name, 'ch_end', 130000, 60)
    a('s_getreg_b32 s3, hwreg(HW_REG_XCC_ID)')
    a('s_and_b32 s3, s3, 15')
    a('v_lshrrev_b32 v1, 6, v0')
    a('v_readfirstlane_b32 s16, v1')
    a('s_waitcnt lgkmcnt(0)')
    a('s_mov_b32 s8, s6\ns_and_b32 s9, s7, 0xffff\ns_mov_b32 s10, 0x10000000\ns_mov_b32 s11, 0x20000')
    a('s_mov_b32 s12, s4\ns_and_b32 s13, s5, 0xffff\ns_mov_b32 s14, 256\ns_mov_b32 s15, 0x20000')
    if EVLOG:
        a('s_lshl_b32 s100, s2, 2')
        a('s_add_u32 s100, s100, s16')
        a('s_lshl_b32 s100, s100, 8')
        a(f's_add_u32 s100, s100, {EV_OFF}')
    evlog(a, 9000)
    if MERGE:
        import prep
        a('s_mov_b32 s97, 0')
        a('s_mov_b32 s91, s3')
        a('v_and_b32 v1, 63, v0')
        a('v_lshlrev_b32 v2, 4, v1')
        a('v_lshrrev_b32 v3, 4, v1')
        a('v_and_b32 v4, 15, v1')
        a('s_cmp_lg_u32 s16, 0')
        a('s_cbranch_scc1 m_a1')
        a(f's_cmp_eq_u32 s3, {XCD_SEL}')
        a('s_cselect_b32 s20, 0, 64')
        a('v_accvgpr_write_b32 a255, 1')
        a('s_mov_b64 exec, 1')
        a(f'buffer_atomic_add a255, v2, {DBG}, s20 offen sc0')
        a('s_mov_b64 exec, -1')
        a.label('m_a1')
        prep.xall_pre(a, 's2')
        a('s_cmp_ge_u32 s2, 224')
        a('s_cbranch_scc1 m_w')
        prep.prep_item(a, 'mpb', 's2', st='sc1', mode='Bhalf' if MERGE == 1 else 'mix', defer=(MERGE == 3))
        a('s_branch m_e')
        a.label('m_w')
        a('s_waitcnt vmcnt(0)')
        a.label('m_e')
        prep.xall_post(a, 'mpx', 's2', 'sc1', wait=False)
        a('v_mov_b32 v6, 160000')
        a('s_waitcnt vmcnt(0) lgkmcnt(0)')
        a('s_barrier')
        a('s_cmp_lg_u32 s16, 0')
        a('s_cbranch_scc1 m_b1')
        a('v_mov_b32 v4, 1')
        a('v_mov_b32 v5, 96')
        a('v_accvgpr_read_b32 v7, a255')
        a('s_mov_b64 exec, 1')
        a(f'buffer_atomic_add v4, v5, {DBG}, 0 offen sc0')
        a('ds_write_b32 v6, v7')
        a('s_waitcnt lgkmcnt(0)')
        a('s_mov_b64 exec, -1')
        a.label('m_b1')
        a('s_barrier')
        a('ds_read_b32 v7, v6')
        a('s_cmp_lg_u32 s16, 0')
        a('s_cbranch_scc1 m_b2')
        a('s_waitcnt vmcnt(0)')
        a('v_readfirstlane_b32 s20, v4')
        a('s_cmp_lg_u32 s20, 255')
        a('s_cbranch_scc1 m_b2')
        a('v_mov_b32 v4, 1')
        a('v_mov_b32 v5, 128')
        a('s_mov_b64 exec, 1')
        a(f'buffer_store_dword v4, v5, {DBG}, 0 offen sc1')
        a('s_mov_b64 exec, -1')
        a.label('m_b2')
        a('s_waitcnt lgkmcnt(0)')
        a('v_readfirstlane_b32 s101, v7')
        evlog(a, 9001)
        a(f's_cmp_lg_u32 s91, {XCD_SEL}')
        a('s_cbranch_scc1 ch_worker')
        a('s_and_b32 s17, s101, 0xffff')
        a('s_mov_b32 s101, -1')
        a('s_cmp_lt_u32 s17, 32')
        a('s_cbranch_scc1 ch_role')
        a('s_branch ch_worker')
    else:
        a(f's_cmp_lg_u32 s3, {XCD_SEL}')
        a('s_cbranch_scc1 ch_worker')
    a('v_mov_b32 v4, 1')
    a('s_mov_b32 s18, 0')
    a.label('ch_take')
    a('v_mov_b32 v5, 0')
    wg_atomic(a, 'ch_el', 's17')
    a('s_and_b32 s17, s17, 0xffff')
    a('s_cmp_lt_u32 s17, 32')
    a('s_cbranch_scc1 ch_role')
    a('s_cmp_eq_u32 s18, 0')
    a('s_cbranch_scc1 ch_worker')
    a('s_branch ch_end')
    a.label('ch_role')
    if MERGE:
        flag_wait(a, 'ch_fw')
        if MERGE == 1:
            a('s_cmp_ge_u32 s17, 16')
            a('s_cbranch_scc1 ch_r2')
            ac_wait(a, 'ch_aw')
            a.label('ch_r2')
        evlog(a, 9002)
    role_tail(a)
    a.label('ch_worker')
    if worker: worker(a)
    if worker is not worker_all: staff_check(a, 'ch_end', 1)
    a.label('ch_end')
    a('s_endpgm')
    return a

if __name__ == '__main__':
    import sys
    for x in sys.argv[2:]:
        if x == 'stamps': STAMPS = True
        elif '=' in x:
            k, v = x.split('='); globals()[k] = int(v)
    a = gen_chain_kernel()
    out = ['; @launch kernel=chain_kernel grid=(256,1,1) block=(256,1,1) lds=163840',
           '.amdgcn_target "amdgcn-amd-amdhsa--gfx950"', '.text', a.text(), '.section .rodata,"a"', kernel_desc('chain_kernel')]
    open(sys.argv[1], 'w').write('\n'.join(out) + '\n')
    print('instructions', a.count)
```

```python
from asmlib import *
from layout import *
import prep
WS = 's[8:11]'
SIGMA = prep.SIGMA
W_BYTES = prep.W_BYTES
NR = 8
NONCE = 's[88:89]'
NS = 9
APRE = 4
DSP = 2
VPRE = 5
XLATE = 1
PF_S = 3
PF_V = 7

def srd(a, d, lo, nbytes): prep.srd(a, d, lo, lo + 1, nbytes)

class VQ:
    def __init__(self): self.q = []
    def add(self, tag, n=1): self.q += [tag] * n
    def wait(self, tag):
        last = max(i for i, t in enumerate(self.q) if t == tag)
        n = len(self.q) - 1 - last
        self.q = self.q[last + 1:]
        return n

class AComp:
    FR = 120
    ACC = 32
    RING = 16; PF = 3; NG = 4
    RA = 8
    SV = 100
    def __init__(self, a, P):
        self.a = a; self.P = P; self.vq = VQ(); self.nxt = 0; self.mid = None
    def dma_ops(self):
        n = self.nxt; self.nxt += 1
        o = [[f'buffer_load_dwordx4 v{4+i}, s[56:59], s22 offen offset:{i*1024} lds', ('vq', ('p', n))] for i in range(4)]
        o[0] = [f's_add_u32 s22, s27, {n << 18}', f's_add_u32 m0, s25, {(n % NS)*16384}'] + o[0]
        return o
    def dma(self):
        for g in self.dma_ops():
            for x in g:
                if isinstance(x, tuple): self.vq.add(x[1])
                else: self.a(x)
    def issue(self):
        a = self.a; SV = self.SV
        srd(a, 60, 42, W_BYTES)
        a('v_lshrrev_b32 v24, 5, v1')
        a('v_and_b32 v25, 31, v1')
        a('s_lshl_b32 s26, s17, 9')
        a('s_lshl_b32 s25, s16, 12')
        a('v_xor_b32 v26, v25, v24')
        a('v_lshlrev_b32 v26, 4, v26')
        a('v_lshl_add_u32 v26, v24, 13, v26')
        for i in range(4):
            a(f'v_xor_b32 v{SV+i}, {32*(i >> 1)}, v26')
            if i: a(f'v_add_u32 v{SV+i}, {i*(16384-1024)}, v{SV+i}')
        a('s_lshl_b32 s23, s16, 19')
        a('s_add_u32 s23, s23, s26')
        def stage(grp):
            if grp and grp % 2 == 0:
                for i in range(4): a(f'v_xor_b32 v{SV+i}, {64*((grp >> 1) ^ ((grp >> 1) - 1))}, v{SV+i}')
            a(f's_add_u32 m0, s25, {(grp + 1)*16384}')
            if grp: a(f's_add_u32 s23, s23, {8 << 13}')
            for i in range(4): a(f'buffer_load_dwordx4 v{SV+i}, s[60:63], s23 offen offset:{i*1024} lds')
            self.vq.add('k', 4)
        for grp in range(8): stage(grp)
        srd(a, 56, 40, W_BYTES)
        a('s_lshl_b32 s21, s16, 16')
        a('s_add_u32 s27, s26, s21')
        a('s_lshr_b32 s20, s16, 1')
        a('s_lshl_b32 s20, s20, 6')
        a('v_xor_b32 v26, s20, v26')
        for i in range(4):
            a(f'v_xor_b32 v{4+i}, {128*(i >> 1) + 32*(i & 1)}, v26')
            if i: a(f'v_add_u32 v{4+i}, {i*(16384-1024)}, v{4+i}')
        self.dma()
    def setup(self):
        a = self.a; SV = self.SV
        a('v_and_b32 v26, 15, v25')
        a('v_xor_b32 v27, v26, v24')
        a('v_lshlrev_b32 v27, 4, v27')
        a('v_bfe_u32 v28, v25, 2, 1')
        a('v_lshlrev_b32 v28, 4, v28')
        a('v_lshrrev_b32 v29, 3, v25')
        a('v_lshl_add_u32 v28, v29, 2, v28')
        a('v_and_b32 v29, 3, v25')
        a('v_add_u32 v28, v28, v29')
        a('v_lshl_add_u32 v28, v28, 9, v27')
        a('v_lshrrev_b32 v29, 2, v26')
        a('v_lshlrev_b32 v29, 15, v29')
        a('v_bfe_u32 v30, v26, 1, 1')
        a('v_lshl_add_u32 v29, v30, 11, v29')
        a('v_lshrrev_b32 v30, 4, v25')
        a('v_lshl_add_u32 v29, v30, 10, v29')
        a('v_and_b32 v31, 1, v26')
        a('v_lshl_add_u32 v29, v31, 9, v29')
        a('v_add_u32 v29, v29, v27')
        a('v_add_u32 v29, s25, v29')
        for k in range(8):
            a(f'v_xor_b32 v{self.RA+k}, {32*k}, v28')
            a(f'v_xor_b32 v{SV+4+k}, {32*k}, v29')
        a(f's_mov_b32 s52, {SIGMA}')
    def fetch(self):
        a = self.a
        a(f's_waitcnt vmcnt({self.vq.wait("k")})')
        for D in range(2):
            for ks in range(16):
                r = self.FR + 64 * D + 4 * ks
                a(f'ds_read_b128 v[{r}:{r+3}], v{self.SV + 4 + (ks & 7)} offset:{(1 + D)*16384 + (ks >> 3)*256}')
                if ks & 7 == 7: a('s_waitcnt lgkmcnt(4)')
        a('s_waitcnt lgkmcnt(0)')
        while self.nxt < APRE: self.dma()
    def epi(self, p, dest):
        o = []
        for D in range(2):
            b0 = self.ACC + 32 * (p & 1) + 16 * D
            for b in (b0, b0 + 8):
                for k in range(4):
                    o += [f'v_mul_f32 v{b+2*k}, s52, v{b+2*k}', f'v_mul_f32 v{b+2*k+1}, s52, v{b+2*k+1}', f'v_cvt_pk_bf16_f32 v{b+k}, v{b+2*k}, v{b+2*k+1}']
            o += [f'v_permlane16_swap_b32 v{b0+k}, v{b0+8+k}' for k in range(4)]
            for u in range(2):
                o += [f'v_accvgpr_write_b32 a{dest(2*D+u, p) - 256 + k}, v{b0+8*u+k}' for k in range(4)]
        return o
    def run(self, dest, extra=None):
        a = self.a; vq = self.vq; PF = self.PF
        hi = [0] * 8
        def rd(i):
            p, ks = i >> 4, i & 15; r = self.RING + 4 * (i % self.NG); k = ks & 7; sl = p % NS
            if hi[k] != sl >> 2:
                a(f'v_xor_b32 v{self.RA+k}, {(hi[k] ^ (sl >> 2)) << 16}, v{self.RA+k}'); hi[k] = sl >> 2
            a(f'ds_read_b128 v[{r}:{r+3}], v{self.RA+k} offset:{(sl & 3)*16384 + (ks >> 3)*256}')
        def sync(p):
            if ('p', p) in vq.q: a(f's_waitcnt vmcnt({vq.wait(("p", p))})')
            a('s_barrier')
        sync(1)
        for i in range(PF): rd(i)
        side = []; mem = []
        for i in range(14 * 16):
            p, ks = i >> 4, i & 15
            if ks == 0:
                if p & 1 and p < 13:
                    assert not mem
                    sync(p + 2)
                    if self.mid: self.mid(p)
                    while self.nxt < min(14, p + NS): mem += self.dma_ops()
                if p == 0:
                    while self.nxt < min(NS, APRE + 4): mem += self.dma_ops()
                if extra: mem += extra(p)
            if i + PF < 14 * 16: rd(i + PF)
            a(f's_waitcnt lgkmcnt({min(PF, 14 * 16 - 1 - i)})')
            r = self.RING + 4 * (i % self.NG)
            for D in range(2):
                d = self.ACC + 32 * (p & 1) + 16 * D; b = self.FR + 64 * D + 4 * ks
                a(f'v_mfma_f32_32x32x16_bf16 v[{d}:{d+15}], v[{r}:{r+3}], v[{b}:{b+3}], ' + ('0' if ks == 0 else f'v[{d}:{d+15}]'))
                if D == 0 and mem:
                    for x in mem.pop(0):
                        if isinstance(x, tuple): vq.add(x[1])
                        else: a(x)
                if ks >= 1:
                    for _ in range(3 - D):
                        if side: a(side.pop(0))
            if ks == 15:
                assert not side
                side = self.epi(p, dest)
        assert not mem
        for x in side: a(x)

def flag_store(a, soff_s, R, stride, t=24):
    a(f'v_mul_u32_u24 v{t+2}, {stride}, v1')
    a(f'v_mov_b32 v{t}, s88\nv_mov_b32 v{t+1}, s89')
    a(f's_mov_b64 exec, {(1 << R) - 1}')
    a(f'buffer_store_dwordx2 v[{t}:{t+1}], v{t+2}, {WS}, {soff_s} offen sc1')
    a('s_mov_b64 exec, -1')

def flag_poll(a, P, t, loads, abort, limit, sleep=4, on_spin=None, issued=False):
    a('s_mov_b32 s30, 0')
    if issued: a(f's_branch {P}_w')
    a.label(P)
    for i, (va, so) in enumerate(loads):
        a(f'buffer_load_dwordx4 v[{t+4*i}:{t+4*i+3}], v{va}, {WS}, {so} offen sc1')
    if issued: a.label(P + '_w')
    a('s_waitcnt vmcnt(0)')
    for i in range(2 * len(loads)):
        a(f'v_cmp_ne_u64 vcc, {NONCE}, v[{t+2*i}:{t+2*i+1}]')
        a(f's_cbranch_vccnz {P}_no')
    a(f's_branch {P}_ok')
    a.label(P + '_no')
    a(f's_sleep {sleep}')
    a('s_add_u32 s30, s30, 1')
    if on_spin: on_spin()
    a(f's_cmp_lt_u32 s30, {limit}')
    a(f's_cbranch_scc1 {P}')
    a(f's_branch {abort}')
    a.label(P + '_ok')

def bjob_decode(a):
    a('s_mul_i32 s17, s18, 4682')
    a('s_lshr_b32 s17, s17, 16')
    assert all((i * 4682) >> 16 == i // 14 for i in range(224))
    a('s_mul_i32 s20, s17, 14')
    a('s_sub_u32 s19, s18, s20')
    a('s_cmp_ge_u32 s19, 7')
    a('s_cselect_b32 s31, 7, 0')
    a('s_sub_u32 s19, s19, s31')

def bjob_issue(a, vq, mat=1, P='bj', hook=None):
    srd(a, 60, 40 + 4 * mat, W_BYTES); srd(a, 56, 42 + 4 * mat, W_BYTES)
    a('s_lshl_b32 s30, s16, 13')
    if mat:
        a('s_mul_i32 s27, s17, 229376')
        a('s_lshl_b32 s29, s19, 7')
        a('s_add_u32 s27, s27, s29')
        a('v_lshrrev_b32 v7, 3, v1')
        a('v_and_b32 v8, 7, v1')
        a('s_lshl_b32 s29, s16, 6')
        a('v_add_u32 v7, s29, v7')
        a('v_mul_u32_u24 v7, 896, v7')
        a('v_lshl_add_u32 v7, v8, 4, v7')
        for i in range(8):
            if i % 4 == 0: a(f's_add_u32 m0, s30, {i*1024}')
            a(f's_add_u32 s22, s27, {i*8*896 - (i & 3)*1024}')
            a(f'buffer_load_dwordx4 v7, s[56:59], s22 offen offset:{(i & 3)*1024} lds')
    else:
        a('s_lshl_b32 s27, s19, 19')
        a('s_lshl_b32 s29, s16, 17')
        a('s_add_u32 s27, s27, s29')
        a('s_lshl_b32 s29, s17, 9')
        a('s_add_u32 s27, s27, s29')
        a('v_lshrrev_b32 v5, 5, v1')
        a('v_and_b32 v6, 31, v1')
        a('v_xor_b32 v6, v6, v5')
        a('v_lshlrev_b32 v6, 4, v6')
        a('v_lshl_add_u32 v6, v5, 13, v6')
        for i in range(8):
            if i % 4 == 0: a(f's_add_u32 m0, s30, {i*1024}')
            a(f's_add_u32 s22, s27, {i*16384 - (i & 3)*1024}')
            a(f'v_xor_b32 v7, {32*i}, v6')
            a(f'buffer_load_dwordx4 v7, s[56:59], s22 offen offset:{(i & 3)*1024} lds')
    vq.add('stat', 8)
    if hook: hook()
    a('v_lshrrev_b32 v5, 5, v1')
    a('v_and_b32 v6, 31, v1')
    a('s_lshl_b32 s25, s16, 15')
    a('s_add_u32 s25, s25, 32768')
    a('s_lshl_b32 s26, s17, 9')
    for k, sp in ((0, 's28'), (4, 's29')):
        a(f's_add_u32 {sp}, s19, s16')
        if k: a(f's_add_u32 {sp}, {sp}, {k}')
        a(f's_cmp_ge_u32 {sp}, 7')
        a('s_cselect_b32 s20, 7, 0')
        a(f's_sub_u32 {sp}, {sp}, s20')
        a(f's_add_u32 {sp}, {sp}, s31')
    a('s_lshl_b32 s32, s28, 18\ns_add_u32 s32, s32, s26')
    a('s_lshl_b32 s33, s29, 18\ns_add_u32 s33, s33, s26')
    a('v_xor_b32 v8, v6, v5')
    a('v_lshlrev_b32 v8, 4, v8')
    a('v_lshl_add_u32 v8, v5, 13, v8')
    for i in range(4):
        a(f'v_xor_b32 v{12+i}, {32*(i & 1)}, v8')
        if i: a(f'v_add_u32 v{12+i}, {i*(16384-1024)}, v{12+i}')
    for j in range(4):
        a(f's_add_u32 s20, s16, {j}')
        a('s_and_b32 s20, s20, 3')
        a(f's_mul_i32 s21, s20, {65536 + 64}')
        a('s_lshl_b32 s20, s20, 12')
        a(f's_add_u32 s{48 + j}, s20, s25')
        a(f's_mov_b32 m0, s{48 + j}')
        for i in range(4):
            a(f'v_xor_b32 v{16+4*j+i}, s21, v{12+i}')
            a(f'buffer_load_dwordx4 v{16+4*j+i}, s[60:63], s32 offen offset:{i*1024} lds')
    vq.add('p0', 16)
    a('s_cmp_eq_u32 s16, 3')
    a(f's_cbranch_scc1 {P}_np1')
    for i in range(16):
        if i % 4 == 0: a(f's_add_u32 m0, s{48 + (i >> 2)}, 16384')
        a(f'buffer_load_dwordx4 v{16+i}, s[60:63], s33 offen offset:{(i & 3)*1024} lds')
    vq.add('p1', 16)
    a.label(f'{P}_np1')

def bjob_x(a, vq):
    srd(a, 52, 36, 2048 * 448 * 2)
    a('s_lshl_b32 s20, s18, 8')
    a('v_add_u32 v95, s20, v0')
    M448 = (1 << 32) // 448 + 1
    assert all((u * M448) >> 32 == u // 448 for u in range(57344))
    a(f's_mov_b32 s21, {M448}')
    a('v_mul_hi_u32 v6, v95, s21')
    a('v_mul_u32_u24 v7, 448, v6')
    a('v_sub_u32 v7, v95, v7')
    a('v_lshrrev_b32 v8, 4, v7')
    a('v_and_b32 v7, 15, v7')
    a('v_lshl_add_u32 v9, v6, 4, v7')
    a('v_mul_u32_u24 v9, 896, v9')
    a('v_lshl_add_u32 v9, v8, 5, v9')
    a('buffer_load_dwordx4 v[84:87], v9, s[52:55], 0 offen')
    a('buffer_load_dwordx4 v[88:91], v9, s[52:55], 0 offen offset:16')
    vq.add('x', 2)
    a(f'v_mul_u32_u24 v6, {14*KB}, v6')
    a('v_lshl_add_u32 v6, v7, 4, v6')
    a('v_lshl_add_u32 v92, v8, 9, v6')
    a('v_lshrrev_b32 v7, 2, v8')
    a('v_lshl_add_u32 v6, v7, 11, v6')
    a('v_and_b32 v7, 3, v8')
    a('v_lshl_add_u32 v93, v7, 8, v6')
    srd(a, 72, 38, 8 * 448 * 2)
    a('v_min_u32 v6, 223, v0')
    a('v_lshrrev_b32 v7, 3, v6')
    a('v_and_b32 v6, 7, v6')
    a('v_mul_u32_u24 v9, 896, v6')
    a('v_lshl_add_u32 v9, v7, 5, v9')
    a('buffer_load_dwordx4 v[36:39], v9, s[72:75], 0 offen')
    a('buffer_load_dwordx4 v[40:43], v9, s[72:75], 0 offen offset:16')
    vq.add('x', 2)
    a('v_lshlrev_b32 v7, 8, v7')
    a('v_lshl_add_u32 v94, v6, 4, v7')

def a1_touch(a, vq):
    a('s_cmp_lt_u32 s16, 2')
    a('s_cselect_b32 s20, s40, s42')
    a('s_cselect_b32 s21, s41, s43')
    srd(a, 72, 20, W_BYTES)
    a('s_add_u32 s20, s19, s31')
    a('s_lshl_b32 s21, s20, 5')
    a('s_lshl_b32 s22, s16, 4')
    a('s_add_u32 s21, s21, s22')
    a('s_mul_i32 s20, s20, 14')
    a('s_add_u32 s20, s20, 250')
    a('s_cmp_lt_u32 s16, 2')
    a('s_cselect_b32 s20, s21, s20')
    a('s_lshl_b32 s20, s20, 13')
    a('s_add_u32 s20, s20, s26')
    a('v_lshlrev_b32 v6, 13, v4')
    a('v_lshl_add_u32 v6, v3, 7, v6')
    a('buffer_load_dword v51, v6, s[72:75], s20 offen')
    vq.add('t')

def wait3(a, n, extra=''):
    l = a.newlabel('w3')
    a(f's_waitcnt vmcnt({n}){extra}')
    a('s_cmp_lg_u32 s16, 3')
    a(f's_cbranch_scc1 {l}')
    a(f's_waitcnt vmcnt({n-16})')
    a.label(l)

def _fills(a, vq):
    import tok
    PTL = (64 - tok.LASTP) * 2 * PT_B
    assert PT_OFF + 128 * PT_B == MEMG_OFF
    k = 0
    for base, n, zlo, zn in ((EXCH_OFF, 66 * EXCH_B // 16, F2 // 16, 256), (MEMG_OFF - PTL, (PTL + 64 * 7 * KB + CNT_B) // 16, (PTL + 64 * 7 * KB) // 16, 1 << 20)):
        a(f's_mov_b32 s23, {base}')
        for j in range((n - 448 + 57343) // 57344):
            r = 52 + 4 * k
            a(f'v_add_u32 v6, {448 + 57344*j}, v95')
            if base != EXCH_OFF:
                a(f'v_cmp_gt_u32 vcc, {PTL // 16}, v95')
                a('v_cndmask_b32 v6, v6, v95, vcc')
            a(f'v_subrev_u32 v7, {zlo}, v6')
            a(f'v_mov_b32 v{r}, -1')
            a('v_mov_b32 v9, 0')
            a(f'v_cmp_gt_u32 vcc, {zn}, v7')
            a(f'v_cndmask_b32 v{r}, v{r}, v9, vcc')
            for q in range(1, 4): a(f'v_mov_b32 v{r+q}, v{r}')
            a('v_lshlrev_b32 v8, 4, v6')
            a('v_mov_b32 v9, 0x10000000')
            a(f'v_cmp_lt_u32 vcc, {n-1}, v6')
            a('v_cndmask_b32 v8, v8, v9, vcc')
            a(f'buffer_store_dwordx4 v[{r}:{r+3}], v8, {WS}, s23 offen sc1')
            vq.add('fill'); k += 1

def bjob_run(a, P, vq, mat=1, confirm=None, fs='s28', finish=True, late=None):
    BST = 128
    for q in range(4):
        if mat:
            a('s_lshl_b32 s30, s19, 6')
            a(f's_add_u32 s30, s30, {16*q}')
            a('v_add_u32 v8, s30, v4')
            a('v_mul_u32_u24 v10, 2341, v8')
            a('v_lshrrev_b32 v10, 16, v10')
            a('v_mul_u32_u24 v11, 28, v10')
            a('v_sub_u32 v32, v8, v11')
            a('s_mul_i32 s30, s17, 28')
            a('v_add_u32 v32, s30, v32')
            a('v_lshrrev_b32 v33, 4, v32')
            a('v_and_b32 v32, 15, v32')
            a(f's_mov_b32 s30, {CUW_B}')
            a('v_mul_lo_u32 v10, v10, s30')
            a(f'v_mul_u32_u24 v33, {TILE_B}, v33')
            a('v_add_u32 v10, v10, v33')
            a('v_lshl_add_u32 v10, v3, 8, v10')
            a('v_lshl_add_u32 v10, v32, 4, v10')
            a(f'v_add_u32 v{12+q}, {WF_B}, v10')
        else:
            if q == 0:
                a(f's_mul_i32 s30, s17, {CUW_B}')
                a(f's_mul_i32 s20, s19, {4*TILE_B}')
                a('s_add_u32 s30, s30, s20')
                a('v_add_u32 v12, s30, v2')
            else: a(f'v_add_u32 v{12+q}, {q*TILE_B}, v12')
            assert WF_A == 0
    a('v_lshrrev_b32 v7, 2, v4')
    a('v_lshlrev_b32 v7, 3, v7')
    a('v_and_b32 v8, 3, v4')
    a('v_add_u32 v7, v7, v8')
    a('v_xor_b32 v10, v3, v4')
    a('v_lshlrev_b32 v10, 4, v10')
    a('v_lshl_add_u32 v10, v7, 9, v10')
    a('v_add_u32 v10, s25, v10')
    for k3 in range(4): a(f'v_xor_b32 v{32+k3}, {64*k3}, v10')
    if mat:
        a('v_lshrrev_b32 v7, 2, v4')
        a('v_lshl_add_u32 v7, v3, 3, v7')
        a('v_lshlrev_b32 v7, 7, v7')
        a('v_and_b32 v8, 3, v4')
        a('v_lshl_add_u32 v7, v8, 3, v7')
    else:
        a('v_and_b32 v8, 2, v4')
        a('v_lshlrev_b32 v8, 1, v8')
        a('v_and_b32 v9, 1, v4')
        a('v_add_u32 v8, v8, v9')
        a('v_lshrrev_b32 v7, 2, v4')
        a('v_lshl_add_u32 v7, v7, 4, v8')
        a('v_xor_b32 v8, v8, v3')
        a('v_lshlrev_b32 v8, 4, v8')
        a('v_lshl_add_u32 v7, v7, 9, v8')
        a(f's_mov_b32 s24, {SIGMA}')
    wait3(a, vq.wait("stat"))
    a('s_barrier')
    for q in range(4):
        for kk in range(8):
            r = BST + (q * 8 + kk) * 4
            if mat:
                for hf in range(2):
                    a(f'ds_read_b64_tr_b16 v[{r+2*hf}:{r+2*hf+1}], v7 offset:{(32*kk + 4*hf)*128 + q*32}')
                if kk & 3 == 3: a('s_waitcnt lgkmcnt(6)')
            else:
                ro = 8 * (q >> 1) + 2 * (q & 1)
                if kk < 4: a(f'v_xor_b32 v{8+kk}, {((4*kk) ^ ro) << 4}, v7')
                a(f'ds_read_b128 v[{r}:{r+3}], v{8 + (kk & 3)} offset:{ro*512 + (kk >> 2)*256}')
                if kk == 7: a('s_waitcnt lgkmcnt(4)')
    ACC = 96; FR = 52
    for it in range(2):
        if it == 1:
            a('s_cmp_eq_u32 s16, 3')
            a(f's_cbranch_scc1 {P}_w3')
        if it == 0: wait3(a, vq.wait('p0'), ' lgkmcnt(0)')
        else: a(f's_waitcnt vmcnt({vq.wait("p1")})')
        if it == 0 and late: late()
        def rd(i): a(f'ds_read_b128 v[{FR+4*(i&3)}:{FR+4*(i&3)+3}], v{32 + (i & 3)} offset:{it*16384 + (i >> 3)*2048 + ((i & 7) >> 2)*256}')
        for i in range(3): rd(i)
        for i in range(16):
            tau, kk = i >> 3, i & 7
            if i + 3 < 16: rd(i + 3)
            a(f's_waitcnt lgkmcnt({min(3, 15 - i)})')
            for q in range(4):
                d = ACC + 16 * tau + 4 * q; b = BST + (q * 8 + kk) * 4
                c = '0' if kk == 0 else f'v[{d}:{d+3}]'
                a(f'v_mfma_f32_16x16x32_bf16 v[{d}:{d+3}], v[{FR+4*(i&3)}:{FR+4*(i&3)+3}], v[{b}:{b+3}], {c}')
        if it == 0 and confirm: confirm()
        a(f's_lshl_b32 s30, {"s29" if it else "s28"}, 10')
        for q in range(4):
            o = 68 + 4 * q
            for tau in range(2):
                d = ACC + 16 * tau + 4 * q
                if not mat:
                    for k in range(4): a(f'v_mul_f32 v{d+k}, s24, v{d+k}')
                a(f'v_cvt_pk_bf16_f32 v{o+2*tau}, v{d}, v{d+1}')
                a(f'v_cvt_pk_bf16_f32 v{o+2*tau+1}, v{d+2}, v{d+3}')
            a(f'buffer_store_dwordx4 v[{o}:{o+3}], v{12+q}, {WS}, s30 offen sc1')
            vq.add('st')
    a.label(f'{P}_w3')
    a(f's_lshl_b32 {fs}, {"s19" if mat else "s17"}, {8 if mat else 7}')
    a(f's_lshl_b32 s21, {"s17" if mat else "s19"}, 4')
    a(f's_add_u32 {fs}, {fs}, s21')
    a('s_cmp_lg_u32 s31, 0')
    a('s_cselect_b32 s21, 8, 0')
    a(f's_add_u32 {fs}, {fs}, s21')
    a(f's_add_u32 {fs}, {fs}, {BF_OFF if mat else AF_OFF}')
    if finish:
        a('s_waitcnt vmcnt(0)')
        publish(a, fs, 1)

def publish(a, fs, R, t=24):
    l = a.newlabel('pub')
    a('s_barrier')
    a('s_cmp_lg_u32 s16, 0')
    a(f's_cbranch_scc1 {l}')
    flag_store(a, fs, R, 2048, t)
    a.label(l)

def init_stores(a, P, vq):
    a('s_waitcnt vmcnt(4)')
    for j in range(4):
        a(f'v_mov_b32 v{96+j}, v{84+2*j}')
        a(f'v_mov_b32 v{100+j}, v{85+2*j}')
        a(f'v_min_u32 v{104+j}, -2, v{36+2*j}')
        a(f'v_min_u32 v{108+j}, -2, v{37+2*j}')
    a(f's_mov_b32 s20, {XF_OFF}\ns_mov_b32 s21, {XM_OFF}')
    a(f'buffer_store_dwordx4 v[84:87], v92, {WS}, s20 offen sc1')
    a(f'buffer_store_dwordx4 v[88:91], v92, {WS}, s20 offen offset:256 sc1')
    a(f'buffer_store_dwordx4 v[96:99], v93, {WS}, s21 offen sc1')
    a(f'buffer_store_dwordx4 v[100:103], v93, {WS}, s21 offen offset:1024 sc1')
    a('s_cmp_lg_u32 s18, 0')
    a(f's_cbranch_scc1 {P}_nm')
    a(f's_mov_b32 s20, {EXCH_OFF}\ns_mov_b32 s21, {MEMG_OFF}')
    for sb in ('s20', 's21'):
        a(f'buffer_store_dwordx4 v[104:107], v94, {WS}, {sb} offen sc1')
        a(f'buffer_store_dwordx4 v[108:111], v94, {WS}, {sb} offen offset:128 sc1')
    a.label(f'{P}_nm')
```

```python
from asmlib import *
from layout import *
WS = 's[8:11]'
PEEK = WS
def ev(a, tag, t=120):
    import chain as C
    if C.EVLOG:
        l = a.newlabel('ev')
        a('s_cmp_lt_u32 s17, 62')
        a(f's_cbranch_scc1 {l}')
        a(f's_mul_i32 s29, s17, 10\ns_add_u32 s29, s29, {9200 - 620 + tag}')
        C.evlog(a, 's29', t)
        a.label(l)
def common(a, endl):
    a('s_cmp_ge_u32 s2, 256')
    a(f's_cbranch_scc1 {endl}')
    a('s_load_dwordx2 s[6:7], s[0:1], 128')
    a('s_load_dwordx2 s[4:5], s[0:1], 112')
    a('v_lshrrev_b32 v1, 6, v0')
    a('v_readfirstlane_b32 s16, v1')
    a('v_and_b32 v1, 63, v0')
    a('v_lshlrev_b32 v2, 4, v1')
    a('v_lshrrev_b32 v3, 4, v1')
    a('v_and_b32 v4, 15, v1')
    a('s_waitcnt lgkmcnt(0)')
    a('s_mov_b32 s8, s6\ns_and_b32 s9, s7, 0xffff\ns_mov_b32 s10, 0x10000000\ns_mov_b32 s11, 0x20000')
    a(f's_mov_b32 s12, s4\ns_and_b32 s13, s5, 0xffff\ns_mov_b32 s14, {2048*896*2}\ns_mov_b32 s15, 0x20000')

WAIT_LIMIT = 30000
SLEEP = 1
LONG = 127
NEAR = 56
FULLPOLL = 64
ONELINE = 0
PMODE = 3
LASTP = 61
T2MID = 20
def mpoll(a, dst, va, so):
    if PMODE == 0: a(f'buffer_load_dword v{dst}, v{va}, {WS}, {so} offen sc1')
    elif PMODE == 1: a(f'buffer_load_dword v{dst}, v{va}, {WS}, {so} offen sc0 sc1')
    elif PMODE == 2: a(f'buffer_load_dword v{dst}, v{va}, {WS}, {so} offen sc0 sc1 nt')
    else:
        l = a.newlabel('mp')
        a(f's_cmp_ge_u32 s17, {LASTP}')
        a(f's_cbranch_scc1 {l}a')
        a(f'v_mov_b32 v{dst}, 0')
        a('s_mov_b64 exec, 1')
        a(f'buffer_atomic_or v{dst}, v{va}, {WS}, {so} offen sc0')
        a('s_mov_b64 exec, -1')
        a(f's_branch {l}b')
        a.label(l + 'a')
        a(f'buffer_load_dword v{dst}, v{va}, {WS}, {so} offen sc1')
        a.label(l + 'b')
def backoff(a, P, sleep):
    a(f's_sleep {sleep}')
    a(f's_cmp_ge_u32 s17, {NEAR}')
    a(f's_cbranch_scc1 {P}_bo')
    a(f's_sleep {LONG}')
    a.label(P + '_bo')
def wait_eq(a, P, soff, target, abort, sleep=None, four=False, ne=False):
    sleep = sleep or SLEEP
    if four: a('v_lshlrev_b32 v60, 2, v3')
    else: a('v_mov_b32 v60, 0')
    a('s_mov_b32 s30, 0')
    a.label(P)
    a(f'buffer_load_dword v61, v60, {WS}, {soff} offen sc1')
    a('s_waitcnt vmcnt(0)')
    a(f'v_cmp_{"eq" if ne else "ne"}_u32 vcc, {target}, v61')
    a(f's_cbranch_vccz {P}_ok')
    backoff(a, P, sleep)
    a('s_add_u32 s30, s30, 1')
    a(f's_cmp_lt_u32 s30, {WAIT_LIMIT}')
    a(f's_cbranch_scc1 {P}')
    a(f's_branch {abort}')
    a.label(P + '_ok')

def load_lin(a, base_s, n, areg, flags=''):
    for f in range(n):
        if f % 4 == 0: a(f's_add_u32 s22, {base_s}, {f*1024}')
        a(f'buffer_load_dwordx4 a[{areg+4*f}:{areg+4*f+3}], v2, {WS}, s22 offen offset:{(f & 3)*1024} {flags}')

def tokp_body(a, seg_s, hq_s, ld='', st='', sync=None, ldx=''):
    a(f's_lshl_b32 s20, {hq_s}, 2')
    a('s_add_u32 s20, s20, s16')
    a(f's_lshl_b32 s21, {seg_s}, 4')
    a('s_add_u32 s21, s21, s20')
    a(f's_mul_i32 s21, s21, {GSH_B}')
    a(f's_add_u32 s21, s21, {F_OFF}')
    a(f's_mul_i32 s23, {seg_s}, {28*KB}')
    a(f's_add_u32 s23, s23, {XM_OFF}')
    FA, XA, MA = 0, 112, 224
    if sync:
        a(f's_mul_i32 s24, {seg_s}, {7*KB}')
        a(f's_add_u32 s24, s24, {MEMG_OFF}')
        a(f's_lshr_b32 s25, {seg_s}, 3')
        a('s_lshl_b32 s25, s25, 4')
        a('s_add_u32 s25, s25, s20')
        a('s_lshl_b32 s25, s25, 7')
        a(f's_add_u32 s25, s25, {CNT_OFF + FC}')
        wait_eq(a, sync + '_wf', 's25', 56, sync + '_abort')
    else:
        a(f's_mul_i32 s24, {seg_s}, {EXCH_B}')
        a(f's_add_u32 s24, s24, {EXCH_OFF}')
    load_lin(a, 's21', 28, FA, ld)
    load_lin(a, 's23', 28, XA, ldx)
    if not sync: load_lin(a, 's24', 7, MA, ld)
    AX = {(0, 0): 8, (0, 1): 12, (1, 1): 16}
    AM = {(0, 0): 20, (1, 0): 24, (0, 1): 28, (1, 1): 32}
    for r in range(4):
        a(f'v_lshl_add_u32 v5, v3, 2, {r}')
        a(f'v_cmp_le_u32 s[{40+2*r}:{41+2*r}], v5, v4')
    a('v_cmp_gt_u32 s[48:49], 2, v3')
    a('v_mov_b32 v6, 0xff800000')
    a('s_waitcnt vmcnt(0)' if sync else 's_waitcnt vmcnt(7)')
    for f in range(14):
        for (tk, tt), d in AX.items():
            c = '0' if f == 0 else f'v[{d}:{d+3}]'
            xa = XA + 4 * (tk * 14 + f); fa = FA + 4 * (tt * 14 + f)
            a(f'v_mfma_f32_16x16x32_bf16 v[{d}:{d+3}], a[{xa}:{xa+3}], a[{fa}:{fa+3}], {c}')
    MV = 64
    if sync:
        a('s_mul_i32 s22, s20, 448')
        a('v_mov_b32 v62, s22' if not ONELINE else 'v_mov_b32 v62, 0')
        a('s_mov_b32 s30, 0')
        a.label(sync + '_pm')
        a(f's_cmp_ge_u32 s17, {FULLPOLL}')
        a(f's_cbranch_scc1 {sync}_pf')
        mpoll(a, 61, 62, 's24')
        a('s_waitcnt vmcnt(0)')
        a('v_cmp_eq_u32 vcc, -1, v61')
        a(f's_cbranch_vccnz {sync}_pr')
        a.label(sync + '_pf')
        ev(a, 0)
        a('s_add_u32 s22, s24, 4096')
        for ks in range(7):
            a(f'buffer_load_dwordx4 v[{MV+4*ks}:{MV+4*ks+3}], v2, {WS}, {"s24" if ks < 4 else "s22"} offen offset:{(ks & 3)*1024} sc1')
        a('s_waitcnt vmcnt(0)')
        a(f'v_max_u32 v61, v{MV}, v{MV+1}')
        for r in range(MV + 2, MV + 28, 2): a(f'v_max3_u32 v61, v61, v{r}, v{r+1}')
        a('v_cmp_eq_u32 vcc, -1, v61')
        a(f's_cbranch_vccz {sync}_pk')
        a.label(sync + '_pr')
        backoff(a, sync + '_pm', SLEEP)
        a('s_add_u32 s30, s30, 1')
        a(f's_cmp_lt_u32 s30, {WAIT_LIMIT}')
        a(f's_cbranch_scc1 {sync}_pm')
        a(f's_branch {sync}_abort')
        a.label(sync + '_pk')
        ev(a, 1)
        a(f'buffer_load_dword v250, v251, {PEEK}, 0 offen sc1')
    else:
        a('s_waitcnt vmcnt(0)')
    for ks in range(7):
        for (half, tt), d in AM.items():
            c = '0' if ks == 0 else f'v[{d}:{d+3}]'
            fa = FA + 4 * (tt * 14 + ks * 2 + half)
            mop = f'v[{MV+4*ks}:{MV+4*ks+3}]' if sync else f'a[{MA+4*ks}:{MA+4*ks+3}]'
            a(f'v_mfma_f32_16x16x32_bf16 v[{d}:{d+3}], {mop}, a[{fa}:{fa+3}], {c}')
    a(f's_lshl_b32 s25, {seg_s}, 1')
    a(f's_mul_i32 s25, s25, {PT_B}')
    a(f's_add_u32 s25, s25, {PT_OFF}')
    a('s_lshl_b32 s26, s20, 10')
    a('s_add_u32 s26, s26, s25')
    a(f's_lshl_b32 s27, {hq_s}, 10')
    a('s_add_u32 s27, s27, s25')
    a('s_lshr_b32 s28, s16, 1')
    a('s_lshl_b32 s28, s28, 3')
    a('s_add_u32 s27, s27, s28')
    a(f's_add_u32 s27, s27, {16*KB}')
    a('s_and_b32 s28, s16, 1')
    a('s_cmp_eq_u32 s28, 0')
    a('s_cselect_b32 s50, -1, 0')
    a('s_cselect_b32 s51, 0, -1')
    for tt in range(2):
        xs = []
        for (tk, t2), d in AX.items():
            if t2 != tt: continue
            for r in range(4):
                if tk == tt: a(f'v_cndmask_b32 v{d+r}, v6, v{d+r}, s[{40+2*r}:{41+2*r}]')
                xs.append(d + r)
        z, t = AM[(0, tt)], AM[(1, tt)]
        for r in range(4): a(f'v_cndmask_b32 v{z+r}, v{t+r}, v{z+r}, s[48:49]')
        for r in range(4): a(f'v_mov_b32 v{t+r}, v{z+r}')
        for r in range(4): a(f'v_permlane32_swap_b32 v{z+r}, v{t+r}')
        for r in range(4): a(f'v_add_f32 v{z+r}, v{z+r}, v{t+r}')
        ms = [z + r for r in range(4)]
        al = xs + ms
        mx = 40
        a(f'v_max3_f32 v{mx}, v{al[0]}, v{al[1]}, v{al[2]}')
        rest = al[3:]
        while len(rest) >= 2:
            a(f'v_max3_f32 v{mx}, v{mx}, v{rest[0]}, v{rest[1]}'); rest = rest[2:]
        if rest: a(f'v_max_f32 v{mx}, v{mx}, v{rest[0]}')
        for sw in ('16', '32'):
            a(f'v_mov_b32 v41, v{mx}')
            a(f'v_permlane{sw}_swap_b32 v{mx}, v41')
            a(f'v_max_f32 v{mx}, v{mx}, v41')
        for r in al: a(f'v_sub_f32 v{r}, v{r}, v{mx}')
        for r in al: a(f'v_exp_f32 v{r}, v{r}')
        a(f'v_add_f32 v42, v{ms[0]}, v{ms[1]}')
        a(f'v_add_f32 v43, v{ms[2]}, v{ms[3]}')
        a('v_add_f32 v42, v42, v43')
        a('v_mul_f32 v42, 0.5, v42')
        for r in xs: a(f'v_add_f32 v42, v42, v{r}')
        for sw in ('16', '32'):
            a('v_mov_b32 v41, v42')
            a(f'v_permlane{sw}_swap_b32 v42, v41')
            a('v_add_f32 v42, v42, v41')
        a('v_rcp_f32 v42, v42')
        for r in al: a(f'v_mul_f32 v{r}, v{r}, v42')
        o = 44 + 8 * tt
        for k in range(len(xs) // 2): a(f'v_cvt_pk_bf16_f32 v{o+k}, v{xs[2*k]}, v{xs[2*k+1]}')
        if tt == 0:
            a(f'v_mov_b32 v{o+2}, 0'); a(f'v_mov_b32 v{o+3}, 0')
        a(f'v_cvt_pk_bf16_f32 v{o+4}, v{ms[0]}, v{ms[1]}')
        a(f'v_cvt_pk_bf16_f32 v{o+5}, v{ms[2]}, v{ms[3]}')
        for k in range(6): a(f'v_min_u32 v{o+k}, -2, v{o+k}')
        a(f'buffer_store_dwordx4 v[{o}:{o+3}], v2, {WS}, s26 offen {st}')
        a('s_mov_b64 exec, s[50:51]')
        a(f'buffer_store_dwordx2 v[{o+4}:{o+5}], v2, {WS}, s27 offen {st}')
        a('s_mov_b64 exec, -1')
        if tt == 0:
            a(f's_add_u32 s26, s26, {PT_B}')
            a(f's_add_u32 s27, s27, {PT_B}')
    if sync:
        a(f's_lshl_b32 s25, {seg_s}, 7')
        a(f's_add_u32 s25, s25, {CNT_OFF + PTC}')
        a('v_mov_b32 v5, 1')
        a('v_mov_b32 v6, 0')
        ev(a, 2)
        a('s_waitcnt vmcnt(0)')
        ev(a, 3)
        a('s_mov_b64 exec, 1')
        a(f'buffer_atomic_add v5, v6, {WS}, s25 offen')
        a('s_mov_b64 exec, -1')

def toko_body(a, seg_s, vq_s, ld='', sync=None, OUT='s[12:15]'):
    a(f's_lshl_b32 s20, {vq_s}, 2')
    a('s_add_u32 s20, s20, s16')
    a('s_mul_i32 s24, s20, 65')
    a(f's_add_u32 s24, s24, {seg_s}')
    a('s_lshl_b32 s24, s24, 13')
    a(f's_add_u32 s24, s24, {T2_OFF + 8*KB}')
    a('s_lshl_b32 s21, s20, 6')
    a(f's_add_u32 s21, s21, {seg_s}')
    a(f's_mul_i32 s21, s21, {GSH_B}')
    a(f's_add_u32 s21, s21, {VO_OFF}')
    a(f's_lshl_b32 s25, {seg_s}, 1')
    a(f's_mul_i32 s25, s25, {PT_B}')
    a(f's_add_u32 s25, s25, {PT_OFF}')
    a('v_lshrrev_b32 v8, 5, v1')
    a('v_and_b32 v9, 31, v1')
    a('v_min_u32 v5, 27, v9')
    a('v_mad_u32_u24 v5, v8, 28, v5')
    a('v_lshlrev_b32 v5, 4, v5')
    a('v_lshrrev_b32 v10, 4, v9')
    a('v_lshlrev_b32 v7, 10, v10')
    a('v_lshl_add_u32 v7, v4, 4, v7')
    a('v_lshl_add_u32 v7, v8, 3, v7')
    a(f'v_mul_u32_u24 v6, {PT_B}, v10')
    a('v_lshl_add_u32 v6, v8, 8, v6')
    a('v_lshl_add_u32 v6, v4, 4, v6')
    VA = 0; T2R = 28; PR = 128
    a(f's_lshr_b32 s26, {seg_s}, 3')
    a('s_lshl_b32 s26, s26, 4')
    a('s_add_u32 s26, s26, s20')
    a('s_lshl_b32 s26, s26, 7')
    a(f's_add_u32 s26, s26, {CNT_OFF + VOC}')
    wait_eq(a, sync + '_wv', 's26', 56, sync + '_abort')
    for h in range(16):
        if h % 2 == 0: a(f's_add_u32 s22, s21, {h*1792}')
        for kh in range(2):
            r = VA + 8 * h + 4 * kh
            a(f'buffer_load_dwordx4 a[{r}:{r+3}], v5, {WS}, s22 offen offset:{(h & 1)*1792 + kh*896} {ld}')
    a(f's_cmp_ge_u32 {seg_s}, {LASTP}')
    a(f's_cbranch_scc1 {sync}_lm')
    a(f's_lshl_b32 s26, {seg_s}, 7')
    a(f's_add_u32 s26, s26, {CNT_OFF + PTC}')
    wait_eq(a, sync + '_wp', 's26', 16, sync + '_abort', sleep=2)
    a(f's_branch {sync}_lp')
    a.label(sync + '_lm')
    a(f's_mul_i32 s26, {seg_s}, {7*KB}')
    a(f's_add_u32 s26, s26, {MEMG_OFF}')
    wait_eq(a, sync + '_wm', 's26', -1, sync + '_abort', sleep=2, ne=True)
    a.label(sync + '_lp')
    ev(a, 5)
    a(f's_mul_i32 s26, s16, {10*KB}')
    a('s_add_u32 s27, s25, s26')
    a('v_add_u32 v11, s26, v2')
    a('s_lshl_b32 s26, s20, 6')
    a(f's_add_u32 s26, s26, {seg_s}')
    a('s_lshl_b32 s26, s26, 4')
    a(f's_add_u32 s26, s26, {CNT_OFF + T2F}')
    a('v_lshlrev_b32 v60, 2, v3')
    a('s_mov_b32 s30, 0')
    a.label(sync + '_pl')
    for f in range(10):
        if f % 4 == 0: a(f's_add_u32 s22, s27, {f*1024}')
        a(f'buffer_load_dwordx4 v[{PR+4*f}:{PR+4*f+3}], v2, {WS}, s22 offen offset:{(f & 3)*1024} sc1')
    a(f'buffer_load_dword v61, v60, {WS}, s26 offen sc1')
    a('s_waitcnt vmcnt(1)')
    a(f'v_max_u32 v62, v{PR}, v{PR+1}')
    for r in range(PR + 2, PR + 40, 2): a(f'v_max3_u32 v62, v62, v{r}, v{r+1}')
    a('v_cmp_eq_u32 vcc, -1, v62')
    a(f's_cbranch_vccz {sync}_pk')
    a('s_add_u32 s30, s30, 1')
    a(f's_cmp_lt_u32 s30, {WAIT_LIMIT}')
    a(f's_cbranch_scc1 {sync}_pl')
    a(f's_branch {sync}_abort')
    a.label(sync + '_pk')
    for f in range(10): a(f'ds_write_b128 v11, v[{PR+4*f}:{PR+4*f+3}] offset:{f*1024}')
    def t2l():
        for hq in range(4):
            if hq % 2 == 0: a(f's_add_u32 s22, s24, {hq*2048}')
            for kh in range(2):
                r = T2R + 8 * hq + 4 * kh
                for pc in range(2):
                    a(f'buffer_load_dwordx2 v[{r+2*pc}:{r+2*pc+1}], v7, {WS}, s22 offen offset:{(hq & 1)*2048 + kh*256 + pc*512} {ld}')
    a('s_waitcnt vmcnt(0)')
    a('v_cmp_ne_u32 vcc, 1, v61')
    a('s_mov_b32 s28, 0')
    a(f's_cbranch_vccnz {sync}_nt')
    t2l()
    a('s_mov_b32 s28, 1')
    a.label(sync + '_nt')
    a(f'buffer_load_dword v250, v251, {PEEK}, 0 offen sc1')
    ev(a, 4)
    a('s_waitcnt lgkmcnt(0)')
    a('s_barrier')
    a(f'buffer_load_dword v61, v60, {WS}, s26 offen sc1')
    ACC = 12; RG = 64
    def rd(i): a(f'ds_read_b128 v[{RG+4*(i&7)}:{RG+4*(i&7)+3}], v6 offset:{i*512}')
    for i in range(6): rd(i)
    for i in range(40):
        if i == T2MID:
            a('s_cmp_lg_u32 s28, 0')
            a(f's_cbranch_scc1 {sync}_h2')
            a('s_waitcnt vmcnt(0)')
            a('v_cmp_ne_u32 vcc, 1, v61')
            a(f's_cbranch_vccnz {sync}_h2')
            t2l()
            a('s_mov_b32 s28, 1')
            a.label(sync + '_h2')
        if i == 32:
            a('s_cmp_lg_u32 s28, 0')
            a(f's_cbranch_scc1 {sync}_ht')
            wait_eq(a, sync + '_wt', 's26', 1, sync + '_abort', four=True, sleep=1)
            t2l()
            a.label(sync + '_ht')
        if i + 6 < 40: rd(i + 6)
        a(f's_waitcnt lgkmcnt({min(6, 39 - i)})' + (' vmcnt(0)' if i == 32 else ''))
        A_ = f'a[{VA+4*i}:{VA+4*i+3}]' if i < 32 else f'v[{T2R+4*(i-32)}:{T2R+4*(i-32)+3}]'
        a(f'v_mfma_f32_32x32x16_bf16 v[{ACC}:{ACC+15}], {A_}, v[{RG+4*(i&7)}:{RG+4*(i&7)+3}], ' + ('0' if i == 0 else f'v[{ACC}:{ACC+15}]'))
    ev(a, 6)
    a('v_mul_u32_u24 v9, 1792, v9')
    a('v_lshl_add_u32 v8, v8, 3, v9')
    a(f's_mul_i32 s26, {seg_s}, {32*1792}')
    a('s_mul_i32 s22, s20, 56')
    a('s_add_u32 s26, s26, s22')
    a('s_add_u32 s26, s26, 896')
    for jj in range(4):
        d = ACC + 4 * jj; o = 96 + 2 * jj
        a(f'v_cvt_pk_bf16_f32 v{o}, v{d}, v{d+1}')
        a(f'v_cvt_pk_bf16_f32 v{o+1}, v{d+2}, v{d+3}')
        if jj == 3: a('s_mov_b32 exec_hi, 0')
        a(f'buffer_store_dwordx2 v[{o}:{o+1}], v8, {OUT}, s26 offen offset:{16*jj}')
    a('s_mov_b64 exec, -1')

def gen_tok(which):
    name = f'tok{which}_kernel'
    a = Asm(); a.raw(kernel_header(name))
    common(a, f't{which}_end')
    a('s_lshr_b32 s17, s2, 2')
    a('s_and_b32 s18, s2, 3')
    if which == 'p': tokp_body(a, 's17', 's18')
    else: toko_body(a, 's17', 's18')
    a.label(f't{which}_end')
    a('s_endpgm')
    return a
```

```python
from asmlib import *
from layout import *

SRD = 's[8:11]'; DBG = 's[12:15]'
SPIN_LIMIT = 400000
SLOW_LIMIT = 50000
NSTEPS = 64
STAMPS = False
STAMP_STEP = 32
STAMP_CYC = 0
STEPLOG = 0
STAMP_OFF = 100 * 1024 * 1024
POLL_DEPTH = 3
POLL_GAP = 0
SC_SLEEP = 0
M_GAP = 4
SC_DELAY = 0
F1_POS = 11
F2_POS = 4
VA_DELAY = 0
VO_POS = 1
P_GAP = 5
ZFILL = 1
SC_ALLPOLL = 0
FOLDW = 1
NANCHK = 1
VO_PRE0 = 0
VO_PRE = 16
VO_SLEEP = 0
F1_WAVE = 2
RB1_DELAY = 0
EC_M = 0
EC_P = 0
DIAG = 0
T2SRV = 1
SLOW_FIRST = 0
B2_POS = 0
M_ROT = 0
CODE_PF = 1
PUB_EARLY = 0
HLP_SLEEP = 0
MERGE = 0
A_TGT = 28
B_TGT = 64
SELF_POISON = 0
X_PRELOAD = 0
VO_NT = 0
FIN_SLEEP = 0
VM_BURST = 0
PUBLISH = 1
VM_EVERY = 2
PUB_FIRST = 1
VO_EARLY = 0
FLAG_SLEEP = 0
SYNC = 0
XCD_SEL = 0
NOBULK = 0
VAL_TOUCH = 0
SC_TOUCH = 0
TOUCH_POS = 2
TOUCH_AHEAD = 2
DMA_DELAY = 0
PLAIN_M = 1
MRG = 1
T2DF = 0
T2DH = 0
NOT2 = 0
ECP = 0
ALIGN = 6
APAD = 0
FAST = 1
EPI2 = 1
F2ONE = 0
SELF = 0
BDEP = None
R1 = 16
R2 = 32
PD_S = 5
PG_S = 8
PD_V = 5
PG_V = 8
PD_H = 3
PG_H = 0
VST = 0
VSM = 1
NPP = 10
VZ = 3
NPRE = 3
LPOS = 1
PLAIN_P = 1
D = 'row_mask:0xf bank_mask:0xf'
XSEG_B = 28 * KB

def stamp(a, k):
    if STAMPS: a(f'{"s_memtime" if STAMP_CYC else "s_memrealtime"} s[{40+2*k}:{41+2*k}]')
def stamp_flush(a, path, n, lbl, t=118):
    if not STAMPS: return
    a(f's_cmp_lg_u32 s19, {STAMP_STEP}')
    a(f's_cbranch_scc1 {lbl}')
    a('s_waitcnt lgkmcnt(0)')
    a(f's_lshl_b32 s22, s17, 9')
    a(f's_add_u32 s22, s22, {STAMP_OFF + path * 64}')
    a(f'v_mov_b32 v{t}, 0')
    for k in range(n):
        a(f'v_mov_b32 v{t+1}, s{40+2*k}')
        a(f'buffer_store_dword v{t+1}, v{t}, {SRD}, s22 offen offset:{4*k}')
    a.label(lbl)

EVLOG = 0
EV_OFF = 101 * 1024 * 1024
def evlog(a, tag, t=36):
    if not EVLOG: return
    a('s_memrealtime s[98:99]')
    a('s_waitcnt lgkmcnt(0)')
    a(f'v_mov_b32 v{t}, {tag}')
    a(f'v_mov_b32 v{t+1}, s98')
    a('s_mov_b64 exec, 1')
    a(f'buffer_store_dwordx2 v[{t}:{t+1}], off, {SRD}, s100')
    a('s_mov_b64 exec, -1')
    a('s_add_u32 s100, s100, 8')

def exec_lo(a, R):
    if R == 32: a('s_mov_b32 exec_hi, 0')
    else: a(f's_mov_b64 exec, {(1 << R) - 1}')

def spin(a, back, abort):
    a('s_add_u32 s30, s30, 1')
    a(f's_cmp_lt_u32 s30, {SPIN_LIMIT}')
    a(f's_cbranch_scc1 {back}')
    a(f's_branch {abort}')

def flagpoll(a, vaddr, sbase, regs, lbl, abort, Dp=None, gap=None, issued=0):
    Dp = Dp or POLL_DEPTH
    gap = POLL_GAP if gap is None else gap
    for i in range(issued, Dp):
        a(f'buffer_load_dword v{regs+i}, v{vaddr}, {SRD}, {sbase} offen sc1')
        if i < Dp - 1: a.nop(gap)
    a.label(lbl + '_l')
    for i in range(Dp):
        a(f's_waitcnt vmcnt({Dp-1})')
        a(f'v_cmp_eq_u32 vcc, -1, v{regs+i}')
        a(f's_cbranch_vccz {lbl}_d')
        a(f'buffer_load_dword v{regs+i}, v{vaddr}, {SRD}, {sbase} offen sc1')
    spin(a, lbl + '_l', abort)
    a.label(lbl + '_d')

def load_M(a, M, gap=0, k0=0):
    for ks in range(k0, 7):
        so = 's20' if ks < 4 else 's23'
        a(f'buffer_load_dwordx4 v[{M+4*ks}:{M+4*ks+3}], v2, {SRD}, {so} offen offset:{(ks & 3) * 1024} sc1')
        if gap and ks < 3: a.nop(gap)

def load_units(a, units, base, tmp_s='s22'):
    cur = None; n = 0
    for off, reg in units:
        for hb in range(2):
            o = off + hb * 1024
            blk = o // 4096 * 4096
            if blk != cur:
                a(f's_add_u32 {tmp_s}, {base}, {blk}'); cur = blk
            a(f'buffer_load_dwordx4 {ureg(reg + 4 * hb, 4)}, v2, {SRD}, {tmp_s} offen offset:{o - blk}' + (' sc1' if MERGE else ''))
            n += 1
            if n % 32 == 0: a('s_waitcnt vmcnt(24)')

def wreg(ti, ks):
    u = ti * 7 + ks
    return 256 + 8 * u if u < 32 else 120 + 8 * (u - 32)

def lane_consts(a):
    a('v_and_b32 v1, 63, v0')
    a('v_lshlrev_b32 v2, 4, v1')
    a('v_lshrrev_b32 v116, 4, v1')
    a('v_and_b32 v117, 15, v1')
    a('v_mov_b32 v3, 0x4444')
    a('v_mov_b32 v118, 0xeeee')
    a('v_cmp_lt_u32 vcc, 7, v117')
    a('v_cndmask_b32 v3, v3, v118, vcc')

def step_bases(a):
    a('s_add_u32 s23, s20, 4096')
    a(f's_add_u32 s21, s20, {EXCH_B}')

class Checker:
    def __init__(self, a, acc): self.a = a; self.acc = acc; self.q = []; self.first = True
    def add(self, r, n=4): self.q += list(range(r, r + n))
    def emit(self, k=1):
        for _ in range(k):
            if self.first and len(self.q) >= 3:
                x, y, z = self.q[:3]; self.q = self.q[3:]
                self.a(f'v_max3_u32 v{self.acc}, v{x}, v{y}, v{z}'); self.first = False
            elif len(self.q) >= 2:
                x, y = self.q[:2]; self.q = self.q[2:]
                self.a(f'v_max3_u32 v{self.acc}, v{self.acc}, v{x}, v{y}')
            elif len(self.q) == 1:
                self.a(f'v_max_u32 v{self.acc}, v{self.acc}, v{self.q[0]}'); self.q = []
    def drain(self):
        while self.q: self.emit()

XP = 2 * XSEG_B
MP = XP + 8 * KB
def score_tiles(w):
    return [(w, 0), (w, 1), (w, 2), (w, 3), (4 + (w >> 1), 2 * (w & 1)), (4 + (w >> 1), 2 * (w & 1) + 1), (6, w)]

def x_dma(a, w):
    a(f's_add_u32 m0, s25, {7*w*1024}')
    for f in range(7):
        if f == 4:
            a(f's_add_u32 m0, s25, {7*w*1024 + 4096}')
            a('s_add_u32 s22, s24, 4096')
        a(f'buffer_load_dwordx4 v2, {SRD}, {"s24" if f < 4 else "s22"} offen offset:{(f & 3) * 1024}' + (' sc1' if MERGE else '') + ' lds')

def gen_score(a, w, st, tag):
    L = lambda n: f'{tag}_sc{w}_{n}'
    ABORT = f'{tag}_abort'
    M = 8; ACC = 36; AOP = 64; TR = 68; BOP6 = 76; BOPB = 80; BOPA = 60; SACC = 84; SX = 88
    XS = [96, 104, [12, 16, 8, 8][w], 52, 36]
    ka, kb = w, 4 + (w >> 1)
    half6, piece6, pieceP = w & 1, w >> 1, w & 1
    def S(ti, ks):
        return f'v_smfmac_f32_16x16x64_bf16 v[{ACC+4*ti}:{ACC+4*ti+3}], v[{M+4*ks}:{M+4*ks+3}], {ureg(wreg(ti, ks), 8)}, v3'
    def cvt(dst, src):
        return [f'v_cvt_pk_bf16_f32 v{dst}, v{src}, v{src+1}', f'v_cvt_pk_bf16_f32 v{dst+1}, v{src+2}, v{src+3}']
    def T(dst): return f'v_mfma_f32_16x16x32_bf16 v[{dst}:{dst+3}], v[{AOP}:{AOP+3}], v[4:7], 0'
    def xrd(buf, kap, tt):
        off = (tt * 14 + 2 * kap) * 1024
        return [f'ds_read_b128 v[{XS[buf]}:{XS[buf]+3}], v116 offset:{off}', f'ds_read_b128 v[{XS[buf]+4}:{XS[buf]+7}], v116 offset:{off+1024}']
    def xrd2(buf, tt):
        return [f'ds_read_b128 v[{XS[buf]}:{XS[buf]+3}], v117 offset:{tt*14*KB}', f'ds_read_b128 v[{XS[buf]+4}:{XS[buf]+7}], v117 offset:{tt*14*KB+1024}']
    xfirst = (lambda: xrd2(0, 0) + xrd2(1, 1)) if MRG else (lambda: xrd(0, 6, 0) + xrd(1, 6, 1))
    def Smm(kap, b, first=False):
        c = '0' if first else f'v[{SACC}:{SACC+3}]'
        return f'v_mfma_f32_16x16x32_bf16 v[{SACC}:{SACC+3}], v[{M+4*kap}:{M+4*kap+3}], v[{b}:{b+3}], {c}'
    def Sx(tt, b, buf):
        return f'v_smfmac_f32_16x16x64_bf16 v[{SX+4*tt}:{SX+4*tt+3}], v[{b}:{b+3}], v[{XS[buf]}:{XS[buf]+7}], v3'
    ZR = list(range(ACC, ACC + 28)) + list(range(SX, SX + 8)) + [AOP + 2 - 2 * half6, AOP + 3 - 2 * half6]
    def zero(lo=0, hi=99):
        for r in ZR[lo:hi]: a(f'v_mov_b32 v{r}, 0')
    o1 = [(k + w) % 4 for k in range(4)] if M_ROT else [0, 1, 2, 3]
    o2 = [4 + (k + w) % 3 for k in range(3)] if M_ROT else [4, 5, 6]
    def ml(ks, first=False):
        a(f'buffer_load_dwordx4 v[{M+4*ks}:{M+4*ks+3}], v2, {SRD}, {"s20" if ks < 4 else "s23"} offen offset:{(ks & 3) * 1024}' + ('' if first and PLAIN_M and st == '' else ' sc1'))
    if ALIGN: a.raw(f'.p2align {ALIGN}\n' + '  s_nop 0\n' * APAD)
    a.label(L('loop'))
    step_bases(a)
    zero(3 * M_GAP if ZFILL else 0)
    a('s_mov_b32 s30, 0')
    if NANCHK: a('s_mov_b32 s62, 0')
    if SC_ALLPOLL:
        a('s_waitcnt vmcnt(0)')
        a('s_barrier')
        if SC_SLEEP: a(f's_sleep {SC_SLEEP}')
        flagpoll(a, 117, 's20', TR, L('fp'), ABORT)
        stamp(a, 0)
    else:
        if w == 0:
            if SC_SLEEP: a(f's_sleep {SC_SLEEP}')
            flagpoll(a, 0, 's20', TR, L('fp'), ABORT, PD_S, PG_S)
            if SC_DELAY: a.nop(SC_DELAY)
            ml(o1[0], True)
            a('s_barrier')
            stamp(a, 0)
            a(f's_branch {L("ld1")}')
        else:
            a('s_waitcnt vmcnt(0)')
            stamp(a, 7)
            a('s_barrier')
            stamp(a, 0)
    a.label(L('ld'))
    ml(o1[0], NANCHK)
    if w == 0: a.label(L('ld1'))
    order = o1 + o2
    for i, ks in enumerate(order[1:NPRE]):
        if i < 3:
            if ZFILL: zero(i * M_GAP, (i + 1) * M_GAP)
            else: a.nop(M_GAP)
        ml(ks, NANCHK)
    if ZFILL and NPRE < 4: zero((NPRE - 1) * M_GAP, 3 * M_GAP)
    if NANCHK and NPRE == 7: a.label(L('ld2'))
    for x in xfirst(): a(x)
    ck = Checker(a, 118)
    issued = NPRE
    late = order[NPRE:]
    for i, ks in enumerate(o1):
        a(f's_waitcnt vmcnt({issued-1-i})')
        if i < EC_M:
            a.label(L(f'e{i}'))
            r = M + 4 * ks
            a(f'v_max3_u32 v{TR}, v{r}, v{r+1}, v{r+2}')
            a(f'v_max_u32 v{TR}, v{TR}, v{r+3}')
            a(f'v_cmp_eq_u32 vcc, -1, v{TR}')
            a(f's_cbranch_vccnz {L(f"er{i}")}')
        elif not NANCHK: ck.add(M + 4 * ks)
        if i == 0: stamp(a, 1)
        for ti in range(7):
            a(S(ti, ks))
            if ti in (1, 3): ck.emit()
            if late and ti in ((LPOS, LPOS + 3) if LPOS < 4 else (LPOS - 4,)):
                ml(late.pop(0), NANCHK); issued += 1
    assert not late
    a('s_waitcnt vmcnt(0)')
    if NPRE < 7: a.label(L('ph2'))
    stamp(a, 2)
    for k in (4, 5, 6):
        if not NANCHK: ck.add(M + 4 * k)
    seq = []
    for ti in (6, 4, 5, 0, 1, 2, 3):
        for ks in (4, 5, 6): seq.append([S(ti, ks), []])
    def side(i, ops): seq[i][1] += ops
    CK = 'CK'
    for i in range(6): side(i, [CK])
    if MRG:
        M2 = 80
        side(0, xrd(2, ka, 0))
        if (w == 1 or w == 2): side(1, [f'buffer_load_dword v119, v0, {SRD}, {"s20" if w == 1 else "s24"} offen sc1'])
        mv = [f'v_mov_b32 v{M2+k}, v{M+4*kb+2*pieceP+k}' for k in range(2)] + [f'v_mov_b32 v{M2+2+k}, v{M+24+2*piece6+k}' for k in range(2)]
        side(2, mv[:1]); side(3, mv[1:2]); side(4, mv[2:3]); side(7, mv[3:])
        c6 = cvt(AOP + 2 * half6, ACC + 24)
        side(5, c6[:1]); side(6, c6[1:])
        seq.insert(8, [T(TR), []])
        cb6 = cvt(BOP6 + 2, TR)
        side(11, cb6[:1]); side(12, cb6[1:])
        c4, c5 = cvt(AOP, ACC + 16), cvt(AOP + 2, ACC + 20)
        side(9, c4[:1]); side(10, c4[1:]); side(12, c5[:1]); side(13, c5[1:])
        seq.insert(15, [T(TR + 4), xrd(3, ka, 1)])
        c0, c1 = cvt(AOP, ACC), cvt(AOP + 2, ACC + 4)
        side(16, c0[:1]); side(17, c0[1:])
        cbb = cvt(BOP6, TR + 4)
        side(18, cbb[:1]); side(19, cbb[1:] + c1[:1]); side(20, c1[1:])
        seq.insert(22, [T(TR), []])
        c2, c3 = cvt(AOP, ACC + 8), cvt(AOP + 2, ACC + 12)
        side(23, c2[:1])
        seq.append([f'v_mfma_f32_16x16x32_bf16 v[{SACC}:{SACC+3}], v[{M2}:{M2+3}], v[{BOP6}:{BOP6+3}], 0', c2[1:] + ['s_waitcnt lgkmcnt(0)']])
        ca0 = cvt(BOPA, TR)
        seq.append([Sx(0, BOP6, 0), ca0 + c3])
        seq.append([T(TR + 4), []])
        seq.append([Sx(1, BOP6, 1), cvt(BOPA + 2, TR + 4)])
        seq.append([Smm(ka, BOPA), []])
        seq.append([Sx(0, BOPA, 2), []])
        seq.append([Sx(1, BOPA, 3), []])
    else:
        side(0, xrd(2, kb, 0))
        if SC_TOUCH: side(TOUCH_POS, [f'buffer_load_dword v119, v117, {SRD}, s35 offen sc1'])
        if not VAL_TOUCH and ((w == 1 and not SELF_POISON) or (w == 2 and not X_PRELOAD)): side(TOUCH_POS - 1, [f'buffer_load_dword v119, v0, {SRD}, {"s20" if w == 1 else "s24"} offen sc1'])
        c6 = cvt(AOP + 2 * half6, ACC + 24)
        side(5, c6[:1]); side(6, c6[1:] + ['v_cmp_eq_u32 vcc, -1, v118'])
        seq.insert(8, [T(TR), []])
        side(9, [f's_cbranch_vccnz {L("retry")}'])
        cb6 = cvt(BOP6 + 2 * piece6, TR)
        side(11, cb6[:1]); side(12, cb6[1:])
        c4, c5 = cvt(AOP, ACC + 16), cvt(AOP + 2, ACC + 20)
        side(9, c4[:1]); side(10, c4[1:]); side(12, c5[:1]); side(13, c5[1:])
        seq.insert(15, [T(TR + 4), xrd(3, kb, 1)])
        c0, c1 = cvt(AOP, ACC), cvt(AOP + 2, ACC + 4)
        side(16, c0[:1]); side(17, c0[1:])
        cbb = cvt(BOPB + 2 * pieceP, TR + 4)
        side(18, cbb[:1]); side(19, cbb[1:] + c1[:1]); side(20, c1[1:])
        seq.insert(22, [T(TR), xrd(4, ka, 0)])
        c2, c3 = cvt(AOP, ACC + 8), cvt(AOP + 2, ACC + 12)
        side(23, ['s_waitcnt lgkmcnt(4)'] + c2[:1])
        seq.append([Smm(6, BOP6, True), c2[1:]])
        seq.append([Sx(0, BOP6, 0), xrd(0, ka, 1)])
        ca0 = cvt(BOPA, TR)
        seq.append([Sx(1, BOP6, 1), c3])
        seq.append([Smm(kb, BOPB), ca0[:1]])
        seq.append([T(TR + 4), ca0[1:] + ['s_waitcnt lgkmcnt(4)']])
        seq.append([Sx(0, BOPB, 2), []])
        seq.append([Sx(1, BOPB, 3), ['s_waitcnt lgkmcnt(0)'] + cvt(BOPA + 2, TR + 4)])
        if FOLDW:
            seq.append([Smm(ka, BOPA), []])
            seq.append([Sx(0, BOPA, 4), []])
            seq.append([Sx(1, BOPA, 0), []])
        else:
            seq.append([Sx(0, BOPA, 4), []])
            seq.append([Sx(1, BOPA, 0), []])
            seq.append([Smm(ka, BOPA), []])
    for m, ops in seq:
        a(m)
        for o in ops:
            if o == CK: ck.emit()
            elif NANCHK and (o.startswith('v_cmp') or o.startswith('s_cbranch')): pass
            else:
                if o.startswith('v_cmp'): ck.drain()
                a(o)
    if FOLDW:
        a('s_mov_b64 exec, s[26:27]')
        a(f'ds_write_b128 v113, v[{SACC}:{SACC+3}]')
        a('s_mov_b64 exec, -1')
        a(f'v_cmp_u_f32 vcc, v{SX}, v{SX+1}')
        for r in range(4): a(f'v_permlane32_swap_b32 v{SX+r}, v{SX+4+r}')
        for r in range(4): a(f'v_add_f32 v{SX+r}, v{SX+r}, v{SX+4+r}')
        a(f'ds_write_b128 v112, v[{SX}:{SX+3}]')
    else:
        a(f'ds_write_b128 v112, v[{SX}:{SX+3}]')
        if NANCHK: a(f'v_cmp_u_f32 vcc, v{SX}, v{SX+1}')
        a(f'ds_write_b128 v112, v[{SX+4}:{SX+7}] offset:256')
        a('s_mov_b64 exec, s[26:27]')
        a(f'ds_write_b128 v113, v[{SACC}:{SACC+3}]')
        a('s_mov_b64 exec, -1')
    if NANCHK:
        a(f's_cbranch_vccnz {L("retry")}')
        a.label(L('cont'))
    stamp(a, 3)
    a('s_waitcnt lgkmcnt(0)')
    a('s_barrier')
    stamp(a, 4)
    t = ACC
    for k in range(2 if FOLDW else 4): a(f'ds_read_b64 v[{t+2*k}:{t+2*k+1}], v114 offset:{k*1024}')
    a(f'ds_read2_b32 v[{t+8}:{t+9}], v115 offset0:0 offset1:64')
    if w == F1_WAVE: a(f'v_lshl_add_u32 v{t+20}, v2, 3, s36')
    def f1(pos):
        if w == F1_WAVE and pos == F1_POS:
            exec_lo(a, R1)
            a(f'buffer_store_dword v2, v{t+20}, {SRD}, s20 offen {st}')
            a('s_mov_b64 exec, -1')
    if F1_POS < 0 and w == F1_WAVE:
        a.nop(4 * (F1_POS + 4)); f1(F1_POS)
    a('s_waitcnt lgkmcnt(0)')
    f1(0)
    stamp(a, 5)
    sm, sx = t + 8, t
    a(f'v_add_f32 v{sm}, v{t+8}, v{t+9}')
    a(f'v_add_f32 v{t}, v{t}, v{t+2}')
    a(f'v_add_f32 v{t+1}, v{t+1}, v{t+3}')
    f1(10)
    a(f'v_add_f32_dpp v{sm}, v{sm}, v{sm} row_ror:8 {D}')
    if FOLDW:
        a(f'v_mov_b32 v{t+9}, v{sm}')
        f1(11)
        a(f'v_permlane32_swap_b32 v{t}, v{t+1}')
        a(f'v_add_f32 v{sx}, v{t}, v{t+1}')
        f1(12)
        a(f'v_permlane16_swap_b32 v{sm}, v{t+9}')
        a(f'v_add_f32 v{sm}, v{sm}, v{t+9}')
        f1(13)
    else:
        a(f'v_add_f32 v{t+4}, v{t+4}, v{t+6}')
        a(f'v_add_f32 v{t+5}, v{t+5}, v{t+7}')
        a(f'v_mov_b32 v{t+9}, v{sm}')
        a(f'v_add_f32 v{t}, v{t}, v{t+4}')
        a(f'v_add_f32 v{t+1}, v{t+1}, v{t+5}')
        a(f'v_permlane16_swap_b32 v{sm}, v{t+9}')
        a(f'v_add_f32 v{sm}, v{sm}, v{t+9}')
        a(f'v_permlane32_swap_b32 v{t}, v{t+1}')
        a(f'v_add_f32 v{sx}, v{t}, v{t+1}')
    if FAST:
        ex, em, ab = t + 12, t + 13, t + 14
        l = t + 3; u = t + 4; v = t + 5; lo = t + 6; hi = t + 7
        def norm(fast):
            a(f'v_fma_f32 v{l}, v{em}, s37, v{ex}')
            if fast: a(f'v_cmp_ngt_f32 vcc, s56, v{ab}')
            a(f'v_cndmask_b32 v{v}, v{ex}, v{em}, s[38:39]')
            a(f'v_add_f32_dpp v{l}, v{l}, v{l} quad_perm:[1,0,3,2] {D}')
            a(f'v_cndmask_b32 v{u}, v{em}, v{ex}, s[38:39]')
            a(f'v_mov_b32_dpp v{t+10}, v{v} quad_perm:[1,0,3,2] {D}')
            a(f'v_add_f32_dpp v{l}, v{l}, v{l} quad_perm:[2,3,0,1] {D}')
            a(f'v_cndmask_b32 v{lo}, v{t+10}, v{u}, s[38:39]')
            a(f'v_cndmask_b32 v{hi}, v{u}, v{t+10}, s[38:39]')
            a(f'v_add_f32_dpp v{l}, v{l}, v{l} row_half_mirror {D}')
            if fast: a(f's_cbranch_vccnz {L("slow")}')
            a(f'v_add_f32_dpp v{l}, v{l}, v{l} row_mirror {D}')
            a(f'v_mov_b32 v{t+11}, v{l}')
            a(f'v_permlane16_swap_b32 v{l}, v{t+11}')
            a(f'v_add_f32 v{l}, v{l}, v{t+11}')
            a(f'v_rcp_f32 v{l}, v{l}')
            a('s_mov_b64 exec, s[28:29]')
            a(f'v_mul_f32 v{lo}, v{lo}, v{l}')
            a(f'v_mul_f32 v{hi}, v{hi}, v{l}')
            a(f'v_cvt_pk_bf16_f32 v{lo}, v{lo}, v{hi}')
        a(f'v_exp_f32 v{ex}, v{sx}')
        a(f'v_exp_f32 v{em}, v{sm}')
        a(f'v_add_f32 v{ab}, abs(v{sx}), abs(v{sm})')
        f1(1)
        norm(True)
        a.label(L('pst'))
    else:
        mx = t + 2
        a(f'v_max_f32 v{mx}, v{sx}, v{sm}')
        f1(1)
        a(f'v_max_f32_dpp v{mx}, v{mx}, v{mx} quad_perm:[1,0,3,2] {D}')
        a(f'v_max_f32_dpp v{mx}, v{mx}, v{mx} quad_perm:[2,3,0,1] {D}')
        a(f'v_max_f32_dpp v{mx}, v{mx}, v{mx} row_half_mirror {D}')
        a(f'v_max_f32_dpp v{mx}, v{mx}, v{mx} row_mirror {D}')
        a(f'v_mov_b32 v{t+3}, v{mx}')
        a(f'v_permlane16_swap_b32 v{mx}, v{t+3}')
        a(f'v_max_f32 v{mx}, v{mx}, v{t+3}')
        f1(2)
        a(f'v_sub_f32 v{sx}, v{sx}, v{mx}')
        a(f'v_sub_f32 v{sm}, v{sm}, v{mx}')
        a(f'v_exp_f32 v{sx}, v{sx}')
        a(f'v_exp_f32 v{sm}, v{sm}')
        l = t + 3; u = t + 4; v = t + 5; lo = t + 6; hi = t + 7
        a(f'v_fma_f32 v{l}, v{sm}, s37, v{sx}')
        a(f'v_cndmask_b32 v{u}, v{sm}, v{sx}, s[38:39]')
        a(f'v_cndmask_b32 v{v}, v{sx}, v{sm}, s[38:39]')
        a(f'v_add_f32_dpp v{l}, v{l}, v{l} quad_perm:[1,0,3,2] {D}')
        a(f'v_mov_b32_dpp v{t+10}, v{v} quad_perm:[1,0,3,2] {D}')
        a(f'v_add_f32_dpp v{l}, v{l}, v{l} quad_perm:[2,3,0,1] {D}')
        a(f'v_cndmask_b32 v{lo}, v{t+10}, v{u}, s[38:39]')
        a(f'v_cndmask_b32 v{hi}, v{u}, v{t+10}, s[38:39]')
        f1(3)
        a(f'v_add_f32_dpp v{l}, v{l}, v{l} row_half_mirror {D}')
        a(f'v_add_f32_dpp v{l}, v{l}, v{l} row_mirror {D}')
        a(f'v_mov_b32 v{t+11}, v{l}')
        a(f'v_permlane16_swap_b32 v{l}, v{t+11}')
        a(f'v_add_f32 v{l}, v{l}, v{t+11}')
        f1(4)
        a(f'v_rcp_f32 v{l}, v{l}')
        a(f'v_mul_f32 v{lo}, v{lo}, v{l}')
        a(f'v_mul_f32 v{hi}, v{hi}, v{l}')
        a(f'v_cvt_pk_bf16_f32 v{lo}, v{lo}, v{hi}')
        a(f'v_min_u32 v{lo}, -2, v{lo}')
        a('s_mov_b64 exec, s[28:29]')
    a(f'buffer_store_dword v{lo}, v1, {SRD}, s20 offen {st}')
    a('s_mov_b64 exec, -1')
    f1(5)
    stamp(a, 6)
    a('s_barrier')
    if DMA_DELAY: a.nop(DMA_DELAY)
    if not NOBULK: a(f's_add_u32 s24, s24, {XSEG_B}')
    if not NOBULK: a(f's_add_u32 s35, s35, {GSH_B}')
    a(f's_xor_b32 s25, s25, {XSEG_B}')
    x_dma(a, w)
    a(f'v_xor_b32 v116, {XSEG_B}, v116')
    if MRG:
        a('v_add_u32 v117, s57, v117')
        a('s_sub_u32 s57, 0, s57')
    stamp_flush(a, w, 8, L('sf'))
    if STEPLOG and w in (1, 3):
        a('s_memtime s[40:41]' if w == 1 else 's_memrealtime s[40:41]')
        a('s_lshl_b32 s22, s17, 8')
        a('s_lshl_b32 s42, s19, 2')
        a('s_add_u32 s22, s22, s42')
        a(f's_add_u32 s22, s22, {STAMP_OFF + (4096 if w == 3 else 0)}')
        a('v_mov_b32 v118, 0')
        a('s_waitcnt lgkmcnt(0)')
        a('v_mov_b32 v119, s40')
        a(f'buffer_store_dword v119, v118, {SRD}, s22 offen')
    a('s_add_u32 s19, s19, 1')
    a('s_mov_b32 s20, s21')
    a(f's_cmp_lt_u32 s19, {NSTEPS-1}')
    a.flush()
    a(f's_cbranch_scc1 {L("loop")}')
    a(f's_branch {tag}_done')
    for i in range(EC_M):
        a.label(L(f'er{i}'))
        ml(o1[i])
        a('s_waitcnt vmcnt(0)')
        a('s_add_u32 s31, s31, 0x100')
        spin(a, L(f'e{i}'), ABORT)
    if FAST:
        a.label(L('slow'))
        mx = ab
        a(f'v_max_f32 v{mx}, v{sx}, v{sm}')
        for pm in ('quad_perm:[1,0,3,2]', 'quad_perm:[2,3,0,1]', 'row_half_mirror', 'row_mirror'): a(f'v_max_f32_dpp v{mx}, v{mx}, v{mx} {pm} {D}')
        a(f'v_mov_b32 v{t+11}, v{mx}')
        a(f'v_permlane16_swap_b32 v{mx}, v{t+11}')
        a(f'v_max_f32 v{mx}, v{mx}, v{t+11}')
        a(f'v_sub_f32 v{ex}, v{sx}, v{mx}')
        a(f'v_sub_f32 v{em}, v{sm}, v{mx}')
        a(f'v_exp_f32 v{ex}, v{ex}')
        a(f'v_exp_f32 v{em}, v{em}')
        a('s_add_u32 s31, s31, 0x100')
        norm(False)
        a(f'v_min_u32 v{lo}, -2, v{lo}')
        a(f's_branch {L("pst")}')
    a.label(L('retry'))
    if NANCHK:
        a('s_cmp_lg_u32 s62, 0')
        a(f's_cbranch_scc1 {L("cont")}')
        a('s_waitcnt vmcnt(0) lgkmcnt(0)')
        a.label(L('rv'))
        for ks in range(7): ml(ks)
        a('s_waitcnt vmcnt(0)')
        ck2 = Checker(a, 118)
        ck2.add(M, 28); ck2.drain()
        a('v_cmp_eq_u32 vcc, -1, v118')
        a(f's_cbranch_vccz {L("rk")}')
        spin(a, L('rv'), ABORT)
        a.label(L('rk'))
        a('s_mov_b32 s62, 1')
        zero()
        a('s_add_u32 s31, s31, 1')
        if NPRE == 7: a(f's_branch {L("ld2")}')
        else:
            for x in xfirst(): a(x)
            for ks in o1:
                for ti in range(7): a(S(ti, ks))
            a(f's_branch {L("ph2")}')
    else:
        a('s_waitcnt vmcnt(0) lgkmcnt(0)')
        a.nop(10)
        zero()
        a('s_add_u32 s31, s31, 1')
        spin(a, L('ld'), ABORT)

def init_score(a, w):
    AOP = 64
    a(f's_mul_i32 s31, s17, {CUW_B}')
    a(f's_add_u32 s31, s31, {WF_A}')
    units = [((kap * 4 + q) * TILE_B + ks * UNIT, wreg(ti, ks)) for ti, (kap, q) in enumerate(score_tiles(w)) for ks in range(7) if not SELF or ti >= 4]
    load_units(a, units, 's31')
    a(f's_mov_b32 s24, {XF_OFF + 7*w*1024}')
    a('s_mov_b32 s25, 0')
    x_dma(a, w)
    a('v_and_b32 v64, 7, v117')
    a('v_and_b32 v65, 1, v116')
    a('v_lshlrev_b32 v65, 2, v65')
    a('v_sub_u32 v64, v64, v65')
    a('v_lshrrev_b32 v65, 3, v117')
    a('v_lshl_add_u32 v66, v65, 2, v64')
    a('v_cmp_gt_u32 vcc, 4, v64')
    a('v_mov_b32 v67, 99')
    a('v_cndmask_b32 v66, v67, v66, vcc')
    a('v_mov_b32 v68, 0x3f80')
    a('v_mov_b32 v69, 0x3f800000')
    for d in range(4):
        a(f'v_mov_b32 v{4+d}, 0')
        a(f'v_cmp_eq_u32 vcc, {2*d}, v66')
        a(f'v_cndmask_b32 v{4+d}, v{4+d}, v68, vcc')
        a(f'v_cmp_eq_u32 vcc, {2*d+1}, v66')
        a(f'v_cndmask_b32 v{4+d}, v{4+d}, v69, vcc')
    a('v_lshrrev_b32 v64, 1, v116')
    a('v_lshrrev_b32 v65, 3, v117')
    a('v_cmp_eq_u32 s[26:27], v64, v65')
    a('v_and_b32 v66, 1, v116')
    a(f'v_add_u32 v64, {2*w}, v64')
    if FOLDW:
        a('v_lshrrev_b32 v67, 1, v116')
        a('v_lshlrev_b32 v67, 8, v67')
    else: a('v_lshlrev_b32 v67, 10, v64')
    a('v_lshl_add_u32 v67, v66, 9, v67')
    a('v_lshl_add_u32 v67, v117, 4, v67')
    a(f'v_add_u32 v112, {XP + (w*1024 if FOLDW else 0)}, v67')
    a('v_and_b32 v68, 7, v117')
    a('v_lshlrev_b32 v67, 8, v64')
    a('v_lshl_add_u32 v67, v68, 5, v67')
    a('v_lshl_add_u32 v67, v66, 4, v67')
    a(f'v_add_u32 v113, {MP}, v67')
    a('v_lshrrev_b32 v64, 5, v1')
    a('v_and_b32 v65, 31, v1')
    a('v_lshrrev_b32 v66, 3, v65')
    a('v_and_b32 v67, 7, v65')
    a('v_and_b32 v68, 3, v67')
    a('v_lshl_add_u32 v68, v66, 2, v68')
    a('v_lshrrev_b32 v69, 2, v67')
    a('v_lshl_add_u32 v68, v69, 4, v68')
    a(f'v_lshlrev_b32 v69, {11 if FOLDW else 12}, v64')
    a('v_lshl_add_u32 v69, v68, 4, v69')
    a(f'v_add_u32 v114, {XP + (w >> 1) * 512 + 2 * (w & 1) * 4}, v69')
    a(f'v_add_u32 v70, {2*w}, v64')
    a('v_lshlrev_b32 v69, 9, v66')
    a('v_lshl_add_u32 v69, v70, 5, v69')
    a('v_lshl_add_u32 v69, v67, 2, v69')
    a(f'v_add_u32 v115, {MP}, v69')
    a('v_and_b32 v71, 1, v1')
    a('v_cmp_eq_u32 s[38:39], 0, v71')
    a('v_cmp_gt_u32 vcc, 8, v65')
    a('s_or_b64 s[28:29], s[38:39], vcc')
    a('v_lshrrev_b32 v72, 1, v67')
    a('v_lshlrev_b32 v72, 2, v72')
    a('v_lshl_add_u32 v72, v70, 4, v72')
    a('s_lshl_b32 s22, s17, 9')
    a(f's_add_u32 s22, s22, {PX}')
    a('v_lshl_add_u32 v73, v66, 7, v72')
    a('v_add_u32 v73, s22, v73')
    a('s_lshl_b32 s22, s17, 7')
    a(f's_add_u32 s22, s22, {PM}')
    a('v_add_u32 v74, s22, v72')
    if VSM:
        a('v_bfe_u32 v72, v65, 1, 1')
        a('v_lshlrev_b32 v72, 7, v72')
        a('v_lshl_add_u32 v72, v70, 4, v72')
        a('v_bfe_u32 v73, v65, 2, 2')
        a('v_lshl_add_u32 v72, v73, 2, v72')
        a('v_lshrrev_b32 v73, 4, v65')
        a('v_lshl_add_u32 v73, v73, 8, v72')
        a('s_lshl_b32 s22, s17, 9')
        a(f's_add_u32 s22, s22, {PX}')
        a('v_add_u32 v73, s22, v73')
        a('s_lshr_b32 s22, s17, 1')
        a('s_lshl_b32 s22, s22, 8')
        a('s_and_b32 s34, s17, 1')
        a('s_lshl_b32 s34, s34, 3')
        a('s_add_u32 s22, s22, s34')
        a(f's_add_u32 s22, s22, {PM}')
        a('v_add_u32 v74, s22, v72')
    a('v_lshlrev_b32 v0, 2, v65')
    if F2ONE: a(f'v_and_b32 v0, 0x78, v0\nv_or_b32 v0, {4*(F2ONE-1)}, v0')
    a(f's_and_b32 s22, s17, {R2-1}')
    a('s_lshl_b32 s22, s22, 7')
    a(f's_add_u32 s22, s22, {F2}')
    a(f'v_add_u32 v0, s22, v0')
    a('v_cndmask_b32 v1, v74, v73, s[38:39]')
    a('s_lshl_b32 s36, s17, 2')
    a(f's_add_u32 s36, s36, {F1}')
    a('s_mov_b32 s37, 0x3e800000')
    for r in range(64, 112): a(f'v_mov_b32 v{r}, 0')
    if MRG:
        a('v_and_b32 v118, 1, v116')
        a('v_cmp_eq_u32 vcc, 0, v118')
        a(f'v_mov_b32 v118, {6*2048 + (w >> 1)*256}')
        a(f'v_mov_b32 v119, {(4 + (w >> 1))*2048 + (w & 1)*256}')
        a('v_cndmask_b32 v118, v118, v119, vcc')
        a('v_lshrrev_b32 v116, 1, v116')
        a('v_lshl_add_u32 v118, v116, 9, v118')
        a('v_lshl_add_u32 v117, v117, 4, v118')
        a(f's_mov_b32 s57, {XSEG_B}')
    a('s_mov_b32 s56, 0x42800000')
    a('v_mov_b32 v116, v2')
    if not MRG:
        a('v_lshrrev_b32 v117, 4, v2')
        a('v_min_u32 v117, 55, v117')
        a('v_lshlrev_b32 v117, 7, v117')
    if w in (1, 2):
        nl = 13 if w == 1 else 14
        a('v_lshrrev_b32 v0, 4, v2')
        a(f'v_min_u32 v0, {nl-1}, v0')
        a(f's_mul_i32 s22, s17, {nl}')
        a('v_add_u32 v0, s22, v0')
        a('v_lshlrev_b32 v0, 7, v0')
        a(f'v_add_u32 v0, {2*EXCH_B if w == 1 else 2*XSEG_B - 7*w*1024}, v0')
        for k in (1, 2):
            a(f's_mov_b32 s22, {EXCH_OFF - k*EXCH_B if w == 1 else XF_OFF + 7*w*1024 - k*XSEG_B}')
            a(f'buffer_load_dword v119, v0, {SRD}, s22 offen sc1')
    if X_PRELOAD:
        a(f's_mul_i32 s22, s17, {4*XSEG_B}')
        a(f's_add_u32 s22, s22, {XF_OFF + w*XSEG_B}')
        for k in range(4):
            a(f'buffer_load_dword v119, v117, {SRD}, s22 offen')
            a(f's_add_u32 s22, s22, {56*128}')
    if SC_ALLPOLL:
        a('v_lshrrev_b32 v117, 4, v2')
        a('v_and_b32 v117, 31, v117')
        a('v_lshlrev_b32 v117, 2, v117')
        a(f'v_add_u32 v117, {F2}, v117')
    a(f's_mul_i32 s35, s17, {64*GSH_B}')
    a(f's_add_u32 s35, s35, {VO_OFF + TOUCH_AHEAD*GSH_B + w*56*128}')

YL = 0; ML = 8 * KB; WL = 16 * KB
def vtiles(w): return (6 * w, 6, 6) if w < 2 else (12 + 8 * (w - 2), 8, 7)
def vwreg(w, ti, ks):
    u = ti * 7 + ks
    return 256 + 8 * u if u < 32 else (176 if w < 2 else 120) + 8 * (u - 32)

VOK = 175
def vo_wait(a, L, ABORT, t):
    a(f's_branch {L("voc")}')
    a.label(L('vow'))
    a(f'buffer_load_dword v{VOK}, off, {SRD}, s35 sc1')
    a('s_waitcnt vmcnt(0)')
    a.label(L('voc'))
    a(f'v_readfirstlane_b32 s22, v{VOK}')
    a('s_cmp_eq_u32 s22, 56')
    a(f's_cbranch_scc1 {L("vod")}')
    a('s_sleep 1')
    spin(a, L('vow'), ABORT)
    a.label(L('vod'))
    a('s_add_u32 s35, s35, 2048')
    a('s_add_u32 s38, s19, 8')
    a('s_and_b32 s38, s38, -8')
    a('s_cmp_eq_u32 s19, 0')
    a('s_cselect_b32 s38, 4, s38')

def gen_value(a, w, st, tag):
    L = lambda n: f'{tag}_va{w}_{n}'
    ABORT = f'{tag}_abort'
    fin = w < 2
    t0, ntile, nreg = vtiles(w)
    M = 8; ACC = 36
    YA = 60 if fin else 112
    CK = 63
    def S(ti, ks, b=None):
        if NOT2: return 's_nop 2'
        return f'v_smfmac_f32_16x16x64_bf16 v[{ACC+4*ti}:{ACC+4*ti+3}], v[{M+4*ks}:{M+4*ks+3}], {b or ureg(vwreg(w, ti, ks), 8)}, v3'
    def fold(p):
        A_ = ACC + 8 * p; B_ = A_ + 4
        o = [f'v_permlane32_swap_b32 v{A_+r}, v{B_+r}' for r in range(4)]
        o += [f'v_add_f32 v{A_+r}, v{A_+r}, v{B_+r}' for r in range(4)]
        o += [f'v_cvt_pk_bf16_f32 v{B_}, v{A_}, v{A_+1}', f'v_cvt_pk_bf16_f32 v{B_+1}, v{A_+2}, v{A_+3}', f'ds_write_b64 v{YA+p}, v[{B_}:{B_+1}]']
        return o
    def run(seq):
        last = {}
        for i, (ti, m, pre) in enumerate(seq): last[ti] = i
        pend = []; delay = 0
        for i, (ti, m, pre) in enumerate(seq):
            for x in pre: a(x)
            a(m)
            if delay: delay -= 1
            elif pend:
                a(pend.pop(0))
                if len(pend) > 12: a(pend.pop(0))
            p = ti // 2
            if i == max(last[2 * p], last[2 * p + 1]):
                pend += fold(p)
                if not delay: delay = 3
        for x in pend: a(x)
    if ALIGN: a.raw(f'.p2align {ALIGN}\n' + '  s_nop 0\n' * APAD)
    a.label(L('loop'))
    step_bases(a)
    if not fin:
        for r in range(ACC, ACC + 4 * ntile): a(f'v_mov_b32 v{r}, 0')
    a('s_mov_b32 s30, 0')
    if fin:
        YT = 64; VOR = 80; LO = 156; HI = 160; PL = 164
        pr = lambda c: 8 + 4 * c if c < 7 else 144 + 4 * (c - 7)
        if SYNC:
            a('s_cmp_lg_u32 s19, s38')
            a(f's_cbranch_scc1 {L("vok")}')
            vo_wait(a, L, ABORT, PL)
            a.label(L('vok'))
        if T2SRV:
            a(f's_cmp_eq_u32 s19, {NSTEPS-1}')
            a(f's_cbranch_scc1 {tag}_done')
        def vol(lo, hi):
            for h in range(lo, hi):
                if h % 2 == 0: a(f's_add_u32 s22, s25, {h*1792}')
                a(f'buffer_load_dwordx4 v[{VOR+4*h}:{VOR+4*h+3}], v6, {SRD}, s22 offen offset:{(h & 1)*1792} sc1')
        vol(0, VO_PRE0)
        if not SLOW_FIRST: a('s_barrier')
        stamp(a, 0)
        if VO_SLEEP: a(f's_sleep {VO_SLEEP}')
        vol(VO_PRE0, VO_PRE)
        if SYNC: a(f'buffer_load_dword v{VOK}, off, {SRD}, s35 sc1')
        a('s_barrier')
        stamp(a, 1)
        for ks in range(7): a(f'ds_read_b128 v[{M+4*ks}:{M+4*ks+3}], v2 offset:{ML + ks*1024}')
        vol(VO_PRE, 16)
        a('s_waitcnt lgkmcnt(0)')
        if T2DF: a(f's_sleep {T2DF}')
        run([(ti, S(ti, ks), []) for ti in range(ntile) for ks in range(7)])
        stamp(a, 2)
        a(f's_cmp_eq_u32 s19, {NSTEPS-1}')
        a(f's_cbranch_scc1 {L("last")}')
        a(f's_add_u32 s22, s20, {PX}')
        a(f's_add_u32 s34, s20, {PX + 4096}')
        a(f's_add_u32 s36, s20, {PM}')
        a('s_mov_b32 s37, 0')
        for r in range(4): a(f'v_mov_b32 v{LO+r}, 0')
        if STAMPS:
            a('s_waitcnt vmcnt(0)')
            stamp(a, 7)
        if VSM and B2_POS < 0:
            a('s_waitcnt lgkmcnt(0)')
            for r in range(ACC, ACC + 4 * ntile): a(f'v_mov_b32 v{r}, 0')
            a('s_barrier')
            for k in range(4): a(f'ds_read_b128 v[{YT+4*k}:{YT+4*k+3}], v2 offset:{YL + w*4096 + k*1024}')
            stamp(a, 3)
        if FIN_SLEEP: a(f's_sleep {FIN_SLEEP}')
        flagpoll(a, 4, 's20', PL, L('fw'), ABORT, PD_V, PG_V)
        stamp(a, 4)
        a('s_waitcnt lgkmcnt(0)')
        if VSM:
            pl = PLAIN_P and st == ''
            def pld(c, sc):
                so = ('s22', 's34', 's36')[c // 4]
                a(f'buffer_load_dwordx4 v[{pr(c)}:{pr(c)+3}], v2, {SRD}, {so} offen offset:{(c & 3)*1024}' + (' sc1' if sc else ''))
            def psm(c):
                B_ = VOR + 8 * c if c < 8 else YT + 8 * (c - 8)
                a(f'v_smfmac_f32_16x16x64_bf16 v[{LO}:{LO+3}], v[{pr(c)}:{pr(c)+3}], v[{B_}:{B_+7}], v3')
            zr = list(range(ACC, ACC + 4 * ntile)) if B2_POS >= 0 else []
            for c in range(NPP):
                pld(c, not pl)
                for _ in range(VZ):
                    if zr: a(f'v_mov_b32 v{zr.pop(0)}, 0')
            issued = NPP; nst = 0; q = list(range(NPP))
            if VST: stamp(a, 7)
            for c in range(10):
                if c == B2_POS:
                    a('s_barrier')
                    for k in range(4): a(f'ds_read_b128 v[{YT+4*k}:{YT+4*k+3}], v2 offset:{YL + w*4096 + k*1024}')
                    stamp(a, 3)
                if c == 0 and ECP:
                    a.label(L('pl')); cke = Checker(a, CK)
                a(f's_waitcnt vmcnt({len(q) - 1 - q.index(c)})' + (' lgkmcnt(0)' if c == 8 else ''))
                if c == 0: stamp(a, 5)
                if VST and c in (3, 6, 9): stamp(a, c // 3)
                psm(c)
                if c < ECP:
                    cke.add(pr(c)); cke.drain()
                    if c == ECP - 1: a(f'v_cmp_eq_u32 vcc, -1, v{CK}')
                if ECP and c == F2_POS: a(f's_cbranch_vccnz {L("re")}')
                if c == F2_POS and (not F2ONE or w == F2ONE - 1):
                    q.append('f')
                    exec_lo(a, R2)
                    a(f'buffer_store_dword v2, v7, {SRD}, s21 offen {st}')
                    a('s_mov_b64 exec, -1')
                    nst = 1
                if issued < 10:
                    pld(issued, not pl); q.append(issued); issued += 1
                for _ in range(2):
                    if zr: a(f'v_mov_b32 v{zr.pop(0)}, 0')
            a.label(L('ep'))
            while zr: a(f'v_mov_b32 v{zr.pop(0)}, 0')
            a(f'v_permlane32_swap_b32 v{LO}, v{LO+2}')
            a(f'v_permlane32_swap_b32 v{LO+1}, v{LO+3}')
            a(f'v_add_f32 v{HI}, v{LO}, v{LO+2}')
            a(f'v_add_f32 v{HI+1}, v{LO+1}, v{LO+3}')
            a(f'v_cmp_u_f32 vcc, v{HI}, v{HI+1}')
            a(f'v_mov_b32_dpp v{HI+2}, v{HI} row_ror:8 {D}')
            a(f'v_mov_b32_dpp v{HI}, v{HI+1} row_ror:8 row_mask:0xf bank_mask:0xc')
            a(f's_cbranch_vccnz {L("rp")}')
            a(f'v_mov_b32_dpp v{HI+1}, v{HI+2} quad_perm:[0,1,2,3] row_mask:0xf bank_mask:0x3')
            a(f'v_cvt_pk_bf16_f32 v{HI}, v{HI}, v{HI+1}')
            a.label(L('pc'))
            if w == 1: a('s_mov_b64 exec, s[26:27]')
            a(f'buffer_store_dword v{HI}, v1, {SRD}, s21 offen {st}')
        else:
            pl = PLAIN_P and st == ''
            if not pl: a.label(L('lp'))
            for c in range(10):
                so = ('s22', 's34', 's36')[c // 4]
                a(f'buffer_load_dwordx4 v[{pr(c)}:{pr(c)+3}], v5, {SRD}, {so} offen offset:{(c & 3)*1024}' + ('' if pl else ' sc1'))
                for r in range(ACC + 4 * c, min(ACC + 4 * c + 4, ACC + 4 * ntile)): a(f'v_mov_b32 v{r}, 0')
            if pl: a.label(L('lp'))
            ck = Checker(a, CK)
            nst = 0
            for c in range(10):
                if c == B2_POS:
                    a('s_cmp_lg_u32 s37, 0')
                    a(f's_cbranch_scc1 {L("nb2")}')
                    a('s_waitcnt lgkmcnt(0)')
                    a('s_barrier')
                    for k in range(4): a(f'ds_read_b128 v[{YT+4*k}:{YT+4*k+3}], v2 offset:{YL + w*4096 + k*1024}')
                    a.label(L('nb2'))
                    stamp(a, 3)
                a(f's_waitcnt vmcnt({9-c+nst})' + (' lgkmcnt(0)' if c == 8 else ''))
                if c < EC_P:
                    a.label(L(f'e{c}'))
                    r = pr(c)
                    a(f'v_max3_u32 v{PL}, v{r}, v{r+1}, v{r+2}')
                    a(f'v_max_u32 v{PL}, v{PL}, v{r+3}')
                    a(f'v_cmp_eq_u32 vcc, -1, v{PL}')
                    a(f's_cbranch_vccnz {L(f"er{c}")}')
                if c == 0: stamp(a, 5)
                if c == F2_POS:
                    exec_lo(a, R2)
                    a(f'buffer_store_dword v2, v7, {SRD}, s21 offen {st}')
                    a('s_mov_b64 exec, -1')
                    nst = 1
                if c >= EC_P: ck.add(pr(c))
                B_ = f'v[{pr(c)}:{pr(c)+3}]'
                for hi, acc in ((1, HI), (0, LO)):
                    A_ = VOR + 4 * (2 * c + hi) if c < 8 else YT + 4 * (2 * (c - 8) + hi)
                    a(f'v_mfma_f32_16x16x32_bf16 v[{acc}:{acc+3}], v[{A_}:{A_+3}], {B_}, ' + ('0' if c == 0 else f'v[{acc}:{acc+3}]'))
                    ck.emit()
            ck.drain()
            a(f'v_cmp_eq_u32 vcc, -1, v{CK}')
            for r in range(4): a(f'v_add_f32_dpp v{LO+r}, v{HI+r}, v{LO+r} row_ror:8 {D}')
            a(f's_cbranch_vccnz {L("rp")}')
            a(f'v_cvt_pk_bf16_f32 v{HI}, v{LO}, v{LO+1}')
            a(f'v_cvt_pk_bf16_f32 v{HI+1}, v{LO+2}, v{LO+3}')
            a(f'v_min_u32 v{HI}, -2, v{HI}')
            a(f'v_min_u32 v{HI+1}, -2, v{HI+1}')
            a('s_mov_b64 exec, s[26:27]')
            a(f'buffer_store_dwordx2 v[{HI}:{HI+1}], v1, {SRD}, s21 offen {st}')
        if T2SRV:
            a(f's_cmp_lg_u32 s19, {NSTEPS-2}')
            a(f's_cbranch_scc1 {L("nl")}')
            a(f's_mov_b32 s22, {MEMG_OFF + (NSTEPS-1)*7*KB}')
            if VSM: a(f'buffer_store_dword v{HI}, v1, {SRD}, s22 offen sc1')
            else: a(f'buffer_store_dwordx2 v[{HI}:{HI+1}], v1, {SRD}, s22 offen sc1')
            a('s_mov_b64 exec, -1')
            a(f's_branch {tag}_done')
            a.label(L('nl'))
        a('s_mov_b64 exec, -1')
        if SLOW_FIRST: a('s_barrier')
        stamp(a, 6)
        if not NOBULK: a(f's_add_u32 s25, s25, {GSH_B}')
        stamp_flush(a, 4 + w, 8, L('sf'), PL)
    else:
        STG = [76, 84, 92]; TP = 100
        TPS = [100, 104, 108, 4]
        t2st = [[f'buffer_store_dwordx4 v[{TPS[k]}:{TPS[k]+3}], v2, {SRD}, s24 offen offset:{k*1024} sc1'] for k in range(4)]
        t2st[-1].append(f's_add_u32 s24, s24, {8*KB}')
        t2fl = ['s_mov_b64 exec, 1', f'buffer_store_dword v117, v2, {SRD}, s34 offen sc1', 's_mov_b64 exec, -1', 's_add_u32 s34, s34, 8']
        def emit(gs):
            for g_ in gs:
                for x in g_: a(x)
        myks = [0, 1, 2, 3] if w == 2 else [4, 5, 6]
        oth = [k for k in range(7) if k not in myks]
        def mload():
            for ks in myks:
                a(f'buffer_load_dwordx4 v[{M+4*ks}:{M+4*ks+3}], v2, {SRD}, {"s20" if ks < 4 else "s23"} offen offset:{(ks & 3) * 1024} sc1')
        if HLP_SLEEP: a(f's_sleep {HLP_SLEEP}')
        flagpoll(a, 119, 's20', 76, L('fp'), ABORT, PD_H, PG_H)
        stamp(a, 0)
        if VA_DELAY: a.nop(VA_DELAY)
        mload()
        if PUBLISH and PUB_EARLY == 1: emit([t2fl] + t2st)
        if not SLOW_FIRST: a('s_barrier')
        if PUBLISH and PUB_EARLY == 2: emit([t2fl] + t2st)
        if PUBLISH and PUB_EARLY:
            a('s_waitcnt vmcnt(5)')
            a(f's_branch {L("ld2")}')
        a.label(L('ld'))
        a('s_waitcnt vmcnt(0)')
        if PUBLISH and PUB_EARLY: a.label(L('ld2'))
        ck = Checker(a, 84)
        for ks in myks: ck.add(M + 4 * ks)
        ck.drain()
        a('v_cmp_eq_u32 vcc, -1, v84')
        for ks in myks: a(f'ds_write_b128 v2, v[{M+4*ks}:{M+4*ks+3}] offset:{ML + ks*1024}')
        a(f's_cbranch_vccnz {L("retry")}')
        a('s_waitcnt lgkmcnt(0)')
        a('s_barrier')
        stamp(a, 1)
        for ks in oth: a(f'ds_read_b128 v[{M+4*ks}:{M+4*ks+3}], v2 offset:{ML + ks*1024}')
        if w == 2: a(f'ds_read_b128 v[92:95], v0')
        if VAL_TOUCH:
            a(f'buffer_load_dword v99, v118, {SRD}, {"s20" if w == 2 else "s39"} offen sc1')
            a(f's_add_u32 s39, s39, {XSEG_B}')
        if SELF_POISON:
            for r in range(76, 80): a(f'v_mov_b32 v{r}, -1')
            a('s_add_u32 s22, s21, s38')
            if w == 3: a('s_mov_b64 exec, 0x1f')
            a(f'buffer_store_dwordx4 v[76:79], v2, {SRD}, s22 offen {st}')
            if w == 3: a('s_mov_b64 exec, -1')
        if PUBLISH and not PUB_EARLY and not SLOW_FIRST and not T2SRV: emit([t2fl] + t2st)
        a('s_waitcnt lgkmcnt(0)')
        mg = ['s_mov_b64 exec, s[26:27]', f'buffer_store_dwordx4 v[92:95], v2, {SRD}, s36 offen sc1', 's_mov_b64 exec, -1', f's_add_u32 s36, s36, {7*KB}']
        if w == 2 and PUBLISH:
            if SLOW_FIRST:
                a(f's_cmp_lg_u32 s19, {NSTEPS-1}')
                a(f's_cbranch_scc1 {L("nmg")}')
            emit([mg])
            if SLOW_FIRST: a.label(L('nmg'))
        if T2SRV:
            a(f's_cmp_eq_u32 s19, {NSTEPS-1}')
            a(f's_cbranch_scc1 {tag}_done')
        lu = [(7, ks) for ks in range(7)]
        ru = [(t_, ks) for t_ in (6, 0, 1, 2, 3, 4, 5) for ks in range(7)]
        def wr(j):
            t_, ks = lu[j]; b = STG[j % 3]; off = (t_ - 7) * TILE_B + ks * UNIT
            return [f'ds_read_b128 v[{b}:{b+3}], v1 offset:{off}', f'ds_read_b128 v[{b+4}:{b+7}], v1 offset:{off+1024}']
        seq = []
        for j, (t_, ks) in enumerate(lu):
            pre = (wr(0) + wr(1) if j == 0 else []) + (wr(j + 2) if j + 2 < len(lu) else [])
            for k in range(2):
                r_ = ru.pop(0); seq.append((r_[0], S(*r_), pre if k == 0 else []))
            b = STG[j % 3]
            seq.append((t_, S(t_, ks, f'v[{b}:{b+7}]'), [f's_waitcnt lgkmcnt({2 * min(2, len(lu) - 1 - j)})']))
        for r_ in ru: seq.append((r_[0], S(*r_), []))
        if T2DH: a(f's_sleep {T2DH}')
        run(seq)
        stamp(a, 2)
        a('s_waitcnt lgkmcnt(0)')
        a('s_barrier')
        for k in range(4):
            q = 2 * (w - 2) + (k >> 1); tp = k & 1
            if not T2SRV: a(f'ds_read_b128 v[{TPS[k]}:{TPS[k]+3}], v2 offset:{YL + tp*4096 + q*1024}')
        a(f's_cmp_eq_u32 s19, {NSTEPS-2 if T2SRV else NSTEPS-1}')
        a(f's_cbranch_scc1 {tag + "_done" if T2SRV else L("last")}')
        if SLOW_FIRST:
            if w == 2: a(f'ds_read_b128 v[92:95], v0')
            a('s_waitcnt vmcnt(0) lgkmcnt(0)')
            a('s_barrier')
            if PUBLISH: emit([t2fl] + t2st + ([mg] if w == 2 else []))
        else:
            a('s_waitcnt vmcnt(0) lgkmcnt(0)')
        stamp(a, 3)
        stamp_flush(a, 4 + w, 4, L('sf'), 76)
    a('s_add_u32 s19, s19, 1')
    a('s_mov_b32 s20, s21')
    a.flush()
    a(f's_branch {L("loop")}')
    if fin:
        a.label(L('last'))
        a('s_waitcnt lgkmcnt(0)')
        a('s_barrier')
        a(f's_branch {tag}_done')
        for c in range(EC_P):
            a.label(L(f'er{c}'))
            so = ('s22', 's34', 's36')[c // 4]
            a(f'buffer_load_dwordx4 v[{pr(c)}:{pr(c)+3}], v5, {SRD}, {so} offen offset:{(c & 3)*1024} sc1')
            a('s_waitcnt vmcnt(0)')
            a('s_add_u32 s31, s31, 0x1000000')
            spin(a, L(f'e{c}'), ABORT)
        if ECP:
            assert NPP == 10 and B2_POS == 0 and ECP <= F2_POS
            a.label(L('re'))
            for c in range(10): pld(c, True)
            a.nop(6)
            for r in range(4): a(f'v_mov_b32 v{LO+r}, 0')
            a('s_add_u32 s31, s31, 0x1000000')
            spin(a, L('pl'), ABORT)
        a.label(L('rp'))
        if VSM:
            a('s_cmp_eq_u32 s37, 0')
            a(f's_cbranch_scc1 {L("rv")}')
            a(f'v_mov_b32_dpp v{HI+1}, v{HI+2} quad_perm:[0,1,2,3] row_mask:0xf bank_mask:0x3')
            a(f'v_cvt_pk_bf16_f32 v{HI}, v{HI}, v{HI+1}')
            a(f'v_min_u32 v{HI}, -2, v{HI}')
            a(f's_branch {L("pc")}')
            a.label(L('rv'))
            for c in range(10): pld(c, True)
            a('s_waitcnt vmcnt(0)')
            ck2 = Checker(a, CK)
            for c in range(10): ck2.add(pr(c))
            ck2.drain()
            a(f'v_cmp_eq_u32 vcc, -1, v{CK}')
            a(f's_cbranch_vccz {L("rk")}')
            spin(a, L('rv'), ABORT)
            a.label(L('rk'))
            a('s_mov_b32 s37, 1')
            a('s_add_u32 s31, s31, 0x10000')
            for r in range(4): a(f'v_mov_b32 v{LO+r}, 0')
            for c in range(10): psm(c)
            a.flush()
            a(f's_branch {L("ep")}')
            return
        a.nop(8)
        if PLAIN_P and st == '':
            for c in range(10):
                so = ('s22', 's34', 's36')[c // 4]
                a(f'buffer_load_dwordx4 v[{pr(c)}:{pr(c)+3}], v5, {SRD}, {so} offen offset:{(c & 3)*1024} sc1')
        a('s_mov_b32 s37, 1')
        a('s_add_u32 s31, s31, 0x10000')
        spin(a, L('lp'), ABORT)
    else:
        a.label(L('retry'))
        a('s_waitcnt lgkmcnt(0)')
        mload()
        a('s_add_u32 s31, s31, 1')
        spin(a, L('ld'), ABORT)
        a.label(L('last'))
        a('s_waitcnt lgkmcnt(0)')
        emit(t2st)
        a('s_waitcnt vmcnt(0)')
        emit([t2fl, t2fl])
        a(f's_branch {tag}_done')

def init_value(a, w, p):
    fin = w < 2
    t0, ntile, nreg = vtiles(w)
    YA = 60 if fin else 112
    a(f's_mul_i32 s31, s17, {CUW_B}')
    a(f's_add_u32 s31, s31, {WF_B}')
    units = [((t0 + ti) * TILE_B + ks * UNIT, vwreg(w, ti, ks)) for ti in range(nreg) for ks in range(7)]
    if BDEP: BDEP(16 * t0 // 28, (16 * (t0 + nreg) - 1) // 28)
    load_units(a, units, 's31')
    if fin and BDEP: BDEP(16 * (vtiles(w + 2)[0] + 7) // 28, (16 * (vtiles(w + 2)[0] + 8) - 1) // 28)
    if fin:
        th = vtiles(w + 2)[0] + 7
        for f in range(14):
            if f % 4 == 0:
                a(f's_mov_b32 m0, {WL + 3*w*TILE_B + f*1024}')
                a(f's_add_u32 s22, s31, {th*TILE_B + f*1024}')
            a(f'buffer_load_dwordx4 v2, {SRD}, s22 offen offset:{(f & 3)*1024}' + (' sc1' if MERGE else '') + ' lds')
            if f % 16 == 15: a('s_waitcnt vmcnt(24)')
    a('v_mov_b32 v72, v116')
    a('v_mov_b32 v73, v117')
    a('v_lshrrev_b32 v65, 1, v72')
    a('v_and_b32 v66, 1, v72')
    for pp in range(ntile // 2):
        a(f'v_add_u32 v67, {t0 + 2*pp}, v65')
        a('v_lshl_add_u32 v67, v67, 4, v73')
        a('v_mul_u32_u24 v68, 2341, v67')
        a('v_lshrrev_b32 v68, 16, v68')
        a('v_mul_u32_u24 v69, 28, v68')
        a('v_sub_u32 v69, v67, v69')
        a('v_lshrrev_b32 v70, 4, v69')
        a('v_and_b32 v69, 15, v69')
        if VSM:
            a('v_and_b32 v71, 1, v69')
            a('v_lshrrev_b32 v69, 1, v69')
            a('v_lshl_add_u32 v69, v71, 3, v69')
        a('v_lshlrev_b32 v71, 12, v70')
        a('v_lshl_add_u32 v71, v68, 8, v71')
        a('v_lshl_add_u32 v71, v69, 4, v71')
        a(f'v_lshl_add_u32 v{YA+pp}, v66, 3, v71')
    if fin:
        a('v_and_b32 v0, 31, v1')
        a('v_lshlrev_b32 v0, 2, v0')
        a(f'v_add_u32 v0, {F2}, v0')
        a('v_lshlrev_b32 v4, 2, v73')
        if R1 == 32:
            a('s_lshl_b32 s22, s17, 1')
            a(f's_add_u32 s22, s22, {w}')
        else: a(f's_and_b32 s22, s17, {R1-1}')
        a('s_lshl_b32 s22, s22, 7')
        a(f's_add_u32 s22, s22, {F1}')
        a(f'v_add_u32 v4, s22, v4')
        a('v_and_b32 v64, 7, v73')
        a('v_lshlrev_b32 v5, 4, v64')
        a('v_lshl_add_u32 v5, v72, 7, v5')
        a('v_lshrrev_b32 v65, 3, v73')
        a('v_lshl_add_u32 v5, v65, 9, v5')
        a('s_lshl_b32 s22, s17, 3')
        a(f's_add_u32 s22, s22, {F2 + 4*w}')
        a('v_lshl_add_u32 v7, v2, 3, s22')
        a(f'v_add_u32 v65, {16*w}, v73')
        a('v_min_u32 v65, 27, v65')
        a('v_mad_u32_u24 v65, v72, 28, v65')
        a('v_lshlrev_b32 v6, 4, v65')
        a('s_lshr_b32 s22, s17, 1')
        a('s_mul_i32 s22, s22, 7')
        a('s_and_b32 s34, s17, 1')
        a('s_lshl_b32 s35, s34, 2')
        a('v_add_u32 v70, s35, v72')
        a('v_mov_b32 v71, s34')
        a(f'v_mov_b32 v69, {w}')
        a('v_cmp_eq_u32 vcc, 3, v72')
        a('v_cndmask_b32 v70, v70, v72, vcc')
        a('v_cndmask_b32 v69, v69, v71, vcc')
        a('v_add_u32 v70, s22, v70')
        a('v_lshrrev_b32 v68, 1, v70')
        a('v_lshlrev_b32 v68, 8, v68')
        a('v_lshl_add_u32 v68, v69, 7, v68')
        a('v_and_b32 v69, 1, v70')
        a('v_lshl_add_u32 v68, v69, 3, v68')
        a('v_lshl_add_u32 v1, v64, 4, v68')
        a('v_cmp_gt_u32 s[26:27], 8, v73')
        if w == 1:
            a('v_cmp_gt_u32 vcc, 3, v72')
            a('s_and_b64 s[26:27], s[26:27], vcc')
        if VSM:
            a('v_lshrrev_b32 v65, 3, v73')
            a('v_lshl_add_u32 v66, v64, 1, v65')
            a(f'v_add_u32 v66, {16*w}, v66')
            a('v_min_u32 v66, 27, v66')
            a('v_mad_u32_u24 v66, v72, 28, v66')
            a('v_lshlrev_b32 v6, 4, v66')
            a('s_mul_i32 s22, s17, 28')
            a(f's_add_u32 s22, s22, {16*w}')
            a('v_lshl_add_u32 v70, v64, 1, s22')
            a('v_lshrrev_b32 v68, 4, v70')
            a('v_lshlrev_b32 v68, 8, v68')
            a('v_bfe_u32 v69, v70, 1, 1')
            a('v_lshl_add_u32 v68, v69, 7, v68')
            a('v_bfe_u32 v69, v70, 2, 2')
            a('v_lshl_add_u32 v68, v69, 2, v68')
            a('v_and_b32 v69, 1, v72')
            a('v_lshl_add_u32 v65, v69, 2, v65')
            a('v_lshrrev_b32 v69, 1, v72')
            a('v_lshl_add_u32 v65, v69, 1, v65')
            a('v_lshl_add_u32 v1, v65, 4, v68')
            a('v_cmp_gt_u32 s[26:27], 6, v64')
            for r in range(156, 160): a(f'v_mov_b32 v{r}, 0')
            for k in range(4): a(f'ds_write_b128 v2, v[156:159] offset:{YL + w*4096 + k*1024}')
        a(f's_mul_i32 s22, s17, {64*GSH_B}')
        a(f's_add_u32 s25, s22, {VO_OFF}')
        a('s_lshl_b32 s35, s17, 7')
        a(f's_add_u32 s35, s35, {CNT_OFF + VOC - 2048}')
        a('s_mov_b32 s38, 0')
        a(f'v_mov_b32 v{VOK}, 0')
    else:
        a(f's_mul_i32 s24, s17, {65*8*KB}')
        a(f's_add_u32 s24, s24, {T2_OFF + (w-2)*4096 + (8*KB if SLOW_FIRST else 0)}')
        a('s_mul_i32 s34, s17, 640')
        a(f's_add_u32 s34, s34, {CNT_OFF + T2F + 4*(w-2) + (8 if SLOW_FIRST else 0)}')
        a('s_mul_i32 s36, s17, 448')
        a('v_add_u32 v0, s36, v2')
        a(f'v_add_u32 v0, {ML}, v0')
        a(f's_add_u32 s36, s36, {MEMG_OFF}')
        a('v_cmp_gt_u32 s[26:27], 28, v1')
        a('v_and_b32 v119, 31, v1')
        a('v_lshlrev_b32 v119, 2, v119')
        if F2ONE: a(f'v_and_b32 v119, 0x78, v119\nv_or_b32 v119, {4*(F2ONE-1)}, v119')
        a('s_add_u32 s22, s17, 16')
        a(f's_and_b32 s22, s22, {R2-1}')
        a('s_lshl_b32 s22, s22, 7')
        a(f's_add_u32 s22, s22, {F2}')
        a(f'v_add_u32 v119, s22, v119')
        nl = 13 if w == 2 else 14
        a(f'v_min_u32 v118, {nl-1}, v1')
        a(f's_mul_i32 s22, s17, {nl}')
        a('v_add_u32 v118, s22, v118')
        a('v_lshlrev_b32 v118, 7, v118')
        a(f'v_add_u32 v118, {2*EXCH_B if w == 2 else 2*XSEG_B}, v118')
        a(f's_mov_b32 s39, {XF_OFF}')
        a(f'v_add_u32 v1, {WL + 3*(w-2)*TILE_B}, v2')
        a('v_mov_b32 v117, 1')
        a('s_mul_i32 s38, s17, 1104')
        a(f's_add_u32 s38, s38, {EXCH_B + (w-2)*1024}')

def dbg_wait(a, P, t, abort):
    a('s_mov_b32 s30, 0')
    a.label(P)
    a(f'buffer_load_dword v{t+2}, v{t}, {DBG}, 0 offen sc1')
    a('s_waitcnt vmcnt(0)')
    a(f'v_cmp_ne_u32 vcc, v{t+2}, v{t+1}')
    a(f's_cbranch_vccz {P}_ok')
    a('s_sleep 4')
    a('s_add_u32 s30, s30, 1')
    a(f's_cmp_lt_u32 s30, {SLOW_LIMIT}')
    a(f's_cbranch_scc1 {P}')
    a(f's_branch {abort}')
    a.label(P + '_ok')

def dep_regs(a, cg_s, t, lane='v1'):
    a(f's_and_b32 s20, {cg_s}, 15')
    a('s_lshr_b32 s21, s20, 1')
    a('s_mul_i32 s21, s21, 56')
    a('s_add_u32 s22, s21, 55')
    a('s_lshr_b32 s21, s21, 6')
    a('s_lshr_b32 s22, s22, 6')
    a('s_add_u32 s21, s21, 24')
    a('s_add_u32 s22, s22, 24')
    a('s_add_u32 s20, s20, 8')
    a(f's_cmp_lt_u32 {cg_s}, 16')
    a('s_cselect_b32 s21, s20, s21')
    a('s_cselect_b32 s22, s20, s22')
    a(f's_cselect_b32 s20, {A_TGT}, {B_TGT}')
    a('s_lshl_b32 s21, s21, 2')
    a('s_lshl_b32 s22, s22, 2')
    a(f'v_mov_b32 v{t}, 124')
    a(f'v_mov_b32 v{t+1}, 128')
    a(f'v_writelane_b32 v{t}, s21, 0')
    a(f'v_writelane_b32 v{t}, s22, 1')
    a(f'v_writelane_b32 v{t+1}, s20, 0')
    a(f'v_writelane_b32 v{t+1}, s20, 1')

def xprep_loop(a, P):
    import prep
    a.label(f'{P}_l')
    a('s_waitcnt vmcnt(0) lgkmcnt(0)')
    a('v_mov_b32 v4, 1')
    a('v_mov_b32 v5, 20')
    wg_atomic(a, f'{P}_el', 's3')
    a('s_cmp_ge_u32 s3, 32')
    a(f's_cbranch_scc1 {P}_d')
    prep.xprep_item(a, P, 's3', st='sc1', signal=DBG)
    a(f's_branch {P}_l')
    a.label(f'{P}_d')

def wg_atomic(a, P, dst):
    a('v_mov_b32 v6, 160000')
    a('s_barrier')
    a('s_cmp_lg_u32 s16, 0')
    a(f's_cbranch_scc1 {P}1')
    a('s_mov_b64 exec, 1')
    a(f'buffer_atomic_add v4, v5, {DBG}, 0 offen sc0')
    a('s_waitcnt vmcnt(0)')
    a('ds_write_b32 v6, v4')
    a('s_waitcnt lgkmcnt(0)')
    a('s_mov_b64 exec, -1')
    a.label(f'{P}1')
    a('s_barrier')
    a('ds_read_b32 v4, v6')
    a('s_waitcnt lgkmcnt(0)')
    a(f'v_readfirstlane_b32 {dst}, v4')

def staff_check(a, okl, mode):
    a('s_mov_b32 s30, 0')
    a('v_mov_b32 v36, 0')
    a.label('ch_chk')
    a(f'buffer_load_dword v37, v36, {DBG}, 0 offen sc1')
    a('s_waitcnt vmcnt(0)')
    a('v_readfirstlane_b32 s22, v37')
    a('s_and_b32 s22, s22, 0xffff')
    a('s_cmp_ge_u32 s22, 32')
    a('s_cbranch_scc1 ch_go_end')
    a('s_sleep 16')
    a('s_add_u32 s30, s30, 1')
    a('s_cmp_lt_u32 s30, 64')
    a('s_cbranch_scc1 ch_chk')
    a.label('ch_go_end')
    a('v_mov_b32 v6, 160016')
    a('v_mov_b32 v4, s22')
    a('s_cmp_lg_u32 s16, 0')
    a('s_cbranch_scc1 ch_dec')
    a('ds_write_b32 v6, v4')
    a('s_waitcnt lgkmcnt(0)')
    a.label('ch_dec')
    a('s_barrier')
    a('ds_read_b32 v4, v6')
    a('s_waitcnt lgkmcnt(0)')
    a('v_readfirstlane_b32 s22, v4')
    a('s_cmp_ge_u32 s22, 32')
    a(f's_cbranch_scc1 {okl}')
    a('v_mov_b32 v4, 0x10001')
    a(f's_mov_b32 s18, {mode}')
    a('s_branch ch_take')

def worker_s4d(a):
    import s4d
    s4d.s4d_setup(a)
    a.label('wk_loop')
    a('v_mov_b32 v4, 1')
    a('v_mov_b32 v5, 4')
    wg_atomic(a, 'wk_el', 's3')
    a('v_and_b32 v4, 15, v1')
    a('s_cmp_ge_u32 s3, 112')
    a('s_cbranch_scc1 wk_done')
    s4d.s4d_item(a, 'wk', 's3')
    a('s_branch wk_loop')
    a.label('wk_done')

def poll_eq(a, P, srd, soff, target, sleep=4):
    a('v_mov_b32 v8, 0')
    a('s_mov_b32 s30, 0')
    a.label(P)
    a(f'buffer_load_dword v9, v8, {srd}, {soff} offen sc1')
    a('s_waitcnt vmcnt(0)')
    a(f'v_cmp_ne_u32 vcc, {target}, v9')
    a(f's_cbranch_vccz {P}_ok')
    a(f's_sleep {sleep}')
    a('s_add_u32 s30, s30, 1')
    a(f's_cmp_lt_u32 s30, {SLOW_LIMIT}')
    a(f's_cbranch_scc1 {P}')
    a('s_branch cA_abort')
    a.label(P + '_ok')
def flag_wait(a, P):
    a('s_cmp_lg_u32 s97, 0')
    a(f's_cbranch_scc1 {P}_sk')
    a('s_movk_i32 s20, 128')
    poll_eq(a, P, DBG, 's20', 1)
    a('s_mov_b32 s97, 1')
    a.label(P + '_sk')
def ac_wait(a, P):
    a('s_lshl_b32 s20, s17, 7')
    a(f's_add_u32 s20, s20, {CNT_OFF + AC}')
    poll_eq(a, P, SRD, 's20', 7, sleep=6)

def worker_all(a):
    import s4d, gemm, tok, prep
    JS = DBG if MERGE else SRD
    JO = 64 if MERGE else CNT_OFF + JOBC
    NA = 112 if MERGE == 1 else 0
    NJ = 1104 + NA
    tok.PEEK = JS
    a('s_load_dwordx2 s[36:37], s[0:1], 112')
    a('s_waitcnt lgkmcnt(0)')
    a(f's_mov_b32 s92, s36\ns_and_b32 s93, s37, 0xffff\ns_mov_b32 s94, {2048*896*2}\ns_mov_b32 s95, 0x20000')
    def ask():
        lb = a.newlabel('ask')
        a('s_cmp_lg_u32 s16, 0')
        a(f's_cbranch_scc1 {lb}')
        a('v_mov_b32 v250, 1')
        a(f'v_mov_b32 v251, {JO}')
        a('s_mov_b64 exec, 1')
        a(f'buffer_atomic_add v250, v251, {JS}, 0 offen sc0')
        a('s_mov_b64 exec, -1')
        a.label(lb)
    a('s_mov_b32 s96, 0')
    if MERGE:
        a('s_cmp_lg_u32 s101, -1')
        a('s_mov_b32 s3, s101')
        a('s_mov_b32 s101, -1')
        a('s_cbranch_scc1 wk_have')
    ask()
    a('s_branch wk_next')
    a.label('wk_loop')
    a('s_waitcnt vmcnt(0) lgkmcnt(0)')
    a('s_cmp_eq_u32 s96, 1')
    a('s_cbranch_scc1 wk_ask')
    a('s_mov_b32 s96, 1')
    staff_check(a, 'wk_ask', 0)
    a.label('wk_ask')
    a('v_readfirstlane_b32 s22, v250')
    a(f's_cmp_ge_u32 s22, {NJ}')
    a('s_cbranch_scc1 wk_next')
    ask()
    a.label('wk_next')
    evlog(a, 9005)
    a('v_mov_b32 v6, 160000')
    a('s_waitcnt vmcnt(0)')
    a('s_barrier')
    a('s_cmp_lg_u32 s16, 0')
    a('s_cbranch_scc1 wk_n1')
    a('s_mov_b64 exec, 1')
    a('ds_write_b32 v6, v250')
    a('s_mov_b64 exec, -1')
    a('s_waitcnt lgkmcnt(0)')
    a.label('wk_n1')
    a('s_barrier')
    a('ds_read_b32 v4, v6')
    a('s_waitcnt lgkmcnt(0)')
    a('v_readfirstlane_b32 s3, v4')
    a.label('wk_have')
    evlog(a, 's3')
    a(f's_cmp_ge_u32 s3, {NJ}')
    a('s_cbranch_scc1 wk_done')
    a('v_mov_b32 v250, 0')
    a(f'v_mov_b32 v251, {JO}')
    a('v_and_b32 v1, 63, v0')
    a('v_lshlrev_b32 v2, 4, v1')
    a('v_lshrrev_b32 v3, 4, v1')
    a('v_and_b32 v4, 15, v1')
    if MERGE == 3: flag_wait(a, 'wk_fw')
    if MERGE == 1:
        a('s_cmp_ge_u32 s3, 112')
        a('s_cbranch_scc1 wk_np')
        prep.prep_item(a, 'wpa', 's3', st='sc1', mode='A')
        flag_wait(a, 'wk_fa')
        a('s_waitcnt vmcnt(0)')
        a('s_barrier')
        a('v_mov_b32 v250, 0')
        a('s_cmp_lg_u32 s16, 0')
        a('s_cbranch_scc1 wk_loop')
        a('s_lshl_b32 s20, s17, 7')
        a(f's_add_u32 s20, s20, {CNT_OFF + AC}')
        a('v_mov_b32 v5, 1')
        a('v_mov_b32 v6, 0')
        a('s_mov_b64 exec, 1')
        a(f'buffer_atomic_add v5, v6, {SRD}, s20 offen')
        a('s_mov_b64 exec, -1')
        a('s_branch wk_loop')
        a.label('wk_np')
        a('s_sub_u32 s3, s3, 112')
        flag_wait(a, 'wk_fw')
    a('s_cmp_ge_u32 s3, 592')
    a('s_cbranch_scc1 wk_tok')
    a('s_cmp_ge_u32 s3, 480')
    a('s_cbranch_scc1 wk_s4d')
    a('s_cmp_ge_u32 s3, 256')
    a('s_cbranch_scc1 wk_full')
    a('s_cmp_ge_u32 s3, 224')
    a('s_cbranch_scc1 wk_srv')
    a('s_cmp_ge_u32 s3, 112')
    a('s_cselect_b32 s18, 1, 0')
    a('s_cselect_b32 s20, 112, 0')
    a('s_sub_u32 s20, s3, s20')
    a('s_and_b32 s17, s20, 15')
    a('s_add_u32 s17, s17, 16')
    a('s_lshr_b32 s34, s20, 4')
    a('s_lshl_b32 s34, s34, 1')
    a('s_add_u32 s35, s34, 2')
    if RB1_DELAY:
        a('s_cmp_eq_u32 s18, 0')
        a('s_cbranch_scc1 wk_gemm')
        for _ in range(RB1_DELAY): a('s_sleep 127')
    a('s_branch wk_gemm')
    a.label('wk_full')
    a('s_sub_u32 s20, s3, 224')
    a('s_and_b32 s17, s20, 15')
    a('s_lshr_b32 s18, s20, 4')
    a('s_cmp_lt_u32 s18, 8')
    a('s_cselect_b32 s21, 16, 0')
    a('s_add_u32 s17, s17, s21')
    a('s_and_b32 s18, s18, 7')
    a('s_mov_b32 s34, 0\ns_mov_b32 s35, 14')
    a.label('wk_gemm')
    if MERGE == 1:
        a('s_cmp_ge_u32 s17, 16')
        a('s_cbranch_scc1 wk_g2')
        ac_wait(a, 'wk_aw')
        a.label('wk_g2')
        evlog(a, 9006)
    gemm.gemm_body(a, 'wg', 's18', 's17', st='sc1', signal=True, ld='sc1' if MERGE else '')
    a('s_branch wk_loop')
    a.label('wk_srv')
    import t2srv
    a('s_and_b32 s18, s3, 15')
    a('s_lshr_b32 s19, s3, 4')
    a('s_and_b32 s19, s19, 1')
    t2srv.t2srv_body(a, 'ws', 's18', 's19', 'cA_abort', ld='sc1' if MERGE else '')
    a('v_mov_b32 v250, 0')
    a('s_branch wk_loop')
    a.label('wk_s4d')
    a('s_sub_u32 s3, s3, 480')
    s4d.s4d_setup(a)
    s4d.s4d_item(a, 'wk', 's3')
    a('s_branch wk_loop')
    a.label('wk_tok')
    a('s_sub_u32 s3, s3, 592')
    a('s_cmp_ge_u32 s3, 512')
    a('s_cbranch_scc1 wk_done')
    a('s_lshr_b32 s17, s3, 3')
    a('s_and_b32 s18, s3, 3')
    a('s_bitcmp1_b32 s3, 2')
    a('s_cbranch_scc1 wk_toko')
    tok.tokp_body(a, 's17', 's18', ld='sc1', st='sc1', sync='wp', ldx='sc1' if MERGE else '')
    a('s_branch wk_loop')
    a.label('wk_toko')
    tok.toko_body(a, 's17', 's18', ld='sc1', sync='wo', OUT='s[92:95]')
    a('s_branch wk_loop')
    a.label('wp_abort')
    a.label('wo_abort')
    a('s_branch cA_abort')
    a.label('wk_done')

def role_tail(a, late=None):
    lane_consts(a)
    a('s_mov_b32 s19, 0')
    a(f's_mov_b32 s20, {EXCH_OFF}')
    if STAMPS: a('s_mov_b32 s63, s17')
    a('s_lshr_b32 s22, s17, 4')
    a('s_lshl_b32 s22, s22, 2')
    a('s_add_u32 s22, s22, s16')
    a('s_and_b32 s17, s17, 15')
    for p in range(8):
        a(f's_cmp_eq_u32 s22, {p}')
        a(f's_cbranch_scc1 ch_init{p}')
    a('s_branch ch_end')
    for p in range(8):
        a.label(f'ch_init{p}')
        if p < 4: init_score(a, p)
        else: init_value(a, p - 4, p)
        if late: late(p)
        a('s_mov_b32 s30, 0')
        a('v_mov_b32 v36, 0')
        a.label(f'ch_md{p}')
        a(f'buffer_load_dword v37, v36, {DBG}, 0 offen sc1')
        a('s_waitcnt vmcnt(0)')
        a('v_readfirstlane_b32 s22, v37')
        a('s_and_b32 s31, s22, 0xffff')
        a('s_cmp_ge_u32 s31, 32')
        a(f's_cbranch_scc1 ch_go{p}')
        a('s_sleep 2')
        a('s_add_u32 s30, s30, 1')
        a(f's_cmp_lt_u32 s30, {SLOW_LIMIT}')
        a(f's_cbranch_scc1 ch_md{p}')
        a('s_branch ch_end')
        a.label(f'ch_go{p}')
        evlog(a, 9003)
        if DIAG: a('s_memtime s[32:33]')
        a('s_mov_b32 s31, 0')
        if p in (4, 5):
            for r in range(36, 60): a(f'v_mov_b32 v{r}, 0')
        a('s_lshr_b32 s22, s22, 16')
        a('s_cmp_lg_u32 s22, 0')
        role = 'sc' if p < 4 else 'va'
        a(f's_cbranch_scc1 cB_{role}{p & 3}_loop')
        a(f's_branch cA_{role}{p & 3}_loop')
    for tag, st in (('cA', ''), ('cB', 'sc1')):
        for w in range(4): gen_score(a, w, st, tag)
        for w in range(4): gen_value(a, w, st, tag)
        tag_end(a, tag)

def tag_end(a, tag):
    a.label(f'{tag}_abort')
    a('v_mov_b32 v4, 0xdead')
    a('v_mov_b32 v5, 16')
    a(f'buffer_store_dword v4, v5, {DBG}, 0 offen')
    a('s_branch ch_end')
    a.label(f'{tag}_done')
    evlog(a, 9004)
    if STAMPS and STAMP_CYC:
        a('s_cmp_lg_u32 s16, 0')
        a('s_cbranch_scc1 ch_end')
        a('s_lshl_b32 s22, s63, 10')
        a(f's_add_u32 s22, s22, {STAMP_OFF + 65536}')
        a('s_mov_b32 s30, 0')
        a('s_mov_b64 exec, 1')
        a.label(f'{tag}_cal')
        a('s_memtime s[40:41]')
        a('s_memrealtime s[42:43]')
        a('s_waitcnt lgkmcnt(0)')
        a('v_mov_b32 v4, s40')
        a('v_mov_b32 v5, s42')
        a(f'buffer_store_dwordx2 v[4:5], off, {SRD}, s22')
        a('s_add_u32 s22, s22, 8')
        a('s_add_u32 s30, s30, 1')
        a('s_cmp_lt_u32 s30, 128')
        a(f's_cbranch_scc1 {tag}_cal')
    if DIAG:
        a('s_memtime s[60:61]')
        a('s_waitcnt lgkmcnt(0)')
        a('s_sub_u32 s60, s60, s32')
        a('v_mov_b32 v4, s60')
        a('v_mov_b32 v5, 8')
        a(f'buffer_store_dword v4, v5, {DBG}, 0 offen')
        a('v_mov_b32 v4, s31')
        a('v_mov_b32 v5, 12')
        a('s_mov_b64 exec, 1')
        a(f'buffer_atomic_add v4, v5, {DBG}, 0 offen')
    a('s_branch ch_end')

def gen_chain_kernel(name='chain_kernel', worker=worker_s4d):
    a = Asm()
    a.raw(kernel_header(name))
    a('s_cmp_ge_u32 s2, 256')
    a('s_cbranch_scc1 ch_end')
    a('s_load_dwordx2 s[4:5], s[0:1], 120')
    a('s_load_dwordx2 s[6:7], s[0:1], 128')
    if CODE_PF: code_prefetch(a, name, 'ch_end', 130000, 60)
    a('s_getreg_b32 s3, hwreg(HW_REG_XCC_ID)')
    a('s_and_b32 s3, s3, 15')
    a('v_lshrrev_b32 v1, 6, v0')
    a('v_readfirstlane_b32 s16, v1')
    a('s_waitcnt lgkmcnt(0)')
    a('s_mov_b32 s8, s6\ns_and_b32 s9, s7, 0xffff\ns_mov_b32 s10, 0x10000000\ns_mov_b32 s11, 0x20000')
    a('s_mov_b32 s12, s4\ns_and_b32 s13, s5, 0xffff\ns_mov_b32 s14, 256\ns_mov_b32 s15, 0x20000')
    if EVLOG:
        a('s_lshl_b32 s100, s2, 2')
        a('s_add_u32 s100, s100, s16')
        a('s_lshl_b32 s100, s100, 8')
        a(f's_add_u32 s100, s100, {EV_OFF}')
    evlog(a, 9000)
    if MERGE:
        import prep
        a('s_mov_b32 s97, 0')
        a('s_mov_b32 s91, s3')
        a('v_and_b32 v1, 63, v0')
        a('v_lshlrev_b32 v2, 4, v1')
        a('v_lshrrev_b32 v3, 4, v1')
        a('v_and_b32 v4, 15, v1')
        a('s_cmp_lg_u32 s16, 0')
        a('s_cbranch_scc1 m_a1')
        a(f's_cmp_eq_u32 s3, {XCD_SEL}')
        a('s_cselect_b32 s20, 0, 64')
        a('v_accvgpr_write_b32 a255, 1')
        a('s_mov_b64 exec, 1')
        a(f'buffer_atomic_add a255, v2, {DBG}, s20 offen sc0')
        a('s_mov_b64 exec, -1')
        a.label('m_a1')
        prep.xall_pre(a, 's2')
        a('s_cmp_ge_u32 s2, 224')
        a('s_cbranch_scc1 m_w')
        prep.prep_item(a, 'mpb', 's2', st='sc1', mode='Bhalf' if MERGE == 1 else 'mix', defer=(MERGE == 3))
        a('s_branch m_e')
        a.label('m_w')
        a('s_waitcnt vmcnt(0)')
        a.label('m_e')
        prep.xall_post(a, 'mpx', 's2', 'sc1', wait=False)
        a('v_mov_b32 v6, 160000')
        a('s_waitcnt vmcnt(0) lgkmcnt(0)')
        a('s_barrier')
        a('s_cmp_lg_u32 s16, 0')
        a('s_cbranch_scc1 m_b1')
        a('v_mov_b32 v4, 1')
        a('v_mov_b32 v5, 96')
        a('v_accvgpr_read_b32 v7, a255')
        a('s_mov_b64 exec, 1')
        a(f'buffer_atomic_add v4, v5, {DBG}, 0 offen sc0')
        a('ds_write_b32 v6, v7')
        a('s_waitcnt lgkmcnt(0)')
        a('s_mov_b64 exec, -1')
        a.label('m_b1')
        a('s_barrier')
        a('ds_read_b32 v7, v6')
        a('s_cmp_lg_u32 s16, 0')
        a('s_cbranch_scc1 m_b2')
        a('s_waitcnt vmcnt(0)')
        a('v_readfirstlane_b32 s20, v4')
        a('s_cmp_lg_u32 s20, 255')
        a('s_cbranch_scc1 m_b2')
        a('v_mov_b32 v4, 1')
        a('v_mov_b32 v5, 128')
        a('s_mov_b64 exec, 1')
        a(f'buffer_store_dword v4, v5, {DBG}, 0 offen sc1')
        a('s_mov_b64 exec, -1')
        a.label('m_b2')
        a('s_waitcnt lgkmcnt(0)')
        a('v_readfirstlane_b32 s101, v7')
        evlog(a, 9001)
        a(f's_cmp_lg_u32 s91, {XCD_SEL}')
        a('s_cbranch_scc1 ch_worker')
        a('s_and_b32 s17, s101, 0xffff')
        a('s_mov_b32 s101, -1')
        a('s_cmp_lt_u32 s17, 32')
        a('s_cbranch_scc1 ch_role')
        a('s_branch ch_worker')
    else:
        a(f's_cmp_lg_u32 s3, {XCD_SEL}')
        a('s_cbranch_scc1 ch_worker')
    a('v_mov_b32 v4, 1')
    a('s_mov_b32 s18, 0')
    a.label('ch_take')
    a('v_mov_b32 v5, 0')
    wg_atomic(a, 'ch_el', 's17')
    a('s_and_b32 s17, s17, 0xffff')
    a('s_cmp_lt_u32 s17, 32')
    a('s_cbranch_scc1 ch_role')
    a('s_cmp_eq_u32 s18, 0')
    a('s_cbranch_scc1 ch_worker')
    a('s_branch ch_end')
    a.label('ch_role')
    if MERGE:
        flag_wait(a, 'ch_fw')
        if MERGE == 1:
            a('s_cmp_ge_u32 s17, 16')
            a('s_cbranch_scc1 ch_r2')
            ac_wait(a, 'ch_aw')
            a.label('ch_r2')
        evlog(a, 9002)
    role_tail(a)
    a.label('ch_worker')
    if worker: worker(a)
    if worker is not worker_all: staff_check(a, 'ch_end', 1)
    a.label('ch_end')
    a('s_endpgm')
    return a

if __name__ == '__main__':
    import sys
    for x in sys.argv[2:]:
        if x == 'stamps': STAMPS = True
        elif '=' in x:
            k, v = x.split('='); globals()[k] = int(v)
    a = gen_chain_kernel()
    out = ['; @launch kernel=chain_kernel grid=(256,1,1) block=(256,1,1) lds=163840',
           '.amdgcn_target "amdgcn-amd-amdhsa--gfx950"', '.text', a.text(), '.section .rodata,"a"', kernel_desc('chain_kernel')]
    open(sys.argv[1], 'w').write('\n'.join(out) + '\n')
    print('instructions', a.count)
```

```python
from asmlib import *
from layout import *
import tok
WS = 's[8:11]'
LIGHT = 1
SSL = 6
SPRE = 0
def wreg(ti, ks):
    u = ti * 7 + ks
    return 256 + 8 * u if u < 32 else 120 + 8 * (u - 32)
def t2srv_body(a, P, v_s, par_s, abort, ld=''):
    M = 8; ACC = 36; YT = 64; YA = 72
    a(f's_mul_i32 s20, {v_s}, {CUW_B}')
    a(f's_mul_i32 s21, s16, {7*TILE_B}')
    a('s_add_u32 s20, s20, s21')
    a(f's_add_u32 s20, s20, {WF_B}')
    for f in range(98):
        if f % 4 == 0: a(f's_add_u32 s22, s20, {f*1024}')
        r = wreg(0, f // 2) + 4 * (f & 1)
        a(f'buffer_load_dwordx4 {ureg(r, 4)}, v2, {WS}, s22 offen offset:{(f & 3)*1024} {ld}')
        if f % 32 == 31: a('s_waitcnt vmcnt(24)')
    a('v_mov_b32 v5, 0x4444')
    a('v_mov_b32 v6, 0xeeee')
    a('v_cmp_lt_u32 vcc, 7, v4')
    a('v_cndmask_b32 v5, v5, v6, vcc')
    a('s_lshl_b32 s23, s16, 11')
    a('v_lshrrev_b32 v80, 1, v3')
    a('v_and_b32 v81, 1, v3')
    for p in range(4):
        if p < 3: a(f'v_add_u32 v82, {2*p}, v80')
        else: a('v_mov_b32 v82, 6')
        a('v_lshl_add_u32 v82, v82, 4, v4')
        a('v_mul_u32_u24 v83, 2341, v82')
        a('v_lshrrev_b32 v83, 16, v83')
        a('v_mul_u32_u24 v84, 28, v83')
        a('v_sub_u32 v84, v82, v84')
        a('v_lshrrev_b32 v85, 4, v84')
        a('v_and_b32 v84, 15, v84')
        a('v_lshlrev_b32 v86, 10, v85')
        a('v_lshl_add_u32 v86, v83, 8, v86')
        a('v_lshl_add_u32 v86, v84, 4, v86')
        a('v_lshl_add_u32 v86, v81, 3, v86')
        a(f'v_add_u32 v{YA+p}, s23, v86')
    a('v_add_u32 v76, s23, v2')
    a(f's_mul_i32 s27, {v_s}, 448')
    a('v_mov_b32 v77, s27' if not tok.ONELINE else 'v_mov_b32 v77, 0')
    a('v_mov_b32 v78, 1')
    a(f's_mov_b32 s17, {par_s}')
    a(f's_mul_i32 s24, {par_s}, {7*KB}')
    a(f's_add_u32 s24, s24, {MEMG_OFF}')
    a(f's_mul_i32 s25, {v_s}, 65')
    a(f's_add_u32 s25, s25, {par_s}')
    a('s_lshl_b32 s25, s25, 13')
    a('s_add_u32 s25, s25, s23')
    a(f's_add_u32 s25, s25, {T2_OFF + 8*KB}')
    a(f's_lshl_b32 s26, {v_s}, 6')
    a(f's_add_u32 s26, s26, {par_s}')
    a('s_lshl_b32 s26, s26, 4')
    a('s_lshl_b32 s27, s16, 2')
    a('s_add_u32 s26, s26, s27')
    a(f's_add_u32 s26, s26, {CNT_OFF + T2F}')
    a.label(f'{P}_loop')
    for r in range(ACC, ACC + 28): a(f'v_mov_b32 v{r}, 0')
    a('s_mov_b32 s30, 0')
    if SPRE:
        a('s_cmp_ge_u32 s17, 62')
        a(f's_cbranch_scc1 {P}_pm')
        a(f's_sleep {SPRE}')
    if not LIGHT: a(f's_branch {P}_fl')
    a.label(f'{P}_pm')
    tok.mpoll(a, 79, 77, 's24')
    a('s_waitcnt vmcnt(0)')
    a('v_cmp_eq_u32 vcc, -1, v79')
    a(f's_cbranch_vccnz {P}_pr')
    a.label(f'{P}_fl')
    a('s_add_u32 s22, s24, 4096')
    for ks in range(7):
        a(f'buffer_load_dwordx4 v[{M+4*ks}:{M+4*ks+3}], v2, {WS}, {"s24" if ks < 4 else "s22"} offen offset:{(ks & 3)*1024} sc1')
    a('s_waitcnt vmcnt(0)')
    a(f'v_max_u32 v79, v{M}, v{M+1}')
    for r in range(M + 2, M + 28, 2): a(f'v_max3_u32 v79, v79, v{r}, v{r+1}')
    a('v_cmp_eq_u32 vcc, -1, v79')
    a(f's_cbranch_vccz {P}_pk')
    a.label(f'{P}_pr')
    a('s_sleep 1')
    a(f's_cmp_ge_u32 s17, {tok.LASTP}')
    a(f's_cbranch_scc1 {P}_sh')
    a(f's_sleep {SSL}')
    a.label(f'{P}_sh')
    a('s_add_u32 s30, s30, 1')
    a(f's_cmp_lt_u32 s30, {tok.WAIT_LIMIT}')
    a(f's_cbranch_scc1 {P}_pm')
    a(f's_branch {abort}')
    a.label(f'{P}_pk')
    for ti in range(7):
        for ks in range(7):
            a(f'v_smfmac_f32_16x16x64_bf16 v[{ACC+4*ti}:{ACC+4*ti+3}], v[{M+4*ks}:{M+4*ks+3}], {ureg(wreg(ti, ks), 8)}, v5')
    for p in range(4):
        A_ = ACC + 8 * p; B_ = A_ + 4 if p < 3 else YT
        if p == 3:
            for r in range(4): a(f'v_mov_b32 v{B_+r}, v{A_+r}')
        for r in range(4): a(f'v_permlane32_swap_b32 v{A_+r}, v{B_+r}')
        for r in range(4): a(f'v_add_f32 v{A_+r}, v{A_+r}, v{B_+r}')
        a(f'v_cvt_pk_bf16_f32 v{B_}, v{A_}, v{A_+1}')
        a(f'v_cvt_pk_bf16_f32 v{B_+1}, v{A_+2}, v{A_+3}')
        a(f'ds_write_b64 v{YA+p}, v[{B_}:{B_+1}]')
    a('s_waitcnt lgkmcnt(0)')
    a(f'ds_read_b128 v[{YT}:{YT+3}], v76')
    a(f'ds_read_b128 v[{YT+4}:{YT+7}], v76 offset:1024')
    a('s_waitcnt lgkmcnt(0)')
    a(f'buffer_store_dwordx4 v[{YT}:{YT+3}], v2, {WS}, s25 offen sc1')
    a(f'buffer_store_dwordx4 v[{YT+4}:{YT+7}], v2, {WS}, s25 offen offset:1024 sc1')
    a('s_waitcnt vmcnt(0)')
    a('s_mov_b64 exec, 1')
    a(f'buffer_store_dword v78, v2, {WS}, s26 offen sc1')
    a('s_mov_b64 exec, -1')
    a(f's_add_u32 s24, s24, {14*KB}')
    a(f's_add_u32 s25, s25, {16*KB}')
    a('s_add_u32 s26, s26, 32')
    a('s_add_u32 s17, s17, 2')
    a('s_cmp_lt_u32 s17, 64')
    a(f's_cbranch_scc1 {P}_loop')
```

```python
from asmlib import *
from layout import *
WS = 's[8:11]'
PEEK = WS
def ev(a, tag, t=120):
    import chain as C
    if C.EVLOG:
        l = a.newlabel('ev')
        a('s_cmp_lt_u32 s17, 62')
        a(f's_cbranch_scc1 {l}')
        a(f's_mul_i32 s29, s17, 10\ns_add_u32 s29, s29, {9200 - 620 + tag}')
        C.evlog(a, 's29', t)
        a.label(l)
def common(a, endl):
    a('s_cmp_ge_u32 s2, 256')
    a(f's_cbranch_scc1 {endl}')
    a('s_load_dwordx2 s[6:7], s[0:1], 128')
    a('s_load_dwordx2 s[4:5], s[0:1], 112')
    a('v_lshrrev_b32 v1, 6, v0')
    a('v_readfirstlane_b32 s16, v1')
    a('v_and_b32 v1, 63, v0')
    a('v_lshlrev_b32 v2, 4, v1')
    a('v_lshrrev_b32 v3, 4, v1')
    a('v_and_b32 v4, 15, v1')
    a('s_waitcnt lgkmcnt(0)')
    a('s_mov_b32 s8, s6\ns_and_b32 s9, s7, 0xffff\ns_mov_b32 s10, 0x10000000\ns_mov_b32 s11, 0x20000')
    a(f's_mov_b32 s12, s4\ns_and_b32 s13, s5, 0xffff\ns_mov_b32 s14, {2048*896*2}\ns_mov_b32 s15, 0x20000')

WAIT_LIMIT = 30000
SLEEP = 1
LONG = 127
MIDS = 4
NEAR = 56
FULLPOLL = 64
ONELINE = 0
PMODE = 3
LASTP = 61
T2MID = 20
def mpoll(a, dst, va, so):
    if PMODE == 0: a(f'buffer_load_dword v{dst}, v{va}, {WS}, {so} offen sc1')
    elif PMODE == 1: a(f'buffer_load_dword v{dst}, v{va}, {WS}, {so} offen sc0 sc1')
    elif PMODE == 2: a(f'buffer_load_dword v{dst}, v{va}, {WS}, {so} offen sc0 sc1 nt')
    else:
        l = a.newlabel('mp')
        a(f's_cmp_ge_u32 s17, {LASTP}')
        a(f's_cbranch_scc1 {l}a')
        a(f'v_mov_b32 v{dst}, 0')
        a('s_mov_b64 exec, 1')
        a(f'buffer_atomic_or v{dst}, v{va}, {WS}, {so} offen sc0')
        a('s_mov_b64 exec, -1')
        a(f's_branch {l}b')
        a.label(l + 'a')
        a(f'buffer_load_dword v{dst}, v{va}, {WS}, {so} offen sc1')
        a.label(l + 'b')
def backoff(a, P, sleep):
    a(f's_sleep {sleep}')
    a(f's_cmp_ge_u32 s17, {LASTP}')
    a(f's_cbranch_scc1 {P}_bo')
    a(f's_sleep {MIDS}')
    a(f's_cmp_ge_u32 s17, {NEAR}')
    a(f's_cbranch_scc1 {P}_bo')
    a(f's_sleep {LONG}')
    a.label(P + '_bo')
def wait_eq(a, P, soff, target, abort, sleep=None, four=False, ne=False):
    sleep = sleep or SLEEP
    if four: a('v_lshlrev_b32 v60, 2, v3')
    else: a('v_mov_b32 v60, 0')
    a('s_mov_b32 s30, 0')
    a.label(P)
    a(f'buffer_load_dword v61, v60, {WS}, {soff} offen sc1')
    a('s_waitcnt vmcnt(0)')
    a(f'v_cmp_{"eq" if ne else "ne"}_u32 vcc, {target}, v61')
    a(f's_cbranch_vccz {P}_ok')
    backoff(a, P, sleep)
    a('s_add_u32 s30, s30, 1')
    a(f's_cmp_lt_u32 s30, {WAIT_LIMIT}')
    a(f's_cbranch_scc1 {P}')
    a(f's_branch {abort}')
    a.label(P + '_ok')

def load_lin(a, base_s, n, areg, flags=''):
    for f in range(n):
        if f % 4 == 0: a(f's_add_u32 s22, {base_s}, {f*1024}')
        a(f'buffer_load_dwordx4 a[{areg+4*f}:{areg+4*f+3}], v2, {WS}, s22 offen offset:{(f & 3)*1024} {flags}')

def tokp_body(a, seg_s, hq_s, ld='', st='', sync=None, ldx=''):
    a(f's_lshl_b32 s20, {hq_s}, 2')
    a('s_add_u32 s20, s20, s16')
    a(f's_lshl_b32 s21, {seg_s}, 4')
    a('s_add_u32 s21, s21, s20')
    a(f's_mul_i32 s21, s21, {GSH_B}')
    a(f's_add_u32 s21, s21, {F_OFF}')
    a(f's_mul_i32 s23, {seg_s}, {28*KB}')
    a(f's_add_u32 s23, s23, {XM_OFF}')
    FA, XA, MA = 0, 112, 224
    if sync:
        a(f's_mul_i32 s24, {seg_s}, {7*KB}')
        a(f's_add_u32 s24, s24, {MEMG_OFF}')
        a(f's_lshr_b32 s25, {seg_s}, 3')
        a('s_lshl_b32 s25, s25, 4')
        a('s_add_u32 s25, s25, s20')
        a('s_lshl_b32 s25, s25, 7')
        a(f's_add_u32 s25, s25, {CNT_OFF + FC}')
        wait_eq(a, sync + '_wf', 's25', 56, sync + '_abort')
    else:
        a(f's_mul_i32 s24, {seg_s}, {EXCH_B}')
        a(f's_add_u32 s24, s24, {EXCH_OFF}')
    load_lin(a, 's21', 28, FA, ld)
    load_lin(a, 's23', 28, XA, ldx)
    if not sync: load_lin(a, 's24', 7, MA, ld)
    AX = {(0, 0): 8, (0, 1): 12, (1, 1): 16}
    AM = {(0, 0): 20, (1, 0): 24, (0, 1): 28, (1, 1): 32}
    for r in range(4):
        a(f'v_lshl_add_u32 v5, v3, 2, {r}')
        a(f'v_cmp_le_u32 s[{40+2*r}:{41+2*r}], v5, v4')
    a('v_cmp_gt_u32 s[48:49], 2, v3')
    a('v_mov_b32 v6, 0xff800000')
    a('s_waitcnt vmcnt(0)' if sync else 's_waitcnt vmcnt(7)')
    for f in range(14):
        for (tk, tt), d in AX.items():
            c = '0' if f == 0 else f'v[{d}:{d+3}]'
            xa = XA + 4 * (tk * 14 + f); fa = FA + 4 * (tt * 14 + f)
            a(f'v_mfma_f32_16x16x32_bf16 v[{d}:{d+3}], a[{xa}:{xa+3}], a[{fa}:{fa+3}], {c}')
    MV = 64
    if sync:
        a('s_mul_i32 s22, s20, 448')
        a('v_mov_b32 v62, s22' if not ONELINE else 'v_mov_b32 v62, 0')
        a('s_mov_b32 s30, 0')
        a.label(sync + '_pm')
        a(f's_cmp_ge_u32 s17, {FULLPOLL}')
        a(f's_cbranch_scc1 {sync}_pf')
        mpoll(a, 61, 62, 's24')
        a('s_waitcnt vmcnt(0)')
        a('v_cmp_eq_u32 vcc, -1, v61')
        a(f's_cbranch_vccnz {sync}_pr')
        a.label(sync + '_pf')
        ev(a, 0)
        a('s_add_u32 s22, s24, 4096')
        for ks in range(7):
            a(f'buffer_load_dwordx4 v[{MV+4*ks}:{MV+4*ks+3}], v2, {WS}, {"s24" if ks < 4 else "s22"} offen offset:{(ks & 3)*1024} sc1')
        a('s_waitcnt vmcnt(0)')
        a(f'v_max_u32 v61, v{MV}, v{MV+1}')
        for r in range(MV + 2, MV + 28, 2): a(f'v_max3_u32 v61, v61, v{r}, v{r+1}')
        a('v_cmp_eq_u32 vcc, -1, v61')
        a(f's_cbranch_vccz {sync}_pk')
        a.label(sync + '_pr')
        backoff(a, sync + '_pm', SLEEP)
        a('s_add_u32 s30, s30, 1')
        a(f's_cmp_lt_u32 s30, {WAIT_LIMIT}')
        a(f's_cbranch_scc1 {sync}_pm')
        a(f's_branch {sync}_abort')
        a.label(sync + '_pk')
        ev(a, 1)
        a(f'buffer_load_dword v250, v251, {PEEK}, 0 offen sc1')
    else:
        a('s_waitcnt vmcnt(0)')
    for ks in range(7):
        for (half, tt), d in AM.items():
            c = '0' if ks == 0 else f'v[{d}:{d+3}]'
            fa = FA + 4 * (tt * 14 + ks * 2 + half)
            mop = f'v[{MV+4*ks}:{MV+4*ks+3}]' if sync else f'a[{MA+4*ks}:{MA+4*ks+3}]'
            a(f'v_mfma_f32_16x16x32_bf16 v[{d}:{d+3}], {mop}, a[{fa}:{fa+3}], {c}')
    a(f's_lshl_b32 s25, {seg_s}, 1')
    a(f's_mul_i32 s25, s25, {PT_B}')
    a(f's_add_u32 s25, s25, {PT_OFF}')
    a('s_lshl_b32 s26, s20, 10')
    a('s_add_u32 s26, s26, s25')
    a(f's_lshl_b32 s27, {hq_s}, 10')
    a('s_add_u32 s27, s27, s25')
    a('s_lshr_b32 s28, s16, 1')
    a('s_lshl_b32 s28, s28, 3')
    a('s_add_u32 s27, s27, s28')
    a(f's_add_u32 s27, s27, {16*KB}')
    a('s_and_b32 s28, s16, 1')
    a('s_cmp_eq_u32 s28, 0')
    a('s_cselect_b32 s50, -1, 0')
    a('s_cselect_b32 s51, 0, -1')
    for tt in range(2):
        xs = []
        for (tk, t2), d in AX.items():
            if t2 != tt: continue
            for r in range(4):
                if tk == tt: a(f'v_cndmask_b32 v{d+r}, v6, v{d+r}, s[{40+2*r}:{41+2*r}]')
                xs.append(d + r)
        z, t = AM[(0, tt)], AM[(1, tt)]
        for r in range(4): a(f'v_cndmask_b32 v{z+r}, v{t+r}, v{z+r}, s[48:49]')
        for r in range(4): a(f'v_mov_b32 v{t+r}, v{z+r}')
        for r in range(4): a(f'v_permlane32_swap_b32 v{z+r}, v{t+r}')
        for r in range(4): a(f'v_add_f32 v{z+r}, v{z+r}, v{t+r}')
        ms = [z + r for r in range(4)]
        al = xs + ms
        mx = 40
        a(f'v_max3_f32 v{mx}, v{al[0]}, v{al[1]}, v{al[2]}')
        rest = al[3:]
        while len(rest) >= 2:
            a(f'v_max3_f32 v{mx}, v{mx}, v{rest[0]}, v{rest[1]}'); rest = rest[2:]
        if rest: a(f'v_max_f32 v{mx}, v{mx}, v{rest[0]}')
        for sw in ('16', '32'):
            a(f'v_mov_b32 v41, v{mx}')
            a(f'v_permlane{sw}_swap_b32 v{mx}, v41')
            a(f'v_max_f32 v{mx}, v{mx}, v41')
        for r in al: a(f'v_sub_f32 v{r}, v{r}, v{mx}')
        for r in al: a(f'v_exp_f32 v{r}, v{r}')
        a(f'v_add_f32 v42, v{ms[0]}, v{ms[1]}')
        a(f'v_add_f32 v43, v{ms[2]}, v{ms[3]}')
        a('v_add_f32 v42, v42, v43')
        a('v_mul_f32 v42, 0.5, v42')
        for r in xs: a(f'v_add_f32 v42, v42, v{r}')
        for sw in ('16', '32'):
            a('v_mov_b32 v41, v42')
            a(f'v_permlane{sw}_swap_b32 v42, v41')
            a('v_add_f32 v42, v42, v41')
        a('v_rcp_f32 v42, v42')
        for r in al: a(f'v_mul_f32 v{r}, v{r}, v42')
        o = 44 + 8 * tt
        for k in range(len(xs) // 2): a(f'v_cvt_pk_bf16_f32 v{o+k}, v{xs[2*k]}, v{xs[2*k+1]}')
        if tt == 0:
            a(f'v_mov_b32 v{o+2}, 0'); a(f'v_mov_b32 v{o+3}, 0')
        a(f'v_cvt_pk_bf16_f32 v{o+4}, v{ms[0]}, v{ms[1]}')
        a(f'v_cvt_pk_bf16_f32 v{o+5}, v{ms[2]}, v{ms[3]}')
        for k in range(6): a(f'v_min_u32 v{o+k}, -2, v{o+k}')
        a(f'buffer_store_dwordx4 v[{o}:{o+3}], v2, {WS}, s26 offen {st}')
        a('s_mov_b64 exec, s[50:51]')
        a(f'buffer_store_dwordx2 v[{o+4}:{o+5}], v2, {WS}, s27 offen {st}')
        a('s_mov_b64 exec, -1')
        if tt == 0:
            a(f's_add_u32 s26, s26, {PT_B}')
            a(f's_add_u32 s27, s27, {PT_B}')
    if sync:
        a(f's_lshl_b32 s25, {seg_s}, 7')
        a(f's_add_u32 s25, s25, {CNT_OFF + PTC}')
        a('v_mov_b32 v5, 1')
        a('v_mov_b32 v6, 0')
        ev(a, 2)
        a('s_waitcnt vmcnt(0)')
        ev(a, 3)
        a('s_mov_b64 exec, 1')
        a(f'buffer_atomic_add v5, v6, {WS}, s25 offen')
        a('s_mov_b64 exec, -1')

def toko_body(a, seg_s, vq_s, ld='', sync=None, OUT='s[12:15]'):
    a(f's_lshl_b32 s20, {vq_s}, 2')
    a('s_add_u32 s20, s20, s16')
    a('s_mul_i32 s24, s20, 65')
    a(f's_add_u32 s24, s24, {seg_s}')
    a('s_lshl_b32 s24, s24, 13')
    a(f's_add_u32 s24, s24, {T2_OFF + 8*KB}')
    a('s_lshl_b32 s21, s20, 6')
    a(f's_add_u32 s21, s21, {seg_s}')
    a(f's_mul_i32 s21, s21, {GSH_B}')
    a(f's_add_u32 s21, s21, {VO_OFF}')
    a(f's_lshl_b32 s25, {seg_s}, 1')
    a(f's_mul_i32 s25, s25, {PT_B}')
    a(f's_add_u32 s25, s25, {PT_OFF}')
    a('v_lshrrev_b32 v8, 5, v1')
    a('v_and_b32 v9, 31, v1')
    a('v_min_u32 v5, 27, v9')
    a('v_mad_u32_u24 v5, v8, 28, v5')
    a('v_lshlrev_b32 v5, 4, v5')
    a('v_lshrrev_b32 v10, 4, v9')
    a('v_lshlrev_b32 v7, 10, v10')
    a('v_lshl_add_u32 v7, v4, 4, v7')
    a('v_lshl_add_u32 v7, v8, 3, v7')
    a(f'v_mul_u32_u24 v6, {PT_B}, v10')
    a('v_lshl_add_u32 v6, v8, 8, v6')
    a('v_lshl_add_u32 v6, v4, 4, v6')
    VA = 0; T2R = 28; PR = 128
    a(f's_lshr_b32 s26, {seg_s}, 3')
    a('s_lshl_b32 s26, s26, 4')
    a('s_add_u32 s26, s26, s20')
    a('s_lshl_b32 s26, s26, 7')
    a(f's_add_u32 s26, s26, {CNT_OFF + VOC}')
    wait_eq(a, sync + '_wv', 's26', 56, sync + '_abort')
    for h in range(16):
        if h % 2 == 0: a(f's_add_u32 s22, s21, {h*1792}')
        for kh in range(2):
            r = VA + 8 * h + 4 * kh
            a(f'buffer_load_dwordx4 a[{r}:{r+3}], v5, {WS}, s22 offen offset:{(h & 1)*1792 + kh*896} {ld}')
    a(f's_cmp_ge_u32 {seg_s}, {LASTP}')
    a(f's_cbranch_scc1 {sync}_lm')
    a(f's_lshl_b32 s26, {seg_s}, 7')
    a(f's_add_u32 s26, s26, {CNT_OFF + PTC}')
    wait_eq(a, sync + '_wp', 's26', 16, sync + '_abort', sleep=2)
    a(f's_branch {sync}_lp')
    a.label(sync + '_lm')
    a(f's_mul_i32 s26, {seg_s}, {7*KB}')
    a(f's_add_u32 s26, s26, {MEMG_OFF}')
    wait_eq(a, sync + '_wm', 's26', -1, sync + '_abort', sleep=2, ne=True)
    a.label(sync + '_lp')
    ev(a, 5)
    a(f's_mul_i32 s26, s16, {10*KB}')
    a('s_add_u32 s27, s25, s26')
    a('v_add_u32 v11, s26, v2')
    a('s_lshl_b32 s26, s20, 6')
    a(f's_add_u32 s26, s26, {seg_s}')
    a('s_lshl_b32 s26, s26, 4')
    a(f's_add_u32 s26, s26, {CNT_OFF + T2F}')
    a('v_lshlrev_b32 v60, 2, v3')
    a('s_mov_b32 s30, 0')
    a.label(sync + '_pl')
    for f in range(10):
        if f % 4 == 0: a(f's_add_u32 s22, s27, {f*1024}')
        a(f'buffer_load_dwordx4 v[{PR+4*f}:{PR+4*f+3}], v2, {WS}, s22 offen offset:{(f & 3)*1024} sc1')
    a(f'buffer_load_dword v61, v60, {WS}, s26 offen sc1')
    a('s_waitcnt vmcnt(1)')
    a(f'v_max_u32 v62, v{PR}, v{PR+1}')
    for r in range(PR + 2, PR + 40, 2): a(f'v_max3_u32 v62, v62, v{r}, v{r+1}')
    a('v_cmp_eq_u32 vcc, -1, v62')
    a(f's_cbranch_vccz {sync}_pk')
    a('s_add_u32 s30, s30, 1')
    a(f's_cmp_lt_u32 s30, {WAIT_LIMIT}')
    a(f's_cbranch_scc1 {sync}_pl')
    a(f's_branch {sync}_abort')
    a.label(sync + '_pk')
    for f in range(10): a(f'ds_write_b128 v11, v[{PR+4*f}:{PR+4*f+3}] offset:{f*1024}')
    def t2l():
        for hq in range(4):
            if hq % 2 == 0: a(f's_add_u32 s22, s24, {hq*2048}')
            for kh in range(2):
                r = T2R + 8 * hq + 4 * kh
                for pc in range(2):
                    a(f'buffer_load_dwordx2 v[{r+2*pc}:{r+2*pc+1}], v7, {WS}, s22 offen offset:{(hq & 1)*2048 + kh*256 + pc*512} {ld}')
    a('s_waitcnt vmcnt(0)')
    a('v_cmp_ne_u32 vcc, 1, v61')
    a('s_mov_b32 s28, 0')
    a(f's_cbranch_vccnz {sync}_nt')
    t2l()
    a('s_mov_b32 s28, 1')
    a.label(sync + '_nt')
    a(f'buffer_load_dword v250, v251, {PEEK}, 0 offen sc1')
    ev(a, 4)
    a('s_waitcnt lgkmcnt(0)')
    a('s_barrier')
    a(f'buffer_load_dword v61, v60, {WS}, s26 offen sc1')
    ACC = 12; RG = 64
    def rd(i): a(f'ds_read_b128 v[{RG+4*(i&7)}:{RG+4*(i&7)+3}], v6 offset:{i*512}')
    for i in range(6): rd(i)
    for i in range(40):
        if i == T2MID:
            a('s_cmp_lg_u32 s28, 0')
            a(f's_cbranch_scc1 {sync}_h2')
            a('s_waitcnt vmcnt(0)')
            a('v_cmp_ne_u32 vcc, 1, v61')
            a(f's_cbranch_vccnz {sync}_h2')
            t2l()
            a('s_mov_b32 s28, 1')
            a.label(sync + '_h2')
        if i == 32:
            a('s_cmp_lg_u32 s28, 0')
            a(f's_cbranch_scc1 {sync}_ht')
            wait_eq(a, sync + '_wt', 's26', 1, sync + '_abort', four=True, sleep=1)
            t2l()
            a.label(sync + '_ht')
        if i + 6 < 40: rd(i + 6)
        a(f's_waitcnt lgkmcnt({min(6, 39 - i)})' + (' vmcnt(0)' if i == 32 else ''))
        A_ = f'a[{VA+4*i}:{VA+4*i+3}]' if i < 32 else f'v[{T2R+4*(i-32)}:{T2R+4*(i-32)+3}]'
        a(f'v_mfma_f32_32x32x16_bf16 v[{ACC}:{ACC+15}], {A_}, v[{RG+4*(i&7)}:{RG+4*(i&7)+3}], ' + ('0' if i == 0 else f'v[{ACC}:{ACC+15}]'))
    ev(a, 6)
    a('v_mul_u32_u24 v9, 1792, v9')
    a('v_lshl_add_u32 v8, v8, 3, v9')
    a(f's_mul_i32 s26, {seg_s}, {32*1792}')
    a('s_mul_i32 s22, s20, 56')
    a('s_add_u32 s26, s26, s22')
    a('s_add_u32 s26, s26, 896')
    for jj in range(4):
        d = ACC + 4 * jj; o = 96 + 2 * jj
        a(f'v_cvt_pk_bf16_f32 v{o}, v{d}, v{d+1}')
        a(f'v_cvt_pk_bf16_f32 v{o+1}, v{d+2}, v{d+3}')
        if jj == 3: a('s_mov_b32 exec_hi, 0')
        a(f'buffer_store_dwordx2 v[{o}:{o+1}], v8, {OUT}, s26 offen offset:{16*jj}')
    a('s_mov_b64 exec, -1')

def gen_tok(which):
    name = f'tok{which}_kernel'
    a = Asm(); a.raw(kernel_header(name))
    common(a, f't{which}_end')
    a('s_lshr_b32 s17, s2, 2')
    a('s_and_b32 s18, s2, 3')
    if which == 'p': tokp_body(a, 's17', 's18')
    else: toko_body(a, 's17', 's18')
    a.label(f't{which}_end')
    a('s_endpgm')
    return a
```

```python
from asmlib import *
from layout import *

SRD = 's[8:11]'; DBG = 's[12:15]'
SPIN_LIMIT = 400000
SLOW_LIMIT = 50000
NSTEPS = 64
STAMPS = False
STAMP_STEP = 32
STAMP_CYC = 0
STEPLOG = 0
STAMP_OFF = 100 * 1024 * 1024
POLL_DEPTH = 3
POLL_GAP = 0
SC_SLEEP = 0
M_GAP = 4
SC_DELAY = 0
F1_POS = 11
F2_POS = 4
VA_DELAY = 0
VO_POS = 1
P_GAP = 5
ZFILL = 1
SC_ALLPOLL = 0
FOLDW = 1
NANCHK = 1
VO_PRE0 = 0
VO_PRE = 16
VO_SLEEP = 0
F1_WAVE = 2
RB1_DELAY = 0
EC_M = 0
EC_P = 0
DIAG = 0
T2SRV = 1
SLOW_FIRST = 0
B2_POS = 0
M_ROT = 0
CODE_PF = 1
PUB_EARLY = 0
HLP_SLEEP = 0
MERGE = 0
A_TGT = 28
B_TGT = 64
SELF_POISON = 0
X_PRELOAD = 0
VO_NT = 0
FIN_SLEEP = 0
VM_BURST = 0
PUBLISH = 1
VM_EVERY = 2
PUB_FIRST = 1
VO_EARLY = 0
FLAG_SLEEP = 0
SYNC = 0
XCD_SEL = 0
NOBULK = 0
VAL_TOUCH = 0
SC_TOUCH = 0
TOUCH_POS = 2
TOUCH_AHEAD = 2
DMA_DELAY = 0
PLAIN_M = 1
MRG = 1
T2DF = 0
T2DH = 0
NOT2 = 0
ECP = 0
ALIGN = 6
APAD = 0
FAST = 1
EPI2 = 1
F2ONE = 0
SELF = 0
BDEP = None
R1 = 16
R2 = 32
PD_S = 5
PG_S = 8
PD_V = 5
PG_V = 8
PD_H = 3
PG_H = 0
VST = 0
VSM = 1
NPP = 10
VZ = 3
NPRE = 3
LPOS = 1
PLAIN_P = 1
D = 'row_mask:0xf bank_mask:0xf'
XSEG_B = 28 * KB

def stamp(a, k):
    if STAMPS: a(f'{"s_memtime" if STAMP_CYC else "s_memrealtime"} s[{40+2*k}:{41+2*k}]')
def stamp_flush(a, path, n, lbl, t=118):
    if not STAMPS: return
    a(f's_cmp_lg_u32 s19, {STAMP_STEP}')
    a(f's_cbranch_scc1 {lbl}')
    a('s_waitcnt lgkmcnt(0)')
    a(f's_lshl_b32 s22, s17, 9')
    a(f's_add_u32 s22, s22, {STAMP_OFF + path * 64}')
    a(f'v_mov_b32 v{t}, 0')
    for k in range(n):
        a(f'v_mov_b32 v{t+1}, s{40+2*k}')
        a(f'buffer_store_dword v{t+1}, v{t}, {SRD}, s22 offen offset:{4*k}')
    a.label(lbl)

EVLOG = 0
EV_OFF = 101 * 1024 * 1024
def evlog(a, tag, t=36):
    if not EVLOG: return
    a('s_memrealtime s[98:99]')
    a('s_waitcnt lgkmcnt(0)')
    a(f'v_mov_b32 v{t}, {tag}')
    a(f'v_mov_b32 v{t+1}, s98')
    a('s_mov_b64 exec, 1')
    a(f'buffer_store_dwordx2 v[{t}:{t+1}], off, {SRD}, s100')
    a('s_mov_b64 exec, -1')
    a('s_add_u32 s100, s100, 8')

TMAX = 0
def tmax(a, slot, t=36):
    if not TMAX: return
    a('s_memrealtime s[98:99]')
    a('s_waitcnt lgkmcnt(0)')
    a('s_sub_u32 s98, s98, s88')
    a(f'v_mov_b32 v{t}, s98')
    a('s_mov_b64 exec, 1')
    a(f'buffer_atomic_umax v{t}, off, {DBG}, 0 offset:{4*slot}')
    a('s_mov_b64 exec, -1')

def exec_lo(a, R):
    if R == 32: a('s_mov_b32 exec_hi, 0')
    else: a(f's_mov_b64 exec, {(1 << R) - 1}')

def spin(a, back, abort):
    a('s_add_u32 s30, s30, 1')
    a(f's_cmp_lt_u32 s30, {SPIN_LIMIT}')
    a(f's_cbranch_scc1 {back}')
    a(f's_branch {abort}')

def flagpoll(a, vaddr, sbase, regs, lbl, abort, Dp=None, gap=None, issued=0):
    Dp = Dp or POLL_DEPTH
    gap = POLL_GAP if gap is None else gap
    for i in range(issued, Dp):
        a(f'buffer_load_dword v{regs+i}, v{vaddr}, {SRD}, {sbase} offen sc1')
        if i < Dp - 1: a.nop(gap)
    a.label(lbl + '_l')
    for i in range(Dp):
        a(f's_waitcnt vmcnt({Dp-1})')
        a(f'v_cmp_eq_u32 vcc, -1, v{regs+i}')
        a(f's_cbranch_vccz {lbl}_d')
        a(f'buffer_load_dword v{regs+i}, v{vaddr}, {SRD}, {sbase} offen sc1')
    spin(a, lbl + '_l', abort)
    a.label(lbl + '_d')

def load_M(a, M, gap=0, k0=0):
    for ks in range(k0, 7):
        so = 's20' if ks < 4 else 's23'
        a(f'buffer_load_dwordx4 v[{M+4*ks}:{M+4*ks+3}], v2, {SRD}, {so} offen offset:{(ks & 3) * 1024} sc1')
        if gap and ks < 3: a.nop(gap)

def load_units(a, units, base, tmp_s='s22'):
    cur = None; n = 0
    for off, reg in units:
        for hb in range(2):
            o = off + hb * 1024
            blk = o // 4096 * 4096
            if blk != cur:
                a(f's_add_u32 {tmp_s}, {base}, {blk}'); cur = blk
            a(f'buffer_load_dwordx4 {ureg(reg + 4 * hb, 4)}, v2, {SRD}, {tmp_s} offen offset:{o - blk}' + (' sc1' if MERGE else ''))
            n += 1
            if n % 32 == 0: a('s_waitcnt vmcnt(24)')

def wreg(ti, ks):
    u = ti * 7 + ks
    return 256 + 8 * u if u < 32 else 120 + 8 * (u - 32)

def lane_consts(a):
    a('v_and_b32 v1, 63, v0')
    a('v_lshlrev_b32 v2, 4, v1')
    a('v_lshrrev_b32 v116, 4, v1')
    a('v_and_b32 v117, 15, v1')
    a('v_mov_b32 v3, 0x4444')
    a('v_mov_b32 v118, 0xeeee')
    a('v_cmp_lt_u32 vcc, 7, v117')
    a('v_cndmask_b32 v3, v3, v118, vcc')

def step_bases(a):
    a('s_add_u32 s23, s20, 4096')
    a(f's_add_u32 s21, s20, {EXCH_B}')

class Checker:
    def __init__(self, a, acc): self.a = a; self.acc = acc; self.q = []; self.first = True
    def add(self, r, n=4): self.q += list(range(r, r + n))
    def emit(self, k=1):
        for _ in range(k):
            if self.first and len(self.q) >= 3:
                x, y, z = self.q[:3]; self.q = self.q[3:]
                self.a(f'v_max3_u32 v{self.acc}, v{x}, v{y}, v{z}'); self.first = False
            elif len(self.q) >= 2:
                x, y = self.q[:2]; self.q = self.q[2:]
                self.a(f'v_max3_u32 v{self.acc}, v{self.acc}, v{x}, v{y}')
            elif len(self.q) == 1:
                self.a(f'v_max_u32 v{self.acc}, v{self.acc}, v{self.q[0]}'); self.q = []
    def drain(self):
        while self.q: self.emit()

XP = 2 * XSEG_B
MP = XP + 8 * KB
def score_tiles(w):
    return [(w, 0), (w, 1), (w, 2), (w, 3), (4 + (w >> 1), 2 * (w & 1)), (4 + (w >> 1), 2 * (w & 1) + 1), (6, w)]

def x_dma(a, w):
    a(f's_add_u32 m0, s25, {7*w*1024}')
    for f in range(7):
        if f == 4:
            a(f's_add_u32 m0, s25, {7*w*1024 + 4096}')
            a('s_add_u32 s22, s24, 4096')
        a(f'buffer_load_dwordx4 v2, {SRD}, {"s24" if f < 4 else "s22"} offen offset:{(f & 3) * 1024}' + (' sc1' if MERGE else '') + ' lds')

def gen_score(a, w, st, tag):
    L = lambda n: f'{tag}_sc{w}_{n}'
    ABORT = f'{tag}_abort'
    M = 8; ACC = 36; AOP = 64; TR = 68; BOP6 = 76; BOPB = 80; BOPA = 60; SACC = 84; SX = 88
    XS = [96, 104, [12, 16, 8, 8][w], 52, 36]
    ka, kb = w, 4 + (w >> 1)
    half6, piece6, pieceP = w & 1, w >> 1, w & 1
    def S(ti, ks):
        return f'v_smfmac_f32_16x16x64_bf16 v[{ACC+4*ti}:{ACC+4*ti+3}], v[{M+4*ks}:{M+4*ks+3}], {ureg(wreg(ti, ks), 8)}, v3'
    def cvt(dst, src):
        return [f'v_cvt_pk_bf16_f32 v{dst}, v{src}, v{src+1}', f'v_cvt_pk_bf16_f32 v{dst+1}, v{src+2}, v{src+3}']
    def T(dst): return f'v_mfma_f32_16x16x32_bf16 v[{dst}:{dst+3}], v[{AOP}:{AOP+3}], v[4:7], 0'
    def xrd(buf, kap, tt):
        off = (tt * 14 + 2 * kap) * 1024
        return [f'ds_read_b128 v[{XS[buf]}:{XS[buf]+3}], v116 offset:{off}', f'ds_read_b128 v[{XS[buf]+4}:{XS[buf]+7}], v116 offset:{off+1024}']
    def xrd2(buf, tt):
        return [f'ds_read_b128 v[{XS[buf]}:{XS[buf]+3}], v117 offset:{tt*14*KB}', f'ds_read_b128 v[{XS[buf]+4}:{XS[buf]+7}], v117 offset:{tt*14*KB+1024}']
    xfirst = (lambda: xrd2(0, 0) + xrd2(1, 1)) if MRG else (lambda: xrd(0, 6, 0) + xrd(1, 6, 1))
    def Smm(kap, b, first=False):
        c = '0' if first else f'v[{SACC}:{SACC+3}]'
        return f'v_mfma_f32_16x16x32_bf16 v[{SACC}:{SACC+3}], v[{M+4*kap}:{M+4*kap+3}], v[{b}:{b+3}], {c}'
    def Sx(tt, b, buf):
        return f'v_smfmac_f32_16x16x64_bf16 v[{SX+4*tt}:{SX+4*tt+3}], v[{b}:{b+3}], v[{XS[buf]}:{XS[buf]+7}], v3'
    ZR = list(range(ACC, ACC + 28)) + list(range(SX, SX + 8)) + [AOP + 2 - 2 * half6, AOP + 3 - 2 * half6]
    def zero(lo=0, hi=99):
        for r in ZR[lo:hi]: a(f'v_mov_b32 v{r}, 0')
    o1 = [(k + w) % 4 for k in range(4)] if M_ROT else [0, 1, 2, 3]
    o2 = [4 + (k + w) % 3 for k in range(3)] if M_ROT else [4, 5, 6]
    def ml(ks, first=False):
        a(f'buffer_load_dwordx4 v[{M+4*ks}:{M+4*ks+3}], v2, {SRD}, {"s20" if ks < 4 else "s23"} offen offset:{(ks & 3) * 1024}' + ('' if first and PLAIN_M and st == '' else ' sc1'))
    if ALIGN: a.raw(f'.p2align {ALIGN}\n' + '  s_nop 0\n' * APAD)
    a.label(L('loop'))
    step_bases(a)
    zero(3 * M_GAP if ZFILL else 0)
    a('s_mov_b32 s30, 0')
    if NANCHK: a('s_mov_b32 s62, 0')
    if SC_ALLPOLL:
        a('s_waitcnt vmcnt(0)')
        a('s_barrier')
        if SC_SLEEP: a(f's_sleep {SC_SLEEP}')
        flagpoll(a, 117, 's20', TR, L('fp'), ABORT)
        stamp(a, 0)
    else:
        if w == 0:
            if SC_SLEEP: a(f's_sleep {SC_SLEEP}')
            flagpoll(a, 0, 's20', TR, L('fp'), ABORT, PD_S, PG_S)
            if SC_DELAY: a.nop(SC_DELAY)
            ml(o1[0], True)
            a('s_barrier')
            stamp(a, 0)
            a(f's_branch {L("ld1")}')
        else:
            a('s_waitcnt vmcnt(0)')
            stamp(a, 7)
            a('s_barrier')
            stamp(a, 0)
    a.label(L('ld'))
    ml(o1[0], NANCHK)
    if w == 0: a.label(L('ld1'))
    order = o1 + o2
    for i, ks in enumerate(order[1:NPRE]):
        if i < 3:
            if ZFILL: zero(i * M_GAP, (i + 1) * M_GAP)
            else: a.nop(M_GAP)
        ml(ks, NANCHK)
    if ZFILL and NPRE < 4: zero((NPRE - 1) * M_GAP, 3 * M_GAP)
    if NANCHK and NPRE == 7: a.label(L('ld2'))
    for x in xfirst(): a(x)
    ck = Checker(a, 118)
    issued = NPRE
    late = order[NPRE:]
    for i, ks in enumerate(o1):
        a(f's_waitcnt vmcnt({issued-1-i})')
        if i < EC_M:
            a.label(L(f'e{i}'))
            r = M + 4 * ks
            a(f'v_max3_u32 v{TR}, v{r}, v{r+1}, v{r+2}')
            a(f'v_max_u32 v{TR}, v{TR}, v{r+3}')
            a(f'v_cmp_eq_u32 vcc, -1, v{TR}')
            a(f's_cbranch_vccnz {L(f"er{i}")}')
        elif not NANCHK: ck.add(M + 4 * ks)
        if i == 0: stamp(a, 1)
        for ti in range(7):
            a(S(ti, ks))
            if ti in (1, 3): ck.emit()
            if late and ti in ((LPOS, LPOS + 3) if LPOS < 4 else (LPOS - 4,)):
                ml(late.pop(0), NANCHK); issued += 1
    assert not late
    a('s_waitcnt vmcnt(0)')
    if NPRE < 7: a.label(L('ph2'))
    stamp(a, 2)
    for k in (4, 5, 6):
        if not NANCHK: ck.add(M + 4 * k)
    seq = []
    for ti in (6, 4, 5, 0, 1, 2, 3):
        for ks in (4, 5, 6): seq.append([S(ti, ks), []])
    def side(i, ops): seq[i][1] += ops
    CK = 'CK'
    for i in range(6): side(i, [CK])
    if MRG:
        M2 = 80
        side(0, xrd(2, ka, 0))
        if (w == 1 or w == 2): side(1, [f'buffer_load_dword v119, v0, {SRD}, {"s20" if w == 1 else "s24"} offen sc1'])
        mv = [f'v_mov_b32 v{M2+k}, v{M+4*kb+2*pieceP+k}' for k in range(2)] + [f'v_mov_b32 v{M2+2+k}, v{M+24+2*piece6+k}' for k in range(2)]
        side(2, mv[:1]); side(3, mv[1:2]); side(4, mv[2:3]); side(7, mv[3:])
        c6 = cvt(AOP + 2 * half6, ACC + 24)
        side(5, c6[:1]); side(6, c6[1:])
        seq.insert(8, [T(TR), []])
        cb6 = cvt(BOP6 + 2, TR)
        side(11, cb6[:1]); side(12, cb6[1:])
        c4, c5 = cvt(AOP, ACC + 16), cvt(AOP + 2, ACC + 20)
        side(9, c4[:1]); side(10, c4[1:]); side(12, c5[:1]); side(13, c5[1:])
        seq.insert(15, [T(TR + 4), xrd(3, ka, 1)])
        c0, c1 = cvt(AOP, ACC), cvt(AOP + 2, ACC + 4)
        side(16, c0[:1]); side(17, c0[1:])
        cbb = cvt(BOP6, TR + 4)
        side(18, cbb[:1]); side(19, cbb[1:] + c1[:1]); side(20, c1[1:])
        seq.insert(22, [T(TR), []])
        c2, c3 = cvt(AOP, ACC + 8), cvt(AOP + 2, ACC + 12)
        side(23, c2[:1])
        seq.append([f'v_mfma_f32_16x16x32_bf16 v[{SACC}:{SACC+3}], v[{M2}:{M2+3}], v[{BOP6}:{BOP6+3}], 0', c2[1:] + ['s_waitcnt lgkmcnt(0)']])
        ca0 = cvt(BOPA, TR)
        seq.append([Sx(0, BOP6, 0), ca0 + c3])
        seq.append([T(TR + 4), []])
        seq.append([Sx(1, BOP6, 1), cvt(BOPA + 2, TR + 4)])
        seq.append([Smm(ka, BOPA), []])
        seq.append([Sx(0, BOPA, 2), []])
        seq.append([Sx(1, BOPA, 3), []])
    else:
        side(0, xrd(2, kb, 0))
        if SC_TOUCH: side(TOUCH_POS, [f'buffer_load_dword v119, v117, {SRD}, s35 offen sc1'])
        if not VAL_TOUCH and ((w == 1 and not SELF_POISON) or (w == 2 and not X_PRELOAD)): side(TOUCH_POS - 1, [f'buffer_load_dword v119, v0, {SRD}, {"s20" if w == 1 else "s24"} offen sc1'])
        c6 = cvt(AOP + 2 * half6, ACC + 24)
        side(5, c6[:1]); side(6, c6[1:] + ['v_cmp_eq_u32 vcc, -1, v118'])
        seq.insert(8, [T(TR), []])
        side(9, [f's_cbranch_vccnz {L("retry")}'])
        cb6 = cvt(BOP6 + 2 * piece6, TR)
        side(11, cb6[:1]); side(12, cb6[1:])
        c4, c5 = cvt(AOP, ACC + 16), cvt(AOP + 2, ACC + 20)
        side(9, c4[:1]); side(10, c4[1:]); side(12, c5[:1]); side(13, c5[1:])
        seq.insert(15, [T(TR + 4), xrd(3, kb, 1)])
        c0, c1 = cvt(AOP, ACC), cvt(AOP + 2, ACC + 4)
        side(16, c0[:1]); side(17, c0[1:])
        cbb = cvt(BOPB + 2 * pieceP, TR + 4)
        side(18, cbb[:1]); side(19, cbb[1:] + c1[:1]); side(20, c1[1:])
        seq.insert(22, [T(TR), xrd(4, ka, 0)])
        c2, c3 = cvt(AOP, ACC + 8), cvt(AOP + 2, ACC + 12)
        side(23, ['s_waitcnt lgkmcnt(4)'] + c2[:1])
        seq.append([Smm(6, BOP6, True), c2[1:]])
        seq.append([Sx(0, BOP6, 0), xrd(0, ka, 1)])
        ca0 = cvt(BOPA, TR)
        seq.append([Sx(1, BOP6, 1), c3])
        seq.append([Smm(kb, BOPB), ca0[:1]])
        seq.append([T(TR + 4), ca0[1:] + ['s_waitcnt lgkmcnt(4)']])
        seq.append([Sx(0, BOPB, 2), []])
        seq.append([Sx(1, BOPB, 3), ['s_waitcnt lgkmcnt(0)'] + cvt(BOPA + 2, TR + 4)])
        if FOLDW:
            seq.append([Smm(ka, BOPA), []])
            seq.append([Sx(0, BOPA, 4), []])
            seq.append([Sx(1, BOPA, 0), []])
        else:
            seq.append([Sx(0, BOPA, 4), []])
            seq.append([Sx(1, BOPA, 0), []])
            seq.append([Smm(ka, BOPA), []])
    for m, ops in seq:
        a(m)
        for o in ops:
            if o == CK: ck.emit()
            elif NANCHK and (o.startswith('v_cmp') or o.startswith('s_cbranch')): pass
            else:
                if o.startswith('v_cmp'): ck.drain()
                a(o)
    if FOLDW:
        a('s_mov_b64 exec, s[26:27]')
        a(f'ds_write_b128 v113, v[{SACC}:{SACC+3}]')
        a('s_mov_b64 exec, -1')
        a(f'v_cmp_u_f32 vcc, v{SX}, v{SX+1}')
        for r in range(4): a(f'v_permlane32_swap_b32 v{SX+r}, v{SX+4+r}')
        for r in range(4): a(f'v_add_f32 v{SX+r}, v{SX+r}, v{SX+4+r}')
        a(f'ds_write_b128 v112, v[{SX}:{SX+3}]')
    else:
        a(f'ds_write_b128 v112, v[{SX}:{SX+3}]')
        if NANCHK: a(f'v_cmp_u_f32 vcc, v{SX}, v{SX+1}')
        a(f'ds_write_b128 v112, v[{SX+4}:{SX+7}] offset:256')
        a('s_mov_b64 exec, s[26:27]')
        a(f'ds_write_b128 v113, v[{SACC}:{SACC+3}]')
        a('s_mov_b64 exec, -1')
    if NANCHK:
        a(f's_cbranch_vccnz {L("retry")}')
        a.label(L('cont'))
    stamp(a, 3)
    a('s_waitcnt lgkmcnt(0)')
    a('s_barrier')
    stamp(a, 4)
    t = ACC
    for k in range(2 if FOLDW else 4): a(f'ds_read_b64 v[{t+2*k}:{t+2*k+1}], v114 offset:{k*1024}')
    a(f'ds_read2_b32 v[{t+8}:{t+9}], v115 offset0:0 offset1:64')
    if w == F1_WAVE: a(f'v_lshl_add_u32 v{t+20}, v2, 3, s36')
    def f1(pos):
        if w == F1_WAVE and pos == F1_POS:
            exec_lo(a, R1)
            a(f'buffer_store_dword v2, v{t+20}, {SRD}, s20 offen {st}')
            a('s_mov_b64 exec, -1')
    if F1_POS < 0 and w == F1_WAVE:
        a.nop(4 * (F1_POS + 4)); f1(F1_POS)
    a('s_waitcnt lgkmcnt(0)')
    f1(0)
    stamp(a, 5)
    sm, sx = t + 8, t
    a(f'v_add_f32 v{sm}, v{t+8}, v{t+9}')
    a(f'v_add_f32 v{t}, v{t}, v{t+2}')
    a(f'v_add_f32 v{t+1}, v{t+1}, v{t+3}')
    f1(10)
    a(f'v_add_f32_dpp v{sm}, v{sm}, v{sm} row_ror:8 {D}')
    if FOLDW:
        a(f'v_mov_b32 v{t+9}, v{sm}')
        f1(11)
        a(f'v_permlane32_swap_b32 v{t}, v{t+1}')
        a(f'v_add_f32 v{sx}, v{t}, v{t+1}')
        f1(12)
        a(f'v_permlane16_swap_b32 v{sm}, v{t+9}')
        a(f'v_add_f32 v{sm}, v{sm}, v{t+9}')
        f1(13)
    else:
        a(f'v_add_f32 v{t+4}, v{t+4}, v{t+6}')
        a(f'v_add_f32 v{t+5}, v{t+5}, v{t+7}')
        a(f'v_mov_b32 v{t+9}, v{sm}')
        a(f'v_add_f32 v{t}, v{t}, v{t+4}')
        a(f'v_add_f32 v{t+1}, v{t+1}, v{t+5}')
        a(f'v_permlane16_swap_b32 v{sm}, v{t+9}')
        a(f'v_add_f32 v{sm}, v{sm}, v{t+9}')
        a(f'v_permlane32_swap_b32 v{t}, v{t+1}')
        a(f'v_add_f32 v{sx}, v{t}, v{t+1}')
    if FAST:
        ex, em, ab = t + 12, t + 13, t + 14
        l = t + 3; u = t + 4; v = t + 5; lo = t + 6; hi = t + 7
        def norm(fast):
            a(f'v_fma_f32 v{l}, v{em}, s37, v{ex}')
            if fast: a(f'v_cmp_ngt_f32 vcc, s56, v{ab}')
            a(f'v_cndmask_b32 v{v}, v{ex}, v{em}, s[38:39]')
            a(f'v_add_f32_dpp v{l}, v{l}, v{l} quad_perm:[1,0,3,2] {D}')
            a(f'v_cndmask_b32 v{u}, v{em}, v{ex}, s[38:39]')
            a(f'v_mov_b32_dpp v{t+10}, v{v} quad_perm:[1,0,3,2] {D}')
            a(f'v_add_f32_dpp v{l}, v{l}, v{l} quad_perm:[2,3,0,1] {D}')
            a(f'v_cndmask_b32 v{lo}, v{t+10}, v{u}, s[38:39]')
            a(f'v_cndmask_b32 v{hi}, v{u}, v{t+10}, s[38:39]')
            a(f'v_add_f32_dpp v{l}, v{l}, v{l} row_half_mirror {D}')
            if fast: a(f's_cbranch_vccnz {L("slow")}')
            a(f'v_add_f32_dpp v{l}, v{l}, v{l} row_mirror {D}')
            a(f'v_mov_b32 v{t+11}, v{l}')
            a(f'v_permlane16_swap_b32 v{l}, v{t+11}')
            a(f'v_add_f32 v{l}, v{l}, v{t+11}')
            a(f'v_rcp_f32 v{l}, v{l}')
            a('s_mov_b64 exec, s[28:29]')
            a(f'v_mul_f32 v{lo}, v{lo}, v{l}')
            a(f'v_mul_f32 v{hi}, v{hi}, v{l}')
            a(f'v_cvt_pk_bf16_f32 v{lo}, v{lo}, v{hi}')
        a(f'v_exp_f32 v{ex}, v{sx}')
        a(f'v_exp_f32 v{em}, v{sm}')
        a(f'v_add_f32 v{ab}, abs(v{sx}), abs(v{sm})')
        f1(1)
        norm(True)
        a.label(L('pst'))
    else:
        mx = t + 2
        a(f'v_max_f32 v{mx}, v{sx}, v{sm}')
        f1(1)
        a(f'v_max_f32_dpp v{mx}, v{mx}, v{mx} quad_perm:[1,0,3,2] {D}')
        a(f'v_max_f32_dpp v{mx}, v{mx}, v{mx} quad_perm:[2,3,0,1] {D}')
        a(f'v_max_f32_dpp v{mx}, v{mx}, v{mx} row_half_mirror {D}')
        a(f'v_max_f32_dpp v{mx}, v{mx}, v{mx} row_mirror {D}')
        a(f'v_mov_b32 v{t+3}, v{mx}')
        a(f'v_permlane16_swap_b32 v{mx}, v{t+3}')
        a(f'v_max_f32 v{mx}, v{mx}, v{t+3}')
        f1(2)
        a(f'v_sub_f32 v{sx}, v{sx}, v{mx}')
        a(f'v_sub_f32 v{sm}, v{sm}, v{mx}')
        a(f'v_exp_f32 v{sx}, v{sx}')
        a(f'v_exp_f32 v{sm}, v{sm}')
        l = t + 3; u = t + 4; v = t + 5; lo = t + 6; hi = t + 7
        a(f'v_fma_f32 v{l}, v{sm}, s37, v{sx}')
        a(f'v_cndmask_b32 v{u}, v{sm}, v{sx}, s[38:39]')
        a(f'v_cndmask_b32 v{v}, v{sx}, v{sm}, s[38:39]')
        a(f'v_add_f32_dpp v{l}, v{l}, v{l} quad_perm:[1,0,3,2] {D}')
        a(f'v_mov_b32_dpp v{t+10}, v{v} quad_perm:[1,0,3,2] {D}')
        a(f'v_add_f32_dpp v{l}, v{l}, v{l} quad_perm:[2,3,0,1] {D}')
        a(f'v_cndmask_b32 v{lo}, v{t+10}, v{u}, s[38:39]')
        a(f'v_cndmask_b32 v{hi}, v{u}, v{t+10}, s[38:39]')
        f1(3)
        a(f'v_add_f32_dpp v{l}, v{l}, v{l} row_half_mirror {D}')
        a(f'v_add_f32_dpp v{l}, v{l}, v{l} row_mirror {D}')
        a(f'v_mov_b32 v{t+11}, v{l}')
        a(f'v_permlane16_swap_b32 v{l}, v{t+11}')
        a(f'v_add_f32 v{l}, v{l}, v{t+11}')
        f1(4)
        a(f'v_rcp_f32 v{l}, v{l}')
        a(f'v_mul_f32 v{lo}, v{lo}, v{l}')
        a(f'v_mul_f32 v{hi}, v{hi}, v{l}')
        a(f'v_cvt_pk_bf16_f32 v{lo}, v{lo}, v{hi}')
        a(f'v_min_u32 v{lo}, -2, v{lo}')
        a('s_mov_b64 exec, s[28:29]')
    a(f'buffer_store_dword v{lo}, v1, {SRD}, s20 offen {st}')
    a('s_mov_b64 exec, -1')
    f1(5)
    stamp(a, 6)
    a('s_barrier')
    if DMA_DELAY: a.nop(DMA_DELAY)
    if not NOBULK: a(f's_add_u32 s24, s24, {XSEG_B}')
    if not NOBULK: a(f's_add_u32 s35, s35, {GSH_B}')
    a(f's_xor_b32 s25, s25, {XSEG_B}')
    x_dma(a, w)
    a(f'v_xor_b32 v116, {XSEG_B}, v116')
    if MRG:
        a('v_add_u32 v117, s57, v117')
        a('s_sub_u32 s57, 0, s57')
    stamp_flush(a, w, 8, L('sf'))
    if STEPLOG and w in (1, 3):
        a('s_memtime s[40:41]' if w == 1 else 's_memrealtime s[40:41]')
        a('s_lshl_b32 s22, s17, 8')
        a('s_lshl_b32 s42, s19, 2')
        a('s_add_u32 s22, s22, s42')
        a(f's_add_u32 s22, s22, {STAMP_OFF + (4096 if w == 3 else 0)}')
        a('v_mov_b32 v118, 0')
        a('s_waitcnt lgkmcnt(0)')
        a('v_mov_b32 v119, s40')
        a(f'buffer_store_dword v119, v118, {SRD}, s22 offen')
    a('s_add_u32 s19, s19, 1')
    a('s_mov_b32 s20, s21')
    a(f's_cmp_lt_u32 s19, {NSTEPS-1}')
    a.flush()
    a(f's_cbranch_scc1 {L("loop")}')
    a(f's_branch {tag}_done')
    for i in range(EC_M):
        a.label(L(f'er{i}'))
        ml(o1[i])
        a('s_waitcnt vmcnt(0)')
        a('s_add_u32 s31, s31, 0x100')
        spin(a, L(f'e{i}'), ABORT)
    if FAST:
        a.label(L('slow'))
        mx = ab
        a(f'v_max_f32 v{mx}, v{sx}, v{sm}')
        for pm in ('quad_perm:[1,0,3,2]', 'quad_perm:[2,3,0,1]', 'row_half_mirror', 'row_mirror'): a(f'v_max_f32_dpp v{mx}, v{mx}, v{mx} {pm} {D}')
        a(f'v_mov_b32 v{t+11}, v{mx}')
        a(f'v_permlane16_swap_b32 v{mx}, v{t+11}')
        a(f'v_max_f32 v{mx}, v{mx}, v{t+11}')
        a(f'v_sub_f32 v{ex}, v{sx}, v{mx}')
        a(f'v_sub_f32 v{em}, v{sm}, v{mx}')
        a(f'v_exp_f32 v{ex}, v{ex}')
        a(f'v_exp_f32 v{em}, v{em}')
        a('s_add_u32 s31, s31, 0x100')
        norm(False)
        a(f'v_min_u32 v{lo}, -2, v{lo}')
        a(f's_branch {L("pst")}')
    a.label(L('retry'))
    if NANCHK:
        a('s_cmp_lg_u32 s62, 0')
        a(f's_cbranch_scc1 {L("cont")}')
        a('s_waitcnt vmcnt(0) lgkmcnt(0)')
        a.label(L('rv'))
        for ks in range(7): ml(ks)
        a('s_waitcnt vmcnt(0)')
        ck2 = Checker(a, 118)
        ck2.add(M, 28); ck2.drain()
        a('v_cmp_eq_u32 vcc, -1, v118')
        a(f's_cbranch_vccz {L("rk")}')
        spin(a, L('rv'), ABORT)
        a.label(L('rk'))
        a('s_mov_b32 s62, 1')
        zero()
        a('s_add_u32 s31, s31, 1')
        if NPRE == 7: a(f's_branch {L("ld2")}')
        else:
            for x in xfirst(): a(x)
            for ks in o1:
                for ti in range(7): a(S(ti, ks))
            a(f's_branch {L("ph2")}')
    else:
        a('s_waitcnt vmcnt(0) lgkmcnt(0)')
        a.nop(10)
        zero()
        a('s_add_u32 s31, s31, 1')
        spin(a, L('ld'), ABORT)

def init_score(a, w):
    AOP = 64
    a(f's_mul_i32 s31, s17, {CUW_B}')
    a(f's_add_u32 s31, s31, {WF_A}')
    units = [((kap * 4 + q) * TILE_B + ks * UNIT, wreg(ti, ks)) for ti, (kap, q) in enumerate(score_tiles(w)) for ks in range(7) if not SELF or ti >= 4]
    load_units(a, units, 's31')
    a(f's_mov_b32 s24, {XF_OFF + 7*w*1024}')
    a('s_mov_b32 s25, 0')
    x_dma(a, w)
    a('v_and_b32 v64, 7, v117')
    a('v_and_b32 v65, 1, v116')
    a('v_lshlrev_b32 v65, 2, v65')
    a('v_sub_u32 v64, v64, v65')
    a('v_lshrrev_b32 v65, 3, v117')
    a('v_lshl_add_u32 v66, v65, 2, v64')
    a('v_cmp_gt_u32 vcc, 4, v64')
    a('v_mov_b32 v67, 99')
    a('v_cndmask_b32 v66, v67, v66, vcc')
    a('v_mov_b32 v68, 0x3f80')
    a('v_mov_b32 v69, 0x3f800000')
    for d in range(4):
        a(f'v_mov_b32 v{4+d}, 0')
        a(f'v_cmp_eq_u32 vcc, {2*d}, v66')
        a(f'v_cndmask_b32 v{4+d}, v{4+d}, v68, vcc')
        a(f'v_cmp_eq_u32 vcc, {2*d+1}, v66')
        a(f'v_cndmask_b32 v{4+d}, v{4+d}, v69, vcc')
    a('v_lshrrev_b32 v64, 1, v116')
    a('v_lshrrev_b32 v65, 3, v117')
    a('v_cmp_eq_u32 s[26:27], v64, v65')
    a('v_and_b32 v66, 1, v116')
    a(f'v_add_u32 v64, {2*w}, v64')
    if FOLDW:
        a('v_lshrrev_b32 v67, 1, v116')
        a('v_lshlrev_b32 v67, 8, v67')
    else: a('v_lshlrev_b32 v67, 10, v64')
    a('v_lshl_add_u32 v67, v66, 9, v67')
    a('v_lshl_add_u32 v67, v117, 4, v67')
    a(f'v_add_u32 v112, {XP + (w*1024 if FOLDW else 0)}, v67')
    a('v_and_b32 v68, 7, v117')
    a('v_lshlrev_b32 v67, 8, v64')
    a('v_lshl_add_u32 v67, v68, 5, v67')
    a('v_lshl_add_u32 v67, v66, 4, v67')
    a(f'v_add_u32 v113, {MP}, v67')
    a('v_lshrrev_b32 v64, 5, v1')
    a('v_and_b32 v65, 31, v1')
    a('v_lshrrev_b32 v66, 3, v65')
    a('v_and_b32 v67, 7, v65')
    a('v_and_b32 v68, 3, v67')
    a('v_lshl_add_u32 v68, v66, 2, v68')
    a('v_lshrrev_b32 v69, 2, v67')
    a('v_lshl_add_u32 v68, v69, 4, v68')
    a(f'v_lshlrev_b32 v69, {11 if FOLDW else 12}, v64')
    a('v_lshl_add_u32 v69, v68, 4, v69')
    a(f'v_add_u32 v114, {XP + (w >> 1) * 512 + 2 * (w & 1) * 4}, v69')
    a(f'v_add_u32 v70, {2*w}, v64')
    a('v_lshlrev_b32 v69, 9, v66')
    a('v_lshl_add_u32 v69, v70, 5, v69')
    a('v_lshl_add_u32 v69, v67, 2, v69')
    a(f'v_add_u32 v115, {MP}, v69')
    a('v_and_b32 v71, 1, v1')
    a('v_cmp_eq_u32 s[38:39], 0, v71')
    a('v_cmp_gt_u32 vcc, 8, v65')
    a('s_or_b64 s[28:29], s[38:39], vcc')
    a('v_lshrrev_b32 v72, 1, v67')
    a('v_lshlrev_b32 v72, 2, v72')
    a('v_lshl_add_u32 v72, v70, 4, v72')
    a('s_lshl_b32 s22, s17, 9')
    a(f's_add_u32 s22, s22, {PX}')
    a('v_lshl_add_u32 v73, v66, 7, v72')
    a('v_add_u32 v73, s22, v73')
    a('s_lshl_b32 s22, s17, 7')
    a(f's_add_u32 s22, s22, {PM}')
    a('v_add_u32 v74, s22, v72')
    if VSM:
        a('v_bfe_u32 v72, v65, 1, 1')
        a('v_lshlrev_b32 v72, 7, v72')
        a('v_lshl_add_u32 v72, v70, 4, v72')
        a('v_bfe_u32 v73, v65, 2, 2')
        a('v_lshl_add_u32 v72, v73, 2, v72')
        a('v_lshrrev_b32 v73, 4, v65')
        a('v_lshl_add_u32 v73, v73, 8, v72')
        a('s_lshl_b32 s22, s17, 9')
        a(f's_add_u32 s22, s22, {PX}')
        a('v_add_u32 v73, s22, v73')
        a('s_lshr_b32 s22, s17, 1')
        a('s_lshl_b32 s22, s22, 8')
        a('s_and_b32 s34, s17, 1')
        a('s_lshl_b32 s34, s34, 3')
        a('s_add_u32 s22, s22, s34')
        a(f's_add_u32 s22, s22, {PM}')
        a('v_add_u32 v74, s22, v72')
    a('v_lshlrev_b32 v0, 2, v65')
    if F2ONE: a(f'v_and_b32 v0, 0x78, v0\nv_or_b32 v0, {4*(F2ONE-1)}, v0')
    a(f's_and_b32 s22, s17, {R2-1}')
    a('s_lshl_b32 s22, s22, 7')
    a(f's_add_u32 s22, s22, {F2}')
    a(f'v_add_u32 v0, s22, v0')
    a('v_cndmask_b32 v1, v74, v73, s[38:39]')
    a('s_lshl_b32 s36, s17, 2')
    a(f's_add_u32 s36, s36, {F1}')
    a('s_mov_b32 s37, 0x3e800000')
    for r in range(64, 112): a(f'v_mov_b32 v{r}, 0')
    if MRG:
        a('v_and_b32 v118, 1, v116')
        a('v_cmp_eq_u32 vcc, 0, v118')
        a(f'v_mov_b32 v118, {6*2048 + (w >> 1)*256}')
        a(f'v_mov_b32 v119, {(4 + (w >> 1))*2048 + (w & 1)*256}')
        a('v_cndmask_b32 v118, v118, v119, vcc')
        a('v_lshrrev_b32 v116, 1, v116')
        a('v_lshl_add_u32 v118, v116, 9, v118')
        a('v_lshl_add_u32 v117, v117, 4, v118')
        a(f's_mov_b32 s57, {XSEG_B}')
    a('s_mov_b32 s56, 0x42800000')
    a('v_mov_b32 v116, v2')
    if not MRG:
        a('v_lshrrev_b32 v117, 4, v2')
        a('v_min_u32 v117, 55, v117')
        a('v_lshlrev_b32 v117, 7, v117')
    if w in (1, 2):
        nl = 13 if w == 1 else 14
        a('v_lshrrev_b32 v0, 4, v2')
        a(f'v_min_u32 v0, {nl-1}, v0')
        a(f's_mul_i32 s22, s17, {nl}')
        a('v_add_u32 v0, s22, v0')
        a('v_lshlrev_b32 v0, 7, v0')
        a(f'v_add_u32 v0, {2*EXCH_B if w == 1 else 2*XSEG_B - 7*w*1024}, v0')
        for k in (1, 2):
            a(f's_mov_b32 s22, {EXCH_OFF - k*EXCH_B if w == 1 else XF_OFF + 7*w*1024 - k*XSEG_B}')
            a(f'buffer_load_dword v119, v0, {SRD}, s22 offen sc1')
    if X_PRELOAD:
        a(f's_mul_i32 s22, s17, {4*XSEG_B}')
        a(f's_add_u32 s22, s22, {XF_OFF + w*XSEG_B}')
        for k in range(4):
            a(f'buffer_load_dword v119, v117, {SRD}, s22 offen')
            a(f's_add_u32 s22, s22, {56*128}')
    if SC_ALLPOLL:
        a('v_lshrrev_b32 v117, 4, v2')
        a('v_and_b32 v117, 31, v117')
        a('v_lshlrev_b32 v117, 2, v117')
        a(f'v_add_u32 v117, {F2}, v117')
    a(f's_mul_i32 s35, s17, {64*GSH_B}')
    a(f's_add_u32 s35, s35, {VO_OFF + TOUCH_AHEAD*GSH_B + w*56*128}')

YL = 0; ML = 8 * KB; WL = 16 * KB
def vtiles(w): return (6 * w, 6, 6) if w < 2 else (12 + 8 * (w - 2), 8, 7)
def vwreg(w, ti, ks):
    u = ti * 7 + ks
    return 256 + 8 * u if u < 32 else (176 if w < 2 else 120) + 8 * (u - 32)

VOK = 175
def vo_wait(a, L, ABORT, t):
    a(f's_branch {L("voc")}')
    a.label(L('vow'))
    a(f'buffer_load_dword v{VOK}, off, {SRD}, s35 sc1')
    a('s_waitcnt vmcnt(0)')
    a.label(L('voc'))
    a(f'v_readfirstlane_b32 s22, v{VOK}')
    a('s_cmp_eq_u32 s22, 56')
    a(f's_cbranch_scc1 {L("vod")}')
    a('s_sleep 1')
    spin(a, L('vow'), ABORT)
    a.label(L('vod'))
    a('s_add_u32 s35, s35, 2048')
    a('s_add_u32 s38, s19, 8')
    a('s_and_b32 s38, s38, -8')
    a('s_cmp_eq_u32 s19, 0')
    a('s_cselect_b32 s38, 4, s38')

def gen_value(a, w, st, tag):
    L = lambda n: f'{tag}_va{w}_{n}'
    ABORT = f'{tag}_abort'
    fin = w < 2
    t0, ntile, nreg = vtiles(w)
    M = 8; ACC = 36
    YA = 60 if fin else 112
    CK = 63
    def S(ti, ks, b=None):
        if NOT2: return 's_nop 2'
        return f'v_smfmac_f32_16x16x64_bf16 v[{ACC+4*ti}:{ACC+4*ti+3}], v[{M+4*ks}:{M+4*ks+3}], {b or ureg(vwreg(w, ti, ks), 8)}, v3'
    def fold(p):
        A_ = ACC + 8 * p; B_ = A_ + 4
        o = [f'v_permlane32_swap_b32 v{A_+r}, v{B_+r}' for r in range(4)]
        o += [f'v_add_f32 v{A_+r}, v{A_+r}, v{B_+r}' for r in range(4)]
        o += [f'v_cvt_pk_bf16_f32 v{B_}, v{A_}, v{A_+1}', f'v_cvt_pk_bf16_f32 v{B_+1}, v{A_+2}, v{A_+3}', f'ds_write_b64 v{YA+p}, v[{B_}:{B_+1}]']
        return o
    def run(seq):
        last = {}
        for i, (ti, m, pre) in enumerate(seq): last[ti] = i
        pend = []; delay = 0
        for i, (ti, m, pre) in enumerate(seq):
            for x in pre: a(x)
            a(m)
            if delay: delay -= 1
            elif pend:
                a(pend.pop(0))
                if len(pend) > 12: a(pend.pop(0))
            p = ti // 2
            if i == max(last[2 * p], last[2 * p + 1]):
                pend += fold(p)
                if not delay: delay = 3
        for x in pend: a(x)
    if ALIGN: a.raw(f'.p2align {ALIGN}\n' + '  s_nop 0\n' * APAD)
    a.label(L('loop'))
    step_bases(a)
    if not fin:
        for r in range(ACC, ACC + 4 * ntile): a(f'v_mov_b32 v{r}, 0')
    a('s_mov_b32 s30, 0')
    if fin:
        YT = 64; VOR = 80; LO = 156; HI = 160; PL = 164
        pr = lambda c: 8 + 4 * c if c < 7 else 144 + 4 * (c - 7)
        if SYNC:
            a('s_cmp_lg_u32 s19, s38')
            a(f's_cbranch_scc1 {L("vok")}')
            vo_wait(a, L, ABORT, PL)
            a.label(L('vok'))
        if T2SRV:
            a(f's_cmp_eq_u32 s19, {NSTEPS-1}')
            a(f's_cbranch_scc1 {tag}_done')
        def vol(lo, hi):
            for h in range(lo, hi):
                if h % 2 == 0: a(f's_add_u32 s22, s25, {h*1792}')
                a(f'buffer_load_dwordx4 v[{VOR+4*h}:{VOR+4*h+3}], v6, {SRD}, s22 offen offset:{(h & 1)*1792} sc1')
        vol(0, VO_PRE0)
        if not SLOW_FIRST: a('s_barrier')
        stamp(a, 0)
        if VO_SLEEP: a(f's_sleep {VO_SLEEP}')
        vol(VO_PRE0, VO_PRE)
        if SYNC: a(f'buffer_load_dword v{VOK}, off, {SRD}, s35 sc1')
        a('s_barrier')
        stamp(a, 1)
        for ks in range(7): a(f'ds_read_b128 v[{M+4*ks}:{M+4*ks+3}], v2 offset:{ML + ks*1024}')
        vol(VO_PRE, 16)
        a('s_waitcnt lgkmcnt(0)')
        if T2DF: a(f's_sleep {T2DF}')
        run([(ti, S(ti, ks), []) for ti in range(ntile) for ks in range(7)])
        stamp(a, 2)
        a(f's_cmp_eq_u32 s19, {NSTEPS-1}')
        a(f's_cbranch_scc1 {L("last")}')
        a(f's_add_u32 s22, s20, {PX}')
        a(f's_add_u32 s34, s20, {PX + 4096}')
        a(f's_add_u32 s36, s20, {PM}')
        a('s_mov_b32 s37, 0')
        for r in range(4): a(f'v_mov_b32 v{LO+r}, 0')
        if STAMPS:
            a('s_waitcnt vmcnt(0)')
            stamp(a, 7)
        if VSM and B2_POS < 0:
            a('s_waitcnt lgkmcnt(0)')
            for r in range(ACC, ACC + 4 * ntile): a(f'v_mov_b32 v{r}, 0')
            a('s_barrier')
            for k in range(4): a(f'ds_read_b128 v[{YT+4*k}:{YT+4*k+3}], v2 offset:{YL + w*4096 + k*1024}')
            stamp(a, 3)
        if FIN_SLEEP: a(f's_sleep {FIN_SLEEP}')
        flagpoll(a, 4, 's20', PL, L('fw'), ABORT, PD_V, PG_V)
        stamp(a, 4)
        a('s_waitcnt lgkmcnt(0)')
        if VSM:
            pl = PLAIN_P and st == ''
            def pld(c, sc):
                so = ('s22', 's34', 's36')[c // 4]
                a(f'buffer_load_dwordx4 v[{pr(c)}:{pr(c)+3}], v2, {SRD}, {so} offen offset:{(c & 3)*1024}' + (' sc1' if sc else ''))
            def psm(c):
                B_ = VOR + 8 * c if c < 8 else YT + 8 * (c - 8)
                a(f'v_smfmac_f32_16x16x64_bf16 v[{LO}:{LO+3}], v[{pr(c)}:{pr(c)+3}], v[{B_}:{B_+7}], v3')
            zr = list(range(ACC, ACC + 4 * ntile)) if B2_POS >= 0 else []
            for c in range(NPP):
                pld(c, not pl)
                for _ in range(VZ):
                    if zr: a(f'v_mov_b32 v{zr.pop(0)}, 0')
            issued = NPP; nst = 0; q = list(range(NPP))
            if VST: stamp(a, 7)
            for c in range(10):
                if c == B2_POS:
                    a('s_barrier')
                    for k in range(4): a(f'ds_read_b128 v[{YT+4*k}:{YT+4*k+3}], v2 offset:{YL + w*4096 + k*1024}')
                    stamp(a, 3)
                if c == 0 and ECP:
                    a.label(L('pl')); cke = Checker(a, CK)
                a(f's_waitcnt vmcnt({len(q) - 1 - q.index(c)})' + (' lgkmcnt(0)' if c == 8 else ''))
                if c == 0: stamp(a, 5)
                if VST and c in (3, 6, 9): stamp(a, c // 3)
                psm(c)
                if c < ECP:
                    cke.add(pr(c)); cke.drain()
                    if c == ECP - 1: a(f'v_cmp_eq_u32 vcc, -1, v{CK}')
                if ECP and c == F2_POS: a(f's_cbranch_vccnz {L("re")}')
                if c == F2_POS and (not F2ONE or w == F2ONE - 1):
                    q.append('f')
                    exec_lo(a, R2)
                    a(f'buffer_store_dword v2, v7, {SRD}, s21 offen {st}')
                    a('s_mov_b64 exec, -1')
                    nst = 1
                if issued < 10:
                    pld(issued, not pl); q.append(issued); issued += 1
                for _ in range(2):
                    if zr: a(f'v_mov_b32 v{zr.pop(0)}, 0')
            a.label(L('ep'))
            while zr: a(f'v_mov_b32 v{zr.pop(0)}, 0')
            a(f'v_permlane32_swap_b32 v{LO}, v{LO+2}')
            a(f'v_permlane32_swap_b32 v{LO+1}, v{LO+3}')
            a(f'v_add_f32 v{HI}, v{LO}, v{LO+2}')
            a(f'v_add_f32 v{HI+1}, v{LO+1}, v{LO+3}')
            a(f'v_cmp_u_f32 vcc, v{HI}, v{HI+1}')
            a(f'v_mov_b32_dpp v{HI+2}, v{HI} row_ror:8 {D}')
            a(f'v_mov_b32_dpp v{HI}, v{HI+1} row_ror:8 row_mask:0xf bank_mask:0xc')
            a(f's_cbranch_vccnz {L("rp")}')
            a(f'v_mov_b32_dpp v{HI+1}, v{HI+2} quad_perm:[0,1,2,3] row_mask:0xf bank_mask:0x3')
            a(f'v_cvt_pk_bf16_f32 v{HI}, v{HI}, v{HI+1}')
            a.label(L('pc'))
            if w == 1: a('s_mov_b64 exec, s[26:27]')
            a(f'buffer_store_dword v{HI}, v1, {SRD}, s21 offen {st}')
        else:
            pl = PLAIN_P and st == ''
            if not pl: a.label(L('lp'))
            for c in range(10):
                so = ('s22', 's34', 's36')[c // 4]
                a(f'buffer_load_dwordx4 v[{pr(c)}:{pr(c)+3}], v5, {SRD}, {so} offen offset:{(c & 3)*1024}' + ('' if pl else ' sc1'))
                for r in range(ACC + 4 * c, min(ACC + 4 * c + 4, ACC + 4 * ntile)): a(f'v_mov_b32 v{r}, 0')
            if pl: a.label(L('lp'))
            ck = Checker(a, CK)
            nst = 0
            for c in range(10):
                if c == B2_POS:
                    a('s_cmp_lg_u32 s37, 0')
                    a(f's_cbranch_scc1 {L("nb2")}')
                    a('s_waitcnt lgkmcnt(0)')
                    a('s_barrier')
                    for k in range(4): a(f'ds_read_b128 v[{YT+4*k}:{YT+4*k+3}], v2 offset:{YL + w*4096 + k*1024}')
                    a.label(L('nb2'))
                    stamp(a, 3)
                a(f's_waitcnt vmcnt({9-c+nst})' + (' lgkmcnt(0)' if c == 8 else ''))
                if c < EC_P:
                    a.label(L(f'e{c}'))
                    r = pr(c)
                    a(f'v_max3_u32 v{PL}, v{r}, v{r+1}, v{r+2}')
                    a(f'v_max_u32 v{PL}, v{PL}, v{r+3}')
                    a(f'v_cmp_eq_u32 vcc, -1, v{PL}')
                    a(f's_cbranch_vccnz {L(f"er{c}")}')
                if c == 0: stamp(a, 5)
                if c == F2_POS:
                    exec_lo(a, R2)
                    a(f'buffer_store_dword v2, v7, {SRD}, s21 offen {st}')
                    a('s_mov_b64 exec, -1')
                    nst = 1
                if c >= EC_P: ck.add(pr(c))
                B_ = f'v[{pr(c)}:{pr(c)+3}]'
                for hi, acc in ((1, HI), (0, LO)):
                    A_ = VOR + 4 * (2 * c + hi) if c < 8 else YT + 4 * (2 * (c - 8) + hi)
                    a(f'v_mfma_f32_16x16x32_bf16 v[{acc}:{acc+3}], v[{A_}:{A_+3}], {B_}, ' + ('0' if c == 0 else f'v[{acc}:{acc+3}]'))
                    ck.emit()
            ck.drain()
            a(f'v_cmp_eq_u32 vcc, -1, v{CK}')
            for r in range(4): a(f'v_add_f32_dpp v{LO+r}, v{HI+r}, v{LO+r} row_ror:8 {D}')
            a(f's_cbranch_vccnz {L("rp")}')
            a(f'v_cvt_pk_bf16_f32 v{HI}, v{LO}, v{LO+1}')
            a(f'v_cvt_pk_bf16_f32 v{HI+1}, v{LO+2}, v{LO+3}')
            a(f'v_min_u32 v{HI}, -2, v{HI}')
            a(f'v_min_u32 v{HI+1}, -2, v{HI+1}')
            a('s_mov_b64 exec, s[26:27]')
            a(f'buffer_store_dwordx2 v[{HI}:{HI+1}], v1, {SRD}, s21 offen {st}')
        if T2SRV:
            a(f's_cmp_lg_u32 s19, {NSTEPS-2}')
            a(f's_cbranch_scc1 {L("nl")}')
            a(f's_mov_b32 s22, {MEMG_OFF + (NSTEPS-1)*7*KB}')
            if VSM: a(f'buffer_store_dword v{HI}, v1, {SRD}, s22 offen sc1')
            else: a(f'buffer_store_dwordx2 v[{HI}:{HI+1}], v1, {SRD}, s22 offen sc1')
            a('s_mov_b64 exec, -1')
            a(f's_branch {tag}_done')
            a.label(L('nl'))
        a('s_mov_b64 exec, -1')
        if SLOW_FIRST: a('s_barrier')
        stamp(a, 6)
        if not NOBULK: a(f's_add_u32 s25, s25, {GSH_B}')
        stamp_flush(a, 4 + w, 8, L('sf'), PL)
    else:
        STG = [76, 84, 92]; TP = 100
        TPS = [100, 104, 108, 4]
        t2st = [[f'buffer_store_dwordx4 v[{TPS[k]}:{TPS[k]+3}], v2, {SRD}, s24 offen offset:{k*1024} sc1'] for k in range(4)]
        t2st[-1].append(f's_add_u32 s24, s24, {8*KB}')
        t2fl = ['s_mov_b64 exec, 1', f'buffer_store_dword v117, v2, {SRD}, s34 offen sc1', 's_mov_b64 exec, -1', 's_add_u32 s34, s34, 8']
        def emit(gs):
            for g_ in gs:
                for x in g_: a(x)
        myks = [0, 1, 2, 3] if w == 2 else [4, 5, 6]
        oth = [k for k in range(7) if k not in myks]
        def mload():
            for ks in myks:
                a(f'buffer_load_dwordx4 v[{M+4*ks}:{M+4*ks+3}], v2, {SRD}, {"s20" if ks < 4 else "s23"} offen offset:{(ks & 3) * 1024} sc1')
        if HLP_SLEEP: a(f's_sleep {HLP_SLEEP}')
        flagpoll(a, 119, 's20', 76, L('fp'), ABORT, PD_H, PG_H)
        stamp(a, 0)
        if VA_DELAY: a.nop(VA_DELAY)
        mload()
        if PUBLISH and PUB_EARLY == 1: emit([t2fl] + t2st)
        if not SLOW_FIRST: a('s_barrier')
        if PUBLISH and PUB_EARLY == 2: emit([t2fl] + t2st)
        if PUBLISH and PUB_EARLY:
            a('s_waitcnt vmcnt(5)')
            a(f's_branch {L("ld2")}')
        a.label(L('ld'))
        a('s_waitcnt vmcnt(0)')
        if PUBLISH and PUB_EARLY: a.label(L('ld2'))
        ck = Checker(a, 84)
        for ks in myks: ck.add(M + 4 * ks)
        ck.drain()
        a('v_cmp_eq_u32 vcc, -1, v84')
        for ks in myks: a(f'ds_write_b128 v2, v[{M+4*ks}:{M+4*ks+3}] offset:{ML + ks*1024}')
        a(f's_cbranch_vccnz {L("retry")}')
        a('s_waitcnt lgkmcnt(0)')
        a('s_barrier')
        stamp(a, 1)
        for ks in oth: a(f'ds_read_b128 v[{M+4*ks}:{M+4*ks+3}], v2 offset:{ML + ks*1024}')
        if w == 2: a(f'ds_read_b128 v[92:95], v0')
        if VAL_TOUCH:
            a(f'buffer_load_dword v99, v118, {SRD}, {"s20" if w == 2 else "s39"} offen sc1')
            a(f's_add_u32 s39, s39, {XSEG_B}')
        if SELF_POISON:
            for r in range(76, 80): a(f'v_mov_b32 v{r}, -1')
            a('s_add_u32 s22, s21, s38')
            if w == 3: a('s_mov_b64 exec, 0x1f')
            a(f'buffer_store_dwordx4 v[76:79], v2, {SRD}, s22 offen {st}')
            if w == 3: a('s_mov_b64 exec, -1')
        if PUBLISH and not PUB_EARLY and not SLOW_FIRST and not T2SRV: emit([t2fl] + t2st)
        a('s_waitcnt lgkmcnt(0)')
        mg = ['s_mov_b64 exec, s[26:27]', f'buffer_store_dwordx4 v[92:95], v2, {SRD}, s36 offen sc1', 's_mov_b64 exec, -1', f's_add_u32 s36, s36, {7*KB}']
        if w == 2 and PUBLISH:
            if SLOW_FIRST:
                a(f's_cmp_lg_u32 s19, {NSTEPS-1}')
                a(f's_cbranch_scc1 {L("nmg")}')
            emit([mg])
            if SLOW_FIRST: a.label(L('nmg'))
        if T2SRV:
            a(f's_cmp_eq_u32 s19, {NSTEPS-1}')
            a(f's_cbranch_scc1 {tag}_done')
        lu = [(7, ks) for ks in range(7)]
        ru = [(t_, ks) for t_ in (6, 0, 1, 2, 3, 4, 5) for ks in range(7)]
        def wr(j):
            t_, ks = lu[j]; b = STG[j % 3]; off = (t_ - 7) * TILE_B + ks * UNIT
            return [f'ds_read_b128 v[{b}:{b+3}], v1 offset:{off}', f'ds_read_b128 v[{b+4}:{b+7}], v1 offset:{off+1024}']
        seq = []
        for j, (t_, ks) in enumerate(lu):
            pre = (wr(0) + wr(1) if j == 0 else []) + (wr(j + 2) if j + 2 < len(lu) else [])
            for k in range(2):
                r_ = ru.pop(0); seq.append((r_[0], S(*r_), pre if k == 0 else []))
            b = STG[j % 3]
            seq.append((t_, S(t_, ks, f'v[{b}:{b+7}]'), [f's_waitcnt lgkmcnt({2 * min(2, len(lu) - 1 - j)})']))
        for r_ in ru: seq.append((r_[0], S(*r_), []))
        if T2DH: a(f's_sleep {T2DH}')
        run(seq)
        stamp(a, 2)
        a('s_waitcnt lgkmcnt(0)')
        a('s_barrier')
        for k in range(4):
            q = 2 * (w - 2) + (k >> 1); tp = k & 1
            if not T2SRV: a(f'ds_read_b128 v[{TPS[k]}:{TPS[k]+3}], v2 offset:{YL + tp*4096 + q*1024}')
        a(f's_cmp_eq_u32 s19, {NSTEPS-2 if T2SRV else NSTEPS-1}')
        a(f's_cbranch_scc1 {tag + "_done" if T2SRV else L("last")}')
        if SLOW_FIRST:
            if w == 2: a(f'ds_read_b128 v[92:95], v0')
            a('s_waitcnt vmcnt(0) lgkmcnt(0)')
            a('s_barrier')
            if PUBLISH: emit([t2fl] + t2st + ([mg] if w == 2 else []))
        else:
            a('s_waitcnt vmcnt(0) lgkmcnt(0)')
        stamp(a, 3)
        stamp_flush(a, 4 + w, 4, L('sf'), 76)
    a('s_add_u32 s19, s19, 1')
    a('s_mov_b32 s20, s21')
    a.flush()
    a(f's_branch {L("loop")}')
    if fin:
        a.label(L('last'))
        a('s_waitcnt lgkmcnt(0)')
        a('s_barrier')
        a(f's_branch {tag}_done')
        for c in range(EC_P):
            a.label(L(f'er{c}'))
            so = ('s22', 's34', 's36')[c // 4]
            a(f'buffer_load_dwordx4 v[{pr(c)}:{pr(c)+3}], v5, {SRD}, {so} offen offset:{(c & 3)*1024} sc1')
            a('s_waitcnt vmcnt(0)')
            a('s_add_u32 s31, s31, 0x1000000')
            spin(a, L(f'e{c}'), ABORT)
        if ECP:
            assert NPP == 10 and B2_POS == 0 and ECP <= F2_POS
            a.label(L('re'))
            for c in range(10): pld(c, True)
            a.nop(6)
            for r in range(4): a(f'v_mov_b32 v{LO+r}, 0')
            a('s_add_u32 s31, s31, 0x1000000')
            spin(a, L('pl'), ABORT)
        a.label(L('rp'))
        if VSM:
            a('s_cmp_eq_u32 s37, 0')
            a(f's_cbranch_scc1 {L("rv")}')
            a(f'v_mov_b32_dpp v{HI+1}, v{HI+2} quad_perm:[0,1,2,3] row_mask:0xf bank_mask:0x3')
            a(f'v_cvt_pk_bf16_f32 v{HI}, v{HI}, v{HI+1}')
            a(f'v_min_u32 v{HI}, -2, v{HI}')
            a(f's_branch {L("pc")}')
            a.label(L('rv'))
            for c in range(10): pld(c, True)
            a('s_waitcnt vmcnt(0)')
            ck2 = Checker(a, CK)
            for c in range(10): ck2.add(pr(c))
            ck2.drain()
            a(f'v_cmp_eq_u32 vcc, -1, v{CK}')
            a(f's_cbranch_vccz {L("rk")}')
            spin(a, L('rv'), ABORT)
            a.label(L('rk'))
            a('s_mov_b32 s37, 1')
            a('s_add_u32 s31, s31, 0x10000')
            for r in range(4): a(f'v_mov_b32 v{LO+r}, 0')
            for c in range(10): psm(c)
            a.flush()
            a(f's_branch {L("ep")}')
            return
        a.nop(8)
        if PLAIN_P and st == '':
            for c in range(10):
                so = ('s22', 's34', 's36')[c // 4]
                a(f'buffer_load_dwordx4 v[{pr(c)}:{pr(c)+3}], v5, {SRD}, {so} offen offset:{(c & 3)*1024} sc1')
        a('s_mov_b32 s37, 1')
        a('s_add_u32 s31, s31, 0x10000')
        spin(a, L('lp'), ABORT)
    else:
        a.label(L('retry'))
        a('s_waitcnt lgkmcnt(0)')
        mload()
        a('s_add_u32 s31, s31, 1')
        spin(a, L('ld'), ABORT)
        a.label(L('last'))
        a('s_waitcnt lgkmcnt(0)')
        emit(t2st)
        a('s_waitcnt vmcnt(0)')
        emit([t2fl, t2fl])
        a(f's_branch {tag}_done')

def init_value(a, w, p):
    fin = w < 2
    t0, ntile, nreg = vtiles(w)
    YA = 60 if fin else 112
    a(f's_mul_i32 s31, s17, {CUW_B}')
    a(f's_add_u32 s31, s31, {WF_B}')
    units = [((t0 + ti) * TILE_B + ks * UNIT, vwreg(w, ti, ks)) for ti in range(nreg) for ks in range(7)]
    if BDEP: BDEP(16 * t0 // 28, (16 * (t0 + nreg) - 1) // 28)
    load_units(a, units, 's31')
    if fin and BDEP: BDEP(16 * (vtiles(w + 2)[0] + 7) // 28, (16 * (vtiles(w + 2)[0] + 8) - 1) // 28)
    if fin:
        th = vtiles(w + 2)[0] + 7
        for f in range(14):
            if f % 4 == 0:
                a(f's_mov_b32 m0, {WL + 3*w*TILE_B + f*1024}')
                a(f's_add_u32 s22, s31, {th*TILE_B + f*1024}')
            a(f'buffer_load_dwordx4 v2, {SRD}, s22 offen offset:{(f & 3)*1024}' + (' sc1' if MERGE else '') + ' lds')
            if f % 16 == 15: a('s_waitcnt vmcnt(24)')
    a('v_mov_b32 v72, v116')
    a('v_mov_b32 v73, v117')
    a('v_lshrrev_b32 v65, 1, v72')
    a('v_and_b32 v66, 1, v72')
    for pp in range(ntile // 2):
        a(f'v_add_u32 v67, {t0 + 2*pp}, v65')
        a('v_lshl_add_u32 v67, v67, 4, v73')
        a('v_mul_u32_u24 v68, 2341, v67')
        a('v_lshrrev_b32 v68, 16, v68')
        a('v_mul_u32_u24 v69, 28, v68')
        a('v_sub_u32 v69, v67, v69')
        a('v_lshrrev_b32 v70, 4, v69')
        a('v_and_b32 v69, 15, v69')
        if VSM:
            a('v_and_b32 v71, 1, v69')
            a('v_lshrrev_b32 v69, 1, v69')
            a('v_lshl_add_u32 v69, v71, 3, v69')
        a('v_lshlrev_b32 v71, 12, v70')
        a('v_lshl_add_u32 v71, v68, 8, v71')
        a('v_lshl_add_u32 v71, v69, 4, v71')
        a(f'v_lshl_add_u32 v{YA+pp}, v66, 3, v71')
    if fin:
        a('v_and_b32 v0, 31, v1')
        a('v_lshlrev_b32 v0, 2, v0')
        a(f'v_add_u32 v0, {F2}, v0')
        a('v_lshlrev_b32 v4, 2, v73')
        if R1 == 32:
            a('s_lshl_b32 s22, s17, 1')
            a(f's_add_u32 s22, s22, {w}')
        else: a(f's_and_b32 s22, s17, {R1-1}')
        a('s_lshl_b32 s22, s22, 7')
        a(f's_add_u32 s22, s22, {F1}')
        a(f'v_add_u32 v4, s22, v4')
        a('v_and_b32 v64, 7, v73')
        a('v_lshlrev_b32 v5, 4, v64')
        a('v_lshl_add_u32 v5, v72, 7, v5')
        a('v_lshrrev_b32 v65, 3, v73')
        a('v_lshl_add_u32 v5, v65, 9, v5')
        a('s_lshl_b32 s22, s17, 3')
        a(f's_add_u32 s22, s22, {F2 + 4*w}')
        a('v_lshl_add_u32 v7, v2, 3, s22')
        a(f'v_add_u32 v65, {16*w}, v73')
        a('v_min_u32 v65, 27, v65')
        a('v_mad_u32_u24 v65, v72, 28, v65')
        a('v_lshlrev_b32 v6, 4, v65')
        a('s_lshr_b32 s22, s17, 1')
        a('s_mul_i32 s22, s22, 7')
        a('s_and_b32 s34, s17, 1')
        a('s_lshl_b32 s35, s34, 2')
        a('v_add_u32 v70, s35, v72')
        a('v_mov_b32 v71, s34')
        a(f'v_mov_b32 v69, {w}')
        a('v_cmp_eq_u32 vcc, 3, v72')
        a('v_cndmask_b32 v70, v70, v72, vcc')
        a('v_cndmask_b32 v69, v69, v71, vcc')
        a('v_add_u32 v70, s22, v70')
        a('v_lshrrev_b32 v68, 1, v70')
        a('v_lshlrev_b32 v68, 8, v68')
        a('v_lshl_add_u32 v68, v69, 7, v68')
        a('v_and_b32 v69, 1, v70')
        a('v_lshl_add_u32 v68, v69, 3, v68')
        a('v_lshl_add_u32 v1, v64, 4, v68')
        a('v_cmp_gt_u32 s[26:27], 8, v73')
        if w == 1:
            a('v_cmp_gt_u32 vcc, 3, v72')
            a('s_and_b64 s[26:27], s[26:27], vcc')
        if VSM:
            a('v_lshrrev_b32 v65, 3, v73')
            a('v_lshl_add_u32 v66, v64, 1, v65')
            a(f'v_add_u32 v66, {16*w}, v66')
            a('v_min_u32 v66, 27, v66')
            a('v_mad_u32_u24 v66, v72, 28, v66')
            a('v_lshlrev_b32 v6, 4, v66')
            a('s_mul_i32 s22, s17, 28')
            a(f's_add_u32 s22, s22, {16*w}')
            a('v_lshl_add_u32 v70, v64, 1, s22')
            a('v_lshrrev_b32 v68, 4, v70')
            a('v_lshlrev_b32 v68, 8, v68')
            a('v_bfe_u32 v69, v70, 1, 1')
            a('v_lshl_add_u32 v68, v69, 7, v68')
            a('v_bfe_u32 v69, v70, 2, 2')
            a('v_lshl_add_u32 v68, v69, 2, v68')
            a('v_and_b32 v69, 1, v72')
            a('v_lshl_add_u32 v65, v69, 2, v65')
            a('v_lshrrev_b32 v69, 1, v72')
            a('v_lshl_add_u32 v65, v69, 1, v65')
            a('v_lshl_add_u32 v1, v65, 4, v68')
            a('v_cmp_gt_u32 s[26:27], 6, v64')
            for r in range(156, 160): a(f'v_mov_b32 v{r}, 0')
            for k in range(4): a(f'ds_write_b128 v2, v[156:159] offset:{YL + w*4096 + k*1024}')
        a(f's_mul_i32 s22, s17, {64*GSH_B}')
        a(f's_add_u32 s25, s22, {VO_OFF}')
        a('s_lshl_b32 s35, s17, 7')
        a(f's_add_u32 s35, s35, {CNT_OFF + VOC - 2048}')
        a('s_mov_b32 s38, 0')
        a(f'v_mov_b32 v{VOK}, 0')
    else:
        a(f's_mul_i32 s24, s17, {65*8*KB}')
        a(f's_add_u32 s24, s24, {T2_OFF + (w-2)*4096 + (8*KB if SLOW_FIRST else 0)}')
        a('s_mul_i32 s34, s17, 640')
        a(f's_add_u32 s34, s34, {CNT_OFF + T2F + 4*(w-2) + (8 if SLOW_FIRST else 0)}')
        a('s_mul_i32 s36, s17, 448')
        a('v_add_u32 v0, s36, v2')
        a(f'v_add_u32 v0, {ML}, v0')
        a(f's_add_u32 s36, s36, {MEMG_OFF}')
        a('v_cmp_gt_u32 s[26:27], 28, v1')
        a('v_and_b32 v119, 31, v1')
        a('v_lshlrev_b32 v119, 2, v119')
        if F2ONE: a(f'v_and_b32 v119, 0x78, v119\nv_or_b32 v119, {4*(F2ONE-1)}, v119')
        a('s_add_u32 s22, s17, 16')
        a(f's_and_b32 s22, s22, {R2-1}')
        a('s_lshl_b32 s22, s22, 7')
        a(f's_add_u32 s22, s22, {F2}')
        a(f'v_add_u32 v119, s22, v119')
        nl = 13 if w == 2 else 14
        a(f'v_min_u32 v118, {nl-1}, v1')
        a(f's_mul_i32 s22, s17, {nl}')
        a('v_add_u32 v118, s22, v118')
        a('v_lshlrev_b32 v118, 7, v118')
        a(f'v_add_u32 v118, {2*EXCH_B if w == 2 else 2*XSEG_B}, v118')
        a(f's_mov_b32 s39, {XF_OFF}')
        a(f'v_add_u32 v1, {WL + 3*(w-2)*TILE_B}, v2')
        a('v_mov_b32 v117, 1')
        a('s_mul_i32 s38, s17, 1104')
        a(f's_add_u32 s38, s38, {EXCH_B + (w-2)*1024}')

def dbg_wait(a, P, t, abort):
    a('s_mov_b32 s30, 0')
    a.label(P)
    a(f'buffer_load_dword v{t+2}, v{t}, {DBG}, 0 offen sc1')
    a('s_waitcnt vmcnt(0)')
    a(f'v_cmp_ne_u32 vcc, v{t+2}, v{t+1}')
    a(f's_cbranch_vccz {P}_ok')
    a('s_sleep 4')
    a('s_add_u32 s30, s30, 1')
    a(f's_cmp_lt_u32 s30, {SLOW_LIMIT}')
    a(f's_cbranch_scc1 {P}')
    a(f's_branch {abort}')
    a.label(P + '_ok')

def dep_regs(a, cg_s, t, lane='v1'):
    a(f's_and_b32 s20, {cg_s}, 15')
    a('s_lshr_b32 s21, s20, 1')
    a('s_mul_i32 s21, s21, 56')
    a('s_add_u32 s22, s21, 55')
    a('s_lshr_b32 s21, s21, 6')
    a('s_lshr_b32 s22, s22, 6')
    a('s_add_u32 s21, s21, 24')
    a('s_add_u32 s22, s22, 24')
    a('s_add_u32 s20, s20, 8')
    a(f's_cmp_lt_u32 {cg_s}, 16')
    a('s_cselect_b32 s21, s20, s21')
    a('s_cselect_b32 s22, s20, s22')
    a(f's_cselect_b32 s20, {A_TGT}, {B_TGT}')
    a('s_lshl_b32 s21, s21, 2')
    a('s_lshl_b32 s22, s22, 2')
    a(f'v_mov_b32 v{t}, 124')
    a(f'v_mov_b32 v{t+1}, 128')
    a(f'v_writelane_b32 v{t}, s21, 0')
    a(f'v_writelane_b32 v{t}, s22, 1')
    a(f'v_writelane_b32 v{t+1}, s20, 0')
    a(f'v_writelane_b32 v{t+1}, s20, 1')

def xprep_loop(a, P):
    import prep
    a.label(f'{P}_l')
    a('s_waitcnt vmcnt(0) lgkmcnt(0)')
    a('v_mov_b32 v4, 1')
    a('v_mov_b32 v5, 20')
    wg_atomic(a, f'{P}_el', 's3')
    a('s_cmp_ge_u32 s3, 32')
    a(f's_cbranch_scc1 {P}_d')
    prep.xprep_item(a, P, 's3', st='sc1', signal=DBG)
    a(f's_branch {P}_l')
    a.label(f'{P}_d')

def wg_atomic(a, P, dst):
    a('v_mov_b32 v6, 160000')
    a('s_barrier')
    a('s_cmp_lg_u32 s16, 0')
    a(f's_cbranch_scc1 {P}1')
    a('s_mov_b64 exec, 1')
    a(f'buffer_atomic_add v4, v5, {DBG}, 0 offen sc0')
    a('s_waitcnt vmcnt(0)')
    a('ds_write_b32 v6, v4')
    a('s_waitcnt lgkmcnt(0)')
    a('s_mov_b64 exec, -1')
    a.label(f'{P}1')
    a('s_barrier')
    a('ds_read_b32 v4, v6')
    a('s_waitcnt lgkmcnt(0)')
    a(f'v_readfirstlane_b32 {dst}, v4')

def staff_check(a, okl, mode):
    a('s_mov_b32 s30, 0')
    a('v_mov_b32 v36, 0')
    a.label('ch_chk')
    a(f'buffer_load_dword v37, v36, {DBG}, 0 offen sc1')
    a('s_waitcnt vmcnt(0)')
    a('v_readfirstlane_b32 s22, v37')
    a('s_and_b32 s22, s22, 0xffff')
    a('s_cmp_ge_u32 s22, 32')
    a('s_cbranch_scc1 ch_go_end')
    a('s_sleep 16')
    a('s_add_u32 s30, s30, 1')
    a('s_cmp_lt_u32 s30, 64')
    a('s_cbranch_scc1 ch_chk')
    a.label('ch_go_end')
    a('v_mov_b32 v6, 160016')
    a('v_mov_b32 v4, s22')
    a('s_cmp_lg_u32 s16, 0')
    a('s_cbranch_scc1 ch_dec')
    a('ds_write_b32 v6, v4')
    a('s_waitcnt lgkmcnt(0)')
    a.label('ch_dec')
    a('s_barrier')
    a('ds_read_b32 v4, v6')
    a('s_waitcnt lgkmcnt(0)')
    a('v_readfirstlane_b32 s22, v4')
    a('s_cmp_ge_u32 s22, 32')
    a(f's_cbranch_scc1 {okl}')
    a('v_mov_b32 v4, 0x10001')
    a(f's_mov_b32 s18, {mode}')
    a('s_branch ch_take')

def worker_s4d(a):
    import s4d
    s4d.s4d_setup(a)
    a.label('wk_loop')
    a('v_mov_b32 v4, 1')
    a('v_mov_b32 v5, 4')
    wg_atomic(a, 'wk_el', 's3')
    a('v_and_b32 v4, 15, v1')
    a('s_cmp_ge_u32 s3, 112')
    a('s_cbranch_scc1 wk_done')
    s4d.s4d_item(a, 'wk', 's3')
    a('s_branch wk_loop')
    a.label('wk_done')

def poll_eq(a, P, srd, soff, target, sleep=4):
    a('v_mov_b32 v8, 0')
    a('s_mov_b32 s30, 0')
    a.label(P)
    a(f'buffer_load_dword v9, v8, {srd}, {soff} offen sc1')
    a('s_waitcnt vmcnt(0)')
    a(f'v_cmp_ne_u32 vcc, {target}, v9')
    a(f's_cbranch_vccz {P}_ok')
    a(f's_sleep {sleep}')
    a('s_add_u32 s30, s30, 1')
    a(f's_cmp_lt_u32 s30, {SLOW_LIMIT}')
    a(f's_cbranch_scc1 {P}')
    a('s_branch cA_abort')
    a.label(P + '_ok')
def flag_wait(a, P):
    a('s_cmp_lg_u32 s97, 0')
    a(f's_cbranch_scc1 {P}_sk')
    a('s_movk_i32 s20, 128')
    poll_eq(a, P, DBG, 's20', 1)
    a('s_mov_b32 s97, 1')
    a.label(P + '_sk')
def ac_wait(a, P):
    a('s_lshl_b32 s20, s17, 7')
    a(f's_add_u32 s20, s20, {CNT_OFF + AC}')
    poll_eq(a, P, SRD, 's20', 7, sleep=6)

def worker_all(a):
    import s4d, gemm, tok, prep
    JS = DBG if MERGE else SRD
    JO = 64 if MERGE else CNT_OFF + JOBC
    NA = 112 if MERGE == 1 else 0
    NJ = 1104 + NA
    tok.PEEK = JS
    a('s_load_dwordx2 s[36:37], s[0:1], 112')
    a('s_waitcnt lgkmcnt(0)')
    a(f's_mov_b32 s92, s36\ns_and_b32 s93, s37, 0xffff\ns_mov_b32 s94, {2048*896*2}\ns_mov_b32 s95, 0x20000')
    def ask():
        lb = a.newlabel('ask')
        a('s_cmp_lg_u32 s16, 0')
        a(f's_cbranch_scc1 {lb}')
        a('v_mov_b32 v250, 1')
        a(f'v_mov_b32 v251, {JO}')
        a('s_mov_b64 exec, 1')
        a(f'buffer_atomic_add v250, v251, {JS}, 0 offen sc0')
        a('s_mov_b64 exec, -1')
        a.label(lb)
    a('s_mov_b32 s96, 0')
    if MERGE:
        a('s_cmp_lg_u32 s101, -1')
        a('s_mov_b32 s3, s101')
        a('s_mov_b32 s101, -1')
        a('s_cbranch_scc1 wk_have')
    ask()
    a('s_branch wk_next')
    a.label('wk_loop')
    a('s_waitcnt vmcnt(0) lgkmcnt(0)')
    a('s_cmp_eq_u32 s96, 1')
    a('s_cbranch_scc1 wk_ask')
    a('s_mov_b32 s96, 1')
    staff_check(a, 'wk_ask', 0)
    a.label('wk_ask')
    a('v_readfirstlane_b32 s22, v250')
    a(f's_cmp_ge_u32 s22, {NJ}')
    a('s_cbranch_scc1 wk_next')
    ask()
    a.label('wk_next')
    evlog(a, 9005)
    a('v_mov_b32 v6, 160000')
    a('s_waitcnt vmcnt(0)')
    a('s_barrier')
    a('s_cmp_lg_u32 s16, 0')
    a('s_cbranch_scc1 wk_n1')
    a('s_mov_b64 exec, 1')
    a('ds_write_b32 v6, v250')
    a('s_mov_b64 exec, -1')
    a('s_waitcnt lgkmcnt(0)')
    a.label('wk_n1')
    a('s_barrier')
    a('ds_read_b32 v4, v6')
    a('s_waitcnt lgkmcnt(0)')
    a('v_readfirstlane_b32 s3, v4')
    a.label('wk_have')
    evlog(a, 's3')
    a(f's_cmp_ge_u32 s3, {NJ}')
    a('s_cbranch_scc1 wk_done')
    a('v_mov_b32 v250, 0')
    a(f'v_mov_b32 v251, {JO}')
    a('v_and_b32 v1, 63, v0')
    a('v_lshlrev_b32 v2, 4, v1')
    a('v_lshrrev_b32 v3, 4, v1')
    a('v_and_b32 v4, 15, v1')
    if MERGE == 3: flag_wait(a, 'wk_fw')
    if MERGE == 1:
        a('s_cmp_ge_u32 s3, 112')
        a('s_cbranch_scc1 wk_np')
        prep.prep_item(a, 'wpa', 's3', st='sc1', mode='A')
        flag_wait(a, 'wk_fa')
        a('s_waitcnt vmcnt(0)')
        a('s_barrier')
        a('v_mov_b32 v250, 0')
        a('s_cmp_lg_u32 s16, 0')
        a('s_cbranch_scc1 wk_loop')
        a('s_lshl_b32 s20, s17, 7')
        a(f's_add_u32 s20, s20, {CNT_OFF + AC}')
        a('v_mov_b32 v5, 1')
        a('v_mov_b32 v6, 0')
        a('s_mov_b64 exec, 1')
        a(f'buffer_atomic_add v5, v6, {SRD}, s20 offen')
        a('s_mov_b64 exec, -1')
        a('s_branch wk_loop')
        a.label('wk_np')
        a('s_sub_u32 s3, s3, 112')
        flag_wait(a, 'wk_fw')
    a('s_cmp_ge_u32 s3, 592')
    a('s_cbranch_scc1 wk_tok')
    a('s_cmp_ge_u32 s3, 480')
    a('s_cbranch_scc1 wk_s4d')
    a('s_cmp_ge_u32 s3, 256')
    a('s_cbranch_scc1 wk_full')
    a('s_cmp_ge_u32 s3, 224')
    a('s_cbranch_scc1 wk_srv')
    a('s_cmp_ge_u32 s3, 112')
    a('s_cselect_b32 s18, 1, 0')
    a('s_cselect_b32 s20, 112, 0')
    a('s_sub_u32 s20, s3, s20')
    a('s_and_b32 s17, s20, 15')
    a('s_add_u32 s17, s17, 16')
    a('s_lshr_b32 s34, s20, 4')
    a('s_lshl_b32 s34, s34, 1')
    a('s_add_u32 s35, s34, 2')
    if RB1_DELAY:
        a('s_cmp_eq_u32 s18, 0')
        a('s_cbranch_scc1 wk_gemm')
        for _ in range(RB1_DELAY): a('s_sleep 127')
    a('s_branch wk_gemm')
    a.label('wk_full')
    a('s_sub_u32 s20, s3, 224')
    a('s_and_b32 s17, s20, 15')
    a('s_lshr_b32 s18, s20, 4')
    a('s_cmp_lt_u32 s18, 8')
    a('s_cselect_b32 s21, 16, 0')
    a('s_add_u32 s17, s17, s21')
    a('s_and_b32 s18, s18, 7')
    a('s_mov_b32 s34, 0\ns_mov_b32 s35, 14')
    a.label('wk_gemm')
    if MERGE == 1:
        a('s_cmp_ge_u32 s17, 16')
        a('s_cbranch_scc1 wk_g2')
        ac_wait(a, 'wk_aw')
        a.label('wk_g2')
        evlog(a, 9006)
    gemm.gemm_body(a, 'wg', 's18', 's17', st='sc1', signal=True, ld='sc1' if MERGE else '')
    a('s_branch wk_loop')
    a.label('wk_srv')
    import t2srv
    a('s_and_b32 s18, s3, 15')
    a('s_lshr_b32 s19, s3, 4')
    a('s_and_b32 s19, s19, 1')
    t2srv.t2srv_body(a, 'ws', 's18', 's19', 'cA_abort', ld='sc1' if MERGE else '')
    a('v_mov_b32 v250, 0')
    a('s_branch wk_loop')
    a.label('wk_s4d')
    a('s_sub_u32 s3, s3, 480')
    s4d.s4d_setup(a)
    s4d.s4d_item(a, 'wk', 's3')
    a('s_branch wk_loop')
    a.label('wk_tok')
    a('s_sub_u32 s3, s3, 592')
    a('s_cmp_ge_u32 s3, 512')
    a('s_cbranch_scc1 wk_done')
    a('s_lshr_b32 s17, s3, 3')
    a('s_and_b32 s18, s3, 3')
    a('s_bitcmp1_b32 s3, 2')
    a('s_cbranch_scc1 wk_toko')
    tok.tokp_body(a, 's17', 's18', ld='sc1', st='sc1', sync='wp', ldx='sc1' if MERGE else '')
    a('s_branch wk_loop')
    a.label('wk_toko')
    tok.toko_body(a, 's17', 's18', ld='sc1', sync='wo', OUT='s[92:95]')
    a('s_branch wk_loop')
    a.label('wp_abort')
    a.label('wo_abort')
    a('s_branch cA_abort')
    a.label('wk_done')

def role_tail(a, late=None):
    lane_consts(a)
    a('s_mov_b32 s19, 0')
    a(f's_mov_b32 s20, {EXCH_OFF}')
    if STAMPS: a('s_mov_b32 s63, s17')
    a('s_lshr_b32 s22, s17, 4')
    a('s_lshl_b32 s22, s22, 2')
    a('s_add_u32 s22, s22, s16')
    a('s_and_b32 s17, s17, 15')
    for p in range(8):
        a(f's_cmp_eq_u32 s22, {p}')
        a(f's_cbranch_scc1 ch_init{p}')
    a('s_branch ch_end')
    for p in range(8):
        a.label(f'ch_init{p}')
        if p < 4: init_score(a, p)
        else: init_value(a, p - 4, p)
        if late: late(p)
        a('s_mov_b32 s30, 0')
        a('v_mov_b32 v36, 0')
        a.label(f'ch_md{p}')
        a(f'buffer_load_dword v37, v36, {DBG}, 0 offen sc1')
        a('s_waitcnt vmcnt(0)')
        a('v_readfirstlane_b32 s22, v37')
        a('s_and_b32 s31, s22, 0xffff')
        a('s_cmp_ge_u32 s31, 32')
        a(f's_cbranch_scc1 ch_go{p}')
        a('s_sleep 2')
        a('s_add_u32 s30, s30, 1')
        a(f's_cmp_lt_u32 s30, {SLOW_LIMIT}')
        a(f's_cbranch_scc1 ch_md{p}')
        a('s_branch ch_end')
        a.label(f'ch_go{p}')
        evlog(a, 9003)
        if p in (0, 4): tmax(a, 5 + (p >> 2) * 8)
        if DIAG: a('s_memtime s[32:33]')
        a('s_mov_b32 s31, 0')
        if p in (4, 5):
            for r in range(36, 60): a(f'v_mov_b32 v{r}, 0')
        a('s_lshr_b32 s22, s22, 16')
        a('s_cmp_lg_u32 s22, 0')
        role = 'sc' if p < 4 else 'va'
        a(f's_cbranch_scc1 cB_{role}{p & 3}_loop')
        a(f's_branch cA_{role}{p & 3}_loop')
    for tag, st in (('cA', ''), ('cB', 'sc1')):
        for w in range(4): gen_score(a, w, st, tag)
        for w in range(4): gen_value(a, w, st, tag)
        tag_end(a, tag)

def tag_end(a, tag):
    a.label(f'{tag}_abort')
    a('v_mov_b32 v4, 0xdead')
    a('v_mov_b32 v5, 16')
    a(f'buffer_store_dword v4, v5, {DBG}, 0 offen')
    a('s_branch ch_end')
    a.label(f'{tag}_done')
    evlog(a, 9004)
    tmax(a, 6)
    if STAMPS and STAMP_CYC:
        a('s_cmp_lg_u32 s16, 0')
        a('s_cbranch_scc1 ch_end')
        a('s_lshl_b32 s22, s63, 10')
        a(f's_add_u32 s22, s22, {STAMP_OFF + 65536}')
        a('s_mov_b32 s30, 0')
        a('s_mov_b64 exec, 1')
        a.label(f'{tag}_cal')
        a('s_memtime s[40:41]')
        a('s_memrealtime s[42:43]')
        a('s_waitcnt lgkmcnt(0)')
        a('v_mov_b32 v4, s40')
        a('v_mov_b32 v5, s42')
        a(f'buffer_store_dwordx2 v[4:5], off, {SRD}, s22')
        a('s_add_u32 s22, s22, 8')
        a('s_add_u32 s30, s30, 1')
        a('s_cmp_lt_u32 s30, 128')
        a(f's_cbranch_scc1 {tag}_cal')
    if DIAG:
        a('s_memtime s[60:61]')
        a('s_waitcnt lgkmcnt(0)')
        a('s_sub_u32 s60, s60, s32')
        a('v_mov_b32 v4, s60')
        a('v_mov_b32 v5, 8')
        a(f'buffer_store_dword v4, v5, {DBG}, 0 offen')
        a('v_mov_b32 v4, s31')
        a('v_mov_b32 v5, 12')
        a('s_mov_b64 exec, 1')
        a(f'buffer_atomic_add v4, v5, {DBG}, 0 offen')
    a('s_branch ch_end')

def gen_chain_kernel(name='chain_kernel', worker=worker_s4d):
    a = Asm()
    a.raw(kernel_header(name))
    a('s_cmp_ge_u32 s2, 256')
    a('s_cbranch_scc1 ch_end')
    a('s_load_dwordx2 s[4:5], s[0:1], 120')
    a('s_load_dwordx2 s[6:7], s[0:1], 128')
    if CODE_PF: code_prefetch(a, name, 'ch_end', 130000, 60)
    a('s_getreg_b32 s3, hwreg(HW_REG_XCC_ID)')
    a('s_and_b32 s3, s3, 15')
    a('v_lshrrev_b32 v1, 6, v0')
    a('v_readfirstlane_b32 s16, v1')
    a('s_waitcnt lgkmcnt(0)')
    a('s_mov_b32 s8, s6\ns_and_b32 s9, s7, 0xffff\ns_mov_b32 s10, 0x10000000\ns_mov_b32 s11, 0x20000')
    a('s_mov_b32 s12, s4\ns_and_b32 s13, s5, 0xffff\ns_mov_b32 s14, 256\ns_mov_b32 s15, 0x20000')
    if EVLOG:
        a('s_lshl_b32 s100, s2, 2')
        a('s_add_u32 s100, s100, s16')
        a('s_lshl_b32 s100, s100, 8')
        a(f's_add_u32 s100, s100, {EV_OFF}')
    evlog(a, 9000)
    if MERGE:
        import prep
        a('s_mov_b32 s97, 0')
        a('s_mov_b32 s91, s3')
        a('v_and_b32 v1, 63, v0')
        a('v_lshlrev_b32 v2, 4, v1')
        a('v_lshrrev_b32 v3, 4, v1')
        a('v_and_b32 v4, 15, v1')
        a('s_cmp_lg_u32 s16, 0')
        a('s_cbranch_scc1 m_a1')
        a(f's_cmp_eq_u32 s3, {XCD_SEL}')
        a('s_cselect_b32 s20, 0, 64')
        a('v_accvgpr_write_b32 a255, 1')
        a('s_mov_b64 exec, 1')
        a(f'buffer_atomic_add a255, v2, {DBG}, s20 offen sc0')
        a('s_mov_b64 exec, -1')
        a.label('m_a1')
        prep.xall_pre(a, 's2')
        a('s_cmp_ge_u32 s2, 224')
        a('s_cbranch_scc1 m_w')
        prep.prep_item(a, 'mpb', 's2', st='sc1', mode='Bhalf' if MERGE == 1 else 'mix', defer=(MERGE == 3))
        a('s_branch m_e')
        a.label('m_w')
        a('s_waitcnt vmcnt(0)')
        a.label('m_e')
        prep.xall_post(a, 'mpx', 's2', 'sc1', wait=False)
        a('v_mov_b32 v6, 160000')
        a('s_waitcnt vmcnt(0) lgkmcnt(0)')
        a('s_barrier')
        a('s_cmp_lg_u32 s16, 0')
        a('s_cbranch_scc1 m_b1')
        a('v_mov_b32 v4, 1')
        a('v_mov_b32 v5, 96')
        a('v_accvgpr_read_b32 v7, a255')
        a('s_mov_b64 exec, 1')
        a(f'buffer_atomic_add v4, v5, {DBG}, 0 offen sc0')
        a('ds_write_b32 v6, v7')
        a('s_waitcnt lgkmcnt(0)')
        a('s_mov_b64 exec, -1')
        a.label('m_b1')
        a('s_barrier')
        a('ds_read_b32 v7, v6')
        a('s_cmp_lg_u32 s16, 0')
        a('s_cbranch_scc1 m_b2')
        a('s_waitcnt vmcnt(0)')
        a('v_readfirstlane_b32 s20, v4')
        a('s_cmp_lg_u32 s20, 255')
        a('s_cbranch_scc1 m_b2')
        a('v_mov_b32 v4, 1')
        a('v_mov_b32 v5, 128')
        a('s_mov_b64 exec, 1')
        a(f'buffer_store_dword v4, v5, {DBG}, 0 offen sc1')
        a('s_mov_b64 exec, -1')
        a.label('m_b2')
        a('s_waitcnt lgkmcnt(0)')
        a('v_readfirstlane_b32 s101, v7')
        evlog(a, 9001)
        a(f's_cmp_lg_u32 s91, {XCD_SEL}')
        a('s_cbranch_scc1 ch_worker')
        a('s_and_b32 s17, s101, 0xffff')
        a('s_mov_b32 s101, -1')
        a('s_cmp_lt_u32 s17, 32')
        a('s_cbranch_scc1 ch_role')
        a('s_branch ch_worker')
    else:
        a(f's_cmp_lg_u32 s3, {XCD_SEL}')
        a('s_cbranch_scc1 ch_worker')
    a('v_mov_b32 v4, 1')
    a('s_mov_b32 s18, 0')
    a.label('ch_take')
    a('v_mov_b32 v5, 0')
    wg_atomic(a, 'ch_el', 's17')
    a('s_and_b32 s17, s17, 0xffff')
    a('s_cmp_lt_u32 s17, 32')
    a('s_cbranch_scc1 ch_role')
    a('s_cmp_eq_u32 s18, 0')
    a('s_cbranch_scc1 ch_worker')
    a('s_branch ch_end')
    a.label('ch_role')
    if MERGE:
        flag_wait(a, 'ch_fw')
        if MERGE == 1:
            a('s_cmp_ge_u32 s17, 16')
            a('s_cbranch_scc1 ch_r2')
            ac_wait(a, 'ch_aw')
            a.label('ch_r2')
        evlog(a, 9002)
    role_tail(a)
    a.label('ch_worker')
    if worker: worker(a)
    if worker is not worker_all: staff_check(a, 'ch_end', 1)
    a.label('ch_end')
    a('s_endpgm')
    return a

if __name__ == '__main__':
    import sys
    for x in sys.argv[2:]:
        if x == 'stamps': STAMPS = True
        elif '=' in x:
            k, v = x.split('='); globals()[k] = int(v)
    a = gen_chain_kernel()
    out = ['; @launch kernel=chain_kernel grid=(256,1,1) block=(256,1,1) lds=163840',
           '.amdgcn_target "amdgcn-amd-amdhsa--gfx950"', '.text', a.text(), '.section .rodata,"a"', kernel_desc('chain_kernel')]
    open(sys.argv[1], 'w').write('\n'.join(out) + '\n')
    print('instructions', a.count)
```

```python
from asmlib import *
from layout import *
import chain as C, start as S, prep, gemm, tok, s4d, t2srv
from chain import SRD, DBG, evlog
BC = 160000
JOBQ = 192; NON = 128
def mask_off(a, dst, cls):
    a(f's_and_b32 s71, {cls}, 4')
    a('s_mul_i32 s71, s71, 12')
    a(f's_lshl_b32 {dst}, {cls}, 2')
    a(f's_add_u32 {dst}, {dst}, s71')
MASK0 = 32
SCRAMBLE = 0
XPRE = 0
EVMID = 0
WARM = 1
VPF = 28
A1T = 1
XL = 0
LATE = 0
SKIP = 0
S4X = 1
LLW = 1
TD = 8
FPOS = 0
VPK = 16
STEAL_AT = 64
Q_FINE = 0; Q_V7 = Q_FINE + 224; Q_SRV = Q_V7 + 112; Q_A = Q_SRV + 32; Q_VH = Q_A + 128; Q_VF = Q_VH + 64; Q_F = Q_VF + 64; Q_S4 = Q_F + 128; Q_TOK = Q_S4 + 112; Q_END = Q_TOK + 512

def kargs(a):
    a('s_load_dwordx8 s[36:43], s[0:1], 56')
    a('s_load_dwordx4 s[44:47], s[0:1], 88')
def lanes(a):
    a('v_and_b32 v1, 63, v0')
    a('v_lshlrev_b32 v2, 4, v1')
    a('v_lshrrev_b32 v3, 4, v1')
    a('v_and_b32 v4, 15, v1')
def w0(a, fn):
    l = a.newlabel('w0')
    a('s_cmp_lg_u32 s16, 0')
    a(f's_cbranch_scc1 {l}')
    fn()
    a.label(l)
def bcast(a, regs, dsts, t=250):
    a(f'v_mov_b32 v{t}, {BC}')
    a('s_add_u32 s101, s101, 1')
    def wr():
        for i, r in enumerate(regs): a(f'ds_write_b32 v{t}, v{r} offset:{4*i}')
        a('s_waitcnt lgkmcnt(0)')
        a(f'v_mov_b32 v{regs[0]}, s101')
        a(f'ds_write_b32 v{t}, v{regs[0]} offset:16')
        a('s_waitcnt lgkmcnt(0)')
    a('s_barrier')
    a('s_mov_b64 exec, 1')
    w0(a, wr)
    a('s_mov_b64 exec, -1')
    a('s_barrier')
    for i, r in enumerate(regs): a(f'ds_read_b32 v{r}, v{t} offset:{4*i}')
    a(f'ds_read_b32 v{t}, v{t} offset:16')
    a('s_waitcnt lgkmcnt(0)')
    for r, d in zip(regs, dsts): a(f'v_readfirstlane_b32 {d}, v{r}')
    a(f'v_cmp_ne_u32 vcc, s101, v{t}')
    a('s_cbranch_vccnz ch_end')

def claim_issue(a, P, r=242):
    a('s_cmp_lg_u32 s66, 0')
    a(f's_cbranch_scc1 {P}_ci')
    def at():
        a('s_lshr_b32 s70, s3, 5')
        mask_off(a, 's70', 's70')
        a('s_lshl_b32 s71, 1, s3')
        a(f'v_mov_b32 v{r}, s71')
        a(f'v_mov_b32 v{r+1}, {MASK0}')
        a('s_mov_b64 exec, 1')
        a(f'buffer_atomic_or v{r}, v{r+1}, {DBG}, s70 offen sc0')
        a(f'buffer_load_dwordx2 v[{r+2}:{r+3}], v{r+1}, {DBG}, 0 offen offset:{NON-MASK0} sc1')
        a('s_mov_b64 exec, -1')
    w0(a, at)
    a.label(f'{P}_ci')

def set_nonce(a, r):
    a(f'v_mov_b32 v{r+1}, {NON}')
    a(f'v_mov_b32 v{r+2}, s88\nv_mov_b32 v{r+3}, s89\nv_mov_b32 v{r+4}, 0\nv_mov_b32 v{r+5}, 0')
    a('s_mov_b64 exec, 1')
    a(f'buffer_atomic_cmpswap_x2 v[{r+2}:{r+5}], v{r+1}, {DBG}, 0 offen sc0')
    a('s_mov_b64 exec, -1')

def confirm(a, P, n, r=242):
    a('s_cmp_lg_u32 s66, 0')
    a(f's_cbranch_scc1 {P}_cf')
    def w():
        a(f's_waitcnt vmcnt({n})')
        a(f'v_readfirstlane_b32 s70, v{r+2}')
        a('s_cmp_lg_u32 s70, 0')
        a(f's_cbranch_scc1 {P}_nz')
        set_nonce(a, r)
        a('s_waitcnt vmcnt(0)')
        a(f'v_readfirstlane_b32 s70, v{r+2}')
        a('s_cmp_lg_u32 s70, 0')
        a(f's_cbranch_scc1 {P}_nz')
        a(f'v_mov_b32 v{r+2}, s88\nv_mov_b32 v{r+3}, s89')
        a.label(f'{P}_nz')
    w0(a, w)
    bcast(a, [r, r + 2, r + 3], ['s70', 's88', 's89'], t=r + 1)
    a('s_mov_b32 s66, 1')
    a('s_bitcmp1_b32 s70, s3')
    a('s_cbranch_scc1 m_reclaim')
    a.label(f'{P}_cf')

def claim_loop(a, P, lo_class, ncls):
    a('s_mov_b32 s21, 0')
    a('s_mov_b64 exec, 1')
    a.label(f'{P}_l')
    a('s_cmp_lg_u32 s70, -1')
    a(f's_cbranch_scc1 {P}_t')
    a('s_add_u32 s20, s20, 1')
    a('s_cmp_lt_u32 s20, 8')
    a(f's_cselect_b32 s20, s20, {lo_class}')
    a('s_mov_b32 s70, 0')
    a('s_mov_b32 s3, -1')
    a('s_add_u32 s21, s21, 1')
    a(f's_cmp_ge_u32 s21, {ncls}')
    a(f's_cbranch_scc1 {P}_d')
    a.label(f'{P}_t')
    a('s_ff0_i32_b32 s22, s70')
    a('s_lshl_b32 s23, 1, s22')
    mask_off(a, 's3', 's20')
    a('v_mov_b32 v242, s23')
    a(f'v_mov_b32 v243, {MASK0}')
    a(f'buffer_atomic_or v242, v243, {DBG}, s3 offen sc0')
    a('s_waitcnt vmcnt(0)')
    a('v_readfirstlane_b32 s70, v242')
    a('s_lshl_b32 s3, s20, 5')
    a('s_add_u32 s3, s3, s22')
    a('s_bitcmp1_b32 s70, s22')
    a(f's_cbranch_scc1 {P}_l')
    a.label(f'{P}_d')
    a('s_mov_b64 exec, -1')
    a('v_mov_b32 v242, s3')

def allflags(a, P, rep_s, t=24, limit=None, sleep=4, on_spin=None):
    a(f's_lshl_b32 s22, {rep_s}, 11')
    a(f's_add_u32 s22, s22, {IF_OFF}')
    a(f'v_add_u32 v{t}, 1024, v2')
    a(f'v_min_u32 v{t}, {1792-16}, v{t}')
    S.flag_poll(a, P, t + 4, [(2, 's22'), (t, 's22')], 'cA_abort', limit or C.SLOW_LIMIT, sleep, on_spin)

def ask(a):
    def f():
        a('v_mov_b32 v250, 1')
        a(f'v_mov_b32 v251, {JOBQ}')
        a('s_mov_b64 exec, 1')
        a(f'buffer_atomic_add v250, v251, {DBG}, 0 offen sc0')
        a('s_mov_b64 exec, -1')
    w0(a, f)

def worker(a):
    tok.PEEK = DBG
    a.label('m_bjob')
    lanes(a)
    a('s_sub_u32 s18, s3, 32')
    vq = S.VQ()
    S.bjob_decode(a)
    S.bjob_issue(a, vq)
    def xl():
        S.bjob_x(a, vq)
        if A1T: S.a1_touch(a, vq)
    if not XL: xl()
    evlog(a, 9008, 52)
    claim_issue(a, 'bj', 44)
    def cf():
        confirm(a, 'bj', 4 + A1T if XL else 0, 44)
        evlog(a, 9001, 52)
    S.bjob_run(a, 'bj', vq, 1, cf, 's77', False, xl if XL else None)
    a(f's_add_u32 s78, s77, {IF_OFF - BF_OFF}')
    a('s_cmp_lt_u32 s19, 3')
    a('s_cbranch_scc1 bj_a1')
    S.init_stores(a, 'bi', vq)
    a('s_waitcnt vmcnt(4)')
    S._fills(a, vq)
    S.publish(a, 's77', 1)
    evlog(a, 9002, 112)
    a('s_waitcnt vmcnt(0)')
    S.publish(a, 's78', BF_R)
    evlog(a, 9007)
    a('s_branch bj_end')
    a.label('bj_a1')
    a('s_add_u32 s19, s19, 4')
    S.init_stores(a, 'bk', vq)
    S._fills(a, vq)
    a('s_barrier')
    vq = S.VQ()
    def hk():
        a('s_waitcnt vmcnt(8)')
        S.publish(a, 's77', 1, 44)
        w0(a, lambda: S.flag_store(a, 's78', BF_R, 2048, 48))
        evlog(a, 9002, 52)
    S.bjob_issue(a, vq, 0, 'ak', hk)
    a('s_mov_b32 s79, 1')
    a('s_branch aj_run')
    a.label('bj_end')
    if LLW: S.llc_warm(a)
    w0(a, lambda: C.tmax(a, 14))
    evlog(a, 9009)
    a('s_mov_b32 s3, s68')
    a('s_cmp_lg_u32 s69, 0')
    a('s_cbranch_scc1 wk_have')
    a('v_mov_b32 v250, 0')
    a('s_branch wk_ask')
    a.label('wk_loop')
    a('s_waitcnt vmcnt(0) lgkmcnt(0)')
    a('s_cmp_eq_u32 s96, 1')
    a('s_cbranch_scc1 wk_ask')
    a('s_mov_b32 s96, 1')
    def staff():
        a('s_mov_b32 s30, 0')
        a(f'v_mov_b32 v243, {MASK0}')
        a.label('sf_l')
        a(f'buffer_load_dword v242, v243, {DBG}, 0 offen sc1')
        a('s_waitcnt vmcnt(0)')
        a('v_readfirstlane_b32 s70, v242')
        a('s_cmp_eq_u32 s70, -1')
        a('s_cbranch_scc1 sf_d')
        a('s_sleep 16')
        a('s_add_u32 s30, s30, 1')
        a('s_cmp_lt_u32 s30, 64')
        a('s_cbranch_scc1 sf_l')
        a('s_mov_b32 s20, 0')
        claim_loop(a, 'sf_c', 0, 1)
        a.label('sf_d')
    w0(a, staff)
    bcast(a, [242], ['s3'], t=243)
    a('s_cmp_eq_u32 s3, -1')
    a('s_cbranch_scc1 wk_ask')
    kargs(a)
    a('s_getreg_b32 s67, hwreg(HW_REG_XCC_ID)')
    a('s_and_b32 s67, s67, 7')
    a('s_mov_b32 s66, 1')
    a('s_waitcnt lgkmcnt(0)')
    a('s_branch m_start')
    a.label('wk_ask')
    a('v_readfirstlane_b32 s22, v250')
    a(f's_cmp_ge_u32 s22, {Q_END}')
    a('s_cbranch_scc1 wk_next')
    ask(a)
    a.label('wk_next')
    evlog(a, 9005)
    a('s_waitcnt vmcnt(0)')
    bcast(a, [250], ['s3'], t=6)
    a.label('wk_have')
    evlog(a, 's3')
    a(f's_cmp_ge_u32 s3, {Q_END}')
    a('s_cbranch_scc1 ch_end')
    a('v_mov_b32 v250, 0')
    a(f'v_mov_b32 v251, {JOBQ}')
    lanes(a)
    a('s_cmp_lg_u32 s97, 0')
    a('s_cbranch_scc1 wk_go')
    a('s_mov_b32 s68, s3\ns_mov_b32 s69, 1')
    def poll():
        def spin():
            a(f's_and_b32 s20, s30, {STEAL_AT-1}')
            a('s_cbranch_scc1 wk_ns')
            a('s_mov_b32 s20, 1\ns_mov_b32 s70, 0')
            claim_loop(a, 'wk_st', 1, 7)
            a('s_cmp_lg_u32 s3, -1')
            a('s_cbranch_scc1 wk_pd')
            a('s_add_u32 s20, s67, 1')
            a(f's_lshl_b32 s22, s20, 11')
            a(f's_add_u32 s22, s22, {IF_OFF}')
            a.label('wk_ns')
        a('s_add_u32 s20, s67, 1')
        allflags(a, 'wk_af', 's20', sleep=4, on_spin=spin)
        a('v_mov_b32 v242, -1')
        a.label('wk_pd')
    w0(a, poll)
    bcast(a, [242], ['s3'], t=243)
    a('s_cmp_lg_u32 s3, -1')
    a('s_cbranch_scc1 m_bjob')
    a('s_mov_b32 s3, s68\ns_mov_b32 s97, 1')
    evlog(a, 9006)
    a.label('wk_go')
    for lim, lab in ((Q_TOK, 'wk_tok'), (Q_S4, 'wk_s4d'), (Q_F, 'wk_f'), (Q_VF, 'wk_vf'), (Q_VH, 'wk_vh'), (Q_A, 'wk_a'), (Q_SRV, 'wk_srv'), (Q_V7, 'wk_v7')):
        a(f's_cmp_ge_u32 s3, {lim}')
        a(f's_cbranch_scc1 {lab}')
    a(f's_sub_u32 s20, s3, {Q_FINE}')
    a('s_cmp_ge_u32 s20, 112')
    a('s_cselect_b32 s18, 1, 0')
    a('s_cselect_b32 s21, 112, 0')
    a('s_sub_u32 s20, s20, s21')
    a('s_and_b32 s17, s20, 15')
    a('s_add_u32 s17, s17, 16')
    a('s_lshr_b32 s34, s20, 4')
    a('s_lshl_b32 s34, s34, 1')
    a('s_add_u32 s35, s34, 2')
    gemm.gemm_body(a, 'wf', 's18', 's17', st='sc1', signal=True, ld='sc1', NT=2)
    a('s_branch wk_loop')
    a.label('wk_v7')
    a(f's_sub_u32 s20, s3, {Q_V7}')
    a('s_mov_b32 s18, 1')
    a('s_and_b32 s17, s20, 15')
    a('s_add_u32 s17, s17, 16')
    a('s_lshr_b32 s34, s20, 4')
    a('s_lshl_b32 s34, s34, 1')
    a('s_add_u32 s35, s34, 2')
    a('s_branch wk_gemm')
    a.label('wk_vh')
    a(f's_sub_u32 s20, s3, {Q_VH}')
    a('s_and_b32 s17, s20, 15')
    a('s_add_u32 s17, s17, 16')
    a('s_lshr_b32 s18, s20, 5')
    a('s_add_u32 s18, s18, 2')
    a('s_bitcmp1_b32 s20, 4')
    a('s_cselect_b32 s34, 7, 0')
    a('s_add_u32 s35, s34, 7')
    a('s_branch wk_gemm')
    a.label('wk_vf')
    a(f's_sub_u32 s20, s3, {Q_VF}')
    a('s_and_b32 s17, s20, 15')
    a('s_add_u32 s17, s17, 16')
    a('s_lshr_b32 s18, s20, 4')
    a('s_add_u32 s18, s18, 4')
    a('s_mov_b32 s34, 0\ns_mov_b32 s35, 14')
    a('s_branch wk_gemm')
    a.label('wk_f')
    if SKIP & 4: a('s_branch wk_loop')
    a(f's_sub_u32 s20, s3, {Q_F}')
    a('s_and_b32 s17, s20, 15')
    a('s_lshr_b32 s18, s20, 4')
    a('s_mov_b32 s34, 0\ns_mov_b32 s35, 14')
    a('s_lshl_b32 s22, s17, 7')
    a(f's_add_u32 s22, s22, {AF_OFF}')
    a('v_min_u32 v24, 96, v2')
    S.flag_poll(a, 'wk_aw', 28, [(24, 's22')], 'cA_abort', C.SLOW_LIMIT, 6)
    a.label('wk_gemm')
    gemm.gemm_body(a, 'wg', 's18', 's17', st='sc1', signal=True, ld='sc1')
    a('s_branch wk_loop')
    a.label('wk_a')
    if SKIP & 8: a('s_branch wk_loop')
    kargs(a)
    a(f's_sub_u32 s3, s3, {Q_A}')
    a('s_and_b32 s17, s3, 15')
    a('s_lshr_b32 s19, s3, 5')
    a('s_bitcmp1_b32 s3, 4')
    a('s_cselect_b32 s31, 7, 0')
    a('s_waitcnt lgkmcnt(0)')
    vq = S.VQ()
    S.bjob_issue(a, vq, 0, 'aj')
    a('s_mov_b32 s79, 0')
    a.label('aj_run')
    S.bjob_run(a, 'aj', vq, 0)
    a('s_cmp_lg_u32 s79, 0')
    a('s_cbranch_scc1 bj_end')
    a('v_mov_b32 v250, 0')
    a('s_branch wk_loop')
    a.label('wk_srv')
    if SKIP & 16: a('s_branch ch_end')
    a(f's_sub_u32 s3, s3, {Q_SRV}')
    a('s_and_b32 s18, s3, 15')
    a('s_lshr_b32 s19, s3, 4')
    a('s_and_b32 s19, s19, 1')
    t2srv.t2srv_body(a, 'ws', 's18', 's19', 'cA_abort', ld='sc1')
    a('v_mov_b32 v250, 0')
    a('s_branch wk_loop')
    a.label('wk_s4d')
    if SKIP & 1: a('s_branch wk_loop')
    if S4X:
        def pick():
            a('s_getreg_b32 s20, hwreg(HW_REG_XCC_ID)')
            a(f's_sub_u32 s20, s20, {C.XCD_SEL + 1}')
            a('s_and_b32 s20, s20, 7')
            a('s_mov_b64 exec, 1')
            a.label('s4_l')
            a('s_cmp_ge_u32 s20, 7')
            a('s_cselect_b32 s20, 0, s20')
            a('s_lshl_b32 s21, s20, 7')
            a(f's_add_u32 s21, s21, {CNT_OFF + S4Q}')
            a('v_mov_b32 v242, 1')
            a(f'buffer_atomic_add v242, off, {SRD}, s21 sc0')
            a('s_waitcnt vmcnt(0)')
            a('v_readfirstlane_b32 s21, v242')
            a('s_lshl_b32 s22, s20, 4')
            a('s_add_u32 s20, s20, 1')
            a('s_cmp_ge_u32 s21, 16')
            a('s_cbranch_scc1 s4_l')
            a('v_add_u32 v242, s22, v242')
            a('s_mov_b64 exec, -1')
        w0(a, pick)
        bcast(a, [242], ['s3'], t=243)
    else: a(f's_sub_u32 s3, s3, {Q_S4}')
    s4d.s4d_setup(a)
    s4d.s4d_item(a, 'wk', 's3')
    w0(a, lambda: C.tmax(a, 15))
    a('s_branch wk_loop')
    a.label('wk_tok')
    if SKIP & 2: a('s_branch wk_loop')
    a(f's_sub_u32 s3, s3, {Q_TOK}')
    a('s_and_b32 s18, s3, 3')
    a('s_lshr_b32 s17, s3, 2')
    a(f's_cmp_lt_u32 s17, {TD}')
    a('s_cbranch_scc1 wk_tokp')
    a(f's_sub_u32 s17, s17, 64')
    a(f's_cmp_ge_i32 s17, {64 - TD}')
    a('s_cbranch_scc1 wk_toko')
    a(f's_add_u32 s20, s17, {64 - TD}')
    a('s_lshr_b32 s17, s20, 1')
    a('s_bitcmp0_b32 s20, 0')
    a('s_cbranch_scc1 wk_toko')
    a(f's_add_u32 s17, s17, {TD}')
    a.label('wk_tokp')
    tok.tokp_body(a, 's17', 's18', ld='sc1', st='sc1', sync='wp', ldx='sc1')
    a('s_branch wk_loop')
    a.label('wk_toko')
    tok.toko_body(a, 's17', 's18', ld='sc1', sync='wo', OUT='s[92:95]')
    if C.TMAX:
        a('s_waitcnt vmcnt(0)')
        C.tmax(a, 7)
    a('v_readfirstlane_b32 s22, v250')
    a(f's_cmp_ge_u32 s22, {Q_END}')
    a('s_cbranch_scc1 ch_end')
    a('s_branch wk_loop')
    a.label('wp_abort')
    a.label('wo_abort')
    a('s_branch cA_abort')

def staffed(a, r=242):
    def f():
        a(f's_cmp_eq_u32 s67, {C.XCD_SEL}')
        a('s_cselect_b32 s20, 1, 0x10001')
        a(f'v_mov_b32 v{r}, s20')
        a(f'v_mov_b32 v{r+1}, 0')
        a('s_mov_b64 exec, 1')
        a(f'buffer_atomic_add v{r}, v{r+1}, {DBG}, 0 offen')
        a('s_mov_b64 exec, -1')
    w0(a, f)

def gen(name='main_kernel'):
    C.SYNC = 1; C.MERGE = 2; C.SELF = 1
    a = Asm()
    a.raw(kernel_header(name))
    a('s_cmp_ge_u32 s2, 256')
    a('s_cbranch_scc1 ch_end')
    a('s_load_dwordx4 s[4:7], s[0:1], 120')
    a('s_load_dwordx2 s[92:93], s[0:1], 112')
    kargs(a)
    a('s_memrealtime s[88:89]')
    if C.CODE_PF == 1: code_prefetch_shared(a, name, 'ch_end', 60)
    if C.CODE_PF == 2: code_prefetch(a, name, 'ch_end', 160000, 60)
    a('s_getreg_b32 s67, hwreg(HW_REG_XCC_ID)')
    a('s_and_b32 s67, s67, 7')
    a('v_lshrrev_b32 v1, 6, v0')
    a('v_readfirstlane_b32 s16, v1')
    a('s_mov_b32 s66, 0\ns_mov_b32 s68, 0\ns_mov_b32 s69, 0\ns_mov_b32 s96, 0\ns_mov_b32 s97, 0\ns_mov_b32 s101, 0x5eed0000')
    a(f's_sub_u32 s20, s67, {C.XCD_SEL}')
    a('s_lshr_b32 s21, s2, 3')
    if SCRAMBLE: a('s_add_u32 s20, s20, s21')
    if SCRAMBLE == 2: a('s_lshr_b32 s21, s21, 2')
    a('s_and_b32 s20, s20, 7')
    a('s_lshl_b32 s3, s20, 5')
    a('s_add_u32 s3, s3, s21')
    a('s_waitcnt lgkmcnt(0)')
    a('s_mov_b32 s8, s6\ns_and_b32 s9, s7, 0xffff\ns_mov_b32 s10, 0x10000000\ns_mov_b32 s11, 0x20000')
    a('s_mov_b32 s12, s4\ns_and_b32 s13, s5, 0xffff\ns_mov_b32 s14, 256\ns_mov_b32 s15, 0x20000')
    a('s_or_b32 s88, s88, 1')
    a(f's_and_b32 s93, s93, 0xffff\ns_mov_b32 s94, {2048*896*2}\ns_mov_b32 s95, 0x20000')
    if C.EVLOG:
        a('s_lshl_b32 s100, s2, 2')
        a('s_add_u32 s100, s100, s16')
        a('s_lshl_b32 s100, s100, 8')
        a(f's_add_u32 s100, s100, {C.EV_OFF}')
    evlog(a, 9000)
    if LATE:
        a('s_mul_i32 s20, s2, 37\ns_and_b32 s20, s20, 15\ns_cmp_lg_u32 s20, 8\ns_cbranch_scc1 m_nl')
        a('s_mov_b32 s20, 0')
        a.label('m_ll')
        a(f's_sleep 127\ns_add_u32 s20, s20, 1\ns_cmp_lt_u32 s20, {LATE}\ns_cbranch_scc1 m_ll')
        a.label('m_nl')
        a('s_mul_i32 s20, s2, 37\ns_and_b32 s20, s20, 15\ns_cmp_lg_u32 s20, 3\ns_cbranch_scc1 m_nl2')
        a('s_mov_b32 s20, 0')
        a.label('m_ll2')
        a(f's_sleep 127\ns_add_u32 s20, s20, 1\ns_cmp_lt_u32 s20, {LATE}\ns_cbranch_scc1 m_ll2')
        a.label('m_nl2')
    acs = S.AComp(a, 'as')
    def evm(p):
        a('s_memrealtime s[98:99]' if EVMID == 1 else 's_memtime s[98:99]')
        a(f'v_mov_b32 v96, {9100 + p}')
        a('s_mov_b64 exec, 1')
        a(f'buffer_store_dword v96, off, {SRD}, s100')
        a('s_waitcnt lgkmcnt(0)')
        a('v_mov_b32 v96, s98')
        a(f'buffer_store_dword v96, off, {SRD}, s100 offset:4')
        a('s_mov_b64 exec, -1')
        a('s_add_u32 s100, s100, 8')
    acs.mid = evm if EVMID else None
    a.label('m_start')
    a('s_cmp_ge_u32 s3, 32')
    a('s_cbranch_scc1 m_bjob')
    C.lane_consts(a)
    a('s_and_b32 s17, s3, 15')
    a('s_cmp_ge_u32 s3, 16')
    a('s_cbranch_scc1 m_val')
    acs.issue()
    evlog(a, 9008, 96)
    claim_issue(a, 'sc', 248)
    acs.setup()
    acs.fetch()
    confirm(a, 'sc', 4 * (S.APRE - 1), 248)
    staffed(a, 248)
    evlog(a, 9001, 96)
    a('s_lshl_b32 s28, s17, 7')
    a(f's_add_u32 s28, s28, {AF_OFF + 64}')
    a('v_min_u32 v113, 32, v2')
    a(f's_mov_b32 s29, {IF_OFF}')
    a('v_add_u32 v112, 1024, v2')
    a(f'v_min_u32 v112, {1792-16}, v112')
    fl = [(113, 's28'), (2, 's29'), (112, 's29')]
    def extra(p):
        if p != 13: return []
        return [[] for _ in range(FPOS)] + [[f'buffer_load_dwordx4 v[{100+4*i}:{103+4*i}], v{va}, {SRD}, {so} offen sc1'] for i, (va, so) in enumerate(fl)]
    acs.run(lambda t, p: C.wreg(t, p >> 1) + 4 * (p & 1), extra)
    evlog(a, 9002)
    C.tmax(a, 12)
    S.flag_poll(a, 'sc_aw', 100, fl, 'cA_abort', C.SLOW_LIMIT, 1, issued=True)
    a('s_barrier')
    a('s_branch m_role')
    a.label('m_val')
    w0(a, lambda: set_nonce(a, 232))
    claim_issue(a, 'va')
    if VPF:
        S.srd(a, 56, 40, S.W_BYTES)
        a('v_lshrrev_b32 v24, 5, v1')
        a('v_and_b32 v25, 31, v1')
        a('v_lshlrev_b32 v25, 4, v25')
        a('v_lshl_add_u32 v24, v24, 13, v25')
        S.srd(a, 60, 42, S.W_BYTES)
        a('s_lshl_b32 s22, s17, 9')
        a('s_lshl_b32 s23, s16, 19')
        a('s_add_u32 s23, s22, s23')
        for i in range(VPK):
            a(f's_add_u32 s21, s23, {(64 - 2*VPK + 2*i) << 13}')
            a('buffer_load_dwordx4 v[28:31], v24, s[60:63], s21 offen')
        a('s_lshl_b32 s23, s16, 14')
        a('s_add_u32 s22, s22, s23')
        a('s_mov_b32 s30, 0')
        a.label('va_pf')
        a('buffer_load_dwordx4 v[28:31], v24, s[56:59], s22 offen')
        a('s_waitcnt vmcnt(40)')
        a('s_add_u32 s22, s22, 65536')
        a('s_add_u32 s30, s30, 1')
        a(f's_cmp_lt_u32 s30, {VPF}')
        a('s_cbranch_scc1 va_pf')
    evlog(a, 9008)
    confirm(a, 'va', min(VPF + VPK, 40) if VPF else 0)
    staffed(a)
    evlog(a, 9001)
    a.label('m_role')
    evlog(a, 9006)
    a('s_mov_b32 s17, s3')
    def late(p):
        if p >= 4: allflags(a, f'va_iw{p}', '0', t=36, sleep=2)
    def bdep(lo, hi):
        a('s_mul_i32 s22, s17, 28')
        a('s_add_u32 s23, s22, 27')
        a('s_lshr_b32 s22, s22, 6')
        a('s_lshr_b32 s23, s23, 6')
        a('s_sub_u32 s23, s23, s22')
        a('s_lshl_b32 s23, s23, 8')
        a('v_and_b32 v36, s23, v2')
        a(f'v_med3_u32 v37, v117, {lo}, {hi}')
        a('v_lshl_add_u32 v36, v37, 4, v36')
        a('s_lshl_b32 s22, s22, 8')
        a(f's_add_u32 s22, s22, {BF_OFF}')
        S.flag_poll(a, a.newlabel('va_bw'), 40, [(36, 's22')], 'cA_abort', C.SLOW_LIMIT, 2)
        evlog(a, 9002)
    C.BDEP = bdep
    C.role_tail(a, late)
    a.label('m_reclaim')
    a('s_waitcnt vmcnt(0)')
    a('s_lshr_b32 s20, s3, 5')
    w0(a, lambda: claim_loop(a, 'rc', 0, 9))
    bcast(a, [242], ['s3'])
    a('s_cmp_lg_u32 s3, -1')
    a('s_cbranch_scc1 m_start')
    a('v_mov_b32 v250, 0')
    a('s_branch wk_ask')
    worker(a)
    a.label('ch_end')
    a('s_endpgm')
    return a
```

```python
from asmlib import *
from layout import *
WS = 's[8:11]'
PEEK = WS
def ev(a, tag, t=120):
    import chain as C
    if C.EVLOG:
        l = a.newlabel('ev')
        a('s_cmp_lt_u32 s17, 62')
        a(f's_cbranch_scc1 {l}')
        a(f's_mul_i32 s29, s17, 10\ns_add_u32 s29, s29, {9200 - 620 + tag}')
        C.evlog(a, 's29', t)
        a.label(l)
def common(a, endl):
    a('s_cmp_ge_u32 s2, 256')
    a(f's_cbranch_scc1 {endl}')
    a('s_load_dwordx2 s[6:7], s[0:1], 128')
    a('s_load_dwordx2 s[4:5], s[0:1], 112')
    a('v_lshrrev_b32 v1, 6, v0')
    a('v_readfirstlane_b32 s16, v1')
    a('v_and_b32 v1, 63, v0')
    a('v_lshlrev_b32 v2, 4, v1')
    a('v_lshrrev_b32 v3, 4, v1')
    a('v_and_b32 v4, 15, v1')
    a('s_waitcnt lgkmcnt(0)')
    a('s_mov_b32 s8, s6\ns_and_b32 s9, s7, 0xffff\ns_mov_b32 s10, 0x10000000\ns_mov_b32 s11, 0x20000')
    a(f's_mov_b32 s12, s4\ns_and_b32 s13, s5, 0xffff\ns_mov_b32 s14, {2048*896*2}\ns_mov_b32 s15, 0x20000')

WAIT_LIMIT = 30000
SLEEP = 1
LONG = 127
MIDS = 4
NEAR = 56
FULLPOLL = 64
ONELINE = 0
PMODE = 3
LASTP = 61
T2MID = 20
def mpoll(a, dst, va, so):
    if PMODE == 0: a(f'buffer_load_dword v{dst}, v{va}, {WS}, {so} offen sc1')
    elif PMODE == 1: a(f'buffer_load_dword v{dst}, v{va}, {WS}, {so} offen sc0 sc1')
    elif PMODE == 2: a(f'buffer_load_dword v{dst}, v{va}, {WS}, {so} offen sc0 sc1 nt')
    else:
        l = a.newlabel('mp')
        a(f's_cmp_ge_u32 s17, {LASTP}')
        a(f's_cbranch_scc1 {l}a')
        a(f'v_mov_b32 v{dst}, 0')
        a('s_mov_b64 exec, 1')
        a(f'buffer_atomic_or v{dst}, v{va}, {WS}, {so} offen sc0')
        a('s_mov_b64 exec, -1')
        a(f's_branch {l}b')
        a.label(l + 'a')
        a(f'buffer_load_dword v{dst}, v{va}, {WS}, {so} offen sc1')
        a.label(l + 'b')
def backoff(a, P, sleep):
    a(f's_sleep {sleep}')
    a(f's_cmp_ge_u32 s17, {LASTP}')
    a(f's_cbranch_scc1 {P}_bo')
    a(f's_sleep {MIDS}')
    a(f's_cmp_ge_u32 s17, {NEAR}')
    a(f's_cbranch_scc1 {P}_bo')
    a(f's_sleep {LONG}')
    a.label(P + '_bo')
def wait_eq(a, P, soff, target, abort, sleep=None, four=False, ne=False):
    sleep = sleep or SLEEP
    if four: a('v_lshlrev_b32 v60, 2, v3')
    else: a('v_mov_b32 v60, 0')
    a('s_mov_b32 s30, 0')
    a.label(P)
    a(f'buffer_load_dword v61, v60, {WS}, {soff} offen sc1')
    a('s_waitcnt vmcnt(0)')
    a(f'v_cmp_{"eq" if ne else "ne"}_u32 vcc, {target}, v61')
    a(f's_cbranch_vccz {P}_ok')
    backoff(a, P, sleep)
    a('s_add_u32 s30, s30, 1')
    a(f's_cmp_lt_u32 s30, {WAIT_LIMIT}')
    a(f's_cbranch_scc1 {P}')
    a(f's_branch {abort}')
    a.label(P + '_ok')

def load_lin(a, base_s, n, areg, flags=''):
    for f in range(n):
        if f % 4 == 0: a(f's_add_u32 s22, {base_s}, {f*1024}')
        a(f'buffer_load_dwordx4 a[{areg+4*f}:{areg+4*f+3}], v2, {WS}, s22 offen offset:{(f & 3)*1024} {flags}')

def tokp_body(a, seg_s, hq_s, ld='', st='', sync=None, ldx=''):
    a(f's_lshl_b32 s20, {hq_s}, 2')
    a('s_add_u32 s20, s20, s16')
    a(f's_lshl_b32 s21, {seg_s}, 4')
    a('s_add_u32 s21, s21, s20')
    a(f's_mul_i32 s21, s21, {GSH_B}')
    a(f's_add_u32 s21, s21, {F_OFF}')
    a(f's_mul_i32 s23, {seg_s}, {28*KB}')
    a(f's_add_u32 s23, s23, {XM_OFF}')
    FA, XA, MA = 0, 112, 224
    if sync:
        a(f's_mul_i32 s24, {seg_s}, {7*KB}')
        a(f's_add_u32 s24, s24, {MEMG_OFF}')
        a(f's_lshr_b32 s25, {seg_s}, 3')
        a('s_lshl_b32 s25, s25, 4')
        a('s_add_u32 s25, s25, s20')
        a('s_lshl_b32 s25, s25, 7')
        a(f's_add_u32 s25, s25, {CNT_OFF + FC}')
        wait_eq(a, sync + '_wf', 's25', 56, sync + '_abort')
    else:
        a(f's_mul_i32 s24, {seg_s}, {EXCH_B}')
        a(f's_add_u32 s24, s24, {EXCH_OFF}')
    load_lin(a, 's21', 28, FA, ld)
    load_lin(a, 's23', 28, XA, ldx)
    if not sync: load_lin(a, 's24', 7, MA, ld)
    AX = {(0, 0): 8, (0, 1): 12, (1, 1): 16}
    AM = {(0, 0): 20, (1, 0): 24, (0, 1): 28, (1, 1): 32}
    for r in range(4):
        a(f'v_lshl_add_u32 v5, v3, 2, {r}')
        a(f'v_cmp_le_u32 s[{40+2*r}:{41+2*r}], v5, v4')
    a('v_cmp_gt_u32 s[48:49], 2, v3')
    a('v_mov_b32 v6, 0xff800000')
    a('s_waitcnt vmcnt(0)' if sync else 's_waitcnt vmcnt(7)')
    for f in range(14):
        for (tk, tt), d in AX.items():
            c = '0' if f == 0 else f'v[{d}:{d+3}]'
            xa = XA + 4 * (tk * 14 + f); fa = FA + 4 * (tt * 14 + f)
            a(f'v_mfma_f32_16x16x32_bf16 v[{d}:{d+3}], a[{xa}:{xa+3}], a[{fa}:{fa+3}], {c}')
    MV = 64
    if sync:
        a('s_mul_i32 s22, s20, 448')
        a('v_mov_b32 v62, s22' if not ONELINE else 'v_mov_b32 v62, 0')
        a('s_mov_b32 s30, 0')
        a.label(sync + '_pm')
        a(f's_cmp_ge_u32 s17, {FULLPOLL}')
        a(f's_cbranch_scc1 {sync}_pf')
        mpoll(a, 61, 62, 's24')
        a('s_waitcnt vmcnt(0)')
        a('v_cmp_eq_u32 vcc, -1, v61')
        a(f's_cbranch_vccnz {sync}_pr')
        a.label(sync + '_pf')
        ev(a, 0)
        a('s_add_u32 s22, s24, 4096')
        for ks in range(7):
            a(f'buffer_load_dwordx4 v[{MV+4*ks}:{MV+4*ks+3}], v2, {WS}, {"s24" if ks < 4 else "s22"} offen offset:{(ks & 3)*1024} sc1')
        a('s_waitcnt vmcnt(0)')
        a(f'v_max_u32 v61, v{MV}, v{MV+1}')
        for r in range(MV + 2, MV + 28, 2): a(f'v_max3_u32 v61, v61, v{r}, v{r+1}')
        a('v_cmp_eq_u32 vcc, -1, v61')
        a(f's_cbranch_vccz {sync}_pk')
        a.label(sync + '_pr')
        backoff(a, sync + '_pm', SLEEP)
        a('s_add_u32 s30, s30, 1')
        a(f's_cmp_lt_u32 s30, {WAIT_LIMIT}')
        a(f's_cbranch_scc1 {sync}_pm')
        a(f's_branch {sync}_abort')
        a.label(sync + '_pk')
        ev(a, 1)
        a(f'buffer_load_dword v250, v251, {PEEK}, 0 offen sc1')
    else:
        a('s_waitcnt vmcnt(0)')
    for ks in range(7):
        for (half, tt), d in AM.items():
            c = '0' if ks == 0 else f'v[{d}:{d+3}]'
            fa = FA + 4 * (tt * 14 + ks * 2 + half)
            mop = f'v[{MV+4*ks}:{MV+4*ks+3}]' if sync else f'a[{MA+4*ks}:{MA+4*ks+3}]'
            a(f'v_mfma_f32_16x16x32_bf16 v[{d}:{d+3}], {mop}, a[{fa}:{fa+3}], {c}')
    a(f's_lshl_b32 s25, {seg_s}, 1')
    a(f's_mul_i32 s25, s25, {PT_B}')
    a(f's_add_u32 s25, s25, {PT_OFF}')
    a('s_lshl_b32 s26, s20, 10')
    a('s_add_u32 s26, s26, s25')
    a(f's_lshl_b32 s27, {hq_s}, 10')
    a('s_add_u32 s27, s27, s25')
    a('s_lshr_b32 s28, s16, 1')
    a('s_lshl_b32 s28, s28, 3')
    a('s_add_u32 s27, s27, s28')
    a(f's_add_u32 s27, s27, {16*KB}')
    a('s_and_b32 s28, s16, 1')
    a('s_cmp_eq_u32 s28, 0')
    a('s_cselect_b32 s50, -1, 0')
    a('s_cselect_b32 s51, 0, -1')
    for tt in range(2):
        xs = []
        for (tk, t2), d in AX.items():
            if t2 != tt: continue
            for r in range(4):
                if tk == tt: a(f'v_cndmask_b32 v{d+r}, v6, v{d+r}, s[{40+2*r}:{41+2*r}]')
                xs.append(d + r)
        z, t = AM[(0, tt)], AM[(1, tt)]
        for r in range(4): a(f'v_cndmask_b32 v{z+r}, v{t+r}, v{z+r}, s[48:49]')
        for r in range(4): a(f'v_mov_b32 v{t+r}, v{z+r}')
        for r in range(4): a(f'v_permlane32_swap_b32 v{z+r}, v{t+r}')
        for r in range(4): a(f'v_add_f32 v{z+r}, v{z+r}, v{t+r}')
        ms = [z + r for r in range(4)]
        al = xs + ms
        mx = 40
        a(f'v_max3_f32 v{mx}, v{al[0]}, v{al[1]}, v{al[2]}')
        rest = al[3:]
        while len(rest) >= 2:
            a(f'v_max3_f32 v{mx}, v{mx}, v{rest[0]}, v{rest[1]}'); rest = rest[2:]
        if rest: a(f'v_max_f32 v{mx}, v{mx}, v{rest[0]}')
        for sw in ('16', '32'):
            a(f'v_mov_b32 v41, v{mx}')
            a(f'v_permlane{sw}_swap_b32 v{mx}, v41')
            a(f'v_max_f32 v{mx}, v{mx}, v41')
        for r in al: a(f'v_sub_f32 v{r}, v{r}, v{mx}')
        for r in al: a(f'v_exp_f32 v{r}, v{r}')
        a(f'v_add_f32 v42, v{ms[0]}, v{ms[1]}')
        a(f'v_add_f32 v43, v{ms[2]}, v{ms[3]}')
        a('v_add_f32 v42, v42, v43')
        a('v_mul_f32 v42, 0.5, v42')
        for r in xs: a(f'v_add_f32 v42, v42, v{r}')
        for sw in ('16', '32'):
            a('v_mov_b32 v41, v42')
            a(f'v_permlane{sw}_swap_b32 v42, v41')
            a('v_add_f32 v42, v42, v41')
        a('v_rcp_f32 v42, v42')
        for r in al: a(f'v_mul_f32 v{r}, v{r}, v42')
        o = 44 + 8 * tt
        for k in range(len(xs) // 2): a(f'v_cvt_pk_bf16_f32 v{o+k}, v{xs[2*k]}, v{xs[2*k+1]}')
        if tt == 0:
            a(f'v_mov_b32 v{o+2}, 0'); a(f'v_mov_b32 v{o+3}, 0')
        a(f'v_cvt_pk_bf16_f32 v{o+4}, v{ms[0]}, v{ms[1]}')
        a(f'v_cvt_pk_bf16_f32 v{o+5}, v{ms[2]}, v{ms[3]}')
        for k in range(6): a(f'v_min_u32 v{o+k}, -2, v{o+k}')
        a(f'buffer_store_dwordx4 v[{o}:{o+3}], v2, {WS}, s26 offen {st}')
        a('s_mov_b64 exec, s[50:51]')
        a(f'buffer_store_dwordx2 v[{o+4}:{o+5}], v2, {WS}, s27 offen {st}')
        a('s_mov_b64 exec, -1')
        if tt == 0:
            a(f's_add_u32 s26, s26, {PT_B}')
            a(f's_add_u32 s27, s27, {PT_B}')
    if sync:
        a(f's_lshl_b32 s25, {seg_s}, 7')
        a(f's_add_u32 s25, s25, {CNT_OFF + PTC}')
        a('v_mov_b32 v5, 1')
        a('v_mov_b32 v6, 0')
        ev(a, 2)
        a('s_waitcnt vmcnt(0)')
        ev(a, 3)
        a('s_mov_b64 exec, 1')
        a(f'buffer_atomic_add v5, v6, {WS}, s25 offen')
        a('s_mov_b64 exec, -1')

def toko_body(a, seg_s, vq_s, ld='', sync=None, OUT='s[12:15]'):
    a(f's_lshl_b32 s20, {vq_s}, 2')
    a('s_add_u32 s20, s20, s16')
    a('s_mul_i32 s24, s20, 65')
    a(f's_add_u32 s24, s24, {seg_s}')
    a('s_lshl_b32 s24, s24, 13')
    a(f's_add_u32 s24, s24, {T2_OFF + 8*KB}')
    a('s_lshl_b32 s21, s20, 6')
    a(f's_add_u32 s21, s21, {seg_s}')
    a(f's_mul_i32 s21, s21, {GSH_B}')
    a(f's_add_u32 s21, s21, {VO_OFF}')
    a(f's_lshl_b32 s25, {seg_s}, 1')
    a(f's_mul_i32 s25, s25, {PT_B}')
    a(f's_add_u32 s25, s25, {PT_OFF}')
    a('v_lshrrev_b32 v8, 5, v1')
    a('v_and_b32 v9, 31, v1')
    a('v_min_u32 v5, 27, v9')
    a('v_mad_u32_u24 v5, v8, 28, v5')
    a('v_lshlrev_b32 v5, 4, v5')
    a('v_lshrrev_b32 v10, 4, v9')
    a('v_lshlrev_b32 v7, 10, v10')
    a('v_lshl_add_u32 v7, v4, 4, v7')
    a('v_lshl_add_u32 v7, v8, 3, v7')
    a(f'v_mul_u32_u24 v6, {PT_B}, v10')
    a('v_lshl_add_u32 v6, v8, 8, v6')
    a('v_lshl_add_u32 v6, v4, 4, v6')
    VA = 0; T2R = 28; PR = 128
    a(f's_lshr_b32 s26, {seg_s}, 3')
    a('s_lshl_b32 s26, s26, 4')
    a('s_add_u32 s26, s26, s20')
    a('s_lshl_b32 s26, s26, 7')
    a(f's_add_u32 s26, s26, {CNT_OFF + VOC}')
    wait_eq(a, sync + '_wv', 's26', 56, sync + '_abort')
    for h in range(16):
        if h % 2 == 0: a(f's_add_u32 s22, s21, {h*1792}')
        for kh in range(2):
            r = VA + 8 * h + 4 * kh
            a(f'buffer_load_dwordx4 a[{r}:{r+3}], v5, {WS}, s22 offen offset:{(h & 1)*1792 + kh*896} {ld}')
    a(f's_cmp_ge_u32 {seg_s}, {LASTP}')
    a(f's_cbranch_scc1 {sync}_lm')
    a(f's_lshl_b32 s26, {seg_s}, 7')
    a(f's_add_u32 s26, s26, {CNT_OFF + PTC}')
    wait_eq(a, sync + '_wp', 's26', 16, sync + '_abort', sleep=2)
    a(f's_branch {sync}_lp')
    a.label(sync + '_lm')
    a(f's_mul_i32 s26, {seg_s}, {7*KB}')
    a(f's_add_u32 s26, s26, {MEMG_OFF}')
    wait_eq(a, sync + '_wm', 's26', -1, sync + '_abort', sleep=2, ne=True)
    a.label(sync + '_lp')
    ev(a, 5)
    a(f's_mul_i32 s26, s16, {10*KB}')
    a('s_add_u32 s27, s25, s26')
    a('v_add_u32 v11, s26, v2')
    a('s_lshl_b32 s26, s20, 6')
    a(f's_add_u32 s26, s26, {seg_s}')
    a('s_lshl_b32 s26, s26, 4')
    a(f's_add_u32 s26, s26, {CNT_OFF + T2F}')
    a('v_lshlrev_b32 v60, 2, v3')
    a('s_mov_b32 s30, 0')
    a.label(sync + '_pl')
    for f in range(10):
        if f % 4 == 0: a(f's_add_u32 s22, s27, {f*1024}')
        a(f'buffer_load_dwordx4 v[{PR+4*f}:{PR+4*f+3}], v2, {WS}, s22 offen offset:{(f & 3)*1024} sc1')
    a(f'buffer_load_dword v61, v60, {WS}, s26 offen sc1')
    a('s_waitcnt vmcnt(1)')
    a(f'v_max_u32 v62, v{PR}, v{PR+1}')
    for r in range(PR + 2, PR + 40, 2): a(f'v_max3_u32 v62, v62, v{r}, v{r+1}')
    a('v_cmp_eq_u32 vcc, -1, v62')
    a(f's_cbranch_vccz {sync}_pk')
    a('s_add_u32 s30, s30, 1')
    a(f's_cmp_lt_u32 s30, {WAIT_LIMIT}')
    a(f's_cbranch_scc1 {sync}_pl')
    a(f's_branch {sync}_abort')
    a.label(sync + '_pk')
    for f in range(10): a(f'ds_write_b128 v11, v[{PR+4*f}:{PR+4*f+3}] offset:{f*1024}')
    def t2l():
        for hq in range(4):
            if hq % 2 == 0: a(f's_add_u32 s22, s24, {hq*2048}')
            for kh in range(2):
                r = T2R + 8 * hq + 4 * kh
                for pc in range(2):
                    a(f'buffer_load_dwordx2 v[{r+2*pc}:{r+2*pc+1}], v7, {WS}, s22 offen offset:{(hq & 1)*2048 + kh*256 + pc*512} {ld}')
    a('s_waitcnt vmcnt(0)')
    a('v_cmp_ne_u32 vcc, 1, v61')
    a('s_mov_b32 s28, 0')
    a(f's_cbranch_vccnz {sync}_nt')
    t2l()
    a('s_mov_b32 s28, 1')
    a.label(sync + '_nt')
    a(f'buffer_load_dword v250, v251, {PEEK}, 0 offen sc1')
    ev(a, 4)
    a('s_waitcnt lgkmcnt(0)')
    a('s_barrier')
    a(f'buffer_load_dword v61, v60, {WS}, s26 offen sc1')
    ACC = 12; RG = 64
    def rd(i): a(f'ds_read_b128 v[{RG+4*(i&7)}:{RG+4*(i&7)+3}], v6 offset:{i*512}')
    for i in range(6): rd(i)
    for i in range(40):
        if i == T2MID:
            a('s_cmp_lg_u32 s28, 0')
            a(f's_cbranch_scc1 {sync}_h2')
            a('s_waitcnt vmcnt(0)')
            a('v_cmp_ne_u32 vcc, 1, v61')
            a(f's_cbranch_vccnz {sync}_h2')
            t2l()
            a('s_mov_b32 s28, 1')
            a.label(sync + '_h2')
        if i == 32:
            a('s_cmp_lg_u32 s28, 0')
            a(f's_cbranch_scc1 {sync}_ht')
            wait_eq(a, sync + '_wt', 's26', 1, sync + '_abort', four=True, sleep=1)
            t2l()
            a.label(sync + '_ht')
        if i + 6 < 40: rd(i + 6)
        a(f's_waitcnt lgkmcnt({min(6, 39 - i)})' + (' vmcnt(0)' if i == 32 else ''))
        A_ = f'a[{VA+4*i}:{VA+4*i+3}]' if i < 32 else f'v[{T2R+4*(i-32)}:{T2R+4*(i-32)+3}]'
        a(f'v_mfma_f32_32x32x16_bf16 v[{ACC}:{ACC+15}], {A_}, v[{RG+4*(i&7)}:{RG+4*(i&7)+3}], ' + ('0' if i == 0 else f'v[{ACC}:{ACC+15}]'))
    ev(a, 6)
    OL = 48 * KB; RS = 240
    a(f'v_mul_u32_u24 v9, {RS}, v9')
    a(f's_movk_i32 s23, {RS}')
    a('v_lshl_add_u32 v8, v8, 3, v9')
    a('s_mul_i32 s22, s16, 56')
    a('v_add_u32 v8, s22, v8')
    a('v_min_u32 v11, 223, v0')
    a('v_mul_u32_u24 v9, 4682, v11')
    a('v_lshrrev_b32 v9, 16, v9')
    a('v_mul_u32_u24 v10, 14, v9')
    a('v_sub_u32 v10, v11, v10')
    a('v_lshlrev_b32 v10, 4, v10')
    a(f'v_mad_u32_u24 v11, v9, s23, v10')
    a('v_mul_u32_u24 v9, 1792, v9')
    a('v_add_u32 v10, v9, v10')
    a(f's_mul_i32 s26, {seg_s}, {32*1792}')
    a(f's_mul_i32 s22, {vq_s}, 224')
    a('s_add_u32 s26, s26, s22')
    a('s_add_u32 s26, s26, 896')
    a(f's_add_u32 s27, s26, {16*1792}')
    for jj in range(4):
        d = ACC + 4 * jj; o = 96 + 2 * jj
        a(f'v_cvt_pk_bf16_f32 v{o}, v{d}, v{d+1}')
        a(f'v_cvt_pk_bf16_f32 v{o+1}, v{d+2}, v{d+3}')
        if jj == 3: a('s_mov_b32 exec_hi, 0')
        a(f'ds_write_b64 v8, v[{o}:{o+1}] offset:{OL + 16*jj}')
    a('s_mov_b64 exec, -1')
    a('s_waitcnt lgkmcnt(0)')
    a('s_barrier')
    a(f'ds_read_b128 v[104:107], v11 offset:{OL}')
    a(f'ds_read_b128 v[108:111], v11 offset:{OL + 16*RS}')
    a('s_cmp_lg_u32 s16, 3')
    a('s_cselect_b32 exec_hi, -1, 0')
    a('s_waitcnt lgkmcnt(1)')
    a(f'buffer_store_dwordx4 v[104:107], v10, {OUT}, s26 offen')
    a('s_waitcnt lgkmcnt(0)')
    a(f'buffer_store_dwordx4 v[108:111], v10, {OUT}, s27 offen')
    a('s_mov_b64 exec, -1')

def gen_tok(which):
    name = f'tok{which}_kernel'
    a = Asm(); a.raw(kernel_header(name))
    common(a, f't{which}_end')
    a('s_lshr_b32 s17, s2, 2')
    a('s_and_b32 s18, s2, 3')
    if which == 'p': tokp_body(a, 's17', 's18')
    else: toko_body(a, 's17', 's18')
    a.label(f't{which}_end')
    a('s_endpgm')
    return a
```

```python
from asmlib import *
from layout import *
import prep
WS = 's[8:11]'
SIGMA = prep.SIGMA
W_BYTES = prep.W_BYTES
NR = 8
NONCE = 's[88:89]'
NS = 9
APRE = 4
DSP = 2
VPRE = 5
XLATE = 1
PF_S = 3
PF_V = 7

def srd(a, d, lo, nbytes): prep.srd(a, d, lo, lo + 1, nbytes)

class VQ:
    def __init__(self): self.q = []
    def add(self, tag, n=1): self.q += [tag] * n
    def wait(self, tag):
        last = max(i for i, t in enumerate(self.q) if t == tag)
        n = len(self.q) - 1 - last
        self.q = self.q[last + 1:]
        return n

class AComp:
    FR = 120
    ACC = 32
    RING = 16; PF = 3; NG = 4
    RA = 8
    SV = 100
    def __init__(self, a, P):
        self.a = a; self.P = P; self.vq = VQ(); self.nxt = 0; self.mid = None
    def dma_ops(self):
        n = self.nxt; self.nxt += 1
        o = [[f'buffer_load_dwordx4 v{4+i}, s[56:59], s22 offen offset:{i*1024} lds', ('vq', ('p', n))] for i in range(4)]
        o[0] = [f's_add_u32 s22, s27, {n << 18}', f's_add_u32 m0, s25, {(n % NS)*16384}'] + o[0]
        return o
    def dma(self):
        for g in self.dma_ops():
            for x in g:
                if isinstance(x, tuple): self.vq.add(x[1])
                else: self.a(x)
    def issue(self):
        a = self.a; SV = self.SV
        srd(a, 60, 42, W_BYTES)
        a('v_lshrrev_b32 v24, 5, v1')
        a('v_and_b32 v25, 31, v1')
        a('s_lshl_b32 s26, s17, 9')
        a('s_lshl_b32 s25, s16, 12')
        a('v_xor_b32 v26, v25, v24')
        a('v_lshlrev_b32 v26, 4, v26')
        a('v_lshl_add_u32 v26, v24, 13, v26')
        for i in range(4):
            a(f'v_xor_b32 v{SV+i}, {32*(i >> 1)}, v26')
            if i: a(f'v_add_u32 v{SV+i}, {i*(16384-1024)}, v{SV+i}')
        a('s_lshl_b32 s23, s16, 19')
        a('s_add_u32 s23, s23, s26')
        def stage(grp):
            if grp and grp % 2 == 0:
                for i in range(4): a(f'v_xor_b32 v{SV+i}, {64*((grp >> 1) ^ ((grp >> 1) - 1))}, v{SV+i}')
            a(f's_add_u32 m0, s25, {(grp + 1)*16384}')
            if grp: a(f's_add_u32 s23, s23, {8 << 13}')
            for i in range(4): a(f'buffer_load_dwordx4 v{SV+i}, s[60:63], s23 offen offset:{i*1024} lds')
            self.vq.add('k', 4)
        for grp in range(8): stage(grp)
        srd(a, 56, 40, W_BYTES)
        a('s_lshl_b32 s21, s16, 16')
        a('s_add_u32 s27, s26, s21')
        a('s_lshr_b32 s20, s16, 1')
        a('s_lshl_b32 s20, s20, 6')
        a('v_xor_b32 v26, s20, v26')
        for i in range(4):
            a(f'v_xor_b32 v{4+i}, {128*(i >> 1) + 32*(i & 1)}, v26')
            if i: a(f'v_add_u32 v{4+i}, {i*(16384-1024)}, v{4+i}')
        self.dma()
    def setup(self):
        a = self.a; SV = self.SV
        a('v_and_b32 v26, 15, v25')
        a('v_xor_b32 v27, v26, v24')
        a('v_lshlrev_b32 v27, 4, v27')
        a('v_bfe_u32 v28, v25, 2, 1')
        a('v_lshlrev_b32 v28, 4, v28')
        a('v_lshrrev_b32 v29, 3, v25')
        a('v_lshl_add_u32 v28, v29, 2, v28')
        a('v_and_b32 v29, 3, v25')
        a('v_add_u32 v28, v28, v29')
        a('v_lshl_add_u32 v28, v28, 9, v27')
        a('v_lshrrev_b32 v29, 2, v26')
        a('v_lshlrev_b32 v29, 15, v29')
        a('v_bfe_u32 v30, v26, 1, 1')
        a('v_lshl_add_u32 v29, v30, 11, v29')
        a('v_lshrrev_b32 v30, 4, v25')
        a('v_lshl_add_u32 v29, v30, 10, v29')
        a('v_and_b32 v31, 1, v26')
        a('v_lshl_add_u32 v29, v31, 9, v29')
        a('v_add_u32 v29, v29, v27')
        a('v_add_u32 v29, s25, v29')
        for k in range(8):
            a(f'v_xor_b32 v{self.RA+k}, {32*k}, v28')
            a(f'v_xor_b32 v{SV+4+k}, {32*k}, v29')
        a(f's_mov_b32 s52, {SIGMA}')
    def fetch(self):
        a = self.a
        a(f's_waitcnt vmcnt({self.vq.wait("k")})')
        for D in range(2):
            for ks in range(16):
                r = self.FR + 64 * D + 4 * ks
                a(f'ds_read_b128 v[{r}:{r+3}], v{self.SV + 4 + (ks & 7)} offset:{(1 + D)*16384 + (ks >> 3)*256}')
                if ks & 7 == 7: a('s_waitcnt lgkmcnt(4)')
        a('s_waitcnt lgkmcnt(0)')
        while self.nxt < APRE: self.dma()
    def epi(self, p, dest):
        o = []
        for D in range(2):
            b0 = self.ACC + 32 * (p & 1) + 16 * D
            for b in (b0, b0 + 8):
                for k in range(4):
                    o += [f'v_mul_f32 v{b+2*k}, s52, v{b+2*k}', f'v_mul_f32 v{b+2*k+1}, s52, v{b+2*k+1}', f'v_cvt_pk_bf16_f32 v{b+k}, v{b+2*k}, v{b+2*k+1}']
            o += [f'v_permlane16_swap_b32 v{b0+k}, v{b0+8+k}' for k in range(4)]
            for u in range(2):
                o += [f'v_accvgpr_write_b32 a{dest(2*D+u, p) - 256 + k}, v{b0+8*u+k}' for k in range(4)]
        return o
    def run(self, dest, extra=None):
        a = self.a; vq = self.vq; PF = self.PF
        hi = [0] * 8
        def rd(i):
            p, ks = i >> 4, i & 15; r = self.RING + 4 * (i % self.NG); k = ks & 7; sl = p % NS
            if hi[k] != sl >> 2:
                a(f'v_xor_b32 v{self.RA+k}, {(hi[k] ^ (sl >> 2)) << 16}, v{self.RA+k}'); hi[k] = sl >> 2
            a(f'ds_read_b128 v[{r}:{r+3}], v{self.RA+k} offset:{(sl & 3)*16384 + (ks >> 3)*256}')
        def sync(p):
            if ('p', p) in vq.q: a(f's_waitcnt vmcnt({vq.wait(("p", p))})')
            a('s_barrier')
        sync(1)
        for i in range(PF): rd(i)
        side = []; mem = []
        for i in range(14 * 16):
            p, ks = i >> 4, i & 15
            if ks == 0:
                if p & 1 and p < 13:
                    assert not mem
                    sync(p + 2)
                    if self.mid: self.mid(p)
                    while self.nxt < min(14, p + NS): mem += self.dma_ops()
                if p == 0:
                    while self.nxt < min(NS, APRE + 4): mem += self.dma_ops()
                if extra: mem += extra(p)
            if i + PF < 14 * 16: rd(i + PF)
            a(f's_waitcnt lgkmcnt({min(PF, 14 * 16 - 1 - i)})')
            r = self.RING + 4 * (i % self.NG)
            for D in range(2):
                d = self.ACC + 32 * (p & 1) + 16 * D; b = self.FR + 64 * D + 4 * ks
                a(f'v_mfma_f32_32x32x16_bf16 v[{d}:{d+15}], v[{r}:{r+3}], v[{b}:{b+3}], ' + ('0' if ks == 0 else f'v[{d}:{d+15}]'))
                if D == 0 and mem:
                    for x in mem.pop(0):
                        if isinstance(x, tuple): vq.add(x[1])
                        else: a(x)
                if ks >= 1:
                    for _ in range(3 - D):
                        if side: a(side.pop(0))
            if ks == 15:
                assert not side
                side = self.epi(p, dest)
        assert not mem
        for x in side: a(x)

def flag_store(a, soff_s, R, stride, t=24):
    a(f'v_mul_u32_u24 v{t+2}, {stride}, v1')
    a(f'v_mov_b32 v{t}, s88\nv_mov_b32 v{t+1}, s89')
    a(f's_mov_b64 exec, {(1 << R) - 1}')
    a(f'buffer_store_dwordx2 v[{t}:{t+1}], v{t+2}, {WS}, {soff_s} offen sc1')
    a('s_mov_b64 exec, -1')

def flag_poll(a, P, t, loads, abort, limit, sleep=4, on_spin=None, issued=False):
    a('s_mov_b32 s30, 0')
    if issued: a(f's_branch {P}_w')
    a.label(P)
    for i, (va, so) in enumerate(loads):
        a(f'buffer_load_dwordx4 v[{t+4*i}:{t+4*i+3}], v{va}, {WS}, {so} offen sc1')
    if issued: a.label(P + '_w')
    a('s_waitcnt vmcnt(0)')
    for i in range(2 * len(loads)):
        a(f'v_cmp_ne_u64 vcc, {NONCE}, v[{t+2*i}:{t+2*i+1}]')
        a(f's_cbranch_vccnz {P}_no')
    a(f's_branch {P}_ok')
    a.label(P + '_no')
    a(f's_sleep {sleep}')
    a('s_add_u32 s30, s30, 1')
    if on_spin: on_spin()
    a(f's_cmp_lt_u32 s30, {limit}')
    a(f's_cbranch_scc1 {P}')
    a(f's_branch {abort}')
    a.label(P + '_ok')

def bjob_decode(a):
    a('s_mul_i32 s17, s18, 4682')
    a('s_lshr_b32 s17, s17, 16')
    assert all((i * 4682) >> 16 == i // 14 for i in range(224))
    a('s_mul_i32 s20, s17, 14')
    a('s_sub_u32 s19, s18, s20')
    a('s_cmp_ge_u32 s19, 7')
    a('s_cselect_b32 s31, 7, 0')
    a('s_sub_u32 s19, s19, s31')

def bjob_issue(a, vq, mat=1, P='bj', hook=None):
    srd(a, 60, 40 + 4 * mat, W_BYTES); srd(a, 56, 42 + 4 * mat, W_BYTES)
    a('s_lshl_b32 s30, s16, 13')
    if mat:
        a('s_mul_i32 s27, s17, 229376')
        a('s_lshl_b32 s29, s19, 7')
        a('s_add_u32 s27, s27, s29')
        a('v_lshrrev_b32 v7, 3, v1')
        a('v_and_b32 v8, 7, v1')
        a('s_lshl_b32 s29, s16, 6')
        a('v_add_u32 v7, s29, v7')
        a('v_mul_u32_u24 v7, 896, v7')
        a('v_lshl_add_u32 v7, v8, 4, v7')
        for i in range(8):
            if i % 4 == 0: a(f's_add_u32 m0, s30, {i*1024}')
            a(f's_add_u32 s22, s27, {i*8*896 - (i & 3)*1024}')
            a(f'buffer_load_dwordx4 v7, s[56:59], s22 offen offset:{(i & 3)*1024} lds')
    else:
        a('s_lshl_b32 s27, s19, 19')
        a('s_lshl_b32 s29, s16, 17')
        a('s_add_u32 s27, s27, s29')
        a('s_lshl_b32 s29, s17, 9')
        a('s_add_u32 s27, s27, s29')
        a('v_lshrrev_b32 v5, 5, v1')
        a('v_and_b32 v6, 31, v1')
        a('v_xor_b32 v6, v6, v5')
        a('v_lshlrev_b32 v6, 4, v6')
        a('v_lshl_add_u32 v6, v5, 13, v6')
        for i in range(8):
            if i % 4 == 0: a(f's_add_u32 m0, s30, {i*1024}')
            a(f's_add_u32 s22, s27, {i*16384 - (i & 3)*1024}')
            a(f'v_xor_b32 v7, {32*i}, v6')
            a(f'buffer_load_dwordx4 v7, s[56:59], s22 offen offset:{(i & 3)*1024} lds')
    vq.add('stat', 8)
    if hook: hook()
    a('v_lshrrev_b32 v5, 5, v1')
    a('v_and_b32 v6, 31, v1')
    a('s_lshl_b32 s25, s16, 15')
    a('s_add_u32 s25, s25, 32768')
    a('s_lshl_b32 s26, s17, 9')
    for k, sp in ((0, 's28'), (4, 's29')):
        a(f's_add_u32 {sp}, s19, s16')
        if k: a(f's_add_u32 {sp}, {sp}, {k}')
        a(f's_cmp_ge_u32 {sp}, 7')
        a('s_cselect_b32 s20, 7, 0')
        a(f's_sub_u32 {sp}, {sp}, s20')
        a(f's_add_u32 {sp}, {sp}, s31')
    a('s_lshl_b32 s32, s28, 18\ns_add_u32 s32, s32, s26')
    a('s_lshl_b32 s33, s29, 18\ns_add_u32 s33, s33, s26')
    a('v_xor_b32 v8, v6, v5')
    a('v_lshlrev_b32 v8, 4, v8')
    a('v_lshl_add_u32 v8, v5, 13, v8')
    for i in range(4):
        a(f'v_xor_b32 v{12+i}, {32*(i & 1)}, v8')
        if i: a(f'v_add_u32 v{12+i}, {i*(16384-1024)}, v{12+i}')
    for j in range(4):
        a(f's_add_u32 s20, s16, {j}')
        a('s_and_b32 s20, s20, 3')
        a(f's_mul_i32 s21, s20, {65536 + 64}')
        a('s_lshl_b32 s20, s20, 12')
        a(f's_add_u32 s{48 + j}, s20, s25')
        a(f's_mov_b32 m0, s{48 + j}')
        for i in range(4):
            a(f'v_xor_b32 v{16+4*j+i}, s21, v{12+i}')
            a(f'buffer_load_dwordx4 v{16+4*j+i}, s[60:63], s32 offen offset:{i*1024} lds')
    vq.add('p0', 16)
    a('s_cmp_eq_u32 s16, 3')
    a(f's_cbranch_scc1 {P}_np1')
    for i in range(16):
        if i % 4 == 0: a(f's_add_u32 m0, s{48 + (i >> 2)}, 16384')
        a(f'buffer_load_dwordx4 v{16+i}, s[60:63], s33 offen offset:{(i & 3)*1024} lds')
    vq.add('p1', 16)
    a.label(f'{P}_np1')

def bjob_x(a, vq):
    srd(a, 52, 36, 2048 * 448 * 2)
    a('s_lshl_b32 s20, s18, 8')
    a('v_add_u32 v95, s20, v0')
    M448 = (1 << 32) // 448 + 1
    assert all((u * M448) >> 32 == u // 448 for u in range(57344))
    a(f's_mov_b32 s21, {M448}')
    a('v_mul_hi_u32 v6, v95, s21')
    a('v_mul_u32_u24 v7, 448, v6')
    a('v_sub_u32 v7, v95, v7')
    a('v_lshrrev_b32 v8, 4, v7')
    a('v_and_b32 v7, 15, v7')
    a('v_lshl_add_u32 v9, v6, 4, v7')
    a('v_mul_u32_u24 v9, 896, v9')
    a('v_lshl_add_u32 v9, v8, 5, v9')
    a('buffer_load_dwordx4 v[84:87], v9, s[52:55], 0 offen')
    a('buffer_load_dwordx4 v[88:91], v9, s[52:55], 0 offen offset:16')
    vq.add('x', 2)
    a(f'v_mul_u32_u24 v6, {14*KB}, v6')
    a('v_lshl_add_u32 v6, v7, 4, v6')
    a('v_lshl_add_u32 v92, v8, 9, v6')
    a('v_lshrrev_b32 v7, 2, v8')
    a('v_lshl_add_u32 v6, v7, 11, v6')
    a('v_and_b32 v7, 3, v8')
    a('v_lshl_add_u32 v93, v7, 8, v6')
    srd(a, 72, 38, 8 * 448 * 2)
    a('v_min_u32 v6, 223, v0')
    a('v_lshrrev_b32 v7, 3, v6')
    a('v_and_b32 v6, 7, v6')
    a('v_mul_u32_u24 v9, 896, v6')
    a('v_lshl_add_u32 v9, v7, 5, v9')
    a('buffer_load_dwordx4 v[36:39], v9, s[72:75], 0 offen')
    a('buffer_load_dwordx4 v[40:43], v9, s[72:75], 0 offen offset:16')
    vq.add('x', 2)
    a('v_lshlrev_b32 v7, 8, v7')
    a('v_lshl_add_u32 v94, v6, 4, v7')

def a1_touch(a, vq):
    a('s_cmp_lt_u32 s16, 2')
    a('s_cselect_b32 s20, s40, s42')
    a('s_cselect_b32 s21, s41, s43')
    srd(a, 72, 20, W_BYTES)
    a('s_add_u32 s20, s19, s31')
    a('s_lshl_b32 s21, s20, 5')
    a('s_lshl_b32 s22, s16, 4')
    a('s_add_u32 s21, s21, s22')
    a('s_mul_i32 s20, s20, 14')
    a('s_add_u32 s20, s20, 250')
    a('s_cmp_lt_u32 s16, 2')
    a('s_cselect_b32 s20, s21, s20')
    a('s_lshl_b32 s20, s20, 13')
    a('s_add_u32 s20, s20, s26')
    a('v_lshlrev_b32 v6, 13, v4')
    a('v_lshl_add_u32 v6, v3, 7, v6')
    a('buffer_load_dword v51, v6, s[72:75], s20 offen')
    vq.add('t')

def wait3(a, n, extra=''):
    l = a.newlabel('w3')
    a(f's_waitcnt vmcnt({n}){extra}')
    a('s_cmp_lg_u32 s16, 3')
    a(f's_cbranch_scc1 {l}')
    a(f's_waitcnt vmcnt({n-16})')
    a.label(l)

def _fills(a, vq):
    import tok
    PTL = (64 - tok.LASTP) * 2 * PT_B
    assert PT_OFF + 128 * PT_B == MEMG_OFF
    k = 0
    for base, n, zlo, zn in ((EXCH_OFF, 66 * EXCH_B // 16, F2 // 16, 256), (MEMG_OFF - PTL, (PTL + 64 * 7 * KB + CNT_B) // 16, (PTL + 64 * 7 * KB) // 16, 1 << 20)):
        a(f's_mov_b32 s23, {base}')
        for j in range((n - 448 + 57343) // 57344):
            r = 52 + 4 * k
            a(f'v_add_u32 v6, {448 + 57344*j}, v95')
            if base != EXCH_OFF:
                a(f'v_cmp_gt_u32 vcc, {PTL // 16}, v95')
                a('v_cndmask_b32 v6, v6, v95, vcc')
            a(f'v_subrev_u32 v7, {zlo}, v6')
            a(f'v_mov_b32 v{r}, -1')
            a('v_mov_b32 v9, 0')
            a(f'v_cmp_gt_u32 vcc, {zn}, v7')
            a(f'v_cndmask_b32 v{r}, v{r}, v9, vcc')
            for q in range(1, 4): a(f'v_mov_b32 v{r+q}, v{r}')
            a('v_lshlrev_b32 v8, 4, v6')
            a('v_mov_b32 v9, 0x10000000')
            a(f'v_cmp_lt_u32 vcc, {n-1}, v6')
            a('v_cndmask_b32 v8, v8, v9, vcc')
            a(f'buffer_store_dwordx4 v[{r}:{r+3}], v8, {WS}, s23 offen sc1')
            vq.add('fill'); k += 1

def bjob_run(a, P, vq, mat=1, confirm=None, fs='s28', finish=True, late=None):
    BST = 128
    for q in range(4):
        if mat:
            a('s_lshl_b32 s30, s19, 6')
            a(f's_add_u32 s30, s30, {16*q}')
            a('v_add_u32 v8, s30, v4')
            a('v_mul_u32_u24 v10, 2341, v8')
            a('v_lshrrev_b32 v10, 16, v10')
            a('v_mul_u32_u24 v11, 28, v10')
            a('v_sub_u32 v32, v8, v11')
            a('s_mul_i32 s30, s17, 28')
            a('v_add_u32 v32, s30, v32')
            a('v_lshrrev_b32 v33, 4, v32')
            a('v_and_b32 v32, 15, v32')
            a(f's_mov_b32 s30, {CUW_B}')
            a('v_mul_lo_u32 v10, v10, s30')
            a(f'v_mul_u32_u24 v33, {TILE_B}, v33')
            a('v_add_u32 v10, v10, v33')
            a('v_lshl_add_u32 v10, v3, 8, v10')
            a('v_lshl_add_u32 v10, v32, 4, v10')
            a(f'v_add_u32 v{12+q}, {WF_B}, v10')
        else:
            if q == 0:
                a(f's_mul_i32 s30, s17, {CUW_B}')
                a(f's_mul_i32 s20, s19, {4*TILE_B}')
                a('s_add_u32 s30, s30, s20')
                a('v_add_u32 v12, s30, v2')
            else: a(f'v_add_u32 v{12+q}, {q*TILE_B}, v12')
            assert WF_A == 0
    a('v_lshrrev_b32 v7, 2, v4')
    a('v_lshlrev_b32 v7, 3, v7')
    a('v_and_b32 v8, 3, v4')
    a('v_add_u32 v7, v7, v8')
    a('v_xor_b32 v10, v3, v4')
    a('v_lshlrev_b32 v10, 4, v10')
    a('v_lshl_add_u32 v10, v7, 9, v10')
    a('v_add_u32 v10, s25, v10')
    for k3 in range(4): a(f'v_xor_b32 v{32+k3}, {64*k3}, v10')
    if mat:
        a('v_lshrrev_b32 v7, 2, v4')
        a('v_lshl_add_u32 v7, v3, 3, v7')
        a('v_lshlrev_b32 v7, 7, v7')
        a('v_and_b32 v8, 3, v4')
        a('v_lshl_add_u32 v7, v8, 3, v7')
    else:
        a('v_and_b32 v8, 2, v4')
        a('v_lshlrev_b32 v8, 1, v8')
        a('v_and_b32 v9, 1, v4')
        a('v_add_u32 v8, v8, v9')
        a('v_lshrrev_b32 v7, 2, v4')
        a('v_lshl_add_u32 v7, v7, 4, v8')
        a('v_xor_b32 v8, v8, v3')
        a('v_lshlrev_b32 v8, 4, v8')
        a('v_lshl_add_u32 v7, v7, 9, v8')
        a(f's_mov_b32 s24, {SIGMA}')
    wait3(a, vq.wait("stat"))
    a('s_barrier')
    for q in range(4):
        for kk in range(8):
            r = BST + (q * 8 + kk) * 4
            if mat:
                for hf in range(2):
                    a(f'ds_read_b64_tr_b16 v[{r+2*hf}:{r+2*hf+1}], v7 offset:{(32*kk + 4*hf)*128 + q*32}')
                if kk & 3 == 3: a('s_waitcnt lgkmcnt(6)')
            else:
                ro = 8 * (q >> 1) + 2 * (q & 1)
                if kk < 4: a(f'v_xor_b32 v{8+kk}, {((4*kk) ^ ro) << 4}, v7')
                a(f'ds_read_b128 v[{r}:{r+3}], v{8 + (kk & 3)} offset:{ro*512 + (kk >> 2)*256}')
                if kk == 7: a('s_waitcnt lgkmcnt(4)')
    ACC = 96; FR = 52
    for it in range(2):
        if it == 1:
            a('s_cmp_eq_u32 s16, 3')
            a(f's_cbranch_scc1 {P}_w3')
        if it == 0: wait3(a, vq.wait('p0'), ' lgkmcnt(0)')
        else: a(f's_waitcnt vmcnt({vq.wait("p1")})')
        if it == 0 and late: late()
        def rd(i): a(f'ds_read_b128 v[{FR+4*(i&3)}:{FR+4*(i&3)+3}], v{32 + (i & 3)} offset:{it*16384 + (i >> 3)*2048 + ((i & 7) >> 2)*256}')
        for i in range(3): rd(i)
        for i in range(16):
            tau, kk = i >> 3, i & 7
            if i + 3 < 16: rd(i + 3)
            a(f's_waitcnt lgkmcnt({min(3, 15 - i)})')
            for q in range(4):
                d = ACC + 16 * tau + 4 * q; b = BST + (q * 8 + kk) * 4
                c = '0' if kk == 0 else f'v[{d}:{d+3}]'
                a(f'v_mfma_f32_16x16x32_bf16 v[{d}:{d+3}], v[{FR+4*(i&3)}:{FR+4*(i&3)+3}], v[{b}:{b+3}], {c}')
        if it == 0 and confirm: confirm()
        a(f's_lshl_b32 s30, {"s29" if it else "s28"}, 10')
        for q in range(4):
            o = 68 + 4 * q
            for tau in range(2):
                d = ACC + 16 * tau + 4 * q
                if not mat:
                    for k in range(4): a(f'v_mul_f32 v{d+k}, s24, v{d+k}')
                a(f'v_cvt_pk_bf16_f32 v{o+2*tau}, v{d}, v{d+1}')
                a(f'v_cvt_pk_bf16_f32 v{o+2*tau+1}, v{d+2}, v{d+3}')
            a(f'buffer_store_dwordx4 v[{o}:{o+3}], v{12+q}, {WS}, s30 offen sc1')
            vq.add('st')
    a.label(f'{P}_w3')
    a(f's_lshl_b32 {fs}, {"s19" if mat else "s17"}, {8 if mat else 7}')
    a(f's_lshl_b32 s21, {"s17" if mat else "s19"}, 4')
    a(f's_add_u32 {fs}, {fs}, s21')
    a('s_cmp_lg_u32 s31, 0')
    a('s_cselect_b32 s21, 8, 0')
    a(f's_add_u32 {fs}, {fs}, s21')
    a(f's_add_u32 {fs}, {fs}, {BF_OFF if mat else AF_OFF}')
    if finish:
        a('s_waitcnt vmcnt(0)')
        publish(a, fs, 1)

def publish(a, fs, R, t=24):
    l = a.newlabel('pub')
    a('s_barrier')
    a('s_cmp_lg_u32 s16, 0')
    a(f's_cbranch_scc1 {l}')
    flag_store(a, fs, R, 2048, t)
    a.label(l)

def init_stores(a, P, vq):
    a('s_waitcnt vmcnt(4)')
    for j in range(4):
        a(f'v_mov_b32 v{96+j}, v{84+2*j}')
        a(f'v_mov_b32 v{100+j}, v{85+2*j}')
        a(f'v_min_u32 v{104+j}, -2, v{36+2*j}')
        a(f'v_min_u32 v{108+j}, -2, v{37+2*j}')
    a(f's_mov_b32 s20, {XF_OFF}\ns_mov_b32 s21, {XM_OFF}')
    a(f'buffer_store_dwordx4 v[84:87], v92, {WS}, s20 offen sc1')
    a(f'buffer_store_dwordx4 v[88:91], v92, {WS}, s20 offen offset:256 sc1')
    a(f'buffer_store_dwordx4 v[96:99], v93, {WS}, s21 offen sc1')
    a(f'buffer_store_dwordx4 v[100:103], v93, {WS}, s21 offen offset:1024 sc1')
    a('s_cmp_lg_u32 s18, 0')
    a(f's_cbranch_scc1 {P}_nm')
    a(f's_mov_b32 s20, {EXCH_OFF}\ns_mov_b32 s21, {MEMG_OFF}')
    for sb in ('s20', 's21'):
        a(f'buffer_store_dwordx4 v[104:107], v94, {WS}, {sb} offen sc1')
        a(f'buffer_store_dwordx4 v[108:111], v94, {WS}, {sb} offen offset:128 sc1')
    a.label(f'{P}_nm')

def llc_warm(a):
    a('s_and_b32 s20, s18, 3')
    a('s_lshl_b32 s20, s20, 3')
    a('s_add_u32 s20, s20, 8')
    a('s_cmp_eq_u32 s16, 0')
    a('s_cselect_b32 s20, 0, s20')
    a('s_cmp_ge_u32 s16, 2')
    a('s_cselect_b32 s20, 112, s20')
    a('s_load_dwordx2 s[72:73], s[0:1], s20')
    a('s_lshr_b32 s21, s18, 2')
    a('s_lshl_b32 s21, s21, 12')
    a('s_mov_b32 s74, 229376')
    a('s_lshl_b32 s22, s18, 13')
    a('s_cmp_eq_u32 s16, 0')
    a('s_cselect_b32 s21, s22, s21')
    a('s_cselect_b32 s74, 1835008, s74')
    a('s_lshl_b32 s22, s18, 1')
    a('s_add_u32 s22, s22, s16')
    a('s_sub_u32 s22, s22, 2')
    a('s_lshl_b32 s22, s22, 13')
    a('s_cmp_ge_u32 s16, 2')
    a('s_cselect_b32 s21, s22, s21')
    a('s_cselect_b32 s74, 3670016, s74')
    a('v_lshlrev_b32 v6, 3, v2')
    a('s_cmp_eq_u32 s16, 1')
    a('s_cselect_b32 exec_hi, 0, -1')
    a('s_waitcnt lgkmcnt(0)')
    a('s_and_b32 s73, s73, 0xffff\ns_mov_b32 s75, 0x20000')
    a('buffer_load_dword v7, v6, s[72:75], s21 offen')
    a('s_mov_b64 exec, -1')
```

```python
from asmlib import *
from layout import *
import tok
WS = 's[8:11]'
LIGHT = 1
WARMUP = 0
WSH = 0
SSL = 6
SPRE = 0
def wreg(ti, ks):
    u = ti * 7 + ks
    return 256 + 8 * u if u < 32 else 120 + 8 * (u - 32)
def t2srv_body(a, P, v_s, par_s, abort, ld=''):
    M = 8; ACC = 36; YT = 64; YA = 72
    a(f's_mul_i32 s20, {v_s}, {CUW_B}')
    a(f's_mul_i32 s21, s16, {7*TILE_B}')
    a('s_add_u32 s20, s20, s21')
    a(f's_add_u32 s20, s20, {WF_B}')
    for f in range(98):
        if f % 4 == 0: a(f's_add_u32 s22, s20, {f*1024}')
        r = wreg(0, f // 2) + 4 * (f & 1)
        a(f'buffer_load_dwordx4 {ureg(r, 4)}, v2, {WS}, s22 offen offset:{(f & 3)*1024} {ld}')
        if f % 32 == 31: a('s_waitcnt vmcnt(24)')
    a('v_mov_b32 v5, 0x4444')
    a('v_mov_b32 v6, 0xeeee')
    a('v_cmp_lt_u32 vcc, 7, v4')
    a('v_cndmask_b32 v5, v5, v6, vcc')
    a('s_lshl_b32 s23, s16, 11')
    a('v_lshrrev_b32 v80, 1, v3')
    a('v_and_b32 v81, 1, v3')
    for p in range(4):
        if p < 3: a(f'v_add_u32 v82, {2*p}, v80')
        else: a('v_mov_b32 v82, 6')
        a('v_lshl_add_u32 v82, v82, 4, v4')
        a('v_mul_u32_u24 v83, 2341, v82')
        a('v_lshrrev_b32 v83, 16, v83')
        a('v_mul_u32_u24 v84, 28, v83')
        a('v_sub_u32 v84, v82, v84')
        a('v_lshrrev_b32 v85, 4, v84')
        a('v_and_b32 v84, 15, v84')
        a('v_lshlrev_b32 v86, 10, v85')
        a('v_lshl_add_u32 v86, v83, 8, v86')
        a('v_lshl_add_u32 v86, v84, 4, v86')
        a('v_lshl_add_u32 v86, v81, 3, v86')
        a(f'v_add_u32 v{YA+p}, s23, v86')
    a('v_add_u32 v76, s23, v2')
    a(f's_mul_i32 s27, {v_s}, 448')
    a('v_mov_b32 v77, s27' if not tok.ONELINE else 'v_mov_b32 v77, 0')
    a('v_mov_b32 v78, 1')
    a(f's_mov_b32 s17, {par_s}')
    a(f's_mul_i32 s24, {par_s}, {7*KB}')
    a(f's_add_u32 s24, s24, {MEMG_OFF}')
    a(f's_mul_i32 s25, {v_s}, 65')
    a(f's_add_u32 s25, s25, {par_s}')
    a('s_lshl_b32 s25, s25, 13')
    a('s_add_u32 s25, s25, s23')
    a(f's_add_u32 s25, s25, {T2_OFF + 8*KB}')
    a(f's_lshl_b32 s26, {v_s}, 6')
    a(f's_add_u32 s26, s26, {par_s}')
    a('s_lshl_b32 s26, s26, 4')
    a('s_lshl_b32 s27, s16, 2')
    a('s_add_u32 s26, s26, s27')
    a(f's_add_u32 s26, s26, {CNT_OFF + T2F}')
    a.label(f'{P}_loop')
    for r in range(ACC, ACC + 28): a(f'v_mov_b32 v{r}, 0')
    a('s_mov_b32 s30, 0')
    if SPRE:
        a('s_cmp_ge_u32 s17, 62')
        a(f's_cbranch_scc1 {P}_pm')
        a(f's_sleep {SPRE}')
    if not LIGHT: a(f's_branch {P}_fl')
    a.label(f'{P}_pm')
    tok.mpoll(a, 79, 77, 's24')
    a('s_waitcnt vmcnt(0)')
    a('v_cmp_eq_u32 vcc, -1, v79')
    a(f's_cbranch_vccnz {P}_pr')
    a.label(f'{P}_fl')
    a('s_add_u32 s22, s24, 4096')
    for ks in range(7):
        a(f'buffer_load_dwordx4 v[{M+4*ks}:{M+4*ks+3}], v2, {WS}, {"s24" if ks < 4 else "s22"} offen offset:{(ks & 3)*1024} sc1')
    a('s_waitcnt vmcnt(0)')
    a(f'v_max_u32 v79, v{M}, v{M+1}')
    for r in range(M + 2, M + 28, 2): a(f'v_max3_u32 v79, v79, v{r}, v{r+1}')
    a('v_cmp_eq_u32 vcc, -1, v79')
    a(f's_cbranch_vccz {P}_pk')
    a.label(f'{P}_pr')
    a('s_sleep 1')
    a(f's_cmp_ge_u32 s17, {tok.LASTP}')
    a(f's_cbranch_scc1 {P}_sh')
    a(f's_sleep {SSL}')
    a.label(f'{P}_sh')
    a('s_add_u32 s30, s30, 1')
    a(f's_cmp_lt_u32 s30, {tok.WAIT_LIMIT}')
    a(f's_cbranch_scc1 {P}_pm')
    a(f's_branch {abort}')
    a.label(f'{P}_pk')
    for ti in range(7):
        for ks in range(7):
            a(f'v_smfmac_f32_16x16x64_bf16 v[{ACC+4*ti}:{ACC+4*ti+3}], v[{M+4*ks}:{M+4*ks+3}], {ureg(wreg(ti, ks), 8)}, v5')
    for p in range(4):
        A_ = ACC + 8 * p; B_ = A_ + 4 if p < 3 else YT
        if p == 3:
            for r in range(4): a(f'v_mov_b32 v{B_+r}, v{A_+r}')
        for r in range(4): a(f'v_permlane32_swap_b32 v{A_+r}, v{B_+r}')
        for r in range(4): a(f'v_add_f32 v{A_+r}, v{A_+r}, v{B_+r}')
        a(f'v_cvt_pk_bf16_f32 v{B_}, v{A_}, v{A_+1}')
        a(f'v_cvt_pk_bf16_f32 v{B_+1}, v{A_+2}, v{A_+3}')
        a(f'ds_write_b64 v{YA+p}, v[{B_}:{B_+1}]')
    a('s_waitcnt lgkmcnt(0)')
    a(f'ds_read_b128 v[{YT}:{YT+3}], v76')
    a(f'ds_read_b128 v[{YT+4}:{YT+7}], v76 offset:1024')
    a('s_waitcnt lgkmcnt(0)')
    a(f'buffer_store_dwordx4 v[{YT}:{YT+3}], v2, {WS}, s25 offen sc1')
    a(f'buffer_store_dwordx4 v[{YT+4}:{YT+7}], v2, {WS}, s25 offen offset:1024 sc1')
    a('s_waitcnt vmcnt(0)')
    a('s_mov_b64 exec, 1')
    a(f'buffer_store_dword v78, v2, {WS}, s26 offen sc1')
    a('s_mov_b64 exec, -1')
    if WARMUP:
        nl = 64 >> WSH; per = 128 * nl * 128
        nu = -(-1835008 // per); npar = 1 << WSH; no = -(-3670016 // per)
        a('s_lshr_b32 s28, s17, 1')
        a(f's_cmp_ge_u32 s28, {nu + npar + no}')
        a(f's_cbranch_scc1 {P}_nw')
        a(f's_lshl_b32 s29, {v_s}, 1')
        a(f's_add_u32 s29, s29, {par_s}')
        a('s_lshl_b32 s31, s29, 2')
        a('s_add_u32 s31, s31, s16')
        a(f's_cmp_lt_u32 s28, {nu}')
        a(f's_cbranch_scc1 {P}_wu')
        a(f's_sub_u32 s28, s28, {nu}')
        a(f's_cmp_lt_u32 s28, {npar}')
        a(f's_cbranch_scc1 {P}_wp')
        a(f's_sub_u32 s28, s28, {npar}')
        a('s_mov_b64 s[32:33], s[92:93]\ns_mov_b32 s34, 3670016')
        a(f's_branch {P}_wg')
        a.label(f'{P}_wp')
        a('s_lshl_b32 s31, s16, 3')
        a('s_add_u32 s31, s31, 8')
        a('s_load_dwordx2 s[32:33], s[0:1], s31')
        a('s_mov_b32 s34, 229376')
        a('s_lshl_b32 s28, s28, 5')
        a('s_add_u32 s31, s28, s29')
        a('s_mov_b32 s28, 0')
        a(f's_branch {P}_wg')
        a.label(f'{P}_wu')
        a('s_load_dwordx2 s[32:33], s[0:1], 0')
        a('s_mov_b32 s34, 1835008')
        a.label(f'{P}_wg')
        a('s_lshl_b32 s28, s28, 7')
        a('s_add_u32 s28, s28, s31')
        a(f's_mul_i32 s28, s28, {nl*128}')
        a('s_waitcnt lgkmcnt(0)')
        a('s_and_b32 s33, s33, 0xffff\ns_mov_b32 s35, 0x20000')
        a('v_lshlrev_b32 v80, 3, v2')
        if WSH: a('s_mov_b32 exec_hi, 0' if WSH == 1 else 's_mov_b64 exec, 0xffff')
        a('buffer_load_dword v81, v80, s[32:35], s28 offen')
        a('s_mov_b64 exec, -1')
        a.label(f'{P}_nw')
    a(f's_add_u32 s24, s24, {14*KB}')
    a(f's_add_u32 s25, s25, {16*KB}')
    a('s_add_u32 s26, s26, 32')
    a('s_add_u32 s17, s17, 2')
    a('s_cmp_lt_u32 s17, 64')
    a(f's_cbranch_scc1 {P}_loop')
```

```python
from asmlib import *
from layout import *

SRD = 's[8:11]'; DBG = 's[12:15]'
SPIN_LIMIT = 400000
SLOW_LIMIT = 50000
NSTEPS = 64
STAMPS = False
STAMP_STEP = 32
STAMP_CYC = 0
STEPLOG = 0
STAMP_OFF = 100 * 1024 * 1024
POLL_DEPTH = 3
POLL_GAP = 0
SC_SLEEP = 0
M_GAP = 4
SC_DELAY = 0
F1_POS = 11
F2_POS = 4
VA_DELAY = 0
VO_POS = 1
P_GAP = 5
ZFILL = 1
SC_ALLPOLL = 0
FOLDW = 1
NANCHK = 1
VO_PRE0 = 0
VO_PRE = 16
VO_SLEEP = 0
F1_WAVE = 2
RB1_DELAY = 0
EC_M = 0
EC_P = 0
DIAG = 0
T2SRV = 1
SLOW_FIRST = 0
B2_POS = 0
M_ROT = 0
CODE_PF = 1
PUB_EARLY = 0
HLP_SLEEP = 0
MERGE = 0
A_TGT = 28
B_TGT = 64
SELF_POISON = 0
X_PRELOAD = 0
VO_NT = 0
FIN_SLEEP = 0
VM_BURST = 0
PUBLISH = 1
VM_EVERY = 2
PUB_FIRST = 1
VO_EARLY = 0
FLAG_SLEEP = 0
SYNC = 0
XCD_SEL = 0
NOBULK = 0
VAL_TOUCH = 0
SC_TOUCH = 0
TOUCH_POS = 2
TOUCH_AHEAD = 2
DMA_DELAY = 0
PLAIN_M = 1
MRG = 1
T2DF = 0
T2DH = 0
NOT2 = 0
ECP = 0
ALIGN = 6
APAD = 0
FAST = 1
EPI2 = 1
F2ONE = 0
SELF = 0
BDEP = None
BST2 = 0
R1 = 16
R2 = 32
PD_S = 5
PG_S = 8
PD_V = 5
PG_V = 8
PD_H = 3
PG_H = 0
VST = 0
VSM = 1
NPP = 10
VZ = 3
NPRE = 3
LPOS = 1
PLAIN_P = 1
D = 'row_mask:0xf bank_mask:0xf'
XSEG_B = 28 * KB

def stamp(a, k):
    if STAMPS: a(f'{"s_memtime" if STAMP_CYC else "s_memrealtime"} s[{40+2*k}:{41+2*k}]')
def stamp_flush(a, path, n, lbl, t=118):
    if not STAMPS: return
    a(f's_cmp_lg_u32 s19, {STAMP_STEP}')
    a(f's_cbranch_scc1 {lbl}')
    a('s_waitcnt lgkmcnt(0)')
    a(f's_lshl_b32 s22, s17, 9')
    a(f's_add_u32 s22, s22, {STAMP_OFF + path * 64}')
    a(f'v_mov_b32 v{t}, 0')
    for k in range(n):
        a(f'v_mov_b32 v{t+1}, s{40+2*k}')
        a(f'buffer_store_dword v{t+1}, v{t}, {SRD}, s22 offen offset:{4*k}')
    a.label(lbl)

EVLOG = 0
EV_OFF = 101 * 1024 * 1024
def evlog(a, tag, t=36):
    if not EVLOG: return
    a('s_memrealtime s[98:99]')
    a('s_waitcnt lgkmcnt(0)')
    a(f'v_mov_b32 v{t}, {tag}')
    a(f'v_mov_b32 v{t+1}, s98')
    a('s_mov_b64 exec, 1')
    a(f'buffer_store_dwordx2 v[{t}:{t+1}], off, {SRD}, s100')
    a('s_mov_b64 exec, -1')
    a('s_add_u32 s100, s100, 8')

TMAX = 0
def tmax(a, slot, t=36):
    if not TMAX: return
    a('s_memrealtime s[98:99]')
    a('s_waitcnt lgkmcnt(0)')
    a('s_sub_u32 s98, s98, s88')
    a(f'v_mov_b32 v{t}, s98')
    a('s_mov_b64 exec, 1')
    a(f'buffer_atomic_umax v{t}, off, {DBG}, 0 offset:{4*slot}')
    a('s_mov_b64 exec, -1')

def exec_lo(a, R):
    if R == 32: a('s_mov_b32 exec_hi, 0')
    else: a(f's_mov_b64 exec, {(1 << R) - 1}')

def spin(a, back, abort):
    a('s_add_u32 s30, s30, 1')
    a(f's_cmp_lt_u32 s30, {SPIN_LIMIT}')
    a(f's_cbranch_scc1 {back}')
    a(f's_branch {abort}')

def flagpoll(a, vaddr, sbase, regs, lbl, abort, Dp=None, gap=None, issued=0):
    Dp = Dp or POLL_DEPTH
    gap = POLL_GAP if gap is None else gap
    for i in range(issued, Dp):
        a(f'buffer_load_dword v{regs+i}, v{vaddr}, {SRD}, {sbase} offen sc1')
        if i < Dp - 1: a.nop(gap)
    a.label(lbl + '_l')
    for i in range(Dp):
        a(f's_waitcnt vmcnt({Dp-1})')
        a(f'v_cmp_eq_u32 vcc, -1, v{regs+i}')
        a(f's_cbranch_vccz {lbl}_d')
        a(f'buffer_load_dword v{regs+i}, v{vaddr}, {SRD}, {sbase} offen sc1')
    spin(a, lbl + '_l', abort)
    a.label(lbl + '_d')

def load_M(a, M, gap=0, k0=0):
    for ks in range(k0, 7):
        so = 's20' if ks < 4 else 's23'
        a(f'buffer_load_dwordx4 v[{M+4*ks}:{M+4*ks+3}], v2, {SRD}, {so} offen offset:{(ks & 3) * 1024} sc1')
        if gap and ks < 3: a.nop(gap)

def load_units(a, units, base, tmp_s='s22'):
    cur = None; n = 0
    for off, reg in units:
        for hb in range(2):
            o = off + hb * 1024
            blk = o // 4096 * 4096
            if blk != cur:
                a(f's_add_u32 {tmp_s}, {base}, {blk}'); cur = blk
            a(f'buffer_load_dwordx4 {ureg(reg + 4 * hb, 4)}, v2, {SRD}, {tmp_s} offen offset:{o - blk}' + (' sc1' if MERGE else ''))
            n += 1
            if n % 32 == 0: a('s_waitcnt vmcnt(24)')

def wreg(ti, ks):
    u = ti * 7 + ks
    return 256 + 8 * u if u < 32 else 120 + 8 * (u - 32)

def lane_consts(a):
    a('v_and_b32 v1, 63, v0')
    a('v_lshlrev_b32 v2, 4, v1')
    a('v_lshrrev_b32 v116, 4, v1')
    a('v_and_b32 v117, 15, v1')
    a('v_mov_b32 v3, 0x4444')
    a('v_mov_b32 v118, 0xeeee')
    a('v_cmp_lt_u32 vcc, 7, v117')
    a('v_cndmask_b32 v3, v3, v118, vcc')

def step_bases(a):
    a('s_add_u32 s23, s20, 4096')
    a(f's_add_u32 s21, s20, {EXCH_B}')

class Checker:
    def __init__(self, a, acc): self.a = a; self.acc = acc; self.q = []; self.first = True
    def add(self, r, n=4): self.q += list(range(r, r + n))
    def emit(self, k=1):
        for _ in range(k):
            if self.first and len(self.q) >= 3:
                x, y, z = self.q[:3]; self.q = self.q[3:]
                self.a(f'v_max3_u32 v{self.acc}, v{x}, v{y}, v{z}'); self.first = False
            elif len(self.q) >= 2:
                x, y = self.q[:2]; self.q = self.q[2:]
                self.a(f'v_max3_u32 v{self.acc}, v{self.acc}, v{x}, v{y}')
            elif len(self.q) == 1:
                self.a(f'v_max_u32 v{self.acc}, v{self.acc}, v{self.q[0]}'); self.q = []
    def drain(self):
        while self.q: self.emit()

XP = 2 * XSEG_B
MP = XP + 8 * KB
def score_tiles(w):
    return [(w, 0), (w, 1), (w, 2), (w, 3), (4 + (w >> 1), 2 * (w & 1)), (4 + (w >> 1), 2 * (w & 1) + 1), (6, w)]

def x_dma(a, w):
    a(f's_add_u32 m0, s25, {7*w*1024}')
    for f in range(7):
        if f == 4:
            a(f's_add_u32 m0, s25, {7*w*1024 + 4096}')
            a('s_add_u32 s22, s24, 4096')
        a(f'buffer_load_dwordx4 v2, {SRD}, {"s24" if f < 4 else "s22"} offen offset:{(f & 3) * 1024}' + (' sc1' if MERGE else '') + ' lds')

def gen_score(a, w, st, tag):
    L = lambda n: f'{tag}_sc{w}_{n}'
    ABORT = f'{tag}_abort'
    M = 8; ACC = 36; AOP = 64; TR = 68; BOP6 = 76; BOPB = 80; BOPA = 60; SACC = 84; SX = 88
    XS = [96, 104, [12, 16, 8, 8][w], 52, 36]
    ka, kb = w, 4 + (w >> 1)
    half6, piece6, pieceP = w & 1, w >> 1, w & 1
    def S(ti, ks):
        return f'v_smfmac_f32_16x16x64_bf16 v[{ACC+4*ti}:{ACC+4*ti+3}], v[{M+4*ks}:{M+4*ks+3}], {ureg(wreg(ti, ks), 8)}, v3'
    def cvt(dst, src):
        return [f'v_cvt_pk_bf16_f32 v{dst}, v{src}, v{src+1}', f'v_cvt_pk_bf16_f32 v{dst+1}, v{src+2}, v{src+3}']
    def T(dst): return f'v_mfma_f32_16x16x32_bf16 v[{dst}:{dst+3}], v[{AOP}:{AOP+3}], v[4:7], 0'
    def xrd(buf, kap, tt):
        off = (tt * 14 + 2 * kap) * 1024
        return [f'ds_read_b128 v[{XS[buf]}:{XS[buf]+3}], v116 offset:{off}', f'ds_read_b128 v[{XS[buf]+4}:{XS[buf]+7}], v116 offset:{off+1024}']
    def xrd2(buf, tt):
        return [f'ds_read_b128 v[{XS[buf]}:{XS[buf]+3}], v117 offset:{tt*14*KB}', f'ds_read_b128 v[{XS[buf]+4}:{XS[buf]+7}], v117 offset:{tt*14*KB+1024}']
    xfirst = (lambda: xrd2(0, 0) + xrd2(1, 1)) if MRG else (lambda: xrd(0, 6, 0) + xrd(1, 6, 1))
    def Smm(kap, b, first=False):
        c = '0' if first else f'v[{SACC}:{SACC+3}]'
        return f'v_mfma_f32_16x16x32_bf16 v[{SACC}:{SACC+3}], v[{M+4*kap}:{M+4*kap+3}], v[{b}:{b+3}], {c}'
    def Sx(tt, b, buf):
        return f'v_smfmac_f32_16x16x64_bf16 v[{SX+4*tt}:{SX+4*tt+3}], v[{b}:{b+3}], v[{XS[buf]}:{XS[buf]+7}], v3'
    ZR = list(range(ACC, ACC + 28)) + list(range(SX, SX + 8)) + [AOP + 2 - 2 * half6, AOP + 3 - 2 * half6]
    def zero(lo=0, hi=99):
        for r in ZR[lo:hi]: a(f'v_mov_b32 v{r}, 0')
    o1 = [(k + w) % 4 for k in range(4)] if M_ROT else [0, 1, 2, 3]
    o2 = [4 + (k + w) % 3 for k in range(3)] if M_ROT else [4, 5, 6]
    def ml(ks, first=False):
        a(f'buffer_load_dwordx4 v[{M+4*ks}:{M+4*ks+3}], v2, {SRD}, {"s20" if ks < 4 else "s23"} offen offset:{(ks & 3) * 1024}' + ('' if first and PLAIN_M and st == '' else ' sc1'))
    if ALIGN: a.raw(f'.p2align {ALIGN}\n' + '  s_nop 0\n' * APAD)
    a.label(L('loop'))
    step_bases(a)
    zero(3 * M_GAP if ZFILL else 0)
    a('s_mov_b32 s30, 0')
    if NANCHK: a('s_mov_b32 s62, 0')
    if SC_ALLPOLL:
        a('s_waitcnt vmcnt(0)')
        a('s_barrier')
        if SC_SLEEP: a(f's_sleep {SC_SLEEP}')
        flagpoll(a, 117, 's20', TR, L('fp'), ABORT)
        stamp(a, 0)
    else:
        if w == 0:
            if SC_SLEEP: a(f's_sleep {SC_SLEEP}')
            flagpoll(a, 0, 's20', TR, L('fp'), ABORT, PD_S, PG_S)
            if SC_DELAY: a.nop(SC_DELAY)
            ml(o1[0], True)
            a('s_barrier')
            stamp(a, 0)
            a(f's_branch {L("ld1")}')
        else:
            a('s_waitcnt vmcnt(0)')
            stamp(a, 7)
            a('s_barrier')
            stamp(a, 0)
    a.label(L('ld'))
    ml(o1[0], NANCHK)
    if w == 0: a.label(L('ld1'))
    order = o1 + o2
    for i, ks in enumerate(order[1:NPRE]):
        if i < 3:
            if ZFILL: zero(i * M_GAP, (i + 1) * M_GAP)
            else: a.nop(M_GAP)
        ml(ks, NANCHK)
    if ZFILL and NPRE < 4: zero((NPRE - 1) * M_GAP, 3 * M_GAP)
    if NANCHK and NPRE == 7: a.label(L('ld2'))
    for x in xfirst(): a(x)
    ck = Checker(a, 118)
    issued = NPRE
    late = order[NPRE:]
    for i, ks in enumerate(o1):
        a(f's_waitcnt vmcnt({issued-1-i})')
        if i < EC_M:
            a.label(L(f'e{i}'))
            r = M + 4 * ks
            a(f'v_max3_u32 v{TR}, v{r}, v{r+1}, v{r+2}')
            a(f'v_max_u32 v{TR}, v{TR}, v{r+3}')
            a(f'v_cmp_eq_u32 vcc, -1, v{TR}')
            a(f's_cbranch_vccnz {L(f"er{i}")}')
        elif not NANCHK: ck.add(M + 4 * ks)
        if i == 0: stamp(a, 1)
        for ti in range(7):
            a(S(ti, ks))
            if ti in (1, 3): ck.emit()
            if late and ti in ((LPOS, LPOS + 3) if LPOS < 4 else (LPOS - 4,)):
                ml(late.pop(0), NANCHK); issued += 1
    assert not late
    a('s_waitcnt vmcnt(0)')
    if NPRE < 7: a.label(L('ph2'))
    stamp(a, 2)
    for k in (4, 5, 6):
        if not NANCHK: ck.add(M + 4 * k)
    seq = []
    for ti in (6, 4, 5, 0, 1, 2, 3):
        for ks in (4, 5, 6): seq.append([S(ti, ks), []])
    def side(i, ops): seq[i][1] += ops
    CK = 'CK'
    for i in range(6): side(i, [CK])
    if MRG:
        M2 = 80
        side(0, xrd(2, ka, 0))
        if (w == 1 or w == 2): side(1, [f'buffer_load_dword v119, v0, {SRD}, {"s20" if w == 1 else "s24"} offen sc1'])
        mv = [f'v_mov_b32 v{M2+k}, v{M+4*kb+2*pieceP+k}' for k in range(2)] + [f'v_mov_b32 v{M2+2+k}, v{M+24+2*piece6+k}' for k in range(2)]
        side(2, mv[:1]); side(3, mv[1:2]); side(4, mv[2:3]); side(7, mv[3:])
        c6 = cvt(AOP + 2 * half6, ACC + 24)
        side(5, c6[:1]); side(6, c6[1:])
        seq.insert(8, [T(TR), []])
        cb6 = cvt(BOP6 + 2, TR)
        side(11, cb6[:1]); side(12, cb6[1:])
        c4, c5 = cvt(AOP, ACC + 16), cvt(AOP + 2, ACC + 20)
        side(9, c4[:1]); side(10, c4[1:]); side(12, c5[:1]); side(13, c5[1:])
        seq.insert(15, [T(TR + 4), xrd(3, ka, 1)])
        c0, c1 = cvt(AOP, ACC), cvt(AOP + 2, ACC + 4)
        side(16, c0[:1]); side(17, c0[1:])
        cbb = cvt(BOP6, TR + 4)
        side(18, cbb[:1]); side(19, cbb[1:] + c1[:1]); side(20, c1[1:])
        seq.insert(22, [T(TR), []])
        c2, c3 = cvt(AOP, ACC + 8), cvt(AOP + 2, ACC + 12)
        side(23, c2[:1])
        seq.append([f'v_mfma_f32_16x16x32_bf16 v[{SACC}:{SACC+3}], v[{M2}:{M2+3}], v[{BOP6}:{BOP6+3}], 0', c2[1:] + ['s_waitcnt lgkmcnt(0)']])
        ca0 = cvt(BOPA, TR)
        seq.append([Sx(0, BOP6, 0), ca0 + c3])
        seq.append([T(TR + 4), []])
        seq.append([Sx(1, BOP6, 1), cvt(BOPA + 2, TR + 4)])
        seq.append([Smm(ka, BOPA), []])
        seq.append([Sx(0, BOPA, 2), []])
        seq.append([Sx(1, BOPA, 3), []])
    else:
        side(0, xrd(2, kb, 0))
        if SC_TOUCH: side(TOUCH_POS, [f'buffer_load_dword v119, v117, {SRD}, s35 offen sc1'])
        if not VAL_TOUCH and ((w == 1 and not SELF_POISON) or (w == 2 and not X_PRELOAD)): side(TOUCH_POS - 1, [f'buffer_load_dword v119, v0, {SRD}, {"s20" if w == 1 else "s24"} offen sc1'])
        c6 = cvt(AOP + 2 * half6, ACC + 24)
        side(5, c6[:1]); side(6, c6[1:] + ['v_cmp_eq_u32 vcc, -1, v118'])
        seq.insert(8, [T(TR), []])
        side(9, [f's_cbranch_vccnz {L("retry")}'])
        cb6 = cvt(BOP6 + 2 * piece6, TR)
        side(11, cb6[:1]); side(12, cb6[1:])
        c4, c5 = cvt(AOP, ACC + 16), cvt(AOP + 2, ACC + 20)
        side(9, c4[:1]); side(10, c4[1:]); side(12, c5[:1]); side(13, c5[1:])
        seq.insert(15, [T(TR + 4), xrd(3, kb, 1)])
        c0, c1 = cvt(AOP, ACC), cvt(AOP + 2, ACC + 4)
        side(16, c0[:1]); side(17, c0[1:])
        cbb = cvt(BOPB + 2 * pieceP, TR + 4)
        side(18, cbb[:1]); side(19, cbb[1:] + c1[:1]); side(20, c1[1:])
        seq.insert(22, [T(TR), xrd(4, ka, 0)])
        c2, c3 = cvt(AOP, ACC + 8), cvt(AOP + 2, ACC + 12)
        side(23, ['s_waitcnt lgkmcnt(4)'] + c2[:1])
        seq.append([Smm(6, BOP6, True), c2[1:]])
        seq.append([Sx(0, BOP6, 0), xrd(0, ka, 1)])
        ca0 = cvt(BOPA, TR)
        seq.append([Sx(1, BOP6, 1), c3])
        seq.append([Smm(kb, BOPB), ca0[:1]])
        seq.append([T(TR + 4), ca0[1:] + ['s_waitcnt lgkmcnt(4)']])
        seq.append([Sx(0, BOPB, 2), []])
        seq.append([Sx(1, BOPB, 3), ['s_waitcnt lgkmcnt(0)'] + cvt(BOPA + 2, TR + 4)])
        if FOLDW:
            seq.append([Smm(ka, BOPA), []])
            seq.append([Sx(0, BOPA, 4), []])
            seq.append([Sx(1, BOPA, 0), []])
        else:
            seq.append([Sx(0, BOPA, 4), []])
            seq.append([Sx(1, BOPA, 0), []])
            seq.append([Smm(ka, BOPA), []])
    for m, ops in seq:
        a(m)
        for o in ops:
            if o == CK: ck.emit()
            elif NANCHK and (o.startswith('v_cmp') or o.startswith('s_cbranch')): pass
            else:
                if o.startswith('v_cmp'): ck.drain()
                a(o)
    if FOLDW:
        a('s_mov_b64 exec, s[26:27]')
        a(f'ds_write_b128 v113, v[{SACC}:{SACC+3}]')
        a('s_mov_b64 exec, -1')
        a(f'v_cmp_u_f32 vcc, v{SX}, v{SX+1}')
        for r in range(4): a(f'v_permlane32_swap_b32 v{SX+r}, v{SX+4+r}')
        for r in range(4): a(f'v_add_f32 v{SX+r}, v{SX+r}, v{SX+4+r}')
        a(f'ds_write_b128 v112, v[{SX}:{SX+3}]')
    else:
        a(f'ds_write_b128 v112, v[{SX}:{SX+3}]')
        if NANCHK: a(f'v_cmp_u_f32 vcc, v{SX}, v{SX+1}')
        a(f'ds_write_b128 v112, v[{SX+4}:{SX+7}] offset:256')
        a('s_mov_b64 exec, s[26:27]')
        a(f'ds_write_b128 v113, v[{SACC}:{SACC+3}]')
        a('s_mov_b64 exec, -1')
    if NANCHK:
        a(f's_cbranch_vccnz {L("retry")}')
        a.label(L('cont'))
    stamp(a, 3)
    a('s_waitcnt lgkmcnt(0)')
    a('s_barrier')
    stamp(a, 4)
    t = ACC
    for k in range(2 if FOLDW else 4): a(f'ds_read_b64 v[{t+2*k}:{t+2*k+1}], v114 offset:{k*1024}')
    a(f'ds_read2_b32 v[{t+8}:{t+9}], v115 offset0:0 offset1:64')
    if w == F1_WAVE: a(f'v_lshl_add_u32 v{t+20}, v2, 3, s36')
    def f1(pos):
        if w == F1_WAVE and pos == F1_POS:
            exec_lo(a, R1)
            a(f'buffer_store_dword v2, v{t+20}, {SRD}, s20 offen {st}')
            a('s_mov_b64 exec, -1')
    if F1_POS < 0 and w == F1_WAVE:
        a.nop(4 * (F1_POS + 4)); f1(F1_POS)
    a('s_waitcnt lgkmcnt(0)')
    f1(0)
    stamp(a, 5)
    sm, sx = t + 8, t
    a(f'v_add_f32 v{sm}, v{t+8}, v{t+9}')
    a(f'v_add_f32 v{t}, v{t}, v{t+2}')
    a(f'v_add_f32 v{t+1}, v{t+1}, v{t+3}')
    f1(10)
    a(f'v_add_f32_dpp v{sm}, v{sm}, v{sm} row_ror:8 {D}')
    if FOLDW:
        a(f'v_mov_b32 v{t+9}, v{sm}')
        f1(11)
        a(f'v_permlane32_swap_b32 v{t}, v{t+1}')
        a(f'v_add_f32 v{sx}, v{t}, v{t+1}')
        f1(12)
        a(f'v_permlane16_swap_b32 v{sm}, v{t+9}')
        a(f'v_add_f32 v{sm}, v{sm}, v{t+9}')
        f1(13)
    else:
        a(f'v_add_f32 v{t+4}, v{t+4}, v{t+6}')
        a(f'v_add_f32 v{t+5}, v{t+5}, v{t+7}')
        a(f'v_mov_b32 v{t+9}, v{sm}')
        a(f'v_add_f32 v{t}, v{t}, v{t+4}')
        a(f'v_add_f32 v{t+1}, v{t+1}, v{t+5}')
        a(f'v_permlane16_swap_b32 v{sm}, v{t+9}')
        a(f'v_add_f32 v{sm}, v{sm}, v{t+9}')
        a(f'v_permlane32_swap_b32 v{t}, v{t+1}')
        a(f'v_add_f32 v{sx}, v{t}, v{t+1}')
    if FAST:
        ex, em, ab = t + 12, t + 13, t + 14
        l = t + 3; u = t + 4; v = t + 5; lo = t + 6; hi = t + 7
        def norm(fast):
            a(f'v_fma_f32 v{l}, v{em}, s37, v{ex}')
            if fast: a(f'v_cmp_ngt_f32 vcc, s56, v{ab}')
            a(f'v_cndmask_b32 v{v}, v{ex}, v{em}, s[38:39]')
            a(f'v_add_f32_dpp v{l}, v{l}, v{l} quad_perm:[1,0,3,2] {D}')
            a(f'v_cndmask_b32 v{u}, v{em}, v{ex}, s[38:39]')
            a(f'v_mov_b32_dpp v{t+10}, v{v} quad_perm:[1,0,3,2] {D}')
            a(f'v_add_f32_dpp v{l}, v{l}, v{l} quad_perm:[2,3,0,1] {D}')
            a(f'v_cndmask_b32 v{lo}, v{t+10}, v{u}, s[38:39]')
            a(f'v_cndmask_b32 v{hi}, v{u}, v{t+10}, s[38:39]')
            a(f'v_add_f32_dpp v{l}, v{l}, v{l} row_half_mirror {D}')
            if fast: a(f's_cbranch_vccnz {L("slow")}')
            a(f'v_add_f32_dpp v{l}, v{l}, v{l} row_mirror {D}')
            a(f'v_mov_b32 v{t+11}, v{l}')
            a(f'v_permlane16_swap_b32 v{l}, v{t+11}')
            a(f'v_add_f32 v{l}, v{l}, v{t+11}')
            a(f'v_rcp_f32 v{l}, v{l}')
            a('s_mov_b64 exec, s[28:29]')
            a(f'v_mul_f32 v{lo}, v{lo}, v{l}')
            a(f'v_mul_f32 v{hi}, v{hi}, v{l}')
            a(f'v_cvt_pk_bf16_f32 v{lo}, v{lo}, v{hi}')
        a(f'v_exp_f32 v{ex}, v{sx}')
        a(f'v_exp_f32 v{em}, v{sm}')
        a(f'v_add_f32 v{ab}, abs(v{sx}), abs(v{sm})')
        f1(1)
        norm(True)
        a.label(L('pst'))
    else:
        mx = t + 2
        a(f'v_max_f32 v{mx}, v{sx}, v{sm}')
        f1(1)
        a(f'v_max_f32_dpp v{mx}, v{mx}, v{mx} quad_perm:[1,0,3,2] {D}')
        a(f'v_max_f32_dpp v{mx}, v{mx}, v{mx} quad_perm:[2,3,0,1] {D}')
        a(f'v_max_f32_dpp v{mx}, v{mx}, v{mx} row_half_mirror {D}')
        a(f'v_max_f32_dpp v{mx}, v{mx}, v{mx} row_mirror {D}')
        a(f'v_mov_b32 v{t+3}, v{mx}')
        a(f'v_permlane16_swap_b32 v{mx}, v{t+3}')
        a(f'v_max_f32 v{mx}, v{mx}, v{t+3}')
        f1(2)
        a(f'v_sub_f32 v{sx}, v{sx}, v{mx}')
        a(f'v_sub_f32 v{sm}, v{sm}, v{mx}')
        a(f'v_exp_f32 v{sx}, v{sx}')
        a(f'v_exp_f32 v{sm}, v{sm}')
        l = t + 3; u = t + 4; v = t + 5; lo = t + 6; hi = t + 7
        a(f'v_fma_f32 v{l}, v{sm}, s37, v{sx}')
        a(f'v_cndmask_b32 v{u}, v{sm}, v{sx}, s[38:39]')
        a(f'v_cndmask_b32 v{v}, v{sx}, v{sm}, s[38:39]')
        a(f'v_add_f32_dpp v{l}, v{l}, v{l} quad_perm:[1,0,3,2] {D}')
        a(f'v_mov_b32_dpp v{t+10}, v{v} quad_perm:[1,0,3,2] {D}')
        a(f'v_add_f32_dpp v{l}, v{l}, v{l} quad_perm:[2,3,0,1] {D}')
        a(f'v_cndmask_b32 v{lo}, v{t+10}, v{u}, s[38:39]')
        a(f'v_cndmask_b32 v{hi}, v{u}, v{t+10}, s[38:39]')
        f1(3)
        a(f'v_add_f32_dpp v{l}, v{l}, v{l} row_half_mirror {D}')
        a(f'v_add_f32_dpp v{l}, v{l}, v{l} row_mirror {D}')
        a(f'v_mov_b32 v{t+11}, v{l}')
        a(f'v_permlane16_swap_b32 v{l}, v{t+11}')
        a(f'v_add_f32 v{l}, v{l}, v{t+11}')
        f1(4)
        a(f'v_rcp_f32 v{l}, v{l}')
        a(f'v_mul_f32 v{lo}, v{lo}, v{l}')
        a(f'v_mul_f32 v{hi}, v{hi}, v{l}')
        a(f'v_cvt_pk_bf16_f32 v{lo}, v{lo}, v{hi}')
        a(f'v_min_u32 v{lo}, -2, v{lo}')
        a('s_mov_b64 exec, s[28:29]')
    a(f'buffer_store_dword v{lo}, v1, {SRD}, s20 offen {st}')
    a('s_mov_b64 exec, -1')
    f1(5)
    stamp(a, 6)
    a('s_barrier')
    if DMA_DELAY: a.nop(DMA_DELAY)
    if not NOBULK: a(f's_add_u32 s24, s24, {XSEG_B}')
    if not NOBULK: a(f's_add_u32 s35, s35, {GSH_B}')
    a(f's_xor_b32 s25, s25, {XSEG_B}')
    x_dma(a, w)
    a(f'v_xor_b32 v116, {XSEG_B}, v116')
    if MRG:
        a('v_add_u32 v117, s57, v117')
        a('s_sub_u32 s57, 0, s57')
    stamp_flush(a, w, 8, L('sf'))
    if STEPLOG and w in (1, 3):
        a('s_memtime s[40:41]' if w == 1 else 's_memrealtime s[40:41]')
        a('s_lshl_b32 s22, s17, 8')
        a('s_lshl_b32 s42, s19, 2')
        a('s_add_u32 s22, s22, s42')
        a(f's_add_u32 s22, s22, {STAMP_OFF + (4096 if w == 3 else 0)}')
        a('v_mov_b32 v118, 0')
        a('s_waitcnt lgkmcnt(0)')
        a('v_mov_b32 v119, s40')
        a(f'buffer_store_dword v119, v118, {SRD}, s22 offen')
    a('s_add_u32 s19, s19, 1')
    a('s_mov_b32 s20, s21')
    a(f's_cmp_lt_u32 s19, {NSTEPS-1}')
    a.flush()
    a(f's_cbranch_scc1 {L("loop")}')
    a(f's_branch {tag}_done')
    for i in range(EC_M):
        a.label(L(f'er{i}'))
        ml(o1[i])
        a('s_waitcnt vmcnt(0)')
        a('s_add_u32 s31, s31, 0x100')
        spin(a, L(f'e{i}'), ABORT)
    if FAST:
        a.label(L('slow'))
        mx = ab
        a(f'v_max_f32 v{mx}, v{sx}, v{sm}')
        for pm in ('quad_perm:[1,0,3,2]', 'quad_perm:[2,3,0,1]', 'row_half_mirror', 'row_mirror'): a(f'v_max_f32_dpp v{mx}, v{mx}, v{mx} {pm} {D}')
        a(f'v_mov_b32 v{t+11}, v{mx}')
        a(f'v_permlane16_swap_b32 v{mx}, v{t+11}')
        a(f'v_max_f32 v{mx}, v{mx}, v{t+11}')
        a(f'v_sub_f32 v{ex}, v{sx}, v{mx}')
        a(f'v_sub_f32 v{em}, v{sm}, v{mx}')
        a(f'v_exp_f32 v{ex}, v{ex}')
        a(f'v_exp_f32 v{em}, v{em}')
        a('s_add_u32 s31, s31, 0x100')
        norm(False)
        a(f'v_min_u32 v{lo}, -2, v{lo}')
        a(f's_branch {L("pst")}')
    a.label(L('retry'))
    if NANCHK:
        a('s_cmp_lg_u32 s62, 0')
        a(f's_cbranch_scc1 {L("cont")}')
        a('s_waitcnt vmcnt(0) lgkmcnt(0)')
        a.label(L('rv'))
        for ks in range(7): ml(ks)
        a('s_waitcnt vmcnt(0)')
        ck2 = Checker(a, 118)
        ck2.add(M, 28); ck2.drain()
        a('v_cmp_eq_u32 vcc, -1, v118')
        a(f's_cbranch_vccz {L("rk")}')
        spin(a, L('rv'), ABORT)
        a.label(L('rk'))
        a('s_mov_b32 s62, 1')
        zero()
        a('s_add_u32 s31, s31, 1')
        if NPRE == 7: a(f's_branch {L("ld2")}')
        else:
            for x in xfirst(): a(x)
            for ks in o1:
                for ti in range(7): a(S(ti, ks))
            a(f's_branch {L("ph2")}')
    else:
        a('s_waitcnt vmcnt(0) lgkmcnt(0)')
        a.nop(10)
        zero()
        a('s_add_u32 s31, s31, 1')
        spin(a, L('ld'), ABORT)

def init_score(a, w):
    AOP = 64
    a(f's_mul_i32 s31, s17, {CUW_B}')
    a(f's_add_u32 s31, s31, {WF_A}')
    units = [((kap * 4 + q) * TILE_B + ks * UNIT, wreg(ti, ks)) for ti, (kap, q) in enumerate(score_tiles(w)) for ks in range(7) if not SELF or (ti >= 4 and SELF == 1)]
    load_units(a, units, 's31')
    a(f's_mov_b32 s24, {XF_OFF + 7*w*1024}')
    a('s_mov_b32 s25, 0')
    x_dma(a, w)
    a('v_and_b32 v64, 7, v117')
    a('v_and_b32 v65, 1, v116')
    a('v_lshlrev_b32 v65, 2, v65')
    a('v_sub_u32 v64, v64, v65')
    a('v_lshrrev_b32 v65, 3, v117')
    a('v_lshl_add_u32 v66, v65, 2, v64')
    a('v_cmp_gt_u32 vcc, 4, v64')
    a('v_mov_b32 v67, 99')
    a('v_cndmask_b32 v66, v67, v66, vcc')
    a('v_mov_b32 v68, 0x3f80')
    a('v_mov_b32 v69, 0x3f800000')
    for d in range(4):
        a(f'v_mov_b32 v{4+d}, 0')
        a(f'v_cmp_eq_u32 vcc, {2*d}, v66')
        a(f'v_cndmask_b32 v{4+d}, v{4+d}, v68, vcc')
        a(f'v_cmp_eq_u32 vcc, {2*d+1}, v66')
        a(f'v_cndmask_b32 v{4+d}, v{4+d}, v69, vcc')
    a('v_lshrrev_b32 v64, 1, v116')
    a('v_lshrrev_b32 v65, 3, v117')
    a('v_cmp_eq_u32 s[26:27], v64, v65')
    a('v_and_b32 v66, 1, v116')
    a(f'v_add_u32 v64, {2*w}, v64')
    if FOLDW:
        a('v_lshrrev_b32 v67, 1, v116')
        a('v_lshlrev_b32 v67, 8, v67')
    else: a('v_lshlrev_b32 v67, 10, v64')
    a('v_lshl_add_u32 v67, v66, 9, v67')
    a('v_lshl_add_u32 v67, v117, 4, v67')
    a(f'v_add_u32 v112, {XP + (w*1024 if FOLDW else 0)}, v67')
    a('v_and_b32 v68, 7, v117')
    a('v_lshlrev_b32 v67, 8, v64')
    a('v_lshl_add_u32 v67, v68, 5, v67')
    a('v_lshl_add_u32 v67, v66, 4, v67')
    a(f'v_add_u32 v113, {MP}, v67')
    a('v_lshrrev_b32 v64, 5, v1')
    a('v_and_b32 v65, 31, v1')
    a('v_lshrrev_b32 v66, 3, v65')
    a('v_and_b32 v67, 7, v65')
    a('v_and_b32 v68, 3, v67')
    a('v_lshl_add_u32 v68, v66, 2, v68')
    a('v_lshrrev_b32 v69, 2, v67')
    a('v_lshl_add_u32 v68, v69, 4, v68')
    a(f'v_lshlrev_b32 v69, {11 if FOLDW else 12}, v64')
    a('v_lshl_add_u32 v69, v68, 4, v69')
    a(f'v_add_u32 v114, {XP + (w >> 1) * 512 + 2 * (w & 1) * 4}, v69')
    a(f'v_add_u32 v70, {2*w}, v64')
    a('v_lshlrev_b32 v69, 9, v66')
    a('v_lshl_add_u32 v69, v70, 5, v69')
    a('v_lshl_add_u32 v69, v67, 2, v69')
    a(f'v_add_u32 v115, {MP}, v69')
    a('v_and_b32 v71, 1, v1')
    a('v_cmp_eq_u32 s[38:39], 0, v71')
    a('v_cmp_gt_u32 vcc, 8, v65')
    a('s_or_b64 s[28:29], s[38:39], vcc')
    a('v_lshrrev_b32 v72, 1, v67')
    a('v_lshlrev_b32 v72, 2, v72')
    a('v_lshl_add_u32 v72, v70, 4, v72')
    a('s_lshl_b32 s22, s17, 9')
    a(f's_add_u32 s22, s22, {PX}')
    a('v_lshl_add_u32 v73, v66, 7, v72')
    a('v_add_u32 v73, s22, v73')
    a('s_lshl_b32 s22, s17, 7')
    a(f's_add_u32 s22, s22, {PM}')
    a('v_add_u32 v74, s22, v72')
    if VSM:
        a('v_bfe_u32 v72, v65, 1, 1')
        a('v_lshlrev_b32 v72, 7, v72')
        a('v_lshl_add_u32 v72, v70, 4, v72')
        a('v_bfe_u32 v73, v65, 2, 2')
        a('v_lshl_add_u32 v72, v73, 2, v72')
        a('v_lshrrev_b32 v73, 4, v65')
        a('v_lshl_add_u32 v73, v73, 8, v72')
        a('s_lshl_b32 s22, s17, 9')
        a(f's_add_u32 s22, s22, {PX}')
        a('v_add_u32 v73, s22, v73')
        a('s_lshr_b32 s22, s17, 1')
        a('s_lshl_b32 s22, s22, 8')
        a('s_and_b32 s34, s17, 1')
        a('s_lshl_b32 s34, s34, 3')
        a('s_add_u32 s22, s22, s34')
        a(f's_add_u32 s22, s22, {PM}')
        a('v_add_u32 v74, s22, v72')
    a('v_lshlrev_b32 v0, 2, v65')
    if F2ONE: a(f'v_and_b32 v0, 0x78, v0\nv_or_b32 v0, {4*(F2ONE-1)}, v0')
    a(f's_and_b32 s22, s17, {R2-1}')
    a('s_lshl_b32 s22, s22, 7')
    a(f's_add_u32 s22, s22, {F2}')
    a(f'v_add_u32 v0, s22, v0')
    a('v_cndmask_b32 v1, v74, v73, s[38:39]')
    a('s_lshl_b32 s36, s17, 2')
    a(f's_add_u32 s36, s36, {F1}')
    a('s_mov_b32 s37, 0x3e800000')
    for r in range(64, 112): a(f'v_mov_b32 v{r}, 0')
    if MRG:
        a('v_and_b32 v118, 1, v116')
        a('v_cmp_eq_u32 vcc, 0, v118')
        a(f'v_mov_b32 v118, {6*2048 + (w >> 1)*256}')
        a(f'v_mov_b32 v119, {(4 + (w >> 1))*2048 + (w & 1)*256}')
        a('v_cndmask_b32 v118, v118, v119, vcc')
        a('v_lshrrev_b32 v116, 1, v116')
        a('v_lshl_add_u32 v118, v116, 9, v118')
        a('v_lshl_add_u32 v117, v117, 4, v118')
        a(f's_mov_b32 s57, {XSEG_B}')
    a('s_mov_b32 s56, 0x42800000')
    a('v_mov_b32 v116, v2')
    if not MRG:
        a('v_lshrrev_b32 v117, 4, v2')
        a('v_min_u32 v117, 55, v117')
        a('v_lshlrev_b32 v117, 7, v117')
    if w in (1, 2):
        nl = 13 if w == 1 else 14
        a('v_lshrrev_b32 v0, 4, v2')
        a(f'v_min_u32 v0, {nl-1}, v0')
        a(f's_mul_i32 s22, s17, {nl}')
        a('v_add_u32 v0, s22, v0')
        a('v_lshlrev_b32 v0, 7, v0')
        a(f'v_add_u32 v0, {2*EXCH_B if w == 1 else 2*XSEG_B - 7*w*1024}, v0')
        for k in (1, 2):
            a(f's_mov_b32 s22, {EXCH_OFF - k*EXCH_B if w == 1 else XF_OFF + 7*w*1024 - k*XSEG_B}')
            a(f'buffer_load_dword v119, v0, {SRD}, s22 offen sc1')
    if X_PRELOAD:
        a(f's_mul_i32 s22, s17, {4*XSEG_B}')
        a(f's_add_u32 s22, s22, {XF_OFF + w*XSEG_B}')
        for k in range(4):
            a(f'buffer_load_dword v119, v117, {SRD}, s22 offen')
            a(f's_add_u32 s22, s22, {56*128}')
    if SC_ALLPOLL:
        a('v_lshrrev_b32 v117, 4, v2')
        a('v_and_b32 v117, 31, v117')
        a('v_lshlrev_b32 v117, 2, v117')
        a(f'v_add_u32 v117, {F2}, v117')
    a(f's_mul_i32 s35, s17, {64*GSH_B}')
    a(f's_add_u32 s35, s35, {VO_OFF + TOUCH_AHEAD*GSH_B + w*56*128}')

YL = 0; ML = 8 * KB; WL = 16 * KB
def vtiles(w): return (6 * w, 6, 6) if w < 2 else (12 + 8 * (w - 2), 8, 7)
def vwreg(w, ti, ks):
    u = ti * 7 + ks
    return 256 + 8 * u if u < 32 else (176 if w < 2 else 120) + 8 * (u - 32)

VOK = 175
def vo_wait(a, L, ABORT, t):
    a(f's_branch {L("voc")}')
    a.label(L('vow'))
    a(f'buffer_load_dword v{VOK}, off, {SRD}, s35 sc1')
    a('s_waitcnt vmcnt(0)')
    a.label(L('voc'))
    a(f'v_readfirstlane_b32 s22, v{VOK}')
    a('s_cmp_eq_u32 s22, 56')
    a(f's_cbranch_scc1 {L("vod")}')
    a('s_sleep 1')
    spin(a, L('vow'), ABORT)
    a.label(L('vod'))
    a('s_add_u32 s35, s35, 2048')
    a('s_add_u32 s38, s19, 8')
    a('s_and_b32 s38, s38, -8')
    a('s_cmp_eq_u32 s19, 0')
    a('s_cselect_b32 s38, 4, s38')

def gen_value(a, w, st, tag):
    L = lambda n: f'{tag}_va{w}_{n}'
    ABORT = f'{tag}_abort'
    fin = w < 2
    t0, ntile, nreg = vtiles(w)
    M = 8; ACC = 36
    YA = 60 if fin else 112
    CK = 63
    def S(ti, ks, b=None):
        if NOT2: return 's_nop 2'
        return f'v_smfmac_f32_16x16x64_bf16 v[{ACC+4*ti}:{ACC+4*ti+3}], v[{M+4*ks}:{M+4*ks+3}], {b or ureg(vwreg(w, ti, ks), 8)}, v3'
    def fold(p):
        A_ = ACC + 8 * p; B_ = A_ + 4
        o = [f'v_permlane32_swap_b32 v{A_+r}, v{B_+r}' for r in range(4)]
        o += [f'v_add_f32 v{A_+r}, v{A_+r}, v{B_+r}' for r in range(4)]
        o += [f'v_cvt_pk_bf16_f32 v{B_}, v{A_}, v{A_+1}', f'v_cvt_pk_bf16_f32 v{B_+1}, v{A_+2}, v{A_+3}', f'ds_write_b64 v{YA+p}, v[{B_}:{B_+1}]']
        return o
    def run(seq):
        last = {}
        for i, (ti, m, pre) in enumerate(seq): last[ti] = i
        pend = []; delay = 0
        for i, (ti, m, pre) in enumerate(seq):
            for x in pre: a(x)
            a(m)
            if delay: delay -= 1
            elif pend:
                a(pend.pop(0))
                if len(pend) > 12: a(pend.pop(0))
            p = ti // 2
            if i == max(last[2 * p], last[2 * p + 1]):
                pend += fold(p)
                if not delay: delay = 3
        for x in pend: a(x)
    if ALIGN: a.raw(f'.p2align {ALIGN}\n' + '  s_nop 0\n' * APAD)
    a.label(L('loop'))
    step_bases(a)
    if not fin:
        for r in range(ACC, ACC + 4 * ntile): a(f'v_mov_b32 v{r}, 0')
    a('s_mov_b32 s30, 0')
    if fin:
        YT = 64; VOR = 80; LO = 156; HI = 160; PL = 164
        pr = lambda c: 8 + 4 * c if c < 7 else 144 + 4 * (c - 7)
        if SYNC:
            a('s_cmp_lg_u32 s19, s38')
            a(f's_cbranch_scc1 {L("vok")}')
            vo_wait(a, L, ABORT, PL)
            a.label(L('vok'))
        if T2SRV:
            a(f's_cmp_eq_u32 s19, {NSTEPS-1}')
            a(f's_cbranch_scc1 {tag}_done')
        def vol(lo, hi):
            for h in range(lo, hi):
                if h % 2 == 0: a(f's_add_u32 s22, s25, {h*1792}')
                a(f'buffer_load_dwordx4 v[{VOR+4*h}:{VOR+4*h+3}], v6, {SRD}, s22 offen offset:{(h & 1)*1792} sc1')
        vol(0, VO_PRE0)
        if not SLOW_FIRST: a('s_barrier')
        stamp(a, 0)
        if VO_SLEEP: a(f's_sleep {VO_SLEEP}')
        vol(VO_PRE0, VO_PRE)
        if SYNC: a(f'buffer_load_dword v{VOK}, off, {SRD}, s35 sc1')
        a('s_barrier')
        stamp(a, 1)
        for ks in range(7): a(f'ds_read_b128 v[{M+4*ks}:{M+4*ks+3}], v2 offset:{ML + ks*1024}')
        vol(VO_PRE, 16)
        a('s_waitcnt lgkmcnt(0)')
        if T2DF: a(f's_sleep {T2DF}')
        run([(ti, S(ti, ks), []) for ti in range(ntile) for ks in range(7)])
        stamp(a, 2)
        a(f's_cmp_eq_u32 s19, {NSTEPS-1}')
        a(f's_cbranch_scc1 {L("last")}')
        a(f's_add_u32 s22, s20, {PX}')
        a(f's_add_u32 s34, s20, {PX + 4096}')
        a(f's_add_u32 s36, s20, {PM}')
        a('s_mov_b32 s37, 0')
        for r in range(4): a(f'v_mov_b32 v{LO+r}, 0')
        if STAMPS:
            a('s_waitcnt vmcnt(0)')
            stamp(a, 7)
        if VSM and B2_POS < 0:
            a('s_waitcnt lgkmcnt(0)')
            for r in range(ACC, ACC + 4 * ntile): a(f'v_mov_b32 v{r}, 0')
            a('s_barrier')
            for k in range(4): a(f'ds_read_b128 v[{YT+4*k}:{YT+4*k+3}], v2 offset:{YL + w*4096 + k*1024}')
            stamp(a, 3)
        if FIN_SLEEP: a(f's_sleep {FIN_SLEEP}')
        flagpoll(a, 4, 's20', PL, L('fw'), ABORT, PD_V, PG_V)
        stamp(a, 4)
        a('s_waitcnt lgkmcnt(0)')
        if VSM:
            pl = PLAIN_P and st == ''
            def pld(c, sc):
                so = ('s22', 's34', 's36')[c // 4]
                a(f'buffer_load_dwordx4 v[{pr(c)}:{pr(c)+3}], v2, {SRD}, {so} offen offset:{(c & 3)*1024}' + (' sc1' if sc else ''))
            def psm(c):
                B_ = VOR + 8 * c if c < 8 else YT + 8 * (c - 8)
                a(f'v_smfmac_f32_16x16x64_bf16 v[{LO}:{LO+3}], v[{pr(c)}:{pr(c)+3}], v[{B_}:{B_+7}], v3')
            zr = list(range(ACC, ACC + 4 * ntile)) if B2_POS >= 0 else []
            for c in range(NPP):
                pld(c, not pl)
                for _ in range(VZ):
                    if zr: a(f'v_mov_b32 v{zr.pop(0)}, 0')
            issued = NPP; nst = 0; q = list(range(NPP))
            if VST: stamp(a, 7)
            for c in range(10):
                if c == B2_POS:
                    a('s_barrier')
                    for k in range(4): a(f'ds_read_b128 v[{YT+4*k}:{YT+4*k+3}], v2 offset:{YL + w*4096 + k*1024}')
                    stamp(a, 3)
                if c == 0 and ECP:
                    a.label(L('pl')); cke = Checker(a, CK)
                a(f's_waitcnt vmcnt({len(q) - 1 - q.index(c)})' + (' lgkmcnt(0)' if c == 8 else ''))
                if c == 0: stamp(a, 5)
                if VST and c in (3, 6, 9): stamp(a, c // 3)
                psm(c)
                if c < ECP:
                    cke.add(pr(c)); cke.drain()
                    if c == ECP - 1: a(f'v_cmp_eq_u32 vcc, -1, v{CK}')
                if ECP and c == F2_POS: a(f's_cbranch_vccnz {L("re")}')
                if c == F2_POS and (not F2ONE or w == F2ONE - 1):
                    q.append('f')
                    exec_lo(a, R2)
                    a(f'buffer_store_dword v2, v7, {SRD}, s21 offen {st}')
                    a('s_mov_b64 exec, -1')
                    nst = 1
                if issued < 10:
                    pld(issued, not pl); q.append(issued); issued += 1
                for _ in range(2):
                    if zr: a(f'v_mov_b32 v{zr.pop(0)}, 0')
            a.label(L('ep'))
            while zr: a(f'v_mov_b32 v{zr.pop(0)}, 0')
            a(f'v_permlane32_swap_b32 v{LO}, v{LO+2}')
            a(f'v_permlane32_swap_b32 v{LO+1}, v{LO+3}')
            a(f'v_add_f32 v{HI}, v{LO}, v{LO+2}')
            a(f'v_add_f32 v{HI+1}, v{LO+1}, v{LO+3}')
            a(f'v_cmp_u_f32 vcc, v{HI}, v{HI+1}')
            a(f'v_mov_b32_dpp v{HI+2}, v{HI} row_ror:8 {D}')
            a(f'v_mov_b32_dpp v{HI}, v{HI+1} row_ror:8 row_mask:0xf bank_mask:0xc')
            a(f's_cbranch_vccnz {L("rp")}')
            a(f'v_mov_b32_dpp v{HI+1}, v{HI+2} quad_perm:[0,1,2,3] row_mask:0xf bank_mask:0x3')
            a(f'v_cvt_pk_bf16_f32 v{HI}, v{HI}, v{HI+1}')
            a.label(L('pc'))
            if w == 1: a('s_mov_b64 exec, s[26:27]')
            a(f'buffer_store_dword v{HI}, v1, {SRD}, s21 offen {st}')
        else:
            pl = PLAIN_P and st == ''
            if not pl: a.label(L('lp'))
            for c in range(10):
                so = ('s22', 's34', 's36')[c // 4]
                a(f'buffer_load_dwordx4 v[{pr(c)}:{pr(c)+3}], v5, {SRD}, {so} offen offset:{(c & 3)*1024}' + ('' if pl else ' sc1'))
                for r in range(ACC + 4 * c, min(ACC + 4 * c + 4, ACC + 4 * ntile)): a(f'v_mov_b32 v{r}, 0')
            if pl: a.label(L('lp'))
            ck = Checker(a, CK)
            nst = 0
            for c in range(10):
                if c == B2_POS:
                    a('s_cmp_lg_u32 s37, 0')
                    a(f's_cbranch_scc1 {L("nb2")}')
                    a('s_waitcnt lgkmcnt(0)')
                    a('s_barrier')
                    for k in range(4): a(f'ds_read_b128 v[{YT+4*k}:{YT+4*k+3}], v2 offset:{YL + w*4096 + k*1024}')
                    a.label(L('nb2'))
                    stamp(a, 3)
                a(f's_waitcnt vmcnt({9-c+nst})' + (' lgkmcnt(0)' if c == 8 else ''))
                if c < EC_P:
                    a.label(L(f'e{c}'))
                    r = pr(c)
                    a(f'v_max3_u32 v{PL}, v{r}, v{r+1}, v{r+2}')
                    a(f'v_max_u32 v{PL}, v{PL}, v{r+3}')
                    a(f'v_cmp_eq_u32 vcc, -1, v{PL}')
                    a(f's_cbranch_vccnz {L(f"er{c}")}')
                if c == 0: stamp(a, 5)
                if c == F2_POS:
                    exec_lo(a, R2)
                    a(f'buffer_store_dword v2, v7, {SRD}, s21 offen {st}')
                    a('s_mov_b64 exec, -1')
                    nst = 1
                if c >= EC_P: ck.add(pr(c))
                B_ = f'v[{pr(c)}:{pr(c)+3}]'
                for hi, acc in ((1, HI), (0, LO)):
                    A_ = VOR + 4 * (2 * c + hi) if c < 8 else YT + 4 * (2 * (c - 8) + hi)
                    a(f'v_mfma_f32_16x16x32_bf16 v[{acc}:{acc+3}], v[{A_}:{A_+3}], {B_}, ' + ('0' if c == 0 else f'v[{acc}:{acc+3}]'))
                    ck.emit()
            ck.drain()
            a(f'v_cmp_eq_u32 vcc, -1, v{CK}')
            for r in range(4): a(f'v_add_f32_dpp v{LO+r}, v{HI+r}, v{LO+r} row_ror:8 {D}')
            a(f's_cbranch_vccnz {L("rp")}')
            a(f'v_cvt_pk_bf16_f32 v{HI}, v{LO}, v{LO+1}')
            a(f'v_cvt_pk_bf16_f32 v{HI+1}, v{LO+2}, v{LO+3}')
            a(f'v_min_u32 v{HI}, -2, v{HI}')
            a(f'v_min_u32 v{HI+1}, -2, v{HI+1}')
            a('s_mov_b64 exec, s[26:27]')
            a(f'buffer_store_dwordx2 v[{HI}:{HI+1}], v1, {SRD}, s21 offen {st}')
        if T2SRV:
            a(f's_cmp_lg_u32 s19, {NSTEPS-2}')
            a(f's_cbranch_scc1 {L("nl")}')
            a(f's_mov_b32 s22, {MEMG_OFF + (NSTEPS-1)*7*KB}')
            if VSM: a(f'buffer_store_dword v{HI}, v1, {SRD}, s22 offen sc1')
            else: a(f'buffer_store_dwordx2 v[{HI}:{HI+1}], v1, {SRD}, s22 offen sc1')
            a('s_mov_b64 exec, -1')
            a(f's_branch {tag}_done')
            a.label(L('nl'))
        a('s_mov_b64 exec, -1')
        if SLOW_FIRST: a('s_barrier')
        stamp(a, 6)
        if not NOBULK: a(f's_add_u32 s25, s25, {GSH_B}')
        stamp_flush(a, 4 + w, 8, L('sf'), PL)
    else:
        STG = [76, 84, 92]; TP = 100
        TPS = [100, 104, 108, 4]
        t2st = [[f'buffer_store_dwordx4 v[{TPS[k]}:{TPS[k]+3}], v2, {SRD}, s24 offen offset:{k*1024} sc1'] for k in range(4)]
        t2st[-1].append(f's_add_u32 s24, s24, {8*KB}')
        t2fl = ['s_mov_b64 exec, 1', f'buffer_store_dword v117, v2, {SRD}, s34 offen sc1', 's_mov_b64 exec, -1', 's_add_u32 s34, s34, 8']
        def emit(gs):
            for g_ in gs:
                for x in g_: a(x)
        myks = [0, 1, 2, 3] if w == 2 else [4, 5, 6]
        oth = [k for k in range(7) if k not in myks]
        def mload():
            for ks in myks:
                a(f'buffer_load_dwordx4 v[{M+4*ks}:{M+4*ks+3}], v2, {SRD}, {"s20" if ks < 4 else "s23"} offen offset:{(ks & 3) * 1024} sc1')
        if HLP_SLEEP: a(f's_sleep {HLP_SLEEP}')
        flagpoll(a, 119, 's20', 76, L('fp'), ABORT, PD_H, PG_H)
        stamp(a, 0)
        if VA_DELAY: a.nop(VA_DELAY)
        mload()
        if PUBLISH and PUB_EARLY == 1: emit([t2fl] + t2st)
        if not SLOW_FIRST: a('s_barrier')
        if PUBLISH and PUB_EARLY == 2: emit([t2fl] + t2st)
        if PUBLISH and PUB_EARLY:
            a('s_waitcnt vmcnt(5)')
            a(f's_branch {L("ld2")}')
        a.label(L('ld'))
        a('s_waitcnt vmcnt(0)')
        if PUBLISH and PUB_EARLY: a.label(L('ld2'))
        ck = Checker(a, 84)
        for ks in myks: ck.add(M + 4 * ks)
        ck.drain()
        a('v_cmp_eq_u32 vcc, -1, v84')
        for ks in myks: a(f'ds_write_b128 v2, v[{M+4*ks}:{M+4*ks+3}] offset:{ML + ks*1024}')
        a(f's_cbranch_vccnz {L("retry")}')
        a('s_waitcnt lgkmcnt(0)')
        a('s_barrier')
        stamp(a, 1)
        for ks in oth: a(f'ds_read_b128 v[{M+4*ks}:{M+4*ks+3}], v2 offset:{ML + ks*1024}')
        if w == 2: a(f'ds_read_b128 v[92:95], v0')
        if VAL_TOUCH:
            a(f'buffer_load_dword v99, v118, {SRD}, {"s20" if w == 2 else "s39"} offen sc1')
            a(f's_add_u32 s39, s39, {XSEG_B}')
        if SELF_POISON:
            for r in range(76, 80): a(f'v_mov_b32 v{r}, -1')
            a('s_add_u32 s22, s21, s38')
            if w == 3: a('s_mov_b64 exec, 0x1f')
            a(f'buffer_store_dwordx4 v[76:79], v2, {SRD}, s22 offen {st}')
            if w == 3: a('s_mov_b64 exec, -1')
        if PUBLISH and not PUB_EARLY and not SLOW_FIRST and not T2SRV: emit([t2fl] + t2st)
        a('s_waitcnt lgkmcnt(0)')
        mg = ['s_mov_b64 exec, s[26:27]', f'buffer_store_dwordx4 v[92:95], v2, {SRD}, s36 offen sc1', 's_mov_b64 exec, -1', f's_add_u32 s36, s36, {7*KB}']
        if w == 2 and PUBLISH:
            if SLOW_FIRST:
                a(f's_cmp_lg_u32 s19, {NSTEPS-1}')
                a(f's_cbranch_scc1 {L("nmg")}')
            emit([mg])
            if SLOW_FIRST: a.label(L('nmg'))
        if T2SRV:
            a(f's_cmp_eq_u32 s19, {NSTEPS-1}')
            a(f's_cbranch_scc1 {tag}_done')
        lu = [(7, ks) for ks in range(7)]
        ru = [(t_, ks) for t_ in (6, 0, 1, 2, 3, 4, 5) for ks in range(7)]
        def wr(j):
            t_, ks = lu[j]; b = STG[j % 3]; off = (t_ - 7) * TILE_B + ks * UNIT
            return [f'ds_read_b128 v[{b}:{b+3}], v1 offset:{off}', f'ds_read_b128 v[{b+4}:{b+7}], v1 offset:{off+1024}']
        seq = []
        for j, (t_, ks) in enumerate(lu):
            pre = (wr(0) + wr(1) if j == 0 else []) + (wr(j + 2) if j + 2 < len(lu) else [])
            for k in range(2):
                r_ = ru.pop(0); seq.append((r_[0], S(*r_), pre if k == 0 else []))
            b = STG[j % 3]
            seq.append((t_, S(t_, ks, f'v[{b}:{b+7}]'), [f's_waitcnt lgkmcnt({2 * min(2, len(lu) - 1 - j)})']))
        for r_ in ru: seq.append((r_[0], S(*r_), []))
        if T2DH: a(f's_sleep {T2DH}')
        run(seq)
        stamp(a, 2)
        a('s_waitcnt lgkmcnt(0)')
        a('s_barrier')
        for k in range(4):
            q = 2 * (w - 2) + (k >> 1); tp = k & 1
            if not T2SRV: a(f'ds_read_b128 v[{TPS[k]}:{TPS[k]+3}], v2 offset:{YL + tp*4096 + q*1024}')
        a(f's_cmp_eq_u32 s19, {NSTEPS-2 if T2SRV else NSTEPS-1}')
        a(f's_cbranch_scc1 {tag + "_done" if T2SRV else L("last")}')
        if SLOW_FIRST:
            if w == 2: a(f'ds_read_b128 v[92:95], v0')
            a('s_waitcnt vmcnt(0) lgkmcnt(0)')
            a('s_barrier')
            if PUBLISH: emit([t2fl] + t2st + ([mg] if w == 2 else []))
        else:
            a('s_waitcnt vmcnt(0) lgkmcnt(0)')
        stamp(a, 3)
        stamp_flush(a, 4 + w, 4, L('sf'), 76)
    a('s_add_u32 s19, s19, 1')
    a('s_mov_b32 s20, s21')
    a.flush()
    a(f's_branch {L("loop")}')
    if fin:
        a.label(L('last'))
        a('s_waitcnt lgkmcnt(0)')
        a('s_barrier')
        a(f's_branch {tag}_done')
        for c in range(EC_P):
            a.label(L(f'er{c}'))
            so = ('s22', 's34', 's36')[c // 4]
            a(f'buffer_load_dwordx4 v[{pr(c)}:{pr(c)+3}], v5, {SRD}, {so} offen offset:{(c & 3)*1024} sc1')
            a('s_waitcnt vmcnt(0)')
            a('s_add_u32 s31, s31, 0x1000000')
            spin(a, L(f'e{c}'), ABORT)
        if ECP:
            assert NPP == 10 and B2_POS == 0 and ECP <= F2_POS
            a.label(L('re'))
            for c in range(10): pld(c, True)
            a.nop(6)
            for r in range(4): a(f'v_mov_b32 v{LO+r}, 0')
            a('s_add_u32 s31, s31, 0x1000000')
            spin(a, L('pl'), ABORT)
        a.label(L('rp'))
        if VSM:
            a('s_cmp_eq_u32 s37, 0')
            a(f's_cbranch_scc1 {L("rv")}')
            a(f'v_mov_b32_dpp v{HI+1}, v{HI+2} quad_perm:[0,1,2,3] row_mask:0xf bank_mask:0x3')
            a(f'v_cvt_pk_bf16_f32 v{HI}, v{HI}, v{HI+1}')
            a(f'v_min_u32 v{HI}, -2, v{HI}')
            a(f's_branch {L("pc")}')
            a.label(L('rv'))
            for c in range(10): pld(c, True)
            a('s_waitcnt vmcnt(0)')
            ck2 = Checker(a, CK)
            for c in range(10): ck2.add(pr(c))
            ck2.drain()
            a(f'v_cmp_eq_u32 vcc, -1, v{CK}')
            a(f's_cbranch_vccz {L("rk")}')
            spin(a, L('rv'), ABORT)
            a.label(L('rk'))
            a('s_mov_b32 s37, 1')
            a('s_add_u32 s31, s31, 0x10000')
            for r in range(4): a(f'v_mov_b32 v{LO+r}, 0')
            for c in range(10): psm(c)
            a.flush()
            a(f's_branch {L("ep")}')
            return
        a.nop(8)
        if PLAIN_P and st == '':
            for c in range(10):
                so = ('s22', 's34', 's36')[c // 4]
                a(f'buffer_load_dwordx4 v[{pr(c)}:{pr(c)+3}], v5, {SRD}, {so} offen offset:{(c & 3)*1024} sc1')
        a('s_mov_b32 s37, 1')
        a('s_add_u32 s31, s31, 0x10000')
        spin(a, L('lp'), ABORT)
    else:
        a.label(L('retry'))
        a('s_waitcnt lgkmcnt(0)')
        mload()
        a('s_add_u32 s31, s31, 1')
        spin(a, L('ld'), ABORT)
        a.label(L('last'))
        a('s_waitcnt lgkmcnt(0)')
        emit(t2st)
        a('s_waitcnt vmcnt(0)')
        emit([t2fl, t2fl])
        a(f's_branch {tag}_done')

def init_value(a, w, p):
    fin = w < 2
    t0, ntile, nreg = vtiles(w)
    YA = 60 if fin else 112
    a(f's_mul_i32 s31, s17, {CUW_B}')
    a(f's_add_u32 s31, s31, {WF_B}')
    units = [((t0 + ti) * TILE_B + ks * UNIT, vwreg(w, ti, ks)) for ti in range(nreg) for ks in range(7)]
    if BDEP and BST2:
        BDEP(16 * t0 // 28, (16 * (t0 + BST2) - 1) // 28)
        load_units(a, units[:7 * BST2], 's31')
        BDEP(16 * (t0 + BST2) // 28, (16 * (t0 + nreg) - 1) // 28)
        load_units(a, units[7 * BST2:], 's31')
    else:
        if BDEP: BDEP(16 * t0 // 28, (16 * (t0 + nreg) - 1) // 28)
        load_units(a, units, 's31')
    if fin and BDEP: BDEP(16 * (vtiles(w + 2)[0] + 7) // 28, (16 * (vtiles(w + 2)[0] + 8) - 1) // 28)
    if fin:
        th = vtiles(w + 2)[0] + 7
        for f in range(14):
            if f % 4 == 0:
                a(f's_mov_b32 m0, {WL + 3*w*TILE_B + f*1024}')
                a(f's_add_u32 s22, s31, {th*TILE_B + f*1024}')
            a(f'buffer_load_dwordx4 v2, {SRD}, s22 offen offset:{(f & 3)*1024}' + (' sc1' if MERGE else '') + ' lds')
            if f % 16 == 15: a('s_waitcnt vmcnt(24)')
    a('v_mov_b32 v72, v116')
    a('v_mov_b32 v73, v117')
    a('v_lshrrev_b32 v65, 1, v72')
    a('v_and_b32 v66, 1, v72')
    for pp in range(ntile // 2):
        a(f'v_add_u32 v67, {t0 + 2*pp}, v65')
        a('v_lshl_add_u32 v67, v67, 4, v73')
        a('v_mul_u32_u24 v68, 2341, v67')
        a('v_lshrrev_b32 v68, 16, v68')
        a('v_mul_u32_u24 v69, 28, v68')
        a('v_sub_u32 v69, v67, v69')
        a('v_lshrrev_b32 v70, 4, v69')
        a('v_and_b32 v69, 15, v69')
        if VSM:
            a('v_and_b32 v71, 1, v69')
            a('v_lshrrev_b32 v69, 1, v69')
            a('v_lshl_add_u32 v69, v71, 3, v69')
        a('v_lshlrev_b32 v71, 12, v70')
        a('v_lshl_add_u32 v71, v68, 8, v71')
        a('v_lshl_add_u32 v71, v69, 4, v71')
        a(f'v_lshl_add_u32 v{YA+pp}, v66, 3, v71')
    if fin:
        a('v_and_b32 v0, 31, v1')
        a('v_lshlrev_b32 v0, 2, v0')
        a(f'v_add_u32 v0, {F2}, v0')
        a('v_lshlrev_b32 v4, 2, v73')
        if R1 == 32:
            a('s_lshl_b32 s22, s17, 1')
            a(f's_add_u32 s22, s22, {w}')
        else: a(f's_and_b32 s22, s17, {R1-1}')
        a('s_lshl_b32 s22, s22, 7')
        a(f's_add_u32 s22, s22, {F1}')
        a(f'v_add_u32 v4, s22, v4')
        a('v_and_b32 v64, 7, v73')
        a('v_lshlrev_b32 v5, 4, v64')
        a('v_lshl_add_u32 v5, v72, 7, v5')
        a('v_lshrrev_b32 v65, 3, v73')
        a('v_lshl_add_u32 v5, v65, 9, v5')
        a('s_lshl_b32 s22, s17, 3')
        a(f's_add_u32 s22, s22, {F2 + 4*w}')
        a('v_lshl_add_u32 v7, v2, 3, s22')
        a(f'v_add_u32 v65, {16*w}, v73')
        a('v_min_u32 v65, 27, v65')
        a('v_mad_u32_u24 v65, v72, 28, v65')
        a('v_lshlrev_b32 v6, 4, v65')
        a('s_lshr_b32 s22, s17, 1')
        a('s_mul_i32 s22, s22, 7')
        a('s_and_b32 s34, s17, 1')
        a('s_lshl_b32 s35, s34, 2')
        a('v_add_u32 v70, s35, v72')
        a('v_mov_b32 v71, s34')
        a(f'v_mov_b32 v69, {w}')
        a('v_cmp_eq_u32 vcc, 3, v72')
        a('v_cndmask_b32 v70, v70, v72, vcc')
        a('v_cndmask_b32 v69, v69, v71, vcc')
        a('v_add_u32 v70, s22, v70')
        a('v_lshrrev_b32 v68, 1, v70')
        a('v_lshlrev_b32 v68, 8, v68')
        a('v_lshl_add_u32 v68, v69, 7, v68')
        a('v_and_b32 v69, 1, v70')
        a('v_lshl_add_u32 v68, v69, 3, v68')
        a('v_lshl_add_u32 v1, v64, 4, v68')
        a('v_cmp_gt_u32 s[26:27], 8, v73')
        if w == 1:
            a('v_cmp_gt_u32 vcc, 3, v72')
            a('s_and_b64 s[26:27], s[26:27], vcc')
        if VSM:
            a('v_lshrrev_b32 v65, 3, v73')
            a('v_lshl_add_u32 v66, v64, 1, v65')
            a(f'v_add_u32 v66, {16*w}, v66')
            a('v_min_u32 v66, 27, v66')
            a('v_mad_u32_u24 v66, v72, 28, v66')
            a('v_lshlrev_b32 v6, 4, v66')
            a('s_mul_i32 s22, s17, 28')
            a(f's_add_u32 s22, s22, {16*w}')
            a('v_lshl_add_u32 v70, v64, 1, s22')
            a('v_lshrrev_b32 v68, 4, v70')
            a('v_lshlrev_b32 v68, 8, v68')
            a('v_bfe_u32 v69, v70, 1, 1')
            a('v_lshl_add_u32 v68, v69, 7, v68')
            a('v_bfe_u32 v69, v70, 2, 2')
            a('v_lshl_add_u32 v68, v69, 2, v68')
            a('v_and_b32 v69, 1, v72')
            a('v_lshl_add_u32 v65, v69, 2, v65')
            a('v_lshrrev_b32 v69, 1, v72')
            a('v_lshl_add_u32 v65, v69, 1, v65')
            a('v_lshl_add_u32 v1, v65, 4, v68')
            a('v_cmp_gt_u32 s[26:27], 6, v64')
            for r in range(156, 160): a(f'v_mov_b32 v{r}, 0')
            for k in range(4): a(f'ds_write_b128 v2, v[156:159] offset:{YL + w*4096 + k*1024}')
        a(f's_mul_i32 s22, s17, {64*GSH_B}')
        a(f's_add_u32 s25, s22, {VO_OFF}')
        a('s_lshl_b32 s35, s17, 7')
        a(f's_add_u32 s35, s35, {CNT_OFF + VOC - 2048}')
        a('s_mov_b32 s38, 0')
        a(f'v_mov_b32 v{VOK}, 0')
    else:
        a(f's_mul_i32 s24, s17, {65*8*KB}')
        a(f's_add_u32 s24, s24, {T2_OFF + (w-2)*4096 + (8*KB if SLOW_FIRST else 0)}')
        a('s_mul_i32 s34, s17, 640')
        a(f's_add_u32 s34, s34, {CNT_OFF + T2F + 4*(w-2) + (8 if SLOW_FIRST else 0)}')
        a('s_mul_i32 s36, s17, 448')
        a('v_add_u32 v0, s36, v2')
        a(f'v_add_u32 v0, {ML}, v0')
        a(f's_add_u32 s36, s36, {MEMG_OFF}')
        a('v_cmp_gt_u32 s[26:27], 28, v1')
        a('v_and_b32 v119, 31, v1')
        a('v_lshlrev_b32 v119, 2, v119')
        if F2ONE: a(f'v_and_b32 v119, 0x78, v119\nv_or_b32 v119, {4*(F2ONE-1)}, v119')
        a('s_add_u32 s22, s17, 16')
        a(f's_and_b32 s22, s22, {R2-1}')
        a('s_lshl_b32 s22, s22, 7')
        a(f's_add_u32 s22, s22, {F2}')
        a(f'v_add_u32 v119, s22, v119')
        nl = 13 if w == 2 else 14
        a(f'v_min_u32 v118, {nl-1}, v1')
        a(f's_mul_i32 s22, s17, {nl}')
        a('v_add_u32 v118, s22, v118')
        a('v_lshlrev_b32 v118, 7, v118')
        a(f'v_add_u32 v118, {2*EXCH_B if w == 2 else 2*XSEG_B}, v118')
        a(f's_mov_b32 s39, {XF_OFF}')
        a(f'v_add_u32 v1, {WL + 3*(w-2)*TILE_B}, v2')
        a('v_mov_b32 v117, 1')
        a('s_mul_i32 s38, s17, 1104')
        a(f's_add_u32 s38, s38, {EXCH_B + (w-2)*1024}')

def dbg_wait(a, P, t, abort):
    a('s_mov_b32 s30, 0')
    a.label(P)
    a(f'buffer_load_dword v{t+2}, v{t}, {DBG}, 0 offen sc1')
    a('s_waitcnt vmcnt(0)')
    a(f'v_cmp_ne_u32 vcc, v{t+2}, v{t+1}')
    a(f's_cbranch_vccz {P}_ok')
    a('s_sleep 4')
    a('s_add_u32 s30, s30, 1')
    a(f's_cmp_lt_u32 s30, {SLOW_LIMIT}')
    a(f's_cbranch_scc1 {P}')
    a(f's_branch {abort}')
    a.label(P + '_ok')

def dep_regs(a, cg_s, t, lane='v1'):
    a(f's_and_b32 s20, {cg_s}, 15')
    a('s_lshr_b32 s21, s20, 1')
    a('s_mul_i32 s21, s21, 56')
    a('s_add_u32 s22, s21, 55')
    a('s_lshr_b32 s21, s21, 6')
    a('s_lshr_b32 s22, s22, 6')
    a('s_add_u32 s21, s21, 24')
    a('s_add_u32 s22, s22, 24')
    a('s_add_u32 s20, s20, 8')
    a(f's_cmp_lt_u32 {cg_s}, 16')
    a('s_cselect_b32 s21, s20, s21')
    a('s_cselect_b32 s22, s20, s22')
    a(f's_cselect_b32 s20, {A_TGT}, {B_TGT}')
    a('s_lshl_b32 s21, s21, 2')
    a('s_lshl_b32 s22, s22, 2')
    a(f'v_mov_b32 v{t}, 124')
    a(f'v_mov_b32 v{t+1}, 128')
    a(f'v_writelane_b32 v{t}, s21, 0')
    a(f'v_writelane_b32 v{t}, s22, 1')
    a(f'v_writelane_b32 v{t+1}, s20, 0')
    a(f'v_writelane_b32 v{t+1}, s20, 1')

def xprep_loop(a, P):
    import prep
    a.label(f'{P}_l')
    a('s_waitcnt vmcnt(0) lgkmcnt(0)')
    a('v_mov_b32 v4, 1')
    a('v_mov_b32 v5, 20')
    wg_atomic(a, f'{P}_el', 's3')
    a('s_cmp_ge_u32 s3, 32')
    a(f's_cbranch_scc1 {P}_d')
    prep.xprep_item(a, P, 's3', st='sc1', signal=DBG)
    a(f's_branch {P}_l')
    a.label(f'{P}_d')

def wg_atomic(a, P, dst):
    a('v_mov_b32 v6, 160000')
    a('s_barrier')
    a('s_cmp_lg_u32 s16, 0')
    a(f's_cbranch_scc1 {P}1')
    a('s_mov_b64 exec, 1')
    a(f'buffer_atomic_add v4, v5, {DBG}, 0 offen sc0')
    a('s_waitcnt vmcnt(0)')
    a('ds_write_b32 v6, v4')
    a('s_waitcnt lgkmcnt(0)')
    a('s_mov_b64 exec, -1')
    a.label(f'{P}1')
    a('s_barrier')
    a('ds_read_b32 v4, v6')
    a('s_waitcnt lgkmcnt(0)')
    a(f'v_readfirstlane_b32 {dst}, v4')

def staff_check(a, okl, mode):
    a('s_mov_b32 s30, 0')
    a('v_mov_b32 v36, 0')
    a.label('ch_chk')
    a(f'buffer_load_dword v37, v36, {DBG}, 0 offen sc1')
    a('s_waitcnt vmcnt(0)')
    a('v_readfirstlane_b32 s22, v37')
    a('s_and_b32 s22, s22, 0xffff')
    a('s_cmp_ge_u32 s22, 32')
    a('s_cbranch_scc1 ch_go_end')
    a('s_sleep 16')
    a('s_add_u32 s30, s30, 1')
    a('s_cmp_lt_u32 s30, 64')
    a('s_cbranch_scc1 ch_chk')
    a.label('ch_go_end')
    a('v_mov_b32 v6, 160016')
    a('v_mov_b32 v4, s22')
    a('s_cmp_lg_u32 s16, 0')
    a('s_cbranch_scc1 ch_dec')
    a('ds_write_b32 v6, v4')
    a('s_waitcnt lgkmcnt(0)')
    a.label('ch_dec')
    a('s_barrier')
    a('ds_read_b32 v4, v6')
    a('s_waitcnt lgkmcnt(0)')
    a('v_readfirstlane_b32 s22, v4')
    a('s_cmp_ge_u32 s22, 32')
    a(f's_cbranch_scc1 {okl}')
    a('v_mov_b32 v4, 0x10001')
    a(f's_mov_b32 s18, {mode}')
    a('s_branch ch_take')

def worker_s4d(a):
    import s4d
    s4d.s4d_setup(a)
    a.label('wk_loop')
    a('v_mov_b32 v4, 1')
    a('v_mov_b32 v5, 4')
    wg_atomic(a, 'wk_el', 's3')
    a('v_and_b32 v4, 15, v1')
    a('s_cmp_ge_u32 s3, 112')
    a('s_cbranch_scc1 wk_done')
    s4d.s4d_item(a, 'wk', 's3')
    a('s_branch wk_loop')
    a.label('wk_done')

def poll_eq(a, P, srd, soff, target, sleep=4):
    a('v_mov_b32 v8, 0')
    a('s_mov_b32 s30, 0')
    a.label(P)
    a(f'buffer_load_dword v9, v8, {srd}, {soff} offen sc1')
    a('s_waitcnt vmcnt(0)')
    a(f'v_cmp_ne_u32 vcc, {target}, v9')
    a(f's_cbranch_vccz {P}_ok')
    a(f's_sleep {sleep}')
    a('s_add_u32 s30, s30, 1')
    a(f's_cmp_lt_u32 s30, {SLOW_LIMIT}')
    a(f's_cbranch_scc1 {P}')
    a('s_branch cA_abort')
    a.label(P + '_ok')
def flag_wait(a, P):
    a('s_cmp_lg_u32 s97, 0')
    a(f's_cbranch_scc1 {P}_sk')
    a('s_movk_i32 s20, 128')
    poll_eq(a, P, DBG, 's20', 1)
    a('s_mov_b32 s97, 1')
    a.label(P + '_sk')
def ac_wait(a, P):
    a('s_lshl_b32 s20, s17, 7')
    a(f's_add_u32 s20, s20, {CNT_OFF + AC}')
    poll_eq(a, P, SRD, 's20', 7, sleep=6)

def worker_all(a):
    import s4d, gemm, tok, prep
    JS = DBG if MERGE else SRD
    JO = 64 if MERGE else CNT_OFF + JOBC
    NA = 112 if MERGE == 1 else 0
    NJ = 1104 + NA
    tok.PEEK = JS
    a('s_load_dwordx2 s[36:37], s[0:1], 112')
    a('s_waitcnt lgkmcnt(0)')
    a(f's_mov_b32 s92, s36\ns_and_b32 s93, s37, 0xffff\ns_mov_b32 s94, {2048*896*2}\ns_mov_b32 s95, 0x20000')
    def ask():
        lb = a.newlabel('ask')
        a('s_cmp_lg_u32 s16, 0')
        a(f's_cbranch_scc1 {lb}')
        a('v_mov_b32 v250, 1')
        a(f'v_mov_b32 v251, {JO}')
        a('s_mov_b64 exec, 1')
        a(f'buffer_atomic_add v250, v251, {JS}, 0 offen sc0')
        a('s_mov_b64 exec, -1')
        a.label(lb)
    a('s_mov_b32 s96, 0')
    if MERGE:
        a('s_cmp_lg_u32 s101, -1')
        a('s_mov_b32 s3, s101')
        a('s_mov_b32 s101, -1')
        a('s_cbranch_scc1 wk_have')
    ask()
    a('s_branch wk_next')
    a.label('wk_loop')
    a('s_waitcnt vmcnt(0) lgkmcnt(0)')
    a('s_cmp_eq_u32 s96, 1')
    a('s_cbranch_scc1 wk_ask')
    a('s_mov_b32 s96, 1')
    staff_check(a, 'wk_ask', 0)
    a.label('wk_ask')
    a('v_readfirstlane_b32 s22, v250')
    a(f's_cmp_ge_u32 s22, {NJ}')
    a('s_cbranch_scc1 wk_next')
    ask()
    a.label('wk_next')
    evlog(a, 9005)
    a('v_mov_b32 v6, 160000')
    a('s_waitcnt vmcnt(0)')
    a('s_barrier')
    a('s_cmp_lg_u32 s16, 0')
    a('s_cbranch_scc1 wk_n1')
    a('s_mov_b64 exec, 1')
    a('ds_write_b32 v6, v250')
    a('s_mov_b64 exec, -1')
    a('s_waitcnt lgkmcnt(0)')
    a.label('wk_n1')
    a('s_barrier')
    a('ds_read_b32 v4, v6')
    a('s_waitcnt lgkmcnt(0)')
    a('v_readfirstlane_b32 s3, v4')
    a.label('wk_have')
    evlog(a, 's3')
    a(f's_cmp_ge_u32 s3, {NJ}')
    a('s_cbranch_scc1 wk_done')
    a('v_mov_b32 v250, 0')
    a(f'v_mov_b32 v251, {JO}')
    a('v_and_b32 v1, 63, v0')
    a('v_lshlrev_b32 v2, 4, v1')
    a('v_lshrrev_b32 v3, 4, v1')
    a('v_and_b32 v4, 15, v1')
    if MERGE == 3: flag_wait(a, 'wk_fw')
    if MERGE == 1:
        a('s_cmp_ge_u32 s3, 112')
        a('s_cbranch_scc1 wk_np')
        prep.prep_item(a, 'wpa', 's3', st='sc1', mode='A')
        flag_wait(a, 'wk_fa')
        a('s_waitcnt vmcnt(0)')
        a('s_barrier')
        a('v_mov_b32 v250, 0')
        a('s_cmp_lg_u32 s16, 0')
        a('s_cbranch_scc1 wk_loop')
        a('s_lshl_b32 s20, s17, 7')
        a(f's_add_u32 s20, s20, {CNT_OFF + AC}')
        a('v_mov_b32 v5, 1')
        a('v_mov_b32 v6, 0')
        a('s_mov_b64 exec, 1')
        a(f'buffer_atomic_add v5, v6, {SRD}, s20 offen')
        a('s_mov_b64 exec, -1')
        a('s_branch wk_loop')
        a.label('wk_np')
        a('s_sub_u32 s3, s3, 112')
        flag_wait(a, 'wk_fw')
    a('s_cmp_ge_u32 s3, 592')
    a('s_cbranch_scc1 wk_tok')
    a('s_cmp_ge_u32 s3, 480')
    a('s_cbranch_scc1 wk_s4d')
    a('s_cmp_ge_u32 s3, 256')
    a('s_cbranch_scc1 wk_full')
    a('s_cmp_ge_u32 s3, 224')
    a('s_cbranch_scc1 wk_srv')
    a('s_cmp_ge_u32 s3, 112')
    a('s_cselect_b32 s18, 1, 0')
    a('s_cselect_b32 s20, 112, 0')
    a('s_sub_u32 s20, s3, s20')
    a('s_and_b32 s17, s20, 15')
    a('s_add_u32 s17, s17, 16')
    a('s_lshr_b32 s34, s20, 4')
    a('s_lshl_b32 s34, s34, 1')
    a('s_add_u32 s35, s34, 2')
    if RB1_DELAY:
        a('s_cmp_eq_u32 s18, 0')
        a('s_cbranch_scc1 wk_gemm')
        for _ in range(RB1_DELAY): a('s_sleep 127')
    a('s_branch wk_gemm')
    a.label('wk_full')
    a('s_sub_u32 s20, s3, 224')
    a('s_and_b32 s17, s20, 15')
    a('s_lshr_b32 s18, s20, 4')
    a('s_cmp_lt_u32 s18, 8')
    a('s_cselect_b32 s21, 16, 0')
    a('s_add_u32 s17, s17, s21')
    a('s_and_b32 s18, s18, 7')
    a('s_mov_b32 s34, 0\ns_mov_b32 s35, 14')
    a.label('wk_gemm')
    if MERGE == 1:
        a('s_cmp_ge_u32 s17, 16')
        a('s_cbranch_scc1 wk_g2')
        ac_wait(a, 'wk_aw')
        a.label('wk_g2')
        evlog(a, 9006)
    gemm.gemm_body(a, 'wg', 's18', 's17', st='sc1', signal=True, ld='sc1' if MERGE else '')
    a('s_branch wk_loop')
    a.label('wk_srv')
    import t2srv
    a('s_and_b32 s18, s3, 15')
    a('s_lshr_b32 s19, s3, 4')
    a('s_and_b32 s19, s19, 1')
    t2srv.t2srv_body(a, 'ws', 's18', 's19', 'cA_abort', ld='sc1' if MERGE else '')
    a('v_mov_b32 v250, 0')
    a('s_branch wk_loop')
    a.label('wk_s4d')
    a('s_sub_u32 s3, s3, 480')
    s4d.s4d_setup(a)
    s4d.s4d_item(a, 'wk', 's3')
    a('s_branch wk_loop')
    a.label('wk_tok')
    a('s_sub_u32 s3, s3, 592')
    a('s_cmp_ge_u32 s3, 512')
    a('s_cbranch_scc1 wk_done')
    a('s_lshr_b32 s17, s3, 3')
    a('s_and_b32 s18, s3, 3')
    a('s_bitcmp1_b32 s3, 2')
    a('s_cbranch_scc1 wk_toko')
    tok.tokp_body(a, 's17', 's18', ld='sc1', st='sc1', sync='wp', ldx='sc1' if MERGE else '')
    a('s_branch wk_loop')
    a.label('wk_toko')
    tok.toko_body(a, 's17', 's18', ld='sc1', sync='wo', OUT='s[92:95]')
    a('s_branch wk_loop')
    a.label('wp_abort')
    a.label('wo_abort')
    a('s_branch cA_abort')
    a.label('wk_done')

def role_tail(a, late=None):
    lane_consts(a)
    a('s_mov_b32 s19, 0')
    a(f's_mov_b32 s20, {EXCH_OFF}')
    if STAMPS: a('s_mov_b32 s63, s17')
    a('s_lshr_b32 s22, s17, 4')
    a('s_lshl_b32 s22, s22, 2')
    a('s_add_u32 s22, s22, s16')
    a('s_and_b32 s17, s17, 15')
    for p in range(8):
        a(f's_cmp_eq_u32 s22, {p}')
        a(f's_cbranch_scc1 ch_init{p}')
    a('s_branch ch_end')
    for p in range(8):
        a.label(f'ch_init{p}')
        if p < 4: init_score(a, p)
        else: init_value(a, p - 4, p)
        if late: late(p)
        a('s_mov_b32 s30, 0')
        a('v_mov_b32 v36, 0')
        a.label(f'ch_md{p}')
        a(f'buffer_load_dword v37, v36, {DBG}, 0 offen sc1')
        a('s_waitcnt vmcnt(0)')
        a('v_readfirstlane_b32 s22, v37')
        a('s_and_b32 s31, s22, 0xffff')
        a('s_cmp_ge_u32 s31, 32')
        a(f's_cbranch_scc1 ch_go{p}')
        a('s_sleep 2')
        a('s_add_u32 s30, s30, 1')
        a(f's_cmp_lt_u32 s30, {SLOW_LIMIT}')
        a(f's_cbranch_scc1 ch_md{p}')
        a('s_branch ch_end')
        a.label(f'ch_go{p}')
        evlog(a, 9003)
        if p in (0, 4): tmax(a, 5 + (p >> 2) * 8)
        if DIAG: a('s_memtime s[32:33]')
        a('s_mov_b32 s31, 0')
        if p in (4, 5):
            for r in range(36, 60): a(f'v_mov_b32 v{r}, 0')
        a('s_lshr_b32 s22, s22, 16')
        a('s_cmp_lg_u32 s22, 0')
        role = 'sc' if p < 4 else 'va'
        a(f's_cbranch_scc1 cB_{role}{p & 3}_loop')
        a(f's_branch cA_{role}{p & 3}_loop')
    for tag, st in (('cA', ''), ('cB', 'sc1')):
        for w in range(4): gen_score(a, w, st, tag)
        for w in range(4): gen_value(a, w, st, tag)
        tag_end(a, tag)

def tag_end(a, tag):
    a.label(f'{tag}_abort')
    a('v_mov_b32 v4, 0xdead')
    a('v_mov_b32 v5, 16')
    a(f'buffer_store_dword v4, v5, {DBG}, 0 offen')
    a('s_branch ch_end')
    a.label(f'{tag}_done')
    evlog(a, 9004)
    tmax(a, 6)
    if STAMPS and STAMP_CYC:
        a('s_cmp_lg_u32 s16, 0')
        a('s_cbranch_scc1 ch_end')
        a('s_lshl_b32 s22, s63, 10')
        a(f's_add_u32 s22, s22, {STAMP_OFF + 65536}')
        a('s_mov_b32 s30, 0')
        a('s_mov_b64 exec, 1')
        a.label(f'{tag}_cal')
        a('s_memtime s[40:41]')
        a('s_memrealtime s[42:43]')
        a('s_waitcnt lgkmcnt(0)')
        a('v_mov_b32 v4, s40')
        a('v_mov_b32 v5, s42')
        a(f'buffer_store_dwordx2 v[4:5], off, {SRD}, s22')
        a('s_add_u32 s22, s22, 8')
        a('s_add_u32 s30, s30, 1')
        a('s_cmp_lt_u32 s30, 128')
        a(f's_cbranch_scc1 {tag}_cal')
    if DIAG:
        a('s_memtime s[60:61]')
        a('s_waitcnt lgkmcnt(0)')
        a('s_sub_u32 s60, s60, s32')
        a('v_mov_b32 v4, s60')
        a('v_mov_b32 v5, 8')
        a(f'buffer_store_dword v4, v5, {DBG}, 0 offen')
        a('v_mov_b32 v4, s31')
        a('v_mov_b32 v5, 12')
        a('s_mov_b64 exec, 1')
        a(f'buffer_atomic_add v4, v5, {DBG}, 0 offen')
    a('s_branch ch_end')

def gen_chain_kernel(name='chain_kernel', worker=worker_s4d):
    a = Asm()
    a.raw(kernel_header(name))
    a('s_cmp_ge_u32 s2, 256')
    a('s_cbranch_scc1 ch_end')
    a('s_load_dwordx2 s[4:5], s[0:1], 120')
    a('s_load_dwordx2 s[6:7], s[0:1], 128')
    if CODE_PF: code_prefetch(a, name, 'ch_end', 130000, 60)
    a('s_getreg_b32 s3, hwreg(HW_REG_XCC_ID)')
    a('s_and_b32 s3, s3, 15')
    a('v_lshrrev_b32 v1, 6, v0')
    a('v_readfirstlane_b32 s16, v1')
    a('s_waitcnt lgkmcnt(0)')
    a('s_mov_b32 s8, s6\ns_and_b32 s9, s7, 0xffff\ns_mov_b32 s10, 0x10000000\ns_mov_b32 s11, 0x20000')
    a('s_mov_b32 s12, s4\ns_and_b32 s13, s5, 0xffff\ns_mov_b32 s14, 256\ns_mov_b32 s15, 0x20000')
    if EVLOG:
        a('s_lshl_b32 s100, s2, 2')
        a('s_add_u32 s100, s100, s16')
        a('s_lshl_b32 s100, s100, 8')
        a(f's_add_u32 s100, s100, {EV_OFF}')
    evlog(a, 9000)
    if MERGE:
        import prep
        a('s_mov_b32 s97, 0')
        a('s_mov_b32 s91, s3')
        a('v_and_b32 v1, 63, v0')
        a('v_lshlrev_b32 v2, 4, v1')
        a('v_lshrrev_b32 v3, 4, v1')
        a('v_and_b32 v4, 15, v1')
        a('s_cmp_lg_u32 s16, 0')
        a('s_cbranch_scc1 m_a1')
        a(f's_cmp_eq_u32 s3, {XCD_SEL}')
        a('s_cselect_b32 s20, 0, 64')
        a('v_accvgpr_write_b32 a255, 1')
        a('s_mov_b64 exec, 1')
        a(f'buffer_atomic_add a255, v2, {DBG}, s20 offen sc0')
        a('s_mov_b64 exec, -1')
        a.label('m_a1')
        prep.xall_pre(a, 's2')
        a('s_cmp_ge_u32 s2, 224')
        a('s_cbranch_scc1 m_w')
        prep.prep_item(a, 'mpb', 's2', st='sc1', mode='Bhalf' if MERGE == 1 else 'mix', defer=(MERGE == 3))
        a('s_branch m_e')
        a.label('m_w')
        a('s_waitcnt vmcnt(0)')
        a.label('m_e')
        prep.xall_post(a, 'mpx', 's2', 'sc1', wait=False)
        a('v_mov_b32 v6, 160000')
        a('s_waitcnt vmcnt(0) lgkmcnt(0)')
        a('s_barrier')
        a('s_cmp_lg_u32 s16, 0')
        a('s_cbranch_scc1 m_b1')
        a('v_mov_b32 v4, 1')
        a('v_mov_b32 v5, 96')
        a('v_accvgpr_read_b32 v7, a255')
        a('s_mov_b64 exec, 1')
        a(f'buffer_atomic_add v4, v5, {DBG}, 0 offen sc0')
        a('ds_write_b32 v6, v7')
        a('s_waitcnt lgkmcnt(0)')
        a('s_mov_b64 exec, -1')
        a.label('m_b1')
        a('s_barrier')
        a('ds_read_b32 v7, v6')
        a('s_cmp_lg_u32 s16, 0')
        a('s_cbranch_scc1 m_b2')
        a('s_waitcnt vmcnt(0)')
        a('v_readfirstlane_b32 s20, v4')
        a('s_cmp_lg_u32 s20, 255')
        a('s_cbranch_scc1 m_b2')
        a('v_mov_b32 v4, 1')
        a('v_mov_b32 v5, 128')
        a('s_mov_b64 exec, 1')
        a(f'buffer_store_dword v4, v5, {DBG}, 0 offen sc1')
        a('s_mov_b64 exec, -1')
        a.label('m_b2')
        a('s_waitcnt lgkmcnt(0)')
        a('v_readfirstlane_b32 s101, v7')
        evlog(a, 9001)
        a(f's_cmp_lg_u32 s91, {XCD_SEL}')
        a('s_cbranch_scc1 ch_worker')
        a('s_and_b32 s17, s101, 0xffff')
        a('s_mov_b32 s101, -1')
        a('s_cmp_lt_u32 s17, 32')
        a('s_cbranch_scc1 ch_role')
        a('s_branch ch_worker')
    else:
        a(f's_cmp_lg_u32 s3, {XCD_SEL}')
        a('s_cbranch_scc1 ch_worker')
    a('v_mov_b32 v4, 1')
    a('s_mov_b32 s18, 0')
    a.label('ch_take')
    a('v_mov_b32 v5, 0')
    wg_atomic(a, 'ch_el', 's17')
    a('s_and_b32 s17, s17, 0xffff')
    a('s_cmp_lt_u32 s17, 32')
    a('s_cbranch_scc1 ch_role')
    a('s_cmp_eq_u32 s18, 0')
    a('s_cbranch_scc1 ch_worker')
    a('s_branch ch_end')
    a.label('ch_role')
    if MERGE:
        flag_wait(a, 'ch_fw')
        if MERGE == 1:
            a('s_cmp_ge_u32 s17, 16')
            a('s_cbranch_scc1 ch_r2')
            ac_wait(a, 'ch_aw')
            a.label('ch_r2')
        evlog(a, 9002)
    role_tail(a)
    a.label('ch_worker')
    if worker: worker(a)
    if worker is not worker_all: staff_check(a, 'ch_end', 1)
    a.label('ch_end')
    a('s_endpgm')
    return a

if __name__ == '__main__':
    import sys
    for x in sys.argv[2:]:
        if x == 'stamps': STAMPS = True
        elif '=' in x:
            k, v = x.split('='); globals()[k] = int(v)
    a = gen_chain_kernel()
    out = ['; @launch kernel=chain_kernel grid=(256,1,1) block=(256,1,1) lds=163840',
           '.amdgcn_target "amdgcn-amd-amdhsa--gfx950"', '.text', a.text(), '.section .rodata,"a"', kernel_desc('chain_kernel')]
    open(sys.argv[1], 'w').write('\n'.join(out) + '\n')
    print('instructions', a.count)
```

```python
from asmlib import *
from layout import *
import chain as C, start as S, prep, gemm, tok, s4d, t2srv
from chain import SRD, DBG, evlog
BC = 160000
JOBQ = 192; NON = 128
def mask_off(a, dst, cls):
    a(f's_and_b32 s71, {cls}, 4')
    a('s_mul_i32 s71, s71, 12')
    a(f's_lshl_b32 {dst}, {cls}, 2')
    a(f's_add_u32 {dst}, {dst}, s71')
MASK0 = 32
SCRAMBLE = 0
XPRE = 0
EVMID = 0
WARM = 1
VPF = 28
A1T = 1
XL = 0
LATE = 0
SKIP = 0
S4X = 1
LLW = 2
TD = 8
APP = 11
BFIRST = 0
FL2 = 4
VPK = 16
STEAL_AT = 64
Q_FINE = 0; Q_V7 = Q_FINE + 224; Q_SRV = Q_V7 + 112; Q_A = Q_SRV + 32; Q_VH = Q_A + 128; Q_VF = Q_VH + 64; Q_F = Q_VF + 64; Q_S4 = Q_F + 128; Q_TOK = Q_S4 + 112; Q_END = Q_TOK + 512

def kargs(a):
    a('s_load_dwordx8 s[36:43], s[0:1], 56')
    a('s_load_dwordx4 s[44:47], s[0:1], 88')
def lanes(a):
    a('v_and_b32 v1, 63, v0')
    a('v_lshlrev_b32 v2, 4, v1')
    a('v_lshrrev_b32 v3, 4, v1')
    a('v_and_b32 v4, 15, v1')
def w0(a, fn):
    l = a.newlabel('w0')
    a('s_cmp_lg_u32 s16, 0')
    a(f's_cbranch_scc1 {l}')
    fn()
    a.label(l)
def bcast(a, regs, dsts, t=250):
    a(f'v_mov_b32 v{t}, {BC}')
    a('s_add_u32 s101, s101, 1')
    def wr():
        for i, r in enumerate(regs): a(f'ds_write_b32 v{t}, v{r} offset:{4*i}')
        a('s_waitcnt lgkmcnt(0)')
        a(f'v_mov_b32 v{regs[0]}, s101')
        a(f'ds_write_b32 v{t}, v{regs[0]} offset:16')
        a('s_waitcnt lgkmcnt(0)')
    a('s_barrier')
    a('s_mov_b64 exec, 1')
    w0(a, wr)
    a('s_mov_b64 exec, -1')
    a('s_barrier')
    for i, r in enumerate(regs): a(f'ds_read_b32 v{r}, v{t} offset:{4*i}')
    a(f'ds_read_b32 v{t}, v{t} offset:16')
    a('s_waitcnt lgkmcnt(0)')
    for r, d in zip(regs, dsts): a(f'v_readfirstlane_b32 {d}, v{r}')
    a(f'v_cmp_ne_u32 vcc, s101, v{t}')
    a('s_cbranch_vccnz ch_end')

def claim_issue(a, P, r=242):
    a('s_cmp_lg_u32 s66, 0')
    a(f's_cbranch_scc1 {P}_ci')
    def at():
        a('s_lshr_b32 s70, s3, 5')
        mask_off(a, 's70', 's70')
        a('s_lshl_b32 s71, 1, s3')
        a(f'v_mov_b32 v{r}, s71')
        a(f'v_mov_b32 v{r+1}, {MASK0}')
        a('s_mov_b64 exec, 1')
        a(f'buffer_atomic_or v{r}, v{r+1}, {DBG}, s70 offen sc0')
        a(f'buffer_load_dwordx2 v[{r+2}:{r+3}], v{r+1}, {DBG}, 0 offen offset:{NON-MASK0} sc1')
        a('s_mov_b64 exec, -1')
    w0(a, at)
    a.label(f'{P}_ci')

def set_nonce(a, r):
    a(f'v_mov_b32 v{r+1}, {NON}')
    a(f'v_mov_b32 v{r+2}, s88\nv_mov_b32 v{r+3}, s89\nv_mov_b32 v{r+4}, 0\nv_mov_b32 v{r+5}, 0')
    a('s_mov_b64 exec, 1')
    a(f'buffer_atomic_cmpswap_x2 v[{r+2}:{r+5}], v{r+1}, {DBG}, 0 offen sc0')
    a('s_mov_b64 exec, -1')

def confirm(a, P, n, r=242):
    a('s_cmp_lg_u32 s66, 0')
    a(f's_cbranch_scc1 {P}_cf')
    def w():
        a(f's_waitcnt vmcnt({n})')
        a(f'v_readfirstlane_b32 s70, v{r+2}')
        a('s_cmp_lg_u32 s70, 0')
        a(f's_cbranch_scc1 {P}_nz')
        set_nonce(a, r)
        a('s_waitcnt vmcnt(0)')
        a(f'v_readfirstlane_b32 s70, v{r+2}')
        a('s_cmp_lg_u32 s70, 0')
        a(f's_cbranch_scc1 {P}_nz')
        a(f'v_mov_b32 v{r+2}, s88\nv_mov_b32 v{r+3}, s89')
        a.label(f'{P}_nz')
    w0(a, w)
    bcast(a, [r, r + 2, r + 3], ['s70', 's88', 's89'], t=r + 1)
    a('s_mov_b32 s66, 1')
    a('s_bitcmp1_b32 s70, s3')
    a('s_cbranch_scc1 m_reclaim')
    a.label(f'{P}_cf')

def claim_loop(a, P, lo_class, ncls):
    a('s_mov_b32 s21, 0')
    a('s_mov_b64 exec, 1')
    a.label(f'{P}_l')
    a('s_cmp_lg_u32 s70, -1')
    a(f's_cbranch_scc1 {P}_t')
    a('s_add_u32 s20, s20, 1')
    a('s_cmp_lt_u32 s20, 8')
    a(f's_cselect_b32 s20, s20, {lo_class}')
    a('s_mov_b32 s70, 0')
    a('s_mov_b32 s3, -1')
    a('s_add_u32 s21, s21, 1')
    a(f's_cmp_ge_u32 s21, {ncls}')
    a(f's_cbranch_scc1 {P}_d')
    a.label(f'{P}_t')
    a('s_ff0_i32_b32 s22, s70')
    a('s_lshl_b32 s23, 1, s22')
    mask_off(a, 's3', 's20')
    a('v_mov_b32 v242, s23')
    a(f'v_mov_b32 v243, {MASK0}')
    a(f'buffer_atomic_or v242, v243, {DBG}, s3 offen sc0')
    a('s_waitcnt vmcnt(0)')
    a('v_readfirstlane_b32 s70, v242')
    a('s_lshl_b32 s3, s20, 5')
    a('s_add_u32 s3, s3, s22')
    a('s_bitcmp1_b32 s70, s22')
    a(f's_cbranch_scc1 {P}_l')
    a.label(f'{P}_d')
    a('s_mov_b64 exec, -1')
    a('v_mov_b32 v242, s3')

def allflags(a, P, rep_s, t=24, limit=None, sleep=4, on_spin=None):
    a(f's_lshl_b32 s22, {rep_s}, 11')
    a(f's_add_u32 s22, s22, {IF_OFF}')
    a(f'v_add_u32 v{t}, 1024, v2')
    a(f'v_min_u32 v{t}, {1792-16}, v{t}')
    S.flag_poll(a, P, t + 4, [(2, 's22'), (t, 's22')], 'cA_abort', limit or C.SLOW_LIMIT, sleep, on_spin)

def ask(a):
    def f():
        a('v_mov_b32 v250, 1')
        a(f'v_mov_b32 v251, {JOBQ}')
        a('s_mov_b64 exec, 1')
        a(f'buffer_atomic_add v250, v251, {DBG}, 0 offen sc0')
        a('s_mov_b64 exec, -1')
    w0(a, f)

def worker(a):
    tok.PEEK = DBG
    a.label('m_bjob')
    lanes(a)
    a('s_sub_u32 s18, s3, 32')
    vq = S.VQ()
    S.bjob_decode(a)
    S.bjob_issue(a, vq)
    def xl():
        S.bjob_x(a, vq)
        if A1T: S.a1_touch(a, vq)
    if not XL: xl()
    evlog(a, 9008, 52)
    claim_issue(a, 'bj', 44)
    def cf():
        confirm(a, 'bj', 4 + A1T if XL else 0, 44)
        evlog(a, 9001, 52)
    S.bjob_run(a, 'bj', vq, 1, cf, 's77', False, xl if XL else None)
    a(f's_add_u32 s78, s77, {IF_OFF - BF_OFF}')
    if BFIRST:
        a('s_barrier')
        def hk(n):
            a(f's_waitcnt vmcnt({n})')
            S.publish(a, 's77', 1, 44)
            evlog(a, 9002, 112)
            S.init_stores(a, 'bk', vq, wait=False)
            S._fills(a, vq)
    else:
        S.init_stores(a, 'bk', vq)
        S._fills(a, vq)
        a('s_barrier')
        def hk(n):
            a(f's_waitcnt vmcnt({n})')
            S.publish(a, 's77', 1, 44)
            w0(a, lambda: S.flag_store(a, 's78', BF_R, 2048, 48))
            evlog(a, 9002, 52)
    S.a3_issue(a, hk)
    a('v_mov_b32 v250, s68')
    a('s_or_b32 s20, s69, s16')
    a('s_cbranch_scc1 bj_ht')
    ask(a)
    a('s_branch bj_h2')
    a.label('bj_ht')
    a(f'buffer_load_dword v251, off, {SRD}, s77')
    a.label('bj_h2')
    S.a3_run(a, (lambda: w0(a, lambda: S.flag_store(a, 's78', BF_R, 2048, 48))) if BFIRST else None)
    if LLW == 1: S.llc_warm(a)
    evlog(a, 9009)
    bcast(a, [250], ['s3'], t=6)
    a('s_branch wk_have')
    a.label('wk_loop')
    a('s_waitcnt vmcnt(0) lgkmcnt(0)')
    a('s_cmp_eq_u32 s96, 1')
    a('s_cbranch_scc1 wk_ask')
    a('s_mov_b32 s96, 1')
    def staff():
        a('s_mov_b32 s30, 0')
        a(f'v_mov_b32 v243, {MASK0}')
        a.label('sf_l')
        a(f'buffer_load_dword v242, v243, {DBG}, 0 offen sc1')
        a('s_waitcnt vmcnt(0)')
        a('v_readfirstlane_b32 s70, v242')
        a('s_cmp_eq_u32 s70, -1')
        a('s_cbranch_scc1 sf_d')
        a('s_sleep 16')
        a('s_add_u32 s30, s30, 1')
        a('s_cmp_lt_u32 s30, 64')
        a('s_cbranch_scc1 sf_l')
        a('s_mov_b32 s20, 0')
        claim_loop(a, 'sf_c', 0, 1)
        a.label('sf_d')
    w0(a, staff)
    bcast(a, [242], ['s3'], t=243)
    a('s_cmp_eq_u32 s3, -1')
    a('s_cbranch_scc1 wk_ask')
    kargs(a)
    a('s_getreg_b32 s67, hwreg(HW_REG_XCC_ID)')
    a('s_and_b32 s67, s67, 7')
    a('s_mov_b32 s66, 1')
    a('s_waitcnt lgkmcnt(0)')
    a('s_branch m_start')
    a.label('wk_ask')
    a('v_readfirstlane_b32 s22, v250')
    a(f's_cmp_ge_u32 s22, {Q_END}')
    a('s_cbranch_scc1 wk_next')
    ask(a)
    a.label('wk_next')
    evlog(a, 9005)
    a('s_waitcnt vmcnt(0)')
    bcast(a, [250], ['s3'], t=6)
    a.label('wk_have')
    evlog(a, 's3')
    a(f's_cmp_ge_u32 s3, {Q_END}')
    a('s_cbranch_scc1 ch_end')
    a('v_mov_b32 v250, 0')
    a(f'v_mov_b32 v251, {JOBQ}')
    lanes(a)
    a('s_cmp_lg_u32 s97, 0')
    a('s_cbranch_scc1 wk_go')
    a('s_mov_b32 s68, s3\ns_mov_b32 s69, 1')
    def poll():
        def spin():
            a(f's_and_b32 s20, s30, {STEAL_AT-1}')
            a('s_cbranch_scc1 wk_ns')
            a('s_mov_b32 s20, 1\ns_mov_b32 s70, 0')
            claim_loop(a, 'wk_st', 1, 7)
            a('s_cmp_lg_u32 s3, -1')
            a('s_cbranch_scc1 wk_pd')
            a('s_add_u32 s20, s67, 1')
            a(f's_lshl_b32 s22, s20, 11')
            a(f's_add_u32 s22, s22, {IF_OFF}')
            a.label('wk_ns')
        a('s_add_u32 s20, s67, 1')
        allflags(a, 'wk_af', 's20', sleep=4, on_spin=spin)
        a('v_mov_b32 v242, -1')
        a.label('wk_pd')
    w0(a, poll)
    bcast(a, [242], ['s3'], t=243)
    a('s_cmp_lg_u32 s3, -1')
    a('s_cbranch_scc1 m_bjob')
    a('s_mov_b32 s3, s68\ns_mov_b32 s97, 1')
    evlog(a, 9006)
    a.label('wk_go')
    for lim, lab in ((Q_TOK, 'wk_tok'), (Q_S4, 'wk_s4d'), (Q_F, 'wk_f'), (Q_VF, 'wk_vf'), (Q_VH, 'wk_vh'), (Q_A, 'wk_a'), (Q_SRV, 'wk_srv'), (Q_V7, 'wk_v7')):
        a(f's_cmp_ge_u32 s3, {lim}')
        a(f's_cbranch_scc1 {lab}')
    a(f's_sub_u32 s20, s3, {Q_FINE}')
    a('s_cmp_ge_u32 s20, 112')
    a('s_cselect_b32 s18, 1, 0')
    a('s_cselect_b32 s21, 112, 0')
    a('s_sub_u32 s20, s20, s21')
    a('s_and_b32 s17, s20, 15')
    a('s_add_u32 s17, s17, 16')
    a('s_lshr_b32 s34, s20, 4')
    a('s_lshl_b32 s34, s34, 1')
    a('s_add_u32 s35, s34, 2')
    if LLW == 2:
        a('s_cmp_eq_u32 s18, 0')
        a('s_cbranch_scc1 wf_nw')
        S.llc_warm(a, 's3')
        a('s_sub_u32 s3, s3, 112')
        S.llc_warm(a, 's3')
        a.label('wf_nw')
    gemm.gemm_body(a, 'wf', 's18', 's17', st='sc1', signal=True, ld='sc1', NT=2)
    if LLW == 3: S.llc_warm(a, 's3')
    a('s_branch wk_loop')
    a.label('wk_v7')
    a(f's_sub_u32 s20, s3, {Q_V7}')
    a('s_mov_b32 s18, 1')
    a('s_and_b32 s17, s20, 15')
    a('s_add_u32 s17, s17, 16')
    a('s_lshr_b32 s34, s20, 4')
    a('s_lshl_b32 s34, s34, 1')
    a('s_add_u32 s35, s34, 2')
    a('s_branch wk_gemm')
    a.label('wk_vh')
    a(f's_sub_u32 s20, s3, {Q_VH}')
    a('s_and_b32 s17, s20, 15')
    a('s_add_u32 s17, s17, 16')
    a('s_lshr_b32 s18, s20, 5')
    a('s_add_u32 s18, s18, 2')
    a('s_bitcmp1_b32 s20, 4')
    a('s_cselect_b32 s34, 7, 0')
    a('s_add_u32 s35, s34, 7')
    a('s_branch wk_gemm')
    a.label('wk_vf')
    a(f's_sub_u32 s20, s3, {Q_VF}')
    a('s_and_b32 s17, s20, 15')
    a('s_add_u32 s17, s17, 16')
    a('s_lshr_b32 s18, s20, 4')
    a('s_add_u32 s18, s18, 4')
    a('s_mov_b32 s34, 0\ns_mov_b32 s35, 14')
    a('s_branch wk_gemm')
    a.label('wk_f')
    if SKIP & 4: a('s_branch wk_loop')
    a(f's_sub_u32 s20, s3, {Q_F}')
    a('s_and_b32 s17, s20, 15')
    a('s_lshr_b32 s18, s20, 4')
    a('s_mov_b32 s34, 0\ns_mov_b32 s35, 14')
    a('s_lshl_b32 s22, s17, 7')
    a(f's_add_u32 s22, s22, {AF_OFF}')
    a(f's_add_u32 s23, s22, {A3_OFF - AF_OFF}')
    a('v_min_u32 v24, 48, v2')
    a('v_min_u32 v25, 96, v2')
    S.flag_poll(a, 'wk_aw', 28, [(24, 's22'), (25, 's23')], 'cA_abort', C.SLOW_LIMIT, 6)
    a.label('wk_gemm')
    gemm.gemm_body(a, 'wg', 's18', 's17', st='sc1', signal=True, ld='sc1')
    a('s_branch wk_loop')
    a.label('wk_a')
    if SKIP & 8: a('s_branch wk_loop')
    kargs(a)
    a(f's_sub_u32 s3, s3, {Q_A}')
    a('s_and_b32 s17, s3, 15')
    a('s_lshr_b32 s19, s3, 5')
    a('s_bitcmp1_b32 s3, 4')
    a('s_cselect_b32 s31, 7, 0')
    a('s_waitcnt lgkmcnt(0)')
    vq = S.VQ()
    S.bjob_issue(a, vq, 0, 'aj')
    S.bjob_run(a, 'aj', vq, 0)
    a('v_mov_b32 v250, 0')
    a('s_branch wk_loop')
    a.label('wk_srv')
    if SKIP & 16: a('s_branch ch_end')
    a(f's_sub_u32 s3, s3, {Q_SRV}')
    a('s_and_b32 s18, s3, 15')
    a('s_lshr_b32 s19, s3, 4')
    a('s_and_b32 s19, s19, 1')
    t2srv.t2srv_body(a, 'ws', 's18', 's19', 'cA_abort', ld='sc1')
    a('v_mov_b32 v250, 0')
    a('s_branch wk_loop')
    a.label('wk_s4d')
    if SKIP & 1: a('s_branch wk_loop')
    if S4X:
        def pick():
            a('s_getreg_b32 s20, hwreg(HW_REG_XCC_ID)')
            a(f's_sub_u32 s20, s20, {C.XCD_SEL + 1}')
            a('s_and_b32 s20, s20, 7')
            a('s_mov_b64 exec, 1')
            a.label('s4_l')
            a('s_cmp_ge_u32 s20, 7')
            a('s_cselect_b32 s20, 0, s20')
            a('s_lshl_b32 s21, s20, 7')
            a(f's_add_u32 s21, s21, {CNT_OFF + S4Q}')
            a('v_mov_b32 v242, 1')
            a(f'buffer_atomic_add v242, off, {SRD}, s21 sc0')
            a('s_waitcnt vmcnt(0)')
            a('v_readfirstlane_b32 s21, v242')
            a('s_lshl_b32 s22, s20, 4')
            a('s_add_u32 s20, s20, 1')
            a('s_cmp_ge_u32 s21, 16')
            a('s_cbranch_scc1 s4_l')
            a('v_add_u32 v242, s22, v242')
            a('s_mov_b64 exec, -1')
        w0(a, pick)
        bcast(a, [242], ['s3'], t=243)
    else: a(f's_sub_u32 s3, s3, {Q_S4}')
    s4d.s4d_setup(a)
    s4d.s4d_item(a, 'wk', 's3')
    a('s_branch wk_loop')
    a.label('wk_tok')
    if SKIP & 2: a('s_branch wk_loop')
    a(f's_sub_u32 s3, s3, {Q_TOK}')
    a('s_and_b32 s18, s3, 3')
    a('s_lshr_b32 s17, s3, 2')
    a(f's_cmp_lt_u32 s17, {TD}')
    a('s_cbranch_scc1 wk_tokp')
    a(f's_sub_u32 s17, s17, 64')
    a(f's_cmp_ge_i32 s17, {64 - TD}')
    a('s_cbranch_scc1 wk_toko')
    a(f's_add_u32 s20, s17, {64 - TD}')
    a('s_lshr_b32 s17, s20, 1')
    a('s_bitcmp0_b32 s20, 0')
    a('s_cbranch_scc1 wk_toko')
    a(f's_add_u32 s17, s17, {TD}')
    a.label('wk_tokp')
    tok.tokp_body(a, 's17', 's18', ld='sc1', st='sc1', sync='wp', ldx='sc1')
    a('s_branch wk_loop')
    a.label('wk_toko')
    tok.toko_body(a, 's17', 's18', ld='sc1', sync='wo', OUT='s[92:95]')
    if C.TMAX:
        a('s_cmp_lg_u32 s17, 63')
        a('s_cbranch_scc1 tm_n')
        a('s_waitcnt vmcnt(0)')
        C.tmax(a, 7)
        a.label('tm_n')
    a('v_readfirstlane_b32 s22, v250')
    a(f's_cmp_ge_u32 s22, {Q_END}')
    a('s_cbranch_scc1 ch_end')
    a('s_branch wk_loop')
    a.label('wp_abort')
    a.label('wo_abort')
    a('s_branch cA_abort')

def staffed(a, r=242):
    def f():
        a(f's_cmp_eq_u32 s67, {C.XCD_SEL}')
        a('s_cselect_b32 s20, 1, 0x10001')
        a(f'v_mov_b32 v{r}, s20')
        a(f'v_mov_b32 v{r+1}, 0')
        a('s_mov_b64 exec, 1')
        a(f'buffer_atomic_add v{r}, v{r+1}, {DBG}, 0 offen')
        a('s_mov_b64 exec, -1')
    w0(a, f)

def gen(name='main_kernel'):
    C.SYNC = 1; C.MERGE = 2; C.SELF = 2
    a = Asm()
    a.raw(kernel_header(name))
    a('s_cmp_ge_u32 s2, 256')
    a('s_cbranch_scc1 ch_end')
    a('s_load_dwordx4 s[4:7], s[0:1], 120')
    a('s_load_dwordx2 s[92:93], s[0:1], 112')
    kargs(a)
    a('s_memrealtime s[88:89]')
    if C.CODE_PF == 1: code_prefetch_shared(a, name, 'ch_end', 60)
    if C.CODE_PF == 2: code_prefetch(a, name, 'ch_end', 160000, 60)
    a('s_getreg_b32 s67, hwreg(HW_REG_XCC_ID)')
    a('s_and_b32 s67, s67, 7')
    a('v_lshrrev_b32 v1, 6, v0')
    a('v_readfirstlane_b32 s16, v1')
    a('s_mov_b32 s66, 0\ns_mov_b32 s68, 0\ns_mov_b32 s69, 0\ns_mov_b32 s96, 0\ns_mov_b32 s97, 0\ns_mov_b32 s101, 0x5eed0000')
    a(f's_sub_u32 s20, s67, {C.XCD_SEL}')
    a('s_lshr_b32 s21, s2, 3')
    if SCRAMBLE: a('s_add_u32 s20, s20, s21')
    if SCRAMBLE == 2: a('s_lshr_b32 s21, s21, 2')
    a('s_and_b32 s20, s20, 7')
    a('s_lshl_b32 s3, s20, 5')
    a('s_add_u32 s3, s3, s21')
    a('s_waitcnt lgkmcnt(0)')
    a('s_mov_b32 s8, s6\ns_and_b32 s9, s7, 0xffff\ns_mov_b32 s10, 0x10000000\ns_mov_b32 s11, 0x20000')
    a('s_mov_b32 s12, s4\ns_and_b32 s13, s5, 0xffff\ns_mov_b32 s14, 256\ns_mov_b32 s15, 0x20000')
    a('s_or_b32 s88, s88, 1')
    a(f's_and_b32 s93, s93, 0xffff\ns_mov_b32 s94, {2048*896*2}\ns_mov_b32 s95, 0x20000')
    if C.EVLOG:
        a('s_lshl_b32 s100, s2, 2')
        a('s_add_u32 s100, s100, s16')
        a('s_lshl_b32 s100, s100, 8')
        a(f's_add_u32 s100, s100, {C.EV_OFF}')
    evlog(a, 9000)
    if LATE:
        a('s_mul_i32 s20, s2, 37\ns_and_b32 s20, s20, 15\ns_cmp_lg_u32 s20, 8\ns_cbranch_scc1 m_nl')
        a('s_mov_b32 s20, 0')
        a.label('m_ll')
        a(f's_sleep 127\ns_add_u32 s20, s20, 1\ns_cmp_lt_u32 s20, {LATE}\ns_cbranch_scc1 m_ll')
        a.label('m_nl')
        a('s_mul_i32 s20, s2, 37\ns_and_b32 s20, s20, 15\ns_cmp_lg_u32 s20, 3\ns_cbranch_scc1 m_nl2')
        a('s_mov_b32 s20, 0')
        a.label('m_ll2')
        a(f's_sleep 127\ns_add_u32 s20, s20, 1\ns_cmp_lt_u32 s20, {LATE}\ns_cbranch_scc1 m_ll2')
        a.label('m_nl2')
    acs = S.AComp(a, 'as')
    def evm(p):
        a('s_memrealtime s[98:99]' if EVMID == 1 else 's_memtime s[98:99]')
        a(f'v_mov_b32 v96, {9100 + p}')
        a('s_mov_b64 exec, 1')
        a(f'buffer_store_dword v96, off, {SRD}, s100')
        a('s_waitcnt lgkmcnt(0)')
        a('v_mov_b32 v96, s98')
        a(f'buffer_store_dword v96, off, {SRD}, s100 offset:4')
        a('s_mov_b64 exec, -1')
        a('s_add_u32 s100, s100, 8')
    acs.mid = evm if EVMID else None
    a.label('m_start')
    a('s_cmp_ge_u32 s3, 32')
    a('s_cbranch_scc1 m_bjob')
    C.lane_consts(a)
    a('s_and_b32 s17, s3, 15')
    a('s_cmp_ge_u32 s3, 16')
    a('s_cbranch_scc1 m_val')
    acs.issue()
    evlog(a, 9008, 96)
    claim_issue(a, 'sc', 248)
    acs.setup()
    acs.fetch()
    confirm(a, 'sc', 4 * (S.APRE - 1), 248)
    staffed(a, 248)
    evlog(a, 9001, 96)
    a('s_lshl_b32 s28, s17, 7')
    a(f's_add_u32 s28, s28, {A3_OFF}')
    a('v_min_u32 v113, 96, v2')
    a(f's_mov_b32 s29, {IF_OFF}')
    a('v_add_u32 v112, 1024, v2')
    a(f'v_min_u32 v112, {1792-16}, v112')
    fl = [(113, 's28'), (2, 's29'), (112, 's29')]
    a(f's_mul_i32 s32, s17, {CUW_B}')
    a(f's_mul_i32 s33, s16, {TILE_B}')
    a('s_add_u32 s32, s32, s33')
    a('s_add_u32 s33, s32, s33')
    a(f's_add_u32 s32, s32, {24*TILE_B}')
    a(f's_add_u32 s33, s33, {16*TILE_B}')
    TL = [(5, 's33', TILE_B), (6, 's32', 0), (4, 's33', 0)]
    pieces = [0, 1, 5, 6, 7, 8, 9, 2, 3]
    def place(j, f):
        if j == 2: return None if f < 8 else 28 + f - 8
        return 14 * j + f
    lof = lambda x: pieces[x >> 2] * 16384 + (x & 3) * 1024
    fld = lambda: [f'buffer_load_dwordx4 v[100:103], v113, {SRD}, s28 offen sc1', ('vq', 'f')]
    def extra(p):
        o = []
        j = p - APP
        if 0 <= j < 3:
            ti, br, bo = TL[j]
            o.append([f's_waitcnt vmcnt({acs.vq.wait("f") if "f" in acs.vq.q else 63})', f'v_cmp_ne_u64 vcc, {S.NONCE}, v[100:101]', f'v_cmp_ne_u64 s[54:55], {S.NONCE}, v[102:103]', f's_add_u32 s{48+j}, {br}, {bo}'])
            for f in range(14):
                g = ['s_or_b64 vcc, vcc, s[54:55]', f's_cselect_b32 s{48+j}, 0x10000000, s{48+j}'] if f == 0 else []
                x = place(j, f)
                g.append(f's_add_u32 s22, s{48+j}, {f*1024}')
                if x is None: g.append(f'buffer_load_dwordx4 {ureg(C.wreg(ti, f >> 1) + 4 * (f & 1), 4)}, v2, {SRD}, s22 offen sc1')
                else: g += [f's_add_u32 m0, s25, {lof(x)}', f'buffer_load_dwordx4 v2, {SRD}, s22 offen sc1 lds']
                g.append(('vq', 'a'))
                if f == FL2 and j < 2: g += fld()
                o.append(g)
        if j == -1: o += [[] for _ in range(FL2)] + [fld()]
        if p == 13: o.append([f'buffer_load_dwordx4 v[{100+4*i}:{103+4*i}], v{va}, {SRD}, {so} offen sc1' for i, (va, so) in enumerate(fl)])
        return o
    acs.run(lambda t, p: C.wreg(t, p >> 1) + 4 * (p & 1), extra)
    evlog(a, 9002)
    S.flag_poll(a, 'sc_aw', 100, fl, 'cA_abort', C.SLOW_LIMIT, 1, issued=True)
    a('v_add_u32 v4, s25, v2')
    a('v_add_u32 v5, 0x10000, v4')
    a('v_add_u32 v6, 0x20000, v4')
    for j, (ti, br, bo) in enumerate(TL):
        a(f's_cmp_eq_u32 s{48+j}, 0x10000000')
        a(f's_cbranch_scc1 sc_d{j}')
        for f in range(14):
            x = place(j, f)
            if x is not None: a(f'ds_read_b128 {ureg(C.wreg(ti, f >> 1) + 4 * (f & 1), 4)}, v{4 + (lof(x) >> 16)} offset:{lof(x) & 0xffff}')
        a('s_waitcnt lgkmcnt(0)')
        a(f's_branch sc_e{j}')
        a.label(f'sc_d{j}')
        C.load_units(a, [(bo + ks * UNIT, C.wreg(ti, ks)) for ks in range(7)], br)
        a.label(f'sc_e{j}')
    a('s_barrier')
    a('s_branch m_role')
    a.label('m_val')
    w0(a, lambda: set_nonce(a, 232))
    claim_issue(a, 'va')
    if VPF:
        S.srd(a, 56, 40, S.W_BYTES)
        a('v_lshrrev_b32 v24, 5, v1')
        a('v_and_b32 v25, 31, v1')
        a('v_lshlrev_b32 v25, 4, v25')
        a('v_lshl_add_u32 v24, v24, 13, v25')
        S.srd(a, 60, 42, S.W_BYTES)
        a('s_lshl_b32 s22, s17, 9')
        a('s_lshl_b32 s23, s16, 19')
        a('s_add_u32 s23, s22, s23')
        for i in range(VPK):
            a(f's_add_u32 s21, s23, {(64 - 2*VPK + 2*i) << 13}')
            a('buffer_load_dwordx4 v[28:31], v24, s[60:63], s21 offen')
        a('s_lshl_b32 s23, s16, 14')
        a('s_add_u32 s22, s22, s23')
        a('s_mov_b32 s30, 0')
        a.label('va_pf')
        a('buffer_load_dwordx4 v[28:31], v24, s[56:59], s22 offen')
        a('s_waitcnt vmcnt(40)')
        a('s_add_u32 s22, s22, 65536')
        a('s_add_u32 s30, s30, 1')
        a(f's_cmp_lt_u32 s30, {VPF}')
        a('s_cbranch_scc1 va_pf')
    evlog(a, 9008)
    confirm(a, 'va', min(VPF + VPK, 40) if VPF else 0)
    staffed(a)
    evlog(a, 9001)
    a.label('m_role')
    evlog(a, 9006)
    a('s_mov_b32 s17, s3')
    def late(p):
        if p >= 4: allflags(a, f'va_iw{p}', '0', t=36, sleep=2)
    def bdep(lo, hi):
        a('s_mul_i32 s22, s17, 28')
        a('s_add_u32 s23, s22, 27')
        a('s_lshr_b32 s22, s22, 6')
        a('s_lshr_b32 s23, s23, 6')
        a('s_sub_u32 s23, s23, s22')
        a('s_lshl_b32 s23, s23, 8')
        a('v_and_b32 v36, s23, v2')
        a(f'v_med3_u32 v37, v117, {lo}, {hi}')
        a('v_lshl_add_u32 v36, v37, 4, v36')
        a('s_lshl_b32 s22, s22, 8')
        a(f's_add_u32 s22, s22, {BF_OFF}')
        S.flag_poll(a, a.newlabel('va_bw'), 40, [(36, 's22')], 'cA_abort', C.SLOW_LIMIT, 2)
        evlog(a, 9002)
    C.BDEP = bdep
    C.role_tail(a, late)
    a.label('m_reclaim')
    a('s_waitcnt vmcnt(0)')
    a('s_lshr_b32 s20, s3, 5')
    w0(a, lambda: claim_loop(a, 'rc', 0, 9))
    bcast(a, [242], ['s3'])
    a('s_cmp_lg_u32 s3, -1')
    a('s_cbranch_scc1 m_start')
    a('v_mov_b32 v250, 0')
    a('s_branch wk_ask')
    worker(a)
    a.label('ch_end')
    a('s_endpgm')
    return a
```

```python
from asmlib import *
from layout import *
import prep
WS = 's[8:11]'
SIGMA = prep.SIGMA
W_BYTES = prep.W_BYTES
NR = 8
NONCE = 's[88:89]'
NS = 9
APRE = 4
DSP = 2
VPRE = 5
XLATE = 1
PF_S = 3
PF_V = 7

def srd(a, d, lo, nbytes): prep.srd(a, d, lo, lo + 1, nbytes)

class VQ:
    def __init__(self): self.q = []
    def add(self, tag, n=1): self.q += [tag] * n
    def wait(self, tag):
        last = max(i for i, t in enumerate(self.q) if t == tag)
        n = len(self.q) - 1 - last
        self.q = self.q[last + 1:]
        return n

class AComp:
    FR = 120
    ACC = 32
    RING = 16; PF = 3; NG = 4
    RA = 8
    SV = 100
    def __init__(self, a, P):
        self.a = a; self.P = P; self.vq = VQ(); self.nxt = 0; self.mid = None
    def dma_ops(self):
        n = self.nxt; self.nxt += 1
        o = [[f'buffer_load_dwordx4 v{4+i}, s[56:59], s22 offen offset:{i*1024} lds', ('vq', ('p', n))] for i in range(4)]
        o[0] = [f's_add_u32 s22, s27, {n << 18}', f's_add_u32 m0, s25, {(n % NS)*16384}'] + o[0]
        return o
    def dma(self):
        for g in self.dma_ops():
            for x in g:
                if isinstance(x, tuple): self.vq.add(x[1])
                else: self.a(x)
    def issue(self):
        a = self.a; SV = self.SV
        srd(a, 60, 42, W_BYTES)
        a('v_lshrrev_b32 v24, 5, v1')
        a('v_and_b32 v25, 31, v1')
        a('s_lshl_b32 s26, s17, 9')
        a('s_lshl_b32 s25, s16, 12')
        a('v_xor_b32 v26, v25, v24')
        a('v_lshlrev_b32 v26, 4, v26')
        a('v_lshl_add_u32 v26, v24, 13, v26')
        for i in range(4):
            a(f'v_xor_b32 v{SV+i}, {32*(i >> 1)}, v26')
            if i: a(f'v_add_u32 v{SV+i}, {i*(16384-1024)}, v{SV+i}')
        a('s_lshl_b32 s23, s16, 19')
        a('s_add_u32 s23, s23, s26')
        def stage(grp):
            if grp and grp % 2 == 0:
                for i in range(4): a(f'v_xor_b32 v{SV+i}, {64*((grp >> 1) ^ ((grp >> 1) - 1))}, v{SV+i}')
            a(f's_add_u32 m0, s25, {(grp + 1)*16384}')
            if grp: a(f's_add_u32 s23, s23, {8 << 13}')
            for i in range(4): a(f'buffer_load_dwordx4 v{SV+i}, s[60:63], s23 offen offset:{i*1024} lds')
            self.vq.add('k', 4)
        for grp in range(8): stage(grp)
        srd(a, 56, 40, W_BYTES)
        a('s_lshl_b32 s21, s16, 16')
        a('s_add_u32 s27, s26, s21')
        a('s_lshr_b32 s20, s16, 1')
        a('s_lshl_b32 s20, s20, 6')
        a('v_xor_b32 v26, s20, v26')
        for i in range(4):
            a(f'v_xor_b32 v{4+i}, {128*(i >> 1) + 32*(i & 1)}, v26')
            if i: a(f'v_add_u32 v{4+i}, {i*(16384-1024)}, v{4+i}')
        self.dma()
    def setup(self):
        a = self.a; SV = self.SV
        a('v_and_b32 v26, 15, v25')
        a('v_xor_b32 v27, v26, v24')
        a('v_lshlrev_b32 v27, 4, v27')
        a('v_bfe_u32 v28, v25, 2, 1')
        a('v_lshlrev_b32 v28, 4, v28')
        a('v_lshrrev_b32 v29, 3, v25')
        a('v_lshl_add_u32 v28, v29, 2, v28')
        a('v_and_b32 v29, 3, v25')
        a('v_add_u32 v28, v28, v29')
        a('v_lshl_add_u32 v28, v28, 9, v27')
        a('v_lshrrev_b32 v29, 2, v26')
        a('v_lshlrev_b32 v29, 15, v29')
        a('v_bfe_u32 v30, v26, 1, 1')
        a('v_lshl_add_u32 v29, v30, 11, v29')
        a('v_lshrrev_b32 v30, 4, v25')
        a('v_lshl_add_u32 v29, v30, 10, v29')
        a('v_and_b32 v31, 1, v26')
        a('v_lshl_add_u32 v29, v31, 9, v29')
        a('v_add_u32 v29, v29, v27')
        a('v_add_u32 v29, s25, v29')
        for k in range(8):
            a(f'v_xor_b32 v{self.RA+k}, {32*k}, v28')
            a(f'v_xor_b32 v{SV+4+k}, {32*k}, v29')
        a(f's_mov_b32 s52, {SIGMA}')
    def fetch(self):
        a = self.a
        a(f's_waitcnt vmcnt({self.vq.wait("k")})')
        for D in range(2):
            for ks in range(16):
                r = self.FR + 64 * D + 4 * ks
                a(f'ds_read_b128 v[{r}:{r+3}], v{self.SV + 4 + (ks & 7)} offset:{(1 + D)*16384 + (ks >> 3)*256}')
                if ks & 7 == 7: a('s_waitcnt lgkmcnt(4)')
        a('s_waitcnt lgkmcnt(0)')
        while self.nxt < APRE: self.dma()
    def epi(self, p, dest):
        o = []
        for D in range(2):
            b0 = self.ACC + 32 * (p & 1) + 16 * D
            for b in (b0, b0 + 8):
                for k in range(4):
                    o += [f'v_mul_f32 v{b+2*k}, s52, v{b+2*k}', f'v_mul_f32 v{b+2*k+1}, s52, v{b+2*k+1}', f'v_cvt_pk_bf16_f32 v{b+k}, v{b+2*k}, v{b+2*k+1}']
            o += [f'v_permlane16_swap_b32 v{b0+k}, v{b0+8+k}' for k in range(4)]
            for u in range(2):
                o += [f'v_accvgpr_write_b32 a{dest(2*D+u, p) - 256 + k}, v{b0+8*u+k}' for k in range(4)]
        return o
    def run(self, dest, extra=None):
        a = self.a; vq = self.vq; PF = self.PF
        hi = [0] * 8
        def rd(i):
            p, ks = i >> 4, i & 15; r = self.RING + 4 * (i % self.NG); k = ks & 7; sl = p % NS
            if hi[k] != sl >> 2:
                a(f'v_xor_b32 v{self.RA+k}, {(hi[k] ^ (sl >> 2)) << 16}, v{self.RA+k}'); hi[k] = sl >> 2
            a(f'ds_read_b128 v[{r}:{r+3}], v{self.RA+k} offset:{(sl & 3)*16384 + (ks >> 3)*256}')
        def sync(p):
            if ('p', p) in vq.q: a(f's_waitcnt vmcnt({vq.wait(("p", p))})')
            a('s_barrier')
        sync(1)
        for i in range(PF): rd(i)
        side = []; mem = []
        for i in range(14 * 16):
            p, ks = i >> 4, i & 15
            if ks == 0:
                if p & 1:
                    assert not mem
                    sync(min(p + 2, 13))
                    if self.mid: self.mid(p)
                    while self.nxt < min(14, p + NS): mem += self.dma_ops()
                if p == 0:
                    while self.nxt < min(NS, APRE + 4): mem += self.dma_ops()
                if extra: mem += extra(p)
            if i + PF < 14 * 16: rd(i + PF)
            a(f's_waitcnt lgkmcnt({min(PF, 14 * 16 - 1 - i)})')
            r = self.RING + 4 * (i % self.NG)
            for D in range(2):
                d = self.ACC + 32 * (p & 1) + 16 * D; b = self.FR + 64 * D + 4 * ks
                a(f'v_mfma_f32_32x32x16_bf16 v[{d}:{d+15}], v[{r}:{r+3}], v[{b}:{b+3}], ' + ('0' if ks == 0 else f'v[{d}:{d+15}]'))
                if D == 0 and mem:
                    for x in mem.pop(0):
                        if isinstance(x, tuple): vq.add(x[1])
                        else: a(x)
                if ks >= 1:
                    for _ in range(3 - D):
                        if side: a(side.pop(0))
            if ks == 15:
                assert not side
                side = self.epi(p, dest)
        assert not mem
        for x in side: a(x)

def flag_store(a, soff_s, R, stride, t=24):
    a(f'v_mul_u32_u24 v{t+2}, {stride}, v1')
    a(f'v_mov_b32 v{t}, s88\nv_mov_b32 v{t+1}, s89')
    a(f's_mov_b64 exec, {(1 << R) - 1}')
    a(f'buffer_store_dwordx2 v[{t}:{t+1}], v{t+2}, {WS}, {soff_s} offen sc1')
    a('s_mov_b64 exec, -1')

def flag_poll(a, P, t, loads, abort, limit, sleep=4, on_spin=None, issued=False):
    a('s_mov_b32 s30, 0')
    if issued: a(f's_branch {P}_w')
    a.label(P)
    for i, (va, so) in enumerate(loads):
        a(f'buffer_load_dwordx4 v[{t+4*i}:{t+4*i+3}], v{va}, {WS}, {so} offen sc1')
    if issued: a.label(P + '_w')
    a('s_waitcnt vmcnt(0)')
    for i in range(2 * len(loads)):
        a(f'v_cmp_ne_u64 vcc, {NONCE}, v[{t+2*i}:{t+2*i+1}]')
        a(f's_cbranch_vccnz {P}_no')
    a(f's_branch {P}_ok')
    a.label(P + '_no')
    a(f's_sleep {sleep}')
    a('s_add_u32 s30, s30, 1')
    if on_spin: on_spin()
    a(f's_cmp_lt_u32 s30, {limit}')
    a(f's_cbranch_scc1 {P}')
    a(f's_branch {abort}')
    a.label(P + '_ok')

def bjob_decode(a):
    a('s_mul_i32 s17, s18, 4682')
    a('s_lshr_b32 s17, s17, 16')
    assert all((i * 4682) >> 16 == i // 14 for i in range(224))
    a('s_mul_i32 s20, s17, 14')
    a('s_sub_u32 s19, s18, s20')
    a('s_cmp_ge_u32 s19, 7')
    a('s_cselect_b32 s31, 7, 0')
    a('s_sub_u32 s19, s19, s31')

def bjob_issue(a, vq, mat=1, P='bj', hook=None):
    srd(a, 60, 40 + 4 * mat, W_BYTES); srd(a, 56, 42 + 4 * mat, W_BYTES)
    a('s_lshl_b32 s30, s16, 13')
    if mat:
        a('s_mul_i32 s27, s17, 229376')
        a('s_lshl_b32 s29, s19, 7')
        a('s_add_u32 s27, s27, s29')
        a('v_lshrrev_b32 v7, 3, v1')
        a('v_and_b32 v8, 7, v1')
        a('s_lshl_b32 s29, s16, 6')
        a('v_add_u32 v7, s29, v7')
        a('v_mul_u32_u24 v7, 896, v7')
        a('v_lshl_add_u32 v7, v8, 4, v7')
        for i in range(8):
            if i % 4 == 0: a(f's_add_u32 m0, s30, {i*1024}')
            a(f's_add_u32 s22, s27, {i*8*896 - (i & 3)*1024}')
            a(f'buffer_load_dwordx4 v7, s[56:59], s22 offen offset:{(i & 3)*1024} lds')
    else:
        a('s_lshl_b32 s27, s19, 19')
        a('s_lshl_b32 s29, s16, 17')
        a('s_add_u32 s27, s27, s29')
        a('s_lshl_b32 s29, s17, 9')
        a('s_add_u32 s27, s27, s29')
        a('v_lshrrev_b32 v5, 5, v1')
        a('v_and_b32 v6, 31, v1')
        a('v_xor_b32 v6, v6, v5')
        a('v_lshlrev_b32 v6, 4, v6')
        a('v_lshl_add_u32 v6, v5, 13, v6')
        for i in range(8):
            if i % 4 == 0: a(f's_add_u32 m0, s30, {i*1024}')
            a(f's_add_u32 s22, s27, {i*16384 - (i & 3)*1024}')
            a(f'v_xor_b32 v7, {32*i}, v6')
            a(f'buffer_load_dwordx4 v7, s[56:59], s22 offen offset:{(i & 3)*1024} lds')
    vq.add('stat', 8)
    if hook: hook()
    a('v_lshrrev_b32 v5, 5, v1')
    a('v_and_b32 v6, 31, v1')
    a('s_lshl_b32 s25, s16, 15')
    a('s_add_u32 s25, s25, 32768')
    a('s_lshl_b32 s26, s17, 9')
    for k, sp in ((0, 's28'), (4, 's29')):
        a(f's_add_u32 {sp}, s19, s16')
        if k: a(f's_add_u32 {sp}, {sp}, {k}')
        a(f's_cmp_ge_u32 {sp}, 7')
        a('s_cselect_b32 s20, 7, 0')
        a(f's_sub_u32 {sp}, {sp}, s20')
        a(f's_add_u32 {sp}, {sp}, s31')
    a('s_lshl_b32 s32, s28, 18\ns_add_u32 s32, s32, s26')
    a('s_lshl_b32 s33, s29, 18\ns_add_u32 s33, s33, s26')
    a('v_xor_b32 v8, v6, v5')
    a('v_lshlrev_b32 v8, 4, v8')
    a('v_lshl_add_u32 v8, v5, 13, v8')
    for i in range(4):
        a(f'v_xor_b32 v{12+i}, {32*(i & 1)}, v8')
        if i: a(f'v_add_u32 v{12+i}, {i*(16384-1024)}, v{12+i}')
    for j in range(4):
        a(f's_add_u32 s20, s16, {j}')
        a('s_and_b32 s20, s20, 3')
        a(f's_mul_i32 s21, s20, {65536 + 64}')
        a('s_lshl_b32 s20, s20, 12')
        a(f's_add_u32 s{48 + j}, s20, s25')
        a(f's_mov_b32 m0, s{48 + j}')
        for i in range(4):
            a(f'v_xor_b32 v{16+4*j+i}, s21, v{12+i}')
            a(f'buffer_load_dwordx4 v{16+4*j+i}, s[60:63], s32 offen offset:{i*1024} lds')
    vq.add('p0', 16)
    a('s_cmp_eq_u32 s16, 3')
    a(f's_cbranch_scc1 {P}_np1')
    for i in range(16):
        if i % 4 == 0: a(f's_add_u32 m0, s{48 + (i >> 2)}, 16384')
        a(f'buffer_load_dwordx4 v{16+i}, s[60:63], s33 offen offset:{(i & 3)*1024} lds')
    vq.add('p1', 16)
    a.label(f'{P}_np1')

def bjob_x(a, vq):
    srd(a, 52, 36, 2048 * 448 * 2)
    a('s_lshl_b32 s20, s18, 8')
    a('v_add_u32 v95, s20, v0')
    M448 = (1 << 32) // 448 + 1
    assert all((u * M448) >> 32 == u // 448 for u in range(57344))
    a(f's_mov_b32 s21, {M448}')
    a('v_mul_hi_u32 v6, v95, s21')
    a('v_mul_u32_u24 v7, 448, v6')
    a('v_sub_u32 v7, v95, v7')
    a('v_lshrrev_b32 v8, 4, v7')
    a('v_and_b32 v7, 15, v7')
    a('v_lshl_add_u32 v9, v6, 4, v7')
    a('v_mul_u32_u24 v9, 896, v9')
    a('v_lshl_add_u32 v9, v8, 5, v9')
    a('buffer_load_dwordx4 v[84:87], v9, s[52:55], 0 offen')
    a('buffer_load_dwordx4 v[88:91], v9, s[52:55], 0 offen offset:16')
    vq.add('x', 2)
    a(f'v_mul_u32_u24 v6, {14*KB}, v6')
    a('v_lshl_add_u32 v6, v7, 4, v6')
    a('v_lshl_add_u32 v92, v8, 9, v6')
    a('v_lshrrev_b32 v7, 2, v8')
    a('v_lshl_add_u32 v6, v7, 11, v6')
    a('v_and_b32 v7, 3, v8')
    a('v_lshl_add_u32 v93, v7, 8, v6')
    srd(a, 72, 38, 8 * 448 * 2)
    a('v_min_u32 v6, 223, v0')
    a('v_lshrrev_b32 v7, 3, v6')
    a('v_and_b32 v6, 7, v6')
    a('v_mul_u32_u24 v9, 896, v6')
    a('v_lshl_add_u32 v9, v7, 5, v9')
    a('buffer_load_dwordx4 v[36:39], v9, s[72:75], 0 offen')
    a('buffer_load_dwordx4 v[40:43], v9, s[72:75], 0 offen offset:16')
    vq.add('x', 2)
    a('v_lshlrev_b32 v7, 8, v7')
    a('v_lshl_add_u32 v94, v6, 4, v7')

def a1_touch(a, vq):
    a('s_cmp_lt_u32 s16, 2')
    a('s_cselect_b32 s20, s40, s42')
    a('s_cselect_b32 s21, s41, s43')
    srd(a, 72, 20, W_BYTES)
    a('s_add_u32 s20, s19, s31')
    a('s_lshl_b32 s21, s20, 5')
    a('s_lshl_b32 s22, s16, 4')
    a('s_add_u32 s21, s21, s22')
    a('s_mul_i32 s20, s20, 14')
    a('s_add_u32 s20, s20, 250')
    a('s_cmp_lt_u32 s16, 2')
    a('s_cselect_b32 s20, s21, s20')
    a('s_lshl_b32 s20, s20, 13')
    a('s_add_u32 s20, s20, s26')
    a('v_lshlrev_b32 v6, 13, v4')
    a('v_lshl_add_u32 v6, v3, 7, v6')
    a('buffer_load_dword v51, v6, s[72:75], s20 offen')
    vq.add('t')

def wait3(a, n, extra=''):
    l = a.newlabel('w3')
    a(f's_waitcnt vmcnt({n}){extra}')
    a('s_cmp_lg_u32 s16, 3')
    a(f's_cbranch_scc1 {l}')
    a(f's_waitcnt vmcnt({n-16})')
    a.label(l)

def _fills(a, vq):
    import tok
    PTL = (64 - tok.LASTP) * 2 * PT_B
    assert PT_OFF + 128 * PT_B == MEMG_OFF
    k = 0
    for base, n, zlo, zn in ((EXCH_OFF, 66 * EXCH_B // 16, F2 // 16, 256), (MEMG_OFF - PTL, (PTL + 64 * 7 * KB + CNT_B) // 16, (PTL + 64 * 7 * KB) // 16, 1 << 20)):
        a(f's_mov_b32 s23, {base}')
        for j in range((n - 448 + 57343) // 57344):
            r = 52 + 4 * k
            a(f'v_add_u32 v6, {448 + 57344*j}, v95')
            if base != EXCH_OFF:
                a(f'v_cmp_gt_u32 vcc, {PTL // 16}, v95')
                a('v_cndmask_b32 v6, v6, v95, vcc')
            a(f'v_subrev_u32 v7, {zlo}, v6')
            a(f'v_mov_b32 v{r}, -1')
            a('v_mov_b32 v9, 0')
            a(f'v_cmp_gt_u32 vcc, {zn}, v7')
            a(f'v_cndmask_b32 v{r}, v{r}, v9, vcc')
            for q in range(1, 4): a(f'v_mov_b32 v{r+q}, v{r}')
            a('v_lshlrev_b32 v8, 4, v6')
            a('v_mov_b32 v9, 0x10000000')
            a(f'v_cmp_lt_u32 vcc, {n-1}, v6')
            a('v_cndmask_b32 v8, v8, v9, vcc')
            a(f'buffer_store_dwordx4 v[{r}:{r+3}], v8, {WS}, s23 offen sc1')
            vq.add('fill'); k += 1

def bjob_run(a, P, vq, mat=1, confirm=None, fs='s28', finish=True, late=None):
    BST = 128
    for q in range(4):
        if mat:
            a('s_lshl_b32 s30, s19, 6')
            a(f's_add_u32 s30, s30, {16*q}')
            a('v_add_u32 v8, s30, v4')
            a('v_mul_u32_u24 v10, 2341, v8')
            a('v_lshrrev_b32 v10, 16, v10')
            a('v_mul_u32_u24 v11, 28, v10')
            a('v_sub_u32 v32, v8, v11')
            a('s_mul_i32 s30, s17, 28')
            a('v_add_u32 v32, s30, v32')
            a('v_lshrrev_b32 v33, 4, v32')
            a('v_and_b32 v32, 15, v32')
            a(f's_mov_b32 s30, {CUW_B}')
            a('v_mul_lo_u32 v10, v10, s30')
            a(f'v_mul_u32_u24 v33, {TILE_B}, v33')
            a('v_add_u32 v10, v10, v33')
            a('v_lshl_add_u32 v10, v3, 8, v10')
            a('v_lshl_add_u32 v10, v32, 4, v10')
            a(f'v_add_u32 v{12+q}, {WF_B}, v10')
        else:
            if q == 0:
                a(f's_mul_i32 s30, s17, {CUW_B}')
                a(f's_mul_i32 s20, s19, {4*TILE_B}')
                a('s_add_u32 s30, s30, s20')
                a('v_add_u32 v12, s30, v2')
            else: a(f'v_add_u32 v{12+q}, {q*TILE_B}, v12')
            assert WF_A == 0
    a('v_lshrrev_b32 v7, 2, v4')
    a('v_lshlrev_b32 v7, 3, v7')
    a('v_and_b32 v8, 3, v4')
    a('v_add_u32 v7, v7, v8')
    a('v_xor_b32 v10, v3, v4')
    a('v_lshlrev_b32 v10, 4, v10')
    a('v_lshl_add_u32 v10, v7, 9, v10')
    a('v_add_u32 v10, s25, v10')
    for k3 in range(4): a(f'v_xor_b32 v{32+k3}, {64*k3}, v10')
    if mat:
        a('v_lshrrev_b32 v7, 2, v4')
        a('v_lshl_add_u32 v7, v3, 3, v7')
        a('v_lshlrev_b32 v7, 7, v7')
        a('v_and_b32 v8, 3, v4')
        a('v_lshl_add_u32 v7, v8, 3, v7')
    else:
        a('v_and_b32 v8, 2, v4')
        a('v_lshlrev_b32 v8, 1, v8')
        a('v_and_b32 v9, 1, v4')
        a('v_add_u32 v8, v8, v9')
        a('v_lshrrev_b32 v7, 2, v4')
        a('v_lshl_add_u32 v7, v7, 4, v8')
        a('v_xor_b32 v8, v8, v3')
        a('v_lshlrev_b32 v8, 4, v8')
        a('v_lshl_add_u32 v7, v7, 9, v8')
        a(f's_mov_b32 s24, {SIGMA}')
    wait3(a, vq.wait("stat"))
    a('s_barrier')
    for q in range(4):
        for kk in range(8):
            r = BST + (q * 8 + kk) * 4
            if mat:
                for hf in range(2):
                    a(f'ds_read_b64_tr_b16 v[{r+2*hf}:{r+2*hf+1}], v7 offset:{(32*kk + 4*hf)*128 + q*32}')
                if kk & 3 == 3: a('s_waitcnt lgkmcnt(6)')
            else:
                ro = 8 * (q >> 1) + 2 * (q & 1)
                if kk < 4: a(f'v_xor_b32 v{8+kk}, {((4*kk) ^ ro) << 4}, v7')
                a(f'ds_read_b128 v[{r}:{r+3}], v{8 + (kk & 3)} offset:{ro*512 + (kk >> 2)*256}')
                if kk == 7: a('s_waitcnt lgkmcnt(4)')
    ACC = 96; FR = 52
    for it in range(2):
        if it == 1:
            a('s_cmp_eq_u32 s16, 3')
            a(f's_cbranch_scc1 {P}_w3')
        if it == 0: wait3(a, vq.wait('p0'), ' lgkmcnt(0)')
        else: a(f's_waitcnt vmcnt({vq.wait("p1")})')
        if it == 0 and late: late()
        def rd(i): a(f'ds_read_b128 v[{FR+4*(i&3)}:{FR+4*(i&3)+3}], v{32 + (i & 3)} offset:{it*16384 + (i >> 3)*2048 + ((i & 7) >> 2)*256}')
        for i in range(3): rd(i)
        for i in range(16):
            tau, kk = i >> 3, i & 7
            if i + 3 < 16: rd(i + 3)
            a(f's_waitcnt lgkmcnt({min(3, 15 - i)})')
            for q in range(4):
                d = ACC + 16 * tau + 4 * q; b = BST + (q * 8 + kk) * 4
                c = '0' if kk == 0 else f'v[{d}:{d+3}]'
                a(f'v_mfma_f32_16x16x32_bf16 v[{d}:{d+3}], v[{FR+4*(i&3)}:{FR+4*(i&3)+3}], v[{b}:{b+3}], {c}')
        if it == 0 and confirm: confirm()
        a(f's_lshl_b32 s30, {"s29" if it else "s28"}, 10')
        for q in range(4):
            o = 68 + 4 * q
            for tau in range(2):
                d = ACC + 16 * tau + 4 * q
                if not mat:
                    for k in range(4): a(f'v_mul_f32 v{d+k}, s24, v{d+k}')
                a(f'v_cvt_pk_bf16_f32 v{o+2*tau}, v{d}, v{d+1}')
                a(f'v_cvt_pk_bf16_f32 v{o+2*tau+1}, v{d+2}, v{d+3}')
            a(f'buffer_store_dwordx4 v[{o}:{o+3}], v{12+q}, {WS}, s30 offen sc1')
            vq.add('st')
    a.label(f'{P}_w3')
    a(f's_lshl_b32 {fs}, {"s19" if mat else "s17"}, {8 if mat else 7}')
    a(f's_lshl_b32 s21, {"s17" if mat else "s19"}, 4')
    a(f's_add_u32 {fs}, {fs}, s21')
    a('s_cmp_lg_u32 s31, 0')
    a('s_cselect_b32 s21, 8, 0')
    a(f's_add_u32 {fs}, {fs}, s21')
    a(f's_add_u32 {fs}, {fs}, {BF_OFF if mat else AF_OFF}')
    if finish:
        a('s_waitcnt vmcnt(0)')
        publish(a, fs, 1)

def publish(a, fs, R, t=24):
    l = a.newlabel('pub')
    a('s_barrier')
    a('s_cmp_lg_u32 s16, 0')
    a(f's_cbranch_scc1 {l}')
    flag_store(a, fs, R, 2048, t)
    a.label(l)

def init_stores(a, P, vq, wait=True):
    if wait: a('s_waitcnt vmcnt(4)')
    for j in range(4):
        a(f'v_mov_b32 v{96+j}, v{84+2*j}')
        a(f'v_mov_b32 v{100+j}, v{85+2*j}')
        a(f'v_min_u32 v{104+j}, -2, v{36+2*j}')
        a(f'v_min_u32 v{108+j}, -2, v{37+2*j}')
    a(f's_mov_b32 s20, {XF_OFF}\ns_mov_b32 s21, {XM_OFF}')
    a(f'buffer_store_dwordx4 v[84:87], v92, {WS}, s20 offen sc1')
    a(f'buffer_store_dwordx4 v[88:91], v92, {WS}, s20 offen offset:256 sc1')
    a(f'buffer_store_dwordx4 v[96:99], v93, {WS}, s21 offen sc1')
    a(f'buffer_store_dwordx4 v[100:103], v93, {WS}, s21 offen offset:1024 sc1')
    a('s_cmp_lg_u32 s18, 0')
    a(f's_cbranch_scc1 {P}_nm')
    a(f's_mov_b32 s20, {EXCH_OFF}\ns_mov_b32 s21, {MEMG_OFF}')
    for sb in ('s20', 's21'):
        a(f'buffer_store_dwordx4 v[104:107], v94, {WS}, {sb} offen sc1')
        a(f'buffer_store_dwordx4 v[108:111], v94, {WS}, {sb} offen offset:128 sc1')
    a.label(f'{P}_nm')

def llc_warm(a, it='s18'):
    a(f's_and_b32 s20, {it}, 3')
    a('s_lshl_b32 s20, s20, 3')
    a('s_add_u32 s20, s20, 8')
    a('s_cmp_eq_u32 s16, 0')
    a('s_cselect_b32 s20, 0, s20')
    a('s_cmp_ge_u32 s16, 2')
    a('s_cselect_b32 s20, 112, s20')
    a('s_load_dwordx2 s[72:73], s[0:1], s20')
    a(f's_lshr_b32 s21, {it}, 2')
    a('s_lshl_b32 s21, s21, 12')
    a('s_mov_b32 s74, 229376')
    a(f's_lshl_b32 s22, {it}, 13')
    a('s_cmp_eq_u32 s16, 0')
    a('s_cselect_b32 s21, s22, s21')
    a('s_cselect_b32 s74, 1835008, s74')
    a(f's_lshl_b32 s22, {it}, 1')
    a('s_add_u32 s22, s22, s16')
    a('s_sub_u32 s22, s22, 2')
    a('s_lshl_b32 s22, s22, 13')
    a('s_cmp_ge_u32 s16, 2')
    a('s_cselect_b32 s21, s22, s21')
    a('s_cselect_b32 s74, 3670016, s74')
    a('v_lshlrev_b32 v6, 3, v2')
    a('s_cmp_eq_u32 s16, 1')
    a('s_cselect_b32 exec_hi, 0, -1')
    a('s_waitcnt lgkmcnt(0)')
    a('s_and_b32 s73, s73, 0xffff\ns_mov_b32 s75, 0x20000')
    a('buffer_load_dword v7, v6, s[72:75], s21 offen')
    a('s_mov_b64 exec, -1')

def a3_issue(a, hook):
    srd(a, 56, 40, W_BYTES); srd(a, 60, 42, W_BYTES)
    a('s_add_u32 s28, s31, s19')
    a('v_lshrrev_b32 v5, 5, v1')
    a('v_and_b32 v6, 31, v1')
    a('v_xor_b32 v6, v6, v5')
    a('v_lshlrev_b32 v6, 4, v6')
    a('v_lshl_add_u32 v6, v5, 13, v6')
    a('s_lshl_b32 s20, s16, 6')
    a('v_xor_b32 v7, s20, v6')
    a('s_lshl_b32 s22, s28, 18')
    a('s_lshl_b32 s21, s16, 16')
    a('s_add_u32 s22, s22, s21')
    a('s_add_u32 s22, s22, s26')
    a('s_lshl_b32 m0, s16, 12')
    for i in range(4):
        a(f'v_xor_b32 v8, {32*(i & 1)}, v7')
        if i: a(f'v_add_u32 v8, {i*(16384-1024)}, v8')
        a(f'buffer_load_dwordx4 v8, s[56:59], s22 offen offset:{i*1024} lds')
    for i in range(8):
        a(f'v_xor_b32 v{16+i}, {32*i}, v6')
        if i: a(f'v_add_u32 v{16+i}, {((16*(i >> 1) + 4*(i & 1)) << 13) - (i & 3)*1024}, v{16+i}')
    a('s_lshr_b32 s20, s16, 1')
    a('s_lshl_b32 s20, s20, 16')
    a('s_and_b32 s21, s16, 1')
    a('s_lshl_b32 s21, s21, 14')
    a('s_add_u32 s20, s20, s21')
    a('s_add_u32 s29, s20, s26')
    a(f's_mul_i32 s25, s16, {24*KB}')
    a(f's_add_u32 s25, s25, {16*KB}')
    for t in range(3):
        a(f's_add_u32 s22, s29, {(256 + 64*t) << 13}')
        for i in range(8):
            if i % 4 == 0: a(f's_add_u32 m0, s25, {t*8192 + i*1024}')
            a(f'buffer_load_dwordx4 v{16+i}, s[60:63], s22 offen offset:{(i & 3)*1024} lds')
        if t == 0: hook(12)

def a3_run(a, hook=None):
    a('v_lshrrev_b32 v7, 2, v4')
    a('v_lshlrev_b32 v7, 3, v7')
    a('v_and_b32 v8, 3, v4')
    a('v_add_u32 v7, v7, v8')
    a('v_xor_b32 v10, v3, v4')
    a('v_lshlrev_b32 v10, 4, v10')
    a('v_lshl_add_u32 v11, v4, 9, v10')
    a('v_add_u32 v11, s25, v11')
    a('v_lshl_add_u32 v10, v7, 9, v10')
    for k3 in range(4):
        a(f'v_xor_b32 v{32+k3}, {64*k3}, v10')
        a(f'v_xor_b32 v{36+k3}, {64*k3}, v11')
    a(f's_mul_i32 s30, s17, {CUW_B}')
    a(f's_mul_i32 s20, s16, {TILE_B}')
    a('s_add_u32 s30, s30, s20')
    a('s_lshl_b32 s20, s28, 10')
    a('s_add_u32 s30, s30, s20')
    a(f's_mov_b32 s24, {SIGMA}')
    a('s_lshl_b32 s20, s17, 7')
    a('s_lshl_b32 s28, s28, 3')
    a('s_add_u32 s28, s28, s20')
    a(f's_add_u32 s28, s28, {A3_OFF}')
    a('s_waitcnt vmcnt(1)')
    a('s_barrier')
    if hook: hook()
    FR = 128; ACC = 96
    def rd(kk):
        b = FR + 20 * (kk % 3)
        for tau in range(2): a(f'ds_read_b128 v[{b+4*tau}:{b+4*tau+3}], v{32 + (kk & 3)} offset:{tau*2048 + (kk >> 2)*256}')
        for t in range(3): a(f'ds_read_b128 v[{b+8+4*t}:{b+11+4*t}], v{36 + (kk & 3)} offset:{t*8192 + (kk >> 2)*256}')
    rd(0); rd(1)
    for kk in range(8):
        if kk + 2 < 8: rd(kk + 2)
        a(f's_waitcnt lgkmcnt({5 * min(2, 7 - kk)})')
        b = FR + 20 * (kk % 3)
        for t in range(3):
            for tau in range(2):
                d = ACC + 8 * t + 4 * tau
                a(f'v_mfma_f32_16x16x32_bf16 v[{d}:{d+3}], v[{b+4*tau}:{b+4*tau+3}], v[{b+8+4*t}:{b+11+4*t}], ' + ('0' if kk == 0 else f'v[{d}:{d+3}]'))
    for t in range(3):
        d = ACC + 8 * t; o = 68 + 4 * t
        for k in range(8): a(f'v_mul_f32 v{d+k}, s24, v{d+k}')
        for k in range(4): a(f'v_cvt_pk_bf16_f32 v{o+k}, v{d+2*k}, v{d+2*k+1}')
        a(f's_add_u32 s20, s30, {(16 + 4*t)*TILE_B}')
        a(f'buffer_store_dwordx4 v[{o}:{o+3}], v2, {WS}, s20 offen sc1')
    a('s_waitcnt vmcnt(0)')
    publish(a, 's28', 1)
```

```python
from asmlib import *
from layout import *

SRD = 's[8:11]'; DBG = 's[12:15]'
SPIN_LIMIT = 400000
SLOW_LIMIT = 50000
NSTEPS = 64
STAMPS = False
STAMP_STEP = 32
STAMP_CYC = 0
STEPLOG = 0
STAMP_OFF = 100 * 1024 * 1024
POLL_DEPTH = 3
POLL_GAP = 0
SC_SLEEP = 0
M_GAP = 4
SC_DELAY = 0
F1_POS = 11
F2_POS = 4
VA_DELAY = 0
VO_POS = 1
P_GAP = 5
ZFILL = 1
SC_ALLPOLL = 0
FOLDW = 1
NANCHK = 1
VO_PRE0 = 0
VO_PRE = 16
VO_SLEEP = 0
F1_WAVE = 2
RB1_DELAY = 0
EC_M = 0
EC_P = 0
DIAG = 0
T2SRV = 1
SLOW_FIRST = 0
B2_POS = 0
M_ROT = 0
CODE_PF = 1
PUB_EARLY = 0
HLP_SLEEP = 0
MERGE = 0
A_TGT = 28
B_TGT = 64
SELF_POISON = 0
X_PRELOAD = 0
VO_NT = 0
FIN_SLEEP = 0
VM_BURST = 0
PUBLISH = 1
VM_EVERY = 2
PUB_FIRST = 1
VO_EARLY = 0
FLAG_SLEEP = 0
SYNC = 0
XCD_SEL = 0
NOBULK = 0
VAL_TOUCH = 0
SC_TOUCH = 0
TOUCH_POS = 2
TOUCH_AHEAD = 2
DMA_DELAY = 0
PLAIN_M = 1
MRG = 1
T2DF = 0
T2DH = 0
NOT2 = 0
ECP = 0
ALIGN = 6
APAD = 0
FAST = 1
EPI2 = 1
F2ONE = 0
SELF = 0
BDEP = None
BST2 = 0
R1 = 16
R2 = 32
PD_S = 5
PG_S = 8
PD_V = 5
PG_V = 8
PD_H = 3
PG_H = 0
VST = 0
VSM = 1
NPP = 10
VZ = 3
NPRE = 3
LPOS = 1
PLAIN_P = 1
D = 'row_mask:0xf bank_mask:0xf'
XSEG_B = 28 * KB

def stamp(a, k):
    if STAMPS: a(f'{"s_memtime" if STAMP_CYC else "s_memrealtime"} s[{40+2*k}:{41+2*k}]')
def stamp_flush(a, path, n, lbl, t=118):
    if not STAMPS: return
    a(f's_cmp_lg_u32 s19, {STAMP_STEP}')
    a(f's_cbranch_scc1 {lbl}')
    a('s_waitcnt lgkmcnt(0)')
    a(f's_lshl_b32 s22, s17, 9')
    a(f's_add_u32 s22, s22, {STAMP_OFF + path * 64}')
    a(f'v_mov_b32 v{t}, 0')
    for k in range(n):
        a(f'v_mov_b32 v{t+1}, s{40+2*k}')
        a(f'buffer_store_dword v{t+1}, v{t}, {SRD}, s22 offen offset:{4*k}')
    a.label(lbl)

EVLOG = 0
EV_OFF = 101 * 1024 * 1024
def evlog(a, tag, t=36):
    if not EVLOG: return
    a('s_memrealtime s[98:99]')
    a('s_waitcnt lgkmcnt(0)')
    a(f'v_mov_b32 v{t}, {tag}')
    a(f'v_mov_b32 v{t+1}, s98')
    a('s_mov_b64 exec, 1')
    a(f'buffer_store_dwordx2 v[{t}:{t+1}], off, {SRD}, s100')
    a('s_mov_b64 exec, -1')
    a('s_add_u32 s100, s100, 8')

TMAX = 0
def tmax(a, slot, t=36):
    if not TMAX: return
    a('s_memrealtime s[98:99]')
    a('s_waitcnt lgkmcnt(0)')
    a('s_sub_u32 s98, s98, s88')
    a(f'v_mov_b32 v{t}, s98')
    a('s_mov_b64 exec, 1')
    a(f'buffer_store_dword v{t}, off, {DBG}, 0 offset:{4*slot}')
    a('s_mov_b64 exec, -1')

def exec_lo(a, R):
    if R == 32: a('s_mov_b32 exec_hi, 0')
    else: a(f's_mov_b64 exec, {(1 << R) - 1}')

def spin(a, back, abort):
    a('s_add_u32 s30, s30, 1')
    a(f's_cmp_lt_u32 s30, {SPIN_LIMIT}')
    a(f's_cbranch_scc1 {back}')
    a(f's_branch {abort}')

def flagpoll(a, vaddr, sbase, regs, lbl, abort, Dp=None, gap=None, issued=0):
    Dp = Dp or POLL_DEPTH
    gap = POLL_GAP if gap is None else gap
    for i in range(issued, Dp):
        a(f'buffer_load_dword v{regs+i}, v{vaddr}, {SRD}, {sbase} offen sc1')
        if i < Dp - 1: a.nop(gap)
    a.label(lbl + '_l')
    for i in range(Dp):
        a(f's_waitcnt vmcnt({Dp-1})')
        a(f'v_cmp_eq_u32 vcc, -1, v{regs+i}')
        a(f's_cbranch_vccz {lbl}_d')
        a(f'buffer_load_dword v{regs+i}, v{vaddr}, {SRD}, {sbase} offen sc1')
    spin(a, lbl + '_l', abort)
    a.label(lbl + '_d')

def load_M(a, M, gap=0, k0=0):
    for ks in range(k0, 7):
        so = 's20' if ks < 4 else 's23'
        a(f'buffer_load_dwordx4 v[{M+4*ks}:{M+4*ks+3}], v2, {SRD}, {so} offen offset:{(ks & 3) * 1024} sc1')
        if gap and ks < 3: a.nop(gap)

def load_units(a, units, base, tmp_s='s22'):
    cur = None; n = 0
    for off, reg in units:
        for hb in range(2):
            o = off + hb * 1024
            blk = o // 4096 * 4096
            if blk != cur:
                a(f's_add_u32 {tmp_s}, {base}, {blk}'); cur = blk
            a(f'buffer_load_dwordx4 {ureg(reg + 4 * hb, 4)}, v2, {SRD}, {tmp_s} offen offset:{o - blk}' + (' sc1' if MERGE else ''))
            n += 1
            if n % 32 == 0: a('s_waitcnt vmcnt(24)')

def wreg(ti, ks):
    u = ti * 7 + ks
    return 256 + 8 * u if u < 32 else 120 + 8 * (u - 32)

def lane_consts(a):
    a('v_and_b32 v1, 63, v0')
    a('v_lshlrev_b32 v2, 4, v1')
    a('v_lshrrev_b32 v116, 4, v1')
    a('v_and_b32 v117, 15, v1')
    a('v_mov_b32 v3, 0x4444')
    a('v_mov_b32 v118, 0xeeee')
    a('v_cmp_lt_u32 vcc, 7, v117')
    a('v_cndmask_b32 v3, v3, v118, vcc')

def step_bases(a):
    a('s_add_u32 s23, s20, 4096')
    a(f's_add_u32 s21, s20, {EXCH_B}')

class Checker:
    def __init__(self, a, acc): self.a = a; self.acc = acc; self.q = []; self.first = True
    def add(self, r, n=4): self.q += list(range(r, r + n))
    def emit(self, k=1):
        for _ in range(k):
            if self.first and len(self.q) >= 3:
                x, y, z = self.q[:3]; self.q = self.q[3:]
                self.a(f'v_max3_u32 v{self.acc}, v{x}, v{y}, v{z}'); self.first = False
            elif len(self.q) >= 2:
                x, y = self.q[:2]; self.q = self.q[2:]
                self.a(f'v_max3_u32 v{self.acc}, v{self.acc}, v{x}, v{y}')
            elif len(self.q) == 1:
                self.a(f'v_max_u32 v{self.acc}, v{self.acc}, v{self.q[0]}'); self.q = []
    def drain(self):
        while self.q: self.emit()

XP = 2 * XSEG_B
MP = XP + 8 * KB
def score_tiles(w):
    return [(w, 0), (w, 1), (w, 2), (w, 3), (4 + (w >> 1), 2 * (w & 1)), (4 + (w >> 1), 2 * (w & 1) + 1), (6, w)]

def x_dma(a, w):
    a(f's_add_u32 m0, s25, {7*w*1024}')
    for f in range(7):
        if f == 4:
            a(f's_add_u32 m0, s25, {7*w*1024 + 4096}')
            a('s_add_u32 s22, s24, 4096')
        a(f'buffer_load_dwordx4 v2, {SRD}, {"s24" if f < 4 else "s22"} offen offset:{(f & 3) * 1024}' + (' sc1' if MERGE else '') + ' lds')

def gen_score(a, w, st, tag):
    L = lambda n: f'{tag}_sc{w}_{n}'
    ABORT = f'{tag}_abort'
    M = 8; ACC = 36; AOP = 64; TR = 68; BOP6 = 76; BOPB = 80; BOPA = 60; SACC = 84; SX = 88
    XS = [96, 104, [12, 16, 8, 8][w], 52, 36]
    ka, kb = w, 4 + (w >> 1)
    half6, piece6, pieceP = w & 1, w >> 1, w & 1
    def S(ti, ks):
        return f'v_smfmac_f32_16x16x64_bf16 v[{ACC+4*ti}:{ACC+4*ti+3}], v[{M+4*ks}:{M+4*ks+3}], {ureg(wreg(ti, ks), 8)}, v3'
    def cvt(dst, src):
        return [f'v_cvt_pk_bf16_f32 v{dst}, v{src}, v{src+1}', f'v_cvt_pk_bf16_f32 v{dst+1}, v{src+2}, v{src+3}']
    def T(dst): return f'v_mfma_f32_16x16x32_bf16 v[{dst}:{dst+3}], v[{AOP}:{AOP+3}], v[4:7], 0'
    def xrd(buf, kap, tt):
        off = (tt * 14 + 2 * kap) * 1024
        return [f'ds_read_b128 v[{XS[buf]}:{XS[buf]+3}], v116 offset:{off}', f'ds_read_b128 v[{XS[buf]+4}:{XS[buf]+7}], v116 offset:{off+1024}']
    def xrd2(buf, tt):
        return [f'ds_read_b128 v[{XS[buf]}:{XS[buf]+3}], v117 offset:{tt*14*KB}', f'ds_read_b128 v[{XS[buf]+4}:{XS[buf]+7}], v117 offset:{tt*14*KB+1024}']
    xfirst = (lambda: xrd2(0, 0) + xrd2(1, 1)) if MRG else (lambda: xrd(0, 6, 0) + xrd(1, 6, 1))
    def Smm(kap, b, first=False):
        c = '0' if first else f'v[{SACC}:{SACC+3}]'
        return f'v_mfma_f32_16x16x32_bf16 v[{SACC}:{SACC+3}], v[{M+4*kap}:{M+4*kap+3}], v[{b}:{b+3}], {c}'
    def Sx(tt, b, buf):
        return f'v_smfmac_f32_16x16x64_bf16 v[{SX+4*tt}:{SX+4*tt+3}], v[{b}:{b+3}], v[{XS[buf]}:{XS[buf]+7}], v3'
    ZR = list(range(ACC, ACC + 28)) + list(range(SX, SX + 8)) + [AOP + 2 - 2 * half6, AOP + 3 - 2 * half6]
    def zero(lo=0, hi=99):
        for r in ZR[lo:hi]: a(f'v_mov_b32 v{r}, 0')
    o1 = [(k + w) % 4 for k in range(4)] if M_ROT else [0, 1, 2, 3]
    o2 = [4 + (k + w) % 3 for k in range(3)] if M_ROT else [4, 5, 6]
    def ml(ks, first=False):
        a(f'buffer_load_dwordx4 v[{M+4*ks}:{M+4*ks+3}], v2, {SRD}, {"s20" if ks < 4 else "s23"} offen offset:{(ks & 3) * 1024}' + ('' if first and PLAIN_M and st == '' else ' sc1'))
    if ALIGN: a.raw(f'.p2align {ALIGN}\n' + '  s_nop 0\n' * APAD)
    a.label(L('loop'))
    step_bases(a)
    zero(3 * M_GAP if ZFILL else 0)
    a('s_mov_b32 s30, 0')
    if NANCHK: a('s_mov_b32 s62, 0')
    if SC_ALLPOLL:
        a('s_waitcnt vmcnt(0)')
        a('s_barrier')
        if SC_SLEEP: a(f's_sleep {SC_SLEEP}')
        flagpoll(a, 117, 's20', TR, L('fp'), ABORT)
        stamp(a, 0)
    else:
        if w == 0:
            if SC_SLEEP: a(f's_sleep {SC_SLEEP}')
            flagpoll(a, 0, 's20', TR, L('fp'), ABORT, PD_S, PG_S)
            if SC_DELAY: a.nop(SC_DELAY)
            ml(o1[0], True)
            a('s_barrier')
            stamp(a, 0)
            a(f's_branch {L("ld1")}')
        else:
            a('s_waitcnt vmcnt(0)')
            stamp(a, 7)
            a('s_barrier')
            stamp(a, 0)
    a.label(L('ld'))
    ml(o1[0], NANCHK)
    if w == 0: a.label(L('ld1'))
    order = o1 + o2
    for i, ks in enumerate(order[1:NPRE]):
        if i < 3:
            if ZFILL: zero(i * M_GAP, (i + 1) * M_GAP)
            else: a.nop(M_GAP)
        ml(ks, NANCHK)
    if ZFILL and NPRE < 4: zero((NPRE - 1) * M_GAP, 3 * M_GAP)
    if NANCHK and NPRE == 7: a.label(L('ld2'))
    for x in xfirst(): a(x)
    ck = Checker(a, 118)
    issued = NPRE
    late = order[NPRE:]
    for i, ks in enumerate(o1):
        a(f's_waitcnt vmcnt({issued-1-i})')
        if i < EC_M:
            a.label(L(f'e{i}'))
            r = M + 4 * ks
            a(f'v_max3_u32 v{TR}, v{r}, v{r+1}, v{r+2}')
            a(f'v_max_u32 v{TR}, v{TR}, v{r+3}')
            a(f'v_cmp_eq_u32 vcc, -1, v{TR}')
            a(f's_cbranch_vccnz {L(f"er{i}")}')
        elif not NANCHK: ck.add(M + 4 * ks)
        if i == 0: stamp(a, 1)
        for ti in range(7):
            a(S(ti, ks))
            if ti in (1, 3): ck.emit()
            if late and ti in ((LPOS, LPOS + 3) if LPOS < 4 else (LPOS - 4,)):
                ml(late.pop(0), NANCHK); issued += 1
    assert not late
    a('s_waitcnt vmcnt(0)')
    if NPRE < 7: a.label(L('ph2'))
    stamp(a, 2)
    for k in (4, 5, 6):
        if not NANCHK: ck.add(M + 4 * k)
    seq = []
    for ti in (6, 4, 5, 0, 1, 2, 3):
        for ks in (4, 5, 6): seq.append([S(ti, ks), []])
    def side(i, ops): seq[i][1] += ops
    CK = 'CK'
    for i in range(6): side(i, [CK])
    if MRG:
        M2 = 80
        side(0, xrd(2, ka, 0))
        if (w == 1 or w == 2): side(1, [f'buffer_load_dword v119, v0, {SRD}, {"s20" if w == 1 else "s24"} offen sc1'])
        mv = [f'v_mov_b32 v{M2+k}, v{M+4*kb+2*pieceP+k}' for k in range(2)] + [f'v_mov_b32 v{M2+2+k}, v{M+24+2*piece6+k}' for k in range(2)]
        side(2, mv[:1]); side(3, mv[1:2]); side(4, mv[2:3]); side(7, mv[3:])
        c6 = cvt(AOP + 2 * half6, ACC + 24)
        side(5, c6[:1]); side(6, c6[1:])
        seq.insert(8, [T(TR), []])
        cb6 = cvt(BOP6 + 2, TR)
        side(11, cb6[:1]); side(12, cb6[1:])
        c4, c5 = cvt(AOP, ACC + 16), cvt(AOP + 2, ACC + 20)
        side(9, c4[:1]); side(10, c4[1:]); side(12, c5[:1]); side(13, c5[1:])
        seq.insert(15, [T(TR + 4), xrd(3, ka, 1)])
        c0, c1 = cvt(AOP, ACC), cvt(AOP + 2, ACC + 4)
        side(16, c0[:1]); side(17, c0[1:])
        cbb = cvt(BOP6, TR + 4)
        side(18, cbb[:1]); side(19, cbb[1:] + c1[:1]); side(20, c1[1:])
        seq.insert(22, [T(TR), []])
        c2, c3 = cvt(AOP, ACC + 8), cvt(AOP + 2, ACC + 12)
        side(23, c2[:1])
        seq.append([f'v_mfma_f32_16x16x32_bf16 v[{SACC}:{SACC+3}], v[{M2}:{M2+3}], v[{BOP6}:{BOP6+3}], 0', c2[1:] + ['s_waitcnt lgkmcnt(0)']])
        ca0 = cvt(BOPA, TR)
        seq.append([Sx(0, BOP6, 0), ca0 + c3])
        seq.append([T(TR + 4), []])
        seq.append([Sx(1, BOP6, 1), cvt(BOPA + 2, TR + 4)])
        seq.append([Smm(ka, BOPA), []])
        seq.append([Sx(0, BOPA, 2), []])
        seq.append([Sx(1, BOPA, 3), []])
    else:
        side(0, xrd(2, kb, 0))
        if SC_TOUCH: side(TOUCH_POS, [f'buffer_load_dword v119, v117, {SRD}, s35 offen sc1'])
        if not VAL_TOUCH and ((w == 1 and not SELF_POISON) or (w == 2 and not X_PRELOAD)): side(TOUCH_POS - 1, [f'buffer_load_dword v119, v0, {SRD}, {"s20" if w == 1 else "s24"} offen sc1'])
        c6 = cvt(AOP + 2 * half6, ACC + 24)
        side(5, c6[:1]); side(6, c6[1:] + ['v_cmp_eq_u32 vcc, -1, v118'])
        seq.insert(8, [T(TR), []])
        side(9, [f's_cbranch_vccnz {L("retry")}'])
        cb6 = cvt(BOP6 + 2 * piece6, TR)
        side(11, cb6[:1]); side(12, cb6[1:])
        c4, c5 = cvt(AOP, ACC + 16), cvt(AOP + 2, ACC + 20)
        side(9, c4[:1]); side(10, c4[1:]); side(12, c5[:1]); side(13, c5[1:])
        seq.insert(15, [T(TR + 4), xrd(3, kb, 1)])
        c0, c1 = cvt(AOP, ACC), cvt(AOP + 2, ACC + 4)
        side(16, c0[:1]); side(17, c0[1:])
        cbb = cvt(BOPB + 2 * pieceP, TR + 4)
        side(18, cbb[:1]); side(19, cbb[1:] + c1[:1]); side(20, c1[1:])
        seq.insert(22, [T(TR), xrd(4, ka, 0)])
        c2, c3 = cvt(AOP, ACC + 8), cvt(AOP + 2, ACC + 12)
        side(23, ['s_waitcnt lgkmcnt(4)'] + c2[:1])
        seq.append([Smm(6, BOP6, True), c2[1:]])
        seq.append([Sx(0, BOP6, 0), xrd(0, ka, 1)])
        ca0 = cvt(BOPA, TR)
        seq.append([Sx(1, BOP6, 1), c3])
        seq.append([Smm(kb, BOPB), ca0[:1]])
        seq.append([T(TR + 4), ca0[1:] + ['s_waitcnt lgkmcnt(4)']])
        seq.append([Sx(0, BOPB, 2), []])
        seq.append([Sx(1, BOPB, 3), ['s_waitcnt lgkmcnt(0)'] + cvt(BOPA + 2, TR + 4)])
        if FOLDW:
            seq.append([Smm(ka, BOPA), []])
            seq.append([Sx(0, BOPA, 4), []])
            seq.append([Sx(1, BOPA, 0), []])
        else:
            seq.append([Sx(0, BOPA, 4), []])
            seq.append([Sx(1, BOPA, 0), []])
            seq.append([Smm(ka, BOPA), []])
    for m, ops in seq:
        a(m)
        for o in ops:
            if o == CK: ck.emit()
            elif NANCHK and (o.startswith('v_cmp') or o.startswith('s_cbranch')): pass
            else:
                if o.startswith('v_cmp'): ck.drain()
                a(o)
    if FOLDW:
        a('s_mov_b64 exec, s[26:27]')
        a(f'ds_write_b128 v113, v[{SACC}:{SACC+3}]')
        a('s_mov_b64 exec, -1')
        a(f'v_cmp_u_f32 vcc, v{SX}, v{SX+1}')
        for r in range(4): a(f'v_permlane32_swap_b32 v{SX+r}, v{SX+4+r}')
        for r in range(4): a(f'v_add_f32 v{SX+r}, v{SX+r}, v{SX+4+r}')
        a(f'ds_write_b128 v112, v[{SX}:{SX+3}]')
    else:
        a(f'ds_write_b128 v112, v[{SX}:{SX+3}]')
        if NANCHK: a(f'v_cmp_u_f32 vcc, v{SX}, v{SX+1}')
        a(f'ds_write_b128 v112, v[{SX+4}:{SX+7}] offset:256')
        a('s_mov_b64 exec, s[26:27]')
        a(f'ds_write_b128 v113, v[{SACC}:{SACC+3}]')
        a('s_mov_b64 exec, -1')
    if NANCHK:
        a(f's_cbranch_vccnz {L("retry")}')
        a.label(L('cont'))
    stamp(a, 3)
    a('s_waitcnt lgkmcnt(0)')
    a('s_barrier')
    stamp(a, 4)
    t = ACC
    for k in range(2 if FOLDW else 4): a(f'ds_read_b64 v[{t+2*k}:{t+2*k+1}], v114 offset:{k*1024}')
    a(f'ds_read2_b32 v[{t+8}:{t+9}], v115 offset0:0 offset1:64')
    if w == F1_WAVE: a(f'v_lshl_add_u32 v{t+20}, v2, 3, s36')
    def f1(pos):
        if w == F1_WAVE and pos == F1_POS:
            exec_lo(a, R1)
            a(f'buffer_store_dword v2, v{t+20}, {SRD}, s20 offen {st}')
            a('s_mov_b64 exec, -1')
    if F1_POS < 0 and w == F1_WAVE:
        a.nop(4 * (F1_POS + 4)); f1(F1_POS)
    a('s_waitcnt lgkmcnt(0)')
    f1(0)
    stamp(a, 5)
    sm, sx = t + 8, t
    a(f'v_add_f32 v{sm}, v{t+8}, v{t+9}')
    a(f'v_add_f32 v{t}, v{t}, v{t+2}')
    a(f'v_add_f32 v{t+1}, v{t+1}, v{t+3}')
    f1(10)
    a(f'v_add_f32_dpp v{sm}, v{sm}, v{sm} row_ror:8 {D}')
    if FOLDW:
        a(f'v_mov_b32 v{t+9}, v{sm}')
        f1(11)
        a(f'v_permlane32_swap_b32 v{t}, v{t+1}')
        a(f'v_add_f32 v{sx}, v{t}, v{t+1}')
        f1(12)
        a(f'v_permlane16_swap_b32 v{sm}, v{t+9}')
        a(f'v_add_f32 v{sm}, v{sm}, v{t+9}')
        f1(13)
    else:
        a(f'v_add_f32 v{t+4}, v{t+4}, v{t+6}')
        a(f'v_add_f32 v{t+5}, v{t+5}, v{t+7}')
        a(f'v_mov_b32 v{t+9}, v{sm}')
        a(f'v_add_f32 v{t}, v{t}, v{t+4}')
        a(f'v_add_f32 v{t+1}, v{t+1}, v{t+5}')
        a(f'v_permlane16_swap_b32 v{sm}, v{t+9}')
        a(f'v_add_f32 v{sm}, v{sm}, v{t+9}')
        a(f'v_permlane32_swap_b32 v{t}, v{t+1}')
        a(f'v_add_f32 v{sx}, v{t}, v{t+1}')
    if FAST:
        ex, em, ab = t + 12, t + 13, t + 14
        l = t + 3; u = t + 4; v = t + 5; lo = t + 6; hi = t + 7
        def norm(fast):
            a(f'v_fma_f32 v{l}, v{em}, s37, v{ex}')
            if fast: a(f'v_cmp_ngt_f32 vcc, s56, v{ab}')
            a(f'v_cndmask_b32 v{v}, v{ex}, v{em}, s[38:39]')
            a(f'v_add_f32_dpp v{l}, v{l}, v{l} quad_perm:[1,0,3,2] {D}')
            a(f'v_cndmask_b32 v{u}, v{em}, v{ex}, s[38:39]')
            a(f'v_mov_b32_dpp v{t+10}, v{v} quad_perm:[1,0,3,2] {D}')
            a(f'v_add_f32_dpp v{l}, v{l}, v{l} quad_perm:[2,3,0,1] {D}')
            a(f'v_cndmask_b32 v{lo}, v{t+10}, v{u}, s[38:39]')
            a(f'v_cndmask_b32 v{hi}, v{u}, v{t+10}, s[38:39]')
            a(f'v_add_f32_dpp v{l}, v{l}, v{l} row_half_mirror {D}')
            if fast: a(f's_cbranch_vccnz {L("slow")}')
            a(f'v_add_f32_dpp v{l}, v{l}, v{l} row_mirror {D}')
            a(f'v_mov_b32 v{t+11}, v{l}')
            a(f'v_permlane16_swap_b32 v{l}, v{t+11}')
            a(f'v_add_f32 v{l}, v{l}, v{t+11}')
            a(f'v_rcp_f32 v{l}, v{l}')
            a('s_mov_b64 exec, s[28:29]')
            a(f'v_mul_f32 v{lo}, v{lo}, v{l}')
            a(f'v_mul_f32 v{hi}, v{hi}, v{l}')
            a(f'v_cvt_pk_bf16_f32 v{lo}, v{lo}, v{hi}')
        a(f'v_exp_f32 v{ex}, v{sx}')
        a(f'v_exp_f32 v{em}, v{sm}')
        a(f'v_add_f32 v{ab}, abs(v{sx}), abs(v{sm})')
        f1(1)
        norm(True)
        a.label(L('pst'))
    else:
        mx = t + 2
        a(f'v_max_f32 v{mx}, v{sx}, v{sm}')
        f1(1)
        a(f'v_max_f32_dpp v{mx}, v{mx}, v{mx} quad_perm:[1,0,3,2] {D}')
        a(f'v_max_f32_dpp v{mx}, v{mx}, v{mx} quad_perm:[2,3,0,1] {D}')
        a(f'v_max_f32_dpp v{mx}, v{mx}, v{mx} row_half_mirror {D}')
        a(f'v_max_f32_dpp v{mx}, v{mx}, v{mx} row_mirror {D}')
        a(f'v_mov_b32 v{t+3}, v{mx}')
        a(f'v_permlane16_swap_b32 v{mx}, v{t+3}')
        a(f'v_max_f32 v{mx}, v{mx}, v{t+3}')
        f1(2)
        a(f'v_sub_f32 v{sx}, v{sx}, v{mx}')
        a(f'v_sub_f32 v{sm}, v{sm}, v{mx}')
        a(f'v_exp_f32 v{sx}, v{sx}')
        a(f'v_exp_f32 v{sm}, v{sm}')
        l = t + 3; u = t + 4; v = t + 5; lo = t + 6; hi = t + 7
        a(f'v_fma_f32 v{l}, v{sm}, s37, v{sx}')
        a(f'v_cndmask_b32 v{u}, v{sm}, v{sx}, s[38:39]')
        a(f'v_cndmask_b32 v{v}, v{sx}, v{sm}, s[38:39]')
        a(f'v_add_f32_dpp v{l}, v{l}, v{l} quad_perm:[1,0,3,2] {D}')
        a(f'v_mov_b32_dpp v{t+10}, v{v} quad_perm:[1,0,3,2] {D}')
        a(f'v_add_f32_dpp v{l}, v{l}, v{l} quad_perm:[2,3,0,1] {D}')
        a(f'v_cndmask_b32 v{lo}, v{t+10}, v{u}, s[38:39]')
        a(f'v_cndmask_b32 v{hi}, v{u}, v{t+10}, s[38:39]')
        f1(3)
        a(f'v_add_f32_dpp v{l}, v{l}, v{l} row_half_mirror {D}')
        a(f'v_add_f32_dpp v{l}, v{l}, v{l} row_mirror {D}')
        a(f'v_mov_b32 v{t+11}, v{l}')
        a(f'v_permlane16_swap_b32 v{l}, v{t+11}')
        a(f'v_add_f32 v{l}, v{l}, v{t+11}')
        f1(4)
        a(f'v_rcp_f32 v{l}, v{l}')
        a(f'v_mul_f32 v{lo}, v{lo}, v{l}')
        a(f'v_mul_f32 v{hi}, v{hi}, v{l}')
        a(f'v_cvt_pk_bf16_f32 v{lo}, v{lo}, v{hi}')
        a(f'v_min_u32 v{lo}, -2, v{lo}')
        a('s_mov_b64 exec, s[28:29]')
    a(f'buffer_store_dword v{lo}, v1, {SRD}, s20 offen {st}')
    a('s_mov_b64 exec, -1')
    f1(5)
    stamp(a, 6)
    a('s_barrier')
    if DMA_DELAY: a.nop(DMA_DELAY)
    if not NOBULK: a(f's_add_u32 s24, s24, {XSEG_B}')
    if not NOBULK: a(f's_add_u32 s35, s35, {GSH_B}')
    a(f's_xor_b32 s25, s25, {XSEG_B}')
    x_dma(a, w)
    a(f'v_xor_b32 v116, {XSEG_B}, v116')
    if MRG:
        a('v_add_u32 v117, s57, v117')
        a('s_sub_u32 s57, 0, s57')
    stamp_flush(a, w, 8, L('sf'))
    if TMAX and w == 3:
        a('s_cmp_lg_u32 s17, 0')
        a(f's_cbranch_scc1 {L("tm")}')
        for k, stp in enumerate((1, 20, 40, 62)):
            a(f's_cmp_lg_u32 s19, {stp}')
            a(f's_cbranch_scc1 {L(f"tm{k}")}')
            tmax(a, 12 + k, 118)
            a.label(L(f'tm{k}'))
        a.label(L('tm'))
    if STEPLOG and w in (1, 3):
        a('s_memtime s[40:41]' if w == 1 else 's_memrealtime s[40:41]')
        a('s_lshl_b32 s22, s17, 8')
        a('s_lshl_b32 s42, s19, 2')
        a('s_add_u32 s22, s22, s42')
        a(f's_add_u32 s22, s22, {STAMP_OFF + (4096 if w == 3 else 0)}')
        a('v_mov_b32 v118, 0')
        a('s_waitcnt lgkmcnt(0)')
        a('v_mov_b32 v119, s40')
        a(f'buffer_store_dword v119, v118, {SRD}, s22 offen')
    a('s_add_u32 s19, s19, 1')
    a('s_mov_b32 s20, s21')
    a(f's_cmp_lt_u32 s19, {NSTEPS-1}')
    a.flush()
    a(f's_cbranch_scc1 {L("loop")}')
    a(f's_branch {tag}_done')
    for i in range(EC_M):
        a.label(L(f'er{i}'))
        ml(o1[i])
        a('s_waitcnt vmcnt(0)')
        a('s_add_u32 s31, s31, 0x100')
        spin(a, L(f'e{i}'), ABORT)
    if FAST:
        a.label(L('slow'))
        mx = ab
        a(f'v_max_f32 v{mx}, v{sx}, v{sm}')
        for pm in ('quad_perm:[1,0,3,2]', 'quad_perm:[2,3,0,1]', 'row_half_mirror', 'row_mirror'): a(f'v_max_f32_dpp v{mx}, v{mx}, v{mx} {pm} {D}')
        a(f'v_mov_b32 v{t+11}, v{mx}')
        a(f'v_permlane16_swap_b32 v{mx}, v{t+11}')
        a(f'v_max_f32 v{mx}, v{mx}, v{t+11}')
        a(f'v_sub_f32 v{ex}, v{sx}, v{mx}')
        a(f'v_sub_f32 v{em}, v{sm}, v{mx}')
        a(f'v_exp_f32 v{ex}, v{ex}')
        a(f'v_exp_f32 v{em}, v{em}')
        a('s_add_u32 s31, s31, 0x100')
        norm(False)
        a(f'v_min_u32 v{lo}, -2, v{lo}')
        a(f's_branch {L("pst")}')
    a.label(L('retry'))
    if NANCHK:
        a('s_cmp_lg_u32 s62, 0')
        a(f's_cbranch_scc1 {L("cont")}')
        a('s_waitcnt vmcnt(0) lgkmcnt(0)')
        a.label(L('rv'))
        for ks in range(7): ml(ks)
        a('s_waitcnt vmcnt(0)')
        ck2 = Checker(a, 118)
        ck2.add(M, 28); ck2.drain()
        a('v_cmp_eq_u32 vcc, -1, v118')
        a(f's_cbranch_vccz {L("rk")}')
        spin(a, L('rv'), ABORT)
        a.label(L('rk'))
        a('s_mov_b32 s62, 1')
        zero()
        a('s_add_u32 s31, s31, 1')
        if NPRE == 7: a(f's_branch {L("ld2")}')
        else:
            for x in xfirst(): a(x)
            for ks in o1:
                for ti in range(7): a(S(ti, ks))
            a(f's_branch {L("ph2")}')
    else:
        a('s_waitcnt vmcnt(0) lgkmcnt(0)')
        a.nop(10)
        zero()
        a('s_add_u32 s31, s31, 1')
        spin(a, L('ld'), ABORT)

def init_score(a, w):
    AOP = 64
    a(f's_mul_i32 s31, s17, {CUW_B}')
    a(f's_add_u32 s31, s31, {WF_A}')
    units = [((kap * 4 + q) * TILE_B + ks * UNIT, wreg(ti, ks)) for ti, (kap, q) in enumerate(score_tiles(w)) for ks in range(7) if not SELF or (ti >= 4 and SELF == 1)]
    load_units(a, units, 's31')
    a(f's_mov_b32 s24, {XF_OFF + 7*w*1024}')
    a('s_mov_b32 s25, 0')
    x_dma(a, w)
    a('v_and_b32 v64, 7, v117')
    a('v_and_b32 v65, 1, v116')
    a('v_lshlrev_b32 v65, 2, v65')
    a('v_sub_u32 v64, v64, v65')
    a('v_lshrrev_b32 v65, 3, v117')
    a('v_lshl_add_u32 v66, v65, 2, v64')
    a('v_cmp_gt_u32 vcc, 4, v64')
    a('v_mov_b32 v67, 99')
    a('v_cndmask_b32 v66, v67, v66, vcc')
    a('v_mov_b32 v68, 0x3f80')
    a('v_mov_b32 v69, 0x3f800000')
    for d in range(4):
        a(f'v_mov_b32 v{4+d}, 0')
        a(f'v_cmp_eq_u32 vcc, {2*d}, v66')
        a(f'v_cndmask_b32 v{4+d}, v{4+d}, v68, vcc')
        a(f'v_cmp_eq_u32 vcc, {2*d+1}, v66')
        a(f'v_cndmask_b32 v{4+d}, v{4+d}, v69, vcc')
    a('v_lshrrev_b32 v64, 1, v116')
    a('v_lshrrev_b32 v65, 3, v117')
    a('v_cmp_eq_u32 s[26:27], v64, v65')
    a('v_and_b32 v66, 1, v116')
    a(f'v_add_u32 v64, {2*w}, v64')
    if FOLDW:
        a('v_lshrrev_b32 v67, 1, v116')
        a('v_lshlrev_b32 v67, 8, v67')
    else: a('v_lshlrev_b32 v67, 10, v64')
    a('v_lshl_add_u32 v67, v66, 9, v67')
    a('v_lshl_add_u32 v67, v117, 4, v67')
    a(f'v_add_u32 v112, {XP + (w*1024 if FOLDW else 0)}, v67')
    a('v_and_b32 v68, 7, v117')
    a('v_lshlrev_b32 v67, 8, v64')
    a('v_lshl_add_u32 v67, v68, 5, v67')
    a('v_lshl_add_u32 v67, v66, 4, v67')
    a(f'v_add_u32 v113, {MP}, v67')
    a('v_lshrrev_b32 v64, 5, v1')
    a('v_and_b32 v65, 31, v1')
    a('v_lshrrev_b32 v66, 3, v65')
    a('v_and_b32 v67, 7, v65')
    a('v_and_b32 v68, 3, v67')
    a('v_lshl_add_u32 v68, v66, 2, v68')
    a('v_lshrrev_b32 v69, 2, v67')
    a('v_lshl_add_u32 v68, v69, 4, v68')
    a(f'v_lshlrev_b32 v69, {11 if FOLDW else 12}, v64')
    a('v_lshl_add_u32 v69, v68, 4, v69')
    a(f'v_add_u32 v114, {XP + (w >> 1) * 512 + 2 * (w & 1) * 4}, v69')
    a(f'v_add_u32 v70, {2*w}, v64')
    a('v_lshlrev_b32 v69, 9, v66')
    a('v_lshl_add_u32 v69, v70, 5, v69')
    a('v_lshl_add_u32 v69, v67, 2, v69')
    a(f'v_add_u32 v115, {MP}, v69')
    a('v_and_b32 v71, 1, v1')
    a('v_cmp_eq_u32 s[38:39], 0, v71')
    a('v_cmp_gt_u32 vcc, 8, v65')
    a('s_or_b64 s[28:29], s[38:39], vcc')
    a('v_lshrrev_b32 v72, 1, v67')
    a('v_lshlrev_b32 v72, 2, v72')
    a('v_lshl_add_u32 v72, v70, 4, v72')
    a('s_lshl_b32 s22, s17, 9')
    a(f's_add_u32 s22, s22, {PX}')
    a('v_lshl_add_u32 v73, v66, 7, v72')
    a('v_add_u32 v73, s22, v73')
    a('s_lshl_b32 s22, s17, 7')
    a(f's_add_u32 s22, s22, {PM}')
    a('v_add_u32 v74, s22, v72')
    if VSM:
        a('v_bfe_u32 v72, v65, 1, 1')
        a('v_lshlrev_b32 v72, 7, v72')
        a('v_lshl_add_u32 v72, v70, 4, v72')
        a('v_bfe_u32 v73, v65, 2, 2')
        a('v_lshl_add_u32 v72, v73, 2, v72')
        a('v_lshrrev_b32 v73, 4, v65')
        a('v_lshl_add_u32 v73, v73, 8, v72')
        a('s_lshl_b32 s22, s17, 9')
        a(f's_add_u32 s22, s22, {PX}')
        a('v_add_u32 v73, s22, v73')
        a('s_lshr_b32 s22, s17, 1')
        a('s_lshl_b32 s22, s22, 8')
        a('s_and_b32 s34, s17, 1')
        a('s_lshl_b32 s34, s34, 3')
        a('s_add_u32 s22, s22, s34')
        a(f's_add_u32 s22, s22, {PM}')
        a('v_add_u32 v74, s22, v72')
    a('v_lshlrev_b32 v0, 2, v65')
    if F2ONE: a(f'v_and_b32 v0, 0x78, v0\nv_or_b32 v0, {4*(F2ONE-1)}, v0')
    a(f's_and_b32 s22, s17, {R2-1}')
    a('s_lshl_b32 s22, s22, 7')
    a(f's_add_u32 s22, s22, {F2}')
    a(f'v_add_u32 v0, s22, v0')
    a('v_cndmask_b32 v1, v74, v73, s[38:39]')
    a('s_lshl_b32 s36, s17, 2')
    a(f's_add_u32 s36, s36, {F1}')
    a('s_mov_b32 s37, 0x3e800000')
    for r in range(64, 112): a(f'v_mov_b32 v{r}, 0')
    if MRG:
        a('v_and_b32 v118, 1, v116')
        a('v_cmp_eq_u32 vcc, 0, v118')
        a(f'v_mov_b32 v118, {6*2048 + (w >> 1)*256}')
        a(f'v_mov_b32 v119, {(4 + (w >> 1))*2048 + (w & 1)*256}')
        a('v_cndmask_b32 v118, v118, v119, vcc')
        a('v_lshrrev_b32 v116, 1, v116')
        a('v_lshl_add_u32 v118, v116, 9, v118')
        a('v_lshl_add_u32 v117, v117, 4, v118')
        a(f's_mov_b32 s57, {XSEG_B}')
    a('s_mov_b32 s56, 0x42800000')
    a('v_mov_b32 v116, v2')
    if not MRG:
        a('v_lshrrev_b32 v117, 4, v2')
        a('v_min_u32 v117, 55, v117')
        a('v_lshlrev_b32 v117, 7, v117')
    if w in (1, 2):
        nl = 13 if w == 1 else 14
        a('v_lshrrev_b32 v0, 4, v2')
        a(f'v_min_u32 v0, {nl-1}, v0')
        a(f's_mul_i32 s22, s17, {nl}')
        a('v_add_u32 v0, s22, v0')
        a('v_lshlrev_b32 v0, 7, v0')
        a(f'v_add_u32 v0, {2*EXCH_B if w == 1 else 2*XSEG_B - 7*w*1024}, v0')
        for k in (1, 2):
            a(f's_mov_b32 s22, {EXCH_OFF - k*EXCH_B if w == 1 else XF_OFF + 7*w*1024 - k*XSEG_B}')
            a(f'buffer_load_dword v119, v0, {SRD}, s22 offen sc1')
    if X_PRELOAD:
        a(f's_mul_i32 s22, s17, {4*XSEG_B}')
        a(f's_add_u32 s22, s22, {XF_OFF + w*XSEG_B}')
        for k in range(4):
            a(f'buffer_load_dword v119, v117, {SRD}, s22 offen')
            a(f's_add_u32 s22, s22, {56*128}')
    if SC_ALLPOLL:
        a('v_lshrrev_b32 v117, 4, v2')
        a('v_and_b32 v117, 31, v117')
        a('v_lshlrev_b32 v117, 2, v117')
        a(f'v_add_u32 v117, {F2}, v117')
    a(f's_mul_i32 s35, s17, {64*GSH_B}')
    a(f's_add_u32 s35, s35, {VO_OFF + TOUCH_AHEAD*GSH_B + w*56*128}')

YL = 0; ML = 8 * KB; WL = 16 * KB
def vtiles(w): return (6 * w, 6, 6) if w < 2 else (12 + 8 * (w - 2), 8, 7)
def vwreg(w, ti, ks):
    u = ti * 7 + ks
    return 256 + 8 * u if u < 32 else (176 if w < 2 else 120) + 8 * (u - 32)

VOK = 175
def vo_wait(a, L, ABORT, t):
    a(f's_branch {L("voc")}')
    a.label(L('vow'))
    a(f'buffer_load_dword v{VOK}, off, {SRD}, s35 sc1')
    a('s_waitcnt vmcnt(0)')
    a.label(L('voc'))
    a(f'v_readfirstlane_b32 s22, v{VOK}')
    a('s_cmp_eq_u32 s22, 56')
    a(f's_cbranch_scc1 {L("vod")}')
    a('s_sleep 1')
    spin(a, L('vow'), ABORT)
    a.label(L('vod'))
    a('s_add_u32 s35, s35, 2048')
    a('s_add_u32 s38, s19, 8')
    a('s_and_b32 s38, s38, -8')
    a('s_cmp_eq_u32 s19, 0')
    a('s_cselect_b32 s38, 4, s38')

def gen_value(a, w, st, tag):
    L = lambda n: f'{tag}_va{w}_{n}'
    ABORT = f'{tag}_abort'
    fin = w < 2
    t0, ntile, nreg = vtiles(w)
    M = 8; ACC = 36
    YA = 60 if fin else 112
    CK = 63
    def S(ti, ks, b=None):
        if NOT2: return 's_nop 2'
        return f'v_smfmac_f32_16x16x64_bf16 v[{ACC+4*ti}:{ACC+4*ti+3}], v[{M+4*ks}:{M+4*ks+3}], {b or ureg(vwreg(w, ti, ks), 8)}, v3'
    def fold(p):
        A_ = ACC + 8 * p; B_ = A_ + 4
        o = [f'v_permlane32_swap_b32 v{A_+r}, v{B_+r}' for r in range(4)]
        o += [f'v_add_f32 v{A_+r}, v{A_+r}, v{B_+r}' for r in range(4)]
        o += [f'v_cvt_pk_bf16_f32 v{B_}, v{A_}, v{A_+1}', f'v_cvt_pk_bf16_f32 v{B_+1}, v{A_+2}, v{A_+3}', f'ds_write_b64 v{YA+p}, v[{B_}:{B_+1}]']
        return o
    def run(seq):
        last = {}
        for i, (ti, m, pre) in enumerate(seq): last[ti] = i
        pend = []; delay = 0
        for i, (ti, m, pre) in enumerate(seq):
            for x in pre: a(x)
            a(m)
            if delay: delay -= 1
            elif pend:
                a(pend.pop(0))
                if len(pend) > 12: a(pend.pop(0))
            p = ti // 2
            if i == max(last[2 * p], last[2 * p + 1]):
                pend += fold(p)
                if not delay: delay = 3
        for x in pend: a(x)
    if ALIGN: a.raw(f'.p2align {ALIGN}\n' + '  s_nop 0\n' * APAD)
    a.label(L('loop'))
    step_bases(a)
    if not fin:
        for r in range(ACC, ACC + 4 * ntile): a(f'v_mov_b32 v{r}, 0')
    a('s_mov_b32 s30, 0')
    if fin:
        YT = 64; VOR = 80; LO = 156; HI = 160; PL = 164
        pr = lambda c: 8 + 4 * c if c < 7 else 144 + 4 * (c - 7)
        if SYNC:
            a('s_cmp_lg_u32 s19, s38')
            a(f's_cbranch_scc1 {L("vok")}')
            vo_wait(a, L, ABORT, PL)
            a.label(L('vok'))
        if T2SRV:
            a(f's_cmp_eq_u32 s19, {NSTEPS-1}')
            a(f's_cbranch_scc1 {tag}_done')
        def vol(lo, hi):
            for h in range(lo, hi):
                if h % 2 == 0: a(f's_add_u32 s22, s25, {h*1792}')
                a(f'buffer_load_dwordx4 v[{VOR+4*h}:{VOR+4*h+3}], v6, {SRD}, s22 offen offset:{(h & 1)*1792} sc1')
        vol(0, VO_PRE0)
        if not SLOW_FIRST: a('s_barrier')
        stamp(a, 0)
        if VO_SLEEP: a(f's_sleep {VO_SLEEP}')
        vol(VO_PRE0, VO_PRE)
        if SYNC: a(f'buffer_load_dword v{VOK}, off, {SRD}, s35 sc1')
        a('s_barrier')
        stamp(a, 1)
        for ks in range(7): a(f'ds_read_b128 v[{M+4*ks}:{M+4*ks+3}], v2 offset:{ML + ks*1024}')
        vol(VO_PRE, 16)
        a('s_waitcnt lgkmcnt(0)')
        if T2DF: a(f's_sleep {T2DF}')
        run([(ti, S(ti, ks), []) for ti in range(ntile) for ks in range(7)])
        stamp(a, 2)
        a(f's_cmp_eq_u32 s19, {NSTEPS-1}')
        a(f's_cbranch_scc1 {L("last")}')
        a(f's_add_u32 s22, s20, {PX}')
        a(f's_add_u32 s34, s20, {PX + 4096}')
        a(f's_add_u32 s36, s20, {PM}')
        a('s_mov_b32 s37, 0')
        for r in range(4): a(f'v_mov_b32 v{LO+r}, 0')
        if STAMPS:
            a('s_waitcnt vmcnt(0)')
            stamp(a, 7)
        if VSM and B2_POS < 0:
            a('s_waitcnt lgkmcnt(0)')
            for r in range(ACC, ACC + 4 * ntile): a(f'v_mov_b32 v{r}, 0')
            a('s_barrier')
            for k in range(4): a(f'ds_read_b128 v[{YT+4*k}:{YT+4*k+3}], v2 offset:{YL + w*4096 + k*1024}')
            stamp(a, 3)
        if FIN_SLEEP: a(f's_sleep {FIN_SLEEP}')
        flagpoll(a, 4, 's20', PL, L('fw'), ABORT, PD_V, PG_V)
        stamp(a, 4)
        a('s_waitcnt lgkmcnt(0)')
        if VSM:
            pl = PLAIN_P and st == ''
            def pld(c, sc):
                so = ('s22', 's34', 's36')[c // 4]
                a(f'buffer_load_dwordx4 v[{pr(c)}:{pr(c)+3}], v2, {SRD}, {so} offen offset:{(c & 3)*1024}' + (' sc1' if sc else ''))
            def psm(c):
                B_ = VOR + 8 * c if c < 8 else YT + 8 * (c - 8)
                a(f'v_smfmac_f32_16x16x64_bf16 v[{LO}:{LO+3}], v[{pr(c)}:{pr(c)+3}], v[{B_}:{B_+7}], v3')
            zr = list(range(ACC, ACC + 4 * ntile)) if B2_POS >= 0 else []
            for c in range(NPP):
                pld(c, not pl)
                for _ in range(VZ):
                    if zr: a(f'v_mov_b32 v{zr.pop(0)}, 0')
            issued = NPP; nst = 0; q = list(range(NPP))
            if VST: stamp(a, 7)
            for c in range(10):
                if c == B2_POS:
                    a('s_barrier')
                    for k in range(4): a(f'ds_read_b128 v[{YT+4*k}:{YT+4*k+3}], v2 offset:{YL + w*4096 + k*1024}')
                    stamp(a, 3)
                if c == 0 and ECP:
                    a.label(L('pl')); cke = Checker(a, CK)
                a(f's_waitcnt vmcnt({len(q) - 1 - q.index(c)})' + (' lgkmcnt(0)' if c == 8 else ''))
                if c == 0: stamp(a, 5)
                if VST and c in (3, 6, 9): stamp(a, c // 3)
                psm(c)
                if c < ECP:
                    cke.add(pr(c)); cke.drain()
                    if c == ECP - 1: a(f'v_cmp_eq_u32 vcc, -1, v{CK}')
                if ECP and c == F2_POS: a(f's_cbranch_vccnz {L("re")}')
                if c == F2_POS and (not F2ONE or w == F2ONE - 1):
                    q.append('f')
                    exec_lo(a, R2)
                    a(f'buffer_store_dword v2, v7, {SRD}, s21 offen {st}')
                    a('s_mov_b64 exec, -1')
                    nst = 1
                if issued < 10:
                    pld(issued, not pl); q.append(issued); issued += 1
                for _ in range(2):
                    if zr: a(f'v_mov_b32 v{zr.pop(0)}, 0')
            a.label(L('ep'))
            while zr: a(f'v_mov_b32 v{zr.pop(0)}, 0')
            a(f'v_permlane32_swap_b32 v{LO}, v{LO+2}')
            a(f'v_permlane32_swap_b32 v{LO+1}, v{LO+3}')
            a(f'v_add_f32 v{HI}, v{LO}, v{LO+2}')
            a(f'v_add_f32 v{HI+1}, v{LO+1}, v{LO+3}')
            a(f'v_cmp_u_f32 vcc, v{HI}, v{HI+1}')
            a(f'v_mov_b32_dpp v{HI+2}, v{HI} row_ror:8 {D}')
            a(f'v_mov_b32_dpp v{HI}, v{HI+1} row_ror:8 row_mask:0xf bank_mask:0xc')
            a(f's_cbranch_vccnz {L("rp")}')
            a(f'v_mov_b32_dpp v{HI+1}, v{HI+2} quad_perm:[0,1,2,3] row_mask:0xf bank_mask:0x3')
            a(f'v_cvt_pk_bf16_f32 v{HI}, v{HI}, v{HI+1}')
            a.label(L('pc'))
            if w == 1: a('s_mov_b64 exec, s[26:27]')
            a(f'buffer_store_dword v{HI}, v1, {SRD}, s21 offen {st}')
        else:
            pl = PLAIN_P and st == ''
            if not pl: a.label(L('lp'))
            for c in range(10):
                so = ('s22', 's34', 's36')[c // 4]
                a(f'buffer_load_dwordx4 v[{pr(c)}:{pr(c)+3}], v5, {SRD}, {so} offen offset:{(c & 3)*1024}' + ('' if pl else ' sc1'))
                for r in range(ACC + 4 * c, min(ACC + 4 * c + 4, ACC + 4 * ntile)): a(f'v_mov_b32 v{r}, 0')
            if pl: a.label(L('lp'))
            ck = Checker(a, CK)
            nst = 0
            for c in range(10):
                if c == B2_POS:
                    a('s_cmp_lg_u32 s37, 0')
                    a(f's_cbranch_scc1 {L("nb2")}')
                    a('s_waitcnt lgkmcnt(0)')
                    a('s_barrier')
                    for k in range(4): a(f'ds_read_b128 v[{YT+4*k}:{YT+4*k+3}], v2 offset:{YL + w*4096 + k*1024}')
                    a.label(L('nb2'))
                    stamp(a, 3)
                a(f's_waitcnt vmcnt({9-c+nst})' + (' lgkmcnt(0)' if c == 8 else ''))
                if c < EC_P:
                    a.label(L(f'e{c}'))
                    r = pr(c)
                    a(f'v_max3_u32 v{PL}, v{r}, v{r+1}, v{r+2}')
                    a(f'v_max_u32 v{PL}, v{PL}, v{r+3}')
                    a(f'v_cmp_eq_u32 vcc, -1, v{PL}')
                    a(f's_cbranch_vccnz {L(f"er{c}")}')
                if c == 0: stamp(a, 5)
                if c == F2_POS:
                    exec_lo(a, R2)
                    a(f'buffer_store_dword v2, v7, {SRD}, s21 offen {st}')
                    a('s_mov_b64 exec, -1')
                    nst = 1
                if c >= EC_P: ck.add(pr(c))
                B_ = f'v[{pr(c)}:{pr(c)+3}]'
                for hi, acc in ((1, HI), (0, LO)):
                    A_ = VOR + 4 * (2 * c + hi) if c < 8 else YT + 4 * (2 * (c - 8) + hi)
                    a(f'v_mfma_f32_16x16x32_bf16 v[{acc}:{acc+3}], v[{A_}:{A_+3}], {B_}, ' + ('0' if c == 0 else f'v[{acc}:{acc+3}]'))
                    ck.emit()
            ck.drain()
            a(f'v_cmp_eq_u32 vcc, -1, v{CK}')
            for r in range(4): a(f'v_add_f32_dpp v{LO+r}, v{HI+r}, v{LO+r} row_ror:8 {D}')
            a(f's_cbranch_vccnz {L("rp")}')
            a(f'v_cvt_pk_bf16_f32 v{HI}, v{LO}, v{LO+1}')
            a(f'v_cvt_pk_bf16_f32 v{HI+1}, v{LO+2}, v{LO+3}')
            a(f'v_min_u32 v{HI}, -2, v{HI}')
            a(f'v_min_u32 v{HI+1}, -2, v{HI+1}')
            a('s_mov_b64 exec, s[26:27]')
            a(f'buffer_store_dwordx2 v[{HI}:{HI+1}], v1, {SRD}, s21 offen {st}')
        if T2SRV:
            a(f's_cmp_lg_u32 s19, {NSTEPS-2}')
            a(f's_cbranch_scc1 {L("nl")}')
            a(f's_mov_b32 s22, {MEMG_OFF + (NSTEPS-1)*7*KB}')
            if VSM: a(f'buffer_store_dword v{HI}, v1, {SRD}, s22 offen sc1')
            else: a(f'buffer_store_dwordx2 v[{HI}:{HI+1}], v1, {SRD}, s22 offen sc1')
            a('s_mov_b64 exec, -1')
            a(f's_branch {tag}_done')
            a.label(L('nl'))
        a('s_mov_b64 exec, -1')
        if SLOW_FIRST: a('s_barrier')
        stamp(a, 6)
        if not NOBULK: a(f's_add_u32 s25, s25, {GSH_B}')
        stamp_flush(a, 4 + w, 8, L('sf'), PL)
    else:
        STG = [76, 84, 92]; TP = 100
        TPS = [100, 104, 108, 4]
        t2st = [[f'buffer_store_dwordx4 v[{TPS[k]}:{TPS[k]+3}], v2, {SRD}, s24 offen offset:{k*1024} sc1'] for k in range(4)]
        t2st[-1].append(f's_add_u32 s24, s24, {8*KB}')
        t2fl = ['s_mov_b64 exec, 1', f'buffer_store_dword v117, v2, {SRD}, s34 offen sc1', 's_mov_b64 exec, -1', 's_add_u32 s34, s34, 8']
        def emit(gs):
            for g_ in gs:
                for x in g_: a(x)
        myks = [0, 1, 2, 3] if w == 2 else [4, 5, 6]
        oth = [k for k in range(7) if k not in myks]
        def mload():
            for ks in myks:
                a(f'buffer_load_dwordx4 v[{M+4*ks}:{M+4*ks+3}], v2, {SRD}, {"s20" if ks < 4 else "s23"} offen offset:{(ks & 3) * 1024} sc1')
        if HLP_SLEEP: a(f's_sleep {HLP_SLEEP}')
        flagpoll(a, 119, 's20', 76, L('fp'), ABORT, PD_H, PG_H)
        stamp(a, 0)
        if VA_DELAY: a.nop(VA_DELAY)
        mload()
        if PUBLISH and PUB_EARLY == 1: emit([t2fl] + t2st)
        if not SLOW_FIRST: a('s_barrier')
        if PUBLISH and PUB_EARLY == 2: emit([t2fl] + t2st)
        if PUBLISH and PUB_EARLY:
            a('s_waitcnt vmcnt(5)')
            a(f's_branch {L("ld2")}')
        a.label(L('ld'))
        a('s_waitcnt vmcnt(0)')
        if PUBLISH and PUB_EARLY: a.label(L('ld2'))
        ck = Checker(a, 84)
        for ks in myks: ck.add(M + 4 * ks)
        ck.drain()
        a('v_cmp_eq_u32 vcc, -1, v84')
        for ks in myks: a(f'ds_write_b128 v2, v[{M+4*ks}:{M+4*ks+3}] offset:{ML + ks*1024}')
        a(f's_cbranch_vccnz {L("retry")}')
        a('s_waitcnt lgkmcnt(0)')
        a('s_barrier')
        stamp(a, 1)
        for ks in oth: a(f'ds_read_b128 v[{M+4*ks}:{M+4*ks+3}], v2 offset:{ML + ks*1024}')
        if w == 2: a(f'ds_read_b128 v[92:95], v0')
        if VAL_TOUCH:
            a(f'buffer_load_dword v99, v118, {SRD}, {"s20" if w == 2 else "s39"} offen sc1')
            a(f's_add_u32 s39, s39, {XSEG_B}')
        if SELF_POISON:
            for r in range(76, 80): a(f'v_mov_b32 v{r}, -1')
            a('s_add_u32 s22, s21, s38')
            if w == 3: a('s_mov_b64 exec, 0x1f')
            a(f'buffer_store_dwordx4 v[76:79], v2, {SRD}, s22 offen {st}')
            if w == 3: a('s_mov_b64 exec, -1')
        if PUBLISH and not PUB_EARLY and not SLOW_FIRST and not T2SRV: emit([t2fl] + t2st)
        a('s_waitcnt lgkmcnt(0)')
        mg = ['s_mov_b64 exec, s[26:27]', f'buffer_store_dwordx4 v[92:95], v2, {SRD}, s36 offen sc1', 's_mov_b64 exec, -1', f's_add_u32 s36, s36, {7*KB}']
        if w == 2 and PUBLISH:
            if SLOW_FIRST:
                a(f's_cmp_lg_u32 s19, {NSTEPS-1}')
                a(f's_cbranch_scc1 {L("nmg")}')
            emit([mg])
            if SLOW_FIRST: a.label(L('nmg'))
        if T2SRV:
            a(f's_cmp_eq_u32 s19, {NSTEPS-1}')
            a(f's_cbranch_scc1 {tag}_done')
        lu = [(7, ks) for ks in range(7)]
        ru = [(t_, ks) for t_ in (6, 0, 1, 2, 3, 4, 5) for ks in range(7)]
        def wr(j):
            t_, ks = lu[j]; b = STG[j % 3]; off = (t_ - 7) * TILE_B + ks * UNIT
            return [f'ds_read_b128 v[{b}:{b+3}], v1 offset:{off}', f'ds_read_b128 v[{b+4}:{b+7}], v1 offset:{off+1024}']
        seq = []
        for j, (t_, ks) in enumerate(lu):
            pre = (wr(0) + wr(1) if j == 0 else []) + (wr(j + 2) if j + 2 < len(lu) else [])
            for k in range(2):
                r_ = ru.pop(0); seq.append((r_[0], S(*r_), pre if k == 0 else []))
            b = STG[j % 3]
            seq.append((t_, S(t_, ks, f'v[{b}:{b+7}]'), [f's_waitcnt lgkmcnt({2 * min(2, len(lu) - 1 - j)})']))
        for r_ in ru: seq.append((r_[0], S(*r_), []))
        if T2DH: a(f's_sleep {T2DH}')
        run(seq)
        stamp(a, 2)
        a('s_waitcnt lgkmcnt(0)')
        a('s_barrier')
        for k in range(4):
            q = 2 * (w - 2) + (k >> 1); tp = k & 1
            if not T2SRV: a(f'ds_read_b128 v[{TPS[k]}:{TPS[k]+3}], v2 offset:{YL + tp*4096 + q*1024}')
        a(f's_cmp_eq_u32 s19, {NSTEPS-2 if T2SRV else NSTEPS-1}')
        a(f's_cbranch_scc1 {tag + "_done" if T2SRV else L("last")}')
        if SLOW_FIRST:
            if w == 2: a(f'ds_read_b128 v[92:95], v0')
            a('s_waitcnt vmcnt(0) lgkmcnt(0)')
            a('s_barrier')
            if PUBLISH: emit([t2fl] + t2st + ([mg] if w == 2 else []))
        else:
            a('s_waitcnt vmcnt(0) lgkmcnt(0)')
        stamp(a, 3)
        stamp_flush(a, 4 + w, 4, L('sf'), 76)
    a('s_add_u32 s19, s19, 1')
    a('s_mov_b32 s20, s21')
    a.flush()
    a(f's_branch {L("loop")}')
    if fin:
        a.label(L('last'))
        a('s_waitcnt lgkmcnt(0)')
        a('s_barrier')
        a(f's_branch {tag}_done')
        for c in range(EC_P):
            a.label(L(f'er{c}'))
            so = ('s22', 's34', 's36')[c // 4]
            a(f'buffer_load_dwordx4 v[{pr(c)}:{pr(c)+3}], v5, {SRD}, {so} offen offset:{(c & 3)*1024} sc1')
            a('s_waitcnt vmcnt(0)')
            a('s_add_u32 s31, s31, 0x1000000')
            spin(a, L(f'e{c}'), ABORT)
        if ECP:
            assert NPP == 10 and B2_POS == 0 and ECP <= F2_POS
            a.label(L('re'))
            for c in range(10): pld(c, True)
            a.nop(6)
            for r in range(4): a(f'v_mov_b32 v{LO+r}, 0')
            a('s_add_u32 s31, s31, 0x1000000')
            spin(a, L('pl'), ABORT)
        a.label(L('rp'))
        if VSM:
            a('s_cmp_eq_u32 s37, 0')
            a(f's_cbranch_scc1 {L("rv")}')
            a(f'v_mov_b32_dpp v{HI+1}, v{HI+2} quad_perm:[0,1,2,3] row_mask:0xf bank_mask:0x3')
            a(f'v_cvt_pk_bf16_f32 v{HI}, v{HI}, v{HI+1}')
            a(f'v_min_u32 v{HI}, -2, v{HI}')
            a(f's_branch {L("pc")}')
            a.label(L('rv'))
            for c in range(10): pld(c, True)
            a('s_waitcnt vmcnt(0)')
            ck2 = Checker(a, CK)
            for c in range(10): ck2.add(pr(c))
            ck2.drain()
            a(f'v_cmp_eq_u32 vcc, -1, v{CK}')
            a(f's_cbranch_vccz {L("rk")}')
            spin(a, L('rv'), ABORT)
            a.label(L('rk'))
            a('s_mov_b32 s37, 1')
            a('s_add_u32 s31, s31, 0x10000')
            for r in range(4): a(f'v_mov_b32 v{LO+r}, 0')
            for c in range(10): psm(c)
            a.flush()
            a(f's_branch {L("ep")}')
            return
        a.nop(8)
        if PLAIN_P and st == '':
            for c in range(10):
                so = ('s22', 's34', 's36')[c // 4]
                a(f'buffer_load_dwordx4 v[{pr(c)}:{pr(c)+3}], v5, {SRD}, {so} offen offset:{(c & 3)*1024} sc1')
        a('s_mov_b32 s37, 1')
        a('s_add_u32 s31, s31, 0x10000')
        spin(a, L('lp'), ABORT)
    else:
        a.label(L('retry'))
        a('s_waitcnt lgkmcnt(0)')
        mload()
        a('s_add_u32 s31, s31, 1')
        spin(a, L('ld'), ABORT)
        a.label(L('last'))
        a('s_waitcnt lgkmcnt(0)')
        emit(t2st)
        a('s_waitcnt vmcnt(0)')
        emit([t2fl, t2fl])
        a(f's_branch {tag}_done')

def init_value(a, w, p):
    fin = w < 2
    t0, ntile, nreg = vtiles(w)
    YA = 60 if fin else 112
    a(f's_mul_i32 s31, s17, {CUW_B}')
    a(f's_add_u32 s31, s31, {WF_B}')
    units = [((t0 + ti) * TILE_B + ks * UNIT, vwreg(w, ti, ks)) for ti in range(nreg) for ks in range(7)]
    if BDEP and BST2:
        BDEP(16 * t0 // 28, (16 * (t0 + BST2) - 1) // 28)
        load_units(a, units[:7 * BST2], 's31')
        BDEP(16 * (t0 + BST2) // 28, (16 * (t0 + nreg) - 1) // 28)
        load_units(a, units[7 * BST2:], 's31')
    else:
        if BDEP: BDEP(16 * t0 // 28, (16 * (t0 + nreg) - 1) // 28)
        load_units(a, units, 's31')
    if fin and BDEP: BDEP(16 * (vtiles(w + 2)[0] + 7) // 28, (16 * (vtiles(w + 2)[0] + 8) - 1) // 28)
    if fin:
        th = vtiles(w + 2)[0] + 7
        for f in range(14):
            if f % 4 == 0:
                a(f's_mov_b32 m0, {WL + 3*w*TILE_B + f*1024}')
                a(f's_add_u32 s22, s31, {th*TILE_B + f*1024}')
            a(f'buffer_load_dwordx4 v2, {SRD}, s22 offen offset:{(f & 3)*1024}' + (' sc1' if MERGE else '') + ' lds')
            if f % 16 == 15: a('s_waitcnt vmcnt(24)')
    a('v_mov_b32 v72, v116')
    a('v_mov_b32 v73, v117')
    a('v_lshrrev_b32 v65, 1, v72')
    a('v_and_b32 v66, 1, v72')
    for pp in range(ntile // 2):
        a(f'v_add_u32 v67, {t0 + 2*pp}, v65')
        a('v_lshl_add_u32 v67, v67, 4, v73')
        a('v_mul_u32_u24 v68, 2341, v67')
        a('v_lshrrev_b32 v68, 16, v68')
        a('v_mul_u32_u24 v69, 28, v68')
        a('v_sub_u32 v69, v67, v69')
        a('v_lshrrev_b32 v70, 4, v69')
        a('v_and_b32 v69, 15, v69')
        if VSM:
            a('v_and_b32 v71, 1, v69')
            a('v_lshrrev_b32 v69, 1, v69')
            a('v_lshl_add_u32 v69, v71, 3, v69')
        a('v_lshlrev_b32 v71, 12, v70')
        a('v_lshl_add_u32 v71, v68, 8, v71')
        a('v_lshl_add_u32 v71, v69, 4, v71')
        a(f'v_lshl_add_u32 v{YA+pp}, v66, 3, v71')
    if fin:
        a('v_and_b32 v0, 31, v1')
        a('v_lshlrev_b32 v0, 2, v0')
        a(f'v_add_u32 v0, {F2}, v0')
        a('v_lshlrev_b32 v4, 2, v73')
        if R1 == 32:
            a('s_lshl_b32 s22, s17, 1')
            a(f's_add_u32 s22, s22, {w}')
        else: a(f's_and_b32 s22, s17, {R1-1}')
        a('s_lshl_b32 s22, s22, 7')
        a(f's_add_u32 s22, s22, {F1}')
        a(f'v_add_u32 v4, s22, v4')
        a('v_and_b32 v64, 7, v73')
        a('v_lshlrev_b32 v5, 4, v64')
        a('v_lshl_add_u32 v5, v72, 7, v5')
        a('v_lshrrev_b32 v65, 3, v73')
        a('v_lshl_add_u32 v5, v65, 9, v5')
        a('s_lshl_b32 s22, s17, 3')
        a(f's_add_u32 s22, s22, {F2 + 4*w}')
        a('v_lshl_add_u32 v7, v2, 3, s22')
        a(f'v_add_u32 v65, {16*w}, v73')
        a('v_min_u32 v65, 27, v65')
        a('v_mad_u32_u24 v65, v72, 28, v65')
        a('v_lshlrev_b32 v6, 4, v65')
        a('s_lshr_b32 s22, s17, 1')
        a('s_mul_i32 s22, s22, 7')
        a('s_and_b32 s34, s17, 1')
        a('s_lshl_b32 s35, s34, 2')
        a('v_add_u32 v70, s35, v72')
        a('v_mov_b32 v71, s34')
        a(f'v_mov_b32 v69, {w}')
        a('v_cmp_eq_u32 vcc, 3, v72')
        a('v_cndmask_b32 v70, v70, v72, vcc')
        a('v_cndmask_b32 v69, v69, v71, vcc')
        a('v_add_u32 v70, s22, v70')
        a('v_lshrrev_b32 v68, 1, v70')
        a('v_lshlrev_b32 v68, 8, v68')
        a('v_lshl_add_u32 v68, v69, 7, v68')
        a('v_and_b32 v69, 1, v70')
        a('v_lshl_add_u32 v68, v69, 3, v68')
        a('v_lshl_add_u32 v1, v64, 4, v68')
        a('v_cmp_gt_u32 s[26:27], 8, v73')
        if w == 1:
            a('v_cmp_gt_u32 vcc, 3, v72')
            a('s_and_b64 s[26:27], s[26:27], vcc')
        if VSM:
            a('v_lshrrev_b32 v65, 3, v73')
            a('v_lshl_add_u32 v66, v64, 1, v65')
            a(f'v_add_u32 v66, {16*w}, v66')
            a('v_min_u32 v66, 27, v66')
            a('v_mad_u32_u24 v66, v72, 28, v66')
            a('v_lshlrev_b32 v6, 4, v66')
            a('s_mul_i32 s22, s17, 28')
            a(f's_add_u32 s22, s22, {16*w}')
            a('v_lshl_add_u32 v70, v64, 1, s22')
            a('v_lshrrev_b32 v68, 4, v70')
            a('v_lshlrev_b32 v68, 8, v68')
            a('v_bfe_u32 v69, v70, 1, 1')
            a('v_lshl_add_u32 v68, v69, 7, v68')
            a('v_bfe_u32 v69, v70, 2, 2')
            a('v_lshl_add_u32 v68, v69, 2, v68')
            a('v_and_b32 v69, 1, v72')
            a('v_lshl_add_u32 v65, v69, 2, v65')
            a('v_lshrrev_b32 v69, 1, v72')
            a('v_lshl_add_u32 v65, v69, 1, v65')
            a('v_lshl_add_u32 v1, v65, 4, v68')
            a('v_cmp_gt_u32 s[26:27], 6, v64')
            for r in range(156, 160): a(f'v_mov_b32 v{r}, 0')
            for k in range(4): a(f'ds_write_b128 v2, v[156:159] offset:{YL + w*4096 + k*1024}')
        a(f's_mul_i32 s22, s17, {64*GSH_B}')
        a(f's_add_u32 s25, s22, {VO_OFF}')
        a('s_lshl_b32 s35, s17, 7')
        a(f's_add_u32 s35, s35, {CNT_OFF + VOC - 2048}')
        a('s_mov_b32 s38, 0')
        a(f'v_mov_b32 v{VOK}, 0')
    else:
        a(f's_mul_i32 s24, s17, {65*8*KB}')
        a(f's_add_u32 s24, s24, {T2_OFF + (w-2)*4096 + (8*KB if SLOW_FIRST else 0)}')
        a('s_mul_i32 s34, s17, 640')
        a(f's_add_u32 s34, s34, {CNT_OFF + T2F + 4*(w-2) + (8 if SLOW_FIRST else 0)}')
        a('s_mul_i32 s36, s17, 448')
        a('v_add_u32 v0, s36, v2')
        a(f'v_add_u32 v0, {ML}, v0')
        a(f's_add_u32 s36, s36, {MEMG_OFF}')
        a('v_cmp_gt_u32 s[26:27], 28, v1')
        a('v_and_b32 v119, 31, v1')
        a('v_lshlrev_b32 v119, 2, v119')
        if F2ONE: a(f'v_and_b32 v119, 0x78, v119\nv_or_b32 v119, {4*(F2ONE-1)}, v119')
        a('s_add_u32 s22, s17, 16')
        a(f's_and_b32 s22, s22, {R2-1}')
        a('s_lshl_b32 s22, s22, 7')
        a(f's_add_u32 s22, s22, {F2}')
        a(f'v_add_u32 v119, s22, v119')
        nl = 13 if w == 2 else 14
        a(f'v_min_u32 v118, {nl-1}, v1')
        a(f's_mul_i32 s22, s17, {nl}')
        a('v_add_u32 v118, s22, v118')
        a('v_lshlrev_b32 v118, 7, v118')
        a(f'v_add_u32 v118, {2*EXCH_B if w == 2 else 2*XSEG_B}, v118')
        a(f's_mov_b32 s39, {XF_OFF}')
        a(f'v_add_u32 v1, {WL + 3*(w-2)*TILE_B}, v2')
        a('v_mov_b32 v117, 1')
        a('s_mul_i32 s38, s17, 1104')
        a(f's_add_u32 s38, s38, {EXCH_B + (w-2)*1024}')

def dbg_wait(a, P, t, abort):
    a('s_mov_b32 s30, 0')
    a.label(P)
    a(f'buffer_load_dword v{t+2}, v{t}, {DBG}, 0 offen sc1')
    a('s_waitcnt vmcnt(0)')
    a(f'v_cmp_ne_u32 vcc, v{t+2}, v{t+1}')
    a(f's_cbranch_vccz {P}_ok')
    a('s_sleep 4')
    a('s_add_u32 s30, s30, 1')
    a(f's_cmp_lt_u32 s30, {SLOW_LIMIT}')
    a(f's_cbranch_scc1 {P}')
    a(f's_branch {abort}')
    a.label(P + '_ok')

def dep_regs(a, cg_s, t, lane='v1'):
    a(f's_and_b32 s20, {cg_s}, 15')
    a('s_lshr_b32 s21, s20, 1')
    a('s_mul_i32 s21, s21, 56')
    a('s_add_u32 s22, s21, 55')
    a('s_lshr_b32 s21, s21, 6')
    a('s_lshr_b32 s22, s22, 6')
    a('s_add_u32 s21, s21, 24')
    a('s_add_u32 s22, s22, 24')
    a('s_add_u32 s20, s20, 8')
    a(f's_cmp_lt_u32 {cg_s}, 16')
    a('s_cselect_b32 s21, s20, s21')
    a('s_cselect_b32 s22, s20, s22')
    a(f's_cselect_b32 s20, {A_TGT}, {B_TGT}')
    a('s_lshl_b32 s21, s21, 2')
    a('s_lshl_b32 s22, s22, 2')
    a(f'v_mov_b32 v{t}, 124')
    a(f'v_mov_b32 v{t+1}, 128')
    a(f'v_writelane_b32 v{t}, s21, 0')
    a(f'v_writelane_b32 v{t}, s22, 1')
    a(f'v_writelane_b32 v{t+1}, s20, 0')
    a(f'v_writelane_b32 v{t+1}, s20, 1')

def xprep_loop(a, P):
    import prep
    a.label(f'{P}_l')
    a('s_waitcnt vmcnt(0) lgkmcnt(0)')
    a('v_mov_b32 v4, 1')
    a('v_mov_b32 v5, 20')
    wg_atomic(a, f'{P}_el', 's3')
    a('s_cmp_ge_u32 s3, 32')
    a(f's_cbranch_scc1 {P}_d')
    prep.xprep_item(a, P, 's3', st='sc1', signal=DBG)
    a(f's_branch {P}_l')
    a.label(f'{P}_d')

def wg_atomic(a, P, dst):
    a('v_mov_b32 v6, 160000')
    a('s_barrier')
    a('s_cmp_lg_u32 s16, 0')
    a(f's_cbranch_scc1 {P}1')
    a('s_mov_b64 exec, 1')
    a(f'buffer_atomic_add v4, v5, {DBG}, 0 offen sc0')
    a('s_waitcnt vmcnt(0)')
    a('ds_write_b32 v6, v4')
    a('s_waitcnt lgkmcnt(0)')
    a('s_mov_b64 exec, -1')
    a.label(f'{P}1')
    a('s_barrier')
    a('ds_read_b32 v4, v6')
    a('s_waitcnt lgkmcnt(0)')
    a(f'v_readfirstlane_b32 {dst}, v4')

def staff_check(a, okl, mode):
    a('s_mov_b32 s30, 0')
    a('v_mov_b32 v36, 0')
    a.label('ch_chk')
    a(f'buffer_load_dword v37, v36, {DBG}, 0 offen sc1')
    a('s_waitcnt vmcnt(0)')
    a('v_readfirstlane_b32 s22, v37')
    a('s_and_b32 s22, s22, 0xffff')
    a('s_cmp_ge_u32 s22, 32')
    a('s_cbranch_scc1 ch_go_end')
    a('s_sleep 16')
    a('s_add_u32 s30, s30, 1')
    a('s_cmp_lt_u32 s30, 64')
    a('s_cbranch_scc1 ch_chk')
    a.label('ch_go_end')
    a('v_mov_b32 v6, 160016')
    a('v_mov_b32 v4, s22')
    a('s_cmp_lg_u32 s16, 0')
    a('s_cbranch_scc1 ch_dec')
    a('ds_write_b32 v6, v4')
    a('s_waitcnt lgkmcnt(0)')
    a.label('ch_dec')
    a('s_barrier')
    a('ds_read_b32 v4, v6')
    a('s_waitcnt lgkmcnt(0)')
    a('v_readfirstlane_b32 s22, v4')
    a('s_cmp_ge_u32 s22, 32')
    a(f's_cbranch_scc1 {okl}')
    a('v_mov_b32 v4, 0x10001')
    a(f's_mov_b32 s18, {mode}')
    a('s_branch ch_take')

def worker_s4d(a):
    import s4d
    s4d.s4d_setup(a)
    a.label('wk_loop')
    a('v_mov_b32 v4, 1')
    a('v_mov_b32 v5, 4')
    wg_atomic(a, 'wk_el', 's3')
    a('v_and_b32 v4, 15, v1')
    a('s_cmp_ge_u32 s3, 112')
    a('s_cbranch_scc1 wk_done')
    s4d.s4d_item(a, 'wk', 's3')
    a('s_branch wk_loop')
    a.label('wk_done')

def poll_eq(a, P, srd, soff, target, sleep=4):
    a('v_mov_b32 v8, 0')
    a('s_mov_b32 s30, 0')
    a.label(P)
    a(f'buffer_load_dword v9, v8, {srd}, {soff} offen sc1')
    a('s_waitcnt vmcnt(0)')
    a(f'v_cmp_ne_u32 vcc, {target}, v9')
    a(f's_cbranch_vccz {P}_ok')
    a(f's_sleep {sleep}')
    a('s_add_u32 s30, s30, 1')
    a(f's_cmp_lt_u32 s30, {SLOW_LIMIT}')
    a(f's_cbranch_scc1 {P}')
    a('s_branch cA_abort')
    a.label(P + '_ok')
def flag_wait(a, P):
    a('s_cmp_lg_u32 s97, 0')
    a(f's_cbranch_scc1 {P}_sk')
    a('s_movk_i32 s20, 128')
    poll_eq(a, P, DBG, 's20', 1)
    a('s_mov_b32 s97, 1')
    a.label(P + '_sk')
def ac_wait(a, P):
    a('s_lshl_b32 s20, s17, 7')
    a(f's_add_u32 s20, s20, {CNT_OFF + AC}')
    poll_eq(a, P, SRD, 's20', 7, sleep=6)

def worker_all(a):
    import s4d, gemm, tok, prep
    JS = DBG if MERGE else SRD
    JO = 64 if MERGE else CNT_OFF + JOBC
    NA = 112 if MERGE == 1 else 0
    NJ = 1104 + NA
    tok.PEEK = JS
    a('s_load_dwordx2 s[36:37], s[0:1], 112')
    a('s_waitcnt lgkmcnt(0)')
    a(f's_mov_b32 s92, s36\ns_and_b32 s93, s37, 0xffff\ns_mov_b32 s94, {2048*896*2}\ns_mov_b32 s95, 0x20000')
    def ask():
        lb = a.newlabel('ask')
        a('s_cmp_lg_u32 s16, 0')
        a(f's_cbranch_scc1 {lb}')
        a('v_mov_b32 v250, 1')
        a(f'v_mov_b32 v251, {JO}')
        a('s_mov_b64 exec, 1')
        a(f'buffer_atomic_add v250, v251, {JS}, 0 offen sc0')
        a('s_mov_b64 exec, -1')
        a.label(lb)
    a('s_mov_b32 s96, 0')
    if MERGE:
        a('s_cmp_lg_u32 s101, -1')
        a('s_mov_b32 s3, s101')
        a('s_mov_b32 s101, -1')
        a('s_cbranch_scc1 wk_have')
    ask()
    a('s_branch wk_next')
    a.label('wk_loop')
    a('s_waitcnt vmcnt(0) lgkmcnt(0)')
    a('s_cmp_eq_u32 s96, 1')
    a('s_cbranch_scc1 wk_ask')
    a('s_mov_b32 s96, 1')
    staff_check(a, 'wk_ask', 0)
    a.label('wk_ask')
    a('v_readfirstlane_b32 s22, v250')
    a(f's_cmp_ge_u32 s22, {NJ}')
    a('s_cbranch_scc1 wk_next')
    ask()
    a.label('wk_next')
    evlog(a, 9005)
    a('v_mov_b32 v6, 160000')
    a('s_waitcnt vmcnt(0)')
    a('s_barrier')
    a('s_cmp_lg_u32 s16, 0')
    a('s_cbranch_scc1 wk_n1')
    a('s_mov_b64 exec, 1')
    a('ds_write_b32 v6, v250')
    a('s_mov_b64 exec, -1')
    a('s_waitcnt lgkmcnt(0)')
    a.label('wk_n1')
    a('s_barrier')
    a('ds_read_b32 v4, v6')
    a('s_waitcnt lgkmcnt(0)')
    a('v_readfirstlane_b32 s3, v4')
    a.label('wk_have')
    evlog(a, 's3')
    a(f's_cmp_ge_u32 s3, {NJ}')
    a('s_cbranch_scc1 wk_done')
    a('v_mov_b32 v250, 0')
    a(f'v_mov_b32 v251, {JO}')
    a('v_and_b32 v1, 63, v0')
    a('v_lshlrev_b32 v2, 4, v1')
    a('v_lshrrev_b32 v3, 4, v1')
    a('v_and_b32 v4, 15, v1')
    if MERGE == 3: flag_wait(a, 'wk_fw')
    if MERGE == 1:
        a('s_cmp_ge_u32 s3, 112')
        a('s_cbranch_scc1 wk_np')
        prep.prep_item(a, 'wpa', 's3', st='sc1', mode='A')
        flag_wait(a, 'wk_fa')
        a('s_waitcnt vmcnt(0)')
        a('s_barrier')
        a('v_mov_b32 v250, 0')
        a('s_cmp_lg_u32 s16, 0')
        a('s_cbranch_scc1 wk_loop')
        a('s_lshl_b32 s20, s17, 7')
        a(f's_add_u32 s20, s20, {CNT_OFF + AC}')
        a('v_mov_b32 v5, 1')
        a('v_mov_b32 v6, 0')
        a('s_mov_b64 exec, 1')
        a(f'buffer_atomic_add v5, v6, {SRD}, s20 offen')
        a('s_mov_b64 exec, -1')
        a('s_branch wk_loop')
        a.label('wk_np')
        a('s_sub_u32 s3, s3, 112')
        flag_wait(a, 'wk_fw')
    a('s_cmp_ge_u32 s3, 592')
    a('s_cbranch_scc1 wk_tok')
    a('s_cmp_ge_u32 s3, 480')
    a('s_cbranch_scc1 wk_s4d')
    a('s_cmp_ge_u32 s3, 256')
    a('s_cbranch_scc1 wk_full')
    a('s_cmp_ge_u32 s3, 224')
    a('s_cbranch_scc1 wk_srv')
    a('s_cmp_ge_u32 s3, 112')
    a('s_cselect_b32 s18, 1, 0')
    a('s_cselect_b32 s20, 112, 0')
    a('s_sub_u32 s20, s3, s20')
    a('s_and_b32 s17, s20, 15')
    a('s_add_u32 s17, s17, 16')
    a('s_lshr_b32 s34, s20, 4')
    a('s_lshl_b32 s34, s34, 1')
    a('s_add_u32 s35, s34, 2')
    if RB1_DELAY:
        a('s_cmp_eq_u32 s18, 0')
        a('s_cbranch_scc1 wk_gemm')
        for _ in range(RB1_DELAY): a('s_sleep 127')
    a('s_branch wk_gemm')
    a.label('wk_full')
    a('s_sub_u32 s20, s3, 224')
    a('s_and_b32 s17, s20, 15')
    a('s_lshr_b32 s18, s20, 4')
    a('s_cmp_lt_u32 s18, 8')
    a('s_cselect_b32 s21, 16, 0')
    a('s_add_u32 s17, s17, s21')
    a('s_and_b32 s18, s18, 7')
    a('s_mov_b32 s34, 0\ns_mov_b32 s35, 14')
    a.label('wk_gemm')
    if MERGE == 1:
        a('s_cmp_ge_u32 s17, 16')
        a('s_cbranch_scc1 wk_g2')
        ac_wait(a, 'wk_aw')
        a.label('wk_g2')
        evlog(a, 9006)
    gemm.gemm_body(a, 'wg', 's18', 's17', st='sc1', signal=True, ld='sc1' if MERGE else '')
    a('s_branch wk_loop')
    a.label('wk_srv')
    import t2srv
    a('s_and_b32 s18, s3, 15')
    a('s_lshr_b32 s19, s3, 4')
    a('s_and_b32 s19, s19, 1')
    t2srv.t2srv_body(a, 'ws', 's18', 's19', 'cA_abort', ld='sc1' if MERGE else '')
    a('v_mov_b32 v250, 0')
    a('s_branch wk_loop')
    a.label('wk_s4d')
    a('s_sub_u32 s3, s3, 480')
    s4d.s4d_setup(a)
    s4d.s4d_item(a, 'wk', 's3')
    a('s_branch wk_loop')
    a.label('wk_tok')
    a('s_sub_u32 s3, s3, 592')
    a('s_cmp_ge_u32 s3, 512')
    a('s_cbranch_scc1 wk_done')
    a('s_lshr_b32 s17, s3, 3')
    a('s_and_b32 s18, s3, 3')
    a('s_bitcmp1_b32 s3, 2')
    a('s_cbranch_scc1 wk_toko')
    tok.tokp_body(a, 's17', 's18', ld='sc1', st='sc1', sync='wp', ldx='sc1' if MERGE else '')
    a('s_branch wk_loop')
    a.label('wk_toko')
    tok.toko_body(a, 's17', 's18', ld='sc1', sync='wo', OUT='s[92:95]')
    a('s_branch wk_loop')
    a.label('wp_abort')
    a.label('wo_abort')
    a('s_branch cA_abort')
    a.label('wk_done')

def role_tail(a, late=None):
    lane_consts(a)
    a('s_mov_b32 s19, 0')
    a(f's_mov_b32 s20, {EXCH_OFF}')
    if STAMPS: a('s_mov_b32 s63, s17')
    a('s_lshr_b32 s22, s17, 4')
    a('s_lshl_b32 s22, s22, 2')
    a('s_add_u32 s22, s22, s16')
    a('s_and_b32 s17, s17, 15')
    for p in range(8):
        a(f's_cmp_eq_u32 s22, {p}')
        a(f's_cbranch_scc1 ch_init{p}')
    a('s_branch ch_end')
    for p in range(8):
        a.label(f'ch_init{p}')
        if p < 4: init_score(a, p)
        else: init_value(a, p - 4, p)
        if late: late(p)
        a('s_mov_b32 s30, 0')
        a('v_mov_b32 v36, 0')
        a.label(f'ch_md{p}')
        a(f'buffer_load_dword v37, v36, {DBG}, 0 offen sc1')
        a('s_waitcnt vmcnt(0)')
        a('v_readfirstlane_b32 s22, v37')
        a('s_and_b32 s31, s22, 0xffff')
        a('s_cmp_ge_u32 s31, 32')
        a(f's_cbranch_scc1 ch_go{p}')
        a('s_sleep 2')
        a('s_add_u32 s30, s30, 1')
        a(f's_cmp_lt_u32 s30, {SLOW_LIMIT}')
        a(f's_cbranch_scc1 ch_md{p}')
        a('s_branch ch_end')
        a.label(f'ch_go{p}')
        evlog(a, 9003)
        if DIAG: a('s_memtime s[32:33]')
        a('s_mov_b32 s31, 0')
        if p in (4, 5):
            for r in range(36, 60): a(f'v_mov_b32 v{r}, 0')
        a('s_lshr_b32 s22, s22, 16')
        a('s_cmp_lg_u32 s22, 0')
        role = 'sc' if p < 4 else 'va'
        a(f's_cbranch_scc1 cB_{role}{p & 3}_loop')
        a(f's_branch cA_{role}{p & 3}_loop')
    for tag, st in (('cA', ''), ('cB', 'sc1')):
        for w in range(4): gen_score(a, w, st, tag)
        for w in range(4): gen_value(a, w, st, tag)
        tag_end(a, tag)

def tag_end(a, tag):
    a.label(f'{tag}_abort')
    a('v_mov_b32 v4, 0xdead')
    a('v_mov_b32 v5, 16')
    a(f'buffer_store_dword v4, v5, {DBG}, 0 offen')
    a('s_branch ch_end')
    a.label(f'{tag}_done')
    evlog(a, 9004)
    if STAMPS and STAMP_CYC:
        a('s_cmp_lg_u32 s16, 0')
        a('s_cbranch_scc1 ch_end')
        a('s_lshl_b32 s22, s63, 10')
        a(f's_add_u32 s22, s22, {STAMP_OFF + 65536}')
        a('s_mov_b32 s30, 0')
        a('s_mov_b64 exec, 1')
        a.label(f'{tag}_cal')
        a('s_memtime s[40:41]')
        a('s_memrealtime s[42:43]')
        a('s_waitcnt lgkmcnt(0)')
        a('v_mov_b32 v4, s40')
        a('v_mov_b32 v5, s42')
        a(f'buffer_store_dwordx2 v[4:5], off, {SRD}, s22')
        a('s_add_u32 s22, s22, 8')
        a('s_add_u32 s30, s30, 1')
        a('s_cmp_lt_u32 s30, 128')
        a(f's_cbranch_scc1 {tag}_cal')
    if DIAG:
        a('s_memtime s[60:61]')
        a('s_waitcnt lgkmcnt(0)')
        a('s_sub_u32 s60, s60, s32')
        a('v_mov_b32 v4, s60')
        a('v_mov_b32 v5, 8')
        a(f'buffer_store_dword v4, v5, {DBG}, 0 offen')
        a('v_mov_b32 v4, s31')
        a('v_mov_b32 v5, 12')
        a('s_mov_b64 exec, 1')
        a(f'buffer_atomic_add v4, v5, {DBG}, 0 offen')
    a('s_branch ch_end')

def gen_chain_kernel(name='chain_kernel', worker=worker_s4d):
    a = Asm()
    a.raw(kernel_header(name))
    a('s_cmp_ge_u32 s2, 256')
    a('s_cbranch_scc1 ch_end')
    a('s_load_dwordx2 s[4:5], s[0:1], 120')
    a('s_load_dwordx2 s[6:7], s[0:1], 128')
    if CODE_PF: code_prefetch(a, name, 'ch_end', 130000, 60)
    a('s_getreg_b32 s3, hwreg(HW_REG_XCC_ID)')
    a('s_and_b32 s3, s3, 15')
    a('v_lshrrev_b32 v1, 6, v0')
    a('v_readfirstlane_b32 s16, v1')
    a('s_waitcnt lgkmcnt(0)')
    a('s_mov_b32 s8, s6\ns_and_b32 s9, s7, 0xffff\ns_mov_b32 s10, 0x10000000\ns_mov_b32 s11, 0x20000')
    a('s_mov_b32 s12, s4\ns_and_b32 s13, s5, 0xffff\ns_mov_b32 s14, 256\ns_mov_b32 s15, 0x20000')
    if EVLOG:
        a('s_lshl_b32 s100, s2, 2')
        a('s_add_u32 s100, s100, s16')
        a('s_lshl_b32 s100, s100, 8')
        a(f's_add_u32 s100, s100, {EV_OFF}')
    evlog(a, 9000)
    if MERGE:
        import prep
        a('s_mov_b32 s97, 0')
        a('s_mov_b32 s91, s3')
        a('v_and_b32 v1, 63, v0')
        a('v_lshlrev_b32 v2, 4, v1')
        a('v_lshrrev_b32 v3, 4, v1')
        a('v_and_b32 v4, 15, v1')
        a('s_cmp_lg_u32 s16, 0')
        a('s_cbranch_scc1 m_a1')
        a(f's_cmp_eq_u32 s3, {XCD_SEL}')
        a('s_cselect_b32 s20, 0, 64')
        a('v_accvgpr_write_b32 a255, 1')
        a('s_mov_b64 exec, 1')
        a(f'buffer_atomic_add a255, v2, {DBG}, s20 offen sc0')
        a('s_mov_b64 exec, -1')
        a.label('m_a1')
        prep.xall_pre(a, 's2')
        a('s_cmp_ge_u32 s2, 224')
        a('s_cbranch_scc1 m_w')
        prep.prep_item(a, 'mpb', 's2', st='sc1', mode='Bhalf' if MERGE == 1 else 'mix', defer=(MERGE == 3))
        a('s_branch m_e')
        a.label('m_w')
        a('s_waitcnt vmcnt(0)')
        a.label('m_e')
        prep.xall_post(a, 'mpx', 's2', 'sc1', wait=False)
        a('v_mov_b32 v6, 160000')
        a('s_waitcnt vmcnt(0) lgkmcnt(0)')
        a('s_barrier')
        a('s_cmp_lg_u32 s16, 0')
        a('s_cbranch_scc1 m_b1')
        a('v_mov_b32 v4, 1')
        a('v_mov_b32 v5, 96')
        a('v_accvgpr_read_b32 v7, a255')
        a('s_mov_b64 exec, 1')
        a(f'buffer_atomic_add v4, v5, {DBG}, 0 offen sc0')
        a('ds_write_b32 v6, v7')
        a('s_waitcnt lgkmcnt(0)')
        a('s_mov_b64 exec, -1')
        a.label('m_b1')
        a('s_barrier')
        a('ds_read_b32 v7, v6')
        a('s_cmp_lg_u32 s16, 0')
        a('s_cbranch_scc1 m_b2')
        a('s_waitcnt vmcnt(0)')
        a('v_readfirstlane_b32 s20, v4')
        a('s_cmp_lg_u32 s20, 255')
        a('s_cbranch_scc1 m_b2')
        a('v_mov_b32 v4, 1')
        a('v_mov_b32 v5, 128')
        a('s_mov_b64 exec, 1')
        a(f'buffer_store_dword v4, v5, {DBG}, 0 offen sc1')
        a('s_mov_b64 exec, -1')
        a.label('m_b2')
        a('s_waitcnt lgkmcnt(0)')
        a('v_readfirstlane_b32 s101, v7')
        evlog(a, 9001)
        a(f's_cmp_lg_u32 s91, {XCD_SEL}')
        a('s_cbranch_scc1 ch_worker')
        a('s_and_b32 s17, s101, 0xffff')
        a('s_mov_b32 s101, -1')
        a('s_cmp_lt_u32 s17, 32')
        a('s_cbranch_scc1 ch_role')
        a('s_branch ch_worker')
    else:
        a(f's_cmp_lg_u32 s3, {XCD_SEL}')
        a('s_cbranch_scc1 ch_worker')
    a('v_mov_b32 v4, 1')
    a('s_mov_b32 s18, 0')
    a.label('ch_take')
    a('v_mov_b32 v5, 0')
    wg_atomic(a, 'ch_el', 's17')
    a('s_and_b32 s17, s17, 0xffff')
    a('s_cmp_lt_u32 s17, 32')
    a('s_cbranch_scc1 ch_role')
    a('s_cmp_eq_u32 s18, 0')
    a('s_cbranch_scc1 ch_worker')
    a('s_branch ch_end')
    a.label('ch_role')
    if MERGE:
        flag_wait(a, 'ch_fw')
        if MERGE == 1:
            a('s_cmp_ge_u32 s17, 16')
            a('s_cbranch_scc1 ch_r2')
            ac_wait(a, 'ch_aw')
            a.label('ch_r2')
        evlog(a, 9002)
    role_tail(a)
    a.label('ch_worker')
    if worker: worker(a)
    if worker is not worker_all: staff_check(a, 'ch_end', 1)
    a.label('ch_end')
    a('s_endpgm')
    return a

if __name__ == '__main__':
    import sys
    for x in sys.argv[2:]:
        if x == 'stamps': STAMPS = True
        elif '=' in x:
            k, v = x.split('='); globals()[k] = int(v)
    a = gen_chain_kernel()
    out = ['; @launch kernel=chain_kernel grid=(256,1,1) block=(256,1,1) lds=163840',
           '.amdgcn_target "amdgcn-amd-amdhsa--gfx950"', '.text', a.text(), '.section .rodata,"a"', kernel_desc('chain_kernel')]
    open(sys.argv[1], 'w').write('\n'.join(out) + '\n')
    print('instructions', a.count)
```

```python
from asmlib import *
from layout import *

SRD = 's[8:11]'; DBG = 's[12:15]'
SPIN_LIMIT = 400000
SLOW_LIMIT = 50000
NSTEPS = 64
STAMPS = False
STAMP_STEP = 32
STAMP_CYC = 0
STEPLOG = 0
STAMP_OFF = 100 * 1024 * 1024
POLL_DEPTH = 3
POLL_GAP = 0
SC_SLEEP = 0
M_GAP = 4
SC_DELAY = 0
F1_POS = 10
F2_POS = 4
VA_DELAY = 0
VO_POS = 1
P_GAP = 5
ZFILL = 1
SC_ALLPOLL = 0
FOLDW = 1
NANCHK = 1
VO_PRE0 = 0
VO_PRE = 16
VO_SLEEP = 0
F1_WAVE = 2
RB1_DELAY = 0
EC_M = 0
EC_P = 0
DIAG = 0
T2SRV = 1
SLOW_FIRST = 0
B2_POS = 0
M_ROT = 0
CODE_PF = 1
PUB_EARLY = 0
HLP_SLEEP = 0
MERGE = 0
A_TGT = 28
B_TGT = 64
SELF_POISON = 0
X_PRELOAD = 0
VO_NT = 0
FIN_SLEEP = 0
VM_BURST = 0
PUBLISH = 1
VM_EVERY = 2
PUB_FIRST = 1
VO_EARLY = 0
FLAG_SLEEP = 0
SYNC = 0
XCD_SEL = 0
NOBULK = 0
VAL_TOUCH = 0
SC_TOUCH = 0
TOUCH_POS = 2
TOUCH_AHEAD = 2
DMA_DELAY = 0
PLAIN_M = 1
MRG = 1
KS = 0
B3P = 11
KGAP = 3
F2K = 2
FAKE5 = 0
PL2 = 1
RED2 = 1
PROT = 0
T2DF = 0
T2DH = 0
NOT2 = 0
ECP = 0
ALIGN = 6
APAD = 0
FAST = 1
EPI2 = 1
F2ONE = 0
SELF = 0
BDEP = None
BST2 = 0
R1 = 16
R2 = 32
PD_S = 5
PG_S = 8
PD_V = 5
PG_V = 8
PD_H = 3
PG_H = 0
VST = 0
VSM = 1
NPP = 10
VZ = 3
NPRE = 3
LPOS = 1
PLAIN_P = 1
D = 'row_mask:0xf bank_mask:0xf'
XSEG_B = 28 * KB

def stamp(a, k):
    if STAMPS: a(f'{"s_memtime" if STAMP_CYC else "s_memrealtime"} s[{40+2*k}:{41+2*k}]')
def stamp_flush(a, path, n, lbl, t=118):
    if not STAMPS: return
    a(f's_cmp_lg_u32 s19, {STAMP_STEP}')
    a(f's_cbranch_scc1 {lbl}')
    a('s_waitcnt lgkmcnt(0)')
    a(f's_lshl_b32 s22, s17, 9')
    a(f's_add_u32 s22, s22, {STAMP_OFF + path * 64}')
    a(f'v_mov_b32 v{t}, 0')
    for k in range(n):
        a(f'v_mov_b32 v{t+1}, s{40+2*k}')
        a(f'buffer_store_dword v{t+1}, v{t}, {SRD}, s22 offen offset:{4*k}')
    a.label(lbl)

EVLOG = 0
EV_OFF = 101 * 1024 * 1024
def evlog(a, tag, t=36):
    if not EVLOG: return
    a('s_memrealtime s[98:99]')
    a('s_waitcnt lgkmcnt(0)')
    a(f'v_mov_b32 v{t}, {tag}')
    a(f'v_mov_b32 v{t+1}, s98')
    a('s_mov_b64 exec, 1')
    a(f'buffer_store_dwordx2 v[{t}:{t+1}], off, {SRD}, s100')
    a('s_mov_b64 exec, -1')
    a('s_add_u32 s100, s100, 8')

TMAX = 0
def tmax(a, slot, t=36):
    if not TMAX: return
    a('s_memrealtime s[98:99]')
    a('s_waitcnt lgkmcnt(0)')
    a('s_sub_u32 s98, s98, s88')
    a(f'v_mov_b32 v{t}, s98')
    a('s_mov_b64 exec, 1')
    a(f'buffer_store_dword v{t}, off, {DBG}, 0 offset:{4*slot}')
    a('s_mov_b64 exec, -1')

def exec_lo(a, R):
    if R == 32: a('s_mov_b32 exec_hi, 0')
    else: a(f's_mov_b64 exec, {(1 << R) - 1}')

def spin(a, back, abort):
    a('s_add_u32 s30, s30, 1')
    a(f's_cmp_lt_u32 s30, {SPIN_LIMIT}')
    a(f's_cbranch_scc1 {back}')
    a(f's_branch {abort}')

def flagpoll(a, vaddr, sbase, regs, lbl, abort, Dp=None, gap=None, issued=0):
    Dp = Dp or POLL_DEPTH
    gap = POLL_GAP if gap is None else gap
    for i in range(issued, Dp):
        a(f'buffer_load_dword v{regs+i}, v{vaddr}, {SRD}, {sbase} offen sc1')
        if i < Dp - 1: a.nop(gap)
    a.label(lbl + '_l')
    for i in range(Dp):
        a(f's_waitcnt vmcnt({Dp-1})')
        a(f'v_cmp_eq_u32 vcc, -1, v{regs+i}')
        a(f's_cbranch_vccz {lbl}_d')
        a(f'buffer_load_dword v{regs+i}, v{vaddr}, {SRD}, {sbase} offen sc1')
    spin(a, lbl + '_l', abort)
    a.label(lbl + '_d')

def load_M(a, M, gap=0, k0=0):
    for ks in range(k0, 7):
        so = 's20' if ks < 4 else 's23'
        a(f'buffer_load_dwordx4 v[{M+4*ks}:{M+4*ks+3}], v2, {SRD}, {so} offen offset:{(ks & 3) * 1024} sc1')
        if gap and ks < 3: a.nop(gap)

def load_units(a, units, base, tmp_s='s22'):
    cur = None; n = 0
    for off, reg in units:
        for hb in range(2):
            o = off + hb * 1024
            blk = o // 4096 * 4096
            if blk != cur:
                a(f's_add_u32 {tmp_s}, {base}, {blk}'); cur = blk
            a(f'buffer_load_dwordx4 {ureg(reg + 4 * hb, 4)}, v2, {SRD}, {tmp_s} offen offset:{o - blk}' + (' sc1' if MERGE else ''))
            n += 1
            if n % 32 == 0: a('s_waitcnt vmcnt(24)')

def wreg(ti, ks):
    u = ti * 7 + ks
    return 256 + 8 * u if u < 32 else 120 + 8 * (u - 32)

def lane_consts(a):
    a('v_and_b32 v1, 63, v0')
    a('v_lshlrev_b32 v2, 4, v1')
    a('v_lshrrev_b32 v116, 4, v1')
    a('v_and_b32 v117, 15, v1')
    a('v_mov_b32 v3, 0x4444')
    a('v_mov_b32 v118, 0xeeee')
    a('v_cmp_lt_u32 vcc, 7, v117')
    a('v_cndmask_b32 v3, v3, v118, vcc')

def step_bases(a):
    a('s_add_u32 s23, s20, 4096')
    a(f's_add_u32 s21, s20, {EXCH_B}')

class Checker:
    def __init__(self, a, acc): self.a = a; self.acc = acc; self.q = []; self.first = True
    def add(self, r, n=4): self.q += list(range(r, r + n))
    def emit(self, k=1):
        for _ in range(k):
            if self.first and len(self.q) >= 3:
                x, y, z = self.q[:3]; self.q = self.q[3:]
                self.a(f'v_max3_u32 v{self.acc}, v{x}, v{y}, v{z}'); self.first = False
            elif len(self.q) >= 2:
                x, y = self.q[:2]; self.q = self.q[2:]
                self.a(f'v_max3_u32 v{self.acc}, v{self.acc}, v{x}, v{y}')
            elif len(self.q) == 1:
                self.a(f'v_max_u32 v{self.acc}, v{self.acc}, v{self.q[0]}'); self.q = []
    def drain(self):
        while self.q: self.emit()

XP = 2 * XSEG_B
XRP = 1024
MP = XP + 8 * KB
def score_tiles(w):
    return [(w, 0), (w, 1), (w, 2), (w, 3), (4 + (w >> 1), 2 * (w & 1)), (4 + (w >> 1), 2 * (w & 1) + 1), (6, w)]

def x_dma(a, w):
    a(f's_add_u32 m0, s25, {7*w*1024}')
    for f in range(7):
        if f == 4:
            a(f's_add_u32 m0, s25, {7*w*1024 + 4096}')
            a('s_add_u32 s22, s24, 4096')
        a(f'buffer_load_dwordx4 v2, {SRD}, {"s24" if f < 4 else "s22"} offen offset:{(f & 3) * 1024}' + (' sc1' if MERGE else '') + ' lds')

def gen_score(a, w, st, tag):
    L = lambda n: f'{tag}_sc{w}_{n}'
    ABORT = f'{tag}_abort'
    M = 8; ACC = 36; AOP = 64; TR = 68; BOP6 = 76; BOPB = 80; BOPA = 60; SACC = 84; SX = 88
    XS = [96, 104, [12, 16, 8, 8][w], 52, 36]
    ka, kb = w, 4 + (w >> 1)
    half6, piece6, pieceP = w & 1, w >> 1, w & 1
    def S(ti, ks):
        return f'v_smfmac_f32_16x16x64_bf16 v[{ACC+4*ti}:{ACC+4*ti+3}], v[{M+4*ks}:{M+4*ks+3}], {ureg(wreg(ti, ks), 8)}, v3'
    def cvt(dst, src):
        return [f'v_cvt_pk_bf16_f32 v{dst}, v{src}, v{src+1}', f'v_cvt_pk_bf16_f32 v{dst+1}, v{src+2}, v{src+3}']
    def T(dst): return f'v_mfma_f32_16x16x32_bf16 v[{dst}:{dst+3}], v[{AOP}:{AOP+3}], v[4:7], 0'
    def xrd(buf, kap, tt):
        off = (tt * 14 + 2 * kap) * 1024
        return [f'ds_read_b128 v[{XS[buf]}:{XS[buf]+3}], v116 offset:{off}', f'ds_read_b128 v[{XS[buf]+4}:{XS[buf]+7}], v116 offset:{off+1024}']
    def xrd2(buf, tt):
        return [f'ds_read_b128 v[{XS[buf]}:{XS[buf]+3}], v117 offset:{tt*14*KB}', f'ds_read_b128 v[{XS[buf]+4}:{XS[buf]+7}], v117 offset:{tt*14*KB+1024}']
    xfirst = (lambda: xrd2(0, 0) + xrd2(1, 1)) if MRG else (lambda: xrd(0, 6, 0) + xrd(1, 6, 1))
    def Smm(kap, b, first=False):
        c = '0' if first else f'v[{SACC}:{SACC+3}]'
        return f'v_mfma_f32_16x16x32_bf16 v[{SACC}:{SACC+3}], v[{M+4*kap}:{M+4*kap+3}], v[{b}:{b+3}], {c}'
    def Sx(tt, b, buf):
        return f'v_smfmac_f32_16x16x64_bf16 v[{SX+4*tt}:{SX+4*tt+3}], v[{b}:{b+3}], v[{XS[buf]}:{XS[buf]+7}], v3'
    ZR = list(range(ACC, ACC + 28)) + list(range(SX, SX + 8)) + [AOP + 2 - 2 * half6, AOP + 3 - 2 * half6]
    def zero(lo=0, hi=99):
        for r in ZR[lo:hi]: a(f'v_mov_b32 v{r}, 0')
    o1 = [(k + w) % 4 for k in range(4)] if M_ROT else [0, 1, 2, 3]
    o2 = [4 + (k + w) % 3 for k in range(3)] if M_ROT else [4, 5, 6]
    def ml(ks, first=False):
        a(f'buffer_load_dwordx4 v[{M+4*ks}:{M+4*ks+3}], v2, {SRD}, {"s20" if ks < 4 else "s23"} offen offset:{(ks & 3) * 1024}' + ('' if first and PLAIN_M and st == '' else ' sc1'))
    if ALIGN: a.raw(f'.p2align {ALIGN}\n' + '  s_nop 0\n' * APAD)
    a.label(L('loop'))
    step_bases(a)
    zero(3 * M_GAP if ZFILL else 0)
    a('s_mov_b32 s30, 0')
    if NANCHK: a('s_mov_b32 s62, 0')
    if SC_ALLPOLL:
        a('s_waitcnt vmcnt(0)')
        a('s_barrier')
        if SC_SLEEP: a(f's_sleep {SC_SLEEP}')
        flagpoll(a, 117, 's20', TR, L('fp'), ABORT)
        stamp(a, 0)
    else:
        if w == 0:
            if SC_SLEEP: a(f's_sleep {SC_SLEEP}')
            flagpoll(a, 0, 's20', TR, L('fp'), ABORT, PD_S, PG_S)
            if SC_DELAY: a.nop(SC_DELAY)
            ml(o1[0], True)
            a('s_barrier')
            stamp(a, 0)
            a(f's_branch {L("ld1")}')
        else:
            a('s_waitcnt vmcnt(0)')
            stamp(a, 7)
            a('s_barrier')
            stamp(a, 0)
    a.label(L('ld'))
    ml(o1[0], NANCHK)
    if w == 0: a.label(L('ld1'))
    order = o1 + o2
    for i, ks in enumerate(order[1:NPRE]):
        if i < 3:
            if ZFILL: zero(i * M_GAP, (i + 1) * M_GAP)
            else: a.nop(M_GAP)
        ml(ks, NANCHK)
    if ZFILL and NPRE < 4: zero((NPRE - 1) * M_GAP, 3 * M_GAP)
    if NANCHK and NPRE == 7: a.label(L('ld2'))
    for x in xfirst(): a(x)
    ck = Checker(a, 118)
    issued = NPRE
    late = order[NPRE:]
    for i, ks in enumerate(o1):
        a(f's_waitcnt vmcnt({issued-1-i})')
        if i < EC_M:
            a.label(L(f'e{i}'))
            r = M + 4 * ks
            a(f'v_max3_u32 v{TR}, v{r}, v{r+1}, v{r+2}')
            a(f'v_max_u32 v{TR}, v{TR}, v{r+3}')
            a(f'v_cmp_eq_u32 vcc, -1, v{TR}')
            a(f's_cbranch_vccnz {L(f"er{i}")}')
        elif not NANCHK: ck.add(M + 4 * ks)
        if i == 0: stamp(a, 1)
        for ti in range(7):
            a(S(ti, ks))
            if ti in (1, 3): ck.emit()
            if late and ti in ((LPOS, LPOS + 3) if LPOS < 4 else (LPOS - 4,)):
                ml(late.pop(0), NANCHK); issued += 1
    assert not late
    a('s_waitcnt vmcnt(0)')
    if NPRE < 7: a.label(L('ph2'))
    stamp(a, 2)
    for k in (4, 5, 6):
        if not NANCHK: ck.add(M + 4 * k)
    seq = []
    for ti in (6, 4, 5, 0, 1, 2, 3):
        for ks in (4, 5, 6): seq.append([S(ti, ks), []])
    def side(i, ops): seq[i][1] += ops
    CK = 'CK'
    for i in range(6): side(i, [CK])
    if MRG:
        M2 = 80
        side(0, xrd(2, ka, 0))
        if (w == 1 or w == 2): side(1, [f'buffer_load_dword v119, v0, {SRD}, {"s20" if w == 1 else "s24"} offen sc1'])
        mv = [f'v_mov_b32 v{M2+k}, v{M+4*kb+2*pieceP+k}' for k in range(2)] + [f'v_mov_b32 v{M2+2+k}, v{M+24+2*piece6+k}' for k in range(2)]
        side(2, mv[:1]); side(3, mv[1:2]); side(4, mv[2:3]); side(7, mv[3:])
        c6 = cvt(AOP + 2 * half6, ACC + 24)
        side(5, c6[:1]); side(6, c6[1:])
        seq.insert(8, [T(TR), []])
        cb6 = cvt(BOP6 + 2, TR)
        side(11, cb6[:1]); side(12, cb6[1:])
        c4, c5 = cvt(AOP, ACC + 16), cvt(AOP + 2, ACC + 20)
        side(9, c4[:1]); side(10, c4[1:]); side(12, c5[:1]); side(13, c5[1:])
        seq.insert(15, [T(TR + 4), xrd(3, ka, 1)])
        c0, c1 = cvt(AOP, ACC), cvt(AOP + 2, ACC + 4)
        side(16, c0[:1]); side(17, c0[1:])
        cbb = cvt(BOP6, TR + 4)
        side(18, cbb[:1]); side(19, cbb[1:] + c1[:1]); side(20, c1[1:])
        seq.insert(22, [T(TR), []])
        c2, c3 = cvt(AOP, ACC + 8), cvt(AOP + 2, ACC + 12)
        side(23, c2[:1])
        seq.append([f'v_mfma_f32_16x16x32_bf16 v[{SACC}:{SACC+3}], v[{M2}:{M2+3}], v[{BOP6}:{BOP6+3}], 0', c2[1:] + ['s_waitcnt lgkmcnt(0)']])
        ca0 = cvt(BOPA, TR)
        seq.append([Sx(0, BOP6, 0), ca0 + c3])
        seq.append([T(TR + 4), []])
        seq.append([Sx(1, BOP6, 1), cvt(BOPA + 2, TR + 4)])
        seq.append([Smm(ka, BOPA), []])
        seq.append([Sx(0, BOPA, 2), []])
        seq.append([Sx(1, BOPA, 3), []])
    else:
        side(0, xrd(2, kb, 0))
        if SC_TOUCH: side(TOUCH_POS, [f'buffer_load_dword v119, v117, {SRD}, s35 offen sc1'])
        if not VAL_TOUCH and ((w == 1 and not SELF_POISON) or (w == 2 and not X_PRELOAD)): side(TOUCH_POS - 1, [f'buffer_load_dword v119, v0, {SRD}, {"s20" if w == 1 else "s24"} offen sc1'])
        c6 = cvt(AOP + 2 * half6, ACC + 24)
        side(5, c6[:1]); side(6, c6[1:] + ['v_cmp_eq_u32 vcc, -1, v118'])
        seq.insert(8, [T(TR), []])
        side(9, [f's_cbranch_vccnz {L("retry")}'])
        cb6 = cvt(BOP6 + 2 * piece6, TR)
        side(11, cb6[:1]); side(12, cb6[1:])
        c4, c5 = cvt(AOP, ACC + 16), cvt(AOP + 2, ACC + 20)
        side(9, c4[:1]); side(10, c4[1:]); side(12, c5[:1]); side(13, c5[1:])
        seq.insert(15, [T(TR + 4), xrd(3, kb, 1)])
        c0, c1 = cvt(AOP, ACC), cvt(AOP + 2, ACC + 4)
        side(16, c0[:1]); side(17, c0[1:])
        cbb = cvt(BOPB + 2 * pieceP, TR + 4)
        side(18, cbb[:1]); side(19, cbb[1:] + c1[:1]); side(20, c1[1:])
        seq.insert(22, [T(TR), xrd(4, ka, 0)])
        c2, c3 = cvt(AOP, ACC + 8), cvt(AOP + 2, ACC + 12)
        side(23, ['s_waitcnt lgkmcnt(4)'] + c2[:1])
        seq.append([Smm(6, BOP6, True), c2[1:]])
        seq.append([Sx(0, BOP6, 0), xrd(0, ka, 1)])
        ca0 = cvt(BOPA, TR)
        seq.append([Sx(1, BOP6, 1), c3])
        seq.append([Smm(kb, BOPB), ca0[:1]])
        seq.append([T(TR + 4), ca0[1:] + ['s_waitcnt lgkmcnt(4)']])
        seq.append([Sx(0, BOPB, 2), []])
        seq.append([Sx(1, BOPB, 3), ['s_waitcnt lgkmcnt(0)'] + cvt(BOPA + 2, TR + 4)])
        if FOLDW:
            seq.append([Smm(ka, BOPA), []])
            seq.append([Sx(0, BOPA, 4), []])
            seq.append([Sx(1, BOPA, 0), []])
        else:
            seq.append([Sx(0, BOPA, 4), []])
            seq.append([Sx(1, BOPA, 0), []])
            seq.append([Smm(ka, BOPA), []])
    for m, ops in seq:
        a(m)
        for o in ops:
            if o == CK: ck.emit()
            elif NANCHK and (o.startswith('v_cmp') or o.startswith('s_cbranch')): pass
            else:
                if o.startswith('v_cmp'): ck.drain()
                a(o)
    if RED2:
        a(f'v_permlane32_swap_b32 v{SACC}, v{SACC+2}')
        a(f'v_permlane32_swap_b32 v{SACC+1}, v{SACC+3}')
        a(f'v_cmp_u_f32 vcc, v{SX}, v{SX+1}')
        a(f'v_add_f32_dpp v{SACC}, v{SACC+2}, v{SACC} row_ror:8 {D}')
        a(f'v_add_f32_dpp v{SACC+1}, v{SACC+3}, v{SACC+1} row_ror:8 {D}')
        for r in range(2): a(f'v_permlane32_swap_b32 v{SX+r}, v{SX+4+r}')
        a(f'ds_write2_b32 v113, v{SACC}, v{SACC+1} offset0:0 offset1:4')
        for r in range(2, 4): a(f'v_permlane32_swap_b32 v{SX+r}, v{SX+4+r}')
        for r in range(4): a(f'v_add_f32 v{SX+r}, v{SX+r}, v{SX+4+r}')
        a(f'ds_write2_b64 v112, v[{SX}:{SX+1}], v[{SX+2}:{SX+3}] offset0:0 offset1:{XRP // 8}')
    elif FOLDW:
        a('s_mov_b64 exec, s[26:27]')
        a(f'ds_write_b128 v113, v[{SACC}:{SACC+3}]')
        a('s_mov_b64 exec, -1')
        a(f'v_cmp_u_f32 vcc, v{SX}, v{SX+1}')
        for r in range(4): a(f'v_permlane32_swap_b32 v{SX+r}, v{SX+4+r}')
        for r in range(4): a(f'v_add_f32 v{SX+r}, v{SX+r}, v{SX+4+r}')
        a(f'ds_write_b128 v112, v[{SX}:{SX+3}]')
    else:
        a(f'ds_write_b128 v112, v[{SX}:{SX+3}]')
        if NANCHK: a(f'v_cmp_u_f32 vcc, v{SX}, v{SX+1}')
        a(f'ds_write_b128 v112, v[{SX+4}:{SX+7}] offset:256')
        a('s_mov_b64 exec, s[26:27]')
        a(f'ds_write_b128 v113, v[{SACC}:{SACC+3}]')
        a('s_mov_b64 exec, -1')
    if NANCHK:
        a(f's_cbranch_vccnz {L("retry")}')
        a.label(L('cont'))
    stamp(a, 3)
    a('s_waitcnt lgkmcnt(0)')
    a('s_barrier')
    stamp(a, 4)
    t = ACC
    if RED2:
        a(f'ds_read_b128 v[{t}:{t+3}], v114')
        a(f'ds_read_b128 v[{t+8}:{t+11}], v115')
    else:
        for k in range(2 if FOLDW else 4): a(f'ds_read_b64 v[{t+2*k}:{t+2*k+1}], v114 offset:{k*1024}')
        a(f'ds_read2_b32 v[{t+8}:{t+9}], v115 offset0:0 offset1:64')
    if w == F1_WAVE: a(f'v_lshl_add_u32 v{t+20}, v2, 3, s36')
    def f1(pos):
        if w == F1_WAVE and pos == F1_POS:
            exec_lo(a, R1)
            a(f'buffer_store_dword v2, v{t+20}, {SRD}, s20 offen {st}')
            a('s_mov_b64 exec, -1')
    if F1_POS < 0 and w == F1_WAVE:
        a.nop(4 * (F1_POS + 4)); f1(F1_POS)
    a('s_waitcnt lgkmcnt(0)')
    f1(0)
    stamp(a, 5)
    sm, sx = t + 8, t
    if RED2:
        a(f'v_add_f32 v{t}, v{t}, v{t+2}')
        a(f'v_add_f32 v{t+1}, v{t+1}, v{t+3}')
        a(f'v_add_f32 v{t+8}, v{t+8}, v{t+9}')
        f1(10)
        a(f'v_add_f32 v{t+10}, v{t+10}, v{t+11}')
        a(f'v_permlane32_swap_b32 v{t}, v{t+1}')
        a(f'v_add_f32 v{sm}, v{t+8}, v{t+10}')
        f1(11)
        a(f'v_add_f32 v{sx}, v{t}, v{t+1}')
    else:
        a(f'v_add_f32 v{sm}, v{t+8}, v{t+9}')
        a(f'v_add_f32 v{t}, v{t}, v{t+2}')
        a(f'v_add_f32 v{t+1}, v{t+1}, v{t+3}')
        f1(10)
        a(f'v_add_f32_dpp v{sm}, v{sm}, v{sm} row_ror:8 {D}')
        if FOLDW:
            a(f'v_mov_b32 v{t+9}, v{sm}')
            f1(11)
            a(f'v_permlane32_swap_b32 v{t}, v{t+1}')
            a(f'v_add_f32 v{sx}, v{t}, v{t+1}')
            f1(12)
            a(f'v_permlane16_swap_b32 v{sm}, v{t+9}')
            a(f'v_add_f32 v{sm}, v{sm}, v{t+9}')
            f1(13)
        else:
            a(f'v_add_f32 v{t+4}, v{t+4}, v{t+6}')
            a(f'v_add_f32 v{t+5}, v{t+5}, v{t+7}')
            a(f'v_mov_b32 v{t+9}, v{sm}')
            a(f'v_add_f32 v{t}, v{t}, v{t+4}')
            a(f'v_add_f32 v{t+1}, v{t+1}, v{t+5}')
            a(f'v_permlane16_swap_b32 v{sm}, v{t+9}')
            a(f'v_add_f32 v{sm}, v{sm}, v{t+9}')
            a(f'v_permlane32_swap_b32 v{t}, v{t+1}')
            a(f'v_add_f32 v{sx}, v{t}, v{t+1}')
    if FAST:
        ex, em, ab = t + 12, t + 13, t + 14
        l = t + 3; u = t + 4; v = t + 5; lo = t + 6; hi = t + 7
        def norm(fast):
            a(f'v_fma_f32 v{l}, v{em}, s37, v{ex}')
            if fast: a(f'v_cmp_ngt_f32 vcc, s56, v{ab}')
            a(f'v_cndmask_b32 v{v}, v{ex}, v{em}, s[38:39]')
            a(f'v_add_f32_dpp v{l}, v{l}, v{l} quad_perm:[1,0,3,2] {D}')
            a(f'v_cndmask_b32 v{u}, v{em}, v{ex}, s[38:39]')
            a(f'v_mov_b32_dpp v{t+10}, v{v} quad_perm:[1,0,3,2] {D}')
            a(f'v_add_f32_dpp v{l}, v{l}, v{l} quad_perm:[2,3,0,1] {D}')
            a(f'v_cndmask_b32 v{lo}, v{t+10}, v{u}, s[38:39]')
            a(f'v_cndmask_b32 v{hi}, v{u}, v{t+10}, s[38:39]')
            a(f'v_add_f32_dpp v{l}, v{l}, v{l} row_half_mirror {D}')
            if fast: a(f's_cbranch_vccnz {L("slow")}')
            a(f'v_add_f32_dpp v{t+11}, v{l}, v{l} row_mirror {D}')
            a(f'v_add_f32_dpp v{l}, v{l}, v{l} row_mirror {D}')
            a(f'v_permlane16_swap_b32 v{l}, v{t+11}')
            a(f'v_add_f32 v{l}, v{l}, v{t+11}')
            a(f'v_rcp_f32 v{l}, v{l}')
            a('s_mov_b64 exec, s[28:29]')
            a(f'v_mul_f32 v{lo}, v{lo}, v{l}')
            a(f'v_mul_f32 v{hi}, v{hi}, v{l}')
            a(f'v_cvt_pk_bf16_f32 v{lo}, v{lo}, v{hi}')
        if RED2: a(f'v_exp_f32 v{em}, v{sm}')
        a(f'v_exp_f32 v{ex}, v{sx}')
        if not RED2: a(f'v_exp_f32 v{em}, v{sm}')
        a(f'v_add_f32 v{ab}, abs(v{sx}), abs(v{sm})')
        f1(1)
        norm(True)
        a.label(L('pst'))
    else:
        mx = t + 2
        a(f'v_max_f32 v{mx}, v{sx}, v{sm}')
        f1(1)
        a(f'v_max_f32_dpp v{mx}, v{mx}, v{mx} quad_perm:[1,0,3,2] {D}')
        a(f'v_max_f32_dpp v{mx}, v{mx}, v{mx} quad_perm:[2,3,0,1] {D}')
        a(f'v_max_f32_dpp v{mx}, v{mx}, v{mx} row_half_mirror {D}')
        a(f'v_max_f32_dpp v{mx}, v{mx}, v{mx} row_mirror {D}')
        a(f'v_mov_b32 v{t+3}, v{mx}')
        a(f'v_permlane16_swap_b32 v{mx}, v{t+3}')
        a(f'v_max_f32 v{mx}, v{mx}, v{t+3}')
        f1(2)
        a(f'v_sub_f32 v{sx}, v{sx}, v{mx}')
        a(f'v_sub_f32 v{sm}, v{sm}, v{mx}')
        a(f'v_exp_f32 v{sx}, v{sx}')
        a(f'v_exp_f32 v{sm}, v{sm}')
        l = t + 3; u = t + 4; v = t + 5; lo = t + 6; hi = t + 7
        a(f'v_fma_f32 v{l}, v{sm}, s37, v{sx}')
        a(f'v_cndmask_b32 v{u}, v{sm}, v{sx}, s[38:39]')
        a(f'v_cndmask_b32 v{v}, v{sx}, v{sm}, s[38:39]')
        a(f'v_add_f32_dpp v{l}, v{l}, v{l} quad_perm:[1,0,3,2] {D}')
        a(f'v_mov_b32_dpp v{t+10}, v{v} quad_perm:[1,0,3,2] {D}')
        a(f'v_add_f32_dpp v{l}, v{l}, v{l} quad_perm:[2,3,0,1] {D}')
        a(f'v_cndmask_b32 v{lo}, v{t+10}, v{u}, s[38:39]')
        a(f'v_cndmask_b32 v{hi}, v{u}, v{t+10}, s[38:39]')
        f1(3)
        a(f'v_add_f32_dpp v{l}, v{l}, v{l} row_half_mirror {D}')
        a(f'v_add_f32_dpp v{l}, v{l}, v{l} row_mirror {D}')
        a(f'v_mov_b32 v{t+11}, v{l}')
        a(f'v_permlane16_swap_b32 v{l}, v{t+11}')
        a(f'v_add_f32 v{l}, v{l}, v{t+11}')
        f1(4)
        a(f'v_rcp_f32 v{l}, v{l}')
        a(f'v_mul_f32 v{lo}, v{lo}, v{l}')
        a(f'v_mul_f32 v{hi}, v{hi}, v{l}')
        a(f'v_cvt_pk_bf16_f32 v{lo}, v{lo}, v{hi}')
        a(f'v_min_u32 v{lo}, -2, v{lo}')
        a('s_mov_b64 exec, s[28:29]')
    a(f'buffer_store_dword v{lo}, v1, {SRD}, s20 offen {st}')
    a('s_mov_b64 exec, -1')
    f1(5)
    stamp(a, 6)
    a('s_barrier')
    if DMA_DELAY: a.nop(DMA_DELAY)
    if not NOBULK: a(f's_add_u32 s24, s24, {XSEG_B}')
    if not NOBULK: a(f's_add_u32 s35, s35, {GSH_B}')
    a(f's_xor_b32 s25, s25, {XSEG_B}')
    x_dma(a, w)
    a(f'v_xor_b32 v116, {XSEG_B}, v116')
    if MRG:
        a('v_add_u32 v117, s57, v117')
        a('s_sub_u32 s57, 0, s57')
    stamp_flush(a, w, 8, L('sf'))
    if TMAX and w == 3:
        a('s_cmp_lg_u32 s17, 0')
        a(f's_cbranch_scc1 {L("tm")}')
        for k, stp in enumerate((1, 20, 40, 62)):
            a(f's_cmp_lg_u32 s19, {stp}')
            a(f's_cbranch_scc1 {L(f"tm{k}")}')
            tmax(a, 12 + k, 118)
            a.label(L(f'tm{k}'))
        a.label(L('tm'))
    if STEPLOG and w in (1, 3):
        a('s_memtime s[40:41]' if w == 1 else 's_memrealtime s[40:41]')
        a('s_lshl_b32 s22, s17, 8')
        a('s_lshl_b32 s42, s19, 2')
        a('s_add_u32 s22, s22, s42')
        a(f's_add_u32 s22, s22, {STAMP_OFF + (4096 if w == 3 else 0)}')
        a('v_mov_b32 v118, 0')
        a('s_waitcnt lgkmcnt(0)')
        a('v_mov_b32 v119, s40')
        a(f'buffer_store_dword v119, v118, {SRD}, s22 offen')
    a('s_add_u32 s19, s19, 1')
    a('s_mov_b32 s20, s21')
    a(f's_cmp_lt_u32 s19, {NSTEPS-1}')
    a.flush()
    a(f's_cbranch_scc1 {L("loop")}')
    a(f's_branch {tag}_done')
    for i in range(EC_M):
        a.label(L(f'er{i}'))
        ml(o1[i])
        a('s_waitcnt vmcnt(0)')
        a('s_add_u32 s31, s31, 0x100')
        spin(a, L(f'e{i}'), ABORT)
    if FAST:
        a.label(L('slow'))
        mx = ab
        a(f'v_max_f32 v{mx}, v{sx}, v{sm}')
        for pm in ('quad_perm:[1,0,3,2]', 'quad_perm:[2,3,0,1]', 'row_half_mirror', 'row_mirror'): a(f'v_max_f32_dpp v{mx}, v{mx}, v{mx} {pm} {D}')
        a(f'v_mov_b32 v{t+11}, v{mx}')
        a(f'v_permlane16_swap_b32 v{mx}, v{t+11}')
        a(f'v_max_f32 v{mx}, v{mx}, v{t+11}')
        a(f'v_sub_f32 v{ex}, v{sx}, v{mx}')
        a(f'v_sub_f32 v{em}, v{sm}, v{mx}')
        a(f'v_exp_f32 v{ex}, v{ex}')
        a(f'v_exp_f32 v{em}, v{em}')
        a('s_add_u32 s31, s31, 0x100')
        norm(False)
        a(f'v_min_u32 v{lo}, -2, v{lo}')
        a(f's_branch {L("pst")}')
    a.label(L('retry'))
    if NANCHK:
        a('s_cmp_lg_u32 s62, 0')
        a(f's_cbranch_scc1 {L("cont")}')
        a('s_waitcnt vmcnt(0) lgkmcnt(0)')
        a.label(L('rv'))
        for ks in range(7): ml(ks)
        a('s_waitcnt vmcnt(0)')
        ck2 = Checker(a, 118)
        ck2.add(M, 28); ck2.drain()
        a('v_cmp_eq_u32 vcc, -1, v118')
        a(f's_cbranch_vccz {L("rk")}')
        spin(a, L('rv'), ABORT)
        a.label(L('rk'))
        a('s_mov_b32 s62, 1')
        zero()
        a('s_add_u32 s31, s31, 1')
        if NPRE == 7: a(f's_branch {L("ld2")}')
        else:
            for x in xfirst(): a(x)
            for ks in o1:
                for ti in range(7): a(S(ti, ks))
            a(f's_branch {L("ph2")}')
    else:
        a('s_waitcnt vmcnt(0) lgkmcnt(0)')
        a.nop(10)
        zero()
        a('s_add_u32 s31, s31, 1')
        spin(a, L('ld'), ABORT)

def init_score(a, w):
    AOP = 64
    a(f's_mul_i32 s31, s17, {CUW_B}')
    a(f's_add_u32 s31, s31, {WF_A}')
    units = [((kap * 4 + q) * TILE_B + ks * UNIT, wreg(ti, ks)) for ti, (kap, q) in enumerate(score_tiles(w)) for ks in range(7) if not SELF or (ti >= 4 and SELF == 1)]
    load_units(a, units, 's31')
    a(f's_mov_b32 s24, {XF_OFF + 7*w*1024}')
    a('s_mov_b32 s25, 0')
    x_dma(a, w)
    a('v_and_b32 v64, 7, v117')
    a('v_and_b32 v65, 1, v116')
    a('v_lshlrev_b32 v65, 2, v65')
    a('v_sub_u32 v64, v64, v65')
    a('v_lshrrev_b32 v65, 3, v117')
    a('v_lshl_add_u32 v66, v65, 2, v64')
    a('v_cmp_gt_u32 vcc, 4, v64')
    a('v_mov_b32 v67, 99')
    a('v_cndmask_b32 v66, v67, v66, vcc')
    a('v_mov_b32 v68, 0x3f80')
    a('v_mov_b32 v69, 0x3f800000')
    for d in range(4):
        a(f'v_mov_b32 v{4+d}, 0')
        a(f'v_cmp_eq_u32 vcc, {2*d}, v66')
        a(f'v_cndmask_b32 v{4+d}, v{4+d}, v68, vcc')
        a(f'v_cmp_eq_u32 vcc, {2*d+1}, v66')
        a(f'v_cndmask_b32 v{4+d}, v{4+d}, v69, vcc')
    a('v_lshrrev_b32 v64, 1, v116')
    a('v_lshrrev_b32 v65, 3, v117')
    a('v_cmp_eq_u32 s[26:27], v64, v65')
    a('v_and_b32 v66, 1, v116')
    a(f'v_add_u32 v64, {2*w}, v64')
    if FOLDW:
        a('v_lshrrev_b32 v67, 1, v116')
        a('v_lshlrev_b32 v67, 8, v67')
    else: a('v_lshlrev_b32 v67, 10, v64')
    a('v_lshl_add_u32 v67, v66, 9, v67')
    a('v_lshl_add_u32 v67, v117, 4, v67')
    a(f'v_add_u32 v112, {XP + (w*1024 if FOLDW else 0)}, v67')
    a('v_and_b32 v68, 7, v117')
    a('v_lshlrev_b32 v67, 8, v64')
    a('v_lshl_add_u32 v67, v68, 5, v67')
    a('v_lshl_add_u32 v67, v66, 4, v67')
    a(f'v_add_u32 v113, {MP}, v67')
    a('v_lshrrev_b32 v64, 5, v1')
    a('v_and_b32 v65, 31, v1')
    a('v_lshrrev_b32 v66, 3, v65')
    a('v_and_b32 v67, 7, v65')
    a('v_and_b32 v68, 3, v67')
    a('v_lshl_add_u32 v68, v66, 2, v68')
    a('v_lshrrev_b32 v69, 2, v67')
    a('v_lshl_add_u32 v68, v69, 4, v68')
    a(f'v_lshlrev_b32 v69, {11 if FOLDW else 12}, v64')
    a('v_lshl_add_u32 v69, v68, 4, v69')
    a(f'v_add_u32 v114, {XP + (w >> 1) * 512 + 2 * (w & 1) * 4}, v69')
    a(f'v_add_u32 v70, {2*w}, v64')
    a('v_lshlrev_b32 v69, 9, v66')
    a('v_lshl_add_u32 v69, v70, 5, v69')
    a('v_lshl_add_u32 v69, v67, 2, v69')
    a(f'v_add_u32 v115, {MP}, v69')
    if RED2:
        a('v_lshlrev_b32 v69, 4, v68')
        a('v_lshl_add_u32 v69, v64, 9, v69')
        a(f'v_add_u32 v114, {XP + w*XRP}, v69')
        a('v_mul_u32_u24 v69, 144, v70')
        a('v_lshl_add_u32 v69, v67, 4, v69')
        a(f'v_add_u32 v115, {MP}, v69')
        a('v_and_b32 v71, 1, v116')
        a(f'v_mul_u32_u24 v69, {2*XRP}, v71')
        a('v_lshl_add_u32 v69, v64, 8, v69')
        a('v_lshl_add_u32 v69, v117, 4, v69')
        a(f'v_add_u32 v112, {XP + (w >> 1)*512 + 8*(w & 1)}, v69')
        a('v_mul_u32_u24 v69, 144, v117')
        a('v_lshl_add_u32 v69, v71, 6, v69')
        a('v_lshl_add_u32 v69, v64, 5, v69')
        a(f'v_add_u32 v113, {MP + 4*w}, v69')
    a('v_and_b32 v71, 1, v1')
    a('v_cmp_eq_u32 s[38:39], 0, v71')
    a('v_cmp_gt_u32 vcc, 8, v65')
    a('s_or_b64 s[28:29], s[38:39], vcc')
    a('v_lshrrev_b32 v72, 1, v67')
    a('v_lshlrev_b32 v72, 2, v72')
    a('v_lshl_add_u32 v72, v70, 4, v72')
    a('s_lshl_b32 s22, s17, 9')
    a(f's_add_u32 s22, s22, {PX}')
    a('v_lshl_add_u32 v73, v66, 7, v72')
    a('v_add_u32 v73, s22, v73')
    a('s_lshl_b32 s22, s17, 7')
    a(f's_add_u32 s22, s22, {PM}')
    a('v_add_u32 v74, s22, v72')
    if VSM:
        a('v_bfe_u32 v72, v65, 1, 1')
        a('v_lshlrev_b32 v72, 7, v72')
        a('v_lshl_add_u32 v72, v70, 4, v72')
        a('v_bfe_u32 v73, v65, 2, 2')
        a('v_lshl_add_u32 v72, v73, 2, v72')
        a('v_lshrrev_b32 v73, 4, v65')
        a('v_lshl_add_u32 v73, v73, 8, v72')
        a('s_lshl_b32 s22, s17, 9')
        a(f's_add_u32 s22, s22, {PX}')
        a('v_add_u32 v73, s22, v73')
        a('s_lshr_b32 s22, s17, 1')
        a('s_lshl_b32 s22, s22, 8')
        a('s_and_b32 s34, s17, 1')
        a('s_lshl_b32 s34, s34, 3')
        a('s_add_u32 s22, s22, s34')
        a(f's_add_u32 s22, s22, {PM}')
        a('v_add_u32 v74, s22, v72')
    if PL2:
        a('v_bfe_u32 v72, v65, 1, 1')
        a('v_lshl_add_u32 v72, v64, 1, v72')
        a('v_lshlrev_b32 v72, 4, v72')
        a('v_bfe_u32 v73, v65, 2, 2')
        a('v_lshl_add_u32 v72, v73, 2, v72')
        a('v_lshrrev_b32 v73, 4, v65')
        a('v_lshl_add_u32 v73, v73, 6, v72')
        a('s_lshl_b32 s22, s17, 9')
        a(f's_add_u32 s22, s22, {PX + w*128}')
        a('v_add_u32 v73, s22, v73')
        a('v_lshrrev_b32 v72, 1, v65')
        a('v_lshlrev_b32 v72, 2, v72')
        a('v_lshl_add_u32 v72, v64, 5, v72')
        a('s_lshr_b32 s22, s17, 1')
        a('s_lshl_b32 s22, s22, 8')
        a('s_and_b32 s34, s17, 1')
        a('s_lshl_b32 s34, s34, 4')
        a('s_add_u32 s22, s22, s34')
        a(f's_add_u32 s22, s22, {PM + w*64}')
        a('v_add_u32 v74, s22, v72')
    a('v_lshlrev_b32 v0, 2, v65')
    if F2ONE: a(f'v_and_b32 v0, 0x78, v0\nv_or_b32 v0, {4*(F2ONE-1)}, v0')
    a(f's_and_b32 s22, s17, {R2-1}')
    a('s_lshl_b32 s22, s22, 7')
    a(f's_add_u32 s22, s22, {F2}')
    a(f'v_add_u32 v0, s22, v0')
    a('v_cndmask_b32 v1, v74, v73, s[38:39]')
    a('s_lshl_b32 s36, s17, 2')
    a(f's_add_u32 s36, s36, {F1}')
    a('s_mov_b32 s37, 0x3e800000')
    for r in range(64, 112): a(f'v_mov_b32 v{r}, 0')
    if MRG:
        a('v_and_b32 v118, 1, v116')
        a('v_cmp_eq_u32 vcc, 0, v118')
        a(f'v_mov_b32 v118, {6*2048 + (w >> 1)*256}')
        a(f'v_mov_b32 v119, {(4 + (w >> 1))*2048 + (w & 1)*256}')
        a('v_cndmask_b32 v118, v118, v119, vcc')
        a('v_lshrrev_b32 v116, 1, v116')
        a('v_lshl_add_u32 v118, v116, 9, v118')
        a('v_lshl_add_u32 v117, v117, 4, v118')
        a(f's_mov_b32 s57, {XSEG_B}')
    a('s_mov_b32 s56, 0x42800000')
    a('v_mov_b32 v116, v2')
    if not MRG:
        a('v_lshrrev_b32 v117, 4, v2')
        a('v_min_u32 v117, 55, v117')
        a('v_lshlrev_b32 v117, 7, v117')
    if w in (1, 2):
        nl = 13 if w == 1 else 14
        a('v_lshrrev_b32 v0, 4, v2')
        a(f'v_min_u32 v0, {nl-1}, v0')
        a(f's_mul_i32 s22, s17, {nl}')
        a('v_add_u32 v0, s22, v0')
        a('v_lshlrev_b32 v0, 7, v0')
        a(f'v_add_u32 v0, {2*EXCH_B if w == 1 else 2*XSEG_B - 7*w*1024}, v0')
        for k in (1, 2):
            a(f's_mov_b32 s22, {EXCH_OFF - k*EXCH_B if w == 1 else XF_OFF + 7*w*1024 - k*XSEG_B}')
            a(f'buffer_load_dword v119, v0, {SRD}, s22 offen sc1')
    if X_PRELOAD:
        a(f's_mul_i32 s22, s17, {4*XSEG_B}')
        a(f's_add_u32 s22, s22, {XF_OFF + w*XSEG_B}')
        for k in range(4):
            a(f'buffer_load_dword v119, v117, {SRD}, s22 offen')
            a(f's_add_u32 s22, s22, {56*128}')
    if SC_ALLPOLL:
        a('v_lshrrev_b32 v117, 4, v2')
        a('v_and_b32 v117, 31, v117')
        a('v_lshlrev_b32 v117, 2, v117')
        a(f'v_add_u32 v117, {F2}, v117')
    a(f's_mul_i32 s35, s17, {64*GSH_B}')
    a(f's_add_u32 s35, s35, {VO_OFF + TOUCH_AHEAD*GSH_B + w*56*128}')

YL = 0; ML = 8 * KB; WL = 16 * KB
def vtiles(w): return (6 * w, 6, 6) if w < 2 else (12 + 8 * (w - 2), 8, 7)
def vwreg(w, ti, ks):
    u = ti * 7 + ks
    return 256 + 8 * u if u < 32 else (176 if w < 2 else 120) + 8 * (u - 32)

VOK = 63
def vo_wait(a, L, ABORT, t):
    a(f's_branch {L("voc")}')
    a.label(L('vow'))
    a(f'buffer_load_dword v{VOK}, off, {SRD}, s35 sc1')
    a('s_waitcnt vmcnt(0)')
    a.label(L('voc'))
    a(f'v_readfirstlane_b32 s22, v{VOK}')
    a('s_cmp_eq_u32 s22, 56')
    a(f's_cbranch_scc1 {L("vod")}')
    a('s_sleep 1')
    spin(a, L('vow'), ABORT)
    a.label(L('vod'))
    a('s_add_u32 s35, s35, 2048')
    a('s_add_u32 s38, s19, 8')
    a('s_and_b32 s38, s38, -8')
    a('s_cmp_eq_u32 s19, 0')
    a('s_cselect_b32 s38, 4, s38')

def gen_value(a, w, st, tag):
    L = lambda n: f'{tag}_va{w}_{n}'
    ABORT = f'{tag}_abort'
    fin = w < 2
    t0, ntile, nreg = vtiles(w)
    M = 8; ACC = 36
    YA = 60 if fin else 112
    CK = 175
    def S(ti, ks, b=None):
        if NOT2: return 's_nop 2'
        return f'v_smfmac_f32_16x16x64_bf16 v[{ACC+4*ti}:{ACC+4*ti+3}], v[{M+4*ks}:{M+4*ks+3}], {b or ureg(vwreg(w, ti, ks), 8)}, v3'
    def fold(p):
        A_ = ACC + 8 * p; B_ = A_ + 4
        o = [f'v_permlane32_swap_b32 v{A_+r}, v{B_+r}' for r in range(4)]
        o += [f'v_add_f32 v{A_+r}, v{A_+r}, v{B_+r}' for r in range(4)]
        o += [f'v_cvt_pk_bf16_f32 v{B_}, v{A_}, v{A_+1}', f'v_cvt_pk_bf16_f32 v{B_+1}, v{A_+2}, v{A_+3}', f'ds_write2_b32 v{YA+p}, v{B_}, v{B_+1} offset0:0 offset1:2' if PL2 else f'ds_write_b64 v{YA+p}, v[{B_}:{B_+1}]']
        return o
    def run(seq):
        last = {}
        for i, (ti, m, pre) in enumerate(seq): last[ti] = i
        pend = []; delay = 0
        for i, (ti, m, pre) in enumerate(seq):
            for x in pre: a(x)
            a(m)
            if delay: delay -= 1
            elif pend:
                a(pend.pop(0))
                if len(pend) > 12: a(pend.pop(0))
            p = ti // 2
            if i == max(last[2 * p], last[2 * p + 1]):
                pend += fold(p)
                if not delay: delay = 3
        for x in pend: a(x)
    if ALIGN: a.raw(f'.p2align {ALIGN}\n' + '  s_nop 0\n' * APAD)
    a.label(L('loop'))
    step_bases(a)
    if not fin:
        for r in range(ACC, ACC + 4 * ntile): a(f'v_mov_b32 v{r}, 0')
    a('s_mov_b32 s30, 0')
    if fin and KS:
        VOR = 64; YT = 144; LO = 36; E = 44; PB = 52; HL = 15 * KB
        my = list(range(KS, 10)) if w == 0 else list(range(KS))
        pr = lambda c: 8 + 4 * my.index(c)
        bop = lambda c, t: VOR + 16 * my.index(c) + 8 * t if c < 8 else YT + 16 * t + 8 * (c - 8)
        a('s_cmp_lg_u32 s19, s38')
        a(f's_cbranch_scc1 {L("vok")}')
        vo_wait(a, L, ABORT, E)
        a.label(L('vok'))
        a('s_barrier')
        stamp(a, 0)
        for t in range(2):
            if t: a('s_mov_b64 exec, s[26:27]')
            for c in my:
                if c >= 8: continue
                a(f's_add_u32 s22, s25, {c*3584}')
                for k in range(2): a(f'buffer_load_dwordx4 v[{bop(c,t)+4*k}:{bop(c,t)+4*k+3}], v6, {SRD}, s22 offen offset:{k*1792 + t*256} sc1')
        a('s_mov_b64 exec, -1')
        a(f'buffer_load_dword v{VOK}, off, {SRD}, s35 sc1')
        a('s_barrier')
        stamp(a, 1)
        for ks in range(7): a(f'ds_read_b128 v[{M+4*ks}:{M+4*ks+3}], v2 offset:{ML + ks*1024}')
        a('s_waitcnt lgkmcnt(0)')
        run([(ti, S(ti, ks), []) for ti in range(ntile) for ks in range(7)])
        stamp(a, 2)
        a(f's_add_u32 s22, s20, {PX}')
        a(f's_add_u32 s34, s20, {PX + 4096}')
        a(f's_add_u32 s36, s20, {PM}')
        a('s_mov_b32 s37, 0')
        a('s_waitcnt lgkmcnt(0)')
        for r in range(8): a(f'v_mov_b32 v{LO+r}, 0')
        flagpoll(a, 4, 's20', E, L('fw'), ABORT, PD_V, PG_V)
        stamp(a, 4)
        def pld(c):
            so = ('s22', 's34', 's36')[c // 4]
            a(f'buffer_load_dwordx4 v[{pr(c)}:{pr(c)+3}], v{5 if c < 8 else 2}, {SRD}, {so} offen offset:{(c & 3)*1024} sc1')
        def psm(c, t): a(f'v_smfmac_f32_16x16x64_bf16 v[{LO+4*t}:{LO+4*t+3}], v[{pr(c)}:{pr(c)+3}], v[{bop(c,t)}:{bop(c,t)+7}], v0')
        q = []
        for i, c in enumerate(my):
            pld(c); q.append(c)
            if w == 0 and i < KS: a.nop(KGAP)
        a('s_barrier')
        if w == 0:
            for t in range(2):
                for k in range(4): a(f'ds_read_b128 v[{YT+16*t+4*k}:{YT+16*t+4*k+3}], v2 offset:{YL + t*4096 + k*1024}')
        n = 0
        for c in my:
            a(f's_waitcnt vmcnt({len(q) - 1 - q.index(c)})' + (' lgkmcnt(0)' if c == 8 and B3P > n else ' lgkmcnt(1)' if c == 8 else ''))
            if c == my[0]: stamp(a, 5)
            for t in range(2):
                psm(c, t); n += 1
                if w == 0 and n == F2K:
                    q.append('f')
                    exec_lo(a, R2)
                    a(f'buffer_store_dword v2, v7, {SRD}, s21 offen {st}')
                    a('s_mov_b64 exec, -1')
                if w == 0 and n == B3P:
                    a('s_barrier')
                    a(f'ds_read_b128 v[{PB}:{PB+3}], v2 offset:{HL}')
                    stamp(a, 3)
        a.label(L('ep'))
        if w == 1:
            for k in range(4): a(f'v_add_f32 v{E+k}, v{LO+2*k}, v{LO+2*k+1}')
            a(f'ds_write_b128 v2, v[{E}:{E+3}] offset:{HL}')
            a(f'v_cmp_u_f32 vcc, v{E}, v{E+1}')
            a(f's_cbranch_vccnz {L("rp")}')
            a.label(L('pc'))
            a('s_waitcnt lgkmcnt(0)')
            stamp(a, 3)
            a('s_barrier')
            a(f's_cmp_eq_u32 s19, {NSTEPS-2}')
            a(f's_cbranch_scc1 {tag}_done')
        else:
            RO = 'row_ror:8 row_mask:0xf bank_mask:0xc'; QP = 'quad_perm:[0,1,2,3] row_mask:0xf bank_mask:0x3'
            a(f'v_add_f32 v{E}, v{LO}, v{LO+1}')
            a(f'v_add_f32 v{E+1}, v{LO+2}, v{LO+3}')
            a('s_waitcnt lgkmcnt(0)')
            a(f'v_add_f32 v{E}, v{E}, v{PB}')
            a(f'v_add_f32 v{E+1}, v{E+1}, v{PB+1}')
            a(f'v_add_f32 v{E+2}, v{LO+4}, v{LO+5}')
            a(f'v_add_f32 v{E+3}, v{LO+6}, v{LO+7}')
            a(f'v_cmp_u_f32 vcc, v{E}, v{E+1}')
            a(f'v_add_f32 v{E+2}, v{E+2}, v{PB+2}')
            a(f'v_add_f32 v{E+3}, v{E+3}, v{PB+3}')
            a(f'v_mov_b32_dpp v{E+4}, v{E} row_ror:8 {D}')
            a(f'v_mov_b32_dpp v{E}, v{E+1} {RO}')
            a(f'v_mov_b32_dpp v{E+5}, v{E+2} row_ror:8 {D}')
            a(f'v_mov_b32_dpp v{E+1}, v{E+4} {QP}')
            a(f'v_mov_b32_dpp v{E+2}, v{E+3} {RO}')
            a(f'v_cvt_pk_bf16_f32 v{E}, v{E}, v{E+1}')
            a(f'v_mov_b32_dpp v{E+3}, v{E+5} {QP}')
            a(f's_cbranch_vccnz {L("rp")}')
            a.label(L('pc'))
            a(f'buffer_store_dword v{E}, v1, {SRD}, s21 offen {st}')
            a(f'v_cvt_pk_bf16_f32 v{E+2}, v{E+2}, v{E+3}')
            a('s_mov_b64 exec, s[26:27]')
            a(f'v_min_u32 v{E+2}, -2, v{E+2}')
            a(f'buffer_store_dword v{E+2}, v1, {SRD}, s21 offen offset:256 {st}')
            a(f's_cmp_lg_u32 s19, {NSTEPS-2}')
            a(f's_cbranch_scc1 {L("nl")}')
            a(f's_mov_b32 s22, {MEMG_OFF + (NSTEPS-1)*7*KB}')
            a(f'buffer_store_dword v{E+2}, v1, {SRD}, s22 offen offset:256 sc1')
            a('s_mov_b64 exec, -1')
            a(f'buffer_store_dword v{E}, v1, {SRD}, s22 offen sc1')
            a(f's_branch {tag}_done')
            a.label(L('nl'))
            a('s_mov_b64 exec, -1')
        stamp(a, 6)
        a(f's_add_u32 s25, s25, {GSH_B}')
        stamp_flush(a, 4 + w, 8, L('sf'), 8)
        for r in range(ACC, ACC + 4 * ntile): a(f'v_mov_b32 v{r}, 0')
        a('s_add_u32 s19, s19, 1')
        a('s_mov_b32 s20, s21')
        a(f's_branch {L("loop")}')
        a.label(L('rp'))
        a('s_cmp_eq_u32 s37, 0')
        a(f's_cbranch_scc1 {L("rv")}')
        if w == 0: a(f'v_min_u32 v{E}, -2, v{E}')
        a(f's_branch {L("pc")}')
        a.label(L('rv'))
        for c in my: pld(c)
        a('s_waitcnt vmcnt(0) lgkmcnt(0)')
        ck2 = Checker(a, E)
        ck2.add(8, 4 * len(my)); ck2.drain()
        a(f'v_cmp_eq_u32 vcc, -1, v{E}')
        a(f's_cbranch_vccz {L("rk")}')
        spin(a, L('rv'), ABORT)
        a.label(L('rk'))
        a('s_mov_b32 s37, 1')
        a('s_add_u32 s31, s31, 0x10000')
        for r in range(8): a(f'v_mov_b32 v{LO+r}, 0')
        for c in my:
            for t in range(2): psm(c, t)
        a.flush()
        a(f's_branch {L("ep")}')
        return
    if fin:
        YT = 64; VOR = 80; LO = 156; HI = 160; PL = 164
        pr = lambda c: 8 + 4 * c if c < 7 else 144 + 4 * (c - 7)
        if SYNC:
            a('s_cmp_lg_u32 s19, s38')
            a(f's_cbranch_scc1 {L("vok")}')
            vo_wait(a, L, ABORT, PL)
            a.label(L('vok'))
        if T2SRV:
            a(f's_cmp_eq_u32 s19, {NSTEPS-1}')
            a(f's_cbranch_scc1 {tag}_done')
        def vol(lo, hi):
            for h in range(lo, hi):
                if h % 2 == 0: a(f's_add_u32 s22, s25, s{72 + h // 2}' if PROT else f's_add_u32 s22, s25, {h*1792}')
                a(f'buffer_load_dwordx4 v[{VOR+4*h}:{VOR+4*h+3}], v6, {SRD}, s22 offen offset:{(h & 1)*1792} sc1')
        vol(0, VO_PRE0)
        if not SLOW_FIRST: a('s_barrier')
        stamp(a, 0)
        if VO_SLEEP: a(f's_sleep {VO_SLEEP}')
        vol(VO_PRE0, VO_PRE)
        if SYNC:
            a('s_add_u32 s22, s19, 1')
            a('s_cmp_lg_u32 s22, s38')
            a(f's_cbranch_scc1 {L("nk")}')
            a(f'buffer_load_dword v{VOK}, off, {SRD}, s35 sc1')
            a.label(L('nk'))
        a('s_barrier')
        stamp(a, 1)
        for ks in range(7): a(f'ds_read_b128 v[{M+4*ks}:{M+4*ks+3}], v2 offset:{ML + ks*1024}')
        vol(VO_PRE, 16)
        a('s_waitcnt lgkmcnt(0)')
        if T2DF: a(f's_sleep {T2DF}')
        run([(ti, S(ti, ks), []) for ti in range(ntile) for ks in range(7)])
        stamp(a, 2)
        a(f's_cmp_eq_u32 s19, {NSTEPS-1}')
        a(f's_cbranch_scc1 {L("last")}')
        a(f's_add_u32 s22, s20, {PX}')
        a(f's_add_u32 s34, s20, {PX + 4096}')
        a(f's_add_u32 s36, s20, {PM}')
        if PROT:
            for c in range(8): a(f's_add_u32 s{64+c}, s{64+c}, {EXCH_B}')
        a('s_mov_b32 s37, 0')
        for r in range(4): a(f'v_mov_b32 v{LO+r}, 0')
        if STAMPS:
            a('s_waitcnt vmcnt(0)')
            stamp(a, 7)
        if VSM and B2_POS < 0:
            a('s_waitcnt lgkmcnt(0)')
            for r in range(ACC, ACC + 4 * ntile): a(f'v_mov_b32 v{r}, 0')
            a('s_barrier')
            for k in range(4): a(f'ds_read_b128 v[{YT+4*k}:{YT+4*k+3}], v2 offset:{YL + w*4096 + k*1024}')
            stamp(a, 3)
        if FIN_SLEEP: a(f's_sleep {FIN_SLEEP}')
        flagpoll(a, 4, 's20', PL, L('fw'), ABORT, PD_V, PG_V)
        stamp(a, 4)
        a('s_waitcnt lgkmcnt(0)')
        if VSM:
            pl = PLAIN_P and st == ''
            def pld(c, sc):
                if FAKE5 and w == 1:
                    a('s_mov_b64 exec, 1')
                    a(f'buffer_load_dwordx4 v[{pr(c)}:{pr(c)+3}], v2, {SRD}, s20 offen')
                    a('s_mov_b64 exec, -1'); return
                if PROT and c < 8:
                    a(f'buffer_load_dwordx4 v[{pr(c)}:{pr(c)+3}], v2, {SRD}, s{64+c} offen' + (' sc1' if sc else '')); return
                so = ('s22', 's34', 's36')[c // 4]
                a(f'buffer_load_dwordx4 v[{pr(c)}:{pr(c)+3}], v{5 if PL2 and c < 8 else 2}, {SRD}, {so} offen offset:{(c & 3)*1024}' + (' sc1' if sc else ''))
            def psm(c):
                B_ = VOR + 8 * c if c < 8 else YT + 8 * (c - 8)
                a(f'v_smfmac_f32_16x16x64_bf16 v[{LO}:{LO+3}], v[{pr(c)}:{pr(c)+3}], v[{B_}:{B_+7}], v{0 if PL2 else 3}')
            zr = list(range(ACC, ACC + 4 * ntile)) if B2_POS >= 0 else []
            for c in range(NPP):
                pld(c, not pl)
                for _ in range(VZ):
                    if zr: a(f'v_mov_b32 v{zr.pop(0)}, 0')
            issued = NPP; nst = 0; q = list(range(NPP))
            if VST: stamp(a, 7)
            for c in range(10):
                if c == B2_POS:
                    a('s_barrier')
                    for k in range(4): a(f'ds_read_b128 v[{YT+4*k}:{YT+4*k+3}], v2 offset:{YL + w*4096 + k*1024}')
                    stamp(a, 3)
                if c == 0 and ECP:
                    a.label(L('pl')); cke = Checker(a, CK)
                a(f's_waitcnt vmcnt({len(q) - 1 - q.index(c)})' + (' lgkmcnt(0)' if c == 8 else ''))
                if c == 0: stamp(a, 5)
                if VST and c in (3, 6, 9): stamp(a, c // 3)
                psm(c)
                if c < ECP:
                    cke.add(pr(c)); cke.drain()
                    if c == ECP - 1: a(f'v_cmp_eq_u32 vcc, -1, v{CK}')
                if ECP and c == F2_POS: a(f's_cbranch_vccnz {L("re")}')
                if c == F2_POS and (not F2ONE or w == F2ONE - 1):
                    q.append('f')
                    exec_lo(a, R2)
                    a(f'buffer_store_dword v2, v7, {SRD}, s21 offen {st}')
                    a('s_mov_b64 exec, -1')
                    nst = 1
                if issued < 10:
                    pld(issued, not pl); q.append(issued); issued += 1
                for _ in range(2):
                    if zr: a(f'v_mov_b32 v{zr.pop(0)}, 0')
            a.label(L('ep'))
            while zr: a(f'v_mov_b32 v{zr.pop(0)}, 0')
            if PL2:
                a(f'v_add_f32 v{HI}, v{LO}, v{LO+1}')
                a(f'v_add_f32 v{HI+1}, v{LO+2}, v{LO+3}')
            else:
                a(f'v_permlane32_swap_b32 v{LO}, v{LO+2}')
                a(f'v_permlane32_swap_b32 v{LO+1}, v{LO+3}')
                a(f'v_add_f32 v{HI}, v{LO}, v{LO+2}')
                a(f'v_add_f32 v{HI+1}, v{LO+1}, v{LO+3}')
            a(f'v_cmp_u_f32 vcc, v{HI}, v{HI+1}')
            a(f'v_mov_b32_dpp v{HI+2}, v{HI} row_ror:8 {D}')
            a(f'v_mov_b32_dpp v{HI}, v{HI+1} row_ror:8 row_mask:0xf bank_mask:0xc')
            a(f's_cbranch_vccnz {L("rp")}')
            a(f'v_mov_b32_dpp v{HI+1}, v{HI+2} quad_perm:[0,1,2,3] row_mask:0xf bank_mask:0x3')
            a(f'v_cvt_pk_bf16_f32 v{HI}, v{HI}, v{HI+1}')
            a.label(L('pc'))
            if w == 1: a('s_mov_b64 exec, s[26:27]')
            a(f'buffer_store_dword v{HI}, v1, {SRD}, s21 offen {st}')
        else:
            pl = PLAIN_P and st == ''
            if not pl: a.label(L('lp'))
            for c in range(10):
                so = ('s22', 's34', 's36')[c // 4]
                a(f'buffer_load_dwordx4 v[{pr(c)}:{pr(c)+3}], v5, {SRD}, {so} offen offset:{(c & 3)*1024}' + ('' if pl else ' sc1'))
                for r in range(ACC + 4 * c, min(ACC + 4 * c + 4, ACC + 4 * ntile)): a(f'v_mov_b32 v{r}, 0')
            if pl: a.label(L('lp'))
            ck = Checker(a, CK)
            nst = 0
            for c in range(10):
                if c == B2_POS:
                    a('s_cmp_lg_u32 s37, 0')
                    a(f's_cbranch_scc1 {L("nb2")}')
                    a('s_waitcnt lgkmcnt(0)')
                    a('s_barrier')
                    for k in range(4): a(f'ds_read_b128 v[{YT+4*k}:{YT+4*k+3}], v2 offset:{YL + w*4096 + k*1024}')
                    a.label(L('nb2'))
                    stamp(a, 3)
                a(f's_waitcnt vmcnt({9-c+nst})' + (' lgkmcnt(0)' if c == 8 else ''))
                if c < EC_P:
                    a.label(L(f'e{c}'))
                    r = pr(c)
                    a(f'v_max3_u32 v{PL}, v{r}, v{r+1}, v{r+2}')
                    a(f'v_max_u32 v{PL}, v{PL}, v{r+3}')
                    a(f'v_cmp_eq_u32 vcc, -1, v{PL}')
                    a(f's_cbranch_vccnz {L(f"er{c}")}')
                if c == 0: stamp(a, 5)
                if c == F2_POS:
                    exec_lo(a, R2)
                    a(f'buffer_store_dword v2, v7, {SRD}, s21 offen {st}')
                    a('s_mov_b64 exec, -1')
                    nst = 1
                if c >= EC_P: ck.add(pr(c))
                B_ = f'v[{pr(c)}:{pr(c)+3}]'
                for hi, acc in ((1, HI), (0, LO)):
                    A_ = VOR + 4 * (2 * c + hi) if c < 8 else YT + 4 * (2 * (c - 8) + hi)
                    a(f'v_mfma_f32_16x16x32_bf16 v[{acc}:{acc+3}], v[{A_}:{A_+3}], {B_}, ' + ('0' if c == 0 else f'v[{acc}:{acc+3}]'))
                    ck.emit()
            ck.drain()
            a(f'v_cmp_eq_u32 vcc, -1, v{CK}')
            for r in range(4): a(f'v_add_f32_dpp v{LO+r}, v{HI+r}, v{LO+r} row_ror:8 {D}')
            a(f's_cbranch_vccnz {L("rp")}')
            a(f'v_cvt_pk_bf16_f32 v{HI}, v{LO}, v{LO+1}')
            a(f'v_cvt_pk_bf16_f32 v{HI+1}, v{LO+2}, v{LO+3}')
            a(f'v_min_u32 v{HI}, -2, v{HI}')
            a(f'v_min_u32 v{HI+1}, -2, v{HI+1}')
            a('s_mov_b64 exec, s[26:27]')
            a(f'buffer_store_dwordx2 v[{HI}:{HI+1}], v1, {SRD}, s21 offen {st}')
        if T2SRV:
            a(f's_cmp_lg_u32 s19, {NSTEPS-2}')
            a(f's_cbranch_scc1 {L("nl")}')
            a(f's_mov_b32 s22, {MEMG_OFF + (NSTEPS-1)*7*KB}')
            if VSM: a(f'buffer_store_dword v{HI}, v1, {SRD}, s22 offen sc1')
            else: a(f'buffer_store_dwordx2 v[{HI}:{HI+1}], v1, {SRD}, s22 offen sc1')
            a('s_mov_b64 exec, -1')
            a(f's_branch {tag}_done')
            a.label(L('nl'))
        a('s_mov_b64 exec, -1')
        if SLOW_FIRST: a('s_barrier')
        stamp(a, 6)
        if not NOBULK: a(f's_add_u32 s25, s25, {GSH_B}')
        stamp_flush(a, 4 + w, 8, L('sf'), PL)
    else:
        STG = [76, 84, 92]; TP = 100
        TPS = [100, 104, 108, 4]
        t2st = [[f'buffer_store_dwordx4 v[{TPS[k]}:{TPS[k]+3}], v2, {SRD}, s24 offen offset:{k*1024} sc1'] for k in range(4)]
        t2st[-1].append(f's_add_u32 s24, s24, {8*KB}')
        t2fl = ['s_mov_b64 exec, 1', f'buffer_store_dword v117, v2, {SRD}, s34 offen sc1', 's_mov_b64 exec, -1', 's_add_u32 s34, s34, 8']
        def emit(gs):
            for g_ in gs:
                for x in g_: a(x)
        myks = [0, 1, 2, 3] if w == 2 else [4, 5, 6]
        oth = [k for k in range(7) if k not in myks]
        def mload():
            for ks in myks:
                a(f'buffer_load_dwordx4 v[{M+4*ks}:{M+4*ks+3}], v2, {SRD}, {"s20" if ks < 4 else "s23"} offen offset:{(ks & 3) * 1024} sc1')
        if HLP_SLEEP: a(f's_sleep {HLP_SLEEP}')
        flagpoll(a, 119, 's20', 76, L('fp'), ABORT, PD_H, PG_H)
        stamp(a, 0)
        if VA_DELAY: a.nop(VA_DELAY)
        mload()
        if PUBLISH and PUB_EARLY == 1: emit([t2fl] + t2st)
        if not SLOW_FIRST: a('s_barrier')
        if PUBLISH and PUB_EARLY == 2: emit([t2fl] + t2st)
        if PUBLISH and PUB_EARLY:
            a('s_waitcnt vmcnt(5)')
            a(f's_branch {L("ld2")}')
        a.label(L('ld'))
        a('s_waitcnt vmcnt(0)')
        if PUBLISH and PUB_EARLY: a.label(L('ld2'))
        ck = Checker(a, 84)
        for ks in myks: ck.add(M + 4 * ks)
        ck.drain()
        a('v_cmp_eq_u32 vcc, -1, v84')
        for ks in myks: a(f'ds_write_b128 v2, v[{M+4*ks}:{M+4*ks+3}] offset:{ML + ks*1024}')
        a(f's_cbranch_vccnz {L("retry")}')
        a('s_waitcnt lgkmcnt(0)')
        a('s_barrier')
        stamp(a, 1)
        for ks in oth: a(f'ds_read_b128 v[{M+4*ks}:{M+4*ks+3}], v2 offset:{ML + ks*1024}')
        if w == 2: a(f'ds_read_b128 v[92:95], v0')
        if VAL_TOUCH:
            a(f'buffer_load_dword v99, v118, {SRD}, {"s20" if w == 2 else "s39"} offen sc1')
            a(f's_add_u32 s39, s39, {XSEG_B}')
        if SELF_POISON:
            for r in range(76, 80): a(f'v_mov_b32 v{r}, -1')
            a('s_add_u32 s22, s21, s38')
            if w == 3: a('s_mov_b64 exec, 0x1f')
            a(f'buffer_store_dwordx4 v[76:79], v2, {SRD}, s22 offen {st}')
            if w == 3: a('s_mov_b64 exec, -1')
        if PUBLISH and not PUB_EARLY and not SLOW_FIRST and not T2SRV: emit([t2fl] + t2st)
        a('s_waitcnt lgkmcnt(0)')
        mg = ['s_mov_b64 exec, s[26:27]', f'buffer_store_dwordx4 v[92:95], v2, {SRD}, s36 offen sc1', 's_mov_b64 exec, -1', f's_add_u32 s36, s36, {7*KB}']
        if w == 2 and PUBLISH:
            if SLOW_FIRST:
                a(f's_cmp_lg_u32 s19, {NSTEPS-1}')
                a(f's_cbranch_scc1 {L("nmg")}')
            emit([mg])
            if SLOW_FIRST: a.label(L('nmg'))
        if T2SRV:
            a(f's_cmp_eq_u32 s19, {NSTEPS-1}')
            a(f's_cbranch_scc1 {tag}_done')
        lu = [(7, ks) for ks in range(7)]
        ru = [(t_, ks) for t_ in (6, 0, 1, 2, 3, 4, 5) for ks in range(7)]
        def wr(j):
            t_, ks = lu[j]; b = STG[j % 3]; off = (t_ - 7) * TILE_B + ks * UNIT
            return [f'ds_read_b128 v[{b}:{b+3}], v1 offset:{off}', f'ds_read_b128 v[{b+4}:{b+7}], v1 offset:{off+1024}']
        seq = []
        for j, (t_, ks) in enumerate(lu):
            pre = (wr(0) + wr(1) if j == 0 else []) + (wr(j + 2) if j + 2 < len(lu) else [])
            for k in range(2):
                r_ = ru.pop(0); seq.append((r_[0], S(*r_), pre if k == 0 else []))
            b = STG[j % 3]
            seq.append((t_, S(t_, ks, f'v[{b}:{b+7}]'), [f's_waitcnt lgkmcnt({2 * min(2, len(lu) - 1 - j)})']))
        for r_ in ru: seq.append((r_[0], S(*r_), []))
        if T2DH: a(f's_sleep {T2DH}')
        run(seq)
        stamp(a, 2)
        a('s_waitcnt lgkmcnt(0)')
        a('s_barrier')
        if KS: a('s_barrier')
        for k in range(4):
            q = 2 * (w - 2) + (k >> 1); tp = k & 1
            if not T2SRV: a(f'ds_read_b128 v[{TPS[k]}:{TPS[k]+3}], v2 offset:{YL + tp*4096 + q*1024}')
        a(f's_cmp_eq_u32 s19, {NSTEPS-2 if T2SRV else NSTEPS-1}')
        a(f's_cbranch_scc1 {tag + "_done" if T2SRV else L("last")}')
        if SLOW_FIRST:
            if w == 2: a(f'ds_read_b128 v[92:95], v0')
            a('s_waitcnt vmcnt(0) lgkmcnt(0)')
            a('s_barrier')
            if PUBLISH: emit([t2fl] + t2st + ([mg] if w == 2 else []))
        else:
            a('s_waitcnt vmcnt(0) lgkmcnt(0)')
        stamp(a, 3)
        stamp_flush(a, 4 + w, 4, L('sf'), 76)
    a('s_add_u32 s19, s19, 1')
    a('s_mov_b32 s20, s21')
    a.flush()
    a(f's_branch {L("loop")}')
    if fin:
        a.label(L('last'))
        a('s_waitcnt lgkmcnt(0)')
        a('s_barrier')
        a(f's_branch {tag}_done')
        for c in range(EC_P):
            a.label(L(f'er{c}'))
            so = ('s22', 's34', 's36')[c // 4]
            a(f'buffer_load_dwordx4 v[{pr(c)}:{pr(c)+3}], v5, {SRD}, {so} offen offset:{(c & 3)*1024} sc1')
            a('s_waitcnt vmcnt(0)')
            a('s_add_u32 s31, s31, 0x1000000')
            spin(a, L(f'e{c}'), ABORT)
        if ECP:
            assert NPP == 10 and B2_POS == 0 and ECP <= F2_POS
            a.label(L('re'))
            for c in range(10): pld(c, True)
            a.nop(6)
            for r in range(4): a(f'v_mov_b32 v{LO+r}, 0')
            a('s_add_u32 s31, s31, 0x1000000')
            spin(a, L('pl'), ABORT)
        a.label(L('rp'))
        if VSM:
            a('s_cmp_eq_u32 s37, 0')
            a(f's_cbranch_scc1 {L("rv")}')
            a(f'v_mov_b32_dpp v{HI+1}, v{HI+2} quad_perm:[0,1,2,3] row_mask:0xf bank_mask:0x3')
            a(f'v_cvt_pk_bf16_f32 v{HI}, v{HI}, v{HI+1}')
            a(f'v_min_u32 v{HI}, -2, v{HI}')
            a(f's_branch {L("pc")}')
            a.label(L('rv'))
            for c in range(10): pld(c, True)
            a('s_waitcnt vmcnt(0)')
            ck2 = Checker(a, CK)
            for c in range(10): ck2.add(pr(c))
            ck2.drain()
            a(f'v_cmp_eq_u32 vcc, -1, v{CK}')
            a(f's_cbranch_vccz {L("rk")}')
            spin(a, L('rv'), ABORT)
            a.label(L('rk'))
            a('s_mov_b32 s37, 1')
            a('s_add_u32 s31, s31, 0x10000')
            for r in range(4): a(f'v_mov_b32 v{LO+r}, 0')
            for c in range(10): psm(c)
            a.flush()
            a(f's_branch {L("ep")}')
            return
        a.nop(8)
        if PLAIN_P and st == '':
            for c in range(10):
                so = ('s22', 's34', 's36')[c // 4]
                a(f'buffer_load_dwordx4 v[{pr(c)}:{pr(c)+3}], v5, {SRD}, {so} offen offset:{(c & 3)*1024} sc1')
        a('s_mov_b32 s37, 1')
        a('s_add_u32 s31, s31, 0x10000')
        spin(a, L('lp'), ABORT)
    else:
        a.label(L('retry'))
        a('s_waitcnt lgkmcnt(0)')
        mload()
        a('s_add_u32 s31, s31, 1')
        spin(a, L('ld'), ABORT)
        a.label(L('last'))
        a('s_waitcnt lgkmcnt(0)')
        emit(t2st)
        a('s_waitcnt vmcnt(0)')
        emit([t2fl, t2fl])
        a(f's_branch {tag}_done')

def init_value(a, w, p):
    fin = w < 2
    t0, ntile, nreg = vtiles(w)
    YA = 60 if fin else 112
    a(f's_mul_i32 s31, s17, {CUW_B}')
    a(f's_add_u32 s31, s31, {WF_B}')
    units = [((t0 + ti) * TILE_B + ks * UNIT, vwreg(w, ti, ks)) for ti in range(nreg) for ks in range(7)]
    if BDEP and BST2:
        BDEP(16 * t0 // 28, (16 * (t0 + BST2) - 1) // 28)
        load_units(a, units[:7 * BST2], 's31')
        BDEP(16 * (t0 + BST2) // 28, (16 * (t0 + nreg) - 1) // 28)
        load_units(a, units[7 * BST2:], 's31')
    else:
        if BDEP: BDEP(16 * t0 // 28, (16 * (t0 + nreg) - 1) // 28)
        load_units(a, units, 's31')
    if fin and BDEP: BDEP(16 * (vtiles(w + 2)[0] + 7) // 28, (16 * (vtiles(w + 2)[0] + 8) - 1) // 28)
    if fin:
        th = vtiles(w + 2)[0] + 7
        for f in range(14):
            if f % 4 == 0:
                a(f's_mov_b32 m0, {WL + 3*w*TILE_B + f*1024}')
                a(f's_add_u32 s22, s31, {th*TILE_B + f*1024}')
            a(f'buffer_load_dwordx4 v2, {SRD}, s22 offen offset:{(f & 3)*1024}' + (' sc1' if MERGE else '') + ' lds')
            if f % 16 == 15: a('s_waitcnt vmcnt(24)')
    a('v_mov_b32 v72, v116')
    a('v_mov_b32 v73, v117')
    a('v_lshrrev_b32 v65, 1, v72')
    a('v_and_b32 v66, 1, v72')
    for pp in range(ntile // 2):
        a(f'v_add_u32 v67, {t0 + 2*pp}, v65')
        a('v_lshl_add_u32 v67, v67, 4, v73')
        a('v_mul_u32_u24 v68, 2341, v67')
        a('v_lshrrev_b32 v68, 16, v68')
        a('v_mul_u32_u24 v69, 28, v68')
        a('v_sub_u32 v69, v67, v69')
        a('v_lshrrev_b32 v70, 4, v69')
        a('v_and_b32 v69, 15, v69')
        if VSM:
            a('v_and_b32 v71, 1, v69')
            a('v_lshrrev_b32 v69, 1, v69')
            a('v_lshl_add_u32 v69, v71, 3, v69')
        a('v_lshlrev_b32 v71, 12, v70')
        if PL2:
            a('v_lshrrev_b32 v70, 1, v68')
            a('v_lshl_add_u32 v71, v70, 9, v71')
            a('v_and_b32 v70, 1, v68')
            a('v_lshl_add_u32 v71, v70, 2, v71')
            a('v_lshl_add_u32 v71, v69, 4, v71')
            a(f'v_lshl_add_u32 v{YA+pp}, v66, 8, v71')
            continue
        a('v_lshl_add_u32 v71, v68, 8, v71')
        a('v_lshl_add_u32 v71, v69, 4, v71')
        a(f'v_lshl_add_u32 v{YA+pp}, v66, 3, v71')
    if fin:
        a('v_and_b32 v0, 31, v1')
        a('v_lshlrev_b32 v0, 2, v0')
        a(f'v_add_u32 v0, {F2}, v0')
        a('v_lshlrev_b32 v4, 2, v73')
        if R1 == 32:
            a('s_lshl_b32 s22, s17, 1')
            a(f's_add_u32 s22, s22, {w}')
        else: a(f's_and_b32 s22, s17, {R1-1}')
        a('s_lshl_b32 s22, s22, 7')
        a(f's_add_u32 s22, s22, {F1}')
        a(f'v_add_u32 v4, s22, v4')
        a('v_and_b32 v64, 7, v73')
        a('v_lshlrev_b32 v5, 4, v64')
        a('v_lshl_add_u32 v5, v72, 7, v5')
        a('v_lshrrev_b32 v65, 3, v73')
        a('v_lshl_add_u32 v5, v65, 9, v5')
        a('s_lshl_b32 s22, s17, 3')
        a(f's_add_u32 s22, s22, {F2 + 4*w}')
        a('v_lshl_add_u32 v7, v2, 3, s22')
        a(f'v_add_u32 v65, {16*w}, v73')
        a('v_min_u32 v65, 27, v65')
        a('v_mad_u32_u24 v65, v72, 28, v65')
        a('v_lshlrev_b32 v6, 4, v65')
        a('s_lshr_b32 s22, s17, 1')
        a('s_mul_i32 s22, s22, 7')
        a('s_and_b32 s34, s17, 1')
        a('s_lshl_b32 s35, s34, 2')
        a('v_add_u32 v70, s35, v72')
        a('v_mov_b32 v71, s34')
        a(f'v_mov_b32 v69, {w}')
        a('v_cmp_eq_u32 vcc, 3, v72')
        a('v_cndmask_b32 v70, v70, v72, vcc')
        a('v_cndmask_b32 v69, v69, v71, vcc')
        a('v_add_u32 v70, s22, v70')
        a('v_lshrrev_b32 v68, 1, v70')
        a('v_lshlrev_b32 v68, 8, v68')
        a('v_lshl_add_u32 v68, v69, 7, v68')
        a('v_and_b32 v69, 1, v70')
        a('v_lshl_add_u32 v68, v69, 3, v68')
        a('v_lshl_add_u32 v1, v64, 4, v68')
        a('v_cmp_gt_u32 s[26:27], 8, v73')
        if w == 1:
            a('v_cmp_gt_u32 vcc, 3, v72')
            a('s_and_b64 s[26:27], s[26:27], vcc')
        if VSM:
            a('v_lshrrev_b32 v65, 3, v73')
            a('v_lshl_add_u32 v66, v64, 1, v65')
            a(f'v_add_u32 v66, {0 if KS else 16*w}, v66')
            a('v_min_u32 v66, 27, v66')
            a('v_mad_u32_u24 v66, v72, 28, v66')
            a('v_lshlrev_b32 v6, 4, v66')
            a('s_mul_i32 s22, s17, 28')
            a(f's_add_u32 s22, s22, {16*w}')
            a('v_lshl_add_u32 v70, v64, 1, s22')
            a('v_lshrrev_b32 v68, 4, v70')
            a('v_lshlrev_b32 v68, 8, v68')
            a('v_bfe_u32 v69, v70, 1, 1')
            a('v_lshl_add_u32 v68, v69, 7, v68')
            a('v_bfe_u32 v69, v70, 2, 2')
            a('v_lshl_add_u32 v68, v69, 2, v68')
            a('v_and_b32 v69, 1, v72')
            a('v_lshl_add_u32 v65, v69, 2, v65')
            a('v_lshrrev_b32 v69, 1, v72')
            a('v_lshl_add_u32 v65, v69, 1, v65')
            if PL2:
                a('v_lshrrev_b32 v65, 3, v73')
                a('v_lshl_add_u32 v65, v72, 1, v65')
                a('v_lshrrev_b32 v5, 1, v72')
                a('v_lshlrev_b32 v5, 9, v5')
                a('v_lshrrev_b32 v69, 2, v73')
                a('v_lshl_add_u32 v5, v69, 7, v5')
                a('v_and_b32 v69, 1, v72')
                a('v_lshl_add_u32 v5, v69, 6, v5')
                a('v_and_b32 v69, 3, v73')
                a('v_lshl_add_u32 v5, v69, 4, v5')
                a('v_and_b32 v69, 1, v73')
                a('v_mul_u32_u24 v69, 0xaaaa, v69')
                a('v_add_u32 v0, 0x4444, v69')
            a('v_lshl_add_u32 v1, v65, 4, v68')
            a('v_cmp_gt_u32 s[26:27], 6, v64')
            for r in range(156, 160): a(f'v_mov_b32 v{r}, 0')
            for k in range(4): a(f'ds_write_b128 v2, v[156:159] offset:{YL + w*4096 + k*1024}')
        a(f's_mul_i32 s22, s17, {64*GSH_B}')
        a(f's_add_u32 s25, s22, {VO_OFF}')
        a('s_lshl_b32 s35, s17, 7')
        a(f's_add_u32 s35, s35, {CNT_OFF + VOC - 2048}')
        a('s_mov_b32 s38, 0')
        a(f'v_mov_b32 v{VOK}, 0')
        if KS:
            for r in range(64, 144): a(f'v_mov_b32 v{r}, 0')
        if PROT:
            for c in range(8):
                a(f's_add_u32 s22, s17, {c}')
                a('s_and_b32 s22, s22, 7')
                a(f's_mul_i32 s{72+c}, s22, 3584')
                a('s_lshl_b32 s22, s22, 10')
                a(f's_add_u32 s{64+c}, s22, {EXCH_OFF + PX - EXCH_B}')
    else:
        a(f's_mul_i32 s24, s17, {65*8*KB}')
        a(f's_add_u32 s24, s24, {T2_OFF + (w-2)*4096 + (8*KB if SLOW_FIRST else 0)}')
        a('s_mul_i32 s34, s17, 640')
        a(f's_add_u32 s34, s34, {CNT_OFF + T2F + 4*(w-2) + (8 if SLOW_FIRST else 0)}')
        a('s_mul_i32 s36, s17, 448')
        a('v_add_u32 v0, s36, v2')
        a(f'v_add_u32 v0, {ML}, v0')
        a(f's_add_u32 s36, s36, {MEMG_OFF}')
        a('v_cmp_gt_u32 s[26:27], 28, v1')
        a('v_and_b32 v119, 31, v1')
        a('v_lshlrev_b32 v119, 2, v119')
        if F2ONE: a(f'v_and_b32 v119, 0x78, v119\nv_or_b32 v119, {4*(F2ONE-1)}, v119')
        a('s_add_u32 s22, s17, 16')
        a(f's_and_b32 s22, s22, {R2-1}')
        a('s_lshl_b32 s22, s22, 7')
        a(f's_add_u32 s22, s22, {F2}')
        a(f'v_add_u32 v119, s22, v119')
        nl = 13 if w == 2 else 14
        a(f'v_min_u32 v118, {nl-1}, v1')
        a(f's_mul_i32 s22, s17, {nl}')
        a('v_add_u32 v118, s22, v118')
        a('v_lshlrev_b32 v118, 7, v118')
        a(f'v_add_u32 v118, {2*EXCH_B if w == 2 else 2*XSEG_B}, v118')
        a(f's_mov_b32 s39, {XF_OFF}')
        a(f'v_add_u32 v1, {WL + 3*(w-2)*TILE_B}, v2')
        a('v_mov_b32 v117, 1')
        a('s_mul_i32 s38, s17, 1104')
        a(f's_add_u32 s38, s38, {EXCH_B + (w-2)*1024}')

def dbg_wait(a, P, t, abort):
    a('s_mov_b32 s30, 0')
    a.label(P)
    a(f'buffer_load_dword v{t+2}, v{t}, {DBG}, 0 offen sc1')
    a('s_waitcnt vmcnt(0)')
    a(f'v_cmp_ne_u32 vcc, v{t+2}, v{t+1}')
    a(f's_cbranch_vccz {P}_ok')
    a('s_sleep 4')
    a('s_add_u32 s30, s30, 1')
    a(f's_cmp_lt_u32 s30, {SLOW_LIMIT}')
    a(f's_cbranch_scc1 {P}')
    a(f's_branch {abort}')
    a.label(P + '_ok')

def dep_regs(a, cg_s, t, lane='v1'):
    a(f's_and_b32 s20, {cg_s}, 15')
    a('s_lshr_b32 s21, s20, 1')
    a('s_mul_i32 s21, s21, 56')
    a('s_add_u32 s22, s21, 55')
    a('s_lshr_b32 s21, s21, 6')
    a('s_lshr_b32 s22, s22, 6')
    a('s_add_u32 s21, s21, 24')
    a('s_add_u32 s22, s22, 24')
    a('s_add_u32 s20, s20, 8')
    a(f's_cmp_lt_u32 {cg_s}, 16')
    a('s_cselect_b32 s21, s20, s21')
    a('s_cselect_b32 s22, s20, s22')
    a(f's_cselect_b32 s20, {A_TGT}, {B_TGT}')
    a('s_lshl_b32 s21, s21, 2')
    a('s_lshl_b32 s22, s22, 2')
    a(f'v_mov_b32 v{t}, 124')
    a(f'v_mov_b32 v{t+1}, 128')
    a(f'v_writelane_b32 v{t}, s21, 0')
    a(f'v_writelane_b32 v{t}, s22, 1')
    a(f'v_writelane_b32 v{t+1}, s20, 0')
    a(f'v_writelane_b32 v{t+1}, s20, 1')

def xprep_loop(a, P):
    import prep
    a.label(f'{P}_l')
    a('s_waitcnt vmcnt(0) lgkmcnt(0)')
    a('v_mov_b32 v4, 1')
    a('v_mov_b32 v5, 20')
    wg_atomic(a, f'{P}_el', 's3')
    a('s_cmp_ge_u32 s3, 32')
    a(f's_cbranch_scc1 {P}_d')
    prep.xprep_item(a, P, 's3', st='sc1', signal=DBG)
    a(f's_branch {P}_l')
    a.label(f'{P}_d')

def wg_atomic(a, P, dst):
    a('v_mov_b32 v6, 160000')
    a('s_barrier')
    a('s_cmp_lg_u32 s16, 0')
    a(f's_cbranch_scc1 {P}1')
    a('s_mov_b64 exec, 1')
    a(f'buffer_atomic_add v4, v5, {DBG}, 0 offen sc0')
    a('s_waitcnt vmcnt(0)')
    a('ds_write_b32 v6, v4')
    a('s_waitcnt lgkmcnt(0)')
    a('s_mov_b64 exec, -1')
    a.label(f'{P}1')
    a('s_barrier')
    a('ds_read_b32 v4, v6')
    a('s_waitcnt lgkmcnt(0)')
    a(f'v_readfirstlane_b32 {dst}, v4')

def staff_check(a, okl, mode):
    a('s_mov_b32 s30, 0')
    a('v_mov_b32 v36, 0')
    a.label('ch_chk')
    a(f'buffer_load_dword v37, v36, {DBG}, 0 offen sc1')
    a('s_waitcnt vmcnt(0)')
    a('v_readfirstlane_b32 s22, v37')
    a('s_and_b32 s22, s22, 0xffff')
    a('s_cmp_ge_u32 s22, 32')
    a('s_cbranch_scc1 ch_go_end')
    a('s_sleep 16')
    a('s_add_u32 s30, s30, 1')
    a('s_cmp_lt_u32 s30, 64')
    a('s_cbranch_scc1 ch_chk')
    a.label('ch_go_end')
    a('v_mov_b32 v6, 160016')
    a('v_mov_b32 v4, s22')
    a('s_cmp_lg_u32 s16, 0')
    a('s_cbranch_scc1 ch_dec')
    a('ds_write_b32 v6, v4')
    a('s_waitcnt lgkmcnt(0)')
    a.label('ch_dec')
    a('s_barrier')
    a('ds_read_b32 v4, v6')
    a('s_waitcnt lgkmcnt(0)')
    a('v_readfirstlane_b32 s22, v4')
    a('s_cmp_ge_u32 s22, 32')
    a(f's_cbranch_scc1 {okl}')
    a('v_mov_b32 v4, 0x10001')
    a(f's_mov_b32 s18, {mode}')
    a('s_branch ch_take')

def worker_s4d(a):
    import s4d
    s4d.s4d_setup(a)
    a.label('wk_loop')
    a('v_mov_b32 v4, 1')
    a('v_mov_b32 v5, 4')
    wg_atomic(a, 'wk_el', 's3')
    a('v_and_b32 v4, 15, v1')
    a('s_cmp_ge_u32 s3, 112')
    a('s_cbranch_scc1 wk_done')
    s4d.s4d_item(a, 'wk', 's3')
    a('s_branch wk_loop')
    a.label('wk_done')

def poll_eq(a, P, srd, soff, target, sleep=4):
    a('v_mov_b32 v8, 0')
    a('s_mov_b32 s30, 0')
    a.label(P)
    a(f'buffer_load_dword v9, v8, {srd}, {soff} offen sc1')
    a('s_waitcnt vmcnt(0)')
    a(f'v_cmp_ne_u32 vcc, {target}, v9')
    a(f's_cbranch_vccz {P}_ok')
    a(f's_sleep {sleep}')
    a('s_add_u32 s30, s30, 1')
    a(f's_cmp_lt_u32 s30, {SLOW_LIMIT}')
    a(f's_cbranch_scc1 {P}')
    a('s_branch cA_abort')
    a.label(P + '_ok')
def flag_wait(a, P):
    a('s_cmp_lg_u32 s97, 0')
    a(f's_cbranch_scc1 {P}_sk')
    a('s_movk_i32 s20, 128')
    poll_eq(a, P, DBG, 's20', 1)
    a('s_mov_b32 s97, 1')
    a.label(P + '_sk')
def ac_wait(a, P):
    a('s_lshl_b32 s20, s17, 7')
    a(f's_add_u32 s20, s20, {CNT_OFF + AC}')
    poll_eq(a, P, SRD, 's20', 7, sleep=6)

def worker_all(a):
    import s4d, gemm, tok, prep
    JS = DBG if MERGE else SRD
    JO = 64 if MERGE else CNT_OFF + JOBC
    NA = 112 if MERGE == 1 else 0
    NJ = 1104 + NA
    tok.PEEK = JS
    a('s_load_dwordx2 s[36:37], s[0:1], 112')
    a('s_waitcnt lgkmcnt(0)')
    a(f's_mov_b32 s92, s36\ns_and_b32 s93, s37, 0xffff\ns_mov_b32 s94, {2048*896*2}\ns_mov_b32 s95, 0x20000')
    def ask():
        lb = a.newlabel('ask')
        a('s_cmp_lg_u32 s16, 0')
        a(f's_cbranch_scc1 {lb}')
        a('v_mov_b32 v250, 1')
        a(f'v_mov_b32 v251, {JO}')
        a('s_mov_b64 exec, 1')
        a(f'buffer_atomic_add v250, v251, {JS}, 0 offen sc0')
        a('s_mov_b64 exec, -1')
        a.label(lb)
    a('s_mov_b32 s96, 0')
    if MERGE:
        a('s_cmp_lg_u32 s101, -1')
        a('s_mov_b32 s3, s101')
        a('s_mov_b32 s101, -1')
        a('s_cbranch_scc1 wk_have')
    ask()
    a('s_branch wk_next')
    a.label('wk_loop')
    a('s_waitcnt vmcnt(0) lgkmcnt(0)')
    a('s_cmp_eq_u32 s96, 1')
    a('s_cbranch_scc1 wk_ask')
    a('s_mov_b32 s96, 1')
    staff_check(a, 'wk_ask', 0)
    a.label('wk_ask')
    a('v_readfirstlane_b32 s22, v250')
    a(f's_cmp_ge_u32 s22, {NJ}')
    a('s_cbranch_scc1 wk_next')
    ask()
    a.label('wk_next')
    evlog(a, 9005)
    a('v_mov_b32 v6, 160000')
    a('s_waitcnt vmcnt(0)')
    a('s_barrier')
    a('s_cmp_lg_u32 s16, 0')
    a('s_cbranch_scc1 wk_n1')
    a('s_mov_b64 exec, 1')
    a('ds_write_b32 v6, v250')
    a('s_mov_b64 exec, -1')
    a('s_waitcnt lgkmcnt(0)')
    a.label('wk_n1')
    a('s_barrier')
    a('ds_read_b32 v4, v6')
    a('s_waitcnt lgkmcnt(0)')
    a('v_readfirstlane_b32 s3, v4')
    a.label('wk_have')
    evlog(a, 's3')
    a(f's_cmp_ge_u32 s3, {NJ}')
    a('s_cbranch_scc1 wk_done')
    a('v_mov_b32 v250, 0')
    a(f'v_mov_b32 v251, {JO}')
    a('v_and_b32 v1, 63, v0')
    a('v_lshlrev_b32 v2, 4, v1')
    a('v_lshrrev_b32 v3, 4, v1')
    a('v_and_b32 v4, 15, v1')
    if MERGE == 3: flag_wait(a, 'wk_fw')
    if MERGE == 1:
        a('s_cmp_ge_u32 s3, 112')
        a('s_cbranch_scc1 wk_np')
        prep.prep_item(a, 'wpa', 's3', st='sc1', mode='A')
        flag_wait(a, 'wk_fa')
        a('s_waitcnt vmcnt(0)')
        a('s_barrier')
        a('v_mov_b32 v250, 0')
        a('s_cmp_lg_u32 s16, 0')
        a('s_cbranch_scc1 wk_loop')
        a('s_lshl_b32 s20, s17, 7')
        a(f's_add_u32 s20, s20, {CNT_OFF + AC}')
        a('v_mov_b32 v5, 1')
        a('v_mov_b32 v6, 0')
        a('s_mov_b64 exec, 1')
        a(f'buffer_atomic_add v5, v6, {SRD}, s20 offen')
        a('s_mov_b64 exec, -1')
        a('s_branch wk_loop')
        a.label('wk_np')
        a('s_sub_u32 s3, s3, 112')
        flag_wait(a, 'wk_fw')
    a('s_cmp_ge_u32 s3, 592')
    a('s_cbranch_scc1 wk_tok')
    a('s_cmp_ge_u32 s3, 480')
    a('s_cbranch_scc1 wk_s4d')
    a('s_cmp_ge_u32 s3, 256')
    a('s_cbranch_scc1 wk_full')
    a('s_cmp_ge_u32 s3, 224')
    a('s_cbranch_scc1 wk_srv')
    a('s_cmp_ge_u32 s3, 112')
    a('s_cselect_b32 s18, 1, 0')
    a('s_cselect_b32 s20, 112, 0')
    a('s_sub_u32 s20, s3, s20')
    a('s_and_b32 s17, s20, 15')
    a('s_add_u32 s17, s17, 16')
    a('s_lshr_b32 s34, s20, 4')
    a('s_lshl_b32 s34, s34, 1')
    a('s_add_u32 s35, s34, 2')
    if RB1_DELAY:
        a('s_cmp_eq_u32 s18, 0')
        a('s_cbranch_scc1 wk_gemm')
        for _ in range(RB1_DELAY): a('s_sleep 127')
    a('s_branch wk_gemm')
    a.label('wk_full')
    a('s_sub_u32 s20, s3, 224')
    a('s_and_b32 s17, s20, 15')
    a('s_lshr_b32 s18, s20, 4')
    a('s_cmp_lt_u32 s18, 8')
    a('s_cselect_b32 s21, 16, 0')
    a('s_add_u32 s17, s17, s21')
    a('s_and_b32 s18, s18, 7')
    a('s_mov_b32 s34, 0\ns_mov_b32 s35, 14')
    a.label('wk_gemm')
    if MERGE == 1:
        a('s_cmp_ge_u32 s17, 16')
        a('s_cbranch_scc1 wk_g2')
        ac_wait(a, 'wk_aw')
        a.label('wk_g2')
        evlog(a, 9006)
    gemm.gemm_body(a, 'wg', 's18', 's17', st='sc1', signal=True, ld='sc1' if MERGE else '')
    a('s_branch wk_loop')
    a.label('wk_srv')
    import t2srv
    a('s_and_b32 s18, s3, 15')
    a('s_lshr_b32 s19, s3, 4')
    a('s_and_b32 s19, s19, 1')
    t2srv.t2srv_body(a, 'ws', 's18', 's19', 'cA_abort', ld='sc1' if MERGE else '')
    a('v_mov_b32 v250, 0')
    a('s_branch wk_loop')
    a.label('wk_s4d')
    a('s_sub_u32 s3, s3, 480')
    s4d.s4d_setup(a)
    s4d.s4d_item(a, 'wk', 's3')
    a('s_branch wk_loop')
    a.label('wk_tok')
    a('s_sub_u32 s3, s3, 592')
    a('s_cmp_ge_u32 s3, 512')
    a('s_cbranch_scc1 wk_done')
    a('s_lshr_b32 s17, s3, 3')
    a('s_and_b32 s18, s3, 3')
    a('s_bitcmp1_b32 s3, 2')
    a('s_cbranch_scc1 wk_toko')
    tok.tokp_body(a, 's17', 's18', ld='sc1', st='sc1', sync='wp', ldx='sc1' if MERGE else '')
    a('s_branch wk_loop')
    a.label('wk_toko')
    tok.toko_body(a, 's17', 's18', ld='sc1', sync='wo', OUT='s[92:95]')
    a('s_branch wk_loop')
    a.label('wp_abort')
    a.label('wo_abort')
    a('s_branch cA_abort')
    a.label('wk_done')

def role_tail(a, late=None):
    lane_consts(a)
    a('s_mov_b32 s19, 0')
    a(f's_mov_b32 s20, {EXCH_OFF}')
    if STAMPS: a('s_mov_b32 s63, s17')
    a('s_lshr_b32 s22, s17, 4')
    a('s_lshl_b32 s22, s22, 2')
    a('s_add_u32 s22, s22, s16')
    a('s_and_b32 s17, s17, 15')
    for p in range(8):
        a(f's_cmp_eq_u32 s22, {p}')
        a(f's_cbranch_scc1 ch_init{p}')
    a('s_branch ch_end')
    for p in range(8):
        a.label(f'ch_init{p}')
        if p < 4: init_score(a, p)
        else: init_value(a, p - 4, p)
        if late: late(p)
        a('s_mov_b32 s30, 0')
        a('v_mov_b32 v36, 0')
        a.label(f'ch_md{p}')
        a(f'buffer_load_dword v37, v36, {DBG}, 0 offen sc1')
        a('s_waitcnt vmcnt(0)')
        a('v_readfirstlane_b32 s22, v37')
        a('s_and_b32 s31, s22, 0xffff')
        a('s_cmp_ge_u32 s31, 32')
        a(f's_cbranch_scc1 ch_go{p}')
        a('s_sleep 2')
        a('s_add_u32 s30, s30, 1')
        a(f's_cmp_lt_u32 s30, {SLOW_LIMIT}')
        a(f's_cbranch_scc1 ch_md{p}')
        a('s_branch ch_end')
        a.label(f'ch_go{p}')
        evlog(a, 9003)
        if DIAG: a('s_memtime s[32:33]')
        a('s_mov_b32 s31, 0')
        if p in (4, 5):
            for r in range(36, 60): a(f'v_mov_b32 v{r}, 0')
        a('s_lshr_b32 s22, s22, 16')
        a('s_cmp_lg_u32 s22, 0')
        role = 'sc' if p < 4 else 'va'
        a(f's_cbranch_scc1 cB_{role}{p & 3}_loop')
        a(f's_branch cA_{role}{p & 3}_loop')
    for tag, st in (('cA', ''), ('cB', 'sc1')):
        for w in range(4): gen_score(a, w, st, tag)
        for w in range(4): gen_value(a, w, st, tag)
        tag_end(a, tag)

def tag_end(a, tag):
    a.label(f'{tag}_abort')
    a('v_mov_b32 v4, 0xdead')
    a('v_mov_b32 v5, 16')
    a(f'buffer_store_dword v4, v5, {DBG}, 0 offen')
    a('s_branch ch_end')
    a.label(f'{tag}_done')
    evlog(a, 9004)
    if STAMPS and STAMP_CYC:
        a('s_cmp_lg_u32 s16, 0')
        a('s_cbranch_scc1 ch_end')
        a('s_lshl_b32 s22, s63, 10')
        a(f's_add_u32 s22, s22, {STAMP_OFF + 65536}')
        a('s_mov_b32 s30, 0')
        a('s_mov_b64 exec, 1')
        a.label(f'{tag}_cal')
        a('s_memtime s[40:41]')
        a('s_memrealtime s[42:43]')
        a('s_waitcnt lgkmcnt(0)')
        a('v_mov_b32 v4, s40')
        a('v_mov_b32 v5, s42')
        a(f'buffer_store_dwordx2 v[4:5], off, {SRD}, s22')
        a('s_add_u32 s22, s22, 8')
        a('s_add_u32 s30, s30, 1')
        a('s_cmp_lt_u32 s30, 128')
        a(f's_cbranch_scc1 {tag}_cal')
    if DIAG:
        a('s_memtime s[60:61]')
        a('s_waitcnt lgkmcnt(0)')
        a('s_sub_u32 s60, s60, s32')
        a('v_mov_b32 v4, s60')
        a('v_mov_b32 v5, 8')
        a(f'buffer_store_dword v4, v5, {DBG}, 0 offen')
        a('v_mov_b32 v4, s31')
        a('v_mov_b32 v5, 12')
        a('s_mov_b64 exec, 1')
        a(f'buffer_atomic_add v4, v5, {DBG}, 0 offen')
    a('s_branch ch_end')

def gen_chain_kernel(name='chain_kernel', worker=worker_s4d):
    a = Asm()
    a.raw(kernel_header(name))
    a('s_cmp_ge_u32 s2, 256')
    a('s_cbranch_scc1 ch_end')
    a('s_load_dwordx2 s[4:5], s[0:1], 120')
    a('s_load_dwordx2 s[6:7], s[0:1], 128')
    if CODE_PF: code_prefetch(a, name, 'ch_end', 130000, 60)
    a('s_getreg_b32 s3, hwreg(HW_REG_XCC_ID)')
    a('s_and_b32 s3, s3, 15')
    a('v_lshrrev_b32 v1, 6, v0')
    a('v_readfirstlane_b32 s16, v1')
    a('s_waitcnt lgkmcnt(0)')
    a('s_mov_b32 s8, s6\ns_and_b32 s9, s7, 0xffff\ns_mov_b32 s10, 0x10000000\ns_mov_b32 s11, 0x20000')
    a('s_mov_b32 s12, s4\ns_and_b32 s13, s5, 0xffff\ns_mov_b32 s14, 256\ns_mov_b32 s15, 0x20000')
    if EVLOG:
        a('s_lshl_b32 s100, s2, 2')
        a('s_add_u32 s100, s100, s16')
        a('s_lshl_b32 s100, s100, 8')
        a(f's_add_u32 s100, s100, {EV_OFF}')
    evlog(a, 9000)
    if MERGE:
        import prep
        a('s_mov_b32 s97, 0')
        a('s_mov_b32 s91, s3')
        a('v_and_b32 v1, 63, v0')
        a('v_lshlrev_b32 v2, 4, v1')
        a('v_lshrrev_b32 v3, 4, v1')
        a('v_and_b32 v4, 15, v1')
        a('s_cmp_lg_u32 s16, 0')
        a('s_cbranch_scc1 m_a1')
        a(f's_cmp_eq_u32 s3, {XCD_SEL}')
        a('s_cselect_b32 s20, 0, 64')
        a('v_accvgpr_write_b32 a255, 1')
        a('s_mov_b64 exec, 1')
        a(f'buffer_atomic_add a255, v2, {DBG}, s20 offen sc0')
        a('s_mov_b64 exec, -1')
        a.label('m_a1')
        prep.xall_pre(a, 's2')
        a('s_cmp_ge_u32 s2, 224')
        a('s_cbranch_scc1 m_w')
        prep.prep_item(a, 'mpb', 's2', st='sc1', mode='Bhalf' if MERGE == 1 else 'mix', defer=(MERGE == 3))
        a('s_branch m_e')
        a.label('m_w')
        a('s_waitcnt vmcnt(0)')
        a.label('m_e')
        prep.xall_post(a, 'mpx', 's2', 'sc1', wait=False)
        a('v_mov_b32 v6, 160000')
        a('s_waitcnt vmcnt(0) lgkmcnt(0)')
        a('s_barrier')
        a('s_cmp_lg_u32 s16, 0')
        a('s_cbranch_scc1 m_b1')
        a('v_mov_b32 v4, 1')
        a('v_mov_b32 v5, 96')
        a('v_accvgpr_read_b32 v7, a255')
        a('s_mov_b64 exec, 1')
        a(f'buffer_atomic_add v4, v5, {DBG}, 0 offen sc0')
        a('ds_write_b32 v6, v7')
        a('s_waitcnt lgkmcnt(0)')
        a('s_mov_b64 exec, -1')
        a.label('m_b1')
        a('s_barrier')
        a('ds_read_b32 v7, v6')
        a('s_cmp_lg_u32 s16, 0')
        a('s_cbranch_scc1 m_b2')
        a('s_waitcnt vmcnt(0)')
        a('v_readfirstlane_b32 s20, v4')
        a('s_cmp_lg_u32 s20, 255')
        a('s_cbranch_scc1 m_b2')
        a('v_mov_b32 v4, 1')
        a('v_mov_b32 v5, 128')
        a('s_mov_b64 exec, 1')
        a(f'buffer_store_dword v4, v5, {DBG}, 0 offen sc1')
        a('s_mov_b64 exec, -1')
        a.label('m_b2')
        a('s_waitcnt lgkmcnt(0)')
        a('v_readfirstlane_b32 s101, v7')
        evlog(a, 9001)
        a(f's_cmp_lg_u32 s91, {XCD_SEL}')
        a('s_cbranch_scc1 ch_worker')
        a('s_and_b32 s17, s101, 0xffff')
        a('s_mov_b32 s101, -1')
        a('s_cmp_lt_u32 s17, 32')
        a('s_cbranch_scc1 ch_role')
        a('s_branch ch_worker')
    else:
        a(f's_cmp_lg_u32 s3, {XCD_SEL}')
        a('s_cbranch_scc1 ch_worker')
    a('v_mov_b32 v4, 1')
    a('s_mov_b32 s18, 0')
    a.label('ch_take')
    a('v_mov_b32 v5, 0')
    wg_atomic(a, 'ch_el', 's17')
    a('s_and_b32 s17, s17, 0xffff')
    a('s_cmp_lt_u32 s17, 32')
    a('s_cbranch_scc1 ch_role')
    a('s_cmp_eq_u32 s18, 0')
    a('s_cbranch_scc1 ch_worker')
    a('s_branch ch_end')
    a.label('ch_role')
    if MERGE:
        flag_wait(a, 'ch_fw')
        if MERGE == 1:
            a('s_cmp_ge_u32 s17, 16')
            a('s_cbranch_scc1 ch_r2')
            ac_wait(a, 'ch_aw')
            a.label('ch_r2')
        evlog(a, 9002)
    role_tail(a)
    a.label('ch_worker')
    if worker: worker(a)
    if worker is not worker_all: staff_check(a, 'ch_end', 1)
    a.label('ch_end')
    a('s_endpgm')
    return a

if __name__ == '__main__':
    import sys
    for x in sys.argv[2:]:
        if x == 'stamps': STAMPS = True
        elif '=' in x:
            k, v = x.split('='); globals()[k] = int(v)
    a = gen_chain_kernel()
    out = ['; @launch kernel=chain_kernel grid=(256,1,1) block=(256,1,1) lds=163840',
           '.amdgcn_target "amdgcn-amd-amdhsa--gfx950"', '.text', a.text(), '.section .rodata,"a"', kernel_desc('chain_kernel')]
    open(sys.argv[1], 'w').write('\n'.join(out) + '\n')
    print('instructions', a.count)
```

```python
from asmlib import *
from layout import *
WS = 's[8:11]'
PB = 28 * KB

def gemm_body(a, P, rb_s, cg_s, st='', signal=False, ld='', NT=4):
    NS = NT // 2
    a('v_lshrrev_b32 v8, 5, v1')
    a('v_bfe_u32 v9, v1, 3, 1')
    a('v_bfe_u32 v10, v1, 2, 1')
    a('v_lshlrev_b32 v10, 3, v10')
    a('v_bfe_u32 v11, v1, 4, 1')
    a('v_lshl_add_u32 v10, v11, 2, v10')
    a('v_and_b32 v12, 3, v1')
    a('v_add_u32 v10, v10, v12')
    a(f'v_mul_u32_u24 v7, {14*KB}, v9')
    a('v_lshl_add_u32 v7, v10, 4, v7')
    a('v_lshl_add_u32 v13, v8, 8, v7')
    a(f's_lshl_b32 s20, {rb_s}, {4 if NT == 4 else 3}')
    a(f's_lshl_b32 s21, s16, {2 if NT == 4 else 1}')
    a('s_add_u32 s20, s20, s21')
    a(f's_mul_i32 s21, s20, {14*KB}')
    a(f's_add_u32 s21, s21, {XF_OFF}')
    for j in range(NS):
        for ks in range(28):
            f = 28 * j + ks
            if ks % 8 == 0: a(f's_add_u32 s22, s21, {j*28*KB + ks*512}')
            a(f'buffer_load_dwordx4 a[{4*f}:{4*f+3}], v13, {WS}, s22 offen offset:{(ks & 7)*512} {ld}')
    a('s_waitcnt vmcnt(40)')
    a(f's_mul_i32 s23, {cg_s}, {CUW_B}')
    a('s_and_b32 s22, s16, 1')
    a('s_mul_i32 s22, s22, 7168')
    a('s_add_u32 s23, s23, s22')
    a(f's_add_u32 s23, s23, {WF_A}')
    a('s_lshr_b32 s22, s16, 1')
    a(f's_mul_i32 s22, s22, {TILE_B}')
    a('s_add_u32 s23, s23, s22')
    a('s_mul_i32 s27, s16, 7168')
    a('s_lshr_b32 s28, s20, 1')
    if NT == 4:
        a(f's_cmp_lt_u32 {cg_s}, 16')
        a(f's_cbranch_scc0 {P}_vo')
    for path in (('f', 'vo') if NT == 4 else ('vo',)):
        isF = path == 'f'
        L = lambda n: f'{P}_{path}_{n}'
        if not isF: a.label(f'{P}_vo')
        if isF: a('s_add_u32 s23, s23, s22')
        def dma(jreg, bufreg):
            o = [f's_lshr_b32 s24, {jreg}, 1', 's_lshl_b32 s24, s24, 2', f's_and_b32 s25, {jreg}, 1', 's_add_u32 s24, s24, s25'] if isF else [f's_lshl_b32 s24, {jreg}, 1']
            o += [f's_mul_i32 s24, s24, {TILE_B}', 's_add_u32 s24, s24, s23', f's_cmp_lt_u32 {jreg}, s35', 's_cselect_b32 s24, s24, 0x10000000', f's_add_u32 m0, {bufreg}, s27']
            gs = [o]
            for f in range(7):
                gs.append((['s_add_u32 m0, m0, 4096', 's_add_u32 s24, s24, 4096'] if f == 4 else []) + [f'buffer_load_dwordx4 v2, {WS}, s24 offen offset:{(f & 3)*1024} {ld} lds'])
            return gs
        def emit(gs):
            for g_ in gs:
                for x in g_: a(x)
        if isF:
            a('s_lshl_b32 s29, s28, 4')
            a(f's_add_u32 s29, s29, {cg_s}')
            a(f's_mul_i32 s29, s29, {GSH_B}')
            a(f's_add_u32 s29, s29, {F_OFF}')
            a('v_mov_b32 v14, v13')
            a('v_lshl_add_u32 v15, v8, 9, v7')
        else:
            a(f's_sub_u32 s29, {cg_s}, 16')
            a('s_lshl_b32 s29, s29, 6')
            a('s_add_u32 s29, s29, s28')
            a(f's_mul_i32 s29, s29, {GSH_B}')
            a(f's_add_u32 s29, s29, {VO_OFF}')
            a(f'v_mul_u32_u24 v14, {14*KB}, v11')
            a('v_lshl_add_u32 v14, v8, 8, v14')
            a('v_lshl_add_u32 v14, v4, 4, v14')
            a('v_mul_u32_u24 v6, 56, v8')
            a('v_and_b32 v9, 31, v1')
            a('v_mov_b32 v15, 0')
        a('s_mov_b32 s31, 0')
        emit(dma('s34', 's31'))
        a('s_add_u32 s30, s34, 1'); a(f's_mov_b32 s31, {PB}')
        emit(dma('s30', 's31'))
        a('s_mov_b32 s19, s34')
        a('s_mov_b32 s32, 0')
        a(f's_mov_b32 s33, {2*PB}')
        a('s_mov_b32 s26, 0x10000000')
        FR = 16; NF = 4; ACC = 40; O = 72; PF = 3
        def stores():
            gs = []
            for j in range(NS):
                for u in range(2):
                    o = O + 8 * j + 4 * u
                    pre = [f's_add_u32 s25, s26, {j * (16 if isF else 1) * GSH_B}'] if u == 0 else []
                    gs.append(pre + [f'buffer_store_dwordx4 v[{o}:{o+3}], v15, {WS}, s25 offen offset:{u * (256 if isF else 448)} {st}'])
            return gs
        a.label(L('loop'))
        a('s_waitcnt vmcnt(7)')
        a('s_barrier')
        a('v_add_u32 v5, s32, v14')
        def rd(ks): a(f'ds_read_b128 v[{FR+4*(ks%NF)}:{FR+4*(ks%NF)+3}], v5 offset:{ks*512}')
        for i in range(PF): rd(i)
        a('s_add_u32 s30, s19, 2')
        side = stores() + dma('s30', 's33')
        for ks in range(28):
            if ks + PF < 28: rd(ks + PF)
            a(f's_waitcnt lgkmcnt({min(PF, 27 - ks)})')
            r = FR + 4 * (ks % NF)
            for j in range(NS):
                d = ACC + 16 * j; x = (28 * j + ks) * 4
                c = '0' if ks == 0 else f'v[{d}:{d+15}]'
                if isF: a(f'v_mfma_f32_32x32x16_bf16 v[{d}:{d+15}], v[{r}:{r+3}], a[{x}:{x+3}], {c}')
                else: a(f'v_mfma_f32_32x32x16_bf16 v[{d}:{d+15}], a[{x}:{x+3}], v[{r}:{r+3}], {c}')
                if j == 0 and ks % 2 == 0 and side: emit([side.pop(0)])
        assert not side
        if isF:
            a('s_lshl_b32 s26, s19, 10')
            a('s_add_u32 s26, s26, s29')
        else:
            a('s_lshl_b32 s24, s19, 5')
            a('v_add_u32 v88, s24, v9')
            a('v_mul_u32_u24 v89, 2341, v88')
            a('v_lshrrev_b32 v89, 16, v89')
            a('v_mul_u32_u24 v89, 84, v89')
            a('v_add3_u32 v88, v88, v89, v6')
            a('v_lshlrev_b32 v15, 4, v88')
            a('s_mov_b32 s26, s29')
        a('s_mov_b32 s33, s32')
        a(f's_add_u32 s32, s32, {PB}')
        a(f's_cmp_eq_u32 s32, {3*PB}')
        a('s_cselect_b32 s32, 0, s32')
        a('s_add_u32 s19, s19, 1')
        for k in range(8 * NS): a(f'v_cvt_pk_bf16_f32 v{O+k}, v{ACC+2*k}, v{ACC+2*k+1}')
        a('s_cmp_lt_u32 s19, s35')
        a(f's_cbranch_scc1 {L("loop")}')
        emit(stores())
        if isF: a(f's_branch {P}_done')
    a.label(f'{P}_done')
    if signal:
        if NT == 4: a(f's_lshl_b32 s20, {rb_s}, 4')
        else:
            a(f's_lshr_b32 s20, {rb_s}, 1')
            a('s_lshl_b32 s20, s20, 4')
        a(f's_and_b32 s21, {cg_s}, 15')
        a('s_add_u32 s20, s20, s21')
        a('s_lshl_b32 s20, s20, 7')
        a(f's_cmp_lt_u32 {cg_s}, 16')
        a(f's_cselect_b32 s21, {FC - VOC}, 0')
        a('s_add_u32 s20, s20, s21')
        a(f's_add_u32 s20, s20, {CNT_OFF + VOC}')
        a('s_sub_u32 s21, s35, s34')
        if NT == 2: a('s_lshr_b32 s21, s21, 1')
        a('v_mov_b32 v5, s21')
        a('v_mov_b32 v6, 0')
        a('s_waitcnt vmcnt(0)')
        a('s_mov_b64 exec, 1')
        if NT == 2:
            a(f's_cmp_lg_u32 {rb_s}, 0')
            a(f's_cbranch_scc1 {P}_h1')
            a('v_mov_b32 v7, 2')
            a('s_sub_u32 s21, s20, 2048')
            a(f'buffer_atomic_add v7, v6, {WS}, s21 offen')
            a.label(f'{P}_h1')
        a(f'buffer_atomic_add v5, v6, {WS}, s20 offen')
        a('s_mov_b64 exec, -1')

def gen_gemm(name='gemm_kernel'):
    a = Asm(); a.raw(kernel_header(name))
    a('s_cmp_ge_u32 s2, 256')
    a('s_cbranch_scc1 gm_end')
    a('s_load_dwordx2 s[6:7], s[0:1], 128')
    a('v_lshrrev_b32 v1, 6, v0')
    a('v_readfirstlane_b32 s16, v1')
    a('v_and_b32 v1, 63, v0')
    a('v_lshlrev_b32 v2, 4, v1')
    a('v_lshrrev_b32 v3, 4, v1')
    a('v_and_b32 v4, 15, v1')
    a('s_waitcnt lgkmcnt(0)')
    a('s_mov_b32 s8, s6\ns_and_b32 s9, s7, 0xffff\ns_mov_b32 s10, 0x10000000\ns_mov_b32 s11, 0x20000')
    a('s_and_b32 s17, s2, 7')
    a('s_lshl_b32 s17, s17, 2')
    a('s_lshr_b32 s18, s2, 6')
    a('s_add_u32 s17, s17, s18')
    a('s_lshr_b32 s18, s2, 3')
    a('s_and_b32 s18, s18, 7')
    a('s_mov_b32 s34, 0\ns_mov_b32 s35, 14')
    gemm_body(a, 'gm', 's18', 's17')
    a.label('gm_end')
    a('s_endpgm')
    return a

if __name__ == '__main__':
    import sys
    a = gen_gemm()
    out = ['; @launch kernel=gemm_kernel grid=(256,1,1) block=(256,1,1) lds=86016',
           '.amdgcn_target "amdgcn-amd-amdhsa--gfx950"', '.text', a.text(), '.section .rodata,"a"', kernel_desc('gemm_kernel', 352, 128)]
    open(sys.argv[1], 'w').write('\n'.join(out) + '\n')
    print('instructions', a.count)
```

```python
from asmlib import *
from layout import *
import chain as C, start as S, prep, gemm, tok, s4d, t2srv
from chain import SRD, DBG, evlog
BC = 160000
JOBQ = 192; NON = 128
def mask_off(a, dst, cls):
    a(f's_and_b32 s71, {cls}, 4')
    a('s_mul_i32 s71, s71, 12')
    a(f's_lshl_b32 {dst}, {cls}, 2')
    a(f's_add_u32 {dst}, {dst}, s71')
MASK0 = 32
SCRAMBLE = 0
XPRE = 0
EVMID = 0
WARM = 1
VPF = 56
A1T = 0
XE = 3
ZO = 0
T0 = 0
XL = 0
LATE = 0
SKIP = 0
S4X = 1
G16 = 1
LLW = 2
TD = 8
CPOS = 320 if s4d.STAGE else 9999
APP = 11
BFIRST = 0
FL2 = 4
VPK = 16
STEAL_AT = 64
Q_FINE = 0; Q_SRV = Q_FINE + 224; Q_V7 = Q_SRV + 32; Q_VH = Q_V7 + 112; Q_A = Q_VH + 64; Q_VF = Q_A + 128; Q_F = Q_VF + 64; Q_S4 = Q_F + 128; Q_TOK = Q_S4 + 112; Q_END = Q_TOK + 512 + 64 * s4d.STAGE

def kargs(a):
    a('s_load_dwordx8 s[36:43], s[0:1], 56')
    a('s_load_dwordx4 s[44:47], s[0:1], 88')
def lanes(a):
    a('v_and_b32 v1, 63, v0')
    a('v_lshlrev_b32 v2, 4, v1')
    a('v_lshrrev_b32 v3, 4, v1')
    a('v_and_b32 v4, 15, v1')
def w0(a, fn):
    l = a.newlabel('w0')
    a('s_cmp_lg_u32 s16, 0')
    a(f's_cbranch_scc1 {l}')
    fn()
    a.label(l)
def bcast(a, regs, dsts, t=250):
    a(f'v_mov_b32 v{t}, {BC}')
    a('s_add_u32 s101, s101, 1')
    def wr():
        for i, r in enumerate(regs): a(f'ds_write_b32 v{t}, v{r} offset:{4*i}')
        a('s_waitcnt lgkmcnt(0)')
        a(f'v_mov_b32 v{regs[0]}, s101')
        a(f'ds_write_b32 v{t}, v{regs[0]} offset:16')
        a('s_waitcnt lgkmcnt(0)')
    a('s_barrier')
    a('s_mov_b64 exec, 1')
    w0(a, wr)
    a('s_mov_b64 exec, -1')
    a('s_barrier')
    for i, r in enumerate(regs): a(f'ds_read_b32 v{r}, v{t} offset:{4*i}')
    a(f'ds_read_b32 v{t}, v{t} offset:16')
    a('s_waitcnt lgkmcnt(0)')
    for r, d in zip(regs, dsts): a(f'v_readfirstlane_b32 {d}, v{r}')
    a(f'v_cmp_ne_u32 vcc, s101, v{t}')
    a('s_cbranch_vccnz ch_end')

def claim_issue(a, P, r=242):
    a('s_cmp_lg_u32 s66, 0')
    a(f's_cbranch_scc1 {P}_ci')
    def at():
        a('s_lshr_b32 s70, s3, 5')
        mask_off(a, 's70', 's70')
        a('s_lshl_b32 s71, 1, s3')
        a(f'v_mov_b32 v{r}, s71')
        a(f'v_mov_b32 v{r+1}, {MASK0}')
        a('s_mov_b64 exec, 1')
        a(f'buffer_atomic_or v{r}, v{r+1}, {DBG}, s70 offen sc0')
        a(f'buffer_load_dwordx2 v[{r+2}:{r+3}], v{r+1}, {DBG}, 0 offen offset:{NON-MASK0} sc1')
        a('s_mov_b64 exec, -1')
    w0(a, at)
    a.label(f'{P}_ci')

def set_nonce(a, r):
    a(f'v_mov_b32 v{r+1}, {NON}')
    a(f'v_mov_b32 v{r+2}, s88\nv_mov_b32 v{r+3}, s89\nv_mov_b32 v{r+4}, 0\nv_mov_b32 v{r+5}, 0')
    a('s_mov_b64 exec, 1')
    a(f'buffer_atomic_cmpswap_x2 v[{r+2}:{r+5}], v{r+1}, {DBG}, 0 offen sc0')
    a('s_mov_b64 exec, -1')

def confirm(a, P, n, r=242):
    a('s_cmp_lg_u32 s66, 0')
    a(f's_cbranch_scc1 {P}_cf')
    def w():
        a(f's_waitcnt vmcnt({n})')
        a(f'v_readfirstlane_b32 s70, v{r+2}')
        a('s_cmp_lg_u32 s70, 0')
        a(f's_cbranch_scc1 {P}_nz')
        set_nonce(a, r)
        a('s_waitcnt vmcnt(0)')
        a(f'v_readfirstlane_b32 s70, v{r+2}')
        a('s_cmp_lg_u32 s70, 0')
        a(f's_cbranch_scc1 {P}_nz')
        a(f'v_mov_b32 v{r+2}, s88\nv_mov_b32 v{r+3}, s89')
        a.label(f'{P}_nz')
    w0(a, w)
    bcast(a, [r, r + 2, r + 3], ['s70', 's88', 's89'], t=r + 1)
    a('s_mov_b32 s66, 1')
    a('s_bitcmp1_b32 s70, s3')
    a('s_cbranch_scc1 m_reclaim')
    a.label(f'{P}_cf')

def claim_loop(a, P, lo_class, ncls):
    a('s_mov_b32 s21, 0')
    a('s_mov_b64 exec, 1')
    a.label(f'{P}_l')
    a('s_cmp_lg_u32 s70, -1')
    a(f's_cbranch_scc1 {P}_t')
    a('s_add_u32 s20, s20, 1')
    a('s_cmp_lt_u32 s20, 8')
    a(f's_cselect_b32 s20, s20, {lo_class}')
    a('s_mov_b32 s70, 0')
    a('s_mov_b32 s3, -1')
    a('s_add_u32 s21, s21, 1')
    a(f's_cmp_ge_u32 s21, {ncls}')
    a(f's_cbranch_scc1 {P}_d')
    a.label(f'{P}_t')
    a('s_ff0_i32_b32 s22, s70')
    a('s_lshl_b32 s23, 1, s22')
    mask_off(a, 's3', 's20')
    a('v_mov_b32 v242, s23')
    a(f'v_mov_b32 v243, {MASK0}')
    a(f'buffer_atomic_or v242, v243, {DBG}, s3 offen sc0')
    a('s_waitcnt vmcnt(0)')
    a('v_readfirstlane_b32 s70, v242')
    a('s_lshl_b32 s3, s20, 5')
    a('s_add_u32 s3, s3, s22')
    a('s_bitcmp1_b32 s70, s22')
    a(f's_cbranch_scc1 {P}_l')
    a.label(f'{P}_d')
    a('s_mov_b64 exec, -1')
    a('v_mov_b32 v242, s3')

def allflags(a, P, rep_s, t=24, limit=None, sleep=4, on_spin=None, base=IF_OFF):
    a(f's_lshl_b32 s22, {rep_s}, 11')
    a(f's_add_u32 s22, s22, {base}')
    a(f'v_add_u32 v{t}, 1024, v2')
    a(f'v_min_u32 v{t}, {1792-16}, v{t}')
    S.flag_poll(a, P, t + 4, [(2, 's22'), (t, 's22')], 'cA_abort', limit or C.SLOW_LIMIT, sleep, on_spin)

def ask(a):
    def f():
        a('v_mov_b32 v250, 1')
        a(f'v_mov_b32 v251, {JOBQ}')
        a('s_mov_b64 exec, 1')
        a(f'buffer_atomic_add v250, v251, {DBG}, 0 offen sc0')
        a('s_mov_b64 exec, -1')
    w0(a, f)

def worker(a):
    global gemm
    if G16:
        import gemm16 as gemm
    tok.PEEK = DBG
    a.label('m_bjob')
    lanes(a)
    a('s_sub_u32 s18, s3, 32')
    vq = S.VQ()
    S.bjob_decode(a)
    def early():
        S.bjob_x(a, vq)
        a('s_lshl_b32 s26, s17, 9')
        if A1T: S.a1_touch(a, vq)
    if T0:
        a('s_lshl_b32 s26, s17, 9')
        S.a1_touch(a, vq, T0)
    if XE == 0: early()
    S.bjob_issue(a, vq, hook=early if XE == 1 else None)
    if XE == 2: early()
    evlog(a, 9008, 52)
    claim_issue(a, 'bj', 44)
    S.bjob_run(a, 'bj', vq, 1, None, 's77', False, early if XE == 3 else None)
    if XE == 4: early()
    a(f's_add_u32 s78, s77, {IF_OFF - BF_OFF}')
    confirm(a, 'bj', 8 + (4 + A1T if XE == 4 else 0), 44)
    evlog(a, 9001, 52)
    a('s_barrier')
    def hk(n):
        a(f's_waitcnt vmcnt({n + (4 + A1T if XE == 4 else 0)})')
        S.publish(a, 's77', 1, 48)
        evlog(a, 9002, 112)
        if XE == 4: a(f's_waitcnt vmcnt({n})')
        S.init_stores(a, 'bk', vq)
        S._fills(a, vq)
    S.a3_issue(a, hk)
    a('v_mov_b32 v250, s68')
    a('s_or_b32 s20, s69, s16')
    a('s_cbranch_scc1 bj_ht')
    ask(a)
    a('s_branch bj_h2')
    a.label('bj_ht')
    a(f'buffer_load_dword v251, off, {SRD}, s77')
    a.label('bj_h2')
    S.a3_run(a, 1, lambda: w0(a, lambda: S.flag_store(a, 's78', BF_R, 2048, 48)))
    if LLW == 1: S.llc_warm(a, 's18', not ZO)
    evlog(a, 9009)
    bcast(a, [250], ['s3'], t=6)
    a('s_branch wk_have')
    a.label('wk_loop')
    a('s_waitcnt vmcnt(0) lgkmcnt(0)')
    a('s_cmp_eq_u32 s96, 1')
    a('s_cbranch_scc1 wk_ask')
    a('s_mov_b32 s96, 1')
    def staff():
        a('s_mov_b32 s30, 0')
        a(f'v_mov_b32 v243, {MASK0}')
        a.label('sf_l')
        a(f'buffer_load_dword v242, v243, {DBG}, 0 offen sc1')
        a('s_waitcnt vmcnt(0)')
        a('v_readfirstlane_b32 s70, v242')
        a('s_cmp_eq_u32 s70, -1')
        a('s_cbranch_scc1 sf_d')
        a('s_sleep 16')
        a('s_add_u32 s30, s30, 1')
        a('s_cmp_lt_u32 s30, 64')
        a('s_cbranch_scc1 sf_l')
        a('s_mov_b32 s20, 0')
        claim_loop(a, 'sf_c', 0, 1)
        a.label('sf_d')
    w0(a, staff)
    bcast(a, [242], ['s3'], t=243)
    a('s_cmp_eq_u32 s3, -1')
    a('s_cbranch_scc1 wk_ask')
    kargs(a)
    a('s_getreg_b32 s67, hwreg(HW_REG_XCC_ID)')
    a('s_and_b32 s67, s67, 7')
    a('s_mov_b32 s66, 1')
    a('s_waitcnt lgkmcnt(0)')
    a('s_branch m_start')
    a.label('wk_ask')
    a('v_readfirstlane_b32 s22, v250')
    a(f's_cmp_ge_u32 s22, {Q_END}')
    a('s_cbranch_scc1 wk_next')
    ask(a)
    a.label('wk_next')
    evlog(a, 9005)
    a('s_waitcnt vmcnt(0)')
    bcast(a, [250], ['s3'], t=6)
    a.label('wk_have')
    evlog(a, 's3')
    a(f's_cmp_ge_u32 s3, {Q_END}')
    a('s_cbranch_scc1 ch_end')
    a('v_mov_b32 v250, 0')
    a(f'v_mov_b32 v251, {JOBQ}')
    lanes(a)
    a('s_cmp_lg_u32 s97, 0')
    a('s_cbranch_scc1 wk_go')
    a('s_mov_b32 s68, s3\ns_mov_b32 s69, 1')
    def poll():
        def spin():
            a(f's_and_b32 s20, s30, {STEAL_AT-1}')
            a('s_cbranch_scc1 wk_ns')
            a('s_mov_b32 s20, 1\ns_mov_b32 s70, 0')
            claim_loop(a, 'wk_st', 1, 7)
            a('s_cmp_lg_u32 s3, -1')
            a('s_cbranch_scc1 wk_pd')
            a('s_add_u32 s20, s67, 1')
            a(f's_lshl_b32 s22, s20, 11')
            a(f's_add_u32 s22, s22, {IF_OFF}')
            a.label('wk_ns')
        a('s_add_u32 s20, s67, 1')
        allflags(a, 'wk_af', 's20', sleep=4, on_spin=spin)
        a('v_mov_b32 v242, -1')
        a.label('wk_pd')
    w0(a, poll)
    bcast(a, [242], ['s3'], t=243)
    a('s_cmp_lg_u32 s3, -1')
    a('s_cbranch_scc1 m_bjob')
    a('s_mov_b32 s3, s68\ns_mov_b32 s97, 1')
    evlog(a, 9006)
    a.label('wk_go')
    a(f's_cmp_lt_u32 s3, {Q_VH}')
    a('s_cbranch_scc1 wk_g2')
    a(f's_sub_u32 s20, s3, {Q_A}')
    a('s_cmp_lt_u32 s20, 128')
    a('s_cbranch_scc1 wk_g2')
    a('s_cmp_eq_u32 s97, 2')
    a('s_cbranch_scc1 wk_g2')
    a('s_getreg_b32 s20, hwreg(HW_REG_XCC_ID)')
    a('s_and_b32 s20, s20, 7')
    w0(a, lambda: allflags(a, 'wk_i2', 's20', sleep=4, base=I2_OFF))
    a('v_mov_b32 v242, 0')
    bcast(a, [242], ['s20'], t=243)
    a('s_mov_b32 s97, 2')
    a.label('wk_g2')
    for lim, lab in ((Q_TOK, 'wk_tok'), (Q_S4, 'wk_s4d'), (Q_F, 'wk_f'), (Q_VF, 'wk_vf'), (Q_A, 'wk_a'), (Q_VH, 'wk_vh'), (Q_V7, 'wk_v7'), (Q_SRV, 'wk_srv')):
        a(f's_cmp_ge_u32 s3, {lim}')
        a(f's_cbranch_scc1 {lab}')
    a(f's_sub_u32 s20, s3, {Q_FINE}')
    a('s_cmp_ge_u32 s20, 112')
    a('s_cselect_b32 s18, 1, 0')
    a('s_cselect_b32 s21, 112, 0')
    a('s_sub_u32 s20, s20, s21')
    a('s_and_b32 s17, s20, 15')
    a('s_add_u32 s17, s17, 16')
    a('s_lshr_b32 s34, s20, 4')
    a('s_lshl_b32 s34, s34, 1')
    a('s_add_u32 s35, s34, 2')
    if LLW == 2:
        a('s_cmp_eq_u32 s18, 0')
        a('s_cbranch_scc1 wf_nw')
        S.llc_warm(a, 's3', not ZO)
        a('s_sub_u32 s3, s3, 112')
        S.llc_warm(a, 's3', not ZO)
        a('s_add_u32 s3, s3, 112')
        a.label('wf_nw')
    gemm.gemm_body(a, 'wf', 's18', 's17', st='sc1', signal=True, ld='sc1', NT=2)
    kargs(a)
    a('s_waitcnt lgkmcnt(0)')
    S.init2(a, 's3', ZO)
    if LLW == 3: S.llc_warm(a, 's3', not ZO)
    a('s_branch wk_loop')
    a.label('wk_v7')
    a(f's_sub_u32 s20, s3, {Q_V7}')
    a('s_mov_b32 s18, 1')
    a('s_and_b32 s17, s20, 15')
    a('s_add_u32 s17, s17, 16')
    a('s_lshr_b32 s34, s20, 4')
    a('s_lshl_b32 s34, s34, 1')
    a('s_add_u32 s35, s34, 2')
    a('s_branch wk_gemm')
    a.label('wk_vh')
    a(f's_sub_u32 s20, s3, {Q_VH}')
    a('s_and_b32 s17, s20, 15')
    a('s_add_u32 s17, s17, 16')
    a('s_lshr_b32 s18, s20, 5')
    a('s_add_u32 s18, s18, 2')
    a('s_bitcmp1_b32 s20, 4')
    a('s_cselect_b32 s34, 7, 0')
    a('s_add_u32 s35, s34, 7')
    a('s_branch wk_gemm')
    a.label('wk_vf')
    a(f's_sub_u32 s20, s3, {Q_VF}')
    a('s_and_b32 s17, s20, 15')
    a('s_add_u32 s17, s17, 16')
    a('s_lshr_b32 s18, s20, 4')
    a('s_add_u32 s18, s18, 4')
    a('s_mov_b32 s34, 0\ns_mov_b32 s35, 14')
    a('s_branch wk_gemm')
    a.label('wk_f')
    if SKIP & 4: a('s_branch wk_loop')
    a(f's_sub_u32 s20, s3, {Q_F}')
    a('s_and_b32 s17, s20, 15')
    a('s_lshr_b32 s18, s20, 4')
    a('s_mov_b32 s34, 0\ns_mov_b32 s35, 14')
    a('s_lshl_b32 s22, s17, 7')
    a(f's_add_u32 s22, s22, {AF_OFF}')
    a(f's_add_u32 s23, s22, {A3_OFF - AF_OFF}')
    a('v_min_u32 v24, 48, v2')
    a('v_min_u32 v25, 96, v2')
    S.flag_poll(a, 'wk_aw', 28, [(24, 's22'), (25, 's23')], 'cA_abort', C.SLOW_LIMIT, 6)
    a.label('wk_gemm')
    gemm.gemm_body(a, 'wg', 's18', 's17', st='sc1', signal=True, ld='sc1')
    a('s_branch wk_loop')
    a.label('wk_a')
    if SKIP & 8: a('s_branch wk_loop')
    kargs(a)
    a(f's_sub_u32 s3, s3, {Q_A}')
    a('s_and_b32 s17, s3, 15')
    a('s_lshr_b32 s19, s3, 5')
    a('s_bitcmp1_b32 s3, 4')
    a('s_cselect_b32 s31, 7, 0')
    a('s_waitcnt lgkmcnt(0)')
    vq = S.VQ()
    S.bjob_issue(a, vq, 0, 'aj')
    S.bjob_run(a, 'aj', vq, 0)
    a('v_mov_b32 v250, 0')
    a('s_branch wk_loop')
    a.label('wk_srv')
    if SKIP & 16: a('s_branch ch_end')
    a(f's_sub_u32 s3, s3, {Q_SRV}')
    a('s_and_b32 s18, s3, 15')
    a('s_lshr_b32 s19, s3, 4')
    a('s_and_b32 s19, s19, 1')
    t2srv.t2srv_body(a, 'ws', 's18', 's19', 'cA_abort', ld='sc1')
    a('v_mov_b32 v250, 0')
    a('s_branch wk_loop')
    a.label('wk_s4d')
    if SKIP & 1: a('s_branch wk_loop')
    if S4X:
        def pick():
            a('s_getreg_b32 s20, hwreg(HW_REG_XCC_ID)')
            a(f's_sub_u32 s20, s20, {C.XCD_SEL + 1}')
            a('s_and_b32 s20, s20, 7')
            a('s_mov_b64 exec, 1')
            a.label('s4_l')
            a('s_cmp_ge_u32 s20, 7')
            a('s_cselect_b32 s20, 0, s20')
            a('s_lshl_b32 s21, s20, 7')
            a(f's_add_u32 s21, s21, {CNT_OFF + S4Q}')
            a('v_mov_b32 v242, 1')
            a(f'buffer_atomic_add v242, off, {SRD}, s21 sc0')
            a('s_waitcnt vmcnt(0)')
            a('v_readfirstlane_b32 s21, v242')
            a('s_lshl_b32 s22, s20, 4')
            a('s_add_u32 s20, s20, 1')
            a('s_cmp_ge_u32 s21, 16')
            a('s_cbranch_scc1 s4_l')
            a('v_add_u32 v242, s22, v242')
            a('s_mov_b64 exec, -1')
        w0(a, pick)
        bcast(a, [242], ['s3'], t=243)
    else: a(f's_sub_u32 s3, s3, {Q_S4}')
    s4d.s4d_setup(a)
    s4d.s4d_item(a, 'wk', 's3')
    a('s_branch wk_loop')
    a.label('wk_tok')
    if SKIP & 2: a('s_branch wk_loop')
    a(f's_sub_u32 s3, s3, {Q_TOK}')
    if s4d.STAGE:
        a(f's_cmp_lt_u32 s3, {CPOS}')
        a('s_cbranch_scc1 wk_tk')
        a('s_sub_u32 s3, s3, 64')
        a(f's_cmp_ge_i32 s3, {CPOS}')
        a('s_cbranch_scc1 wk_tk')
        a(f's_sub_u32 s18, s3, {CPOS - 64}')
        a(f's_mov_b32 s20, {CNT_OFF + S4C}')
        if s4d.STAGE:
            C.poll_eq(a, 'wk_cw', SRD, 's20', 112, sleep=32)
            s4d.s4d_copy(a, 's18')
        a('s_branch wk_loop')
        a.label('wk_tk')
    a('s_and_b32 s18, s3, 3')
    a('s_lshr_b32 s17, s3, 2')
    a(f's_cmp_lt_u32 s17, {TD}')
    a('s_cbranch_scc1 wk_tokp')
    a(f's_sub_u32 s17, s17, 64')
    a(f's_cmp_ge_i32 s17, {64 - TD}')
    a('s_cbranch_scc1 wk_toko')
    a(f's_add_u32 s20, s17, {64 - TD}')
    a('s_lshr_b32 s17, s20, 1')
    a('s_bitcmp0_b32 s20, 0')
    a('s_cbranch_scc1 wk_toko')
    a(f's_add_u32 s17, s17, {TD}')
    a.label('wk_tokp')
    tok.tokp_body(a, 's17', 's18', ld='sc1', st='sc1', sync='wp', ldx='sc1')
    a('s_branch wk_loop')
    a.label('wk_toko')
    tok.toko_body(a, 's17', 's18', ld='sc1', sync='wo', OUT='s[92:95]')
    if C.TMAX:
        a('s_cmp_lg_u32 s17, 63')
        a('s_cbranch_scc1 tm_n')
        a('s_waitcnt vmcnt(0)')
        C.tmax(a, 7)
        a.label('tm_n')
    a('v_readfirstlane_b32 s22, v250')
    a(f's_cmp_ge_u32 s22, {Q_END}')
    a('s_cbranch_scc1 ch_end')
    a('s_branch wk_loop')
    a.label('wp_abort')
    a.label('wo_abort')
    a('s_branch cA_abort')

def staffed(a, r=242):
    def f():
        a(f's_cmp_eq_u32 s67, {C.XCD_SEL}')
        a('s_cselect_b32 s20, 1, 0x10001')
        a(f'v_mov_b32 v{r}, s20')
        a(f'v_mov_b32 v{r+1}, 0')
        a('s_mov_b64 exec, 1')
        a(f'buffer_atomic_add v{r}, v{r+1}, {DBG}, 0 offen')
        a('s_mov_b64 exec, -1')
    w0(a, f)

def gen(name='main_kernel'):
    C.SYNC = 1; C.MERGE = 2; C.SELF = 2
    a = Asm()
    a.raw(kernel_header(name))
    a('s_cmp_ge_u32 s2, 256')
    a('s_cbranch_scc1 ch_end')
    a('s_load_dwordx4 s[4:7], s[0:1], 120')
    a('s_load_dwordx2 s[92:93], s[0:1], 112')
    kargs(a)
    a('s_memrealtime s[88:89]')
    if C.CODE_PF == 1: code_prefetch_shared(a, name, 'ch_end', 60)
    if C.CODE_PF == 2: code_prefetch(a, name, 'ch_end', 160000, 60)
    a('s_getreg_b32 s67, hwreg(HW_REG_XCC_ID)')
    a('s_and_b32 s67, s67, 7')
    a('v_lshrrev_b32 v1, 6, v0')
    a('v_readfirstlane_b32 s16, v1')
    a('s_mov_b32 s66, 0\ns_mov_b32 s68, 0\ns_mov_b32 s69, 0\ns_mov_b32 s96, 0\ns_mov_b32 s97, 0\ns_mov_b32 s101, 0x5eed0000')
    a(f's_sub_u32 s20, s67, {C.XCD_SEL}')
    a('s_lshr_b32 s21, s2, 3')
    if SCRAMBLE: a('s_add_u32 s20, s20, s21')
    if SCRAMBLE == 2: a('s_lshr_b32 s21, s21, 2')
    a('s_and_b32 s20, s20, 7')
    a('s_lshl_b32 s3, s20, 5')
    a('s_add_u32 s3, s3, s21')
    a('s_waitcnt lgkmcnt(0)')
    a('s_mov_b32 s8, s6\ns_and_b32 s9, s7, 0xffff\ns_mov_b32 s10, 0x10000000\ns_mov_b32 s11, 0x20000')
    a('s_mov_b32 s12, s4\ns_and_b32 s13, s5, 0xffff\ns_mov_b32 s14, 256\ns_mov_b32 s15, 0x20000')
    a('s_or_b32 s88, s88, 1')
    a(f's_and_b32 s93, s93, 0xffff\ns_mov_b32 s94, {2048*896*2}\ns_mov_b32 s95, 0x20000')
    if C.EVLOG:
        a('s_lshl_b32 s100, s2, 2')
        a('s_add_u32 s100, s100, s16')
        a('s_lshl_b32 s100, s100, 8')
        a(f's_add_u32 s100, s100, {C.EV_OFF}')
    evlog(a, 9000)
    if LATE:
        a('s_mul_i32 s20, s2, 37\ns_and_b32 s20, s20, 15\ns_cmp_lg_u32 s20, 8\ns_cbranch_scc1 m_nl')
        a('s_mov_b32 s20, 0')
        a.label('m_ll')
        a(f's_sleep 127\ns_add_u32 s20, s20, 1\ns_cmp_lt_u32 s20, {LATE}\ns_cbranch_scc1 m_ll')
        a.label('m_nl')
        a('s_mul_i32 s20, s2, 37\ns_and_b32 s20, s20, 15\ns_cmp_lg_u32 s20, 3\ns_cbranch_scc1 m_nl2')
        a('s_mov_b32 s20, 0')
        a.label('m_ll2')
        a(f's_sleep 127\ns_add_u32 s20, s20, 1\ns_cmp_lt_u32 s20, {LATE}\ns_cbranch_scc1 m_ll2')
        a.label('m_nl2')
    acs = S.AComp(a, 'as')
    def evm(p):
        a('s_memrealtime s[98:99]' if EVMID == 1 else 's_memtime s[98:99]')
        a(f'v_mov_b32 v96, {9100 + p}')
        a('s_mov_b64 exec, 1')
        a(f'buffer_store_dword v96, off, {SRD}, s100')
        a('s_waitcnt lgkmcnt(0)')
        a('v_mov_b32 v96, s98')
        a(f'buffer_store_dword v96, off, {SRD}, s100 offset:4')
        a('s_mov_b64 exec, -1')
        a('s_add_u32 s100, s100, 8')
    acs.mid = evm if EVMID else None
    a.label('m_start')
    a('s_cmp_ge_u32 s3, 32')
    a('s_cbranch_scc1 m_bjob')
    C.lane_consts(a)
    a('s_and_b32 s17, s3, 15')
    a('s_cmp_ge_u32 s3, 16')
    a('s_cbranch_scc1 m_val')
    acs.issue()
    evlog(a, 9008, 96)
    claim_issue(a, 'sc', 248)
    acs.setup()
    acs.fetch()
    confirm(a, 'sc', 4 * (S.APRE - 1), 248)
    staffed(a, 248)
    evlog(a, 9001, 96)
    a('s_lshl_b32 s28, s17, 7')
    a(f's_add_u32 s28, s28, {A3_OFF}')
    a('v_min_u32 v113, 96, v2')
    a(f's_mov_b32 s29, {IF_OFF}')
    a('v_add_u32 v112, 1024, v2')
    a(f'v_min_u32 v112, {1792-16}, v112')
    fl = [(113, 's28'), (2, 's29'), (112, 's29')]
    a(f's_mul_i32 s32, s17, {CUW_B}')
    a(f's_mul_i32 s33, s16, {TILE_B}')
    a('s_add_u32 s32, s32, s33')
    a('s_add_u32 s33, s32, s33')
    a(f's_add_u32 s32, s32, {24*TILE_B}')
    a(f's_add_u32 s33, s33, {16*TILE_B}')
    TL = [(5, 's33', TILE_B), (6, 's32', 0), (4, 's33', 0)]
    pieces = [0, 1, 5, 6, 7, 8, 9, 2, 3]
    def place(j, f):
        if j == 2: return None if f < 8 else 28 + f - 8
        return 14 * j + f
    lof = lambda x: pieces[x >> 2] * 16384 + (x & 3) * 1024
    fld = lambda: [f'buffer_load_dwordx4 v[100:103], v113, {SRD}, s28 offen sc1', ('vq', 'f')]
    def extra(p):
        o = []
        j = p - APP
        if 0 <= j < 3:
            ti, br, bo = TL[j]
            o.append([f's_waitcnt vmcnt({acs.vq.wait("f") if "f" in acs.vq.q else 63})', f'v_cmp_ne_u64 vcc, {S.NONCE}, v[100:101]', f'v_cmp_ne_u64 s[54:55], {S.NONCE}, v[102:103]', f's_add_u32 s{48+j}, {br}, {bo}'])
            for f in range(14):
                g = ['s_or_b64 vcc, vcc, s[54:55]', f's_cselect_b32 s{48+j}, 0x10000000, s{48+j}'] if f == 0 else []
                x = place(j, f)
                g.append(f's_add_u32 s22, s{48+j}, {f*1024}')
                if x is None: g.append(f'buffer_load_dwordx4 {ureg(C.wreg(ti, f >> 1) + 4 * (f & 1), 4)}, v2, {SRD}, s22 offen sc1')
                else: g += [f's_add_u32 m0, s25, {lof(x)}', f'buffer_load_dwordx4 v2, {SRD}, s22 offen sc1 lds']
                g.append(('vq', 'a'))
                if f == FL2 and j < 2: g += fld()
                o.append(g)
        if j == -1: o += [[] for _ in range(FL2)] + [fld()]
        if p == 13: o.append([f'buffer_load_dwordx4 v[{100+4*i}:{103+4*i}], v{va}, {SRD}, {so} offen sc1' for i, (va, so) in enumerate(fl)])
        return o
    acs.run(lambda t, p: C.wreg(t, p >> 1) + 4 * (p & 1), extra)
    evlog(a, 9002)
    S.flag_poll(a, 'sc_aw', 100, fl, 'cA_abort', C.SLOW_LIMIT, 1, issued=True)
    a('v_add_u32 v4, s25, v2')
    a('v_add_u32 v5, 0x10000, v4')
    a('v_add_u32 v6, 0x20000, v4')
    for j, (ti, br, bo) in enumerate(TL):
        a(f's_cmp_eq_u32 s{48+j}, 0x10000000')
        a(f's_cbranch_scc1 sc_d{j}')
        for f in range(14):
            x = place(j, f)
            if x is not None: a(f'ds_read_b128 {ureg(C.wreg(ti, f >> 1) + 4 * (f & 1), 4)}, v{4 + (lof(x) >> 16)} offset:{lof(x) & 0xffff}')
        a('s_waitcnt lgkmcnt(0)')
        a(f's_branch sc_e{j}')
        a.label(f'sc_d{j}')
        C.load_units(a, [(bo + ks * UNIT, C.wreg(ti, ks)) for ks in range(7)], br)
        a.label(f'sc_e{j}')
    a('s_barrier')
    a('s_branch m_role')
    a.label('m_val')
    w0(a, lambda: set_nonce(a, 232))
    claim_issue(a, 'va')
    if VPF:
        S.srd(a, 56, 40, S.W_BYTES)
        a('v_lshrrev_b32 v24, 5, v1')
        a('v_and_b32 v25, 31, v1')
        a('v_lshlrev_b32 v25, 4, v25')
        a('v_lshl_add_u32 v24, v24, 13, v25')
        S.srd(a, 60, 42, S.W_BYTES)
        a('s_lshl_b32 s22, s17, 9')
        a('s_lshl_b32 s23, s16, 19')
        a('s_add_u32 s23, s22, s23')
        for i in range(VPK):
            a(f's_add_u32 s21, s23, {(64 - 2*VPK + 2*i) << 13}')
            a('buffer_load_dwordx4 v[28:31], v24, s[60:63], s21 offen')
        a('s_lshl_b32 s23, s16, 14')
        a('s_add_u32 s22, s22, s23')
        a('s_mov_b32 s30, 0')
        a.label('va_pf')
        a('buffer_load_dwordx4 v[28:31], v24, s[56:59], s22 offen')
        a('s_waitcnt vmcnt(40)')
        a('s_add_u32 s22, s22, 65536')
        a('s_add_u32 s30, s30, 1')
        a(f's_cmp_lt_u32 s30, {VPF}')
        a('s_cbranch_scc1 va_pf')
    evlog(a, 9008)
    confirm(a, 'va', min(VPF + VPK, 40) if VPF else 0)
    staffed(a)
    evlog(a, 9001)
    a.label('m_role')
    evlog(a, 9006)
    a('s_mov_b32 s17, s3')
    def late(p):
        if p >= 4: allflags(a, f'va_iw{p}', '0', t=36, sleep=2)
    def bdep(lo, hi):
        a('s_mul_i32 s22, s17, 28')
        a('s_add_u32 s23, s22, 27')
        a('s_lshr_b32 s22, s22, 6')
        a('s_lshr_b32 s23, s23, 6')
        a('s_sub_u32 s23, s23, s22')
        a('s_lshl_b32 s23, s23, 8')
        a('v_and_b32 v36, s23, v2')
        a(f'v_med3_u32 v37, v117, {lo}, {hi}')
        a('v_lshl_add_u32 v36, v37, 4, v36')
        a('s_lshl_b32 s22, s22, 8')
        a(f's_add_u32 s22, s22, {BF_OFF}')
        S.flag_poll(a, a.newlabel('va_bw'), 40, [(36, 's22')], 'cA_abort', C.SLOW_LIMIT, 2)
        evlog(a, 9002)
    C.BDEP = bdep
    C.role_tail(a, late)
    a.label('m_reclaim')
    a('s_waitcnt vmcnt(0)')
    a('s_lshr_b32 s20, s3, 5')
    w0(a, lambda: claim_loop(a, 'rc', 0, 9))
    bcast(a, [242], ['s3'])
    a('s_cmp_lg_u32 s3, -1')
    a('s_cbranch_scc1 m_start')
    a('v_mov_b32 v250, 0')
    a('s_branch wk_ask')
    worker(a)
    a.label('ch_end')
    a('s_endpgm')
    return a
```

```python
from asmlib import *
from layout import *
import struct, math
def f32bits(x): return struct.unpack('<I', struct.pack('<f', x))[0]
LOG2E = f32bits(1.4426950408889634)
INV2PI = f32bits(1.0 / (2 * math.pi))
NOST = 0
STAGE = 0
OTOUCH = 0
WV = 24 * KB
U_O = 512
CE_O = 4608; CO_O = CE_O + 4224
KT_O = CO_O + 4224
PR_O = KT_O + 5 * KB + 64
assert PR_O + 4096 <= WV

def srd(a, d, lo, nbytes):
    a(f's_mov_b32 s{d}, s{lo}')
    a(f's_and_b32 s{d+1}, s{lo+1}, 0xffff')
    a(f's_mov_b32 s{d+2}, {nbytes}')
    a(f's_mov_b32 s{d+3}, 0x20000')

def rne_bf16(a, r, t):
    a(f'v_cvt_pk_bf16_f32 v{t}, v{r}, v{r}')
    a(f'v_and_b32 v{r}, 0xffff0000, v{t}')

def s4d_setup(a):
    a('s_load_dwordx8 s[40:47], s[0:1], 0')
    a('s_load_dwordx4 s[48:51], s[0:1], 32')
    a('s_load_dwordx2 s[52:53], s[0:1], 48')
    a('s_load_dwordx2 s[54:55], s[0:1], 112')
    a('v_lshrrev_b32 v1, 6, v0')
    a('v_readfirstlane_b32 s16, v1')
    a('v_and_b32 v1, 63, v0')
    a('v_lshrrev_b32 v3, 4, v1')
    a('v_and_b32 v4, 15, v1')
    a(f's_mul_i32 s17, s16, {WV}')
    a('s_waitcnt lgkmcnt(0)')
    srd(a, 60, 40, 2048 * 448 * 2)
    for i in range(4): srd(a, 64 + 4 * i, 42 + 2 * i, 448 * 256 * 2)
    srd(a, 80, 50, 896); srd(a, 84, 52, 896); srd(a, 92, 54, 2048 * 896 * 2)
    a('v_lshlrev_b32 v5, 5, v1')
    a('v_sub_u32 v5, 2047, v5')
    a(f's_add_u32 s18, s17, {KT_O}')
    for k in range(33):
        a(f'v_subrev_u32 v6, {k}, v5')
        a('v_max_i32 v7, 0, v6')
        a('v_cvt_f32_u32 v7, v7')
        rne_bf16(a, 7, 8)
        a('v_lshrrev_b32 v8, 23, v7')
        a('v_subrev_u32 v8, 134, v8')
        a('v_max_i32 v8, 0, v8')
        a('v_cvt_u32_f32 v7, v7')
        a('v_lshrrev_b32 v7, v8, v7')
        a('v_lshl_add_u32 v7, v8, 8, v7')
        if k == 32:
            a('v_mov_b32 v8, 1280')
            a('v_cmp_gt_i32 vcc, 0, v6')
            a('v_cndmask_b32 v7, v7, v8, vcc')
        a(f'v_lshl_add_u32 v{200+k}, v7, 2, s18')
    a('v_mov_b32 v8, 0\nv_mov_b32 v9, 0')
    a('v_lshlrev_b32 v5, 3, v1')
    a('v_add_u32 v5, s17, v5')
    a('ds_write_b64 v5, v[8:9]')
    a('v_and_b32 v6, 15, v1')
    a('v_lshlrev_b32 v6, 3, v6')
    a('v_add_u32 v6, s17, v6')
    a(f'ds_write_b64 v6, v[8:9] offset:{CE_O + 4096}')
    a(f'ds_write_b64 v6, v[8:9] offset:{CO_O + 4096}')
    a('v_mov_b32 v6, s17')
    a(f'ds_write_b64 v6, v[8:9] offset:{KT_O + 5*KB}')

def s4d_item(a, P, item_s):
    L = lambda n: f'{P}_{n}'
    a(f's_lshl_b32 s19, {item_s}, 2')
    a('s_add_u32 s20, s19, s16')
    a(f's_lshl_b32 s21, {item_s}, 3')
    a('v_mul_u32_u24 v5, 3584, v0')
    a('v_mul_u32_u24 v141, 1792, v0')
    a('s_lshl_b32 s22, s20, 9')
    a('v_lshlrev_b32 v6, 3, v1')
    for i in range(4):
        a(f'buffer_load_dwordx2 v[{24+2*i}:{25+2*i}], v6, s[{64+4*i}:{67+4*i}], s22 offen')
    a('s_lshl_b32 s22, s20, 1')
    a('v_mov_b32 v7, 0')
    a('buffer_load_ushort v32, v7, s[80:83], s22 offen')
    a('buffer_load_ushort v33, v7, s[84:87], s22 offen')
    a('s_mov_b32 s24, 0x05040100\ns_mov_b32 s25, 0x07060302')
    a('s_barrier')
    a('s_waitcnt vmcnt(0)')
    a(f's_mov_b32 s26, {LOG2E}\ns_mov_b32 s27, {INV2PI}')
    a('v_lshlrev_b32 v32, 16, v32')
    a('v_lshlrev_b32 v33, 16, v33')
    a('v_mul_f32 v32, s26, v32')
    a('v_exp_f32 v32, v32')
    rne_bf16(a, 32, 34)
    a('v_lshlrev_b32 v37, 6, v1')
    a(f'v_add_u32 v37, s17, v37')
    for m in range(4):
        def unpack(dst, base):
            src = base + (m >> 1)
            if m & 1: a(f'v_and_b32 v{dst}, 0xffff0000, v{src}')
            else: a(f'v_lshlrev_b32 v{dst}, 16, v{src}')
        unpack(40, 24); unpack(41, 26); unpack(42, 28); unpack(43, 30)
        a('v_mul_f32 v40, s26, v40')
        a('v_exp_f32 v40, v40')
        rne_bf16(a, 40, 34)
        a('v_mul_f32 v40, v40, v32')
        a('v_mul_f32 v40, s26, v40')
        a('v_sub_f32 v40, 0, v40')
        a('v_mul_f32 v41, v41, v32')
        a('v_mul_f32 v41, s27, v41')
        a('v_mul_f32 v42, v42, v32')
        a('v_mul_f32 v43, v43, v32')
        a('v_add_f32 v42, v42, v42')
        a('v_add_f32 v43, v43, v43')
        a(f'ds_write_b128 v37, v[40:43] offset:{PR_O + 16*m}')
    a('v_cvt_f32_u32 v44, v4')
    a('v_mul_f32 v45, 16.0, v44') if False else (a('v_lshlrev_b32 v45, 4, v4'), a('v_cvt_f32_u32 v45, v45'))
    a('v_lshlrev_b32 v46, 4, v3')
    a(f'v_add_u32 v46, s17, v46')
    DK = 48
    for r in range(DK, DK + 20): a(f'v_mov_b32 v{r}, 0')
    a('s_waitcnt lgkmcnt(0)')
    a(f'ds_read_b128 v[68:71], v46 offset:{PR_O}')
    for k in range(8):
        grp, r = k >> 2, k & 3; b = 8 + 8 * grp + 2 * r
        a(f's_add_u32 s22, s21, {grp*1024*896}')
        a(f'buffer_load_dwordx2 v[{b}:{b+1}], v5, s[60:63], s22 offen offset:{r*896}')
        a('s_mov_b32 s28, 0')
        a(f's_call_b64 s[30:31], {L("kl")}')
        if OTOUCH:
            a(f's_add_u32 s22, s21, {k*256*1792}')
            a(f'buffer_load_dword v140, v141, s[92:95], s22 offen')
        a('s_mov_b32 s28, 0')
        a(f's_call_b64 s[30:31], {L("kl")}')
    a(f's_branch {L("kd")}')
    a.label(L('kl'))
    a('s_waitcnt lgkmcnt(0)')
    for r in range(4): a(f'v_mov_b32 v{72+r}, v{68+r}')
    a('v_add_u32 v46, 64, v46')
    a(f'ds_read_b128 v[68:71], v46 offset:{PR_O}')
    A2, BR, CR, CI = 72, 73, 74, 75
    Er, Ei, Yr, Yi = 76, 77, 78, 79
    for (pr, pi, pos) in ((Er, Ei, 45), (Yr, Yi, 44)):
        a(f'v_mul_f32 v80, v{A2}, v{pos}')
        a(f'v_mul_f32 v81, v{BR}, v{pos}')
        a('v_exp_f32 v80, v80')
        a('v_fract_f32 v81, v81')
        a(f'v_cos_f32 v{pr}, v81')
        a(f'v_sin_f32 v{pi}, v81')
        a(f'v_mul_f32 v{pr}, v{pr}, v80')
        a(f'v_mul_f32 v{pi}, v{pi}, v80')
    for rho in range(5):
        xr, xi = 82 + 2 * (rho & 1), 83 + 2 * (rho & 1)
        d = DK + 4 * rho
        a(f'v_mul_f32 v{xr}, v{CR}, v{Er}')
        if rho < 4: a(f'v_mul_f32 v{xi}, v{CR}, v{Ei}')
        a(f'v_fma_f32 v{xr}, -v{CI}, v{Ei}, v{xr}')
        if rho < 4: a(f'v_fma_f32 v{xi}, -v{CI}, v{Er}, -v{xi}')
        if rho < 4:
            nEr, nEi = (86, 87) if Er == 76 else (76, 77)
            a(f'v_mul_f32 v{nEr}, v{Er}, v{Er}')
            a(f'v_mul_f32 v{nEi}, v{Er}, v{Ei}')
            a(f'v_fma_f32 v{nEr}, -v{Ei}, v{Ei}, v{nEr}')
            a(f'v_add_f32 v{nEi}, v{nEi}, v{nEi}')
        a(f'v_mfma_f32_16x16x4_f32 v[{d}:{d+3}], v{xr}, v{Yr}, v[{d}:{d+3}]')
        if rho < 3:
            nYr, nYi = (88, 89) if Yr == 78 else (78, 79)
            a(f'v_mul_f32 v{nYr}, v{Yr}, v{Yr}')
            a(f'v_mul_f32 v{nYi}, v{Yr}, v{Yi}')
            a(f'v_fma_f32 v{nYr}, -v{Yi}, v{Yi}, v{nYr}')
            a(f'v_add_f32 v{nYi}, v{nYi}, v{nYi}')
        if rho < 4:
            a(f'v_mfma_f32_16x16x4_f32 v[{d}:{d+3}], v{xi}, v{Yi}, v[{d}:{d+3}]')
            Er, Ei = nEr, nEi
        if rho < 3: Yr, Yi = nYr, nYi
    a('s_add_u32 s28, s28, 1')
    a('s_cmp_lt_u32 s28, 4')
    a(f's_cbranch_scc1 {L("kl")}')
    a('s_setpc_b64 s[30:31]')
    a.label(L('kd'))
    a.nop(20)
    a('s_waitcnt vmcnt(0)')
    a('v_lshlrev_b32 v6, 3, v0')
    for grp in range(2):
        b = 8 + 8 * grp
        for ch in range(4):
            sel = 's24' if ch % 2 == 0 else 's25'; dw = ch >> 1
            a(f'v_perm_b32 v34, v{b+2+dw}, v{b+dw}, {sel}')
            a(f'v_perm_b32 v35, v{b+6+dw}, v{b+4+dw}, {sel}')
            a(f'v_add_u32 v36, {ch*WV + U_O + grp*2048}, v6')
            a('ds_write_b64 v36, v[34:35]')
    a('v_lshlrev_b32 v46, 8, v3')
    a('v_lshl_add_u32 v46, v4, 2, v46')
    a('v_add_u32 v46, s17, v46')
    for rho in range(5):
        for r in range(4):
            a(f'ds_write_b32 v46, v{DK+4*rho+r} offset:{KT_O + rho*1024 + r*64}')
        a('s_waitcnt lgkmcnt(8)')
    a('s_waitcnt lgkmcnt(0)')
    G0 = 48
    for k in range(33):
        a(f'ds_read_b32 v{G0+k}, v{200+k}')
        if k % 8 == 7: a('s_waitcnt lgkmcnt(4)')
    a('s_waitcnt lgkmcnt(0)')
    a('v_lshlrev_b32 v46, 6, v1')
    a('v_add_u32 v46, s17, v46')
    for c in range(4):
        for k in range(4):
            i = 8 * c + 2 * k
            a(f'v_cvt_pk_bf16_f32 v{84+k}, v{G0+i}, v{G0+i+1}')
            a(f'v_cvt_pk_bf16_f32 v{88+k}, v{G0+i+1}, v{G0+i+2}')
        a(f'ds_write_b128 v46, v[84:87] offset:{CE_O + 16*c}')
        a(f'ds_write_b128 v46, v[88:91] offset:{CO_O + 16*c}')
        a('s_waitcnt lgkmcnt(0)')
    a('s_barrier')
    a('v_lshrrev_b32 v47, 1, v3')
    a('v_sub_u32 v46, v4, v47')
    a('v_add_u32 v46, 1, v46')
    a('v_lshlrev_b32 v46, 5, v46')
    a('v_and_b32 v48, 1, v3')
    a('v_lshl_add_u32 v46, v48, 4, v46')
    a('v_add_u32 v46, s17, v46')
    for f in range(64):
        a(f'ds_read_b128 a[{4*f}:{4*f+3}], v46 offset:{U_O + (2*f - 15)*32}')
        if f % 8 == 7: a('s_waitcnt lgkmcnt(4)')
    a('v_lshlrev_b32 v49, 4, v47')
    a('v_add_u32 v49, v49, v4')
    a('v_sub_u32 v49, 2047, v49')
    a('v_lshl_add_u32 v49, v48, 3, v49')
    a('v_and_b32 v50, 1, v49')
    a('v_lshrrev_b32 v49, 1, v49')
    a('v_lshlrev_b32 v49, 2, v49')
    a(f'v_mul_u32_u24 v50, {CO_O - CE_O}, v50')
    a('v_add3_u32 v49, v49, v50, s17')
    a(f'v_add_u32 v49, {CE_O}, v49')
    NB = 5
    for b in range(NB): a(f'v_subrev_u32 v{52+b}, {64*(15*b+14)}, v49')
    Y = 60; AF = 92; NA = 4
    def ard(Dd):
        b, o = divmod(Dd, 15); off = (14 - o) * 16; r = AF + 4 * (Dd % NA)
        a(f'ds_read2_b32 v[{r}:{r+1}], v{52+b} offset0:{off} offset1:{off+1}')
        a(f'ds_read2_b32 v[{r+2}:{r+3}], v{52+b} offset0:{off+2} offset1:{off+3}')
    a('s_waitcnt lgkmcnt(0)')
    for Dd in range(3): ard(Dd)
    for Dd in range(64):
        if Dd + 3 < 64: ard(Dd + 3)
        a(f's_waitcnt lgkmcnt({2*min(3, 63-Dd)})')
        r = AF + 4 * (Dd % NA)
        for n0 in range(8):
            phi = 16 * n0 - 2 * Dd
            if phi < -14: continue
            f = (phi + 14) // 2; d = Y + 4 * n0
            c = '0' if Dd == 0 else f'v[{d}:{d+3}]'
            a(f'v_mfma_f32_16x16x32_bf16 v[{d}:{d+3}], v[{r}:{r+3}], a[{4*f}:{4*f+3}], {c}')
    a('v_lshlrev_b32 v46, 5, v4')
    a('v_lshl_add_u32 v46, v3, 3, v46')
    a('v_add_u32 v46, s17, v46')
    for n0 in range(8): a(f'ds_read_b64 v[{108+2*n0}:{109+2*n0}], v46 offset:{U_O + n0*512}')
    a('s_waitcnt lgkmcnt(0)')
    for n0 in range(8):
        d = Y + 4 * n0; ub = 108 + 2 * n0
        a(f'v_lshlrev_b32 v124, 16, v{ub}')
        a(f'v_and_b32 v125, 0xffff0000, v{ub}')
        a(f'v_lshlrev_b32 v126, 16, v{ub+1}')
        a(f'v_and_b32 v127, 0xffff0000, v{ub+1}')
        for r in range(4): a(f'v_mul_f32 v{124+r}, v{124+r}, v33')
        a('v_cvt_pk_bf16_f32 v128, v124, v125')
        a('v_cvt_pk_bf16_f32 v129, v126, v127')
        a(f'v_cvt_pk_bf16_f32 v130, v{d}, v{d+1}')
        a(f'v_cvt_pk_bf16_f32 v131, v{d+2}, v{d+3}')
        for k in range(2):
            a(f'v_lshlrev_b32 v{124+2*k}, 16, v{128+k}')
            a(f'v_and_b32 v{125+2*k}, 0xffff0000, v{128+k}')
            a(f'v_lshlrev_b32 v{132+2*k}, 16, v{130+k}')
            a(f'v_and_b32 v{133+2*k}, 0xffff0000, v{130+k}')
        for r in range(4): a(f'v_add_f32 v{124+r}, v{124+r}, v{132+r}')
        a(f'v_cvt_pk_bf16_f32 v{ub}, v124, v125')
        a(f'v_cvt_pk_bf16_f32 v{ub+1}, v126, v127')
        a(f'ds_write_b64 v46, v[{ub}:{ub+1}] offset:{U_O + n0*512}')
    a('s_waitcnt lgkmcnt(0)')
    a('s_barrier')
    a('v_lshlrev_b32 v6, 3, v0')
    a('v_lshlrev_b32 v5, 5, v0' if STAGE else 'v_mul_u32_u24 v5, 7168, v0')
    for grp in range(2):
        for ch in range(4):
            a(f'v_add_u32 v36, {ch*WV + U_O + grp*2048}, v6')
            a(f'ds_read_b64 v[{8+2*ch}:{9+2*ch}], v36')
        a('s_waitcnt lgkmcnt(0)')
        a(f's_add_u32 s22, s21, {grp*1024*1792}')
        a(f's_add_u32 s23, s22, 3584')
        for r in range(4):
            sel = 's24' if r % 2 == 0 else 's25'; dw = r >> 1
            o = 16 + 8 * grp + 2 * r
            a(f'v_perm_b32 v{o}, v{10+dw}, v{8+dw}, {sel}')
            a(f'v_perm_b32 v{o+1}, v{14+dw}, v{12+dw}, {sel}')
            if STAGE:
                if r == 0:
                    a('s_lshl_b32 s22, s21, 11')
                    a(f's_add_u32 s22, s22, {YS_OFF + grp*8192}')
                if r & 1: a(f'buffer_store_dwordx4 v[{o-2}:{o+1}], v5, s[8:11], s22 offen offset:{(r >> 1)*16} sc1')
            elif not NOST: a(f'buffer_store_dwordx2 v[{o}:{o+1}], v5, s[92:95], {"s22" if r < 2 else "s23"} offen offset:{(r & 1)*1792}')
    if STAGE:
        a('s_waitcnt vmcnt(0)')
        a('s_barrier')
        a('s_cmp_lg_u32 s16, 0')
        a(f's_cbranch_scc1 {L("nc")}')
        a('v_mov_b32 v5, 1')
        a(f's_mov_b32 s22, {CNT_OFF + S4C}')
        a('s_mov_b64 exec, 1')
        a('buffer_atomic_add v5, off, s[8:11], s22')
        a('s_mov_b64 exec, -1')
        a.label(L('nc'))

def s4d_copy(a, seg_s):
    RS = 912
    a('v_lshlrev_b32 v5, 14, v3')
    a('v_lshl_add_u32 v5, v4, 4, v5')
    a(f's_mul_i32 s20, s16, {28*16384}')
    a(f's_lshl_b32 s21, {seg_s}, 8')
    a('s_add_u32 s20, s20, s21')
    a(f's_add_u32 s20, s20, {YS_OFF}')
    for k in range(7):
        a(f'buffer_load_dwordx4 v[{8+4*k}:{11+4*k}], v5, s[8:11], s20 offen sc1')
        a('s_add_u32 s20, s20, 65536')
    a(f'v_mul_u32_u24 v6, {2*RS}, v4')
    a('v_lshl_add_u32 v6, v3, 3, v6')
    a('s_mul_i32 s20, s16, 224')
    a('v_add_u32 v6, s20, v6')
    a(f's_movk_i32 s22, {RS}')
    assert all((c * 18725) >> 20 == c // 56 for c in range(1792))
    for k in range(7):
        a(f'v_add_u32 v36, {256*k}, v0')
        a('v_mul_u32_u24 v37, 18725, v36')
        a('v_lshrrev_b32 v37, 20, v37')
        a('v_mul_u32_u24 v38, 56, v37')
        a('v_sub_u32 v36, v36, v38')
        a('v_lshlrev_b32 v36, 4, v36')
        a(f'v_mad_u32_u24 v{40+k}, v37, s22, v36')
        a('v_mul_u32_u24 v37, 1792, v37')
        a(f'v_add_u32 v{48+k}, v37, v36')
    for k in range(7):
        a(f's_waitcnt vmcnt({6-k})')
        a(f'ds_write_b64 v6, v[{8+4*k}:{9+4*k}] offset:{32*k}')
        a(f'ds_write_b64 v6, v[{10+4*k}:{11+4*k}] offset:{32*k + RS}')
    a('s_waitcnt lgkmcnt(0)')
    a('s_barrier')
    a(f's_mul_i32 s20, {seg_s}, {32*1792}')
    for k in range(7): a(f'ds_read_b128 v[{8+4*k}:{11+4*k}], v{40+k}')
    for k in range(7):
        a(f's_waitcnt lgkmcnt({6-k})')
        a(f'buffer_store_dwordx4 v[{8+4*k}:{11+4*k}], v{48+k}, s[92:95], s20 offen')

def gen_s4d(name='s4d_kernel'):
    a = Asm(); a.raw(kernel_header(name))
    a('s_cmp_ge_u32 s2, 112')
    a('s_cbranch_scc1 s4_end')
    s4d_setup(a)
    a('s_mov_b32 s3, s2')
    s4d_item(a, 's4', 's3')
    a.label('s4_end')
    a('s_endpgm')
    return a
def kernels():
    return {'s4d': lambda: (gen_s4d(), 's4d_kernel', f'grid=(112,1,1) block=(256,1,1) lds={4*WV}', (512, 256))}
```

```python
from asmlib import *
from layout import *
import prep
WS = 's[8:11]'
SIGMA = prep.SIGMA
W_BYTES = prep.W_BYTES
NR = 8
NONCE = 's[88:89]'
NS = 9
APRE = 4
DSP = 2
VPRE = 5
XLATE = 1
PF_S = 3
PF_V = 7

BEV = 0
def EV(a, tag):
    import chain as C
    if BEV: C.evlog(a, tag, 10)
def srd(a, d, lo, nbytes): prep.srd(a, d, lo, lo + 1, nbytes)

class VQ:
    def __init__(self): self.q = []
    def add(self, tag, n=1): self.q += [tag] * n
    def wait(self, tag):
        last = max(i for i, t in enumerate(self.q) if t == tag)
        n = len(self.q) - 1 - last
        self.q = self.q[last + 1:]
        return n

class AComp:
    FR = 120
    ACC = 32
    RING = 16; PF = 3; NG = 4
    RA = 8
    SV = 100
    def __init__(self, a, P):
        self.a = a; self.P = P; self.vq = VQ(); self.nxt = 0; self.mid = None
    def dma_ops(self):
        n = self.nxt; self.nxt += 1
        o = [[f'buffer_load_dwordx4 v{4+i}, s[56:59], s22 offen offset:{i*1024} lds', ('vq', ('p', n))] for i in range(4)]
        o[0] = [f's_add_u32 s22, s27, {n << 18}', f's_add_u32 m0, s25, {(n % NS)*16384}'] + o[0]
        return o
    def dma(self):
        for g in self.dma_ops():
            for x in g:
                if isinstance(x, tuple): self.vq.add(x[1])
                else: self.a(x)
    def issue(self):
        a = self.a; SV = self.SV
        srd(a, 60, 42, W_BYTES)
        a('v_lshrrev_b32 v24, 5, v1')
        a('v_and_b32 v25, 31, v1')
        a('s_lshl_b32 s26, s17, 9')
        a('s_lshl_b32 s25, s16, 12')
        a('v_xor_b32 v26, v25, v24')
        a('v_lshlrev_b32 v26, 4, v26')
        a('v_lshl_add_u32 v26, v24, 13, v26')
        for i in range(4):
            a(f'v_xor_b32 v{SV+i}, {32*(i >> 1)}, v26')
            if i: a(f'v_add_u32 v{SV+i}, {i*(16384-1024)}, v{SV+i}')
        a('s_lshl_b32 s23, s16, 19')
        a('s_add_u32 s23, s23, s26')
        def stage(grp):
            if grp and grp % 2 == 0:
                for i in range(4): a(f'v_xor_b32 v{SV+i}, {64*((grp >> 1) ^ ((grp >> 1) - 1))}, v{SV+i}')
            a(f's_add_u32 m0, s25, {(grp + 1)*16384}')
            if grp: a(f's_add_u32 s23, s23, {8 << 13}')
            for i in range(4): a(f'buffer_load_dwordx4 v{SV+i}, s[60:63], s23 offen offset:{i*1024} lds')
            self.vq.add('k', 4)
        for grp in range(8): stage(grp)
        srd(a, 56, 40, W_BYTES)
        a('s_lshl_b32 s21, s16, 16')
        a('s_add_u32 s27, s26, s21')
        a('s_lshr_b32 s20, s16, 1')
        a('s_lshl_b32 s20, s20, 6')
        a('v_xor_b32 v26, s20, v26')
        for i in range(4):
            a(f'v_xor_b32 v{4+i}, {128*(i >> 1) + 32*(i & 1)}, v26')
            if i: a(f'v_add_u32 v{4+i}, {i*(16384-1024)}, v{4+i}')
        self.dma()
    def setup(self):
        a = self.a; SV = self.SV
        a('v_and_b32 v26, 15, v25')
        a('v_xor_b32 v27, v26, v24')
        a('v_lshlrev_b32 v27, 4, v27')
        a('v_bfe_u32 v28, v25, 2, 1')
        a('v_lshlrev_b32 v28, 4, v28')
        a('v_lshrrev_b32 v29, 3, v25')
        a('v_lshl_add_u32 v28, v29, 2, v28')
        a('v_and_b32 v29, 3, v25')
        a('v_add_u32 v28, v28, v29')
        a('v_lshl_add_u32 v28, v28, 9, v27')
        a('v_lshrrev_b32 v29, 2, v26')
        a('v_lshlrev_b32 v29, 15, v29')
        a('v_bfe_u32 v30, v26, 1, 1')
        a('v_lshl_add_u32 v29, v30, 11, v29')
        a('v_lshrrev_b32 v30, 4, v25')
        a('v_lshl_add_u32 v29, v30, 10, v29')
        a('v_and_b32 v31, 1, v26')
        a('v_lshl_add_u32 v29, v31, 9, v29')
        a('v_add_u32 v29, v29, v27')
        a('v_add_u32 v29, s25, v29')
        for k in range(8):
            a(f'v_xor_b32 v{self.RA+k}, {32*k}, v28')
            a(f'v_xor_b32 v{SV+4+k}, {32*k}, v29')
        a(f's_mov_b32 s52, {SIGMA}')
    def fetch(self):
        a = self.a
        a(f's_waitcnt vmcnt({self.vq.wait("k")})')
        for D in range(2):
            for ks in range(16):
                r = self.FR + 64 * D + 4 * ks
                a(f'ds_read_b128 v[{r}:{r+3}], v{self.SV + 4 + (ks & 7)} offset:{(1 + D)*16384 + (ks >> 3)*256}')
                if ks & 7 == 7: a('s_waitcnt lgkmcnt(4)')
        a('s_waitcnt lgkmcnt(0)')
        while self.nxt < APRE: self.dma()
    def epi(self, p, dest):
        o = []
        for D in range(2):
            b0 = self.ACC + 32 * (p & 1) + 16 * D
            for b in (b0, b0 + 8):
                for k in range(4):
                    o += [f'v_mul_f32 v{b+2*k}, s52, v{b+2*k}', f'v_mul_f32 v{b+2*k+1}, s52, v{b+2*k+1}', f'v_cvt_pk_bf16_f32 v{b+k}, v{b+2*k}, v{b+2*k+1}']
            o += [f'v_permlane16_swap_b32 v{b0+k}, v{b0+8+k}' for k in range(4)]
            for u in range(2):
                o += [f'v_accvgpr_write_b32 a{dest(2*D+u, p) - 256 + k}, v{b0+8*u+k}' for k in range(4)]
        return o
    def run(self, dest, extra=None):
        a = self.a; vq = self.vq; PF = self.PF
        hi = [0] * 8
        def rd(i):
            p, ks = i >> 4, i & 15; r = self.RING + 4 * (i % self.NG); k = ks & 7; sl = p % NS
            if hi[k] != sl >> 2:
                a(f'v_xor_b32 v{self.RA+k}, {(hi[k] ^ (sl >> 2)) << 16}, v{self.RA+k}'); hi[k] = sl >> 2
            a(f'ds_read_b128 v[{r}:{r+3}], v{self.RA+k} offset:{(sl & 3)*16384 + (ks >> 3)*256}')
        def sync(p):
            if ('p', p) in vq.q: a(f's_waitcnt vmcnt({vq.wait(("p", p))})')
            a('s_barrier')
        sync(1)
        for i in range(PF): rd(i)
        side = []; mem = []
        for i in range(14 * 16):
            p, ks = i >> 4, i & 15
            if ks == 0:
                if p & 1:
                    assert not mem
                    sync(min(p + 2, 13))
                    if self.mid: self.mid(p)
                    while self.nxt < min(14, p + NS): mem += self.dma_ops()
                if p == 0:
                    while self.nxt < min(NS, APRE + 4): mem += self.dma_ops()
                if extra: mem += extra(p)
            if i + PF < 14 * 16: rd(i + PF)
            a(f's_waitcnt lgkmcnt({min(PF, 14 * 16 - 1 - i)})')
            r = self.RING + 4 * (i % self.NG)
            for D in range(2):
                d = self.ACC + 32 * (p & 1) + 16 * D; b = self.FR + 64 * D + 4 * ks
                a(f'v_mfma_f32_32x32x16_bf16 v[{d}:{d+15}], v[{r}:{r+3}], v[{b}:{b+3}], ' + ('0' if ks == 0 else f'v[{d}:{d+15}]'))
                if D == 0 and mem:
                    for x in mem.pop(0):
                        if isinstance(x, tuple): vq.add(x[1])
                        else: a(x)
                if ks >= 1:
                    for _ in range(3 - D):
                        if side: a(side.pop(0))
            if ks == 15:
                assert not side
                side = self.epi(p, dest)
        assert not mem
        for x in side: a(x)

def flag_store(a, soff_s, R, stride, t=24):
    a(f'v_mul_u32_u24 v{t+2}, {stride}, v1')
    a(f'v_mov_b32 v{t}, s88\nv_mov_b32 v{t+1}, s89')
    a(f's_mov_b64 exec, {(1 << R) - 1}')
    a(f'buffer_store_dwordx2 v[{t}:{t+1}], v{t+2}, {WS}, {soff_s} offen sc1')
    a('s_mov_b64 exec, -1')

def flag_poll(a, P, t, loads, abort, limit, sleep=4, on_spin=None, issued=False):
    a('s_mov_b32 s30, 0')
    if issued: a(f's_branch {P}_w')
    a.label(P)
    for i, (va, so) in enumerate(loads):
        a(f'buffer_load_dwordx4 v[{t+4*i}:{t+4*i+3}], v{va}, {WS}, {so} offen sc1')
    if issued: a.label(P + '_w')
    a('s_waitcnt vmcnt(0)')
    for i in range(2 * len(loads)):
        a(f'v_cmp_ne_u64 vcc, {NONCE}, v[{t+2*i}:{t+2*i+1}]')
        a(f's_cbranch_vccnz {P}_no')
    a(f's_branch {P}_ok')
    a.label(P + '_no')
    a(f's_sleep {sleep}')
    a('s_add_u32 s30, s30, 1')
    if on_spin: on_spin()
    a(f's_cmp_lt_u32 s30, {limit}')
    a(f's_cbranch_scc1 {P}')
    a(f's_branch {abort}')
    a.label(P + '_ok')

def bjob_decode(a):
    a('s_mul_i32 s17, s18, 4682')
    a('s_lshr_b32 s17, s17, 16')
    assert all((i * 4682) >> 16 == i // 14 for i in range(224))
    a('s_mul_i32 s20, s17, 14')
    a('s_sub_u32 s19, s18, s20')
    a('s_cmp_ge_u32 s19, 7')
    a('s_cselect_b32 s31, 7, 0')
    a('s_sub_u32 s19, s19, s31')

def bjob_issue(a, vq, mat=1, P='bj', hook=None):
    srd(a, 60, 40 + 4 * mat, W_BYTES); srd(a, 56, 42 + 4 * mat, W_BYTES)
    a('s_lshl_b32 s30, s16, 13')
    if mat:
        a('s_mul_i32 s27, s17, 229376')
        a('s_lshl_b32 s29, s19, 7')
        a('s_add_u32 s27, s27, s29')
        a('v_lshrrev_b32 v7, 3, v1')
        a('v_and_b32 v8, 7, v1')
        a('v_and_b32 v9, 2, v7')
        a('v_xor_b32 v8, v8, v9')
        a('s_lshl_b32 s29, s16, 6')
        a('v_add_u32 v7, s29, v7')
        a('v_mul_u32_u24 v7, 896, v7')
        a('v_lshl_add_u32 v7, v8, 4, v7')
        a('v_xor_b32 v8, 64, v7')
        for i in range(8):
            if i % 4 == 0: a(f's_add_u32 m0, s30, {i*1024}')
            a(f's_add_u32 s22, s27, {i*8*896 - (i & 3)*1024}')
            a(f'buffer_load_dwordx4 v{7 + (i & 1)}, s[56:59], s22 offen offset:{(i & 3)*1024} lds')
    else:
        a('s_lshl_b32 s27, s19, 19')
        a('s_lshl_b32 s29, s16, 17')
        a('s_add_u32 s27, s27, s29')
        a('s_lshl_b32 s29, s17, 9')
        a('s_add_u32 s27, s27, s29')
        a('v_lshrrev_b32 v5, 5, v1')
        a('v_and_b32 v6, 31, v1')
        a('v_xor_b32 v6, v6, v5')
        a('v_lshlrev_b32 v6, 4, v6')
        a('v_lshl_add_u32 v6, v5, 13, v6')
        for i in range(8):
            if i % 4 == 0: a(f's_add_u32 m0, s30, {i*1024}')
            a(f's_add_u32 s22, s27, {i*16384 - (i & 3)*1024}')
            a(f'v_xor_b32 v7, {32*i}, v6')
            a(f'buffer_load_dwordx4 v7, s[56:59], s22 offen offset:{(i & 3)*1024} lds')
    vq.add('stat', 8)
    if hook: hook()
    a('v_lshrrev_b32 v5, 5, v1')
    a('v_and_b32 v6, 31, v1')
    a('s_lshl_b32 s25, s16, 15')
    a('s_add_u32 s25, s25, 32768')
    a('s_lshl_b32 s26, s17, 9')
    for k, sp in ((0, 's28'), (4, 's29')):
        a(f's_add_u32 {sp}, s19, s16')
        if k: a(f's_add_u32 {sp}, {sp}, {k}')
        a(f's_cmp_ge_u32 {sp}, 7')
        a('s_cselect_b32 s20, 7, 0')
        a(f's_sub_u32 {sp}, {sp}, s20')
        a(f's_add_u32 {sp}, {sp}, s31')
    a('s_lshl_b32 s32, s28, 18\ns_add_u32 s32, s32, s26')
    a('s_lshl_b32 s33, s29, 18\ns_add_u32 s33, s33, s26')
    a('v_xor_b32 v8, v6, v5')
    a('v_lshlrev_b32 v8, 4, v8')
    a('v_lshl_add_u32 v8, v5, 13, v8')
    for i in range(4):
        a(f'v_xor_b32 v{12+i}, {32*(i & 1)}, v8')
        if i: a(f'v_add_u32 v{12+i}, {i*(16384-1024)}, v{12+i}')
    for j in range(4):
        a(f's_add_u32 s20, s16, {j}')
        a('s_and_b32 s20, s20, 3')
        a(f's_mul_i32 s21, s20, {65536 + 64}')
        a('s_lshl_b32 s20, s20, 12')
        a(f's_add_u32 s{48 + j}, s20, s25')
        a(f's_mov_b32 m0, s{48 + j}')
        for i in range(4):
            a(f'v_xor_b32 v{16+4*j+i}, s21, v{12+i}')
            a(f'buffer_load_dwordx4 v{16+4*j+i}, s[60:63], s32 offen offset:{i*1024} lds')
    vq.add('p0', 16)

def bjob_x(a, vq, it='s18', mem0=True):
    srd(a, 52, 36, 2048 * 448 * 2)
    a(f's_lshl_b32 s20, {it}, 8')
    a('v_add_u32 v95, s20, v0')
    M448 = (1 << 32) // 448 + 1
    assert all((u * M448) >> 32 == u // 448 for u in range(57344))
    a(f's_mov_b32 s21, {M448}')
    a('v_mul_hi_u32 v6, v95, s21')
    a('v_mul_u32_u24 v7, 448, v6')
    a('v_sub_u32 v7, v95, v7')
    a('v_lshrrev_b32 v8, 4, v7')
    a('v_and_b32 v7, 15, v7')
    a('v_lshl_add_u32 v9, v6, 4, v7')
    a('v_mul_u32_u24 v9, 896, v9')
    a('v_lshl_add_u32 v9, v8, 5, v9')
    a('buffer_load_dwordx4 v[84:87], v9, s[52:55], 0 offen')
    a('buffer_load_dwordx4 v[88:91], v9, s[52:55], 0 offen offset:16')
    vq.add('x', 2)
    a(f'v_mul_u32_u24 v6, {14*KB}, v6')
    a('v_lshl_add_u32 v6, v7, 4, v6')
    a('v_lshl_add_u32 v92, v8, 9, v6')
    a('v_lshrrev_b32 v7, 2, v8')
    a('v_lshl_add_u32 v6, v7, 11, v6')
    a('v_and_b32 v7, 3, v8')
    a('v_lshl_add_u32 v93, v7, 8, v6')
    if not mem0: return
    srd(a, 72, 38, 8 * 448 * 2)
    a('v_min_u32 v6, 223, v0')
    a('v_lshrrev_b32 v7, 3, v6')
    a('v_and_b32 v6, 7, v6')
    a('v_mul_u32_u24 v9, 896, v6')
    a('v_lshl_add_u32 v9, v7, 5, v9')
    a('buffer_load_dwordx4 v[36:39], v9, s[72:75], 0 offen')
    a('buffer_load_dwordx4 v[40:43], v9, s[72:75], 0 offen offset:16')
    vq.add('x', 2)
    a('v_lshlrev_b32 v7, 8, v7')
    a('v_lshl_add_u32 v94, v6, 4, v7')

def a1_touch(a, vq, mode=1):
    a('s_cmp_lt_u32 s16, 2')
    a('s_cselect_b32 s20, s40, s42')
    a('s_cselect_b32 s21, s41, s43')
    srd(a, 72, 20, W_BYTES)
    a('s_add_u32 s20, s19, s31')
    a('s_lshl_b32 s21, s20, 5')
    a('s_lshl_b32 s22, s16, 4')
    a('s_add_u32 s21, s21, s22')
    if mode == 1:
        a('s_mul_i32 s20, s20, 14')
        a('s_add_u32 s20, s20, 250')
    elif mode == 2: a('s_sub_u32 s20, s21, 32')
    else:
        a('s_mul_i32 s20, s20, 18')
        a('s_lshr_b32 s22, s22, 1')
        a('s_add_u32 s20, s20, s22')
        a('s_sub_u32 s20, s20, 16')
    a('s_cmp_lt_u32 s16, 2')
    a('s_cselect_b32 s20, s21, s20')
    a('s_lshl_b32 s20, s20, 13')
    a('s_add_u32 s20, s20, s26')
    a('v_lshlrev_b32 v6, 13, v4')
    a('v_lshl_add_u32 v6, v3, 7, v6')
    a('buffer_load_dword v51, v6, s[72:75], s20 offen')
    vq.add('t')

def wait3(a, n, extra=''):
    l = a.newlabel('w3')
    a(f's_waitcnt vmcnt({n}){extra}')
    a('s_cmp_lg_u32 s16, 3')
    a(f's_cbranch_scc1 {l}')
    a(f's_waitcnt vmcnt({n-16})')
    a.label(l)

def _fills(a, vq):
    import tok
    PTL = (64 - tok.LASTP) * 2 * PT_B
    assert PT_OFF + 128 * PT_B == MEMG_OFF
    k = 0
    for base, n, zlo, zn in ((EXCH_OFF, NB1 * EXCH_B // 16, F2 // 16, 256), (MEMG_OFF - PTL, (PTL + 64 * 7 * KB + CNT_B) // 16, (PTL + 64 * 7 * KB) // 16, 1 << 20)):
        a(f's_mov_b32 s23, {base}')
        for j in range((n - 448 + 57343) // 57344):
            r = 52 + 4 * k
            a(f'v_add_u32 v6, {448 + 57344*j}, v95')
            if base != EXCH_OFF:
                a(f'v_cmp_gt_u32 vcc, {PTL // 16}, v95')
                a('v_cndmask_b32 v6, v6, v95, vcc')
            a(f'v_subrev_u32 v7, {zlo}, v6')
            a(f'v_mov_b32 v{r}, -1')
            a('v_mov_b32 v9, 0')
            a(f'v_cmp_gt_u32 vcc, {zn}, v7')
            a(f'v_cndmask_b32 v{r}, v{r}, v9, vcc')
            for q in range(1, 4): a(f'v_mov_b32 v{r+q}, v{r}')
            a('v_lshlrev_b32 v8, 4, v6')
            a('v_mov_b32 v9, 0x10000000')
            a(f'v_cmp_lt_u32 vcc, {n-1}, v6')
            a('v_cndmask_b32 v8, v8, v9, vcc')
            a(f'buffer_store_dwordx4 v[{r}:{r+3}], v8, {WS}, s23 offen sc1')
            vq.add('fill'); k += 1

def bjob_run(a, P, vq, mat=1, confirm=None, fs='s28', finish=True, late=None):
    BST = 128
    for q in range(4):
        if mat:
            a('s_lshl_b32 s30, s19, 6')
            a(f's_add_u32 s30, s30, {16*q}')
            a('v_add_u32 v8, s30, v4')
            a('v_mul_u32_u24 v10, 2341, v8')
            a('v_lshrrev_b32 v10, 16, v10')
            a('v_mul_u32_u24 v11, 28, v10')
            a('v_sub_u32 v32, v8, v11')
            a('s_mul_i32 s30, s17, 28')
            a('v_add_u32 v32, s30, v32')
            a('v_lshrrev_b32 v33, 4, v32')
            a('v_and_b32 v32, 15, v32')
            a(f's_mov_b32 s30, {CUW_B}')
            a('v_mul_lo_u32 v10, v10, s30')
            a(f'v_mul_u32_u24 v33, {TILE_B}, v33')
            a('v_add_u32 v10, v10, v33')
            a('v_lshl_add_u32 v10, v3, 8, v10')
            a('v_lshl_add_u32 v10, v32, 4, v10')
            a(f'v_add_u32 v{12+q}, {WF_B}, v10')
        else:
            if q == 0:
                a(f's_mul_i32 s30, s17, {CUW_B}')
                a(f's_mul_i32 s20, s19, {4*TILE_B}')
                a('s_add_u32 s30, s30, s20')
                a('v_add_u32 v12, s30, v2')
            else: a(f'v_add_u32 v{12+q}, {q*TILE_B}, v12')
            assert WF_A == 0
    a('v_lshrrev_b32 v7, 2, v4')
    a('v_lshlrev_b32 v7, 3, v7')
    a('v_and_b32 v8, 3, v4')
    a('v_add_u32 v7, v7, v8')
    a('v_xor_b32 v10, v3, v4')
    a('v_lshlrev_b32 v10, 4, v10')
    a('v_lshl_add_u32 v10, v7, 9, v10')
    a('v_add_u32 v10, s25, v10')
    for k3 in range(4): a(f'v_xor_b32 v{32+k3}, {64*k3}, v10')
    if mat:
        a('v_lshrrev_b32 v7, 2, v4')
        a('v_lshl_add_u32 v7, v3, 3, v7')
        a('v_lshlrev_b32 v7, 7, v7')
        a('v_and_b32 v8, 3, v4')
        a('v_lshl_add_u32 v7, v8, 3, v7')
        a('v_lshrrev_b32 v8, 3, v4')
        a('v_lshl_add_u32 v7, v8, 5, v7')
        a('v_and_b32 v8, 1, v3')
        a('v_lshl_add_u32 v7, v8, 6, v7')
    else:
        a('v_and_b32 v8, 2, v4')
        a('v_lshlrev_b32 v8, 1, v8')
        a('v_and_b32 v9, 1, v4')
        a('v_add_u32 v8, v8, v9')
        a('v_lshrrev_b32 v7, 2, v4')
        a('v_lshl_add_u32 v7, v7, 4, v8')
        a('v_xor_b32 v8, v8, v3')
        a('v_lshlrev_b32 v8, 4, v8')
        a('v_lshl_add_u32 v7, v7, 9, v8')
        a(f's_mov_b32 s24, {SIGMA}')
    a(f's_waitcnt vmcnt({vq.wait("stat")})')
    a('s_barrier')
    if mat: EV(a, 9101)
    for q in range(4):
        a('s_cmp_eq_u32 s16, 3')
        a(f's_cbranch_scc1 {P}_np{q}')
        a(f's_add_u32 m0, s{48 + q}, 16384')
        for i in range(4): a(f'buffer_load_dwordx4 v{16+4*q+i}, s[60:63], s33 offen offset:{i*1024} lds')
        vq.add('p1', 4)
        a.label(f'{P}_np{q}')
        if mat: a(f'v_xor_b32 v9, {32*q}, v7')
        for kk in range(8):
            r = BST + (q * 8 + kk) * 4
            if mat:
                for hf in range(2):
                    a(f'ds_read_b64_tr_b16 v[{r+2*hf}:{r+2*hf+1}], v9 offset:{(32*kk + 4*hf)*128}')
                if kk & 3 == 3: a('s_waitcnt lgkmcnt(6)')
            else:
                ro = 8 * (q >> 1) + 2 * (q & 1)
                if kk < 4: a(f'v_xor_b32 v{8+kk}, {((4*kk) ^ ro) << 4}, v7')
                a(f'ds_read_b128 v[{r}:{r+3}], v{8 + (kk & 3)} offset:{ro*512 + (kk >> 2)*256}')
                if kk == 7: a('s_waitcnt lgkmcnt(4)')
    ACC = 96; FR = 52
    if late: late()
    for it in range(2):
        if it == 1:
            a('s_cmp_eq_u32 s16, 3')
            a(f's_cbranch_scc1 {P}_w3')
        if it == 0: wait3(a, vq.wait('p0'), ' lgkmcnt(0)')
        else: a(f's_waitcnt vmcnt({vq.wait("p1")})')
        if mat: EV(a, 9102 + 2 * it)
        def rd(i): a(f'ds_read_b128 v[{FR+4*(i&3)}:{FR+4*(i&3)+3}], v{32 + (i & 3)} offset:{it*16384 + (i >> 3)*2048 + ((i & 7) >> 2)*256}')
        for i in range(3): rd(i)
        for i in range(16):
            tau, kk = i >> 3, i & 7
            if i + 3 < 16: rd(i + 3)
            a(f's_waitcnt lgkmcnt({min(3, 15 - i)})')
            for q in range(4):
                d = ACC + 16 * tau + 4 * q; b = BST + (q * 8 + kk) * 4
                c = '0' if kk == 0 else f'v[{d}:{d+3}]'
                a(f'v_mfma_f32_16x16x32_bf16 v[{d}:{d+3}], v[{FR+4*(i&3)}:{FR+4*(i&3)+3}], v[{b}:{b+3}], {c}')
        if mat: EV(a, 9103 + 2 * it)
        a(f's_lshl_b32 s30, {"s29" if it else "s28"}, 10')
        for q in range(4):
            o = 68 + 4 * q
            for tau in range(2):
                d = ACC + 16 * tau + 4 * q
                if not mat:
                    for k in range(4): a(f'v_mul_f32 v{d+k}, s24, v{d+k}')
                a(f'v_cvt_pk_bf16_f32 v{o+2*tau}, v{d}, v{d+1}')
                a(f'v_cvt_pk_bf16_f32 v{o+2*tau+1}, v{d+2}, v{d+3}')
            a(f'buffer_store_dwordx4 v[{o}:{o+3}], v{12+q}, {WS}, s30 offen sc1')
            vq.add('st')
    a.label(f'{P}_w3')
    a(f's_lshl_b32 {fs}, {"s19" if mat else "s17"}, {8 if mat else 7}')
    a(f's_lshl_b32 s21, {"s17" if mat else "s19"}, 4')
    a(f's_add_u32 {fs}, {fs}, s21')
    a('s_cmp_lg_u32 s31, 0')
    a('s_cselect_b32 s21, 8, 0')
    a(f's_add_u32 {fs}, {fs}, s21')
    a(f's_add_u32 {fs}, {fs}, {BF_OFF if mat else AF_OFF}')
    if finish:
        a('s_waitcnt vmcnt(0)')
        publish(a, fs, 1)

def publish(a, fs, R, t=24):
    l = a.newlabel('pub')
    a('s_barrier')
    a('s_cmp_lg_u32 s16, 0')
    a(f's_cbranch_scc1 {l}')
    flag_store(a, fs, R, 2048, t)
    a.label(l)

XI1 = 70; NB1 = 20
def init_stores(a, P, vq):
    a(f's_cmp_ge_u32 s18, {XI1}')
    a(f's_cbranch_scc1 {P}_nm')
    a(f's_mov_b32 s20, {XF_OFF}')
    a(f'buffer_store_dwordx4 v[84:87], v92, {WS}, s20 offen sc1')
    a(f'buffer_store_dwordx4 v[88:91], v92, {WS}, s20 offen offset:256 sc1')
    a('s_cmp_lg_u32 s18, 0')
    a(f's_cbranch_scc1 {P}_nm')
    for j in range(4):
        a(f'v_min_u32 v{104+j}, -2, v{36+2*j}')
        a(f'v_min_u32 v{108+j}, -2, v{37+2*j}')
    a(f's_mov_b32 s20, {EXCH_OFF}\ns_mov_b32 s21, {MEMG_OFF}')
    for sb in ('s20', 's21'):
        a(f'buffer_store_dwordx4 v[104:107], v94, {WS}, {sb} offen sc1')
        a(f'buffer_store_dwordx4 v[108:111], v94, {WS}, {sb} offen offset:128 sc1')
    a.label(f'{P}_nm')

def init2(a, it, zero_out):
    bjob_x(a, VQ(), it, False)
    n = (66 - NB1) * EXCH_B // 16
    for r in range(52, 56): a(f'v_mov_b32 v{r}, -1')
    a(f's_mov_b32 s23, {EXCH_OFF + NB1 * EXCH_B}')
    a('v_lshlrev_b32 v8, 4, v95')
    a(f'buffer_store_dwordx4 v[52:55], v8, {WS}, s23 offen sc1')
    a(f'v_add_u32 v8, {57344*16}, v8')
    a('v_mov_b32 v9, 0x10000000')
    a(f'v_cmp_lt_u32 vcc, {n - 57344 - 1}, v95')
    a('v_cndmask_b32 v8, v8, v9, vcc')
    a(f'buffer_store_dwordx4 v[52:55], v8, {WS}, s23 offen sc1')
    assert 57344 < n <= 2 * 57344
    if zero_out:
        for r in range(56, 60): a(f'v_mov_b32 v{r}, 0')
        a(f's_lshl_b32 s23, {it}, 14')
        a('v_lshlrev_b32 v8, 4, v0')
        for k in range(4):
            a(f'buffer_store_dwordx4 v[56:59], v8, s[92:95], s23 offen sc1')
            a('s_add_u32 s23, s23, 4096')
    a(f's_waitcnt vmcnt({5 if zero_out else 1})')
    for j in range(4):
        a(f'v_mov_b32 v{96+j}, v{84+2*j}')
        a(f'v_mov_b32 v{100+j}, v{85+2*j}')
    a(f's_mov_b32 s20, {XF_OFF}\ns_mov_b32 s21, {XM_OFF}')
    a(f'buffer_store_dwordx4 v[96:99], v93, {WS}, s21 offen sc1')
    a(f'buffer_store_dwordx4 v[100:103], v93, {WS}, s21 offen offset:1024 sc1')
    a(f's_cmp_lt_u32 {it}, {XI1}')
    a('s_cbranch_scc1 i2_nx')
    a(f'buffer_store_dwordx4 v[84:87], v92, {WS}, s20 offen sc1')
    a(f'buffer_store_dwordx4 v[88:91], v92, {WS}, s20 offen offset:256 sc1')
    a.label('i2_nx')
    a(f's_lshl_b32 s20, {it}, 3')
    a(f's_add_u32 s20, s20, {I2_OFF}')
    a('s_waitcnt vmcnt(0)')
    publish(a, 's20', 8)

def llc_warm(a, it='s18', out=True):
    a(f's_and_b32 s20, {it}, 3')
    a('s_lshl_b32 s20, s20, 3')
    a('s_add_u32 s20, s20, 8')
    a('s_cmp_eq_u32 s16, 0')
    a('s_cselect_b32 s20, 0, s20')
    a('s_cmp_ge_u32 s16, 2')
    a('s_cselect_b32 s20, 112, s20')
    a('s_load_dwordx2 s[72:73], s[0:1], s20')
    a(f's_lshr_b32 s21, {it}, 2')
    a('s_lshl_b32 s21, s21, 12')
    a('s_mov_b32 s74, 229376')
    a(f's_lshl_b32 s22, {it}, 13')
    a('s_cmp_eq_u32 s16, 0')
    a('s_cselect_b32 s21, s22, s21')
    a('s_cselect_b32 s74, 1835008, s74')
    a(f's_lshl_b32 s22, {it}, 1')
    a('s_add_u32 s22, s22, s16')
    a('s_sub_u32 s22, s22, 2')
    a('s_lshl_b32 s22, s22, 13')
    a('s_cmp_ge_u32 s16, 2')
    a('s_cselect_b32 s21, s22, s21')
    a(f's_cselect_b32 s74, {3670016 if out else 0}, s74')
    a('v_lshlrev_b32 v6, 3, v2')
    a('s_cmp_eq_u32 s16, 1')
    a('s_cselect_b32 exec_hi, 0, -1')
    a('s_waitcnt lgkmcnt(0)')
    a('s_and_b32 s73, s73, 0xffff\ns_mov_b32 s75, 0x20000')
    a('buffer_load_dword v7, v6, s[72:75], s21 offen')
    a('s_mov_b64 exec, -1')

def a3_issue(a, hook):
    EV(a, 9106)
    srd(a, 56, 40, W_BYTES); srd(a, 60, 42, W_BYTES)
    a('s_add_u32 s28, s31, s19')
    a('v_lshrrev_b32 v5, 5, v1')
    a('v_and_b32 v6, 31, v1')
    a('v_xor_b32 v6, v6, v5')
    a('v_lshlrev_b32 v6, 4, v6')
    a('v_lshl_add_u32 v6, v5, 13, v6')
    a('s_lshl_b32 s20, s16, 6')
    a('v_xor_b32 v7, s20, v6')
    a('s_lshl_b32 s22, s28, 18')
    a('s_lshl_b32 s21, s16, 16')
    a('s_add_u32 s22, s22, s21')
    a('s_add_u32 s22, s22, s26')
    a('s_lshl_b32 m0, s16, 12')
    for i in range(4):
        a(f'v_xor_b32 v8, {32*(i & 1)}, v7')
        if i: a(f'v_add_u32 v8, {i*(16384-1024)}, v8')
        a(f'buffer_load_dwordx4 v8, s[56:59], s22 offen offset:{i*1024} lds')
    for i in range(8):
        a(f'v_xor_b32 v{16+i}, {32*i}, v6')
        if i: a(f'v_add_u32 v{16+i}, {((16*(i >> 1) + 4*(i & 1)) << 13) - (i & 3)*1024}, v{16+i}')
    a('s_lshr_b32 s20, s16, 1')
    a('s_lshl_b32 s20, s20, 16')
    a('s_and_b32 s21, s16, 1')
    a('s_lshl_b32 s21, s21, 14')
    a('s_add_u32 s20, s20, s21')
    a('s_add_u32 s29, s20, s26')
    a(f's_mul_i32 s25, s16, {24*KB}')
    a(f's_add_u32 s25, s25, {16*KB}')
    for t in range(3):
        a(f's_add_u32 s22, s29, {(256 + 64*t) << 13}')
        for i in range(8):
            if i % 4 == 0: a(f's_add_u32 m0, s25, {t*8192 + i*1024}')
            a(f'buffer_load_dwordx4 v{16+i}, s[60:63], s22 offen offset:{(i & 3)*1024} lds')
        if t == 0: hook(12)

def a3_run(a, n, hook):
    a('v_lshrrev_b32 v7, 2, v4')
    a('v_lshlrev_b32 v7, 3, v7')
    a('v_and_b32 v8, 3, v4')
    a('v_add_u32 v7, v7, v8')
    a('v_xor_b32 v10, v3, v4')
    a('v_lshlrev_b32 v10, 4, v10')
    a('v_lshl_add_u32 v11, v4, 9, v10')
    a('v_add_u32 v11, s25, v11')
    a('v_lshl_add_u32 v10, v7, 9, v10')
    for k3 in range(4):
        a(f'v_xor_b32 v{32+k3}, {64*k3}, v10')
        a(f'v_xor_b32 v{36+k3}, {64*k3}, v11')
    a(f's_mul_i32 s30, s17, {CUW_B}')
    a(f's_mul_i32 s20, s16, {TILE_B}')
    a('s_add_u32 s30, s30, s20')
    a('s_lshl_b32 s20, s28, 10')
    a('s_add_u32 s30, s30, s20')
    a(f's_mov_b32 s24, {SIGMA}')
    a('s_lshl_b32 s20, s17, 7')
    a('s_lshl_b32 s28, s28, 3')
    a('s_add_u32 s28, s28, s20')
    a(f's_add_u32 s28, s28, {A3_OFF}')
    a(f's_waitcnt vmcnt({n})')
    a('s_barrier')
    hook()
    EV(a, 9107)
    FR = 128; ACC = 96
    def rd(kk):
        b = FR + 20 * (kk % 3)
        for tau in range(2): a(f'ds_read_b128 v[{b+4*tau}:{b+4*tau+3}], v{32 + (kk & 3)} offset:{tau*2048 + (kk >> 2)*256}')
        for t in range(3): a(f'ds_read_b128 v[{b+8+4*t}:{b+11+4*t}], v{36 + (kk & 3)} offset:{t*8192 + (kk >> 2)*256}')
    rd(0); rd(1)
    for kk in range(8):
        if kk + 2 < 8: rd(kk + 2)
        a(f's_waitcnt lgkmcnt({5 * min(2, 7 - kk)})')
        b = FR + 20 * (kk % 3)
        for t in range(3):
            for tau in range(2):
                d = ACC + 8 * t + 4 * tau
                a(f'v_mfma_f32_16x16x32_bf16 v[{d}:{d+3}], v[{b+4*tau}:{b+4*tau+3}], v[{b+8+4*t}:{b+11+4*t}], ' + ('0' if kk == 0 else f'v[{d}:{d+3}]'))
    for t in range(3):
        d = ACC + 8 * t; o = 68 + 4 * t
        for k in range(8): a(f'v_mul_f32 v{d+k}, s24, v{d+k}')
        for k in range(4): a(f'v_cvt_pk_bf16_f32 v{o+k}, v{d+2*k}, v{d+2*k+1}')
        a(f's_add_u32 s20, s30, {(16 + 4*t)*TILE_B}')
        a(f'buffer_store_dwordx4 v[{o}:{o+3}], v2, {WS}, s20 offen sc1')
    a('s_waitcnt vmcnt(0)')
    publish(a, 's28', 1)
```

```python
from asmlib import *
from layout import *
import tok
WS = 's[8:11]'
LIGHT = 1
WARMUP = 0
WSH = 0
SSL = 6
SPRE = 0
def wreg(ti, ks):
    u = ti * 7 + ks
    return 256 + 8 * u if u < 32 else 120 + 8 * (u - 32)
def t2srv_body(a, P, v_s, par_s, abort, ld=''):
    M = 8; ACC = 36; YT = 64; YA = 72
    a(f's_mul_i32 s20, {v_s}, {CUW_B}')
    a(f's_mul_i32 s21, s16, {7*TILE_B}')
    a('s_add_u32 s20, s20, s21')
    a(f's_add_u32 s20, s20, {WF_B}')
    for f in range(98):
        if f % 4 == 0: a(f's_add_u32 s22, s20, {f*1024}')
        r = wreg(0, f // 2) + 4 * (f & 1)
        a(f'buffer_load_dwordx4 {ureg(r, 4)}, v2, {WS}, s22 offen offset:{(f & 3)*1024} {ld}')
        if f % 32 == 31: a('s_waitcnt vmcnt(24)')
    a('v_mov_b32 v5, 0x4444')
    a('v_mov_b32 v6, 0xeeee')
    a('v_cmp_lt_u32 vcc, 7, v4')
    a('v_cndmask_b32 v5, v5, v6, vcc')
    a('s_lshl_b32 s23, s16, 11')
    a('v_lshrrev_b32 v80, 1, v3')
    a('v_and_b32 v81, 1, v3')
    for p in range(4):
        if p < 3: a(f'v_add_u32 v82, {2*p}, v80')
        else: a('v_mov_b32 v82, 6')
        a('v_lshl_add_u32 v82, v82, 4, v4')
        a('v_mul_u32_u24 v83, 2341, v82')
        a('v_lshrrev_b32 v83, 16, v83')
        a('v_mul_u32_u24 v84, 28, v83')
        a('v_sub_u32 v84, v82, v84')
        a('v_lshrrev_b32 v85, 4, v84')
        a('v_and_b32 v84, 15, v84')
        a('v_lshlrev_b32 v86, 10, v85')
        a('v_lshl_add_u32 v86, v83, 8, v86')
        a('v_lshl_add_u32 v86, v84, 4, v86')
        a('v_lshl_add_u32 v86, v81, 3, v86')
        a(f'v_add_u32 v{YA+p}, s23, v86')
    a('v_add_u32 v76, s23, v2')
    a(f's_mul_i32 s27, {v_s}, 448')
    a('v_mov_b32 v77, s27' if not tok.ONELINE else 'v_mov_b32 v77, 0')
    a('v_mov_b32 v78, 1')
    a(f's_mov_b32 s17, {par_s}')
    a(f's_mul_i32 s24, {par_s}, {7*KB}')
    a(f's_add_u32 s24, s24, {MEMG_OFF}')
    a(f's_mul_i32 s25, {v_s}, 65')
    a(f's_add_u32 s25, s25, {par_s}')
    a('s_lshl_b32 s25, s25, 13')
    a('s_add_u32 s25, s25, s23')
    a(f's_add_u32 s25, s25, {T2_OFF + 8*KB}')
    a(f's_lshl_b32 s26, {v_s}, 6')
    a(f's_add_u32 s26, s26, {par_s}')
    a('s_lshl_b32 s26, s26, 4')
    a('s_lshl_b32 s27, s16, 2')
    a('s_add_u32 s26, s26, s27')
    a(f's_add_u32 s26, s26, {CNT_OFF + T2F}')
    a('v_mov_b32 v87, -1')
    a.label(f'{P}_loop')
    for r in range(ACC, ACC + 28): a(f'v_mov_b32 v{r}, 0')
    a('s_mov_b32 s30, 0')
    if SPRE:
        a('s_cmp_ge_u32 s17, 62')
        a(f's_cbranch_scc1 {P}_pm')
        a(f's_sleep {SPRE}')
    a('v_cmp_eq_u32 vcc, -1, v87')
    a(f's_cbranch_vccz {P}_fl')
    a.label(f'{P}_pm')
    tok.mpoll(a, 79, 77, 's24')
    a('s_waitcnt vmcnt(0)')
    a('v_cmp_eq_u32 vcc, -1, v79')
    a(f's_cbranch_vccnz {P}_pr')
    a.label(f'{P}_fl')
    a('s_add_u32 s22, s24, 4096')
    for ks in range(7):
        a(f'buffer_load_dwordx4 v[{M+4*ks}:{M+4*ks+3}], v2, {WS}, {"s24" if ks < 4 else "s22"} offen offset:{(ks & 3)*1024} sc1')
    a('s_waitcnt vmcnt(0)')
    a(f'v_max_u32 v79, v{M}, v{M+1}')
    for r in range(M + 2, M + 28, 2): a(f'v_max3_u32 v79, v79, v{r}, v{r+1}')
    a('v_cmp_eq_u32 vcc, -1, v79')
    a(f's_cbranch_vccz {P}_pk')
    a.label(f'{P}_pr')
    a('s_sleep 1')
    a(f's_cmp_ge_u32 s17, {tok.LASTP}')
    a(f's_cbranch_scc1 {P}_sh')
    a(f's_sleep {SSL}')
    a.label(f'{P}_sh')
    a('s_add_u32 s30, s30, 1')
    a(f's_cmp_lt_u32 s30, {tok.WAIT_LIMIT}')
    a(f's_cbranch_scc1 {P}_pm')
    a(f's_branch {abort}')
    a.label(f'{P}_pk')
    a('s_cmp_ge_u32 s17, 62')
    a(f's_cbranch_scc1 {P}_na')
    a(f's_add_u32 s22, s24, {14*KB}')
    tok.mpoll(a, 87, 77, 's22')
    a.label(f'{P}_na')
    for ti in range(7):
        for ks in range(7):
            a(f'v_smfmac_f32_16x16x64_bf16 v[{ACC+4*ti}:{ACC+4*ti+3}], v[{M+4*ks}:{M+4*ks+3}], {ureg(wreg(ti, ks), 8)}, v5')
    for p in range(4):
        A_ = ACC + 8 * p; B_ = A_ + 4 if p < 3 else YT
        if p == 3:
            for r in range(4): a(f'v_mov_b32 v{B_+r}, v{A_+r}')
        for r in range(4): a(f'v_permlane32_swap_b32 v{A_+r}, v{B_+r}')
        for r in range(4): a(f'v_add_f32 v{A_+r}, v{A_+r}, v{B_+r}')
        a(f'v_cvt_pk_bf16_f32 v{B_}, v{A_}, v{A_+1}')
        a(f'v_cvt_pk_bf16_f32 v{B_+1}, v{A_+2}, v{A_+3}')
        a(f'ds_write_b64 v{YA+p}, v[{B_}:{B_+1}]')
    a('s_waitcnt lgkmcnt(0)')
    a(f'ds_read_b128 v[{YT}:{YT+3}], v76')
    a(f'ds_read_b128 v[{YT+4}:{YT+7}], v76 offset:1024')
    a('s_waitcnt lgkmcnt(0)')
    a(f'buffer_store_dwordx4 v[{YT}:{YT+3}], v2, {WS}, s25 offen sc1')
    a(f'buffer_store_dwordx4 v[{YT+4}:{YT+7}], v2, {WS}, s25 offen offset:1024 sc1')
    a('s_waitcnt vmcnt(0)')
    a('s_mov_b64 exec, 1')
    a(f'buffer_store_dword v78, v2, {WS}, s26 offen sc1')
    a('s_mov_b64 exec, -1')
    if WARMUP:
        nl = 64 >> WSH; per = 128 * nl * 128
        nu = -(-1835008 // per); npar = 1 << WSH; no = -(-3670016 // per)
        a('s_lshr_b32 s28, s17, 1')
        a(f's_cmp_ge_u32 s28, {nu + npar + no}')
        a(f's_cbranch_scc1 {P}_nw')
        a(f's_lshl_b32 s29, {v_s}, 1')
        a(f's_add_u32 s29, s29, {par_s}')
        a('s_lshl_b32 s31, s29, 2')
        a('s_add_u32 s31, s31, s16')
        a(f's_cmp_lt_u32 s28, {nu}')
        a(f's_cbranch_scc1 {P}_wu')
        a(f's_sub_u32 s28, s28, {nu}')
        a(f's_cmp_lt_u32 s28, {npar}')
        a(f's_cbranch_scc1 {P}_wp')
        a(f's_sub_u32 s28, s28, {npar}')
        a('s_mov_b64 s[32:33], s[92:93]\ns_mov_b32 s34, 3670016')
        a(f's_branch {P}_wg')
        a.label(f'{P}_wp')
        a('s_lshl_b32 s31, s16, 3')
        a('s_add_u32 s31, s31, 8')
        a('s_load_dwordx2 s[32:33], s[0:1], s31')
        a('s_mov_b32 s34, 229376')
        a('s_lshl_b32 s28, s28, 5')
        a('s_add_u32 s31, s28, s29')
        a('s_mov_b32 s28, 0')
        a(f's_branch {P}_wg')
        a.label(f'{P}_wu')
        a('s_load_dwordx2 s[32:33], s[0:1], 0')
        a('s_mov_b32 s34, 1835008')
        a.label(f'{P}_wg')
        a('s_lshl_b32 s28, s28, 7')
        a('s_add_u32 s28, s28, s31')
        a(f's_mul_i32 s28, s28, {nl*128}')
        a('s_waitcnt lgkmcnt(0)')
        a('s_and_b32 s33, s33, 0xffff\ns_mov_b32 s35, 0x20000')
        a('v_lshlrev_b32 v80, 3, v2')
        if WSH: a('s_mov_b32 exec_hi, 0' if WSH == 1 else 's_mov_b64 exec, 0xffff')
        a('buffer_load_dword v81, v80, s[32:35], s28 offen')
        a('s_mov_b64 exec, -1')
        a.label(f'{P}_nw')
    a(f's_add_u32 s24, s24, {14*KB}')
    a(f's_add_u32 s25, s25, {16*KB}')
    a('s_add_u32 s26, s26, 32')
    a('s_add_u32 s17, s17, 2')
    a('s_cmp_lt_u32 s17, 64')
    a(f's_cbranch_scc1 {P}_loop')
```

```python
from asmlib import *
from layout import *
WS = 's[8:11]'
PEEK = WS
def ev(a, tag, t=120):
    import chain as C
    if C.EVLOG:
        l = a.newlabel('ev')
        a('s_cmp_lt_u32 s17, 62')
        a(f's_cbranch_scc1 {l}')
        a(f's_mul_i32 s29, s17, 10\ns_add_u32 s29, s29, {9200 - 620 + tag}')
        C.evlog(a, 's29', t)
        a.label(l)
def common(a, endl):
    a('s_cmp_ge_u32 s2, 256')
    a(f's_cbranch_scc1 {endl}')
    a('s_load_dwordx2 s[6:7], s[0:1], 128')
    a('s_load_dwordx2 s[4:5], s[0:1], 112')
    a('v_lshrrev_b32 v1, 6, v0')
    a('v_readfirstlane_b32 s16, v1')
    a('v_and_b32 v1, 63, v0')
    a('v_lshlrev_b32 v2, 4, v1')
    a('v_lshrrev_b32 v3, 4, v1')
    a('v_and_b32 v4, 15, v1')
    a('s_waitcnt lgkmcnt(0)')
    a('s_mov_b32 s8, s6\ns_and_b32 s9, s7, 0xffff\ns_mov_b32 s10, 0x10000000\ns_mov_b32 s11, 0x20000')
    a(f's_mov_b32 s12, s4\ns_and_b32 s13, s5, 0xffff\ns_mov_b32 s14, {2048*896*2}\ns_mov_b32 s15, 0x20000')

WAIT_LIMIT = 30000
SLEEP = 1
LONG = 40
MIDS = 4
NEAR = 56
FULLPOLL = 64
ONELINE = 0
PMODE = 3
LASTP = 61
T2MID = 20
def mpoll(a, dst, va, so):
    if PMODE == 0: a(f'buffer_load_dword v{dst}, v{va}, {WS}, {so} offen sc1')
    elif PMODE == 1: a(f'buffer_load_dword v{dst}, v{va}, {WS}, {so} offen sc0 sc1')
    elif PMODE == 2: a(f'buffer_load_dword v{dst}, v{va}, {WS}, {so} offen sc0 sc1 nt')
    else:
        l = a.newlabel('mp')
        a(f's_cmp_ge_u32 s17, {LASTP}')
        a(f's_cbranch_scc1 {l}a')
        a(f'v_mov_b32 v{dst}, 0')
        a('s_mov_b64 exec, 1')
        a(f'buffer_atomic_or v{dst}, v{va}, {WS}, {so} offen sc0')
        a('s_mov_b64 exec, -1')
        a(f's_branch {l}b')
        a.label(l + 'a')
        a(f'buffer_load_dword v{dst}, v{va}, {WS}, {so} offen sc1')
        a.label(l + 'b')
PKS = 56
def peek(a):
    l = a.newlabel('pk')
    a(f's_cmp_lt_u32 s17, {PKS}')
    a(f's_cbranch_scc1 {l}')
    a(f'buffer_load_dword v250, v251, {PEEK}, 0 offen sc1')
    a.label(l)
def backoff(a, P, sleep):
    a(f's_sleep {sleep}')
    a(f's_cmp_ge_u32 s17, {LASTP}')
    a(f's_cbranch_scc1 {P}_bo')
    a(f's_sleep {MIDS}')
    a(f's_cmp_ge_u32 s17, {NEAR}')
    a(f's_cbranch_scc1 {P}_bo')
    a(f's_sleep {LONG}')
    a.label(P + '_bo')
def wait_eq(a, P, soff, target, abort, sleep=None, four=False, ne=False):
    sleep = sleep or SLEEP
    if four: a('v_lshlrev_b32 v60, 2, v3')
    else: a('v_mov_b32 v60, 0')
    a('s_mov_b32 s30, 0')
    a.label(P)
    a(f'buffer_load_dword v61, v60, {WS}, {soff} offen sc1')
    a('s_waitcnt vmcnt(0)')
    a(f'v_cmp_{"eq" if ne else "ne"}_u32 vcc, {target}, v61')
    a(f's_cbranch_vccz {P}_ok')
    backoff(a, P, sleep)
    a('s_add_u32 s30, s30, 1')
    a(f's_cmp_lt_u32 s30, {WAIT_LIMIT}')
    a(f's_cbranch_scc1 {P}')
    a(f's_branch {abort}')
    a.label(P + '_ok')

def load_lin(a, base_s, n, areg, flags=''):
    for f in range(n):
        if f % 4 == 0: a(f's_add_u32 s22, {base_s}, {f*1024}')
        a(f'buffer_load_dwordx4 a[{areg+4*f}:{areg+4*f+3}], v2, {WS}, s22 offen offset:{(f & 3)*1024} {flags}')

def tokp_body(a, seg_s, hq_s, ld='', st='', sync=None, ldx=''):
    a(f's_lshl_b32 s20, {hq_s}, 2')
    a('s_add_u32 s20, s20, s16')
    a(f's_lshl_b32 s21, {seg_s}, 4')
    a('s_add_u32 s21, s21, s20')
    a(f's_mul_i32 s21, s21, {GSH_B}')
    a(f's_add_u32 s21, s21, {F_OFF}')
    a(f's_mul_i32 s23, {seg_s}, {28*KB}')
    a(f's_add_u32 s23, s23, {XM_OFF}')
    FA, XA, MA = 0, 112, 224
    if sync:
        a(f's_mul_i32 s24, {seg_s}, {7*KB}')
        a(f's_add_u32 s24, s24, {MEMG_OFF}')
        a(f's_lshr_b32 s25, {seg_s}, 3')
        a('s_lshl_b32 s25, s25, 4')
        a('s_add_u32 s25, s25, s20')
        a('s_lshl_b32 s25, s25, 7')
        a(f's_add_u32 s25, s25, {CNT_OFF + FC}')
        wait_eq(a, sync + '_wf', 's25', 56, sync + '_abort')
    else:
        a(f's_mul_i32 s24, {seg_s}, {EXCH_B}')
        a(f's_add_u32 s24, s24, {EXCH_OFF}')
    load_lin(a, 's21', 28, FA, ld)
    load_lin(a, 's23', 28, XA, ldx)
    if not sync: load_lin(a, 's24', 7, MA, ld)
    AX = {(0, 0): 8, (0, 1): 12, (1, 1): 16}
    AM = {(0, 0): 20, (1, 0): 24, (0, 1): 28, (1, 1): 32}
    for r in range(4):
        a(f'v_lshl_add_u32 v5, v3, 2, {r}')
        a(f'v_cmp_le_u32 s[{40+2*r}:{41+2*r}], v5, v4')
    a('v_cmp_gt_u32 s[48:49], 2, v3')
    a('v_mov_b32 v6, 0xff800000')
    a('s_waitcnt vmcnt(0)' if sync else 's_waitcnt vmcnt(7)')
    for f in range(14):
        for (tk, tt), d in AX.items():
            c = '0' if f == 0 else f'v[{d}:{d+3}]'
            xa = XA + 4 * (tk * 14 + f); fa = FA + 4 * (tt * 14 + f)
            a(f'v_mfma_f32_16x16x32_bf16 v[{d}:{d+3}], a[{xa}:{xa+3}], a[{fa}:{fa+3}], {c}')
    MV = 64
    if sync:
        a('s_mul_i32 s22, s20, 448')
        a('v_mov_b32 v62, s22' if not ONELINE else 'v_mov_b32 v62, 0')
        a('s_mov_b32 s30, 0')
        a.label(sync + '_pm')
        a(f's_cmp_ge_u32 s17, {FULLPOLL}')
        a(f's_cbranch_scc1 {sync}_pf')
        mpoll(a, 61, 62, 's24')
        a('s_waitcnt vmcnt(0)')
        a('v_cmp_eq_u32 vcc, -1, v61')
        a(f's_cbranch_vccnz {sync}_pr')
        a.label(sync + '_pf')
        ev(a, 0)
        a('s_add_u32 s22, s24, 4096')
        for ks in range(7):
            a(f'buffer_load_dwordx4 v[{MV+4*ks}:{MV+4*ks+3}], v2, {WS}, {"s24" if ks < 4 else "s22"} offen offset:{(ks & 3)*1024} sc1')
        a('s_waitcnt vmcnt(0)')
        a(f'v_max_u32 v61, v{MV}, v{MV+1}')
        for r in range(MV + 2, MV + 28, 2): a(f'v_max3_u32 v61, v61, v{r}, v{r+1}')
        a('v_cmp_eq_u32 vcc, -1, v61')
        a(f's_cbranch_vccz {sync}_pk')
        a.label(sync + '_pr')
        backoff(a, sync + '_pm', SLEEP)
        a('s_add_u32 s30, s30, 1')
        a(f's_cmp_lt_u32 s30, {WAIT_LIMIT}')
        a(f's_cbranch_scc1 {sync}_pm')
        a(f's_branch {sync}_abort')
        a.label(sync + '_pk')
        ev(a, 1)
        peek(a)
    else:
        a('s_waitcnt vmcnt(0)')
    for ks in range(7):
        for (half, tt), d in AM.items():
            c = '0' if ks == 0 else f'v[{d}:{d+3}]'
            fa = FA + 4 * (tt * 14 + ks * 2 + half)
            mop = f'v[{MV+4*ks}:{MV+4*ks+3}]' if sync else f'a[{MA+4*ks}:{MA+4*ks+3}]'
            a(f'v_mfma_f32_16x16x32_bf16 v[{d}:{d+3}], {mop}, a[{fa}:{fa+3}], {c}')
    a(f's_lshl_b32 s25, {seg_s}, 1')
    a(f's_mul_i32 s25, s25, {PT_B}')
    a(f's_add_u32 s25, s25, {PT_OFF}')
    a('s_lshl_b32 s26, s20, 10')
    a('s_add_u32 s26, s26, s25')
    a(f's_lshl_b32 s27, {hq_s}, 10')
    a('s_add_u32 s27, s27, s25')
    a('s_lshr_b32 s28, s16, 1')
    a('s_lshl_b32 s28, s28, 3')
    a('s_add_u32 s27, s27, s28')
    a(f's_add_u32 s27, s27, {16*KB}')
    a('s_and_b32 s28, s16, 1')
    a('s_cmp_eq_u32 s28, 0')
    a('s_cselect_b32 s50, -1, 0')
    a('s_cselect_b32 s51, 0, -1')
    for tt in range(2):
        xs = []
        for (tk, t2), d in AX.items():
            if t2 != tt: continue
            for r in range(4):
                if tk == tt: a(f'v_cndmask_b32 v{d+r}, v6, v{d+r}, s[{40+2*r}:{41+2*r}]')
                xs.append(d + r)
        z, t = AM[(0, tt)], AM[(1, tt)]
        for r in range(4): a(f'v_cndmask_b32 v{z+r}, v{t+r}, v{z+r}, s[48:49]')
        for r in range(4): a(f'v_mov_b32 v{t+r}, v{z+r}')
        for r in range(4): a(f'v_permlane32_swap_b32 v{z+r}, v{t+r}')
        for r in range(4): a(f'v_add_f32 v{z+r}, v{z+r}, v{t+r}')
        ms = [z + r for r in range(4)]
        al = xs + ms
        mx = 40
        a(f'v_max3_f32 v{mx}, v{al[0]}, v{al[1]}, v{al[2]}')
        rest = al[3:]
        while len(rest) >= 2:
            a(f'v_max3_f32 v{mx}, v{mx}, v{rest[0]}, v{rest[1]}'); rest = rest[2:]
        if rest: a(f'v_max_f32 v{mx}, v{mx}, v{rest[0]}')
        for sw in ('16', '32'):
            a(f'v_mov_b32 v41, v{mx}')
            a(f'v_permlane{sw}_swap_b32 v{mx}, v41')
            a(f'v_max_f32 v{mx}, v{mx}, v41')
        for r in al: a(f'v_sub_f32 v{r}, v{r}, v{mx}')
        for r in al: a(f'v_exp_f32 v{r}, v{r}')
        a(f'v_add_f32 v42, v{ms[0]}, v{ms[1]}')
        a(f'v_add_f32 v43, v{ms[2]}, v{ms[3]}')
        a('v_add_f32 v42, v42, v43')
        a('v_mul_f32 v42, 0.5, v42')
        for r in xs: a(f'v_add_f32 v42, v42, v{r}')
        for sw in ('16', '32'):
            a('v_mov_b32 v41, v42')
            a(f'v_permlane{sw}_swap_b32 v42, v41')
            a('v_add_f32 v42, v42, v41')
        a('v_rcp_f32 v42, v42')
        for r in al: a(f'v_mul_f32 v{r}, v{r}, v42')
        o = 44 + 8 * tt
        for k in range(len(xs) // 2): a(f'v_cvt_pk_bf16_f32 v{o+k}, v{xs[2*k]}, v{xs[2*k+1]}')
        if tt == 0:
            a(f'v_mov_b32 v{o+2}, 0'); a(f'v_mov_b32 v{o+3}, 0')
        a(f'v_cvt_pk_bf16_f32 v{o+4}, v{ms[0]}, v{ms[1]}')
        a(f'v_cvt_pk_bf16_f32 v{o+5}, v{ms[2]}, v{ms[3]}')
        for k in range(6): a(f'v_min_u32 v{o+k}, -2, v{o+k}')
        a(f'buffer_store_dwordx4 v[{o}:{o+3}], v2, {WS}, s26 offen {st}')
        a('s_mov_b64 exec, s[50:51]')
        a(f'buffer_store_dwordx2 v[{o+4}:{o+5}], v2, {WS}, s27 offen {st}')
        a('s_mov_b64 exec, -1')
        if tt == 0:
            a(f's_add_u32 s26, s26, {PT_B}')
            a(f's_add_u32 s27, s27, {PT_B}')
    if sync:
        a(f's_lshl_b32 s25, {seg_s}, 7')
        a(f's_add_u32 s25, s25, {CNT_OFF + PTC}')
        a('v_mov_b32 v5, 1')
        a('v_mov_b32 v6, 0')
        ev(a, 2)
        a('s_waitcnt vmcnt(0)')
        ev(a, 3)
        a('s_mov_b64 exec, 1')
        a(f'buffer_atomic_add v5, v6, {WS}, s25 offen')
        a('s_mov_b64 exec, -1')

def toko_body(a, seg_s, vq_s, ld='', sync=None, OUT='s[12:15]'):
    a(f's_lshl_b32 s20, {vq_s}, 2')
    a('s_add_u32 s20, s20, s16')
    a('s_mul_i32 s24, s20, 65')
    a(f's_add_u32 s24, s24, {seg_s}')
    a('s_lshl_b32 s24, s24, 13')
    a(f's_add_u32 s24, s24, {T2_OFF + 8*KB}')
    a('s_lshl_b32 s21, s20, 6')
    a(f's_add_u32 s21, s21, {seg_s}')
    a(f's_mul_i32 s21, s21, {GSH_B}')
    a(f's_add_u32 s21, s21, {VO_OFF}')
    a(f's_lshl_b32 s25, {seg_s}, 1')
    a(f's_mul_i32 s25, s25, {PT_B}')
    a(f's_add_u32 s25, s25, {PT_OFF}')
    a('v_lshrrev_b32 v8, 5, v1')
    a('v_and_b32 v9, 31, v1')
    a('v_min_u32 v5, 27, v9')
    a('v_mad_u32_u24 v5, v8, 28, v5')
    a('v_lshlrev_b32 v5, 4, v5')
    a('v_lshrrev_b32 v10, 4, v9')
    a('v_lshlrev_b32 v7, 10, v10')
    a('v_lshl_add_u32 v7, v4, 4, v7')
    a('v_lshl_add_u32 v7, v8, 3, v7')
    a(f'v_mul_u32_u24 v6, {PT_B}, v10')
    a('v_lshl_add_u32 v6, v8, 8, v6')
    a('v_lshl_add_u32 v6, v4, 4, v6')
    VA = 0; T2R = 28; PR = 128
    a(f's_lshr_b32 s26, {seg_s}, 3')
    a('s_lshl_b32 s26, s26, 4')
    a('s_add_u32 s26, s26, s20')
    a('s_lshl_b32 s26, s26, 7')
    a(f's_add_u32 s26, s26, {CNT_OFF + VOC}')
    wait_eq(a, sync + '_wv', 's26', 56, sync + '_abort')
    for h in range(16):
        if h % 2 == 0: a(f's_add_u32 s22, s21, {h*1792}')
        for kh in range(2):
            r = VA + 8 * h + 4 * kh
            a(f'buffer_load_dwordx4 a[{r}:{r+3}], v5, {WS}, s22 offen offset:{(h & 1)*1792 + kh*896} {ld}')
    a(f's_cmp_ge_u32 {seg_s}, {LASTP}')
    a(f's_cbranch_scc1 {sync}_lm')
    a(f's_lshl_b32 s26, {seg_s}, 7')
    a(f's_add_u32 s26, s26, {CNT_OFF + PTC}')
    wait_eq(a, sync + '_wp', 's26', 16, sync + '_abort', sleep=2)
    a(f's_branch {sync}_lp')
    a.label(sync + '_lm')
    a(f's_mul_i32 s26, {seg_s}, {7*KB}')
    a(f's_add_u32 s26, s26, {MEMG_OFF}')
    wait_eq(a, sync + '_wm', 's26', -1, sync + '_abort', sleep=2, ne=True)
    a.label(sync + '_lp')
    ev(a, 5)
    a(f's_mul_i32 s26, s16, {10*KB}')
    a('s_add_u32 s27, s25, s26')
    a('v_add_u32 v11, s26, v2')
    a('s_lshl_b32 s26, s20, 6')
    a(f's_add_u32 s26, s26, {seg_s}')
    a('s_lshl_b32 s26, s26, 4')
    a(f's_add_u32 s26, s26, {CNT_OFF + T2F}')
    a('v_lshlrev_b32 v60, 2, v3')
    a('s_mov_b32 s30, 0')
    a.label(sync + '_pl')
    for f in range(10):
        if f % 4 == 0: a(f's_add_u32 s22, s27, {f*1024}')
        a(f'buffer_load_dwordx4 v[{PR+4*f}:{PR+4*f+3}], v2, {WS}, s22 offen offset:{(f & 3)*1024} sc1')
    a(f'buffer_load_dword v61, v60, {WS}, s26 offen sc1')
    a('s_waitcnt vmcnt(1)')
    a(f'v_max_u32 v62, v{PR}, v{PR+1}')
    for r in range(PR + 2, PR + 40, 2): a(f'v_max3_u32 v62, v62, v{r}, v{r+1}')
    a('v_cmp_eq_u32 vcc, -1, v62')
    a(f's_cbranch_vccz {sync}_pk')
    a('s_add_u32 s30, s30, 1')
    a(f's_cmp_lt_u32 s30, {WAIT_LIMIT}')
    a(f's_cbranch_scc1 {sync}_pl')
    a(f's_branch {sync}_abort')
    a.label(sync + '_pk')
    for f in range(10): a(f'ds_write_b128 v11, v[{PR+4*f}:{PR+4*f+3}] offset:{f*1024}')
    def t2l():
        for hq in range(4):
            if hq % 2 == 0: a(f's_add_u32 s22, s24, {hq*2048}')
            for kh in range(2):
                r = T2R + 8 * hq + 4 * kh
                for pc in range(2):
                    a(f'buffer_load_dwordx2 v[{r+2*pc}:{r+2*pc+1}], v7, {WS}, s22 offen offset:{(hq & 1)*2048 + kh*256 + pc*512} {ld}')
    a('s_waitcnt vmcnt(0)')
    a('v_cmp_ne_u32 vcc, 1, v61')
    a('s_mov_b32 s28, 0')
    a(f's_cbranch_vccnz {sync}_nt')
    t2l()
    a('s_mov_b32 s28, 1')
    a.label(sync + '_nt')
    peek(a)
    ev(a, 4)
    a('s_waitcnt lgkmcnt(0)')
    a('s_barrier')
    a(f'buffer_load_dword v61, v60, {WS}, s26 offen sc1')
    ACC = 12; RG = 64
    def rd(i): a(f'ds_read_b128 v[{RG+4*(i&7)}:{RG+4*(i&7)+3}], v6 offset:{i*512}')
    for i in range(6): rd(i)
    for i in range(40):
        if i == T2MID:
            a('s_cmp_lg_u32 s28, 0')
            a(f's_cbranch_scc1 {sync}_h2')
            a('s_waitcnt vmcnt(0)')
            a('v_cmp_ne_u32 vcc, 1, v61')
            a(f's_cbranch_vccnz {sync}_h2')
            t2l()
            a('s_mov_b32 s28, 1')
            a.label(sync + '_h2')
        if i == 32:
            a('s_cmp_lg_u32 s28, 0')
            a(f's_cbranch_scc1 {sync}_ht')
            wait_eq(a, sync + '_wt', 's26', 1, sync + '_abort', four=True, sleep=1)
            t2l()
            a.label(sync + '_ht')
        if i + 6 < 40: rd(i + 6)
        a(f's_waitcnt lgkmcnt({min(6, 39 - i)})' + (' vmcnt(0)' if i == 32 else ''))
        A_ = f'a[{VA+4*i}:{VA+4*i+3}]' if i < 32 else f'v[{T2R+4*(i-32)}:{T2R+4*(i-32)+3}]'
        a(f'v_mfma_f32_32x32x16_bf16 v[{ACC}:{ACC+15}], {A_}, v[{RG+4*(i&7)}:{RG+4*(i&7)+3}], ' + ('0' if i == 0 else f'v[{ACC}:{ACC+15}]'))
    ev(a, 6)
    OL = 48 * KB; RS = 240
    a(f'v_mul_u32_u24 v9, {RS}, v9')
    a(f's_movk_i32 s23, {RS}')
    a('v_lshl_add_u32 v8, v8, 3, v9')
    a('s_mul_i32 s22, s16, 56')
    a('v_add_u32 v8, s22, v8')
    a('v_min_u32 v11, 223, v0')
    a('v_mul_u32_u24 v9, 4682, v11')
    a('v_lshrrev_b32 v9, 16, v9')
    a('v_mul_u32_u24 v10, 14, v9')
    a('v_sub_u32 v10, v11, v10')
    a('v_lshlrev_b32 v10, 4, v10')
    a(f'v_mad_u32_u24 v11, v9, s23, v10')
    a('v_mul_u32_u24 v9, 1792, v9')
    a('v_add_u32 v10, v9, v10')
    a(f's_mul_i32 s26, {seg_s}, {32*1792}')
    a(f's_mul_i32 s22, {vq_s}, 224')
    a('s_add_u32 s26, s26, s22')
    a('s_add_u32 s26, s26, 896')
    a(f's_add_u32 s27, s26, {16*1792}')
    for jj in range(4):
        d = ACC + 4 * jj; o = 96 + 2 * jj
        a(f'v_cvt_pk_bf16_f32 v{o}, v{d}, v{d+1}')
        a(f'v_cvt_pk_bf16_f32 v{o+1}, v{d+2}, v{d+3}')
        if jj == 3: a('s_mov_b32 exec_hi, 0')
        a(f'ds_write_b64 v8, v[{o}:{o+1}] offset:{OL + 16*jj}')
    a('s_mov_b64 exec, -1')
    a('s_waitcnt lgkmcnt(0)')
    a('s_barrier')
    a(f'ds_read_b128 v[104:107], v11 offset:{OL}')
    a(f'ds_read_b128 v[108:111], v11 offset:{OL + 16*RS}')
    a('s_cmp_lg_u32 s16, 3')
    a('s_cselect_b32 exec_hi, -1, 0')
    a('s_waitcnt lgkmcnt(1)')
    a(f'buffer_store_dwordx4 v[104:107], v10, {OUT}, s26 offen')
    a('s_waitcnt lgkmcnt(0)')
    a(f'buffer_store_dwordx4 v[108:111], v10, {OUT}, s27 offen')
    a('s_mov_b64 exec, -1')

def gen_tok(which):
    name = f'tok{which}_kernel'
    a = Asm(); a.raw(kernel_header(name))
    common(a, f't{which}_end')
    a('s_lshr_b32 s17, s2, 2')
    a('s_and_b32 s18, s2, 3')
    if which == 'p': tokp_body(a, 's17', 's18')
    else: toko_body(a, 's17', 's18')
    a.label(f't{which}_end')
    a('s_endpgm')
    return a
```

```python
from asmlib import *
from layout import *

SRD = 's[8:11]'; DBG = 's[12:15]'
SPIN_LIMIT = 400000
SLOW_LIMIT = 50000
NSTEPS = 64
STAMPS = False
STAMP_STEP = 32
STAMP_CYC = 0
STEPLOG = 0
STAMP_OFF = 100 * 1024 * 1024
POLL_DEPTH = 3
POLL_GAP = 0
SC_SLEEP = 0
M_GAP = 4
SC_DELAY = 0
F1_POS = 10
F2_POS = 1
VA_DELAY = 20
VB_DELAY = 0
VO_POS = 1
P_GAP = 5
ZFILL = 1
SC_ALLPOLL = 0
FOLDW = 1
NANCHK = 1
VO_PRE0 = 0
VO_PRE = 12
VO_SLEEP = 0
F1_WAVE = 2
RB1_DELAY = 0
EC_M = 0
EC_P = 0
DIAG = 0
T2SRV = 1
SLOW_FIRST = 0
B2_POS = 0
M_ROT = 0
CODE_PF = 1
PUB_EARLY = 0
HLP_SLEEP = 0
MERGE = 0
A_TGT = 28
B_TGT = 64
SELF_POISON = 0
X_PRELOAD = 0
VO_NT = 0
FIN_SLEEP = 0
VM_BURST = 0
PUBLISH = 1
VM_EVERY = 2
PUB_FIRST = 1
VO_EARLY = 0
FLAG_SLEEP = 0
SYNC = 0
XCD_SEL = 0
NOBULK = 0
VAL_TOUCH = 0
SC_TOUCH = 0
TOUCH_POS = 2
TOUCH_AHEAD = 2
DMA_DELAY = 0
PLAIN_M = 1
MRG = 1
PRI = 1
MGL = 0
NOX = 0
XIN = 4
TPS2 = 0
XSK = 1
XP0 = 14
XST = 4
XPL = 0
TIN = 1
F2X = 7
S0 = 6
F2XD = 0
CW = 0
F2L = -1
F2M = -1
L4 = 0
W1D = 24
W1G = 0
F2PRE = -1
VOI = 2
F2B = 4
ECM = 0
PEX = 0
INL = 1
WSPL = 2
V5 = 0
YE = 0
V5F2 = 1
V5E = 9
V5P = 16
XG = 6
KS = 0
B3P = 11
KGAP = 3
F2K = 2
FAKE5 = 0
PL2 = 1
RED2 = 1
PROT = 0
T2DF = 0
T2DH = 0
NOT2 = 0
ECP = 0
ALIGN = 6
APAD = 0
FAST = 1
EPI2 = 1
F2ONE = 0
SELF = 0
BDEP = None
BST2 = 0
R1 = 4
R2 = 16
PD_S = 5
PG_S = 8
PD_V = 5
PG_V = 8
PD_H = 3
PG_H = 0
VST = 0
VSM = 1
NPP = 10
VZ = 3
NPRE = 3
LPOS = 1
PLAIN_P = 1
D = 'row_mask:0xf bank_mask:0xf'
XSEG_B = 28 * KB

def stamp(a, k):
    if STAMPS: a(f'{"s_memtime" if STAMP_CYC else "s_memrealtime"} s[{40+2*k}:{41+2*k}]')
def stamp_flush(a, path, n, lbl, t=118):
    if not STAMPS: return
    a(f's_cmp_lg_u32 s19, {STAMP_STEP}')
    a(f's_cbranch_scc1 {lbl}')
    a('s_waitcnt lgkmcnt(0)')
    a(f's_lshl_b32 s22, s17, 9')
    a(f's_add_u32 s22, s22, {STAMP_OFF + path * 64}')
    a(f'v_mov_b32 v{t}, 0')
    for k in range(n):
        a(f'v_mov_b32 v{t+1}, s{40+2*k}')
        a(f'buffer_store_dword v{t+1}, v{t}, {SRD}, s22 offen offset:{4*k}')
    a.label(lbl)

EVLOG = 0
EV_OFF = 101 * 1024 * 1024
def evlog(a, tag, t=36):
    if not EVLOG: return
    a('s_memrealtime s[98:99]')
    a('s_waitcnt lgkmcnt(0)')
    a(f'v_mov_b32 v{t}, {tag}')
    a(f'v_mov_b32 v{t+1}, s98')
    a('s_mov_b64 exec, 1')
    a(f'buffer_store_dwordx2 v[{t}:{t+1}], off, {SRD}, s100')
    a('s_mov_b64 exec, -1')
    a('s_add_u32 s100, s100, 8')

TMAX = 0
def tmax(a, slot, t=36):
    if not TMAX: return
    a('s_memrealtime s[98:99]')
    a('s_waitcnt lgkmcnt(0)')
    a('s_sub_u32 s98, s98, s88')
    a(f'v_mov_b32 v{t}, s98')
    a('s_mov_b64 exec, 1')
    a(f'buffer_store_dword v{t}, off, {DBG}, 0 offset:{4*slot}')
    a('s_mov_b64 exec, -1')

def exec_lo(a, R):
    if R == 32: a('s_mov_b32 exec_hi, 0')
    else: a(f's_mov_b64 exec, {(1 << R) - 1}')

def spin(a, back, abort):
    a('s_add_u32 s30, s30, 1')
    a(f's_cmp_lt_u32 s30, {SPIN_LIMIT}')
    a(f's_cbranch_scc1 {back}')
    a(f's_branch {abort}')

def flagpoll(a, vaddr, sbase, regs, lbl, abort, Dp=None, gap=None, issued=0, lanes=0):
    if PEX and lanes: exec_lo(a, lanes)
    Dp = Dp or POLL_DEPTH
    gap = POLL_GAP if gap is None else gap
    for i in range(issued, Dp):
        a(f'buffer_load_dword v{regs+i}, v{vaddr}, {SRD}, {sbase} offen sc1')
        if i < Dp - 1: a.nop(gap)
    a.label(lbl + '_l')
    for i in range(Dp):
        a(f's_waitcnt vmcnt({Dp-1})')
        a(f'v_cmp_eq_u32 vcc, -1, v{regs+i}')
        a(f's_cbranch_vccz {lbl}_d')
        a(f'buffer_load_dword v{regs+i}, v{vaddr}, {SRD}, {sbase} offen sc1')
    spin(a, lbl + '_l', abort)
    a.label(lbl + '_d')
    if PEX and lanes: a('s_mov_b64 exec, -1')

def load_M(a, M, gap=0, k0=0):
    for ks in range(k0, 7):
        so = 's20' if ks < 4 else 's23'
        a(f'buffer_load_dwordx4 v[{M+4*ks}:{M+4*ks+3}], v2, {SRD}, {so} offen offset:{(ks & 3) * 1024} sc1')
        if gap and ks < 3: a.nop(gap)

def load_units(a, units, base, tmp_s='s22'):
    cur = None; n = 0
    for off, reg in units:
        for hb in range(2):
            o = off + hb * 1024
            blk = o // 4096 * 4096
            if blk != cur:
                a(f's_add_u32 {tmp_s}, {base}, {blk}'); cur = blk
            a(f'buffer_load_dwordx4 {ureg(reg + 4 * hb, 4)}, v2, {SRD}, {tmp_s} offen offset:{o - blk}' + (' sc1' if MERGE else ''))
            n += 1
            if n % 32 == 0: a('s_waitcnt vmcnt(24)')

def wreg(ti, ks):
    u = ti * 7 + ks
    return 256 + 8 * u if u < 32 else 120 + 8 * (u - 32)

def lane_consts(a):
    a('v_and_b32 v1, 63, v0')
    a('v_lshlrev_b32 v2, 4, v1')
    a('v_lshrrev_b32 v116, 4, v1')
    a('v_and_b32 v117, 15, v1')
    a('v_mov_b32 v3, 0x4444')
    a('v_mov_b32 v118, 0xeeee')
    a('v_cmp_lt_u32 vcc, 7, v117')
    a('v_cndmask_b32 v3, v3, v118, vcc')

def step_bases(a):
    a('s_add_u32 s23, s20, 4096')
    a(f's_add_u32 s21, s20, {EXCH_B}')

class Checker:
    def __init__(self, a, acc): self.a = a; self.acc = acc; self.q = []; self.first = True
    def add(self, r, n=4): self.q += list(range(r, r + n))
    def emit(self, k=1):
        for _ in range(k):
            if self.first and len(self.q) >= 3:
                x, y, z = self.q[:3]; self.q = self.q[3:]
                self.a(f'v_max3_u32 v{self.acc}, v{x}, v{y}, v{z}'); self.first = False
            elif len(self.q) >= 2:
                x, y = self.q[:2]; self.q = self.q[2:]
                self.a(f'v_max3_u32 v{self.acc}, v{self.acc}, v{x}, v{y}')
            elif len(self.q) == 1:
                self.a(f'v_max_u32 v{self.acc}, v{self.acc}, v{self.q[0]}'); self.q = []
    def drain(self):
        while self.q: self.emit()

XP = 2 * XSEG_B
XRP = 1024
MP = XP + 8 * KB
VL = MP + 4 * KB
CL = VL + 16 * KB
def score_tiles(w):
    return [(w, 0), (w, 1), (w, 2), (w, 3), (4 + (w >> 1), 2 * (w & 1)), (4 + (w >> 1), 2 * (w & 1) + 1), (6, w)]

def x_dma(a, w, gap=0, f0=0):
    a(f's_add_u32 m0, s25, {7*w*1024}')
    for f in range(7):
        if f == 4:
            a(f's_add_u32 m0, s25, {7*w*1024 + 4096}')
            a('s_add_u32 s22, s24, 4096')
        if f < f0: continue
        a(f'buffer_load_dwordx4 v2, {SRD}, {"s24" if f < 4 else "s22"} offen offset:{(f & 3) * 1024}' + (' sc1' if MERGE and not XPL else '') + ' lds')
        if gap: a.nop(gap)

def gen_score(a, w, st, tag):
    L = lambda n: f'{tag}_sc{w}_{n}'
    ABORT = f'{tag}_abort'
    M = 8; ACC = 36; AOP = 64; TR = 68; BOP6 = 76; BOPB = 80; BOPA = 60; SACC = 84; SX = 88
    XS = [96, 104, [12, 16, 8, 8][w], 52, 36]
    ka, kb = w, 4 + (w >> 1)
    half6, piece6, pieceP = w & 1, w >> 1, w & 1
    def S(ti, ks):
        return f'v_smfmac_f32_16x16x64_bf16 v[{ACC+4*ti}:{ACC+4*ti+3}], v[{M+4*ks}:{M+4*ks+3}], {ureg(wreg(ti, ks), 8)}, v3'
    def cvt(dst, src):
        return [f'v_cvt_pk_bf16_f32 v{dst}, v{src}, v{src+1}', f'v_cvt_pk_bf16_f32 v{dst+1}, v{src+2}, v{src+3}']
    def T(dst): return f'v_mfma_f32_16x16x32_bf16 v[{dst}:{dst+3}], v[{AOP}:{AOP+3}], v[4:7], 0'
    def xrd(buf, kap, tt):
        off = (tt * 14 + 2 * kap) * 1024
        return [f'ds_read_b128 v[{XS[buf]}:{XS[buf]+3}], v116 offset:{off}', f'ds_read_b128 v[{XS[buf]+4}:{XS[buf]+7}], v116 offset:{off+1024}']
    def xrd2(buf, tt):
        return [f'ds_read_b128 v[{XS[buf]}:{XS[buf]+3}], v117 offset:{tt*14*KB}', f'ds_read_b128 v[{XS[buf]+4}:{XS[buf]+7}], v117 offset:{tt*14*KB+1024}']
    xfirst = (lambda: xrd2(0, 0) + xrd2(1, 1)) if MRG else (lambda: xrd(0, 6, 0) + xrd(1, 6, 1))
    def Smm(kap, b, first=False):
        c = '0' if first else f'v[{SACC}:{SACC+3}]'
        return f'v_mfma_f32_16x16x32_bf16 v[{SACC}:{SACC+3}], v[{M+4*kap}:{M+4*kap+3}], v[{b}:{b+3}], {c}'
    def Sx(tt, b, buf):
        return f'v_smfmac_f32_16x16x64_bf16 v[{SX+4*tt}:{SX+4*tt+3}], v[{b}:{b+3}], v[{XS[buf]}:{XS[buf]+7}], v{118 if INL else 3}'
    ZR = list(range(ACC, ACC + 28)) + list(range(SX, SX + 8)) + [AOP + 2 - 2 * half6, AOP + 3 - 2 * half6]
    def zero(lo=0, hi=99):
        for r in ZR[lo:hi]: a(f'v_mov_b32 v{r}, 0')
    o1 = [(k + w) % 4 for k in range(4)] if M_ROT else [0, 1, 2, 3]
    o2 = [4 + (k + w) % 3 for k in range(3)] if M_ROT else [4, 5, 6]
    def ml(ks, first=False):
        a(f'buffer_load_dwordx4 v[{M+4*ks}:{M+4*ks+3}], v2, {SRD}, {"s20" if ks < 4 else "s23"} offen offset:{(ks & 3) * 1024}' + ('' if first and PLAIN_M and st == '' else ' sc1'))
    if ALIGN: a.raw(f'.p2align {ALIGN}\n' + '  s_nop 0\n' * APAD)
    a.label(L('loop'))
    step_bases(a)
    zero(3 * M_GAP if ZFILL else 0)
    a('s_mov_b32 s30, 0')
    if NANCHK: a('s_mov_b32 s62, 0')
    if SC_ALLPOLL:
        a('s_waitcnt vmcnt(0)')
        a('s_barrier')
        if SC_SLEEP: a(f's_sleep {SC_SLEEP}')
        flagpoll(a, 117, 's20', TR, L('fp'), ABORT)
        stamp(a, 0)
    else:
        if w == 0:
            if SC_SLEEP: a(f's_sleep {SC_SLEEP}')
            flagpoll(a, 0, 's20', TR, L('fp'), ABORT, PD_S, PG_S, lanes=32)
            if SC_DELAY: a.nop(SC_DELAY)
            ml(o1[0], True)
            a('s_barrier')
            stamp(a, 0)
            a(f's_branch {L("ld1")}')
        else:
            if not (V5 and w == 3): a('s_waitcnt vmcnt(0)')
            if not V5: stamp(a, 7)
            a('s_barrier')
            stamp(a, 0)
    a.label(L('ld'))
    ml(o1[0], NANCHK)
    if w == 0: a.label(L('ld1'))
    order = o1 + o2
    for i, ks in enumerate(order[1:NPRE]):
        if i < 3:
            if ZFILL: zero(i * M_GAP, (i + 1) * M_GAP)
            else: a.nop(M_GAP)
        ml(ks, NANCHK)
    if ZFILL and NPRE < 4: zero((NPRE - 1) * M_GAP, 3 * M_GAP)
    if NANCHK and NPRE == 7: a.label(L('ld2'))
    for x in xfirst(): a(x)
    ck = Checker(a, 118)
    issued = NPRE
    late = order[NPRE:]; nv = 0
    def xop(f):
        o = []
        if f == 0: o += [f's_xor_b32 s58, s25, {XSEG_B}', f's_add_u32 s59, s24, {XSEG_B}', f's_add_u32 m0, s58, {7*w*1024}']
        if f == 4: o += ['s_add_u32 s59, s59, 4096', 's_add_u32 m0, m0, 4096']
        return o, f'buffer_load_dwordx4 v2, {SRD}, s59 offen offset:{(f & 3) * 1024} sc1 lds'
    xpos = {XP0 + (w if XSK else 0) + XST * f: f for f in range(XIN)}
    for i, ks in enumerate(o1):
        a(f's_waitcnt vmcnt({issued-1-i})')
        if i < EC_M:
            a.label(L(f'e{i}'))
            r = M + 4 * ks
            a(f'v_max3_u32 v{TR}, v{r}, v{r+1}, v{r+2}')
            a(f'v_max_u32 v{TR}, v{TR}, v{r+3}')
            a(f'v_cmp_eq_u32 vcc, -1, v{TR}')
            a(f's_cbranch_vccnz {L(f"er{i}")}')
        elif not NANCHK: ck.add(M + 4 * ks)
        if i == 0: stamp(a, 1)
        for ti in range(7):
            a(S(ti, ks))
            if ti in (1, 3): ck.emit()
            if i < ECM:
                r = M + 4 * ks
                if ti == 0: a(f'v_max3_u32 v{TR}, v{r}, v{r+1}, v{r+2}' if i == 0 else f'v_max3_u32 v{TR}, v{TR}, v{r}, v{r+1}')
                if ti == 2: a(f'v_max_u32 v{TR}, v{TR}, v{r+3}' if i == 0 else f'v_max3_u32 v{TR}, v{TR}, v{r+2}, v{r+3}')
                if i == ECM - 1 and ti == 3: a(f'v_cmp_eq_u32 vcc, -1, v{TR}')
                if i == ECM - 1 and ti == 6: a(f's_cbranch_vccnz {L("retry")}')
            if late and ((7 * i + ti == (1 if late[0] == 3 else L4 + 2 * (late[0] - 4))) if L4 else ti in ((LPOS, LPOS + 3) if LPOS < 4 else (LPOS - 4,))):
                ml(late.pop(0), NANCHK); issued += 1
            if 7 * i + ti + 1 in xpos:
                for x in xop(xpos[7 * i + ti + 1])[0]: a(x)
            if 7 * i + ti in xpos:
                a(xop(xpos[7 * i + ti])[1]); nv += 1; issued += 1
            if V5 and nv < 4 and 7 * i + ti >= V5P + 3 * nv:
                a(f's_add_u32 s22, s35, {(4*w + nv)*1792}')
                a(f's_mov_b32 m0, {VL + (4*w + nv)*1024}')
                a(f'buffer_load_dwordx4 v118, {SRD}, s22 offen sc1 lds'); nv += 1; issued += 1
    assert not late
    a(f's_waitcnt vmcnt({nv + (2 if CW else 0)})')
    if NPRE < 7: a.label(L('ph2'))
    stamp(a, 2)
    for k in (4, 5, 6):
        if not NANCHK: ck.add(M + 4 * k)
    seq = []
    for ti in (6, 4, 5, 0, 1, 2, 3):
        for ks in (4, 5, 6): seq.append([S(ti, ks), []])
    def side(i, ops): seq[i][1] += ops
    CK = 'CK'
    for i in range(6): side(i, [CK])
    if MRG:
        M2 = 80
        side(0, xrd(2, ka, 0))
        if CW:
            seq[:6] = [seq[0], seq[3], seq[1], seq[4], seq[2], seq[5]]
            side(1, ['s_waitcnt vmcnt(1)']); side(3, ['s_waitcnt vmcnt(0)'])
        if (w == 1 or w == 2): side(TPS2 or (4 if CW else 1), [f'buffer_load_dword v119, v0, {SRD}, {"s20" if w == 1 else "s24"} offen sc1'])
        mv = [f'v_mov_b32 v{M2+k}, v{M+4*kb+2*pieceP+k}' for k in range(2)] + [f'v_mov_b32 v{M2+2+k}, v{M+24+2*piece6+k}' for k in range(2)]
        c6 = cvt(AOP + 2 * half6, ACC + 24)
        if CW:
            side(5, mv[:1]); side(6, mv[1:2]); side(7, c6); side(13, mv[2:3]); side(19, mv[3:])
        else:
            side(2, mv[:1]); side(3, mv[1:2]); side(4, mv[2:3]); side(7, mv[3:])
            side(5, c6[:1]); side(6, c6[1:])
        seq.insert(8, [T(TR), []])
        cb6 = cvt(BOP6 + 2, TR)
        side(11, cb6[:1]); side(12, cb6[1:])
        c4, c5 = cvt(AOP, ACC + 16), cvt(AOP + 2, ACC + 20)
        side(9, c4[:1]); side(10, c4[1:]); side(12, c5[:1]); side(13, c5[1:])
        seq.insert(15, [T(TR + 4), xrd(3, ka, 1)])
        c0, c1 = cvt(AOP, ACC), cvt(AOP + 2, ACC + 4)
        side(16, c0[:1]); side(17, c0[1:])
        cbb = cvt(BOP6, TR + 4)
        side(18, cbb[:1]); side(19, cbb[1:] + c1[:1]); side(20, c1[1:])
        seq.insert(22, [T(TR), []])
        c2, c3 = cvt(AOP, ACC + 8), cvt(AOP + 2, ACC + 12)
        side(23, c2[:1])
        seq.append([f'v_mfma_f32_16x16x32_bf16 v[{SACC}:{SACC+3}], v[{M2}:{M2+3}], v[{BOP6}:{BOP6+3}], 0', c2[1:] + ['s_waitcnt lgkmcnt(0)']])
        ca0 = cvt(BOPA, TR)
        seq.append([Sx(0, BOP6, 0), ca0 + c3])
        seq.append([T(TR + 4), []])
        seq.append([Sx(1, BOP6, 1), cvt(BOPA + 2, TR + 4)])
        seq.append([Smm(ka, BOPA), []])
        seq.append([Sx(0, BOPA, 2), []])
        seq.append([Sx(1, BOPA, 3), []])
    else:
        side(0, xrd(2, kb, 0))
        if SC_TOUCH: side(TOUCH_POS, [f'buffer_load_dword v119, v117, {SRD}, s35 offen sc1'])
        if not VAL_TOUCH and ((w == 1 and not SELF_POISON) or (w == 2 and not X_PRELOAD)): side(TOUCH_POS - 1, [f'buffer_load_dword v119, v0, {SRD}, {"s20" if w == 1 else "s24"} offen sc1'])
        c6 = cvt(AOP + 2 * half6, ACC + 24)
        side(5, c6[:1]); side(6, c6[1:] + ['v_cmp_eq_u32 vcc, -1, v118'])
        seq.insert(8, [T(TR), []])
        side(9, [f's_cbranch_vccnz {L("retry")}'])
        cb6 = cvt(BOP6 + 2 * piece6, TR)
        side(11, cb6[:1]); side(12, cb6[1:])
        c4, c5 = cvt(AOP, ACC + 16), cvt(AOP + 2, ACC + 20)
        side(9, c4[:1]); side(10, c4[1:]); side(12, c5[:1]); side(13, c5[1:])
        seq.insert(15, [T(TR + 4), xrd(3, kb, 1)])
        c0, c1 = cvt(AOP, ACC), cvt(AOP + 2, ACC + 4)
        side(16, c0[:1]); side(17, c0[1:])
        cbb = cvt(BOPB + 2 * pieceP, TR + 4)
        side(18, cbb[:1]); side(19, cbb[1:] + c1[:1]); side(20, c1[1:])
        seq.insert(22, [T(TR), xrd(4, ka, 0)])
        c2, c3 = cvt(AOP, ACC + 8), cvt(AOP + 2, ACC + 12)
        side(23, ['s_waitcnt lgkmcnt(4)'] + c2[:1])
        seq.append([Smm(6, BOP6, True), c2[1:]])
        seq.append([Sx(0, BOP6, 0), xrd(0, ka, 1)])
        ca0 = cvt(BOPA, TR)
        seq.append([Sx(1, BOP6, 1), c3])
        seq.append([Smm(kb, BOPB), ca0[:1]])
        seq.append([T(TR + 4), ca0[1:] + ['s_waitcnt lgkmcnt(4)']])
        seq.append([Sx(0, BOPB, 2), []])
        seq.append([Sx(1, BOPB, 3), ['s_waitcnt lgkmcnt(0)'] + cvt(BOPA + 2, TR + 4)])
        if FOLDW:
            seq.append([Smm(ka, BOPA), []])
            seq.append([Sx(0, BOPA, 4), []])
            seq.append([Sx(1, BOPA, 0), []])
        else:
            seq.append([Sx(0, BOPA, 4), []])
            seq.append([Sx(1, BOPA, 0), []])
            seq.append([Smm(ka, BOPA), []])
    for i2, (m, ops) in enumerate(seq):
        a(m)
        if 28 + i2 + 1 in xpos:
            for x in xop(xpos[28 + i2 + 1])[0]: a(x)
        if 28 + i2 in xpos: a(xop(xpos[28 + i2])[1])
        for o in ops:
            if o == CK: ck.emit()
            elif NANCHK and (o.startswith('v_cmp') or o.startswith('s_cbranch')): pass
            else:
                if o.startswith('v_cmp'): ck.drain()
                a(o)
    if INL:
        QX = f'quad_perm:[1,0,3,2] {D}'
        a(f'v_permlane32_swap_b32 v{SACC}, v{SACC+2}')
        a(f'v_permlane32_swap_b32 v{SACC+1}, v{SACC+3}')
        a(f'v_add_f32 v{SX}, v{SX}, v{SX+1}')
        a(f'v_add_f32_dpp v{SACC}, v{SACC+2}, v{SACC} {QX}')
        a(f'v_add_f32_dpp v{SACC+1}, v{SACC+3}, v{SACC+1} {QX}')
        a(f'v_add_f32 v{SX+1}, v{SX+2}, v{SX+3}')
        if WSPL == 2:
            a(f'ds_write2_b32 v113, v{SACC}, v{SACC+1} offset0:0 offset1:4')
            a(f'ds_write2_b32 v112, v{SX}, v{SX+1} offset0:0 offset1:128')
            a(f'v_add_f32 v{SX+2}, v{SX+4}, v{SX+5}')
            a(f'v_add_f32 v{SX+3}, v{SX+6}, v{SX+7}')
            a(f'ds_write2_b32 v112, v{SX+2}, v{SX+3} offset0:64 offset1:192')
        elif WSPL:
            a(f'ds_write2_b32 v113, v{SACC}, v{SACC+1} offset0:0 offset1:4')
            a(f'ds_write_b64 v112, v[{SX}:{SX+1}]')
            a(f'v_add_f32 v{SX+2}, v{SX+4}, v{SX+5}')
            a(f'v_add_f32 v{SX+3}, v{SX+6}, v{SX+7}')
            a(f'ds_write_b64 v112, v[{SX+2}:{SX+3}] offset:256')
        else:
            a(f'ds_write2_b32 v113, v{SACC}, v{SACC+1} offset0:0 offset1:4')
            a(f'v_add_f32 v{SX+2}, v{SX+4}, v{SX+5}')
            a(f'v_add_f32 v{SX+3}, v{SX+6}, v{SX+7}')
            a(f'ds_write2_b64 v112, v[{SX}:{SX+1}], v[{SX+2}:{SX+3}] offset0:0 offset1:32')
        a(f'v_cmp_u_f32 vcc, v{SX}, v{SX+1}')
    elif RED2:
        a(f'v_permlane32_swap_b32 v{SACC}, v{SACC+2}')
        a(f'v_permlane32_swap_b32 v{SACC+1}, v{SACC+3}')
        a(f'v_cmp_u_f32 vcc, v{SX}, v{SX+1}')
        a(f'v_add_f32_dpp v{SACC}, v{SACC+2}, v{SACC} row_ror:8 {D}')
        a(f'v_add_f32_dpp v{SACC+1}, v{SACC+3}, v{SACC+1} row_ror:8 {D}')
        for r in range(2): a(f'v_permlane32_swap_b32 v{SX+r}, v{SX+4+r}')
        a(f'ds_write2_b32 v113, v{SACC}, v{SACC+1} offset0:0 offset1:4')
        for r in range(2, 4): a(f'v_permlane32_swap_b32 v{SX+r}, v{SX+4+r}')
        for r in range(4): a(f'v_add_f32 v{SX+r}, v{SX+r}, v{SX+4+r}')
        a(f'ds_write2_b64 v112, v[{SX}:{SX+1}], v[{SX+2}:{SX+3}] offset0:0 offset1:{XRP // 8}')
    elif FOLDW:
        a('s_mov_b64 exec, s[26:27]')
        a(f'ds_write_b128 v113, v[{SACC}:{SACC+3}]')
        a('s_mov_b64 exec, -1')
        a(f'v_cmp_u_f32 vcc, v{SX}, v{SX+1}')
        for r in range(4): a(f'v_permlane32_swap_b32 v{SX+r}, v{SX+4+r}')
        for r in range(4): a(f'v_add_f32 v{SX+r}, v{SX+r}, v{SX+4+r}')
        a(f'ds_write_b128 v112, v[{SX}:{SX+3}]')
    else:
        a(f'ds_write_b128 v112, v[{SX}:{SX+3}]')
        if NANCHK: a(f'v_cmp_u_f32 vcc, v{SX}, v{SX+1}')
        a(f'ds_write_b128 v112, v[{SX+4}:{SX+7}] offset:256')
        a('s_mov_b64 exec, s[26:27]')
        a(f'ds_write_b128 v113, v[{SACC}:{SACC+3}]')
        a('s_mov_b64 exec, -1')
    if NANCHK:
        a(f's_cbranch_vccnz {L("retry")}')
        a.label(L('cont'))
    stamp(a, 3)
    a('s_waitcnt lgkmcnt(0)')
    a('s_barrier')
    stamp(a, 4)
    t = ACC
    if RED2:
        a(f'ds_read_b128 v[{t}:{t+3}], v114')
        a(f'ds_read_b128 v[{t+8}:{t+11}], v115')
    else:
        for k in range(2 if FOLDW else 4): a(f'ds_read_b64 v[{t+2*k}:{t+2*k+1}], v114 offset:{k*1024}')
        a(f'ds_read2_b32 v[{t+8}:{t+9}], v115 offset0:0 offset1:64')
    if w == F1_WAVE: a(f'v_lshl_add_u32 v{t+20}, v2, 3, s36')
    np1 = [0]
    def ep1(k):
        if V5 and w == 3 and k >= V5E:
            a(f'buffer_load_dword v{8+np1[0]}, v0, {SRD}, s20 offen sc1'); np1[0] += 1
    def f1(pos):
        if w == F1_WAVE and pos == F1_POS:
            exec_lo(a, R1)
            a(f'buffer_store_dword v2, v{t+20}, {SRD}, s20 offen {st}')
            a('s_mov_b64 exec, -1')
    if F1_POS < 0 and w == F1_WAVE:
        a.nop(4 * (F1_POS + 4)); f1(F1_POS)
    a('s_waitcnt lgkmcnt(0)')
    f1(0)
    stamp(a, 5)
    sm, sx = t + 8, t
    if RED2:
        a(f'v_add_f32 v{t}, v{t}, v{t+2}')
        f1(8)
        a(f'v_add_f32 v{t+1}, v{t+1}, v{t+3}')
        f1(9)
        a(f'v_add_f32 v{t+8}, v{t+8}, v{t+9}')
        f1(10)
        a(f'v_add_f32 v{t+10}, v{t+10}, v{t+11}')
        if WSPL != 2: a(f'v_permlane32_swap_b32 v{t}, v{t+1}')
        a(f'v_add_f32 v{sm}, v{t+8}, v{t+10}')
        f1(11)
        a(f'v_add_f32 v{sx}, v{t}, v{t+1}')
    else:
        a(f'v_add_f32 v{sm}, v{t+8}, v{t+9}')
        a(f'v_add_f32 v{t}, v{t}, v{t+2}')
        a(f'v_add_f32 v{t+1}, v{t+1}, v{t+3}')
        f1(10)
        a(f'v_add_f32_dpp v{sm}, v{sm}, v{sm} row_ror:8 {D}')
        if FOLDW:
            a(f'v_mov_b32 v{t+9}, v{sm}')
            f1(11)
            a(f'v_permlane32_swap_b32 v{t}, v{t+1}')
            a(f'v_add_f32 v{sx}, v{t}, v{t+1}')
            f1(12)
            a(f'v_permlane16_swap_b32 v{sm}, v{t+9}')
            a(f'v_add_f32 v{sm}, v{sm}, v{t+9}')
            f1(13)
        else:
            a(f'v_add_f32 v{t+4}, v{t+4}, v{t+6}')
            a(f'v_add_f32 v{t+5}, v{t+5}, v{t+7}')
            a(f'v_mov_b32 v{t+9}, v{sm}')
            a(f'v_add_f32 v{t}, v{t}, v{t+4}')
            a(f'v_add_f32 v{t+1}, v{t+1}, v{t+5}')
            a(f'v_permlane16_swap_b32 v{sm}, v{t+9}')
            a(f'v_add_f32 v{sm}, v{sm}, v{t+9}')
            a(f'v_permlane32_swap_b32 v{t}, v{t+1}')
            a(f'v_add_f32 v{sx}, v{t}, v{t+1}')
    if FAST:
        ex, em, ab = t + 12, t + 13, t + 14
        l = t + 3; u = t + 4; v = t + 5; lo = t + 6; hi = t + 7
        def norm(fast):
            a(f'v_fma_f32 v{l}, v{em}, s37, v{ex}')
            if fast: a(f'v_cmp_ngt_f32 vcc, s56, v{ab}')
            a(f'v_cndmask_b32 v{v}, v{ex}, v{em}, s[38:39]')
            a(f'v_add_f32_dpp v{l}, v{l}, v{l} quad_perm:[1,0,3,2] {D}')
            a(f'v_cndmask_b32 v{u}, v{em}, v{ex}, s[38:39]')
            a(f'v_mov_b32_dpp v{t+10}, v{v} quad_perm:[1,0,3,2] {D}')
            a(f'v_add_f32_dpp v{l}, v{l}, v{l} quad_perm:[2,3,0,1] {D}')
            a(f'v_cndmask_b32 v{lo}, v{t+10}, v{u}, s[38:39]')
            a(f'v_cndmask_b32 v{hi}, v{u}, v{t+10}, s[38:39]')
            a(f'v_add_f32_dpp v{l}, v{l}, v{l} row_half_mirror {D}')
            if fast: a(f's_cbranch_vccnz {L("slow")}')
            if fast: ep1(0)
            a(f'v_add_f32_dpp v{t+11}, v{l}, v{l} row_mirror {D}')
            a(f'v_add_f32_dpp v{l}, v{l}, v{l} row_mirror {D}')
            if fast: ep1(1)
            a(f'v_permlane16_swap_b32 v{l}, v{t+11}')
            a(f'v_add_f32 v{l}, v{l}, v{t+11}')
            a(f'v_rcp_f32 v{l}, v{l}')
            a('s_mov_b64 exec, s[28:29]')
            a(f'v_mul_f32 v{lo}, v{lo}, v{l}')
            a(f'v_mul_f32 v{hi}, v{hi}, v{l}')
            a(f'v_cvt_pk_bf16_f32 v{lo}, v{lo}, v{hi}')
        if RED2: a(f'v_exp_f32 v{em}, v{sm}')
        a(f'v_exp_f32 v{ex}, v{sx}')
        if not RED2: a(f'v_exp_f32 v{em}, v{sm}')
        a(f'v_add_f32 v{ab}, abs(v{sx}), abs(v{sm})')
        f1(1)
        norm(True)
        a.label(L('pst'))
    else:
        mx = t + 2
        a(f'v_max_f32 v{mx}, v{sx}, v{sm}')
        f1(1)
        a(f'v_max_f32_dpp v{mx}, v{mx}, v{mx} quad_perm:[1,0,3,2] {D}')
        a(f'v_max_f32_dpp v{mx}, v{mx}, v{mx} quad_perm:[2,3,0,1] {D}')
        a(f'v_max_f32_dpp v{mx}, v{mx}, v{mx} row_half_mirror {D}')
        a(f'v_max_f32_dpp v{mx}, v{mx}, v{mx} row_mirror {D}')
        a(f'v_mov_b32 v{t+3}, v{mx}')
        a(f'v_permlane16_swap_b32 v{mx}, v{t+3}')
        a(f'v_max_f32 v{mx}, v{mx}, v{t+3}')
        f1(2)
        a(f'v_sub_f32 v{sx}, v{sx}, v{mx}')
        a(f'v_sub_f32 v{sm}, v{sm}, v{mx}')
        a(f'v_exp_f32 v{sx}, v{sx}')
        a(f'v_exp_f32 v{sm}, v{sm}')
        l = t + 3; u = t + 4; v = t + 5; lo = t + 6; hi = t + 7
        a(f'v_fma_f32 v{l}, v{sm}, s37, v{sx}')
        a(f'v_cndmask_b32 v{u}, v{sm}, v{sx}, s[38:39]')
        a(f'v_cndmask_b32 v{v}, v{sx}, v{sm}, s[38:39]')
        a(f'v_add_f32_dpp v{l}, v{l}, v{l} quad_perm:[1,0,3,2] {D}')
        a(f'v_mov_b32_dpp v{t+10}, v{v} quad_perm:[1,0,3,2] {D}')
        a(f'v_add_f32_dpp v{l}, v{l}, v{l} quad_perm:[2,3,0,1] {D}')
        a(f'v_cndmask_b32 v{lo}, v{t+10}, v{u}, s[38:39]')
        a(f'v_cndmask_b32 v{hi}, v{u}, v{t+10}, s[38:39]')
        f1(3)
        a(f'v_add_f32_dpp v{l}, v{l}, v{l} row_half_mirror {D}')
        a(f'v_add_f32_dpp v{l}, v{l}, v{l} row_mirror {D}')
        a(f'v_mov_b32 v{t+11}, v{l}')
        a(f'v_permlane16_swap_b32 v{l}, v{t+11}')
        a(f'v_add_f32 v{l}, v{l}, v{t+11}')
        f1(4)
        a(f'v_rcp_f32 v{l}, v{l}')
        a(f'v_mul_f32 v{lo}, v{lo}, v{l}')
        a(f'v_mul_f32 v{hi}, v{hi}, v{l}')
        a(f'v_cvt_pk_bf16_f32 v{lo}, v{lo}, v{hi}')
        a(f'v_min_u32 v{lo}, -2, v{lo}')
        a('s_mov_b64 exec, s[28:29]')
    a(f'buffer_store_dword v{lo}, v1, {SRD}, s20 offen {st}')
    a('s_mov_b64 exec, -1')
    f1(5)
    stamp(a, 6)
    if V5:
        PR, YT, LO, HI, VS = 8, 48, 64, 68, 72
        co = [0, 1, 2, 3, 4, 8, 9, 5, 6, 7]
        pr = lambda c: PR + 4 * co.index(c)
        bo = lambda c: YT + 8 * (c - 8) if c >= 8 else VS + 8 * (c % 5)
        def vrd(c):
            for k in range(2): a(f'ds_read_b128 v[{bo(c)+4*k}:{bo(c)+4*k+3}], v2 offset:{VL - 65536 + (2*c + k)*1024}')
        if w == 3:
            n0 = np1[0]
            def yld():
                for k in range(4): a(f'buffer_load_dwordx4 v[{YT+4*k}:{YT+4*k+3}], v119, {SRD}, s58 offen offset:{k*1024} sc1')
            for k in range(n0, PD_V):
                if YE and k == n0: yld()
                a(f'buffer_load_dword v{8+k}, v0, {SRD}, s20 offen sc1')
                if k == n0:
                    a(f'v_add_u32 v2, 0x10000, v2')
                    a(f'ds_read_b128 v[4:7], v2 offset:{CL - 65536}')
                    a(f's_waitcnt vmcnt({n0 + 2 + 4*YE})')
                    a('s_barrier')
                    for c in range(2): vrd(c)
                elif k == n0 + 1:
                    for c in range(2, 5): vrd(c)
                    a(f'v_subrev_u32 v2, 0x10000, v2')
                elif k == n0 + 2:
                    a(f's_add_u32 s22, s20, {PX}')
                    a(f's_add_u32 s34, s20, {PX + 4096}')
                    a(f's_add_u32 s23, s20, {PM}')
                    a('s_mov_b32 s62, 0')
                    for r in range(4): a(f'v_mov_b32 v{LO+r}, 0')
                else: a.nop(PG_V)
            flagpoll(a, 0, 's20', 8, L('fw'), ABORT, PD_V, 0, PD_V)
            def pld(c):
                so = ('s22', 's34', 's23')[c // 4]
                a(f'buffer_load_dwordx4 v[{pr(c)}:{pr(c)+3}], v{4 if c < 8 else 2}, {SRD}, {so} offen offset:{(c & 3)*1024} sc1')
            def psm(c): a(f'v_smfmac_f32_16x16x64_bf16 v[{LO}:{LO+3}], v[{pr(c)}:{pr(c)+3}], v[{bo(c)}:{bo(c)+7}], v5')
            a('s_waitcnt lgkmcnt(0)')
            q = []
            for c in co:
                if c == 8 and not YE: yld(); q += ['y'] * 4
                pld(c); q.append(c)
            a('s_barrier')
            a(f'v_add_u32 v2, 0x10000, v2')
            for i, c in enumerate(co):
                a(f's_waitcnt vmcnt({len(q) - 1 - q.index(c)})' + (f' lgkmcnt({2*(7-c)})' if 5 <= c < 8 else ''))
                psm(c)
                if c < 3: vrd(c + 5)
                if i == V5F2:
                    q.append('f')
                    exec_lo(a, R2)
                    a(f'buffer_store_dword v2, v6, {SRD}, s21 offen {st}')
                    a('s_mov_b64 exec, -1')
            a.label(L('ep'))
            a(f'v_add_f32 v{HI}, v{LO}, v{LO+1}')
            a(f'v_add_f32 v{HI+1}, v{LO+2}, v{LO+3}')
            a(f'v_cmp_u_f32 vcc, v{HI}, v{HI+1}')
            a(f'v_mov_b32_dpp v{HI+2}, v{HI} row_ror:8 {D}')
            a(f'v_mov_b32_dpp v{HI}, v{HI+1} row_ror:8 row_mask:0xf bank_mask:0xc')
            a(f's_cbranch_vccnz {L("rp")}')
            a(f'v_mov_b32_dpp v{HI+1}, v{HI+2} quad_perm:[0,1,2,3] row_mask:0xf bank_mask:0x3')
            a(f'v_cvt_pk_bf16_f32 v{HI}, v{HI}, v{HI+1}')
            a.label(L('pc'))
            a('s_mov_b64 exec, s[64:65]')
            a(f'buffer_store_dword v{HI}, v7, {SRD}, s21 offen {st}')
            a(f's_cmp_lg_u32 s19, {NSTEPS-2}')
            a(f's_cbranch_scc1 {L("nl")}')
            a(f's_mov_b32 s22, {MEMG_OFF + (NSTEPS-1)*7*KB}')
            a(f'buffer_store_dword v{HI}, v7, {SRD}, s22 offen sc1')
            a.label(L('nl'))
            a('s_mov_b64 exec, -1')
            stamp(a, 7)
            a(f'ds_read_b128 v[4:7], v2 offset:{CL - 65536 + 1024}')
            a(f'v_subrev_u32 v2, 0x10000, v2')
            if V5 == 1:
                for r in range(4): a(f'v_mov_b32 v{YT+r}, -1')
                for k in range(4): a(f'buffer_store_dwordx4 v[{YT}:{YT+3}], v2, {SRD}, s58 offen offset:{k*1024} {st}')
                a(f's_xor_b32 s58, s58, {T2X_B}')
            a('s_waitcnt lgkmcnt(0)')
        else:
            a('s_waitcnt vmcnt(1)')
            a('s_barrier')
            a('s_barrier')
            if XG: a.nop(XG)
    else:
        a('s_barrier')
    if DMA_DELAY: a.nop(DMA_DELAY)
    if not NOBULK: a(f's_add_u32 s24, s24, {XSEG_B}')
    if not NOBULK: a(f's_add_u32 s35, s35, {GSH_B}')
    a(f's_xor_b32 s25, s25, {XSEG_B}')
    if NOX: pass
    elif not V5: x_dma(a, w, XG, XIN)
    elif w < 3:
        x_dma(a, w)
        for f in range(21 + w, 28, 3):
            a(f's_add_u32 m0, s25, {f*1024}')
            a(f's_add_u32 s22, s24, {(f - 7*w)*1024}')
            a(f'buffer_load_dwordx4 v2, {SRD}, s22 offen sc1 lds')
    a(f'v_xor_b32 v116, {XSEG_B}, v116')
    if MRG:
        a('v_add_u32 v117, s57, v117')
        a('s_sub_u32 s57, 0, s57')
    stamp_flush(a, w, 8, L('sf'), 8)
    if TMAX and w == 3:
        a('s_cmp_lg_u32 s17, 0')
        a(f's_cbranch_scc1 {L("tm")}')
        for k, stp in enumerate((1, 20, 40, 62)):
            a(f's_cmp_lg_u32 s19, {stp}')
            a(f's_cbranch_scc1 {L(f"tm{k}")}')
            tmax(a, 12 + k, 8)
            a.label(L(f'tm{k}'))
        a.label(L('tm'))
    if STEPLOG and w == 3:
        a('s_memtime s[40:41]')
        a('s_memrealtime s[42:43]')
        a('s_mov_b32 m0, s19')
        a('s_waitcnt lgkmcnt(0)')
        a('v_writelane_b32 v119, s40, m0')
        a('v_writelane_b32 v0, s42, m0')
    a('s_add_u32 s19, s19, 1')
    a('s_mov_b32 s20, s21')
    a(f's_cmp_lt_u32 s19, {NSTEPS-1}')
    a.flush()
    a(f's_cbranch_scc1 {L("loop")}')
    if STEPLOG and w == 3:
        a('s_lshl_b32 s22, s17, 8')
        a(f's_add_u32 s22, s22, {STAMP_OFF}')
        a('v_lshrrev_b32 v8, 2, v2')
        a(f'buffer_store_dword v119, v8, {SRD}, s22 offen')
        a('s_add_u32 s22, s22, 4096')
        a(f'buffer_store_dword v0, v8, {SRD}, s22 offen')
    a(f's_branch {tag}_done')
    for i in range(EC_M):
        a.label(L(f'er{i}'))
        ml(o1[i])
        a('s_waitcnt vmcnt(0)')
        a('s_add_u32 s31, s31, 0x100')
        spin(a, L(f'e{i}'), ABORT)
    if V5 and w == 3:
        a.label(L('rp'))
        a('s_cmp_eq_u32 s62, 0')
        a(f's_cbranch_scc1 {L("pv")}')
        a(f'v_mov_b32_dpp v{HI+1}, v{HI+2} quad_perm:[0,1,2,3] row_mask:0xf bank_mask:0x3')
        a(f'v_cvt_pk_bf16_f32 v{HI}, v{HI}, v{HI+1}')
        a(f'v_min_u32 v{HI}, -2, v{HI}')
        a(f's_branch {L("pc")}')
        a.label(L('pv'))
        a(f'v_subrev_u32 v2, 0x10000, v2')
        yld()
        for c in co: pld(c)
        a(f'v_add_u32 v2, 0x10000, v2')
        a('s_waitcnt vmcnt(0)')
        ck2 = Checker(a, HI)
        ck2.add(PR, 56); ck2.drain()
        a(f'v_cmp_eq_u32 vcc, -1, v{HI}')
        a(f's_cbranch_vccz {L("pk")}')
        spin(a, L('pv'), ABORT)
        a.label(L('pk'))
        a('s_mov_b32 s62, 1')
        a('s_add_u32 s31, s31, 0x10000')
        for r in range(4): a(f'v_mov_b32 v{LO+r}, 0')
        for c in (5, 6, 7, 3, 4, 8, 9): psm(c)
        for c in range(3): vrd(c)
        a('s_waitcnt lgkmcnt(0)')
        for c in range(3): psm(c)
        a.flush()
        a(f's_branch {L("ep")}')
    if FAST:
        a.label(L('slow'))
        mx = ab
        a(f'v_max_f32 v{mx}, v{sx}, v{sm}')
        for pm in ('quad_perm:[1,0,3,2]', 'quad_perm:[2,3,0,1]', 'row_half_mirror', 'row_mirror'): a(f'v_max_f32_dpp v{mx}, v{mx}, v{mx} {pm} {D}')
        a(f'v_mov_b32 v{t+11}, v{mx}')
        a(f'v_permlane16_swap_b32 v{mx}, v{t+11}')
        a(f'v_max_f32 v{mx}, v{mx}, v{t+11}')
        a(f'v_sub_f32 v{ex}, v{sx}, v{mx}')
        a(f'v_sub_f32 v{em}, v{sm}, v{mx}')
        a(f'v_exp_f32 v{ex}, v{ex}')
        a(f'v_exp_f32 v{em}, v{em}')
        a('s_add_u32 s31, s31, 0x100')
        for k in range(np1[0]): a(f'v_mov_b32 v{8+k}, -1')
        norm(False)
        a(f'v_min_u32 v{lo}, -2, v{lo}')
        a(f's_branch {L("pst")}')
    a.label(L('retry'))
    if NANCHK:
        a('s_cmp_lg_u32 s62, 0')
        a(f's_cbranch_scc1 {L("cont")}')
        a('s_waitcnt vmcnt(0) lgkmcnt(0)')
        a.label(L('rv'))
        for ks in range(7): ml(ks)
        a('s_waitcnt vmcnt(0)')
        ck2 = Checker(a, TR)
        ck2.add(M, 28); ck2.drain()
        a(f'v_cmp_eq_u32 vcc, -1, v{TR}')
        a(f's_cbranch_vccz {L("rk")}')
        spin(a, L('rv'), ABORT)
        a.label(L('rk'))
        a('s_mov_b32 s62, 1')
        zero()
        a('s_add_u32 s31, s31, 1')
        if NPRE == 7: a(f's_branch {L("ld2")}')
        else:
            for x in xfirst(): a(x)
            for ks in o1:
                for ti in range(7): a(S(ti, ks))
            for k_, f in sorted(xpos.items()):
                if k_ <= 28:
                    for x in xop(f)[0]: a(x)
            a(f's_branch {L("ph2")}')
    else:
        a('s_waitcnt vmcnt(0) lgkmcnt(0)')
        a.nop(10)
        zero()
        a('s_add_u32 s31, s31, 1')
        spin(a, L('ld'), ABORT)

def init_score(a, w):
    AOP = 64
    a(f's_mul_i32 s31, s17, {CUW_B}')
    a(f's_add_u32 s31, s31, {WF_A}')
    units = [((kap * 4 + q) * TILE_B + ks * UNIT, wreg(ti, ks)) for ti, (kap, q) in enumerate(score_tiles(w)) for ks in range(7) if not SELF or (ti >= 4 and SELF == 1)]
    load_units(a, units, 's31')
    a(f's_mov_b32 s24, {XF_OFF + 7*w*1024}')
    a('s_mov_b32 s25, 0')
    x_dma(a, w)
    a('v_lshrrev_b32 v64, 1, v117' if INL else 'v_and_b32 v64, 7, v117')
    a('v_and_b32 v65, 1, v116')
    a('v_lshlrev_b32 v65, 2, v65')
    a('v_sub_u32 v64, v64, v65')
    a('v_and_b32 v65, 1, v117' if INL else 'v_lshrrev_b32 v65, 3, v117')
    a('v_lshl_add_u32 v66, v65, 2, v64')
    a('v_cmp_gt_u32 vcc, 4, v64')
    a('v_mov_b32 v67, 99')
    a('v_cndmask_b32 v66, v67, v66, vcc')
    a('v_mov_b32 v68, 0x3f80')
    a('v_mov_b32 v69, 0x3f800000')
    for d in range(4):
        a(f'v_mov_b32 v{4+d}, 0')
        a(f'v_cmp_eq_u32 vcc, {2*d}, v66')
        a(f'v_cndmask_b32 v{4+d}, v{4+d}, v68, vcc')
        a(f'v_cmp_eq_u32 vcc, {2*d+1}, v66')
        a(f'v_cndmask_b32 v{4+d}, v{4+d}, v69, vcc')
    a('v_lshrrev_b32 v64, 1, v116')
    a('v_lshrrev_b32 v65, 3, v117')
    a('v_cmp_eq_u32 s[26:27], v64, v65')
    a('v_and_b32 v66, 1, v116')
    a(f'v_add_u32 v64, {2*w}, v64')
    if FOLDW:
        a('v_lshrrev_b32 v67, 1, v116')
        a('v_lshlrev_b32 v67, 8, v67')
    else: a('v_lshlrev_b32 v67, 10, v64')
    a('v_lshl_add_u32 v67, v66, 9, v67')
    a('v_lshl_add_u32 v67, v117, 4, v67')
    a(f'v_add_u32 v112, {XP + (w*1024 if FOLDW else 0)}, v67')
    a('v_and_b32 v68, 7, v117')
    a('v_lshlrev_b32 v67, 8, v64')
    a('v_lshl_add_u32 v67, v68, 5, v67')
    a('v_lshl_add_u32 v67, v66, 4, v67')
    a(f'v_add_u32 v113, {MP}, v67')
    a('v_lshrrev_b32 v64, 5, v1')
    a('v_and_b32 v65, 31, v1')
    a('v_lshrrev_b32 v66, 3, v65')
    a('v_and_b32 v67, 7, v65')
    a('v_and_b32 v68, 3, v67')
    a('v_lshl_add_u32 v68, v66, 2, v68')
    a('v_lshrrev_b32 v69, 2, v67')
    a('v_lshl_add_u32 v68, v69, 4, v68')
    a(f'v_lshlrev_b32 v69, {11 if FOLDW else 12}, v64')
    a('v_lshl_add_u32 v69, v68, 4, v69')
    a(f'v_add_u32 v114, {XP + (w >> 1) * 512 + 2 * (w & 1) * 4}, v69')
    a(f'v_add_u32 v70, {2*w}, v64')
    a('v_lshlrev_b32 v69, 9, v66')
    a('v_lshl_add_u32 v69, v70, 5, v69')
    a('v_lshl_add_u32 v69, v67, 2, v69')
    a(f'v_add_u32 v115, {MP}, v69')
    if RED2:
        a('v_lshlrev_b32 v69, 4, v68')
        a('v_lshl_add_u32 v69, v64, 9, v69')
        a(f'v_add_u32 v114, {XP + w*XRP}, v69')
        a('v_mul_u32_u24 v69, 144, v70')
        a('v_lshl_add_u32 v69, v67, 4, v69')
        a(f'v_add_u32 v115, {MP}, v69')
        a('v_and_b32 v71, 1, v116')
        a(f'v_mul_u32_u24 v69, {2*XRP}, v71')
        a('v_lshl_add_u32 v69, v64, 8, v69')
        a('v_lshl_add_u32 v69, v117, 4, v69')
        a(f'v_add_u32 v112, {XP + (w >> 1)*512 + 8*(w & 1)}, v69')
        a('v_mul_u32_u24 v69, 144, v117')
        a('v_lshl_add_u32 v69, v71, 6, v69')
        a('v_lshl_add_u32 v69, v64, 5, v69')
        a(f'v_add_u32 v113, {MP + 4*w}, v69')
        if INL:
            a(f'v_mul_u32_u24 v69, {XRP}, v116')
            a('v_lshl_add_u32 v69, v117, 4, v69')
            a('v_and_b32 v72, 8, v117')
            a(f'v_xor_b32 v72, {8*(w & 1)}, v72')
            a('v_add_u32 v69, v69, v72')
            a(f'v_add_u32 v112, {XP + (w >> 1)*512}, v69')
            if WSPL == 2:
                a('v_lshrrev_b32 v72, 3, v117')
                a('v_lshl_add_u32 v72, v71, 1, v72')
                a(f'v_xor_b32 v72, {w}, v72')
                a('v_lshlrev_b32 v69, 10, v116')
                a('v_lshl_add_u32 v69, v117, 4, v69')
                a('v_lshl_add_u32 v69, v72, 2, v69')
                a(f'v_add_u32 v112, {XP}, v69')
            a('v_lshrrev_b32 v69, 1, v117')
            a('v_and_b32 v72, 1, v117')
            a('v_lshl_add_u32 v69, v72, 3, v69')
            a('v_mul_u32_u24 v69, 144, v69')
            a('v_lshl_add_u32 v69, v71, 6, v69')
            a('v_lshl_add_u32 v69, v64, 5, v69')
            a('v_lshl_add_u32 v72, v72, 1, v71')
            a(f'v_xor_b32 v72, {w}, v72')
            a('v_lshl_add_u32 v69, v72, 2, v69')
            a(f'v_add_u32 v113, {MP}, v69')
    a('v_and_b32 v71, 1, v1')
    a('v_cmp_eq_u32 s[38:39], 0, v71')
    a('v_cmp_gt_u32 vcc, 8, v65')
    a('s_or_b64 s[28:29], s[38:39], vcc')
    a('v_lshrrev_b32 v72, 1, v67')
    a('v_lshlrev_b32 v72, 2, v72')
    a('v_lshl_add_u32 v72, v70, 4, v72')
    a('s_lshl_b32 s22, s17, 9')
    a(f's_add_u32 s22, s22, {PX}')
    a('v_lshl_add_u32 v73, v66, 7, v72')
    a('v_add_u32 v73, s22, v73')
    a('s_lshl_b32 s22, s17, 7')
    a(f's_add_u32 s22, s22, {PM}')
    a('v_add_u32 v74, s22, v72')
    if VSM:
        a('v_bfe_u32 v72, v65, 1, 1')
        a('v_lshlrev_b32 v72, 7, v72')
        a('v_lshl_add_u32 v72, v70, 4, v72')
        a('v_bfe_u32 v73, v65, 2, 2')
        a('v_lshl_add_u32 v72, v73, 2, v72')
        a('v_lshrrev_b32 v73, 4, v65')
        a('v_lshl_add_u32 v73, v73, 8, v72')
        a('s_lshl_b32 s22, s17, 9')
        a(f's_add_u32 s22, s22, {PX}')
        a('v_add_u32 v73, s22, v73')
        a('s_lshr_b32 s22, s17, 1')
        a('s_lshl_b32 s22, s22, 8')
        a('s_and_b32 s34, s17, 1')
        a('s_lshl_b32 s34, s34, 3')
        a('s_add_u32 s22, s22, s34')
        a(f's_add_u32 s22, s22, {PM}')
        a('v_add_u32 v74, s22, v72')
    if PL2:
        a('v_bfe_u32 v72, v65, 1, 1')
        a('v_lshl_add_u32 v72, v64, 1, v72')
        a('v_lshlrev_b32 v72, 4, v72')
        a('v_bfe_u32 v73, v65, 2, 2')
        a('v_lshl_add_u32 v72, v73, 2, v72')
        a('v_lshrrev_b32 v73, 4, v65')
        a('v_lshl_add_u32 v73, v73, 6, v72')
        a('s_lshl_b32 s22, s17, 9')
        a(f's_add_u32 s22, s22, {PX + w*128}')
        a('v_add_u32 v73, s22, v73')
        a('v_lshrrev_b32 v72, 1, v65')
        a('v_lshlrev_b32 v72, 2, v72')
        a('v_lshl_add_u32 v72, v64, 5, v72')
        a('s_lshr_b32 s22, s17, 1')
        a('s_lshl_b32 s22, s22, 8')
        a('s_and_b32 s34, s17, 1')
        a('s_lshl_b32 s34, s34, 4')
        a('s_add_u32 s22, s22, s34')
        a(f's_add_u32 s22, s22, {PM + w*64}')
        a('v_add_u32 v74, s22, v72')
    a('v_lshlrev_b32 v0, 2, v65')
    if PRI: a('v_and_b32 v0, 0x78, v0')
    if F2ONE: a(f'v_and_b32 v0, 0x78, v0\nv_or_b32 v0, {4*(F2ONE-1)}, v0')
    a(f's_and_b32 s22, s17, {R2-1}')
    a('s_lshl_b32 s22, s22, 7')
    a(f's_add_u32 s22, s22, {F2}')
    a(f'v_add_u32 v0, s22, v0')
    a('v_cndmask_b32 v1, v74, v73, s[38:39]')
    a('s_lshl_b32 s36, s17, 2')
    a(f's_add_u32 s36, s36, {F1}')
    a('s_mov_b32 s37, 0x3e800000')
    for r in range(64, 112): a(f'v_mov_b32 v{r}, 0')
    if MRG:
        a('v_and_b32 v118, 1, v116')
        a('v_cmp_eq_u32 vcc, 0, v118')
        a(f'v_mov_b32 v118, {6*2048 + (w >> 1)*256}')
        a(f'v_mov_b32 v119, {(4 + (w >> 1))*2048 + (w & 1)*256}')
        a('v_cndmask_b32 v118, v118, v119, vcc')
        a('v_lshrrev_b32 v116, 1, v116')
        a('v_lshl_add_u32 v118, v116, 9, v118')
        a('v_lshl_add_u32 v117, v117, 4, v118')
        a(f's_mov_b32 s57, {XSEG_B}')
    if INL:
        a('v_bfe_u32 v118, v2, 4, 1')
        a('v_mul_u32_u24 v118, 0xaaaa, v118')
        a('v_add_u32 v118, 0x4444, v118')
    a('s_mov_b32 s56, 0x42800000')
    a('v_mov_b32 v116, v2')
    if not MRG:
        a('v_lshrrev_b32 v117, 4, v2')
        a('v_min_u32 v117, 55, v117')
        a('v_lshlrev_b32 v117, 7, v117')
    if w in (1, 2):
        nl = 10 if w == 1 else 14
        a('v_lshrrev_b32 v0, 4, v2')
        a(f'v_min_u32 v0, {nl-1}, v0')
        a(f's_mul_i32 s22, s17, {nl}')
        a('v_add_u32 v0, s22, v0')
        a('v_lshlrev_b32 v0, 7, v0')
        a(f'v_add_u32 v0, {2*EXCH_B if w == 1 else 2*XSEG_B - 7*w*1024}, v0')
        for k in (1, 2):
            a(f's_mov_b32 s22, {EXCH_OFF - k*EXCH_B if w == 1 else XF_OFF + 7*w*1024 - k*XSEG_B}')
            a(f'buffer_load_dword v119, v0, {SRD}, s22 offen sc1')
    if X_PRELOAD:
        a(f's_mul_i32 s22, s17, {4*XSEG_B}')
        a(f's_add_u32 s22, s22, {XF_OFF + w*XSEG_B}')
        for k in range(4):
            a(f'buffer_load_dword v119, v117, {SRD}, s22 offen')
            a(f's_add_u32 s22, s22, {56*128}')
    if SC_ALLPOLL:
        a('v_lshrrev_b32 v117, 4, v2')
        a('v_and_b32 v117, 31, v117')
        a('v_lshlrev_b32 v117, 2, v117')
        a(f'v_add_u32 v117, {F2}, v117')
    a(f's_mul_i32 s35, s17, {64*GSH_B}')
    a(f's_add_u32 s35, s35, {VO_OFF if V5 else VO_OFF + TOUCH_AHEAD*GSH_B + w*56*128}')
    if V5:
        a('v_lshrrev_b32 v8, 8, v2')
        a('v_bfe_u32 v9, v2, 4, 3')
        a('v_bfe_u32 v10, v2, 7, 1')
        a('v_min_u32 v11, 5, v9')
        a('v_lshl_add_u32 v12, v11, 1, v10')
        a('v_add_u32 v12, 16, v12')
        a('v_mad_u32_u24 v12, v8, 28, v12')
        a('v_lshlrev_b32 v118, 4, v12')
        if w == 3:
            a('v_lshl_add_u32 v12, v10, 3, v11')
            a('v_lshlrev_b32 v12, 4, v12')
            a('v_lshl_add_u32 v119, v8, 8, v12')
            a('v_cmp_gt_u32 s[64:65], 6, v9')
            a('s_lshl_b32 s22, s17, 8')
            a(f's_add_u32 s22, s22, {F1 + 128}')
            a('v_bfe_u32 v12, v2, 4, 4')
            a('v_lshl_add_u32 v0, v12, 2, s22')
            a('v_lshrrev_b32 v16, 1, v8')
            a('v_lshlrev_b32 v16, 9, v16')
            a('v_lshrrev_b32 v13, 2, v12')
            a('v_lshl_add_u32 v16, v13, 7, v16')
            a('v_and_b32 v13, 1, v8')
            a('v_lshl_add_u32 v16, v13, 6, v16')
            a('v_and_b32 v13, 3, v12')
            a('v_lshl_add_u32 v16, v13, 4, v16')
            a('v_and_b32 v13, 1, v12')
            a('v_mul_u32_u24 v13, 0xaaaa, v13')
            a('v_add_u32 v17, 0x4444, v13')
            a('s_lshl_b32 s22, s17, 3')
            a(f's_add_u32 s22, s22, {F2 + 4}')
            a('v_lshl_add_u32 v18, v2, 3, s22')
            a('s_mul_i32 s22, s17, 28')
            a('s_add_u32 s22, s22, 16')
            a('v_lshl_add_u32 v13, v9, 1, s22')
            a('v_lshrrev_b32 v19, 4, v13')
            a('v_lshlrev_b32 v19, 8, v19')
            a('v_bfe_u32 v14, v13, 1, 1')
            a('v_lshl_add_u32 v19, v14, 7, v19')
            a('v_bfe_u32 v14, v13, 2, 2')
            a('v_lshl_add_u32 v19, v14, 2, v19')
            a('v_lshl_add_u32 v14, v8, 1, v10')
            a('v_lshl_add_u32 v19, v14, 4, v19')
            a(f'v_add_u32 v12, {CL}, v2')
            a('ds_write_b128 v12, v[16:19]')
            a('ds_write_b128 v12, v[4:7] offset:1024')
            a('s_lshl_b32 s58, s17, 12')
            a(f's_add_u32 s58, s58, {T2X_OFF if V5 == 1 else XF_OFF}')
        a('s_lshl_b32 s22, s17, 7')
        a(f's_add_u32 s22, s22, {CNT_OFF + VOC - 2048}')
        poll_eq(a, f'sc_vw{w}', SRD, 's22', 56, sleep=2)
        a('s_waitcnt lgkmcnt(0)')

YL = 0; ML = 8 * KB; WL = 16 * KB
def vtiles(w): return (6 * w, 6, 6) if w < 2 else (12 + 8 * (w - 2), 8, 7)
def vwreg(w, ti, ks):
    u = ti * 7 + ks
    return 256 + 8 * u if u < 32 else (176 if w < 2 else 120) + 8 * (u - 32)

VOK = 63
def vok_load(a):
    a('s_sub_u32 s22, s39, s35')
    a(f'v_lshlrev_b32 v{VOK}, 7, v2')
    a(f'v_min_u32 v{VOK}, s22, v{VOK}')
    a(f'buffer_load_dword v{VOK}, v{VOK}, {SRD}, s35 offen sc1')
def vo_wait(a, L, ABORT, t):
    a(f's_branch {L("voc")}')
    a.label(L('vow'))
    vok_load(a)
    a('s_waitcnt vmcnt(0)')
    a.label(L('voc'))
    a(f'v_readfirstlane_b32 s22, v{VOK}')
    a('s_cmp_eq_u32 s22, 56')
    a(f's_cbranch_scc1 {L("vod")}')
    a('s_sleep 1')
    spin(a, L('vow'), ABORT)
    a.label(L('vod'))
    a('s_add_u32 s35, s35, 2048')
    if V5:
        a('s_add_u32 s38, s19, 9')
        a('s_and_b32 s38, s38, -8')
        a('s_sub_u32 s38, s38, 1')
        a('s_cmp_eq_u32 s19, 0')
        a('s_cselect_b32 s38, 3, s38')
        return
    a('s_add_u32 s38, s19, 8')
    a('s_and_b32 s38, s38, -8')
    a('s_cmp_eq_u32 s19, 0')
    a('s_cselect_b32 s38, 4, s38')
    a(f'v_cmp_ne_u32 vcc, 56, v{VOK}')
    a('s_nop 3')
    a('s_cmp_eq_u64 vcc, 0')
    a('s_cselect_b32 s38, 99, s38')

def yaN(fin): return [60, 61, 62, 170, 171, 172] if fin else list(range(100, 108))
def gen_value(a, w, st, tag):
    L = lambda n: f'{tag}_va{w}_{n}'
    ABORT = f'{tag}_abort'
    fin = w < 2
    t0, ntile, nreg = vtiles(w)
    M = 8; ACC = 36
    YA = 60 if fin else 112
    CK = 175
    def S(ti, ks, b=None):
        if NOT2: return 's_nop 2'
        return f'v_smfmac_f32_16x16x64_bf16 v[{ACC+4*ti}:{ACC+4*ti+3}], v[{M+4*ks}:{M+4*ks+3}], {b or ureg(vwreg(w, ti, ks), 8)}, v3'
    def fold(p):
        A_ = ACC + 8 * p; B_ = A_ + 4
        o = [f'v_permlane32_swap_b32 v{A_+r}, v{B_+r}' for r in range(4)]
        o += [f'v_add_f32 v{A_+r}, v{A_+r}, v{B_+r}' for r in range(4)]
        o += [f'v_cvt_pk_bf16_f32 v{B_}, v{A_}, v{A_+1}', f'v_cvt_pk_bf16_f32 v{B_+1}, v{A_+2}, v{A_+3}', f'ds_write2_b32 v{YA+p}, v{B_}, v{B_+1} offset0:0 offset1:2' if PL2 else f'ds_write_b64 v{YA+p}, v[{B_}:{B_+1}]']
        return o
    VP = (0 if fin else 5) if TIN else 2
    def run(seq):
        last = {}
        for i, (ti, m, pre) in enumerate(seq): last[ti] = i
        pend = []; delay = 0
        if TIN:
            for i, (ti, m, pre) in enumerate(seq):
                for x in pre: a(x)
                a(m)
                if pend and pend[0][0] <= i: a(pend.pop(0)[1])
                if i == last[ti]:
                    A_ = ACC + 4 * ti
                    pend += [(i + 3, x) for x in (f'v_add_f32 v{A_}, v{A_}, v{A_+1}', f'v_add_f32 v{A_+2}, v{A_+2}, v{A_+3}', f'v_cvt_pk_bf16_f32 v{A_}, v{A_}, v{A_+2}', f'ds_write_b32 v{yaN(fin)[ti]}, v{A_}')]
            for x in pend: a(x[1])
            return
        for i, (ti, m, pre) in enumerate(seq):
            for x in pre: a(x)
            a(m)
            if delay: delay -= 1
            elif pend:
                a(pend.pop(0))
                if len(pend) > 12: a(pend.pop(0))
            p = ti // 2
            if i == max(last[2 * p], last[2 * p + 1]):
                pend += fold(p)
                if not delay: delay = 3
        for x in pend: a(x)
    if ALIGN: a.raw(f'.p2align {ALIGN}\n' + '  s_nop 0\n' * APAD)
    a.label(L('loop'))
    step_bases(a)
    if not fin:
        for r in range(ACC, ACC + 4 * ntile): a(f'v_mov_b32 v{r}, 0')
    a('s_mov_b32 s30, 0')
    if fin and KS:
        VOR = 64; YT = 144; LO = 36; E = 44; PB = 52; HL = 15 * KB
        my = list(range(KS, 10)) if w == 0 else list(range(KS))
        pr = lambda c: 8 + 4 * my.index(c)
        bop = lambda c, t: VOR + 16 * my.index(c) + 8 * t if c < 8 else YT + 16 * t + 8 * (c - 8)
        a('s_cmp_lg_u32 s19, s38')
        a(f's_cbranch_scc1 {L("vok")}')
        vo_wait(a, L, ABORT, E)
        a.label(L('vok'))
        a('s_barrier')
        stamp(a, 0)
        for t in range(2):
            if t: a('s_mov_b64 exec, s[26:27]')
            for c in my:
                if c >= 8: continue
                a(f's_add_u32 s22, s25, {c*3584}')
                for k in range(2): a(f'buffer_load_dwordx4 v[{bop(c,t)+4*k}:{bop(c,t)+4*k+3}], v6, {SRD}, s22 offen offset:{k*1792 + t*256} sc1')
        a('s_mov_b64 exec, -1')
        a(f'buffer_load_dword v{VOK}, off, {SRD}, s35 sc1')
        a('s_barrier')
        stamp(a, 1)
        for ks in range(7): a(f'ds_read_b128 v[{M+4*ks}:{M+4*ks+3}], v2 offset:{ML + ks*1024}')
        a('s_waitcnt lgkmcnt(0)')
        run([(ti, S(ti, ks), []) for ti in range(ntile) for ks in range(7)])
        stamp(a, 2)
        a(f's_add_u32 s22, s20, {PX}')
        a(f's_add_u32 s34, s20, {PX + 4096}')
        a(f's_add_u32 s36, s20, {PM}')
        a('s_mov_b32 s37, 0')
        a('s_waitcnt lgkmcnt(0)')
        for r in range(8): a(f'v_mov_b32 v{LO+r}, 0')
        flagpoll(a, 4, 's20', E, L('fw'), ABORT, PD_V, PG_V)
        stamp(a, 4)
        def pld(c):
            so = ('s22', 's34', 's36')[c // 4]
            a(f'buffer_load_dwordx4 v[{pr(c)}:{pr(c)+3}], v{5 if c < 8 else 2}, {SRD}, {so} offen offset:{(c & 3)*1024} sc1')
        def psm(c, t): a(f'v_smfmac_f32_16x16x64_bf16 v[{LO+4*t}:{LO+4*t+3}], v[{pr(c)}:{pr(c)+3}], v[{bop(c,t)}:{bop(c,t)+7}], v0')
        q = []
        for i, c in enumerate(my):
            pld(c); q.append(c)
            if w == 0 and i < KS: a.nop(KGAP)
        a('s_barrier')
        if w == 0:
            for t in range(2):
                for k in range(4): a(f'ds_read_b128 v[{YT+16*t+4*k}:{YT+16*t+4*k+3}], v2 offset:{YL + t*4096 + k*1024}')
        n = 0
        for c in my:
            a(f's_waitcnt vmcnt({len(q) - 1 - q.index(c)})' + (' lgkmcnt(0)' if c == 8 and B3P > n else ' lgkmcnt(1)' if c == 8 else ''))
            if c == my[0]: stamp(a, 5)
            for t in range(2):
                psm(c, t); n += 1
                if w == 0 and n == F2K:
                    q.append('f')
                    exec_lo(a, R2)
                    a(f'buffer_store_dword v2, v7, {SRD}, s21 offen {st}')
                    a('s_mov_b64 exec, -1')
                if w == 0 and n == B3P:
                    a('s_barrier')
                    a(f'ds_read_b128 v[{PB}:{PB+3}], v2 offset:{HL}')
                    stamp(a, 3)
        a.label(L('ep'))
        if w == 1:
            for k in range(4): a(f'v_add_f32 v{E+k}, v{LO+2*k}, v{LO+2*k+1}')
            a(f'ds_write_b128 v2, v[{E}:{E+3}] offset:{HL}')
            a(f'v_cmp_u_f32 vcc, v{E}, v{E+1}')
            a(f's_cbranch_vccnz {L("rp")}')
            a.label(L('pc'))
            a('s_waitcnt lgkmcnt(0)')
            stamp(a, 3)
            a('s_barrier')
            a(f's_cmp_eq_u32 s19, {NSTEPS-2}')
            a(f's_cbranch_scc1 {tag}_done')
        else:
            RO = 'row_ror:8 row_mask:0xf bank_mask:0xc'; QP = 'quad_perm:[0,1,2,3] row_mask:0xf bank_mask:0x3'
            a(f'v_add_f32 v{E}, v{LO}, v{LO+1}')
            a(f'v_add_f32 v{E+1}, v{LO+2}, v{LO+3}')
            a('s_waitcnt lgkmcnt(0)')
            a(f'v_add_f32 v{E}, v{E}, v{PB}')
            a(f'v_add_f32 v{E+1}, v{E+1}, v{PB+1}')
            a(f'v_add_f32 v{E+2}, v{LO+4}, v{LO+5}')
            a(f'v_add_f32 v{E+3}, v{LO+6}, v{LO+7}')
            a(f'v_cmp_u_f32 vcc, v{E}, v{E+1}')
            a(f'v_add_f32 v{E+2}, v{E+2}, v{PB+2}')
            a(f'v_add_f32 v{E+3}, v{E+3}, v{PB+3}')
            a(f'v_mov_b32_dpp v{E+4}, v{E} row_ror:8 {D}')
            a(f'v_mov_b32_dpp v{E}, v{E+1} {RO}')
            a(f'v_mov_b32_dpp v{E+5}, v{E+2} row_ror:8 {D}')
            a(f'v_mov_b32_dpp v{E+1}, v{E+4} {QP}')
            a(f'v_mov_b32_dpp v{E+2}, v{E+3} {RO}')
            a(f'v_cvt_pk_bf16_f32 v{E}, v{E}, v{E+1}')
            a(f'v_mov_b32_dpp v{E+3}, v{E+5} {QP}')
            a(f's_cbranch_vccnz {L("rp")}')
            a.label(L('pc'))
            a(f'buffer_store_dword v{E}, v1, {SRD}, s21 offen {st}')
            a(f'v_cvt_pk_bf16_f32 v{E+2}, v{E+2}, v{E+3}')
            a('s_mov_b64 exec, s[26:27]')
            a(f'v_min_u32 v{E+2}, -2, v{E+2}')
            a(f'buffer_store_dword v{E+2}, v1, {SRD}, s21 offen offset:256 {st}')
            a(f's_cmp_lg_u32 s19, {NSTEPS-2}')
            a(f's_cbranch_scc1 {L("nl")}')
            a(f's_mov_b32 s22, {MEMG_OFF + (NSTEPS-1)*7*KB}')
            a(f'buffer_store_dword v{E+2}, v1, {SRD}, s22 offen offset:256 sc1')
            a('s_mov_b64 exec, -1')
            a(f'buffer_store_dword v{E}, v1, {SRD}, s22 offen sc1')
            a(f's_branch {tag}_done')
            a.label(L('nl'))
            a('s_mov_b64 exec, -1')
        stamp(a, 6)
        a(f's_add_u32 s25, s25, {GSH_B}')
        stamp_flush(a, 4 + w, 8, L('sf'), 8)
        for r in range(ACC, ACC + 4 * ntile): a(f'v_mov_b32 v{r}, 0')
        a('s_add_u32 s19, s19, 1')
        a('s_mov_b32 s20, s21')
        a(f's_branch {L("loop")}')
        a.label(L('rp'))
        a('s_cmp_eq_u32 s37, 0')
        a(f's_cbranch_scc1 {L("rv")}')
        if w == 0: a(f'v_min_u32 v{E}, -2, v{E}')
        a(f's_branch {L("pc")}')
        a.label(L('rv'))
        for c in my: pld(c)
        a('s_waitcnt vmcnt(0) lgkmcnt(0)')
        ck2 = Checker(a, E)
        ck2.add(8, 4 * len(my)); ck2.drain()
        a(f'v_cmp_eq_u32 vcc, -1, v{E}')
        a(f's_cbranch_vccz {L("rk")}')
        spin(a, L('rv'), ABORT)
        a.label(L('rk'))
        a('s_mov_b32 s37, 1')
        a('s_add_u32 s31, s31, 0x10000')
        for r in range(8): a(f'v_mov_b32 v{LO+r}, 0')
        for c in my:
            for t in range(2): psm(c, t)
        a.flush()
        a(f's_branch {L("ep")}')
        return
    if fin:
        YT = 64; VOR = 80; LO = 156; HI = 160; PL = 164
        pr = lambda c: 8 + 4 * c if c < 7 else 144 + 4 * (c - 7)
        if SYNC:
            a('s_cmp_lg_u32 s19, s38')
            a(f's_cbranch_scc1 {L("vok")}')
            vo_wait(a, L, ABORT, PL)
            a.label(L('vok'))
        if T2SRV:
            a(f's_cmp_eq_u32 s19, {NSTEPS-1}')
            a(f's_cbranch_scc1 {tag}_done')
        def vol(lo, hi):
            if V5 and w == 1: return
            for h in range(lo, hi):
                if h % 2 == 0: a(f's_add_u32 s22, s25, s{72 + h // 2}' if PROT else f's_add_u32 s22, s25, {h*1792}')
                a(f'buffer_load_dwordx4 v[{VOR+4*h}:{VOR+4*h+3}], v6, {SRD}, s22 offen offset:{(h & 1)*1792} sc1')
        vol(0, VO_PRE0)
        if not SLOW_FIRST: a('s_barrier')
        stamp(a, 0)
        if VO_SLEEP: a(f's_sleep {VO_SLEEP}')
        vol(VO_PRE0, VO_PRE)
        if SYNC:
            a('s_add_u32 s22, s19, 1')
            a('s_cmp_lg_u32 s22, s38')
            a(f's_cbranch_scc1 {L("nk")}')
            vok_load(a)
            a.label(L('nk'))
        a('s_barrier')
        stamp(a, 1)
        for ks in range(7): a(f'ds_read_b128 v[{M+4*ks}:{M+4*ks+3}], v{VP} offset:{ML + ks*1024}')
        a('s_waitcnt lgkmcnt(0)')
        if T2DF: a(f's_sleep {T2DF}')
        def vop(i):
            h = VO_PRE + (i - 1) // VOI
            if i < 1 or (i - 1) % VOI or h >= 16: return []
            return [f's_add_u32 s22, s25, s{72 + h // 2}' if PROT else f's_add_u32 s22, s25, {(h & ~1)*1792}', f'buffer_load_dwordx4 v[{VOR+4*h}:{VOR+4*h+3}], v6, {SRD}, s22 offen offset:{(h & 1)*1792} sc1']
        run([(ti, S(ti, ks), vop(7 * ti + ks)) for ti in range(ntile) for ks in range(7)])
        stamp(a, 2)
        if V5 and w == 1:
            a('s_waitcnt lgkmcnt(0)')
            for r in range(ACC, ACC + 4 * ntile): a(f'v_mov_b32 v{r}, 0')
            a('s_barrier')
            a(f's_cmp_eq_u32 s19, {NSTEPS-2}')
            a(f's_cbranch_scc1 {tag}_done')
            a('s_add_u32 s19, s19, 1')
            a('s_mov_b32 s20, s21')
            a(f's_branch {L("loop")}')
            return
        npl = 0
        if V5 or PRI:
            for k, r in enumerate(range(ACC, ACC + 4 * ntile)):
                if PRI and (w == 0 or PRI == 2) and k % 8 == 0:
                    a(f'buffer_load_dword v{PL+npl}, v4, {SRD}, s20 offen sc1'); npl += 1
                if k == 0: a('s_waitcnt lgkmcnt(0)')
                a(f'v_mov_b32 v{r}, 0')
            if PRI and (w == 0 or PRI == 2):
                a(f'buffer_load_dword v{PL+npl}, v4, {SRD}, s20 offen sc1'); npl += 1
        a(f's_cmp_eq_u32 s19, {NSTEPS-1}')
        a(f's_cbranch_scc1 {L("last")}')
        a(f's_add_u32 s22, s20, {PX}')
        a(f's_add_u32 s34, s20, {PX + 4096}')
        a(f's_add_u32 s36, s20, {PM}')
        if PROT:
            for c in range(8): a(f's_add_u32 s{64+c}, s{64+c}, {EXCH_B}')
        a('s_mov_b32 s37, 0')
        for r in range(4): a(f'v_mov_b32 v{LO+r}, 0')
        if STAMPS and not VST:
            a('s_waitcnt vmcnt(0)')
            stamp(a, 7)
        if VSM and B2_POS < 0:
            a('s_waitcnt lgkmcnt(0)')
            for r in range(ACC, ACC + 4 * ntile): a(f'v_mov_b32 v{r}, 0')
            a('s_barrier')
            for k in range(4): a(f'ds_read_b128 v[{YT+4*k}:{YT+4*k+3}], v2 offset:{YL + w*4096 + k*1024}')
            stamp(a, 3)
        if FIN_SLEEP: a(f's_sleep {FIN_SLEEP}')
        if PRI == 1 and w == 1:
            a('s_barrier')
        else: flagpoll(a, 4, 's20', PL, L('fw'), ABORT, PD_V, PG_V, npl, lanes=16)
        if PRI == 2 and w == 1: a.nop(W1D)
        stamp(a, 4)
        a('s_waitcnt lgkmcnt(0)')
        if VSM:
            pl = PLAIN_P and st == ''
            def pld(c, sc):
                if FAKE5 and w == 1:
                    a('s_mov_b64 exec, 1')
                    a(f'buffer_load_dwordx4 v[{pr(c)}:{pr(c)+3}], v2, {SRD}, s20 offen')
                    a('s_mov_b64 exec, -1'); return
                if PROT and c < 8:
                    a(f'buffer_load_dwordx4 v[{pr(c)}:{pr(c)+3}], v{5 if PL2 else 2}, {SRD}, s{64+c} offen' + (' sc1' if sc else '')); return
                so = ('s22', 's34', 's36')[c // 4]
                a(f'buffer_load_dwordx4 v[{pr(c)}:{pr(c)+3}], v{5 if PL2 and c < 8 else 2}, {SRD}, {so} offen offset:{(c & 3)*1024}' + (' sc1' if sc else ''))
            def psm(c):
                B_ = VOR + 8 * c if c < 8 else YT + 8 * (c - 8)
                a(f'v_smfmac_f32_16x16x64_bf16 v[{LO}:{LO+3}], v[{pr(c)}:{pr(c)+3}], v[{B_}:{B_+7}], v{0 if PL2 and not TIN else 3}')
            zr = list(range(ACC, ACC + 4 * ntile)) if B2_POS >= 0 and not V5 and not PRI else []
            q0 = []
            for c in range(NPP):
                pld(c, not pl); q0.append(c)
                if w == 1 and c == F2X:
                    if F2XD: a.nop(F2XD)
                    if S0:
                        a('s_cmp_lg_u32 s19, 0')
                        a(f's_cbranch_scc1 {L("s0")}')
                        a(f's_sleep {S0}')
                        a.label(L('s0'))
                    q0.append('f')
                    a('s_sub_u32 s23, s21, 4')
                    exec_lo(a, R2)
                    a(f'buffer_store_dword v2, v7, {SRD}, s23 offen {st}')
                    a('s_mov_b64 exec, -1')
                if c == (F2L, F2M)[w]:
                    q0.append('f')
                    exec_lo(a, R2)
                    a(f'buffer_store_dword v2, v7, {SRD}, s21 offen {st}')
                    a('s_mov_b64 exec, -1')
                for _ in range(VZ):
                    if zr: a(f'v_mov_b32 v{zr.pop(0)}, 0')
                if PRI and w == 1 and W1G: a.nop(W1G)
            issued = NPP; nst = 0; q = q0
            if PRI == 2 and w == 0 and F2PRE >= 0:
                a.nop(F2PRE)
                q.append('f')
                exec_lo(a, R2)
                a(f'buffer_store_dword v2, v7, {SRD}, s21 offen {st}')
                a('s_mov_b64 exec, -1')
            if VST: stamp(a, 7)
            for c in range(10):
                if c == (0 if PRI and w == 1 else B2_POS):
                    if PRI == 1 and w == 0 and F2PRE >= 0:
                        a.nop(F2PRE)
                        q.append('f')
                        exec_lo(a, R2)
                        a(f'buffer_store_dword v2, v7, {SRD}, s21 offen {st}')
                        a('s_mov_b64 exec, -1')
                    if not (PRI == 1 and w == 1): a('s_barrier')
                    for k in range(4): a(f'ds_read_b128 v[{YT+4*k}:{YT+4*k+3}], v2 offset:{YL + w*4096 + k*1024}')
                    stamp(a, 3)
                    if PRI and w == 0 and F2_POS < 0:
                        a.nop(4 * (F2_POS + 5))
                        q.append('f')
                        exec_lo(a, R2)
                        a(f'buffer_store_dword v2, v7, {SRD}, s21 offen {st}')
                        a('s_mov_b64 exec, -1')
                if c == 0 and ECP:
                    a.label(L('pl')); cke = Checker(a, CK)
                a(f's_waitcnt vmcnt({len(q) - 1 - q.index(c)})' + (' lgkmcnt(0)' if c == 8 else ''))
                if c == 0: stamp(a, 5)
                if VST and c in (3, 6, 9): stamp(a, c // 3)
                psm(c)
                if c < ECP:
                    cke.add(pr(c)); cke.drain()
                    if c == ECP - 1: a(f'v_cmp_eq_u32 vcc, -1, v{CK}')
                if ECP and c == F2_POS: a(f's_cbranch_vccnz {L("re")}')
                if (F2L, F2M)[w] < 0 and (w == 1 or F2X < 0) and c == (F2B if PRI and w == 1 else F2_POS if F2PRE < 0 else 99) and (not F2ONE or w == F2ONE - 1):
                    q.append('f')
                    exec_lo(a, R2)
                    a(f'buffer_store_dword v2, v7, {SRD}, s21 offen {st}')
                    a('s_mov_b64 exec, -1')
                    nst = 1
                if issued < 10:
                    pld(issued, not pl); q.append(issued); issued += 1
                for _ in range(2):
                    if zr: a(f'v_mov_b32 v{zr.pop(0)}, 0')
            a.label(L('ep'))
            while zr: a(f'v_mov_b32 v{zr.pop(0)}, 0')
            if PL2:
                a(f'v_add_f32 v{HI}, v{LO}, v{LO+1}')
                a(f'v_add_f32 v{HI+1}, v{LO+2}, v{LO+3}')
            else:
                a(f'v_permlane32_swap_b32 v{LO}, v{LO+2}')
                a(f'v_permlane32_swap_b32 v{LO+1}, v{LO+3}')
                a(f'v_add_f32 v{HI}, v{LO}, v{LO+2}')
                a(f'v_add_f32 v{HI+1}, v{LO+1}, v{LO+3}')
            a(f'v_cmp_u_f32 vcc, v{HI}, v{HI+1}')
            a(f'v_mov_b32_dpp v{HI+2}, v{HI} row_ror:8 {D}')
            a(f'v_mov_b32_dpp v{HI}, v{HI+1} row_ror:8 row_mask:0xf bank_mask:0xc')
            a(f's_cbranch_vccnz {L("rp")}')
            a(f'v_mov_b32_dpp v{HI+1}, v{HI+2} quad_perm:[0,1,2,3] row_mask:0xf bank_mask:0x3')
            a(f'v_cvt_pk_bf16_f32 v{HI}, v{HI}, v{HI+1}')
            a.label(L('pc'))
            if w == 1: a('s_mov_b64 exec, s[26:27]')
            a(f'buffer_store_dword v{HI}, v1, {SRD}, s21 offen {st}')
        else:
            pl = PLAIN_P and st == ''
            if not pl: a.label(L('lp'))
            for c in range(10):
                so = ('s22', 's34', 's36')[c // 4]
                a(f'buffer_load_dwordx4 v[{pr(c)}:{pr(c)+3}], v5, {SRD}, {so} offen offset:{(c & 3)*1024}' + ('' if pl else ' sc1'))
                for r in range(ACC + 4 * c, min(ACC + 4 * c + 4, ACC + 4 * ntile)): a(f'v_mov_b32 v{r}, 0')
            if pl: a.label(L('lp'))
            ck = Checker(a, CK)
            nst = 0
            for c in range(10):
                if c == B2_POS:
                    a('s_cmp_lg_u32 s37, 0')
                    a(f's_cbranch_scc1 {L("nb2")}')
                    a('s_waitcnt lgkmcnt(0)')
                    a('s_barrier')
                    for k in range(4): a(f'ds_read_b128 v[{YT+4*k}:{YT+4*k+3}], v2 offset:{YL + w*4096 + k*1024}')
                    a.label(L('nb2'))
                    stamp(a, 3)
                a(f's_waitcnt vmcnt({9-c+nst})' + (' lgkmcnt(0)' if c == 8 else ''))
                if c < EC_P:
                    a.label(L(f'e{c}'))
                    r = pr(c)
                    a(f'v_max3_u32 v{PL}, v{r}, v{r+1}, v{r+2}')
                    a(f'v_max_u32 v{PL}, v{PL}, v{r+3}')
                    a(f'v_cmp_eq_u32 vcc, -1, v{PL}')
                    a(f's_cbranch_vccnz {L(f"er{c}")}')
                if c == 0: stamp(a, 5)
                if c == F2_POS:
                    exec_lo(a, R2)
                    a(f'buffer_store_dword v2, v7, {SRD}, s21 offen {st}')
                    a('s_mov_b64 exec, -1')
                    nst = 1
                if c >= EC_P: ck.add(pr(c))
                B_ = f'v[{pr(c)}:{pr(c)+3}]'
                for hi, acc in ((1, HI), (0, LO)):
                    A_ = VOR + 4 * (2 * c + hi) if c < 8 else YT + 4 * (2 * (c - 8) + hi)
                    a(f'v_mfma_f32_16x16x32_bf16 v[{acc}:{acc+3}], v[{A_}:{A_+3}], {B_}, ' + ('0' if c == 0 else f'v[{acc}:{acc+3}]'))
                    ck.emit()
            ck.drain()
            a(f'v_cmp_eq_u32 vcc, -1, v{CK}')
            for r in range(4): a(f'v_add_f32_dpp v{LO+r}, v{HI+r}, v{LO+r} row_ror:8 {D}')
            a(f's_cbranch_vccnz {L("rp")}')
            a(f'v_cvt_pk_bf16_f32 v{HI}, v{LO}, v{LO+1}')
            a(f'v_cvt_pk_bf16_f32 v{HI+1}, v{LO+2}, v{LO+3}')
            a(f'v_min_u32 v{HI}, -2, v{HI}')
            a(f'v_min_u32 v{HI+1}, -2, v{HI+1}')
            a('s_mov_b64 exec, s[26:27]')
            a(f'buffer_store_dwordx2 v[{HI}:{HI+1}], v1, {SRD}, s21 offen {st}')
        if T2SRV:
            a(f's_cmp_lg_u32 s19, {NSTEPS-2}')
            a(f's_cbranch_scc1 {L("nl")}')
            a(f's_mov_b32 s22, {MEMG_OFF + (NSTEPS-1)*7*KB}')
            if VSM: a(f'buffer_store_dword v{HI}, v1, {SRD}, s22 offen sc1')
            else: a(f'buffer_store_dwordx2 v[{HI}:{HI+1}], v1, {SRD}, s22 offen sc1')
            a('s_mov_b64 exec, -1')
            a(f's_branch {tag}_done')
            a.label(L('nl'))
        a('s_mov_b64 exec, -1')
        if SLOW_FIRST: a('s_barrier')
        stamp(a, 6)
        if not NOBULK: a(f's_add_u32 s25, s25, {GSH_B}')
        stamp_flush(a, 4 + w, 8, L('sf'), PL)
    else:
        STG = [76, 84, 92]; TP = 100
        TPS = [100, 104, 108, 4]
        t2st = [[f'buffer_store_dwordx4 v[{TPS[k]}:{TPS[k]+3}], v2, {SRD}, s24 offen offset:{k*1024} sc1'] for k in range(4)]
        t2st[-1].append(f's_add_u32 s24, s24, {8*KB}')
        t2fl = ['s_mov_b64 exec, 1', f'buffer_store_dword v117, v2, {SRD}, s34 offen sc1', 's_mov_b64 exec, -1', 's_add_u32 s34, s34, 8']
        def emit(gs):
            for g_ in gs:
                for x in g_: a(x)
        myks = [0, 1, 2, 3] if w == 2 else [4, 5, 6]
        oth = [k for k in range(7) if k not in myks]
        def mload():
            for ks in myks:
                a(f'buffer_load_dwordx4 v[{M+4*ks}:{M+4*ks+3}], v2, {SRD}, {"s20" if ks < 4 else "s23"} offen offset:{(ks & 3) * 1024} sc1')
        if HLP_SLEEP: a(f's_sleep {HLP_SLEEP}')
        flagpoll(a, 119, 's20', 76, L('fp'), ABORT, PD_H, PG_H, lanes=32)
        stamp(a, 0)
        if VA_DELAY: a.nop(VA_DELAY if w == 2 else VB_DELAY)
        mload()
        if PUBLISH and PUB_EARLY == 1: emit([t2fl] + t2st)
        if not SLOW_FIRST: a('s_barrier')
        if MGL and w == 2:
            emit([['s_mov_b64 exec, s[26:27]', f'buffer_store_dwordx4 v[108:111], v2, {SRD}, s37 offen sc1', 's_mov_b64 exec, -1', 's_waitcnt vmcnt(1)', f's_branch {L("ld3")}']])
        if PUBLISH and PUB_EARLY == 2: emit([t2fl] + t2st)
        if PUBLISH and PUB_EARLY:
            a('s_waitcnt vmcnt(5)')
            a(f's_branch {L("ld2")}')
        a.label(L('ld'))
        a('s_waitcnt vmcnt(0)')
        if PUBLISH and PUB_EARLY: a.label(L('ld2'))
        if MGL and w == 2: a.label(L('ld3'))
        ck = Checker(a, 84)
        for ks in myks: ck.add(M + 4 * ks)
        ck.drain()
        a('v_cmp_eq_u32 vcc, -1, v84')
        for ks in myks: a(f'ds_write_b128 v2, v[{M+4*ks}:{M+4*ks+3}] offset:{ML + ks*1024}')
        a(f's_cbranch_vccnz {L("retry")}')
        a('s_waitcnt lgkmcnt(0)')
        a('s_barrier')
        stamp(a, 1)
        for ks in (range(7) if TIN else oth): a(f'ds_read_b128 v[{M+4*ks}:{M+4*ks+3}], v{VP} offset:{ML + ks*1024}')
        if w == 2: a(f'ds_read_b128 v[{108 if MGL else 92}:{111 if MGL else 95}], v0')
        if VAL_TOUCH:
            a(f'buffer_load_dword v99, v118, {SRD}, {"s20" if w == 2 else "s39"} offen sc1')
            a(f's_add_u32 s39, s39, {XSEG_B}')
        if SELF_POISON:
            for r in range(76, 80): a(f'v_mov_b32 v{r}, -1')
            a('s_add_u32 s22, s21, s38')
            if w == 3: a('s_mov_b64 exec, 0x1f')
            a(f'buffer_store_dwordx4 v[76:79], v2, {SRD}, s22 offen {st}')
            if w == 3: a('s_mov_b64 exec, -1')
        if PUBLISH and not PUB_EARLY and not SLOW_FIRST and not T2SRV: emit([t2fl] + t2st)
        a('s_waitcnt lgkmcnt(0)')
        mg = ['s_mov_b64 exec, s[26:27]', f'buffer_store_dwordx4 v[92:95], v2, {SRD}, s36 offen sc1', 's_mov_b64 exec, -1', f's_add_u32 s36, s36, {7*KB}']
        if w == 2 and MGL:
            a('s_mov_b32 s37, s36')
            a(f's_add_u32 s36, s36, {7*KB}')
            a(f's_cmp_lg_u32 s19, {NSTEPS-2}')
            a(f's_cbranch_scc1 {L("nmg")}')
            emit([['s_mov_b64 exec, s[26:27]', f'buffer_store_dwordx4 v[108:111], v2, {SRD}, s37 offen sc1', 's_mov_b64 exec, -1']])
            a.label(L('nmg'))
        elif w == 2 and PUBLISH:
            if SLOW_FIRST:
                a(f's_cmp_lg_u32 s19, {NSTEPS-1}')
                a(f's_cbranch_scc1 {L("nmg")}')
            emit([mg])
            if SLOW_FIRST: a.label(L('nmg'))
        if T2SRV:
            a(f's_cmp_eq_u32 s19, {NSTEPS-1}')
            a(f's_cbranch_scc1 {tag}_done')
        lu = [(7, ks) for ks in range(7)]
        ru = [(t_, ks) for t_ in (6, 0, 1, 2, 3, 4, 5) for ks in range(7)]
        def wr(j):
            t_, ks = lu[j]; b = STG[j % 3]; off = (t_ - 7) * TILE_B + ks * UNIT
            return [f'ds_read_b128 v[{b}:{b+3}], v1 offset:{off}', f'ds_read_b128 v[{b+4}:{b+7}], v1 offset:{off+1024}']
        seq = []
        for j, (t_, ks) in enumerate(lu):
            pre = (wr(0) + wr(1) if j == 0 else []) + (wr(j + 2) if j + 2 < len(lu) else [])
            for k in range(2):
                r_ = ru.pop(0); seq.append((r_[0], S(*r_), pre if k == 0 else []))
            b = STG[j % 3]
            seq.append((t_, S(t_, ks, f'v[{b}:{b+7}]'), [f's_waitcnt lgkmcnt({2 * min(2, len(lu) - 1 - j)})']))
        for r_ in ru: seq.append((r_[0], S(*r_), []))
        if T2DH: a(f's_sleep {T2DH}')
        run(seq)
        stamp(a, 2)
        a('s_waitcnt lgkmcnt(0)')
        a('s_barrier')
        if KS: a('s_barrier')
        for k in range(4):
            q = 2 * (w - 2) + (k >> 1); tp = k & 1
            if not T2SRV: a(f'ds_read_b128 v[{TPS[k]}:{TPS[k]+3}], v2 offset:{YL + tp*4096 + q*1024}')
        a(f's_cmp_eq_u32 s19, {NSTEPS-2 if T2SRV else NSTEPS-1}')
        a(f's_cbranch_scc1 {tag + "_done" if T2SRV else L("last")}')
        if SLOW_FIRST:
            if w == 2: a(f'ds_read_b128 v[92:95], v0')
            a('s_waitcnt vmcnt(0) lgkmcnt(0)')
            a('s_barrier')
            if PUBLISH: emit([t2fl] + t2st + ([mg] if w == 2 else []))
        else:
            a('s_waitcnt vmcnt(0) lgkmcnt(0)')
        stamp(a, 3)
        stamp_flush(a, 4 + w, 4, L('sf'), 76)
    a('s_add_u32 s19, s19, 1')
    a('s_mov_b32 s20, s21')
    a.flush()
    a(f's_branch {L("loop")}')
    if fin:
        a.label(L('last'))
        a('s_waitcnt lgkmcnt(0)')
        a('s_barrier')
        a(f's_branch {tag}_done')
        for c in range(EC_P):
            a.label(L(f'er{c}'))
            so = ('s22', 's34', 's36')[c // 4]
            a(f'buffer_load_dwordx4 v[{pr(c)}:{pr(c)+3}], v5, {SRD}, {so} offen offset:{(c & 3)*1024} sc1')
            a('s_waitcnt vmcnt(0)')
            a('s_add_u32 s31, s31, 0x1000000')
            spin(a, L(f'e{c}'), ABORT)
        if ECP:
            assert NPP == 10 and B2_POS == 0 and ECP <= F2_POS
            a.label(L('re'))
            for c in range(10): pld(c, True)
            a.nop(6)
            for r in range(4): a(f'v_mov_b32 v{LO+r}, 0')
            a('s_add_u32 s31, s31, 0x1000000')
            spin(a, L('pl'), ABORT)
        a.label(L('rp'))
        if VSM:
            a('s_cmp_eq_u32 s37, 0')
            a(f's_cbranch_scc1 {L("rv")}')
            a(f'v_mov_b32_dpp v{HI+1}, v{HI+2} quad_perm:[0,1,2,3] row_mask:0xf bank_mask:0x3')
            a(f'v_cvt_pk_bf16_f32 v{HI}, v{HI}, v{HI+1}')
            a(f'v_min_u32 v{HI}, -2, v{HI}')
            a(f's_branch {L("pc")}')
            a.label(L('rv'))
            for c in range(10): pld(c, True)
            a('s_waitcnt vmcnt(0)')
            ck2 = Checker(a, CK)
            for c in range(10): ck2.add(pr(c))
            ck2.drain()
            a(f'v_cmp_eq_u32 vcc, -1, v{CK}')
            a(f's_cbranch_vccz {L("rk")}')
            spin(a, L('rv'), ABORT)
            a.label(L('rk'))
            a('s_mov_b32 s37, 1')
            a('s_add_u32 s31, s31, 0x10000')
            for r in range(4): a(f'v_mov_b32 v{LO+r}, 0')
            for c in range(10): psm(c)
            a.flush()
            a(f's_branch {L("ep")}')
            return
        a.nop(8)
        if PLAIN_P and st == '':
            for c in range(10):
                so = ('s22', 's34', 's36')[c // 4]
                a(f'buffer_load_dwordx4 v[{pr(c)}:{pr(c)+3}], v5, {SRD}, {so} offen offset:{(c & 3)*1024} sc1')
        a('s_mov_b32 s37, 1')
        a('s_add_u32 s31, s31, 0x10000')
        spin(a, L('lp'), ABORT)
    else:
        a.label(L('retry'))
        a('s_waitcnt lgkmcnt(0)')
        mload()
        a('s_add_u32 s31, s31, 1')
        spin(a, L('ld'), ABORT)
        a.label(L('last'))
        a('s_waitcnt lgkmcnt(0)')
        emit(t2st)
        a('s_waitcnt vmcnt(0)')
        emit([t2fl, t2fl])
        a(f's_branch {tag}_done')

def init_value(a, w, p):
    fin = w < 2
    t0, ntile, nreg = vtiles(w)
    YA = 60 if fin else 112
    a(f's_mul_i32 s31, s17, {CUW_B}')
    a(f's_add_u32 s31, s31, {WF_B}')
    units = [((t0 + ti) * TILE_B + ks * UNIT, vwreg(w, ti, ks)) for ti in range(nreg) for ks in range(7)]
    if BDEP and BST2:
        BDEP(16 * t0 // 28, (16 * (t0 + BST2) - 1) // 28)
        load_units(a, units[:7 * BST2], 's31')
        BDEP(16 * (t0 + BST2) // 28, (16 * (t0 + nreg) - 1) // 28)
        load_units(a, units[7 * BST2:], 's31')
    else:
        if BDEP: BDEP(16 * t0 // 28, (16 * (t0 + nreg) - 1) // 28)
        load_units(a, units, 's31')
    if fin and BDEP: BDEP(16 * (vtiles(w + 2)[0] + 7) // 28, (16 * (vtiles(w + 2)[0] + 8) - 1) // 28)
    if fin:
        th = vtiles(w + 2)[0] + 7
        for f in range(14):
            if f % 4 == 0:
                a(f's_mov_b32 m0, {WL + 3*w*TILE_B + f*1024}')
                a(f's_add_u32 s22, s31, {th*TILE_B + f*1024}')
            a(f'buffer_load_dwordx4 v2, {SRD}, s22 offen offset:{(f & 3)*1024}' + (' sc1' if MERGE else '') + ' lds')
            if f % 16 == 15: a('s_waitcnt vmcnt(24)')
    a('v_mov_b32 v72, v116')
    a('v_mov_b32 v73, v117')
    a('v_lshrrev_b32 v65, 1, v72')
    a('v_and_b32 v66, 1, v72')
    for pp in range(ntile if TIN else ntile // 2):
        if TIN: a(f'v_mov_b32 v67, {t0 + pp}')
        else: a(f'v_add_u32 v67, {t0 + 2*pp}, v65')
        a('v_lshl_add_u32 v67, v67, 4, v73')
        a('v_mul_u32_u24 v68, 2341, v67')
        a('v_lshrrev_b32 v68, 16, v68')
        a('v_mul_u32_u24 v69, 28, v68')
        a('v_sub_u32 v69, v67, v69')
        a('v_lshrrev_b32 v70, 4, v69')
        a('v_and_b32 v69, 15, v69')
        if VSM:
            a('v_and_b32 v71, 1, v69')
            a('v_lshrrev_b32 v69, 1, v69')
            a('v_lshl_add_u32 v69, v71, 3, v69')
        a('v_lshlrev_b32 v71, 12, v70')
        if PL2:
            a('v_lshrrev_b32 v70, 1, v68')
            a('v_lshl_add_u32 v71, v70, 9, v71')
            a('v_and_b32 v70, 1, v68')
            a('v_lshl_add_u32 v71, v70, 2, v71')
            a('v_lshl_add_u32 v71, v69, 4, v71')
            if TIN:
                a('v_lshl_add_u32 v71, v65, 8, v71')
                a(f'v_lshl_add_u32 v{yaN(fin)[pp]}, v66, 3, v71')
            else: a(f'v_lshl_add_u32 v{YA+pp}, v66, 8, v71')
            continue
        a('v_lshl_add_u32 v71, v68, 8, v71')
        a('v_lshl_add_u32 v71, v69, 4, v71')
        a(f'v_lshl_add_u32 v{YA+pp}, v66, 3, v71')
    if fin:
        a('v_and_b32 v0, 31, v1')
        a('v_lshlrev_b32 v0, 2, v0')
        a(f'v_add_u32 v0, {F2}, v0')
        a('v_lshlrev_b32 v4, 2, v73')
        if R1 == 32:
            a('s_lshl_b32 s22, s17, 1')
            a(f's_add_u32 s22, s22, {w}')
        else: a(f's_and_b32 s22, s17, {R1-1}')
        a('s_lshl_b32 s22, s22, 7')
        a(f's_add_u32 s22, s22, {F1}')
        a(f'v_add_u32 v4, s22, v4')
        a('v_and_b32 v64, 7, v73')
        a('v_lshlrev_b32 v5, 4, v64')
        a('v_lshl_add_u32 v5, v72, 7, v5')
        a('v_lshrrev_b32 v65, 3, v73')
        a('v_lshl_add_u32 v5, v65, 9, v5')
        a('s_lshl_b32 s22, s17, 3')
        a(f's_add_u32 s22, s22, {F2 + 4*w}')
        a('v_lshl_add_u32 v7, v2, 3, s22')
        a(f'v_add_u32 v65, {16*w}, v73')
        a('v_min_u32 v65, 27, v65')
        a('v_mad_u32_u24 v65, v72, 28, v65')
        a('v_lshlrev_b32 v6, 4, v65')
        a('s_lshr_b32 s22, s17, 1')
        a('s_mul_i32 s22, s22, 7')
        a('s_and_b32 s34, s17, 1')
        a('s_lshl_b32 s35, s34, 2')
        a('v_add_u32 v70, s35, v72')
        a('v_mov_b32 v71, s34')
        a(f'v_mov_b32 v69, {w}')
        a('v_cmp_eq_u32 vcc, 3, v72')
        a('v_cndmask_b32 v70, v70, v72, vcc')
        a('v_cndmask_b32 v69, v69, v71, vcc')
        a('v_add_u32 v70, s22, v70')
        a('v_lshrrev_b32 v68, 1, v70')
        a('v_lshlrev_b32 v68, 8, v68')
        a('v_lshl_add_u32 v68, v69, 7, v68')
        a('v_and_b32 v69, 1, v70')
        a('v_lshl_add_u32 v68, v69, 3, v68')
        a('v_lshl_add_u32 v1, v64, 4, v68')
        a('v_cmp_gt_u32 s[26:27], 8, v73')
        if w == 1:
            a('v_cmp_gt_u32 vcc, 3, v72')
            a('s_and_b64 s[26:27], s[26:27], vcc')
        if VSM:
            a('v_lshrrev_b32 v65, 3, v73')
            a('v_lshl_add_u32 v66, v64, 1, v65')
            a(f'v_add_u32 v66, {0 if KS else 16*w}, v66')
            a('v_min_u32 v66, 27, v66')
            a('v_mad_u32_u24 v66, v72, 28, v66')
            a('v_lshlrev_b32 v6, 4, v66')
            a(f's_mul_i32 s22, s17, {12 if w else 16}')
            a(f's_add_u32 s22, s22, {256*w}')
            a('v_lshl_add_u32 v70, v64, 1, s22')
            a('v_lshrrev_b32 v68, 4, v70')
            a('v_lshlrev_b32 v68, 8, v68')
            a('v_bfe_u32 v69, v70, 1, 1')
            a('v_lshl_add_u32 v68, v69, 7, v68')
            a('v_bfe_u32 v69, v70, 2, 2')
            a('v_lshl_add_u32 v68, v69, 2, v68')
            a('v_and_b32 v69, 1, v72')
            a('v_lshl_add_u32 v65, v69, 2, v65')
            a('v_lshrrev_b32 v69, 1, v72')
            a('v_lshl_add_u32 v65, v69, 1, v65')
            if PL2:
                a('v_lshrrev_b32 v65, 3, v73')
                a('v_lshl_add_u32 v65, v72, 1, v65')
                a('v_lshrrev_b32 v5, 1, v72')
                a('v_lshlrev_b32 v5, 9, v5')
                a('v_lshrrev_b32 v69, 2, v73')
                a('v_lshl_add_u32 v5, v69, 7, v5')
                a('v_and_b32 v69, 1, v72')
                a('v_lshl_add_u32 v5, v69, 6, v5')
                a('v_and_b32 v69, 3, v73')
                a('v_lshl_add_u32 v5, v69, 4, v5')
                a('v_and_b32 v69, 1, v73')
                a('v_mul_u32_u24 v69, 0xaaaa, v69')
                a('v_add_u32 v0, 0x4444, v69')
            a('v_lshl_add_u32 v1, v65, 4, v68')
            a('v_cmp_gt_u32 s[26:27], 6, v64')
            for r in range(156, 160): a(f'v_mov_b32 v{r}, 0')
            for k in range(4): a(f'ds_write_b128 v2, v[156:159] offset:{YL + w*4096 + k*1024}')
        a(f's_mul_i32 s22, s17, {64*GSH_B}')
        a(f's_add_u32 s25, s22, {VO_OFF}')
        a('s_lshl_b32 s35, s17, 7')
        a(f's_add_u32 s35, s35, {CNT_OFF + VOC - 2048}')
        a(f's_add_u32 s39, s35, {8*2048}')
        a('s_mov_b32 s38, 0')
        a(f'v_mov_b32 v{VOK}, 0')
        if KS:
            for r in range(64, 144): a(f'v_mov_b32 v{r}, 0')
        if PROT:
            for c in range(8):
                a(f's_add_u32 s22, s17, {c}')
                a('s_and_b32 s22, s22, 7')
                a(f's_mul_i32 s{72+c}, s22, 3584')
                a('s_lshl_b32 s22, s22, 10')
                a(f's_add_u32 s{64+c}, s22, {EXCH_OFF + PX - EXCH_B}')
    else:
        a(f's_mul_i32 s24, s17, {65*8*KB}')
        a(f's_add_u32 s24, s24, {T2_OFF + (w-2)*4096 + (8*KB if SLOW_FIRST else 0)}')
        a('s_mul_i32 s34, s17, 640')
        a(f's_add_u32 s34, s34, {CNT_OFF + T2F + 4*(w-2) + (8 if SLOW_FIRST else 0)}')
        a('s_mul_i32 s36, s17, 448')
        a('v_add_u32 v0, s36, v2')
        a(f'v_add_u32 v0, {ML}, v0')
        a(f's_add_u32 s36, s36, {MEMG_OFF}')
        a(f's_mov_b32 s37, {T2_OFF}')
        a('v_cmp_gt_u32 s[26:27], 28, v1')
        a('v_and_b32 v119, 31, v1')
        a('v_lshlrev_b32 v119, 2, v119')
        if PRI: a(f'v_and_b32 v119, 0x78, v119\nv_or_b32 v119, {4*(w-2)}, v119')
        if F2ONE: a(f'v_and_b32 v119, 0x78, v119\nv_or_b32 v119, {4*(F2ONE-1)}, v119')
        a('s_add_u32 s22, s17, 16')
        a(f's_and_b32 s22, s22, {R2-1}')
        a('s_lshl_b32 s22, s22, 7')
        a(f's_add_u32 s22, s22, {F2}')
        a(f'v_add_u32 v119, s22, v119')
        nl = 10 if w == 2 else 14
        a(f'v_min_u32 v118, {nl-1}, v1')
        a(f's_mul_i32 s22, s17, {nl}')
        a('v_add_u32 v118, s22, v118')
        a('v_lshlrev_b32 v118, 7, v118')
        a(f'v_add_u32 v118, {2*EXCH_B if w == 2 else 2*XSEG_B}, v118')
        a(f's_mov_b32 s39, {XF_OFF}')
        a(f'v_add_u32 v1, {WL + 3*(w-2)*TILE_B}, v2')
        a('v_mov_b32 v117, 1')
        a('s_mul_i32 s38, s17, 1104')
        a(f's_add_u32 s38, s38, {EXCH_B + (w-2)*1024}')
    if TIN:
        vp = 0 if fin else 5
        a('v_bfe_u32 v8, v2, 4, 1')
        a('v_mul_u32_u24 v3, 0xaaaa, v8')
        a('v_add_u32 v3, 0x4444, v3')
        a('v_bfe_u32 v9, v2, 5, 3')
        a('v_lshl_add_u32 v8, v8, 3, v9')
        a('v_and_b32 v9, 0x300, v2')
        a(f'v_lshl_add_u32 v{vp}, v8, 4, v9')

def dbg_wait(a, P, t, abort):
    a('s_mov_b32 s30, 0')
    a.label(P)
    a(f'buffer_load_dword v{t+2}, v{t}, {DBG}, 0 offen sc1')
    a('s_waitcnt vmcnt(0)')
    a(f'v_cmp_ne_u32 vcc, v{t+2}, v{t+1}')
    a(f's_cbranch_vccz {P}_ok')
    a('s_sleep 4')
    a('s_add_u32 s30, s30, 1')
    a(f's_cmp_lt_u32 s30, {SLOW_LIMIT}')
    a(f's_cbranch_scc1 {P}')
    a(f's_branch {abort}')
    a.label(P + '_ok')

def dep_regs(a, cg_s, t, lane='v1'):
    a(f's_and_b32 s20, {cg_s}, 15')
    a('s_lshr_b32 s21, s20, 1')
    a('s_mul_i32 s21, s21, 56')
    a('s_add_u32 s22, s21, 55')
    a('s_lshr_b32 s21, s21, 6')
    a('s_lshr_b32 s22, s22, 6')
    a('s_add_u32 s21, s21, 24')
    a('s_add_u32 s22, s22, 24')
    a('s_add_u32 s20, s20, 8')
    a(f's_cmp_lt_u32 {cg_s}, 16')
    a('s_cselect_b32 s21, s20, s21')
    a('s_cselect_b32 s22, s20, s22')
    a(f's_cselect_b32 s20, {A_TGT}, {B_TGT}')
    a('s_lshl_b32 s21, s21, 2')
    a('s_lshl_b32 s22, s22, 2')
    a(f'v_mov_b32 v{t}, 124')
    a(f'v_mov_b32 v{t+1}, 128')
    a(f'v_writelane_b32 v{t}, s21, 0')
    a(f'v_writelane_b32 v{t}, s22, 1')
    a(f'v_writelane_b32 v{t+1}, s20, 0')
    a(f'v_writelane_b32 v{t+1}, s20, 1')

def xprep_loop(a, P):
    import prep
    a.label(f'{P}_l')
    a('s_waitcnt vmcnt(0) lgkmcnt(0)')
    a('v_mov_b32 v4, 1')
    a('v_mov_b32 v5, 20')
    wg_atomic(a, f'{P}_el', 's3')
    a('s_cmp_ge_u32 s3, 32')
    a(f's_cbranch_scc1 {P}_d')
    prep.xprep_item(a, P, 's3', st='sc1', signal=DBG)
    a(f's_branch {P}_l')
    a.label(f'{P}_d')

def wg_atomic(a, P, dst):
    a('v_mov_b32 v6, 160000')
    a('s_barrier')
    a('s_cmp_lg_u32 s16, 0')
    a(f's_cbranch_scc1 {P}1')
    a('s_mov_b64 exec, 1')
    a(f'buffer_atomic_add v4, v5, {DBG}, 0 offen sc0')
    a('s_waitcnt vmcnt(0)')
    a('ds_write_b32 v6, v4')
    a('s_waitcnt lgkmcnt(0)')
    a('s_mov_b64 exec, -1')
    a.label(f'{P}1')
    a('s_barrier')
    a('ds_read_b32 v4, v6')
    a('s_waitcnt lgkmcnt(0)')
    a(f'v_readfirstlane_b32 {dst}, v4')

def staff_check(a, okl, mode):
    a('s_mov_b32 s30, 0')
    a('v_mov_b32 v36, 0')
    a.label('ch_chk')
    a(f'buffer_load_dword v37, v36, {DBG}, 0 offen sc1')
    a('s_waitcnt vmcnt(0)')
    a('v_readfirstlane_b32 s22, v37')
    a('s_and_b32 s22, s22, 0xffff')
    a('s_cmp_ge_u32 s22, 32')
    a('s_cbranch_scc1 ch_go_end')
    a('s_sleep 16')
    a('s_add_u32 s30, s30, 1')
    a('s_cmp_lt_u32 s30, 64')
    a('s_cbranch_scc1 ch_chk')
    a.label('ch_go_end')
    a('v_mov_b32 v6, 160016')
    a('v_mov_b32 v4, s22')
    a('s_cmp_lg_u32 s16, 0')
    a('s_cbranch_scc1 ch_dec')
    a('ds_write_b32 v6, v4')
    a('s_waitcnt lgkmcnt(0)')
    a.label('ch_dec')
    a('s_barrier')
    a('ds_read_b32 v4, v6')
    a('s_waitcnt lgkmcnt(0)')
    a('v_readfirstlane_b32 s22, v4')
    a('s_cmp_ge_u32 s22, 32')
    a(f's_cbranch_scc1 {okl}')
    a('v_mov_b32 v4, 0x10001')
    a(f's_mov_b32 s18, {mode}')
    a('s_branch ch_take')

def worker_s4d(a):
    import s4d
    s4d.s4d_setup(a)
    a.label('wk_loop')
    a('v_mov_b32 v4, 1')
    a('v_mov_b32 v5, 4')
    wg_atomic(a, 'wk_el', 's3')
    a('v_and_b32 v4, 15, v1')
    a('s_cmp_ge_u32 s3, 112')
    a('s_cbranch_scc1 wk_done')
    s4d.s4d_item(a, 'wk', 's3')
    a('s_branch wk_loop')
    a.label('wk_done')

def poll_eq(a, P, srd, soff, target, sleep=4):
    a('v_mov_b32 v8, 0')
    a('s_mov_b32 s30, 0')
    a.label(P)
    a(f'buffer_load_dword v9, v8, {srd}, {soff} offen sc1')
    a('s_waitcnt vmcnt(0)')
    a(f'v_cmp_ne_u32 vcc, {target}, v9')
    a(f's_cbranch_vccz {P}_ok')
    a(f's_sleep {sleep}')
    a('s_add_u32 s30, s30, 1')
    a(f's_cmp_lt_u32 s30, {SLOW_LIMIT}')
    a(f's_cbranch_scc1 {P}')
    a('s_branch cA_abort')
    a.label(P + '_ok')
def flag_wait(a, P):
    a('s_cmp_lg_u32 s97, 0')
    a(f's_cbranch_scc1 {P}_sk')
    a('s_movk_i32 s20, 128')
    poll_eq(a, P, DBG, 's20', 1)
    a('s_mov_b32 s97, 1')
    a.label(P + '_sk')
def ac_wait(a, P):
    a('s_lshl_b32 s20, s17, 7')
    a(f's_add_u32 s20, s20, {CNT_OFF + AC}')
    poll_eq(a, P, SRD, 's20', 7, sleep=6)

def worker_all(a):
    import s4d, gemm, tok, prep
    JS = DBG if MERGE else SRD
    JO = 64 if MERGE else CNT_OFF + JOBC
    NA = 112 if MERGE == 1 else 0
    NJ = 1104 + NA
    tok.PEEK = JS
    a('s_load_dwordx2 s[36:37], s[0:1], 112')
    a('s_waitcnt lgkmcnt(0)')
    a(f's_mov_b32 s92, s36\ns_and_b32 s93, s37, 0xffff\ns_mov_b32 s94, {2048*896*2}\ns_mov_b32 s95, 0x20000')
    def ask():
        lb = a.newlabel('ask')
        a('s_cmp_lg_u32 s16, 0')
        a(f's_cbranch_scc1 {lb}')
        a('v_mov_b32 v250, 1')
        a(f'v_mov_b32 v251, {JO}')
        a('s_mov_b64 exec, 1')
        a(f'buffer_atomic_add v250, v251, {JS}, 0 offen sc0')
        a('s_mov_b64 exec, -1')
        a.label(lb)
    a('s_mov_b32 s96, 0')
    if MERGE:
        a('s_cmp_lg_u32 s101, -1')
        a('s_mov_b32 s3, s101')
        a('s_mov_b32 s101, -1')
        a('s_cbranch_scc1 wk_have')
    ask()
    a('s_branch wk_next')
    a.label('wk_loop')
    a('s_waitcnt vmcnt(0) lgkmcnt(0)')
    a('s_cmp_eq_u32 s96, 1')
    a('s_cbranch_scc1 wk_ask')
    a('s_mov_b32 s96, 1')
    staff_check(a, 'wk_ask', 0)
    a.label('wk_ask')
    a('v_readfirstlane_b32 s22, v250')
    a(f's_cmp_ge_u32 s22, {NJ}')
    a('s_cbranch_scc1 wk_next')
    ask()
    a.label('wk_next')
    evlog(a, 9005)
    a('v_mov_b32 v6, 160000')
    a('s_waitcnt vmcnt(0)')
    a('s_barrier')
    a('s_cmp_lg_u32 s16, 0')
    a('s_cbranch_scc1 wk_n1')
    a('s_mov_b64 exec, 1')
    a('ds_write_b32 v6, v250')
    a('s_mov_b64 exec, -1')
    a('s_waitcnt lgkmcnt(0)')
    a.label('wk_n1')
    a('s_barrier')
    a('ds_read_b32 v4, v6')
    a('s_waitcnt lgkmcnt(0)')
    a('v_readfirstlane_b32 s3, v4')
    a.label('wk_have')
    evlog(a, 's3')
    a(f's_cmp_ge_u32 s3, {NJ}')
    a('s_cbranch_scc1 wk_done')
    a('v_mov_b32 v250, 0')
    a(f'v_mov_b32 v251, {JO}')
    a('v_and_b32 v1, 63, v0')
    a('v_lshlrev_b32 v2, 4, v1')
    a('v_lshrrev_b32 v3, 4, v1')
    a('v_and_b32 v4, 15, v1')
    if MERGE == 3: flag_wait(a, 'wk_fw')
    if MERGE == 1:
        a('s_cmp_ge_u32 s3, 112')
        a('s_cbranch_scc1 wk_np')
        prep.prep_item(a, 'wpa', 's3', st='sc1', mode='A')
        flag_wait(a, 'wk_fa')
        a('s_waitcnt vmcnt(0)')
        a('s_barrier')
        a('v_mov_b32 v250, 0')
        a('s_cmp_lg_u32 s16, 0')
        a('s_cbranch_scc1 wk_loop')
        a('s_lshl_b32 s20, s17, 7')
        a(f's_add_u32 s20, s20, {CNT_OFF + AC}')
        a('v_mov_b32 v5, 1')
        a('v_mov_b32 v6, 0')
        a('s_mov_b64 exec, 1')
        a(f'buffer_atomic_add v5, v6, {SRD}, s20 offen')
        a('s_mov_b64 exec, -1')
        a('s_branch wk_loop')
        a.label('wk_np')
        a('s_sub_u32 s3, s3, 112')
        flag_wait(a, 'wk_fw')
    a('s_cmp_ge_u32 s3, 592')
    a('s_cbranch_scc1 wk_tok')
    a('s_cmp_ge_u32 s3, 480')
    a('s_cbranch_scc1 wk_s4d')
    a('s_cmp_ge_u32 s3, 256')
    a('s_cbranch_scc1 wk_full')
    a('s_cmp_ge_u32 s3, 224')
    a('s_cbranch_scc1 wk_srv')
    a('s_cmp_ge_u32 s3, 112')
    a('s_cselect_b32 s18, 1, 0')
    a('s_cselect_b32 s20, 112, 0')
    a('s_sub_u32 s20, s3, s20')
    a('s_and_b32 s17, s20, 15')
    a('s_add_u32 s17, s17, 16')
    a('s_lshr_b32 s34, s20, 4')
    a('s_lshl_b32 s34, s34, 1')
    a('s_add_u32 s35, s34, 2')
    if RB1_DELAY:
        a('s_cmp_eq_u32 s18, 0')
        a('s_cbranch_scc1 wk_gemm')
        for _ in range(RB1_DELAY): a('s_sleep 127')
    a('s_branch wk_gemm')
    a.label('wk_full')
    a('s_sub_u32 s20, s3, 224')
    a('s_and_b32 s17, s20, 15')
    a('s_lshr_b32 s18, s20, 4')
    a('s_cmp_lt_u32 s18, 8')
    a('s_cselect_b32 s21, 16, 0')
    a('s_add_u32 s17, s17, s21')
    a('s_and_b32 s18, s18, 7')
    a('s_mov_b32 s34, 0\ns_mov_b32 s35, 14')
    a.label('wk_gemm')
    if MERGE == 1:
        a('s_cmp_ge_u32 s17, 16')
        a('s_cbranch_scc1 wk_g2')
        ac_wait(a, 'wk_aw')
        a.label('wk_g2')
        evlog(a, 9006)
    gemm.gemm_body(a, 'wg', 's18', 's17', st='sc1', signal=True, ld='sc1' if MERGE else '')
    a('s_branch wk_loop')
    a.label('wk_srv')
    import t2srv
    a('s_and_b32 s18, s3, 15')
    a('s_lshr_b32 s19, s3, 4')
    a('s_and_b32 s19, s19, 1')
    t2srv.t2srv_body(a, 'ws', 's18', 's19', 'cA_abort', ld='sc1' if MERGE else '')
    a('v_mov_b32 v250, 0')
    a('s_branch wk_loop')
    a.label('wk_s4d')
    a('s_sub_u32 s3, s3, 480')
    s4d.s4d_setup(a)
    s4d.s4d_item(a, 'wk', 's3')
    a('s_branch wk_loop')
    a.label('wk_tok')
    a('s_sub_u32 s3, s3, 592')
    a('s_cmp_ge_u32 s3, 512')
    a('s_cbranch_scc1 wk_done')
    a('s_lshr_b32 s17, s3, 3')
    a('s_and_b32 s18, s3, 3')
    a('s_bitcmp1_b32 s3, 2')
    a('s_cbranch_scc1 wk_toko')
    tok.tokp_body(a, 's17', 's18', ld='sc1', st='sc1', sync='wp', ldx='sc1' if MERGE else '')
    a('s_branch wk_loop')
    a.label('wk_toko')
    tok.toko_body(a, 's17', 's18', ld='sc1', sync='wo', OUT='s[92:95]')
    a('s_branch wk_loop')
    a.label('wp_abort')
    a.label('wo_abort')
    a('s_branch cA_abort')
    a.label('wk_done')

def role_tail(a, late=None):
    lane_consts(a)
    a('s_mov_b32 s19, 0')
    a(f's_mov_b32 s20, {EXCH_OFF}')
    if STAMPS: a('s_mov_b32 s63, s17')
    a('s_lshr_b32 s22, s17, 4')
    a('s_lshl_b32 s22, s22, 2')
    a('s_add_u32 s22, s22, s16')
    a('s_and_b32 s17, s17, 15')
    for p in range(8):
        a(f's_cmp_eq_u32 s22, {p}')
        a(f's_cbranch_scc1 ch_init{p}')
    a('s_branch ch_end')
    for p in range(8):
        a.label(f'ch_init{p}')
        if p < 4: init_score(a, p)
        else: init_value(a, p - 4, p)
        if late: late(p)
        a('s_mov_b32 s30, 0')
        a('v_mov_b32 v36, 0')
        a.label(f'ch_md{p}')
        a(f'buffer_load_dword v37, v36, {DBG}, 0 offen sc1')
        a('s_waitcnt vmcnt(0)')
        a('v_readfirstlane_b32 s22, v37')
        a('s_and_b32 s31, s22, 0xffff')
        a('s_cmp_ge_u32 s31, 32')
        a(f's_cbranch_scc1 ch_go{p}')
        a('s_sleep 2')
        a('s_add_u32 s30, s30, 1')
        a(f's_cmp_lt_u32 s30, {SLOW_LIMIT}')
        a(f's_cbranch_scc1 ch_md{p}')
        a('s_branch ch_end')
        a.label(f'ch_go{p}')
        evlog(a, 9003)
        if DIAG: a('s_memtime s[32:33]')
        a('s_mov_b32 s31, 0')
        if p in (4, 5):
            for r in range(36, 60): a(f'v_mov_b32 v{r}, 0')
        a('s_lshr_b32 s22, s22, 16')
        a('s_cmp_lg_u32 s22, 0')
        role = 'sc' if p < 4 else 'va'
        a(f's_cbranch_scc1 cB_{role}{p & 3}_loop')
        a(f's_branch cA_{role}{p & 3}_loop')
    for tag, st in (('cA', ''), ('cB', 'sc1')):
        for w in range(4): gen_score(a, w, st, tag)
        for w in range(4): gen_value(a, w, st, tag)
        tag_end(a, tag)

def tag_end(a, tag):
    a.label(f'{tag}_abort')
    a('v_mov_b32 v4, 0xdead')
    a('v_mov_b32 v5, 16')
    a(f'buffer_store_dword v4, v5, {DBG}, 0 offen')
    a('s_branch ch_end')
    a.label(f'{tag}_done')
    evlog(a, 9004)
    if STAMPS and STAMP_CYC:
        a('s_cmp_lg_u32 s16, 0')
        a('s_cbranch_scc1 ch_end')
        a('s_lshl_b32 s22, s63, 10')
        a(f's_add_u32 s22, s22, {STAMP_OFF + 65536}')
        a('s_mov_b32 s30, 0')
        a('s_mov_b64 exec, 1')
        a.label(f'{tag}_cal')
        a('s_memtime s[40:41]')
        a('s_memrealtime s[42:43]')
        a('s_waitcnt lgkmcnt(0)')
        a('v_mov_b32 v4, s40')
        a('v_mov_b32 v5, s42')
        a(f'buffer_store_dwordx2 v[4:5], off, {SRD}, s22')
        a('s_add_u32 s22, s22, 8')
        a('s_add_u32 s30, s30, 1')
        a('s_cmp_lt_u32 s30, 128')
        a(f's_cbranch_scc1 {tag}_cal')
    if DIAG:
        a('s_memtime s[60:61]')
        a('s_waitcnt lgkmcnt(0)')
        a('s_sub_u32 s60, s60, s32')
        a('v_mov_b32 v4, s60')
        a('v_mov_b32 v5, 8')
        a(f'buffer_store_dword v4, v5, {DBG}, 0 offen')
        a('v_mov_b32 v4, s31')
        a('v_mov_b32 v5, 12')
        a('s_mov_b64 exec, 1')
        a(f'buffer_atomic_add v4, v5, {DBG}, 0 offen')
    a('s_branch ch_end')

def gen_chain_kernel(name='chain_kernel', worker=worker_s4d):
    a = Asm()
    a.raw(kernel_header(name))
    a('s_cmp_ge_u32 s2, 256')
    a('s_cbranch_scc1 ch_end')
    a('s_load_dwordx2 s[4:5], s[0:1], 120')
    a('s_load_dwordx2 s[6:7], s[0:1], 128')
    if CODE_PF: code_prefetch(a, name, 'ch_end', 130000, 60)
    a('s_getreg_b32 s3, hwreg(HW_REG_XCC_ID)')
    a('s_and_b32 s3, s3, 15')
    a('v_lshrrev_b32 v1, 6, v0')
    a('v_readfirstlane_b32 s16, v1')
    a('s_waitcnt lgkmcnt(0)')
    a('s_mov_b32 s8, s6\ns_and_b32 s9, s7, 0xffff\ns_mov_b32 s10, 0x10000000\ns_mov_b32 s11, 0x20000')
    a('s_mov_b32 s12, s4\ns_and_b32 s13, s5, 0xffff\ns_mov_b32 s14, 256\ns_mov_b32 s15, 0x20000')
    if EVLOG:
        a('s_lshl_b32 s100, s2, 2')
        a('s_add_u32 s100, s100, s16')
        a('s_lshl_b32 s100, s100, 8')
        a(f's_add_u32 s100, s100, {EV_OFF}')
    evlog(a, 9000)
    if MERGE:
        import prep
        a('s_mov_b32 s97, 0')
        a('s_mov_b32 s91, s3')
        a('v_and_b32 v1, 63, v0')
        a('v_lshlrev_b32 v2, 4, v1')
        a('v_lshrrev_b32 v3, 4, v1')
        a('v_and_b32 v4, 15, v1')
        a('s_cmp_lg_u32 s16, 0')
        a('s_cbranch_scc1 m_a1')
        a(f's_cmp_eq_u32 s3, {XCD_SEL}')
        a('s_cselect_b32 s20, 0, 64')
        a('v_accvgpr_write_b32 a255, 1')
        a('s_mov_b64 exec, 1')
        a(f'buffer_atomic_add a255, v2, {DBG}, s20 offen sc0')
        a('s_mov_b64 exec, -1')
        a.label('m_a1')
        prep.xall_pre(a, 's2')
        a('s_cmp_ge_u32 s2, 224')
        a('s_cbranch_scc1 m_w')
        prep.prep_item(a, 'mpb', 's2', st='sc1', mode='Bhalf' if MERGE == 1 else 'mix', defer=(MERGE == 3))
        a('s_branch m_e')
        a.label('m_w')
        a('s_waitcnt vmcnt(0)')
        a.label('m_e')
        prep.xall_post(a, 'mpx', 's2', 'sc1', wait=False)
        a('v_mov_b32 v6, 160000')
        a('s_waitcnt vmcnt(0) lgkmcnt(0)')
        a('s_barrier')
        a('s_cmp_lg_u32 s16, 0')
        a('s_cbranch_scc1 m_b1')
        a('v_mov_b32 v4, 1')
        a('v_mov_b32 v5, 96')
        a('v_accvgpr_read_b32 v7, a255')
        a('s_mov_b64 exec, 1')
        a(f'buffer_atomic_add v4, v5, {DBG}, 0 offen sc0')
        a('ds_write_b32 v6, v7')
        a('s_waitcnt lgkmcnt(0)')
        a('s_mov_b64 exec, -1')
        a.label('m_b1')
        a('s_barrier')
        a('ds_read_b32 v7, v6')
        a('s_cmp_lg_u32 s16, 0')
        a('s_cbranch_scc1 m_b2')
        a('s_waitcnt vmcnt(0)')
        a('v_readfirstlane_b32 s20, v4')
        a('s_cmp_lg_u32 s20, 255')
        a('s_cbranch_scc1 m_b2')
        a('v_mov_b32 v4, 1')
        a('v_mov_b32 v5, 128')
        a('s_mov_b64 exec, 1')
        a(f'buffer_store_dword v4, v5, {DBG}, 0 offen sc1')
        a('s_mov_b64 exec, -1')
        a.label('m_b2')
        a('s_waitcnt lgkmcnt(0)')
        a('v_readfirstlane_b32 s101, v7')
        evlog(a, 9001)
        a(f's_cmp_lg_u32 s91, {XCD_SEL}')
        a('s_cbranch_scc1 ch_worker')
        a('s_and_b32 s17, s101, 0xffff')
        a('s_mov_b32 s101, -1')
        a('s_cmp_lt_u32 s17, 32')
        a('s_cbranch_scc1 ch_role')
        a('s_branch ch_worker')
    else:
        a(f's_cmp_lg_u32 s3, {XCD_SEL}')
        a('s_cbranch_scc1 ch_worker')
    a('v_mov_b32 v4, 1')
    a('s_mov_b32 s18, 0')
    a.label('ch_take')
    a('v_mov_b32 v5, 0')
    wg_atomic(a, 'ch_el', 's17')
    a('s_and_b32 s17, s17, 0xffff')
    a('s_cmp_lt_u32 s17, 32')
    a('s_cbranch_scc1 ch_role')
    a('s_cmp_eq_u32 s18, 0')
    a('s_cbranch_scc1 ch_worker')
    a('s_branch ch_end')
    a.label('ch_role')
    if MERGE:
        flag_wait(a, 'ch_fw')
        if MERGE == 1:
            a('s_cmp_ge_u32 s17, 16')
            a('s_cbranch_scc1 ch_r2')
            ac_wait(a, 'ch_aw')
            a.label('ch_r2')
        evlog(a, 9002)
    role_tail(a)
    a.label('ch_worker')
    if worker: worker(a)
    if worker is not worker_all: staff_check(a, 'ch_end', 1)
    a.label('ch_end')
    a('s_endpgm')
    return a

if __name__ == '__main__':
    import sys
    for x in sys.argv[2:]:
        if x == 'stamps': STAMPS = True
        elif '=' in x:
            k, v = x.split('='); globals()[k] = int(v)
    a = gen_chain_kernel()
    out = ['; @launch kernel=chain_kernel grid=(256,1,1) block=(256,1,1) lds=163840',
           '.amdgcn_target "amdgcn-amd-amdhsa--gfx950"', '.text', a.text(), '.section .rodata,"a"', kernel_desc('chain_kernel')]
    open(sys.argv[1], 'w').write('\n'.join(out) + '\n')
    print('instructions', a.count)
```

```python
import numpy as np
KB = 1024
UNIT = 2048
TILE_B = 7 * UNIT
CUW_B = 28 * TILE_B
WF_A = 0
WF_B = WF_A + 16 * CUW_B
G_OFF = WF_B + 16 * CUW_B
GSH_B = 28 * KB
VO_OFF = G_OFF + 64 * 16 * GSH_B
XF_OFF = VO_OFF + 64 * 16 * GSH_B
XM_OFF = XF_OFF + 128 * 14 * KB
import os
EXCH_B = int(os.environ.get('EXB', 20 * KB))
MEMX = 0
PM = 7 * KB
PX = 9 * KB
F1 = 17 * KB
F2 = 18 * KB
ONEP = int(os.environ.get('ONEP', 1))
_E0 = XM_OFF + 128 * 14 * KB
T2_OFF = 84 * KB * KB - 128 * 20 * KB - 65 * 16 * 8 * KB if ONEP else (_E0 + 66 * 25 * KB + 4095) // 4096 * 4096
PT_OFF = T2_OFF + 65 * 16 * 8 * KB
PT_B = 20 * KB
KS_OFF = PT_OFF + 128 * PT_B
MEMG_OFF = KS_OFF
CNT_OFF = MEMG_OFF + 64 * 7 * KB
VOC = 2 * KB; FC = 18 * KB; PTC = 34 * KB; T2F = 42 * KB; AC = 58 * KB; JOBC = 58 * KB; S4Q = 58 * KB; CNT_B = 60 * KB
BF_R = 9
BF_OFF = (CNT_OFF + CNT_B + 4095) // 4096 * 4096
IF_OFF = BF_OFF + 2048
AF_OFF = BF_OFF + 16 * 2048
A3_OFF = AF_OFF + 2048
I2_OFF = A3_OFF + 2048
EXCH_OFF = I2_OFF + 16 * KB if ONEP else _E0
EXCH_END = EXCH_OFF + 66 * EXCH_B
assert EXCH_END <= 86 * KB * KB and T2_OFF >= _E0
YS_OFF = 86 * KB * KB
S4C = S4Q + 7 * 128
F_OFF = G_OFF
POISON = 0xFFFFFFFF

def memcol(ks, gA, half, s):
    return 64 * ks + 16 * gA + 4 * (s >> 1) + 2 * half + (s & 1)
def acol(kappa, q, n):
    g, r = n >> 2, n & 3
    return memcol(kappa, g, q & 1, 4 * (q >> 1) + r)
def vcol(v, cl):
    return 16 * v + cl if cl < 16 else 256 + 12 * v + cl - 16
def tokslot(g, s):
    return (4 * g + s) if s < 4 else (16 + 4 * g + s - 4)

def f2bf_bits(f):
    u = np.ascontiguousarray(f, dtype=np.float32).view(np.uint32)
    return ((u + 0x7FFF + ((u >> 16) & 1)) >> 16).astype(np.uint16)

def build_wfrag(W, ncols):
    out = np.zeros((28, 7, 2, 64, 8), np.uint16)
    lane = np.arange(64); g = lane >> 4; n = lane & 15
    for t in range(28):
        cols = np.asarray(ncols[t])[n]
        for ks in range(7):
            for hb in range(2):
                k = 64 * ks + 32 * hb + 8 * g[:, None] + np.arange(8)[None, :]
                out[t, ks, hb] = W[k, cols[:, None]]
    return out
def build_WFA(ATb):
    ncols = [[acol(t >> 2, t & 3, n) for n in range(16)] for t in range(28)]
    return np.stack([build_wfrag(ATb[h], ncols) for h in range(16)])
def build_WFB(Bb):
    Ball = np.concatenate([Bb[h] for h in range(16)], 1)
    res = []
    for v in range(16):
        ncols = [[((16 * t + n) // 28) * 448 + vcol(v, (16 * t + n) % 28) for n in range(16)] for t in range(28)]
        res.append(build_wfrag(Ball, ncols))
    return np.stack(res)
_Xcols = np.array([[[[memcol(ks, g, half, s) for s in range(8)] for g in range(4)] for half in range(2)] for ks in range(7)])
def build_M_order(rows):
    R = rows.shape[0] // 16
    r3 = rows.reshape(R, 16, 448)
    o = r3[:, :, _Xcols]
    return np.ascontiguousarray(o.transpose(0, 2, 3, 4, 1, 5)).reshape(R, 7, 2, 64, 8)
def build_G(Gb):
    o = np.stack([build_M_order(Gb[h]) for h in range(16)])
    o = o.reshape(16, 64, 2, 7, 2, 64, 8).transpose(1, 0, 2, 3, 4, 5, 6)
    return np.ascontiguousarray(o)
def build_VO(VOb):
    ts = np.array([[tokslot(g, s) for s in range(8)] for g in range(4)])
    vc = np.array([[vcol(v, cl) for cl in range(28)] for v in range(16)])
    V = VOb.reshape(16, 64, 32, 448)
    o = V[:, :, ts, :]
    o = o[..., vc]
    return np.ascontiguousarray(o.transpose(4, 1, 0, 2, 5, 3))
def build_xfrag(xb):
    x4 = xb.reshape(128, 16, 14, 4, 8)
    return np.ascontiguousarray(x4.transpose(0, 2, 3, 1, 4)).reshape(128, 14, 64, 8)
def build_memx(memb):
    o = memb[:, _Xcols]
    return np.ascontiguousarray(o.transpose(1, 3, 2, 0, 4)).reshape(7, 64, 8)
def decode_memx(mx):
    o = mx.reshape(7, 4, 2, 8, 8)
    res = np.zeros((8, 448), np.uint16)
    for ks in range(7):
        for g in range(4):
            for half in range(2):
                res[:, _Xcols[ks, half, g]] = o[ks, g, half]
    return res
if __name__ == "__main__":
    print("EXCH_OFF", EXCH_OFF, "END", EXCH_END, EXCH_END / 2**20)
    assert sorted(vcol(v, cl) for v in range(16) for cl in range(28)) == list(range(448))
    assert sorted(acol(k, q, n) for k in range(7) for q in range(4) for n in range(16)) == list(range(448))
    m = np.arange(8 * 448).reshape(8, 448).astype(np.uint16)
    assert (decode_memx(build_memx(m)) == m).all()
    print("T2_OFF", T2_OFF, "PT_OFF", PT_OFF, "KS_OFF", KS_OFF, KS_OFF / 2**20)
```

```python
from asmlib import *
from layout import *
import chain as C, start as S, prep, gemm, tok, s4d, t2srv
from chain import SRD, DBG, evlog
BC = 160000
JOBQ = 192; NON = 128
def mask_off(a, dst, cls):
    a(f's_and_b32 s71, {cls}, 4')
    a('s_mul_i32 s71, s71, 12')
    a(f's_lshl_b32 {dst}, {cls}, 2')
    a(f's_add_u32 {dst}, {dst}, s71')
MASK0 = 32
SCRAMBLE = 0
XPRE = 0
EVMID = 0
WARM = 1
VPF = 56
A1T = 0
XE = 3
ZO = 0
T0 = 0
XL = 0
LATE = 0
SKIP = 0
S4X = 1
G16 = 1
LLW = 2
TD = 8
MIX = 0
CPOS = 512 if s4d.STAGE else 9999
APP = 11
BFIRST = 0
FL2 = 4
VPK = 16
STEAL_AT = 64
Q_FINE = 0; Q_SRV = Q_FINE + 224; Q_V7 = Q_SRV + 32; Q_VH = Q_V7 + 112; Q_A = Q_VH + 64; Q_VF = Q_A + 128; Q_F = Q_VF + 64; Q_S4 = Q_F + 128; Q_TOK = Q_S4 + 112; Q_END = Q_TOK + 512 + 64 * s4d.STAGE

def kargs(a):
    a('s_load_dwordx8 s[36:43], s[0:1], 56')
    a('s_load_dwordx4 s[44:47], s[0:1], 88')
def lanes(a):
    a('v_and_b32 v1, 63, v0')
    a('v_lshlrev_b32 v2, 4, v1')
    a('v_lshrrev_b32 v3, 4, v1')
    a('v_and_b32 v4, 15, v1')
def w0(a, fn):
    l = a.newlabel('w0')
    a('s_cmp_lg_u32 s16, 0')
    a(f's_cbranch_scc1 {l}')
    fn()
    a.label(l)
def bcast(a, regs, dsts, t=250):
    a(f'v_mov_b32 v{t}, {BC}')
    a('s_add_u32 s101, s101, 1')
    def wr():
        for i, r in enumerate(regs): a(f'ds_write_b32 v{t}, v{r} offset:{4*i}')
        a('s_waitcnt lgkmcnt(0)')
        a(f'v_mov_b32 v{regs[0]}, s101')
        a(f'ds_write_b32 v{t}, v{regs[0]} offset:16')
        a('s_waitcnt lgkmcnt(0)')
    a('s_barrier')
    a('s_mov_b64 exec, 1')
    w0(a, wr)
    a('s_mov_b64 exec, -1')
    a('s_barrier')
    for i, r in enumerate(regs): a(f'ds_read_b32 v{r}, v{t} offset:{4*i}')
    a(f'ds_read_b32 v{t}, v{t} offset:16')
    a('s_waitcnt lgkmcnt(0)')
    for r, d in zip(regs, dsts): a(f'v_readfirstlane_b32 {d}, v{r}')
    a(f'v_cmp_ne_u32 vcc, s101, v{t}')
    a('s_cbranch_vccnz ch_end')

def claim_issue(a, P, r=242):
    a('s_cmp_lg_u32 s66, 0')
    a(f's_cbranch_scc1 {P}_ci')
    def at():
        a('s_lshr_b32 s70, s3, 5')
        mask_off(a, 's70', 's70')
        a('s_lshl_b32 s71, 1, s3')
        a(f'v_mov_b32 v{r}, s71')
        a(f'v_mov_b32 v{r+1}, {MASK0}')
        a('s_mov_b64 exec, 1')
        a(f'buffer_atomic_or v{r}, v{r+1}, {DBG}, s70 offen sc0')
        a(f'buffer_load_dwordx2 v[{r+2}:{r+3}], v{r+1}, {DBG}, 0 offen offset:{NON-MASK0} sc1')
        a('s_mov_b64 exec, -1')
    w0(a, at)
    a.label(f'{P}_ci')

def set_nonce(a, r):
    a(f'v_mov_b32 v{r+1}, {NON}')
    a(f'v_mov_b32 v{r+2}, s88\nv_mov_b32 v{r+3}, s89\nv_mov_b32 v{r+4}, 0\nv_mov_b32 v{r+5}, 0')
    a('s_mov_b64 exec, 1')
    a(f'buffer_atomic_cmpswap_x2 v[{r+2}:{r+5}], v{r+1}, {DBG}, 0 offen sc0')
    a('s_mov_b64 exec, -1')

def confirm(a, P, n, r=242):
    a('s_cmp_lg_u32 s66, 0')
    a(f's_cbranch_scc1 {P}_cf')
    def w():
        a(f's_waitcnt vmcnt({n})')
        a(f'v_readfirstlane_b32 s70, v{r+2}')
        a('s_cmp_lg_u32 s70, 0')
        a(f's_cbranch_scc1 {P}_nz')
        set_nonce(a, r)
        a('s_waitcnt vmcnt(0)')
        a(f'v_readfirstlane_b32 s70, v{r+2}')
        a('s_cmp_lg_u32 s70, 0')
        a(f's_cbranch_scc1 {P}_nz')
        a(f'v_mov_b32 v{r+2}, s88\nv_mov_b32 v{r+3}, s89')
        a.label(f'{P}_nz')
    w0(a, w)
    bcast(a, [r, r + 2, r + 3], ['s70', 's88', 's89'], t=r + 1)
    a('s_mov_b32 s66, 1')
    a('s_bitcmp1_b32 s70, s3')
    a('s_cbranch_scc1 m_reclaim')
    a.label(f'{P}_cf')

def claim_loop(a, P, lo_class, ncls):
    a('s_mov_b32 s21, 0')
    a('s_mov_b64 exec, 1')
    a.label(f'{P}_l')
    a('s_cmp_lg_u32 s70, -1')
    a(f's_cbranch_scc1 {P}_t')
    a('s_add_u32 s20, s20, 1')
    a('s_cmp_lt_u32 s20, 8')
    a(f's_cselect_b32 s20, s20, {lo_class}')
    a('s_mov_b32 s70, 0')
    a('s_mov_b32 s3, -1')
    a('s_add_u32 s21, s21, 1')
    a(f's_cmp_ge_u32 s21, {ncls}')
    a(f's_cbranch_scc1 {P}_d')
    a.label(f'{P}_t')
    a('s_ff0_i32_b32 s22, s70')
    a('s_lshl_b32 s23, 1, s22')
    mask_off(a, 's3', 's20')
    a('v_mov_b32 v242, s23')
    a(f'v_mov_b32 v243, {MASK0}')
    a(f'buffer_atomic_or v242, v243, {DBG}, s3 offen sc0')
    a('s_waitcnt vmcnt(0)')
    a('v_readfirstlane_b32 s70, v242')
    a('s_lshl_b32 s3, s20, 5')
    a('s_add_u32 s3, s3, s22')
    a('s_bitcmp1_b32 s70, s22')
    a(f's_cbranch_scc1 {P}_l')
    a.label(f'{P}_d')
    a('s_mov_b64 exec, -1')
    a('v_mov_b32 v242, s3')

def allflags(a, P, rep_s, t=24, limit=None, sleep=4, on_spin=None, base=IF_OFF):
    a(f's_lshl_b32 s22, {rep_s}, 11')
    a(f's_add_u32 s22, s22, {base}')
    a(f'v_add_u32 v{t}, 1024, v2')
    a(f'v_min_u32 v{t}, {1792-16}, v{t}')
    S.flag_poll(a, P, t + 4, [(2, 's22'), (t, 's22')], 'cA_abort', limit or C.SLOW_LIMIT, sleep, on_spin)

def ask(a):
    def f():
        a('v_mov_b32 v250, 1')
        a(f'v_mov_b32 v251, {JOBQ}')
        a('s_mov_b64 exec, 1')
        a(f'buffer_atomic_add v250, v251, {DBG}, 0 offen sc0')
        a('s_mov_b64 exec, -1')
    w0(a, f)

def worker(a):
    global gemm
    if G16:
        import gemm16 as gemm
    tok.PEEK = DBG
    a.label('m_bjob')
    lanes(a)
    a('s_sub_u32 s18, s3, 32')
    vq = S.VQ()
    S.bjob_decode(a)
    def early():
        S.bjob_x(a, vq)
        a('s_lshl_b32 s26, s17, 9')
        if A1T: S.a1_touch(a, vq)
    if T0:
        a('s_lshl_b32 s26, s17, 9')
        S.a1_touch(a, vq, T0)
    if XE == 0: early()
    S.bjob_issue(a, vq, hook=early if XE == 1 else None)
    if XE == 2: early()
    evlog(a, 9008, 52)
    claim_issue(a, 'bj', 44)
    S.bjob_run(a, 'bj', vq, 1, None, 's77', False, early if XE == 3 else None)
    if XE == 4: early()
    a(f's_add_u32 s78, s77, {IF_OFF - BF_OFF}')
    confirm(a, 'bj', 8 + (4 + A1T if XE == 4 else 0), 44)
    evlog(a, 9001, 52)
    a('s_barrier')
    def hk(n):
        a(f's_waitcnt vmcnt({n + (4 + A1T if XE == 4 else 0)})')
        S.publish(a, 's77', 1, 48)
        evlog(a, 9002, 112)
        if XE == 4: a(f's_waitcnt vmcnt({n})')
        S.init_stores(a, 'bk', vq)
        S._fills(a, vq)
    S.a3_issue(a, hk)
    a('v_mov_b32 v250, s68')
    a('s_or_b32 s20, s69, s16')
    a('s_cbranch_scc1 bj_ht')
    ask(a)
    a('s_branch bj_h2')
    a.label('bj_ht')
    a(f'buffer_load_dword v251, off, {SRD}, s77')
    a.label('bj_h2')
    S.a3_run(a, 1, lambda: w0(a, lambda: S.flag_store(a, 's78', BF_R, 2048, 48)))
    if LLW == 1: S.llc_warm(a, 's18', not ZO)
    evlog(a, 9009)
    bcast(a, [250], ['s3'], t=6)
    a('s_branch wk_have')
    a.label('wk_loop')
    a('s_waitcnt vmcnt(0) lgkmcnt(0)')
    a('s_cmp_eq_u32 s96, 1')
    a('s_cbranch_scc1 wk_ask')
    a('s_mov_b32 s96, 1')
    def staff():
        a('s_mov_b32 s30, 0')
        a(f'v_mov_b32 v243, {MASK0}')
        a.label('sf_l')
        a(f'buffer_load_dword v242, v243, {DBG}, 0 offen sc1')
        a('s_waitcnt vmcnt(0)')
        a('v_readfirstlane_b32 s70, v242')
        a('s_cmp_eq_u32 s70, -1')
        a('s_cbranch_scc1 sf_d')
        a('s_sleep 16')
        a('s_add_u32 s30, s30, 1')
        a('s_cmp_lt_u32 s30, 64')
        a('s_cbranch_scc1 sf_l')
        a('s_mov_b32 s20, 0')
        claim_loop(a, 'sf_c', 0, 1)
        a.label('sf_d')
    w0(a, staff)
    bcast(a, [242], ['s3'], t=243)
    a('s_cmp_eq_u32 s3, -1')
    a('s_cbranch_scc1 wk_ask')
    kargs(a)
    a('s_getreg_b32 s67, hwreg(HW_REG_XCC_ID)')
    a('s_and_b32 s67, s67, 7')
    a('s_mov_b32 s66, 1')
    a('s_waitcnt lgkmcnt(0)')
    a('s_branch m_start')
    a.label('wk_ask')
    a('v_readfirstlane_b32 s22, v250')
    a(f's_cmp_ge_u32 s22, {Q_END}')
    a('s_cbranch_scc1 wk_next')
    ask(a)
    a.label('wk_next')
    evlog(a, 9005)
    a('s_waitcnt vmcnt(0)')
    bcast(a, [250], ['s3'], t=6)
    a.label('wk_have')
    evlog(a, 's3')
    a(f's_cmp_ge_u32 s3, {Q_END}')
    a('s_cbranch_scc1 ch_end')
    a('v_mov_b32 v250, 0')
    a(f'v_mov_b32 v251, {JOBQ}')
    lanes(a)
    a('s_cmp_lg_u32 s97, 0')
    a('s_cbranch_scc1 wk_go')
    a('s_mov_b32 s68, s3\ns_mov_b32 s69, 1')
    def poll():
        def spin():
            a(f's_and_b32 s20, s30, {STEAL_AT-1}')
            a('s_cbranch_scc1 wk_ns')
            a('s_mov_b32 s20, 1\ns_mov_b32 s70, 0')
            claim_loop(a, 'wk_st', 1, 7)
            a('s_cmp_lg_u32 s3, -1')
            a('s_cbranch_scc1 wk_pd')
            a('s_add_u32 s20, s67, 1')
            a(f's_lshl_b32 s22, s20, 11')
            a(f's_add_u32 s22, s22, {IF_OFF}')
            a.label('wk_ns')
        a('s_add_u32 s20, s67, 1')
        allflags(a, 'wk_af', 's20', sleep=4, on_spin=spin)
        a('v_mov_b32 v242, -1')
        a.label('wk_pd')
    w0(a, poll)
    bcast(a, [242], ['s3'], t=243)
    a('s_cmp_lg_u32 s3, -1')
    a('s_cbranch_scc1 m_bjob')
    a('s_mov_b32 s3, s68\ns_mov_b32 s97, 1')
    evlog(a, 9006)
    a.label('wk_go')
    a(f's_cmp_lt_u32 s3, {Q_VH}')
    a('s_cbranch_scc1 wk_g2')
    a(f's_sub_u32 s20, s3, {Q_A}')
    a('s_cmp_lt_u32 s20, 128')
    a('s_cbranch_scc1 wk_g2')
    a('s_cmp_eq_u32 s97, 2')
    a('s_cbranch_scc1 wk_g2')
    a('s_getreg_b32 s20, hwreg(HW_REG_XCC_ID)')
    a('s_and_b32 s20, s20, 7')
    w0(a, lambda: allflags(a, 'wk_i2', 's20', sleep=4, base=I2_OFF))
    a('v_mov_b32 v242, 0')
    bcast(a, [242], ['s20'], t=243)
    a('s_mov_b32 s97, 2')
    a.label('wk_g2')
    if MIX:
        a(f's_sub_u32 s20, s3, {Q_F + 64}')
        a(f's_cmp_lt_u32 s20, {MIX}')
        a('s_cbranch_scc1 wk_s4d')
        a(f's_cmp_lt_u32 s20, {MIX + 64}')
        a(f's_cselect_b32 s20, {MIX}, 0')
        a('s_sub_u32 s3, s3, s20')
    for lim, lab in ((Q_TOK, 'wk_tok'), (Q_S4, 'wk_s4d'), (Q_F, 'wk_f'), (Q_VF, 'wk_vf'), (Q_A, 'wk_a'), (Q_VH, 'wk_vh'), (Q_V7, 'wk_v7'), (Q_SRV, 'wk_srv')):
        a(f's_cmp_ge_u32 s3, {lim}')
        a(f's_cbranch_scc1 {lab}')
    a(f's_sub_u32 s20, s3, {Q_FINE}')
    a('s_cmp_ge_u32 s20, 112')
    a('s_cselect_b32 s18, 1, 0')
    a('s_cselect_b32 s21, 112, 0')
    a('s_sub_u32 s20, s20, s21')
    a('s_and_b32 s17, s20, 15')
    a('s_add_u32 s17, s17, 16')
    a('s_lshr_b32 s34, s20, 4')
    a('s_lshl_b32 s34, s34, 1')
    a('s_add_u32 s35, s34, 2')
    if LLW == 2:
        a('s_cmp_eq_u32 s18, 0')
        a('s_cbranch_scc1 wf_nw')
        S.llc_warm(a, 's3', not ZO)
        a('s_sub_u32 s3, s3, 112')
        S.llc_warm(a, 's3', not ZO)
        a('s_add_u32 s3, s3, 112')
        a.label('wf_nw')
    gemm.gemm_body(a, 'wf', 's18', 's17', st='sc1', signal=True, ld='sc1', NT=2)
    kargs(a)
    a('s_waitcnt lgkmcnt(0)')
    S.init2(a, 's3', ZO)
    if LLW == 3: S.llc_warm(a, 's3', not ZO)
    a('s_branch wk_loop')
    a.label('wk_v7')
    a(f's_sub_u32 s20, s3, {Q_V7}')
    a('s_mov_b32 s18, 1')
    a('s_and_b32 s17, s20, 15')
    a('s_add_u32 s17, s17, 16')
    a('s_lshr_b32 s34, s20, 4')
    a('s_lshl_b32 s34, s34, 1')
    a('s_add_u32 s35, s34, 2')
    a('s_branch wk_gemm')
    a.label('wk_vh')
    a(f's_sub_u32 s20, s3, {Q_VH}')
    a('s_and_b32 s17, s20, 15')
    a('s_add_u32 s17, s17, 16')
    a('s_lshr_b32 s18, s20, 5')
    a('s_add_u32 s18, s18, 2')
    a('s_bitcmp1_b32 s20, 4')
    a('s_cselect_b32 s34, 7, 0')
    a('s_add_u32 s35, s34, 7')
    a('s_branch wk_gemm')
    a.label('wk_vf')
    a(f's_sub_u32 s20, s3, {Q_VF}')
    a('s_and_b32 s17, s20, 15')
    a('s_add_u32 s17, s17, 16')
    a('s_lshr_b32 s18, s20, 4')
    a('s_add_u32 s18, s18, 4')
    a('s_mov_b32 s34, 0\ns_mov_b32 s35, 14')
    a('s_branch wk_gemm')
    a.label('wk_f')
    if SKIP & 4: a('s_branch wk_loop')
    a(f's_sub_u32 s20, s3, {Q_F}')
    a('s_and_b32 s17, s20, 15')
    a('s_lshr_b32 s18, s20, 4')
    a('s_mov_b32 s34, 0\ns_mov_b32 s35, 14')
    a('s_lshl_b32 s22, s17, 7')
    a(f's_add_u32 s22, s22, {AF_OFF}')
    a(f's_add_u32 s23, s22, {A3_OFF - AF_OFF}')
    a('v_min_u32 v24, 48, v2')
    a('v_min_u32 v25, 96, v2')
    S.flag_poll(a, 'wk_aw', 28, [(24, 's22'), (25, 's23')], 'cA_abort', C.SLOW_LIMIT, 6)
    a.label('wk_gemm')
    gemm.gemm_body(a, 'wg', 's18', 's17', st='sc1', signal=True, ld='sc1')
    a('s_branch wk_loop')
    a.label('wk_a')
    if SKIP & 8: a('s_branch wk_loop')
    kargs(a)
    a(f's_sub_u32 s3, s3, {Q_A}')
    a('s_and_b32 s17, s3, 15')
    a('s_lshr_b32 s19, s3, 5')
    a('s_bitcmp1_b32 s3, 4')
    a('s_cselect_b32 s31, 7, 0')
    a('s_waitcnt lgkmcnt(0)')
    vq = S.VQ()
    S.bjob_issue(a, vq, 0, 'aj')
    S.bjob_run(a, 'aj', vq, 0)
    a('v_mov_b32 v250, 0')
    a('s_branch wk_loop')
    a.label('wk_srv')
    if SKIP & 16: a('s_branch ch_end')
    a(f's_sub_u32 s3, s3, {Q_SRV}')
    a('s_and_b32 s18, s3, 15')
    a('s_lshr_b32 s19, s3, 4')
    a('s_and_b32 s19, s19, 1')
    t2srv.t2srv_body(a, 'ws', 's18', 's19', 'cA_abort', ld='sc1')
    a('v_mov_b32 v250, 0')
    a('s_branch wk_loop')
    a.label('wk_s4d')
    if SKIP & 1: a('s_branch wk_loop')
    if S4X:
        def pick():
            a('s_getreg_b32 s20, hwreg(HW_REG_XCC_ID)')
            a(f's_sub_u32 s20, s20, {C.XCD_SEL + 1}')
            a('s_and_b32 s20, s20, 7')
            a('s_mov_b64 exec, 1')
            a.label('s4_l')
            a('s_cmp_ge_u32 s20, 7')
            a('s_cselect_b32 s20, 0, s20')
            a('s_lshl_b32 s21, s20, 7')
            a(f's_add_u32 s21, s21, {CNT_OFF + S4Q}')
            a('v_mov_b32 v242, 1')
            a(f'buffer_atomic_add v242, off, {SRD}, s21 sc0')
            a('s_waitcnt vmcnt(0)')
            a('v_readfirstlane_b32 s21, v242')
            a('s_lshl_b32 s22, s20, 4')
            a('s_add_u32 s20, s20, 1')
            a('s_cmp_ge_u32 s21, 16')
            a('s_cbranch_scc1 s4_l')
            a('v_add_u32 v242, s22, v242')
            a('s_mov_b64 exec, -1')
        w0(a, pick)
        bcast(a, [242], ['s3'], t=243)
    else: a(f's_sub_u32 s3, s3, {Q_S4}')
    s4d.s4d_setup(a)
    s4d.s4d_item(a, 'wk', 's3')
    a('s_branch wk_loop')
    a.label('wk_tok')
    if SKIP & 2: a('s_branch wk_loop')
    a(f's_sub_u32 s3, s3, {Q_TOK}')
    if s4d.STAGE:
        a(f's_cmp_lt_u32 s3, {CPOS}')
        a('s_cbranch_scc1 wk_tk')
        a('s_sub_u32 s3, s3, 64')
        a(f's_cmp_ge_i32 s3, {CPOS}')
        a('s_cbranch_scc1 wk_tk')
        a(f's_sub_u32 s18, s3, {CPOS - 64}')
        a(f's_mov_b32 s20, {CNT_OFF + S4C}')
        if s4d.STAGE:
            C.poll_eq(a, 'wk_cw', SRD, 's20', 112, sleep=32)
            s4d.s4d_copy(a, 's18')
        a('s_branch wk_loop')
        a.label('wk_tk')
    a('s_and_b32 s18, s3, 3')
    a('s_lshr_b32 s17, s3, 2')
    a(f's_cmp_lt_u32 s17, {TD}')
    a('s_cbranch_scc1 wk_tokp')
    a(f's_sub_u32 s17, s17, 64')
    a(f's_cmp_ge_i32 s17, {64 - TD}')
    a('s_cbranch_scc1 wk_toko')
    a(f's_add_u32 s20, s17, {64 - TD}')
    a('s_lshr_b32 s17, s20, 1')
    a('s_bitcmp0_b32 s20, 0')
    a('s_cbranch_scc1 wk_toko')
    a(f's_add_u32 s17, s17, {TD}')
    a.label('wk_tokp')
    tok.tokp_body(a, 's17', 's18', ld='sc1', st='sc1', sync='wp', ldx='sc1')
    a('s_branch wk_loop')
    a.label('wk_toko')
    tok.toko_body(a, 's17', 's18', ld='sc1', sync='wo', OUT='s[92:95]')
    if C.TMAX:
        a('s_cmp_lg_u32 s17, 63')
        a('s_cbranch_scc1 tm_n')
        a('s_waitcnt vmcnt(0)')
        C.tmax(a, 7)
        a.label('tm_n')
    a('v_readfirstlane_b32 s22, v250')
    a(f's_cmp_ge_u32 s22, {Q_END}')
    a('s_cbranch_scc1 ch_end')
    a('s_branch wk_loop')
    a.label('wp_abort')
    a.label('wo_abort')
    a('s_branch cA_abort')

def staffed(a, r=242):
    def f():
        a(f's_cmp_eq_u32 s67, {C.XCD_SEL}')
        a('s_cselect_b32 s20, 1, 0x10001')
        a(f'v_mov_b32 v{r}, s20')
        a(f'v_mov_b32 v{r+1}, 0')
        a('s_mov_b64 exec, 1')
        a(f'buffer_atomic_add v{r}, v{r+1}, {DBG}, 0 offen')
        a('s_mov_b64 exec, -1')
    w0(a, f)

def gen(name='main_kernel'):
    C.SYNC = 1; C.MERGE = 2; C.SELF = 2
    a = Asm()
    a.raw(kernel_header(name))
    a('s_cmp_ge_u32 s2, 256')
    a('s_cbranch_scc1 ch_end')
    a('s_load_dwordx4 s[4:7], s[0:1], 120')
    a('s_load_dwordx2 s[92:93], s[0:1], 112')
    kargs(a)
    a('s_memrealtime s[88:89]')
    if C.CODE_PF == 1: code_prefetch_shared(a, name, 'ch_end', 60)
    if C.CODE_PF == 2: code_prefetch(a, name, 'ch_end', 160000, 60)
    a('s_getreg_b32 s67, hwreg(HW_REG_XCC_ID)')
    a('s_and_b32 s67, s67, 7')
    a('v_lshrrev_b32 v1, 6, v0')
    a('v_readfirstlane_b32 s16, v1')
    a('s_mov_b32 s66, 0\ns_mov_b32 s68, 0\ns_mov_b32 s69, 0\ns_mov_b32 s96, 0\ns_mov_b32 s97, 0\ns_mov_b32 s101, 0x5eed0000')
    a(f's_sub_u32 s20, s67, {C.XCD_SEL}')
    a('s_lshr_b32 s21, s2, 3')
    if SCRAMBLE: a('s_add_u32 s20, s20, s21')
    if SCRAMBLE == 2: a('s_lshr_b32 s21, s21, 2')
    a('s_and_b32 s20, s20, 7')
    a('s_lshl_b32 s3, s20, 5')
    a('s_add_u32 s3, s3, s21')
    a('s_waitcnt lgkmcnt(0)')
    a('s_mov_b32 s8, s6\ns_and_b32 s9, s7, 0xffff\ns_mov_b32 s10, 0x10000000\ns_mov_b32 s11, 0x20000')
    a('s_mov_b32 s12, s4\ns_and_b32 s13, s5, 0xffff\ns_mov_b32 s14, 256\ns_mov_b32 s15, 0x20000')
    a('s_or_b32 s88, s88, 1')
    a(f's_and_b32 s93, s93, 0xffff\ns_mov_b32 s94, {2048*896*2}\ns_mov_b32 s95, 0x20000')
    if C.EVLOG:
        a('s_lshl_b32 s100, s2, 2')
        a('s_add_u32 s100, s100, s16')
        a('s_lshl_b32 s100, s100, 8')
        a(f's_add_u32 s100, s100, {C.EV_OFF}')
    evlog(a, 9000)
    if LATE:
        a('s_mul_i32 s20, s2, 37\ns_and_b32 s20, s20, 15\ns_cmp_lg_u32 s20, 8\ns_cbranch_scc1 m_nl')
        a('s_mov_b32 s20, 0')
        a.label('m_ll')
        a(f's_sleep 127\ns_add_u32 s20, s20, 1\ns_cmp_lt_u32 s20, {LATE}\ns_cbranch_scc1 m_ll')
        a.label('m_nl')
        a('s_mul_i32 s20, s2, 37\ns_and_b32 s20, s20, 15\ns_cmp_lg_u32 s20, 3\ns_cbranch_scc1 m_nl2')
        a('s_mov_b32 s20, 0')
        a.label('m_ll2')
        a(f's_sleep 127\ns_add_u32 s20, s20, 1\ns_cmp_lt_u32 s20, {LATE}\ns_cbranch_scc1 m_ll2')
        a.label('m_nl2')
    acs = S.AComp(a, 'as')
    def evm(p):
        a('s_memrealtime s[98:99]' if EVMID == 1 else 's_memtime s[98:99]')
        a(f'v_mov_b32 v96, {9100 + p}')
        a('s_mov_b64 exec, 1')
        a(f'buffer_store_dword v96, off, {SRD}, s100')
        a('s_waitcnt lgkmcnt(0)')
        a('v_mov_b32 v96, s98')
        a(f'buffer_store_dword v96, off, {SRD}, s100 offset:4')
        a('s_mov_b64 exec, -1')
        a('s_add_u32 s100, s100, 8')
    acs.mid = evm if EVMID else None
    a.label('m_start')
    a('s_cmp_ge_u32 s3, 32')
    a('s_cbranch_scc1 m_bjob')
    C.lane_consts(a)
    a('s_and_b32 s17, s3, 15')
    a('s_cmp_ge_u32 s3, 16')
    a('s_cbranch_scc1 m_val')
    acs.issue()
    evlog(a, 9008, 96)
    claim_issue(a, 'sc', 248)
    acs.setup()
    acs.fetch()
    confirm(a, 'sc', 4 * (S.APRE - 1), 248)
    staffed(a, 248)
    evlog(a, 9001, 96)
    a('s_lshl_b32 s28, s17, 7')
    a(f's_add_u32 s28, s28, {A3_OFF}')
    a('v_min_u32 v113, 96, v2')
    a(f's_mov_b32 s29, {IF_OFF}')
    a('v_add_u32 v112, 1024, v2')
    a(f'v_min_u32 v112, {1792-16}, v112')
    fl = [(113, 's28'), (2, 's29'), (112, 's29')]
    a(f's_mul_i32 s32, s17, {CUW_B}')
    a(f's_mul_i32 s33, s16, {TILE_B}')
    a('s_add_u32 s32, s32, s33')
    a('s_add_u32 s33, s32, s33')
    a(f's_add_u32 s32, s32, {24*TILE_B}')
    a(f's_add_u32 s33, s33, {16*TILE_B}')
    TL = [(5, 's33', TILE_B), (6, 's32', 0), (4, 's33', 0)]
    pieces = [0, 1, 5, 6, 7, 8, 9, 2, 3]
    def place(j, f):
        if j == 2: return None if f < 8 else 28 + f - 8
        return 14 * j + f
    lof = lambda x: pieces[x >> 2] * 16384 + (x & 3) * 1024
    fld = lambda: [f'buffer_load_dwordx4 v[100:103], v113, {SRD}, s28 offen sc1', ('vq', 'f')]
    def extra(p):
        o = []
        j = p - APP
        if 0 <= j < 3:
            ti, br, bo = TL[j]
            o.append([f's_waitcnt vmcnt({acs.vq.wait("f") if "f" in acs.vq.q else 63})', f'v_cmp_ne_u64 vcc, {S.NONCE}, v[100:101]', f'v_cmp_ne_u64 s[54:55], {S.NONCE}, v[102:103]', f's_add_u32 s{48+j}, {br}, {bo}'])
            for f in range(14):
                g = ['s_or_b64 vcc, vcc, s[54:55]', f's_cselect_b32 s{48+j}, 0x10000000, s{48+j}'] if f == 0 else []
                x = place(j, f)
                g.append(f's_add_u32 s22, s{48+j}, {f*1024}')
                if x is None: g.append(f'buffer_load_dwordx4 {ureg(C.wreg(ti, f >> 1) + 4 * (f & 1), 4)}, v2, {SRD}, s22 offen sc1')
                else: g += [f's_add_u32 m0, s25, {lof(x)}', f'buffer_load_dwordx4 v2, {SRD}, s22 offen sc1 lds']
                g.append(('vq', 'a'))
                if f == FL2 and j < 2: g += fld()
                o.append(g)
        if j == -1: o += [[] for _ in range(FL2)] + [fld()]
        if p == 13: o.append([f'buffer_load_dwordx4 v[{100+4*i}:{103+4*i}], v{va}, {SRD}, {so} offen sc1' for i, (va, so) in enumerate(fl)])
        return o
    acs.run(lambda t, p: C.wreg(t, p >> 1) + 4 * (p & 1), extra)
    evlog(a, 9002)
    S.flag_poll(a, 'sc_aw', 100, fl, 'cA_abort', C.SLOW_LIMIT, 1, issued=True)
    a('v_add_u32 v4, s25, v2')
    a('v_add_u32 v5, 0x10000, v4')
    a('v_add_u32 v6, 0x20000, v4')
    for j, (ti, br, bo) in enumerate(TL):
        a(f's_cmp_eq_u32 s{48+j}, 0x10000000')
        a(f's_cbranch_scc1 sc_d{j}')
        for f in range(14):
            x = place(j, f)
            if x is not None: a(f'ds_read_b128 {ureg(C.wreg(ti, f >> 1) + 4 * (f & 1), 4)}, v{4 + (lof(x) >> 16)} offset:{lof(x) & 0xffff}')
        a('s_waitcnt lgkmcnt(0)')
        a(f's_branch sc_e{j}')
        a.label(f'sc_d{j}')
        C.load_units(a, [(bo + ks * UNIT, C.wreg(ti, ks)) for ks in range(7)], br)
        a.label(f'sc_e{j}')
    a('s_barrier')
    a('s_branch m_role')
    a.label('m_val')
    w0(a, lambda: set_nonce(a, 232))
    claim_issue(a, 'va')
    if VPF:
        S.srd(a, 56, 40, S.W_BYTES)
        a('v_lshrrev_b32 v24, 5, v1')
        a('v_and_b32 v25, 31, v1')
        a('v_lshlrev_b32 v25, 4, v25')
        a('v_lshl_add_u32 v24, v24, 13, v25')
        S.srd(a, 60, 42, S.W_BYTES)
        a('s_lshl_b32 s22, s17, 9')
        a('s_lshl_b32 s23, s16, 19')
        a('s_add_u32 s23, s22, s23')
        for i in range(VPK):
            a(f's_add_u32 s21, s23, {(64 - 2*VPK + 2*i) << 13}')
            a('buffer_load_dwordx4 v[28:31], v24, s[60:63], s21 offen')
        a('s_lshl_b32 s23, s16, 14')
        a('s_add_u32 s22, s22, s23')
        a('s_mov_b32 s30, 0')
        a.label('va_pf')
        a('buffer_load_dwordx4 v[28:31], v24, s[56:59], s22 offen')
        a('s_waitcnt vmcnt(40)')
        a('s_add_u32 s22, s22, 65536')
        a('s_add_u32 s30, s30, 1')
        a(f's_cmp_lt_u32 s30, {VPF}')
        a('s_cbranch_scc1 va_pf')
    evlog(a, 9008)
    confirm(a, 'va', min(VPF + VPK, 40) if VPF else 0)
    staffed(a)
    evlog(a, 9001)
    a.label('m_role')
    evlog(a, 9006)
    a('s_mov_b32 s17, s3')
    def late(p):
        if p >= 4: allflags(a, f'va_iw{p}', '0', t=36, sleep=2)
    def bdep(lo, hi):
        a('s_mul_i32 s22, s17, 12')
        a('s_add_u32 s23, s22, 267')
        a('s_add_u32 s22, s22, 256')
        a('v_mov_b32 v36, s23')
        a('v_mov_b32 v37, s22')
        a('v_cmp_eq_u32 vcc, 1, v116')
        a('s_lshl_b32 s22, s17, 4')
        a('v_cndmask_b32 v36, v36, v37, vcc')
        a('v_mov_b32 v37, s22')
        a('v_cmp_eq_u32 vcc, 0, v116')
        a('v_cndmask_b32 v36, v36, v37, vcc')
        a('v_lshrrev_b32 v36, 6, v36')
        a('v_lshlrev_b32 v36, 8, v36')
        a(f'v_med3_u32 v37, v117, {lo}, {hi}')
        a('v_lshl_add_u32 v36, v37, 4, v36')
        a(f's_mov_b32 s22, {BF_OFF}')
        S.flag_poll(a, a.newlabel('va_bw'), 40, [(36, 's22')], 'cA_abort', C.SLOW_LIMIT, 2)
        evlog(a, 9002)
    C.BDEP = bdep
    C.role_tail(a, late)
    a.label('m_reclaim')
    a('s_waitcnt vmcnt(0)')
    a('s_lshr_b32 s20, s3, 5')
    w0(a, lambda: claim_loop(a, 'rc', 0, 9))
    bcast(a, [242], ['s3'])
    a('s_cmp_lg_u32 s3, -1')
    a('s_cbranch_scc1 m_start')
    a('v_mov_b32 v250, 0')
    a('s_branch wk_ask')
    worker(a)
    a.label('ch_end')
    a('s_endpgm')
    return a
```

```python
from asmlib import *
from layout import *
import struct, math
def f32bits(x): return struct.unpack('<I', struct.pack('<f', x))[0]
LOG2E = f32bits(1.4426950408889634)
INV2PI = f32bits(1.0 / (2 * math.pi))
NOST = 0
OSC2 = 0
STAGE = 1
OTOUCH = 0
WV = 24 * KB
U_O = 512
CE_O = 4608; CO_O = CE_O + 4224
KT_O = CO_O + 4224
PR_O = KT_O + 5 * KB + 64
assert PR_O + 4096 <= WV

def srd(a, d, lo, nbytes):
    a(f's_mov_b32 s{d}, s{lo}')
    a(f's_and_b32 s{d+1}, s{lo+1}, 0xffff')
    a(f's_mov_b32 s{d+2}, {nbytes}')
    a(f's_mov_b32 s{d+3}, 0x20000')

def rne_bf16(a, r, t):
    a(f'v_cvt_pk_bf16_f32 v{t}, v{r}, v{r}')
    a(f'v_and_b32 v{r}, 0xffff0000, v{t}')

def s4d_setup(a):
    a('s_load_dwordx8 s[40:47], s[0:1], 0')
    a('s_load_dwordx4 s[48:51], s[0:1], 32')
    a('s_load_dwordx2 s[52:53], s[0:1], 48')
    a('s_load_dwordx2 s[54:55], s[0:1], 112')
    a('v_lshrrev_b32 v1, 6, v0')
    a('v_readfirstlane_b32 s16, v1')
    a('v_and_b32 v1, 63, v0')
    a('v_lshrrev_b32 v3, 4, v1')
    a('v_and_b32 v4, 15, v1')
    a(f's_mul_i32 s17, s16, {WV}')
    a('s_waitcnt lgkmcnt(0)')
    srd(a, 60, 40, 2048 * 448 * 2)
    for i in range(4): srd(a, 64 + 4 * i, 42 + 2 * i, 448 * 256 * 2)
    srd(a, 80, 50, 896); srd(a, 84, 52, 896); srd(a, 92, 54, 2048 * 896 * 2)
    a('v_lshlrev_b32 v5, 5, v1')
    a('v_sub_u32 v5, 2047, v5')
    a(f's_add_u32 s18, s17, {KT_O}')
    for k in range(33):
        a(f'v_subrev_u32 v6, {k}, v5')
        a('v_max_i32 v7, 0, v6')
        a('v_cvt_f32_u32 v7, v7')
        rne_bf16(a, 7, 8)
        a('v_lshrrev_b32 v8, 23, v7')
        a('v_subrev_u32 v8, 134, v8')
        a('v_max_i32 v8, 0, v8')
        a('v_cvt_u32_f32 v7, v7')
        a('v_lshrrev_b32 v7, v8, v7')
        a('v_lshl_add_u32 v7, v8, 8, v7')
        if k == 32:
            a('v_mov_b32 v8, 1280')
            a('v_cmp_gt_i32 vcc, 0, v6')
            a('v_cndmask_b32 v7, v7, v8, vcc')
        a(f'v_lshl_add_u32 v{200+k}, v7, 2, s18')
    a('v_mov_b32 v8, 0\nv_mov_b32 v9, 0')
    a('v_lshlrev_b32 v5, 3, v1')
    a('v_add_u32 v5, s17, v5')
    a('ds_write_b64 v5, v[8:9]')
    a('v_and_b32 v6, 15, v1')
    a('v_lshlrev_b32 v6, 3, v6')
    a('v_add_u32 v6, s17, v6')
    a(f'ds_write_b64 v6, v[8:9] offset:{CE_O + 4096}')
    a(f'ds_write_b64 v6, v[8:9] offset:{CO_O + 4096}')
    a('v_mov_b32 v6, s17')
    a(f'ds_write_b64 v6, v[8:9] offset:{KT_O + 5*KB}')

def s4d_item(a, P, item_s):
    L = lambda n: f'{P}_{n}'
    a(f's_lshl_b32 s19, {item_s}, 2')
    a('s_add_u32 s20, s19, s16')
    a(f's_lshl_b32 s21, {item_s}, 3')
    a('v_mul_u32_u24 v5, 3584, v0')
    a('v_mul_u32_u24 v141, 1792, v0')
    a('s_lshl_b32 s22, s20, 9')
    a('v_lshlrev_b32 v6, 3, v1')
    for i in range(4):
        a(f'buffer_load_dwordx2 v[{24+2*i}:{25+2*i}], v6, s[{64+4*i}:{67+4*i}], s22 offen')
    a('s_lshl_b32 s22, s20, 1')
    a('v_mov_b32 v7, 0')
    a('buffer_load_ushort v32, v7, s[80:83], s22 offen')
    a('buffer_load_ushort v33, v7, s[84:87], s22 offen')
    a('s_mov_b32 s24, 0x05040100\ns_mov_b32 s25, 0x07060302')
    a('s_barrier')
    a('s_waitcnt vmcnt(0)')
    a(f's_mov_b32 s26, {LOG2E}\ns_mov_b32 s27, {INV2PI}')
    a('v_lshlrev_b32 v32, 16, v32')
    a('v_lshlrev_b32 v33, 16, v33')
    a('v_mul_f32 v32, s26, v32')
    a('v_exp_f32 v32, v32')
    rne_bf16(a, 32, 34)
    a('v_lshlrev_b32 v37, 6, v1')
    a(f'v_add_u32 v37, s17, v37')
    for m in range(4):
        def unpack(dst, base):
            src = base + (m >> 1)
            if m & 1: a(f'v_and_b32 v{dst}, 0xffff0000, v{src}')
            else: a(f'v_lshlrev_b32 v{dst}, 16, v{src}')
        unpack(40, 24); unpack(41, 26); unpack(42, 28); unpack(43, 30)
        a('v_mul_f32 v40, s26, v40')
        a('v_exp_f32 v40, v40')
        rne_bf16(a, 40, 34)
        a('v_mul_f32 v40, v40, v32')
        a('v_mul_f32 v40, s26, v40')
        a('v_sub_f32 v40, 0, v40')
        a('v_mul_f32 v41, v41, v32')
        a('v_mul_f32 v41, s27, v41')
        a('v_mul_f32 v42, v42, v32')
        a('v_mul_f32 v43, v43, v32')
        a('v_add_f32 v42, v42, v42')
        a('v_add_f32 v43, v43, v43')
        a(f'ds_write_b128 v37, v[40:43] offset:{PR_O + 16*m}')
    a('v_cvt_f32_u32 v44, v4')
    a('v_mul_f32 v45, 16.0, v44') if False else (a('v_lshlrev_b32 v45, 4, v4'), a('v_cvt_f32_u32 v45, v45'))
    a('v_lshlrev_b32 v46, 4, v3')
    a(f'v_add_u32 v46, s17, v46')
    DK = 48
    for r in range(DK, DK + 20): a(f'v_mov_b32 v{r}, 0')
    a('s_waitcnt lgkmcnt(0)')
    a(f'ds_read_b128 v[68:71], v46 offset:{PR_O}')
    for k in range(8):
        grp, r = k >> 2, k & 3; b = 8 + 8 * grp + 2 * r
        a(f's_add_u32 s22, s21, {grp*1024*896}')
        a(f'buffer_load_dwordx2 v[{b}:{b+1}], v5, s[60:63], s22 offen offset:{r*896}')
        a('s_mov_b32 s28, 0')
        a(f's_call_b64 s[30:31], {L("kl")}')
        if OTOUCH:
            a(f's_add_u32 s22, s21, {k*256*1792}')
            a(f'buffer_load_dword v140, v141, s[92:95], s22 offen')
        a('s_mov_b32 s28, 0')
        a(f's_call_b64 s[30:31], {L("kl")}')
    a(f's_branch {L("kd")}')
    a.label(L('kl'))
    a('s_waitcnt lgkmcnt(0)')
    for r in range(4): a(f'v_mov_b32 v{72+r}, v{68+r}')
    a('v_add_u32 v46, 64, v46')
    a(f'ds_read_b128 v[68:71], v46 offset:{PR_O}')
    A2, BR, CR, CI = 72, 73, 74, 75
    Er, Ei, Yr, Yi = 76, 77, 78, 79
    for (pr, pi, pos) in ((Er, Ei, 45), (Yr, Yi, 44)):
        a(f'v_mul_f32 v80, v{A2}, v{pos}')
        a(f'v_mul_f32 v81, v{BR}, v{pos}')
        a('v_exp_f32 v80, v80')
        a('v_fract_f32 v81, v81')
        a(f'v_cos_f32 v{pr}, v81')
        a(f'v_sin_f32 v{pi}, v81')
        a(f'v_mul_f32 v{pr}, v{pr}, v80')
        a(f'v_mul_f32 v{pi}, v{pi}, v80')
    for rho in range(5):
        xr, xi = 82 + 2 * (rho & 1), 83 + 2 * (rho & 1)
        d = DK + 4 * rho
        a(f'v_mul_f32 v{xr}, v{CR}, v{Er}')
        if rho < 4: a(f'v_mul_f32 v{xi}, v{CR}, v{Ei}')
        a(f'v_fma_f32 v{xr}, -v{CI}, v{Ei}, v{xr}')
        if rho < 4: a(f'v_fma_f32 v{xi}, -v{CI}, v{Er}, -v{xi}')
        if rho < 4:
            nEr, nEi = (86, 87) if Er == 76 else (76, 77)
            a(f'v_mul_f32 v{nEr}, v{Er}, v{Er}')
            a(f'v_mul_f32 v{nEi}, v{Er}, v{Ei}')
            a(f'v_fma_f32 v{nEr}, -v{Ei}, v{Ei}, v{nEr}')
            a(f'v_add_f32 v{nEi}, v{nEi}, v{nEi}')
        a(f'v_mfma_f32_16x16x4_f32 v[{d}:{d+3}], v{xr}, v{Yr}, v[{d}:{d+3}]')
        if rho < 3:
            nYr, nYi = (88, 89) if Yr == 78 else (78, 79)
            a(f'v_mul_f32 v{nYr}, v{Yr}, v{Yr}')
            a(f'v_mul_f32 v{nYi}, v{Yr}, v{Yi}')
            a(f'v_fma_f32 v{nYr}, -v{Yi}, v{Yi}, v{nYr}')
            a(f'v_add_f32 v{nYi}, v{nYi}, v{nYi}')
        if rho < 4:
            a(f'v_mfma_f32_16x16x4_f32 v[{d}:{d+3}], v{xi}, v{Yi}, v[{d}:{d+3}]')
            Er, Ei = nEr, nEi
        if rho < 3: Yr, Yi = nYr, nYi
    a('s_add_u32 s28, s28, 1')
    a('s_cmp_lt_u32 s28, 4')
    a(f's_cbranch_scc1 {L("kl")}')
    a('s_setpc_b64 s[30:31]')
    a.label(L('kd'))
    a.nop(20)
    a('s_waitcnt vmcnt(0)')
    a('v_lshlrev_b32 v6, 3, v0')
    for grp in range(2):
        b = 8 + 8 * grp
        for ch in range(4):
            sel = 's24' if ch % 2 == 0 else 's25'; dw = ch >> 1
            a(f'v_perm_b32 v34, v{b+2+dw}, v{b+dw}, {sel}')
            a(f'v_perm_b32 v35, v{b+6+dw}, v{b+4+dw}, {sel}')
            a(f'v_add_u32 v36, {ch*WV + U_O + grp*2048}, v6')
            a('ds_write_b64 v36, v[34:35]')
    a('v_lshlrev_b32 v46, 8, v3')
    a('v_lshl_add_u32 v46, v4, 2, v46')
    a('v_add_u32 v46, s17, v46')
    for rho in range(5):
        for r in range(4):
            a(f'ds_write_b32 v46, v{DK+4*rho+r} offset:{KT_O + rho*1024 + r*64}')
        a('s_waitcnt lgkmcnt(8)')
    a('s_waitcnt lgkmcnt(0)')
    G0 = 48
    for k in range(33):
        a(f'ds_read_b32 v{G0+k}, v{200+k}')
        if k % 8 == 7: a('s_waitcnt lgkmcnt(4)')
    a('s_waitcnt lgkmcnt(0)')
    a('v_lshlrev_b32 v46, 6, v1')
    a('v_add_u32 v46, s17, v46')
    for c in range(4):
        for k in range(4):
            i = 8 * c + 2 * k
            a(f'v_cvt_pk_bf16_f32 v{84+k}, v{G0+i}, v{G0+i+1}')
            a(f'v_cvt_pk_bf16_f32 v{88+k}, v{G0+i+1}, v{G0+i+2}')
        a(f'ds_write_b128 v46, v[84:87] offset:{CE_O + 16*c}')
        a(f'ds_write_b128 v46, v[88:91] offset:{CO_O + 16*c}')
        a('s_waitcnt lgkmcnt(0)')
    a('s_barrier')
    a('v_lshrrev_b32 v47, 1, v3')
    a('v_sub_u32 v46, v4, v47')
    a('v_add_u32 v46, 1, v46')
    a('v_lshlrev_b32 v46, 5, v46')
    a('v_and_b32 v48, 1, v3')
    a('v_lshl_add_u32 v46, v48, 4, v46')
    a('v_add_u32 v46, s17, v46')
    for f in range(64):
        a(f'ds_read_b128 a[{4*f}:{4*f+3}], v46 offset:{U_O + (2*f - 15)*32}')
        if f % 8 == 7: a('s_waitcnt lgkmcnt(4)')
    a('v_lshlrev_b32 v49, 4, v47')
    a('v_add_u32 v49, v49, v4')
    a('v_sub_u32 v49, 2047, v49')
    a('v_lshl_add_u32 v49, v48, 3, v49')
    a('v_and_b32 v50, 1, v49')
    a('v_lshrrev_b32 v49, 1, v49')
    a('v_lshlrev_b32 v49, 2, v49')
    a(f'v_mul_u32_u24 v50, {CO_O - CE_O}, v50')
    a('v_add3_u32 v49, v49, v50, s17')
    a(f'v_add_u32 v49, {CE_O}, v49')
    NB = 5
    for b in range(NB): a(f'v_subrev_u32 v{52+b}, {64*(15*b+14)}, v49')
    Y = 60; AF = 92; NA = 4
    def ard(Dd):
        b, o = divmod(Dd, 15); off = (14 - o) * 16; r = AF + 4 * (Dd % NA)
        a(f'ds_read2_b32 v[{r}:{r+1}], v{52+b} offset0:{off} offset1:{off+1}')
        a(f'ds_read2_b32 v[{r+2}:{r+3}], v{52+b} offset0:{off+2} offset1:{off+3}')
    a('s_waitcnt lgkmcnt(0)')
    for Dd in range(3): ard(Dd)
    for Dd in range(64):
        if Dd + 3 < 64: ard(Dd + 3)
        a(f's_waitcnt lgkmcnt({2*min(3, 63-Dd)})')
        r = AF + 4 * (Dd % NA)
        for n0 in range(8):
            phi = 16 * n0 - 2 * Dd
            if phi < -14: continue
            f = (phi + 14) // 2; d = Y + 4 * n0
            c = '0' if Dd == 0 else f'v[{d}:{d+3}]'
            a(f'v_mfma_f32_16x16x32_bf16 v[{d}:{d+3}], v[{r}:{r+3}], a[{4*f}:{4*f+3}], {c}')
    a('v_lshlrev_b32 v46, 5, v4')
    a('v_lshl_add_u32 v46, v3, 3, v46')
    a('v_add_u32 v46, s17, v46')
    for n0 in range(8): a(f'ds_read_b64 v[{108+2*n0}:{109+2*n0}], v46 offset:{U_O + n0*512}')
    a('s_waitcnt lgkmcnt(0)')
    for n0 in range(8):
        d = Y + 4 * n0; ub = 108 + 2 * n0
        a(f'v_lshlrev_b32 v124, 16, v{ub}')
        a(f'v_and_b32 v125, 0xffff0000, v{ub}')
        a(f'v_lshlrev_b32 v126, 16, v{ub+1}')
        a(f'v_and_b32 v127, 0xffff0000, v{ub+1}')
        for r in range(4): a(f'v_mul_f32 v{124+r}, v{124+r}, v33')
        a('v_cvt_pk_bf16_f32 v128, v124, v125')
        a('v_cvt_pk_bf16_f32 v129, v126, v127')
        a(f'v_cvt_pk_bf16_f32 v130, v{d}, v{d+1}')
        a(f'v_cvt_pk_bf16_f32 v131, v{d+2}, v{d+3}')
        for k in range(2):
            a(f'v_lshlrev_b32 v{124+2*k}, 16, v{128+k}')
            a(f'v_and_b32 v{125+2*k}, 0xffff0000, v{128+k}')
            a(f'v_lshlrev_b32 v{132+2*k}, 16, v{130+k}')
            a(f'v_and_b32 v{133+2*k}, 0xffff0000, v{130+k}')
        for r in range(4): a(f'v_add_f32 v{124+r}, v{124+r}, v{132+r}')
        a(f'v_cvt_pk_bf16_f32 v{ub}, v124, v125')
        a(f'v_cvt_pk_bf16_f32 v{ub+1}, v126, v127')
        a(f'ds_write_b64 v46, v[{ub}:{ub+1}] offset:{U_O + n0*512}')
    a('s_waitcnt lgkmcnt(0)')
    a('s_barrier')
    a('v_lshlrev_b32 v6, 3, v0')
    a('v_lshlrev_b32 v5, 4, v0' if STAGE else 'v_mul_u32_u24 v5, 7168, v0')
    for grp in range(2):
        for ch in range(4):
            a(f'v_add_u32 v36, {ch*WV + U_O + grp*2048}, v6')
            a(f'ds_read_b64 v[{8+2*ch}:{9+2*ch}], v36')
        a('s_waitcnt lgkmcnt(0)')
        a(f's_add_u32 s22, s21, {grp*1024*1792}')
        a(f's_add_u32 s23, s22, 3584')
        for r in range(4):
            sel = 's24' if r % 2 == 0 else 's25'; dw = r >> 1
            o = 16 + 8 * grp + 2 * r
            a(f'v_perm_b32 v{o}, v{10+dw}, v{8+dw}, {sel}')
            a(f'v_perm_b32 v{o+1}, v{14+dw}, v{12+dw}, {sel}')
            if STAGE:
                if r == 0:
                    a('s_lshl_b32 s22, s21, 11')
                    a(f's_add_u32 s22, s22, {YS_OFF + grp*8192}')
                if r == 3: a('s_add_u32 s22, s22, 4096')
                if r & 1: a(f'buffer_store_dwordx4 v[{o-2}:{o+1}], v5, s[8:11], s22 offen sc1')
            elif not NOST: a(f'buffer_store_dwordx2 v[{o}:{o+1}], v5, s[92:95], {"s22" if r < 2 else "s23"} offen offset:{(r & 1)*1792}')
    if STAGE:
        a('s_waitcnt vmcnt(0)')
        a('s_barrier')
        a('s_cmp_lg_u32 s16, 0')
        a(f's_cbranch_scc1 {L("nc")}')
        a('v_mov_b32 v5, 1')
        a(f's_mov_b32 s22, {CNT_OFF + S4C}')
        a('s_mov_b64 exec, 1')
        a('buffer_atomic_add v5, off, s[8:11], s22')
        a('s_mov_b64 exec, -1')
        a.label(L('nc'))

def s4d_copy(a, seg_s):
    RS = 912
    a('v_lshlrev_b32 v5, 14, v3')
    a('v_and_b32 v6, 1, v4')
    a('v_lshl_add_u32 v5, v6, 12, v5')
    a('v_lshrrev_b32 v6, 1, v4')
    a('v_lshl_add_u32 v5, v6, 4, v5')
    a(f's_mul_i32 s20, s16, {28*16384}')
    a(f's_lshl_b32 s21, {seg_s}, 7')
    a('s_add_u32 s20, s20, s21')
    a(f's_and_b32 s21, {seg_s}, 32')
    a('s_lshl_b32 s21, s21, 7')
    a('s_add_u32 s20, s20, s21')
    a(f's_add_u32 s20, s20, {YS_OFF}')
    for k in range(7):
        a(f'buffer_load_dwordx4 v[{8+4*k}:{11+4*k}], v5, s[8:11], s20 offen sc1')
        a('s_add_u32 s20, s20, 65536')
    a(f'v_mul_u32_u24 v6, {2*RS}, v4')
    a('v_lshl_add_u32 v6, v3, 3, v6')
    a('s_mul_i32 s20, s16, 224')
    a('v_add_u32 v6, s20, v6')
    a(f's_movk_i32 s22, {RS}')
    assert all((c * 18725) >> 20 == c // 56 for c in range(1792))
    for k in range(7):
        a(f'v_add_u32 v36, {256*k}, v0')
        a('v_mul_u32_u24 v37, 18725, v36')
        a('v_lshrrev_b32 v37, 20, v37')
        a('v_mul_u32_u24 v38, 56, v37')
        a('v_sub_u32 v36, v36, v38')
        a('v_lshlrev_b32 v36, 4, v36')
        a(f'v_mad_u32_u24 v{40+k}, v37, s22, v36')
        a('v_mul_u32_u24 v37, 1792, v37')
        a(f'v_add_u32 v{48+k}, v37, v36')
    for k in range(7):
        a(f's_waitcnt vmcnt({6-k})')
        a(f'ds_write_b64 v6, v[{8+4*k}:{9+4*k}] offset:{32*k}')
        a(f'ds_write_b64 v6, v[{10+4*k}:{11+4*k}] offset:{32*k + RS}')
    a('s_waitcnt lgkmcnt(0)')
    a('s_barrier')
    a(f's_mul_i32 s20, {seg_s}, {32*1792}')
    for k in range(7): a(f'ds_read_b128 v[{8+4*k}:{11+4*k}], v{40+k}')
    for k in range(7):
        a(f's_waitcnt lgkmcnt({6-k})')
        a(f'buffer_store_dwordx4 v[{8+4*k}:{11+4*k}], v{48+k}, s[92:95], s20 offen' + (' sc1' if OSC2 else ''))

def gen_s4d(name='s4d_kernel'):
    a = Asm(); a.raw(kernel_header(name))
    a('s_cmp_ge_u32 s2, 112')
    a('s_cbranch_scc1 s4_end')
    s4d_setup(a)
    a('s_mov_b32 s3, s2')
    s4d_item(a, 's4', 's3')
    a.label('s4_end')
    a('s_endpgm')
    return a
def kernels():
    return {'s4d': lambda: (gen_s4d(), 's4d_kernel', f'grid=(112,1,1) block=(256,1,1) lds={4*WV}', (512, 256))}
```

```python
from asmlib import *
from layout import *
import prep
WS = 's[8:11]'
SIGMA = prep.SIGMA
W_BYTES = prep.W_BYTES
NR = 8
NONCE = 's[88:89]'
NS = 9
APRE = 4
DSP = 2
VPRE = 5
XLATE = 1
PF_S = 3
PF_V = 7

BEV = 0
HALF = 1
def EV(a, tag):
    import chain as C
    if BEV: C.evlog(a, tag, 10)
def srd(a, d, lo, nbytes): prep.srd(a, d, lo, lo + 1, nbytes)

class VQ:
    def __init__(self): self.q = []
    def add(self, tag, n=1): self.q += [tag] * n
    def wait(self, tag):
        last = max(i for i, t in enumerate(self.q) if t == tag)
        n = len(self.q) - 1 - last
        self.q = self.q[last + 1:]
        return n

class AComp:
    FR = 120
    ACC = 32
    RING = 16; PF = 3; NG = 4
    RA = 8
    SV = 100
    def __init__(self, a, P):
        self.a = a; self.P = P; self.vq = VQ(); self.nxt = 0; self.mid = None
    def dma_ops(self):
        n = self.nxt; self.nxt += 1
        o = [[f'buffer_load_dwordx4 v{4+i}, s[56:59], s22 offen offset:{i*1024} lds', ('vq', ('p', n))] for i in range(4)]
        o[0] = [f's_add_u32 s22, s27, {n << 18}', f's_add_u32 m0, s25, {(n % NS)*16384}'] + o[0]
        return o
    def dma(self):
        for g in self.dma_ops():
            for x in g:
                if isinstance(x, tuple): self.vq.add(x[1])
                else: self.a(x)
    def issue(self):
        a = self.a; SV = self.SV
        srd(a, 60, 42, W_BYTES)
        a('v_lshrrev_b32 v24, 5, v1')
        a('v_and_b32 v25, 31, v1')
        a('s_lshl_b32 s26, s17, 9')
        a('s_lshl_b32 s25, s16, 12')
        a('v_xor_b32 v26, v25, v24')
        a('v_lshlrev_b32 v26, 4, v26')
        a('v_lshl_add_u32 v26, v24, 13, v26')
        for i in range(4):
            a(f'v_xor_b32 v{SV+i}, {32*(i >> 1)}, v26')
            if i: a(f'v_add_u32 v{SV+i}, {i*(16384-1024)}, v{SV+i}')
        a('s_lshl_b32 s23, s16, 19')
        a('s_add_u32 s23, s23, s26')
        def stage(grp):
            if grp and grp % 2 == 0:
                for i in range(4): a(f'v_xor_b32 v{SV+i}, {64*((grp >> 1) ^ ((grp >> 1) - 1))}, v{SV+i}')
            a(f's_add_u32 m0, s25, {(grp + 1)*16384}')
            if grp: a(f's_add_u32 s23, s23, {8 << 13}')
            for i in range(4): a(f'buffer_load_dwordx4 v{SV+i}, s[60:63], s23 offen offset:{i*1024} lds')
            self.vq.add('k', 4)
        for grp in range(8): stage(grp)
        srd(a, 56, 40, W_BYTES)
        a('s_lshl_b32 s21, s16, 16')
        a('s_add_u32 s27, s26, s21')
        a('s_lshr_b32 s20, s16, 1')
        a('s_lshl_b32 s20, s20, 6')
        a('v_xor_b32 v26, s20, v26')
        for i in range(4):
            a(f'v_xor_b32 v{4+i}, {128*(i >> 1) + 32*(i & 1)}, v26')
            if i: a(f'v_add_u32 v{4+i}, {i*(16384-1024)}, v{4+i}')
        self.dma()
    def setup(self):
        a = self.a; SV = self.SV
        a('v_and_b32 v26, 15, v25')
        a('v_xor_b32 v27, v26, v24')
        a('v_lshlrev_b32 v27, 4, v27')
        a('v_bfe_u32 v28, v25, 2, 1')
        a('v_lshlrev_b32 v28, 4, v28')
        a('v_lshrrev_b32 v29, 3, v25')
        a('v_lshl_add_u32 v28, v29, 2, v28')
        a('v_and_b32 v29, 3, v25')
        a('v_add_u32 v28, v28, v29')
        a('v_lshl_add_u32 v28, v28, 9, v27')
        a('v_lshrrev_b32 v29, 2, v26')
        a('v_lshlrev_b32 v29, 15, v29')
        a('v_bfe_u32 v30, v26, 1, 1')
        a('v_lshl_add_u32 v29, v30, 11, v29')
        a('v_lshrrev_b32 v30, 4, v25')
        a('v_lshl_add_u32 v29, v30, 10, v29')
        a('v_and_b32 v31, 1, v26')
        a('v_lshl_add_u32 v29, v31, 9, v29')
        a('v_add_u32 v29, v29, v27')
        a('v_add_u32 v29, s25, v29')
        for k in range(8):
            a(f'v_xor_b32 v{self.RA+k}, {32*k}, v28')
            a(f'v_xor_b32 v{SV+4+k}, {32*k}, v29')
        a(f's_mov_b32 s52, {SIGMA}')
    def fetch(self):
        a = self.a
        a(f's_waitcnt vmcnt({self.vq.wait("k")})')
        for D in range(2):
            for ks in range(16):
                r = self.FR + 64 * D + 4 * ks
                a(f'ds_read_b128 v[{r}:{r+3}], v{self.SV + 4 + (ks & 7)} offset:{(1 + D)*16384 + (ks >> 3)*256}')
                if ks & 7 == 7: a('s_waitcnt lgkmcnt(4)')
        a('s_waitcnt lgkmcnt(0)')
        while self.nxt < APRE: self.dma()
    def epi(self, p, dest):
        o = []
        for D in range(2):
            b0 = self.ACC + 32 * (p & 1) + 16 * D
            for b in (b0, b0 + 8):
                for k in range(4):
                    o += [f'v_mul_f32 v{b+2*k}, s52, v{b+2*k}', f'v_mul_f32 v{b+2*k+1}, s52, v{b+2*k+1}', f'v_cvt_pk_bf16_f32 v{b+k}, v{b+2*k}, v{b+2*k+1}']
            o += [f'v_permlane16_swap_b32 v{b0+k}, v{b0+8+k}' for k in range(4)]
            for u in range(2):
                o += [f'v_accvgpr_write_b32 a{dest(2*D+u, p) - 256 + k}, v{b0+8*u+k}' for k in range(4)]
        return o
    def run(self, dest, extra=None):
        a = self.a; vq = self.vq; PF = self.PF
        hi = [0] * 8
        def rd(i):
            p, ks = i >> 4, i & 15; r = self.RING + 4 * (i % self.NG); k = ks & 7; sl = p % NS
            if hi[k] != sl >> 2:
                a(f'v_xor_b32 v{self.RA+k}, {(hi[k] ^ (sl >> 2)) << 16}, v{self.RA+k}'); hi[k] = sl >> 2
            a(f'ds_read_b128 v[{r}:{r+3}], v{self.RA+k} offset:{(sl & 3)*16384 + (ks >> 3)*256}')
        def sync(p):
            if ('p', p) in vq.q: a(f's_waitcnt vmcnt({vq.wait(("p", p))})')
            a('s_barrier')
        sync(1)
        for i in range(PF): rd(i)
        side = []; mem = []
        for i in range(14 * 16):
            p, ks = i >> 4, i & 15
            if ks == 0:
                if p & 1:
                    assert not mem
                    sync(min(p + 2, 13))
                    if self.mid: self.mid(p)
                    while self.nxt < min(14, p + NS): mem += self.dma_ops()
                if p == 0:
                    while self.nxt < min(NS, APRE + 4): mem += self.dma_ops()
                if extra: mem += extra(p)
            if i + PF < 14 * 16: rd(i + PF)
            a(f's_waitcnt lgkmcnt({min(PF, 14 * 16 - 1 - i)})')
            r = self.RING + 4 * (i % self.NG)
            for D in range(2):
                d = self.ACC + 32 * (p & 1) + 16 * D; b = self.FR + 64 * D + 4 * ks
                a(f'v_mfma_f32_32x32x16_bf16 v[{d}:{d+15}], v[{r}:{r+3}], v[{b}:{b+3}], ' + ('0' if ks == 0 else f'v[{d}:{d+15}]'))
                if D == 0 and mem:
                    for x in mem.pop(0):
                        if isinstance(x, tuple): vq.add(x[1])
                        else: a(x)
                if ks >= 1:
                    for _ in range(3 - D):
                        if side: a(side.pop(0))
            if ks == 15:
                assert not side
                side = self.epi(p, dest)
        assert not mem
        for x in side: a(x)

def flag_store(a, soff_s, R, stride, t=24):
    a(f'v_mul_u32_u24 v{t+2}, {stride}, v1')
    a(f'v_mov_b32 v{t}, s88\nv_mov_b32 v{t+1}, s89')
    a(f's_mov_b64 exec, {(1 << R) - 1}')
    a(f'buffer_store_dwordx2 v[{t}:{t+1}], v{t+2}, {WS}, {soff_s} offen sc1')
    a('s_mov_b64 exec, -1')

def flag_poll(a, P, t, loads, abort, limit, sleep=4, on_spin=None, issued=False):
    a('s_mov_b32 s30, 0')
    if issued: a(f's_branch {P}_w')
    a.label(P)
    for i, (va, so) in enumerate(loads):
        a(f'buffer_load_dwordx4 v[{t+4*i}:{t+4*i+3}], v{va}, {WS}, {so} offen sc1')
    if issued: a.label(P + '_w')
    a('s_waitcnt vmcnt(0)')
    for i in range(2 * len(loads)):
        a(f'v_cmp_ne_u64 vcc, {NONCE}, v[{t+2*i}:{t+2*i+1}]')
        a(f's_cbranch_vccnz {P}_no')
    a(f's_branch {P}_ok')
    a.label(P + '_no')
    a(f's_sleep {sleep}')
    a('s_add_u32 s30, s30, 1')
    if on_spin: on_spin()
    a(f's_cmp_lt_u32 s30, {limit}')
    a(f's_cbranch_scc1 {P}')
    a(f's_branch {abort}')
    a.label(P + '_ok')

def bjob_decode(a):
    a('s_mul_i32 s17, s18, 4682')
    a('s_lshr_b32 s17, s17, 16')
    assert all((i * 4682) >> 16 == i // 14 for i in range(224))
    a('s_mul_i32 s20, s17, 14')
    a('s_sub_u32 s19, s18, s20')
    a('s_cmp_ge_u32 s19, 7')
    a('s_cselect_b32 s31, 7, 0')
    a('s_sub_u32 s19, s19, s31')

def bjob_issue(a, vq, mat=1, P='bj', hook=None):
    srd(a, 60, 40 + 4 * mat, W_BYTES); srd(a, 56, 42 + 4 * mat, W_BYTES)
    a('s_lshl_b32 s30, s16, 13')
    if mat:
        a('s_mul_i32 s27, s17, 229376')
        a('s_lshl_b32 s29, s19, 7')
        a('s_add_u32 s27, s27, s29')
        a('v_lshrrev_b32 v7, 3, v1')
        a('v_and_b32 v8, 7, v1')
        a('v_and_b32 v9, 2, v7')
        a('v_xor_b32 v8, v8, v9')
        a('s_lshl_b32 s29, s16, 6')
        a('v_add_u32 v7, s29, v7')
        a('v_mul_u32_u24 v7, 896, v7')
        a('v_lshl_add_u32 v7, v8, 4, v7')
        a('v_xor_b32 v8, 64, v7')
        for i in range(8):
            if i % 4 == 0: a(f's_add_u32 m0, s30, {i*1024}')
            a(f's_add_u32 s22, s27, {i*8*896 - (i & 3)*1024}')
            a(f'buffer_load_dwordx4 v{7 + (i & 1)}, s[56:59], s22 offen offset:{(i & 3)*1024} lds')
    else:
        a('s_lshl_b32 s27, s19, 19')
        a('s_lshl_b32 s29, s16, 17')
        a('s_add_u32 s27, s27, s29')
        a('s_lshl_b32 s29, s17, 9')
        a('s_add_u32 s27, s27, s29')
        a('v_lshrrev_b32 v5, 5, v1')
        a('v_and_b32 v6, 31, v1')
        a('v_xor_b32 v6, v6, v5')
        a('v_lshlrev_b32 v6, 4, v6')
        a('v_lshl_add_u32 v6, v5, 13, v6')
        for i in range(8):
            if i % 4 == 0: a(f's_add_u32 m0, s30, {i*1024}')
            a(f's_add_u32 s22, s27, {i*16384 - (i & 3)*1024}')
            a(f'v_xor_b32 v7, {32*i}, v6')
            a(f'buffer_load_dwordx4 v7, s[56:59], s22 offen offset:{(i & 3)*1024} lds')
    vq.add('stat', 8)
    if hook: hook()
    a('v_lshrrev_b32 v5, 5, v1')
    a('v_and_b32 v6, 31, v1')
    a('s_lshl_b32 s25, s16, 15')
    a('s_add_u32 s25, s25, 32768')
    a('s_lshl_b32 s26, s17, 9')
    for k, sp in ((0, 's28'), (4, 's29')):
        a(f's_add_u32 {sp}, s19, s16')
        if k: a(f's_add_u32 {sp}, {sp}, {k}')
        a(f's_cmp_ge_u32 {sp}, 7')
        a('s_cselect_b32 s20, 7, 0')
        a(f's_sub_u32 {sp}, {sp}, s20')
        a(f's_add_u32 {sp}, {sp}, s31')
    a('s_lshl_b32 s32, s28, 18\ns_add_u32 s32, s32, s26')
    a('s_lshl_b32 s33, s29, 18\ns_add_u32 s33, s33, s26')
    a('v_xor_b32 v8, v6, v5')
    a('v_lshlrev_b32 v8, 4, v8')
    a('v_lshl_add_u32 v8, v5, 13, v8')
    for i in range(4):
        a(f'v_xor_b32 v{12+i}, {32*(i & 1)}, v8')
        if i: a(f'v_add_u32 v{12+i}, {i*(16384-1024)}, v{12+i}')
    for j in range(4):
        a(f's_add_u32 s20, s16, {j}')
        a('s_and_b32 s20, s20, 3')
        a(f's_mul_i32 s21, s20, {65536 + 64}')
        a('s_lshl_b32 s20, s20, 12')
        a(f's_add_u32 s{48 + j}, s20, s25')
        a(f's_mov_b32 m0, s{48 + j}')
        for i in range(4):
            a(f'v_xor_b32 v{16+4*j+i}, s21, v{12+i}')
            a(f'buffer_load_dwordx4 v{16+4*j+i}, s[60:63], s32 offen offset:{i*1024} lds')
    vq.add('p0', 16)

def bjob_x(a, vq, it='s18', mem0=True):
    srd(a, 52, 36, 2048 * 448 * 2)
    a(f's_lshl_b32 s20, {it}, 8')
    a('v_add_u32 v95, s20, v0')
    M448 = (1 << 32) // 448 + 1
    assert all((u * M448) >> 32 == u // 448 for u in range(57344))
    a(f's_mov_b32 s21, {M448}')
    a('v_mul_hi_u32 v6, v95, s21')
    a('v_mul_u32_u24 v7, 448, v6')
    a('v_sub_u32 v7, v95, v7')
    a('v_lshrrev_b32 v8, 4, v7')
    a('v_and_b32 v7, 15, v7')
    a('v_lshl_add_u32 v9, v6, 4, v7')
    a('v_mul_u32_u24 v9, 896, v9')
    a('v_lshl_add_u32 v9, v8, 5, v9')
    a('buffer_load_dwordx4 v[84:87], v9, s[52:55], 0 offen')
    a('buffer_load_dwordx4 v[88:91], v9, s[52:55], 0 offen offset:16')
    vq.add('x', 2)
    a(f'v_mul_u32_u24 v6, {14*KB}, v6')
    a('v_lshl_add_u32 v6, v7, 4, v6')
    a('v_lshl_add_u32 v92, v8, 9, v6')
    a('v_lshrrev_b32 v7, 2, v8')
    a('v_lshl_add_u32 v6, v7, 11, v6')
    a('v_and_b32 v7, 3, v8')
    a('v_lshl_add_u32 v93, v7, 8, v6')
    if not mem0: return
    srd(a, 72, 38, 8 * 448 * 2)
    a('v_min_u32 v6, 223, v0')
    a('v_lshrrev_b32 v7, 3, v6')
    a('v_and_b32 v6, 7, v6')
    a('v_mul_u32_u24 v9, 896, v6')
    a('v_lshl_add_u32 v9, v7, 5, v9')
    a('buffer_load_dwordx4 v[36:39], v9, s[72:75], 0 offen')
    a('buffer_load_dwordx4 v[40:43], v9, s[72:75], 0 offen offset:16')
    vq.add('x', 2)
    a('v_lshlrev_b32 v7, 8, v7')
    a('v_lshl_add_u32 v94, v6, 4, v7')

def a1_touch(a, vq, mode=1):
    a('s_cmp_lt_u32 s16, 2')
    a('s_cselect_b32 s20, s40, s42')
    a('s_cselect_b32 s21, s41, s43')
    srd(a, 72, 20, W_BYTES)
    a('s_add_u32 s20, s19, s31')
    a('s_lshl_b32 s21, s20, 5')
    a('s_lshl_b32 s22, s16, 4')
    a('s_add_u32 s21, s21, s22')
    if mode == 1:
        a('s_mul_i32 s20, s20, 14')
        a('s_add_u32 s20, s20, 250')
    elif mode == 2: a('s_sub_u32 s20, s21, 32')
    else:
        a('s_mul_i32 s20, s20, 18')
        a('s_lshr_b32 s22, s22, 1')
        a('s_add_u32 s20, s20, s22')
        a('s_sub_u32 s20, s20, 16')
    a('s_cmp_lt_u32 s16, 2')
    a('s_cselect_b32 s20, s21, s20')
    a('s_lshl_b32 s20, s20, 13')
    a('s_add_u32 s20, s20, s26')
    a('v_lshlrev_b32 v6, 13, v4')
    a('v_lshl_add_u32 v6, v3, 7, v6')
    a('buffer_load_dword v51, v6, s[72:75], s20 offen')
    vq.add('t')

def wait3(a, n, extra=''):
    l = a.newlabel('w3')
    a(f's_waitcnt vmcnt({n}){extra}')
    a('s_cmp_lg_u32 s16, 3')
    a(f's_cbranch_scc1 {l}')
    a(f's_waitcnt vmcnt({n-16})')
    a.label(l)

def _fills(a, vq):
    import tok
    PTL = (64 - tok.LASTP) * 2 * PT_B
    assert PT_OFF + 128 * PT_B == MEMG_OFF
    k = 0
    for base, n, zlo, zn in ((EXCH_OFF, NB1 * EXCH_B // 16, F2 // 16, 128), (MEMG_OFF - PTL, (PTL + 64 * 7 * KB + CNT_B) // 16, (PTL + 64 * 7 * KB) // 16, 1 << 20)):
        a(f's_mov_b32 s23, {base}')
        for j in range((n - 448 + 57343) // 57344):
            r = 52 + 4 * k
            a(f'v_add_u32 v6, {448 + 57344*j}, v95')
            if base != EXCH_OFF:
                a(f'v_cmp_gt_u32 vcc, {PTL // 16}, v95')
                a('v_cndmask_b32 v6, v6, v95, vcc')
            a(f'v_subrev_u32 v7, {zlo}, v6')
            a(f'v_mov_b32 v{r}, -1')
            a('v_mov_b32 v9, 0')
            a(f'v_cmp_gt_u32 vcc, {zn}, v7')
            a(f'v_cndmask_b32 v{r}, v{r}, v9, vcc')
            for q in range(1, 4): a(f'v_mov_b32 v{r+q}, v{r}')
            a('v_lshlrev_b32 v8, 4, v6')
            a('v_mov_b32 v9, 0x10000000')
            a(f'v_cmp_lt_u32 vcc, {n-1}, v6')
            a('v_cndmask_b32 v8, v8, v9, vcc')
            a(f'buffer_store_dwordx4 v[{r}:{r+3}], v8, {WS}, s23 offen sc1')
            vq.add('fill'); k += 1

def bjob_run(a, P, vq, mat=1, confirm=None, fs='s28', finish=True, late=None):
    BST = 128
    for q in range(4):
        if mat:
            a('s_lshl_b32 s30, s19, 6')
            a(f's_add_u32 s30, s30, {16*q}')
            a('s_cmp_lt_u32 s19, 4')
            a('s_cselect_b32 s20, 0, 256')
            a('s_sub_u32 s30, s30, s20')
            a('v_add_u32 v8, s30, v4')
            a('s_lshr_b32 s20, s20, 4')
            a('s_cmp_lt_u32 s19, 4')
            a('s_movk_i32 s21, 5462')
            a('s_cselect_b32 s21, 4096, s21')
            a('s_cselect_b32 s30, 16, 12')
            a('v_mul_u32_u24 v10, s21, v8')
            a('v_lshrrev_b32 v10, 16, v10')
            a('v_mul_u32_u24 v11, s30, v10')
            a('v_sub_u32 v32, v8, v11')
            a('v_add_u32 v32, s20, v32')
            a('s_mul_i32 s30, s17, 28')
            a('v_add_u32 v32, s30, v32')
            a('v_lshrrev_b32 v33, 4, v32')
            a('v_and_b32 v32, 15, v32')
            a(f's_mov_b32 s30, {CUW_B}')
            a('v_mul_lo_u32 v10, v10, s30')
            a(f'v_mul_u32_u24 v33, {TILE_B}, v33')
            a('v_add_u32 v10, v10, v33')
            a('v_lshl_add_u32 v10, v3, 8, v10')
            a('v_lshl_add_u32 v10, v32, 4, v10')
            a(f'v_add_u32 v{12+q}, {WF_B}, v10')
        else:
            if q == 0:
                a(f's_mul_i32 s30, s17, {CUW_B}')
                a(f's_mul_i32 s20, s19, {4*TILE_B}')
                a('s_add_u32 s30, s30, s20')
                a('v_add_u32 v12, s30, v2')
            else: a(f'v_add_u32 v{12+q}, {q*TILE_B}, v12')
            assert WF_A == 0
    a('v_lshrrev_b32 v7, 2, v4')
    a('v_lshlrev_b32 v7, 3, v7')
    a('v_and_b32 v8, 3, v4')
    a('v_add_u32 v7, v7, v8')
    a('v_xor_b32 v10, v3, v4')
    a('v_lshlrev_b32 v10, 4, v10')
    a('v_lshl_add_u32 v10, v7, 9, v10')
    a('v_add_u32 v10, s25, v10')
    for k3 in range(4): a(f'v_xor_b32 v{32+k3}, {64*k3}, v10')
    if mat:
        a('v_lshrrev_b32 v7, 2, v4')
        a('v_lshl_add_u32 v7, v3, 3, v7')
        a('v_lshlrev_b32 v7, 7, v7')
        a('v_and_b32 v8, 3, v4')
        a('v_lshl_add_u32 v7, v8, 3, v7')
        a('v_lshrrev_b32 v8, 3, v4')
        a('v_lshl_add_u32 v7, v8, 5, v7')
        a('v_and_b32 v8, 1, v3')
        a('v_lshl_add_u32 v7, v8, 6, v7')
    else:
        a('v_and_b32 v8, 2, v4')
        a('v_lshlrev_b32 v8, 1, v8')
        a('v_and_b32 v9, 1, v4')
        a('v_add_u32 v8, v8, v9')
        a('v_lshrrev_b32 v7, 2, v4')
        a('v_lshl_add_u32 v7, v7, 4, v8')
        a('v_xor_b32 v8, v8, v3')
        a('v_lshlrev_b32 v8, 4, v8')
        a('v_lshl_add_u32 v7, v7, 9, v8')
        a(f's_mov_b32 s24, {SIGMA}')
    a(f's_waitcnt vmcnt({vq.wait("stat")})')
    a('s_barrier')
    if mat: EV(a, 9101)
    for q in range(4):
        a('s_cmp_eq_u32 s16, 3')
        a(f's_cbranch_scc1 {P}_np{q}')
        a(f's_add_u32 m0, s{48 + q}, 16384')
        for i in range(4): a(f'buffer_load_dwordx4 v{16+4*q+i}, s[60:63], s33 offen offset:{i*1024} lds')
        vq.add('p1', 4)
        a.label(f'{P}_np{q}')
        if mat: a(f'v_xor_b32 v9, {32*q}, v7')
        for kk in range(8):
            r = BST + (q * 8 + kk) * 4
            if mat:
                for hf in range(2):
                    a(f'ds_read_b64_tr_b16 v[{r+2*hf}:{r+2*hf+1}], v9 offset:{(32*kk + 4*hf)*128}')
                if kk & 3 == 3: a('s_waitcnt lgkmcnt(6)')
            else:
                ro = 8 * (q >> 1) + 2 * (q & 1)
                if kk < 4: a(f'v_xor_b32 v{8+kk}, {((4*kk) ^ ro) << 4}, v7')
                a(f'ds_read_b128 v[{r}:{r+3}], v{8 + (kk & 3)} offset:{ro*512 + (kk >> 2)*256}')
                if kk == 7: a('s_waitcnt lgkmcnt(4)')
    ACC = 96; FR = 52
    if late: late()
    for it in range(2):
        if it == 1:
            a('s_cmp_eq_u32 s16, 3')
            a(f's_cbranch_scc1 {P}_w3')
        if it == 0: wait3(a, vq.wait('p0'), ' lgkmcnt(0)')
        else: a(f's_waitcnt vmcnt({vq.wait("p1")})')
        if mat: EV(a, 9102 + 2 * it)
        def rd(i): a(f'ds_read_b128 v[{FR+4*(i&3)}:{FR+4*(i&3)+3}], v{32 + (i & 3)} offset:{it*16384 + (i >> 3)*2048 + ((i & 7) >> 2)*256}')
        for i in range(3): rd(i)
        for i in range(16):
            tau, kk = i >> 3, i & 7
            if i + 3 < 16: rd(i + 3)
            a(f's_waitcnt lgkmcnt({min(3, 15 - i)})')
            for q in range(4):
                d = ACC + 16 * tau + 4 * q; b = BST + (q * 8 + kk) * 4
                c = '0' if kk == 0 else f'v[{d}:{d+3}]'
                a(f'v_mfma_f32_16x16x32_bf16 v[{d}:{d+3}], v[{FR+4*(i&3)}:{FR+4*(i&3)+3}], v[{b}:{b+3}], {c}')
        if mat: EV(a, 9103 + 2 * it)
        a(f's_lshl_b32 s30, {"s29" if it else "s28"}, 10')
        for q in range(4):
            o = 68 + 4 * q
            for tau in range(2):
                d = ACC + 16 * tau + 4 * q
                if not mat:
                    for k in range(4): a(f'v_mul_f32 v{d+k}, s24, v{d+k}')
                a(f'v_cvt_pk_bf16_f32 v{o+2*tau}, v{d}, v{d+1}')
                a(f'v_cvt_pk_bf16_f32 v{o+2*tau+1}, v{d+2}, v{d+3}')
            a(f'buffer_store_dwordx4 v[{o}:{o+3}], v{12+q}, {WS}, s30 offen sc1')
            vq.add('st')
    a.label(f'{P}_w3')
    a(f's_lshl_b32 {fs}, {"s19" if mat else "s17"}, {8 if mat else 7}')
    a(f's_lshl_b32 s21, {"s17" if mat else "s19"}, 4')
    a(f's_add_u32 {fs}, {fs}, s21')
    a('s_cmp_lg_u32 s31, 0')
    a('s_cselect_b32 s21, 8, 0')
    a(f's_add_u32 {fs}, {fs}, s21')
    a(f's_add_u32 {fs}, {fs}, {BF_OFF if mat else AF_OFF}')
    if finish:
        a('s_waitcnt vmcnt(0)')
        publish(a, fs, 1)

def publish(a, fs, R, t=24):
    l = a.newlabel('pub')
    a('s_barrier')
    a('s_cmp_lg_u32 s16, 0')
    a(f's_cbranch_scc1 {l}')
    flag_store(a, fs, R, 2048, t)
    a.label(l)

XI1 = 70; NB1 = 20
def init_stores(a, P, vq):
    a(f's_cmp_ge_u32 s18, {XI1}')
    a(f's_cbranch_scc1 {P}_nm')
    a(f's_mov_b32 s20, {XF_OFF}')
    a(f'buffer_store_dwordx4 v[84:87], v92, {WS}, s20 offen sc1')
    a(f'buffer_store_dwordx4 v[88:91], v92, {WS}, s20 offen offset:256 sc1')
    a('s_cmp_lg_u32 s18, 0')
    a(f's_cbranch_scc1 {P}_nm')
    for j in range(4):
        a(f'v_min_u32 v{104+j}, -2, v{36+2*j}')
        a(f'v_min_u32 v{108+j}, -2, v{37+2*j}')
    a(f's_mov_b32 s20, {EXCH_OFF}\ns_mov_b32 s21, {MEMG_OFF}')
    for sb in ('s20', 's21'):
        a(f'buffer_store_dwordx4 v[104:107], v94, {WS}, {sb} offen sc1')
        a(f'buffer_store_dwordx4 v[108:111], v94, {WS}, {sb} offen offset:128 sc1')
    a.label(f'{P}_nm')

def init2(a, it, zero_out):
    bjob_x(a, VQ(), it, False)
    n = (66 - NB1) * EXCH_B // 16
    for r in range(52, 56): a(f'v_mov_b32 v{r}, -1')
    a(f's_mov_b32 s23, {EXCH_OFF + NB1 * EXCH_B}')
    a('v_lshlrev_b32 v8, 4, v95')
    a(f'buffer_store_dwordx4 v[52:55], v8, {WS}, s23 offen sc1')
    a(f'v_add_u32 v8, {57344*16}, v8')
    a('v_mov_b32 v9, 0x10000000')
    a(f'v_cmp_lt_u32 vcc, {n - 57344 - 1}, v95')
    a('v_cndmask_b32 v8, v8, v9, vcc')
    a(f'buffer_store_dwordx4 v[52:55], v8, {WS}, s23 offen sc1')
    assert 57344 < n <= 2 * 57344
    if zero_out:
        for r in range(56, 60): a(f'v_mov_b32 v{r}, 0')
        a(f's_lshl_b32 s23, {it}, 14')
        a('v_lshlrev_b32 v8, 4, v0')
        for k in range(4):
            a(f'buffer_store_dwordx4 v[56:59], v8, s[92:95], s23 offen sc1')
            a('s_add_u32 s23, s23, 4096')
    a(f's_waitcnt vmcnt({5 if zero_out else 1})')
    for j in range(4):
        a(f'v_mov_b32 v{96+j}, v{84+2*j}')
        a(f'v_mov_b32 v{100+j}, v{85+2*j}')
    a(f's_mov_b32 s20, {XF_OFF}\ns_mov_b32 s21, {XM_OFF}')
    a(f'buffer_store_dwordx4 v[96:99], v93, {WS}, s21 offen sc1')
    a(f'buffer_store_dwordx4 v[100:103], v93, {WS}, s21 offen offset:1024 sc1')
    a(f's_cmp_lt_u32 {it}, {XI1}')
    a('s_cbranch_scc1 i2_nx')
    a(f'buffer_store_dwordx4 v[84:87], v92, {WS}, s20 offen sc1')
    a(f'buffer_store_dwordx4 v[88:91], v92, {WS}, s20 offen offset:256 sc1')
    a.label('i2_nx')
    a(f's_lshl_b32 s20, {it}, 3')
    a(f's_add_u32 s20, s20, {I2_OFF}')
    a('s_waitcnt vmcnt(0)')
    publish(a, 's20', 8)

def llc_warm(a, it='s18', out=True):
    a(f's_and_b32 s20, {it}, 3')
    a('s_lshl_b32 s20, s20, 3')
    a('s_add_u32 s20, s20, 8')
    a('s_cmp_eq_u32 s16, 0')
    a('s_cselect_b32 s20, 0, s20')
    a('s_cmp_ge_u32 s16, 2')
    a('s_cselect_b32 s20, 112, s20')
    a('s_load_dwordx2 s[72:73], s[0:1], s20')
    a(f's_lshr_b32 s21, {it}, 2')
    a('s_lshl_b32 s21, s21, 12')
    a('s_mov_b32 s74, 229376')
    a(f's_lshl_b32 s22, {it}, 13')
    a('s_cmp_eq_u32 s16, 0')
    a('s_cselect_b32 s21, s22, s21')
    a('s_cselect_b32 s74, 1835008, s74')
    a(f's_lshl_b32 s22, {it}, 1')
    a('s_add_u32 s22, s22, s16')
    a('s_sub_u32 s22, s22, 2')
    a('s_lshl_b32 s22, s22, 13')
    a('s_cmp_ge_u32 s16, 2')
    a('s_cselect_b32 s21, s22, s21')
    a(f's_cselect_b32 s74, {3670016 if out else 0}, s74')
    a('v_lshlrev_b32 v6, 3, v2')
    if HALF:
        l = a.newlabel('lw')
        a('s_cmp_lt_u32 s16, 2')
        a(f's_cbranch_scc1 {l}')
        a(f's_lshl_b32 s21, {it}, 6')
        a('v_add_u32 v6, s21, v1')
        a('v_mul_u32_u24 v7, 37450, v6')
        a('v_lshrrev_b32 v7, 18, v7')
        assert all((x * 37450) >> 18 == x // 7 for x in range(14336))
        a('v_add_u32 v7, 1, v7')
        a('v_mul_u32_u24 v7, 7, v7')
        a('v_add_u32 v6, v6, v7')
        a('v_lshlrev_b32 v6, 7, v6')
        a('s_mov_b32 s21, 0')
        a('s_cmp_eq_u32 s16, 3')
        a('s_cselect_b32 s74, 0, s74')
        a.label(l)
    a('s_cmp_eq_u32 s16, 1')
    a('s_cselect_b32 exec_hi, 0, -1')
    a('s_waitcnt lgkmcnt(0)')
    a('s_and_b32 s73, s73, 0xffff\ns_mov_b32 s75, 0x20000')
    a('buffer_load_dword v7, v6, s[72:75], s21 offen')
    a('s_mov_b64 exec, -1')

def a3_issue(a, hook):
    EV(a, 9106)
    srd(a, 56, 40, W_BYTES); srd(a, 60, 42, W_BYTES)
    a('s_add_u32 s28, s31, s19')
    a('v_lshrrev_b32 v5, 5, v1')
    a('v_and_b32 v6, 31, v1')
    a('v_xor_b32 v6, v6, v5')
    a('v_lshlrev_b32 v6, 4, v6')
    a('v_lshl_add_u32 v6, v5, 13, v6')
    a('s_lshl_b32 s20, s16, 6')
    a('v_xor_b32 v7, s20, v6')
    a('s_lshl_b32 s22, s28, 18')
    a('s_lshl_b32 s21, s16, 16')
    a('s_add_u32 s22, s22, s21')
    a('s_add_u32 s22, s22, s26')
    a('s_lshl_b32 m0, s16, 12')
    for i in range(4):
        a(f'v_xor_b32 v8, {32*(i & 1)}, v7')
        if i: a(f'v_add_u32 v8, {i*(16384-1024)}, v8')
        a(f'buffer_load_dwordx4 v8, s[56:59], s22 offen offset:{i*1024} lds')
    for i in range(8):
        a(f'v_xor_b32 v{16+i}, {32*i}, v6')
        if i: a(f'v_add_u32 v{16+i}, {((16*(i >> 1) + 4*(i & 1)) << 13) - (i & 3)*1024}, v{16+i}')
    a('s_lshr_b32 s20, s16, 1')
    a('s_lshl_b32 s20, s20, 16')
    a('s_and_b32 s21, s16, 1')
    a('s_lshl_b32 s21, s21, 14')
    a('s_add_u32 s20, s20, s21')
    a('s_add_u32 s29, s20, s26')
    a(f's_mul_i32 s25, s16, {24*KB}')
    a(f's_add_u32 s25, s25, {16*KB}')
    for t in range(3):
        a(f's_add_u32 s22, s29, {(256 + 64*t) << 13}')
        for i in range(8):
            if i % 4 == 0: a(f's_add_u32 m0, s25, {t*8192 + i*1024}')
            a(f'buffer_load_dwordx4 v{16+i}, s[60:63], s22 offen offset:{(i & 3)*1024} lds')
        if t == 0: hook(12)

def a3_run(a, n, hook):
    a('v_lshrrev_b32 v7, 2, v4')
    a('v_lshlrev_b32 v7, 3, v7')
    a('v_and_b32 v8, 3, v4')
    a('v_add_u32 v7, v7, v8')
    a('v_xor_b32 v10, v3, v4')
    a('v_lshlrev_b32 v10, 4, v10')
    a('v_lshl_add_u32 v11, v4, 9, v10')
    a('v_add_u32 v11, s25, v11')
    a('v_lshl_add_u32 v10, v7, 9, v10')
    for k3 in range(4):
        a(f'v_xor_b32 v{32+k3}, {64*k3}, v10')
        a(f'v_xor_b32 v{36+k3}, {64*k3}, v11')
    a(f's_mul_i32 s30, s17, {CUW_B}')
    a(f's_mul_i32 s20, s16, {TILE_B}')
    a('s_add_u32 s30, s30, s20')
    a('s_lshl_b32 s20, s28, 10')
    a('s_add_u32 s30, s30, s20')
    a(f's_mov_b32 s24, {SIGMA}')
    a('s_lshl_b32 s20, s17, 7')
    a('s_lshl_b32 s28, s28, 3')
    a('s_add_u32 s28, s28, s20')
    a(f's_add_u32 s28, s28, {A3_OFF}')
    a(f's_waitcnt vmcnt({n})')
    a('s_barrier')
    hook()
    EV(a, 9107)
    FR = 128; ACC = 96
    def rd(kk):
        b = FR + 20 * (kk % 3)
        for tau in range(2): a(f'ds_read_b128 v[{b+4*tau}:{b+4*tau+3}], v{32 + (kk & 3)} offset:{tau*2048 + (kk >> 2)*256}')
        for t in range(3): a(f'ds_read_b128 v[{b+8+4*t}:{b+11+4*t}], v{36 + (kk & 3)} offset:{t*8192 + (kk >> 2)*256}')
    rd(0); rd(1)
    for kk in range(8):
        if kk + 2 < 8: rd(kk + 2)
        a(f's_waitcnt lgkmcnt({5 * min(2, 7 - kk)})')
        b = FR + 20 * (kk % 3)
        for t in range(3):
            for tau in range(2):
                d = ACC + 8 * t + 4 * tau
                a(f'v_mfma_f32_16x16x32_bf16 v[{d}:{d+3}], v[{b+4*tau}:{b+4*tau+3}], v[{b+8+4*t}:{b+11+4*t}], ' + ('0' if kk == 0 else f'v[{d}:{d+3}]'))
    for t in range(3):
        d = ACC + 8 * t; o = 68 + 4 * t
        for k in range(8): a(f'v_mul_f32 v{d+k}, s24, v{d+k}')
        for k in range(4): a(f'v_cvt_pk_bf16_f32 v{o+k}, v{d+2*k}, v{d+2*k+1}')
        a(f's_add_u32 s20, s30, {(16 + 4*t)*TILE_B}')
        a(f'buffer_store_dwordx4 v[{o}:{o+3}], v2, {WS}, s20 offen sc1')
    a('s_waitcnt vmcnt(0)')
    publish(a, 's28', 1)
```

```python
from asmlib import *
from layout import *
WS = 's[8:11]'
PEEK = WS
def ev(a, tag, t=120):
    import chain as C
    if C.EVLOG:
        l = a.newlabel('ev')
        a('s_cmp_lt_u32 s17, 62')
        a(f's_cbranch_scc1 {l}')
        a(f's_mul_i32 s29, s17, 10\ns_add_u32 s29, s29, {9200 - 620 + tag}')
        C.evlog(a, 's29', t)
        a.label(l)
def common(a, endl):
    a('s_cmp_ge_u32 s2, 256')
    a(f's_cbranch_scc1 {endl}')
    a('s_load_dwordx2 s[6:7], s[0:1], 128')
    a('s_load_dwordx2 s[4:5], s[0:1], 112')
    a('v_lshrrev_b32 v1, 6, v0')
    a('v_readfirstlane_b32 s16, v1')
    a('v_and_b32 v1, 63, v0')
    a('v_lshlrev_b32 v2, 4, v1')
    a('v_lshrrev_b32 v3, 4, v1')
    a('v_and_b32 v4, 15, v1')
    a('s_waitcnt lgkmcnt(0)')
    a('s_mov_b32 s8, s6\ns_and_b32 s9, s7, 0xffff\ns_mov_b32 s10, 0x10000000\ns_mov_b32 s11, 0x20000')
    a(f's_mov_b32 s12, s4\ns_and_b32 s13, s5, 0xffff\ns_mov_b32 s14, {2048*896*2}\ns_mov_b32 s15, 0x20000')

WAIT_LIMIT = 30000
SLEEP = 1
LONG = 40
MIDS = 4
NEAR = 56
FULLPOLL = 64
ONELINE = 0
PMODE = 3
LASTP = 61
T2MID = 20
def mpoll(a, dst, va, so):
    if PMODE == 0: a(f'buffer_load_dword v{dst}, v{va}, {WS}, {so} offen sc1')
    elif PMODE == 1: a(f'buffer_load_dword v{dst}, v{va}, {WS}, {so} offen sc0 sc1')
    elif PMODE == 2: a(f'buffer_load_dword v{dst}, v{va}, {WS}, {so} offen sc0 sc1 nt')
    else:
        l = a.newlabel('mp')
        a(f's_cmp_ge_u32 s17, {LASTP}')
        a(f's_cbranch_scc1 {l}a')
        a(f'v_mov_b32 v{dst}, 0')
        a('s_mov_b64 exec, 1')
        a(f'buffer_atomic_or v{dst}, v{va}, {WS}, {so} offen sc0')
        a('s_mov_b64 exec, -1')
        a(f's_branch {l}b')
        a.label(l + 'a')
        a(f'buffer_load_dword v{dst}, v{va}, {WS}, {so} offen sc1')
        a.label(l + 'b')
PKS = 56
def peek(a):
    l = a.newlabel('pk')
    a(f's_cmp_lt_u32 s17, {PKS}')
    a(f's_cbranch_scc1 {l}')
    a(f'buffer_load_dword v250, v251, {PEEK}, 0 offen sc1')
    a.label(l)
def backoff(a, P, sleep):
    a(f's_sleep {sleep}')
    a(f's_cmp_ge_u32 s17, {LASTP}')
    a(f's_cbranch_scc1 {P}_bo')
    a(f's_sleep {MIDS}')
    a(f's_cmp_ge_u32 s17, {NEAR}')
    a(f's_cbranch_scc1 {P}_bo')
    a(f's_sleep {LONG}')
    a.label(P + '_bo')
def wait_eq(a, P, soff, target, abort, sleep=None, four=False, ne=False):
    sleep = sleep or SLEEP
    if four: a('v_lshlrev_b32 v60, 2, v3')
    else: a('v_mov_b32 v60, 0')
    a('s_mov_b32 s30, 0')
    a.label(P)
    a(f'buffer_load_dword v61, v60, {WS}, {soff} offen sc1')
    a('s_waitcnt vmcnt(0)')
    a(f'v_cmp_{"eq" if ne else "ne"}_u32 vcc, {target}, v61')
    a(f's_cbranch_vccz {P}_ok')
    backoff(a, P, sleep)
    a('s_add_u32 s30, s30, 1')
    a(f's_cmp_lt_u32 s30, {WAIT_LIMIT}')
    a(f's_cbranch_scc1 {P}')
    a(f's_branch {abort}')
    a.label(P + '_ok')

def load_lin(a, base_s, n, areg, flags=''):
    for f in range(n):
        if f % 4 == 0: a(f's_add_u32 s22, {base_s}, {f*1024}')
        a(f'buffer_load_dwordx4 a[{areg+4*f}:{areg+4*f+3}], v2, {WS}, s22 offen offset:{(f & 3)*1024} {flags}')

def tokp_body(a, seg_s, hq_s, ld='', st='', sync=None, ldx=''):
    a(f's_lshl_b32 s20, {hq_s}, 2')
    a('s_add_u32 s20, s20, s16')
    a(f's_lshl_b32 s21, {seg_s}, 4')
    a('s_add_u32 s21, s21, s20')
    a(f's_mul_i32 s21, s21, {GSH_B}')
    a(f's_add_u32 s21, s21, {F_OFF}')
    a(f's_mul_i32 s23, {seg_s}, {28*KB}')
    a(f's_add_u32 s23, s23, {XM_OFF}')
    FA, XA, MA = 0, 112, 224
    if sync:
        a(f's_mul_i32 s24, {seg_s}, {7*KB}')
        a(f's_add_u32 s24, s24, {MEMG_OFF}')
        a(f's_lshr_b32 s25, {seg_s}, 3')
        a('s_lshl_b32 s25, s25, 4')
        a('s_add_u32 s25, s25, s20')
        a('s_lshl_b32 s25, s25, 7')
        a(f's_add_u32 s25, s25, {CNT_OFF + FC}')
        wait_eq(a, sync + '_wf', 's25', 56, sync + '_abort')
    else:
        a(f's_mul_i32 s24, {seg_s}, {EXCH_B}')
        a(f's_add_u32 s24, s24, {EXCH_OFF}')
    load_lin(a, 's21', 28, FA, ld)
    load_lin(a, 's23', 28, XA, ldx)
    if not sync: load_lin(a, 's24', 7, MA, ld)
    AX = {(0, 0): 8, (0, 1): 12, (1, 1): 16}
    AM = {(0, 0): 20, (1, 0): 24, (0, 1): 28, (1, 1): 32}
    for r in range(4):
        a(f'v_lshl_add_u32 v5, v3, 2, {r}')
        a(f'v_cmp_le_u32 s[{40+2*r}:{41+2*r}], v5, v4')
    a('v_cmp_gt_u32 s[48:49], 2, v3')
    a('v_mov_b32 v6, 0xff800000')
    a('s_waitcnt vmcnt(0)' if sync else 's_waitcnt vmcnt(7)')
    for f in range(14):
        for (tk, tt), d in AX.items():
            c = '0' if f == 0 else f'v[{d}:{d+3}]'
            xa = XA + 4 * (tk * 14 + f); fa = FA + 4 * (tt * 14 + f)
            a(f'v_mfma_f32_16x16x32_bf16 v[{d}:{d+3}], a[{xa}:{xa+3}], a[{fa}:{fa+3}], {c}')
    MV = 64
    if sync:
        a('s_mul_i32 s22, s20, 448')
        a('v_mov_b32 v62, s22' if not ONELINE else 'v_mov_b32 v62, 0')
        a('s_mov_b32 s30, 0')
        a.label(sync + '_pm')
        a(f's_cmp_ge_u32 s17, {FULLPOLL}')
        a(f's_cbranch_scc1 {sync}_pf')
        mpoll(a, 61, 62, 's24')
        a('s_waitcnt vmcnt(0)')
        a('v_cmp_eq_u32 vcc, -1, v61')
        a(f's_cbranch_vccnz {sync}_pr')
        a.label(sync + '_pf')
        ev(a, 0)
        a('s_add_u32 s22, s24, 4096')
        for ks in range(7):
            a(f'buffer_load_dwordx4 v[{MV+4*ks}:{MV+4*ks+3}], v2, {WS}, {"s24" if ks < 4 else "s22"} offen offset:{(ks & 3)*1024} sc1')
        a('s_waitcnt vmcnt(0)')
        a(f'v_max_u32 v61, v{MV}, v{MV+1}')
        for r in range(MV + 2, MV + 28, 2): a(f'v_max3_u32 v61, v61, v{r}, v{r+1}')
        a('v_cmp_eq_u32 vcc, -1, v61')
        a(f's_cbranch_vccz {sync}_pk')
        a.label(sync + '_pr')
        backoff(a, sync + '_pm', SLEEP)
        a('s_add_u32 s30, s30, 1')
        a(f's_cmp_lt_u32 s30, {WAIT_LIMIT}')
        a(f's_cbranch_scc1 {sync}_pm')
        a(f's_branch {sync}_abort')
        a.label(sync + '_pk')
        ev(a, 1)
        peek(a)
    else:
        a('s_waitcnt vmcnt(0)')
    for ks in range(7):
        for (half, tt), d in AM.items():
            c = '0' if ks == 0 else f'v[{d}:{d+3}]'
            fa = FA + 4 * (tt * 14 + ks * 2 + half)
            mop = f'v[{MV+4*ks}:{MV+4*ks+3}]' if sync else f'a[{MA+4*ks}:{MA+4*ks+3}]'
            a(f'v_mfma_f32_16x16x32_bf16 v[{d}:{d+3}], {mop}, a[{fa}:{fa+3}], {c}')
    a(f's_lshl_b32 s25, {seg_s}, 1')
    a(f's_mul_i32 s25, s25, {PT_B}')
    a(f's_add_u32 s25, s25, {PT_OFF}')
    a('s_lshl_b32 s26, s20, 10')
    a('s_add_u32 s26, s26, s25')
    a(f's_lshl_b32 s27, {hq_s}, 10')
    a('s_add_u32 s27, s27, s25')
    a('s_lshr_b32 s28, s16, 1')
    a('s_lshl_b32 s28, s28, 3')
    a('s_add_u32 s27, s27, s28')
    a(f's_add_u32 s27, s27, {16*KB}')
    a('s_and_b32 s28, s16, 1')
    a('s_cmp_eq_u32 s28, 0')
    a('s_cselect_b32 s50, -1, 0')
    a('s_cselect_b32 s51, 0, -1')
    for tt in range(2):
        xs = []
        for (tk, t2), d in AX.items():
            if t2 != tt: continue
            for r in range(4):
                if tk == tt: a(f'v_cndmask_b32 v{d+r}, v6, v{d+r}, s[{40+2*r}:{41+2*r}]')
                xs.append(d + r)
        z, t = AM[(0, tt)], AM[(1, tt)]
        for r in range(4): a(f'v_cndmask_b32 v{z+r}, v{t+r}, v{z+r}, s[48:49]')
        for r in range(4): a(f'v_mov_b32 v{t+r}, v{z+r}')
        for r in range(4): a(f'v_permlane32_swap_b32 v{z+r}, v{t+r}')
        for r in range(4): a(f'v_add_f32 v{z+r}, v{z+r}, v{t+r}')
        ms = [z + r for r in range(4)]
        al = xs + ms
        mx = 40
        a(f'v_max3_f32 v{mx}, v{al[0]}, v{al[1]}, v{al[2]}')
        rest = al[3:]
        while len(rest) >= 2:
            a(f'v_max3_f32 v{mx}, v{mx}, v{rest[0]}, v{rest[1]}'); rest = rest[2:]
        if rest: a(f'v_max_f32 v{mx}, v{mx}, v{rest[0]}')
        for sw in ('16', '32'):
            a(f'v_mov_b32 v41, v{mx}')
            a(f'v_permlane{sw}_swap_b32 v{mx}, v41')
            a(f'v_max_f32 v{mx}, v{mx}, v41')
        for r in al: a(f'v_sub_f32 v{r}, v{r}, v{mx}')
        for r in al: a(f'v_exp_f32 v{r}, v{r}')
        a(f'v_add_f32 v42, v{ms[0]}, v{ms[1]}')
        a(f'v_add_f32 v43, v{ms[2]}, v{ms[3]}')
        a('v_add_f32 v42, v42, v43')
        a('v_mul_f32 v42, 0.5, v42')
        for r in xs: a(f'v_add_f32 v42, v42, v{r}')
        for sw in ('16', '32'):
            a('v_mov_b32 v41, v42')
            a(f'v_permlane{sw}_swap_b32 v42, v41')
            a('v_add_f32 v42, v42, v41')
        a('v_rcp_f32 v42, v42')
        for r in al: a(f'v_mul_f32 v{r}, v{r}, v42')
        o = 44 + 8 * tt
        for k in range(len(xs) // 2): a(f'v_cvt_pk_bf16_f32 v{o+k}, v{xs[2*k]}, v{xs[2*k+1]}')
        if tt == 0:
            a(f'v_mov_b32 v{o+2}, 0'); a(f'v_mov_b32 v{o+3}, 0')
        a(f'v_cvt_pk_bf16_f32 v{o+4}, v{ms[0]}, v{ms[1]}')
        a(f'v_cvt_pk_bf16_f32 v{o+5}, v{ms[2]}, v{ms[3]}')
        for k in range(6): a(f'v_min_u32 v{o+k}, -2, v{o+k}')
        a(f'buffer_store_dwordx4 v[{o}:{o+3}], v2, {WS}, s26 offen {st}')
        a('s_mov_b64 exec, s[50:51]')
        a(f'buffer_store_dwordx2 v[{o+4}:{o+5}], v2, {WS}, s27 offen {st}')
        a('s_mov_b64 exec, -1')
        if tt == 0:
            a(f's_add_u32 s26, s26, {PT_B}')
            a(f's_add_u32 s27, s27, {PT_B}')
    if sync:
        a(f's_lshl_b32 s25, {seg_s}, 7')
        a(f's_add_u32 s25, s25, {CNT_OFF + PTC}')
        a('v_mov_b32 v5, 1')
        a('v_mov_b32 v6, 0')
        ev(a, 2)
        a('s_waitcnt vmcnt(0)')
        ev(a, 3)
        a('s_mov_b64 exec, 1')
        a(f'buffer_atomic_add v5, v6, {WS}, s25 offen')
        a('s_mov_b64 exec, -1')

def toko_body(a, seg_s, vq_s, ld='', sync=None, OUT='s[12:15]'):
    a(f's_lshl_b32 s20, {vq_s}, 2')
    a('s_add_u32 s20, s20, s16')
    a('s_mul_i32 s24, s20, 65')
    a(f's_add_u32 s24, s24, {seg_s}')
    a('s_lshl_b32 s24, s24, 13')
    a(f's_add_u32 s24, s24, {T2_OFF + 8*KB}')
    a('s_lshl_b32 s21, s20, 6')
    a(f's_add_u32 s21, s21, {seg_s}')
    a(f's_mul_i32 s21, s21, {GSH_B}')
    a(f's_add_u32 s21, s21, {VO_OFF}')
    a(f's_lshl_b32 s25, {seg_s}, 1')
    a(f's_mul_i32 s25, s25, {PT_B}')
    a(f's_add_u32 s25, s25, {PT_OFF}')
    a('v_lshrrev_b32 v8, 5, v1')
    a('v_and_b32 v9, 31, v1')
    a('v_min_u32 v5, 27, v9')
    a('v_mad_u32_u24 v5, v8, 28, v5')
    a('v_lshlrev_b32 v5, 4, v5')
    a('v_lshrrev_b32 v10, 4, v9')
    a('v_lshlrev_b32 v7, 10, v10')
    a('v_lshl_add_u32 v7, v4, 4, v7')
    a('v_lshl_add_u32 v7, v8, 3, v7')
    a(f'v_mul_u32_u24 v6, {PT_B}, v10')
    a('v_lshl_add_u32 v6, v8, 8, v6')
    a('v_lshl_add_u32 v6, v4, 4, v6')
    VA = 0; T2R = 28; PR = 128
    a(f's_lshr_b32 s26, {seg_s}, 3')
    a('s_lshl_b32 s26, s26, 4')
    a('s_add_u32 s26, s26, s20')
    a('s_lshl_b32 s26, s26, 7')
    a(f's_add_u32 s26, s26, {CNT_OFF + VOC}')
    wait_eq(a, sync + '_wv', 's26', 56, sync + '_abort')
    for h in range(16):
        if h % 2 == 0: a(f's_add_u32 s22, s21, {h*1792}')
        for kh in range(2):
            r = VA + 8 * h + 4 * kh
            a(f'buffer_load_dwordx4 a[{r}:{r+3}], v5, {WS}, s22 offen offset:{(h & 1)*1792 + kh*896} {ld}')
    a(f's_cmp_ge_u32 {seg_s}, {LASTP}')
    a(f's_cbranch_scc1 {sync}_lm')
    a(f's_lshl_b32 s26, {seg_s}, 7')
    a(f's_add_u32 s26, s26, {CNT_OFF + PTC}')
    wait_eq(a, sync + '_wp', 's26', 16, sync + '_abort', sleep=2)
    a(f's_branch {sync}_lp')
    a.label(sync + '_lm')
    a(f's_mul_i32 s26, {seg_s}, {7*KB}')
    a(f's_add_u32 s26, s26, {MEMG_OFF}')
    wait_eq(a, sync + '_wm', 's26', -1, sync + '_abort', sleep=2, ne=True)
    a.label(sync + '_lp')
    ev(a, 5)
    a(f's_mul_i32 s26, s16, {10*KB}')
    a('s_add_u32 s27, s25, s26')
    a('v_add_u32 v11, s26, v2')
    a('s_lshl_b32 s26, s20, 6')
    a(f's_add_u32 s26, s26, {seg_s}')
    a('s_lshl_b32 s26, s26, 4')
    a(f's_add_u32 s26, s26, {CNT_OFF + T2F}')
    a('v_lshlrev_b32 v60, 2, v3')
    a('s_mov_b32 s30, 0')
    a.label(sync + '_pl')
    for f in range(10):
        if f % 4 == 0: a(f's_add_u32 s22, s27, {f*1024}')
        a(f'buffer_load_dwordx4 v[{PR+4*f}:{PR+4*f+3}], v2, {WS}, s22 offen offset:{(f & 3)*1024} sc1')
    a(f'buffer_load_dword v61, v60, {WS}, s26 offen sc1')
    a('s_waitcnt vmcnt(1)')
    a(f'v_max_u32 v62, v{PR}, v{PR+1}')
    for r in range(PR + 2, PR + 40, 2): a(f'v_max3_u32 v62, v62, v{r}, v{r+1}')
    a('v_cmp_eq_u32 vcc, -1, v62')
    a(f's_cbranch_vccz {sync}_pk')
    a('s_add_u32 s30, s30, 1')
    a(f's_cmp_lt_u32 s30, {WAIT_LIMIT}')
    a(f's_cbranch_scc1 {sync}_pl')
    a(f's_branch {sync}_abort')
    a.label(sync + '_pk')
    for f in range(10): a(f'ds_write_b128 v11, v[{PR+4*f}:{PR+4*f+3}] offset:{f*1024}')
    def t2l():
        for hq in range(4):
            if hq % 2 == 0: a(f's_add_u32 s22, s24, {hq*2048}')
            for kh in range(2):
                r = T2R + 8 * hq + 4 * kh
                for pc in range(2):
                    a(f'buffer_load_dwordx2 v[{r+2*pc}:{r+2*pc+1}], v7, {WS}, s22 offen offset:{(hq & 1)*2048 + kh*256 + pc*512} {ld}')
    a('s_waitcnt vmcnt(0)')
    a('v_cmp_ne_u32 vcc, 1, v61')
    a('s_mov_b32 s28, 0')
    a(f's_cbranch_vccnz {sync}_nt')
    t2l()
    a('s_mov_b32 s28, 1')
    a.label(sync + '_nt')
    peek(a)
    ev(a, 4)
    a('s_waitcnt lgkmcnt(0)')
    a('s_barrier')
    a(f'buffer_load_dword v61, v60, {WS}, s26 offen sc1')
    ACC = 12; RG = 64
    def rd(i): a(f'ds_read_b128 v[{RG+4*(i&7)}:{RG+4*(i&7)+3}], v6 offset:{i*512}')
    for i in range(6): rd(i)
    for i in range(40):
        if i == T2MID:
            a('s_cmp_lg_u32 s28, 0')
            a(f's_cbranch_scc1 {sync}_h2')
            a('s_waitcnt vmcnt(0)')
            a('v_cmp_ne_u32 vcc, 1, v61')
            a(f's_cbranch_vccnz {sync}_h2')
            t2l()
            a('s_mov_b32 s28, 1')
            a.label(sync + '_h2')
        if i == 32:
            a('s_cmp_lg_u32 s28, 0')
            a(f's_cbranch_scc1 {sync}_ht')
            wait_eq(a, sync + '_wt', 's26', 1, sync + '_abort', four=True, sleep=1)
            t2l()
            a.label(sync + '_ht')
        if i + 6 < 40: rd(i + 6)
        a(f's_waitcnt lgkmcnt({min(6, 39 - i)})' + (' vmcnt(0)' if i == 32 else ''))
        A_ = f'a[{VA+4*i}:{VA+4*i+3}]' if i < 32 else f'v[{T2R+4*(i-32)}:{T2R+4*(i-32)+3}]'
        a(f'v_mfma_f32_32x32x16_bf16 v[{ACC}:{ACC+15}], {A_}, v[{RG+4*(i&7)}:{RG+4*(i&7)+3}], ' + ('0' if i == 0 else f'v[{ACC}:{ACC+15}]'))
    ev(a, 6)
    OL = 48 * KB; RS = 240
    a(f'v_mul_u32_u24 v9, {RS}, v9')
    a(f's_movk_i32 s23, {RS}')
    a('v_lshl_add_u32 v8, v8, 3, v9')
    a('s_mul_i32 s22, s16, 24')
    a('v_add_u32 v7, s22, v8')
    a('s_lshl_b32 s22, s16, 5')
    a('v_add_u32 v8, s22, v8')
    a('v_min_u32 v11, 223, v0')
    a('v_mul_u32_u24 v9, 4682, v11')
    a('v_lshrrev_b32 v9, 16, v9')
    a('v_mul_u32_u24 v10, 14, v9')
    a('v_sub_u32 v10, v11, v10')
    a('v_cmp_gt_u32 vcc, 8, v10')
    a('v_lshlrev_b32 v10, 4, v10')
    a(f'v_mad_u32_u24 v11, v9, s23, v10')
    a('v_mul_u32_u24 v9, 1792, v9')
    a('v_add_u32 v10, v9, v10')
    a(f's_lshl_b32 s22, {vq_s}, 7')
    a(f's_mul_i32 s27, {vq_s}, 96')
    a('s_add_u32 s27, s27, 384')
    a('v_mov_b32 v9, s22')
    a('v_mov_b32 v5, s27')
    a('v_cndmask_b32 v9, v5, v9, vcc')
    a('v_add_u32 v10, v9, v10')
    a(f's_mul_i32 s26, {seg_s}, {32*1792}')
    a('s_add_u32 s26, s26, 896')
    a(f's_add_u32 s27, s26, {16*1792}')
    for jj in range(4):
        d = ACC + 4 * jj; o = 96 + 2 * jj
        a(f'v_cvt_pk_bf16_f32 v{o}, v{d}, v{d+1}')
        a(f'v_cvt_pk_bf16_f32 v{o+1}, v{d+2}, v{d+3}')
        if jj == 3: a('s_mov_b32 exec_hi, 0')
        a(f'ds_write_b64 v{8 if jj < 2 else 7}, v[{o}:{o+1}] offset:{OL + (16*jj if jj < 2 else 128 + 16*(jj-2))}')
    a('s_mov_b64 exec, -1')
    a('s_waitcnt lgkmcnt(0)')
    a('s_barrier')
    a(f'ds_read_b128 v[104:107], v11 offset:{OL}')
    a(f'ds_read_b128 v[108:111], v11 offset:{OL + 16*RS}')
    a('s_cmp_lg_u32 s16, 3')
    a('s_cselect_b32 exec_hi, -1, 0')
    a('s_waitcnt lgkmcnt(1)')
    a(f'buffer_store_dwordx4 v[104:107], v10, {OUT}, s26 offen')
    a('s_waitcnt lgkmcnt(0)')
    a(f'buffer_store_dwordx4 v[108:111], v10, {OUT}, s27 offen')
    a('s_mov_b64 exec, -1')

def gen_tok(which):
    name = f'tok{which}_kernel'
    a = Asm(); a.raw(kernel_header(name))
    common(a, f't{which}_end')
    a('s_lshr_b32 s17, s2, 2')
    a('s_and_b32 s18, s2, 3')
    if which == 'p': tokp_body(a, 's17', 's18')
    else: toko_body(a, 's17', 's18')
    a.label(f't{which}_end')
    a('s_endpgm')
    return a
```

```python
from asmlib import *
from layout import *

SRD = 's[8:11]'; DBG = 's[12:15]'
SPIN_LIMIT = 400000
SLOW_LIMIT = 50000
NSTEPS = 64
STAMPS = False
STAMP_STEP = 32
STAMP_CYC = 0
STEPLOG = 0
STAMP_OFF = 100 * 1024 * 1024
POLL_DEPTH = 3
POLL_GAP = 0
SC_SLEEP = 0
M_GAP = 4
SC_DELAY = 0
F1_POS = 10
F2_POS = 1
VA_DELAY = 20
VB_DELAY = 0
VO_POS = 1
P_GAP = 5
ZFILL = 1
SC_ALLPOLL = 0
FOLDW = 1
NANCHK = 1
VO_PRE0 = 0
VO_PRE = 12
VO_SLEEP = 0
F1_WAVE = 2
RB1_DELAY = 0
EC_M = 0
EC_P = 0
DIAG = 0
T2SRV = 1
SLOW_FIRST = 0
B2_POS = 0
M_ROT = 0
CODE_PF = 1
PUB_EARLY = 0
HLP_SLEEP = 0
MERGE = 0
A_TGT = 28
B_TGT = 64
SELF_POISON = 0
X_PRELOAD = 0
VO_NT = 0
FIN_SLEEP = 0
VM_BURST = 0
PUBLISH = 1
VM_EVERY = 2
PUB_FIRST = 1
VO_EARLY = 0
FLAG_SLEEP = 0
SYNC = 0
XCD_SEL = 0
NOBULK = 0
VAL_TOUCH = 0
SC_TOUCH = 0
TOUCH_POS = 2
TOUCH_AHEAD = 2
DMA_DELAY = 0
PLAIN_M = 1
MRG = 1
PRI = 1
VT = 0
VTL = 0
NV = 16
NH = 16
PDL = 0
MGL = 0
NOX = 0
XIN = 4
TPS2 = 0
XSK = 1
XP0 = 14
XST = 4
XPL = 0
TIN = 1
F2X = 7
S0 = 1
F2XD = 0
CW = 0
F2L = -1
F2M = -1
L4 = 0
W1D = 24
W1G = 0
F2PRE = -1
VOI = 2
F2B = 4
ECM = 0
PEX = 0
INL = 1
WSPL = 2
V5 = 0
YE = 0
V5F2 = 1
V5E = 9
V5P = 16
XG = 6
KS = 0
B3P = 11
KGAP = 3
F2K = 2
FAKE5 = 0
PL2 = 1
RED2 = 1
PROT = 0
T2DF = 0
T2DH = 0
NOT2 = 0
ECP = 0
ALIGN = 6
APAD = 0
FAST = 1
EPI2 = 1
F2ONE = 0
SELF = 0
BDEP = None
BST2 = 0
R1 = 4
R2 = 16
PD_S = 5
PG_S = 8
PD_V = 5
PG_V = 8
PD_H = 3
PG_H = 0
VST = 0
VSM = 1
NPP = 10
VZ = 3
NPRE = 3
LPOS = 1
PLAIN_P = 1
D = 'row_mask:0xf bank_mask:0xf'
XSEG_B = 28 * KB

def stamp(a, k):
    if STAMPS: a(f'{"s_memtime" if STAMP_CYC else "s_memrealtime"} s[{40+2*k}:{41+2*k}]')
def stamp_flush(a, path, n, lbl, t=118):
    if not STAMPS: return
    a(f's_cmp_lg_u32 s19, {STAMP_STEP}')
    a(f's_cbranch_scc1 {lbl}')
    a('s_waitcnt lgkmcnt(0)')
    a(f's_lshl_b32 s22, s17, 9')
    a(f's_add_u32 s22, s22, {STAMP_OFF + path * 64}')
    a(f'v_mov_b32 v{t}, 0')
    for k in range(n):
        a(f'v_mov_b32 v{t+1}, s{40+2*k}')
        a(f'buffer_store_dword v{t+1}, v{t}, {SRD}, s22 offen offset:{4*k}')
    a.label(lbl)

EVLOG = 0
EV_OFF = 101 * 1024 * 1024
def evlog(a, tag, t=36):
    if not EVLOG: return
    a('s_memrealtime s[98:99]')
    a('s_waitcnt lgkmcnt(0)')
    a(f'v_mov_b32 v{t}, {tag}')
    a(f'v_mov_b32 v{t+1}, s98')
    a('s_mov_b64 exec, 1')
    a(f'buffer_store_dwordx2 v[{t}:{t+1}], off, {SRD}, s100')
    a('s_mov_b64 exec, -1')
    a('s_add_u32 s100, s100, 8')

TMAX = 0
def tmax(a, slot, t=36):
    if not TMAX: return
    a('s_memrealtime s[98:99]')
    a('s_waitcnt lgkmcnt(0)')
    a('s_sub_u32 s98, s98, s88')
    a(f'v_mov_b32 v{t}, s98')
    a('s_mov_b64 exec, 1')
    a(f'buffer_store_dword v{t}, off, {DBG}, 0 offset:{4*slot}')
    a('s_mov_b64 exec, -1')

def exec_lo(a, R):
    if R == 32: a('s_mov_b32 exec_hi, 0')
    else: a(f's_mov_b64 exec, {(1 << R) - 1}')

def spin(a, back, abort):
    a('s_add_u32 s30, s30, 1')
    a(f's_cmp_lt_u32 s30, {SPIN_LIMIT}')
    a(f's_cbranch_scc1 {back}')
    a(f's_branch {abort}')

def flagpoll(a, vaddr, sbase, regs, lbl, abort, Dp=None, gap=None, issued=0, lanes=0):
    if PEX and lanes: exec_lo(a, lanes)
    Dp = Dp or POLL_DEPTH
    gap = POLL_GAP if gap is None else gap
    for i in range(issued, Dp):
        a(f'buffer_load_dword v{regs+i}, v{vaddr}, {SRD}, {sbase} offen sc1')
        if i < Dp - 1: a.nop(gap)
    a.label(lbl + '_l')
    for i in range(Dp):
        a(f's_waitcnt vmcnt({Dp-1})')
        a(f'v_cmp_eq_u32 vcc, -1, v{regs+i}')
        a(f's_cbranch_vccz {lbl}_d')
        a(f'buffer_load_dword v{regs+i}, v{vaddr}, {SRD}, {sbase} offen sc1')
    spin(a, lbl + '_l', abort)
    a.label(lbl + '_d')
    if PEX and lanes: a('s_mov_b64 exec, -1')

def load_M(a, M, gap=0, k0=0):
    for ks in range(k0, 7):
        so = 's20' if ks < 4 else 's23'
        a(f'buffer_load_dwordx4 v[{M+4*ks}:{M+4*ks+3}], v2, {SRD}, {so} offen offset:{(ks & 3) * 1024} sc1')
        if gap and ks < 3: a.nop(gap)

def load_units(a, units, base, tmp_s='s22'):
    cur = None; n = 0
    for off, reg in units:
        for hb in range(2):
            o = off + hb * 1024
            blk = o // 4096 * 4096
            if blk != cur:
                a(f's_add_u32 {tmp_s}, {base}, {blk}'); cur = blk
            a(f'buffer_load_dwordx4 {ureg(reg + 4 * hb, 4)}, v2, {SRD}, {tmp_s} offen offset:{o - blk}' + (' sc1' if MERGE else ''))
            n += 1
            if n % 32 == 0: a('s_waitcnt vmcnt(24)')

def wreg(ti, ks):
    u = ti * 7 + ks
    return 256 + 8 * u if u < 32 else 120 + 8 * (u - 32)

def lane_consts(a):
    a('v_and_b32 v1, 63, v0')
    a('v_lshlrev_b32 v2, 4, v1')
    a('v_lshrrev_b32 v116, 4, v1')
    a('v_and_b32 v117, 15, v1')
    a('v_mov_b32 v3, 0x4444')
    a('v_mov_b32 v118, 0xeeee')
    a('v_cmp_lt_u32 vcc, 7, v117')
    a('v_cndmask_b32 v3, v3, v118, vcc')

def step_bases(a):
    a('s_add_u32 s23, s20, 4096')
    a(f's_add_u32 s21, s20, {EXCH_B}')

class Checker:
    def __init__(self, a, acc): self.a = a; self.acc = acc; self.q = []; self.first = True
    def add(self, r, n=4): self.q += list(range(r, r + n))
    def emit(self, k=1):
        for _ in range(k):
            if self.first and len(self.q) >= 3:
                x, y, z = self.q[:3]; self.q = self.q[3:]
                self.a(f'v_max3_u32 v{self.acc}, v{x}, v{y}, v{z}'); self.first = False
            elif len(self.q) >= 2:
                x, y = self.q[:2]; self.q = self.q[2:]
                self.a(f'v_max3_u32 v{self.acc}, v{self.acc}, v{x}, v{y}')
            elif len(self.q) == 1:
                self.a(f'v_max_u32 v{self.acc}, v{self.acc}, v{self.q[0]}'); self.q = []
    def drain(self):
        while self.q: self.emit()

XP = 2 * XSEG_B
XRP = 1024
MP = XP + 8 * KB
VL = MP + 4 * KB
CL = VL + 16 * KB
def score_tiles(w):
    return [(w, 0), (w, 1), (w, 2), (w, 3), (4 + (w >> 1), 2 * (w & 1)), (4 + (w >> 1), 2 * (w & 1) + 1), (6, w)]

def x_dma(a, w, gap=0, f0=0):
    a(f's_add_u32 m0, s25, {7*w*1024}')
    for f in range(7):
        if f == 4:
            a(f's_add_u32 m0, s25, {7*w*1024 + 4096}')
            a('s_add_u32 s22, s24, 4096')
        if f < f0: continue
        a(f'buffer_load_dwordx4 v2, {SRD}, {"s24" if f < 4 else "s22"} offen offset:{(f & 3) * 1024}' + (' sc1' if MERGE and not XPL else '') + ' lds')
        if gap: a.nop(gap)

def gen_score(a, w, st, tag):
    L = lambda n: f'{tag}_sc{w}_{n}'
    ABORT = f'{tag}_abort'
    M = 8; ACC = 36; AOP = 64; TR = 68; BOP6 = 76; BOPB = 80; BOPA = 60; SACC = 84; SX = 88
    XS = [96, 104, [12, 16, 8, 8][w], 52, 36]
    ka, kb = w, 4 + (w >> 1)
    half6, piece6, pieceP = w & 1, w >> 1, w & 1
    def S(ti, ks):
        return f'v_smfmac_f32_16x16x64_bf16 v[{ACC+4*ti}:{ACC+4*ti+3}], v[{M+4*ks}:{M+4*ks+3}], {ureg(wreg(ti, ks), 8)}, v3'
    def cvt(dst, src):
        return [f'v_cvt_pk_bf16_f32 v{dst}, v{src}, v{src+1}', f'v_cvt_pk_bf16_f32 v{dst+1}, v{src+2}, v{src+3}']
    def T(dst): return f'v_mfma_f32_16x16x32_bf16 v[{dst}:{dst+3}], v[{AOP}:{AOP+3}], v[4:7], 0'
    def xrd(buf, kap, tt):
        off = (tt * 14 + 2 * kap) * 1024
        return [f'ds_read_b128 v[{XS[buf]}:{XS[buf]+3}], v116 offset:{off}', f'ds_read_b128 v[{XS[buf]+4}:{XS[buf]+7}], v116 offset:{off+1024}']
    def xrd2(buf, tt):
        return [f'ds_read_b128 v[{XS[buf]}:{XS[buf]+3}], v117 offset:{tt*14*KB}', f'ds_read_b128 v[{XS[buf]+4}:{XS[buf]+7}], v117 offset:{tt*14*KB+1024}']
    xfirst = (lambda: xrd2(0, 0) + xrd2(1, 1)) if MRG else (lambda: xrd(0, 6, 0) + xrd(1, 6, 1))
    def Smm(kap, b, first=False):
        c = '0' if first else f'v[{SACC}:{SACC+3}]'
        return f'v_mfma_f32_16x16x32_bf16 v[{SACC}:{SACC+3}], v[{M+4*kap}:{M+4*kap+3}], v[{b}:{b+3}], {c}'
    def Sx(tt, b, buf):
        return f'v_smfmac_f32_16x16x64_bf16 v[{SX+4*tt}:{SX+4*tt+3}], v[{b}:{b+3}], v[{XS[buf]}:{XS[buf]+7}], v{118 if INL else 3}'
    ZR = list(range(ACC, ACC + 28)) + list(range(SX, SX + 8)) + [AOP + 2 - 2 * half6, AOP + 3 - 2 * half6]
    def zero(lo=0, hi=99):
        for r in ZR[lo:hi]: a(f'v_mov_b32 v{r}, 0')
    o1 = [(k + w) % 4 for k in range(4)] if M_ROT else [0, 1, 2, 3]
    o2 = [4 + (k + w) % 3 for k in range(3)] if M_ROT else [4, 5, 6]
    def ml(ks, first=False):
        a(f'buffer_load_dwordx4 v[{M+4*ks}:{M+4*ks+3}], v2, {SRD}, {"s20" if ks < 4 else "s23"} offen offset:{(ks & 3) * 1024}' + ('' if first and PLAIN_M and st == '' else ' sc1'))
    if ALIGN: a.raw(f'.p2align {ALIGN}\n' + '  s_nop 0\n' * APAD)
    a.label(L('loop'))
    step_bases(a)
    zero(3 * M_GAP if ZFILL else 0)
    a('s_mov_b32 s30, 0')
    if NANCHK: a('s_mov_b32 s62, 0')
    if SC_ALLPOLL:
        a('s_waitcnt vmcnt(0)')
        a('s_barrier')
        if SC_SLEEP: a(f's_sleep {SC_SLEEP}')
        flagpoll(a, 117, 's20', TR, L('fp'), ABORT)
        stamp(a, 0)
    else:
        if w == 0:
            if SC_SLEEP: a(f's_sleep {SC_SLEEP}')
            flagpoll(a, 0, 's20', TR, L('fp'), ABORT, PD_S, PG_S, lanes=32)
            if SC_DELAY: a.nop(SC_DELAY)
            ml(o1[0], True)
            a('s_barrier')
            stamp(a, 0)
            a(f's_branch {L("ld1")}')
        else:
            if not (V5 and w == 3): a('s_waitcnt vmcnt(0)')
            if not V5: stamp(a, 7)
            a('s_barrier')
            stamp(a, 0)
    a.label(L('ld'))
    ml(o1[0], NANCHK)
    if w == 0: a.label(L('ld1'))
    order = o1 + o2
    for i, ks in enumerate(order[1:NPRE]):
        if i < 3:
            if ZFILL: zero(i * M_GAP, (i + 1) * M_GAP)
            else: a.nop(M_GAP)
        ml(ks, NANCHK)
    if ZFILL and NPRE < 4: zero((NPRE - 1) * M_GAP, 3 * M_GAP)
    if NANCHK and NPRE == 7: a.label(L('ld2'))
    for x in xfirst(): a(x)
    ck = Checker(a, 118)
    issued = NPRE
    late = order[NPRE:]; nv = 0
    def xop(f):
        o = []
        if f == 0: o += [f's_xor_b32 s58, s25, {XSEG_B}', f's_add_u32 s59, s24, {XSEG_B}', f's_add_u32 m0, s58, {7*w*1024}']
        if f == 4: o += ['s_add_u32 s59, s59, 4096', 's_add_u32 m0, m0, 4096']
        return o, f'buffer_load_dwordx4 v2, {SRD}, s59 offen offset:{(f & 3) * 1024} sc1 lds'
    xpos = {XP0 + (w if XSK else 0) + XST * f: f for f in range(XIN)}
    for i, ks in enumerate(o1):
        a(f's_waitcnt vmcnt({issued-1-i})')
        if i < EC_M:
            a.label(L(f'e{i}'))
            r = M + 4 * ks
            a(f'v_max3_u32 v{TR}, v{r}, v{r+1}, v{r+2}')
            a(f'v_max_u32 v{TR}, v{TR}, v{r+3}')
            a(f'v_cmp_eq_u32 vcc, -1, v{TR}')
            a(f's_cbranch_vccnz {L(f"er{i}")}')
        elif not NANCHK: ck.add(M + 4 * ks)
        if i == 0: stamp(a, 1)
        for ti in range(7):
            a(S(ti, ks))
            if ti in (1, 3): ck.emit()
            if i < ECM:
                r = M + 4 * ks
                if ti == 0: a(f'v_max3_u32 v{TR}, v{r}, v{r+1}, v{r+2}' if i == 0 else f'v_max3_u32 v{TR}, v{TR}, v{r}, v{r+1}')
                if ti == 2: a(f'v_max_u32 v{TR}, v{TR}, v{r+3}' if i == 0 else f'v_max3_u32 v{TR}, v{TR}, v{r+2}, v{r+3}')
                if i == ECM - 1 and ti == 3: a(f'v_cmp_eq_u32 vcc, -1, v{TR}')
                if i == ECM - 1 and ti == 6: a(f's_cbranch_vccnz {L("retry")}')
            if late and ((7 * i + ti == (1 if late[0] == 3 else L4 + 2 * (late[0] - 4))) if L4 else ti in ((LPOS, LPOS + 3) if LPOS < 4 else (LPOS - 4,))):
                ml(late.pop(0), NANCHK); issued += 1
            if 7 * i + ti + 1 in xpos:
                for x in xop(xpos[7 * i + ti + 1])[0]: a(x)
            if 7 * i + ti in xpos:
                a(xop(xpos[7 * i + ti])[1]); nv += 1; issued += 1
            if V5 and nv < 4 and 7 * i + ti >= V5P + 3 * nv:
                a(f's_add_u32 s22, s35, {(4*w + nv)*1792}')
                a(f's_mov_b32 m0, {VL + (4*w + nv)*1024}')
                a(f'buffer_load_dwordx4 v118, {SRD}, s22 offen sc1 lds'); nv += 1; issued += 1
    assert not late
    a(f's_waitcnt vmcnt({nv + (2 if CW else 0)})')
    if NPRE < 7: a.label(L('ph2'))
    stamp(a, 2)
    for k in (4, 5, 6):
        if not NANCHK: ck.add(M + 4 * k)
    seq = []
    for ti in (6, 4, 5, 0, 1, 2, 3):
        for ks in (4, 5, 6): seq.append([S(ti, ks), []])
    def side(i, ops): seq[i][1] += ops
    CK = 'CK'
    for i in range(6): side(i, [CK])
    if MRG:
        M2 = 80
        side(0, xrd(2, ka, 0))
        if CW:
            seq[:6] = [seq[0], seq[3], seq[1], seq[4], seq[2], seq[5]]
            side(1, ['s_waitcnt vmcnt(1)']); side(3, ['s_waitcnt vmcnt(0)'])
        if (w == 1 or w == 2) and not VAL_TOUCH: side(TPS2 or (4 if CW else 1), [f'buffer_load_dword v119, v0, {SRD}, {"s20" if w == 1 else "s24"} offen sc1'])
        mv = [f'v_mov_b32 v{M2+k}, v{M+4*kb+2*pieceP+k}' for k in range(2)] + [f'v_mov_b32 v{M2+2+k}, v{M+24+2*piece6+k}' for k in range(2)]
        c6 = cvt(AOP + 2 * half6, ACC + 24)
        if CW:
            side(5, mv[:1]); side(6, mv[1:2]); side(7, c6); side(13, mv[2:3]); side(19, mv[3:])
        else:
            side(2, mv[:1]); side(3, mv[1:2]); side(4, mv[2:3]); side(7, mv[3:])
            side(5, c6[:1]); side(6, c6[1:])
        seq.insert(8, [T(TR), []])
        cb6 = cvt(BOP6 + 2, TR)
        side(11, cb6[:1]); side(12, cb6[1:])
        c4, c5 = cvt(AOP, ACC + 16), cvt(AOP + 2, ACC + 20)
        side(9, c4[:1]); side(10, c4[1:]); side(12, c5[:1]); side(13, c5[1:])
        seq.insert(15, [T(TR + 4), xrd(3, ka, 1)])
        c0, c1 = cvt(AOP, ACC), cvt(AOP + 2, ACC + 4)
        side(16, c0[:1]); side(17, c0[1:])
        cbb = cvt(BOP6, TR + 4)
        side(18, cbb[:1]); side(19, cbb[1:] + c1[:1]); side(20, c1[1:])
        seq.insert(22, [T(TR), []])
        c2, c3 = cvt(AOP, ACC + 8), cvt(AOP + 2, ACC + 12)
        side(23, c2[:1])
        seq.append([f'v_mfma_f32_16x16x32_bf16 v[{SACC}:{SACC+3}], v[{M2}:{M2+3}], v[{BOP6}:{BOP6+3}], 0', c2[1:] + ['s_waitcnt lgkmcnt(0)']])
        ca0 = cvt(BOPA, TR)
        seq.append([Sx(0, BOP6, 0), ca0 + c3])
        seq.append([T(TR + 4), []])
        seq.append([Sx(1, BOP6, 1), cvt(BOPA + 2, TR + 4)])
        seq.append([Smm(ka, BOPA), []])
        seq.append([Sx(0, BOPA, 2), []])
        seq.append([Sx(1, BOPA, 3), []])
    else:
        side(0, xrd(2, kb, 0))
        if SC_TOUCH: side(TOUCH_POS, [f'buffer_load_dword v119, v117, {SRD}, s35 offen sc1'])
        if not VAL_TOUCH and ((w == 1 and not SELF_POISON) or (w == 2 and not X_PRELOAD)): side(TOUCH_POS - 1, [f'buffer_load_dword v119, v0, {SRD}, {"s20" if w == 1 else "s24"} offen sc1'])
        c6 = cvt(AOP + 2 * half6, ACC + 24)
        side(5, c6[:1]); side(6, c6[1:] + ['v_cmp_eq_u32 vcc, -1, v118'])
        seq.insert(8, [T(TR), []])
        side(9, [f's_cbranch_vccnz {L("retry")}'])
        cb6 = cvt(BOP6 + 2 * piece6, TR)
        side(11, cb6[:1]); side(12, cb6[1:])
        c4, c5 = cvt(AOP, ACC + 16), cvt(AOP + 2, ACC + 20)
        side(9, c4[:1]); side(10, c4[1:]); side(12, c5[:1]); side(13, c5[1:])
        seq.insert(15, [T(TR + 4), xrd(3, kb, 1)])
        c0, c1 = cvt(AOP, ACC), cvt(AOP + 2, ACC + 4)
        side(16, c0[:1]); side(17, c0[1:])
        cbb = cvt(BOPB + 2 * pieceP, TR + 4)
        side(18, cbb[:1]); side(19, cbb[1:] + c1[:1]); side(20, c1[1:])
        seq.insert(22, [T(TR), xrd(4, ka, 0)])
        c2, c3 = cvt(AOP, ACC + 8), cvt(AOP + 2, ACC + 12)
        side(23, ['s_waitcnt lgkmcnt(4)'] + c2[:1])
        seq.append([Smm(6, BOP6, True), c2[1:]])
        seq.append([Sx(0, BOP6, 0), xrd(0, ka, 1)])
        ca0 = cvt(BOPA, TR)
        seq.append([Sx(1, BOP6, 1), c3])
        seq.append([Smm(kb, BOPB), ca0[:1]])
        seq.append([T(TR + 4), ca0[1:] + ['s_waitcnt lgkmcnt(4)']])
        seq.append([Sx(0, BOPB, 2), []])
        seq.append([Sx(1, BOPB, 3), ['s_waitcnt lgkmcnt(0)'] + cvt(BOPA + 2, TR + 4)])
        if FOLDW:
            seq.append([Smm(ka, BOPA), []])
            seq.append([Sx(0, BOPA, 4), []])
            seq.append([Sx(1, BOPA, 0), []])
        else:
            seq.append([Sx(0, BOPA, 4), []])
            seq.append([Sx(1, BOPA, 0), []])
            seq.append([Smm(ka, BOPA), []])
    for i2, (m, ops) in enumerate(seq):
        a(m)
        if 28 + i2 + 1 in xpos:
            for x in xop(xpos[28 + i2 + 1])[0]: a(x)
        if 28 + i2 in xpos: a(xop(xpos[28 + i2])[1])
        for o in ops:
            if o == CK: ck.emit()
            elif NANCHK and (o.startswith('v_cmp') or o.startswith('s_cbranch')): pass
            else:
                if o.startswith('v_cmp'): ck.drain()
                a(o)
    if INL:
        QX = f'quad_perm:[1,0,3,2] {D}'
        a(f'v_permlane32_swap_b32 v{SACC}, v{SACC+2}')
        a(f'v_permlane32_swap_b32 v{SACC+1}, v{SACC+3}')
        a(f'v_add_f32 v{SX}, v{SX}, v{SX+1}')
        a(f'v_add_f32_dpp v{SACC}, v{SACC+2}, v{SACC} {QX}')
        a(f'v_add_f32_dpp v{SACC+1}, v{SACC+3}, v{SACC+1} {QX}')
        a(f'v_add_f32 v{SX+1}, v{SX+2}, v{SX+3}')
        if WSPL == 2:
            a(f'ds_write2_b32 v113, v{SACC}, v{SACC+1} offset0:0 offset1:4')
            a(f'ds_write2_b32 v112, v{SX}, v{SX+1} offset0:0 offset1:128')
            a(f'v_add_f32 v{SX+2}, v{SX+4}, v{SX+5}')
            a(f'v_add_f32 v{SX+3}, v{SX+6}, v{SX+7}')
            a(f'ds_write2_b32 v112, v{SX+2}, v{SX+3} offset0:64 offset1:192')
        elif WSPL:
            a(f'ds_write2_b32 v113, v{SACC}, v{SACC+1} offset0:0 offset1:4')
            a(f'ds_write_b64 v112, v[{SX}:{SX+1}]')
            a(f'v_add_f32 v{SX+2}, v{SX+4}, v{SX+5}')
            a(f'v_add_f32 v{SX+3}, v{SX+6}, v{SX+7}')
            a(f'ds_write_b64 v112, v[{SX+2}:{SX+3}] offset:256')
        else:
            a(f'ds_write2_b32 v113, v{SACC}, v{SACC+1} offset0:0 offset1:4')
            a(f'v_add_f32 v{SX+2}, v{SX+4}, v{SX+5}')
            a(f'v_add_f32 v{SX+3}, v{SX+6}, v{SX+7}')
            a(f'ds_write2_b64 v112, v[{SX}:{SX+1}], v[{SX+2}:{SX+3}] offset0:0 offset1:32')
        a(f'v_cmp_u_f32 vcc, v{SX}, v{SX+1}')
    elif RED2:
        a(f'v_permlane32_swap_b32 v{SACC}, v{SACC+2}')
        a(f'v_permlane32_swap_b32 v{SACC+1}, v{SACC+3}')
        a(f'v_cmp_u_f32 vcc, v{SX}, v{SX+1}')
        a(f'v_add_f32_dpp v{SACC}, v{SACC+2}, v{SACC} row_ror:8 {D}')
        a(f'v_add_f32_dpp v{SACC+1}, v{SACC+3}, v{SACC+1} row_ror:8 {D}')
        for r in range(2): a(f'v_permlane32_swap_b32 v{SX+r}, v{SX+4+r}')
        a(f'ds_write2_b32 v113, v{SACC}, v{SACC+1} offset0:0 offset1:4')
        for r in range(2, 4): a(f'v_permlane32_swap_b32 v{SX+r}, v{SX+4+r}')
        for r in range(4): a(f'v_add_f32 v{SX+r}, v{SX+r}, v{SX+4+r}')
        a(f'ds_write2_b64 v112, v[{SX}:{SX+1}], v[{SX+2}:{SX+3}] offset0:0 offset1:{XRP // 8}')
    elif FOLDW:
        a('s_mov_b64 exec, s[26:27]')
        a(f'ds_write_b128 v113, v[{SACC}:{SACC+3}]')
        a('s_mov_b64 exec, -1')
        a(f'v_cmp_u_f32 vcc, v{SX}, v{SX+1}')
        for r in range(4): a(f'v_permlane32_swap_b32 v{SX+r}, v{SX+4+r}')
        for r in range(4): a(f'v_add_f32 v{SX+r}, v{SX+r}, v{SX+4+r}')
        a(f'ds_write_b128 v112, v[{SX}:{SX+3}]')
    else:
        a(f'ds_write_b128 v112, v[{SX}:{SX+3}]')
        if NANCHK: a(f'v_cmp_u_f32 vcc, v{SX}, v{SX+1}')
        a(f'ds_write_b128 v112, v[{SX+4}:{SX+7}] offset:256')
        a('s_mov_b64 exec, s[26:27]')
        a(f'ds_write_b128 v113, v[{SACC}:{SACC+3}]')
        a('s_mov_b64 exec, -1')
    if NANCHK:
        a(f's_cbranch_vccnz {L("retry")}')
        a.label(L('cont'))
    stamp(a, 3)
    a('s_waitcnt lgkmcnt(0)')
    a('s_barrier')
    stamp(a, 4)
    t = ACC
    if RED2:
        a(f'ds_read_b128 v[{t}:{t+3}], v114')
        a(f'ds_read_b128 v[{t+8}:{t+11}], v115')
    else:
        for k in range(2 if FOLDW else 4): a(f'ds_read_b64 v[{t+2*k}:{t+2*k+1}], v114 offset:{k*1024}')
        a(f'ds_read2_b32 v[{t+8}:{t+9}], v115 offset0:0 offset1:64')
    if w == F1_WAVE: a(f'v_lshl_add_u32 v{t+20}, v2, 3, s36')
    np1 = [0]
    def ep1(k):
        if V5 and w == 3 and k >= V5E:
            a(f'buffer_load_dword v{8+np1[0]}, v0, {SRD}, s20 offen sc1'); np1[0] += 1
    def f1(pos):
        if w == F1_WAVE and pos == F1_POS:
            exec_lo(a, R1)
            a(f'buffer_store_dword v2, v{t+20}, {SRD}, s20 offen {st}')
            a('s_mov_b64 exec, -1')
    if F1_POS < 0 and w == F1_WAVE:
        a.nop(4 * (F1_POS + 4)); f1(F1_POS)
    a('s_waitcnt lgkmcnt(0)')
    f1(0)
    stamp(a, 5)
    sm, sx = t + 8, t
    if RED2:
        a(f'v_add_f32 v{t}, v{t}, v{t+2}')
        f1(8)
        a(f'v_add_f32 v{t+1}, v{t+1}, v{t+3}')
        f1(9)
        a(f'v_add_f32 v{t+8}, v{t+8}, v{t+9}')
        f1(10)
        a(f'v_add_f32 v{t+10}, v{t+10}, v{t+11}')
        if WSPL != 2: a(f'v_permlane32_swap_b32 v{t}, v{t+1}')
        a(f'v_add_f32 v{sm}, v{t+8}, v{t+10}')
        f1(11)
        a(f'v_add_f32 v{sx}, v{t}, v{t+1}')
    else:
        a(f'v_add_f32 v{sm}, v{t+8}, v{t+9}')
        a(f'v_add_f32 v{t}, v{t}, v{t+2}')
        a(f'v_add_f32 v{t+1}, v{t+1}, v{t+3}')
        f1(10)
        a(f'v_add_f32_dpp v{sm}, v{sm}, v{sm} row_ror:8 {D}')
        if FOLDW:
            a(f'v_mov_b32 v{t+9}, v{sm}')
            f1(11)
            a(f'v_permlane32_swap_b32 v{t}, v{t+1}')
            a(f'v_add_f32 v{sx}, v{t}, v{t+1}')
            f1(12)
            a(f'v_permlane16_swap_b32 v{sm}, v{t+9}')
            a(f'v_add_f32 v{sm}, v{sm}, v{t+9}')
            f1(13)
        else:
            a(f'v_add_f32 v{t+4}, v{t+4}, v{t+6}')
            a(f'v_add_f32 v{t+5}, v{t+5}, v{t+7}')
            a(f'v_mov_b32 v{t+9}, v{sm}')
            a(f'v_add_f32 v{t}, v{t}, v{t+4}')
            a(f'v_add_f32 v{t+1}, v{t+1}, v{t+5}')
            a(f'v_permlane16_swap_b32 v{sm}, v{t+9}')
            a(f'v_add_f32 v{sm}, v{sm}, v{t+9}')
            a(f'v_permlane32_swap_b32 v{t}, v{t+1}')
            a(f'v_add_f32 v{sx}, v{t}, v{t+1}')
    if FAST:
        ex, em, ab = t + 12, t + 13, t + 14
        l = t + 3; u = t + 4; v = t + 5; lo = t + 6; hi = t + 7
        def norm(fast):
            a(f'v_fma_f32 v{l}, v{em}, s37, v{ex}')
            if fast: a(f'v_cmp_ngt_f32 vcc, s56, v{ab}')
            a(f'v_cndmask_b32 v{v}, v{ex}, v{em}, s[38:39]')
            a(f'v_add_f32_dpp v{l}, v{l}, v{l} quad_perm:[1,0,3,2] {D}')
            a(f'v_cndmask_b32 v{u}, v{em}, v{ex}, s[38:39]')
            a(f'v_mov_b32_dpp v{t+10}, v{v} quad_perm:[1,0,3,2] {D}')
            a(f'v_add_f32_dpp v{l}, v{l}, v{l} quad_perm:[2,3,0,1] {D}')
            a(f'v_cndmask_b32 v{lo}, v{t+10}, v{u}, s[38:39]')
            a(f'v_cndmask_b32 v{hi}, v{u}, v{t+10}, s[38:39]')
            a(f'v_add_f32_dpp v{l}, v{l}, v{l} row_half_mirror {D}')
            if fast: a(f's_cbranch_vccnz {L("slow")}')
            if fast: ep1(0)
            a(f'v_add_f32_dpp v{t+11}, v{l}, v{l} row_mirror {D}')
            a(f'v_add_f32_dpp v{l}, v{l}, v{l} row_mirror {D}')
            if fast: ep1(1)
            a(f'v_permlane16_swap_b32 v{l}, v{t+11}')
            a(f'v_add_f32 v{l}, v{l}, v{t+11}')
            a(f'v_rcp_f32 v{l}, v{l}')
            a('s_mov_b64 exec, s[28:29]')
            a(f'v_mul_f32 v{lo}, v{lo}, v{l}')
            a(f'v_mul_f32 v{hi}, v{hi}, v{l}')
            a(f'v_cvt_pk_bf16_f32 v{lo}, v{lo}, v{hi}')
        if RED2: a(f'v_exp_f32 v{em}, v{sm}')
        a(f'v_exp_f32 v{ex}, v{sx}')
        if not RED2: a(f'v_exp_f32 v{em}, v{sm}')
        a(f'v_add_f32 v{ab}, abs(v{sx}), abs(v{sm})')
        f1(1)
        norm(True)
        a.label(L('pst'))
    else:
        mx = t + 2
        a(f'v_max_f32 v{mx}, v{sx}, v{sm}')
        f1(1)
        a(f'v_max_f32_dpp v{mx}, v{mx}, v{mx} quad_perm:[1,0,3,2] {D}')
        a(f'v_max_f32_dpp v{mx}, v{mx}, v{mx} quad_perm:[2,3,0,1] {D}')
        a(f'v_max_f32_dpp v{mx}, v{mx}, v{mx} row_half_mirror {D}')
        a(f'v_max_f32_dpp v{mx}, v{mx}, v{mx} row_mirror {D}')
        a(f'v_mov_b32 v{t+3}, v{mx}')
        a(f'v_permlane16_swap_b32 v{mx}, v{t+3}')
        a(f'v_max_f32 v{mx}, v{mx}, v{t+3}')
        f1(2)
        a(f'v_sub_f32 v{sx}, v{sx}, v{mx}')
        a(f'v_sub_f32 v{sm}, v{sm}, v{mx}')
        a(f'v_exp_f32 v{sx}, v{sx}')
        a(f'v_exp_f32 v{sm}, v{sm}')
        l = t + 3; u = t + 4; v = t + 5; lo = t + 6; hi = t + 7
        a(f'v_fma_f32 v{l}, v{sm}, s37, v{sx}')
        a(f'v_cndmask_b32 v{u}, v{sm}, v{sx}, s[38:39]')
        a(f'v_cndmask_b32 v{v}, v{sx}, v{sm}, s[38:39]')
        a(f'v_add_f32_dpp v{l}, v{l}, v{l} quad_perm:[1,0,3,2] {D}')
        a(f'v_mov_b32_dpp v{t+10}, v{v} quad_perm:[1,0,3,2] {D}')
        a(f'v_add_f32_dpp v{l}, v{l}, v{l} quad_perm:[2,3,0,1] {D}')
        a(f'v_cndmask_b32 v{lo}, v{t+10}, v{u}, s[38:39]')
        a(f'v_cndmask_b32 v{hi}, v{u}, v{t+10}, s[38:39]')
        f1(3)
        a(f'v_add_f32_dpp v{l}, v{l}, v{l} row_half_mirror {D}')
        a(f'v_add_f32_dpp v{l}, v{l}, v{l} row_mirror {D}')
        a(f'v_mov_b32 v{t+11}, v{l}')
        a(f'v_permlane16_swap_b32 v{l}, v{t+11}')
        a(f'v_add_f32 v{l}, v{l}, v{t+11}')
        f1(4)
        a(f'v_rcp_f32 v{l}, v{l}')
        a(f'v_mul_f32 v{lo}, v{lo}, v{l}')
        a(f'v_mul_f32 v{hi}, v{hi}, v{l}')
        a(f'v_cvt_pk_bf16_f32 v{lo}, v{lo}, v{hi}')
        a(f'v_min_u32 v{lo}, -2, v{lo}')
        a('s_mov_b64 exec, s[28:29]')
    a(f'buffer_store_dword v{lo}, v1, {SRD}, s20 offen {st}')
    a('s_mov_b64 exec, -1')
    f1(5)
    stamp(a, 6)
    if V5:
        PR, YT, LO, HI, VS = 8, 48, 64, 68, 72
        co = [0, 1, 2, 3, 4, 8, 9, 5, 6, 7]
        pr = lambda c: PR + 4 * co.index(c)
        bo = lambda c: YT + 8 * (c - 8) if c >= 8 else VS + 8 * (c % 5)
        def vrd(c):
            for k in range(2): a(f'ds_read_b128 v[{bo(c)+4*k}:{bo(c)+4*k+3}], v2 offset:{VL - 65536 + (2*c + k)*1024}')
        if w == 3:
            n0 = np1[0]
            def yld():
                for k in range(4): a(f'buffer_load_dwordx4 v[{YT+4*k}:{YT+4*k+3}], v119, {SRD}, s58 offen offset:{k*1024} sc1')
            for k in range(n0, PD_V):
                if YE and k == n0: yld()
                a(f'buffer_load_dword v{8+k}, v0, {SRD}, s20 offen sc1')
                if k == n0:
                    a(f'v_add_u32 v2, 0x10000, v2')
                    a(f'ds_read_b128 v[4:7], v2 offset:{CL - 65536}')
                    a(f's_waitcnt vmcnt({n0 + 2 + 4*YE})')
                    a('s_barrier')
                    for c in range(2): vrd(c)
                elif k == n0 + 1:
                    for c in range(2, 5): vrd(c)
                    a(f'v_subrev_u32 v2, 0x10000, v2')
                elif k == n0 + 2:
                    a(f's_add_u32 s22, s20, {PX}')
                    a(f's_add_u32 s34, s20, {PX + 4096}')
                    a(f's_add_u32 s23, s20, {PM}')
                    a('s_mov_b32 s62, 0')
                    for r in range(4): a(f'v_mov_b32 v{LO+r}, 0')
                else: a.nop(PG_V)
            flagpoll(a, 0, 's20', 8, L('fw'), ABORT, PD_V, 0, PD_V)
            def pld(c):
                so = ('s22', 's34', 's23')[c // 4]
                a(f'buffer_load_dwordx4 v[{pr(c)}:{pr(c)+3}], v{4 if c < 8 else 2}, {SRD}, {so} offen offset:{(c & 3)*1024} sc1')
            def psm(c): a(f'v_smfmac_f32_16x16x64_bf16 v[{LO}:{LO+3}], v[{pr(c)}:{pr(c)+3}], v[{bo(c)}:{bo(c)+7}], v5')
            a('s_waitcnt lgkmcnt(0)')
            q = []
            for c in co:
                if c == 8 and not YE: yld(); q += ['y'] * 4
                pld(c); q.append(c)
            a('s_barrier')
            a(f'v_add_u32 v2, 0x10000, v2')
            for i, c in enumerate(co):
                a(f's_waitcnt vmcnt({len(q) - 1 - q.index(c)})' + (f' lgkmcnt({2*(7-c)})' if 5 <= c < 8 else ''))
                psm(c)
                if c < 3: vrd(c + 5)
                if i == V5F2:
                    q.append('f')
                    exec_lo(a, R2)
                    a(f'buffer_store_dword v2, v6, {SRD}, s21 offen {st}')
                    a('s_mov_b64 exec, -1')
            a.label(L('ep'))
            a(f'v_add_f32 v{HI}, v{LO}, v{LO+1}')
            a(f'v_add_f32 v{HI+1}, v{LO+2}, v{LO+3}')
            a(f'v_cmp_u_f32 vcc, v{HI}, v{HI+1}')
            a(f'v_mov_b32_dpp v{HI+2}, v{HI} row_ror:8 {D}')
            a(f'v_mov_b32_dpp v{HI}, v{HI+1} row_ror:8 row_mask:0xf bank_mask:0xc')
            a(f's_cbranch_vccnz {L("rp")}')
            a(f'v_mov_b32_dpp v{HI+1}, v{HI+2} quad_perm:[0,1,2,3] row_mask:0xf bank_mask:0x3')
            a(f'v_cvt_pk_bf16_f32 v{HI}, v{HI}, v{HI+1}')
            a.label(L('pc'))
            a('s_mov_b64 exec, s[64:65]')
            a(f'buffer_store_dword v{HI}, v7, {SRD}, s21 offen {st}')
            a(f's_cmp_lg_u32 s19, {NSTEPS-2}')
            a(f's_cbranch_scc1 {L("nl")}')
            a(f's_mov_b32 s22, {MEMG_OFF + (NSTEPS-1)*7*KB}')
            a(f'buffer_store_dword v{HI}, v7, {SRD}, s22 offen sc1')
            a.label(L('nl'))
            a('s_mov_b64 exec, -1')
            stamp(a, 7)
            a(f'ds_read_b128 v[4:7], v2 offset:{CL - 65536 + 1024}')
            a(f'v_subrev_u32 v2, 0x10000, v2')
            if V5 == 1:
                for r in range(4): a(f'v_mov_b32 v{YT+r}, -1')
                for k in range(4): a(f'buffer_store_dwordx4 v[{YT}:{YT+3}], v2, {SRD}, s58 offen offset:{k*1024} {st}')
                a(f's_xor_b32 s58, s58, {T2X_B}')
            a('s_waitcnt lgkmcnt(0)')
        else:
            a('s_waitcnt vmcnt(1)')
            a('s_barrier')
            a('s_barrier')
            if XG: a.nop(XG)
    else:
        a('s_barrier')
        if S0 and w == F1_WAVE:
            a('s_cmp_lg_u32 s19, 0')
            a(f's_cbranch_scc1 {L("s0")}')
            a('s_sub_u32 s36, s36, 64')
            a(f'v_lshl_add_u32 v{t+20}, v2, 3, s36')
            exec_lo(a, R1)
            a(f'buffer_store_dword v2, v{t+20}, {SRD}, s20 offen {st}')
            a('s_mov_b64 exec, -1')
            a.label(L('s0'))
    def vtouch():
        a('v_lshlrev_b32 v8, 3, v2')
        a(f's_mov_b64 exec, s[66:67]')
        a(f'buffer_load_dword v9, v8, {SRD}, s60 offen sc1')
        a('s_mov_b64 exec, -1')
        a('s_mov_b32 s60, s35')
    if VT and not VTL: vtouch()
    if DMA_DELAY: a.nop(DMA_DELAY)
    if not NOBULK: a(f's_add_u32 s24, s24, {XSEG_B}')
    if not NOBULK: a(f's_add_u32 s35, s35, {GSH_B}')
    a(f's_xor_b32 s25, s25, {XSEG_B}')
    if NOX: pass
    elif not V5: x_dma(a, w, XG, XIN)
    elif w < 3:
        x_dma(a, w)
        for f in range(21 + w, 28, 3):
            a(f's_add_u32 m0, s25, {f*1024}')
            a(f's_add_u32 s22, s24, {(f - 7*w)*1024}')
            a(f'buffer_load_dwordx4 v2, {SRD}, s22 offen sc1 lds')
    if VT and VTL:
        a(f's_sub_u32 s35, s35, {GSH_B}')
        vtouch()
        a(f's_add_u32 s35, s35, {GSH_B}')
    a(f'v_xor_b32 v116, {XSEG_B}, v116')
    if MRG:
        a('v_add_u32 v117, s57, v117')
        a('s_sub_u32 s57, 0, s57')
    stamp_flush(a, w, 8, L('sf'), 8)
    if TMAX and w == 3:
        a('s_cmp_lg_u32 s17, 0')
        a(f's_cbranch_scc1 {L("tm")}')
        for k, stp in enumerate((1, 20, 40, 62)):
            a(f's_cmp_lg_u32 s19, {stp}')
            a(f's_cbranch_scc1 {L(f"tm{k}")}')
            tmax(a, 12 + k, 8)
            a.label(L(f'tm{k}'))
        a.label(L('tm'))
    if STEPLOG and w == 3:
        a('s_memtime s[40:41]')
        a('s_memrealtime s[42:43]')
        a('s_mov_b32 m0, s19')
        a('s_waitcnt lgkmcnt(0)')
        a('v_writelane_b32 v119, s40, m0')
        a('v_writelane_b32 v0, s42, m0')
    a('s_add_u32 s19, s19, 1')
    a('s_mov_b32 s20, s21')
    a(f's_cmp_lt_u32 s19, {NSTEPS-1}')
    a.flush()
    a(f's_cbranch_scc1 {L("loop")}')
    if STEPLOG and w == 3:
        a('s_lshl_b32 s22, s17, 8')
        a(f's_add_u32 s22, s22, {STAMP_OFF}')
        a('v_lshrrev_b32 v8, 2, v2')
        a(f'buffer_store_dword v119, v8, {SRD}, s22 offen')
        a('s_add_u32 s22, s22, 4096')
        a(f'buffer_store_dword v0, v8, {SRD}, s22 offen')
    a(f's_branch {tag}_done')
    for i in range(EC_M):
        a.label(L(f'er{i}'))
        ml(o1[i])
        a('s_waitcnt vmcnt(0)')
        a('s_add_u32 s31, s31, 0x100')
        spin(a, L(f'e{i}'), ABORT)
    if V5 and w == 3:
        a.label(L('rp'))
        a('s_cmp_eq_u32 s62, 0')
        a(f's_cbranch_scc1 {L("pv")}')
        a(f'v_mov_b32_dpp v{HI+1}, v{HI+2} quad_perm:[0,1,2,3] row_mask:0xf bank_mask:0x3')
        a(f'v_cvt_pk_bf16_f32 v{HI}, v{HI}, v{HI+1}')
        a(f'v_min_u32 v{HI}, -2, v{HI}')
        a(f's_branch {L("pc")}')
        a.label(L('pv'))
        a(f'v_subrev_u32 v2, 0x10000, v2')
        yld()
        for c in co: pld(c)
        a(f'v_add_u32 v2, 0x10000, v2')
        a('s_waitcnt vmcnt(0)')
        ck2 = Checker(a, HI)
        ck2.add(PR, 56); ck2.drain()
        a(f'v_cmp_eq_u32 vcc, -1, v{HI}')
        a(f's_cbranch_vccz {L("pk")}')
        spin(a, L('pv'), ABORT)
        a.label(L('pk'))
        a('s_mov_b32 s62, 1')
        a('s_add_u32 s31, s31, 0x10000')
        for r in range(4): a(f'v_mov_b32 v{LO+r}, 0')
        for c in (5, 6, 7, 3, 4, 8, 9): psm(c)
        for c in range(3): vrd(c)
        a('s_waitcnt lgkmcnt(0)')
        for c in range(3): psm(c)
        a.flush()
        a(f's_branch {L("ep")}')
    if FAST:
        a.label(L('slow'))
        mx = ab
        a(f'v_max_f32 v{mx}, v{sx}, v{sm}')
        for pm in ('quad_perm:[1,0,3,2]', 'quad_perm:[2,3,0,1]', 'row_half_mirror', 'row_mirror'): a(f'v_max_f32_dpp v{mx}, v{mx}, v{mx} {pm} {D}')
        a(f'v_mov_b32 v{t+11}, v{mx}')
        a(f'v_permlane16_swap_b32 v{mx}, v{t+11}')
        a(f'v_max_f32 v{mx}, v{mx}, v{t+11}')
        a(f'v_sub_f32 v{ex}, v{sx}, v{mx}')
        a(f'v_sub_f32 v{em}, v{sm}, v{mx}')
        a(f'v_exp_f32 v{ex}, v{ex}')
        a(f'v_exp_f32 v{em}, v{em}')
        a('s_add_u32 s31, s31, 0x100')
        for k in range(np1[0]): a(f'v_mov_b32 v{8+k}, -1')
        norm(False)
        a(f'v_min_u32 v{lo}, -2, v{lo}')
        a(f's_branch {L("pst")}')
    a.label(L('retry'))
    if NANCHK:
        a('s_cmp_lg_u32 s62, 0')
        a(f's_cbranch_scc1 {L("cont")}')
        a('s_waitcnt vmcnt(0) lgkmcnt(0)')
        a.label(L('rv'))
        for ks in range(7): ml(ks)
        a('s_waitcnt vmcnt(0)')
        ck2 = Checker(a, TR)
        ck2.add(M, 28); ck2.drain()
        a(f'v_cmp_eq_u32 vcc, -1, v{TR}')
        a(f's_cbranch_vccz {L("rk")}')
        spin(a, L('rv'), ABORT)
        a.label(L('rk'))
        a('s_mov_b32 s62, 1')
        zero()
        a('s_add_u32 s31, s31, 1')
        if NPRE == 7: a(f's_branch {L("ld2")}')
        else:
            for x in xfirst(): a(x)
            for ks in o1:
                for ti in range(7): a(S(ti, ks))
            for k_, f in sorted(xpos.items()):
                if k_ <= 28:
                    for x in xop(f)[0]: a(x)
            a(f's_branch {L("ph2")}')
    else:
        a('s_waitcnt vmcnt(0) lgkmcnt(0)')
        a.nop(10)
        zero()
        a('s_add_u32 s31, s31, 1')
        spin(a, L('ld'), ABORT)

def init_score(a, w):
    AOP = 64
    a(f's_mul_i32 s31, s17, {CUW_B}')
    a(f's_add_u32 s31, s31, {WF_A}')
    units = [((kap * 4 + q) * TILE_B + ks * UNIT, wreg(ti, ks)) for ti, (kap, q) in enumerate(score_tiles(w)) for ks in range(7) if not SELF or (ti >= 4 and SELF == 1)]
    load_units(a, units, 's31')
    a(f's_mov_b32 s24, {XF_OFF + 7*w*1024}')
    a('s_mov_b32 s25, 0')
    x_dma(a, w)
    a('v_lshrrev_b32 v64, 1, v117' if INL else 'v_and_b32 v64, 7, v117')
    a('v_and_b32 v65, 1, v116')
    a('v_lshlrev_b32 v65, 2, v65')
    a('v_sub_u32 v64, v64, v65')
    a('v_and_b32 v65, 1, v117' if INL else 'v_lshrrev_b32 v65, 3, v117')
    a('v_lshl_add_u32 v66, v65, 2, v64')
    a('v_cmp_gt_u32 vcc, 4, v64')
    a('v_mov_b32 v67, 99')
    a('v_cndmask_b32 v66, v67, v66, vcc')
    a('v_mov_b32 v68, 0x3f80')
    a('v_mov_b32 v69, 0x3f800000')
    for d in range(4):
        a(f'v_mov_b32 v{4+d}, 0')
        a(f'v_cmp_eq_u32 vcc, {2*d}, v66')
        a(f'v_cndmask_b32 v{4+d}, v{4+d}, v68, vcc')
        a(f'v_cmp_eq_u32 vcc, {2*d+1}, v66')
        a(f'v_cndmask_b32 v{4+d}, v{4+d}, v69, vcc')
    a('v_lshrrev_b32 v64, 1, v116')
    a('v_lshrrev_b32 v65, 3, v117')
    a('v_cmp_eq_u32 s[26:27], v64, v65')
    a('v_and_b32 v66, 1, v116')
    a(f'v_add_u32 v64, {2*w}, v64')
    if FOLDW:
        a('v_lshrrev_b32 v67, 1, v116')
        a('v_lshlrev_b32 v67, 8, v67')
    else: a('v_lshlrev_b32 v67, 10, v64')
    a('v_lshl_add_u32 v67, v66, 9, v67')
    a('v_lshl_add_u32 v67, v117, 4, v67')
    a(f'v_add_u32 v112, {XP + (w*1024 if FOLDW else 0)}, v67')
    a('v_and_b32 v68, 7, v117')
    a('v_lshlrev_b32 v67, 8, v64')
    a('v_lshl_add_u32 v67, v68, 5, v67')
    a('v_lshl_add_u32 v67, v66, 4, v67')
    a(f'v_add_u32 v113, {MP}, v67')
    a('v_lshrrev_b32 v64, 5, v1')
    a('v_and_b32 v65, 31, v1')
    a('v_lshrrev_b32 v66, 3, v65')
    a('v_and_b32 v67, 7, v65')
    a('v_and_b32 v68, 3, v67')
    a('v_lshl_add_u32 v68, v66, 2, v68')
    a('v_lshrrev_b32 v69, 2, v67')
    a('v_lshl_add_u32 v68, v69, 4, v68')
    a(f'v_lshlrev_b32 v69, {11 if FOLDW else 12}, v64')
    a('v_lshl_add_u32 v69, v68, 4, v69')
    a(f'v_add_u32 v114, {XP + (w >> 1) * 512 + 2 * (w & 1) * 4}, v69')
    a(f'v_add_u32 v70, {2*w}, v64')
    a('v_lshlrev_b32 v69, 9, v66')
    a('v_lshl_add_u32 v69, v70, 5, v69')
    a('v_lshl_add_u32 v69, v67, 2, v69')
    a(f'v_add_u32 v115, {MP}, v69')
    if RED2:
        a('v_lshlrev_b32 v69, 4, v68')
        a('v_lshl_add_u32 v69, v64, 9, v69')
        a(f'v_add_u32 v114, {XP + w*XRP}, v69')
        a('v_mul_u32_u24 v69, 144, v70')
        a('v_lshl_add_u32 v69, v67, 4, v69')
        a(f'v_add_u32 v115, {MP}, v69')
        a('v_and_b32 v71, 1, v116')
        a(f'v_mul_u32_u24 v69, {2*XRP}, v71')
        a('v_lshl_add_u32 v69, v64, 8, v69')
        a('v_lshl_add_u32 v69, v117, 4, v69')
        a(f'v_add_u32 v112, {XP + (w >> 1)*512 + 8*(w & 1)}, v69')
        a('v_mul_u32_u24 v69, 144, v117')
        a('v_lshl_add_u32 v69, v71, 6, v69')
        a('v_lshl_add_u32 v69, v64, 5, v69')
        a(f'v_add_u32 v113, {MP + 4*w}, v69')
        if INL:
            a(f'v_mul_u32_u24 v69, {XRP}, v116')
            a('v_lshl_add_u32 v69, v117, 4, v69')
            a('v_and_b32 v72, 8, v117')
            a(f'v_xor_b32 v72, {8*(w & 1)}, v72')
            a('v_add_u32 v69, v69, v72')
            a(f'v_add_u32 v112, {XP + (w >> 1)*512}, v69')
            if WSPL == 2:
                a('v_lshrrev_b32 v72, 3, v117')
                a('v_lshl_add_u32 v72, v71, 1, v72')
                a(f'v_xor_b32 v72, {w}, v72')
                a('v_lshlrev_b32 v69, 10, v116')
                a('v_lshl_add_u32 v69, v117, 4, v69')
                a('v_lshl_add_u32 v69, v72, 2, v69')
                a(f'v_add_u32 v112, {XP}, v69')
            a('v_lshrrev_b32 v69, 1, v117')
            a('v_and_b32 v72, 1, v117')
            a('v_lshl_add_u32 v69, v72, 3, v69')
            a('v_mul_u32_u24 v69, 144, v69')
            a('v_lshl_add_u32 v69, v71, 6, v69')
            a('v_lshl_add_u32 v69, v64, 5, v69')
            a('v_lshl_add_u32 v72, v72, 1, v71')
            a(f'v_xor_b32 v72, {w}, v72')
            a('v_lshl_add_u32 v69, v72, 2, v69')
            a(f'v_add_u32 v113, {MP}, v69')
    a('v_and_b32 v71, 1, v1')
    a('v_cmp_eq_u32 s[38:39], 0, v71')
    a('v_cmp_gt_u32 vcc, 8, v65')
    a('s_or_b64 s[28:29], s[38:39], vcc')
    a('v_lshrrev_b32 v72, 1, v67')
    a('v_lshlrev_b32 v72, 2, v72')
    a('v_lshl_add_u32 v72, v70, 4, v72')
    a('s_lshl_b32 s22, s17, 9')
    a(f's_add_u32 s22, s22, {PX}')
    a('v_lshl_add_u32 v73, v66, 7, v72')
    a('v_add_u32 v73, s22, v73')
    a('s_lshl_b32 s22, s17, 7')
    a(f's_add_u32 s22, s22, {PM}')
    a('v_add_u32 v74, s22, v72')
    if VSM:
        a('v_bfe_u32 v72, v65, 1, 1')
        a('v_lshlrev_b32 v72, 7, v72')
        a('v_lshl_add_u32 v72, v70, 4, v72')
        a('v_bfe_u32 v73, v65, 2, 2')
        a('v_lshl_add_u32 v72, v73, 2, v72')
        a('v_lshrrev_b32 v73, 4, v65')
        a('v_lshl_add_u32 v73, v73, 8, v72')
        a('s_lshl_b32 s22, s17, 9')
        a(f's_add_u32 s22, s22, {PX}')
        a('v_add_u32 v73, s22, v73')
        a('s_lshr_b32 s22, s17, 1')
        a('s_lshl_b32 s22, s22, 8')
        a('s_and_b32 s34, s17, 1')
        a('s_lshl_b32 s34, s34, 3')
        a('s_add_u32 s22, s22, s34')
        a(f's_add_u32 s22, s22, {PM}')
        a('v_add_u32 v74, s22, v72')
    if PL2:
        a('v_bfe_u32 v72, v65, 1, 1')
        a('v_lshl_add_u32 v72, v64, 1, v72')
        a('v_lshlrev_b32 v72, 4, v72')
        a('v_bfe_u32 v73, v65, 2, 2')
        a('v_lshl_add_u32 v72, v73, 2, v72')
        a('v_lshrrev_b32 v73, 4, v65')
        a('v_lshl_add_u32 v73, v73, 6, v72')
        a('s_lshl_b32 s22, s17, 9')
        a(f's_add_u32 s22, s22, {PX + w*128}')
        a('v_add_u32 v73, s22, v73')
        a('v_lshrrev_b32 v72, 1, v65')
        a('v_lshlrev_b32 v72, 2, v72')
        a('v_lshl_add_u32 v72, v64, 5, v72')
        a('s_lshr_b32 s22, s17, 1')
        a('s_lshl_b32 s22, s22, 8')
        a('s_and_b32 s34, s17, 1')
        a('s_lshl_b32 s34, s34, 4')
        a('s_add_u32 s22, s22, s34')
        a(f's_add_u32 s22, s22, {PM + w*64}')
        a('v_add_u32 v74, s22, v72')
    a('v_lshlrev_b32 v0, 2, v65')
    if PRI: a(f'v_and_b32 v0, {(NV - 1) << 3}, v0')
    if F2ONE: a(f'v_and_b32 v0, 0x78, v0\nv_or_b32 v0, {4*(F2ONE-1)}, v0')
    a(f's_and_b32 s22, s17, {R2-1}')
    a('s_lshl_b32 s22, s22, 7')
    a(f's_add_u32 s22, s22, {F2}')
    a(f'v_add_u32 v0, s22, v0')
    a('v_cndmask_b32 v1, v74, v73, s[38:39]')
    a('s_lshl_b32 s36, s17, 2')
    a(f's_add_u32 s36, s36, {F1 + (64 if S0 else 0)}')
    a('s_mov_b32 s37, 0x3e800000')
    for r in range(64, 112): a(f'v_mov_b32 v{r}, 0')
    if MRG:
        a('v_and_b32 v118, 1, v116')
        a('v_cmp_eq_u32 vcc, 0, v118')
        a(f'v_mov_b32 v118, {6*2048 + (w >> 1)*256}')
        a(f'v_mov_b32 v119, {(4 + (w >> 1))*2048 + (w & 1)*256}')
        a('v_cndmask_b32 v118, v118, v119, vcc')
        a('v_lshrrev_b32 v116, 1, v116')
        a('v_lshl_add_u32 v118, v116, 9, v118')
        a('v_lshl_add_u32 v117, v117, 4, v118')
        a(f's_mov_b32 s57, {XSEG_B}')
    if INL:
        a('v_bfe_u32 v118, v2, 4, 1')
        a('v_mul_u32_u24 v118, 0xaaaa, v118')
        a('v_add_u32 v118, 0x4444, v118')
    a('s_mov_b32 s56, 0x42800000')
    a('v_mov_b32 v116, v2')
    if not MRG:
        a('v_lshrrev_b32 v117, 4, v2')
        a('v_min_u32 v117, 55, v117')
        a('v_lshlrev_b32 v117, 7, v117')
    if w in (1, 2):
        nl = 10 if w == 1 else 14
        a('v_lshrrev_b32 v0, 4, v2')
        a(f'v_min_u32 v0, {nl-1}, v0')
        a(f's_mul_i32 s22, s17, {nl}')
        a('v_add_u32 v0, s22, v0')
        a('v_lshlrev_b32 v0, 7, v0')
        a(f'v_add_u32 v0, {2*EXCH_B if w == 1 else 2*XSEG_B - 7*w*1024}, v0')
        for k in (1, 2):
            a(f's_mov_b32 s22, {EXCH_OFF - k*EXCH_B if w == 1 else XF_OFF + 7*w*1024 - k*XSEG_B}')
            a(f'buffer_load_dword v119, v0, {SRD}, s22 offen sc1')
    if X_PRELOAD:
        a(f's_mul_i32 s22, s17, {4*XSEG_B}')
        a(f's_add_u32 s22, s22, {XF_OFF + w*XSEG_B}')
        for k in range(4):
            a(f'buffer_load_dword v119, v117, {SRD}, s22 offen')
            a(f's_add_u32 s22, s22, {56*128}')
    if SC_ALLPOLL:
        a('v_lshrrev_b32 v117, 4, v2')
        a('v_and_b32 v117, 31, v117')
        a('v_lshlrev_b32 v117, 2, v117')
        a(f'v_add_u32 v117, {F2}, v117')
    a(f's_mul_i32 s35, s17, {64*GSH_B}')
    a(f's_add_u32 s35, s35, {VO_OFF if V5 else VO_OFF + TOUCH_AHEAD*GSH_B + w*56*128}')
    if VT:
        a('s_mov_b32 s60, 0x10000000')
        a(f's_mov_b32 s66, {((1 << VT) - 1) & 0xffffffff}\ns_mov_b32 s67, {((1 << VT) - 1) >> 32}')
    if V5:
        a('v_lshrrev_b32 v8, 8, v2')
        a('v_bfe_u32 v9, v2, 4, 3')
        a('v_bfe_u32 v10, v2, 7, 1')
        a('v_min_u32 v11, 5, v9')
        a('v_lshl_add_u32 v12, v11, 1, v10')
        a('v_add_u32 v12, 16, v12')
        a('v_mad_u32_u24 v12, v8, 28, v12')
        a('v_lshlrev_b32 v118, 4, v12')
        if w == 3:
            a('v_lshl_add_u32 v12, v10, 3, v11')
            a('v_lshlrev_b32 v12, 4, v12')
            a('v_lshl_add_u32 v119, v8, 8, v12')
            a('v_cmp_gt_u32 s[64:65], 6, v9')
            a('s_lshl_b32 s22, s17, 8')
            a(f's_add_u32 s22, s22, {F1 + 128}')
            a('v_bfe_u32 v12, v2, 4, 4')
            a('v_lshl_add_u32 v0, v12, 2, s22')
            a('v_lshrrev_b32 v16, 1, v8')
            a('v_lshlrev_b32 v16, 9, v16')
            a('v_lshrrev_b32 v13, 2, v12')
            a('v_lshl_add_u32 v16, v13, 7, v16')
            a('v_and_b32 v13, 1, v8')
            a('v_lshl_add_u32 v16, v13, 6, v16')
            a('v_and_b32 v13, 3, v12')
            a('v_lshl_add_u32 v16, v13, 4, v16')
            a('v_and_b32 v13, 1, v12')
            a('v_mul_u32_u24 v13, 0xaaaa, v13')
            a('v_add_u32 v17, 0x4444, v13')
            a('s_lshl_b32 s22, s17, 3')
            a(f's_add_u32 s22, s22, {F2 + 4}')
            a('v_lshl_add_u32 v18, v2, 3, s22')
            a('s_mul_i32 s22, s17, 28')
            a('s_add_u32 s22, s22, 16')
            a('v_lshl_add_u32 v13, v9, 1, s22')
            a('v_lshrrev_b32 v19, 4, v13')
            a('v_lshlrev_b32 v19, 8, v19')
            a('v_bfe_u32 v14, v13, 1, 1')
            a('v_lshl_add_u32 v19, v14, 7, v19')
            a('v_bfe_u32 v14, v13, 2, 2')
            a('v_lshl_add_u32 v19, v14, 2, v19')
            a('v_lshl_add_u32 v14, v8, 1, v10')
            a('v_lshl_add_u32 v19, v14, 4, v19')
            a(f'v_add_u32 v12, {CL}, v2')
            a('ds_write_b128 v12, v[16:19]')
            a('ds_write_b128 v12, v[4:7] offset:1024')
            a('s_lshl_b32 s58, s17, 12')
            a(f's_add_u32 s58, s58, {T2X_OFF if V5 == 1 else XF_OFF}')
        a('s_lshl_b32 s22, s17, 7')
        a(f's_add_u32 s22, s22, {CNT_OFF + VOC - 2048}')
        poll_eq(a, f'sc_vw{w}', SRD, 's22', 56, sleep=2)
        a('s_waitcnt lgkmcnt(0)')

YL = 0; ML = 8 * KB; WL = 16 * KB
def vtiles(w): return (6 * w, 6, 6) if w < 2 else (12 + 8 * (w - 2), 8, 7)
def vwreg(w, ti, ks):
    u = ti * 7 + ks
    return 256 + 8 * u if u < 32 else (176 if w < 2 else 120) + 8 * (u - 32)

VOK = 63
def vok_load(a):
    a('s_sub_u32 s22, s39, s35')
    a(f'v_lshlrev_b32 v{VOK}, 7, v2')
    a(f'v_min_u32 v{VOK}, s22, v{VOK}')
    a(f'buffer_load_dword v{VOK}, v{VOK}, {SRD}, s35 offen sc1')
def vo_wait(a, L, ABORT, t):
    a(f's_branch {L("voc")}')
    a.label(L('vow'))
    vok_load(a)
    a('s_waitcnt vmcnt(0)')
    a.label(L('voc'))
    a(f'v_readfirstlane_b32 s22, v{VOK}')
    a('s_cmp_eq_u32 s22, 56')
    a(f's_cbranch_scc1 {L("vod")}')
    a('s_sleep 1')
    spin(a, L('vow'), ABORT)
    a.label(L('vod'))
    a('s_add_u32 s35, s35, 2048')
    if V5:
        a('s_add_u32 s38, s19, 9')
        a('s_and_b32 s38, s38, -8')
        a('s_sub_u32 s38, s38, 1')
        a('s_cmp_eq_u32 s19, 0')
        a('s_cselect_b32 s38, 3, s38')
        return
    e = 2 if VT else 0
    a(f's_add_u32 s38, s19, {8 + e}')
    a('s_and_b32 s38, s38, -8')
    if e: a(f's_sub_u32 s38, s38, {e}')
    a('s_cmp_eq_u32 s19, 0')
    a(f's_cselect_b32 s38, {4 - e}, s38')
    a(f'v_cmp_ne_u32 vcc, 56, v{VOK}')
    a('s_nop 3')
    a('s_cmp_eq_u64 vcc, 0')
    a('s_cselect_b32 s38, 99, s38')

def yaN(fin): return [60, 61, 62, 170, 171, 172] if fin else list(range(100, 108))
def gen_value(a, w, st, tag):
    L = lambda n: f'{tag}_va{w}_{n}'
    ABORT = f'{tag}_abort'
    fin = w < 2
    t0, ntile, nreg = vtiles(w)
    M = 8; ACC = 36
    YA = 60 if fin else 112
    CK = 175
    def S(ti, ks, b=None):
        if NOT2: return 's_nop 2'
        return f'v_smfmac_f32_16x16x64_bf16 v[{ACC+4*ti}:{ACC+4*ti+3}], v[{M+4*ks}:{M+4*ks+3}], {b or ureg(vwreg(w, ti, ks), 8)}, v3'
    def fold(p):
        A_ = ACC + 8 * p; B_ = A_ + 4
        o = [f'v_permlane32_swap_b32 v{A_+r}, v{B_+r}' for r in range(4)]
        o += [f'v_add_f32 v{A_+r}, v{A_+r}, v{B_+r}' for r in range(4)]
        o += [f'v_cvt_pk_bf16_f32 v{B_}, v{A_}, v{A_+1}', f'v_cvt_pk_bf16_f32 v{B_+1}, v{A_+2}, v{A_+3}', f'ds_write2_b32 v{YA+p}, v{B_}, v{B_+1} offset0:0 offset1:2' if PL2 else f'ds_write_b64 v{YA+p}, v[{B_}:{B_+1}]']
        return o
    VP = (0 if fin else 5) if TIN else 2
    def run(seq):
        last = {}
        for i, (ti, m, pre) in enumerate(seq): last[ti] = i
        pend = []; delay = 0
        if TIN:
            for i, (ti, m, pre) in enumerate(seq):
                for x in pre: a(x)
                a(m)
                if pend and pend[0][0] <= i: a(pend.pop(0)[1])
                if i == last[ti]:
                    A_ = ACC + 4 * ti
                    pend += [(i + 3, x) for x in (f'v_add_f32 v{A_}, v{A_}, v{A_+1}', f'v_add_f32 v{A_+2}, v{A_+2}, v{A_+3}', f'v_cvt_pk_bf16_f32 v{A_}, v{A_}, v{A_+2}', f'ds_write_b32 v{yaN(fin)[ti]}, v{A_}')]
            for x in pend: a(x[1])
            return
        for i, (ti, m, pre) in enumerate(seq):
            for x in pre: a(x)
            a(m)
            if delay: delay -= 1
            elif pend:
                a(pend.pop(0))
                if len(pend) > 12: a(pend.pop(0))
            p = ti // 2
            if i == max(last[2 * p], last[2 * p + 1]):
                pend += fold(p)
                if not delay: delay = 3
        for x in pend: a(x)
    if ALIGN: a.raw(f'.p2align {ALIGN}\n' + '  s_nop 0\n' * APAD)
    a.label(L('loop'))
    step_bases(a)
    if not fin:
        for r in range(ACC, ACC + 4 * ntile): a(f'v_mov_b32 v{r}, 0')
    a('s_mov_b32 s30, 0')
    if fin and KS:
        VOR = 64; YT = 144; LO = 36; E = 44; PB = 52; HL = 15 * KB
        my = list(range(KS, 10)) if w == 0 else list(range(KS))
        pr = lambda c: 8 + 4 * my.index(c)
        bop = lambda c, t: VOR + 16 * my.index(c) + 8 * t if c < 8 else YT + 16 * t + 8 * (c - 8)
        a('s_cmp_lg_u32 s19, s38')
        a(f's_cbranch_scc1 {L("vok")}')
        vo_wait(a, L, ABORT, E)
        a.label(L('vok'))
        a('s_barrier')
        stamp(a, 0)
        for t in range(2):
            if t: a('s_mov_b64 exec, s[26:27]')
            for c in my:
                if c >= 8: continue
                a(f's_add_u32 s22, s25, {c*3584}')
                for k in range(2): a(f'buffer_load_dwordx4 v[{bop(c,t)+4*k}:{bop(c,t)+4*k+3}], v6, {SRD}, s22 offen offset:{k*1792 + t*256} sc1')
        a('s_mov_b64 exec, -1')
        a(f'buffer_load_dword v{VOK}, off, {SRD}, s35 sc1')
        a('s_barrier')
        stamp(a, 1)
        for ks in range(7): a(f'ds_read_b128 v[{M+4*ks}:{M+4*ks+3}], v2 offset:{ML + ks*1024}')
        a('s_waitcnt lgkmcnt(0)')
        run([(ti, S(ti, ks), []) for ti in range(ntile) for ks in range(7)])
        stamp(a, 2)
        a(f's_add_u32 s22, s20, {PX}')
        a(f's_add_u32 s34, s20, {PX + 4096}')
        a(f's_add_u32 s36, s20, {PM}')
        a('s_mov_b32 s37, 0')
        a('s_waitcnt lgkmcnt(0)')
        for r in range(8): a(f'v_mov_b32 v{LO+r}, 0')
        flagpoll(a, 4, 's20', E, L('fw'), ABORT, PD_V, PG_V)
        stamp(a, 4)
        def pld(c):
            so = ('s22', 's34', 's36')[c // 4]
            a(f'buffer_load_dwordx4 v[{pr(c)}:{pr(c)+3}], v{5 if c < 8 else 2}, {SRD}, {so} offen offset:{(c & 3)*1024} sc1')
        def psm(c, t): a(f'v_smfmac_f32_16x16x64_bf16 v[{LO+4*t}:{LO+4*t+3}], v[{pr(c)}:{pr(c)+3}], v[{bop(c,t)}:{bop(c,t)+7}], v0')
        q = []
        for i, c in enumerate(my):
            pld(c); q.append(c)
            if w == 0 and i < KS: a.nop(KGAP)
        a('s_barrier')
        if w == 0:
            for t in range(2):
                for k in range(4): a(f'ds_read_b128 v[{YT+16*t+4*k}:{YT+16*t+4*k+3}], v2 offset:{YL + t*4096 + k*1024}')
        n = 0
        for c in my:
            a(f's_waitcnt vmcnt({len(q) - 1 - q.index(c)})' + (' lgkmcnt(0)' if c == 8 and B3P > n else ' lgkmcnt(1)' if c == 8 else ''))
            if c == my[0]: stamp(a, 5)
            for t in range(2):
                psm(c, t); n += 1
                if w == 0 and n == F2K:
                    q.append('f')
                    exec_lo(a, R2)
                    a(f'buffer_store_dword v2, v7, {SRD}, s21 offen {st}')
                    a('s_mov_b64 exec, -1')
                if w == 0 and n == B3P:
                    a('s_barrier')
                    a(f'ds_read_b128 v[{PB}:{PB+3}], v2 offset:{HL}')
                    stamp(a, 3)
        a.label(L('ep'))
        if w == 1:
            for k in range(4): a(f'v_add_f32 v{E+k}, v{LO+2*k}, v{LO+2*k+1}')
            a(f'ds_write_b128 v2, v[{E}:{E+3}] offset:{HL}')
            a(f'v_cmp_u_f32 vcc, v{E}, v{E+1}')
            a(f's_cbranch_vccnz {L("rp")}')
            a.label(L('pc'))
            a('s_waitcnt lgkmcnt(0)')
            stamp(a, 3)
            a('s_barrier')
            a(f's_cmp_eq_u32 s19, {NSTEPS-2}')
            a(f's_cbranch_scc1 {tag}_done')
        else:
            RO = 'row_ror:8 row_mask:0xf bank_mask:0xc'; QP = 'quad_perm:[0,1,2,3] row_mask:0xf bank_mask:0x3'
            a(f'v_add_f32 v{E}, v{LO}, v{LO+1}')
            a(f'v_add_f32 v{E+1}, v{LO+2}, v{LO+3}')
            a('s_waitcnt lgkmcnt(0)')
            a(f'v_add_f32 v{E}, v{E}, v{PB}')
            a(f'v_add_f32 v{E+1}, v{E+1}, v{PB+1}')
            a(f'v_add_f32 v{E+2}, v{LO+4}, v{LO+5}')
            a(f'v_add_f32 v{E+3}, v{LO+6}, v{LO+7}')
            a(f'v_cmp_u_f32 vcc, v{E}, v{E+1}')
            a(f'v_add_f32 v{E+2}, v{E+2}, v{PB+2}')
            a(f'v_add_f32 v{E+3}, v{E+3}, v{PB+3}')
            a(f'v_mov_b32_dpp v{E+4}, v{E} row_ror:8 {D}')
            a(f'v_mov_b32_dpp v{E}, v{E+1} {RO}')
            a(f'v_mov_b32_dpp v{E+5}, v{E+2} row_ror:8 {D}')
            a(f'v_mov_b32_dpp v{E+1}, v{E+4} {QP}')
            a(f'v_mov_b32_dpp v{E+2}, v{E+3} {RO}')
            a(f'v_cvt_pk_bf16_f32 v{E}, v{E}, v{E+1}')
            a(f'v_mov_b32_dpp v{E+3}, v{E+5} {QP}')
            a(f's_cbranch_vccnz {L("rp")}')
            a.label(L('pc'))
            a(f'buffer_store_dword v{E}, v1, {SRD}, s21 offen {st}')
            a(f'v_cvt_pk_bf16_f32 v{E+2}, v{E+2}, v{E+3}')
            a('s_mov_b64 exec, s[26:27]')
            a(f'v_min_u32 v{E+2}, -2, v{E+2}')
            a(f'buffer_store_dword v{E+2}, v1, {SRD}, s21 offen offset:256 {st}')
            a(f's_cmp_lg_u32 s19, {NSTEPS-2}')
            a(f's_cbranch_scc1 {L("nl")}')
            a(f's_mov_b32 s22, {MEMG_OFF + (NSTEPS-1)*7*KB}')
            a(f'buffer_store_dword v{E+2}, v1, {SRD}, s22 offen offset:256 sc1')
            a('s_mov_b64 exec, -1')
            a(f'buffer_store_dword v{E}, v1, {SRD}, s22 offen sc1')
            a(f's_branch {tag}_done')
            a.label(L('nl'))
            a('s_mov_b64 exec, -1')
        stamp(a, 6)
        a(f's_add_u32 s25, s25, {GSH_B}')
        stamp_flush(a, 4 + w, 8, L('sf'), 8)
        for r in range(ACC, ACC + 4 * ntile): a(f'v_mov_b32 v{r}, 0')
        a('s_add_u32 s19, s19, 1')
        a('s_mov_b32 s20, s21')
        a(f's_branch {L("loop")}')
        a.label(L('rp'))
        a('s_cmp_eq_u32 s37, 0')
        a(f's_cbranch_scc1 {L("rv")}')
        if w == 0: a(f'v_min_u32 v{E}, -2, v{E}')
        a(f's_branch {L("pc")}')
        a.label(L('rv'))
        for c in my: pld(c)
        a('s_waitcnt vmcnt(0) lgkmcnt(0)')
        ck2 = Checker(a, E)
        ck2.add(8, 4 * len(my)); ck2.drain()
        a(f'v_cmp_eq_u32 vcc, -1, v{E}')
        a(f's_cbranch_vccz {L("rk")}')
        spin(a, L('rv'), ABORT)
        a.label(L('rk'))
        a('s_mov_b32 s37, 1')
        a('s_add_u32 s31, s31, 0x10000')
        for r in range(8): a(f'v_mov_b32 v{LO+r}, 0')
        for c in my:
            for t in range(2): psm(c, t)
        a.flush()
        a(f's_branch {L("ep")}')
        return
    if fin:
        YT = 64; VOR = 80; LO = 156; HI = 160; PL = 164
        pr = lambda c: 8 + 4 * c if c < 7 else 144 + 4 * (c - 7)
        if SYNC:
            a('s_cmp_lg_u32 s19, s38')
            a(f's_cbranch_scc1 {L("vok")}')
            vo_wait(a, L, ABORT, PL)
            a.label(L('vok'))
        if T2SRV:
            a(f's_cmp_eq_u32 s19, {NSTEPS-1}')
            a(f's_cbranch_scc1 {tag}_done')
        def vol(lo, hi):
            if V5 and w == 1: return
            for h in range(lo, hi):
                if h % 2 == 0: a(f's_add_u32 s22, s25, s{72 + h // 2}' if PROT else f's_add_u32 s22, s25, {h*1792}')
                a(f'buffer_load_dwordx4 v[{VOR+4*h}:{VOR+4*h+3}], v6, {SRD}, s22 offen offset:{(h & 1)*1792} sc1')
        vol(0, VO_PRE0)
        if not SLOW_FIRST: a('s_barrier')
        stamp(a, 0)
        if VO_SLEEP: a(f's_sleep {VO_SLEEP}')
        vol(VO_PRE0, VO_PRE)
        if SYNC:
            a('s_add_u32 s22, s19, 1')
            a('s_cmp_lg_u32 s22, s38')
            a(f's_cbranch_scc1 {L("nk")}')
            vok_load(a)
            a.label(L('nk'))
        a('s_barrier')
        stamp(a, 1)
        for ks in range(7): a(f'ds_read_b128 v[{M+4*ks}:{M+4*ks+3}], v{VP} offset:{ML + ks*1024}')
        a('s_waitcnt lgkmcnt(0)')
        if T2DF: a(f's_sleep {T2DF}')
        def vop(i):
            h = VO_PRE + (i - 1) // VOI
            if i < 1 or (i - 1) % VOI or h >= 16: return []
            return [f's_add_u32 s22, s25, s{72 + h // 2}' if PROT else f's_add_u32 s22, s25, {(h & ~1)*1792}', f'buffer_load_dwordx4 v[{VOR+4*h}:{VOR+4*h+3}], v6, {SRD}, s22 offen offset:{(h & 1)*1792} sc1']
        run([(ti, S(ti, ks), vop(7 * ti + ks)) for ti in range(ntile) for ks in range(7)])
        stamp(a, 2)
        if V5 and w == 1:
            a('s_waitcnt lgkmcnt(0)')
            for r in range(ACC, ACC + 4 * ntile): a(f'v_mov_b32 v{r}, 0')
            a('s_barrier')
            a(f's_cmp_eq_u32 s19, {NSTEPS-2}')
            a(f's_cbranch_scc1 {tag}_done')
            a('s_add_u32 s19, s19, 1')
            a('s_mov_b32 s20, s21')
            a(f's_branch {L("loop")}')
            return
        npl = 0
        if V5 or PRI:
            for k, r in enumerate(range(ACC, ACC + 4 * ntile)):
                if PRI and (w == 0 or PRI == 2) and k % 8 == 0:
                    a(f'buffer_load_dword v{PL+npl}, v4, {SRD}, s20 offen sc1'); npl += 1
                if k == 0: a('s_waitcnt lgkmcnt(0)')
                a(f'v_mov_b32 v{r}, 0')
            if PRI and (w == 0 or PRI == 2):
                a(f'buffer_load_dword v{PL+npl}, v4, {SRD}, s20 offen sc1'); npl += 1
        a(f's_cmp_eq_u32 s19, {NSTEPS-1}')
        a(f's_cbranch_scc1 {L("last")}')
        a(f's_add_u32 s22, s20, {PX}')
        a(f's_add_u32 s34, s20, {PX + 4096}')
        a(f's_add_u32 s36, s20, {PM}')
        if PROT:
            for c in range(8): a(f's_add_u32 s{64+c}, s{64+c}, {EXCH_B}')
        a('s_mov_b32 s37, 0')
        for r in range(4): a(f'v_mov_b32 v{LO+r}, 0')
        if STAMPS and not VST:
            a('s_waitcnt vmcnt(0)')
            stamp(a, 7)
        if VSM and B2_POS < 0:
            a('s_waitcnt lgkmcnt(0)')
            for r in range(ACC, ACC + 4 * ntile): a(f'v_mov_b32 v{r}, 0')
            a('s_barrier')
            for k in range(4): a(f'ds_read_b128 v[{YT+4*k}:{YT+4*k+3}], v2 offset:{YL + w*4096 + k*1024}')
            stamp(a, 3)
        if FIN_SLEEP: a(f's_sleep {FIN_SLEEP}')
        if PRI == 1 and w == 1:
            a('s_barrier')
        else: flagpoll(a, 4, 's20', PL, L('fw'), ABORT, PD_V, PG_V, npl, lanes=16)
        if PRI == 2 and w == 1: a.nop(W1D)
        if PDL and w == 0:
            for k in range(3):
                a(f's_cmp_lt_u32 s17, {4*(k+1)}')
                a(f's_cbranch_scc1 {L("pd")}')
                a.nop(PDL)
            a.label(L('pd'))
        stamp(a, 4)
        a('s_waitcnt lgkmcnt(0)')
        if VSM:
            pl = PLAIN_P and st == ''
            def pld(c, sc):
                if FAKE5 and w == 1:
                    a('s_mov_b64 exec, 1')
                    a(f'buffer_load_dwordx4 v[{pr(c)}:{pr(c)+3}], v2, {SRD}, s20 offen')
                    a('s_mov_b64 exec, -1'); return
                if PROT and c < 8:
                    a(f'buffer_load_dwordx4 v[{pr(c)}:{pr(c)+3}], v{5 if PL2 else 2}, {SRD}, s{64+c} offen' + (' sc1' if sc else '')); return
                so = ('s22', 's34', 's36')[c // 4]
                a(f'buffer_load_dwordx4 v[{pr(c)}:{pr(c)+3}], v{5 if PL2 and c < 8 else 2}, {SRD}, {so} offen offset:{(c & 3)*1024}' + (' sc1' if sc else ''))
            def psm(c):
                B_ = VOR + 8 * c if c < 8 else YT + 8 * (c - 8)
                a(f'v_smfmac_f32_16x16x64_bf16 v[{LO}:{LO+3}], v[{pr(c)}:{pr(c)+3}], v[{B_}:{B_+7}], v{0 if PL2 and not TIN else 3}')
            zr = list(range(ACC, ACC + 4 * ntile)) if B2_POS >= 0 and not V5 and not PRI else []
            q0 = []
            for c in range(NPP):
                pld(c, not pl); q0.append(c)
                if w == 1 and c == F2X:
                    if F2XD: a.nop(F2XD)
                    q0.append('f')
                    a('s_sub_u32 s23, s21, 4')
                    exec_lo(a, R2)
                    a(f'buffer_store_dword v2, v7, {SRD}, s23 offen {st}')
                    a('s_mov_b64 exec, -1')
                if c == (F2L, F2M)[w]:
                    q0.append('f')
                    exec_lo(a, R2)
                    a(f'buffer_store_dword v2, v7, {SRD}, s21 offen {st}')
                    a('s_mov_b64 exec, -1')
                for _ in range(VZ):
                    if zr: a(f'v_mov_b32 v{zr.pop(0)}, 0')
                if PRI and w == 1 and W1G: a.nop(W1G)
            issued = NPP; nst = 0; q = q0
            if PRI == 2 and w == 0 and F2PRE >= 0:
                a.nop(F2PRE)
                q.append('f')
                exec_lo(a, R2)
                a(f'buffer_store_dword v2, v7, {SRD}, s21 offen {st}')
                a('s_mov_b64 exec, -1')
            if VST: stamp(a, 7)
            for c in range(10):
                if c == (0 if PRI and w == 1 else B2_POS):
                    if PRI == 1 and w == 0 and F2PRE >= 0:
                        a.nop(F2PRE)
                        q.append('f')
                        exec_lo(a, R2)
                        a(f'buffer_store_dword v2, v7, {SRD}, s21 offen {st}')
                        a('s_mov_b64 exec, -1')
                    if not (PRI == 1 and w == 1): a('s_barrier')
                    for k in range(4): a(f'ds_read_b128 v[{YT+4*k}:{YT+4*k+3}], v2 offset:{YL + w*4096 + k*1024}')
                    stamp(a, 3)
                    if PRI and w == 0 and F2_POS < 0:
                        a.nop(4 * (F2_POS + 5))
                        q.append('f')
                        exec_lo(a, R2)
                        a(f'buffer_store_dword v2, v7, {SRD}, s21 offen {st}')
                        a('s_mov_b64 exec, -1')
                if c == 0 and ECP:
                    a.label(L('pl')); cke = Checker(a, CK)
                a(f's_waitcnt vmcnt({len(q) - 1 - q.index(c)})' + (' lgkmcnt(0)' if c == 8 else ''))
                if c == 0: stamp(a, 5)
                if VST and c in (3, 6, 9): stamp(a, c // 3)
                psm(c)
                if c < ECP:
                    cke.add(pr(c)); cke.drain()
                    if c == ECP - 1: a(f'v_cmp_eq_u32 vcc, -1, v{CK}')
                if ECP and c == F2_POS: a(f's_cbranch_vccnz {L("re")}')
                if (F2L, F2M)[w] < 0 and (w == 1 or F2X < 0) and c == (F2B if PRI and w == 1 else F2_POS if F2PRE < 0 else 99) and (not F2ONE or w == F2ONE - 1):
                    q.append('f')
                    exec_lo(a, R2)
                    a(f'buffer_store_dword v2, v7, {SRD}, s21 offen {st}')
                    a('s_mov_b64 exec, -1')
                    nst = 1
                if issued < 10:
                    pld(issued, not pl); q.append(issued); issued += 1
                for _ in range(2):
                    if zr: a(f'v_mov_b32 v{zr.pop(0)}, 0')
            a.label(L('ep'))
            while zr: a(f'v_mov_b32 v{zr.pop(0)}, 0')
            if PL2:
                a(f'v_add_f32 v{HI}, v{LO}, v{LO+1}')
                a(f'v_add_f32 v{HI+1}, v{LO+2}, v{LO+3}')
            else:
                a(f'v_permlane32_swap_b32 v{LO}, v{LO+2}')
                a(f'v_permlane32_swap_b32 v{LO+1}, v{LO+3}')
                a(f'v_add_f32 v{HI}, v{LO}, v{LO+2}')
                a(f'v_add_f32 v{HI+1}, v{LO+1}, v{LO+3}')
            a(f'v_cmp_u_f32 vcc, v{HI}, v{HI+1}')
            a(f'v_mov_b32_dpp v{HI+2}, v{HI} row_ror:8 {D}')
            a(f'v_mov_b32_dpp v{HI}, v{HI+1} row_ror:8 row_mask:0xf bank_mask:0xc')
            a(f's_cbranch_vccnz {L("rp")}')
            a(f'v_mov_b32_dpp v{HI+1}, v{HI+2} quad_perm:[0,1,2,3] row_mask:0xf bank_mask:0x3')
            a(f'v_cvt_pk_bf16_f32 v{HI}, v{HI}, v{HI+1}')
            a.label(L('pc'))
            if w == 1: a('s_mov_b64 exec, s[26:27]')
            a(f'buffer_store_dword v{HI}, v1, {SRD}, s21 offen {st}')
        else:
            pl = PLAIN_P and st == ''
            if not pl: a.label(L('lp'))
            for c in range(10):
                so = ('s22', 's34', 's36')[c // 4]
                a(f'buffer_load_dwordx4 v[{pr(c)}:{pr(c)+3}], v5, {SRD}, {so} offen offset:{(c & 3)*1024}' + ('' if pl else ' sc1'))
                for r in range(ACC + 4 * c, min(ACC + 4 * c + 4, ACC + 4 * ntile)): a(f'v_mov_b32 v{r}, 0')
            if pl: a.label(L('lp'))
            ck = Checker(a, CK)
            nst = 0
            for c in range(10):
                if c == B2_POS:
                    a('s_cmp_lg_u32 s37, 0')
                    a(f's_cbranch_scc1 {L("nb2")}')
                    a('s_waitcnt lgkmcnt(0)')
                    a('s_barrier')
                    for k in range(4): a(f'ds_read_b128 v[{YT+4*k}:{YT+4*k+3}], v2 offset:{YL + w*4096 + k*1024}')
                    a.label(L('nb2'))
                    stamp(a, 3)
                a(f's_waitcnt vmcnt({9-c+nst})' + (' lgkmcnt(0)' if c == 8 else ''))
                if c < EC_P:
                    a.label(L(f'e{c}'))
                    r = pr(c)
                    a(f'v_max3_u32 v{PL}, v{r}, v{r+1}, v{r+2}')
                    a(f'v_max_u32 v{PL}, v{PL}, v{r+3}')
                    a(f'v_cmp_eq_u32 vcc, -1, v{PL}')
                    a(f's_cbranch_vccnz {L(f"er{c}")}')
                if c == 0: stamp(a, 5)
                if c == F2_POS:
                    exec_lo(a, R2)
                    a(f'buffer_store_dword v2, v7, {SRD}, s21 offen {st}')
                    a('s_mov_b64 exec, -1')
                    nst = 1
                if c >= EC_P: ck.add(pr(c))
                B_ = f'v[{pr(c)}:{pr(c)+3}]'
                for hi, acc in ((1, HI), (0, LO)):
                    A_ = VOR + 4 * (2 * c + hi) if c < 8 else YT + 4 * (2 * (c - 8) + hi)
                    a(f'v_mfma_f32_16x16x32_bf16 v[{acc}:{acc+3}], v[{A_}:{A_+3}], {B_}, ' + ('0' if c == 0 else f'v[{acc}:{acc+3}]'))
                    ck.emit()
            ck.drain()
            a(f'v_cmp_eq_u32 vcc, -1, v{CK}')
            for r in range(4): a(f'v_add_f32_dpp v{LO+r}, v{HI+r}, v{LO+r} row_ror:8 {D}')
            a(f's_cbranch_vccnz {L("rp")}')
            a(f'v_cvt_pk_bf16_f32 v{HI}, v{LO}, v{LO+1}')
            a(f'v_cvt_pk_bf16_f32 v{HI+1}, v{LO+2}, v{LO+3}')
            a(f'v_min_u32 v{HI}, -2, v{HI}')
            a(f'v_min_u32 v{HI+1}, -2, v{HI+1}')
            a('s_mov_b64 exec, s[26:27]')
            a(f'buffer_store_dwordx2 v[{HI}:{HI+1}], v1, {SRD}, s21 offen {st}')
        if T2SRV:
            a(f's_cmp_lg_u32 s19, {NSTEPS-2}')
            a(f's_cbranch_scc1 {L("nl")}')
            a(f's_mov_b32 s22, {MEMG_OFF + (NSTEPS-1)*7*KB}')
            if VSM: a(f'buffer_store_dword v{HI}, v1, {SRD}, s22 offen sc1')
            else: a(f'buffer_store_dwordx2 v[{HI}:{HI+1}], v1, {SRD}, s22 offen sc1')
            a('s_mov_b64 exec, -1')
            a(f's_branch {tag}_done')
            a.label(L('nl'))
        a('s_mov_b64 exec, -1')
        if S0 and w == 1:
            a('s_cmp_lg_u32 s19, 0')
            a(f's_cbranch_scc1 {L("s0")}')
            a(f'v_add_u32 v7, {F2 - F1 - 512}, v7')
            a(f'v_lshl_add_u32 v7, v2, 3, v7')
            exec_lo(a, R2)
            a(f'buffer_store_dword v2, v7, {SRD}, s21 offen {st}')
            a(f'buffer_store_dword v2, v7, {SRD}, s23 offen {st}')
            a('s_mov_b64 exec, -1')
            a.label(L('s0'))
        if SLOW_FIRST: a('s_barrier')
        stamp(a, 6)
        if not NOBULK: a(f's_add_u32 s25, s25, {GSH_B}')
        stamp_flush(a, 4 + w, 8, L('sf'), PL)
    else:
        STG = [76, 84, 92]; TP = 100
        TPS = [100, 104, 108, 4]
        t2st = [[f'buffer_store_dwordx4 v[{TPS[k]}:{TPS[k]+3}], v2, {SRD}, s24 offen offset:{k*1024} sc1'] for k in range(4)]
        t2st[-1].append(f's_add_u32 s24, s24, {8*KB}')
        t2fl = ['s_mov_b64 exec, 1', f'buffer_store_dword v117, v2, {SRD}, s34 offen sc1', 's_mov_b64 exec, -1', 's_add_u32 s34, s34, 8']
        def emit(gs):
            for g_ in gs:
                for x in g_: a(x)
        myks = [0, 1, 2, 3] if w == 2 else [4, 5, 6]
        oth = [k for k in range(7) if k not in myks]
        def mload():
            for ks in myks:
                a(f'buffer_load_dwordx4 v[{M+4*ks}:{M+4*ks+3}], v2, {SRD}, {"s20" if ks < 4 else "s23"} offen offset:{(ks & 3) * 1024} sc1')
        if HLP_SLEEP: a(f's_sleep {HLP_SLEEP}')
        flagpoll(a, 119, 's20', 76, L('fp'), ABORT, PD_H, PG_H, lanes=32)
        stamp(a, 0)
        if VA_DELAY: a.nop(VA_DELAY if w == 2 else VB_DELAY)
        mload()
        if PUBLISH and PUB_EARLY == 1: emit([t2fl] + t2st)
        if not SLOW_FIRST: a('s_barrier')
        if MGL and w == 2:
            emit([['s_mov_b64 exec, s[26:27]', f'buffer_store_dwordx4 v[108:111], v2, {SRD}, s37 offen sc1', 's_mov_b64 exec, -1', 's_waitcnt vmcnt(1)', f's_branch {L("ld3")}']])
        if PUBLISH and PUB_EARLY == 2: emit([t2fl] + t2st)
        if PUBLISH and PUB_EARLY:
            a('s_waitcnt vmcnt(5)')
            a(f's_branch {L("ld2")}')
        a.label(L('ld'))
        a('s_waitcnt vmcnt(0)')
        if PUBLISH and PUB_EARLY: a.label(L('ld2'))
        if MGL and w == 2: a.label(L('ld3'))
        ck = Checker(a, 84)
        for ks in myks: ck.add(M + 4 * ks)
        ck.drain()
        a('v_cmp_eq_u32 vcc, -1, v84')
        for ks in myks: a(f'ds_write_b128 v2, v[{M+4*ks}:{M+4*ks+3}] offset:{ML + ks*1024}')
        a(f's_cbranch_vccnz {L("retry")}')
        a('s_waitcnt lgkmcnt(0)')
        a('s_barrier')
        stamp(a, 1)
        for ks in (range(7) if TIN else oth): a(f'ds_read_b128 v[{M+4*ks}:{M+4*ks+3}], v{VP} offset:{ML + ks*1024}')
        if w == 2: a(f'ds_read_b128 v[{108 if MGL else 92}:{111 if MGL else 95}], v0')
        if VAL_TOUCH:
            a(f'buffer_load_dword v4, v118, {SRD}, {"s20" if w == 2 else "s39"} offen sc1')
            a(f's_add_u32 s39, s39, {XSEG_B}')
        if SELF_POISON:
            for r in range(76, 80): a(f'v_mov_b32 v{r}, -1')
            a('s_add_u32 s22, s21, s38')
            if w == 3: a('s_mov_b64 exec, 0x1f')
            a(f'buffer_store_dwordx4 v[76:79], v2, {SRD}, s22 offen {st}')
            if w == 3: a('s_mov_b64 exec, -1')
        if PUBLISH and not PUB_EARLY and not SLOW_FIRST and not T2SRV: emit([t2fl] + t2st)
        a('s_waitcnt lgkmcnt(0)')
        mg = ['s_mov_b64 exec, s[26:27]', f'buffer_store_dwordx4 v[92:95], v2, {SRD}, s36 offen sc1', 's_mov_b64 exec, -1', f's_add_u32 s36, s36, {7*KB}']
        if w == 2 and MGL:
            a('s_mov_b32 s37, s36')
            a(f's_add_u32 s36, s36, {7*KB}')
            a(f's_cmp_lg_u32 s19, {NSTEPS-2}')
            a(f's_cbranch_scc1 {L("nmg")}')
            emit([['s_mov_b64 exec, s[26:27]', f'buffer_store_dwordx4 v[108:111], v2, {SRD}, s37 offen sc1', 's_mov_b64 exec, -1']])
            a.label(L('nmg'))
        elif w == 2 and PUBLISH:
            if SLOW_FIRST:
                a(f's_cmp_lg_u32 s19, {NSTEPS-1}')
                a(f's_cbranch_scc1 {L("nmg")}')
            emit([mg])
            if SLOW_FIRST: a.label(L('nmg'))
        if T2SRV:
            a(f's_cmp_eq_u32 s19, {NSTEPS-1}')
            a(f's_cbranch_scc1 {tag}_done')
        lu = [(7, ks) for ks in range(7)]
        ru = [(t_, ks) for t_ in (6, 0, 1, 2, 3, 4, 5) for ks in range(7)]
        def wr(j):
            t_, ks = lu[j]; b = STG[j % 3]; off = (t_ - 7) * TILE_B + ks * UNIT
            return [f'ds_read_b128 v[{b}:{b+3}], v1 offset:{off}', f'ds_read_b128 v[{b+4}:{b+7}], v1 offset:{off+1024}']
        seq = []
        for j, (t_, ks) in enumerate(lu):
            pre = (wr(0) + wr(1) if j == 0 else []) + (wr(j + 2) if j + 2 < len(lu) else [])
            for k in range(2):
                r_ = ru.pop(0); seq.append((r_[0], S(*r_), pre if k == 0 else []))
            b = STG[j % 3]
            seq.append((t_, S(t_, ks, f'v[{b}:{b+7}]'), [f's_waitcnt lgkmcnt({2 * min(2, len(lu) - 1 - j)})']))
        for r_ in ru: seq.append((r_[0], S(*r_), []))
        if T2DH: a(f's_sleep {T2DH}')
        run(seq)
        stamp(a, 2)
        a('s_waitcnt lgkmcnt(0)')
        a('s_barrier')
        if KS: a('s_barrier')
        for k in range(4):
            q = 2 * (w - 2) + (k >> 1); tp = k & 1
            if not T2SRV: a(f'ds_read_b128 v[{TPS[k]}:{TPS[k]+3}], v2 offset:{YL + tp*4096 + q*1024}')
        a(f's_cmp_eq_u32 s19, {NSTEPS-2 if T2SRV else NSTEPS-1}')
        a(f's_cbranch_scc1 {tag + "_done" if T2SRV else L("last")}')
        if SLOW_FIRST:
            if w == 2: a(f'ds_read_b128 v[92:95], v0')
            a('s_waitcnt vmcnt(0) lgkmcnt(0)')
            a('s_barrier')
            if PUBLISH: emit([t2fl] + t2st + ([mg] if w == 2 else []))
        else:
            a('s_waitcnt vmcnt(0) lgkmcnt(0)')
        stamp(a, 3)
        stamp_flush(a, 4 + w, 4, L('sf'), 76)
    a('s_add_u32 s19, s19, 1')
    a('s_mov_b32 s20, s21')
    a.flush()
    a(f's_branch {L("loop")}')
    if fin:
        a.label(L('last'))
        a('s_waitcnt lgkmcnt(0)')
        a('s_barrier')
        a(f's_branch {tag}_done')
        for c in range(EC_P):
            a.label(L(f'er{c}'))
            so = ('s22', 's34', 's36')[c // 4]
            a(f'buffer_load_dwordx4 v[{pr(c)}:{pr(c)+3}], v5, {SRD}, {so} offen offset:{(c & 3)*1024} sc1')
            a('s_waitcnt vmcnt(0)')
            a('s_add_u32 s31, s31, 0x1000000')
            spin(a, L(f'e{c}'), ABORT)
        if ECP:
            assert NPP == 10 and B2_POS == 0 and ECP <= F2_POS
            a.label(L('re'))
            for c in range(10): pld(c, True)
            a.nop(6)
            for r in range(4): a(f'v_mov_b32 v{LO+r}, 0')
            a('s_add_u32 s31, s31, 0x1000000')
            spin(a, L('pl'), ABORT)
        a.label(L('rp'))
        if VSM:
            a('s_cmp_eq_u32 s37, 0')
            a(f's_cbranch_scc1 {L("rv")}')
            a(f'v_mov_b32_dpp v{HI+1}, v{HI+2} quad_perm:[0,1,2,3] row_mask:0xf bank_mask:0x3')
            a(f'v_cvt_pk_bf16_f32 v{HI}, v{HI}, v{HI+1}')
            a(f'v_min_u32 v{HI}, -2, v{HI}')
            a(f's_branch {L("pc")}')
            a.label(L('rv'))
            for c in range(10): pld(c, True)
            a('s_waitcnt vmcnt(0)')
            ck2 = Checker(a, CK)
            for c in range(10): ck2.add(pr(c))
            ck2.drain()
            a(f'v_cmp_eq_u32 vcc, -1, v{CK}')
            a(f's_cbranch_vccz {L("rk")}')
            spin(a, L('rv'), ABORT)
            a.label(L('rk'))
            a('s_mov_b32 s37, 1')
            a('s_add_u32 s31, s31, 0x10000')
            for r in range(4): a(f'v_mov_b32 v{LO+r}, 0')
            for c in range(10): psm(c)
            a.flush()
            a(f's_branch {L("ep")}')
            return
        a.nop(8)
        if PLAIN_P and st == '':
            for c in range(10):
                so = ('s22', 's34', 's36')[c // 4]
                a(f'buffer_load_dwordx4 v[{pr(c)}:{pr(c)+3}], v5, {SRD}, {so} offen offset:{(c & 3)*1024} sc1')
        a('s_mov_b32 s37, 1')
        a('s_add_u32 s31, s31, 0x10000')
        spin(a, L('lp'), ABORT)
    else:
        a.label(L('retry'))
        a('s_waitcnt lgkmcnt(0)')
        mload()
        a('s_add_u32 s31, s31, 1')
        spin(a, L('ld'), ABORT)
        a.label(L('last'))
        a('s_waitcnt lgkmcnt(0)')
        emit(t2st)
        a('s_waitcnt vmcnt(0)')
        emit([t2fl, t2fl])
        a(f's_branch {tag}_done')

def init_value(a, w, p):
    fin = w < 2
    t0, ntile, nreg = vtiles(w)
    YA = 60 if fin else 112
    a(f's_mul_i32 s31, s17, {CUW_B}')
    a(f's_add_u32 s31, s31, {WF_B}')
    units = [((t0 + ti) * TILE_B + ks * UNIT, vwreg(w, ti, ks)) for ti in range(nreg) for ks in range(7)]
    def dep(ts):
        A_ = [t_ for t_ in ts if t_ < 16]; B_ = [bpack(16 * t_ + n)[0] for t_ in ts if t_ >= 16 for n in (0, 15)]
        BDEP((min(A_), max(A_)) if A_ else None, (min(B_), max(B_)) if B_ else None)
    dep(range(t0, t0 + nreg))
    load_units(a, units, 's31')
    if fin: dep([vtiles(w + 2)[0] + 7])
    if fin:
        th = vtiles(w + 2)[0] + 7
        for f in range(14):
            if f % 4 == 0:
                a(f's_mov_b32 m0, {WL + 3*w*TILE_B + f*1024}')
                a(f's_add_u32 s22, s31, {th*TILE_B + f*1024}')
            a(f'buffer_load_dwordx4 v2, {SRD}, s22 offen offset:{(f & 3)*1024}' + (' sc1' if MERGE else '') + ' lds')
            if f % 16 == 15: a('s_waitcnt vmcnt(24)')
    a('v_mov_b32 v72, v116')
    a('v_mov_b32 v73, v117')
    a('v_lshrrev_b32 v65, 1, v72')
    a('v_and_b32 v66, 1, v72')
    for pp in range(ntile if TIN else ntile // 2):
        assert TIN
        if t0 + pp < 16:
            a(f'v_mov_b32 v68, {t0 + pp}\nv_mov_b32 v69, v73\nv_mov_b32 v70, 0')
        else:
            a(f'v_add_u32 v67, {16 * (t0 + pp - 16)}, v73')
            a('v_mul_u32_u24 v68, 5462, v67')
            a('v_lshrrev_b32 v68, 16, v68')
            a('v_mul_u32_u24 v69, 12, v68')
            a('v_sub_u32 v69, v67, v69')
            a('v_mov_b32 v70, 1')
        if not POSB:
            a('v_and_b32 v71, 1, v69')
            a('v_lshrrev_b32 v69, 1, v69')
            a('v_lshl_add_u32 v69, v71, 3, v69')
        else:
            a('v_cmp_lt_u32 vcc, 5, v69')
            a('v_lshlrev_b32 v71, 1, v70')
            a('v_cndmask_b32 v71, 0, v71, vcc')
            a('v_add_u32 v69, v69, v71')
        a('v_lshlrev_b32 v71, 12, v70')
        if PL2:
            a('v_lshrrev_b32 v70, 1, v68')
            a('v_lshl_add_u32 v71, v70, 9, v71')
            a('v_and_b32 v70, 1, v68')
            a('v_lshl_add_u32 v71, v70, 2, v71')
            a('v_lshl_add_u32 v71, v69, 4, v71')
            if TIN:
                a('v_lshl_add_u32 v71, v65, 8, v71')
                a(f'v_lshl_add_u32 v{yaN(fin)[pp]}, v66, 3, v71')
            else: a(f'v_lshl_add_u32 v{YA+pp}, v66, 8, v71')
            continue
        a('v_lshl_add_u32 v71, v68, 8, v71')
        a('v_lshl_add_u32 v71, v69, 4, v71')
        a(f'v_lshl_add_u32 v{YA+pp}, v66, 3, v71')
    if fin:
        a('v_and_b32 v0, 31, v1')
        a('v_lshlrev_b32 v0, 2, v0')
        a(f'v_add_u32 v0, {F2}, v0')
        a(f'v_min_u32 v4, {NH - 1}, v73')
        a('v_lshlrev_b32 v4, 2, v4')
        if R1 == 32:
            a('s_lshl_b32 s22, s17, 1')
            a(f's_add_u32 s22, s22, {w}')
        else: a(f's_and_b32 s22, s17, {R1-1}')
        a('s_lshl_b32 s22, s22, 7')
        a(f's_add_u32 s22, s22, {F1}')
        a(f'v_add_u32 v4, s22, v4')
        a('v_and_b32 v64, 7, v73')
        a('v_lshlrev_b32 v5, 4, v64')
        a('v_lshl_add_u32 v5, v72, 7, v5')
        a('v_lshrrev_b32 v65, 3, v73')
        a('v_lshl_add_u32 v5, v65, 9, v5')
        a('s_lshl_b32 s22, s17, 3')
        if S0 and w == 1:
            a(f's_add_u32 s22, s22, {F1 + 512 + 4}')
            a('v_mov_b32 v7, s22')
        else:
            a(f's_add_u32 s22, s22, {F2 + 4*w}')
            a('v_lshl_add_u32 v7, v2, 3, s22')
        a(f'v_add_u32 v65, {16*w}, v73')
        a('v_min_u32 v65, 27, v65')
        a('v_mad_u32_u24 v65, v72, 28, v65')
        a('v_lshlrev_b32 v6, 4, v65')
        a('s_lshr_b32 s22, s17, 1')
        a('s_mul_i32 s22, s22, 7')
        a('s_and_b32 s34, s17, 1')
        a('s_lshl_b32 s35, s34, 2')
        a('v_add_u32 v70, s35, v72')
        a('v_mov_b32 v71, s34')
        a(f'v_mov_b32 v69, {w}')
        a('v_cmp_eq_u32 vcc, 3, v72')
        a('v_cndmask_b32 v70, v70, v72, vcc')
        a('v_cndmask_b32 v69, v69, v71, vcc')
        a('v_add_u32 v70, s22, v70')
        a('v_lshrrev_b32 v68, 1, v70')
        a('v_lshlrev_b32 v68, 8, v68')
        a('v_lshl_add_u32 v68, v69, 7, v68')
        a('v_and_b32 v69, 1, v70')
        a('v_lshl_add_u32 v68, v69, 3, v68')
        a('v_lshl_add_u32 v1, v64, 4, v68')
        a('v_cmp_gt_u32 s[26:27], 8, v73')
        if w == 1:
            a('v_cmp_gt_u32 vcc, 3, v72')
            a('s_and_b64 s[26:27], s[26:27], vcc')
        if VSM:
            a('v_lshrrev_b32 v65, 3, v73')
            if not POSB:
                a(f'v_min_u32 v66, {5 if w else 7}, v64')
                a('v_lshl_add_u32 v66, v66, 1, v65')
                a(f'v_mad_u32_u24 v66, v72, {12 if w else 16}, v66')
                a('v_lshlrev_b32 v66, 4, v66')
                a(f'v_add_u32 v6, {1024*w}, v66')
            elif w == 0: a('v_mov_b32 v6, v2')
            else:
                a('v_min_u32 v66, 5, v64')
                a('v_mad_u32_u24 v66, v65, 6, v66')
                a('v_mad_u32_u24 v66, v72, 12, v66')
                a('v_lshlrev_b32 v66, 4, v66')
                a('v_add_u32 v6, 1024, v66')
            a(f's_mul_i32 s22, s17, {12 if w else 16}')
            a(f's_add_u32 s22, s22, {256*w}')
            a('v_lshl_add_u32 v70, v64, 1, s22')
            a('v_lshrrev_b32 v68, 4, v70')
            a('v_lshlrev_b32 v68, 8, v68')
            a('v_bfe_u32 v69, v70, 1, 1')
            a('v_lshl_add_u32 v68, v69, 7, v68')
            a('v_bfe_u32 v69, v70, 2, 2')
            a('v_lshl_add_u32 v68, v69, 2, v68')
            a('v_and_b32 v69, 1, v72')
            a('v_lshl_add_u32 v65, v69, 2, v65')
            a('v_lshrrev_b32 v69, 1, v72')
            a('v_lshl_add_u32 v65, v69, 1, v65')
            if PL2:
                a('v_lshrrev_b32 v65, 3, v73')
                a('v_lshl_add_u32 v65, v72, 1, v65')
                a('v_lshrrev_b32 v5, 1, v72')
                a('v_lshlrev_b32 v5, 9, v5')
                a('v_lshrrev_b32 v69, 2, v73')
                a('v_lshl_add_u32 v5, v69, 7, v5')
                a('v_and_b32 v69, 1, v72')
                a('v_lshl_add_u32 v5, v69, 6, v5')
                a('v_and_b32 v69, 3, v73')
                a('v_lshl_add_u32 v5, v69, 4, v5')
                a('v_and_b32 v69, 1, v73')
                a('v_mul_u32_u24 v69, 0xaaaa, v69')
                a('v_add_u32 v0, 0x4444, v69')
            a('v_lshl_add_u32 v1, v65, 4, v68')
            a('v_cmp_gt_u32 s[26:27], 6, v64')
            for r in range(156, 160): a(f'v_mov_b32 v{r}, 0')
            for k in range(4): a(f'ds_write_b128 v2, v[156:159] offset:{YL + w*4096 + k*1024}')
        a(f's_mul_i32 s22, s17, {64*GSH_B}')
        a(f's_add_u32 s25, s22, {VO_OFF}')
        a('s_lshl_b32 s35, s17, 7')
        a(f's_add_u32 s35, s35, {CNT_OFF + VOC - 2048}')
        a(f's_add_u32 s39, s35, {8*2048}')
        a('s_mov_b32 s38, 0')
        a(f'v_mov_b32 v{VOK}, 0')
        if KS:
            for r in range(64, 144): a(f'v_mov_b32 v{r}, 0')
        if PROT:
            for c in range(8):
                a(f's_add_u32 s22, s17, {c}')
                a('s_and_b32 s22, s22, 7')
                a(f's_mul_i32 s{72+c}, s22, 3584')
                a('s_lshl_b32 s22, s22, 10')
                a(f's_add_u32 s{64+c}, s22, {EXCH_OFF + PX - EXCH_B}')
    else:
        a(f's_mul_i32 s24, s17, {65*8*KB}')
        a(f's_add_u32 s24, s24, {T2_OFF + (w-2)*4096 + (8*KB if SLOW_FIRST else 0)}')
        a('s_mul_i32 s34, s17, 640')
        a(f's_add_u32 s34, s34, {CNT_OFF + T2F + 4*(w-2) + (8 if SLOW_FIRST else 0)}')
        a('s_mul_i32 s36, s17, 448')
        a('v_add_u32 v0, s36, v2')
        a(f'v_add_u32 v0, {ML}, v0')
        a(f's_add_u32 s36, s36, {MEMG_OFF}')
        a(f's_mov_b32 s37, {T2_OFF}')
        a('v_cmp_gt_u32 s[26:27], 28, v1')
        a('v_and_b32 v119, 31, v1')
        a('v_lshlrev_b32 v119, 2, v119')
        if PRI: a(f'v_and_b32 v119, 0x78, v119\nv_or_b32 v119, {4*(w-2)}, v119')
        if F2ONE: a(f'v_and_b32 v119, 0x78, v119\nv_or_b32 v119, {4*(F2ONE-1)}, v119')
        a('s_add_u32 s22, s17, 16')
        a(f's_and_b32 s22, s22, {R2-1}')
        a('s_lshl_b32 s22, s22, 7')
        a(f's_add_u32 s22, s22, {F2}')
        a(f'v_add_u32 v119, s22, v119')
        nl = 10 if w == 2 else 14
        a(f'v_min_u32 v118, {nl-1}, v1')
        a(f's_mul_i32 s22, s17, {nl}')
        a('v_add_u32 v118, s22, v118')
        a('v_lshlrev_b32 v118, 7, v118')
        a(f'v_add_u32 v118, {2*EXCH_B if w == 2 else 2*XSEG_B}, v118')
        a(f's_mov_b32 s39, {XF_OFF}')
        a(f'v_add_u32 v1, {WL + 3*(w-2)*TILE_B}, v2')
        a('v_mov_b32 v117, 1')
        a('s_mul_i32 s38, s17, 1104')
        a(f's_add_u32 s38, s38, {EXCH_B + (w-2)*1024}')
    if TIN:
        vp = 0 if fin else 5
        a('v_bfe_u32 v8, v2, 4, 1')
        a('v_mul_u32_u24 v3, 0xaaaa, v8')
        a('v_add_u32 v3, 0x4444, v3')
        a('v_bfe_u32 v9, v2, 5, 3')
        a('v_lshl_add_u32 v8, v8, 3, v9')
        a('v_and_b32 v9, 0x300, v2')
        a(f'v_lshl_add_u32 v{vp}, v8, 4, v9')

def dbg_wait(a, P, t, abort):
    a('s_mov_b32 s30, 0')
    a.label(P)
    a(f'buffer_load_dword v{t+2}, v{t}, {DBG}, 0 offen sc1')
    a('s_waitcnt vmcnt(0)')
    a(f'v_cmp_ne_u32 vcc, v{t+2}, v{t+1}')
    a(f's_cbranch_vccz {P}_ok')
    a('s_sleep 4')
    a('s_add_u32 s30, s30, 1')
    a(f's_cmp_lt_u32 s30, {SLOW_LIMIT}')
    a(f's_cbranch_scc1 {P}')
    a(f's_branch {abort}')
    a.label(P + '_ok')

def dep_regs(a, cg_s, t, lane='v1'):
    a(f's_and_b32 s20, {cg_s}, 15')
    a('s_lshr_b32 s21, s20, 1')
    a('s_mul_i32 s21, s21, 56')
    a('s_add_u32 s22, s21, 55')
    a('s_lshr_b32 s21, s21, 6')
    a('s_lshr_b32 s22, s22, 6')
    a('s_add_u32 s21, s21, 24')
    a('s_add_u32 s22, s22, 24')
    a('s_add_u32 s20, s20, 8')
    a(f's_cmp_lt_u32 {cg_s}, 16')
    a('s_cselect_b32 s21, s20, s21')
    a('s_cselect_b32 s22, s20, s22')
    a(f's_cselect_b32 s20, {A_TGT}, {B_TGT}')
    a('s_lshl_b32 s21, s21, 2')
    a('s_lshl_b32 s22, s22, 2')
    a(f'v_mov_b32 v{t}, 124')
    a(f'v_mov_b32 v{t+1}, 128')
    a(f'v_writelane_b32 v{t}, s21, 0')
    a(f'v_writelane_b32 v{t}, s22, 1')
    a(f'v_writelane_b32 v{t+1}, s20, 0')
    a(f'v_writelane_b32 v{t+1}, s20, 1')

def xprep_loop(a, P):
    import prep
    a.label(f'{P}_l')
    a('s_waitcnt vmcnt(0) lgkmcnt(0)')
    a('v_mov_b32 v4, 1')
    a('v_mov_b32 v5, 20')
    wg_atomic(a, f'{P}_el', 's3')
    a('s_cmp_ge_u32 s3, 32')
    a(f's_cbranch_scc1 {P}_d')
    prep.xprep_item(a, P, 's3', st='sc1', signal=DBG)
    a(f's_branch {P}_l')
    a.label(f'{P}_d')

def wg_atomic(a, P, dst):
    a('v_mov_b32 v6, 160000')
    a('s_barrier')
    a('s_cmp_lg_u32 s16, 0')
    a(f's_cbranch_scc1 {P}1')
    a('s_mov_b64 exec, 1')
    a(f'buffer_atomic_add v4, v5, {DBG}, 0 offen sc0')
    a('s_waitcnt vmcnt(0)')
    a('ds_write_b32 v6, v4')
    a('s_waitcnt lgkmcnt(0)')
    a('s_mov_b64 exec, -1')
    a.label(f'{P}1')
    a('s_barrier')
    a('ds_read_b32 v4, v6')
    a('s_waitcnt lgkmcnt(0)')
    a(f'v_readfirstlane_b32 {dst}, v4')

def staff_check(a, okl, mode):
    a('s_mov_b32 s30, 0')
    a('v_mov_b32 v36, 0')
    a.label('ch_chk')
    a(f'buffer_load_dword v37, v36, {DBG}, 0 offen sc1')
    a('s_waitcnt vmcnt(0)')
    a('v_readfirstlane_b32 s22, v37')
    a('s_and_b32 s22, s22, 0xffff')
    a('s_cmp_ge_u32 s22, 32')
    a('s_cbranch_scc1 ch_go_end')
    a('s_sleep 16')
    a('s_add_u32 s30, s30, 1')
    a('s_cmp_lt_u32 s30, 64')
    a('s_cbranch_scc1 ch_chk')
    a.label('ch_go_end')
    a('v_mov_b32 v6, 160016')
    a('v_mov_b32 v4, s22')
    a('s_cmp_lg_u32 s16, 0')
    a('s_cbranch_scc1 ch_dec')
    a('ds_write_b32 v6, v4')
    a('s_waitcnt lgkmcnt(0)')
    a.label('ch_dec')
    a('s_barrier')
    a('ds_read_b32 v4, v6')
    a('s_waitcnt lgkmcnt(0)')
    a('v_readfirstlane_b32 s22, v4')
    a('s_cmp_ge_u32 s22, 32')
    a(f's_cbranch_scc1 {okl}')
    a('v_mov_b32 v4, 0x10001')
    a(f's_mov_b32 s18, {mode}')
    a('s_branch ch_take')

def worker_s4d(a):
    import s4d
    s4d.s4d_setup(a)
    a.label('wk_loop')
    a('v_mov_b32 v4, 1')
    a('v_mov_b32 v5, 4')
    wg_atomic(a, 'wk_el', 's3')
    a('v_and_b32 v4, 15, v1')
    a('s_cmp_ge_u32 s3, 112')
    a('s_cbranch_scc1 wk_done')
    s4d.s4d_item(a, 'wk', 's3')
    a('s_branch wk_loop')
    a.label('wk_done')

def poll_eq(a, P, srd, soff, target, sleep=4):
    a('v_mov_b32 v8, 0')
    a('s_mov_b32 s30, 0')
    a.label(P)
    a(f'buffer_load_dword v9, v8, {srd}, {soff} offen sc1')
    a('s_waitcnt vmcnt(0)')
    a(f'v_cmp_ne_u32 vcc, {target}, v9')
    a(f's_cbranch_vccz {P}_ok')
    a(f's_sleep {sleep}')
    a('s_add_u32 s30, s30, 1')
    a(f's_cmp_lt_u32 s30, {SLOW_LIMIT}')
    a(f's_cbranch_scc1 {P}')
    a('s_branch cA_abort')
    a.label(P + '_ok')
def flag_wait(a, P):
    a('s_cmp_lg_u32 s97, 0')
    a(f's_cbranch_scc1 {P}_sk')
    a('s_movk_i32 s20, 128')
    poll_eq(a, P, DBG, 's20', 1)
    a('s_mov_b32 s97, 1')
    a.label(P + '_sk')
def ac_wait(a, P):
    a('s_lshl_b32 s20, s17, 7')
    a(f's_add_u32 s20, s20, {CNT_OFF + AC}')
    poll_eq(a, P, SRD, 's20', 7, sleep=6)

def worker_all(a):
    import s4d, gemm, tok, prep
    JS = DBG if MERGE else SRD
    JO = 64 if MERGE else CNT_OFF + JOBC
    NA = 112 if MERGE == 1 else 0
    NJ = 1104 + NA
    tok.PEEK = JS
    a('s_load_dwordx2 s[36:37], s[0:1], 112')
    a('s_waitcnt lgkmcnt(0)')
    a(f's_mov_b32 s92, s36\ns_and_b32 s93, s37, 0xffff\ns_mov_b32 s94, {2048*896*2}\ns_mov_b32 s95, 0x20000')
    def ask():
        lb = a.newlabel('ask')
        a('s_cmp_lg_u32 s16, 0')
        a(f's_cbranch_scc1 {lb}')
        a('v_mov_b32 v250, 1')
        a(f'v_mov_b32 v251, {JO}')
        a('s_mov_b64 exec, 1')
        a(f'buffer_atomic_add v250, v251, {JS}, 0 offen sc0')
        a('s_mov_b64 exec, -1')
        a.label(lb)
    a('s_mov_b32 s96, 0')
    if MERGE:
        a('s_cmp_lg_u32 s101, -1')
        a('s_mov_b32 s3, s101')
        a('s_mov_b32 s101, -1')
        a('s_cbranch_scc1 wk_have')
    ask()
    a('s_branch wk_next')
    a.label('wk_loop')
    a('s_waitcnt vmcnt(0) lgkmcnt(0)')
    a('s_cmp_eq_u32 s96, 1')
    a('s_cbranch_scc1 wk_ask')
    a('s_mov_b32 s96, 1')
    staff_check(a, 'wk_ask', 0)
    a.label('wk_ask')
    a('v_readfirstlane_b32 s22, v250')
    a(f's_cmp_ge_u32 s22, {NJ}')
    a('s_cbranch_scc1 wk_next')
    ask()
    a.label('wk_next')
    evlog(a, 9005)
    a('v_mov_b32 v6, 160000')
    a('s_waitcnt vmcnt(0)')
    a('s_barrier')
    a('s_cmp_lg_u32 s16, 0')
    a('s_cbranch_scc1 wk_n1')
    a('s_mov_b64 exec, 1')
    a('ds_write_b32 v6, v250')
    a('s_mov_b64 exec, -1')
    a('s_waitcnt lgkmcnt(0)')
    a.label('wk_n1')
    a('s_barrier')
    a('ds_read_b32 v4, v6')
    a('s_waitcnt lgkmcnt(0)')
    a('v_readfirstlane_b32 s3, v4')
    a.label('wk_have')
    evlog(a, 's3')
    a(f's_cmp_ge_u32 s3, {NJ}')
    a('s_cbranch_scc1 wk_done')
    a('v_mov_b32 v250, 0')
    a(f'v_mov_b32 v251, {JO}')
    a('v_and_b32 v1, 63, v0')
    a('v_lshlrev_b32 v2, 4, v1')
    a('v_lshrrev_b32 v3, 4, v1')
    a('v_and_b32 v4, 15, v1')
    if MERGE == 3: flag_wait(a, 'wk_fw')
    if MERGE == 1:
        a('s_cmp_ge_u32 s3, 112')
        a('s_cbranch_scc1 wk_np')
        prep.prep_item(a, 'wpa', 's3', st='sc1', mode='A')
        flag_wait(a, 'wk_fa')
        a('s_waitcnt vmcnt(0)')
        a('s_barrier')
        a('v_mov_b32 v250, 0')
        a('s_cmp_lg_u32 s16, 0')
        a('s_cbranch_scc1 wk_loop')
        a('s_lshl_b32 s20, s17, 7')
        a(f's_add_u32 s20, s20, {CNT_OFF + AC}')
        a('v_mov_b32 v5, 1')
        a('v_mov_b32 v6, 0')
        a('s_mov_b64 exec, 1')
        a(f'buffer_atomic_add v5, v6, {SRD}, s20 offen')
        a('s_mov_b64 exec, -1')
        a('s_branch wk_loop')
        a.label('wk_np')
        a('s_sub_u32 s3, s3, 112')
        flag_wait(a, 'wk_fw')
    a('s_cmp_ge_u32 s3, 592')
    a('s_cbranch_scc1 wk_tok')
    a('s_cmp_ge_u32 s3, 480')
    a('s_cbranch_scc1 wk_s4d')
    a('s_cmp_ge_u32 s3, 256')
    a('s_cbranch_scc1 wk_full')
    a('s_cmp_ge_u32 s3, 224')
    a('s_cbranch_scc1 wk_srv')
    a('s_cmp_ge_u32 s3, 112')
    a('s_cselect_b32 s18, 1, 0')
    a('s_cselect_b32 s20, 112, 0')
    a('s_sub_u32 s20, s3, s20')
    a('s_and_b32 s17, s20, 15')
    a('s_add_u32 s17, s17, 16')
    a('s_lshr_b32 s34, s20, 4')
    a('s_lshl_b32 s34, s34, 1')
    a('s_add_u32 s35, s34, 2')
    if RB1_DELAY:
        a('s_cmp_eq_u32 s18, 0')
        a('s_cbranch_scc1 wk_gemm')
        for _ in range(RB1_DELAY): a('s_sleep 127')
    a('s_branch wk_gemm')
    a.label('wk_full')
    a('s_sub_u32 s20, s3, 224')
    a('s_and_b32 s17, s20, 15')
    a('s_lshr_b32 s18, s20, 4')
    a('s_cmp_lt_u32 s18, 8')
    a('s_cselect_b32 s21, 16, 0')
    a('s_add_u32 s17, s17, s21')
    a('s_and_b32 s18, s18, 7')
    a('s_mov_b32 s34, 0\ns_mov_b32 s35, 14')
    a.label('wk_gemm')
    if MERGE == 1:
        a('s_cmp_ge_u32 s17, 16')
        a('s_cbranch_scc1 wk_g2')
        ac_wait(a, 'wk_aw')
        a.label('wk_g2')
        evlog(a, 9006)
    gemm.gemm_body(a, 'wg', 's18', 's17', st='sc1', signal=True, ld='sc1' if MERGE else '')
    a('s_branch wk_loop')
    a.label('wk_srv')
    import t2srv
    a('s_and_b32 s18, s3, 15')
    a('s_lshr_b32 s19, s3, 4')
    a('s_and_b32 s19, s19, 1')
    t2srv.t2srv_body(a, 'ws', 's18', 's19', 'cA_abort', ld='sc1' if MERGE else '')
    a('v_mov_b32 v250, 0')
    a('s_branch wk_loop')
    a.label('wk_s4d')
    a('s_sub_u32 s3, s3, 480')
    s4d.s4d_setup(a)
    s4d.s4d_item(a, 'wk', 's3')
    a('s_branch wk_loop')
    a.label('wk_tok')
    a('s_sub_u32 s3, s3, 592')
    a('s_cmp_ge_u32 s3, 512')
    a('s_cbranch_scc1 wk_done')
    a('s_lshr_b32 s17, s3, 3')
    a('s_and_b32 s18, s3, 3')
    a('s_bitcmp1_b32 s3, 2')
    a('s_cbranch_scc1 wk_toko')
    tok.tokp_body(a, 's17', 's18', ld='sc1', st='sc1', sync='wp', ldx='sc1' if MERGE else '')
    a('s_branch wk_loop')
    a.label('wk_toko')
    tok.toko_body(a, 's17', 's18', ld='sc1', sync='wo', OUT='s[92:95]')
    a('s_branch wk_loop')
    a.label('wp_abort')
    a.label('wo_abort')
    a('s_branch cA_abort')
    a.label('wk_done')

def role_tail(a, late=None):
    lane_consts(a)
    a('s_mov_b32 s19, 0')
    a(f's_mov_b32 s20, {EXCH_OFF}')
    if STAMPS: a('s_mov_b32 s63, s17')
    a('s_lshr_b32 s22, s17, 4')
    a('s_lshl_b32 s22, s22, 2')
    a('s_add_u32 s22, s22, s16')
    a('s_and_b32 s17, s17, 15')
    for p in range(8):
        a(f's_cmp_eq_u32 s22, {p}')
        a(f's_cbranch_scc1 ch_init{p}')
    a('s_branch ch_end')
    for p in range(8):
        a.label(f'ch_init{p}')
        if p < 4: init_score(a, p)
        else: init_value(a, p - 4, p)
        if late: late(p)
        a('s_mov_b32 s30, 0')
        a('v_mov_b32 v36, 0')
        a.label(f'ch_md{p}')
        a(f'buffer_load_dword v37, v36, {DBG}, 0 offen sc1')
        a('s_waitcnt vmcnt(0)')
        a('v_readfirstlane_b32 s22, v37')
        a('s_and_b32 s31, s22, 0xffff')
        a('s_cmp_ge_u32 s31, 32')
        a(f's_cbranch_scc1 ch_go{p}')
        a('s_sleep 2')
        a('s_add_u32 s30, s30, 1')
        a(f's_cmp_lt_u32 s30, {SLOW_LIMIT}')
        a(f's_cbranch_scc1 ch_md{p}')
        a('s_branch ch_end')
        a.label(f'ch_go{p}')
        evlog(a, 9003)
        if DIAG: a('s_memtime s[32:33]')
        a('s_mov_b32 s31, 0')
        if p in (4, 5):
            for r in range(36, 60): a(f'v_mov_b32 v{r}, 0')
        a('s_lshr_b32 s22, s22, 16')
        a('s_cmp_lg_u32 s22, 0')
        role = 'sc' if p < 4 else 'va'
        a(f's_cbranch_scc1 cB_{role}{p & 3}_loop')
        a(f's_branch cA_{role}{p & 3}_loop')
    for tag, st in (('cA', ''), ('cB', 'sc1')):
        for w in range(4): gen_score(a, w, st, tag)
        for w in range(4): gen_value(a, w, st, tag)
        tag_end(a, tag)

def tag_end(a, tag):
    a.label(f'{tag}_abort')
    a('v_mov_b32 v4, 0xdead')
    a('v_mov_b32 v5, 16')
    a(f'buffer_store_dword v4, v5, {DBG}, 0 offen')
    a('s_branch ch_end')
    a.label(f'{tag}_done')
    evlog(a, 9004)
    if STAMPS and STAMP_CYC:
        a('s_cmp_lg_u32 s16, 0')
        a('s_cbranch_scc1 ch_end')
        a('s_lshl_b32 s22, s63, 10')
        a(f's_add_u32 s22, s22, {STAMP_OFF + 65536}')
        a('s_mov_b32 s30, 0')
        a('s_mov_b64 exec, 1')
        a.label(f'{tag}_cal')
        a('s_memtime s[40:41]')
        a('s_memrealtime s[42:43]')
        a('s_waitcnt lgkmcnt(0)')
        a('v_mov_b32 v4, s40')
        a('v_mov_b32 v5, s42')
        a(f'buffer_store_dwordx2 v[4:5], off, {SRD}, s22')
        a('s_add_u32 s22, s22, 8')
        a('s_add_u32 s30, s30, 1')
        a('s_cmp_lt_u32 s30, 128')
        a(f's_cbranch_scc1 {tag}_cal')
    if DIAG:
        a('s_memtime s[60:61]')
        a('s_waitcnt lgkmcnt(0)')
        a('s_sub_u32 s60, s60, s32')
        a('v_mov_b32 v4, s60')
        a('v_mov_b32 v5, 8')
        a(f'buffer_store_dword v4, v5, {DBG}, 0 offen')
        a('v_mov_b32 v4, s31')
        a('v_mov_b32 v5, 12')
        a('s_mov_b64 exec, 1')
        a(f'buffer_atomic_add v4, v5, {DBG}, 0 offen')
    a('s_branch ch_end')

def gen_chain_kernel(name='chain_kernel', worker=worker_s4d):
    a = Asm()
    a.raw(kernel_header(name))
    a('s_cmp_ge_u32 s2, 256')
    a('s_cbranch_scc1 ch_end')
    a('s_load_dwordx2 s[4:5], s[0:1], 120')
    a('s_load_dwordx2 s[6:7], s[0:1], 128')
    if CODE_PF: code_prefetch(a, name, 'ch_end', 130000, 60)
    a('s_getreg_b32 s3, hwreg(HW_REG_XCC_ID)')
    a('s_and_b32 s3, s3, 15')
    a('v_lshrrev_b32 v1, 6, v0')
    a('v_readfirstlane_b32 s16, v1')
    a('s_waitcnt lgkmcnt(0)')
    a('s_mov_b32 s8, s6\ns_and_b32 s9, s7, 0xffff\ns_mov_b32 s10, 0x10000000\ns_mov_b32 s11, 0x20000')
    a('s_mov_b32 s12, s4\ns_and_b32 s13, s5, 0xffff\ns_mov_b32 s14, 256\ns_mov_b32 s15, 0x20000')
    if EVLOG:
        a('s_lshl_b32 s100, s2, 2')
        a('s_add_u32 s100, s100, s16')
        a('s_lshl_b32 s100, s100, 8')
        a(f's_add_u32 s100, s100, {EV_OFF}')
    evlog(a, 9000)
    if MERGE:
        import prep
        a('s_mov_b32 s97, 0')
        a('s_mov_b32 s91, s3')
        a('v_and_b32 v1, 63, v0')
        a('v_lshlrev_b32 v2, 4, v1')
        a('v_lshrrev_b32 v3, 4, v1')
        a('v_and_b32 v4, 15, v1')
        a('s_cmp_lg_u32 s16, 0')
        a('s_cbranch_scc1 m_a1')
        a(f's_cmp_eq_u32 s3, {XCD_SEL}')
        a('s_cselect_b32 s20, 0, 64')
        a('v_accvgpr_write_b32 a255, 1')
        a('s_mov_b64 exec, 1')
        a(f'buffer_atomic_add a255, v2, {DBG}, s20 offen sc0')
        a('s_mov_b64 exec, -1')
        a.label('m_a1')
        prep.xall_pre(a, 's2')
        a('s_cmp_ge_u32 s2, 224')
        a('s_cbranch_scc1 m_w')
        prep.prep_item(a, 'mpb', 's2', st='sc1', mode='Bhalf' if MERGE == 1 else 'mix', defer=(MERGE == 3))
        a('s_branch m_e')
        a.label('m_w')
        a('s_waitcnt vmcnt(0)')
        a.label('m_e')
        prep.xall_post(a, 'mpx', 's2', 'sc1', wait=False)
        a('v_mov_b32 v6, 160000')
        a('s_waitcnt vmcnt(0) lgkmcnt(0)')
        a('s_barrier')
        a('s_cmp_lg_u32 s16, 0')
        a('s_cbranch_scc1 m_b1')
        a('v_mov_b32 v4, 1')
        a('v_mov_b32 v5, 96')
        a('v_accvgpr_read_b32 v7, a255')
        a('s_mov_b64 exec, 1')
        a(f'buffer_atomic_add v4, v5, {DBG}, 0 offen sc0')
        a('ds_write_b32 v6, v7')
        a('s_waitcnt lgkmcnt(0)')
        a('s_mov_b64 exec, -1')
        a.label('m_b1')
        a('s_barrier')
        a('ds_read_b32 v7, v6')
        a('s_cmp_lg_u32 s16, 0')
        a('s_cbranch_scc1 m_b2')
        a('s_waitcnt vmcnt(0)')
        a('v_readfirstlane_b32 s20, v4')
        a('s_cmp_lg_u32 s20, 255')
        a('s_cbranch_scc1 m_b2')
        a('v_mov_b32 v4, 1')
        a('v_mov_b32 v5, 128')
        a('s_mov_b64 exec, 1')
        a(f'buffer_store_dword v4, v5, {DBG}, 0 offen sc1')
        a('s_mov_b64 exec, -1')
        a.label('m_b2')
        a('s_waitcnt lgkmcnt(0)')
        a('v_readfirstlane_b32 s101, v7')
        evlog(a, 9001)
        a(f's_cmp_lg_u32 s91, {XCD_SEL}')
        a('s_cbranch_scc1 ch_worker')
        a('s_and_b32 s17, s101, 0xffff')
        a('s_mov_b32 s101, -1')
        a('s_cmp_lt_u32 s17, 32')
        a('s_cbranch_scc1 ch_role')
        a('s_branch ch_worker')
    else:
        a(f's_cmp_lg_u32 s3, {XCD_SEL}')
        a('s_cbranch_scc1 ch_worker')
    a('v_mov_b32 v4, 1')
    a('s_mov_b32 s18, 0')
    a.label('ch_take')
    a('v_mov_b32 v5, 0')
    wg_atomic(a, 'ch_el', 's17')
    a('s_and_b32 s17, s17, 0xffff')
    a('s_cmp_lt_u32 s17, 32')
    a('s_cbranch_scc1 ch_role')
    a('s_cmp_eq_u32 s18, 0')
    a('s_cbranch_scc1 ch_worker')
    a('s_branch ch_end')
    a.label('ch_role')
    if MERGE:
        flag_wait(a, 'ch_fw')
        if MERGE == 1:
            a('s_cmp_ge_u32 s17, 16')
            a('s_cbranch_scc1 ch_r2')
            ac_wait(a, 'ch_aw')
            a.label('ch_r2')
        evlog(a, 9002)
    role_tail(a)
    a.label('ch_worker')
    if worker: worker(a)
    if worker is not worker_all: staff_check(a, 'ch_end', 1)
    a.label('ch_end')
    a('s_endpgm')
    return a

if __name__ == '__main__':
    import sys
    for x in sys.argv[2:]:
        if x == 'stamps': STAMPS = True
        elif '=' in x:
            k, v = x.split('='); globals()[k] = int(v)
    a = gen_chain_kernel()
    out = ['; @launch kernel=chain_kernel grid=(256,1,1) block=(256,1,1) lds=163840',
           '.amdgcn_target "amdgcn-amd-amdhsa--gfx950"', '.text', a.text(), '.section .rodata,"a"', kernel_desc('chain_kernel')]
    open(sys.argv[1], 'w').write('\n'.join(out) + '\n')
    print('instructions', a.count)
```

```python
from asmlib import *
from layout import *
WS = 's[8:11]'
PB = 28 * KB

def gemm_xpre(a, rb_s, NT=4, va=5):
    a(f's_lshl_b32 s20, {rb_s}, 2')
    a('s_add_u32 s20, s20, s16')
    a(f's_mul_i32 s21, s20, {16*896*NT}')
    a(f'v_mul_u32_u24 v{va}, 896, v4')
    a(f'v_lshl_add_u32 v{va}, v3, 4, v{va}')
    for j in range(NT):
        if j: a(f's_add_u32 s21, s21, {16*896}')
        for kk in range(14):
            f = 14 * j + kk
            a(f'buffer_load_dwordx4 a[{4*f}:{4*f+3}], v{va}, s[52:55], s21 offen offset:{kk*64}')

def gemm_body(a, P, rb_s, cg_s, st='', signal=False, ld='', xpre=None, NT=4):
    a(f's_lshl_b32 s20, {rb_s}, {4 if NT == 4 else 3}')
    a(f's_lshl_b32 s21, s16, {2 if NT == 4 else 1}')
    a('s_add_u32 s20, s20, s21')
    a(f's_mul_i32 s21, s20, {14*KB}')
    a(f's_add_u32 s21, s21, {XF_OFF}')
    if xpre:
        a(f's_cmp_lg_u32 {xpre}, 0')
        a(f's_cbranch_scc1 {P}_xp')
    for f in range(14 * NT):
        if f % 4 == 0: a(f's_add_u32 s22, s21, {f*1024}')
        a(f'buffer_load_dwordx4 a[{4*f}:{4*f+3}], v2, {WS}, s22 offen offset:{(f & 3)*1024} {ld}')
    if xpre: a.label(f'{P}_xp')
    a('s_waitcnt vmcnt(40)')
    a(f's_mul_i32 s23, {cg_s}, {CUW_B}')
    a('s_and_b32 s22, s16, 1')
    a('s_mul_i32 s22, s22, 7168')
    a('s_add_u32 s23, s23, s22')
    a(f's_add_u32 s23, s23, {WF_A}')
    a('s_lshr_b32 s22, s16, 1')
    a(f's_mul_i32 s22, s22, {TILE_B}')
    a('s_add_u32 s23, s23, s22')
    a('s_mul_i32 s27, s16, 7168')
    a('s_lshr_b32 s28, s20, 1')
    if NT == 4:
        a(f's_cmp_lt_u32 {cg_s}, 16')
        a(f's_cbranch_scc0 {P}_vo')
    for path in (('f', 'vo') if NT == 4 else ('vo',)):
        isF = path == 'f'
        L = lambda n: f'{P}_{path}_{n}'
        if not isF: a.label(f'{P}_vo')
        if isF: a('s_add_u32 s23, s23, s22')
        def dma(jreg, bufreg):
            if isF:
                a(f's_lshr_b32 s24, {jreg}, 1')
                a('s_lshl_b32 s24, s24, 2')
                a(f's_and_b32 s25, {jreg}, 1')
                a('s_add_u32 s24, s24, s25')
            else:
                a(f's_lshl_b32 s24, {jreg}, 1')
            a(f's_mul_i32 s24, s24, {TILE_B}')
            a('s_add_u32 s24, s24, s23')
            a(f's_cmp_lt_u32 {jreg}, s35')
            a('s_cselect_b32 s24, s24, 0x10000000')
            a(f's_add_u32 m0, {bufreg}, s27')
            for f in range(7):
                if f == 4:
                    a('s_add_u32 m0, m0, 4096')
                    a('s_add_u32 s24, s24, 4096')
                a(f'buffer_load_dwordx4 v2, {WS}, s24 offen offset:{(f & 3)*1024} {ld} lds')
        if isF:
            a('s_lshl_b32 s29, s28, 4')
            a(f's_add_u32 s29, s29, {cg_s}')
            a(f's_mul_i32 s29, s29, {GSH_B}')
            a(f's_add_u32 s29, s29, {F_OFF}')
        else:
            a(f's_sub_u32 s29, {cg_s}, 16')
            a('s_lshl_b32 s29, s29, 6')
            a('s_add_u32 s29, s29, s28')
            a(f's_mul_i32 s29, s29, {GSH_B}')
            a(f's_add_u32 s29, s29, {VO_OFF}')
            a('v_lshlrev_b32 v6, 4, v3')
            a('v_mad_u32_u24 v7, v3, 12, 64')
        a('s_mov_b32 s31, 0')
        dma('s34', 's31')
        a('s_add_u32 s30, s34, 1'); a(f's_mov_b32 s31, {PB}')
        dma('s30', 's31')
        a('s_mov_b32 s19, s34')
        a('s_mov_b32 s32, 0')
        a(f's_mov_b32 s33, {2*PB}')
        a('s_waitcnt vmcnt(7)')
        a(f's_branch {L("in")}')
        a.label(L('loop'))
        a(f's_waitcnt vmcnt({7 + NT})')
        a.label(L('in'))
        a('s_barrier')
        a('s_add_u32 s30, s19, 2')
        dma('s30', 's33')
        a('v_add_u32 v5, s32, v2')
        FR = 8; NF = 8; ACC = 40
        order = [(kk, tau) for kk in range(14) for tau in range(2)]
        def rd(i):
            kk, tau = order[i]; r = FR + 4 * (i % NF)
            a(f'ds_read_b128 v[{r}:{r+3}], v5 offset:{(tau*14 + kk)*1024}')
        PF = 6
        for i in range(PF): rd(i)
        for i, (kk, tau) in enumerate(order):
            if i + PF < 28: rd(i + PF)
            a(f's_waitcnt lgkmcnt({min(PF, 27 - i)})')
            r = FR + 4 * (i % NF)
            for j in range(NT):
                d = ACC + 16 * tau + 4 * j; x = (j * 14 + kk) * 4
                c = '0' if kk == 0 else f'v[{d}:{d+3}]'
                if isF: a(f'v_mfma_f32_16x16x32_bf16 v[{d}:{d+3}], v[{r}:{r+3}], a[{x}:{x+3}], {c}')
                else: a(f'v_mfma_f32_16x16x32_bf16 v[{d}:{d+3}], a[{x}:{x+3}], v[{r}:{r+3}], {c}')
        O = 72
        if isF:
            a('s_lshl_b32 s24, s19, 10')
            a('s_add_u32 s24, s24, s29')
            for j in range(4):
                o = O + 4 * j
                for tau in range(2):
                    d = ACC + 16 * tau + 4 * j
                    a(f'v_cvt_pk_bf16_f32 v{o+2*tau}, v{d}, v{d+1}')
                    a(f'v_cvt_pk_bf16_f32 v{o+2*tau+1}, v{d+2}, v{d+3}')
                a(f's_add_u32 s25, s24, {(j >> 1) * 16 * GSH_B + (j & 1) * 14 * 1024}')
                a(f'buffer_store_dwordx4 v[{o}:{o+3}], v2, {WS}, s25 offen {st}')
        else:
            a(f's_add_u32 s25, s29, {GSH_B}')
            for tau in range(2):
                a('s_lshl_b32 s24, s19, 5')
                a(f's_add_u32 s24, s24, {16*tau}')
                a('v_add_u32 v88, s24, v4')
                a('s_cmp_lt_u32 s19, 8')
                a('s_cselect_b64 vcc, -1, 0')
                a('s_cselect_b32 s24, 0, 256')
                a('v_subrev_u32 v88, s24, v88')
                a('s_movk_i32 s24, 5462')
                a('s_cselect_b32 s24, 4096, s24')
                a('v_mul_u32_u24 v89, s24, v88')
                a('v_lshrrev_b32 v89, 16, v89')
                a('s_movk_i32 s24, 100')
                a('s_cselect_b32 s24, 96, s24')
                a('v_mul_u32_u24 v89, s24, v89')
                a('v_cndmask_b32 v92, v7, v6, vcc')
                a('v_add3_u32 v88, v88, v89, v92')
                a(f'v_lshlrev_b32 v{90+tau}, 4, v88')
                for sg in range(NT // 2):
                    o = O + 8 * tau + 4 * sg
                    for t in range(2):
                        d = ACC + 16 * tau + 4 * (2 * sg + t)
                        a(f'v_cvt_pk_bf16_f32 v{o+2*t}, v{d}, v{d+1}')
                        a(f'v_cvt_pk_bf16_f32 v{o+2*t+1}, v{d+2}, v{d+3}')
                    a(f'buffer_store_dwordx4 v[{o}:{o+3}], v{90+tau}, {WS}, {"s25" if sg else "s29"} offen {st}')
        a('s_mov_b32 s33, s32')
        a(f's_add_u32 s32, s32, {PB}')
        a(f's_cmp_eq_u32 s32, {3*PB}')
        a('s_cselect_b32 s32, 0, s32')
        a('s_add_u32 s19, s19, 1')
        a('s_cmp_lt_u32 s19, s35')
        a(f's_cbranch_scc1 {L("loop")}')
        a(f's_branch {P}_done')
    a.label(f'{P}_done')
    if signal:
        if NT == 4: a(f's_lshl_b32 s20, {rb_s}, 4')
        else:
            a(f's_lshr_b32 s20, {rb_s}, 1')
            a('s_lshl_b32 s20, s20, 4')
        a(f's_and_b32 s21, {cg_s}, 15')
        a('s_add_u32 s20, s20, s21')
        a('s_lshl_b32 s20, s20, 7')
        a(f's_cmp_lt_u32 {cg_s}, 16')
        a(f's_cselect_b32 s21, {FC - VOC}, 0')
        a('s_add_u32 s20, s20, s21')
        a(f's_add_u32 s20, s20, {CNT_OFF + VOC}')
        a('s_sub_u32 s21, s35, s34')
        if NT == 2: a('s_lshr_b32 s21, s21, 1')
        a('v_mov_b32 v5, s21')
        a('v_mov_b32 v6, 0')
        a('s_waitcnt vmcnt(0)')
        a('s_mov_b64 exec, 1')
        if NT == 2:
            a(f's_cmp_lg_u32 {rb_s}, 0')
            a(f's_cbranch_scc1 {P}_h1')
            a('v_mov_b32 v7, 2')
            a('s_sub_u32 s21, s20, 2048')
            a(f'buffer_atomic_add v7, v6, {WS}, s21 offen')
            a.label(f'{P}_h1')
        a(f'buffer_atomic_add v5, v6, {WS}, s20 offen')
        a('s_mov_b64 exec, -1')

def gen_gemm(name='gemm_kernel'):
    a = Asm(); a.raw(kernel_header(name))
    a('s_cmp_ge_u32 s2, 256')
    a('s_cbranch_scc1 gm_end')
    a('s_load_dwordx2 s[6:7], s[0:1], 128')
    a('v_lshrrev_b32 v1, 6, v0')
    a('v_readfirstlane_b32 s16, v1')
    a('v_and_b32 v1, 63, v0')
    a('v_lshlrev_b32 v2, 4, v1')
    a('v_lshrrev_b32 v3, 4, v1')
    a('v_and_b32 v4, 15, v1')
    a('s_waitcnt lgkmcnt(0)')
    a('s_mov_b32 s8, s6\ns_and_b32 s9, s7, 0xffff\ns_mov_b32 s10, 0x10000000\ns_mov_b32 s11, 0x20000')
    a('s_and_b32 s17, s2, 7')
    a('s_lshl_b32 s17, s17, 2')
    a('s_lshr_b32 s18, s2, 6')
    a('s_add_u32 s17, s17, s18')
    a('s_lshr_b32 s18, s2, 3')
    a('s_and_b32 s18, s18, 7')
    a('s_mov_b32 s34, 0\ns_mov_b32 s35, 14')
    gemm_body(a, 'gm', 's18', 's17')
    a.label('gm_end')
    a('s_endpgm')
    return a

if __name__ == '__main__':
    import sys
    a = gen_gemm()
    out = ['; @launch kernel=gemm_kernel grid=(256,1,1) block=(256,1,1) lds=86016',
           '.amdgcn_target "amdgcn-amd-amdhsa--gfx950"', '.text', a.text(), '.section .rodata,"a"', kernel_desc('gemm_kernel', 352, 128)]
    open(sys.argv[1], 'w').write('\n'.join(out) + '\n')
    print('instructions', a.count)
```

```python
import numpy as np
KB = 1024
UNIT = 2048
TILE_B = 7 * UNIT
CUW_B = 28 * TILE_B
WF_A = 0
WF_B = WF_A + 16 * CUW_B
G_OFF = WF_B + 16 * CUW_B
GSH_B = 28 * KB
VO_OFF = G_OFF + 64 * 16 * GSH_B
XF_OFF = VO_OFF + 64 * 16 * GSH_B
XM_OFF = XF_OFF + 128 * 14 * KB
import os
EXCH_B = int(os.environ.get('EXB', 20 * KB))
MEMX = 0
PM = 7 * KB
PX = 9 * KB
F1 = 17 * KB
F2 = 18 * KB
ONEP = int(os.environ.get('ONEP', 1))
_E0 = XM_OFF + 128 * 14 * KB
T2_OFF = 84 * KB * KB - 128 * 20 * KB - 65 * 16 * 8 * KB if ONEP else (_E0 + 66 * 25 * KB + 4095) // 4096 * 4096
PT_OFF = T2_OFF + 65 * 16 * 8 * KB
PT_B = 20 * KB
KS_OFF = PT_OFF + 128 * PT_B
MEMG_OFF = KS_OFF
CNT_OFF = MEMG_OFF + 64 * 7 * KB
VOC = 2 * KB; FC = 18 * KB; PTC = 34 * KB; T2F = 42 * KB; AC = 58 * KB; JOBC = 58 * KB; S4Q = 58 * KB; CNT_B = 62 * KB
BF_R = 9
BF_OFF = (CNT_OFF + CNT_B + 4095) // 4096 * 4096
IF_OFF = BF_OFF + 2048
AF_OFF = BF_OFF + 16 * 2048
A3_OFF = AF_OFF + 2048
I2_OFF = A3_OFF + 2048
EXCH_OFF = I2_OFF + 16 * KB if ONEP else _E0
EXCH_END = EXCH_OFF + 66 * EXCH_B
assert EXCH_END <= 86 * KB * KB and T2_OFF >= _E0
YS_OFF = 86 * KB * KB
S4C = S4Q + 7 * 128
F_OFF = G_OFF
POISON = 0xFFFFFFFF
POSB = int(os.environ.get('POSB', 0))

def memcol(ks, gA, half, s):
    return 64 * ks + 16 * gA + 4 * (s >> 1) + 2 * half + (s & 1)
def acol(kappa, q, n):
    g, r = n >> 2, n & 3
    return memcol(kappa, g, q & 1, 4 * (q >> 1) + r)
def vcol(v, cl):
    if not POSB: return 16 * v + cl if cl < 16 else 256 + 12 * v + cl - 16
    return 16 * v + 2 * (cl & 7) + (cl >> 3) if cl < 16 else 256 + 12 * v + 2 * ((cl - 16) % 6) + (cl - 16) // 6
def bpack(pi):
    return (pi >> 4, pi & 15) if pi < 256 else ((pi - 256) // 12, 16 + (pi - 256) % 12)
def tokslot(g, s):
    return (4 * g + s) if s < 4 else (16 + 4 * g + s - 4)

def f2bf_bits(f):
    u = np.ascontiguousarray(f, dtype=np.float32).view(np.uint32)
    return ((u + 0x7FFF + ((u >> 16) & 1)) >> 16).astype(np.uint16)

def build_wfrag(W, ncols):
    out = np.zeros((28, 7, 2, 64, 8), np.uint16)
    lane = np.arange(64); g = lane >> 4; n = lane & 15
    for t in range(28):
        cols = np.asarray(ncols[t])[n]
        for ks in range(7):
            for hb in range(2):
                k = 64 * ks + 32 * hb + 8 * g[:, None] + np.arange(8)[None, :]
                out[t, ks, hb] = W[k, cols[:, None]]
    return out
def build_WFA(ATb):
    ncols = [[acol(t >> 2, t & 3, n) for n in range(16)] for t in range(28)]
    return np.stack([build_wfrag(ATb[h], ncols) for h in range(16)])
def build_WFB(Bb):
    Ball = np.concatenate([Bb[h] for h in range(16)], 1)
    res = []
    for v in range(16):
        ncols = [[bpack(16 * t + n)[0] * 448 + vcol(v, bpack(16 * t + n)[1]) for n in range(16)] for t in range(28)]
        res.append(build_wfrag(Ball, ncols))
    return np.stack(res)
_Xcols = np.array([[[[memcol(ks, g, half, s) for s in range(8)] for g in range(4)] for half in range(2)] for ks in range(7)])
def build_M_order(rows):
    R = rows.shape[0] // 16
    r3 = rows.reshape(R, 16, 448)
    o = r3[:, :, _Xcols]
    return np.ascontiguousarray(o.transpose(0, 2, 3, 4, 1, 5)).reshape(R, 7, 2, 64, 8)
def build_G(Gb):
    o = np.stack([build_M_order(Gb[h]) for h in range(16)])
    o = o.reshape(16, 64, 2, 7, 2, 64, 8).transpose(1, 0, 2, 3, 4, 5, 6)
    return np.ascontiguousarray(o)
def build_VO(VOb):
    ts = np.array([[tokslot(g, s) for s in range(8)] for g in range(4)])
    vc = np.array([[vcol(v, cl) for cl in range(28)] for v in range(16)])
    V = VOb.reshape(16, 64, 32, 448)
    o = V[:, :, ts, :]
    o = o[..., vc]
    o = o.transpose(4, 1, 0, 2, 5, 3)
    return np.ascontiguousarray(np.concatenate([o[..., :16, :].reshape(16, 64, 16, -1), o[..., 16:, :].reshape(16, 64, 16, -1)], -1))
def build_xfrag(xb):
    x4 = xb.reshape(128, 16, 14, 4, 8)
    return np.ascontiguousarray(x4.transpose(0, 2, 3, 1, 4)).reshape(128, 14, 64, 8)
def build_memx(memb):
    o = memb[:, _Xcols]
    return np.ascontiguousarray(o.transpose(1, 3, 2, 0, 4)).reshape(7, 64, 8)
def decode_memx(mx):
    o = mx.reshape(7, 4, 2, 8, 8)
    res = np.zeros((8, 448), np.uint16)
    for ks in range(7):
        for g in range(4):
            for half in range(2):
                res[:, _Xcols[ks, half, g]] = o[ks, g, half]
    return res
if __name__ == "__main__":
    print("EXCH_OFF", EXCH_OFF, "END", EXCH_END, EXCH_END / 2**20)
    assert sorted(vcol(v, cl) for v in range(16) for cl in range(28)) == list(range(448))
    assert sorted(acol(k, q, n) for k in range(7) for q in range(4) for n in range(16)) == list(range(448))
    m = np.arange(8 * 448).reshape(8, 448).astype(np.uint16)
    assert (decode_memx(build_memx(m)) == m).all()
    print("T2_OFF", T2_OFF, "PT_OFF", PT_OFF, "KS_OFF", KS_OFF, KS_OFF / 2**20)
```

```python
from asmlib import *
from layout import *
import chain as C, start as S, prep, gemm, tok, s4d, t2srv
from chain import SRD, DBG, evlog
BC = 160000
JOBQ = 192; NON = 128
def mask_off(a, dst, cls):
    a(f's_and_b32 s71, {cls}, 4')
    a('s_mul_i32 s71, s71, 12')
    a(f's_lshl_b32 {dst}, {cls}, 2')
    a(f's_add_u32 {dst}, {dst}, s71')
MASK0 = 32
SCRAMBLE = 0
XPRE = 0
EVMID = 0
WARM = 1
VPF = 56
A1T = 0
XE = 3
ZO = 0
T0 = 0
XL = 0
LATE = 0
SKIP = 0
S4X = 1
G16 = 1
LLW = 2
TD = 8
MIX = 0
CPOS = 512 if s4d.STAGE else 9999
AP0 = 8
AP1 = 10
AP2 = 12
ASP = 1
BFIRST = 0
FL2 = 4
VPK = 16
STEAL_AT = 64
Q_FINE = 0; Q_SRV = Q_FINE + 224; Q_V7 = Q_SRV + 32; Q_VH = Q_V7 + 112; Q_A = Q_VH + 64; Q_VF = Q_A + 128; Q_F = Q_VF + 64; Q_S4 = Q_F + 128; Q_TOK = Q_S4 + 112; Q_END = Q_TOK + 512 + 64 * s4d.STAGE

def kargs(a):
    a('s_load_dwordx8 s[36:43], s[0:1], 56')
    a('s_load_dwordx4 s[44:47], s[0:1], 88')
def lanes(a):
    a('v_and_b32 v1, 63, v0')
    a('v_lshlrev_b32 v2, 4, v1')
    a('v_lshrrev_b32 v3, 4, v1')
    a('v_and_b32 v4, 15, v1')
def w0(a, fn):
    l = a.newlabel('w0')
    a('s_cmp_lg_u32 s16, 0')
    a(f's_cbranch_scc1 {l}')
    fn()
    a.label(l)
def bcast(a, regs, dsts, t=250):
    a(f'v_mov_b32 v{t}, {BC}')
    a('s_add_u32 s101, s101, 1')
    def wr():
        for i, r in enumerate(regs): a(f'ds_write_b32 v{t}, v{r} offset:{4*i}')
        a('s_waitcnt lgkmcnt(0)')
        a(f'v_mov_b32 v{regs[0]}, s101')
        a(f'ds_write_b32 v{t}, v{regs[0]} offset:16')
        a('s_waitcnt lgkmcnt(0)')
    a('s_barrier')
    a('s_mov_b64 exec, 1')
    w0(a, wr)
    a('s_mov_b64 exec, -1')
    a('s_barrier')
    for i, r in enumerate(regs): a(f'ds_read_b32 v{r}, v{t} offset:{4*i}')
    a(f'ds_read_b32 v{t}, v{t} offset:16')
    a('s_waitcnt lgkmcnt(0)')
    for r, d in zip(regs, dsts): a(f'v_readfirstlane_b32 {d}, v{r}')
    a(f'v_cmp_ne_u32 vcc, s101, v{t}')
    a('s_cbranch_vccnz ch_end')

def claim_issue(a, P, r=242):
    a('s_cmp_lg_u32 s66, 0')
    a(f's_cbranch_scc1 {P}_ci')
    def at():
        a('s_lshr_b32 s70, s3, 5')
        mask_off(a, 's70', 's70')
        a('s_lshl_b32 s71, 1, s3')
        a(f'v_mov_b32 v{r}, s71')
        a(f'v_mov_b32 v{r+1}, {MASK0}')
        a('s_mov_b64 exec, 1')
        a(f'buffer_atomic_or v{r}, v{r+1}, {DBG}, s70 offen sc0')
        a(f'buffer_load_dwordx2 v[{r+2}:{r+3}], v{r+1}, {DBG}, 0 offen offset:{NON-MASK0} sc1')
        a('s_mov_b64 exec, -1')
    w0(a, at)
    a.label(f'{P}_ci')

def set_nonce(a, r):
    a(f'v_mov_b32 v{r+1}, {NON}')
    a(f'v_mov_b32 v{r+2}, s88\nv_mov_b32 v{r+3}, s89\nv_mov_b32 v{r+4}, 0\nv_mov_b32 v{r+5}, 0')
    a('s_mov_b64 exec, 1')
    a(f'buffer_atomic_cmpswap_x2 v[{r+2}:{r+5}], v{r+1}, {DBG}, 0 offen sc0')
    a('s_mov_b64 exec, -1')

def confirm(a, P, n, r=242):
    a('s_cmp_lg_u32 s66, 0')
    a(f's_cbranch_scc1 {P}_cf')
    def w():
        a(f's_waitcnt vmcnt({n})')
        a(f'v_readfirstlane_b32 s70, v{r+2}')
        a('s_cmp_lg_u32 s70, 0')
        a(f's_cbranch_scc1 {P}_nz')
        set_nonce(a, r)
        a('s_waitcnt vmcnt(0)')
        a(f'v_readfirstlane_b32 s70, v{r+2}')
        a('s_cmp_lg_u32 s70, 0')
        a(f's_cbranch_scc1 {P}_nz')
        a(f'v_mov_b32 v{r+2}, s88\nv_mov_b32 v{r+3}, s89')
        a.label(f'{P}_nz')
    w0(a, w)
    bcast(a, [r, r + 2, r + 3], ['s70', 's88', 's89'], t=r + 1)
    a('s_mov_b32 s66, 1')
    a('s_bitcmp1_b32 s70, s3')
    a('s_cbranch_scc1 m_reclaim')
    a.label(f'{P}_cf')

def claim_loop(a, P, lo_class, ncls):
    a('s_mov_b32 s21, 0')
    a('s_mov_b64 exec, 1')
    a.label(f'{P}_l')
    a('s_cmp_lg_u32 s70, -1')
    a(f's_cbranch_scc1 {P}_t')
    a('s_add_u32 s20, s20, 1')
    a('s_cmp_lt_u32 s20, 8')
    a(f's_cselect_b32 s20, s20, {lo_class}')
    a('s_mov_b32 s70, 0')
    a('s_mov_b32 s3, -1')
    a('s_add_u32 s21, s21, 1')
    a(f's_cmp_ge_u32 s21, {ncls}')
    a(f's_cbranch_scc1 {P}_d')
    a.label(f'{P}_t')
    a('s_ff0_i32_b32 s22, s70')
    a('s_lshl_b32 s23, 1, s22')
    mask_off(a, 's3', 's20')
    a('v_mov_b32 v242, s23')
    a(f'v_mov_b32 v243, {MASK0}')
    a(f'buffer_atomic_or v242, v243, {DBG}, s3 offen sc0')
    a('s_waitcnt vmcnt(0)')
    a('v_readfirstlane_b32 s70, v242')
    a('s_lshl_b32 s3, s20, 5')
    a('s_add_u32 s3, s3, s22')
    a('s_bitcmp1_b32 s70, s22')
    a(f's_cbranch_scc1 {P}_l')
    a.label(f'{P}_d')
    a('s_mov_b64 exec, -1')
    a('v_mov_b32 v242, s3')

def allflags(a, P, rep_s, t=24, limit=None, sleep=4, on_spin=None, base=IF_OFF):
    a(f's_lshl_b32 s22, {rep_s}, 11')
    a(f's_add_u32 s22, s22, {base}')
    a(f'v_add_u32 v{t}, 1024, v2')
    a(f'v_min_u32 v{t}, {1792-16}, v{t}')
    S.flag_poll(a, P, t + 4, [(2, 's22'), (t, 's22')], 'cA_abort', limit or C.SLOW_LIMIT, sleep, on_spin)

def ask(a):
    def f():
        a('v_mov_b32 v250, 1')
        a(f'v_mov_b32 v251, {JOBQ}')
        a('s_mov_b64 exec, 1')
        a(f'buffer_atomic_add v250, v251, {DBG}, 0 offen sc0')
        a('s_mov_b64 exec, -1')
    w0(a, f)

def worker(a):
    global gemm
    if G16:
        import gemm16 as gemm
    tok.PEEK = DBG
    a.label('m_bjob')
    lanes(a)
    a('s_sub_u32 s18, s3, 32')
    vq = S.VQ()
    S.bjob_decode(a)
    def early():
        S.bjob_x(a, vq)
        a('s_lshl_b32 s26, s17, 9')
        if A1T: S.a1_touch(a, vq)
    if T0:
        a('s_lshl_b32 s26, s17, 9')
        S.a1_touch(a, vq, T0)
    if XE == 0: early()
    S.bjob_issue(a, vq, hook=early if XE == 1 else None)
    if XE == 2: early()
    evlog(a, 9008, 52)
    claim_issue(a, 'bj', 44)
    S.bjob_run(a, 'bj', vq, 1, None, 's77', False, early if XE == 3 else None)
    if XE == 4: early()
    a(f's_add_u32 s78, s77, {IF_OFF - BF_OFF}')
    confirm(a, 'bj', 8 + (4 + A1T if XE == 4 else 0), 44)
    evlog(a, 9001, 52)
    a('s_barrier')
    def hk(n):
        a(f's_waitcnt vmcnt({n + (4 + A1T if XE == 4 else 0)})')
        S.publish(a, 's77', 1, 48)
        evlog(a, 9002, 112)
        if XE == 4: a(f's_waitcnt vmcnt({n})')
        S.init_stores(a, 'bk', vq)
        S._fills(a, vq)
    S.a3_issue(a, hk)
    a('v_mov_b32 v250, s68')
    a('s_or_b32 s20, s69, s16')
    a('s_cbranch_scc1 bj_ht')
    ask(a)
    a('s_branch bj_h2')
    a.label('bj_ht')
    a(f'buffer_load_dword v251, off, {SRD}, s77')
    a.label('bj_h2')
    S.a3_run(a, 1, lambda: w0(a, lambda: S.flag_store(a, 's78', BF_R, 2048, 48)))
    if LLW == 1: S.llc_warm(a, 's18', not ZO)
    evlog(a, 9009)
    bcast(a, [250], ['s3'], t=6)
    a('s_branch wk_have')
    a.label('wk_loop')
    a('s_waitcnt vmcnt(0) lgkmcnt(0)')
    a('s_cmp_eq_u32 s96, 1')
    a('s_cbranch_scc1 wk_ask')
    a('s_mov_b32 s96, 1')
    def staff():
        a('s_mov_b32 s30, 0')
        a(f'v_mov_b32 v243, {MASK0}')
        a.label('sf_l')
        a(f'buffer_load_dword v242, v243, {DBG}, 0 offen sc1')
        a('s_waitcnt vmcnt(0)')
        a('v_readfirstlane_b32 s70, v242')
        a('s_cmp_eq_u32 s70, -1')
        a('s_cbranch_scc1 sf_d')
        a('s_sleep 16')
        a('s_add_u32 s30, s30, 1')
        a('s_cmp_lt_u32 s30, 64')
        a('s_cbranch_scc1 sf_l')
        a('s_mov_b32 s20, 0')
        claim_loop(a, 'sf_c', 0, 1)
        a.label('sf_d')
    w0(a, staff)
    bcast(a, [242], ['s3'], t=243)
    a('s_cmp_eq_u32 s3, -1')
    a('s_cbranch_scc1 wk_ask')
    kargs(a)
    a('s_getreg_b32 s67, hwreg(HW_REG_XCC_ID)')
    a('s_and_b32 s67, s67, 7')
    a('s_mov_b32 s66, 1')
    a('s_waitcnt lgkmcnt(0)')
    a('s_branch m_start')
    a.label('wk_ask')
    a('v_readfirstlane_b32 s22, v250')
    a(f's_cmp_ge_u32 s22, {Q_END}')
    a('s_cbranch_scc1 wk_next')
    ask(a)
    a.label('wk_next')
    evlog(a, 9005)
    a('s_waitcnt vmcnt(0)')
    bcast(a, [250], ['s3'], t=6)
    a.label('wk_have')
    evlog(a, 's3')
    a(f's_cmp_ge_u32 s3, {Q_END}')
    a('s_cbranch_scc1 ch_end')
    a('v_mov_b32 v250, 0')
    a(f'v_mov_b32 v251, {JOBQ}')
    lanes(a)
    a('s_cmp_lg_u32 s97, 0')
    a('s_cbranch_scc1 wk_go')
    a('s_mov_b32 s68, s3\ns_mov_b32 s69, 1')
    def poll():
        def spin():
            a(f's_and_b32 s20, s30, {STEAL_AT-1}')
            a('s_cbranch_scc1 wk_ns')
            a('s_mov_b32 s20, 1\ns_mov_b32 s70, 0')
            claim_loop(a, 'wk_st', 1, 7)
            a('s_cmp_lg_u32 s3, -1')
            a('s_cbranch_scc1 wk_pd')
            a('s_add_u32 s20, s67, 1')
            a(f's_lshl_b32 s22, s20, 11')
            a(f's_add_u32 s22, s22, {IF_OFF}')
            a.label('wk_ns')
        a('s_add_u32 s20, s67, 1')
        allflags(a, 'wk_af', 's20', sleep=4, on_spin=spin)
        a('v_mov_b32 v242, -1')
        a.label('wk_pd')
    w0(a, poll)
    bcast(a, [242], ['s3'], t=243)
    a('s_cmp_lg_u32 s3, -1')
    a('s_cbranch_scc1 m_bjob')
    a('s_mov_b32 s3, s68\ns_mov_b32 s97, 1')
    evlog(a, 9006)
    a.label('wk_go')
    a(f's_cmp_lt_u32 s3, {Q_VH}')
    a('s_cbranch_scc1 wk_g2')
    a(f's_sub_u32 s20, s3, {Q_A}')
    a('s_cmp_lt_u32 s20, 128')
    a('s_cbranch_scc1 wk_g2')
    a('s_cmp_eq_u32 s97, 2')
    a('s_cbranch_scc1 wk_g2')
    a('s_getreg_b32 s20, hwreg(HW_REG_XCC_ID)')
    a('s_and_b32 s20, s20, 7')
    w0(a, lambda: allflags(a, 'wk_i2', 's20', sleep=4, base=I2_OFF))
    a('v_mov_b32 v242, 0')
    bcast(a, [242], ['s20'], t=243)
    a('s_mov_b32 s97, 2')
    a.label('wk_g2')
    if MIX:
        a(f's_sub_u32 s20, s3, {Q_F + 64}')
        a(f's_cmp_lt_u32 s20, {MIX}')
        a('s_cbranch_scc1 wk_s4d')
        a(f's_cmp_lt_u32 s20, {MIX + 64}')
        a(f's_cselect_b32 s20, {MIX}, 0')
        a('s_sub_u32 s3, s3, s20')
    for lim, lab in ((Q_TOK, 'wk_tok'), (Q_S4, 'wk_s4d'), (Q_F, 'wk_f'), (Q_VF, 'wk_vf'), (Q_A, 'wk_a'), (Q_VH, 'wk_vh'), (Q_V7, 'wk_v7'), (Q_SRV, 'wk_srv')):
        a(f's_cmp_ge_u32 s3, {lim}')
        a(f's_cbranch_scc1 {lab}')
    a(f's_sub_u32 s20, s3, {Q_FINE}')
    a('s_cmp_ge_u32 s20, 112')
    a('s_cselect_b32 s18, 1, 0')
    a('s_cselect_b32 s21, 112, 0')
    a('s_sub_u32 s20, s20, s21')
    a('s_and_b32 s17, s20, 15')
    a('s_add_u32 s17, s17, 16')
    a('s_lshr_b32 s34, s20, 4')
    a('s_lshl_b32 s34, s34, 1')
    a('s_add_u32 s35, s34, 2')
    if LLW == 2:
        a('s_cmp_eq_u32 s18, 0')
        a('s_cbranch_scc1 wf_nw')
        S.llc_warm(a, 's3', not ZO)
        a('s_sub_u32 s3, s3, 112')
        S.llc_warm(a, 's3', not ZO)
        a('s_add_u32 s3, s3, 112')
        a.label('wf_nw')
    gemm.gemm_body(a, 'wf', 's18', 's17', st='sc1', signal=True, ld='sc1', NT=2)
    kargs(a)
    a('s_waitcnt lgkmcnt(0)')
    S.init2(a, 's3', ZO)
    if LLW == 3: S.llc_warm(a, 's3', not ZO)
    a('s_branch wk_loop')
    a.label('wk_v7')
    a(f's_sub_u32 s20, s3, {Q_V7}')
    a('s_mov_b32 s18, 1')
    a('s_and_b32 s17, s20, 15')
    a('s_add_u32 s17, s17, 16')
    a('s_lshr_b32 s34, s20, 4')
    a('s_lshl_b32 s34, s34, 1')
    a('s_add_u32 s35, s34, 2')
    a('s_branch wk_gemm')
    a.label('wk_vh')
    a(f's_sub_u32 s20, s3, {Q_VH}')
    a('s_and_b32 s17, s20, 15')
    a('s_add_u32 s17, s17, 16')
    a('s_lshr_b32 s18, s20, 5')
    a('s_add_u32 s18, s18, 2')
    a('s_bitcmp1_b32 s20, 4')
    a('s_cselect_b32 s34, 7, 0')
    a('s_add_u32 s35, s34, 7')
    a('s_branch wk_gemm')
    a.label('wk_vf')
    a(f's_sub_u32 s20, s3, {Q_VF}')
    a('s_and_b32 s17, s20, 15')
    a('s_add_u32 s17, s17, 16')
    a('s_lshr_b32 s18, s20, 4')
    a('s_add_u32 s18, s18, 4')
    a('s_mov_b32 s34, 0\ns_mov_b32 s35, 14')
    a('s_branch wk_gemm')
    a.label('wk_f')
    if SKIP & 4: a('s_branch wk_loop')
    a(f's_sub_u32 s20, s3, {Q_F}')
    a('s_and_b32 s17, s20, 15')
    a('s_lshr_b32 s18, s20, 4')
    a('s_mov_b32 s34, 0\ns_mov_b32 s35, 14')
    a('s_lshl_b32 s22, s17, 7')
    a(f's_add_u32 s22, s22, {AF_OFF}')
    a(f's_add_u32 s23, s22, {A3_OFF - AF_OFF}')
    a('v_min_u32 v24, 48, v2')
    a('v_min_u32 v25, 96, v2')
    S.flag_poll(a, 'wk_aw', 28, [(24, 's22'), (25, 's23')], 'cA_abort', C.SLOW_LIMIT, 6)
    a.label('wk_gemm')
    gemm.gemm_body(a, 'wg', 's18', 's17', st='sc1', signal=True, ld='sc1')
    a('s_branch wk_loop')
    a.label('wk_a')
    if SKIP & 8: a('s_branch wk_loop')
    kargs(a)
    a(f's_sub_u32 s3, s3, {Q_A}')
    a('s_and_b32 s17, s3, 15')
    a('s_lshr_b32 s19, s3, 5')
    a('s_bitcmp1_b32 s3, 4')
    a('s_cselect_b32 s31, 7, 0')
    a('s_waitcnt lgkmcnt(0)')
    vq = S.VQ()
    S.bjob_issue(a, vq, 0, 'aj')
    S.bjob_run(a, 'aj', vq, 0)
    a('v_mov_b32 v250, 0')
    a('s_branch wk_loop')
    a.label('wk_srv')
    if SKIP & 16: a('s_branch ch_end')
    a(f's_sub_u32 s3, s3, {Q_SRV}')
    a('s_and_b32 s18, s3, 15')
    a('s_lshr_b32 s19, s3, 4')
    a('s_and_b32 s19, s19, 1')
    t2srv.t2srv_body(a, 'ws', 's18', 's19', 'cA_abort', ld='sc1')
    a('v_mov_b32 v250, 0')
    a('s_branch wk_loop')
    a.label('wk_s4d')
    if SKIP & 1: a('s_branch wk_loop')
    if S4X:
        def pick():
            a('s_getreg_b32 s20, hwreg(HW_REG_XCC_ID)')
            a(f's_sub_u32 s20, s20, {C.XCD_SEL + 1}')
            a('s_and_b32 s20, s20, 7')
            a('s_mov_b64 exec, 1')
            a.label('s4_l')
            a('s_cmp_ge_u32 s20, 7')
            a('s_cselect_b32 s20, 0, s20')
            a('s_lshl_b32 s21, s20, 7')
            a(f's_add_u32 s21, s21, {CNT_OFF + S4Q}')
            a('v_mov_b32 v242, 1')
            a(f'buffer_atomic_add v242, off, {SRD}, s21 sc0')
            a('s_waitcnt vmcnt(0)')
            a('v_readfirstlane_b32 s21, v242')
            a('s_lshl_b32 s22, s20, 4')
            a('s_add_u32 s20, s20, 1')
            a('s_cmp_ge_u32 s21, 16')
            a('s_cbranch_scc1 s4_l')
            a('v_add_u32 v242, s22, v242')
            a('s_mov_b64 exec, -1')
        w0(a, pick)
        bcast(a, [242], ['s3'], t=243)
    else: a(f's_sub_u32 s3, s3, {Q_S4}')
    s4d.s4d_setup(a)
    s4d.s4d_item(a, 'wk', 's3')
    a('s_branch wk_loop')
    a.label('wk_tok')
    if SKIP & 2: a('s_branch wk_loop')
    a(f's_sub_u32 s3, s3, {Q_TOK}')
    if s4d.STAGE:
        a(f's_cmp_lt_u32 s3, {CPOS}')
        a('s_cbranch_scc1 wk_tk')
        a('s_sub_u32 s3, s3, 64')
        a(f's_cmp_ge_i32 s3, {CPOS}')
        a('s_cbranch_scc1 wk_tk')
        a(f's_sub_u32 s18, s3, {CPOS - 64}')
        a(f's_mov_b32 s20, {CNT_OFF + S4C}')
        if s4d.STAGE:
            C.poll_eq(a, 'wk_cw', SRD, 's20', 112, sleep=32)
            s4d.s4d_copy(a, 's18')
        a('s_branch wk_loop')
        a.label('wk_tk')
    a('s_and_b32 s18, s3, 3')
    a('s_lshr_b32 s17, s3, 2')
    a(f's_cmp_lt_u32 s17, {TD}')
    a('s_cbranch_scc1 wk_tokp')
    a(f's_sub_u32 s17, s17, 64')
    a(f's_cmp_ge_i32 s17, {64 - TD}')
    a('s_cbranch_scc1 wk_toko')
    a(f's_add_u32 s20, s17, {64 - TD}')
    a('s_lshr_b32 s17, s20, 1')
    a('s_bitcmp0_b32 s20, 0')
    a('s_cbranch_scc1 wk_toko')
    a(f's_add_u32 s17, s17, {TD}')
    a.label('wk_tokp')
    tok.tokp_body(a, 's17', 's18', ld='sc1', st='sc1', sync='wp', ldx='sc1')
    a('s_branch wk_loop')
    a.label('wk_toko')
    tok.toko_body(a, 's17', 's18', ld='sc1', sync='wo', OUT='s[92:95]')
    if C.TMAX:
        a('s_cmp_lg_u32 s17, 63')
        a('s_cbranch_scc1 tm_n')
        a('s_waitcnt vmcnt(0)')
        C.tmax(a, 7)
        a.label('tm_n')
    a('v_readfirstlane_b32 s22, v250')
    a(f's_cmp_ge_u32 s22, {Q_END}')
    a('s_cbranch_scc1 ch_end')
    a('s_branch wk_loop')
    a.label('wp_abort')
    a.label('wo_abort')
    a('s_branch cA_abort')

def staffed(a, r=242):
    def f():
        a(f's_cmp_eq_u32 s67, {C.XCD_SEL}')
        a('s_cselect_b32 s20, 1, 0x10001')
        a(f'v_mov_b32 v{r}, s20')
        a(f'v_mov_b32 v{r+1}, 0')
        a('s_mov_b64 exec, 1')
        a(f'buffer_atomic_add v{r}, v{r+1}, {DBG}, 0 offen')
        a('s_mov_b64 exec, -1')
    w0(a, f)

def gen(name='main_kernel'):
    C.SYNC = 1; C.MERGE = 2; C.SELF = 2
    a = Asm()
    a.raw(kernel_header(name))
    a('s_cmp_ge_u32 s2, 256')
    a('s_cbranch_scc1 ch_end')
    a('s_load_dwordx4 s[4:7], s[0:1], 120')
    a('s_load_dwordx2 s[92:93], s[0:1], 112')
    kargs(a)
    a('s_memrealtime s[88:89]')
    if C.CODE_PF == 1: code_prefetch_shared(a, name, 'ch_end', 60)
    if C.CODE_PF == 2: code_prefetch(a, name, 'ch_end', 160000, 60)
    a('s_getreg_b32 s67, hwreg(HW_REG_XCC_ID)')
    a('s_and_b32 s67, s67, 7')
    a('v_lshrrev_b32 v1, 6, v0')
    a('v_readfirstlane_b32 s16, v1')
    a('s_mov_b32 s66, 0\ns_mov_b32 s68, 0\ns_mov_b32 s69, 0\ns_mov_b32 s96, 0\ns_mov_b32 s97, 0\ns_mov_b32 s101, 0x5eed0000')
    a(f's_sub_u32 s20, s67, {C.XCD_SEL}')
    a('s_lshr_b32 s21, s2, 3')
    if SCRAMBLE: a('s_add_u32 s20, s20, s21')
    if SCRAMBLE == 2: a('s_lshr_b32 s21, s21, 2')
    a('s_and_b32 s20, s20, 7')
    a('s_lshl_b32 s3, s20, 5')
    a('s_add_u32 s3, s3, s21')
    a('s_waitcnt lgkmcnt(0)')
    a('s_mov_b32 s8, s6\ns_and_b32 s9, s7, 0xffff\ns_mov_b32 s10, 0x10000000\ns_mov_b32 s11, 0x20000')
    a('s_mov_b32 s12, s4\ns_and_b32 s13, s5, 0xffff\ns_mov_b32 s14, 256\ns_mov_b32 s15, 0x20000')
    a('s_or_b32 s88, s88, 1')
    a(f's_and_b32 s93, s93, 0xffff\ns_mov_b32 s94, {2048*896*2}\ns_mov_b32 s95, 0x20000')
    if C.EVLOG:
        a('s_lshl_b32 s100, s2, 2')
        a('s_add_u32 s100, s100, s16')
        a('s_lshl_b32 s100, s100, 8')
        a(f's_add_u32 s100, s100, {C.EV_OFF}')
    evlog(a, 9000)
    if LATE:
        a('s_mul_i32 s20, s2, 37\ns_and_b32 s20, s20, 15\ns_cmp_lg_u32 s20, 8\ns_cbranch_scc1 m_nl')
        a('s_mov_b32 s20, 0')
        a.label('m_ll')
        a(f's_sleep 127\ns_add_u32 s20, s20, 1\ns_cmp_lt_u32 s20, {LATE}\ns_cbranch_scc1 m_ll')
        a.label('m_nl')
        a('s_mul_i32 s20, s2, 37\ns_and_b32 s20, s20, 15\ns_cmp_lg_u32 s20, 3\ns_cbranch_scc1 m_nl2')
        a('s_mov_b32 s20, 0')
        a.label('m_ll2')
        a(f's_sleep 127\ns_add_u32 s20, s20, 1\ns_cmp_lt_u32 s20, {LATE}\ns_cbranch_scc1 m_ll2')
        a.label('m_nl2')
    acs = S.AComp(a, 'as')
    def evm(p):
        a('s_memrealtime s[98:99]' if EVMID == 1 else 's_memtime s[98:99]')
        a(f'v_mov_b32 v96, {9100 + p}')
        a('s_mov_b64 exec, 1')
        a(f'buffer_store_dword v96, off, {SRD}, s100')
        a('s_waitcnt lgkmcnt(0)')
        a('v_mov_b32 v96, s98')
        a(f'buffer_store_dword v96, off, {SRD}, s100 offset:4')
        a('s_mov_b64 exec, -1')
        a('s_add_u32 s100, s100, 8')
    acs.mid = evm if EVMID else None
    a.label('m_start')
    a('s_cmp_ge_u32 s3, 32')
    a('s_cbranch_scc1 m_bjob')
    C.lane_consts(a)
    a('s_and_b32 s17, s3, 15')
    a('s_cmp_ge_u32 s3, 16')
    a('s_cbranch_scc1 m_val')
    acs.issue()
    evlog(a, 9008, 96)
    claim_issue(a, 'sc', 248)
    acs.setup()
    acs.fetch()
    confirm(a, 'sc', 4 * (S.APRE - 1), 248)
    staffed(a, 248)
    evlog(a, 9001, 96)
    a('s_lshl_b32 s28, s17, 7')
    a(f's_add_u32 s28, s28, {A3_OFF}')
    a('v_min_u32 v113, 96, v2')
    a(f's_mov_b32 s29, {IF_OFF}')
    a('v_add_u32 v112, 1024, v2')
    a(f'v_min_u32 v112, {1792-16}, v112')
    fl = [(113, 's28'), (2, 's29'), (112, 's29')]
    a(f's_mul_i32 s32, s17, {CUW_B}')
    a(f's_mul_i32 s33, s16, {TILE_B}')
    a('s_add_u32 s32, s32, s33')
    a('s_add_u32 s33, s32, s33')
    a(f's_add_u32 s32, s32, {24*TILE_B}')
    a(f's_add_u32 s33, s33, {16*TILE_B}')
    TL = [(4, 's33', 0), (5, 's33', TILE_B), (6, 's32', 0)]
    pieces = [5, 6, 9, 7, 8, 0, 1, 2]
    def place(j, f):
        if j == 0: return None if f < 8 else f - 8
        if j == 1: return 6 + f
        return None if f >= 12 else 20 + f
    lof = lambda x: pieces[x >> 2] * 16384 + (x & 3) * 1024
    fld = lambda: [f'buffer_load_dwordx4 v[100:103], v113, {SRD}, s28 offen sc1', ('vq', 'f')]
    AP = [AP0, AP1, AP2]
    assert AP0 >= 7 and AP1 >= 9 and 11 <= AP2 <= 12 and AP0 < AP1 < AP2
    def ld(j, f):
        ti = TL[j][0]; x = place(j, f)
        g = [f's_add_u32 s22, s{48+j}, {f*1024}']
        if x is None: g.append(f'buffer_load_dwordx4 {ureg(C.wreg(ti, f >> 1) + 4 * (f & 1), 4)}, v2, {SRD}, s22 offen sc1')
        else: g += [f's_add_u32 m0, s25, {lof(x)}', f'buffer_load_dwordx4 v2, {SRD}, s22 offen sc1 lds']
        return g + [('vq', 'a')]
    def extra(p):
        o = []
        if p in AP:
            j = AP.index(p); ti, br, bo = TL[j]
            o.append([f's_waitcnt vmcnt({acs.vq.wait("f") if "f" in acs.vq.q else 63})', f'v_cmp_ne_u64 vcc, {S.NONCE}, v[100:101]', f'v_cmp_ne_u64 s[54:55], {S.NONCE}, v[102:103]', f's_add_u32 s{48+j}, {br}, {bo}'])
            for k, f in enumerate(range(14) if j < 2 else [12, 13] + list(range(8))):
                o.append((['s_or_b64 vcc, vcc, s[54:55]', f's_cselect_b32 s{48+j}, 0x10000000, s{48+j}'] if k == 0 else []) + ld(j, f))
                if ASP and j < 2 and AP[j + 1] - p > 1: o.append([])
        if p + 1 in AP:
            while len(o) <= FL2: o.append([])
            o[FL2] = o[FL2] + fld()
        if p == 13:
            o += [ld(2, f) for f in range(8, 12)]
            o.append([f'buffer_load_dwordx4 v[{100+4*i}:{103+4*i}], v{va}, {SRD}, {so} offen sc1' for i, (va, so) in enumerate(fl)])
        return o
    acs.run(lambda t, p: C.wreg(t, p >> 1) + 4 * (p & 1), extra)
    evlog(a, 9002)
    S.flag_poll(a, 'sc_aw', 100, fl, 'cA_abort', C.SLOW_LIMIT, 1, issued=True)
    a('v_add_u32 v4, s25, v2')
    a('v_add_u32 v5, 0x10000, v4')
    a('v_add_u32 v6, 0x20000, v4')
    for j, (ti, br, bo) in enumerate(TL):
        a(f's_cmp_eq_u32 s{48+j}, 0x10000000')
        a(f's_cbranch_scc1 sc_d{j}')
        for f in range(14):
            x = place(j, f)
            if x is not None: a(f'ds_read_b128 {ureg(C.wreg(ti, f >> 1) + 4 * (f & 1), 4)}, v{4 + (lof(x) >> 16)} offset:{lof(x) & 0xffff}')
        a('s_waitcnt lgkmcnt(0)')
        a(f's_branch sc_e{j}')
        a.label(f'sc_d{j}')
        C.load_units(a, [(bo + ks * UNIT, C.wreg(ti, ks)) for ks in range(7)], br)
        a.label(f'sc_e{j}')
    a('s_barrier')
    a('s_branch m_role')
    a.label('m_val')
    w0(a, lambda: set_nonce(a, 232))
    claim_issue(a, 'va')
    if VPF:
        S.srd(a, 56, 40, S.W_BYTES)
        a('v_lshrrev_b32 v24, 5, v1')
        a('v_and_b32 v25, 31, v1')
        a('v_lshlrev_b32 v25, 4, v25')
        a('v_lshl_add_u32 v24, v24, 13, v25')
        S.srd(a, 60, 42, S.W_BYTES)
        a('s_lshl_b32 s22, s17, 9')
        a('s_lshl_b32 s23, s16, 19')
        a('s_add_u32 s23, s22, s23')
        for i in range(VPK):
            a(f's_add_u32 s21, s23, {(64 - 2*VPK + 2*i) << 13}')
            a('buffer_load_dwordx4 v[28:31], v24, s[60:63], s21 offen')
        a('s_lshl_b32 s23, s16, 14')
        a('s_add_u32 s22, s22, s23')
        a('s_mov_b32 s30, 0')
        a.label('va_pf')
        a('buffer_load_dwordx4 v[28:31], v24, s[56:59], s22 offen')
        a('s_waitcnt vmcnt(40)')
        a('s_add_u32 s22, s22, 65536')
        a('s_add_u32 s30, s30, 1')
        a(f's_cmp_lt_u32 s30, {VPF}')
        a('s_cbranch_scc1 va_pf')
    evlog(a, 9008)
    confirm(a, 'va', min(VPF + VPK, 40) if VPF else 0)
    staffed(a)
    evlog(a, 9001)
    a.label('m_role')
    evlog(a, 9006)
    a('s_mov_b32 s17, s3')
    def late(p):
        if p >= 4: allflags(a, f'va_iw{p}', '0', t=36, sleep=2)
    def bdep(ra, rb):
        a('s_lshl_b32 s22, s17, 4')
        a('v_mov_b32 v38, s22')
        if rb:
            a('s_mul_i32 s22, s17, 12')
            a('s_add_u32 s23, s22, 267')
            a('s_add_u32 s22, s22, 256')
            a('v_mov_b32 v36, s23')
            a('v_mov_b32 v37, s22')
            a('v_cmp_eq_u32 vcc, 1, v116')
            a('v_cndmask_b32 v36, v36, v37, vcc')
            a(f'v_med3_u32 v37, v117, {rb[0]}, {rb[1]}')
            if ra:
                a(f'v_med3_u32 v39, v117, {ra[0]}, {ra[1]}')
                a('v_cmp_eq_u32 vcc, 0, v116')
                a('v_cndmask_b32 v36, v36, v38, vcc')
                a('v_cndmask_b32 v37, v37, v39, vcc')
        else:
            a('v_mov_b32 v36, v38')
            a(f'v_med3_u32 v37, v117, {ra[0]}, {ra[1]}')
        a('v_lshrrev_b32 v36, 6, v36')
        a('v_lshlrev_b32 v36, 8, v36')
        a('v_lshl_add_u32 v36, v37, 4, v36')
        a(f's_mov_b32 s22, {BF_OFF}')
        S.flag_poll(a, a.newlabel('va_bw'), 40, [(36, 's22')], 'cA_abort', C.SLOW_LIMIT, 2)
        evlog(a, 9002)
    C.BDEP = bdep
    C.role_tail(a, late)
    a.label('m_reclaim')
    a('s_waitcnt vmcnt(0)')
    a('s_lshr_b32 s20, s3, 5')
    w0(a, lambda: claim_loop(a, 'rc', 0, 9))
    bcast(a, [242], ['s3'])
    a('s_cmp_lg_u32 s3, -1')
    a('s_cbranch_scc1 m_start')
    a('v_mov_b32 v250, 0')
    a('s_branch wk_ask')
    worker(a)
    a.label('ch_end')
    a('s_endpgm')
    return a
```

```python
from asmlib import *
from layout import *
import prep
WS = 's[8:11]'
SIGMA = prep.SIGMA
W_BYTES = prep.W_BYTES
NR = 8
NONCE = 's[88:89]'
NS = 9
APRE = 4
DSP = 2
VPRE = 5
XLATE = 1
PF_S = 3
PF_V = 7

BEV = 0
HALF = 1
def EV(a, tag):
    import chain as C
    if BEV: C.evlog(a, tag, 10)
def srd(a, d, lo, nbytes): prep.srd(a, d, lo, lo + 1, nbytes)

class VQ:
    def __init__(self): self.q = []
    def add(self, tag, n=1): self.q += [tag] * n
    def wait(self, tag):
        last = max(i for i, t in enumerate(self.q) if t == tag)
        n = len(self.q) - 1 - last
        self.q = self.q[last + 1:]
        return n

class AComp:
    FR = 120
    ACC = 32
    RING = 16; PF = 3; NG = 4
    RA = 8
    SV = 100
    def __init__(self, a, P):
        self.a = a; self.P = P; self.vq = VQ(); self.nxt = 0; self.mid = None
    def dma_ops(self):
        n = self.nxt; self.nxt += 1
        o = [[f'buffer_load_dwordx4 v{4+i}, s[56:59], s22 offen offset:{i*1024} lds', ('vq', ('p', n))] for i in range(4)]
        o[0] = [f's_add_u32 s22, s27, {n << 18}', f's_add_u32 m0, s25, {(n % NS)*16384}'] + o[0]
        return o
    def dma(self):
        for g in self.dma_ops():
            for x in g:
                if isinstance(x, tuple): self.vq.add(x[1])
                else: self.a(x)
    def issue(self):
        a = self.a; SV = self.SV
        srd(a, 60, 42, W_BYTES)
        a('v_lshrrev_b32 v24, 5, v1')
        a('v_and_b32 v25, 31, v1')
        a('s_lshl_b32 s26, s17, 9')
        a('s_lshl_b32 s25, s16, 12')
        a('v_xor_b32 v26, v25, v24')
        a('v_lshlrev_b32 v26, 4, v26')
        a('v_lshl_add_u32 v26, v24, 13, v26')
        for i in range(4):
            a(f'v_xor_b32 v{SV+i}, {32*(i >> 1)}, v26')
            if i: a(f'v_add_u32 v{SV+i}, {i*(16384-1024)}, v{SV+i}')
        a('s_lshl_b32 s23, s16, 19')
        a('s_add_u32 s23, s23, s26')
        def stage(grp):
            if grp and grp % 2 == 0:
                for i in range(4): a(f'v_xor_b32 v{SV+i}, {64*((grp >> 1) ^ ((grp >> 1) - 1))}, v{SV+i}')
            a(f's_add_u32 m0, s25, {(grp + 1)*16384}')
            if grp: a(f's_add_u32 s23, s23, {8 << 13}')
            for i in range(4): a(f'buffer_load_dwordx4 v{SV+i}, s[60:63], s23 offen offset:{i*1024} lds')
            self.vq.add('k', 4)
        for grp in range(8): stage(grp)
        srd(a, 56, 40, W_BYTES)
        a('s_lshl_b32 s21, s16, 16')
        a('s_add_u32 s27, s26, s21')
        a('s_lshr_b32 s20, s16, 1')
        a('s_lshl_b32 s20, s20, 6')
        a('v_xor_b32 v26, s20, v26')
        for i in range(4):
            a(f'v_xor_b32 v{4+i}, {128*(i >> 1) + 32*(i & 1)}, v26')
            if i: a(f'v_add_u32 v{4+i}, {i*(16384-1024)}, v{4+i}')
        self.dma()
    def setup(self):
        a = self.a; SV = self.SV
        a('v_and_b32 v26, 15, v25')
        a('v_xor_b32 v27, v26, v24')
        a('v_lshlrev_b32 v27, 4, v27')
        a('v_bfe_u32 v28, v25, 2, 1')
        a('v_lshlrev_b32 v28, 4, v28')
        a('v_lshrrev_b32 v29, 3, v25')
        a('v_lshl_add_u32 v28, v29, 2, v28')
        a('v_and_b32 v29, 3, v25')
        a('v_add_u32 v28, v28, v29')
        a('v_lshl_add_u32 v28, v28, 9, v27')
        a('v_lshrrev_b32 v29, 2, v26')
        a('v_lshlrev_b32 v29, 15, v29')
        a('v_bfe_u32 v30, v26, 1, 1')
        a('v_lshl_add_u32 v29, v30, 11, v29')
        a('v_lshrrev_b32 v30, 4, v25')
        a('v_lshl_add_u32 v29, v30, 10, v29')
        a('v_and_b32 v31, 1, v26')
        a('v_lshl_add_u32 v29, v31, 9, v29')
        a('v_add_u32 v29, v29, v27')
        a('v_add_u32 v29, s25, v29')
        for k in range(8):
            a(f'v_xor_b32 v{self.RA+k}, {32*k}, v28')
            a(f'v_xor_b32 v{SV+4+k}, {32*k}, v29')
        a(f's_mov_b32 s52, {SIGMA}')
    def fetch(self):
        a = self.a
        a(f's_waitcnt vmcnt({self.vq.wait("k")})')
        for D in range(2):
            for ks in range(16):
                r = self.FR + 64 * D + 4 * ks
                a(f'ds_read_b128 v[{r}:{r+3}], v{self.SV + 4 + (ks & 7)} offset:{(1 + D)*16384 + (ks >> 3)*256}')
                if ks & 7 == 7: a('s_waitcnt lgkmcnt(4)')
        a('s_waitcnt lgkmcnt(0)')
        while self.nxt < APRE: self.dma()
    def epi(self, p, dest):
        o = []
        for D in range(2):
            b0 = self.ACC + 32 * (p & 1) + 16 * D
            for b in (b0, b0 + 8):
                for k in range(4):
                    o += [f'v_mul_f32 v{b+2*k}, s52, v{b+2*k}', f'v_mul_f32 v{b+2*k+1}, s52, v{b+2*k+1}', f'v_cvt_pk_bf16_f32 v{b+k}, v{b+2*k}, v{b+2*k+1}']
            o += [f'v_permlane16_swap_b32 v{b0+k}, v{b0+8+k}' for k in range(4)]
            for u in range(2):
                o += [f'v_accvgpr_write_b32 a{dest(2*D+u, p) - 256 + k}, v{b0+8*u+k}' for k in range(4)]
        return o
    def run(self, dest, extra=None):
        a = self.a; vq = self.vq; PF = self.PF
        hi = [0] * 8
        def rd(i):
            p, ks = i >> 4, i & 15; r = self.RING + 4 * (i % self.NG); k = ks & 7; sl = p % NS
            if hi[k] != sl >> 2:
                a(f'v_xor_b32 v{self.RA+k}, {(hi[k] ^ (sl >> 2)) << 16}, v{self.RA+k}'); hi[k] = sl >> 2
            a(f'ds_read_b128 v[{r}:{r+3}], v{self.RA+k} offset:{(sl & 3)*16384 + (ks >> 3)*256}')
        def sync(p):
            if ('p', p) in vq.q: a(f's_waitcnt vmcnt({vq.wait(("p", p))})')
            a('s_barrier')
        sync(1)
        for i in range(PF): rd(i)
        side = []; mem = []
        for i in range(14 * 16):
            p, ks = i >> 4, i & 15
            if ks == 0:
                if p & 1:
                    assert not mem or p > 7
                    sync(min(p + 2, 13))
                    if self.mid: self.mid(p)
                    while self.nxt < min(14, p + NS): mem += self.dma_ops()
                if p == 0:
                    while self.nxt < min(NS, APRE + 4): mem += self.dma_ops()
                if extra:
                    for k_, g_ in enumerate(extra(p)):
                        if k_ < len(mem): mem[k_] = mem[k_] + g_
                        else: mem.append(g_)
            if i + PF < 14 * 16: rd(i + PF)
            a(f's_waitcnt lgkmcnt({min(PF, 14 * 16 - 1 - i)})')
            r = self.RING + 4 * (i % self.NG)
            for D in range(2):
                d = self.ACC + 32 * (p & 1) + 16 * D; b = self.FR + 64 * D + 4 * ks
                a(f'v_mfma_f32_32x32x16_bf16 v[{d}:{d+15}], v[{r}:{r+3}], v[{b}:{b+3}], ' + ('0' if ks == 0 else f'v[{d}:{d+15}]'))
                if D == 0 and mem:
                    for x in mem.pop(0):
                        if isinstance(x, tuple): vq.add(x[1])
                        else: a(x)
                if ks >= 1:
                    for _ in range(3 - D):
                        if side: a(side.pop(0))
            if ks == 15:
                assert not side
                side = self.epi(p, dest)
        assert not mem
        for x in side: a(x)

def flag_store(a, soff_s, R, stride, t=24):
    a(f'v_mul_u32_u24 v{t+2}, {stride}, v1')
    a(f'v_mov_b32 v{t}, s88\nv_mov_b32 v{t+1}, s89')
    a(f's_mov_b64 exec, {(1 << R) - 1}')
    a(f'buffer_store_dwordx2 v[{t}:{t+1}], v{t+2}, {WS}, {soff_s} offen sc1')
    a('s_mov_b64 exec, -1')

def flag_poll(a, P, t, loads, abort, limit, sleep=4, on_spin=None, issued=False):
    a('s_mov_b32 s30, 0')
    if issued: a(f's_branch {P}_w')
    a.label(P)
    for i, (va, so) in enumerate(loads):
        a(f'buffer_load_dwordx4 v[{t+4*i}:{t+4*i+3}], v{va}, {WS}, {so} offen sc1')
    if issued: a.label(P + '_w')
    a('s_waitcnt vmcnt(0)')
    for i in range(2 * len(loads)):
        a(f'v_cmp_ne_u64 vcc, {NONCE}, v[{t+2*i}:{t+2*i+1}]')
        a(f's_cbranch_vccnz {P}_no')
    a(f's_branch {P}_ok')
    a.label(P + '_no')
    a(f's_sleep {sleep}')
    a('s_add_u32 s30, s30, 1')
    if on_spin: on_spin()
    a(f's_cmp_lt_u32 s30, {limit}')
    a(f's_cbranch_scc1 {P}')
    a(f's_branch {abort}')
    a.label(P + '_ok')

def bjob_decode(a):
    a('s_mul_i32 s17, s18, 4682')
    a('s_lshr_b32 s17, s17, 16')
    assert all((i * 4682) >> 16 == i // 14 for i in range(224))
    a('s_mul_i32 s20, s17, 14')
    a('s_sub_u32 s19, s18, s20')
    a('s_cmp_ge_u32 s19, 7')
    a('s_cselect_b32 s31, 7, 0')
    a('s_sub_u32 s19, s19, s31')

def bjob_issue(a, vq, mat=1, P='bj', hook=None):
    srd(a, 60, 40 + 4 * mat, W_BYTES); srd(a, 56, 42 + 4 * mat, W_BYTES)
    a('s_lshl_b32 s30, s16, 13')
    if mat:
        a('s_mul_i32 s27, s17, 229376')
        a('s_lshl_b32 s29, s19, 7')
        a('s_add_u32 s27, s27, s29')
        a('v_lshrrev_b32 v7, 3, v1')
        a('v_and_b32 v8, 7, v1')
        a('v_and_b32 v9, 2, v7')
        a('v_xor_b32 v8, v8, v9')
        a('s_lshl_b32 s29, s16, 6')
        a('v_add_u32 v7, s29, v7')
        a('v_mul_u32_u24 v7, 896, v7')
        a('v_lshl_add_u32 v7, v8, 4, v7')
        a('v_xor_b32 v8, 64, v7')
        for i in range(8):
            if i % 4 == 0: a(f's_add_u32 m0, s30, {i*1024}')
            a(f's_add_u32 s22, s27, {i*8*896 - (i & 3)*1024}')
            a(f'buffer_load_dwordx4 v{7 + (i & 1)}, s[56:59], s22 offen offset:{(i & 3)*1024} lds')
    else:
        a('s_lshl_b32 s27, s19, 19')
        a('s_lshl_b32 s29, s16, 17')
        a('s_add_u32 s27, s27, s29')
        a('s_lshl_b32 s29, s17, 9')
        a('s_add_u32 s27, s27, s29')
        a('v_lshrrev_b32 v5, 5, v1')
        a('v_and_b32 v6, 31, v1')
        a('v_xor_b32 v6, v6, v5')
        a('v_lshlrev_b32 v6, 4, v6')
        a('v_lshl_add_u32 v6, v5, 13, v6')
        for i in range(8):
            if i % 4 == 0: a(f's_add_u32 m0, s30, {i*1024}')
            a(f's_add_u32 s22, s27, {i*16384 - (i & 3)*1024}')
            a(f'v_xor_b32 v7, {32*i}, v6')
            a(f'buffer_load_dwordx4 v7, s[56:59], s22 offen offset:{(i & 3)*1024} lds')
    vq.add('stat', 8)
    if hook: hook()
    a('v_lshrrev_b32 v5, 5, v1')
    a('v_and_b32 v6, 31, v1')
    a('s_lshl_b32 s25, s16, 15')
    a('s_add_u32 s25, s25, 32768')
    a('s_lshl_b32 s26, s17, 9')
    for k, sp in ((0, 's28'), (4, 's29')):
        a(f's_add_u32 {sp}, s19, s16')
        if k: a(f's_add_u32 {sp}, {sp}, {k}')
        a(f's_cmp_ge_u32 {sp}, 7')
        a('s_cselect_b32 s20, 7, 0')
        a(f's_sub_u32 {sp}, {sp}, s20')
        a(f's_add_u32 {sp}, {sp}, s31')
    a('s_lshl_b32 s32, s28, 18\ns_add_u32 s32, s32, s26')
    a('s_lshl_b32 s33, s29, 18\ns_add_u32 s33, s33, s26')
    a('v_xor_b32 v8, v6, v5')
    a('v_lshlrev_b32 v8, 4, v8')
    a('v_lshl_add_u32 v8, v5, 13, v8')
    for i in range(4):
        a(f'v_xor_b32 v{12+i}, {32*(i & 1)}, v8')
        if i: a(f'v_add_u32 v{12+i}, {i*(16384-1024)}, v{12+i}')
    for j in range(4):
        a(f's_add_u32 s20, s16, {j}')
        a('s_and_b32 s20, s20, 3')
        a(f's_mul_i32 s21, s20, {65536 + 64}')
        a('s_lshl_b32 s20, s20, 12')
        a(f's_add_u32 s{48 + j}, s20, s25')
        a(f's_mov_b32 m0, s{48 + j}')
        for i in range(4):
            a(f'v_xor_b32 v{16+4*j+i}, s21, v{12+i}')
            a(f'buffer_load_dwordx4 v{16+4*j+i}, s[60:63], s32 offen offset:{i*1024} lds')
    vq.add('p0', 16)

def bjob_x(a, vq, it='s18', mem0=True):
    srd(a, 52, 36, 2048 * 448 * 2)
    a(f's_lshl_b32 s20, {it}, 8')
    a('v_add_u32 v95, s20, v0')
    M448 = (1 << 32) // 448 + 1
    assert all((u * M448) >> 32 == u // 448 for u in range(57344))
    a(f's_mov_b32 s21, {M448}')
    a('v_mul_hi_u32 v6, v95, s21')
    a('v_mul_u32_u24 v7, 448, v6')
    a('v_sub_u32 v7, v95, v7')
    a('v_lshrrev_b32 v8, 4, v7')
    a('v_and_b32 v7, 15, v7')
    a('v_lshl_add_u32 v9, v6, 4, v7')
    a('v_mul_u32_u24 v9, 896, v9')
    a('v_lshl_add_u32 v9, v8, 5, v9')
    a('buffer_load_dwordx4 v[84:87], v9, s[52:55], 0 offen')
    a('buffer_load_dwordx4 v[88:91], v9, s[52:55], 0 offen offset:16')
    vq.add('x', 2)
    a(f'v_mul_u32_u24 v6, {14*KB}, v6')
    a('v_lshl_add_u32 v6, v7, 4, v6')
    a('v_lshl_add_u32 v92, v8, 9, v6')
    a('v_lshrrev_b32 v7, 2, v8')
    a('v_lshl_add_u32 v6, v7, 11, v6')
    a('v_and_b32 v7, 3, v8')
    a('v_lshl_add_u32 v93, v7, 8, v6')
    if not mem0: return
    srd(a, 72, 38, 8 * 448 * 2)
    a('v_min_u32 v6, 223, v0')
    a('v_lshrrev_b32 v7, 3, v6')
    a('v_and_b32 v6, 7, v6')
    a('v_mul_u32_u24 v9, 896, v6')
    a('v_lshl_add_u32 v9, v7, 5, v9')
    a('buffer_load_dwordx4 v[36:39], v9, s[72:75], 0 offen')
    a('buffer_load_dwordx4 v[40:43], v9, s[72:75], 0 offen offset:16')
    vq.add('x', 2)
    a('v_lshlrev_b32 v7, 8, v7')
    a('v_lshl_add_u32 v94, v6, 4, v7')

def a1_touch(a, vq, mode=1):
    a('s_cmp_lt_u32 s16, 2')
    a('s_cselect_b32 s20, s40, s42')
    a('s_cselect_b32 s21, s41, s43')
    srd(a, 72, 20, W_BYTES)
    a('s_add_u32 s20, s19, s31')
    a('s_lshl_b32 s21, s20, 5')
    a('s_lshl_b32 s22, s16, 4')
    a('s_add_u32 s21, s21, s22')
    if mode == 1:
        a('s_mul_i32 s20, s20, 14')
        a('s_add_u32 s20, s20, 250')
    elif mode == 2: a('s_sub_u32 s20, s21, 32')
    else:
        a('s_mul_i32 s20, s20, 18')
        a('s_lshr_b32 s22, s22, 1')
        a('s_add_u32 s20, s20, s22')
        a('s_sub_u32 s20, s20, 16')
    a('s_cmp_lt_u32 s16, 2')
    a('s_cselect_b32 s20, s21, s20')
    a('s_lshl_b32 s20, s20, 13')
    a('s_add_u32 s20, s20, s26')
    a('v_lshlrev_b32 v6, 13, v4')
    a('v_lshl_add_u32 v6, v3, 7, v6')
    a('buffer_load_dword v51, v6, s[72:75], s20 offen')
    vq.add('t')

def wait3(a, n, extra=''):
    l = a.newlabel('w3')
    a(f's_waitcnt vmcnt({n}){extra}')
    a('s_cmp_lg_u32 s16, 3')
    a(f's_cbranch_scc1 {l}')
    a(f's_waitcnt vmcnt({n-16})')
    a.label(l)

def _fills(a, vq):
    import tok
    PTL = (64 - tok.LASTP) * 2 * PT_B
    assert PT_OFF + 128 * PT_B == MEMG_OFF
    k = 0
    for base, n, zlo, zn in ((EXCH_OFF, NB1 * EXCH_B // 16, F2 // 16, 128), (MEMG_OFF - PTL, (PTL + 64 * 7 * KB + CNT_B) // 16, (PTL + 64 * 7 * KB) // 16, 1 << 20)):
        a(f's_mov_b32 s23, {base}')
        for j in range((n - 448 + 57343) // 57344):
            r = 52 + 4 * k
            a(f'v_add_u32 v6, {448 + 57344*j}, v95')
            if base != EXCH_OFF:
                a(f'v_cmp_gt_u32 vcc, {PTL // 16}, v95')
                a('v_cndmask_b32 v6, v6, v95, vcc')
            a(f'v_subrev_u32 v7, {zlo}, v6')
            a(f'v_mov_b32 v{r}, -1')
            a('v_mov_b32 v9, 0')
            a(f'v_cmp_gt_u32 vcc, {zn}, v7')
            a(f'v_cndmask_b32 v{r}, v{r}, v9, vcc')
            for q in range(1, 4): a(f'v_mov_b32 v{r+q}, v{r}')
            a('v_lshlrev_b32 v8, 4, v6')
            a('v_mov_b32 v9, 0x10000000')
            a(f'v_cmp_lt_u32 vcc, {n-1}, v6')
            a('v_cndmask_b32 v8, v8, v9, vcc')
            a(f'buffer_store_dwordx4 v[{r}:{r+3}], v8, {WS}, s23 offen sc1')
            vq.add('fill'); k += 1

def bjob_run(a, P, vq, mat=1, confirm=None, fs='s28', finish=True, late=None):
    BST = 128
    for q in range(4):
        if mat:
            a('s_lshl_b32 s30, s19, 6')
            a(f's_add_u32 s30, s30, {16*q}')
            a('s_cmp_lt_u32 s19, 4')
            a('s_cselect_b32 s20, 0, 256')
            a('s_sub_u32 s30, s30, s20')
            a('v_add_u32 v8, s30, v4')
            a('s_lshr_b32 s20, s20, 4')
            a('s_cmp_lt_u32 s19, 4')
            a('s_movk_i32 s21, 5462')
            a('s_cselect_b32 s21, 4096, s21')
            a('s_cselect_b32 s30, 16, 12')
            a('v_mul_u32_u24 v10, s21, v8')
            a('v_lshrrev_b32 v10, 16, v10')
            a('v_mul_u32_u24 v11, s30, v10')
            a('v_sub_u32 v32, v8, v11')
            if POSB:
                a('s_lshr_b32 s30, s30, 1')
                a('v_and_b32 v33, 1, v32')
                a('v_lshrrev_b32 v32, 1, v32')
                a('v_mad_u32_u24 v32, v33, s30, v32')
            a('v_add_u32 v32, s20, v32')
            a('s_lshl_b32 s30, s17, 4')
            a('s_mul_i32 s20, s17, 12')
            a('s_add_u32 s20, s20, 240')
            a('s_cmp_lt_u32 s19, 4')
            a('s_cselect_b32 s30, s30, s20')
            a('v_add_u32 v32, s30, v32')
            a('v_lshrrev_b32 v33, 4, v32')
            a('v_and_b32 v32, 15, v32')
            a(f's_mov_b32 s30, {CUW_B}')
            a('v_mul_lo_u32 v10, v10, s30')
            a(f'v_mul_u32_u24 v33, {TILE_B}, v33')
            a('v_add_u32 v10, v10, v33')
            a('v_lshl_add_u32 v10, v3, 8, v10')
            a('v_lshl_add_u32 v10, v32, 4, v10')
            a(f'v_add_u32 v{12+q}, {WF_B}, v10')
        else:
            if q == 0:
                a(f's_mul_i32 s30, s17, {CUW_B}')
                a(f's_mul_i32 s20, s19, {4*TILE_B}')
                a('s_add_u32 s30, s30, s20')
                a('v_add_u32 v12, s30, v2')
            else: a(f'v_add_u32 v{12+q}, {q*TILE_B}, v12')
            assert WF_A == 0
    a('v_lshrrev_b32 v7, 2, v4')
    a('v_lshlrev_b32 v7, 3, v7')
    a('v_and_b32 v8, 3, v4')
    a('v_add_u32 v7, v7, v8')
    a('v_xor_b32 v10, v3, v4')
    a('v_lshlrev_b32 v10, 4, v10')
    a('v_lshl_add_u32 v10, v7, 9, v10')
    a('v_add_u32 v10, s25, v10')
    for k3 in range(4): a(f'v_xor_b32 v{32+k3}, {64*k3}, v10')
    if mat:
        a('v_lshrrev_b32 v7, 2, v4')
        a('v_lshl_add_u32 v7, v3, 3, v7')
        a('v_lshlrev_b32 v7, 7, v7')
        a('v_and_b32 v8, 3, v4')
        a('v_lshl_add_u32 v7, v8, 3, v7')
        a('v_lshrrev_b32 v8, 3, v4')
        a('v_lshl_add_u32 v7, v8, 5, v7')
        a('v_and_b32 v8, 1, v3')
        a('v_lshl_add_u32 v7, v8, 6, v7')
    else:
        a('v_and_b32 v8, 2, v4')
        a('v_lshlrev_b32 v8, 1, v8')
        a('v_and_b32 v9, 1, v4')
        a('v_add_u32 v8, v8, v9')
        a('v_lshrrev_b32 v7, 2, v4')
        a('v_lshl_add_u32 v7, v7, 4, v8')
        a('v_xor_b32 v8, v8, v3')
        a('v_lshlrev_b32 v8, 4, v8')
        a('v_lshl_add_u32 v7, v7, 9, v8')
        a(f's_mov_b32 s24, {SIGMA}')
    a(f's_waitcnt vmcnt({vq.wait("stat")})')
    a('s_barrier')
    if mat: EV(a, 9101)
    for q in range(4):
        a('s_cmp_eq_u32 s16, 3')
        a(f's_cbranch_scc1 {P}_np{q}')
        a(f's_add_u32 m0, s{48 + q}, 16384')
        for i in range(4): a(f'buffer_load_dwordx4 v{16+4*q+i}, s[60:63], s33 offen offset:{i*1024} lds')
        vq.add('p1', 4)
        a.label(f'{P}_np{q}')
        if mat: a(f'v_xor_b32 v9, {32*q}, v7')
        for kk in range(8):
            r = BST + (q * 8 + kk) * 4
            if mat:
                for hf in range(2):
                    a(f'ds_read_b64_tr_b16 v[{r+2*hf}:{r+2*hf+1}], v9 offset:{(32*kk + 4*hf)*128}')
                if kk & 3 == 3: a('s_waitcnt lgkmcnt(6)')
            else:
                ro = 8 * (q >> 1) + 2 * (q & 1)
                if kk < 4: a(f'v_xor_b32 v{8+kk}, {((4*kk) ^ ro) << 4}, v7')
                a(f'ds_read_b128 v[{r}:{r+3}], v{8 + (kk & 3)} offset:{ro*512 + (kk >> 2)*256}')
                if kk == 7: a('s_waitcnt lgkmcnt(4)')
    ACC = 96; FR = 52
    if late: late()
    for it in range(2):
        if it == 1:
            a('s_cmp_eq_u32 s16, 3')
            a(f's_cbranch_scc1 {P}_w3')
        if it == 0: wait3(a, vq.wait('p0'), ' lgkmcnt(0)')
        else: a(f's_waitcnt vmcnt({vq.wait("p1")})')
        if mat: EV(a, 9102 + 2 * it)
        def rd(i): a(f'ds_read_b128 v[{FR+4*(i&3)}:{FR+4*(i&3)+3}], v{32 + (i & 3)} offset:{it*16384 + (i >> 3)*2048 + ((i & 7) >> 2)*256}')
        for i in range(3): rd(i)
        for i in range(16):
            tau, kk = i >> 3, i & 7
            if i + 3 < 16: rd(i + 3)
            a(f's_waitcnt lgkmcnt({min(3, 15 - i)})')
            for q in range(4):
                d = ACC + 16 * tau + 4 * q; b = BST + (q * 8 + kk) * 4
                c = '0' if kk == 0 else f'v[{d}:{d+3}]'
                a(f'v_mfma_f32_16x16x32_bf16 v[{d}:{d+3}], v[{FR+4*(i&3)}:{FR+4*(i&3)+3}], v[{b}:{b+3}], {c}')
        if mat: EV(a, 9103 + 2 * it)
        a(f's_lshl_b32 s30, {"s29" if it else "s28"}, 10')
        for q in range(4):
            o = 68 + 4 * q
            for tau in range(2):
                d = ACC + 16 * tau + 4 * q
                if not mat:
                    for k in range(4): a(f'v_mul_f32 v{d+k}, s24, v{d+k}')
                a(f'v_cvt_pk_bf16_f32 v{o+2*tau}, v{d}, v{d+1}')
                a(f'v_cvt_pk_bf16_f32 v{o+2*tau+1}, v{d+2}, v{d+3}')
            a(f'buffer_store_dwordx4 v[{o}:{o+3}], v{12+q}, {WS}, s30 offen sc1')
            vq.add('st')
    a.label(f'{P}_w3')
    a(f's_lshl_b32 {fs}, {"s19" if mat else "s17"}, {8 if mat else 7}')
    a(f's_lshl_b32 s21, {"s17" if mat else "s19"}, 4')
    a(f's_add_u32 {fs}, {fs}, s21')
    a('s_cmp_lg_u32 s31, 0')
    a('s_cselect_b32 s21, 8, 0')
    a(f's_add_u32 {fs}, {fs}, s21')
    a(f's_add_u32 {fs}, {fs}, {BF_OFF if mat else AF_OFF}')
    if finish:
        a('s_waitcnt vmcnt(0)')
        publish(a, fs, 1)

def publish(a, fs, R, t=24):
    l = a.newlabel('pub')
    a('s_barrier')
    a('s_cmp_lg_u32 s16, 0')
    a(f's_cbranch_scc1 {l}')
    flag_store(a, fs, R, 2048, t)
    a.label(l)

XI1 = 70; NB1 = 20
def init_stores(a, P, vq):
    a(f's_cmp_ge_u32 s18, {XI1}')
    a(f's_cbranch_scc1 {P}_nm')
    a(f's_mov_b32 s20, {XF_OFF}')
    a(f'buffer_store_dwordx4 v[84:87], v92, {WS}, s20 offen sc1')
    a(f'buffer_store_dwordx4 v[88:91], v92, {WS}, s20 offen offset:256 sc1')
    a('s_cmp_lg_u32 s18, 0')
    a(f's_cbranch_scc1 {P}_nm')
    for j in range(4):
        a(f'v_min_u32 v{104+j}, -2, v{36+2*j}')
        a(f'v_min_u32 v{108+j}, -2, v{37+2*j}')
    a(f's_mov_b32 s20, {EXCH_OFF}\ns_mov_b32 s21, {MEMG_OFF}')
    for sb in ('s20', 's21'):
        a(f'buffer_store_dwordx4 v[104:107], v94, {WS}, {sb} offen sc1')
        a(f'buffer_store_dwordx4 v[108:111], v94, {WS}, {sb} offen offset:128 sc1')
    a.label(f'{P}_nm')

def init2(a, it, zero_out):
    bjob_x(a, VQ(), it, False)
    n = (66 - NB1) * EXCH_B // 16
    for r in range(52, 56): a(f'v_mov_b32 v{r}, -1')
    a(f's_mov_b32 s23, {EXCH_OFF + NB1 * EXCH_B}')
    a('v_lshlrev_b32 v8, 4, v95')
    a(f'buffer_store_dwordx4 v[52:55], v8, {WS}, s23 offen sc1')
    a(f'v_add_u32 v8, {57344*16}, v8')
    a('v_mov_b32 v9, 0x10000000')
    a(f'v_cmp_lt_u32 vcc, {n - 57344 - 1}, v95')
    a('v_cndmask_b32 v8, v8, v9, vcc')
    a(f'buffer_store_dwordx4 v[52:55], v8, {WS}, s23 offen sc1')
    assert 57344 < n <= 2 * 57344
    if zero_out:
        for r in range(56, 60): a(f'v_mov_b32 v{r}, 0')
        a(f's_lshl_b32 s23, {it}, 14')
        a('v_lshlrev_b32 v8, 4, v0')
        for k in range(4):
            a(f'buffer_store_dwordx4 v[56:59], v8, s[92:95], s23 offen sc1')
            a('s_add_u32 s23, s23, 4096')
    a(f's_waitcnt vmcnt({5 if zero_out else 1})')
    for j in range(4):
        a(f'v_mov_b32 v{96+j}, v{84+2*j}')
        a(f'v_mov_b32 v{100+j}, v{85+2*j}')
    a(f's_mov_b32 s20, {XF_OFF}\ns_mov_b32 s21, {XM_OFF}')
    a(f'buffer_store_dwordx4 v[96:99], v93, {WS}, s21 offen sc1')
    a(f'buffer_store_dwordx4 v[100:103], v93, {WS}, s21 offen offset:1024 sc1')
    a(f's_cmp_lt_u32 {it}, {XI1}')
    a('s_cbranch_scc1 i2_nx')
    a(f'buffer_store_dwordx4 v[84:87], v92, {WS}, s20 offen sc1')
    a(f'buffer_store_dwordx4 v[88:91], v92, {WS}, s20 offen offset:256 sc1')
    a.label('i2_nx')
    a(f's_lshl_b32 s20, {it}, 3')
    a(f's_add_u32 s20, s20, {I2_OFF}')
    a('s_waitcnt vmcnt(0)')
    publish(a, 's20', 8)

def llc_warm(a, it='s18', out=True):
    a(f's_and_b32 s20, {it}, 3')
    a('s_lshl_b32 s20, s20, 3')
    a('s_add_u32 s20, s20, 8')
    a('s_cmp_eq_u32 s16, 0')
    a('s_cselect_b32 s20, 0, s20')
    a('s_cmp_ge_u32 s16, 2')
    a('s_cselect_b32 s20, 112, s20')
    a('s_load_dwordx2 s[72:73], s[0:1], s20')
    a(f's_lshr_b32 s21, {it}, 2')
    a('s_lshl_b32 s21, s21, 12')
    a('s_mov_b32 s74, 229376')
    a(f's_lshl_b32 s22, {it}, 13')
    a('s_cmp_eq_u32 s16, 0')
    a('s_cselect_b32 s21, s22, s21')
    a('s_cselect_b32 s74, 1835008, s74')
    a(f's_lshl_b32 s22, {it}, 1')
    a('s_add_u32 s22, s22, s16')
    a('s_sub_u32 s22, s22, 2')
    a('s_lshl_b32 s22, s22, 13')
    a('s_cmp_ge_u32 s16, 2')
    a('s_cselect_b32 s21, s22, s21')
    a(f's_cselect_b32 s74, {3670016 if out else 0}, s74')
    a('v_lshlrev_b32 v6, 3, v2')
    if HALF:
        l = a.newlabel('lw')
        a('s_cmp_lt_u32 s16, 2')
        a(f's_cbranch_scc1 {l}')
        a(f's_lshl_b32 s21, {it}, 6')
        a('v_add_u32 v6, s21, v1')
        a('v_mul_u32_u24 v7, 37450, v6')
        a('v_lshrrev_b32 v7, 18, v7')
        assert all((x * 37450) >> 18 == x // 7 for x in range(14336))
        a('v_add_u32 v7, 1, v7')
        a('v_mul_u32_u24 v7, 7, v7')
        a('v_add_u32 v6, v6, v7')
        a('v_lshlrev_b32 v6, 7, v6')
        a('s_mov_b32 s21, 0')
        a('s_cmp_eq_u32 s16, 3')
        a('s_cselect_b32 s74, 0, s74')
        a.label(l)
    a('s_cmp_eq_u32 s16, 1')
    a('s_cselect_b32 exec_hi, 0, -1')
    a('s_waitcnt lgkmcnt(0)')
    a('s_and_b32 s73, s73, 0xffff\ns_mov_b32 s75, 0x20000')
    a('buffer_load_dword v7, v6, s[72:75], s21 offen')
    a('s_mov_b64 exec, -1')

def a3_issue(a, hook):
    EV(a, 9106)
    srd(a, 56, 40, W_BYTES); srd(a, 60, 42, W_BYTES)
    a('s_add_u32 s28, s31, s19')
    a('v_lshrrev_b32 v5, 5, v1')
    a('v_and_b32 v6, 31, v1')
    a('v_xor_b32 v6, v6, v5')
    a('v_lshlrev_b32 v6, 4, v6')
    a('v_lshl_add_u32 v6, v5, 13, v6')
    a('s_lshl_b32 s20, s16, 6')
    a('v_xor_b32 v7, s20, v6')
    a('s_lshl_b32 s22, s28, 18')
    a('s_lshl_b32 s21, s16, 16')
    a('s_add_u32 s22, s22, s21')
    a('s_add_u32 s22, s22, s26')
    a('s_lshl_b32 m0, s16, 12')
    for i in range(4):
        a(f'v_xor_b32 v8, {32*(i & 1)}, v7')
        if i: a(f'v_add_u32 v8, {i*(16384-1024)}, v8')
        a(f'buffer_load_dwordx4 v8, s[56:59], s22 offen offset:{i*1024} lds')
    for i in range(8):
        a(f'v_xor_b32 v{16+i}, {32*i}, v6')
        if i: a(f'v_add_u32 v{16+i}, {((16*(i >> 1) + 4*(i & 1)) << 13) - (i & 3)*1024}, v{16+i}')
    a('s_lshr_b32 s20, s16, 1')
    a('s_lshl_b32 s20, s20, 16')
    a('s_and_b32 s21, s16, 1')
    a('s_lshl_b32 s21, s21, 14')
    a('s_add_u32 s20, s20, s21')
    a('s_add_u32 s29, s20, s26')
    a(f's_mul_i32 s25, s16, {24*KB}')
    a(f's_add_u32 s25, s25, {16*KB}')
    for t in range(3):
        a(f's_add_u32 s22, s29, {(256 + 64*t) << 13}')
        for i in range(8):
            if i % 4 == 0: a(f's_add_u32 m0, s25, {t*8192 + i*1024}')
            a(f'buffer_load_dwordx4 v{16+i}, s[60:63], s22 offen offset:{(i & 3)*1024} lds')
        if t == 0: hook(12)

def a3_run(a, n, hook):
    a('v_lshrrev_b32 v7, 2, v4')
    a('v_lshlrev_b32 v7, 3, v7')
    a('v_and_b32 v8, 3, v4')
    a('v_add_u32 v7, v7, v8')
    a('v_xor_b32 v10, v3, v4')
    a('v_lshlrev_b32 v10, 4, v10')
    a('v_lshl_add_u32 v11, v4, 9, v10')
    a('v_add_u32 v11, s25, v11')
    a('v_lshl_add_u32 v10, v7, 9, v10')
    for k3 in range(4):
        a(f'v_xor_b32 v{32+k3}, {64*k3}, v10')
        a(f'v_xor_b32 v{36+k3}, {64*k3}, v11')
    a(f's_mul_i32 s30, s17, {CUW_B}')
    a(f's_mul_i32 s20, s16, {TILE_B}')
    a('s_add_u32 s30, s30, s20')
    a('s_lshl_b32 s20, s28, 10')
    a('s_add_u32 s30, s30, s20')
    a(f's_mov_b32 s24, {SIGMA}')
    a('s_lshl_b32 s20, s17, 7')
    a('s_lshl_b32 s28, s28, 3')
    a('s_add_u32 s28, s28, s20')
    a(f's_add_u32 s28, s28, {A3_OFF}')
    a(f's_waitcnt vmcnt({n})')
    a('s_barrier')
    hook()
    EV(a, 9107)
    FR = 128; ACC = 96
    def rd(kk):
        b = FR + 20 * (kk % 3)
        for tau in range(2): a(f'ds_read_b128 v[{b+4*tau}:{b+4*tau+3}], v{32 + (kk & 3)} offset:{tau*2048 + (kk >> 2)*256}')
        for t in range(3): a(f'ds_read_b128 v[{b+8+4*t}:{b+11+4*t}], v{36 + (kk & 3)} offset:{t*8192 + (kk >> 2)*256}')
    rd(0); rd(1)
    for kk in range(8):
        if kk + 2 < 8: rd(kk + 2)
        a(f's_waitcnt lgkmcnt({5 * min(2, 7 - kk)})')
        b = FR + 20 * (kk % 3)
        for t in range(3):
            for tau in range(2):
                d = ACC + 8 * t + 4 * tau
                a(f'v_mfma_f32_16x16x32_bf16 v[{d}:{d+3}], v[{b+4*tau}:{b+4*tau+3}], v[{b+8+4*t}:{b+11+4*t}], ' + ('0' if kk == 0 else f'v[{d}:{d+3}]'))
    for t in range(3):
        d = ACC + 8 * t; o = 68 + 4 * t
        for k in range(8): a(f'v_mul_f32 v{d+k}, s24, v{d+k}')
        for k in range(4): a(f'v_cvt_pk_bf16_f32 v{o+k}, v{d+2*k}, v{d+2*k+1}')
        a(f's_add_u32 s20, s30, {(16 + 4*t)*TILE_B}')
        a(f'buffer_store_dwordx4 v[{o}:{o+3}], v2, {WS}, s20 offen sc1')
    a('s_waitcnt vmcnt(0)')
    publish(a, 's28', 1)
```

```python
from asmlib import *
from layout import *
import tok
WS = 's[8:11]'
LIGHT = 1
WARMUP = 0
WSH = 0
SSL = 6
SPRE = 0
def wreg(ti, ks):
    u = ti * 7 + ks
    return 256 + 8 * u if u < 32 else 120 + 8 * (u - 32)
def t2srv_body(a, P, v_s, par_s, abort, ld=''):
    M = 8; ACC = 36; YT = 64; YA = 72
    a(f's_mul_i32 s20, {v_s}, {CUW_B}')
    a(f's_add_u32 s20, s20, {WF_B}')
    a(f's_mul_i32 s21, s16, {3*TILE_B}')
    a('s_add_u32 s21, s21, s20')
    a(f's_mul_i32 s22, s16, {4*TILE_B}')
    a('s_add_u32 s20, s20, s22')
    for f in range(98):
        if f % 4 == 0: a(f's_add_u32 s22, s20, {f*1024}' if f < 56 else f's_add_u32 s22, s21, {16*TILE_B + (f-56)*1024}')
        r = wreg(0, f // 2) + 4 * (f & 1)
        a(f'buffer_load_dwordx4 {ureg(r, 4)}, v2, {WS}, s22 offen offset:{(f & 3)*1024} {ld}')
        if f % 32 == 31: a('s_waitcnt vmcnt(24)')
    a('v_mov_b32 v5, 0x4444')
    a('v_mov_b32 v6, 0xeeee')
    a('v_cmp_lt_u32 vcc, 7, v4')
    a('v_cndmask_b32 v5, v5, v6, vcc')
    a('s_lshl_b32 s23, s16, 11')
    a('v_lshrrev_b32 v80, 1, v3')
    a('v_and_b32 v81, 1, v3')
    for p in range(4):
        if p < 2:
            a(f'v_add_u32 v83, {2*p}, v80')
            a('v_mov_b32 v84, v4')
            a('v_mov_b32 v86, 0')
        else:
            if p == 2: a('v_lshl_add_u32 v82, v80, 4, v4')
            else: a('v_add_u32 v82, 32, v4')
            a('v_mul_u32_u24 v83, 5462, v82')
            a('v_lshrrev_b32 v83, 16, v83')
            a('v_mul_u32_u24 v84, 12, v83')
            a('v_sub_u32 v84, v82, v84')
            a('v_mov_b32 v86, 1024')
        a('v_lshl_add_u32 v86, v83, 8, v86')
        a('v_lshl_add_u32 v86, v84, 4, v86')
        a('v_lshl_add_u32 v86, v81, 3, v86')
        a(f'v_add_u32 v{YA+p}, s23, v86')
    a('v_add_u32 v76, s23, v2')
    a(f's_mul_i32 s27, {v_s}, 448')
    a('v_mov_b32 v77, s27' if not tok.ONELINE else 'v_mov_b32 v77, 0')
    a('v_mov_b32 v78, 1')
    a(f's_mov_b32 s17, {par_s}')
    a(f's_mul_i32 s24, {par_s}, {7*KB}')
    a(f's_add_u32 s24, s24, {MEMG_OFF}')
    a(f's_mul_i32 s25, {v_s}, 65')
    a(f's_add_u32 s25, s25, {par_s}')
    a('s_lshl_b32 s25, s25, 13')
    a('s_add_u32 s25, s25, s23')
    a(f's_add_u32 s25, s25, {T2_OFF + 8*KB}')
    a(f's_lshl_b32 s26, {v_s}, 6')
    a(f's_add_u32 s26, s26, {par_s}')
    a('s_lshl_b32 s26, s26, 4')
    a('s_lshl_b32 s27, s16, 2')
    a('s_add_u32 s26, s26, s27')
    a(f's_add_u32 s26, s26, {CNT_OFF + T2F}')
    a('v_mov_b32 v87, -1')
    a.label(f'{P}_loop')
    for r in range(ACC, ACC + 28): a(f'v_mov_b32 v{r}, 0')
    a('s_mov_b32 s30, 0')
    if SPRE:
        a('s_cmp_ge_u32 s17, 62')
        a(f's_cbranch_scc1 {P}_pm')
        a(f's_sleep {SPRE}')
    a('v_cmp_eq_u32 vcc, -1, v87')
    a(f's_cbranch_vccz {P}_fl')
    a.label(f'{P}_pm')
    tok.mpoll(a, 79, 77, 's24')
    a('s_waitcnt vmcnt(0)')
    a('v_cmp_eq_u32 vcc, -1, v79')
    a(f's_cbranch_vccnz {P}_pr')
    a.label(f'{P}_fl')
    a('s_add_u32 s22, s24, 4096')
    for ks in range(7):
        a(f'buffer_load_dwordx4 v[{M+4*ks}:{M+4*ks+3}], v2, {WS}, {"s24" if ks < 4 else "s22"} offen offset:{(ks & 3)*1024} sc1')
    a('s_waitcnt vmcnt(0)')
    a(f'v_max_u32 v79, v{M}, v{M+1}')
    for r in range(M + 2, M + 28, 2): a(f'v_max3_u32 v79, v79, v{r}, v{r+1}')
    a('v_cmp_eq_u32 vcc, -1, v79')
    a(f's_cbranch_vccz {P}_pk')
    a.label(f'{P}_pr')
    a('s_sleep 1')
    a(f's_cmp_ge_u32 s17, {tok.LASTP}')
    a(f's_cbranch_scc1 {P}_sh')
    a(f's_sleep {SSL}')
    a.label(f'{P}_sh')
    a('s_add_u32 s30, s30, 1')
    a(f's_cmp_lt_u32 s30, {tok.WAIT_LIMIT}')
    a(f's_cbranch_scc1 {P}_pm')
    a(f's_branch {abort}')
    a.label(f'{P}_pk')
    a('s_cmp_ge_u32 s17, 62')
    a(f's_cbranch_scc1 {P}_na')
    a(f's_add_u32 s22, s24, {14*KB}')
    tok.mpoll(a, 87, 77, 's22')
    a.label(f'{P}_na')
    for ti in range(7):
        for ks in range(7):
            a(f'v_smfmac_f32_16x16x64_bf16 v[{ACC+4*ti}:{ACC+4*ti+3}], v[{M+4*ks}:{M+4*ks+3}], {ureg(wreg(ti, ks), 8)}, v5')
    for p in range(4):
        A_ = ACC + 8 * p; B_ = A_ + 4 if p < 3 else YT
        if p == 3:
            for r in range(4): a(f'v_mov_b32 v{B_+r}, v{A_+r}')
        for r in range(4): a(f'v_permlane32_swap_b32 v{A_+r}, v{B_+r}')
        for r in range(4): a(f'v_add_f32 v{A_+r}, v{A_+r}, v{B_+r}')
        a(f'v_cvt_pk_bf16_f32 v{B_}, v{A_}, v{A_+1}')
        a(f'v_cvt_pk_bf16_f32 v{B_+1}, v{A_+2}, v{A_+3}')
        a(f'ds_write_b64 v{YA+p}, v[{B_}:{B_+1}]')
    a('s_waitcnt lgkmcnt(0)')
    a(f'ds_read_b128 v[{YT}:{YT+3}], v76')
    a(f'ds_read_b128 v[{YT+4}:{YT+7}], v76 offset:1024')
    a('s_waitcnt lgkmcnt(0)')
    a(f'buffer_store_dwordx4 v[{YT}:{YT+3}], v2, {WS}, s25 offen sc1')
    a(f'buffer_store_dwordx4 v[{YT+4}:{YT+7}], v2, {WS}, s25 offen offset:1024 sc1')
    a('s_waitcnt vmcnt(0)')
    a('s_mov_b64 exec, 1')
    a(f'buffer_store_dword v78, v2, {WS}, s26 offen sc1')
    a('s_mov_b64 exec, -1')
    if WARMUP:
        nl = 64 >> WSH; per = 128 * nl * 128
        nu = -(-1835008 // per); npar = 1 << WSH; no = -(-3670016 // per)
        a('s_lshr_b32 s28, s17, 1')
        a(f's_cmp_ge_u32 s28, {nu + npar + no}')
        a(f's_cbranch_scc1 {P}_nw')
        a(f's_lshl_b32 s29, {v_s}, 1')
        a(f's_add_u32 s29, s29, {par_s}')
        a('s_lshl_b32 s31, s29, 2')
        a('s_add_u32 s31, s31, s16')
        a(f's_cmp_lt_u32 s28, {nu}')
        a(f's_cbranch_scc1 {P}_wu')
        a(f's_sub_u32 s28, s28, {nu}')
        a(f's_cmp_lt_u32 s28, {npar}')
        a(f's_cbranch_scc1 {P}_wp')
        a(f's_sub_u32 s28, s28, {npar}')
        a('s_mov_b64 s[32:33], s[92:93]\ns_mov_b32 s34, 3670016')
        a(f's_branch {P}_wg')
        a.label(f'{P}_wp')
        a('s_lshl_b32 s31, s16, 3')
        a('s_add_u32 s31, s31, 8')
        a('s_load_dwordx2 s[32:33], s[0:1], s31')
        a('s_mov_b32 s34, 229376')
        a('s_lshl_b32 s28, s28, 5')
        a('s_add_u32 s31, s28, s29')
        a('s_mov_b32 s28, 0')
        a(f's_branch {P}_wg')
        a.label(f'{P}_wu')
        a('s_load_dwordx2 s[32:33], s[0:1], 0')
        a('s_mov_b32 s34, 1835008')
        a.label(f'{P}_wg')
        a('s_lshl_b32 s28, s28, 7')
        a('s_add_u32 s28, s28, s31')
        a(f's_mul_i32 s28, s28, {nl*128}')
        a('s_waitcnt lgkmcnt(0)')
        a('s_and_b32 s33, s33, 0xffff\ns_mov_b32 s35, 0x20000')
        a('v_lshlrev_b32 v80, 3, v2')
        if WSH: a('s_mov_b32 exec_hi, 0' if WSH == 1 else 's_mov_b64 exec, 0xffff')
        a('buffer_load_dword v81, v80, s[32:35], s28 offen')
        a('s_mov_b64 exec, -1')
        a.label(f'{P}_nw')
    a(f's_add_u32 s24, s24, {14*KB}')
    a(f's_add_u32 s25, s25, {16*KB}')
    a('s_add_u32 s26, s26, 32')
    a('s_add_u32 s17, s17, 2')
    a('s_cmp_lt_u32 s17, 64')
    a(f's_cbranch_scc1 {P}_loop')
```

```python
from asmlib import *
from layout import *
WS = 's[8:11]'
PEEK = WS
def ev(a, tag, t=120):
    import chain as C
    if C.EVLOG:
        l = a.newlabel('ev')
        a('s_cmp_lt_u32 s17, 62')
        a(f's_cbranch_scc1 {l}')
        a(f's_mul_i32 s29, s17, 10\ns_add_u32 s29, s29, {9200 - 620 + tag}')
        C.evlog(a, 's29', t)
        a.label(l)
def common(a, endl):
    a('s_cmp_ge_u32 s2, 256')
    a(f's_cbranch_scc1 {endl}')
    a('s_load_dwordx2 s[6:7], s[0:1], 128')
    a('s_load_dwordx2 s[4:5], s[0:1], 112')
    a('v_lshrrev_b32 v1, 6, v0')
    a('v_readfirstlane_b32 s16, v1')
    a('v_and_b32 v1, 63, v0')
    a('v_lshlrev_b32 v2, 4, v1')
    a('v_lshrrev_b32 v3, 4, v1')
    a('v_and_b32 v4, 15, v1')
    a('s_waitcnt lgkmcnt(0)')
    a('s_mov_b32 s8, s6\ns_and_b32 s9, s7, 0xffff\ns_mov_b32 s10, 0x10000000\ns_mov_b32 s11, 0x20000')
    a(f's_mov_b32 s12, s4\ns_and_b32 s13, s5, 0xffff\ns_mov_b32 s14, {2048*896*2}\ns_mov_b32 s15, 0x20000')

WAIT_LIMIT = 30000
SLEEP = 1
LONG = 40
MIDS = 4
NEAR = 56
FULLPOLL = 64
ONELINE = 0
PMODE = 3
LASTP = 61
T2MID = 20
def mpoll(a, dst, va, so):
    if PMODE == 0: a(f'buffer_load_dword v{dst}, v{va}, {WS}, {so} offen sc1')
    elif PMODE == 1: a(f'buffer_load_dword v{dst}, v{va}, {WS}, {so} offen sc0 sc1')
    elif PMODE == 2: a(f'buffer_load_dword v{dst}, v{va}, {WS}, {so} offen sc0 sc1 nt')
    else:
        l = a.newlabel('mp')
        a(f's_cmp_ge_u32 s17, {LASTP}')
        a(f's_cbranch_scc1 {l}a')
        a(f'v_mov_b32 v{dst}, 0')
        a('s_mov_b64 exec, 1')
        a(f'buffer_atomic_or v{dst}, v{va}, {WS}, {so} offen sc0')
        a('s_mov_b64 exec, -1')
        a(f's_branch {l}b')
        a.label(l + 'a')
        a(f'buffer_load_dword v{dst}, v{va}, {WS}, {so} offen sc1')
        a.label(l + 'b')
PKS = 56
def peek(a):
    l = a.newlabel('pk')
    a(f's_cmp_lt_u32 s17, {PKS}')
    a(f's_cbranch_scc1 {l}')
    a(f'buffer_load_dword v250, v251, {PEEK}, 0 offen sc1')
    a.label(l)
def backoff(a, P, sleep):
    a(f's_sleep {sleep}')
    a(f's_cmp_ge_u32 s17, {LASTP}')
    a(f's_cbranch_scc1 {P}_bo')
    a(f's_sleep {MIDS}')
    a(f's_cmp_ge_u32 s17, {NEAR}')
    a(f's_cbranch_scc1 {P}_bo')
    a(f's_sleep {LONG}')
    a.label(P + '_bo')
def wait_eq(a, P, soff, target, abort, sleep=None, four=False, ne=False):
    sleep = sleep or SLEEP
    if four: a('v_lshlrev_b32 v60, 2, v3')
    else: a('v_mov_b32 v60, 0')
    a('s_mov_b32 s30, 0')
    a.label(P)
    a(f'buffer_load_dword v61, v60, {WS}, {soff} offen sc1')
    a('s_waitcnt vmcnt(0)')
    a(f'v_cmp_{"eq" if ne else "ne"}_u32 vcc, {target}, v61')
    a(f's_cbranch_vccz {P}_ok')
    backoff(a, P, sleep)
    a('s_add_u32 s30, s30, 1')
    a(f's_cmp_lt_u32 s30, {WAIT_LIMIT}')
    a(f's_cbranch_scc1 {P}')
    a(f's_branch {abort}')
    a.label(P + '_ok')

def load_lin(a, base_s, n, areg, flags=''):
    for f in range(n):
        if f % 4 == 0: a(f's_add_u32 s22, {base_s}, {f*1024}')
        a(f'buffer_load_dwordx4 a[{areg+4*f}:{areg+4*f+3}], v2, {WS}, s22 offen offset:{(f & 3)*1024} {flags}')

def tokp_body(a, seg_s, hq_s, ld='', st='', sync=None, ldx=''):
    a(f's_lshl_b32 s20, {hq_s}, 2')
    a('s_add_u32 s20, s20, s16')
    a(f's_lshl_b32 s21, {seg_s}, 4')
    a('s_add_u32 s21, s21, s20')
    a(f's_mul_i32 s21, s21, {GSH_B}')
    a(f's_add_u32 s21, s21, {F_OFF}')
    a(f's_mul_i32 s23, {seg_s}, {28*KB}')
    a(f's_add_u32 s23, s23, {XM_OFF}')
    FA, XA, MA = 0, 112, 224
    if sync:
        a(f's_mul_i32 s24, {seg_s}, {7*KB}')
        a(f's_add_u32 s24, s24, {MEMG_OFF}')
        a(f's_lshr_b32 s25, {seg_s}, 3')
        a('s_lshl_b32 s25, s25, 4')
        a('s_add_u32 s25, s25, s20')
        a('s_lshl_b32 s25, s25, 7')
        a(f's_add_u32 s25, s25, {CNT_OFF + FC}')
        wait_eq(a, sync + '_wf', 's25', 56, sync + '_abort')
    else:
        a(f's_mul_i32 s24, {seg_s}, {EXCH_B}')
        a(f's_add_u32 s24, s24, {EXCH_OFF}')
    load_lin(a, 's21', 28, FA, ld)
    load_lin(a, 's23', 28, XA, ldx)
    if not sync: load_lin(a, 's24', 7, MA, ld)
    AX = {(0, 0): 8, (0, 1): 12, (1, 1): 16}
    AM = {(0, 0): 20, (1, 0): 24, (0, 1): 28, (1, 1): 32}
    for r in range(4):
        a(f'v_lshl_add_u32 v5, v3, 2, {r}')
        a(f'v_cmp_le_u32 s[{40+2*r}:{41+2*r}], v5, v4')
    a('v_cmp_gt_u32 s[48:49], 2, v3')
    a('v_mov_b32 v6, 0xff800000')
    a('s_waitcnt vmcnt(0)' if sync else 's_waitcnt vmcnt(7)')
    for f in range(14):
        for (tk, tt), d in AX.items():
            c = '0' if f == 0 else f'v[{d}:{d+3}]'
            xa = XA + 4 * (tk * 14 + f); fa = FA + 4 * (tt * 14 + f)
            a(f'v_mfma_f32_16x16x32_bf16 v[{d}:{d+3}], a[{xa}:{xa+3}], a[{fa}:{fa+3}], {c}')
    MV = 64
    if sync:
        a('s_mul_i32 s22, s20, 448')
        a('v_mov_b32 v62, s22' if not ONELINE else 'v_mov_b32 v62, 0')
        a('s_mov_b32 s30, 0')
        a.label(sync + '_pm')
        a(f's_cmp_ge_u32 s17, {FULLPOLL}')
        a(f's_cbranch_scc1 {sync}_pf')
        mpoll(a, 61, 62, 's24')
        a('s_waitcnt vmcnt(0)')
        a('v_cmp_eq_u32 vcc, -1, v61')
        a(f's_cbranch_vccnz {sync}_pr')
        a.label(sync + '_pf')
        ev(a, 0)
        a('s_add_u32 s22, s24, 4096')
        for ks in range(7):
            a(f'buffer_load_dwordx4 v[{MV+4*ks}:{MV+4*ks+3}], v2, {WS}, {"s24" if ks < 4 else "s22"} offen offset:{(ks & 3)*1024} sc1')
        a('s_waitcnt vmcnt(0)')
        a(f'v_max_u32 v61, v{MV}, v{MV+1}')
        for r in range(MV + 2, MV + 28, 2): a(f'v_max3_u32 v61, v61, v{r}, v{r+1}')
        a('v_cmp_eq_u32 vcc, -1, v61')
        a(f's_cbranch_vccz {sync}_pk')
        a.label(sync + '_pr')
        backoff(a, sync + '_pm', SLEEP)
        a('s_add_u32 s30, s30, 1')
        a(f's_cmp_lt_u32 s30, {WAIT_LIMIT}')
        a(f's_cbranch_scc1 {sync}_pm')
        a(f's_branch {sync}_abort')
        a.label(sync + '_pk')
        ev(a, 1)
        peek(a)
    else:
        a('s_waitcnt vmcnt(0)')
    for ks in range(7):
        for (half, tt), d in AM.items():
            c = '0' if ks == 0 else f'v[{d}:{d+3}]'
            fa = FA + 4 * (tt * 14 + ks * 2 + half)
            mop = f'v[{MV+4*ks}:{MV+4*ks+3}]' if sync else f'a[{MA+4*ks}:{MA+4*ks+3}]'
            a(f'v_mfma_f32_16x16x32_bf16 v[{d}:{d+3}], {mop}, a[{fa}:{fa+3}], {c}')
    a(f's_lshl_b32 s25, {seg_s}, 1')
    a(f's_mul_i32 s25, s25, {PT_B}')
    a(f's_add_u32 s25, s25, {PT_OFF}')
    a('s_lshl_b32 s26, s20, 10')
    a('s_add_u32 s26, s26, s25')
    a(f's_lshl_b32 s27, {hq_s}, 10')
    a('s_add_u32 s27, s27, s25')
    a('s_lshr_b32 s28, s16, 1')
    a('s_lshl_b32 s28, s28, 3')
    a('s_add_u32 s27, s27, s28')
    a(f's_add_u32 s27, s27, {16*KB}')
    a('s_and_b32 s28, s16, 1')
    a('s_cmp_eq_u32 s28, 0')
    a('s_cselect_b32 s50, -1, 0')
    a('s_cselect_b32 s51, 0, -1')
    for tt in range(2):
        xs = []
        for (tk, t2), d in AX.items():
            if t2 != tt: continue
            for r in range(4):
                if tk == tt: a(f'v_cndmask_b32 v{d+r}, v6, v{d+r}, s[{40+2*r}:{41+2*r}]')
                xs.append(d + r)
        z, t = AM[(0, tt)], AM[(1, tt)]
        for r in range(4): a(f'v_cndmask_b32 v{z+r}, v{t+r}, v{z+r}, s[48:49]')
        for r in range(4): a(f'v_mov_b32 v{t+r}, v{z+r}')
        for r in range(4): a(f'v_permlane32_swap_b32 v{z+r}, v{t+r}')
        for r in range(4): a(f'v_add_f32 v{z+r}, v{z+r}, v{t+r}')
        ms = [z + r for r in range(4)]
        al = xs + ms
        mx = 40
        a(f'v_max3_f32 v{mx}, v{al[0]}, v{al[1]}, v{al[2]}')
        rest = al[3:]
        while len(rest) >= 2:
            a(f'v_max3_f32 v{mx}, v{mx}, v{rest[0]}, v{rest[1]}'); rest = rest[2:]
        if rest: a(f'v_max_f32 v{mx}, v{mx}, v{rest[0]}')
        for sw in ('16', '32'):
            a(f'v_mov_b32 v41, v{mx}')
            a(f'v_permlane{sw}_swap_b32 v{mx}, v41')
            a(f'v_max_f32 v{mx}, v{mx}, v41')
        for r in al: a(f'v_sub_f32 v{r}, v{r}, v{mx}')
        for r in al: a(f'v_exp_f32 v{r}, v{r}')
        a(f'v_add_f32 v42, v{ms[0]}, v{ms[1]}')
        a(f'v_add_f32 v43, v{ms[2]}, v{ms[3]}')
        a('v_add_f32 v42, v42, v43')
        a('v_mul_f32 v42, 0.5, v42')
        for r in xs: a(f'v_add_f32 v42, v42, v{r}')
        for sw in ('16', '32'):
            a('v_mov_b32 v41, v42')
            a(f'v_permlane{sw}_swap_b32 v42, v41')
            a('v_add_f32 v42, v42, v41')
        a('v_rcp_f32 v42, v42')
        for r in al: a(f'v_mul_f32 v{r}, v{r}, v42')
        o = 44 + 8 * tt
        for k in range(len(xs) // 2): a(f'v_cvt_pk_bf16_f32 v{o+k}, v{xs[2*k]}, v{xs[2*k+1]}')
        if tt == 0:
            a(f'v_mov_b32 v{o+2}, 0'); a(f'v_mov_b32 v{o+3}, 0')
        a(f'v_cvt_pk_bf16_f32 v{o+4}, v{ms[0]}, v{ms[1]}')
        a(f'v_cvt_pk_bf16_f32 v{o+5}, v{ms[2]}, v{ms[3]}')
        for k in range(6): a(f'v_min_u32 v{o+k}, -2, v{o+k}')
        a(f'buffer_store_dwordx4 v[{o}:{o+3}], v2, {WS}, s26 offen {st}')
        a('s_mov_b64 exec, s[50:51]')
        a(f'buffer_store_dwordx2 v[{o+4}:{o+5}], v2, {WS}, s27 offen {st}')
        a('s_mov_b64 exec, -1')
        if tt == 0:
            a(f's_add_u32 s26, s26, {PT_B}')
            a(f's_add_u32 s27, s27, {PT_B}')
    if sync:
        a(f's_lshl_b32 s25, {seg_s}, 7')
        a(f's_add_u32 s25, s25, {CNT_OFF + PTC}')
        a('v_mov_b32 v5, 1')
        a('v_mov_b32 v6, 0')
        ev(a, 2)
        a('s_waitcnt vmcnt(0)')
        ev(a, 3)
        a('s_mov_b64 exec, 1')
        a(f'buffer_atomic_add v5, v6, {WS}, s25 offen')
        a('s_mov_b64 exec, -1')

def toko_body(a, seg_s, vq_s, ld='', sync=None, OUT='s[12:15]'):
    a(f's_lshl_b32 s20, {vq_s}, 2')
    a('s_add_u32 s20, s20, s16')
    a('s_mul_i32 s24, s20, 65')
    a(f's_add_u32 s24, s24, {seg_s}')
    a('s_lshl_b32 s24, s24, 13')
    a(f's_add_u32 s24, s24, {T2_OFF + 8*KB}')
    a('s_lshl_b32 s21, s20, 6')
    a(f's_add_u32 s21, s21, {seg_s}')
    a(f's_mul_i32 s21, s21, {GSH_B}')
    a(f's_add_u32 s21, s21, {VO_OFF}')
    a(f's_lshl_b32 s25, {seg_s}, 1')
    a(f's_mul_i32 s25, s25, {PT_B}')
    a(f's_add_u32 s25, s25, {PT_OFF}')
    a('v_lshrrev_b32 v8, 5, v1')
    a('v_and_b32 v9, 31, v1')
    a('v_lshrrev_b32 v10, 4, v9')
    a('v_min_u32 v5, 27, v9')
    a('v_and_b32 v5, 15, v5')
    a('v_lshlrev_b32 v6, 1, v10')
    a('v_sub_u32 v6, 8, v6')
    if POSB:
        a('v_and_b32 v7, 1, v5')
        a('v_lshrrev_b32 v5, 1, v5')
        a('v_mad_u32_u24 v5, v7, v6, v5')
    a('v_lshlrev_b32 v7, 10, v10')
    a('v_lshl_add_u32 v7, v5, 4, v7')
    a('v_lshlrev_b32 v6, 5, v6')
    a('v_mad_u32_u24 v5, v8, v6, v7')
    a('v_lshl_add_u32 v63, v6, 1, v5')
    a('v_lshl_add_u32 v7, v8, 3, v7')
    a(f'v_mul_u32_u24 v6, {PT_B}, v10')
    a('v_lshl_add_u32 v6, v8, 8, v6')
    a('v_lshl_add_u32 v6, v4, 4, v6')
    VA = 0; T2R = 28; PR = 128
    a(f's_lshr_b32 s26, {seg_s}, 3')
    a('s_lshl_b32 s26, s26, 4')
    a('s_add_u32 s26, s26, s20')
    a('s_lshl_b32 s26, s26, 7')
    a(f's_add_u32 s26, s26, {CNT_OFF + VOC}')
    wait_eq(a, sync + '_wv', 's26', 56, sync + '_abort')
    for h in range(16):
        if h % 2 == 0: a(f's_add_u32 s22, s21, {h*1792}')
        for kh in range(2):
            r = VA + 8 * h + 4 * kh
            a(f'buffer_load_dwordx4 a[{r}:{r+3}], v{63 if kh else 5}, {WS}, s22 offen offset:{(h & 1)*1792} {ld}')
    a(f's_cmp_ge_u32 {seg_s}, {LASTP}')
    a(f's_cbranch_scc1 {sync}_lm')
    a(f's_lshl_b32 s26, {seg_s}, 7')
    a(f's_add_u32 s26, s26, {CNT_OFF + PTC}')
    wait_eq(a, sync + '_wp', 's26', 16, sync + '_abort', sleep=2)
    a(f's_branch {sync}_lp')
    a.label(sync + '_lm')
    a(f's_mul_i32 s26, {seg_s}, {7*KB}')
    a(f's_add_u32 s26, s26, {MEMG_OFF}')
    wait_eq(a, sync + '_wm', 's26', -1, sync + '_abort', sleep=2, ne=True)
    a.label(sync + '_lp')
    ev(a, 5)
    a(f's_mul_i32 s26, s16, {10*KB}')
    a('s_add_u32 s27, s25, s26')
    a('v_add_u32 v11, s26, v2')
    a('s_lshl_b32 s26, s20, 6')
    a(f's_add_u32 s26, s26, {seg_s}')
    a('s_lshl_b32 s26, s26, 4')
    a(f's_add_u32 s26, s26, {CNT_OFF + T2F}')
    a('v_lshlrev_b32 v60, 2, v3')
    a('s_mov_b32 s30, 0')
    a.label(sync + '_pl')
    for f in range(10):
        if f % 4 == 0: a(f's_add_u32 s22, s27, {f*1024}')
        a(f'buffer_load_dwordx4 v[{PR+4*f}:{PR+4*f+3}], v2, {WS}, s22 offen offset:{(f & 3)*1024} sc1')
    a(f'buffer_load_dword v61, v60, {WS}, s26 offen sc1')
    a('s_waitcnt vmcnt(1)')
    a(f'v_max_u32 v62, v{PR}, v{PR+1}')
    for r in range(PR + 2, PR + 40, 2): a(f'v_max3_u32 v62, v62, v{r}, v{r+1}')
    a('v_cmp_eq_u32 vcc, -1, v62')
    a(f's_cbranch_vccz {sync}_pk')
    a('s_add_u32 s30, s30, 1')
    a(f's_cmp_lt_u32 s30, {WAIT_LIMIT}')
    a(f's_cbranch_scc1 {sync}_pl')
    a(f's_branch {sync}_abort')
    a.label(sync + '_pk')
    for f in range(10): a(f'ds_write_b128 v11, v[{PR+4*f}:{PR+4*f+3}] offset:{f*1024}')
    def t2l():
        for hq in range(4):
            if hq % 2 == 0: a(f's_add_u32 s22, s24, {hq*2048}')
            for kh in range(2):
                r = T2R + 8 * hq + 4 * kh
                for pc in range(2):
                    a(f'buffer_load_dwordx2 v[{r+2*pc}:{r+2*pc+1}], v7, {WS}, s22 offen offset:{(hq & 1)*2048 + kh*256 + pc*512} {ld}')
    a('s_waitcnt vmcnt(0)')
    a('v_cmp_ne_u32 vcc, 1, v61')
    a('s_mov_b32 s28, 0')
    a(f's_cbranch_vccnz {sync}_nt')
    t2l()
    a('s_mov_b32 s28, 1')
    a.label(sync + '_nt')
    peek(a)
    ev(a, 4)
    a('s_waitcnt lgkmcnt(0)')
    a('s_barrier')
    a(f'buffer_load_dword v61, v60, {WS}, s26 offen sc1')
    ACC = 12; RG = 64
    def rd(i): a(f'ds_read_b128 v[{RG+4*(i&7)}:{RG+4*(i&7)+3}], v6 offset:{i*512}')
    for i in range(6): rd(i)
    for i in range(40):
        if i == T2MID:
            a('s_cmp_lg_u32 s28, 0')
            a(f's_cbranch_scc1 {sync}_h2')
            a('s_waitcnt vmcnt(0)')
            a('v_cmp_ne_u32 vcc, 1, v61')
            a(f's_cbranch_vccnz {sync}_h2')
            t2l()
            a('s_mov_b32 s28, 1')
            a.label(sync + '_h2')
        if i == 32:
            a('s_cmp_lg_u32 s28, 0')
            a(f's_cbranch_scc1 {sync}_ht')
            wait_eq(a, sync + '_wt', 's26', 1, sync + '_abort', four=True, sleep=1)
            t2l()
            a.label(sync + '_ht')
        if i + 6 < 40: rd(i + 6)
        a(f's_waitcnt lgkmcnt({min(6, 39 - i)})' + (' vmcnt(0)' if i == 32 else ''))
        A_ = f'a[{VA+4*i}:{VA+4*i+3}]' if i < 32 else f'v[{T2R+4*(i-32)}:{T2R+4*(i-32)+3}]'
        a(f'v_mfma_f32_32x32x16_bf16 v[{ACC}:{ACC+15}], {A_}, v[{RG+4*(i&7)}:{RG+4*(i&7)+3}], ' + ('0' if i == 0 else f'v[{ACC}:{ACC+15}]'))
    ev(a, 6)
    OL = 48 * KB; RS = 240
    a(f'v_mul_u32_u24 v9, {RS}, v9')
    a(f's_movk_i32 s23, {RS}')
    a('v_lshl_add_u32 v8, v8, 3, v9')
    a('s_mul_i32 s22, s16, 24')
    a('v_add_u32 v7, s22, v8')
    a('s_lshl_b32 s22, s16, 5')
    a('v_add_u32 v8, s22, v8')
    a('v_min_u32 v11, 223, v0')
    a('v_mul_u32_u24 v9, 4682, v11')
    a('v_lshrrev_b32 v9, 16, v9')
    a('v_mul_u32_u24 v10, 14, v9')
    a('v_sub_u32 v10, v11, v10')
    a('v_cmp_gt_u32 vcc, 8, v10')
    a('v_lshlrev_b32 v10, 4, v10')
    a(f'v_mad_u32_u24 v11, v9, s23, v10')
    a('v_mul_u32_u24 v9, 1792, v9')
    a('v_add_u32 v10, v9, v10')
    a(f's_lshl_b32 s22, {vq_s}, 7')
    a(f's_mul_i32 s27, {vq_s}, 96')
    a('s_add_u32 s27, s27, 384')
    a('v_mov_b32 v9, s22')
    a('v_mov_b32 v5, s27')
    a('v_cndmask_b32 v9, v5, v9, vcc')
    a('v_add_u32 v10, v9, v10')
    a(f's_mul_i32 s26, {seg_s}, {32*1792}')
    a('s_add_u32 s26, s26, 896')
    a(f's_add_u32 s27, s26, {16*1792}')
    for jj in range(4):
        d = ACC + 4 * jj; o = 96 + 2 * jj
        a(f'v_cvt_pk_bf16_f32 v{o}, v{d}, v{d+1}')
        a(f'v_cvt_pk_bf16_f32 v{o+1}, v{d+2}, v{d+3}')
        if jj == 3: a('s_mov_b32 exec_hi, 0')
        a(f'ds_write_b64 v{8 if jj < 2 else 7}, v[{o}:{o+1}] offset:{OL + (16*jj if jj < 2 else 128 + 16*(jj-2))}')
    a('s_mov_b64 exec, -1')
    a('s_waitcnt lgkmcnt(0)')
    a('s_barrier')
    a(f'ds_read_b128 v[104:107], v11 offset:{OL}')
    a(f'ds_read_b128 v[108:111], v11 offset:{OL + 16*RS}')
    a('s_cmp_lg_u32 s16, 3')
    a('s_cselect_b32 exec_hi, -1, 0')
    a('s_waitcnt lgkmcnt(1)')
    a(f'buffer_store_dwordx4 v[104:107], v10, {OUT}, s26 offen')
    a('s_waitcnt lgkmcnt(0)')
    a(f'buffer_store_dwordx4 v[108:111], v10, {OUT}, s27 offen')
    a('s_mov_b64 exec, -1')

def gen_tok(which):
    name = f'tok{which}_kernel'
    a = Asm(); a.raw(kernel_header(name))
    common(a, f't{which}_end')
    a('s_lshr_b32 s17, s2, 2')
    a('s_and_b32 s18, s2, 3')
    if which == 'p': tokp_body(a, 's17', 's18')
    else: toko_body(a, 's17', 's18')
    a.label(f't{which}_end')
    a('s_endpgm')
    return a
```

```python
from asmlib import *
from layout import *

SRD = 's[8:11]'; DBG = 's[12:15]'
SPIN_LIMIT = 400000
SLOW_LIMIT = 50000
NSTEPS = 64
STAMPS = False
STAMP_STEP = 32
STAMP_CYC = 0
STEPLOG = 0
STAMP_OFF = 100 * 1024 * 1024
POLL_DEPTH = 3
POLL_GAP = 0
SC_SLEEP = 0
M_GAP = 4
SC_DELAY = 0
F1_POS = 10
F2_POS = 1
VA_DELAY = 0
VB_DELAY = 0
VO_POS = 1
P_GAP = 5
ZFILL = 1
SC_ALLPOLL = 0
FOLDW = 1
NANCHK = 1
VO_PRE0 = 0
VO_PRE = 12
VO_SLEEP = 0
F1_WAVE = 0
RB1_DELAY = 0
EC_M = 0
EC_P = 0
DIAG = 0
T2SRV = 1
SLOW_FIRST = 0
B2_POS = 0
M_ROT = 0
CODE_PF = 1
PUB_EARLY = 0
HLP_SLEEP = 0
MERGE = 0
A_TGT = 28
B_TGT = 64
SELF_POISON = 0
X_PRELOAD = 0
VO_NT = 0
FIN_SLEEP = 0
VM_BURST = 0
PUBLISH = 1
VM_EVERY = 2
PUB_FIRST = 1
VO_EARLY = 0
FLAG_SLEEP = 0
SYNC = 0
XCD_SEL = 0
NOBULK = 0
VAL_TOUCH = 0
SC_TOUCH = 0
TOUCH_POS = 2
TOUCH_AHEAD = 2
DMA_DELAY = 0
PLAIN_M = 1
MRG = 1
PRI = 1
HALL = 1
USEZ = 1
NOW = 0
CPF2 = 1
F1O = 1
VT = 0
VTL = 0
NV = 16
NH = 16
PDL = 0
MGL = 0
NOX = 0
XIN = 4
TPS2 = 0
XSK = 1
XP0 = 14
XST = 4
XPL = 0
TIN = 1
F2X = 7
S0 = 1
F2XD = 0
CW = 0
F2L = -1
F2M = -1
L4 = 0
W1D = 24
W1G = 0
F2PRE = -1
VOI = 2
F2B = 4
ECM = 0
PEX = 0
INL = 1
WSPL = 2
V5 = 0
YE = 0
V5F2 = 1
V5E = 9
V5P = 16
XG = 6
KS = 0
B3P = 11
KGAP = 3
F2K = 2
FAKE5 = 0
PL2 = 1
RED2 = 1
PROT = 0
T2DF = 0
T2DH = 0
NOT2 = 0
ECP = 0
ALIGN = 6
APAD = 0
FAST = 1
EPI2 = 1
F2ONE = 0
SELF = 0
BDEP = None
BST2 = 0
R1 = 4
R2 = 16
PD_S = 5
PG_S = 8
PD_V = 5
PG_V = 8
PD_H = 3
PG_H = 0
VST = 0
VSM = 1
NPP = 10
VZ = 3
NPRE = 3
LPOS = 1
PLAIN_P = 1
D = 'row_mask:0xf bank_mask:0xf'
XSEG_B = 28 * KB

def stamp(a, k):
    if STAMPS: a(f'{"s_memtime" if STAMP_CYC else "s_memrealtime"} s[{40+2*k}:{41+2*k}]')
def stamp_flush(a, path, n, lbl, t=118):
    if not STAMPS: return
    a(f's_cmp_lg_u32 s19, {STAMP_STEP}')
    a(f's_cbranch_scc1 {lbl}')
    a('s_waitcnt lgkmcnt(0)')
    a(f's_lshl_b32 s22, s17, 9')
    a(f's_add_u32 s22, s22, {STAMP_OFF + path * 64}')
    a(f'v_mov_b32 v{t}, 0')
    for k in range(n):
        a(f'v_mov_b32 v{t+1}, s{40+2*k}')
        a(f'buffer_store_dword v{t+1}, v{t}, {SRD}, s22 offen offset:{4*k}')
    a.label(lbl)

EVLOG = 0
EV_OFF = 101 * 1024 * 1024
def evlog(a, tag, t=36):
    if not EVLOG: return
    a('s_memrealtime s[98:99]')
    a('s_waitcnt lgkmcnt(0)')
    a(f'v_mov_b32 v{t}, {tag}')
    a(f'v_mov_b32 v{t+1}, s98')
    a('s_mov_b64 exec, 1')
    a(f'buffer_store_dwordx2 v[{t}:{t+1}], off, {SRD}, s100')
    a('s_mov_b64 exec, -1')
    a('s_add_u32 s100, s100, 8')

TMAX = 0
def tmax(a, slot, t=36):
    if not TMAX: return
    a('s_memrealtime s[98:99]')
    a('s_waitcnt lgkmcnt(0)')
    a('s_sub_u32 s98, s98, s88')
    a(f'v_mov_b32 v{t}, s98')
    a('s_mov_b64 exec, 1')
    a(f'buffer_store_dword v{t}, off, {DBG}, 0 offset:{4*slot}')
    a('s_mov_b64 exec, -1')

def exec_lo(a, R):
    if R == 32: a('s_mov_b32 exec_hi, 0')
    else: a(f's_mov_b64 exec, {(1 << R) - 1}')

def spin(a, back, abort):
    a('s_add_u32 s30, s30, 1')
    a(f's_cmp_lt_u32 s30, {SPIN_LIMIT}')
    a(f's_cbranch_scc1 {back}')
    a(f's_branch {abort}')

def flagpoll(a, vaddr, sbase, regs, lbl, abort, Dp=None, gap=None, issued=0, lanes=0, fill=None):
    if PEX and lanes: exec_lo(a, lanes)
    Dp = Dp or POLL_DEPTH
    gap = POLL_GAP if gap is None else gap
    for i in range(issued, Dp):
        a(f'buffer_load_dword v{regs+i}, v{vaddr}, {SRD}, {sbase} offen sc1')
        if i < Dp - 1:
            if fill is None: a.nop(gap)
            else:
                for _ in range(gap):
                    if fill: a(fill.pop(0))
    for x in fill or []: a(x)
    a.label(lbl + '_l')
    for i in range(Dp):
        a(f's_waitcnt vmcnt({Dp-1})')
        a(f'v_cmp_eq_u32 vcc, -1, v{regs+i}')
        a(f's_cbranch_vccz {lbl}_d')
        a(f'buffer_load_dword v{regs+i}, v{vaddr}, {SRD}, {sbase} offen sc1')
    spin(a, lbl + '_l', abort)
    a.label(lbl + '_d')
    if PEX and lanes: a('s_mov_b64 exec, -1')

def load_M(a, M, gap=0, k0=0):
    for ks in range(k0, 7):
        so = 's20' if ks < 4 else 's23'
        a(f'buffer_load_dwordx4 v[{M+4*ks}:{M+4*ks+3}], v2, {SRD}, {so} offen offset:{(ks & 3) * 1024} sc1')
        if gap and ks < 3: a.nop(gap)

def load_units(a, units, base, tmp_s='s22'):
    cur = None; n = 0
    for off, reg in units:
        for hb in range(2):
            o = off + hb * 1024
            blk = o // 4096 * 4096
            if blk != cur:
                a(f's_add_u32 {tmp_s}, {base}, {blk}'); cur = blk
            a(f'buffer_load_dwordx4 {ureg(reg + 4 * hb, 4)}, v2, {SRD}, {tmp_s} offen offset:{o - blk}' + (' sc1' if MERGE else ''))
            n += 1
            if n % 32 == 0: a('s_waitcnt vmcnt(24)')

def wreg(ti, ks):
    u = ti * 7 + ks
    return 256 + 8 * u if u < 32 else 120 + 8 * (u - 32)

def lane_consts(a):
    a('v_and_b32 v1, 63, v0')
    a('v_lshlrev_b32 v2, 4, v1')
    a('v_lshrrev_b32 v116, 4, v1')
    a('v_and_b32 v117, 15, v1')
    a('v_mov_b32 v3, 0x4444')
    a('v_mov_b32 v118, 0xeeee')
    a('v_cmp_lt_u32 vcc, 7, v117')
    a('v_cndmask_b32 v3, v3, v118, vcc')

def step_bases(a):
    a('s_add_u32 s23, s20, 4096')
    a(f's_add_u32 s21, s20, {EXCH_B}')

class Checker:
    def __init__(self, a, acc): self.a = a; self.acc = acc; self.q = []; self.first = True
    def add(self, r, n=4): self.q += list(range(r, r + n))
    def emit(self, k=1):
        for _ in range(k):
            if self.first and len(self.q) >= 3:
                x, y, z = self.q[:3]; self.q = self.q[3:]
                self.a(f'v_max3_u32 v{self.acc}, v{x}, v{y}, v{z}'); self.first = False
            elif len(self.q) >= 2:
                x, y = self.q[:2]; self.q = self.q[2:]
                self.a(f'v_max3_u32 v{self.acc}, v{self.acc}, v{x}, v{y}')
            elif len(self.q) == 1:
                self.a(f'v_max_u32 v{self.acc}, v{self.acc}, v{self.q[0]}'); self.q = []
    def drain(self):
        while self.q: self.emit()

XP = 2 * XSEG_B
XRP = 1024
MP = XP + 8 * KB
VL = MP + 4 * KB
CL = VL + 16 * KB
def score_tiles(w):
    return [(w, 0), (w, 1), (w, 2), (w, 3), (4 + (w >> 1), 2 * (w & 1)), (4 + (w >> 1), 2 * (w & 1) + 1), (6, w)]

def x_dma(a, w, gap=0, f0=0, fill=None):
    a(f's_add_u32 m0, s25, {7*w*1024}')
    for f in range(7):
        if f == 4:
            a(f's_add_u32 m0, s25, {7*w*1024 + 4096}')
            a('s_add_u32 s22, s24, 4096')
        if f < f0: continue
        a(f'buffer_load_dwordx4 v2, {SRD}, {"s24" if f < 4 else "s22"} offen offset:{(f & 3) * 1024}' + (' sc1' if MERGE and not XPL else '') + ' lds')
        if fill is None:
            if gap: a.nop(gap)
        else:
            for _ in range(gap):
                if fill: a(fill.pop(0))
    for x in fill or []: a(x)

def repoison(a):
    a('v_mov_b32 v75, -1')
    a('ds_write2_b32 v113, v75, v75 offset0:0 offset1:4')
    a('ds_write2_b32 v112, v75, v75 offset0:0 offset1:128')
    a('ds_write2_b32 v112, v75, v75 offset0:64 offset1:192')
    a('s_waitcnt lgkmcnt(0)')

def gen_score(a, w, st, tag):
    L = lambda n: f'{tag}_sc{w}_{n}'
    ABORT = f'{tag}_abort'
    M = 8; ACC = 36; AOP = 64; TR = 68; BOP6 = 76; BOPB = 80; BOPA = 60; SACC = 84; SX = 88
    XS = [96, 104, [12, 16, 8, 8][w], 52, 36]
    ka, kb = w, 4 + (w >> 1)
    half6, piece6, pieceP = w & 1, w >> 1, w & 1
    def S(ti, ks):
        return f'v_smfmac_f32_16x16x64_bf16 v[{ACC+4*ti}:{ACC+4*ti+3}], v[{M+4*ks}:{M+4*ks+3}], {ureg(wreg(ti, ks), 8)}, v3'
    def cvt(dst, src):
        return [f'v_cvt_pk_bf16_f32 v{dst}, v{src}, v{src+1}', f'v_cvt_pk_bf16_f32 v{dst+1}, v{src+2}, v{src+3}']
    def T(dst): return f'v_mfma_f32_16x16x32_bf16 v[{dst}:{dst+3}], v[{AOP}:{AOP+3}], v[4:7], 0'
    def xrd(buf, kap, tt):
        off = (tt * 14 + 2 * kap) * 1024
        return [f'ds_read_b128 v[{XS[buf]}:{XS[buf]+3}], v116 offset:{off}', f'ds_read_b128 v[{XS[buf]+4}:{XS[buf]+7}], v116 offset:{off+1024}']
    def xrd2(buf, tt):
        return [f'ds_read_b128 v[{XS[buf]}:{XS[buf]+3}], v117 offset:{tt*14*KB}', f'ds_read_b128 v[{XS[buf]+4}:{XS[buf]+7}], v117 offset:{tt*14*KB+1024}']
    xfirst = (lambda: xrd2(0, 0) + xrd2(1, 1)) if MRG else (lambda: xrd(0, 6, 0) + xrd(1, 6, 1))
    def Smm(kap, b, first=False):
        c = '0' if first else f'v[{SACC}:{SACC+3}]'
        return f'v_mfma_f32_16x16x32_bf16 v[{SACC}:{SACC+3}], v[{M+4*kap}:{M+4*kap+3}], v[{b}:{b+3}], {c}'
    def Sx(tt, b, buf):
        return f'v_smfmac_f32_16x16x64_bf16 v[{SX+4*tt}:{SX+4*tt+3}], v[{b}:{b+3}], v[{XS[buf]}:{XS[buf]+7}], v{118 if INL else 3}'
    ZR = list(range(ACC, ACC + 28)) + list(range(SX, SX + 8)) + [AOP + 2 - 2 * half6, AOP + 3 - 2 * half6]
    def zero(lo=0, hi=99):
        for r in ZR[lo:hi]: a(f'v_mov_b32 v{r}, 0')
    o1 = [(k + w) % 4 for k in range(4)] if M_ROT else [0, 1, 2, 3]
    o2 = [4 + (k + w) % 3 for k in range(3)] if M_ROT else [4, 5, 6]
    def ml(ks, first=False):
        a(f'buffer_load_dwordx4 v[{M+4*ks}:{M+4*ks+3}], v2, {SRD}, {"s20" if ks < 4 else "s23"} offen offset:{(ks & 3) * 1024}' + ('' if first and PLAIN_M and st == '' else ' sc1'))
    if ALIGN: a.raw(f'.p2align {ALIGN}\n' + '  s_nop 0\n' * APAD)
    a.label(L('loop'))
    step_bases(a)
    zl = [f'v_mov_b32 v{r}, 0' for r in ZR[3 * M_GAP:]]
    if not USEZ: zero(3 * M_GAP if ZFILL else 0)
    a('s_mov_b32 s30, 0')
    if NANCHK: a('s_mov_b32 s62, 0')
    if SC_ALLPOLL:
        a('s_waitcnt vmcnt(0)')
        a('s_barrier')
        if SC_SLEEP: a(f's_sleep {SC_SLEEP}')
        flagpoll(a, 117, 's20', TR, L('fp'), ABORT)
        stamp(a, 0)
    else:
        if w == 0:
            if SC_SLEEP: a(f's_sleep {SC_SLEEP}')
            flagpoll(a, 0, 's20', TR, L('fp'), ABORT, PD_S, PG_S, lanes=32, fill=list(zl) if USEZ else None)
            if SC_DELAY: a.nop(SC_DELAY)
            ml(o1[0], True)
            a('s_barrier')
            stamp(a, 0)
            a(f's_branch {L("ld1")}')
        else:
            if not (V5 and w == 3): a('s_waitcnt vmcnt(0)')
            if not V5: stamp(a, 7)
            a('s_barrier')
            stamp(a, 0)
    a.label(L('ld'))
    ml(o1[0], NANCHK)
    if w == 0: a.label(L('ld1'))
    order = o1 + o2
    for i, ks in enumerate(order[1:NPRE]):
        if i < 3:
            if ZFILL: zero(i * M_GAP, (i + 1) * M_GAP)
            else: a.nop(M_GAP)
        ml(ks, NANCHK)
    if ZFILL and NPRE < 4: zero((NPRE - 1) * M_GAP, 3 * M_GAP)
    if NANCHK and NPRE == 7: a.label(L('ld2'))
    for x in xfirst(): a(x)
    ck = Checker(a, 118)
    issued = NPRE
    late = order[NPRE:]; nv = 0
    def xop(f):
        o = []
        if f == 0: o += [f's_xor_b32 s58, s25, {XSEG_B}', f's_add_u32 s59, s24, {XSEG_B}', f's_add_u32 m0, s58, {7*w*1024}']
        if f == 4: o += ['s_add_u32 s59, s59, 4096', 's_add_u32 m0, m0, 4096']
        return o, f'buffer_load_dwordx4 v2, {SRD}, s59 offen offset:{(f & 3) * 1024} sc1 lds'
    xpos = {XP0 + (w if XSK else 0) + XST * f: f for f in range(XIN)}
    for i, ks in enumerate(o1):
        a(f's_waitcnt vmcnt({issued-1-i})')
        if i < EC_M:
            a.label(L(f'e{i}'))
            r = M + 4 * ks
            a(f'v_max3_u32 v{TR}, v{r}, v{r+1}, v{r+2}')
            a(f'v_max_u32 v{TR}, v{TR}, v{r+3}')
            a(f'v_cmp_eq_u32 vcc, -1, v{TR}')
            a(f's_cbranch_vccnz {L(f"er{i}")}')
        elif not NANCHK: ck.add(M + 4 * ks)
        if i == 0: stamp(a, 1)
        for ti in range(7):
            a(S(ti, ks))
            if ti in (1, 3): ck.emit()
            if i < ECM:
                r = M + 4 * ks
                if ti == 0: a(f'v_max3_u32 v{TR}, v{r}, v{r+1}, v{r+2}' if i == 0 else f'v_max3_u32 v{TR}, v{TR}, v{r}, v{r+1}')
                if ti == 2: a(f'v_max_u32 v{TR}, v{TR}, v{r+3}' if i == 0 else f'v_max3_u32 v{TR}, v{TR}, v{r+2}, v{r+3}')
                if i == ECM - 1 and ti == 3: a(f'v_cmp_eq_u32 vcc, -1, v{TR}')
                if i == ECM - 1 and ti == 6: a(f's_cbranch_vccnz {L("retry")}')
            if late and ((7 * i + ti == (1 if late[0] == 3 else L4 + 2 * (late[0] - 4))) if L4 else ti in ((LPOS, LPOS + 3) if LPOS < 4 else (LPOS - 4,))):
                ml(late.pop(0), NANCHK); issued += 1
            if 7 * i + ti + 1 in xpos:
                for x in xop(xpos[7 * i + ti + 1])[0]: a(x)
            if 7 * i + ti in xpos:
                a(xop(xpos[7 * i + ti])[1]); nv += 1; issued += 1
            if V5 and nv < 4 and 7 * i + ti >= V5P + 3 * nv:
                a(f's_add_u32 s22, s35, {(4*w + nv)*1792}')
                a(f's_mov_b32 m0, {VL + (4*w + nv)*1024}')
                a(f'buffer_load_dwordx4 v118, {SRD}, s22 offen sc1 lds'); nv += 1; issued += 1
    assert not late
    a(f's_waitcnt vmcnt({nv + (2 if CW else 0)})')
    if NPRE < 7: a.label(L('ph2'))
    stamp(a, 2)
    for k in (4, 5, 6):
        if not NANCHK: ck.add(M + 4 * k)
    seq = []
    for ti in (6, 4, 5, 0, 1, 2, 3):
        for ks in (4, 5, 6): seq.append([S(ti, ks), []])
    def side(i, ops): seq[i][1] += ops
    CK = 'CK'
    for i in range(6): side(i, [CK])
    if MRG:
        M2 = 80
        side(0, xrd(2, ka, 0))
        if CW:
            seq[:6] = [seq[0], seq[3], seq[1], seq[4], seq[2], seq[5]]
            side(1, ['s_waitcnt vmcnt(1)']); side(3, ['s_waitcnt vmcnt(0)'])
        if (w == 1 or w == 2) and not VAL_TOUCH: side(TPS2 or (4 if CW else 1), [f'buffer_load_dword v119, v0, {SRD}, {"s20" if w == 1 else "s24"} offen sc1'])
        mv = [f'v_mov_b32 v{M2+k}, v{M+4*kb+2*pieceP+k}' for k in range(2)] + [f'v_mov_b32 v{M2+2+k}, v{M+24+2*piece6+k}' for k in range(2)]
        c6 = cvt(AOP + 2 * half6, ACC + 24)
        if CW:
            side(5, mv[:1]); side(6, mv[1:2]); side(7, c6); side(13, mv[2:3]); side(19, mv[3:])
        else:
            side(2, mv[:1]); side(3, mv[1:2]); side(4, mv[2:3]); side(7, mv[3:])
            side(5, c6[:1]); side(6, c6[1:])
        seq.insert(8, [T(TR), []])
        cb6 = cvt(BOP6 + 2, TR)
        side(11, cb6[:1]); side(12, cb6[1:])
        c4, c5 = cvt(AOP, ACC + 16), cvt(AOP + 2, ACC + 20)
        side(9, c4[:1]); side(10, c4[1:]); side(12, c5[:1]); side(13, c5[1:])
        seq.insert(15, [T(TR + 4), xrd(3, ka, 1)])
        c0, c1 = cvt(AOP, ACC), cvt(AOP + 2, ACC + 4)
        side(16, c0[:1]); side(17, c0[1:])
        cbb = cvt(BOP6, TR + 4)
        side(18, cbb[:1]); side(19, cbb[1:] + c1[:1]); side(20, c1[1:])
        seq.insert(22, [T(TR), []])
        c2, c3 = cvt(AOP, ACC + 8), cvt(AOP + 2, ACC + 12)
        side(23, c2[:1])
        seq.append([f'v_mfma_f32_16x16x32_bf16 v[{SACC}:{SACC+3}], v[{M2}:{M2+3}], v[{BOP6}:{BOP6+3}], 0', c2[1:] + ['s_waitcnt lgkmcnt(0)']])
        ca0 = cvt(BOPA, TR)
        seq.append([Sx(0, BOP6, 0), ca0 + c3])
        seq.append([T(TR + 4), []])
        seq.append([Sx(1, BOP6, 1), cvt(BOPA + 2, TR + 4)])
        seq.append([Smm(ka, BOPA), []])
        seq.append([Sx(0, BOPA, 2), []])
        seq.append([Sx(1, BOPA, 3), []])
    else:
        side(0, xrd(2, kb, 0))
        if SC_TOUCH: side(TOUCH_POS, [f'buffer_load_dword v119, v117, {SRD}, s35 offen sc1'])
        if not VAL_TOUCH and ((w == 1 and not SELF_POISON) or (w == 2 and not X_PRELOAD)): side(TOUCH_POS - 1, [f'buffer_load_dword v119, v0, {SRD}, {"s20" if w == 1 else "s24"} offen sc1'])
        c6 = cvt(AOP + 2 * half6, ACC + 24)
        side(5, c6[:1]); side(6, c6[1:] + ['v_cmp_eq_u32 vcc, -1, v118'])
        seq.insert(8, [T(TR), []])
        side(9, [f's_cbranch_vccnz {L("retry")}'])
        cb6 = cvt(BOP6 + 2 * piece6, TR)
        side(11, cb6[:1]); side(12, cb6[1:])
        c4, c5 = cvt(AOP, ACC + 16), cvt(AOP + 2, ACC + 20)
        side(9, c4[:1]); side(10, c4[1:]); side(12, c5[:1]); side(13, c5[1:])
        seq.insert(15, [T(TR + 4), xrd(3, kb, 1)])
        c0, c1 = cvt(AOP, ACC), cvt(AOP + 2, ACC + 4)
        side(16, c0[:1]); side(17, c0[1:])
        cbb = cvt(BOPB + 2 * pieceP, TR + 4)
        side(18, cbb[:1]); side(19, cbb[1:] + c1[:1]); side(20, c1[1:])
        seq.insert(22, [T(TR), xrd(4, ka, 0)])
        c2, c3 = cvt(AOP, ACC + 8), cvt(AOP + 2, ACC + 12)
        side(23, ['s_waitcnt lgkmcnt(4)'] + c2[:1])
        seq.append([Smm(6, BOP6, True), c2[1:]])
        seq.append([Sx(0, BOP6, 0), xrd(0, ka, 1)])
        ca0 = cvt(BOPA, TR)
        seq.append([Sx(1, BOP6, 1), c3])
        seq.append([Smm(kb, BOPB), ca0[:1]])
        seq.append([T(TR + 4), ca0[1:] + ['s_waitcnt lgkmcnt(4)']])
        seq.append([Sx(0, BOPB, 2), []])
        seq.append([Sx(1, BOPB, 3), ['s_waitcnt lgkmcnt(0)'] + cvt(BOPA + 2, TR + 4)])
        if FOLDW:
            seq.append([Smm(ka, BOPA), []])
            seq.append([Sx(0, BOPA, 4), []])
            seq.append([Sx(1, BOPA, 0), []])
        else:
            seq.append([Sx(0, BOPA, 4), []])
            seq.append([Sx(1, BOPA, 0), []])
            seq.append([Smm(ka, BOPA), []])
    for i2, (m, ops) in enumerate(seq):
        a(m)
        if 28 + i2 + 1 in xpos:
            for x in xop(xpos[28 + i2 + 1])[0]: a(x)
        if 28 + i2 in xpos: a(xop(xpos[28 + i2])[1])
        for o in ops:
            if o == CK: ck.emit()
            elif NANCHK and (o.startswith('v_cmp') or o.startswith('s_cbranch')): pass
            else:
                if o.startswith('v_cmp'): ck.drain()
                a(o)
    if INL:
        QX = f'quad_perm:[1,0,3,2] {D}'
        a(f'v_permlane32_swap_b32 v{SACC}, v{SACC+2}')
        a(f'v_permlane32_swap_b32 v{SACC+1}, v{SACC+3}')
        a(f'v_add_f32 v{SX}, v{SX}, v{SX+1}')
        a(f'v_add_f32_dpp v{SACC}, v{SACC+2}, v{SACC} {QX}')
        a(f'v_add_f32_dpp v{SACC+1}, v{SACC+3}, v{SACC+1} {QX}')
        a(f'v_add_f32 v{SX+1}, v{SX+2}, v{SX+3}')
        if WSPL == 2:
            if NOW: a(f'v_cmp_u_f32 vcc, v{SX}, v{SX+1}')
            a(f'ds_write2_b32 v113, v{SACC}, v{SACC+1} offset0:0 offset1:4')
            a(f'ds_write2_b32 v112, v{SX}, v{SX+1} offset0:0 offset1:128')
            a(f'v_add_f32 v{SX+2}, v{SX+4}, v{SX+5}')
            a(f'v_add_f32 v{SX+3}, v{SX+6}, v{SX+7}')
            a(f'ds_write2_b32 v112, v{SX+2}, v{SX+3} offset0:64 offset1:192')
        elif WSPL:
            a(f'ds_write2_b32 v113, v{SACC}, v{SACC+1} offset0:0 offset1:4')
            a(f'ds_write_b64 v112, v[{SX}:{SX+1}]')
            a(f'v_add_f32 v{SX+2}, v{SX+4}, v{SX+5}')
            a(f'v_add_f32 v{SX+3}, v{SX+6}, v{SX+7}')
            a(f'ds_write_b64 v112, v[{SX+2}:{SX+3}] offset:256')
        else:
            a(f'ds_write2_b32 v113, v{SACC}, v{SACC+1} offset0:0 offset1:4')
            a(f'v_add_f32 v{SX+2}, v{SX+4}, v{SX+5}')
            a(f'v_add_f32 v{SX+3}, v{SX+6}, v{SX+7}')
            a(f'ds_write2_b64 v112, v[{SX}:{SX+1}], v[{SX+2}:{SX+3}] offset0:0 offset1:32')
        if not NOW: a(f'v_cmp_u_f32 vcc, v{SX}, v{SX+1}')
    elif RED2:
        a(f'v_permlane32_swap_b32 v{SACC}, v{SACC+2}')
        a(f'v_permlane32_swap_b32 v{SACC+1}, v{SACC+3}')
        a(f'v_cmp_u_f32 vcc, v{SX}, v{SX+1}')
        a(f'v_add_f32_dpp v{SACC}, v{SACC+2}, v{SACC} row_ror:8 {D}')
        a(f'v_add_f32_dpp v{SACC+1}, v{SACC+3}, v{SACC+1} row_ror:8 {D}')
        for r in range(2): a(f'v_permlane32_swap_b32 v{SX+r}, v{SX+4+r}')
        a(f'ds_write2_b32 v113, v{SACC}, v{SACC+1} offset0:0 offset1:4')
        for r in range(2, 4): a(f'v_permlane32_swap_b32 v{SX+r}, v{SX+4+r}')
        for r in range(4): a(f'v_add_f32 v{SX+r}, v{SX+r}, v{SX+4+r}')
        a(f'ds_write2_b64 v112, v[{SX}:{SX+1}], v[{SX+2}:{SX+3}] offset0:0 offset1:{XRP // 8}')
    elif FOLDW:
        a('s_mov_b64 exec, s[26:27]')
        a(f'ds_write_b128 v113, v[{SACC}:{SACC+3}]')
        a('s_mov_b64 exec, -1')
        a(f'v_cmp_u_f32 vcc, v{SX}, v{SX+1}')
        for r in range(4): a(f'v_permlane32_swap_b32 v{SX+r}, v{SX+4+r}')
        for r in range(4): a(f'v_add_f32 v{SX+r}, v{SX+r}, v{SX+4+r}')
        a(f'ds_write_b128 v112, v[{SX}:{SX+3}]')
    else:
        a(f'ds_write_b128 v112, v[{SX}:{SX+3}]')
        if NANCHK: a(f'v_cmp_u_f32 vcc, v{SX}, v{SX+1}')
        a(f'ds_write_b128 v112, v[{SX+4}:{SX+7}] offset:256')
        a('s_mov_b64 exec, s[26:27]')
        a(f'ds_write_b128 v113, v[{SACC}:{SACC+3}]')
        a('s_mov_b64 exec, -1')
    if NANCHK:
        a(f's_cbranch_vccnz {L("retry")}')
        a.label(L('cont'))
    stamp(a, 3)
    if not NOW: a('s_waitcnt lgkmcnt(0)')
    a('s_barrier')
    stamp(a, 4)
    t = ACC
    if RED2:
        a(f'ds_read_b128 v[{t}:{t+3}], v114')
        a(f'ds_read_b128 v[{t+8}:{t+11}], v115')
    else:
        for k in range(2 if FOLDW else 4): a(f'ds_read_b64 v[{t+2*k}:{t+2*k+1}], v114 offset:{k*1024}')
        a(f'ds_read2_b32 v[{t+8}:{t+9}], v115 offset0:0 offset1:64')
    if w == F1_WAVE and not F1O: a(f'v_lshl_add_u32 v{t+20}, v2, 3, s36')
    np1 = [0]
    def ep1(k):
        if V5 and w == 3 and k >= V5E:
            a(f'buffer_load_dword v{8+np1[0]}, v0, {SRD}, s20 offen sc1'); np1[0] += 1
    def f1(pos):
        if w == F1_WAVE and pos == F1_POS and F1O: a(f'buffer_store_dword v2, v119, {SRD}, s20 offen {st}')
        elif w == F1_WAVE and pos == F1_POS:
            exec_lo(a, R1)
            a(f'buffer_store_dword v2, v{t+20}, {SRD}, s20 offen {st}')
            a('s_mov_b64 exec, -1')
    if F1_POS < 0 and w == F1_WAVE:
        a.nop(4 * (F1_POS + 4)); f1(F1_POS)
    a('s_waitcnt lgkmcnt(0)')
    f1(0)
    stamp(a, 5)
    sm, sx = t + 8, t
    if RED2:
        a(f'v_add_f32 v{t}, v{t}, v{t+2}')
        f1(8)
        a(f'v_add_f32 v{t+1}, v{t+1}, v{t+3}')
        f1(9)
        a(f'v_add_f32 v{t+8}, v{t+8}, v{t+9}')
        f1(10)
        a(f'v_add_f32 v{t+10}, v{t+10}, v{t+11}')
        if WSPL != 2: a(f'v_permlane32_swap_b32 v{t}, v{t+1}')
        a(f'v_add_f32 v{sm}, v{t+8}, v{t+10}')
        f1(11)
        a(f'v_add_f32 v{sx}, v{t}, v{t+1}')
    else:
        a(f'v_add_f32 v{sm}, v{t+8}, v{t+9}')
        a(f'v_add_f32 v{t}, v{t}, v{t+2}')
        a(f'v_add_f32 v{t+1}, v{t+1}, v{t+3}')
        f1(10)
        a(f'v_add_f32_dpp v{sm}, v{sm}, v{sm} row_ror:8 {D}')
        if FOLDW:
            a(f'v_mov_b32 v{t+9}, v{sm}')
            f1(11)
            a(f'v_permlane32_swap_b32 v{t}, v{t+1}')
            a(f'v_add_f32 v{sx}, v{t}, v{t+1}')
            f1(12)
            a(f'v_permlane16_swap_b32 v{sm}, v{t+9}')
            a(f'v_add_f32 v{sm}, v{sm}, v{t+9}')
            f1(13)
        else:
            a(f'v_add_f32 v{t+4}, v{t+4}, v{t+6}')
            a(f'v_add_f32 v{t+5}, v{t+5}, v{t+7}')
            a(f'v_mov_b32 v{t+9}, v{sm}')
            a(f'v_add_f32 v{t}, v{t}, v{t+4}')
            a(f'v_add_f32 v{t+1}, v{t+1}, v{t+5}')
            a(f'v_permlane16_swap_b32 v{sm}, v{t+9}')
            a(f'v_add_f32 v{sm}, v{sm}, v{t+9}')
            a(f'v_permlane32_swap_b32 v{t}, v{t+1}')
            a(f'v_add_f32 v{sx}, v{t}, v{t+1}')
    if FAST:
        ex, em, ab = t + 12, t + 13, t + 14
        l = t + 3; u = t + 4; v = t + 5; lo = t + 6; hi = t + 7
        def norm(fast):
            a(f'v_fma_f32 v{l}, v{em}, s37, v{ex}')
            if fast: a(f'v_cmp_ngt_f32 vcc, s56, v{ab}')
            a(f'v_cndmask_b32 v{v}, v{ex}, v{em}, s[38:39]')
            a(f'v_add_f32_dpp v{l}, v{l}, v{l} quad_perm:[1,0,3,2] {D}')
            a(f'v_cndmask_b32 v{u}, v{em}, v{ex}, s[38:39]')
            a(f'v_mov_b32_dpp v{t+10}, v{v} quad_perm:[1,0,3,2] {D}')
            a(f'v_add_f32_dpp v{l}, v{l}, v{l} quad_perm:[2,3,0,1] {D}')
            a(f'v_cndmask_b32 v{lo}, v{t+10}, v{u}, s[38:39]')
            a(f'v_cndmask_b32 v{hi}, v{u}, v{t+10}, s[38:39]')
            a(f'v_add_f32_dpp v{l}, v{l}, v{l} row_half_mirror {D}')
            if fast: a(f's_cbranch_vccnz {L("slow")}')
            if fast: ep1(0)
            a(f'v_add_f32_dpp v{t+11}, v{l}, v{l} row_mirror {D}')
            a(f'v_add_f32_dpp v{l}, v{l}, v{l} row_mirror {D}')
            if fast: ep1(1)
            a(f'v_permlane16_swap_b32 v{l}, v{t+11}')
            a(f'v_add_f32 v{l}, v{l}, v{t+11}')
            a(f'v_rcp_f32 v{l}, v{l}')
            a('s_mov_b64 exec, s[28:29]')
            a(f'v_mul_f32 v{lo}, v{lo}, v{l}')
            a(f'v_mul_f32 v{hi}, v{hi}, v{l}')
            a(f'v_cvt_pk_bf16_f32 v{lo}, v{lo}, v{hi}')
        if RED2: a(f'v_exp_f32 v{em}, v{sm}')
        a(f'v_exp_f32 v{ex}, v{sx}')
        if not RED2: a(f'v_exp_f32 v{em}, v{sm}')
        a(f'v_add_f32 v{ab}, abs(v{sx}), abs(v{sm})')
        f1(1)
        norm(True)
        a.label(L('pst'))
    else:
        mx = t + 2
        a(f'v_max_f32 v{mx}, v{sx}, v{sm}')
        f1(1)
        a(f'v_max_f32_dpp v{mx}, v{mx}, v{mx} quad_perm:[1,0,3,2] {D}')
        a(f'v_max_f32_dpp v{mx}, v{mx}, v{mx} quad_perm:[2,3,0,1] {D}')
        a(f'v_max_f32_dpp v{mx}, v{mx}, v{mx} row_half_mirror {D}')
        a(f'v_max_f32_dpp v{mx}, v{mx}, v{mx} row_mirror {D}')
        a(f'v_mov_b32 v{t+3}, v{mx}')
        a(f'v_permlane16_swap_b32 v{mx}, v{t+3}')
        a(f'v_max_f32 v{mx}, v{mx}, v{t+3}')
        f1(2)
        a(f'v_sub_f32 v{sx}, v{sx}, v{mx}')
        a(f'v_sub_f32 v{sm}, v{sm}, v{mx}')
        a(f'v_exp_f32 v{sx}, v{sx}')
        a(f'v_exp_f32 v{sm}, v{sm}')
        l = t + 3; u = t + 4; v = t + 5; lo = t + 6; hi = t + 7
        a(f'v_fma_f32 v{l}, v{sm}, s37, v{sx}')
        a(f'v_cndmask_b32 v{u}, v{sm}, v{sx}, s[38:39]')
        a(f'v_cndmask_b32 v{v}, v{sx}, v{sm}, s[38:39]')
        a(f'v_add_f32_dpp v{l}, v{l}, v{l} quad_perm:[1,0,3,2] {D}')
        a(f'v_mov_b32_dpp v{t+10}, v{v} quad_perm:[1,0,3,2] {D}')
        a(f'v_add_f32_dpp v{l}, v{l}, v{l} quad_perm:[2,3,0,1] {D}')
        a(f'v_cndmask_b32 v{lo}, v{t+10}, v{u}, s[38:39]')
        a(f'v_cndmask_b32 v{hi}, v{u}, v{t+10}, s[38:39]')
        f1(3)
        a(f'v_add_f32_dpp v{l}, v{l}, v{l} row_half_mirror {D}')
        a(f'v_add_f32_dpp v{l}, v{l}, v{l} row_mirror {D}')
        a(f'v_mov_b32 v{t+11}, v{l}')
        a(f'v_permlane16_swap_b32 v{l}, v{t+11}')
        a(f'v_add_f32 v{l}, v{l}, v{t+11}')
        f1(4)
        a(f'v_rcp_f32 v{l}, v{l}')
        a(f'v_mul_f32 v{lo}, v{lo}, v{l}')
        a(f'v_mul_f32 v{hi}, v{hi}, v{l}')
        a(f'v_cvt_pk_bf16_f32 v{lo}, v{lo}, v{hi}')
        a(f'v_min_u32 v{lo}, -2, v{lo}')
        a('s_mov_b64 exec, s[28:29]')
    a(f'buffer_store_dword v{lo}, v1, {SRD}, s20 offen {st}')
    a('s_mov_b64 exec, -1')
    f1(5)
    stamp(a, 6)
    if V5:
        PR, YT, LO, HI, VS = 8, 48, 64, 68, 72
        co = [0, 1, 2, 3, 4, 8, 9, 5, 6, 7]
        pr = lambda c: PR + 4 * co.index(c)
        bo = lambda c: YT + 8 * (c - 8) if c >= 8 else VS + 8 * (c % 5)
        def vrd(c):
            for k in range(2): a(f'ds_read_b128 v[{bo(c)+4*k}:{bo(c)+4*k+3}], v2 offset:{VL - 65536 + (2*c + k)*1024}')
        if w == 3:
            n0 = np1[0]
            def yld():
                for k in range(4): a(f'buffer_load_dwordx4 v[{YT+4*k}:{YT+4*k+3}], v119, {SRD}, s58 offen offset:{k*1024} sc1')
            for k in range(n0, PD_V):
                if YE and k == n0: yld()
                a(f'buffer_load_dword v{8+k}, v0, {SRD}, s20 offen sc1')
                if k == n0:
                    a(f'v_add_u32 v2, 0x10000, v2')
                    a(f'ds_read_b128 v[4:7], v2 offset:{CL - 65536}')
                    a(f's_waitcnt vmcnt({n0 + 2 + 4*YE})')
                    a('s_barrier')
                    for c in range(2): vrd(c)
                elif k == n0 + 1:
                    for c in range(2, 5): vrd(c)
                    a(f'v_subrev_u32 v2, 0x10000, v2')
                elif k == n0 + 2:
                    a(f's_add_u32 s22, s20, {PX}')
                    a(f's_add_u32 s34, s20, {PX + 4096}')
                    a(f's_add_u32 s23, s20, {PM}')
                    a('s_mov_b32 s62, 0')
                    for r in range(4): a(f'v_mov_b32 v{LO+r}, 0')
                else: a.nop(PG_V)
            flagpoll(a, 0, 's20', 8, L('fw'), ABORT, PD_V, 0, PD_V)
            def pld(c):
                so = ('s22', 's34', 's23')[c // 4]
                a(f'buffer_load_dwordx4 v[{pr(c)}:{pr(c)+3}], v{4 if c < 8 else 2}, {SRD}, {so} offen offset:{(c & 3)*1024} sc1')
            def psm(c): a(f'v_smfmac_f32_16x16x64_bf16 v[{LO}:{LO+3}], v[{pr(c)}:{pr(c)+3}], v[{bo(c)}:{bo(c)+7}], v5')
            a('s_waitcnt lgkmcnt(0)')
            q = []
            for c in co:
                if c == 8 and not YE: yld(); q += ['y'] * 4
                pld(c); q.append(c)
            a('s_barrier')
            a(f'v_add_u32 v2, 0x10000, v2')
            for i, c in enumerate(co):
                a(f's_waitcnt vmcnt({len(q) - 1 - q.index(c)})' + (f' lgkmcnt({2*(7-c)})' if 5 <= c < 8 else ''))
                psm(c)
                if c < 3: vrd(c + 5)
                if i == V5F2:
                    q.append('f')
                    exec_lo(a, R2)
                    a(f'buffer_store_dword v2, v6, {SRD}, s21 offen {st}')
                    a('s_mov_b64 exec, -1')
            a.label(L('ep'))
            a(f'v_add_f32 v{HI}, v{LO}, v{LO+1}')
            a(f'v_add_f32 v{HI+1}, v{LO+2}, v{LO+3}')
            a(f'v_cmp_u_f32 vcc, v{HI}, v{HI+1}')
            a(f'v_mov_b32_dpp v{HI+2}, v{HI} row_ror:8 {D}')
            a(f'v_mov_b32_dpp v{HI}, v{HI+1} row_ror:8 row_mask:0xf bank_mask:0xc')
            a(f's_cbranch_vccnz {L("rp")}')
            a(f'v_mov_b32_dpp v{HI+1}, v{HI+2} quad_perm:[0,1,2,3] row_mask:0xf bank_mask:0x3')
            a(f'v_cvt_pk_bf16_f32 v{HI}, v{HI}, v{HI+1}')
            a.label(L('pc'))
            a('s_mov_b64 exec, s[64:65]')
            a(f'buffer_store_dword v{HI}, v7, {SRD}, s21 offen {st}')
            a(f's_cmp_lg_u32 s19, {NSTEPS-2}')
            a(f's_cbranch_scc1 {L("nl")}')
            a(f's_mov_b32 s22, {MEMG_OFF + (NSTEPS-1)*7*KB}')
            a(f'buffer_store_dword v{HI}, v7, {SRD}, s22 offen sc1')
            a.label(L('nl'))
            a('s_mov_b64 exec, -1')
            stamp(a, 7)
            a(f'ds_read_b128 v[4:7], v2 offset:{CL - 65536 + 1024}')
            a(f'v_subrev_u32 v2, 0x10000, v2')
            if V5 == 1:
                for r in range(4): a(f'v_mov_b32 v{YT+r}, -1')
                for k in range(4): a(f'buffer_store_dwordx4 v[{YT}:{YT+3}], v2, {SRD}, s58 offen offset:{k*1024} {st}')
                a(f's_xor_b32 s58, s58, {T2X_B}')
            a('s_waitcnt lgkmcnt(0)')
        else:
            a('s_waitcnt vmcnt(1)')
            a('s_barrier')
            a('s_barrier')
            if XG: a.nop(XG)
    else:
        a('s_barrier')
        if NOW: repoison(a)
        if S0 and w == F1_WAVE:
            a('s_cmp_lg_u32 s19, 0')
            a(f's_cbranch_scc1 {L("s0")}')
            a('s_sub_u32 s36, s36, 64')
            if F1O: a('v_subrev_u32 v119, 64, v119')
            a(f'v_lshl_add_u32 v{t+20}, v2, 3, s36')
            exec_lo(a, R1)
            a(f'buffer_store_dword v2, v{t+20}, {SRD}, s20 offen {st}')
            a('s_mov_b64 exec, -1')
            a.label(L('s0'))
    def vtouch():
        a('v_lshlrev_b32 v8, 3, v2')
        a(f's_mov_b64 exec, s[66:67]')
        a(f'buffer_load_dword v9, v8, {SRD}, s60 offen sc1')
        a('s_mov_b64 exec, -1')
        a('s_mov_b32 s60, s35')
    if VT and not VTL: vtouch()
    if DMA_DELAY: a.nop(DMA_DELAY)
    if not NOBULK: a(f's_add_u32 s24, s24, {XSEG_B}')
    if not NOBULK: a(f's_add_u32 s35, s35, {GSH_B}')
    a(f's_xor_b32 s25, s25, {XSEG_B}')
    if NOX: pass
    elif not V5: x_dma(a, w, XG, XIN, (list(zl) if w else []) if USEZ else None)
    elif w < 3:
        x_dma(a, w)
        for f in range(21 + w, 28, 3):
            a(f's_add_u32 m0, s25, {f*1024}')
            a(f's_add_u32 s22, s24, {(f - 7*w)*1024}')
            a(f'buffer_load_dwordx4 v2, {SRD}, s22 offen sc1 lds')
    if VT and VTL:
        a(f's_sub_u32 s35, s35, {GSH_B}')
        vtouch()
        a(f's_add_u32 s35, s35, {GSH_B}')
    a(f'v_xor_b32 v116, {XSEG_B}, v116')
    if MRG:
        a('v_add_u32 v117, s57, v117')
        a('s_sub_u32 s57, 0, s57')
    stamp_flush(a, w, 8, L('sf'), 8)
    if TMAX and w == 3:
        a('s_cmp_lg_u32 s17, 0')
        a(f's_cbranch_scc1 {L("tm")}')
        for k, stp in enumerate((1, 20, 40, 62)):
            a(f's_cmp_lg_u32 s19, {stp}')
            a(f's_cbranch_scc1 {L(f"tm{k}")}')
            tmax(a, 12 + k, 8)
            a.label(L(f'tm{k}'))
        a.label(L('tm'))
    if STEPLOG and w == 3:
        a('s_memtime s[40:41]')
        a('s_memrealtime s[42:43]')
        a('s_mov_b32 m0, s19')
        a('s_waitcnt lgkmcnt(0)')
        a('v_writelane_b32 v119, s40, m0')
        a('v_writelane_b32 v0, s42, m0')
    a('s_add_u32 s19, s19, 1')
    a('s_mov_b32 s20, s21')
    a(f's_cmp_lt_u32 s19, {NSTEPS-1}')
    a.flush()
    a(f's_cbranch_scc1 {L("loop")}')
    if STEPLOG and w == 3:
        a('s_lshl_b32 s22, s17, 8')
        a(f's_add_u32 s22, s22, {STAMP_OFF}')
        a('v_lshrrev_b32 v8, 2, v2')
        a(f'buffer_store_dword v119, v8, {SRD}, s22 offen')
        a('s_add_u32 s22, s22, 4096')
        a(f'buffer_store_dword v0, v8, {SRD}, s22 offen')
    a(f's_branch {tag}_done')
    for i in range(EC_M):
        a.label(L(f'er{i}'))
        ml(o1[i])
        a('s_waitcnt vmcnt(0)')
        a('s_add_u32 s31, s31, 0x100')
        spin(a, L(f'e{i}'), ABORT)
    if V5 and w == 3:
        a.label(L('rp'))
        a('s_cmp_eq_u32 s62, 0')
        a(f's_cbranch_scc1 {L("pv")}')
        a(f'v_mov_b32_dpp v{HI+1}, v{HI+2} quad_perm:[0,1,2,3] row_mask:0xf bank_mask:0x3')
        a(f'v_cvt_pk_bf16_f32 v{HI}, v{HI}, v{HI+1}')
        a(f'v_min_u32 v{HI}, -2, v{HI}')
        a(f's_branch {L("pc")}')
        a.label(L('pv'))
        a(f'v_subrev_u32 v2, 0x10000, v2')
        yld()
        for c in co: pld(c)
        a(f'v_add_u32 v2, 0x10000, v2')
        a('s_waitcnt vmcnt(0)')
        ck2 = Checker(a, HI)
        ck2.add(PR, 56); ck2.drain()
        a(f'v_cmp_eq_u32 vcc, -1, v{HI}')
        a(f's_cbranch_vccz {L("pk")}')
        spin(a, L('pv'), ABORT)
        a.label(L('pk'))
        a('s_mov_b32 s62, 1')
        a('s_add_u32 s31, s31, 0x10000')
        for r in range(4): a(f'v_mov_b32 v{LO+r}, 0')
        for c in (5, 6, 7, 3, 4, 8, 9): psm(c)
        for c in range(3): vrd(c)
        a('s_waitcnt lgkmcnt(0)')
        for c in range(3): psm(c)
        a.flush()
        a(f's_branch {L("ep")}')
    if FAST:
        a.label(L('slow'))
        if NOW:
            assert WSPL == 2
            a('s_mov_b32 s30, 0')
            a.label(L('sr'))
            a(f'ds_read_b128 v[{t}:{t+3}], v114')
            a(f'ds_read_b128 v[{t+8}:{t+11}], v115')
            a('s_waitcnt lgkmcnt(0)')
            a(f'v_max3_u32 v{ab}, v{t}, v{t+1}, v{t+2}')
            a(f'v_max3_u32 v{ab}, v{ab}, v{t+3}, v{t+8}')
            a(f'v_max3_u32 v{ab}, v{ab}, v{t+9}, v{t+10}')
            a(f'v_max_u32 v{ab}, v{ab}, v{t+11}')
            a(f'v_cmp_eq_u32 vcc, -1, v{ab}')
            a(f's_cbranch_vccz {L("sk")}')
            a('s_add_u32 s30, s30, 1')
            a('s_cmp_lt_u32 s30, 1000')
            a(f's_cbranch_scc1 {L("sr")}')
            a.label(L('sk'))
            a(f'v_add_f32 v{t}, v{t}, v{t+2}')
            a(f'v_add_f32 v{t+1}, v{t+1}, v{t+3}')
            a(f'v_add_f32 v{t+8}, v{t+8}, v{t+9}')
            a(f'v_add_f32 v{t+10}, v{t+10}, v{t+11}')
            a(f'v_add_f32 v{sm}, v{t+8}, v{t+10}')
            a(f'v_add_f32 v{sx}, v{t}, v{t+1}')
        mx = ab
        a(f'v_max_f32 v{mx}, v{sx}, v{sm}')
        for pm in ('quad_perm:[1,0,3,2]', 'quad_perm:[2,3,0,1]', 'row_half_mirror', 'row_mirror'): a(f'v_max_f32_dpp v{mx}, v{mx}, v{mx} {pm} {D}')
        a(f'v_mov_b32 v{t+11}, v{mx}')
        a(f'v_permlane16_swap_b32 v{mx}, v{t+11}')
        a(f'v_max_f32 v{mx}, v{mx}, v{t+11}')
        a(f'v_sub_f32 v{ex}, v{sx}, v{mx}')
        a(f'v_sub_f32 v{em}, v{sm}, v{mx}')
        a(f'v_exp_f32 v{ex}, v{ex}')
        a(f'v_exp_f32 v{em}, v{em}')
        a('s_add_u32 s31, s31, 0x100')
        for k in range(np1[0]): a(f'v_mov_b32 v{8+k}, -1')
        norm(False)
        a(f'v_min_u32 v{lo}, -2, v{lo}')
        a(f's_branch {L("pst")}')
    a.label(L('retry'))
    if NANCHK:
        a('s_cmp_lg_u32 s62, 0')
        a(f's_cbranch_scc1 {L("cont")}')
        a('s_waitcnt vmcnt(0) lgkmcnt(0)')
        a.label(L('rv'))
        for ks in range(7): ml(ks)
        a('s_waitcnt vmcnt(0)')
        ck2 = Checker(a, TR)
        ck2.add(M, 28); ck2.drain()
        a(f'v_cmp_eq_u32 vcc, -1, v{TR}')
        a(f's_cbranch_vccz {L("rk")}')
        spin(a, L('rv'), ABORT)
        a.label(L('rk'))
        a('s_mov_b32 s62, 1')
        if NOW: repoison(a)
        zero()
        a('s_add_u32 s31, s31, 1')
        if NPRE == 7: a(f's_branch {L("ld2")}')
        else:
            for x in xfirst(): a(x)
            for ks in o1:
                for ti in range(7): a(S(ti, ks))
            for k_, f in sorted(xpos.items()):
                if k_ <= 28:
                    for x in xop(f)[0]: a(x)
            a(f's_branch {L("ph2")}')
    else:
        a('s_waitcnt vmcnt(0) lgkmcnt(0)')
        a.nop(10)
        zero()
        a('s_add_u32 s31, s31, 1')
        spin(a, L('ld'), ABORT)

def init_score(a, w):
    AOP = 64
    a(f's_mul_i32 s31, s17, {CUW_B}')
    a(f's_add_u32 s31, s31, {WF_A}')
    units = [((kap * 4 + q) * TILE_B + ks * UNIT, wreg(ti, ks)) for ti, (kap, q) in enumerate(score_tiles(w)) for ks in range(7) if not SELF or (ti >= 4 and SELF == 1)]
    load_units(a, units, 's31')
    a(f's_mov_b32 s24, {XF_OFF + 7*w*1024}')
    a('s_mov_b32 s25, 0')
    x_dma(a, w)
    a('v_lshrrev_b32 v64, 1, v117' if INL else 'v_and_b32 v64, 7, v117')
    a('v_and_b32 v65, 1, v116')
    a('v_lshlrev_b32 v65, 2, v65')
    a('v_sub_u32 v64, v64, v65')
    a('v_and_b32 v65, 1, v117' if INL else 'v_lshrrev_b32 v65, 3, v117')
    a('v_lshl_add_u32 v66, v65, 2, v64')
    a('v_cmp_gt_u32 vcc, 4, v64')
    a('v_mov_b32 v67, 99')
    a('v_cndmask_b32 v66, v67, v66, vcc')
    a('v_mov_b32 v68, 0x3f80')
    a('v_mov_b32 v69, 0x3f800000')
    for d in range(4):
        a(f'v_mov_b32 v{4+d}, 0')
        a(f'v_cmp_eq_u32 vcc, {2*d}, v66')
        a(f'v_cndmask_b32 v{4+d}, v{4+d}, v68, vcc')
        a(f'v_cmp_eq_u32 vcc, {2*d+1}, v66')
        a(f'v_cndmask_b32 v{4+d}, v{4+d}, v69, vcc')
    a('v_lshrrev_b32 v64, 1, v116')
    a('v_lshrrev_b32 v65, 3, v117')
    a('v_cmp_eq_u32 s[26:27], v64, v65')
    a('v_and_b32 v66, 1, v116')
    a(f'v_add_u32 v64, {2*w}, v64')
    if FOLDW:
        a('v_lshrrev_b32 v67, 1, v116')
        a('v_lshlrev_b32 v67, 8, v67')
    else: a('v_lshlrev_b32 v67, 10, v64')
    a('v_lshl_add_u32 v67, v66, 9, v67')
    a('v_lshl_add_u32 v67, v117, 4, v67')
    a(f'v_add_u32 v112, {XP + (w*1024 if FOLDW else 0)}, v67')
    a('v_and_b32 v68, 7, v117')
    a('v_lshlrev_b32 v67, 8, v64')
    a('v_lshl_add_u32 v67, v68, 5, v67')
    a('v_lshl_add_u32 v67, v66, 4, v67')
    a(f'v_add_u32 v113, {MP}, v67')
    a('v_lshrrev_b32 v64, 5, v1')
    a('v_and_b32 v65, 31, v1')
    a('v_lshrrev_b32 v66, 3, v65')
    a('v_and_b32 v67, 7, v65')
    a('v_and_b32 v68, 3, v67')
    a('v_lshl_add_u32 v68, v66, 2, v68')
    a('v_lshrrev_b32 v69, 2, v67')
    a('v_lshl_add_u32 v68, v69, 4, v68')
    a(f'v_lshlrev_b32 v69, {11 if FOLDW else 12}, v64')
    a('v_lshl_add_u32 v69, v68, 4, v69')
    a(f'v_add_u32 v114, {XP + (w >> 1) * 512 + 2 * (w & 1) * 4}, v69')
    a(f'v_add_u32 v70, {2*w}, v64')
    a('v_lshlrev_b32 v69, 9, v66')
    a('v_lshl_add_u32 v69, v70, 5, v69')
    a('v_lshl_add_u32 v69, v67, 2, v69')
    a(f'v_add_u32 v115, {MP}, v69')
    if RED2:
        a('v_lshlrev_b32 v69, 4, v68')
        a('v_lshl_add_u32 v69, v64, 9, v69')
        a(f'v_add_u32 v114, {XP + w*XRP}, v69')
        a('v_mul_u32_u24 v69, 144, v70')
        a('v_lshl_add_u32 v69, v67, 4, v69')
        a(f'v_add_u32 v115, {MP}, v69')
        a('v_and_b32 v71, 1, v116')
        a(f'v_mul_u32_u24 v69, {2*XRP}, v71')
        a('v_lshl_add_u32 v69, v64, 8, v69')
        a('v_lshl_add_u32 v69, v117, 4, v69')
        a(f'v_add_u32 v112, {XP + (w >> 1)*512 + 8*(w & 1)}, v69')
        a('v_mul_u32_u24 v69, 144, v117')
        a('v_lshl_add_u32 v69, v71, 6, v69')
        a('v_lshl_add_u32 v69, v64, 5, v69')
        a(f'v_add_u32 v113, {MP + 4*w}, v69')
        if INL:
            a(f'v_mul_u32_u24 v69, {XRP}, v116')
            a('v_lshl_add_u32 v69, v117, 4, v69')
            a('v_and_b32 v72, 8, v117')
            a(f'v_xor_b32 v72, {8*(w & 1)}, v72')
            a('v_add_u32 v69, v69, v72')
            a(f'v_add_u32 v112, {XP + (w >> 1)*512}, v69')
            if WSPL == 2:
                a('v_lshrrev_b32 v72, 3, v117')
                a('v_lshl_add_u32 v72, v71, 1, v72')
                a(f'v_xor_b32 v72, {w}, v72')
                a('v_lshlrev_b32 v69, 10, v116')
                a('v_lshl_add_u32 v69, v117, 4, v69')
                a('v_lshl_add_u32 v69, v72, 2, v69')
                a(f'v_add_u32 v112, {XP}, v69')
            a('v_lshrrev_b32 v69, 1, v117')
            a('v_and_b32 v72, 1, v117')
            a('v_lshl_add_u32 v69, v72, 3, v69')
            a('v_mul_u32_u24 v69, 144, v69')
            a('v_lshl_add_u32 v69, v71, 6, v69')
            a('v_lshl_add_u32 v69, v64, 5, v69')
            a('v_lshl_add_u32 v72, v72, 1, v71')
            a(f'v_xor_b32 v72, {w}, v72')
            a('v_lshl_add_u32 v69, v72, 2, v69')
            a(f'v_add_u32 v113, {MP}, v69')
    a('v_and_b32 v71, 1, v1')
    a('v_cmp_eq_u32 s[38:39], 0, v71')
    a('v_cmp_gt_u32 vcc, 8, v65')
    a('s_or_b64 s[28:29], s[38:39], vcc')
    a('v_lshrrev_b32 v72, 1, v67')
    a('v_lshlrev_b32 v72, 2, v72')
    a('v_lshl_add_u32 v72, v70, 4, v72')
    a('s_lshl_b32 s22, s17, 9')
    a(f's_add_u32 s22, s22, {PX}')
    a('v_lshl_add_u32 v73, v66, 7, v72')
    a('v_add_u32 v73, s22, v73')
    a('s_lshl_b32 s22, s17, 7')
    a(f's_add_u32 s22, s22, {PM}')
    a('v_add_u32 v74, s22, v72')
    if VSM:
        a('v_bfe_u32 v72, v65, 1, 1')
        a('v_lshlrev_b32 v72, 7, v72')
        a('v_lshl_add_u32 v72, v70, 4, v72')
        a('v_bfe_u32 v73, v65, 2, 2')
        a('v_lshl_add_u32 v72, v73, 2, v72')
        a('v_lshrrev_b32 v73, 4, v65')
        a('v_lshl_add_u32 v73, v73, 8, v72')
        a('s_lshl_b32 s22, s17, 9')
        a(f's_add_u32 s22, s22, {PX}')
        a('v_add_u32 v73, s22, v73')
        a('s_lshr_b32 s22, s17, 1')
        a('s_lshl_b32 s22, s22, 8')
        a('s_and_b32 s34, s17, 1')
        a('s_lshl_b32 s34, s34, 3')
        a('s_add_u32 s22, s22, s34')
        a(f's_add_u32 s22, s22, {PM}')
        a('v_add_u32 v74, s22, v72')
    if PL2:
        a('v_bfe_u32 v72, v65, 1, 1')
        a('v_lshl_add_u32 v72, v64, 1, v72')
        a('v_lshlrev_b32 v72, 4, v72')
        a('v_bfe_u32 v73, v65, 2, 2')
        a('v_lshl_add_u32 v72, v73, 2, v72')
        a('v_lshrrev_b32 v73, 4, v65')
        a('v_lshl_add_u32 v73, v73, 6, v72')
        a('s_lshl_b32 s22, s17, 9')
        a(f's_add_u32 s22, s22, {PX + w*128}')
        a('v_add_u32 v73, s22, v73')
        a('v_lshrrev_b32 v72, 1, v65')
        a('v_lshlrev_b32 v72, 2, v72')
        a('v_lshl_add_u32 v72, v64, 5, v72')
        a('s_lshr_b32 s22, s17, 1')
        a('s_lshl_b32 s22, s22, 8')
        a('s_and_b32 s34, s17, 1')
        a('s_lshl_b32 s34, s34, 4')
        a('s_add_u32 s22, s22, s34')
        a(f's_add_u32 s22, s22, {PM + w*64}')
        a('v_add_u32 v74, s22, v72')
    a('v_lshlrev_b32 v0, 2, v65')
    if PRI: a(f'v_and_b32 v0, {(NV - 1) << 3}, v0')
    if F2ONE: a(f'v_and_b32 v0, 0x78, v0\nv_or_b32 v0, {4*(F2ONE-1)}, v0')
    a(f's_and_b32 s22, s17, {R2-1}')
    a('s_lshl_b32 s22, s22, 7')
    a(f's_add_u32 s22, s22, {F2}')
    a(f'v_add_u32 v0, s22, v0')
    a('v_cndmask_b32 v1, v74, v73, s[38:39]')
    a('s_lshl_b32 s36, s17, 2')
    a(f's_add_u32 s36, s36, {F1 + (64 if S0 else 0)}')
    a('s_mov_b32 s37, 0x3e800000')
    for r in range(36 if USEZ else 64, 112): a(f'v_mov_b32 v{r}, 0')
    if MRG:
        a('v_and_b32 v118, 1, v116')
        a('v_cmp_eq_u32 vcc, 0, v118')
        a(f'v_mov_b32 v118, {6*2048 + (w >> 1)*256}')
        a(f'v_mov_b32 v119, {(4 + (w >> 1))*2048 + (w & 1)*256}')
        a('v_cndmask_b32 v118, v118, v119, vcc')
        a('v_lshrrev_b32 v116, 1, v116')
        a('v_lshl_add_u32 v118, v116, 9, v118')
        a('v_lshl_add_u32 v117, v117, 4, v118')
        a(f's_mov_b32 s57, {XSEG_B}')
    if INL:
        a('v_bfe_u32 v118, v2, 4, 1')
        a('v_mul_u32_u24 v118, 0xaaaa, v118')
        a('v_add_u32 v118, 0x4444, v118')
    a('s_mov_b32 s56, 0x42800000')
    a('v_mov_b32 v116, v2')
    if not MRG:
        a('v_lshrrev_b32 v117, 4, v2')
        a('v_min_u32 v117, 55, v117')
        a('v_lshlrev_b32 v117, 7, v117')
    if w in (1, 2):
        nl = 10 if w == 1 else 14
        a('v_lshrrev_b32 v0, 4, v2')
        a(f'v_min_u32 v0, {nl-1}, v0')
        a(f's_mul_i32 s22, s17, {nl}')
        a('v_add_u32 v0, s22, v0')
        a('v_lshlrev_b32 v0, 7, v0')
        a(f'v_add_u32 v0, {2*EXCH_B if w == 1 else 2*XSEG_B - 7*w*1024}, v0')
        for k in (1, 2):
            a(f's_mov_b32 s22, {EXCH_OFF - k*EXCH_B if w == 1 else XF_OFF + 7*w*1024 - k*XSEG_B}')
            a(f'buffer_load_dword v119, v0, {SRD}, s22 offen sc1')
    if X_PRELOAD:
        a(f's_mul_i32 s22, s17, {4*XSEG_B}')
        a(f's_add_u32 s22, s22, {XF_OFF + w*XSEG_B}')
        for k in range(4):
            a(f'buffer_load_dword v119, v117, {SRD}, s22 offen')
            a(f's_add_u32 s22, s22, {56*128}')
    if SC_ALLPOLL:
        a('v_lshrrev_b32 v117, 4, v2')
        a('v_and_b32 v117, 31, v117')
        a('v_lshlrev_b32 v117, 2, v117')
        a(f'v_add_u32 v117, {F2}, v117')
    a(f's_mul_i32 s35, s17, {64*GSH_B}')
    a(f's_add_u32 s35, s35, {VO_OFF if V5 else VO_OFF + TOUCH_AHEAD*GSH_B + w*56*128}')
    if NOW: repoison(a)
    if F1O and w == F1_WAVE:
        assert w in (0, 3)
        a('v_lshl_add_u32 v119, v2, 3, s36')
        a('v_mov_b32 v8, 0x20000000')
        a(f'v_cmp_gt_u32 vcc, {16*R1}, v2')
        a('v_cndmask_b32 v119, v8, v119, vcc')
    if VT:
        a('s_mov_b32 s60, 0x10000000')
        a(f's_mov_b32 s66, {((1 << VT) - 1) & 0xffffffff}\ns_mov_b32 s67, {((1 << VT) - 1) >> 32}')
    if V5:
        a('v_lshrrev_b32 v8, 8, v2')
        a('v_bfe_u32 v9, v2, 4, 3')
        a('v_bfe_u32 v10, v2, 7, 1')
        a('v_min_u32 v11, 5, v9')
        a('v_lshl_add_u32 v12, v11, 1, v10')
        a('v_add_u32 v12, 16, v12')
        a('v_mad_u32_u24 v12, v8, 28, v12')
        a('v_lshlrev_b32 v118, 4, v12')
        if w == 3:
            a('v_lshl_add_u32 v12, v10, 3, v11')
            a('v_lshlrev_b32 v12, 4, v12')
            a('v_lshl_add_u32 v119, v8, 8, v12')
            a('v_cmp_gt_u32 s[64:65], 6, v9')
            a('s_lshl_b32 s22, s17, 8')
            a(f's_add_u32 s22, s22, {F1 + 128}')
            a('v_bfe_u32 v12, v2, 4, 4')
            a('v_lshl_add_u32 v0, v12, 2, s22')
            a('v_lshrrev_b32 v16, 1, v8')
            a('v_lshlrev_b32 v16, 9, v16')
            a('v_lshrrev_b32 v13, 2, v12')
            a('v_lshl_add_u32 v16, v13, 7, v16')
            a('v_and_b32 v13, 1, v8')
            a('v_lshl_add_u32 v16, v13, 6, v16')
            a('v_and_b32 v13, 3, v12')
            a('v_lshl_add_u32 v16, v13, 4, v16')
            a('v_and_b32 v13, 1, v12')
            a('v_mul_u32_u24 v13, 0xaaaa, v13')
            a('v_add_u32 v17, 0x4444, v13')
            a('s_lshl_b32 s22, s17, 3')
            a(f's_add_u32 s22, s22, {F2 + 4}')
            a('v_lshl_add_u32 v18, v2, 3, s22')
            a('s_mul_i32 s22, s17, 28')
            a('s_add_u32 s22, s22, 16')
            a('v_lshl_add_u32 v13, v9, 1, s22')
            a('v_lshrrev_b32 v19, 4, v13')
            a('v_lshlrev_b32 v19, 8, v19')
            a('v_bfe_u32 v14, v13, 1, 1')
            a('v_lshl_add_u32 v19, v14, 7, v19')
            a('v_bfe_u32 v14, v13, 2, 2')
            a('v_lshl_add_u32 v19, v14, 2, v19')
            a('v_lshl_add_u32 v14, v8, 1, v10')
            a('v_lshl_add_u32 v19, v14, 4, v19')
            a(f'v_add_u32 v12, {CL}, v2')
            a('ds_write_b128 v12, v[16:19]')
            a('ds_write_b128 v12, v[4:7] offset:1024')
            a('s_lshl_b32 s58, s17, 12')
            a(f's_add_u32 s58, s58, {T2X_OFF if V5 == 1 else XF_OFF}')
        a('s_lshl_b32 s22, s17, 7')
        a(f's_add_u32 s22, s22, {CNT_OFF + VOC - 2048}')
        poll_eq(a, f'sc_vw{w}', SRD, 's22', 56, sleep=2)
        a('s_waitcnt lgkmcnt(0)')

YL = 0; ML = 8 * KB; WL = 16 * KB
def vtiles(w): return (6 * w, 6, 6) if w < 2 else (12 + 8 * (w - 2), 8, 7)
def vwreg(w, ti, ks):
    u = ti * 7 + ks
    return 256 + 8 * u if u < 32 else (176 if w < 2 else 120) + 8 * (u - 32)

VOK = 63
def vok_load(a):
    a('s_sub_u32 s22, s39, s35')
    a(f'v_lshlrev_b32 v{VOK}, 7, v2')
    a(f'v_min_u32 v{VOK}, s22, v{VOK}')
    a(f'buffer_load_dword v{VOK}, v{VOK}, {SRD}, s35 offen sc1')
def vo_wait(a, L, ABORT, t):
    a(f's_branch {L("voc")}')
    a.label(L('vow'))
    vok_load(a)
    a('s_waitcnt vmcnt(0)')
    a.label(L('voc'))
    a(f'v_readfirstlane_b32 s22, v{VOK}')
    a('s_cmp_eq_u32 s22, 56')
    a(f's_cbranch_scc1 {L("vod")}')
    a('s_sleep 1')
    spin(a, L('vow'), ABORT)
    a.label(L('vod'))
    a('s_add_u32 s35, s35, 2048')
    if V5:
        a('s_add_u32 s38, s19, 9')
        a('s_and_b32 s38, s38, -8')
        a('s_sub_u32 s38, s38, 1')
        a('s_cmp_eq_u32 s19, 0')
        a('s_cselect_b32 s38, 3, s38')
        return
    e = 2 if VT else 0
    a(f's_add_u32 s38, s19, {8 + e}')
    a('s_and_b32 s38, s38, -8')
    if e: a(f's_sub_u32 s38, s38, {e}')
    a('s_cmp_eq_u32 s19, 0')
    a(f's_cselect_b32 s38, {4 - e}, s38')
    a(f'v_cmp_ne_u32 vcc, 56, v{VOK}')
    a('s_nop 3')
    a('s_cmp_eq_u64 vcc, 0')
    a('s_cselect_b32 s38, 99, s38')

def VOF(): return ['sc1', 'sc1 nt', 'nt', '', 'sc0 sc1'][VO_NT]
def yaN(fin): return [60, 61, 62, 170, 171, 172] if fin else list(range(100, 108))
def gen_value(a, w, st, tag):
    L = lambda n: f'{tag}_va{w}_{n}'
    ABORT = f'{tag}_abort'
    fin = w < 2
    t0, ntile, nreg = vtiles(w)
    M = 8; ACC = 36
    YA = 60 if fin else 112
    CK = 175
    def S(ti, ks, b=None):
        if NOT2: return 's_nop 2'
        return f'v_smfmac_f32_16x16x64_bf16 v[{ACC+4*ti}:{ACC+4*ti+3}], v[{M+4*ks}:{M+4*ks+3}], {b or ureg(vwreg(w, ti, ks), 8)}, v3'
    def fold(p):
        A_ = ACC + 8 * p; B_ = A_ + 4
        o = [f'v_permlane32_swap_b32 v{A_+r}, v{B_+r}' for r in range(4)]
        o += [f'v_add_f32 v{A_+r}, v{A_+r}, v{B_+r}' for r in range(4)]
        o += [f'v_cvt_pk_bf16_f32 v{B_}, v{A_}, v{A_+1}', f'v_cvt_pk_bf16_f32 v{B_+1}, v{A_+2}, v{A_+3}', f'ds_write2_b32 v{YA+p}, v{B_}, v{B_+1} offset0:0 offset1:2' if PL2 else f'ds_write_b64 v{YA+p}, v[{B_}:{B_+1}]']
        return o
    VP = (0 if fin else 5) if TIN else 2
    def run(seq):
        last = {}
        for i, (ti, m, pre) in enumerate(seq): last[ti] = i
        pend = []; delay = 0
        if TIN:
            for i, (ti, m, pre) in enumerate(seq):
                for x in pre: a(x)
                a(m)
                if pend and pend[0][0] <= i: a(pend.pop(0)[1])
                if i == last[ti]:
                    A_ = ACC + 4 * ti
                    pend += [(i + 3, x) for x in (f'v_add_f32 v{A_}, v{A_}, v{A_+1}', f'v_add_f32 v{A_+2}, v{A_+2}, v{A_+3}', f'v_cvt_pk_bf16_f32 v{A_}, v{A_}, v{A_+2}', f'ds_write_b32 v{yaN(fin)[ti]}, v{A_}')]
            for x in pend: a(x[1])
            return
        for i, (ti, m, pre) in enumerate(seq):
            for x in pre: a(x)
            a(m)
            if delay: delay -= 1
            elif pend:
                a(pend.pop(0))
                if len(pend) > 12: a(pend.pop(0))
            p = ti // 2
            if i == max(last[2 * p], last[2 * p + 1]):
                pend += fold(p)
                if not delay: delay = 3
        for x in pend: a(x)
    if ALIGN: a.raw(f'.p2align {ALIGN}\n' + '  s_nop 0\n' * APAD)
    a.label(L('loop'))
    step_bases(a)
    nz = VA_DELAY if USEZ and w == 2 else 0
    if not fin:
        for r in range(ACC + nz, ACC + 4 * ntile): a(f'v_mov_b32 v{r}, 0')
    a('s_mov_b32 s30, 0')
    if fin and KS:
        VOR = 64; YT = 144; LO = 36; E = 44; PB = 52; HL = 15 * KB
        my = list(range(KS, 10)) if w == 0 else list(range(KS))
        pr = lambda c: 8 + 4 * my.index(c)
        bop = lambda c, t: VOR + 16 * my.index(c) + 8 * t if c < 8 else YT + 16 * t + 8 * (c - 8)
        a('s_cmp_lg_u32 s19, s38')
        a(f's_cbranch_scc1 {L("vok")}')
        vo_wait(a, L, ABORT, E)
        a.label(L('vok'))
        a('s_barrier')
        stamp(a, 0)
        for t in range(2):
            if t: a('s_mov_b64 exec, s[26:27]')
            for c in my:
                if c >= 8: continue
                a(f's_add_u32 s22, s25, {c*3584}')
                for k in range(2): a(f'buffer_load_dwordx4 v[{bop(c,t)+4*k}:{bop(c,t)+4*k+3}], v6, {SRD}, s22 offen offset:{k*1792 + t*256} sc1')
        a('s_mov_b64 exec, -1')
        a(f'buffer_load_dword v{VOK}, off, {SRD}, s35 sc1')
        a('s_barrier')
        stamp(a, 1)
        for ks in range(7): a(f'ds_read_b128 v[{M+4*ks}:{M+4*ks+3}], v2 offset:{ML + ks*1024}')
        a('s_waitcnt lgkmcnt(0)')
        run([(ti, S(ti, ks), []) for ti in range(ntile) for ks in range(7)])
        stamp(a, 2)
        a(f's_add_u32 s22, s20, {PX}')
        a(f's_add_u32 s34, s20, {PX + 4096}')
        a(f's_add_u32 s36, s20, {PM}')
        a('s_mov_b32 s37, 0')
        a('s_waitcnt lgkmcnt(0)')
        for r in range(8): a(f'v_mov_b32 v{LO+r}, 0')
        flagpoll(a, 4, 's20', E, L('fw'), ABORT, PD_V, PG_V)
        stamp(a, 4)
        def pld(c):
            so = ('s22', 's34', 's36')[c // 4]
            a(f'buffer_load_dwordx4 v[{pr(c)}:{pr(c)+3}], v{5 if c < 8 else 2}, {SRD}, {so} offen offset:{(c & 3)*1024} sc1')
        def psm(c, t): a(f'v_smfmac_f32_16x16x64_bf16 v[{LO+4*t}:{LO+4*t+3}], v[{pr(c)}:{pr(c)+3}], v[{bop(c,t)}:{bop(c,t)+7}], v0')
        q = []
        for i, c in enumerate(my):
            pld(c); q.append(c)
            if w == 0 and i < KS: a.nop(KGAP)
        a('s_barrier')
        if w == 0:
            for t in range(2):
                for k in range(4): a(f'ds_read_b128 v[{YT+16*t+4*k}:{YT+16*t+4*k+3}], v2 offset:{YL + t*4096 + k*1024}')
        n = 0
        for c in my:
            a(f's_waitcnt vmcnt({len(q) - 1 - q.index(c)})' + (' lgkmcnt(0)' if c == 8 and B3P > n else ' lgkmcnt(1)' if c == 8 else ''))
            if c == my[0]: stamp(a, 5)
            for t in range(2):
                psm(c, t); n += 1
                if w == 0 and n == F2K:
                    q.append('f')
                    exec_lo(a, R2)
                    a(f'buffer_store_dword v2, v7, {SRD}, s21 offen {st}')
                    a('s_mov_b64 exec, -1')
                if w == 0 and n == B3P:
                    a('s_barrier')
                    a(f'ds_read_b128 v[{PB}:{PB+3}], v2 offset:{HL}')
                    stamp(a, 3)
        a.label(L('ep'))
        if w == 1:
            for k in range(4): a(f'v_add_f32 v{E+k}, v{LO+2*k}, v{LO+2*k+1}')
            a(f'ds_write_b128 v2, v[{E}:{E+3}] offset:{HL}')
            a(f'v_cmp_u_f32 vcc, v{E}, v{E+1}')
            a(f's_cbranch_vccnz {L("rp")}')
            a.label(L('pc'))
            a('s_waitcnt lgkmcnt(0)')
            stamp(a, 3)
            a('s_barrier')
            a(f's_cmp_eq_u32 s19, {NSTEPS-2}')
            a(f's_cbranch_scc1 {tag}_done')
        else:
            RO = 'row_ror:8 row_mask:0xf bank_mask:0xc'; QP = 'quad_perm:[0,1,2,3] row_mask:0xf bank_mask:0x3'
            a(f'v_add_f32 v{E}, v{LO}, v{LO+1}')
            a(f'v_add_f32 v{E+1}, v{LO+2}, v{LO+3}')
            a('s_waitcnt lgkmcnt(0)')
            a(f'v_add_f32 v{E}, v{E}, v{PB}')
            a(f'v_add_f32 v{E+1}, v{E+1}, v{PB+1}')
            a(f'v_add_f32 v{E+2}, v{LO+4}, v{LO+5}')
            a(f'v_add_f32 v{E+3}, v{LO+6}, v{LO+7}')
            a(f'v_cmp_u_f32 vcc, v{E}, v{E+1}')
            a(f'v_add_f32 v{E+2}, v{E+2}, v{PB+2}')
            a(f'v_add_f32 v{E+3}, v{E+3}, v{PB+3}')
            a(f'v_mov_b32_dpp v{E+4}, v{E} row_ror:8 {D}')
            a(f'v_mov_b32_dpp v{E}, v{E+1} {RO}')
            a(f'v_mov_b32_dpp v{E+5}, v{E+2} row_ror:8 {D}')
            a(f'v_mov_b32_dpp v{E+1}, v{E+4} {QP}')
            a(f'v_mov_b32_dpp v{E+2}, v{E+3} {RO}')
            a(f'v_cvt_pk_bf16_f32 v{E}, v{E}, v{E+1}')
            a(f'v_mov_b32_dpp v{E+3}, v{E+5} {QP}')
            a(f's_cbranch_vccnz {L("rp")}')
            a.label(L('pc'))
            a(f'buffer_store_dword v{E}, v1, {SRD}, s21 offen {st}')
            a(f'v_cvt_pk_bf16_f32 v{E+2}, v{E+2}, v{E+3}')
            a('s_mov_b64 exec, s[26:27]')
            a(f'v_min_u32 v{E+2}, -2, v{E+2}')
            a(f'buffer_store_dword v{E+2}, v1, {SRD}, s21 offen offset:256 {st}')
            a(f's_cmp_lg_u32 s19, {NSTEPS-2}')
            a(f's_cbranch_scc1 {L("nl")}')
            a(f's_mov_b32 s22, {MEMG_OFF + (NSTEPS-1)*7*KB}')
            a(f'buffer_store_dword v{E+2}, v1, {SRD}, s22 offen offset:256 sc1')
            a('s_mov_b64 exec, -1')
            a(f'buffer_store_dword v{E}, v1, {SRD}, s22 offen sc1')
            a(f's_branch {tag}_done')
            a.label(L('nl'))
            a('s_mov_b64 exec, -1')
        stamp(a, 6)
        a(f's_add_u32 s25, s25, {GSH_B}')
        stamp_flush(a, 4 + w, 8, L('sf'), 8)
        for r in range(ACC, ACC + 4 * ntile): a(f'v_mov_b32 v{r}, 0')
        a('s_add_u32 s19, s19, 1')
        a('s_mov_b32 s20, s21')
        a(f's_branch {L("loop")}')
        a.label(L('rp'))
        a('s_cmp_eq_u32 s37, 0')
        a(f's_cbranch_scc1 {L("rv")}')
        if w == 0: a(f'v_min_u32 v{E}, -2, v{E}')
        a(f's_branch {L("pc")}')
        a.label(L('rv'))
        for c in my: pld(c)
        a('s_waitcnt vmcnt(0) lgkmcnt(0)')
        ck2 = Checker(a, E)
        ck2.add(8, 4 * len(my)); ck2.drain()
        a(f'v_cmp_eq_u32 vcc, -1, v{E}')
        a(f's_cbranch_vccz {L("rk")}')
        spin(a, L('rv'), ABORT)
        a.label(L('rk'))
        a('s_mov_b32 s37, 1')
        a('s_add_u32 s31, s31, 0x10000')
        for r in range(8): a(f'v_mov_b32 v{LO+r}, 0')
        for c in my:
            for t in range(2): psm(c, t)
        a.flush()
        a(f's_branch {L("ep")}')
        return
    if fin:
        YT = 64; VOR = 80; LO = 156; HI = 160; PL = 164
        pr = lambda c: 8 + 4 * c if c < 7 else 144 + 4 * (c - 7)
        if SYNC:
            a('s_cmp_lg_u32 s19, s38')
            a(f's_cbranch_scc1 {L("vok")}')
            vo_wait(a, L, ABORT, PL)
            a.label(L('vok'))
        if T2SRV:
            a(f's_cmp_eq_u32 s19, {NSTEPS-1}')
            a(f's_cbranch_scc1 {tag}_done')
        def vol(lo, hi):
            if V5 and w == 1: return
            for h in range(lo, hi):
                if h % 2 == 0: a(f's_add_u32 s22, s25, s{72 + h // 2}' if PROT else f's_add_u32 s22, s25, {h*1792}')
                a(f'buffer_load_dwordx4 v[{VOR+4*h}:{VOR+4*h+3}], v6, {SRD}, s22 offen offset:{(h & 1)*1792} {VOF()}')
        vol(0, VO_PRE0)
        if not SLOW_FIRST: a('s_barrier')
        stamp(a, 0)
        if VO_SLEEP: a(f's_sleep {VO_SLEEP}')
        vol(VO_PRE0, VO_PRE)
        if SYNC:
            a('s_add_u32 s22, s19, 1')
            a('s_cmp_lg_u32 s22, s38')
            a(f's_cbranch_scc1 {L("nk")}')
            vok_load(a)
            a.label(L('nk'))
        a('s_barrier')
        stamp(a, 1)
        for ks in range(7): a(f'ds_read_b128 v[{M+4*ks}:{M+4*ks+3}], v{VP} offset:{ML + ks*1024}')
        a('s_waitcnt lgkmcnt(0)')
        if T2DF: a(f's_sleep {T2DF}')
        def vop(i):
            h = VO_PRE + (i - 1) // VOI
            if i < 1 or (i - 1) % VOI or h >= 16: return []
            return [f's_add_u32 s22, s25, s{72 + h // 2}' if PROT else f's_add_u32 s22, s25, {(h & ~1)*1792}', f'buffer_load_dwordx4 v[{VOR+4*h}:{VOR+4*h+3}], v6, {SRD}, s22 offen offset:{(h & 1)*1792} {VOF()}']
        run([(ti, S(ti, ks), vop(7 * ti + ks)) for ti in range(ntile) for ks in range(7)])
        stamp(a, 2)
        if V5 and w == 1:
            a('s_waitcnt lgkmcnt(0)')
            for r in range(ACC, ACC + 4 * ntile): a(f'v_mov_b32 v{r}, 0')
            a('s_barrier')
            a(f's_cmp_eq_u32 s19, {NSTEPS-2}')
            a(f's_cbranch_scc1 {tag}_done')
            a('s_add_u32 s19, s19, 1')
            a('s_mov_b32 s20, s21')
            a(f's_branch {L("loop")}')
            return
        npl = 0
        if V5 or PRI:
            for k, r in enumerate(range(ACC, ACC + 4 * ntile)):
                if PRI and (w == 0 or PRI == 2) and k % 8 == 0:
                    a(f'buffer_load_dword v{PL+npl}, v4, {SRD}, s20 offen sc1'); npl += 1
                if k == 0: a('s_waitcnt lgkmcnt(0)')
                a(f'v_mov_b32 v{r}, 0')
            if PRI and (w == 0 or PRI == 2):
                a(f'buffer_load_dword v{PL+npl}, v4, {SRD}, s20 offen sc1'); npl += 1
        a(f's_cmp_eq_u32 s19, {NSTEPS-1}')
        a(f's_cbranch_scc1 {L("last")}')
        a(f's_add_u32 s22, s20, {PX}')
        a(f's_add_u32 s34, s20, {PX + 4096}')
        a(f's_add_u32 s36, s20, {PM}')
        if PROT:
            for c in range(8): a(f's_add_u32 s{64+c}, s{64+c}, {EXCH_B}')
        a('s_mov_b32 s37, 0')
        for r in range(4): a(f'v_mov_b32 v{LO+r}, 0')
        if STAMPS and not VST:
            a('s_waitcnt vmcnt(0)')
            stamp(a, 7)
        if VSM and B2_POS < 0:
            a('s_waitcnt lgkmcnt(0)')
            for r in range(ACC, ACC + 4 * ntile): a(f'v_mov_b32 v{r}, 0')
            a('s_barrier')
            for k in range(4): a(f'ds_read_b128 v[{YT+4*k}:{YT+4*k+3}], v2 offset:{YL + w*4096 + k*1024}')
            stamp(a, 3)
        if FIN_SLEEP: a(f's_sleep {FIN_SLEEP}')
        if PRI == 1 and w == 1:
            a('s_barrier')
        else: flagpoll(a, 4, 's20', PL, L('fw'), ABORT, PD_V, PG_V, npl, lanes=16)
        if PRI == 2 and w == 1: a.nop(W1D)
        if PDL and w == 0:
            for k in range(3):
                a(f's_cmp_lt_u32 s17, {4*(k+1)}')
                a(f's_cbranch_scc1 {L("pd")}')
                a.nop(PDL)
            a.label(L('pd'))
        stamp(a, 4)
        a('s_waitcnt lgkmcnt(0)')
        if VSM:
            pl = PLAIN_P and st == ''
            def pld(c, sc):
                if FAKE5 and w == 1:
                    a('s_mov_b64 exec, 1')
                    a(f'buffer_load_dwordx4 v[{pr(c)}:{pr(c)+3}], v2, {SRD}, s20 offen')
                    a('s_mov_b64 exec, -1'); return
                if PROT and c < 8:
                    a(f'buffer_load_dwordx4 v[{pr(c)}:{pr(c)+3}], v{5 if PL2 else 2}, {SRD}, s{64+c} offen' + (' sc1' if sc else '')); return
                so = ('s22', 's34', 's36')[c // 4]
                a(f'buffer_load_dwordx4 v[{pr(c)}:{pr(c)+3}], v{5 if PL2 and c < 8 else 2}, {SRD}, {so} offen offset:{(c & 3)*1024}' + (' sc1' if sc else ''))
            def psm(c):
                B_ = VOR + 8 * c if c < 8 else YT + 8 * (c - 8)
                a(f'v_smfmac_f32_16x16x64_bf16 v[{LO}:{LO+3}], v[{pr(c)}:{pr(c)+3}], v[{B_}:{B_+7}], v{0 if PL2 and not TIN else 3}')
            zr = list(range(ACC, ACC + 4 * ntile)) if B2_POS >= 0 and not V5 and not PRI else []
            q0 = []
            for c in range(NPP):
                pld(c, not pl); q0.append(c)
                if w == 1 and c == F2X:
                    if F2XD: a.nop(F2XD)
                    q0.append('f')
                    a('s_sub_u32 s23, s21, 4')
                    exec_lo(a, R2)
                    a(f'buffer_store_dword v2, v7, {SRD}, s23 offen {st}')
                    a('s_mov_b64 exec, -1')
                if c == (F2L, F2M)[w]:
                    q0.append('f')
                    exec_lo(a, R2)
                    a(f'buffer_store_dword v2, v7, {SRD}, s21 offen {st}')
                    a('s_mov_b64 exec, -1')
                for _ in range(VZ):
                    if zr: a(f'v_mov_b32 v{zr.pop(0)}, 0')
                if PRI and w == 1 and W1G: a.nop(W1G)
            issued = NPP; nst = 0; q = q0
            if PRI == 2 and w == 0 and F2PRE >= 0:
                a.nop(F2PRE)
                q.append('f')
                exec_lo(a, R2)
                a(f'buffer_store_dword v2, v7, {SRD}, s21 offen {st}')
                a('s_mov_b64 exec, -1')
            if VST: stamp(a, 7)
            for c in range(10):
                if c == (0 if PRI and w == 1 else B2_POS):
                    if PRI == 1 and w == 0 and F2PRE >= 0:
                        a.nop(F2PRE)
                        q.append('f')
                        exec_lo(a, R2)
                        a(f'buffer_store_dword v2, v7, {SRD}, s21 offen {st}')
                        a('s_mov_b64 exec, -1')
                    if not (PRI == 1 and w == 1): a('s_barrier')
                    for k in range(4): a(f'ds_read_b128 v[{YT+4*k}:{YT+4*k+3}], v2 offset:{YL + w*4096 + k*1024}')
                    stamp(a, 3)
                    if PRI and w == 0 and F2_POS < 0:
                        a.nop(4 * (F2_POS + 5))
                        q.append('f')
                        exec_lo(a, R2)
                        a(f'buffer_store_dword v2, v7, {SRD}, s21 offen {st}')
                        a('s_mov_b64 exec, -1')
                if c == 0 and ECP:
                    a.label(L('pl')); cke = Checker(a, CK)
                a(f's_waitcnt vmcnt({len(q) - 1 - q.index(c)})' + (' lgkmcnt(0)' if c == 8 else ''))
                if c == 0: stamp(a, 5)
                if VST and c in (3, 6, 9): stamp(a, c // 3)
                psm(c)
                if c < ECP:
                    cke.add(pr(c)); cke.drain()
                    if c == ECP - 1: a(f'v_cmp_eq_u32 vcc, -1, v{CK}')
                if ECP and c == F2_POS: a(f's_cbranch_vccnz {L("re")}')
                if (F2L, F2M)[w] < 0 and (w == 1 or F2X < 0) and c == (F2B if PRI and w == 1 else F2_POS if F2PRE < 0 else 99) and (not F2ONE or w == F2ONE - 1):
                    q.append('f')
                    exec_lo(a, R2)
                    a(f'buffer_store_dword v2, v7, {SRD}, s21 offen {st}')
                    a('s_mov_b64 exec, -1')
                    nst = 1
                if issued < 10:
                    pld(issued, not pl); q.append(issued); issued += 1
                for _ in range(2):
                    if zr: a(f'v_mov_b32 v{zr.pop(0)}, 0')
            a.label(L('ep'))
            while zr: a(f'v_mov_b32 v{zr.pop(0)}, 0')
            if PL2:
                a(f'v_add_f32 v{HI}, v{LO}, v{LO+1}')
                a(f'v_add_f32 v{HI+1}, v{LO+2}, v{LO+3}')
            else:
                a(f'v_permlane32_swap_b32 v{LO}, v{LO+2}')
                a(f'v_permlane32_swap_b32 v{LO+1}, v{LO+3}')
                a(f'v_add_f32 v{HI}, v{LO}, v{LO+2}')
                a(f'v_add_f32 v{HI+1}, v{LO+1}, v{LO+3}')
            a(f'v_cmp_u_f32 vcc, v{HI}, v{HI+1}')
            a(f'v_mov_b32_dpp v{HI+2}, v{HI} row_ror:8 {D}')
            a(f'v_mov_b32_dpp v{HI}, v{HI+1} row_ror:8 row_mask:0xf bank_mask:0xc')
            a(f's_cbranch_vccnz {L("rp")}')
            a(f'v_mov_b32_dpp v{HI+1}, v{HI+2} quad_perm:[0,1,2,3] row_mask:0xf bank_mask:0x3')
            a(f'v_cvt_pk_bf16_f32 v{HI}, v{HI}, v{HI+1}')
            a.label(L('pc'))
            if w == 1: a('s_mov_b64 exec, s[26:27]')
            a(f'buffer_store_dword v{HI}, v1, {SRD}, s21 offen {st}')
        else:
            pl = PLAIN_P and st == ''
            if not pl: a.label(L('lp'))
            for c in range(10):
                so = ('s22', 's34', 's36')[c // 4]
                a(f'buffer_load_dwordx4 v[{pr(c)}:{pr(c)+3}], v5, {SRD}, {so} offen offset:{(c & 3)*1024}' + ('' if pl else ' sc1'))
                for r in range(ACC + 4 * c, min(ACC + 4 * c + 4, ACC + 4 * ntile)): a(f'v_mov_b32 v{r}, 0')
            if pl: a.label(L('lp'))
            ck = Checker(a, CK)
            nst = 0
            for c in range(10):
                if c == B2_POS:
                    a('s_cmp_lg_u32 s37, 0')
                    a(f's_cbranch_scc1 {L("nb2")}')
                    a('s_waitcnt lgkmcnt(0)')
                    a('s_barrier')
                    for k in range(4): a(f'ds_read_b128 v[{YT+4*k}:{YT+4*k+3}], v2 offset:{YL + w*4096 + k*1024}')
                    a.label(L('nb2'))
                    stamp(a, 3)
                a(f's_waitcnt vmcnt({9-c+nst})' + (' lgkmcnt(0)' if c == 8 else ''))
                if c < EC_P:
                    a.label(L(f'e{c}'))
                    r = pr(c)
                    a(f'v_max3_u32 v{PL}, v{r}, v{r+1}, v{r+2}')
                    a(f'v_max_u32 v{PL}, v{PL}, v{r+3}')
                    a(f'v_cmp_eq_u32 vcc, -1, v{PL}')
                    a(f's_cbranch_vccnz {L(f"er{c}")}')
                if c == 0: stamp(a, 5)
                if c == F2_POS:
                    exec_lo(a, R2)
                    a(f'buffer_store_dword v2, v7, {SRD}, s21 offen {st}')
                    a('s_mov_b64 exec, -1')
                    nst = 1
                if c >= EC_P: ck.add(pr(c))
                B_ = f'v[{pr(c)}:{pr(c)+3}]'
                for hi, acc in ((1, HI), (0, LO)):
                    A_ = VOR + 4 * (2 * c + hi) if c < 8 else YT + 4 * (2 * (c - 8) + hi)
                    a(f'v_mfma_f32_16x16x32_bf16 v[{acc}:{acc+3}], v[{A_}:{A_+3}], {B_}, ' + ('0' if c == 0 else f'v[{acc}:{acc+3}]'))
                    ck.emit()
            ck.drain()
            a(f'v_cmp_eq_u32 vcc, -1, v{CK}')
            for r in range(4): a(f'v_add_f32_dpp v{LO+r}, v{HI+r}, v{LO+r} row_ror:8 {D}')
            a(f's_cbranch_vccnz {L("rp")}')
            a(f'v_cvt_pk_bf16_f32 v{HI}, v{LO}, v{LO+1}')
            a(f'v_cvt_pk_bf16_f32 v{HI+1}, v{LO+2}, v{LO+3}')
            a(f'v_min_u32 v{HI}, -2, v{HI}')
            a(f'v_min_u32 v{HI+1}, -2, v{HI+1}')
            a('s_mov_b64 exec, s[26:27]')
            a(f'buffer_store_dwordx2 v[{HI}:{HI+1}], v1, {SRD}, s21 offen {st}')
        if T2SRV:
            a(f's_cmp_lg_u32 s19, {NSTEPS-2}')
            a(f's_cbranch_scc1 {L("nl")}')
            a(f's_mov_b32 s22, {MEMG_OFF + (NSTEPS-1)*7*KB}')
            if VSM: a(f'buffer_store_dword v{HI}, v1, {SRD}, s22 offen sc1')
            else: a(f'buffer_store_dwordx2 v[{HI}:{HI+1}], v1, {SRD}, s22 offen sc1')
            a('s_mov_b64 exec, -1')
            a(f's_branch {tag}_done')
            a.label(L('nl'))
        a('s_mov_b64 exec, -1')
        if S0 and w == 1:
            a('s_cmp_lg_u32 s19, 0')
            a(f's_cbranch_scc1 {L("s0")}')
            a(f'v_add_u32 v7, {F2 - F1 - 512}, v7')
            a(f'v_lshl_add_u32 v7, v2, 3, v7')
            exec_lo(a, R2)
            a(f'buffer_store_dword v2, v7, {SRD}, s21 offen {st}')
            a(f'buffer_store_dword v2, v7, {SRD}, s23 offen {st}')
            a('s_mov_b64 exec, -1')
            a.label(L('s0'))
        if SLOW_FIRST: a('s_barrier')
        stamp(a, 6)
        if not NOBULK: a(f's_add_u32 s25, s25, {GSH_B}')
        stamp_flush(a, 4 + w, 8, L('sf'), PL)
    else:
        STG = [76, 84, 92]; TP = 100
        TPS = [100, 104, 108, 4]
        t2st = [[f'buffer_store_dwordx4 v[{TPS[k]}:{TPS[k]+3}], v2, {SRD}, s24 offen offset:{k*1024} sc1'] for k in range(4)]
        t2st[-1].append(f's_add_u32 s24, s24, {8*KB}')
        t2fl = ['s_mov_b64 exec, 1', f'buffer_store_dword v117, v2, {SRD}, s34 offen sc1', 's_mov_b64 exec, -1', 's_add_u32 s34, s34, 8']
        def emit(gs):
            for g_ in gs:
                for x in g_: a(x)
        myks = [0, 1, 2, 3] if w == 2 else [4, 5, 6]
        oth = [k for k in range(7) if k not in myks]
        def mload():
            for ks in myks:
                a(f'buffer_load_dwordx4 v[{M+4*ks}:{M+4*ks+3}], v2, {SRD}, {"s20" if ks < 4 else "s23"} offen offset:{(ks & 3) * 1024} sc1')
        if HLP_SLEEP: a(f's_sleep {HLP_SLEEP}')
        flagpoll(a, 119, 's20', 76, L('fp'), ABORT, PD_H, PG_H, lanes=32)
        stamp(a, 0)
        if USEZ:
            for r in range(ACC, ACC + nz): a(f'v_mov_b32 v{r}, 0')
        elif VA_DELAY: a.nop(VA_DELAY if w == 2 else VB_DELAY)
        mload()
        if PUBLISH and PUB_EARLY == 1: emit([t2fl] + t2st)
        if not SLOW_FIRST: a('s_barrier')
        if MGL and w == 2:
            emit([['s_mov_b64 exec, s[26:27]', f'buffer_store_dwordx4 v[108:111], v2, {SRD}, s37 offen sc1', 's_mov_b64 exec, -1', 's_waitcnt vmcnt(1)', f's_branch {L("ld3")}']])
        if PUBLISH and PUB_EARLY == 2: emit([t2fl] + t2st)
        if PUBLISH and PUB_EARLY:
            a('s_waitcnt vmcnt(5)')
            a(f's_branch {L("ld2")}')
        a.label(L('ld'))
        a('s_waitcnt vmcnt(0)')
        if PUBLISH and PUB_EARLY: a.label(L('ld2'))
        if MGL and w == 2: a.label(L('ld3'))
        ck = Checker(a, 84)
        for ks in myks: ck.add(M + 4 * ks)
        ck.drain()
        a('v_cmp_eq_u32 vcc, -1, v84')
        for ks in myks: a(f'ds_write_b128 v2, v[{M+4*ks}:{M+4*ks+3}] offset:{ML + ks*1024}')
        a(f's_cbranch_vccnz {L("retry")}')
        a('s_waitcnt lgkmcnt(0)')
        a('s_barrier')
        stamp(a, 1)
        for ks in (range(7) if TIN else oth): a(f'ds_read_b128 v[{M+4*ks}:{M+4*ks+3}], v{VP} offset:{ML + ks*1024}')
        if w == 2: a(f'ds_read_b128 v[{108 if MGL else 92}:{111 if MGL else 95}], v0')
        if VAL_TOUCH:
            a(f'buffer_load_dword v4, v118, {SRD}, {"s20" if w == 2 else "s39"} offen sc1')
            a(f's_add_u32 s39, s39, {XSEG_B}')
        if SELF_POISON:
            for r in range(76, 80): a(f'v_mov_b32 v{r}, -1')
            a('s_add_u32 s22, s21, s38')
            if w == 3: a('s_mov_b64 exec, 0x1f')
            a(f'buffer_store_dwordx4 v[76:79], v2, {SRD}, s22 offen {st}')
            if w == 3: a('s_mov_b64 exec, -1')
        if PUBLISH and not PUB_EARLY and not SLOW_FIRST and not T2SRV: emit([t2fl] + t2st)
        a('s_waitcnt lgkmcnt(0)')
        mg = ['s_mov_b64 exec, s[26:27]', f'buffer_store_dwordx4 v[92:95], v2, {SRD}, s36 offen sc1', 's_mov_b64 exec, -1', f's_add_u32 s36, s36, {7*KB}']
        if w == 2 and MGL:
            a('s_mov_b32 s37, s36')
            a(f's_add_u32 s36, s36, {7*KB}')
            a(f's_cmp_lg_u32 s19, {NSTEPS-2}')
            a(f's_cbranch_scc1 {L("nmg")}')
            emit([['s_mov_b64 exec, s[26:27]', f'buffer_store_dwordx4 v[108:111], v2, {SRD}, s37 offen sc1', 's_mov_b64 exec, -1']])
            a.label(L('nmg'))
        elif w == 2 and PUBLISH:
            if SLOW_FIRST:
                a(f's_cmp_lg_u32 s19, {NSTEPS-1}')
                a(f's_cbranch_scc1 {L("nmg")}')
            emit([mg])
            if SLOW_FIRST: a.label(L('nmg'))
        if T2SRV:
            a(f's_cmp_eq_u32 s19, {NSTEPS-1}')
            a(f's_cbranch_scc1 {tag}_done')
        lu = [(7, ks) for ks in range(7)]
        ru = [(t_, ks) for t_ in (6, 0, 1, 2, 3, 4, 5) for ks in range(7)]
        def wr(j):
            t_, ks = lu[j]; b = STG[j % 3]; off = (t_ - 7) * TILE_B + ks * UNIT
            return [f'ds_read_b128 v[{b}:{b+3}], v1 offset:{off}', f'ds_read_b128 v[{b+4}:{b+7}], v1 offset:{off+1024}']
        seq = []
        for j, (t_, ks) in enumerate(lu):
            pre = (wr(0) + wr(1) if j == 0 else []) + (wr(j + 2) if j + 2 < len(lu) else [])
            for k in range(2):
                r_ = ru.pop(0); seq.append((r_[0], S(*r_), pre if k == 0 else []))
            b = STG[j % 3]
            seq.append((t_, S(t_, ks, f'v[{b}:{b+7}]'), [f's_waitcnt lgkmcnt({2 * min(2, len(lu) - 1 - j)})']))
        for r_ in ru: seq.append((r_[0], S(*r_), []))
        if T2DH: a(f's_sleep {T2DH}')
        run(seq)
        stamp(a, 2)
        a('s_waitcnt lgkmcnt(0)')
        a('s_barrier')
        if KS: a('s_barrier')
        for k in range(4):
            q = 2 * (w - 2) + (k >> 1); tp = k & 1
            if not T2SRV: a(f'ds_read_b128 v[{TPS[k]}:{TPS[k]+3}], v2 offset:{YL + tp*4096 + q*1024}')
        a(f's_cmp_eq_u32 s19, {NSTEPS-2 if T2SRV else NSTEPS-1}')
        a(f's_cbranch_scc1 {tag + "_done" if T2SRV else L("last")}')
        if SLOW_FIRST:
            if w == 2: a(f'ds_read_b128 v[92:95], v0')
            a('s_waitcnt vmcnt(0) lgkmcnt(0)')
            a('s_barrier')
            if PUBLISH: emit([t2fl] + t2st + ([mg] if w == 2 else []))
        else:
            a('s_waitcnt vmcnt(0) lgkmcnt(0)')
        stamp(a, 3)
        stamp_flush(a, 4 + w, 4, L('sf'), 76)
    a('s_add_u32 s19, s19, 1')
    a('s_mov_b32 s20, s21')
    a.flush()
    a(f's_branch {L("loop")}')
    if fin:
        a.label(L('last'))
        a('s_waitcnt lgkmcnt(0)')
        a('s_barrier')
        a(f's_branch {tag}_done')
        for c in range(EC_P):
            a.label(L(f'er{c}'))
            so = ('s22', 's34', 's36')[c // 4]
            a(f'buffer_load_dwordx4 v[{pr(c)}:{pr(c)+3}], v5, {SRD}, {so} offen offset:{(c & 3)*1024} sc1')
            a('s_waitcnt vmcnt(0)')
            a('s_add_u32 s31, s31, 0x1000000')
            spin(a, L(f'e{c}'), ABORT)
        if ECP:
            assert NPP == 10 and B2_POS == 0 and ECP <= F2_POS
            a.label(L('re'))
            for c in range(10): pld(c, True)
            a.nop(6)
            for r in range(4): a(f'v_mov_b32 v{LO+r}, 0')
            a('s_add_u32 s31, s31, 0x1000000')
            spin(a, L('pl'), ABORT)
        a.label(L('rp'))
        if VSM:
            a('s_cmp_eq_u32 s37, 0')
            a(f's_cbranch_scc1 {L("rv")}')
            a(f'v_mov_b32_dpp v{HI+1}, v{HI+2} quad_perm:[0,1,2,3] row_mask:0xf bank_mask:0x3')
            a(f'v_cvt_pk_bf16_f32 v{HI}, v{HI}, v{HI+1}')
            a(f'v_min_u32 v{HI}, -2, v{HI}')
            a(f's_branch {L("pc")}')
            a.label(L('rv'))
            for c in range(10): pld(c, True)
            a('s_waitcnt vmcnt(0)')
            ck2 = Checker(a, CK)
            for c in range(10): ck2.add(pr(c))
            ck2.drain()
            a(f'v_cmp_eq_u32 vcc, -1, v{CK}')
            a(f's_cbranch_vccz {L("rk")}')
            spin(a, L('rv'), ABORT)
            a.label(L('rk'))
            a('s_mov_b32 s37, 1')
            a('s_add_u32 s31, s31, 0x10000')
            for r in range(4): a(f'v_mov_b32 v{LO+r}, 0')
            for c in range(10): psm(c)
            a.flush()
            a(f's_branch {L("ep")}')
            return
        a.nop(8)
        if PLAIN_P and st == '':
            for c in range(10):
                so = ('s22', 's34', 's36')[c // 4]
                a(f'buffer_load_dwordx4 v[{pr(c)}:{pr(c)+3}], v5, {SRD}, {so} offen offset:{(c & 3)*1024} sc1')
        a('s_mov_b32 s37, 1')
        a('s_add_u32 s31, s31, 0x10000')
        spin(a, L('lp'), ABORT)
    else:
        a.label(L('retry'))
        a('s_waitcnt lgkmcnt(0)')
        mload()
        a('s_add_u32 s31, s31, 1')
        spin(a, L('ld'), ABORT)
        a.label(L('last'))
        a('s_waitcnt lgkmcnt(0)')
        emit(t2st)
        a('s_waitcnt vmcnt(0)')
        emit([t2fl, t2fl])
        a(f's_branch {tag}_done')

def init_value(a, w, p):
    fin = w < 2
    t0, ntile, nreg = vtiles(w)
    YA = 60 if fin else 112
    a(f's_mul_i32 s31, s17, {CUW_B}')
    a(f's_add_u32 s31, s31, {WF_B}')
    units = [((t0 + ti) * TILE_B + ks * UNIT, vwreg(w, ti, ks)) for ti in range(nreg) for ks in range(7)]
    def dep(ts):
        A_ = [t_ for t_ in ts if t_ < 16]; B_ = [bpack(16 * t_ + n)[0] for t_ in ts if t_ >= 16 for n in (0, 15)]
        BDEP((min(A_), max(A_)) if A_ else None, (min(B_), max(B_)) if B_ else None)
    dep(range(t0, t0 + nreg))
    load_units(a, units, 's31')
    if fin: dep([vtiles(w + 2)[0] + 7])
    if fin:
        th = vtiles(w + 2)[0] + 7
        for f in range(14):
            if f % 4 == 0:
                a(f's_mov_b32 m0, {WL + 3*w*TILE_B + f*1024}')
                a(f's_add_u32 s22, s31, {th*TILE_B + f*1024}')
            a(f'buffer_load_dwordx4 v2, {SRD}, s22 offen offset:{(f & 3)*1024}' + (' sc1' if MERGE else '') + ' lds')
            if f % 16 == 15: a('s_waitcnt vmcnt(24)')
    a('v_mov_b32 v72, v116')
    a('v_mov_b32 v73, v117')
    a('v_lshrrev_b32 v65, 1, v72')
    a('v_and_b32 v66, 1, v72')
    for pp in range(ntile if TIN else ntile // 2):
        assert TIN
        if t0 + pp < 16:
            a(f'v_mov_b32 v68, {t0 + pp}\nv_mov_b32 v69, v73\nv_mov_b32 v70, 0')
        else:
            a(f'v_add_u32 v67, {16 * (t0 + pp - 16)}, v73')
            a('v_mul_u32_u24 v68, 5462, v67')
            a('v_lshrrev_b32 v68, 16, v68')
            a('v_mul_u32_u24 v69, 12, v68')
            a('v_sub_u32 v69, v67, v69')
            a('v_mov_b32 v70, 1')
        if not POSB:
            a('v_and_b32 v71, 1, v69')
            a('v_lshrrev_b32 v69, 1, v69')
            a('v_lshl_add_u32 v69, v71, 3, v69')
        else:
            a('v_cmp_lt_u32 vcc, 5, v69')
            a('v_lshlrev_b32 v71, 1, v70')
            a('v_cndmask_b32 v71, 0, v71, vcc')
            a('v_add_u32 v69, v69, v71')
        a('v_lshlrev_b32 v71, 12, v70')
        if PL2:
            a('v_lshrrev_b32 v70, 1, v68')
            a('v_lshl_add_u32 v71, v70, 9, v71')
            a('v_and_b32 v70, 1, v68')
            a('v_lshl_add_u32 v71, v70, 2, v71')
            a('v_lshl_add_u32 v71, v69, 4, v71')
            if TIN:
                a('v_lshl_add_u32 v71, v65, 8, v71')
                a(f'v_lshl_add_u32 v{yaN(fin)[pp]}, v66, 3, v71')
            else: a(f'v_lshl_add_u32 v{YA+pp}, v66, 8, v71')
            continue
        a('v_lshl_add_u32 v71, v68, 8, v71')
        a('v_lshl_add_u32 v71, v69, 4, v71')
        a(f'v_lshl_add_u32 v{YA+pp}, v66, 3, v71')
    if fin:
        a('v_and_b32 v0, 31, v1')
        a('v_lshlrev_b32 v0, 2, v0')
        a(f'v_add_u32 v0, {F2}, v0')
        a(f'v_min_u32 v4, {NH - 1}, v73')
        a('v_lshlrev_b32 v4, 2, v4')
        if R1 == 32:
            a('s_lshl_b32 s22, s17, 1')
            a(f's_add_u32 s22, s22, {w}')
        else: a(f's_and_b32 s22, s17, {R1-1}')
        a('s_lshl_b32 s22, s22, 7')
        a(f's_add_u32 s22, s22, {F1}')
        a(f'v_add_u32 v4, s22, v4')
        a('v_and_b32 v64, 7, v73')
        a('v_lshlrev_b32 v5, 4, v64')
        a('v_lshl_add_u32 v5, v72, 7, v5')
        a('v_lshrrev_b32 v65, 3, v73')
        a('v_lshl_add_u32 v5, v65, 9, v5')
        a('s_lshl_b32 s22, s17, 3')
        if S0 and w == 1:
            a(f's_add_u32 s22, s22, {F1 + 512 + 4}')
            a('v_mov_b32 v7, s22')
        else:
            a(f's_add_u32 s22, s22, {F2 + 4*w}')
            a('v_lshl_add_u32 v7, v2, 3, s22')
        a(f'v_add_u32 v65, {16*w}, v73')
        a('v_min_u32 v65, 27, v65')
        a('v_mad_u32_u24 v65, v72, 28, v65')
        a('v_lshlrev_b32 v6, 4, v65')
        a('s_lshr_b32 s22, s17, 1')
        a('s_mul_i32 s22, s22, 7')
        a('s_and_b32 s34, s17, 1')
        a('s_lshl_b32 s35, s34, 2')
        a('v_add_u32 v70, s35, v72')
        a('v_mov_b32 v71, s34')
        a(f'v_mov_b32 v69, {w}')
        a('v_cmp_eq_u32 vcc, 3, v72')
        a('v_cndmask_b32 v70, v70, v72, vcc')
        a('v_cndmask_b32 v69, v69, v71, vcc')
        a('v_add_u32 v70, s22, v70')
        a('v_lshrrev_b32 v68, 1, v70')
        a('v_lshlrev_b32 v68, 8, v68')
        a('v_lshl_add_u32 v68, v69, 7, v68')
        a('v_and_b32 v69, 1, v70')
        a('v_lshl_add_u32 v68, v69, 3, v68')
        a('v_lshl_add_u32 v1, v64, 4, v68')
        a('v_cmp_gt_u32 s[26:27], 8, v73')
        if w == 1:
            a('v_cmp_gt_u32 vcc, 3, v72')
            a('s_and_b64 s[26:27], s[26:27], vcc')
        if VSM:
            a('v_lshrrev_b32 v65, 3, v73')
            if not POSB:
                a(f'v_min_u32 v66, {5 if w else 7}, v64')
                a('v_lshl_add_u32 v66, v66, 1, v65')
                a(f'v_mad_u32_u24 v66, v72, {12 if w else 16}, v66')
                a('v_lshlrev_b32 v66, 4, v66')
                a(f'v_add_u32 v6, {1024*w}, v66')
            elif w == 0: a('v_mov_b32 v6, v2')
            else:
                a('v_min_u32 v66, 5, v64')
                a('v_mad_u32_u24 v66, v65, 6, v66')
                a('v_mad_u32_u24 v66, v72, 12, v66')
                a('v_lshlrev_b32 v66, 4, v66')
                a('v_add_u32 v6, 1024, v66')
            a(f's_mul_i32 s22, s17, {12 if w else 16}')
            a(f's_add_u32 s22, s22, {256*w}')
            a('v_lshl_add_u32 v70, v64, 1, s22')
            a('v_lshrrev_b32 v68, 4, v70')
            a('v_lshlrev_b32 v68, 8, v68')
            a('v_bfe_u32 v69, v70, 1, 1')
            a('v_lshl_add_u32 v68, v69, 7, v68')
            a('v_bfe_u32 v69, v70, 2, 2')
            a('v_lshl_add_u32 v68, v69, 2, v68')
            a('v_and_b32 v69, 1, v72')
            a('v_lshl_add_u32 v65, v69, 2, v65')
            a('v_lshrrev_b32 v69, 1, v72')
            a('v_lshl_add_u32 v65, v69, 1, v65')
            if PL2:
                a('v_lshrrev_b32 v65, 3, v73')
                a('v_lshl_add_u32 v65, v72, 1, v65')
                a('v_lshrrev_b32 v5, 1, v72')
                a('v_lshlrev_b32 v5, 9, v5')
                a('v_lshrrev_b32 v69, 2, v73')
                a('v_lshl_add_u32 v5, v69, 7, v5')
                a('v_and_b32 v69, 1, v72')
                a('v_lshl_add_u32 v5, v69, 6, v5')
                a('v_and_b32 v69, 3, v73')
                a('v_lshl_add_u32 v5, v69, 4, v5')
                a('v_and_b32 v69, 1, v73')
                a('v_mul_u32_u24 v69, 0xaaaa, v69')
                a('v_add_u32 v0, 0x4444, v69')
            a('v_lshl_add_u32 v1, v65, 4, v68')
            a('v_cmp_gt_u32 s[26:27], 6, v64')
            for r in range(156, 160): a(f'v_mov_b32 v{r}, 0')
            for k in range(4): a(f'ds_write_b128 v2, v[156:159] offset:{YL + w*4096 + k*1024}')
        a(f's_mul_i32 s22, s17, {64*GSH_B}')
        a(f's_add_u32 s25, s22, {VO_OFF}')
        a('s_lshl_b32 s35, s17, 7')
        a(f's_add_u32 s35, s35, {CNT_OFF + VOC - 2048}')
        a(f's_add_u32 s39, s35, {8*2048}')
        a('s_mov_b32 s38, 0')
        a(f'v_mov_b32 v{VOK}, 0')
        if KS:
            for r in range(64, 144): a(f'v_mov_b32 v{r}, 0')
        if PROT:
            for c in range(8):
                a(f's_add_u32 s22, s17, {c}')
                a('s_and_b32 s22, s22, 7')
                a(f's_mul_i32 s{72+c}, s22, 3584')
                a('s_lshl_b32 s22, s22, 10')
                a(f's_add_u32 s{64+c}, s22, {EXCH_OFF + PX - EXCH_B}')
    else:
        a(f's_mul_i32 s24, s17, {65*8*KB}')
        a(f's_add_u32 s24, s24, {T2_OFF + (w-2)*4096 + (8*KB if SLOW_FIRST else 0)}')
        a('s_mul_i32 s34, s17, 640')
        a(f's_add_u32 s34, s34, {CNT_OFF + T2F + 4*(w-2) + (8 if SLOW_FIRST else 0)}')
        a('s_mul_i32 s36, s17, 448')
        a('v_add_u32 v0, s36, v2')
        a(f'v_add_u32 v0, {ML}, v0')
        a(f's_add_u32 s36, s36, {MEMG_OFF}')
        a(f's_mov_b32 s37, {T2_OFF}')
        a('v_cmp_gt_u32 s[26:27], 28, v1')
        a('v_and_b32 v119, 31, v1')
        a('v_lshlrev_b32 v119, 2, v119')
        if PRI: a(f'v_and_b32 v119, 0x78, v119\nv_or_b32 v119, {4 if HALL else 4*(w-2)}, v119')
        if F2ONE: a(f'v_and_b32 v119, 0x78, v119\nv_or_b32 v119, {4*(F2ONE-1)}, v119')
        a('s_add_u32 s22, s17, 16')
        a(f's_and_b32 s22, s22, {R2-1}')
        a('s_lshl_b32 s22, s22, 7')
        a(f's_add_u32 s22, s22, {F2}')
        a(f'v_add_u32 v119, s22, v119')
        nl = 10 if w == 2 else 14
        a(f'v_min_u32 v118, {nl-1}, v1')
        a(f's_mul_i32 s22, s17, {nl}')
        a('v_add_u32 v118, s22, v118')
        a('v_lshlrev_b32 v118, 7, v118')
        a(f'v_add_u32 v118, {2*EXCH_B if w == 2 else 2*XSEG_B}, v118')
        a(f's_mov_b32 s39, {XF_OFF}')
        a(f'v_add_u32 v1, {WL + 3*(w-2)*TILE_B}, v2')
        a('v_mov_b32 v117, 1')
        a('s_mul_i32 s38, s17, 1104')
        a(f's_add_u32 s38, s38, {EXCH_B + (w-2)*1024}')
    if TIN:
        vp = 0 if fin else 5
        a('v_bfe_u32 v8, v2, 4, 1')
        a('v_mul_u32_u24 v3, 0xaaaa, v8')
        a('v_add_u32 v3, 0x4444, v3')
        a('v_bfe_u32 v9, v2, 5, 3')
        a('v_lshl_add_u32 v8, v8, 3, v9')
        a('v_and_b32 v9, 0x300, v2')
        a(f'v_lshl_add_u32 v{vp}, v8, 4, v9')

def dbg_wait(a, P, t, abort):
    a('s_mov_b32 s30, 0')
    a.label(P)
    a(f'buffer_load_dword v{t+2}, v{t}, {DBG}, 0 offen sc1')
    a('s_waitcnt vmcnt(0)')
    a(f'v_cmp_ne_u32 vcc, v{t+2}, v{t+1}')
    a(f's_cbranch_vccz {P}_ok')
    a('s_sleep 4')
    a('s_add_u32 s30, s30, 1')
    a(f's_cmp_lt_u32 s30, {SLOW_LIMIT}')
    a(f's_cbranch_scc1 {P}')
    a(f's_branch {abort}')
    a.label(P + '_ok')

def dep_regs(a, cg_s, t, lane='v1'):
    a(f's_and_b32 s20, {cg_s}, 15')
    a('s_lshr_b32 s21, s20, 1')
    a('s_mul_i32 s21, s21, 56')
    a('s_add_u32 s22, s21, 55')
    a('s_lshr_b32 s21, s21, 6')
    a('s_lshr_b32 s22, s22, 6')
    a('s_add_u32 s21, s21, 24')
    a('s_add_u32 s22, s22, 24')
    a('s_add_u32 s20, s20, 8')
    a(f's_cmp_lt_u32 {cg_s}, 16')
    a('s_cselect_b32 s21, s20, s21')
    a('s_cselect_b32 s22, s20, s22')
    a(f's_cselect_b32 s20, {A_TGT}, {B_TGT}')
    a('s_lshl_b32 s21, s21, 2')
    a('s_lshl_b32 s22, s22, 2')
    a(f'v_mov_b32 v{t}, 124')
    a(f'v_mov_b32 v{t+1}, 128')
    a(f'v_writelane_b32 v{t}, s21, 0')
    a(f'v_writelane_b32 v{t}, s22, 1')
    a(f'v_writelane_b32 v{t+1}, s20, 0')
    a(f'v_writelane_b32 v{t+1}, s20, 1')

def xprep_loop(a, P):
    import prep
    a.label(f'{P}_l')
    a('s_waitcnt vmcnt(0) lgkmcnt(0)')
    a('v_mov_b32 v4, 1')
    a('v_mov_b32 v5, 20')
    wg_atomic(a, f'{P}_el', 's3')
    a('s_cmp_ge_u32 s3, 32')
    a(f's_cbranch_scc1 {P}_d')
    prep.xprep_item(a, P, 's3', st='sc1', signal=DBG)
    a(f's_branch {P}_l')
    a.label(f'{P}_d')

def wg_atomic(a, P, dst):
    a('v_mov_b32 v6, 160000')
    a('s_barrier')
    a('s_cmp_lg_u32 s16, 0')
    a(f's_cbranch_scc1 {P}1')
    a('s_mov_b64 exec, 1')
    a(f'buffer_atomic_add v4, v5, {DBG}, 0 offen sc0')
    a('s_waitcnt vmcnt(0)')
    a('ds_write_b32 v6, v4')
    a('s_waitcnt lgkmcnt(0)')
    a('s_mov_b64 exec, -1')
    a.label(f'{P}1')
    a('s_barrier')
    a('ds_read_b32 v4, v6')
    a('s_waitcnt lgkmcnt(0)')
    a(f'v_readfirstlane_b32 {dst}, v4')

def staff_check(a, okl, mode):
    a('s_mov_b32 s30, 0')
    a('v_mov_b32 v36, 0')
    a.label('ch_chk')
    a(f'buffer_load_dword v37, v36, {DBG}, 0 offen sc1')
    a('s_waitcnt vmcnt(0)')
    a('v_readfirstlane_b32 s22, v37')
    a('s_and_b32 s22, s22, 0xffff')
    a('s_cmp_ge_u32 s22, 32')
    a('s_cbranch_scc1 ch_go_end')
    a('s_sleep 16')
    a('s_add_u32 s30, s30, 1')
    a('s_cmp_lt_u32 s30, 64')
    a('s_cbranch_scc1 ch_chk')
    a.label('ch_go_end')
    a('v_mov_b32 v6, 160016')
    a('v_mov_b32 v4, s22')
    a('s_cmp_lg_u32 s16, 0')
    a('s_cbranch_scc1 ch_dec')
    a('ds_write_b32 v6, v4')
    a('s_waitcnt lgkmcnt(0)')
    a.label('ch_dec')
    a('s_barrier')
    a('ds_read_b32 v4, v6')
    a('s_waitcnt lgkmcnt(0)')
    a('v_readfirstlane_b32 s22, v4')
    a('s_cmp_ge_u32 s22, 32')
    a(f's_cbranch_scc1 {okl}')
    a('v_mov_b32 v4, 0x10001')
    a(f's_mov_b32 s18, {mode}')
    a('s_branch ch_take')

def worker_s4d(a):
    import s4d
    s4d.s4d_setup(a)
    a.label('wk_loop')
    a('v_mov_b32 v4, 1')
    a('v_mov_b32 v5, 4')
    wg_atomic(a, 'wk_el', 's3')
    a('v_and_b32 v4, 15, v1')
    a('s_cmp_ge_u32 s3, 112')
    a('s_cbranch_scc1 wk_done')
    s4d.s4d_item(a, 'wk', 's3')
    a('s_branch wk_loop')
    a.label('wk_done')

def poll_eq(a, P, srd, soff, target, sleep=4):
    a('v_mov_b32 v8, 0')
    a('s_mov_b32 s30, 0')
    a.label(P)
    a(f'buffer_load_dword v9, v8, {srd}, {soff} offen sc1')
    a('s_waitcnt vmcnt(0)')
    a(f'v_cmp_ne_u32 vcc, {target}, v9')
    a(f's_cbranch_vccz {P}_ok')
    a(f's_sleep {sleep}')
    a('s_add_u32 s30, s30, 1')
    a(f's_cmp_lt_u32 s30, {SLOW_LIMIT}')
    a(f's_cbranch_scc1 {P}')
    a('s_branch cA_abort')
    a.label(P + '_ok')
def flag_wait(a, P):
    a('s_cmp_lg_u32 s97, 0')
    a(f's_cbranch_scc1 {P}_sk')
    a('s_movk_i32 s20, 128')
    poll_eq(a, P, DBG, 's20', 1)
    a('s_mov_b32 s97, 1')
    a.label(P + '_sk')
def ac_wait(a, P):
    a('s_lshl_b32 s20, s17, 7')
    a(f's_add_u32 s20, s20, {CNT_OFF + AC}')
    poll_eq(a, P, SRD, 's20', 7, sleep=6)

def worker_all(a):
    import s4d, gemm, tok, prep
    JS = DBG if MERGE else SRD
    JO = 64 if MERGE else CNT_OFF + JOBC
    NA = 112 if MERGE == 1 else 0
    NJ = 1104 + NA
    tok.PEEK = JS
    a('s_load_dwordx2 s[36:37], s[0:1], 112')
    a('s_waitcnt lgkmcnt(0)')
    a(f's_mov_b32 s92, s36\ns_and_b32 s93, s37, 0xffff\ns_mov_b32 s94, {2048*896*2}\ns_mov_b32 s95, 0x20000')
    def ask():
        lb = a.newlabel('ask')
        a('s_cmp_lg_u32 s16, 0')
        a(f's_cbranch_scc1 {lb}')
        a('v_mov_b32 v250, 1')
        a(f'v_mov_b32 v251, {JO}')
        a('s_mov_b64 exec, 1')
        a(f'buffer_atomic_add v250, v251, {JS}, 0 offen sc0')
        a('s_mov_b64 exec, -1')
        a.label(lb)
    a('s_mov_b32 s96, 0')
    if MERGE:
        a('s_cmp_lg_u32 s101, -1')
        a('s_mov_b32 s3, s101')
        a('s_mov_b32 s101, -1')
        a('s_cbranch_scc1 wk_have')
    ask()
    a('s_branch wk_next')
    a.label('wk_loop')
    a('s_waitcnt vmcnt(0) lgkmcnt(0)')
    a('s_cmp_eq_u32 s96, 1')
    a('s_cbranch_scc1 wk_ask')
    a('s_mov_b32 s96, 1')
    staff_check(a, 'wk_ask', 0)
    a.label('wk_ask')
    a('v_readfirstlane_b32 s22, v250')
    a(f's_cmp_ge_u32 s22, {NJ}')
    a('s_cbranch_scc1 wk_next')
    ask()
    a.label('wk_next')
    evlog(a, 9005)
    a('v_mov_b32 v6, 160000')
    a('s_waitcnt vmcnt(0)')
    a('s_barrier')
    a('s_cmp_lg_u32 s16, 0')
    a('s_cbranch_scc1 wk_n1')
    a('s_mov_b64 exec, 1')
    a('ds_write_b32 v6, v250')
    a('s_mov_b64 exec, -1')
    a('s_waitcnt lgkmcnt(0)')
    a.label('wk_n1')
    a('s_barrier')
    a('ds_read_b32 v4, v6')
    a('s_waitcnt lgkmcnt(0)')
    a('v_readfirstlane_b32 s3, v4')
    a.label('wk_have')
    evlog(a, 's3')
    a(f's_cmp_ge_u32 s3, {NJ}')
    a('s_cbranch_scc1 wk_done')
    a('v_mov_b32 v250, 0')
    a(f'v_mov_b32 v251, {JO}')
    a('v_and_b32 v1, 63, v0')
    a('v_lshlrev_b32 v2, 4, v1')
    a('v_lshrrev_b32 v3, 4, v1')
    a('v_and_b32 v4, 15, v1')
    if MERGE == 3: flag_wait(a, 'wk_fw')
    if MERGE == 1:
        a('s_cmp_ge_u32 s3, 112')
        a('s_cbranch_scc1 wk_np')
        prep.prep_item(a, 'wpa', 's3', st='sc1', mode='A')
        flag_wait(a, 'wk_fa')
        a('s_waitcnt vmcnt(0)')
        a('s_barrier')
        a('v_mov_b32 v250, 0')
        a('s_cmp_lg_u32 s16, 0')
        a('s_cbranch_scc1 wk_loop')
        a('s_lshl_b32 s20, s17, 7')
        a(f's_add_u32 s20, s20, {CNT_OFF + AC}')
        a('v_mov_b32 v5, 1')
        a('v_mov_b32 v6, 0')
        a('s_mov_b64 exec, 1')
        a(f'buffer_atomic_add v5, v6, {SRD}, s20 offen')
        a('s_mov_b64 exec, -1')
        a('s_branch wk_loop')
        a.label('wk_np')
        a('s_sub_u32 s3, s3, 112')
        flag_wait(a, 'wk_fw')
    a('s_cmp_ge_u32 s3, 592')
    a('s_cbranch_scc1 wk_tok')
    a('s_cmp_ge_u32 s3, 480')
    a('s_cbranch_scc1 wk_s4d')
    a('s_cmp_ge_u32 s3, 256')
    a('s_cbranch_scc1 wk_full')
    a('s_cmp_ge_u32 s3, 224')
    a('s_cbranch_scc1 wk_srv')
    a('s_cmp_ge_u32 s3, 112')
    a('s_cselect_b32 s18, 1, 0')
    a('s_cselect_b32 s20, 112, 0')
    a('s_sub_u32 s20, s3, s20')
    a('s_and_b32 s17, s20, 15')
    a('s_add_u32 s17, s17, 16')
    a('s_lshr_b32 s34, s20, 4')
    a('s_lshl_b32 s34, s34, 1')
    a('s_add_u32 s35, s34, 2')
    if RB1_DELAY:
        a('s_cmp_eq_u32 s18, 0')
        a('s_cbranch_scc1 wk_gemm')
        for _ in range(RB1_DELAY): a('s_sleep 127')
    a('s_branch wk_gemm')
    a.label('wk_full')
    a('s_sub_u32 s20, s3, 224')
    a('s_and_b32 s17, s20, 15')
    a('s_lshr_b32 s18, s20, 4')
    a('s_cmp_lt_u32 s18, 8')
    a('s_cselect_b32 s21, 16, 0')
    a('s_add_u32 s17, s17, s21')
    a('s_and_b32 s18, s18, 7')
    a('s_mov_b32 s34, 0\ns_mov_b32 s35, 14')
    a.label('wk_gemm')
    if MERGE == 1:
        a('s_cmp_ge_u32 s17, 16')
        a('s_cbranch_scc1 wk_g2')
        ac_wait(a, 'wk_aw')
        a.label('wk_g2')
        evlog(a, 9006)
    gemm.gemm_body(a, 'wg', 's18', 's17', st='sc1', signal=True, ld='sc1' if MERGE else '')
    a('s_branch wk_loop')
    a.label('wk_srv')
    import t2srv
    a('s_and_b32 s18, s3, 15')
    a('s_lshr_b32 s19, s3, 4')
    a('s_and_b32 s19, s19, 1')
    t2srv.t2srv_body(a, 'ws', 's18', 's19', 'cA_abort', ld='sc1' if MERGE else '')
    a('v_mov_b32 v250, 0')
    a('s_branch wk_loop')
    a.label('wk_s4d')
    a('s_sub_u32 s3, s3, 480')
    s4d.s4d_setup(a)
    s4d.s4d_item(a, 'wk', 's3')
    a('s_branch wk_loop')
    a.label('wk_tok')
    a('s_sub_u32 s3, s3, 592')
    a('s_cmp_ge_u32 s3, 512')
    a('s_cbranch_scc1 wk_done')
    a('s_lshr_b32 s17, s3, 3')
    a('s_and_b32 s18, s3, 3')
    a('s_bitcmp1_b32 s3, 2')
    a('s_cbranch_scc1 wk_toko')
    tok.tokp_body(a, 's17', 's18', ld='sc1', st='sc1', sync='wp', ldx='sc1' if MERGE else '')
    a('s_branch wk_loop')
    a.label('wk_toko')
    tok.toko_body(a, 's17', 's18', ld='sc1', sync='wo', OUT='s[92:95]')
    a('s_branch wk_loop')
    a.label('wp_abort')
    a.label('wo_abort')
    a('s_branch cA_abort')
    a.label('wk_done')

def role_tail(a, late=None):
    lane_consts(a)
    a('s_mov_b32 s19, 0')
    a(f's_mov_b32 s20, {EXCH_OFF}')
    if STAMPS: a('s_mov_b32 s63, s17')
    a('s_lshr_b32 s22, s17, 4')
    a('s_lshl_b32 s22, s22, 2')
    a('s_add_u32 s22, s22, s16')
    a('s_and_b32 s17, s17, 15')
    for p in range(8):
        a(f's_cmp_eq_u32 s22, {p}')
        a(f's_cbranch_scc1 ch_init{p}')
    a('s_branch ch_end')
    for p in range(8):
        a.label(f'ch_init{p}')
        if CPF2:
            lb = a.newlabel('cpf'); tgt = f'cA_{"sc" if p < 4 else "va"}{p & 3}_loop'
            def cpf():
                a.raw('  s_getpc_b64 s[98:99]')
                a.raw(f'{lb}:')
                a.raw(f'  s_add_u32 s98, s98, {tgt}-{lb}')
                a.raw('  s_addc_u32 s99, s99, 0')
                a('v_lshlrev_b32 v38, 2, v2')
                a('global_load_dword v39, v38, s[98:99]')
            if p < 4: cpf()
        if p < 4: init_score(a, p)
        else: init_value(a, p - 4, p)
        if CPF2 and p >= 4: cpf()
        if late: late(p)
        a('s_mov_b32 s30, 0')
        a('v_mov_b32 v36, 0')
        a.label(f'ch_md{p}')
        a(f'buffer_load_dword v37, v36, {DBG}, 0 offen sc1')
        a('s_waitcnt vmcnt(0)')
        a('v_readfirstlane_b32 s22, v37')
        a('s_and_b32 s31, s22, 0xffff')
        a('s_cmp_ge_u32 s31, 32')
        a(f's_cbranch_scc1 ch_go{p}')
        a('s_sleep 2')
        a('s_add_u32 s30, s30, 1')
        a(f's_cmp_lt_u32 s30, {SLOW_LIMIT}')
        a(f's_cbranch_scc1 ch_md{p}')
        a('s_branch ch_end')
        a.label(f'ch_go{p}')
        evlog(a, 9003)
        if DIAG: a('s_memtime s[32:33]')
        a('s_mov_b32 s31, 0')
        if p in (4, 5):
            for r in range(36, 60): a(f'v_mov_b32 v{r}, 0')
        a('s_lshr_b32 s22, s22, 16')
        a('s_cmp_lg_u32 s22, 0')
        role = 'sc' if p < 4 else 'va'
        a(f's_cbranch_scc1 cB_{role}{p & 3}_loop')
        a(f's_branch cA_{role}{p & 3}_loop')
    for tag, st in (('cA', ''), ('cB', 'sc1')):
        for w in range(4): gen_score(a, w, st, tag)
        for w in range(4): gen_value(a, w, st, tag)
        tag_end(a, tag)

def tag_end(a, tag):
    a.label(f'{tag}_abort')
    a('v_mov_b32 v4, 0xdead')
    a('v_mov_b32 v5, 16')
    a(f'buffer_store_dword v4, v5, {DBG}, 0 offen')
    a('s_branch ch_end')
    a.label(f'{tag}_done')
    evlog(a, 9004)
    if STAMPS and STAMP_CYC:
        a('s_cmp_lg_u32 s16, 0')
        a('s_cbranch_scc1 ch_end')
        a('s_lshl_b32 s22, s63, 10')
        a(f's_add_u32 s22, s22, {STAMP_OFF + 65536}')
        a('s_mov_b32 s30, 0')
        a('s_mov_b64 exec, 1')
        a.label(f'{tag}_cal')
        a('s_memtime s[40:41]')
        a('s_memrealtime s[42:43]')
        a('s_waitcnt lgkmcnt(0)')
        a('v_mov_b32 v4, s40')
        a('v_mov_b32 v5, s42')
        a(f'buffer_store_dwordx2 v[4:5], off, {SRD}, s22')
        a('s_add_u32 s22, s22, 8')
        a('s_add_u32 s30, s30, 1')
        a('s_cmp_lt_u32 s30, 128')
        a(f's_cbranch_scc1 {tag}_cal')
    if DIAG:
        a('s_memtime s[60:61]')
        a('s_waitcnt lgkmcnt(0)')
        a('s_sub_u32 s60, s60, s32')
        a('v_mov_b32 v4, s60')
        a('v_mov_b32 v5, 8')
        a(f'buffer_store_dword v4, v5, {DBG}, 0 offen')
        a('v_mov_b32 v4, s31')
        a('v_mov_b32 v5, 12')
        a('s_mov_b64 exec, 1')
        a(f'buffer_atomic_add v4, v5, {DBG}, 0 offen')
    a('s_branch ch_end')

def gen_chain_kernel(name='chain_kernel', worker=worker_s4d):
    a = Asm()
    a.raw(kernel_header(name))
    a('s_cmp_ge_u32 s2, 256')
    a('s_cbranch_scc1 ch_end')
    a('s_load_dwordx2 s[4:5], s[0:1], 120')
    a('s_load_dwordx2 s[6:7], s[0:1], 128')
    if CODE_PF: code_prefetch(a, name, 'ch_end', 130000, 60)
    a('s_getreg_b32 s3, hwreg(HW_REG_XCC_ID)')
    a('s_and_b32 s3, s3, 15')
    a('v_lshrrev_b32 v1, 6, v0')
    a('v_readfirstlane_b32 s16, v1')
    a('s_waitcnt lgkmcnt(0)')
    a('s_mov_b32 s8, s6\ns_and_b32 s9, s7, 0xffff\ns_mov_b32 s10, 0x10000000\ns_mov_b32 s11, 0x20000')
    a('s_mov_b32 s12, s4\ns_and_b32 s13, s5, 0xffff\ns_mov_b32 s14, 256\ns_mov_b32 s15, 0x20000')
    if EVLOG:
        a('s_lshl_b32 s100, s2, 2')
        a('s_add_u32 s100, s100, s16')
        a('s_lshl_b32 s100, s100, 8')
        a(f's_add_u32 s100, s100, {EV_OFF}')
    evlog(a, 9000)
    if MERGE:
        import prep
        a('s_mov_b32 s97, 0')
        a('s_mov_b32 s91, s3')
        a('v_and_b32 v1, 63, v0')
        a('v_lshlrev_b32 v2, 4, v1')
        a('v_lshrrev_b32 v3, 4, v1')
        a('v_and_b32 v4, 15, v1')
        a('s_cmp_lg_u32 s16, 0')
        a('s_cbranch_scc1 m_a1')
        a(f's_cmp_eq_u32 s3, {XCD_SEL}')
        a('s_cselect_b32 s20, 0, 64')
        a('v_accvgpr_write_b32 a255, 1')
        a('s_mov_b64 exec, 1')
        a(f'buffer_atomic_add a255, v2, {DBG}, s20 offen sc0')
        a('s_mov_b64 exec, -1')
        a.label('m_a1')
        prep.xall_pre(a, 's2')
        a('s_cmp_ge_u32 s2, 224')
        a('s_cbranch_scc1 m_w')
        prep.prep_item(a, 'mpb', 's2', st='sc1', mode='Bhalf' if MERGE == 1 else 'mix', defer=(MERGE == 3))
        a('s_branch m_e')
        a.label('m_w')
        a('s_waitcnt vmcnt(0)')
        a.label('m_e')
        prep.xall_post(a, 'mpx', 's2', 'sc1', wait=False)
        a('v_mov_b32 v6, 160000')
        a('s_waitcnt vmcnt(0) lgkmcnt(0)')
        a('s_barrier')
        a('s_cmp_lg_u32 s16, 0')
        a('s_cbranch_scc1 m_b1')
        a('v_mov_b32 v4, 1')
        a('v_mov_b32 v5, 96')
        a('v_accvgpr_read_b32 v7, a255')
        a('s_mov_b64 exec, 1')
        a(f'buffer_atomic_add v4, v5, {DBG}, 0 offen sc0')
        a('ds_write_b32 v6, v7')
        a('s_waitcnt lgkmcnt(0)')
        a('s_mov_b64 exec, -1')
        a.label('m_b1')
        a('s_barrier')
        a('ds_read_b32 v7, v6')
        a('s_cmp_lg_u32 s16, 0')
        a('s_cbranch_scc1 m_b2')
        a('s_waitcnt vmcnt(0)')
        a('v_readfirstlane_b32 s20, v4')
        a('s_cmp_lg_u32 s20, 255')
        a('s_cbranch_scc1 m_b2')
        a('v_mov_b32 v4, 1')
        a('v_mov_b32 v5, 128')
        a('s_mov_b64 exec, 1')
        a(f'buffer_store_dword v4, v5, {DBG}, 0 offen sc1')
        a('s_mov_b64 exec, -1')
        a.label('m_b2')
        a('s_waitcnt lgkmcnt(0)')
        a('v_readfirstlane_b32 s101, v7')
        evlog(a, 9001)
        a(f's_cmp_lg_u32 s91, {XCD_SEL}')
        a('s_cbranch_scc1 ch_worker')
        a('s_and_b32 s17, s101, 0xffff')
        a('s_mov_b32 s101, -1')
        a('s_cmp_lt_u32 s17, 32')
        a('s_cbranch_scc1 ch_role')
        a('s_branch ch_worker')
    else:
        a(f's_cmp_lg_u32 s3, {XCD_SEL}')
        a('s_cbranch_scc1 ch_worker')
    a('v_mov_b32 v4, 1')
    a('s_mov_b32 s18, 0')
    a.label('ch_take')
    a('v_mov_b32 v5, 0')
    wg_atomic(a, 'ch_el', 's17')
    a('s_and_b32 s17, s17, 0xffff')
    a('s_cmp_lt_u32 s17, 32')
    a('s_cbranch_scc1 ch_role')
    a('s_cmp_eq_u32 s18, 0')
    a('s_cbranch_scc1 ch_worker')
    a('s_branch ch_end')
    a.label('ch_role')
    if MERGE:
        flag_wait(a, 'ch_fw')
        if MERGE == 1:
            a('s_cmp_ge_u32 s17, 16')
            a('s_cbranch_scc1 ch_r2')
            ac_wait(a, 'ch_aw')
            a.label('ch_r2')
        evlog(a, 9002)
    role_tail(a)
    a.label('ch_worker')
    if worker: worker(a)
    if worker is not worker_all: staff_check(a, 'ch_end', 1)
    a.label('ch_end')
    a('s_endpgm')
    return a

if __name__ == '__main__':
    import sys
    for x in sys.argv[2:]:
        if x == 'stamps': STAMPS = True
        elif '=' in x:
            k, v = x.split('='); globals()[k] = int(v)
    a = gen_chain_kernel()
    out = ['; @launch kernel=chain_kernel grid=(256,1,1) block=(256,1,1) lds=163840',
           '.amdgcn_target "amdgcn-amd-amdhsa--gfx950"', '.text', a.text(), '.section .rodata,"a"', kernel_desc('chain_kernel')]
    open(sys.argv[1], 'w').write('\n'.join(out) + '\n')
    print('instructions', a.count)
```

```python
from asmlib import *
from layout import *
WS = 's[8:11]'
PEEK = WS
def ev(a, tag, t=120):
    import chain as C
    if C.EVLOG:
        l = a.newlabel('ev')
        a('s_cmp_lt_u32 s17, 62')
        a(f's_cbranch_scc1 {l}')
        a(f's_mul_i32 s29, s17, 10\ns_add_u32 s29, s29, {9200 - 620 + tag}')
        C.evlog(a, 's29', t)
        a.label(l)
def common(a, endl):
    a('s_cmp_ge_u32 s2, 256')
    a(f's_cbranch_scc1 {endl}')
    a('s_load_dwordx2 s[6:7], s[0:1], 128')
    a('s_load_dwordx2 s[4:5], s[0:1], 112')
    a('v_lshrrev_b32 v1, 6, v0')
    a('v_readfirstlane_b32 s16, v1')
    a('v_and_b32 v1, 63, v0')
    a('v_lshlrev_b32 v2, 4, v1')
    a('v_lshrrev_b32 v3, 4, v1')
    a('v_and_b32 v4, 15, v1')
    a('s_waitcnt lgkmcnt(0)')
    a('s_mov_b32 s8, s6\ns_and_b32 s9, s7, 0xffff\ns_mov_b32 s10, 0x10000000\ns_mov_b32 s11, 0x20000')
    a(f's_mov_b32 s12, s4\ns_and_b32 s13, s5, 0xffff\ns_mov_b32 s14, {2048*896*2}\ns_mov_b32 s15, 0x20000')

WAIT_LIMIT = 30000
SLEEP = 1
LONG = 40
MIDS = 4
NEAR = 56
FULLPOLL = 64
ONELINE = 0
PMODE = 3
LASTP = 61
T2MID = 20
PWAIT = 0
OSC = 0
def mpoll(a, dst, va, so):
    if PMODE == 0: a(f'buffer_load_dword v{dst}, v{va}, {WS}, {so} offen sc1')
    elif PMODE == 1: a(f'buffer_load_dword v{dst}, v{va}, {WS}, {so} offen sc0 sc1')
    elif PMODE == 2: a(f'buffer_load_dword v{dst}, v{va}, {WS}, {so} offen sc0 sc1 nt')
    else:
        l = a.newlabel('mp')
        a(f's_cmp_ge_u32 s17, {LASTP}')
        a(f's_cbranch_scc1 {l}a')
        a(f'v_mov_b32 v{dst}, 0')
        a('s_mov_b64 exec, 1')
        a(f'buffer_atomic_or v{dst}, v{va}, {WS}, {so} offen sc0')
        a('s_mov_b64 exec, -1')
        a(f's_branch {l}b')
        a.label(l + 'a')
        a(f'buffer_load_dword v{dst}, v{va}, {WS}, {so} offen sc1')
        a.label(l + 'b')
PKS = 56
def peek(a):
    l = a.newlabel('pk')
    a(f's_cmp_lt_u32 s17, {PKS}')
    a(f's_cbranch_scc1 {l}')
    a(f'buffer_load_dword v250, v251, {PEEK}, 0 offen sc1')
    a.label(l)
def backoff(a, P, sleep):
    a(f's_sleep {sleep}')
    a(f's_cmp_ge_u32 s17, {LASTP}')
    a(f's_cbranch_scc1 {P}_bo')
    a(f's_sleep {MIDS}')
    a(f's_cmp_ge_u32 s17, {NEAR}')
    a(f's_cbranch_scc1 {P}_bo')
    a(f's_sleep {LONG}')
    a.label(P + '_bo')
def wait_eq(a, P, soff, target, abort, sleep=None, four=False, ne=False):
    sleep = sleep or SLEEP
    if four: a('v_lshlrev_b32 v60, 2, v3')
    else: a('v_mov_b32 v60, 0')
    a('s_mov_b32 s30, 0')
    a.label(P)
    a(f'buffer_load_dword v61, v60, {WS}, {soff} offen sc1')
    a('s_waitcnt vmcnt(0)')
    a(f'v_cmp_{"eq" if ne else "ne"}_u32 vcc, {target}, v61')
    a(f's_cbranch_vccz {P}_ok')
    backoff(a, P, sleep)
    a('s_add_u32 s30, s30, 1')
    a(f's_cmp_lt_u32 s30, {WAIT_LIMIT}')
    a(f's_cbranch_scc1 {P}')
    a(f's_branch {abort}')
    a.label(P + '_ok')

def load_lin(a, base_s, n, areg, flags=''):
    for f in range(n):
        if f % 4 == 0: a(f's_add_u32 s22, {base_s}, {f*1024}')
        a(f'buffer_load_dwordx4 a[{areg+4*f}:{areg+4*f+3}], v2, {WS}, s22 offen offset:{(f & 3)*1024} {flags}')

def tokp_body(a, seg_s, hq_s, ld='', st='', sync=None, ldx=''):
    a(f's_lshl_b32 s20, {hq_s}, 2')
    a('s_add_u32 s20, s20, s16')
    a(f's_lshl_b32 s21, {seg_s}, 4')
    a('s_add_u32 s21, s21, s20')
    a(f's_mul_i32 s21, s21, {GSH_B}')
    a(f's_add_u32 s21, s21, {F_OFF}')
    a(f's_mul_i32 s23, {seg_s}, {28*KB}')
    a(f's_add_u32 s23, s23, {XM_OFF}')
    FA, XA, MA = 0, 112, 224
    if sync:
        a(f's_mul_i32 s24, {seg_s}, {7*KB}')
        a(f's_add_u32 s24, s24, {MEMG_OFF}')
        a(f's_lshr_b32 s25, {seg_s}, 3')
        a('s_lshl_b32 s25, s25, 4')
        a('s_add_u32 s25, s25, s20')
        a('s_lshl_b32 s25, s25, 7')
        a(f's_add_u32 s25, s25, {CNT_OFF + FC}')
        wait_eq(a, sync + '_wf', 's25', 56, sync + '_abort')
    else:
        a(f's_mul_i32 s24, {seg_s}, {EXCH_B}')
        a(f's_add_u32 s24, s24, {EXCH_OFF}')
    load_lin(a, 's21', 28, FA, ld)
    load_lin(a, 's23', 28, XA, ldx)
    if not sync: load_lin(a, 's24', 7, MA, ld)
    AX = {(0, 0): 8, (0, 1): 12, (1, 1): 16}
    AM = {(0, 0): 20, (1, 0): 24, (0, 1): 28, (1, 1): 32}
    for r in range(4):
        a(f'v_lshl_add_u32 v5, v3, 2, {r}')
        a(f'v_cmp_le_u32 s[{40+2*r}:{41+2*r}], v5, v4')
    a('v_cmp_gt_u32 s[48:49], 2, v3')
    a('v_mov_b32 v6, 0xff800000')
    a('s_waitcnt vmcnt(0)' if sync else 's_waitcnt vmcnt(7)')
    for f in range(14):
        for (tk, tt), d in AX.items():
            c = '0' if f == 0 else f'v[{d}:{d+3}]'
            xa = XA + 4 * (tk * 14 + f); fa = FA + 4 * (tt * 14 + f)
            a(f'v_mfma_f32_16x16x32_bf16 v[{d}:{d+3}], a[{xa}:{xa+3}], a[{fa}:{fa+3}], {c}')
    MV = 64
    if sync:
        a('s_mul_i32 s22, s20, 448')
        a('v_mov_b32 v62, s22' if not ONELINE else 'v_mov_b32 v62, 0')
        a('s_mov_b32 s30, 0')
        a.label(sync + '_pm')
        a(f's_cmp_ge_u32 s17, {FULLPOLL}')
        a(f's_cbranch_scc1 {sync}_pf')
        mpoll(a, 61, 62, 's24')
        a('s_waitcnt vmcnt(0)')
        a('v_cmp_eq_u32 vcc, -1, v61')
        a(f's_cbranch_vccnz {sync}_pr')
        a.label(sync + '_pf')
        ev(a, 0)
        a('s_add_u32 s22, s24, 4096')
        for ks in range(7):
            a(f'buffer_load_dwordx4 v[{MV+4*ks}:{MV+4*ks+3}], v2, {WS}, {"s24" if ks < 4 else "s22"} offen offset:{(ks & 3)*1024} sc1')
        a('s_waitcnt vmcnt(0)')
        a(f'v_max_u32 v61, v{MV}, v{MV+1}')
        for r in range(MV + 2, MV + 28, 2): a(f'v_max3_u32 v61, v61, v{r}, v{r+1}')
        a('v_cmp_eq_u32 vcc, -1, v61')
        a(f's_cbranch_vccz {sync}_pk')
        a.label(sync + '_pr')
        backoff(a, sync + '_pm', SLEEP)
        a('s_add_u32 s30, s30, 1')
        a(f's_cmp_lt_u32 s30, {WAIT_LIMIT}')
        a(f's_cbranch_scc1 {sync}_pm')
        a(f's_branch {sync}_abort')
        a.label(sync + '_pk')
        ev(a, 1)
        peek(a)
    else:
        a('s_waitcnt vmcnt(0)')
    for ks in range(7):
        for (half, tt), d in AM.items():
            c = '0' if ks == 0 else f'v[{d}:{d+3}]'
            fa = FA + 4 * (tt * 14 + ks * 2 + half)
            mop = f'v[{MV+4*ks}:{MV+4*ks+3}]' if sync else f'a[{MA+4*ks}:{MA+4*ks+3}]'
            a(f'v_mfma_f32_16x16x32_bf16 v[{d}:{d+3}], {mop}, a[{fa}:{fa+3}], {c}')
    a(f's_lshl_b32 s25, {seg_s}, 1')
    a(f's_mul_i32 s25, s25, {PT_B}')
    a(f's_add_u32 s25, s25, {PT_OFF}')
    a('s_lshl_b32 s26, s20, 10')
    a('s_add_u32 s26, s26, s25')
    a(f's_lshl_b32 s27, {hq_s}, 10')
    a('s_add_u32 s27, s27, s25')
    a('s_lshr_b32 s28, s16, 1')
    a('s_lshl_b32 s28, s28, 3')
    a('s_add_u32 s27, s27, s28')
    a(f's_add_u32 s27, s27, {16*KB}')
    a('s_and_b32 s28, s16, 1')
    a('s_cmp_eq_u32 s28, 0')
    a('s_cselect_b32 s50, -1, 0')
    a('s_cselect_b32 s51, 0, -1')
    for tt in range(2):
        xs = []
        for (tk, t2), d in AX.items():
            if t2 != tt: continue
            for r in range(4):
                if tk == tt: a(f'v_cndmask_b32 v{d+r}, v6, v{d+r}, s[{40+2*r}:{41+2*r}]')
                xs.append(d + r)
        z, t = AM[(0, tt)], AM[(1, tt)]
        for r in range(4): a(f'v_cndmask_b32 v{z+r}, v{t+r}, v{z+r}, s[48:49]')
        for r in range(4): a(f'v_mov_b32 v{t+r}, v{z+r}')
        for r in range(4): a(f'v_permlane32_swap_b32 v{z+r}, v{t+r}')
        for r in range(4): a(f'v_add_f32 v{z+r}, v{z+r}, v{t+r}')
        ms = [z + r for r in range(4)]
        al = xs + ms
        mx = 40
        a(f'v_max3_f32 v{mx}, v{al[0]}, v{al[1]}, v{al[2]}')
        rest = al[3:]
        while len(rest) >= 2:
            a(f'v_max3_f32 v{mx}, v{mx}, v{rest[0]}, v{rest[1]}'); rest = rest[2:]
        if rest: a(f'v_max_f32 v{mx}, v{mx}, v{rest[0]}')
        for sw in ('16', '32'):
            a(f'v_mov_b32 v41, v{mx}')
            a(f'v_permlane{sw}_swap_b32 v{mx}, v41')
            a(f'v_max_f32 v{mx}, v{mx}, v41')
        for r in al: a(f'v_sub_f32 v{r}, v{r}, v{mx}')
        for r in al: a(f'v_exp_f32 v{r}, v{r}')
        a(f'v_add_f32 v42, v{ms[0]}, v{ms[1]}')
        a(f'v_add_f32 v43, v{ms[2]}, v{ms[3]}')
        a('v_add_f32 v42, v42, v43')
        a('v_mul_f32 v42, 0.5, v42')
        for r in xs: a(f'v_add_f32 v42, v42, v{r}')
        for sw in ('16', '32'):
            a('v_mov_b32 v41, v42')
            a(f'v_permlane{sw}_swap_b32 v42, v41')
            a('v_add_f32 v42, v42, v41')
        a('v_rcp_f32 v42, v42')
        for r in al: a(f'v_mul_f32 v{r}, v{r}, v42')
        o = 44 + 8 * tt
        for k in range(len(xs) // 2): a(f'v_cvt_pk_bf16_f32 v{o+k}, v{xs[2*k]}, v{xs[2*k+1]}')
        if tt == 0:
            a(f'v_mov_b32 v{o+2}, 0'); a(f'v_mov_b32 v{o+3}, 0')
        a(f'v_cvt_pk_bf16_f32 v{o+4}, v{ms[0]}, v{ms[1]}')
        a(f'v_cvt_pk_bf16_f32 v{o+5}, v{ms[2]}, v{ms[3]}')
        for k in range(6): a(f'v_min_u32 v{o+k}, -2, v{o+k}')
        a(f'buffer_store_dwordx4 v[{o}:{o+3}], v2, {WS}, s26 offen {st}')
        a('s_mov_b64 exec, s[50:51]')
        a(f'buffer_store_dwordx2 v[{o+4}:{o+5}], v2, {WS}, s27 offen {st}')
        a('s_mov_b64 exec, -1')
        if tt == 0:
            a(f's_add_u32 s26, s26, {PT_B}')
            a(f's_add_u32 s27, s27, {PT_B}')
    if sync:
        a(f's_lshl_b32 s25, {seg_s}, 7')
        a(f's_add_u32 s25, s25, {CNT_OFF + PTC}')
        a('v_mov_b32 v5, 1')
        a('v_mov_b32 v6, 0')
        ev(a, 2)
        a('s_waitcnt vmcnt(0)')
        ev(a, 3)
        a('s_mov_b64 exec, 1')
        a(f'buffer_atomic_add v5, v6, {WS}, s25 offen')
        a('s_mov_b64 exec, -1')

def toko_body(a, seg_s, vq_s, ld='', sync=None, OUT='s[12:15]'):
    a(f's_lshl_b32 s20, {vq_s}, 2')
    a('s_add_u32 s20, s20, s16')
    a('s_mul_i32 s24, s20, 65')
    a(f's_add_u32 s24, s24, {seg_s}')
    a('s_lshl_b32 s24, s24, 13')
    a(f's_add_u32 s24, s24, {T2_OFF + 8*KB}')
    a('s_lshl_b32 s21, s20, 6')
    a(f's_add_u32 s21, s21, {seg_s}')
    a(f's_mul_i32 s21, s21, {GSH_B}')
    a(f's_add_u32 s21, s21, {VO_OFF}')
    a(f's_lshl_b32 s25, {seg_s}, 1')
    a(f's_mul_i32 s25, s25, {PT_B}')
    a(f's_add_u32 s25, s25, {PT_OFF}')
    a('v_lshrrev_b32 v8, 5, v1')
    a('v_and_b32 v9, 31, v1')
    a('v_lshrrev_b32 v10, 4, v9')
    a('v_min_u32 v5, 27, v9')
    a('v_and_b32 v5, 15, v5')
    a('v_lshlrev_b32 v6, 1, v10')
    a('v_sub_u32 v6, 8, v6')
    if POSB:
        a('v_and_b32 v7, 1, v5')
        a('v_lshrrev_b32 v5, 1, v5')
        a('v_mad_u32_u24 v5, v7, v6, v5')
    a('v_lshlrev_b32 v7, 10, v10')
    a('v_lshl_add_u32 v7, v5, 4, v7')
    a('v_lshlrev_b32 v6, 5, v6')
    a('v_mad_u32_u24 v5, v8, v6, v7')
    a('v_lshl_add_u32 v63, v6, 1, v5')
    a('v_lshl_add_u32 v7, v8, 3, v7')
    a(f'v_mul_u32_u24 v6, {PT_B}, v10')
    a('v_lshl_add_u32 v6, v8, 8, v6')
    a('v_lshl_add_u32 v6, v4, 4, v6')
    VA = 0; T2R = 28; PR = 128
    a(f's_lshr_b32 s26, {seg_s}, 3')
    a('s_lshl_b32 s26, s26, 4')
    a('s_add_u32 s26, s26, s20')
    a('s_lshl_b32 s26, s26, 7')
    a(f's_add_u32 s26, s26, {CNT_OFF + VOC}')
    wait_eq(a, sync + '_wv', 's26', 56, sync + '_abort')
    for h in range(16):
        if h % 2 == 0: a(f's_add_u32 s22, s21, {h*1792}')
        for kh in range(2):
            r = VA + 8 * h + 4 * kh
            a(f'buffer_load_dwordx4 a[{r}:{r+3}], v{63 if kh else 5}, {WS}, s22 offen offset:{(h & 1)*1792} {ld}')
    a(f's_cmp_ge_u32 {seg_s}, {LASTP}')
    a(f's_cbranch_scc1 {sync}_lm')
    a(f's_lshl_b32 s26, {seg_s}, 7')
    a(f's_add_u32 s26, s26, {CNT_OFF + PTC}')
    wait_eq(a, sync + '_wp', 's26', 16, sync + '_abort', sleep=2)
    a(f's_branch {sync}_lp')
    a.label(sync + '_lm')
    a(f's_mul_i32 s26, {seg_s}, {7*KB}')
    a(f's_add_u32 s26, s26, {MEMG_OFF}')
    wait_eq(a, sync + '_wm', 's26', -1, sync + '_abort', sleep=2, ne=True)
    if PWAIT: a(f's_sleep {PWAIT}')
    a.label(sync + '_lp')
    ev(a, 5)
    a(f's_mul_i32 s26, s16, {10*KB}')
    a('s_add_u32 s27, s25, s26')
    a('v_add_u32 v11, s26, v2')
    a('s_lshl_b32 s26, s20, 6')
    a(f's_add_u32 s26, s26, {seg_s}')
    a('s_lshl_b32 s26, s26, 4')
    a(f's_add_u32 s26, s26, {CNT_OFF + T2F}')
    a('v_lshlrev_b32 v60, 2, v3')
    a('s_mov_b32 s30, 0')
    a.label(sync + '_pl')
    for f in range(10):
        if f % 4 == 0: a(f's_add_u32 s22, s27, {f*1024}')
        a(f'buffer_load_dwordx4 v[{PR+4*f}:{PR+4*f+3}], v2, {WS}, s22 offen offset:{(f & 3)*1024} sc1')
    a(f'buffer_load_dword v61, v60, {WS}, s26 offen sc1')
    a('s_waitcnt vmcnt(1)')
    a(f'v_max_u32 v62, v{PR}, v{PR+1}')
    for r in range(PR + 2, PR + 40, 2): a(f'v_max3_u32 v62, v62, v{r}, v{r+1}')
    a('v_cmp_eq_u32 vcc, -1, v62')
    a(f's_cbranch_vccz {sync}_pk')
    a('s_add_u32 s30, s30, 1')
    a(f's_cmp_lt_u32 s30, {WAIT_LIMIT}')
    a(f's_cbranch_scc1 {sync}_pl')
    a(f's_branch {sync}_abort')
    a.label(sync + '_pk')
    for f in range(10): a(f'ds_write_b128 v11, v[{PR+4*f}:{PR+4*f+3}] offset:{f*1024}')
    def t2l():
        for hq in range(4):
            if hq % 2 == 0: a(f's_add_u32 s22, s24, {hq*2048}')
            for kh in range(2):
                r = T2R + 8 * hq + 4 * kh
                for pc in range(2):
                    a(f'buffer_load_dwordx2 v[{r+2*pc}:{r+2*pc+1}], v7, {WS}, s22 offen offset:{(hq & 1)*2048 + kh*256 + pc*512} {ld}')
    a('s_waitcnt vmcnt(0)')
    a('v_cmp_ne_u32 vcc, 1, v61')
    a('s_mov_b32 s28, 0')
    a(f's_cbranch_vccnz {sync}_nt')
    t2l()
    a('s_mov_b32 s28, 1')
    a.label(sync + '_nt')
    peek(a)
    ev(a, 4)
    a('s_waitcnt lgkmcnt(0)')
    a('s_barrier')
    a(f'buffer_load_dword v61, v60, {WS}, s26 offen sc1')
    ACC = 12; RG = 64
    def rd(i): a(f'ds_read_b128 v[{RG+4*(i&7)}:{RG+4*(i&7)+3}], v6 offset:{i*512}')
    for i in range(6): rd(i)
    for i in range(40):
        if i == T2MID:
            a('s_cmp_lg_u32 s28, 0')
            a(f's_cbranch_scc1 {sync}_h2')
            a('s_waitcnt vmcnt(0)')
            a('v_cmp_ne_u32 vcc, 1, v61')
            a(f's_cbranch_vccnz {sync}_h2')
            t2l()
            a('s_mov_b32 s28, 1')
            a.label(sync + '_h2')
        if i == 32:
            a('s_cmp_lg_u32 s28, 0')
            a(f's_cbranch_scc1 {sync}_ht')
            wait_eq(a, sync + '_wt', 's26', 1, sync + '_abort', four=True, sleep=1)
            t2l()
            a.label(sync + '_ht')
        if i + 6 < 40: rd(i + 6)
        a(f's_waitcnt lgkmcnt({min(6, 39 - i)})' + (' vmcnt(0)' if i == 32 else ''))
        A_ = f'a[{VA+4*i}:{VA+4*i+3}]' if i < 32 else f'v[{T2R+4*(i-32)}:{T2R+4*(i-32)+3}]'
        a(f'v_mfma_f32_32x32x16_bf16 v[{ACC}:{ACC+15}], {A_}, v[{RG+4*(i&7)}:{RG+4*(i&7)+3}], ' + ('0' if i == 0 else f'v[{ACC}:{ACC+15}]'))
    ev(a, 6)
    OL = 48 * KB; RS = 240
    a(f'v_mul_u32_u24 v9, {RS}, v9')
    a(f's_movk_i32 s23, {RS}')
    a('v_lshl_add_u32 v8, v8, 3, v9')
    a('s_mul_i32 s22, s16, 24')
    a('v_add_u32 v7, s22, v8')
    a('s_lshl_b32 s22, s16, 5')
    a('v_add_u32 v8, s22, v8')
    a('v_min_u32 v11, 223, v0')
    a('v_mul_u32_u24 v9, 4682, v11')
    a('v_lshrrev_b32 v9, 16, v9')
    a('v_mul_u32_u24 v10, 14, v9')
    a('v_sub_u32 v10, v11, v10')
    a('v_cmp_gt_u32 vcc, 8, v10')
    a('v_lshlrev_b32 v10, 4, v10')
    a(f'v_mad_u32_u24 v11, v9, s23, v10')
    a('v_mul_u32_u24 v9, 1792, v9')
    a('v_add_u32 v10, v9, v10')
    a(f's_lshl_b32 s22, {vq_s}, 7')
    a(f's_mul_i32 s27, {vq_s}, 96')
    a('s_add_u32 s27, s27, 384')
    a('v_mov_b32 v9, s22')
    a('v_mov_b32 v5, s27')
    a('v_cndmask_b32 v9, v5, v9, vcc')
    a('v_add_u32 v10, v9, v10')
    a(f's_mul_i32 s26, {seg_s}, {32*1792}')
    a('s_add_u32 s26, s26, 896')
    a(f's_add_u32 s27, s26, {16*1792}')
    for jj in range(4):
        d = ACC + 4 * jj; o = 96 + 2 * jj
        a(f'v_cvt_pk_bf16_f32 v{o}, v{d}, v{d+1}')
        a(f'v_cvt_pk_bf16_f32 v{o+1}, v{d+2}, v{d+3}')
        if jj == 3: a('s_mov_b32 exec_hi, 0')
        a(f'ds_write_b64 v{8 if jj < 2 else 7}, v[{o}:{o+1}] offset:{OL + (16*jj if jj < 2 else 128 + 16*(jj-2))}')
    a('s_mov_b64 exec, -1')
    a('s_waitcnt lgkmcnt(0)')
    a('s_barrier')
    a(f'ds_read_b128 v[104:107], v11 offset:{OL}')
    a(f'ds_read_b128 v[108:111], v11 offset:{OL + 16*RS}')
    a('s_cmp_lg_u32 s16, 3')
    a('s_cselect_b32 exec_hi, -1, 0')
    a('s_waitcnt lgkmcnt(1)')
    a(f'buffer_store_dwordx4 v[104:107], v10, {OUT}, s26 offen' + (' sc1' if OSC else ''))
    a('s_waitcnt lgkmcnt(0)')
    a(f'buffer_store_dwordx4 v[108:111], v10, {OUT}, s27 offen' + (' sc1' if OSC else ''))
    a('s_mov_b64 exec, -1')

def gen_tok(which):
    name = f'tok{which}_kernel'
    a = Asm(); a.raw(kernel_header(name))
    common(a, f't{which}_end')
    a('s_lshr_b32 s17, s2, 2')
    a('s_and_b32 s18, s2, 3')
    if which == 'p': tokp_body(a, 's17', 's18')
    else: toko_body(a, 's17', 's18')
    a.label(f't{which}_end')
    a('s_endpgm')
    return a
```

```python
from asmlib import *
from layout import *
import chain as C, start as S, prep, gemm, tok, s4d, t2srv
from chain import SRD, DBG, evlog
BC = 160000
JOBQ = 192; NON = 128
def mask_off(a, dst, cls):
    a(f's_and_b32 s71, {cls}, 4')
    a('s_mul_i32 s71, s71, 12')
    a(f's_lshl_b32 {dst}, {cls}, 2')
    a(f's_add_u32 {dst}, {dst}, s71')
MASK0 = 32
SCRAMBLE = 0
XPRE = 0
EVMID = 0
WARM = 1
VPF = 56
A1T = 0
XE = 3
ZO = 0
T0 = 0
XL = 0
LATE = 0
SKIP = 0
S4X = 1
G16 = 1
LLW = 2
TD = 8
AX = 1
GX = 1
MIX = 0
CPOS = 512 if s4d.STAGE else 9999
AP0 = 8
AP1 = 10
AP2 = 12
ASP = 1
BFIRST = 0
FL2 = 4
VPK = 16
STEAL_AT = 64
Q_FINE = 0; Q_SRV = Q_FINE + 224; Q_V7 = Q_SRV + 32; Q_VH = Q_V7 + 112; Q_VF = Q_VH + 64; Q_A = Q_VF + 64; Q_F = Q_A + 128; Q_S4 = Q_F + 128; Q_TOK = Q_S4 + 112; Q_END = Q_TOK + 512 + 64 * s4d.STAGE

def kargs(a):
    a('s_load_dwordx8 s[36:43], s[0:1], 56')
    a('s_load_dwordx4 s[44:47], s[0:1], 88')
def lanes(a):
    a('v_and_b32 v1, 63, v0')
    a('v_lshlrev_b32 v2, 4, v1')
    a('v_lshrrev_b32 v3, 4, v1')
    a('v_and_b32 v4, 15, v1')
def w0(a, fn):
    l = a.newlabel('w0')
    a('s_cmp_lg_u32 s16, 0')
    a(f's_cbranch_scc1 {l}')
    fn()
    a.label(l)
def bcast(a, regs, dsts, t=250):
    a(f'v_mov_b32 v{t}, {BC}')
    a('s_add_u32 s101, s101, 1')
    def wr():
        for i, r in enumerate(regs): a(f'ds_write_b32 v{t}, v{r} offset:{4*i}')
        a('s_waitcnt lgkmcnt(0)')
        a(f'v_mov_b32 v{regs[0]}, s101')
        a(f'ds_write_b32 v{t}, v{regs[0]} offset:16')
        a('s_waitcnt lgkmcnt(0)')
    a('s_barrier')
    a('s_mov_b64 exec, 1')
    w0(a, wr)
    a('s_mov_b64 exec, -1')
    a('s_barrier')
    for i, r in enumerate(regs): a(f'ds_read_b32 v{r}, v{t} offset:{4*i}')
    a(f'ds_read_b32 v{t}, v{t} offset:16')
    a('s_waitcnt lgkmcnt(0)')
    for r, d in zip(regs, dsts): a(f'v_readfirstlane_b32 {d}, v{r}')
    a(f'v_cmp_ne_u32 vcc, s101, v{t}')
    a('s_cbranch_vccnz ch_end')

def claim_issue(a, P, r=242):
    a('s_cmp_lg_u32 s66, 0')
    a(f's_cbranch_scc1 {P}_ci')
    def at():
        a('s_lshr_b32 s70, s3, 5')
        mask_off(a, 's70', 's70')
        a('s_lshl_b32 s71, 1, s3')
        a(f'v_mov_b32 v{r}, s71')
        a(f'v_mov_b32 v{r+1}, {MASK0}')
        a('s_mov_b64 exec, 1')
        a(f'buffer_atomic_or v{r}, v{r+1}, {DBG}, s70 offen sc0')
        a(f'buffer_load_dwordx2 v[{r+2}:{r+3}], v{r+1}, {DBG}, 0 offen offset:{NON-MASK0} sc1')
        a('s_mov_b64 exec, -1')
    w0(a, at)
    a.label(f'{P}_ci')

def set_nonce(a, r):
    a(f'v_mov_b32 v{r+1}, {NON}')
    a(f'v_mov_b32 v{r+2}, s88\nv_mov_b32 v{r+3}, s89\nv_mov_b32 v{r+4}, 0\nv_mov_b32 v{r+5}, 0')
    a('s_mov_b64 exec, 1')
    a(f'buffer_atomic_cmpswap_x2 v[{r+2}:{r+5}], v{r+1}, {DBG}, 0 offen sc0')
    a('s_mov_b64 exec, -1')

def confirm(a, P, n, r=242):
    a('s_cmp_lg_u32 s66, 0')
    a(f's_cbranch_scc1 {P}_cf')
    def w():
        a(f's_waitcnt vmcnt({n})')
        a(f'v_readfirstlane_b32 s70, v{r+2}')
        a('s_cmp_lg_u32 s70, 0')
        a(f's_cbranch_scc1 {P}_nz')
        set_nonce(a, r)
        a('s_waitcnt vmcnt(0)')
        a(f'v_readfirstlane_b32 s70, v{r+2}')
        a('s_cmp_lg_u32 s70, 0')
        a(f's_cbranch_scc1 {P}_nz')
        a(f'v_mov_b32 v{r+2}, s88\nv_mov_b32 v{r+3}, s89')
        a.label(f'{P}_nz')
    w0(a, w)
    bcast(a, [r, r + 2, r + 3], ['s70', 's88', 's89'], t=r + 1)
    a('s_mov_b32 s66, 1')
    a('s_bitcmp1_b32 s70, s3')
    a('s_cbranch_scc1 m_reclaim')
    a.label(f'{P}_cf')

def claim_loop(a, P, lo_class, ncls):
    a('s_mov_b32 s21, 0')
    a('s_mov_b64 exec, 1')
    a.label(f'{P}_l')
    a('s_cmp_lg_u32 s70, -1')
    a(f's_cbranch_scc1 {P}_t')
    a('s_add_u32 s20, s20, 1')
    a('s_cmp_lt_u32 s20, 8')
    a(f's_cselect_b32 s20, s20, {lo_class}')
    a('s_mov_b32 s70, 0')
    a('s_mov_b32 s3, -1')
    a('s_add_u32 s21, s21, 1')
    a(f's_cmp_ge_u32 s21, {ncls}')
    a(f's_cbranch_scc1 {P}_d')
    a.label(f'{P}_t')
    a('s_ff0_i32_b32 s22, s70')
    a('s_lshl_b32 s23, 1, s22')
    mask_off(a, 's3', 's20')
    a('v_mov_b32 v242, s23')
    a(f'v_mov_b32 v243, {MASK0}')
    a(f'buffer_atomic_or v242, v243, {DBG}, s3 offen sc0')
    a('s_waitcnt vmcnt(0)')
    a('v_readfirstlane_b32 s70, v242')
    a('s_lshl_b32 s3, s20, 5')
    a('s_add_u32 s3, s3, s22')
    a('s_bitcmp1_b32 s70, s22')
    a(f's_cbranch_scc1 {P}_l')
    a.label(f'{P}_d')
    a('s_mov_b64 exec, -1')
    a('v_mov_b32 v242, s3')

def allflags(a, P, rep_s, t=24, limit=None, sleep=4, on_spin=None, base=IF_OFF):
    a(f's_lshl_b32 s22, {rep_s}, 11')
    a(f's_add_u32 s22, s22, {base}')
    a(f'v_add_u32 v{t}, 1024, v2')
    a(f'v_min_u32 v{t}, {1792-16}, v{t}')
    S.flag_poll(a, P, t + 4, [(2, 's22'), (t, 's22')], 'cA_abort', limit or C.SLOW_LIMIT, sleep, on_spin)

def ask(a):
    def f():
        a('v_mov_b32 v250, 1')
        a(f'v_mov_b32 v251, {JOBQ}')
        a('s_mov_b64 exec, 1')
        a(f'buffer_atomic_add v250, v251, {DBG}, 0 offen sc0')
        a('s_mov_b64 exec, -1')
    w0(a, f)

def xpick(a, P, qoff, nq, lg=4):
    def pick():
        a('s_getreg_b32 s20, hwreg(HW_REG_XCC_ID)')
        a(f's_sub_u32 s20, s20, {C.XCD_SEL + 1}')
        a('s_and_b32 s20, s20, 7')
        a('s_mov_b64 exec, 1')
        a.label(P + '_l')
        a(f's_cmp_ge_u32 s20, {nq}')
        a('s_cselect_b32 s20, 0, s20')
        a('s_lshl_b32 s21, s20, 7')
        a(f's_add_u32 s21, s21, {CNT_OFF + qoff}')
        a('v_mov_b32 v242, 1')
        a(f'buffer_atomic_add v242, off, {SRD}, s21 sc0')
        a('s_waitcnt vmcnt(0)')
        a('v_readfirstlane_b32 s21, v242')
        a(f's_lshl_b32 s22, s20, {lg}')
        a('s_add_u32 s20, s20, 1')
        a(f's_cmp_ge_u32 s21, {1 << lg}')
        a(f's_cbranch_scc1 {P}_l')
        a('v_add_u32 v242, s22, v242')
        a('s_mov_b64 exec, -1')
    w0(a, pick)
    bcast(a, [242], ['s3'], t=243)

def worker(a):
    global gemm
    if G16:
        import gemm16 as gemm
    tok.PEEK = DBG
    a.label('m_bjob')
    lanes(a)
    a('s_sub_u32 s18, s3, 32')
    vq = S.VQ()
    S.bjob_decode(a)
    def early():
        S.bjob_x(a, vq)
        a('s_lshl_b32 s26, s17, 9')
        if A1T: S.a1_touch(a, vq)
    if T0:
        a('s_lshl_b32 s26, s17, 9')
        S.a1_touch(a, vq, T0)
    if XE == 0: early()
    S.bjob_issue(a, vq, hook=early if XE == 1 else None)
    if XE == 2: early()
    evlog(a, 9008, 52)
    claim_issue(a, 'bj', 44)
    S.bjob_run(a, 'bj', vq, 1, None, 's77', False, early if XE == 3 else None)
    if XE == 4: early()
    a(f's_add_u32 s78, s77, {IF_OFF - BF_OFF}')
    confirm(a, 'bj', 8 + (4 + A1T if XE == 4 else 0), 44)
    evlog(a, 9001, 52)
    a('s_barrier')
    def hk(n):
        a(f's_waitcnt vmcnt({n + (4 + A1T if XE == 4 else 0)})')
        S.publish(a, 's77', 1, 48)
        evlog(a, 9002, 112)
        if XE == 4: a(f's_waitcnt vmcnt({n})')
        S.init_stores(a, 'bk', vq)
        S._fills(a, vq)
    S.a3_issue(a, hk)
    a('v_mov_b32 v250, s68')
    a('s_or_b32 s20, s69, s16')
    a('s_cbranch_scc1 bj_ht')
    ask(a)
    a('s_branch bj_h2')
    a.label('bj_ht')
    a(f'buffer_load_dword v251, off, {SRD}, s77')
    a.label('bj_h2')
    S.a3_run(a, 1, lambda: w0(a, lambda: S.flag_store(a, 's78', BF_R, 2048, 48)))
    if LLW == 1: S.llc_warm(a, 's18', not ZO)
    evlog(a, 9009)
    bcast(a, [250], ['s3'], t=6)
    a('s_branch wk_have')
    a.label('wk_loop')
    a('s_waitcnt vmcnt(0) lgkmcnt(0)')
    a('s_cmp_eq_u32 s96, 1')
    a('s_cbranch_scc1 wk_ask')
    a('s_mov_b32 s96, 1')
    def staff():
        a('s_mov_b32 s30, 0')
        a(f'v_mov_b32 v243, {MASK0}')
        a.label('sf_l')
        a(f'buffer_load_dword v242, v243, {DBG}, 0 offen sc1')
        a('s_waitcnt vmcnt(0)')
        a('v_readfirstlane_b32 s70, v242')
        a('s_cmp_eq_u32 s70, -1')
        a('s_cbranch_scc1 sf_d')
        a('s_sleep 16')
        a('s_add_u32 s30, s30, 1')
        a('s_cmp_lt_u32 s30, 64')
        a('s_cbranch_scc1 sf_l')
        a('s_mov_b32 s20, 0')
        claim_loop(a, 'sf_c', 0, 1)
        a.label('sf_d')
    w0(a, staff)
    bcast(a, [242], ['s3'], t=243)
    a('s_cmp_eq_u32 s3, -1')
    a('s_cbranch_scc1 wk_ask')
    kargs(a)
    a('s_getreg_b32 s67, hwreg(HW_REG_XCC_ID)')
    a('s_and_b32 s67, s67, 7')
    a('s_mov_b32 s66, 1')
    a('s_waitcnt lgkmcnt(0)')
    a('s_branch m_start')
    a.label('wk_ask')
    a('v_readfirstlane_b32 s22, v250')
    a(f's_cmp_ge_u32 s22, {Q_END}')
    a('s_cbranch_scc1 wk_next')
    ask(a)
    a.label('wk_next')
    evlog(a, 9005)
    a('s_waitcnt vmcnt(0)')
    bcast(a, [250], ['s3'], t=6)
    a.label('wk_have')
    evlog(a, 's3')
    a(f's_cmp_ge_u32 s3, {Q_END}')
    a('s_cbranch_scc1 ch_end')
    a('v_mov_b32 v250, 0')
    a(f'v_mov_b32 v251, {JOBQ}')
    lanes(a)
    a('s_cmp_lg_u32 s97, 0')
    a('s_cbranch_scc1 wk_go')
    a('s_mov_b32 s68, s3\ns_mov_b32 s69, 1')
    def poll():
        def spin():
            a(f's_and_b32 s20, s30, {STEAL_AT-1}')
            a('s_cbranch_scc1 wk_ns')
            a('s_mov_b32 s20, 1\ns_mov_b32 s70, 0')
            claim_loop(a, 'wk_st', 1, 7)
            a('s_cmp_lg_u32 s3, -1')
            a('s_cbranch_scc1 wk_pd')
            a('s_add_u32 s20, s67, 1')
            a(f's_lshl_b32 s22, s20, 11')
            a(f's_add_u32 s22, s22, {IF_OFF}')
            a.label('wk_ns')
        a('s_add_u32 s20, s67, 1')
        allflags(a, 'wk_af', 's20', sleep=4, on_spin=spin)
        a('v_mov_b32 v242, -1')
        a.label('wk_pd')
    w0(a, poll)
    bcast(a, [242], ['s3'], t=243)
    a('s_cmp_lg_u32 s3, -1')
    a('s_cbranch_scc1 m_bjob')
    a('s_mov_b32 s3, s68\ns_mov_b32 s97, 1')
    evlog(a, 9006)
    a.label('wk_go')
    a(f's_cmp_lt_u32 s3, {Q_VH}')
    a('s_cbranch_scc1 wk_g2')
    a(f's_sub_u32 s20, s3, {Q_A}')
    a('s_cmp_lt_u32 s20, 128')
    a('s_cbranch_scc1 wk_g2')
    a('s_cmp_eq_u32 s97, 2')
    a('s_cbranch_scc1 wk_g2')
    a('s_getreg_b32 s20, hwreg(HW_REG_XCC_ID)')
    a('s_and_b32 s20, s20, 7')
    w0(a, lambda: allflags(a, 'wk_i2', 's20', sleep=4, base=I2_OFF))
    a('v_mov_b32 v242, 0')
    bcast(a, [242], ['s20'], t=243)
    a('s_mov_b32 s97, 2')
    a.label('wk_g2')
    if MIX:
        a(f's_sub_u32 s20, s3, {Q_F + 64}')
        a(f's_cmp_lt_u32 s20, {MIX}')
        a('s_cbranch_scc1 wk_s4d')
        a(f's_cmp_lt_u32 s20, {MIX + 64}')
        a(f's_cselect_b32 s20, {MIX}, 0')
        a('s_sub_u32 s3, s3, s20')
    for lim, lab in ((Q_TOK, 'wk_tok'), (Q_S4, 'wk_s4d'), (Q_F, 'wk_f'), (Q_A, 'wk_a'), (Q_VF, 'wk_vf'), (Q_VH, 'wk_vh'), (Q_V7, 'wk_v7'), (Q_SRV, 'wk_srv')):
        a(f's_cmp_ge_u32 s3, {lim}')
        a(f's_cbranch_scc1 {lab}')
    a(f's_sub_u32 s20, s3, {Q_FINE}')
    a('s_cmp_ge_u32 s20, 112')
    a('s_cselect_b32 s18, 1, 0')
    a('s_cselect_b32 s21, 112, 0')
    a('s_sub_u32 s20, s20, s21')
    a('s_and_b32 s17, s20, 15')
    a('s_add_u32 s17, s17, 16')
    a('s_lshr_b32 s34, s20, 4')
    a('s_lshl_b32 s34, s34, 1')
    a('s_add_u32 s35, s34, 2')
    if LLW == 2:
        a('s_cmp_eq_u32 s18, 0')
        a('s_cbranch_scc1 wf_nw')
        S.llc_warm(a, 's3', not ZO)
        a('s_sub_u32 s3, s3, 112')
        S.llc_warm(a, 's3', not ZO)
        a('s_add_u32 s3, s3, 112')
        a.label('wf_nw')
    gemm.gemm_body(a, 'wf', 's18', 's17', st='sc1', signal=True, ld='sc1', NT=2)
    kargs(a)
    a('s_waitcnt lgkmcnt(0)')
    S.init2(a, 's3', ZO)
    if LLW == 3: S.llc_warm(a, 's3', not ZO)
    a('s_branch wk_loop')
    a.label('wk_v7')
    a(f's_sub_u32 s20, s3, {Q_V7}')
    a('s_mov_b32 s18, 1')
    a('s_and_b32 s17, s20, 15')
    a('s_add_u32 s17, s17, 16')
    a('s_lshr_b32 s34, s20, 4')
    a('s_lshl_b32 s34, s34, 1')
    a('s_add_u32 s35, s34, 2')
    a('s_branch wk_gemm')
    a.label('wk_vh')
    a(f's_sub_u32 s20, s3, {Q_VH}')
    a('s_and_b32 s17, s20, 15')
    a('s_add_u32 s17, s17, 16')
    a('s_lshr_b32 s18, s20, 5')
    a('s_add_u32 s18, s18, 2')
    a('s_bitcmp1_b32 s20, 4')
    a('s_cselect_b32 s34, 7, 0')
    a('s_add_u32 s35, s34, 7')
    a('s_branch wk_gemm')
    a.label('wk_vf')
    if GX:
        xpick(a, 'vx', S4Q + 2048, 8, 3)
        a('s_lshr_b32 s17, s3, 2')
        a('s_and_b32 s18, s3, 3')
    else:
        a(f's_sub_u32 s20, s3, {Q_VF}')
        a('s_and_b32 s17, s20, 15')
        a('s_lshr_b32 s18, s20, 4')
    a('s_add_u32 s17, s17, 16')
    a('s_add_u32 s18, s18, 4')
    a('s_mov_b32 s34, 0\ns_mov_b32 s35, 14')
    a('s_branch wk_gemm')
    a.label('wk_f')
    if SKIP & 4: a('s_branch wk_loop')
    if GX:
        xpick(a, 'fx', S4Q + 3072, 8)
        a('s_lshr_b32 s17, s3, 3')
        a('s_and_b32 s18, s3, 7')
    else:
        a(f's_sub_u32 s20, s3, {Q_F}')
        a('s_and_b32 s17, s20, 15')
        a('s_lshr_b32 s18, s20, 4')
    a('s_mov_b32 s34, 0\ns_mov_b32 s35, 14')
    a('s_lshl_b32 s22, s17, 7')
    a(f's_add_u32 s22, s22, {AF_OFF}')
    a(f's_add_u32 s23, s22, {A3_OFF - AF_OFF}')
    a('v_min_u32 v24, 48, v2')
    a('v_min_u32 v25, 96, v2')
    S.flag_poll(a, 'wk_aw', 28, [(24, 's22'), (25, 's23')], 'cA_abort', C.SLOW_LIMIT, 6)
    a.label('wk_gemm')
    gemm.gemm_body(a, 'wg', 's18', 's17', st='sc1', signal=True, ld='sc1')
    a('s_branch wk_loop')
    a.label('wk_a')
    if SKIP & 8: a('s_branch wk_loop')
    if AX:
        xpick(a, 'ax', S4Q + 1024, 8)
        kargs(a)
        a('s_lshr_b32 s17, s3, 3')
        a('s_and_b32 s19, s3, 3')
        a('s_bitcmp1_b32 s3, 2')
    else:
        kargs(a)
        a(f's_sub_u32 s3, s3, {Q_A}')
        a('s_and_b32 s17, s3, 15')
        a('s_lshr_b32 s19, s3, 5')
        a('s_bitcmp1_b32 s3, 4')
    a('s_cselect_b32 s31, 7, 0')
    a('s_waitcnt lgkmcnt(0)')
    vq = S.VQ()
    S.bjob_issue(a, vq, 0, 'aj')
    S.bjob_run(a, 'aj', vq, 0)
    a('v_mov_b32 v250, 0')
    a('s_branch wk_loop')
    a.label('wk_srv')
    if SKIP & 16: a('s_branch ch_end')
    a(f's_sub_u32 s3, s3, {Q_SRV}')
    a('s_and_b32 s18, s3, 15')
    a('s_lshr_b32 s19, s3, 4')
    a('s_and_b32 s19, s19, 1')
    t2srv.t2srv_body(a, 'ws', 's18', 's19', 'cA_abort', ld='sc1')
    a('v_mov_b32 v250, 0')
    a('s_branch wk_loop')
    a.label('wk_s4d')
    if SKIP & 1: a('s_branch wk_loop')
    if S4X:
        xpick(a, 's4', S4Q, 7)
    else: a(f's_sub_u32 s3, s3, {Q_S4}')
    s4d.s4d_setup(a)
    s4d.s4d_item(a, 'wk', 's3')
    a('s_branch wk_loop')
    a.label('wk_tok')
    if SKIP & 2: a('s_branch wk_loop')
    a(f's_sub_u32 s3, s3, {Q_TOK}')
    if s4d.STAGE:
        a(f's_cmp_lt_u32 s3, {CPOS}')
        a('s_cbranch_scc1 wk_tk')
        a('s_sub_u32 s3, s3, 64')
        a(f's_cmp_ge_i32 s3, {CPOS}')
        a('s_cbranch_scc1 wk_tk')
        a(f's_sub_u32 s18, s3, {CPOS - 64}')
        a(f's_mov_b32 s20, {CNT_OFF + S4C}')
        if s4d.STAGE:
            C.poll_eq(a, 'wk_cw', SRD, 's20', 112, sleep=32)
            s4d.s4d_copy(a, 's18')
        a('s_branch wk_loop')
        a.label('wk_tk')
    a('s_and_b32 s18, s3, 3')
    a('s_lshr_b32 s17, s3, 2')
    a(f's_cmp_lt_u32 s17, {TD}')
    a('s_cbranch_scc1 wk_tokp')
    a(f's_sub_u32 s17, s17, 64')
    a(f's_cmp_ge_i32 s17, {64 - TD}')
    a('s_cbranch_scc1 wk_toko')
    a(f's_add_u32 s20, s17, {64 - TD}')
    a('s_lshr_b32 s17, s20, 1')
    a('s_bitcmp0_b32 s20, 0')
    a('s_cbranch_scc1 wk_toko')
    a(f's_add_u32 s17, s17, {TD}')
    a.label('wk_tokp')
    tok.tokp_body(a, 's17', 's18', ld='sc1', st='sc1', sync='wp', ldx='sc1')
    a('s_branch wk_loop')
    a.label('wk_toko')
    tok.toko_body(a, 's17', 's18', ld='sc1', sync='wo', OUT='s[92:95]')
    if C.TMAX:
        a('s_cmp_lg_u32 s17, 63')
        a('s_cbranch_scc1 tm_n')
        a('s_waitcnt vmcnt(0)')
        C.tmax(a, 7)
        a.label('tm_n')
    a('v_readfirstlane_b32 s22, v250')
    a(f's_cmp_ge_u32 s22, {Q_END}')
    a('s_cbranch_scc1 ch_end')
    a('s_branch wk_loop')
    a.label('wp_abort')
    a.label('wo_abort')
    a('s_branch cA_abort')

def staffed(a, r=242):
    def f():
        a(f's_cmp_eq_u32 s67, {C.XCD_SEL}')
        a('s_cselect_b32 s20, 1, 0x10001')
        a(f'v_mov_b32 v{r}, s20')
        a(f'v_mov_b32 v{r+1}, 0')
        a('s_mov_b64 exec, 1')
        a(f'buffer_atomic_add v{r}, v{r+1}, {DBG}, 0 offen')
        a('s_mov_b64 exec, -1')
    w0(a, f)

def gen(name='main_kernel'):
    C.SYNC = 1; C.MERGE = 2; C.SELF = 2
    a = Asm()
    a.raw(kernel_header(name))
    a('s_cmp_ge_u32 s2, 256')
    a('s_cbranch_scc1 ch_end')
    a('s_load_dwordx4 s[4:7], s[0:1], 120')
    a('s_load_dwordx2 s[92:93], s[0:1], 112')
    kargs(a)
    a('s_memrealtime s[88:89]')
    if C.CODE_PF == 1: code_prefetch_shared(a, name, 'ch_end', 60)
    if C.CODE_PF == 2: code_prefetch(a, name, 'ch_end', 160000, 60)
    a('s_getreg_b32 s67, hwreg(HW_REG_XCC_ID)')
    a('s_and_b32 s67, s67, 7')
    a('v_lshrrev_b32 v1, 6, v0')
    a('v_readfirstlane_b32 s16, v1')
    a('s_mov_b32 s66, 0\ns_mov_b32 s68, 0\ns_mov_b32 s69, 0\ns_mov_b32 s96, 0\ns_mov_b32 s97, 0\ns_mov_b32 s101, 0x5eed0000')
    a(f's_sub_u32 s20, s67, {C.XCD_SEL}')
    a('s_lshr_b32 s21, s2, 3')
    if SCRAMBLE: a('s_add_u32 s20, s20, s21')
    if SCRAMBLE == 2: a('s_lshr_b32 s21, s21, 2')
    a('s_and_b32 s20, s20, 7')
    a('s_lshl_b32 s3, s20, 5')
    a('s_add_u32 s3, s3, s21')
    a('s_waitcnt lgkmcnt(0)')
    a('s_mov_b32 s8, s6\ns_and_b32 s9, s7, 0xffff\ns_mov_b32 s10, 0x10000000\ns_mov_b32 s11, 0x20000')
    a('s_mov_b32 s12, s4\ns_and_b32 s13, s5, 0xffff\ns_mov_b32 s14, 256\ns_mov_b32 s15, 0x20000')
    a('s_or_b32 s88, s88, 1')
    a(f's_and_b32 s93, s93, 0xffff\ns_mov_b32 s94, {2048*896*2}\ns_mov_b32 s95, 0x20000')
    if C.EVLOG:
        a('s_lshl_b32 s100, s2, 2')
        a('s_add_u32 s100, s100, s16')
        a('s_lshl_b32 s100, s100, 8')
        a(f's_add_u32 s100, s100, {C.EV_OFF}')
    evlog(a, 9000)
    if LATE:
        a('s_mul_i32 s20, s2, 37\ns_and_b32 s20, s20, 15\ns_cmp_lg_u32 s20, 8\ns_cbranch_scc1 m_nl')
        a('s_mov_b32 s20, 0')
        a.label('m_ll')
        a(f's_sleep 127\ns_add_u32 s20, s20, 1\ns_cmp_lt_u32 s20, {LATE}\ns_cbranch_scc1 m_ll')
        a.label('m_nl')
        a('s_mul_i32 s20, s2, 37\ns_and_b32 s20, s20, 15\ns_cmp_lg_u32 s20, 3\ns_cbranch_scc1 m_nl2')
        a('s_mov_b32 s20, 0')
        a.label('m_ll2')
        a(f's_sleep 127\ns_add_u32 s20, s20, 1\ns_cmp_lt_u32 s20, {LATE}\ns_cbranch_scc1 m_ll2')
        a.label('m_nl2')
    acs = S.AComp(a, 'as')
    def evm(p):
        a('s_memrealtime s[98:99]' if EVMID == 1 else 's_memtime s[98:99]')
        a(f'v_mov_b32 v96, {9100 + p}')
        a('s_mov_b64 exec, 1')
        a(f'buffer_store_dword v96, off, {SRD}, s100')
        a('s_waitcnt lgkmcnt(0)')
        a('v_mov_b32 v96, s98')
        a(f'buffer_store_dword v96, off, {SRD}, s100 offset:4')
        a('s_mov_b64 exec, -1')
        a('s_add_u32 s100, s100, 8')
    acs.mid = evm if EVMID else None
    a.label('m_start')
    a('s_cmp_ge_u32 s3, 32')
    a('s_cbranch_scc1 m_bjob')
    C.lane_consts(a)
    a('s_and_b32 s17, s3, 15')
    a('s_cmp_ge_u32 s3, 16')
    a('s_cbranch_scc1 m_val')
    acs.issue()
    evlog(a, 9008, 96)
    claim_issue(a, 'sc', 248)
    acs.setup()
    acs.fetch()
    confirm(a, 'sc', 4 * (S.APRE - 1), 248)
    staffed(a, 248)
    evlog(a, 9001, 96)
    a('s_lshl_b32 s28, s17, 7')
    a(f's_add_u32 s28, s28, {A3_OFF}')
    a('v_min_u32 v113, 96, v2')
    a(f's_mov_b32 s29, {IF_OFF}')
    a('v_add_u32 v112, 1024, v2')
    a(f'v_min_u32 v112, {1792-16}, v112')
    fl = [(113, 's28'), (2, 's29'), (112, 's29')]
    a(f's_mul_i32 s32, s17, {CUW_B}')
    a(f's_mul_i32 s33, s16, {TILE_B}')
    a('s_add_u32 s32, s32, s33')
    a('s_add_u32 s33, s32, s33')
    a(f's_add_u32 s32, s32, {24*TILE_B}')
    a(f's_add_u32 s33, s33, {16*TILE_B}')
    TL = [(4, 's33', 0), (5, 's33', TILE_B), (6, 's32', 0)]
    pieces = [5, 6, 9, 7, 8, 0, 1, 2]
    def place(j, f):
        if j == 0: return None if f < 8 else f - 8
        if j == 1: return 6 + f
        return None if f >= 12 else 20 + f
    lof = lambda x: pieces[x >> 2] * 16384 + (x & 3) * 1024
    fld = lambda: [f'buffer_load_dwordx4 v[100:103], v113, {SRD}, s28 offen sc1', ('vq', 'f')]
    AP = [AP0, AP1, AP2]
    assert AP0 >= 7 and AP1 >= 9 and 11 <= AP2 <= 12 and AP0 < AP1 < AP2
    def ld(j, f):
        ti = TL[j][0]; x = place(j, f)
        g = [f's_add_u32 s22, s{48+j}, {f*1024}']
        if x is None: g.append(f'buffer_load_dwordx4 {ureg(C.wreg(ti, f >> 1) + 4 * (f & 1), 4)}, v2, {SRD}, s22 offen sc1')
        else: g += [f's_add_u32 m0, s25, {lof(x)}', f'buffer_load_dwordx4 v2, {SRD}, s22 offen sc1 lds']
        return g + [('vq', 'a')]
    def extra(p):
        o = []
        if p in AP:
            j = AP.index(p); ti, br, bo = TL[j]
            o.append([f's_waitcnt vmcnt({acs.vq.wait("f") if "f" in acs.vq.q else 63})', f'v_cmp_ne_u64 vcc, {S.NONCE}, v[100:101]', f'v_cmp_ne_u64 s[54:55], {S.NONCE}, v[102:103]', f's_add_u32 s{48+j}, {br}, {bo}'])
            for k, f in enumerate(range(14) if j < 2 else [12, 13] + list(range(8))):
                o.append((['s_or_b64 vcc, vcc, s[54:55]', f's_cselect_b32 s{48+j}, 0x10000000, s{48+j}'] if k == 0 else []) + ld(j, f))
                if ASP and j < 2 and AP[j + 1] - p > 1: o.append([])
        if p + 1 in AP:
            while len(o) <= FL2: o.append([])
            o[FL2] = o[FL2] + fld()
        if p == 13:
            o += [ld(2, f) for f in range(8, 12)]
            o.append([f'buffer_load_dwordx4 v[{100+4*i}:{103+4*i}], v{va}, {SRD}, {so} offen sc1' for i, (va, so) in enumerate(fl)])
        return o
    acs.run(lambda t, p: C.wreg(t, p >> 1) + 4 * (p & 1), extra)
    evlog(a, 9002)
    S.flag_poll(a, 'sc_aw', 100, fl, 'cA_abort', C.SLOW_LIMIT, 1, issued=True)
    a('v_add_u32 v4, s25, v2')
    a('v_add_u32 v5, 0x10000, v4')
    a('v_add_u32 v6, 0x20000, v4')
    for j, (ti, br, bo) in enumerate(TL):
        a(f's_cmp_eq_u32 s{48+j}, 0x10000000')
        a(f's_cbranch_scc1 sc_d{j}')
        for f in range(14):
            x = place(j, f)
            if x is not None: a(f'ds_read_b128 {ureg(C.wreg(ti, f >> 1) + 4 * (f & 1), 4)}, v{4 + (lof(x) >> 16)} offset:{lof(x) & 0xffff}')
        a('s_waitcnt lgkmcnt(0)')
        a(f's_branch sc_e{j}')
        a.label(f'sc_d{j}')
        C.load_units(a, [(bo + ks * UNIT, C.wreg(ti, ks)) for ks in range(7)], br)
        a.label(f'sc_e{j}')
    a('s_barrier')
    a('s_branch m_role')
    a.label('m_val')
    w0(a, lambda: set_nonce(a, 232))
    claim_issue(a, 'va')
    if VPF:
        S.srd(a, 56, 40, S.W_BYTES)
        a('v_lshrrev_b32 v24, 5, v1')
        a('v_and_b32 v25, 31, v1')
        a('v_lshlrev_b32 v25, 4, v25')
        a('v_lshl_add_u32 v24, v24, 13, v25')
        S.srd(a, 60, 42, S.W_BYTES)
        a('s_lshl_b32 s22, s17, 9')
        a('s_lshl_b32 s23, s16, 19')
        a('s_add_u32 s23, s22, s23')
        for i in range(VPK):
            a(f's_add_u32 s21, s23, {(64 - 2*VPK + 2*i) << 13}')
            a('buffer_load_dwordx4 v[28:31], v24, s[60:63], s21 offen')
        a('s_lshl_b32 s23, s16, 14')
        a('s_add_u32 s22, s22, s23')
        a('s_mov_b32 s30, 0')
        a.label('va_pf')
        a('buffer_load_dwordx4 v[28:31], v24, s[56:59], s22 offen')
        a('s_waitcnt vmcnt(40)')
        a('s_add_u32 s22, s22, 65536')
        a('s_add_u32 s30, s30, 1')
        a(f's_cmp_lt_u32 s30, {VPF}')
        a('s_cbranch_scc1 va_pf')
    evlog(a, 9008)
    confirm(a, 'va', min(VPF + VPK, 40) if VPF else 0)
    staffed(a)
    evlog(a, 9001)
    a.label('m_role')
    evlog(a, 9006)
    a('s_mov_b32 s17, s3')
    def late(p):
        if p >= 4: allflags(a, f'va_iw{p}', '0', t=36, sleep=2)
    def bdep(ra, rb):
        a('s_lshl_b32 s22, s17, 4')
        a('v_mov_b32 v38, s22')
        if rb:
            a('s_mul_i32 s22, s17, 12')
            a('s_add_u32 s23, s22, 267')
            a('s_add_u32 s22, s22, 256')
            a('v_mov_b32 v36, s23')
            a('v_mov_b32 v37, s22')
            a('v_cmp_eq_u32 vcc, 1, v116')
            a('v_cndmask_b32 v36, v36, v37, vcc')
            a(f'v_med3_u32 v37, v117, {rb[0]}, {rb[1]}')
            if ra:
                a(f'v_med3_u32 v39, v117, {ra[0]}, {ra[1]}')
                a('v_cmp_eq_u32 vcc, 0, v116')
                a('v_cndmask_b32 v36, v36, v38, vcc')
                a('v_cndmask_b32 v37, v37, v39, vcc')
        else:
            a('v_mov_b32 v36, v38')
            a(f'v_med3_u32 v37, v117, {ra[0]}, {ra[1]}')
        a('v_lshrrev_b32 v36, 6, v36')
        a('v_lshlrev_b32 v36, 8, v36')
        a('v_lshl_add_u32 v36, v37, 4, v36')
        a(f's_mov_b32 s22, {BF_OFF}')
        S.flag_poll(a, a.newlabel('va_bw'), 40, [(36, 's22')], 'cA_abort', C.SLOW_LIMIT, 2)
        evlog(a, 9002)
    C.BDEP = bdep
    C.role_tail(a, late)
    a.label('m_reclaim')
    a('s_waitcnt vmcnt(0)')
    a('s_lshr_b32 s20, s3, 5')
    w0(a, lambda: claim_loop(a, 'rc', 0, 9))
    bcast(a, [242], ['s3'])
    a('s_cmp_lg_u32 s3, -1')
    a('s_cbranch_scc1 m_start')
    a('v_mov_b32 v250, 0')
    a('s_branch wk_ask')
    worker(a)
    a.label('ch_end')
    a('s_endpgm')
    return a
```
